```python
import torch

def _softmax(x, axis=-1):
    return torch.softmax(x, dim=axis)
def _gelu(x):
    return torch.nn.functional.gelu(x, approximate="tanh")
def _silu(x):
    return torch.nn.functional.silu(x)
def _sigmoid(x):
    return torch.sigmoid(x)
def _layernorm(x, axis=-1, eps=1e-5):
    m = x.mean(dim=axis, keepdim=True)
    v = x.var(dim=axis, keepdim=True, unbiased=False)
    return (x - m) / torch.sqrt(v + eps)
def _scatter_add(tgt, idx, src, axis=0):
    return tgt.clone().index_add_(axis, idx, src)
def _segment_sum(src, seg, n):
    out = torch.zeros((n,) + src.shape[1:], dtype=src.dtype)
    return out.index_add_(0, seg, src)
def _pad(x, pw):
    flat = tuple(v for pair in reversed(pw) for v in pair)
    return torch.nn.functional.pad(x, flat)

kernel_name = 'gated_mix__linear_kernel_hedgehog__swiglu_ffn__prompt'

def setup_inputs():

    _w = (lambda a: (lambda t: t.to(torch.bfloat16) if t.is_floating_point() else t)(torch.as_tensor(a)))
    def _A_setup():
        B, S, D, H = 1, 2048, 640, 32
        Dh = D // H
        return {
            "x": _w((lambda *s: torch.randn(*s, dtype=torch.bfloat16) * 0.05)(B, S, D)),
            "wqkv": _w((lambda *s: torch.randn(*s, dtype=torch.bfloat16) * 0.8)(D, 3 * D)),
            "w_phi": _w((lambda *s: torch.randn(*s, dtype=torch.bfloat16) * 0.8)(H, Dh, Dh) * (Dh ** -0.5)),
            "wo": _w((lambda *s: torch.randn(*s, dtype=torch.bfloat16) * 0.05)(D, D)),
        }
    _A_in = _A_setup()

    def _B_setup():
        B, S, D, F = 1, 2048, 640, 1728
        return {
            "x": _w((lambda *s: torch.randn(*s, dtype=torch.bfloat16) * 0.05)(B, S, D)),
            "w_gate": _w((lambda *s: torch.randn(*s, dtype=torch.bfloat16) * 0.05)(D, F)),
            "w_up": _w((lambda *s: torch.randn(*s, dtype=torch.bfloat16) * 0.05)(D, F)),
            "w_down": _w((lambda *s: torch.randn(*s, dtype=torch.bfloat16) * 0.05)(F, D)),
        }
    _B_in = _B_setup()

    return {
        "A_x": _A_in["x"],
        "A_wqkv": _A_in["wqkv"],
        "A_w_phi": _A_in["w_phi"],
        "A_wo": _A_in["wo"],
        "B_x": _B_in["x"],
        "B_w_gate": _B_in["w_gate"],
        "B_w_up": _B_in["w_up"],
        "B_w_down": _B_in["w_down"],
        "gate_w": _w((lambda *s: torch.randn(*s, dtype=torch.bfloat16) * 0.05)(640) * 16.0),
    }

def reference(A_x, A_wqkv, A_w_phi, A_wo, B_x, B_w_gate, B_w_up, B_w_down, gate_w):
    def _A_ref(x, wqkv, w_phi, wo):
        B, S, D = x.shape
        H = 32; Dh = D // H
        qkv = (lambda x, *d: x.permute(*d))((x @ wqkv).reshape(B, S, 3, H, Dh), 2, 0, 3, 1, 4)
        q, k, v = qkv[0], qkv[1], qkv[2]
        pq = torch.einsum("bhsd,hdf->bhsf", q, w_phi)
        pk = torch.einsum("bhsd,hdf->bhsf", k, w_phi)
        phi_q = torch.concatenate([_softmax(pq, axis=-1), _softmax(-pq, axis=-1)], axis=-1)
        phi_k = torch.concatenate([_softmax(pk, axis=-1), _softmax(-pk, axis=-1)], axis=-1)
        kv = torch.einsum("bhsf,bhsd->bhfd", phi_k, v)
        z  = torch.einsum("bhsf->bhf", phi_k)
        num = torch.einsum("bhqf,bhfd->bhqd", phi_q, kv)
        den = torch.einsum("bhqf,bhf->bhq", phi_q, z)[..., None] + 1e-6
        o = num / den
        return (lambda x, *d: x.permute(*d))(o, 0, 2, 1, 3).reshape(B, S, D) @ wo

    def _B_ref(x, w_gate, w_up, w_down):
        g = _silu(x @ w_gate)
        u = x @ w_up
        return (g * u) @ w_down

    x = A_x
    g = _sigmoid((x * gate_w).sum(-1, keepdims=True))
    a = _A_ref(x, A_wqkv, A_w_phi, A_wo)
    b = _B_ref(x, B_w_gate, B_w_up, B_w_down)
    return g * a + (1 - g) * b
```

```python
import re

def vr(b, n=1): return "v[%d:%d]" % (b, b+n-1) if n > 1 else "v%d" % b
def ar(b, n=1): return "a[%d:%d]" % (b, b+n-1) if n > 1 else "a%d" % b
def sr(b, n=1): return "s[%d:%d]" % (b, b+n-1) if n > 1 else "s%d" % b
def R(x, n=1):
    return vr(x, n) if x < 256 else ar(x-256, n)

_REG = re.compile(r"\b([vas])(?:\[(\d+):(\d+)\]|(\d+))\b|\b([vas])\[(\d+):(\d+)\]|\b(vcc|exec|m0|scc)\b")
def regs_of(op):
    out = []
    for m in re.finditer(r"([vas])\[(\d+):(\d+)\]|(?<![\w\[])([vas])(\d+)\b|\b(vcc|exec|m0)\b", op):
        if m.group(1):
            out += [(m.group(1), i) for i in range(int(m.group(2)), int(m.group(3))+1)]
        elif m.group(4):
            out.append((m.group(4), int(m.group(5))))
        else:
            out.append((m.group(6), 0))
    return out

TRANS = ("v_exp_f32", "v_log_f32", "v_rcp_f32", "v_rsq_f32", "v_sqrt_f32", "v_sin_f32", "v_cos_f32")

class Ins:
    __slots__ = ("text", "mn", "cls", "wr", "rd", "srcc", "passes", "sdata")
    def __init__(self, text):
        self.text = text
        t = text.split(";")[0].strip()
        parts = t.split(None, 1)
        mn = parts[0]; self.mn = mn
        ops = [o.strip() for o in parts[1].split(",")] if len(parts) > 1 else []
        self.wr = []; self.rd = []; self.srcc = []; self.passes = 0; self.sdata = []
        if mn.startswith("v_mfma"):
            self.cls = "mfma"
            self.passes = 8 if "32x32" in mn else 4
            self.wr = regs_of(ops[0]); self.rd = regs_of(ops[1]) + regs_of(ops[2]); self.srcc = regs_of(ops[3])
        elif mn.startswith("v_"):
            self.cls = "valu"
            nd = 1
            if mn.startswith(("v_add_co", "v_sub_co", "v_addc_co", "v_subb_co", "v_mad_u64")): nd = 2
            for o in ops[:nd]: self.wr += regs_of(o)
            for o in ops[nd:]: self.rd += regs_of(o)
            if mn.startswith(("v_fmac", "v_dot2c", "v_permlane", "v_writelane")) or "dpp" in mn: self.rd += regs_of(ops[0])
            if mn.startswith("v_permlane"): self.wr += regs_of(ops[1])
            if mn.startswith("v_cmpx"): self.wr.append(("exec", 0))
        elif mn.startswith(("buffer_", "global_")):
            self.cls = "vmem"
            lds = " lds" in t or "load_lds" in mn
            if "load" in mn and not lds:
                self.wr = regs_of(ops[0])
                for o in ops[1:]: self.rd += regs_of(o)
            else:
                for o in ops: self.rd += regs_of(o)
                if lds: self.rd.append(("m0", 0))
                if "store" in mn or "atomic" in mn:
                    d = ops[0] if mn.startswith("buffer_") else ops[1]
                    if "x4" in mn or "x3" in mn: self.sdata = regs_of(d)
                    if "atomic" in mn and " sc0" in t: self.wr = regs_of(ops[0])
        elif mn.startswith("ds_"):
            self.cls = "ds"
            if "read" in mn or "permute" in mn or "swizzle" in mn:
                self.wr = regs_of(ops[0])
                for o in ops[1:]: self.rd += regs_of(o)
            else:
                for o in ops: self.rd += regs_of(o)
        elif mn.startswith("s_"):
            self.cls = "salu"
            if mn in ("s_nop", "s_waitcnt", "s_barrier", "s_endpgm", "s_branch", "s_sleep", "s_setprio") or mn.startswith(("s_cbranch", "s_cmp", "s_bitcmp")):
                for o in ops: self.rd += regs_of(o)
            else:
                if ops: self.wr = regs_of(ops[0])
                for o in ops[1:]: self.rd += regs_of(o)
                if "saveexec" in mn: self.wr.append(("exec", 0))
        else:
            self.cls = "other"
    def states(self):
        if self.mn == "s_nop": return int(self.text.split()[1], 0) + 1
        return 1

def need(p, c):
    n = 0
    pw = set(p.wr)
    crd = set(c.rd); cwr = set(c.wr); cc = set(c.srcc)
    if p.cls == "valu":
        vw = {r for r in pw if r[0] in "va" and len(r[0]) == 1}
        sw = {r for r in pw if r[0] in ("s", "vcc")}
        if c.cls == "mfma" and vw & (crd | cc): n = max(n, 2)
        if c.cls == "valu":
            if "dpp" in c.mn and vw & crd: n = max(n, 2)
            if c.mn.startswith("v_permlane") and vw & crd: n = max(n, 2)
            if c.mn.startswith(("v_readlane", "v_readfirstlane")) and vw & crd: n = max(n, 1)
            if p.mn.startswith(TRANS) and vw & crd: n = max(n, 1)
            if sw & crd: n = max(n, 4 if c.mn.startswith(("v_readlane", "v_writelane")) else 2)
            if ("vcc", 0) in sw and c.mn.startswith(("v_cndmask", "v_addc", "v_subb")) : n = max(n, 2)
        if c.cls == "vmem" and sw & crd: n = max(n, 5)
        if c.cls == "salu" and sw & crd: n = max(n, 1)
        if ("exec", 0) in pw:
            if c.cls == "mfma": n = max(n, 4)
            if c.cls == "valu": n = max(n, 5)
    elif p.cls == "mfma":
        big = {4: 8, 8: 12}[p.passes]
        if c.cls == "mfma":
            if pw & crd: n = max(n, big)
            if pw & cc and not (p.wr == c.srcc and p.passes == c.passes): n = max(n, big - 2)
            if pw & cwr and not (p.wr == c.srcc and p.passes == c.passes): n = max(n, big)
        elif c.cls in ("valu", "vmem", "ds"):
            if pw & (crd | cwr): n = max(n, big)
            if c.cls == "valu" and set(p.srcc) & cwr: n = max(n, p.passes - 1)
    elif p.cls == "salu":
        if ("m0", 0) in pw and ("m0", 0) in crd and c.cls == "vmem": n = max(n, 1)
    elif p.cls == "vmem":
        if p.sdata and set(p.sdata) & cwr: n = max(n, 2)
    return n

class K:
    def __init__(self):
        self.items = []
        self.vmq = []; self.lgq = []
        self.nl = 0
    def __call__(self, s):
        for ln in s.split("\n"):
            ln = ln.strip()
            if ln: self.items.append(("i", ln))
    def label(self, l): self.items.append(("l", l))
    def raw(self, s): self.items.append(("r", s))
    def newlabel(self, p="L"):
        self.nl += 1; return "%s_%d" % (p, self.nl)
    def vm(self, text, tag=None): self(text); self.vmq.append(tag)
    def lg(self, text, tag=None): self(text); self.lgq.append(tag)
    def _cnt(self, q, pred):
        idx = -1
        for i, t in enumerate(q):
            if pred(t): idx = i
        return idx
    def wait(self, vm=None, lg=None):
        parts = []
        for name, q, sel, mx in (("vmcnt", self.vmq, vm, 62), ("lgkmcnt", self.lgq, lg, 14)):
            if sel is None: continue
            if sel == "all": pred = lambda t: True
            elif callable(sel): pred = sel
            elif isinstance(sel, (list, set)): pred = lambda t, s=sel: t in s
            else: pred = lambda t, s=sel: t == s
            idx = self._cnt(q, pred)
            if idx >= 0:
                n = min(len(q) - 1 - idx, mx)
                parts.append("%s(%d)" % (name, n))
                del q[:len(q) - n]
        if parts: self("s_waitcnt " + " ".join(parts))
        return bool(parts)
    def flush_counters(self):
        self.vmq = []; self.lgq = []
    def text(self, hazards=True):
        out = []; hist = []
        nn = 0
        for kind, s in self.items:
            if kind == "r": out.append(s); continue
            if kind == "l":
                out.append(s + ":"); continue
            ins = Ins(s)
            if hazards:
                dist = 0; req = 0
                for p in reversed(hist):
                    r = need(p, ins) - dist
                    if r > req: req = r
                    dist += p.states()
                    if dist >= 20: break
                if req > 0:
                    nop = Ins("s_nop %d" % (req - 1)); out.append("  " + nop.text); hist.append(nop); nn += 1
            out.append("  " + s); hist.append(ins)
            if len(hist) > 40: hist = hist[-24:]
        self.nops = nn
        return "\n".join(out) + "\n"

def kernel_header(k, name):
    k.raw(".globl %s" % name); k.raw(".p2align 8"); k.raw(".type %s,@function" % name); k.label(name)

def kernel_desc(name, vgpr, accum, sgpr=102):
    return """.p2align 6
.amdhsa_kernel %s
  .amdhsa_next_free_vgpr %d
  .amdhsa_next_free_sgpr %d
  .amdhsa_accum_offset %d
  .amdhsa_group_segment_fixed_size 0
  .amdhsa_kernarg_size 96
  .amdhsa_user_sgpr_count 2
  .amdhsa_user_sgpr_kernarg_segment_ptr 1
  .amdhsa_system_sgpr_workgroup_id_x 1
.end_amdhsa_kernel
""" % (name, vgpr, sgpr, accum)

import struct
def f32(x): return "0x%08x" % struct.unpack("<I", struct.pack("<f", x))[0]
```

```python
import sys
from fw import *

A2_OFF = 0;          A2_SZ = 32*74*4096
B2_OFF = 0xA00000;   B2_SZ = 8*74*5120
PQ_OFF = 0xD00000;   PQ_SZ = 32*2048*40
KVP_OFF = 0x1000000; KVP_SZ = 32*16*3360
G_OFF = 0x1200000;   G_SZ = 8192
LOG2E = 1.4426950408889634

TM, TT = 4, 8

def srd(k, d, b, off, nbytes, soff=None):
    if off or soff is not None:
        if soff is not None:
            k("s_add_u32 s%d, s%d, s%d" % (d, b, soff)); k("s_addc_u32 s%d, s%d, 0" % (d+1, b+1))
            if off:
                k("s_add_u32 s%d, s%d, 0x%x" % (d, d, off)); k("s_addc_u32 s%d, s%d, 0" % (d+1, d+1))
        else:
            k("s_add_u32 s%d, s%d, 0x%x" % (d, b, off)); k("s_addc_u32 s%d, s%d, 0" % (d+1, b+1))
        k("s_and_b32 s%d, s%d, 0xffff" % (d+1, d+1))
    else:
        k("s_mov_b32 s%d, s%d" % (d, b)); k("s_and_b32 s%d, s%d, 0xffff" % (d+1, b+1))
    if isinstance(nbytes, int): k("s_mov_b32 s%d, 0x%x" % (d+2, nbytes))
    else: k("s_mov_b32 s%d, %s" % (d+2, nbytes))
    k("s_mov_b32 s%d, 0x20000" % (d+3))

P_X, P_WQKV, P_WPHI, P_WO, P_WG, P_WU, P_WD, P_GW, P_OUT, P_DBG, P_WS = 8, 10, 12, 14, 18, 20, 22, 24, 26, 28, 30
S_W, S_RH, S_C, S_MT, S_TY = 32, 33, 34, 35, 36
SRD_X, SRD_W0, SRD_W1, SRD_O, SRD_P = 40, 44, 48, 52, 56
S_STRIDE, S_WOFF, S_WL, S_XL, S_T0, S_T1, S_T2, S_T3, S_DELTA = 60, 61, 62, 63, 64, 65, 66, 67, 68
S_C2 = 70

def prologue(k, nwg, code_kb, end):
    k("s_cmp_ge_u32 s2, %d" % nwg)
    k("s_cbranch_scc1 %s" % end)
    k("s_load_dwordx16 s[8:23], s[0:1], 0")
    k("s_load_dwordx8 s[24:31], s[0:1], 64")
    k("v_lshrrev_b32 v1, 6, v0")
    k("v_and_b32 v0, 63, v0")
    k("v_readfirstlane_b32 s%d, v1" % S_W)

def code_prefetch(k, lab0, lab1, vt):
    k("s_getpc_b64 s[72:73]")
    l = k.newlabel("Lpc"); k.label(l)
    k("s_lshl_b32 s74, s%d, 13" % S_W)
    k("v_lshlrev_b32 v%d, 7, v0" % vt)
    k("v_add_u32 v%d, s74, v%d" % (vt, vt))
    k("v_min_u32 v%d, %s-%s-4, v%d" % (vt, lab1, l, vt))
    k("v_and_b32 v%d, -4, v%d" % (vt, vt))
    k.vm("global_load_dword v%d, v%d, s[72:73]" % (vt, vt), "pf")

WSLOT = 24576; RW = 4; XBASE = RW*WSLOT; XSLOT = 16384; RX = 3
V_WD = 2
V_XD = 3
V_XR = 8
V_TA = 10
ACC0 = 64
WF0 = 256; XF0 = 256 + 96

def gemm_setup(k, att):
    npt = 5 if att else 6
    k("v_lshrrev_b32 v24, 3, v0")
    k("v_and_b32 v25, 7, v0")
    k("v_bfe_u32 v26, v24, 1, 1")
    k("s_and_b32 s%d, s%d, 1" % (S_T0, S_W))
    k("s_lshl_b32 s%d, s%d, 1" % (S_T0, S_T0))
    k("v_or_b32 v26, s%d, v26" % S_T0)
    k("v_lshlrev_b32 v26, 1, v26")
    k("v_xor_b32 v26, v26, v25")
    k("s_lshl_b32 s%d, s%d, 3" % (S_T0, S_W))
    k("v_add_u32 v27, s%d, v24" % S_T0)
    k("v_mul_lo_u32 v27, v27, s%d" % S_STRIDE)
    k("v_lshl_add_u32 v%d, v26, 4, v27" % V_WD)
    k("s_lshl_b32 s%d, s%d, 5" % (S_T0, S_W))
    for i in range(4):
        k("v_add_u32 v26, %d, v24" % (8*i))
        k("v_bfe_u32 v27, v26, 1, 3")
        k("v_xor_b32 v27, v27, v25")
        k("v_add_u32 v26, s%d, v26" % S_T0)
        k("v_mul_u32_u24 v26, 1280, v26")
        k("v_lshl_add_u32 v%d, v27, 4, v26" % (V_XD+i))
    k("s_mul_i32 s%d, s%d, 6144" % (S_WL, S_W))
    k("s_lshl_b32 s%d, s%d, 12" % (S_XL, S_W))
    k("s_add_u32 s%d, s%d, %d" % (S_XL, S_XL, XBASE))
    k("s_mov_b32 s%d, 0" % S_WOFF)

def gemm_setup2(k, att):
    npt = 5 if att else 6
    k("v_and_b32 v24, 15, v0")
    k("v_lshrrev_b32 v25, 4, v0")
    k("v_bfe_u32 v26, v24, 1, 3")
    k("v_xor_b32 v26, v26, v25")
    k("s_lshl_b32 s%d, s%d, 13" % (S_T0, S_RH))
    k("s_add_u32 s%d, s%d, %d" % (S_T0, S_T0, XBASE))
    k("v_lshlrev_b32 v27, 7, v24")
    k("v_add_u32 v27, s%d, v27" % S_T0)
    k("v_lshl_add_u32 v%d, v26, 4, v27" % V_XR)
    k("v_xor_b32 v%d, 64, v%d" % (V_XR+1, V_XR))
    k("v_bfe_u32 v26, v0, 2, 2")
    k("v_and_b32 v27, 3, v0")
    k("v_lshrrev_b32 v28, 1, v26")
    k("v_and_b32 v29, 1, v25")
    k("v_lshl_or_b32 v28, v29, 1, v28")
    k("v_lshlrev_b32 v28, 5, v28")
    k("v_mul_u32_u24 v29, 6144, v25")
    k("v_lshl_add_u32 v29, v26, 7, v29")
    if att:
        k("s_mul_i32 s%d, s%d, 160" % (S_T0, S_C))
        k("s_add_u32 s%d, s%d, s%d" % (S_T0, S_T0, S_DELTA))
        k("v_mul_u32_u24 v27, 40, v27")
    else:
        k("s_mul_i32 s%d, s%d, 192" % (S_T0, S_C))
        k("v_lshlrev_b32 v27, 3, v27")
    k("v_add_u32 v27, s%d, v27" % S_T0)
    for p in range(npt):
        k("v_add_u32 v30, %d, v27" % (p * (8 if att else 32)))
        k("v_lshrrev_b32 v31, 7, v30")
        k("v_and_b32 v30, 127, v30")
        k("v_xor_b32 v30, v30, v28")
        k("v_lshl_add_u32 v31, v31, 10, v29")
        k("v_add_u32 v%d, v30, v31" % (V_TA+p))
        k("v_add_u32 v%d, %d, v%d" % (V_TA+6+p, 2*WSLOT, V_TA+p))

def w_dma(s):
    out = []
    for seg in range(2):
        for lc in range(3):
            out.append(("s_add_u32 m0, s%d, %d" % (S_WL, (s % RW)*WSLOT + (seg*3+lc)*1024 - lc*128),
                        "buffer_load_dwordx4 v%d, s[%d:%d], s%d offen offset:%d lds" % (V_WD, SRD_W0+4*seg, SRD_W0+4*seg+3, S_WOFF, lc*128), ("W", s)))
    return out
def x_dma(u, i):
    return ("s_add_u32 m0, s%d, %d" % (S_XL, (u % RX)*XSLOT + i*1024 - u*128),
            "buffer_load_dwordx4 v%d, s[%d:%d], 0 offen offset:%d lds" % (V_XD+i, SRD_X, SRD_X+3, u*128), ("X", u))

def reads_for(s, npt):
    out = []
    b = s & 1
    for rt in range(4):
        out.append("ds_read_b128 %s, v%d offset:%d" % (R(XF0 + (b*4+rt)*4, 4), V_XR + (s & 1), ((s >> 1) % RX)*XSLOT + rt*2048))
    slot = s % RW
    for p in range(npt):
        for seg in range(2):
            t = p*2 + seg
            for h in range(2):
                out.append("ds_read_b64_tr_b16 %s, v%d offset:%d" % (R(WF0 + (b*12+t)*4 + 2*h, 2), V_TA + p + (6 if slot >= 2 else 0), (slot & 1)*WSLOT + seg*3072 + h*512))
    return out

def acc(p, seg, rt): return ACC0 + ((p*2+seg)*4 + rt)*4

def gemm_main(k, att, extra=None):
    npt = 5 if att else 6
    def issue(it):
        k(it[0]); k.vm(it[1], it[2])
    def wadv(): k("s_add_u32 s%d, s%d, s%d" % (S_WOFF, S_WOFF, S_T3))
    k("s_lshl_b32 s%d, s%d, 5" % (S_T3, S_STRIDE))
    for i in range(4): issue(x_dma(0, i))
    for it in w_dma(0): issue(it)
    wadv()
    for it in w_dma(1): issue(it)
    wadv()
    for i in range(4): issue(x_dma(1, i))
    for it in w_dma(2): issue(it)
    wadv()
    for it in w_dma(3): issue(it)
    wadv()
    for i in range(4): issue(x_dma(2, i))
    gemm_setup2(k, att)
    k.wait(vm=[("X", 0), ("W", 0)])
    k("s_barrier")
    for r in reads_for(0, npt): k.lg(r)
    k.wait(vm=[("W", 1)], lg="all")
    k("s_barrier")
    for s in range(20):
        b = s & 1
        rd = reads_for(s+1, npt) if s < 19 else []
        dm = []
        if s + 4 < 20: dm += w_dma(s+4)
        if s >= 1:
            u = (s-1)//2 + 3
            if u < 10:
                h = (s-1) & 1
                dm += [x_dma(u, 2*h), x_dma(u, 2*h+1)]
        if extra and s in extra: dm += extra[s]
        nm = npt*2*4
        step = (nm - 4) // max(len(dm), 1)
        pend = None
        m = 0
        for p in range(npt):
            for seg in range(2):
                for rt in range(4):
                    a = acc(p, seg, rt)
                    k("v_mfma_f32_16x16x32_bf16 %s, %s, %s, %s" % (R(a,4), R(WF0 + (b*12+p*2+seg)*4, 4), R(XF0 + (b*4+rt)*4, 4), R(a,4) if s else "0"))
                    if rd: k.lg(rd.pop(0))
                    if pend is not None:
                        k.vm(pend[1], pend[2])
                        if pend[2][0] == "W" and not any(d[2][0] == "W" for d in dm): wadv()
                        pend = None
                    elif dm and m % step == 1 % step:
                        pend = dm.pop(0); k(pend[0])
                    m += 1
        assert not rd and not dm and pend is None, (s, rd, dm, pend)
        if s < 19:
            k.wait(vm=[("W", s+2), ("X", (s+2) >> 1)], lg="all")
            k("s_barrier")

def ffn_epilogue(k):
    k("s_lshl_b32 s%d, s%d, 1" % (S_T0, S_MT))
    k("s_add_u32 s%d, s%d, s%d" % (S_T0, S_T0, S_RH))
    k("s_mul_i32 s%d, s%d, 74" % (S_T0, S_T0))
    k("s_mul_i32 s%d, s%d, 6" % (S_T1, S_TY))
    k("s_add_u32 s%d, s%d, s%d" % (S_T0, S_T0, S_T1))
    k("s_mul_i32 s%d, s%d, 3" % (S_T1, S_C))
    k("s_add_u32 s%d, s%d, s%d" % (S_T0, S_T0, S_T1))
    k("s_add_u32 s%d, s%d, 20" % (S_T0, S_T0))
    k("s_lshl_b32 s%d, s%d, 12" % (S_T0, S_T0))
    k("v_lshlrev_b32 v24, 4, v0")
    n = 0
    for ks in range(3):
        for rt in range(4):
            T = 32 + (n & 1)*8; O = 48 + (n & 1)*4; n += 1
            G = [acc(2*ks+j, 0, rt) for j in range(2)]; U = [acc(2*ks+j, 1, rt) for j in range(2)]
            prs = [(j, h) for j in range(2) for h in range(2)]
            for i, (j, h) in enumerate(prs):
                k("v_pk_mul_f32 %s, %s, s[%d:%d] neg_lo:[0,1] neg_hi:[0,1]" % (vr(T+2*i,2), vr(G[j]+2*h,2), S_C2, S_C2+1))
            for i in range(8): k("v_exp_f32 v%d, v%d" % (T+i, T+i))
            for i, (j, h) in enumerate(prs):
                k("v_pk_mul_f32 %s, %s, %s" % (vr(G[j]+2*h,2), vr(G[j]+2*h,2), vr(U[j]+2*h,2)))
            for i in range(4): k("v_pk_add_f32 %s, %s, 1.0 op_sel_hi:[1,0]" % (vr(T+2*i,2), vr(T+2*i,2)))
            for i in range(8): k("v_rcp_f32 v%d, v%d" % (T+i, T+i))
            for i, (j, h) in enumerate(prs):
                k("v_pk_mul_f32 %s, %s, %s" % (vr(T+2*i,2), vr(G[j]+2*h,2), vr(T+2*i,2)))
            for i in range(4): k("v_cvt_pk_bf16_f32 v%d, v%d, v%d" % (O+i, T+2*i, T+2*i+1))
            k.vm("buffer_store_dwordx4 %s, v24, s[%d:%d], s%d offen offset:%d" % (vr(O,4), SRD_O, SRD_O+3, S_T0, rt*1024), "st")
        if ks < 2: k("s_add_u32 s%d, s%d, 4096" % (S_T0, S_T0))

PHI0 = 256 + 128
def phi_dma(seg, s_off):
    out = []
    for i in range(4):
        out.append(("s_add_u32 m0, s%d, %d" % (S_WL, seg*WSLOT),
                    "buffer_load_dwordx4 v23, s[%d:%d], s%d offen offset:%d lds" % (SRD_P, SRD_P+3, s_off, i*1024), ("P", seg)))
    out.append(("s_add_u32 m0, s%d, %d" % (S_WL, seg*WSLOT + 4096),
                "buffer_load_dwordx4 v23, s[%d:%d], s%d offen lds" % (SRD_P, SRD_P+3, S_T2), ("P", seg)))
    return out

def phi_frags(k, seg):
    for to in range(5):
        for s in range(3):
            for h in range(2):
                d = PHI0 + (to*3+s)*4 + 2*h
                if s == 2 and h == 1: continue
                k.lg("ds_read_b64_tr_b16 %s, v22 offset:%d" % (R(d,2), seg*WSLOT + (8*s+4*h)*40 + 8*to))

def phi_addr_setup(k):
    k("v_lshrrev_b32 v24, 4, v0")
    k("v_bfe_u32 v25, v0, 2, 2")
    k("v_and_b32 v26, 3, v0")
    k("v_mul_u32_u24 v27, 800, v24")
    k("v_mad_u32_u24 v27, v25, 40, v27")
    k("v_cmp_eq_u32 vcc, v24, v26")
    k("v_mov_b32 v28, 4096")
    k("v_cndmask_b32 v27, v28, v27, vcc")
    k("v_add_u32 v22, s%d, v27" % S_WL)
    for to in range(5):
        for j in range(2): k("v_accvgpr_write_b32 %s, 0" % R(PHI0 + (to*3+2)*4 + 2 + j))

def phi_mm(k, seg, rt, B):
    for t in range(5):
        a = acc(t, seg, rt)
        k("v_cvt_pk_bf16_f32 v%d, v%d, v%d" % (B+2*t, a, a+1))
        k("v_cvt_pk_bf16_f32 v%d, v%d, v%d" % (B+2*t+1, a+2, a+3))
    for s in range(3):
        for to in range(5):
            a = acc(to, seg, rt)
            k("v_mfma_f32_16x16x32_bf16 %s, %s, %s, %s" % (vr(a,4), R(PHI0+(to*3+s)*4,4), vr(B+4*s,4), vr(a,4) if s else "0"))

def softmax_pm(k, P, E, T, O):
    v = [p + i for p in P for i in range(2)]
    for op, d in (("v_max3_f32", T), ("v_min3_f32", T+2)):
        k("%s v%d, v%d, v%d, v%d" % (op, d, v[0], v[1], v[2]))
        for i in range(3, 19, 2): k("%s v%d, v%d, v%d, v%d" % (op, d, d, v[i], v[i+1]))
        k("%s v%d, v%d, v%d, v%d" % (op, d, d, v[19], v[19]))
    k("v_mul_f32 v%d, %s, v%d" % (T, f32(-LOG2E), T))
    k("v_mul_f32 v%d, %s, v%d" % (T+2, f32(LOG2E), T+2))
    for i, p in enumerate(P):
        k("v_pk_fma_f32 %s, %s, s[%d:%d], %s op_sel_hi:[1,1,0]" % (vr(E+2*i,2), vr(p,2), S_C2, S_C2+1, vr(T,2)))
    for i, p in enumerate(P):
        k("v_pk_fma_f32 %s, %s, s[%d:%d], %s op_sel_hi:[1,1,0] neg_lo:[0,1,0] neg_hi:[0,1,0]" % (vr(p,2), vr(p,2), S_C2, S_C2+1, vr(T+2,2)))
    for i in range(20): k("v_exp_f32 v%d, v%d" % (E+i, E+i))
    for x in v: k("v_exp_f32 v%d, v%d" % (x, x))
    Ep = [E+2*i for i in range(10)]
    k("v_pk_add_f32 %s, %s, %s" % (vr(T+4,2), vr(Ep[0],2), vr(Ep[1],2)))
    k("v_pk_add_f32 %s, %s, %s" % (vr(T+6,2), vr(P[0],2), vr(P[1],2)))
    for i in range(2, 10):
        k("v_pk_add_f32 %s, %s, %s" % (vr(T+4,2), vr(T+4,2), vr(Ep[i],2)))
        k("v_pk_add_f32 %s, %s, %s" % (vr(T+6,2), vr(T+6,2), vr(P[i],2)))
    k("v_add_f32 v%d, v%d, v%d" % (T+4, T+4, T+5))
    k("v_add_f32 v%d, v%d, v%d" % (T+6, T+6, T+7))
    k("v_rcp_f32 v%d, v%d" % (T+4, T+4))
    k("v_rcp_f32 v%d, v%d" % (T+6, T+6))
    for i in range(10): k("v_pk_mul_f32 %s, %s, %s op_sel_hi:[1,0]" % (vr(Ep[i],2), vr(Ep[i],2), vr(T+4,2)))
    for i in range(10): k("v_pk_mul_f32 %s, %s, %s op_sel_hi:[1,0]" % (vr(P[i],2), vr(P[i],2), vr(T+6,2)))
    for i in range(10): k("v_cvt_pk_bf16_f32 v%d, v%d, v%d" % (O+i, Ep[i], Ep[i]+1))
    for i in range(10): k("v_cvt_pk_bf16_f32 v%d, v%d, v%d" % (O+10+i, P[i], P[i]+1))

def q_epilogue(k):
    k("v_mov_b32 v%d, 0" % 42); k("v_mov_b32 v%d, 0" % 43); k("v_mov_b32 v%d, 0" % 54); k("v_mov_b32 v%d, 0" % 55)
    k("v_and_b32 v24, 15, v0"); k("v_lshrrev_b32 v25, 4, v0")
    k("s_mov_b32 s%d, 81920" % S_T0)
    k("v_mul_lo_u32 v25, v25, s%d" % S_T0)
    k("v_lshl_add_u32 v20, v24, 4, v25")
    k("v_lshl_add_u32 v21, v24, 3, v25")
    k("s_sub_u32 s%d, s%d, 13" % (S_T1, S_TY))
    k("s_lshl_b32 s%d, s%d, 1" % (S_T1, S_T1))
    k("s_add_u32 s%d, s%d, s%d" % (S_T1, S_T1, S_C))
    k("s_mul_i32 s%d, s%d, %d" % (S_T1, S_T1, 4*81920))
    k("s_lshl_b32 s%d, s%d, 1" % (S_T0, S_MT))
    k("s_add_u32 s%d, s%d, s%d" % (S_T0, S_T0, S_RH))
    k("s_lshl_b32 s75, s%d, 10" % S_T0)
    k("s_add_u32 s75, s75, s%d" % S_T1)
    k("s_add_u32 s76, s75, 32768")
    k("s_lshl_b32 s77, s%d, 9" % S_T0)
    k("s_add_u32 s77, s77, s%d" % S_T1)
    k("s_add_u32 s77, s77, 65536")
    for seg in range(2):
        k.wait(vm=("P", seg))
        phi_frags(k, seg)
        k.wait(lg="all")
        for rt in range(4): phi_mm(k, seg, rt, 32 + (rt & 1)*12)
        for rt in range(4):
            O = 224 + (rt & 1)*12
            for t in range(5):
                a = acc(t, seg, rt)
                k("v_cvt_pk_bf16_f32 v%d, v%d, v%d" % (O+2*t, a, a+1))
                k("v_cvt_pk_bf16_f32 v%d, v%d, v%d" % (O+2*t+1, a+2, a+3))
            k.vm("buffer_store_dwordx4 %s, v20, s[%d:%d], s75 offen offset:%d" % (vr(O,4), SRD_O, SRD_O+3, rt*256), "st")
            k.vm("buffer_store_dwordx4 %s, v20, s[%d:%d], s76 offen offset:%d" % (vr(O+4,4), SRD_O, SRD_O+3, rt*256), "st")
            k.vm("buffer_store_dwordx2 %s, v21, s[%d:%d], s77 offen offset:%d" % (vr(O+8,2), SRD_O, SRD_O+3, rt*128), "st")
        if seg == 0:
            for s in (75, 76, 77): k("s_add_u32 s%d, s%d, %d" % (s, s, 16*81920))

PKRS = 352; VRS = 224; PKSZ = 128*PKRS; VB = 2*PKSZ; VSZ = 128*VRS
def kv_epilogue(k):
    k("v_mov_b32 v%d, 0" % 42); k("v_mov_b32 v%d, 0" % 43); k("v_mov_b32 v%d, 0" % 54); k("v_mov_b32 v%d, 0" % 55)
    k.wait(vm=("P", 0))
    phi_frags(k, 0)
    k("v_and_b32 v24, 15, v0"); k("v_lshrrev_b32 v25, 4, v0")
    k("s_lshl_b32 s%d, s%d, 6" % (S_T0, S_RH))
    k("v_add_u32 v26, s%d, v24" % S_T0)
    k("s_mul_i32 s%d, s%d, %d" % (S_T0, S_C, PKSZ))
    k("v_mul_u32_u24 v20, %d, v26" % PKRS)
    k("v_mul_u32_u24 v27, 80, v25")
    k("v_add3_u32 v20, v20, v27, s%d" % S_T0)
    k("s_mul_i32 s%d, s%d, %d" % (S_T1, S_C, VSZ))
    k("s_add_u32 s%d, s%d, %d" % (S_T1, S_T1, VB))
    k("v_mul_u32_u24 v21, %d, v26" % VRS)
    k("v_mul_u32_u24 v27, 48, v25")
    k("v_add3_u32 v21, v21, v27, s%d" % S_T1)
    k("v_lshrrev_b32 v26, 2, v0")
    k("v_and_b32 v27, 3, v0")
    k("v_lshlrev_b32 v27, 3, v27")
    k("s_mul_i32 s%d, s%d, 160" % (S_T2, S_RH))
    k("s_add_u32 s%d, s%d, s%d" % (S_T0, S_T0, S_T2))
    k("v_mul_u32_u24 v18, %d, v26" % PKRS)
    k("v_add3_u32 v18, v18, v27, s%d" % S_T0)
    k("s_mul_i32 s%d, s%d, 96" % (S_T2, S_RH))
    k("s_add_u32 s%d, s%d, s%d" % (S_T1, S_T1, S_T2))
    k("v_mul_u32_u24 v19, %d, v26" % VRS)
    k("v_add3_u32 v19, v19, v27, s%d" % S_T1)
    k.wait(lg="all")
    k("s_barrier")
    for rt in range(4): phi_mm(k, 0, rt, 32 + (rt & 1)*12)
    for rt in range(4):
        O = 224 + (rt & 1)*12
        for t in range(5):
            a = acc(t, 1, rt)
            k("v_cvt_pk_bf16_f32 v%d, v%d, v%d" % (O+2*t, a, a+1))
            k("v_cvt_pk_bf16_f32 v%d, v%d, v%d" % (O+2*t+1, a+2, a+3))
        if rt < 2:
            k("v_mov_b32 v%d, 0x3f80" % (O+10)); k("v_mov_b32 v%d, 0" % (O+11))
        for i in range(3):
            k.lg("ds_write_b128 v21, %s offset:%d" % (vr(O+4*i,4), rt*16*VRS + 16*i), ("vw", rt))
        if rt >= 1: k.wait(lg=("vw", rt-1))
    k.wait(lg="all")
    for rt in range(4):
        P = [acc(t, 0, rt) + 2*h for t in range(5) for h in range(2)]
        E = 224; O = 32
        softmax_pm(k, P, E, 56, O)
        for i in range(5):
            k.lg("ds_write_b128 v20, %s offset:%d" % (vr(O+4*i,4), rt*16*PKRS + 16*i), ("pw", rt))
        k.wait(lg="all")
    k("s_barrier")
    for ks in range(4):
        for j in range(2):
            fb = WF0 + ((ks*2+j) & 3)*20
            for ft in range(3):
                for h in range(2):
                    k.lg("ds_read_b64_tr_b16 %s, v18 offset:%d" % (R(fb+ft*4+2*h,2), (32*ks+16*h)*PKRS + j*80 + ft*32), ("f", ks, j))
            for bt in range(2):
                for h in range(2):
                    k.lg("ds_read_b64_tr_b16 %s, v19 offset:%d" % (R(fb+12+bt*4+2*h,2), (32*ks+16*h)*VRS + j*48 + bt*32), ("f", ks, j))
            k.wait(lg="all")
            for ft in range(3):
                for bt in range(2):
                    a = ACC0 + ((j*3+ft)*2+bt)*4
                    k("v_mfma_f32_16x16x32_bf16 %s, %s, %s, %s" % (vr(a,4), R(fb+ft*4,4), R(fb+12+bt*4,4), vr(a,4) if ks else "0"))
    k("v_mul_u32_u24 v26, 160, v24")
    k("v_lshl_add_u32 v26, v25, 4, v26")
    k("v_mov_b32 v31, 0x7fffffff")
    k("v_cmp_gt_u32 vcc, 2, v25")
    k("v_cndmask_b32 v27, v31, v26, vcc")
    k("v_cmp_gt_u32 vcc, 5, v24")
    k("v_cndmask_b32 v28, v31, v26, vcc")
    k("v_cndmask_b32 v29, v31, v27, vcc")
    k("s_sub_u32 s%d, s%d, 9" % (S_T0, S_TY))
    k("s_lshl_b32 s%d, s%d, 1" % (S_T0, S_T0))
    k("s_add_u32 s%d, s%d, s%d" % (S_T0, S_T0, S_C))
    k("s_lshl_b32 s%d, s%d, 1" % (S_T0, S_T0))
    k("s_add_u32 s%d, s%d, s%d" % (S_T0, S_T0, S_RH))
    k("s_lshl_b32 s%d, s%d, 5" % (S_T0, S_T0))
    k("s_add_u32 s%d, s%d, s%d" % (S_T0, S_T0, S_MT))
    k("s_mul_i32 s%d, s%d, 3360" % (S_T0, S_T0))
    k("s_add_u32 s%d, s%d, %d" % (S_T1, S_T0, 16*3360))
    for j in range(2):
        for ft in range(3):
            for bt in range(2):
                a = ACC0 + ((j*3+ft)*2+bt)*4
                vo = [[26, 28], [26, 28], [27, 29]][ft][bt]
                k.vm("buffer_store_dwordx4 %s, v%d, s[%d:%d], s%d offen offset:%d" % (vr(a,4), vo, SRD_O, SRD_O+3, S_T0+j, ft*64 + bt*2560), "st")

def aux_role(k):
    srd(k, SRD_W0, P_WO, 0, 640*1280)
    srd(k, SRD_W1, P_WD, 0, 1728*1280)
    srd(k, SRD_O, P_WS, B2_OFF, B2_SZ)
    srd(k, SRD_X, P_X, 0, 2048*1280)
    srd(k, SRD_P, P_GW, 0, 1280)
    srd(k, 80, P_WS, G_OFF, G_SZ)
    k("s_lshl_b32 s75, s%d, 2" % S_MT)
    k("s_add_u32 s75, s75, s%d" % S_W)
    k("v_lshrrev_b32 v24, 3, v0"); k("v_and_b32 v25, 7, v0")
    k("v_and_b32 v26, 6, v24")
    k("v_xor_b32 v26, v26, v25")
    k("v_mul_u32_u24 v27, 1280, v24")
    k("v_lshl_add_u32 v2, v26, 4, v27")
    for i in range(1, 4): k("v_add_u32 v%d, %d, v2" % (2+i, i*8*1280))
    k("s_mul_i32 s%d, s%d, 16384" % (S_WL, S_W))
    k("v_lshrrev_b32 v24, 2, v0")
    k("v_bfe_u32 v25, v24, 1, 2")
    k("v_and_b32 v26, 3, v0")
    k("v_lshlrev_b32 v27, 7, v24")
    k("v_lshl_add_u32 v27, v26, 3, v27")
    k("v_add_u32 v27, s%d, v27" % S_WL)
    for b in range(4):
        k("v_xor_b32 v28, %d, v25" % b)
        k("v_lshl_add_u32 v%d, v28, 5, v27" % (8+b))
    k("v_lshlrev_b32 v12, 4, v0")
    NU = 12; D = 3
    def unit_params(i):
        k("s_add_u32 s76, s75, %d" % (64*i))
        k("s_mul_i32 s77, s76, 6554")
        k("s_lshr_b32 s77, s77, 16")
        k("s_mul_i32 s78, s77, 10")
        k("s_sub_u32 s78, s76, s78")
    def load(i):
        unit_params(i)
        k("s_cmp_lt_u32 s77, 20")
        k("s_cselect_b32 s84, s%d, s%d" % (SRD_W0, SRD_W1))
        k("s_cselect_b32 s85, s%d, s%d" % (SRD_W0+1, SRD_W1+1))
        k("s_cselect_b32 s86, s%d, s%d" % (SRD_W0+2, SRD_W1+2))
        k("s_mov_b32 s87, 0x20000")
        k("s_cselect_b32 s79, 0, 20")
        k("s_sub_u32 s79, s77, s79")
        k("s_mul_i32 s79, s79, %d" % (32*1280))
        k("s_lshl_b32 s78, s78, 7")
        k("s_add_u32 s79, s79, s78")
        for j in range(4):
            k("s_add_u32 m0, s%d, %d" % (S_WL, (i % 4)*4096 + j*1024))
            k.vm("buffer_load_dwordx4 v%d, s[84:87], s79 offen lds" % (2+j), ("u", i))
    for i in range(min(D, NU)): load(i)
    for i in range(NU):
        k.wait(vm=("u", i))
        F = 32 + (i & 1)*16
        for b in range(4):
            for h in range(2):
                k.lg("ds_read_b64_tr_b16 %s, v%d offset:%d" % (vr(F+4*b+2*h,2), 8+b, (i % 4)*4096 + h*2048))
        if i + D < NU: load(i + D)
        unit_params(i)
        k.wait(lg="all")
        for b in range(4):
            k("s_lshl_b32 s88, s78, 2")
            k("s_add_u32 s88, s88, %d" % b)
            k("s_mul_i32 s89, s88, 205")
            k("s_lshr_b32 s89, s89, 10")
            k("s_mul_i32 s90, s89, 5")
            k("s_sub_u32 s88, s88, s90")
            k("s_mul_i32 s89, s89, 74")
            k("s_add_u32 s89, s89, s77")
            k("s_mul_i32 s89, s89, 5")
            k("s_add_u32 s89, s89, s88")
            k("s_lshl_b32 s89, s89, 10")
            k("s_cmp_lt_u32 s77, 74")
            k("s_cselect_b32 s89, s89, 0x%x" % (B2_SZ))
            k.vm("buffer_store_dwordx4 %s, v12, s[%d:%d], s89 offen" % (vr(F+4*b,4), SRD_O, SRD_O+3), "st")
    k("v_and_b32 v24, 15, v0"); k("v_lshrrev_b32 v25, 4, v0")
    k("v_lshlrev_b32 v26, 4, v24")
    for j in range(5): k.vm("buffer_load_dwordx4 %s, v26, s[%d:%d], 0 offen offset:%d" % (vr(64+4*j,4), SRD_P, SRD_P+3, 256*j), "gw")
    k("s_lshl_b32 s76, s75, 5")
    k("v_add_u32 v27, s76, v25")
    k("v_lshlrev_b32 v29, 2, v27")
    k("v_mul_u32_u24 v27, 1280, v27")
    k("v_add_u32 v27, v27, v26")
    k("s_mov_b32 s77, 0")
    for it in range(8):
        for j in range(5): k.vm("buffer_load_dwordx4 %s, v27, s[%d:%d], s77 offen offset:%d" % (vr(96+it*20+4*j,4), SRD_X, SRD_X+3, 256*j), ("gx", it))
        k("s_add_u32 s77, s77, %d" % (4*1280))
    k("v_mov_b32 v31, 0x7fffffff")
    k("v_cmp_eq_u32 vcc, 0, v24")
    k("v_cndmask_b32 v29, v31, v29, vcc")
    for it in range(8):
        k.wait(vm=("gx", it))
        k("v_mov_b32 v30, 0")
        for j in range(20): k("v_dot2c_f32_bf16 v30, v%d, v%d" % (96+it*20+j, 64+j))
        k("s_nop 3")
        for sh in (8, 4, 2, 1): k("v_add_f32_dpp v30, v30, v30 row_ror:%d row_mask:0xf bank_mask:0xf" % sh)
        k("v_mul_f32 v30, %s, v30" % f32(-LOG2E))
        k("v_exp_f32 v30, v30")
        k("v_add_f32 v30, 1.0, v30")
        k("v_rcp_f32 v%d, v30" % (40+it))
        k.vm("buffer_store_dword v%d, v29, s[80:83], 0 offen offset:%d" % (40+it, it*16), "st")

def p1(k):
    kernel_header(k, "p1_kernel")
    prologue(k, 256, 0, "P1_end")
    nxm = 16 // TM
    k("s_and_b32 s%d, s2, 7" % S_T0)
    k("s_lshr_b32 s%d, s2, 3" % S_T1)
    k("s_and_b32 s%d, s%d, %d" % (S_T2, S_T0, nxm-1))
    k("s_lshr_b32 s%d, s%d, %d" % (S_T0, S_T0, nxm.bit_length()-1))
    k("s_mul_i32 s%d, s%d, %d" % (S_MT, S_T2, TM))
    k("s_and_b32 s%d, s%d, %d" % (S_T2, S_T1, TM-1))
    k("s_add_u32 s%d, s%d, s%d" % (S_MT, S_MT, S_T2))
    k("s_lshr_b32 s%d, s%d, %d" % (S_T1, S_T1, TM.bit_length()-1))
    k("s_mul_i32 s%d, s%d, %d" % (S_TY, S_T1, 16 // TT))
    k("s_add_u32 s%d, s%d, s%d" % (S_TY, S_TY, S_T0))
    k("s_and_b32 s%d, s%d, 1" % (S_RH, S_W))
    k("s_lshr_b32 s%d, s%d, 1" % (S_C, S_W))
    k("s_mov_b32 s%d, %s" % (S_C2, f32(LOG2E))); k("s_mov_b32 s%d, %s" % (S_C2+1, f32(LOG2E)))
    k("s_cmp_ge_u32 s%d, 15" % S_TY); k("s_cbranch_scc1 P1_aux")
    k("s_cmp_ge_u32 s%d, 9" % S_TY); k("s_cbranch_scc1 P1_att")
    code_prefetch(k, "P1_ffn", "P1_att", 60)
    k("s_mov_b32 s%d, 3456" % S_STRIDE)
    gemm_setup(k, False)
    k("s_mul_i32 s%d, s%d, %d" % (S_T0, S_MT, 128*1280))
    k("s_mul_i32 s%d, s%d, 384" % (S_T1, S_TY))
    k("s_sub_u32 s%d, %d, s%d" % (S_T2, 640*3456, S_T1))
    k("s_waitcnt lgkmcnt(0)")
    srd(k, SRD_X, P_X, 0, 128*1280, S_T0)
    srd(k, SRD_W0, P_WG, 0, "s%d" % S_T2, S_T1)
    srd(k, SRD_W1, P_WU, 0, "s%d" % S_T2, S_T1)
    srd(k, SRD_O, P_WS, A2_OFF, A2_SZ)
    gemm_main(k, False)
    ffn_epilogue(k)
    k("s_endpgm")
    k.flush_counters()
    k.label("P1_att")
    code_prefetch(k, "P1_att", "P1_aux", 60)
    k("s_mov_b32 s%d, 3840" % S_STRIDE)
    gemm_setup(k, True)
    k("s_cmp_ge_u32 s%d, 13" % S_TY)
    k("s_cselect_b32 s%d, 13, 9" % S_T0)
    k("s_cselect_b32 s75, 0, 1280")
    k("s_cselect_b32 s76, 0, 640")
    k("s_add_u32 s76, s76, 640")
    k("s_sub_u32 s%d, s%d, s%d" % (S_T0, S_TY, S_T0))
    k("s_mul_i32 s%d, s%d, 320" % (S_T1, S_T0))
    k("s_and_b32 s%d, s%d, 127" % (S_DELTA, S_T1))
    k("s_sub_u32 s%d, s%d, s%d" % (S_T1, S_T1, S_DELTA))
    k("s_add_u32 s75, s75, s%d" % S_T1)
    k("s_add_u32 s76, s76, s75")
    k("s_sub_u32 s77, %d, s75" % (640*3840))
    k("s_sub_u32 s78, %d, s76" % (640*3840))
    k("s_lshl_b32 s%d, s%d, 1" % (S_T0, S_T0))
    k("s_add_u32 s%d, s%d, s%d" % (S_T0, S_T0, S_C))
    k("s_mul_i32 s80, s%d, 3200" % S_T0)
    k("s_add_u32 s81, s80, 12800")
    k("s_mul_i32 s%d, s%d, %d" % (S_T0, S_MT, 128*1280))
    k("v_lshlrev_b32 v23, 4, v0")
    k("s_waitcnt lgkmcnt(0)")
    srd(k, SRD_X, P_X, 0, 128*1280, S_T0)
    srd(k, SRD_W0, P_WQKV, 0, "s77", 75)
    srd(k, SRD_W1, P_WQKV, 0, "s78", 76)
    srd(k, SRD_P, P_WPHI, 0, 25600)
    k("s_mov_b32 s%d, 0x100000" % S_T2)
    gemm_main(k, True, extra={16: phi_dma(0, 80), 17: phi_dma(1, 81)})
    phi_addr_setup(k)
    k("s_cmp_ge_u32 s%d, 13" % S_TY); k("s_cbranch_scc1 P1_q")
    sv = (list(k.vmq), list(k.lgq))
    srd(k, SRD_O, P_WS, KVP_OFF, KVP_SZ)
    kv_epilogue(k)
    k("s_endpgm")
    k.vmq, k.lgq = sv
    k.label("P1_q")
    k("s_nop 7")
    srd(k, SRD_O, P_WS, PQ_OFF, PQ_SZ)
    q_epilogue(k)
    k("s_endpgm")
    k.flush_counters()
    k.label("P1_aux")
    k("s_waitcnt lgkmcnt(0)")
    aux_role(k)
    k.label("P1_end")
    k("s_endpgm")
    k.flush_counters()

def ost(k):
    kernel_header(k, "o_kernel")
    prologue(k, 256, 0, "O_end")
    k("s_and_b32 s75, s2, 31"); k("s_lshr_b32 s76, s2, 5")
    k("s_mov_b32 s%d, %s" % (S_C2, f32(LOG2E))); k("s_mov_b32 s%d, %s" % (S_C2+1, f32(LOG2E)))
    k("s_lshl_b32 s77, s76, 2"); k("s_add_u32 s77, s77, s%d" % S_W)
    k("s_waitcnt lgkmcnt(0)")
    srd(k, SRD_P, P_WS, PQ_OFF, PQ_SZ)
    srd(k, SRD_W0, P_WS, KVP_OFF, KVP_SZ)
    srd(k, SRD_W1, P_WS, G_OFF, G_SZ)
    srd(k, SRD_O, P_WS, A2_OFF, A2_SZ)
    k("s_mul_i32 s78, s75, 81920")
    k("s_lshl_b32 s79, s77, 10"); k("s_add_u32 s79, s79, s78")
    k("s_add_u32 s80, s79, 32768")
    k("s_lshl_b32 s81, s77, 9"); k("s_add_u32 s81, s81, s78"); k("s_add_u32 s81, s81, 65536")
    k("v_lshlrev_b32 v2, 4, v0"); k("v_lshlrev_b32 v3, 3, v0")
    k.vm("buffer_load_dwordx4 v[32:35], v2, s[%d:%d], s79 offen" % (SRD_P, SRD_P+3), "pq")
    k.vm("buffer_load_dwordx4 v[36:39], v2, s[%d:%d], s80 offen" % (SRD_P, SRD_P+3), "pq")
    k.vm("buffer_load_dwordx2 v[40:41], v3, s[%d:%d], s81 offen" % (SRD_P, SRD_P+3), "pq")
    k("s_lshl_b32 s82, s%d, 10" % S_W)
    k("v_add_u32 v4, s82, v2")
    k("v_mov_b32 v31, 0x7fffffff")
    k("v_cmp_gt_u32 vcc, 3360, v4")
    k("v_cndmask_b32 v5, v31, v4, vcc")
    k("s_mul_i32 s83, s75, %d" % (16*3360))
    for p in range(16):
        k.vm("buffer_load_dwordx4 %s, v5, s[%d:%d], s83 offen" % (vr(128+4*p,4), SRD_W0, SRD_W0+3), ("kp", p))
        if p < 15: k("s_add_u32 s83, s83, 3360")
    k("v_and_b32 v24, 15, v0"); k("v_lshrrev_b32 v25, 4, v0")
    k("v_lshlrev_b32 v6, 2, v24")
    k("s_lshl_b32 s84, s77, 8")
    for rt in range(4): k.vm("buffer_load_dword v%d, v6, s[%d:%d], s84 offen offset:%d" % (20+rt, SRD_W1, SRD_W1+3, rt*64), "g")
    k.wait(vm="pq")
    for i in range(10):
        k("v_lshlrev_b32 v%d, 16, v%d" % (64+2*i, 32+i))
        k("v_and_b32 v%d, 0xffff0000, v%d" % (65+2*i, 32+i))
    softmax_pm(k, [64+2*i for i in range(10)], 84, 56, 104)
    k("s_mul_i32 s85, s%d, 5120" % S_W)
    k("v_mul_u32_u24 v7, 80, v0"); k("v_add_u32 v7, s85, v7")
    for i in range(5): k.lg("ds_write_b128 v7, %s offset:%d" % (vr(104+4*i,4), 16*i))
    for p in range(1, 16):
        k.wait(vm=("kp", p))
        for h in range(2): k("v_pk_add_f32 %s, %s, %s" % (vr(128+2*h,2), vr(128+2*h,2), vr(128+4*p+2*h,2)))
    k("v_cvt_pk_bf16_f32 v8, v128, v129"); k("v_cvt_pk_bf16_f32 v9, v130, v131")
    k("v_lshrrev_b32 v10, 1, v4")
    k.lg("ds_write_b64 v10, v[8:9] offset:20480")
    k("v_mul_u32_u24 v11, 80, v24"); k("v_add_u32 v11, s85, v11")
    k("v_lshl_add_u32 v12, v25, 4, v11")
    k.wait(lg="all")
    for rt in range(4):
        k.lg("ds_read_b128 %s, v12 offset:%d" % (vr(64+8*rt,4), rt*1280))
        k.lg("ds_read_b128 %s, v11 offset:%d" % (vr(68+8*rt,4), rt*1280+64))
    k("s_barrier")
    k("v_add_u32 v13, 16, v24"); k("v_min_u32 v13, 20, v13")
    k("v_mov_b32 v14, 20")
    k("v_cmp_eq_u32 vcc, 0, v25")
    k("v_mov_b32 v30, %d" % (1792-64))
    for i, rv in enumerate((24, 13, 14)):
        k("v_mul_u32_u24 v15, 80, v%d" % rv)
        k("v_lshl_add_u32 v16, v25, 4, v15")
        k("v_cndmask_b32 v17, v30, v15, vcc")
        k.lg("ds_read_b128 %s, v16 offset:20480" % vr(96+8*i,4))
        k.lg("ds_read_b128 %s, v17 offset:%d" % (vr(100+8*i,4), 20480+64))
    k("s_mul_i32 s86, s75, 5")
    def stoff(dst, chunk_v):
        k("v_lshrrev_b32 v26, 3, v%d" % chunk_v)
        k("v_lshlrev_b32 v26, 12, v26")
        k("v_and_b32 v27, 3, v%d" % chunk_v)
        k("v_lshl_add_u32 v26, v27, 8, v26")
        k("v_bfe_u32 v27, v%d, 2, 1" % chunk_v)
        k("v_lshl_add_u32 v26, v27, 3, v26")
        k("v_lshl_add_u32 v%d, v24, 4, v26" % dst)
    k("v_add_u32 v28, s86, v25"); stoff(18, 28)
    k("s_add_u32 s86, s86, 4"); k("v_mov_b32 v28, s86"); stoff(19, 28)
    k("v_cndmask_b32 v19, v31, v19, vcc")
    k("s_mul_i32 s87, s77, %d" % (74*4096))
    k.wait(lg="all", vm="g")
    for rt in range(4):
        for i in range(3):
            for s in range(2):
                a = 128 + (rt*3+i)*4
                k("v_mfma_f32_16x16x32_bf16 %s, %s, %s, %s" % (vr(a,4), vr(96+8*i+4*s,4), vr(64+8*rt+4*s,4), vr(a,4) if s else "0"))
    for rt in range(4):
        a = 128 + rt*12
        k("v_add_f32 v%d, %s, v%d" % (a+8, f32(1e-6), a+8))
        k("v_rcp_f32 v%d, v%d" % (a+8, a+8))
        k("v_mul_f32 v%d, v%d, v%d" % (a+8, a+8, 20+rt))
        for i in range(4): k("v_pk_mul_f32 %s, %s, %s op_sel_hi:[1,0]" % (vr(a+2*i,2), vr(a+2*i,2), vr(a+8,2)))
        for i in range(4): k("v_cvt_pk_bf16_f32 v%d, v%d, v%d" % (32+rt*4+i, a+2*i, a+2*i+1))
        k.vm("buffer_store_dwordx2 %s, v18, s[%d:%d], s87 offen offset:%d" % (vr(32+rt*4,2), SRD_O, SRD_O+3, rt*1024), "st")
        k.vm("buffer_store_dwordx2 %s, v19, s[%d:%d], s87 offen offset:%d" % (vr(34+rt*4,2), SRD_O, SRD_O+3, rt*1024), "st")
    k.label("O_end")
    k("s_endpgm")
    k.flush_counters()

def p2(k):
    kernel_header(k, "p2_kernel")
    prologue(k, 256, 0, "P2_end")
    k("s_and_b32 s75, s2, 7"); k("s_lshr_b32 s76, s2, 3")
    k("s_lshl_b32 s75, s75, 2"); k("s_and_b32 s77, s76, 3"); k("s_add_u32 s75, s75, s77")
    k("s_lshr_b32 s76, s76, 2")
    code_prefetch(k, "p2_kernel", "P2_end", 60)
    k("s_mul_i32 s77, s75, %d" % (74*4096))
    k("s_mul_i32 s78, s76, %d" % (74*5120))
    k("v_lshlrev_b32 v2, 4, v0")
    k("v_add_u32 v3, 4096, v2")
    k("s_waitcnt lgkmcnt(0)")
    srd(k, SRD_X, P_WS, A2_OFF, 74*4096, 77)
    srd(k, SRD_W0, P_WS, B2_OFF, 74*5120, 78)
    srd(k, SRD_W1, P_WS, G_OFF, G_SZ)
    srd(k, SRD_O, P_OUT, 0, 2048*1280)
    k("v_and_b32 v24, 15, v0"); k("v_lshrrev_b32 v25, 4, v0")
    k("v_lshlrev_b32 v6, 2, v24")
    k("s_lshl_b32 s84, s75, 8")
    for rt in range(4): k.vm("buffer_load_dword v%d, v6, s[%d:%d], s84 offen offset:%d" % (20+rt, SRD_W1, SRD_W1+3, rt*64), "g")
    k("s_add_u32 s79, s%d, 20" % S_W)
    k("s_lshl_b32 s80, s79, 12"); k("s_mul_i32 s81, s79, 5120")
    NS = 19; D = 6
    FB = 112
    def fr(i): return FB + (i % (D+1))*36
    def load(i):
        if i == 14:
            k("s_lshl_b32 s80, s%d, 12" % S_W); k("s_mul_i32 s81, s%d, 5120" % S_W)
        f = fr(i)
        for tt in range(4): k.vm("buffer_load_dwordx4 %s, v2, s[%d:%d], s80 offen offset:%d" % (R(f+4*tt,4), SRD_X, SRD_X+3, tt*1024), ("s", i))
        for ct in range(4): k.vm("buffer_load_dwordx4 %s, v2, s[%d:%d], s81 offen offset:%d" % (R(f+16+4*ct,4), SRD_W0, SRD_W0+3, ct*1024), ("s", i))
        k.vm("buffer_load_dwordx4 %s, v3, s[%d:%d], s81 offen" % (R(f+32,4), SRD_W0, SRD_W0+3), ("s", i))
        k("s_add_u32 s80, s80, %d" % (4*4096)); k("s_add_u32 s81, s81, %d" % (4*5120))
    for i in range(D): load(i)
    A0 = 32
    for i in range(NS):
        k.wait(vm=("s", i))
        f = fr(i)
        if i == 14:
            for rt in range(4): k("v_sub_f32 v%d, 1.0, v%d" % (8+2*rt, 20+rt))
            for ct in range(5):
                for tt in range(4):
                    a = A0 + (ct*4+tt)*4
                    for h in range(2): k("v_pk_mul_f32 %s, %s, %s op_sel_hi:[1,0]" % (vr(a+2*h,2), vr(a+2*h,2), vr(8+2*tt,2)))
        for ct in range(5):
            for tt in range(4):
                a = A0 + (ct*4+tt)*4
                k("v_mfma_f32_16x16x32_bf16 %s, %s, %s, %s" % (vr(a,4), R(f+16+4*ct,4), R(f+4*tt,4), vr(a,4) if i else "0"))
            if ct == 0 and i + D < NS: load(i + D)
    k("s_mul_i32 s82, s%d, 20480" % S_W)
    k("v_add_u32 v4, s82, v2")
    for j in range(20): k.lg("ds_write_b128 v4, %s offset:%d" % (vr(A0+4*j,4), j*1024))
    k("s_lshl_b32 s82, s%d, 10" % S_W)
    k("v_add_u32 v4, s82, v2")
    k("v_add_u32 v5, 40960, v4")
    k.wait(lg="all")
    k("s_barrier")
    for ct in range(5):
        for sw in range(4):
            k.lg("ds_read_b128 %s, v%d offset:%d" % (vr(A0+(ct*4+sw)*4,4), 4 + (sw >> 1), (sw & 1)*20480 + ct*4096), ("r", ct))
    k("s_lshl_b32 s83, s75, 6"); k("s_lshl_b32 s84, s%d, 4" % S_W); k("s_add_u32 s83, s83, s84")
    k("s_mul_i32 s83, s83, 1280"); k("s_mul_i32 s84, s76, 160"); k("s_add_u32 s83, s83, s84")
    k("v_mul_u32_u24 v7, 1280, v24"); k("v_lshl_add_u32 v7, v25, 3, v7")
    for ct in range(5):
        k.wait(lg=("r", ct))
        a = A0 + ct*16
        for h in range(2):
            k("v_pk_add_f32 %s, %s, %s" % (vr(a+2*h,2), vr(a+2*h,2), vr(a+4+2*h,2)))
            k("v_pk_add_f32 %s, %s, %s" % (vr(a+8+2*h,2), vr(a+8+2*h,2), vr(a+12+2*h,2)))
        for h in range(2): k("v_pk_add_f32 %s, %s, %s" % (vr(a+2*h,2), vr(a+2*h,2), vr(a+8+2*h,2)))
        k("v_cvt_pk_bf16_f32 v%d, v%d, v%d" % (a+4, a, a+1)); k("v_cvt_pk_bf16_f32 v%d, v%d, v%d" % (a+5, a+2, a+3))
        k.vm("buffer_store_dwordx2 %s, v7, s[%d:%d], s83 offen offset:%d" % (vr(a+4,2), SRD_O, SRD_O+3, ct*32), "st")
    k.label("P2_end")
    k("s_endpgm")
    k.flush_counters()

def build(fn):
    k = K()
    k.raw(open("header.txt").read().rstrip())
    k.raw("; @launch kernel=p1_kernel grid=(256,1,1) block=(256,1,1) lds=147456")
    k.raw("; @launch kernel=o_kernel grid=(256,1,1) block=(256,1,1) lds=24576")
    k.raw("; @launch kernel=p2_kernel grid=(256,1,1) block=(256,1,1) lds=81920")
    k.raw('.amdgcn_target "amdgcn-amd-amdhsa--gfx950"')
    k.raw(".text")
    p1(k); ost(k); p2(k)
    k.raw('.section .rodata,"a"')
    k.raw(kernel_desc("p1_kernel", 512, 256))
    k.raw(kernel_desc("o_kernel", 256, 256))
    k.raw(kernel_desc("p2_kernel", 512, 256))
    open(fn, "w").write(k.text())
    print("nops inserted:", k.nops)

if __name__ == "__main__":
    build(sys.argv[1] if len(sys.argv) > 1 else "v1.s")
```

```python
import sys
from fw import *

A2_OFF = 0;          A2_SZ = 32*74*4096
B2_OFF = 0xA00000;   B2_SZ = 8*74*5120
PQ_OFF = 0xD00000;   PQ_SZ = 32*2048*40
KVP_OFF = 0x1000000; KVP_SZ = 32*16*3360
G_OFF = 0x1200000;   G_SZ = 8192
CNT_OFF = 0x1300000
ST_OFF = 0x1400000
LOG2E = 1.4426950408889634
NAME = "gated_mix__linear_kernel_hedgehog__swiglu_ffn__prompt_kernel"

class Cfg:
    TM, TT = 4, 8
    STAMP = False
    TOUCH = True
    OSPLIT = 6
    DA = 5
cfg = Cfg()
SC = " sc1"

P_X, P_WQKV, P_WPHI, P_WO, P_WG, P_WU, P_WD, P_GW, P_OUT, P_DBG, P_WS = 8, 10, 12, 14, 18, 20, 22, 24, 26, 28, 30
S_W, S_RH, S_C, S_MT, S_TY, S_M64, S_NT, S_OH = 32, 33, 34, 35, 36, 37, 38, 39
SRD_X, SRD_W0, SRD_W1, SRD_O, SRD_P = 40, 44, 48, 52, 56
S_STRIDE, S_WOFF, S_WL, S_XL, S_T0, S_T1, S_T2, S_T3, S_DELTA, S_SIG = 60, 61, 62, 63, 64, 65, 66, 67, 68, 69
S_C2 = 70
SRD_B = 84; S_BOFF = 88; S_RB = 89; S_CNT = 90
V_L16, V_L16B, V_PT = 2, 3, 4
V_WD = 5; V_XD = 6; V_XR = 10; V_TA = 12
ACC0 = 64
WF0 = 256; XF0 = 256 + 96
PHI0 = 256
C_H, C_K, C_Q, C_O = 0, 16, 20, 28

def srd(k, d, b, off, nbytes, soff=None):
    if off or soff is not None:
        if soff is not None:
            k("s_add_u32 s%d, s%d, s%d" % (d, b, soff)); k("s_addc_u32 s%d, s%d, 0" % (d+1, b+1))
            if off:
                k("s_add_u32 s%d, s%d, 0x%x" % (d, d, off)); k("s_addc_u32 s%d, s%d, 0" % (d+1, d+1))
        else:
            k("s_add_u32 s%d, s%d, 0x%x" % (d, b, off)); k("s_addc_u32 s%d, s%d, 0" % (d+1, b+1))
        k("s_and_b32 s%d, s%d, 0xffff" % (d+1, d+1))
    else:
        k("s_mov_b32 s%d, s%d" % (d, b)); k("s_and_b32 s%d, s%d, 0xffff" % (d+1, b+1))
    if isinstance(nbytes, int): k("s_mov_b32 s%d, 0x%x" % (d+2, nbytes))
    else: k("s_mov_b32 s%d, %s" % (d+2, nbytes))
    k("s_mov_b32 s%d, 0x20000" % (d+3))

def stamp(k, i):
    if not cfg.STAMP: return
    k("s_memrealtime s[92:93]")
    k("s_waitcnt lgkmcnt(0)")
    k.lgq = []
    k("v_writelane_b32 v1, s92, %d" % i)
def stamp_out(k):
    if not cfg.STAMP: return
    k("s_waitcnt vmcnt(0)")
    stamp(k, 15)
    k("v_writelane_b32 v1, s%d, 16" % S_TY)
    srd(k, 40, P_WS, ST_OFF, 1024*128)
    k("s_lshl_b32 s92, s2, 2"); k("s_add_u32 s92, s92, s%d" % S_W); k("s_lshl_b32 s92, s92, 7")
    k("v_lshlrev_b32 v5, 2, v0")
    k("v_cmp_gt_u32 vcc, 32, v0")
    k("v_mov_b32 v6, 0x7fffffff")
    k("v_cndmask_b32 v5, v6, v5, vcc")
    k("buffer_store_dword v1, v5, s[40:43], s92 offen")

def code_prefetch(k, ranges, vt):
    k("s_getpc_b64 s[72:73]")
    l = k.newlabel("Lpc"); k.label(l)
    k("s_lshl_b32 s74, s%d, 13" % S_W)
    k("v_lshlrev_b32 v%d, 7, v0" % vt)
    k("v_add_u32 v%d, s74, v%d" % (vt, vt))
    for i, (a, b) in enumerate(ranges):
        a = a or l
        k("v_add_u32 v%d, %s-%s, v%d" % (vt+1+i, a, l, vt))
        k("v_min_u32 v%d, %s-%s-4, v%d" % (vt+1+i, b, l, vt+1+i))
        k.vm("global_load_dword v%d, v%d, s[72:73]" % (vt+1+i, vt+1+i), "pf")

def poll(k, base, off, target):
    l = k.newlabel("Lpoll"); d = k.newlabel("Lpd")
    k("v_mov_b32 v%d, %s" % (V_PT, off))
    k("s_mov_b32 s95, 0x8000")
    k.label(l)
    k("global_load_dword v31, v%d, s[%d:%d] sc1" % (V_PT, base, base+1))
    k("s_waitcnt vmcnt(0)")
    k.vmq = []
    k("v_readfirstlane_b32 s94, v31")
    k("s_nop 0")
    k("s_cmp_ge_u32 s94, %d" % target)
    k("s_cbranch_scc1 %s" % d)
    k("s_sleep 2")
    k("s_sub_u32 s95, s95, 1")
    k("s_cmp_lg_u32 s95, 0")
    k("s_cbranch_scc1 %s" % l)
    k.label(d)

def signal(k, base, off):
    d = k.newlabel("Lsg")
    k("s_barrier")
    k("s_cmp_lg_u32 s%d, 0" % S_W)
    k("s_cbranch_scc1 %s" % d)
    k("v_mov_b32 v%d, %s" % (V_PT, off))
    k("v_mov_b32 v31, 1")
    k("s_mov_b64 exec, 1")
    k("global_atomic_add v%d, v31, s[%d:%d] sc1" % (V_PT, base, base+1))
    k("s_mov_b64 exec, -1")
    k.label(d)

SL = [7, 8, 9, 10, 11, 3, 4, 5, 6, 0, 1, 2]
def bslot(i): return 256 + 20*SL[i % 12]
def b_loads(i):
    out = []
    if i == 14: out.append(("s", "s_mul_i32 s%d, s%d, 5120" % (S_BOFF, S_W)))
    f = bslot(i)
    for ct in range(4):
        out.append(("vm", "buffer_load_dwordx4 %s, v%d, s[%d:%d], s%d offen offset:%d%s" % (R(f+4*ct,4), V_L16, SRD_B, SRD_B+3, S_BOFF, ct*1024, SC), ("B", i)))
    out.append(("vm", "buffer_load_dwordx4 %s, v%d, s[%d:%d], s%d offen%s" % (R(f+16,4), V_L16B, SRD_B, SRD_B+3, S_BOFF, SC), ("B", i)))
    out.append(("s", "s_add_u32 s%d, s%d, %d" % (S_BOFF, S_BOFF, 4*5120)))
    return out
class Feed:
    def __init__(self, k, items): self.k = k; self.q = list(items)
    def emit(self, n=1):
        while self.q and n > 0:
            it = self.q.pop(0)
            if it[0] == "vm": self.k.vm(it[1], it[2]); n -= 1
            else: self.k(it[1])
    def drain(self): self.emit(10**6)
NB_PRE = 9
def b_feed(k):
    poll(k, P_DBG, 0, 16)
    return Feed(k, [x for i in range(NB_PRE) for x in b_loads(i)])

WSLOT = 24576; RW = 4; XBASE = RW*WSLOT; XSLOT = 16384; RX = 3

def gemm_setup(k):
    k("v_lshrrev_b32 v24, 3, v0")
    k("v_and_b32 v25, 7, v0")
    k("v_bfe_u32 v26, v24, 1, 1")
    k("s_lshl_b32 s%d, s%d, 1" % (S_T0, S_RH))
    k("v_or_b32 v26, s%d, v26" % S_T0)
    k("v_lshlrev_b32 v26, 1, v26")
    k("v_xor_b32 v26, v26, v25")
    k("s_lshl_b32 s%d, s%d, 3" % (S_T0, S_W))
    k("v_add_u32 v27, s%d, v24" % S_T0)
    k("v_mul_lo_u32 v27, v27, s%d" % S_STRIDE)
    k("v_lshl_add_u32 v%d, v26, 4, v27" % V_WD)
    k("s_lshl_b32 s%d, s%d, 5" % (S_T0, S_W))
    k("v_lshrrev_b32 v26, 1, v24")
    k("v_xor_b32 v27, v26, v25")
    k("v_add_u32 v26, s%d, v24" % S_T0)
    k("v_mul_u32_u24 v26, 1280, v26")
    k("v_lshl_add_u32 v%d, v27, 4, v26" % V_XD)
    k("v_xor_b32 v%d, 64, v%d" % (V_XD+1, V_XD))
    k("v_add_u32 v%d, %d, v%d" % (V_XD+1, 8*1280, V_XD+1))
    k("v_add_u32 v%d, %d, v%d" % (V_XD+2, 16*1280, V_XD))
    k("v_add_u32 v%d, %d, v%d" % (V_XD+3, 16*1280, V_XD+1))
    k("s_mul_i32 s%d, s%d, 6144" % (S_WL, S_W))
    k("s_lshl_b32 s%d, s%d, 12" % (S_XL, S_W))
    k("s_add_u32 s%d, s%d, %d" % (S_XL, S_XL, XBASE))
    k("s_mov_b32 s%d, 0" % S_WOFF)
    k("s_lshl_b32 s%d, s%d, 5" % (S_T3, S_STRIDE))

def touches(k):
    k("v_lshrrev_b32 v24, 2, v0")
    k("v_and_b32 v25, 3, v0")
    k("s_mul_i32 s%d, s%d, 40" % (S_T0, S_MT))
    k("s_mul_i32 s%d, s%d, 10" % (S_T1, S_W))
    k("s_add_u32 s%d, s%d, s%d" % (S_T0, S_T0, S_T1))
    k("v_min_u32 v24, 9, v24")
    k("v_min_u32 v25, 2, v25")
    k("v_add_u32 v24, s%d, v24" % S_T0)
    k("v_mul_lo_u32 v24, v24, s%d" % S_STRIDE)
    k("v_lshl_add_u32 v24, v25, 7, v24")
    k.vm("buffer_load_dword v56, v24, s[%d:%d], 0 offen" % (SRD_W0, SRD_W0+3), "pf")
    k.vm("buffer_load_dword v57, v24, s[%d:%d], 0 offen" % (SRD_W1, SRD_W1+3), "pf")
    k("v_and_b32 v24, 31, v0")
    k("s_lshl_b32 s%d, s%d, 5" % (S_T0, S_W))
    k("v_add_u32 v24, s%d, v24" % S_T0)
    k("v_mul_u32_u24 v24, 1280, v24")
    k("s_min_u32 s%d, s%d, 9" % (S_T0, S_TY))
    k("s_lshl_b32 s%d, s%d, 7" % (S_T0, S_T0))
    k.vm("buffer_load_dword v58, v24, s[%d:%d], s%d offen" % (SRD_X, SRD_X+3, S_T0), "pf")

def gemm_setup2(k, att):
    npt = 5 if att else 6
    k("v_and_b32 v24, 15, v0")
    k("v_lshrrev_b32 v25, 4, v0")
    k("v_bfe_u32 v26, v24, 1, 3")
    k("v_xor_b32 v26, v26, v25")
    k("s_lshl_b32 s%d, s%d, 13" % (S_T0, S_RH))
    k("s_add_u32 s%d, s%d, %d" % (S_T0, S_T0, XBASE))
    k("v_lshlrev_b32 v27, 7, v24")
    k("v_add_u32 v27, s%d, v27" % S_T0)
    k("v_lshl_add_u32 v%d, v26, 4, v27" % V_XR)
    k("v_xor_b32 v%d, 64, v%d" % (V_XR+1, V_XR))
    k("v_bfe_u32 v26, v0, 2, 2")
    k("v_and_b32 v27, 3, v0")
    k("v_lshrrev_b32 v28, 1, v26")
    k("v_and_b32 v29, 1, v25")
    k("v_lshl_or_b32 v28, v29, 1, v28")
    k("v_lshlrev_b32 v28, 5, v28")
    k("v_mul_u32_u24 v29, 6144, v25")
    k("v_lshl_add_u32 v29, v26, 7, v29")
    if att:
        k("s_mul_i32 s%d, s%d, 160" % (S_T0, S_C))
        k("s_add_u32 s%d, s%d, s%d" % (S_T0, S_T0, S_DELTA))
        k("v_mul_u32_u24 v27, 40, v27")
    else:
        k("s_mul_i32 s%d, s%d, 192" % (S_T0, S_C))
        k("v_lshlrev_b32 v27, 3, v27")
    k("v_add_u32 v27, s%d, v27" % S_T0)
    for p in range(npt):
        k("v_add_u32 v30, %d, v27" % (p * (8 if att else 32)))
        k("v_lshrrev_b32 v31, 7, v30")
        k("v_and_b32 v30, 127, v30")
        k("v_xor_b32 v30, v30, v28")
        k("v_lshl_add_u32 v31, v31, 10, v29")
        k("v_add_u32 v%d, v30, v31" % (V_TA+p))
        k("v_add_u32 v%d, %d, v%d" % (V_TA+6+p, 2*WSLOT, V_TA+p))

def w_dma(s):
    out = []
    for seg in range(2):
        for lc in range(3):
            out.append(("s_add_u32 m0, s%d, %d" % (S_WL, (s % RW)*WSLOT + (seg*3+lc)*1024 - lc*128),
                        "buffer_load_dwordx4 v%d, s[%d:%d], s%d offen offset:%d lds" % (V_WD, SRD_W0+4*seg, SRD_W0+4*seg+3, S_WOFF, lc*128), ("W", s)))
    return out
def x_dma(u, i):
    return ("s_add_u32 m0, s%d, %d" % (S_XL, (u % RX)*XSLOT + i*1024 - u*128),
            "buffer_load_dwordx4 v%d, s[%d:%d], 0 offen offset:%d lds" % (V_XD+i, SRD_X, SRD_X+3, u*128), ("X", u))

def reads_for(s, npt):
    out = []
    b = s & 1
    for rt in range(4):
        out.append("ds_read_b128 %s, v%d offset:%d" % (R(XF0 + (b*4+rt)*4, 4), V_XR + (s & 1), ((s >> 1) % RX)*XSLOT + rt*2048))
    slot = s % RW
    for p in range(npt):
        for seg in range(2):
            t = p*2 + seg
            for h in range(2):
                out.append("ds_read_b64_tr_b16 %s, v%d offset:%d" % (R(WF0 + (b*12+t)*4 + 2*h, 2), V_TA + p + (6 if slot >= 2 else 0), (slot & 1)*WSLOT + seg*3072 + h*512))
    return out

def acc(p, seg, rt): return ACC0 + ((p*2+seg)*4 + rt)*4

def common_late_setup(k):
    k("s_mul_i32 s%d, s%d, %d" % (S_T0, S_NT, 74*5120))
    srd(k, SRD_B, P_WS, B2_OFF, 74*5120, S_T0)
    k("s_add_u32 s%d, s%d, 20" % (S_BOFF, S_W))
    k("s_mul_i32 s%d, s%d, 5120" % (S_BOFF, S_BOFF))
    k("s_add_u32 s%d, s%d, 0x%x" % (S_CNT, P_WS, CNT_OFF))
    k("s_addc_u32 s%d, s%d, 0" % (S_CNT+1, P_WS+1))
    k("v_add_u32 v%d, 4096, v%d" % (V_L16B, V_L16))
    k("s_mov_b32 s%d, %s" % (S_C2, f32(LOG2E))); k("s_mov_b32 s%d, %s" % (S_C2+1, f32(LOG2E)))

def gemm_main(k, att, extra=None):
    npt = 5 if att else 6
    def issue(it):
        k(it[0]); k.vm(it[1], it[2])
    def wadv(): k("s_add_u32 s%d, s%d, s%d" % (S_WOFF, S_WOFF, S_T3))
    stamp(k, 1)
    for i in range(4): issue(x_dma(0, i))
    for it in w_dma(0): issue(it)
    wadv()
    for it in w_dma(1): issue(it)
    wadv()
    for i in range(4): issue(x_dma(1, i))
    for it in w_dma(2): issue(it)
    wadv()
    for it in w_dma(3): issue(it)
    wadv()
    for i in range(4): issue(x_dma(2, i))
    if cfg.TOUCH: touches(k)
    gemm_setup2(k, att)
    common_late_setup(k)
    stamp(k, 2)
    k.wait(vm=[("X", 0), ("W", 0)])
    k("s_barrier")
    stamp(k, 3)
    for r in reads_for(0, npt): k.lg(r)
    k.wait(vm=[("W", 1)], lg="all")
    k("s_barrier")
    for s in range(20):
        b = s & 1
        rd = reads_for(s+1, npt) if s < 19 else []
        dm = []
        if s + 4 < 20: dm += w_dma(s+4)
        if s >= 1:
            u = (s-1)//2 + 3
            if u < 10:
                h = (s-1) & 1
                dm += [x_dma(u, 2*h), x_dma(u, 2*h+1)]
        if extra and s in extra: dm += extra[s]
        nm = npt*2*4
        step = (nm - 4) // max(len(dm), 1)
        pend = None
        m = 0
        for p in range(npt):
            for seg in range(2):
                for rt in range(4):
                    a = acc(p, seg, rt)
                    k("v_mfma_f32_16x16x32_bf16 %s, %s, %s, %s" % (R(a,4), R(WF0 + (b*12+p*2+seg)*4, 4), R(XF0 + (b*4+rt)*4, 4), R(a,4) if s else "0"))
                    if rd: k.lg(rd.pop(0))
                    if pend is not None:
                        k.vm(pend[1], pend[2])
                        if pend[2][0] == "W" and not any(d[2][0] == "W" for d in dm): wadv()
                        pend = None
                    elif dm and m % step == 1 % step:
                        pend = dm.pop(0); k(pend[0])
                    m += 1
        assert not rd and not dm and pend is None, (s, rd, dm, pend)
        if s < 19:
            k.wait(vm=[("W", s+2), ("X", (s+2) >> 1)], lg="all")
            k("s_barrier")
    stamp(k, 4)

def ffn_epilogue(k):
    k("s_lshl_b32 s%d, s%d, 1" % (S_T0, S_MT))
    k("s_add_u32 s%d, s%d, s%d" % (S_T0, S_T0, S_RH))
    k("s_mul_i32 s%d, s%d, 74" % (S_T0, S_T0))
    k("s_mul_i32 s%d, s%d, 6" % (S_T1, S_TY))
    k("s_add_u32 s%d, s%d, s%d" % (S_T0, S_T0, S_T1))
    k("s_mul_i32 s%d, s%d, 3" % (S_T1, S_C))
    k("s_add_u32 s%d, s%d, s%d" % (S_T0, S_T0, S_T1))
    k("s_add_u32 s%d, s%d, 20" % (S_T0, S_T0))
    k("s_lshl_b32 s%d, s%d, 12" % (S_T0, S_T0))
    k("s_lshl_b32 s%d, s%d, 7" % (S_SIG, S_MT))
    fd = b_feed(k)
    n = 0
    for ks in range(3):
        for rt in range(4):
            T = 32 + (n & 1)*8; O = 48 + (n & 1)*4; n += 1
            G = [acc(2*ks+j, 0, rt) for j in range(2)]; U = [acc(2*ks+j, 1, rt) for j in range(2)]
            prs = [(j, h) for j in range(2) for h in range(2)]
            for i, (j, h) in enumerate(prs):
                k("v_pk_mul_f32 %s, %s, s[%d:%d] neg_lo:[0,1] neg_hi:[0,1]" % (vr(T+2*i,2), vr(G[j]+2*h,2), S_C2, S_C2+1))
            fd.emit(1)
            for i in range(8): k("v_exp_f32 v%d, v%d" % (T+i, T+i))
            for i, (j, h) in enumerate(prs):
                k("v_pk_mul_f32 %s, %s, %s" % (vr(G[j]+2*h,2), vr(G[j]+2*h,2), vr(U[j]+2*h,2)))
            for i in range(4): k("v_pk_add_f32 %s, %s, 1.0 op_sel_hi:[1,0]" % (vr(T+2*i,2), vr(T+2*i,2)))
            fd.emit(1)
            for i in range(8): k("v_rcp_f32 v%d, v%d" % (T+i, T+i))
            for i, (j, h) in enumerate(prs):
                k("v_pk_mul_f32 %s, %s, %s" % (vr(T+2*i,2), vr(G[j]+2*h,2), vr(T+2*i,2)))
            for i in range(4): k("v_cvt_pk_bf16_f32 v%d, v%d, v%d" % (O+i, T+2*i, T+2*i+1))
            k.vm("buffer_store_dwordx4 %s, v%d, s[%d:%d], s%d offen offset:%d%s" % (vr(O,4), V_L16, SRD_O, SRD_O+3, S_T0, rt*1024, SC), "st")
            fd.emit(1)
        if ks < 2: k("s_add_u32 s%d, s%d, 4096" % (S_T0, S_T0))
    fd.drain()
    k.wait(vm="st")

def phi_dma(seg, s_off):
    out = []
    for i in range(4):
        out.append(("s_add_u32 m0, s%d, %d" % (S_WL, seg*WSLOT),
                    "buffer_load_dwordx4 v%d, s[%d:%d], s%d offen offset:%d lds" % (V_L16, SRD_P, SRD_P+3, s_off, i*1024), ("P", seg)))
    out.append(("s_add_u32 m0, s%d, %d" % (S_WL, seg*WSLOT + 4096),
                "buffer_load_dwordx4 v%d, s[%d:%d], s82 offen lds" % (V_L16, SRD_P, SRD_P+3), ("P", seg)))
    return out

def phi_frags(k, seg):
    for to in range(5):
        for s in range(3):
            for h in range(2):
                d = PHI0 + (to*3+s)*4 + 2*h
                if s == 2 and h == 1: continue
                k.lg("ds_read_b64_tr_b16 %s, v22 offset:%d" % (R(d,2), seg*WSLOT + (8*s+4*h)*40 + 8*to))

def phi_addr_setup(k):
    k("v_lshrrev_b32 v24, 4, v0")
    k("v_bfe_u32 v25, v0, 2, 2")
    k("v_and_b32 v26, 3, v0")
    k("v_mul_u32_u24 v27, 800, v24")
    k("v_mad_u32_u24 v27, v25, 40, v27")
    k("v_cmp_eq_u32 vcc, v24, v26")
    k("v_mov_b32 v28, 4096")
    k("v_cndmask_b32 v27, v28, v27, vcc")
    k("v_add_u32 v22, s%d, v27" % S_WL)
    for to in range(5):
        for j in range(2): k("v_accvgpr_write_b32 %s, 0" % R(PHI0 + (to*3+2)*4 + 2 + j))
    for r in (42, 43, 54, 55): k("v_mov_b32 v%d, 0" % r)

def phi_mm(k, seg, rt, B):
    for t in range(5):
        a = acc(t, seg, rt)
        k("v_cvt_pk_bf16_f32 v%d, v%d, v%d" % (B+2*t, a, a+1))
        k("v_cvt_pk_bf16_f32 v%d, v%d, v%d" % (B+2*t+1, a+2, a+3))
    for s in range(3):
        for to in range(5):
            a = acc(to, seg, rt)
            k("v_mfma_f32_16x16x32_bf16 %s, %s, %s, %s" % (vr(a,4), R(PHI0+(to*3+s)*4,4), vr(B+4*s,4), vr(a,4) if s else "0"))

def softmax_pm(k, P, E, T, O, fd=None):
    def fe(n=1):
        if fd: fd.emit(n)
    v = [p + i for p in P for i in range(2)]
    for op, d in (("v_max3_f32", T), ("v_min3_f32", T+2)):
        k("%s v%d, v%d, v%d, v%d" % (op, d, v[0], v[1], v[2]))
        for i in range(3, 19, 2): k("%s v%d, v%d, v%d, v%d" % (op, d, d, v[i], v[i+1]))
        k("%s v%d, v%d, v%d, v%d" % (op, d, d, v[19], v[19]))
        fe()
    k("v_mul_f32 v%d, %s, v%d" % (T, f32(-LOG2E), T))
    k("v_mul_f32 v%d, %s, v%d" % (T+2, f32(LOG2E), T+2))
    for i, p in enumerate(P):
        k("v_pk_fma_f32 %s, %s, s[%d:%d], %s op_sel_hi:[1,1,0]" % (vr(E+2*i,2), vr(p,2), S_C2, S_C2+1, vr(T,2)))
    fe()
    for i, p in enumerate(P):
        k("v_pk_fma_f32 %s, %s, s[%d:%d], %s op_sel_hi:[1,1,0] neg_lo:[0,1,0] neg_hi:[0,1,0]" % (vr(p,2), vr(p,2), S_C2, S_C2+1, vr(T+2,2)))
    for i in range(20):
        if i % 10 == 0: fe()
        k("v_exp_f32 v%d, v%d" % (E+i, E+i))
    for i, x in enumerate(v):
        if i % 10 == 0: fe()
        k("v_exp_f32 v%d, v%d" % (x, x))
    Ep = [E+2*i for i in range(10)]
    k("v_pk_add_f32 %s, %s, %s" % (vr(T+4,2), vr(Ep[0],2), vr(Ep[1],2)))
    k("v_pk_add_f32 %s, %s, %s" % (vr(T+6,2), vr(P[0],2), vr(P[1],2)))
    for i in range(2, 10):
        k("v_pk_add_f32 %s, %s, %s" % (vr(T+4,2), vr(T+4,2), vr(Ep[i],2)))
        k("v_pk_add_f32 %s, %s, %s" % (vr(T+6,2), vr(T+6,2), vr(P[i],2)))
    fe()
    k("v_add_f32 v%d, v%d, v%d" % (T+4, T+4, T+5))
    k("v_add_f32 v%d, v%d, v%d" % (T+6, T+6, T+7))
    k("v_rcp_f32 v%d, v%d" % (T+4, T+4))
    k("v_rcp_f32 v%d, v%d" % (T+6, T+6))
    for i in range(10): k("v_pk_mul_f32 %s, %s, %s op_sel_hi:[1,0]" % (vr(Ep[i],2), vr(Ep[i],2), vr(T+4,2)))
    fe()
    for i in range(10): k("v_pk_mul_f32 %s, %s, %s op_sel_hi:[1,0]" % (vr(P[i],2), vr(P[i],2), vr(T+6,2)))
    for i in range(10): k("v_cvt_pk_bf16_f32 v%d, v%d, v%d" % (O+i, Ep[i], Ep[i]+1))
    fe()
    for i in range(10): k("v_cvt_pk_bf16_f32 v%d, v%d, v%d" % (O+10+i, P[i], P[i]+1))

def q_epilogue(k):
    k("v_and_b32 v24, 15, v0"); k("v_lshrrev_b32 v25, 4, v0")
    k("s_mov_b32 s%d, 81920" % S_T0)
    k("v_mul_lo_u32 v25, v25, s%d" % S_T0)
    k("v_lshl_add_u32 v20, v24, 4, v25")
    k("v_lshl_add_u32 v21, v24, 3, v25")
    k("s_sub_u32 s%d, s%d, 13" % (S_T1, S_TY))
    k("s_lshl_b32 s%d, s%d, 1" % (S_T1, S_T1))
    k("s_add_u32 s%d, s%d, s%d" % (S_T1, S_T1, S_C))
    k("s_mul_i32 s%d, s%d, %d" % (S_T1, S_T1, 4*81920))
    k("s_lshl_b32 s%d, s%d, 1" % (S_T0, S_MT))
    k("s_add_u32 s%d, s%d, s%d" % (S_T0, S_T0, S_RH))
    k("s_lshl_b32 s75, s%d, 10" % S_T0)
    k("s_add_u32 s75, s75, s%d" % S_T1)
    k("s_add_u32 s76, s75, 32768")
    k("s_lshl_b32 s77, s%d, 9" % S_T0)
    k("s_add_u32 s77, s77, s%d" % S_T1)
    k("s_add_u32 s77, s77, 65536")
    k("s_lshr_b32 s%d, s%d, 1" % (S_SIG, S_MT))
    k("s_add_u32 s%d, s%d, %d" % (S_SIG, S_SIG, C_Q))
    k("s_lshl_b32 s%d, s%d, 7" % (S_SIG, S_SIG))
    fd = b_feed(k)
    for seg in range(2):
        phi_frags(k, seg)
        k.wait(lg="all")
        for rt in range(4):
            phi_mm(k, seg, rt, 32 + (rt & 1)*12); fd.emit(3)
        for rt in range(4):
            O = 224 + (rt & 1)*12
            for t in range(5):
                a = acc(t, seg, rt)
                k("v_cvt_pk_bf16_f32 v%d, v%d, v%d" % (O+2*t, a, a+1))
                k("v_cvt_pk_bf16_f32 v%d, v%d, v%d" % (O+2*t+1, a+2, a+3))
            k.vm("buffer_store_dwordx4 %s, v20, s[%d:%d], s75 offen offset:%d%s" % (vr(O,4), SRD_O, SRD_O+3, rt*256, SC), "st")
            k.vm("buffer_store_dwordx4 %s, v20, s[%d:%d], s76 offen offset:%d%s" % (vr(O+4,4), SRD_O, SRD_O+3, rt*256, SC), "st")
            k.vm("buffer_store_dwordx2 %s, v21, s[%d:%d], s77 offen offset:%d%s" % (vr(O+8,2), SRD_O, SRD_O+3, rt*128, SC), "st")
        if seg == 0:
            for s in (75, 76, 77): k("s_add_u32 s%d, s%d, %d" % (s, s, 16*81920))
    fd.drain()
    k.wait(vm="st")

PKRS = 352; VRS = 224; PKSZ = 128*PKRS; VB = 2*PKSZ; VSZ = 128*VRS
def kv_epilogue(k):
    k("s_add_u32 s%d, s%d, %d" % (S_SIG, S_TY, C_K - 9))
    k("s_lshl_b32 s%d, s%d, 7" % (S_SIG, S_SIG))
    fd = b_feed(k)
    phi_frags(k, 0)
    k("v_and_b32 v24, 15, v0"); k("v_lshrrev_b32 v25, 4, v0")
    k("s_lshl_b32 s%d, s%d, 6" % (S_T0, S_RH))
    k("v_add_u32 v26, s%d, v24" % S_T0)
    k("s_mul_i32 s%d, s%d, %d" % (S_T0, S_C, PKSZ))
    k("v_mul_u32_u24 v20, %d, v26" % PKRS)
    k("v_mul_u32_u24 v27, 80, v25")
    k("v_add3_u32 v20, v20, v27, s%d" % S_T0)
    k("s_mul_i32 s%d, s%d, %d" % (S_T1, S_C, VSZ))
    k("s_add_u32 s%d, s%d, %d" % (S_T1, S_T1, VB))
    k("v_mul_u32_u24 v21, %d, v26" % VRS)
    k("v_mul_u32_u24 v27, 48, v25")
    k("v_add3_u32 v21, v21, v27, s%d" % S_T1)
    k("v_lshrrev_b32 v26, 2, v0")
    k("v_and_b32 v27, 3, v0")
    k("v_lshlrev_b32 v27, 3, v27")
    k("s_mul_i32 s%d, s%d, 160" % (S_T2, S_RH))
    k("s_add_u32 s%d, s%d, s%d" % (S_T0, S_T0, S_T2))
    k("v_mul_u32_u24 v18, %d, v26" % PKRS)
    k("v_add3_u32 v18, v18, v27, s%d" % S_T0)
    k("s_mul_i32 s%d, s%d, 96" % (S_T2, S_RH))
    k("s_add_u32 s%d, s%d, s%d" % (S_T1, S_T1, S_T2))
    k("v_mul_u32_u24 v19, %d, v26" % VRS)
    k("v_add3_u32 v19, v19, v27, s%d" % S_T1)
    for O in (224, 236):
        k("v_mov_b32 v%d, 0x3f80" % (O+10)); k("v_mov_b32 v%d, 0" % (O+11))
    k.wait(lg="all")
    k("s_barrier")
    for rt in range(4):
        phi_mm(k, 0, rt, 32 + (rt & 1)*12)
        O = 224 + (rt & 1)*12
        if rt >= 2: k.wait(lg=("vw", rt-2))
        for t in range(5):
            a = acc(t, 1, rt)
            k("v_cvt_pk_bf16_f32 v%d, v%d, v%d" % (O+2*t, a, a+1))
            k("v_cvt_pk_bf16_f32 v%d, v%d, v%d" % (O+2*t+1, a+2, a+3))
        for i in range(3):
            k.lg("ds_write_b128 v21, %s offset:%d" % (vr(O+4*i,4), rt*16*VRS + 16*i), ("vw", rt))
        fd.emit(2)
    k.wait(lg="all")
    for rt in range(4):
        P = [acc(t, 0, rt) + 2*h for t in range(5) for h in range(2)]
        E = 224; O = 32
        if rt: k.wait(lg=("pw", rt-1))
        softmax_pm(k, P, E, 56, O, fd)
        for i in range(5):
            k.lg("ds_write_b128 v20, %s offset:%d" % (vr(O+4*i,4), rt*16*PKRS + 16*i), ("pw", rt))
    k("v_mul_u32_u24 v26, 160, v24")
    k("v_lshl_add_u32 v26, v25, 4, v26")
    k("v_mov_b32 v31, 0x7fffffff")
    k("v_cmp_gt_u32 vcc, 2, v25")
    k("v_cndmask_b32 v27, v31, v26, vcc")
    k("v_cmp_gt_u32 vcc, 5, v24")
    k("v_cndmask_b32 v28, v31, v26, vcc")
    k("v_cndmask_b32 v29, v31, v27, vcc")
    k("s_sub_u32 s%d, s%d, 9" % (S_T0, S_TY))
    k("s_lshl_b32 s%d, s%d, 1" % (S_T0, S_T0))
    k("s_add_u32 s%d, s%d, s%d" % (S_T0, S_T0, S_C))
    k("s_lshl_b32 s%d, s%d, 1" % (S_T0, S_T0))
    k("s_add_u32 s%d, s%d, s%d" % (S_T0, S_T0, S_RH))
    k("s_lshl_b32 s%d, s%d, 5" % (S_T0, S_T0))
    k("s_add_u32 s%d, s%d, s%d" % (S_T0, S_T0, S_MT))
    k("s_mul_i32 s%d, s%d, 3360" % (S_T0, S_T0))
    k("s_add_u32 s%d, s%d, %d" % (S_T1, S_T0, 16*3360))
    k.wait(lg="all")
    k("s_barrier")
    KA = 32
    def rd(n):
        j, ks = n >> 2, n & 3
        fb = 96 + n*20
        for ft in range(3):
            for h in range(2):
                k.lg("ds_read_b64_tr_b16 %s, v18 offset:%d" % (vr(fb+ft*4+2*h,2), (32*ks+16*h)*PKRS + j*80 + ft*32), ("f", n))
        for bt in range(2):
            for h in range(2):
                k.lg("ds_read_b64_tr_b16 %s, v19 offset:%d" % (vr(fb+12+bt*4+2*h,2), (32*ks+16*h)*VRS + j*48 + bt*32), ("f", n))
    rd(0)
    for n in range(8):
        j, ks = n >> 2, n & 3
        fb = 96 + n*20
        if n < 7: rd(n+1)
        k.wait(lg=("f", n))
        for ft in range(3):
            for bt in range(2):
                a = KA + ((j*3+ft)*2+bt)*4
                k("v_mfma_f32_16x16x32_bf16 %s, %s, %s, %s" % (vr(a,4), vr(fb+ft*4,4), vr(fb+12+bt*4,4), vr(a,4) if ks else "0"))
        if n in (4, 7):
            jj = 0 if n == 4 else 1
            for ft in range(3):
                for bt in range(2):
                    a = KA + ((jj*3+ft)*2+bt)*4
                    vo = [[26, 28], [26, 28], [27, 29]][ft][bt]
                    k.vm("buffer_store_dwordx4 %s, v%d, s[%d:%d], s%d offen offset:%d%s" % (vr(a,4), vo, SRD_O, SRD_O+3, S_T0+jj, ft*64 + bt*2560, SC), "st")
    fd.drain()
    k.wait(vm="st")

def aux_role(k):
    srd(k, SRD_W0, P_WO, 0, 640*1280)
    srd(k, SRD_W1, P_WD, 0, 1728*1280)
    k("s_lshl_b32 s75, s%d, 2" % S_MT)
    k("s_add_u32 s75, s75, s%d" % S_W)
    k("v_lshrrev_b32 v24, 3, v0"); k("v_and_b32 v25, 7, v0")
    k("v_and_b32 v26, 6, v24")
    k("v_xor_b32 v26, v26, v25")
    k("v_mul_u32_u24 v27, 1280, v24")
    k("v_lshl_add_u32 v5, v26, 4, v27")
    for i in range(1, 4): k("v_add_u32 v%d, %d, v5" % (5+i, i*8*1280))
    NU = 12; NSL = 9; D = 8
    k("s_mul_i32 s%d, s%d, %d" % (S_WL, S_W, NSL*4096))
    def unit_params(i):
        k("s_add_u32 s76, s75, %d" % (64*i))
        k("s_mul_i32 s77, s76, 6554")
        k("s_lshr_b32 s77, s77, 16")
        k("s_mul_i32 s78, s77, 10")
        k("s_sub_u32 s78, s76, s78")
    def load(i):
        unit_params(i)
        k("s_cmp_lt_u32 s77, 20")
        k("s_cselect_b32 s96, s%d, s%d" % (SRD_W0, SRD_W1))
        k("s_cselect_b32 s97, s%d, s%d" % (SRD_W0+1, SRD_W1+1))
        k("s_cselect_b32 s98, s%d, s%d" % (SRD_W0+2, SRD_W1+2))
        k("s_mov_b32 s99, 0x20000")
        k("s_cselect_b32 s79, 0, 20")
        k("s_sub_u32 s79, s77, s79")
        k("s_mul_i32 s79, s79, %d" % (32*1280))
        k("s_lshl_b32 s78, s78, 7")
        k("s_add_u32 s79, s79, s78")
        for j in range(4):
            k("s_add_u32 m0, s%d, %d" % (S_WL, (i % NSL)*4096 + j*1024))
            k.vm("buffer_load_dwordx4 v%d, s[96:99], s79 offen lds" % (5+j), ("u", i))
    for i in range(D): load(i)
    srd(k, SRD_O, P_WS, B2_OFF, B2_SZ)
    srd(k, SRD_X, P_X, 0, 2048*1280)
    srd(k, SRD_P, P_GW, 0, 1280)
    srd(k, 80, P_WS, G_OFF, G_SZ)
    common_late_setup(k)
    k("s_cmp_eq_u32 s%d, 0" % S_MT)
    k("s_cselect_b32 s%d, 8192, 0" % S_T0)
    srd(k, 96, P_WS, CNT_OFF, "s%d" % S_T0)
    for i in range(4): k("v_mov_b32 v%d, 0" % (56+i))
    k("s_lshl_b32 s%d, s%d, 11" % (S_T0, S_W))
    for i in range(2): k.vm("buffer_store_dwordx4 v[56:59], v%d, s[96:99], s%d offen offset:%d%s" % (V_L16, S_T0, i*1024, SC), "st")
    k("v_lshrrev_b32 v24, 2, v0")
    k("v_bfe_u32 v25, v24, 1, 2")
    k("v_and_b32 v26, 3, v0")
    k("v_lshlrev_b32 v27, 7, v24")
    k("v_lshl_add_u32 v27, v26, 3, v27")
    k("v_add_u32 v27, s%d, v27" % S_WL)
    for b in range(4):
        k("v_xor_b32 v28, %d, v25" % b)
        k("v_lshl_add_u32 v%d, v28, 5, v27" % (10+b))
    k("v_and_b32 v24, 15, v0"); k("v_lshrrev_b32 v25, 4, v0")
    k("v_lshlrev_b32 v26, 4, v24")
    k("s_lshl_b32 s76, s75, 5")
    k("v_add_u32 v27, s76, v25")
    k("v_lshlrev_b32 v29, 2, v27")
    k("v_mul_u32_u24 v27, 1280, v27")
    k("v_add_u32 v27, v27, v26")
    k("v_mov_b32 v31, 0x7fffffff")
    k("v_cmp_eq_u32 vcc, 0, v24")
    k("v_cndmask_b32 v29, v31, v29, vcc")
    k("s_mov_b32 s74, 0")
    gl = [("vm", "buffer_load_dwordx4 %s, v26, s[%d:%d], 0 offen offset:%d" % (vr(72+4*j,4), SRD_P, SRD_P+3, 256*j), "gw") for j in range(5)]
    for it in range(8):
        gl += [("vm", "buffer_load_dwordx4 %s, v27, s[%d:%d], s74 offen offset:%d" % (vr(96+it*20+4*j,4), SRD_X, SRD_X+3, 256*j), ("gx", it)) for j in range(5)]
        gl.append(("s", "s_add_u32 s74, s74, %d" % (4*1280)))
    gf = Feed(k, gl)
    gf.emit(5)
    for i in range(NU):
        k.wait(vm=("u", i))
        F = 32 + (i & 1)*16
        for b in range(4):
            for h in range(2):
                k.lg("ds_read_b64_tr_b16 %s, v%d offset:%d" % (vr(F+4*b+2*h,2), 10+b, (i % NSL)*4096 + h*2048))
        if i + D < NU: load(i + D)
        else: gf.emit(5)
        unit_params(i)
        k.wait(lg="all")
        for b in range(4):
            k("s_lshl_b32 s64, s78, 2")
            k("s_add_u32 s64, s64, %d" % b)
            k("s_mul_i32 s65, s64, 205")
            k("s_lshr_b32 s65, s65, 10")
            k("s_mul_i32 s66, s65, 5")
            k("s_sub_u32 s64, s64, s66")
            k("s_mul_i32 s65, s65, 74")
            k("s_add_u32 s65, s65, s77")
            k("s_mul_i32 s65, s65, 5")
            k("s_add_u32 s65, s65, s64")
            k("s_lshl_b32 s65, s65, 10")
            k("s_cmp_lt_u32 s77, 74")
            k("s_cselect_b32 s65, s65, 0x%x" % (B2_SZ))
            k.vm("buffer_store_dwordx4 %s, v%d, s[%d:%d], s65 offen%s" % (vr(F+4*b,4), V_L16, SRD_O, SRD_O+3, SC), "st")
    gf.drain()
    for it in range(8):
        k.wait(vm=("gx", it))
        k("v_mov_b32 v30, 0")
        for j in range(20): k("v_dot2c_f32_bf16 v30, v%d, v%d" % (96+it*20+j, 72+j))
        k("s_nop 3")
        for sh in (8, 4, 2, 1): k("v_add_f32_dpp v30, v30, v30 row_ror:%d row_mask:0xf bank_mask:0xf" % sh)
        k("v_mul_f32 v30, %s, v30" % f32(-LOG2E))
        k("v_exp_f32 v30, v30")
        k("v_add_f32 v30, 1.0, v30")
        k("v_rcp_f32 v%d, v30" % (64+it))
        k.vm("buffer_store_dword v%d, v29, s[80:83], 0 offen offset:%d%s" % (64+it, it*16, SC), "st")
    k.wait(vm="st")
    signal(k, P_DBG, 0)
    stamp(k, 4)
    fd = b_feed(k); fd.drain()

def tail(k):
    k.flush_counters()
    stamp(k, 6)
    fd = Feed(k, [x for i in range(NB_PRE, 12) for x in b_loads(i)]); fd.drain()
    srd(k, SRD_P, P_WS, PQ_OFF, PQ_SZ)
    srd(k, SRD_W0, P_WS, KVP_OFF, KVP_SZ)
    srd(k, SRD_W1, P_WS, G_OFF, G_SZ)
    srd(k, SRD_O, P_WS, A2_OFF, A2_SZ)
    k("s_mul_i32 s%d, s%d, %d" % (S_T0, S_M64, 74*4096))
    srd(k, SRD_X, P_WS, A2_OFF, 74*4096, S_T0)
    k("v_and_b32 v24, 15, v0"); k("v_lshrrev_b32 v25, 4, v0")
    k("v_lshlrev_b32 v6, 2, v24")
    k("s_lshl_b32 s77, s%d, 2" % S_RB); k("s_add_u32 s77, s77, s%d" % S_W)
    k("s_lshl_b32 s78, s%d, 8" % S_M64)
    k("s_lshl_b32 s79, s77, 8")
    for rt in range(4): k.vm("buffer_load_dword v%d, v6, s[%d:%d], s78 offen offset:%d%s" % (20+rt, SRD_W1, SRD_W1+3, rt*64, SC), "g")
    for rt in range(4): k.vm("buffer_load_dword v%d, v6, s[%d:%d], s79 offen offset:%d%s" % (16+rt, SRD_W1, SRD_W1+3, rt*64, SC), "g")
    k("s_mul_i32 s78, s%d, 81920" % S_OH)
    k("s_lshl_b32 s79, s77, 10"); k("s_add_u32 s79, s79, s78")
    k("s_add_u32 s80, s79, 32768")
    k("s_lshl_b32 s81, s77, 9"); k("s_add_u32 s81, s81, s78"); k("s_add_u32 s81, s81, 65536")
    k("v_lshlrev_b32 v7, 3, v0")
    k("s_add_u32 s82, s%d, %d" % (S_RB, C_Q)); k("s_lshl_b32 s82, s82, 7")
    poll(k, S_CNT, "s82", 4)
    stamp(k, 7)
    k.vm("buffer_load_dwordx4 v[32:35], v%d, s[%d:%d], s79 offen%s" % (V_L16, SRD_P, SRD_P+3, SC), "pq")
    k.vm("buffer_load_dwordx4 v[36:39], v%d, s[%d:%d], s80 offen%s" % (V_L16, SRD_P, SRD_P+3, SC), "pq")
    k.vm("buffer_load_dwordx2 v[40:41], v7, s[%d:%d], s81 offen%s" % (SRD_P, SRD_P+3, SC), "pq")
    k("s_mul_i32 s83, s%d, 5120" % S_W)
    k("v_mul_u32_u24 v7, 80, v0"); k("v_add_u32 v7, s83, v7")
    k("v_mul_u32_u24 v8, 80, v24"); k("v_add_u32 v8, s83, v8")
    k("v_lshl_add_u32 v9, v25, 4, v8")
    k.wait(vm="pq")
    for i in range(10):
        k("v_lshlrev_b32 v%d, 16, v%d" % (64+2*i, 32+i))
        k("v_and_b32 v%d, 0xffff0000, v%d" % (65+2*i, 32+i))
    softmax_pm(k, [64+2*i for i in range(10)], 84, 56, 104)
    for i in range(5): k.lg("ds_write_b128 v7, %s offset:%d" % (vr(104+4*i,4), 16*i))
    k("s_lshl_b32 s82, s%d, 10" % S_W)
    k("v_add_u32 v10, s82, v%d" % V_L16)
    k("v_mov_b32 v30, 0x7fffffff")
    k("v_cmp_gt_u32 vcc, 3360, v10")
    k("v_cndmask_b32 v11, v30, v10, vcc")
    k("v_lshrrev_b32 v10, 1, v10")
    k("s_mul_i32 s72, s%d, 5" % S_OH)
    def stoff(dst, cv):
        k("v_lshrrev_b32 v26, 3, v%d" % cv)
        k("v_lshlrev_b32 v26, 12, v26")
        k("v_and_b32 v27, 3, v%d" % cv)
        k("v_lshl_add_u32 v26, v27, 8, v26")
        k("v_bfe_u32 v27, v%d, 2, 1" % cv)
        k("v_lshl_add_u32 v26, v27, 3, v26")
        k("v_lshl_add_u32 v%d, v24, 4, v26" % dst)
    k("v_add_u32 v28, s72, v25"); stoff(12, 28)
    k("s_add_u32 s72, s72, 4"); k("v_mov_b32 v28, s72"); stoff(13, 28)
    k("v_cmp_eq_u32 vcc, 0, v25")
    k("v_cndmask_b32 v13, v30, v13, vcc")
    k("s_mul_i32 s73, s77, %d" % (74*4096))
    k("s_mul_i32 s74, s%d, %d" % (S_OH, 16*3360))
    k.wait(lg="all")
    k("s_lshr_b32 s82, s%d, 1" % S_M64); k("s_lshl_b32 s82, s82, 7")
    stamp(k, 8)
    poll(k, S_CNT, "s82", 9)
    stamp(k, 9)
    A0 = 32; AF = 112; DA = cfg.DA
    k("s_add_u32 s80, s%d, 20" % S_W); k("s_lshl_b32 s80, s80, 12")
    def af(i): return AF + (i % DA)*16
    def a_load(i):
        for tt in range(4): k.vm("buffer_load_dwordx4 %s, v%d, s[%d:%d], s80 offen offset:%d%s" % (vr(af(i)+4*tt,4), V_L16, SRD_X, SRD_X+3, tt*1024, SC), ("A", i))
        k("s_add_u32 s80, s80, %d" % (4*4096))
    for i in range(DA): a_load(i)
    def step(i):
        k.wait(vm=[("A", i), ("B", i)])
        for ct in range(5):
            for tt in range(4):
                a = A0 + (ct*4+tt)*4
                k("v_mfma_f32_16x16x32_bf16 %s, %s, %s, %s" % (vr(a,4), R(bslot(i)+4*ct,4), vr(af(i)+4*tt,4), vr(a,4) if i else "0"))
        if i + DA < 14: a_load(i + DA)
        if i + 12 < 19: Feed(k, b_loads(i + 12)).drain()
    def ostage():
        stamp(k, 10)
        k("s_lshr_b32 s82, s%d, 3" % S_OH); k("s_add_u32 s82, s82, %d" % C_K); k("s_lshl_b32 s82, s82, 7")
        poll(k, S_CNT, "s82", 16)
        stamp(k, 11)
        for p in range(16):
            k.vm("buffer_load_dwordx4 %s, v11, s[%d:%d], s74 offen%s" % (vr(192+4*p,4), SRD_W0, SRD_W0+3, SC), ("kp", p))
            if p < 15: k("s_add_u32 s74, s74, 3360")
        for p in range(1, 16):
            k.wait(vm=("kp", p))
            for h in range(2): k("v_pk_add_f32 %s, %s, %s" % (vr(192+2*h,2), vr(192+2*h,2), vr(192+4*p+2*h,2)))
        k("v_cvt_pk_bf16_f32 v26, v192, v193"); k("v_cvt_pk_bf16_f32 v27, v194, v195")
        k.lg("ds_write_b64 v10, v[26:27] offset:20480")
        k.wait(lg="all")
        k("s_barrier")
        KA = 192
        k("v_add_u32 v14, 16, v24"); k("v_min_u32 v14, 20, v14")
        k("v_mov_b32 v15, 20")
        k("v_cmp_eq_u32 vcc, 0, v25")
        k("v_mov_b32 v30, %d" % (1792-64))
        for i, rv in enumerate((24, 14, 15)):
            k("v_mul_u32_u24 v26, 80, v%d" % rv)
            k("v_lshl_add_u32 v27, v25, 4, v26")
            k("v_cndmask_b32 v28, v30, v26, vcc")
            k.lg("ds_read_b128 %s, v27 offset:20480" % vr(KA+8*i,4))
            k.lg("ds_read_b128 %s, v28 offset:%d" % (vr(KA+4+8*i,4), 20480+64))
        for half in range(2):
            for r2 in range(2):
                rt = half*2 + r2; b = 216 + r2*20
                k.lg("ds_read_b128 %s, v9 offset:%d" % (vr(b,4), rt*1280))
                k.lg("ds_read_b128 %s, v8 offset:%d" % (vr(b+4,4), rt*1280+64))
            k.wait(lg="all")
            for r2 in range(2):
                b = 216 + r2*20
                for i in range(3):
                    for s in range(2):
                        a = b + 8 + i*4
                        k("v_mfma_f32_16x16x32_bf16 %s, %s, %s, %s" % (vr(a,4), vr(KA+8*i+4*s,4), vr(b+4*s,4), vr(a,4) if s else "0"))
            for r2 in range(2):
                rt = half*2 + r2; b = 216 + r2*20; a = b + 8
                k("v_add_f32 v%d, %s, v%d" % (a+8, f32(1e-6), a+8))
                k("v_rcp_f32 v%d, v%d" % (a+8, a+8))
                k("v_mul_f32 v%d, v%d, v%d" % (a+8, a+8, 16+rt))
                for i in range(4): k("v_pk_mul_f32 %s, %s, %s op_sel_hi:[1,0]" % (vr(a+2*i,2), vr(a+2*i,2), vr(a+8,2)))
                for i in range(4): k("v_cvt_pk_bf16_f32 v%d, v%d, v%d" % (a+8+i, a+2*i, a+2*i+1))
                k.vm("buffer_store_dwordx2 %s, v12, s[%d:%d], s73 offen offset:%d%s" % (vr(a+8,2), SRD_O, SRD_O+3, rt*1024, SC), "st")
                k.vm("buffer_store_dwordx2 %s, v13, s[%d:%d], s73 offen offset:%d%s" % (vr(a+10,2), SRD_O, SRD_O+3, rt*1024, SC), "st")
            if half == 0: k("s_nop 4")
        k.wait(vm="st")
        k("s_add_u32 s82, s%d, %d" % (S_RB, C_O)); k("s_lshl_b32 s82, s82, 7")
        signal(k, S_CNT, "s82")
        stamp(k, 12)
    for i in range(14):
        if i == cfg.OSPLIT: ostage()
        step(i)
    if cfg.OSPLIT >= 14: ostage()
    k("s_lshr_b32 s82, s%d, 2" % S_M64); k("s_add_u32 s82, s82, %d" % C_O); k("s_lshl_b32 s82, s82, 7")
    stamp(k, 13)
    poll(k, S_CNT, "s82", 32)
    stamp(k, 14)
    k("s_lshl_b32 s80, s%d, 12" % S_W)
    assert DA >= 5
    for i in range(14, 19): a_load(i)
    for rt in range(4): k("v_sub_f32 v%d, 1.0, v%d" % (8+2*rt, 20+rt))
    for ct in range(5):
        for tt in range(4):
            a = A0 + (ct*4+tt)*4
            for h in range(2): k("v_pk_mul_f32 %s, %s, %s op_sel_hi:[1,0]" % (vr(a+2*h,2), vr(a+2*h,2), vr(8+2*tt,2)))
    srd(k, SRD_O, P_OUT, 0, 2048*1280)
    k("s_mul_i32 s82, s%d, 20480" % S_W)
    k("v_add_u32 v5, s82, v%d" % V_L16)
    k("s_lshl_b32 s82, s%d, 10" % S_W)
    k("v_add_u32 v6, s82, v%d" % V_L16)
    k("v_add_u32 v7, 40960, v6")
    k("s_lshl_b32 s83, s%d, 6" % S_M64); k("s_lshl_b32 s82, s%d, 4" % S_W); k("s_add_u32 s83, s83, s82")
    k("s_mul_i32 s83, s83, 1280"); k("s_mul_i32 s82, s%d, 160" % S_NT); k("s_add_u32 s83, s83, s82")
    k("v_mul_u32_u24 v16, 1280, v24"); k("v_lshl_add_u32 v16, v25, 3, v16")
    for i in range(14, 19): step(i)
    for j in range(20): k.lg("ds_write_b128 v5, %s offset:%d" % (vr(A0+4*j,4), j*1024))
    k.wait(lg="all")
    k("s_barrier")
    for ct in range(5):
        for sw in range(4):
            k.lg("ds_read_b128 %s, v%d offset:%d" % (vr(A0+(ct*4+sw)*4,4), 6 + (sw >> 1), (sw & 1)*20480 + ct*4096), ("r", ct))
    for ct in range(5):
        k.wait(lg=("r", ct))
        a = A0 + ct*16
        for h in range(2):
            k("v_pk_add_f32 %s, %s, %s" % (vr(a+2*h,2), vr(a+2*h,2), vr(a+4+2*h,2)))
            k("v_pk_add_f32 %s, %s, %s" % (vr(a+8+2*h,2), vr(a+8+2*h,2), vr(a+12+2*h,2)))
        for h in range(2): k("v_pk_add_f32 %s, %s, %s" % (vr(a+2*h,2), vr(a+2*h,2), vr(a+8+2*h,2)))
        k("v_cvt_pk_bf16_f32 v%d, v%d, v%d" % (a+4, a, a+1)); k("v_cvt_pk_bf16_f32 v%d, v%d, v%d" % (a+5, a+2, a+3))
        k.vm("buffer_store_dwordx2 %s, v16, s[%d:%d], s83 offen offset:%d" % (vr(a+4,2), SRD_O, SRD_O+3, ct*32), "st")
    stamp_out(k)

def kernel(k):
    TM, TT = cfg.TM, cfg.TT
    kernel_header(k, NAME)
    k("s_load_dwordx16 s[8:23], s[0:1], 0")
    k("s_load_dwordx8 s[24:31], s[0:1], 64")
    k("s_cmp_ge_u32 s2, 256")
    k("s_cbranch_scc1 L_end")
    k("v_lshrrev_b32 v2, 6, v0")
    k("v_and_b32 v0, 63, v0")
    k("v_readfirstlane_b32 s%d, v2" % S_W)
    if cfg.STAMP: k("v_mov_b32 v1, 0")
    stamp(k, 0)
    nxm = 16 // TM
    k("s_and_b32 s%d, s2, 7" % S_RB)
    k("s_lshr_b32 s%d, s2, 3" % S_OH)
    k("s_and_b32 s%d, s%d, %d" % (S_T2, S_RB, nxm-1))
    k("s_lshr_b32 s%d, s%d, %d" % (S_T0, S_RB, nxm.bit_length()-1))
    k("s_mul_i32 s%d, s%d, %d" % (S_MT, S_T2, TM))
    k("s_and_b32 s%d, s%d, %d" % (S_T2, S_OH, TM-1))
    k("s_add_u32 s%d, s%d, s%d" % (S_MT, S_MT, S_T2))
    k("s_lshr_b32 s%d, s%d, %d" % (S_T1, S_OH, TM.bit_length()-1))
    k("s_mul_i32 s%d, s%d, %d" % (S_TY, S_T1, 16 // TT))
    k("s_add_u32 s%d, s%d, s%d" % (S_TY, S_TY, S_T0))
    k("s_and_b32 s%d, s%d, 1" % (S_RH, S_W))
    k("s_lshr_b32 s%d, s%d, 1" % (S_C, S_W))
    k("s_lshl_b32 s%d, s%d, 2" % (S_M64, S_RB)); k("s_and_b32 s%d, s%d, 3" % (S_T0, S_OH)); k("s_add_u32 s%d, s%d, s%d" % (S_M64, S_M64, S_T0))
    k("s_lshr_b32 s%d, s%d, 2" % (S_NT, S_OH))
    k("v_lshlrev_b32 v%d, 4, v0" % V_L16)
    k("s_cmp_ge_u32 s%d, 15" % S_TY); k("s_cbranch_scc1 L_aux")
    k("s_cmp_ge_u32 s%d, 9" % S_TY); k("s_cbranch_scc1 L_att")
    code_prefetch(k, [(None, "L_att"), ("L_join", "L_end")], 60)
    k("s_mov_b32 s%d, 3456" % S_STRIDE)
    gemm_setup(k)
    k("s_mul_i32 s%d, s%d, %d" % (S_T0, S_MT, 128*1280))
    k("s_mul_i32 s%d, s%d, 384" % (S_T1, S_TY))
    k("s_sub_u32 s%d, %d, s%d" % (S_T2, 640*3456, S_T1))
    k("s_waitcnt lgkmcnt(0)")
    srd(k, SRD_X, P_X, 0, 128*1280, S_T0)
    srd(k, SRD_W0, P_WG, 0, "s%d" % S_T2, S_T1)
    srd(k, SRD_W1, P_WU, 0, "s%d" % S_T2, S_T1)
    gemm_main(k, False)
    srd(k, SRD_O, P_WS, A2_OFF, A2_SZ)
    ffn_epilogue(k)
    k("s_branch L_join")
    k.flush_counters()
    k.label("L_att")
    code_prefetch(k, [(None, "L_aux"), ("L_join", "L_end")], 60)
    k("s_mov_b32 s%d, 3840" % S_STRIDE)
    gemm_setup(k)
    k("s_cmp_ge_u32 s%d, 13" % S_TY)
    k("s_cselect_b32 s%d, 13, 9" % S_T0)
    k("s_cselect_b32 s75, 0, 1280")
    k("s_cselect_b32 s76, 0, 640")
    k("s_add_u32 s76, s76, 640")
    k("s_sub_u32 s%d, s%d, s%d" % (S_T0, S_TY, S_T0))
    k("s_mul_i32 s%d, s%d, 320" % (S_T1, S_T0))
    k("s_and_b32 s%d, s%d, 127" % (S_DELTA, S_T1))
    k("s_sub_u32 s%d, s%d, s%d" % (S_T1, S_T1, S_DELTA))
    k("s_add_u32 s75, s75, s%d" % S_T1)
    k("s_add_u32 s76, s76, s75")
    k("s_sub_u32 s77, %d, s75" % (640*3840))
    k("s_sub_u32 s78, %d, s76" % (640*3840))
    k("s_lshl_b32 s%d, s%d, 1" % (S_T0, S_T0))
    k("s_add_u32 s%d, s%d, s%d" % (S_T0, S_T0, S_C))
    k("s_mul_i32 s80, s%d, 3200" % S_T0)
    k("s_add_u32 s81, s80, 12800")
    k("s_mov_b32 s82, 0x100000")
    k("s_mul_i32 s%d, s%d, %d" % (S_T0, S_MT, 128*1280))
    k("s_waitcnt lgkmcnt(0)")
    srd(k, SRD_X, P_X, 0, 128*1280, S_T0)
    srd(k, SRD_W0, P_WQKV, 0, "s77", 75)
    srd(k, SRD_W1, P_WQKV, 0, "s78", 76)
    srd(k, SRD_P, P_WPHI, 0, 25600)
    gemm_main(k, True, extra={16: phi_dma(0, 80), 17: phi_dma(1, 81)})
    phi_addr_setup(k)
    k("s_cmp_ge_u32 s%d, 13" % S_TY); k("s_cbranch_scc1 L_q")
    srd(k, SRD_O, P_WS, KVP_OFF, KVP_SZ)
    kv_epilogue(k)
    k("s_branch L_join")
    k.flush_counters()
    k.label("L_q")
    srd(k, SRD_O, P_WS, PQ_OFF, PQ_SZ)
    q_epilogue(k)
    k("s_branch L_join")
    k.flush_counters()
    k.label("L_aux")
    code_prefetch(k, [(None, "L_end")], 60)
    k("s_waitcnt lgkmcnt(0)")
    aux_role(k)
    k("s_branch L_tail")
    k.label("L_join")
    k("s_nop 7")
    stamp(k, 5)
    signal(k, S_CNT, "s%d" % S_SIG)
    k.label("L_tail")
    tail(k)
    k.label("L_end")
    k("s_endpgm")

def build(fn, listform=True):
    k = K()
    k.raw(open("header.txt").read().rstrip())
    if listform: k.raw("; @launch kernel=%s grid=(256,1,1) block=(256,1,1) lds=147456" % NAME)
    else: k.raw("; @launch grid=(256,1,1) block=(256,1,1) lds=147456")
    k.raw('.amdgcn_target "amdgcn-amd-amdhsa--gfx950"')
    k.raw(".text")
    kernel(k)
    k.raw('.section .rodata,"a"')
    k.raw(kernel_desc(NAME, 512, 256))
    open(fn, "w").write(k.text())

if __name__ == "__main__":
    for a in sys.argv[2:]:
        if "=" in a:
            n, v = a.split("="); setattr(cfg, n, int(v))
    build(sys.argv[1], listform="single" not in sys.argv)
```

```python
import sys
from fw import *

A2_OFF = 0;          A2_SZ = 32*74*4096
B2_OFF = 0xA00000;   B2_SZ = 8*74*5120
PQ_OFF = 0xD00000;   PQ_SZ = 32*2048*40
KVP_OFF = 0x1000000; KVPS = 3584; KVP_SZ = 16*16*KVPS
G_OFF = 0x1200000;   G_SZ = 8192
CNT_OFF = 0x1300000
ST_OFF = 0x1400000
LOG2E = 1.4426950408889634
NAME = "gated_mix__linear_kernel_hedgehog__swiglu_ffn__prompt_kernel"

class Cfg:
    TM, TT = 4, 8
    STAMP = False
    TOUCH = True
    OSPLIT = 5
    DA = 5
    MAXD = 11
    NB_LOOP = 5
    L2PF = 0
    KVFEED = 1
    AUXNT = 1
    P2M = 4
    STG = 0
    WNT = 0
    MAP = 2
    N2 = 6
    N3 = 10
    W0N = 4
    RLS = (0, 4, 7)
    AUXX = 0
    FFEED = 1
    CYC = 0
    NODMA = 0
    NOBAR = 0
    NORD = 0
    BOLATE = 0
    OSIG = 1
    AUXD = 4
    HSC = 1
    TWF = 1
    TXF = ''
    TW = [(-1,1,5),(0,6,6),(3,12,8)]
    TX = [(-1,1,2),(0,3,3),(3,6,4)]
    TAFTER = 1
    WR = (2,2,2,2,1)
    X0N = 2
    XR = (1,1,1,1,0,1,0,1,0,1)
    DTOUCH = 0
    ORDER = [0, 9, 1, 10, 2, 11, 3, 12, 4, 13, 5, 14, 6, 7, 8, 15]
    TP = (-1, -1, 2, 6)
cfg = Cfg()
SC = " sc1"

P_X, P_WQKV, P_WPHI, P_WO, P_WG, P_WU, P_WD, P_GW, P_OUT, P_DBG, P_WS = 8, 10, 12, 14, 18, 20, 22, 24, 26, 28, 30
S_W, S_RH, S_C, S_MT, S_TY, S_M64, S_NT, S_OH = 32, 33, 34, 35, 36, 37, 38, 39
SRD_X, SRD_W0, SRD_W1, SRD_O, SRD_P = 40, 44, 48, 52, 56
S_STRIDE, S_WOFF, S_WL, S_XL, S_T0, S_T1, S_T2, S_T3, S_DELTA, S_SIG = 60, 61, 62, 63, 64, 65, 66, 67, 68, 69
S_C2 = 70
SRD_B = 84; S_BOFF = 88; S_RB = 89; S_CNT = 90
V_L16, V_L16B, V_PT = 2, 3, 4
V_WD = 5; V_XD = 6; V_XR = 10; V_TA = 12
ACC0 = 64
WF0 = 256; XF0 = 256 + 96
PHI0 = 256
C_H, C_K, C_Q, C_O = 0, 16, 20, 36
SPARE = 147456
GF0 = 256 + 240; GACC = 224
S_OMT = 83

def srd(k, d, b, off, nbytes, soff=None):
    if off or soff is not None:
        if soff is not None:
            k("s_add_u32 s%d, s%d, s%d" % (d, b, soff)); k("s_addc_u32 s%d, s%d, 0" % (d+1, b+1))
            if off:
                k("s_add_u32 s%d, s%d, 0x%x" % (d, d, off)); k("s_addc_u32 s%d, s%d, 0" % (d+1, d+1))
        else:
            k("s_add_u32 s%d, s%d, 0x%x" % (d, b, off)); k("s_addc_u32 s%d, s%d, 0" % (d+1, b+1))
        k("s_and_b32 s%d, s%d, 0xffff" % (d+1, d+1))
    else:
        k("s_mov_b32 s%d, s%d" % (d, b)); k("s_and_b32 s%d, s%d, 0xffff" % (d+1, b+1))
    if isinstance(nbytes, int): k("s_mov_b32 s%d, 0x%x" % (d+2, nbytes))
    else: k("s_mov_b32 s%d, %s" % (d+2, nbytes))
    k("s_mov_b32 s%d, 0x20000" % (d+3))

def stamp(k, i):
    if not cfg.STAMP: return
    k("s_memrealtime s[92:93]")
    k("s_waitcnt lgkmcnt(0)")
    k.lgq = []
    k("v_writelane_b32 v1, s92, %d" % i)
def stamp_out(k):
    if not cfg.STAMP: return
    k("s_waitcnt vmcnt(0)")
    stamp(k, 15)
    k("v_writelane_b32 v1, s%d, 16" % S_TY)
    srd(k, 40, P_WS, ST_OFF, 1024*128)
    k("s_lshl_b32 s92, s2, 2"); k("s_add_u32 s92, s92, s%d" % S_W); k("s_lshl_b32 s92, s92, 7")
    k("v_lshlrev_b32 v5, 2, v0")
    k("v_cmp_gt_u32 vcc, 32, v0")
    k("v_mov_b32 v6, 0x7fffffff")
    k("v_cndmask_b32 v5, v6, v5, vcc")
    k("buffer_store_dword v1, v5, s[40:43], s92 offen")

def code_prefetch(k, vt):
    k("s_getpc_b64 s[72:73]")
    l = k.newlabel("Lpc"); k.label(l)
    k("s_lshr_b32 s74, s2, 3")
    k("s_lshl_b32 s74, s74, 7")
    k("v_and_b32 v%d, 31, v0" % vt)
    k("v_lshlrev_b32 v%d, 12, v%d" % (vt, vt))
    k("v_add_u32 v%d, s74, v%d" % (vt, vt))
    k("v_min_u32 v%d, L_end-%s-4, v%d" % (vt, l, vt))
    k.vm("global_load_dword v%d, v%d, s[72:73]" % (vt, vt), "pf")

def poll(k, base, off, target, sleep=6):
    l = k.newlabel("Lpoll"); d = k.newlabel("Lpd")
    k("v_mov_b32 v%d, %s" % (V_PT, off))
    k("s_mov_b32 s95, 0x8000")
    k.label(l)
    k("global_load_dword v31, v%d, s[%d:%d] sc1" % (V_PT, base, base+1))
    k("s_waitcnt vmcnt(0)")
    k.vmq = []
    k("v_readfirstlane_b32 s94, v31")
    k("s_nop 0")
    k("s_cmp_ge_u32 s94, %d" % target)
    k("s_cbranch_scc1 %s" % d)
    k("s_sleep %d" % sleep)
    k("s_sub_u32 s95, s95, 1")
    k("s_cmp_lg_u32 s95, 0")
    k("s_cbranch_scc1 %s" % l)
    k.label(d)

def poll_issue(k, base, off, tag):
    k("v_mov_b32 v%d, %s" % (V_PT, off))
    k.vm("global_load_dword v31, v%d, s[%d:%d] sc1" % (V_PT, base, base+1), tag)
def poll_check(k, base, target, tag):
    l = k.newlabel("Lpoll"); d = k.newlabel("Lpd")
    k.wait(vm=tag)
    k("v_readfirstlane_b32 s94, v31")
    k("s_mov_b32 s95, 0x8000")
    k("s_cmp_ge_u32 s94, %d" % target)
    k("s_cbranch_scc1 %s" % d)
    k.label(l)
    k("s_sleep 6")
    k("global_load_dword v31, v%d, s[%d:%d] sc1" % (V_PT, base, base+1))
    k("s_waitcnt vmcnt(0)")
    k("v_readfirstlane_b32 s94, v31")
    k("s_sub_u32 s95, s95, 1")
    k("s_cmp_ge_u32 s94, %d" % target)
    k("s_cbranch_scc1 %s" % d)
    k("s_cmp_lg_u32 s95, 0")
    k("s_cbranch_scc1 %s" % l)
    k.label(d)

def signal(k, base, off, barrier=True):
    d = k.newlabel("Lsg")
    if barrier: k("s_barrier")
    k("s_cmp_lg_u32 s%d, 0" % S_W)
    k("s_cbranch_scc1 %s" % d)
    k("v_mov_b32 v%d, %s" % (V_PT, off))
    k("v_mov_b32 v31, 1")
    k("s_mov_b64 exec, 1")
    k("global_atomic_add v%d, v31, s[%d:%d] sc1" % (V_PT, base, base+1))
    k("s_mov_b64 exec, -1")
    k.label(d)

SL = [7, 8, 9, 10, 11, 3, 4, 5, 6, 0, 1, 2]
def bslot(i): return 256 + 20*SL[i] if i < 12 else 160 + 20*(i-12)
def b_loads(i):
    out = []
    f = bslot(i)
    for ct in range(4):
        out.append(("vm", "buffer_load_dwordx4 %s, v%d, s[%d:%d], s%d offen offset:%d%s" % (R(f+4*ct,4), V_L16, SRD_B, SRD_B+3, S_BOFF, ct*1024, SC), ("B", i)))
    out.append(("vm", "buffer_load_dwordx4 %s, v%d, s[%d:%d], s%d offen%s" % (R(f+16,4), V_L16B, SRD_B, SRD_B+3, S_BOFF, SC), ("B", i)))
    out.append(("s", "s_add_u32 s%d, s%d, %d" % (S_BOFF, S_BOFF, 4*5120)))
    return out
def bo_loads():
    out = [("s", "s_mul_i32 s100, s%d, 5120" % S_W)]
    for i in range(5):
        out.append(("s", "s_mov_b32 m0, s100"))
        for ct in range(4):
            out.append(("vm", "buffer_load_dwordx4 v%d, s[%d:%d], s100 offen offset:%d%s lds" % (V_L16, SRD_B, SRD_B+3, ct*1024, SC), "BO"))
        out.append(("s", "s_add_u32 m0, s100, 4096"))
        out.append(("vm", "buffer_load_dwordx4 v%d, s[%d:%d], s100 offen%s lds" % (V_L16B, SRD_B, SRD_B+3, SC), "BO"))
        out.append(("s", "s_add_u32 s100, s100, %d" % (4*5120)))
    return out
def weave(k, mf, fill, per=2):
    fill = list(fill)
    def one(f):
        if callable(f): f()
        elif isinstance(f, tuple): (k.lg if f[0] == "lg" else k.vm)(f[1], f[2])
        else: k(f)
    for m in mf:
        k(m)
        for _ in range(per):
            if fill: one(fill.pop(0))
    for f in fill: one(f)
class Feed:
    def __init__(self, k, items): self.k = k; self.q = list(items)
    def emit(self, n=1):
        while self.q and n > 0:
            it = self.q.pop(0)
            if it[0] == "vm": self.k.vm(it[1], it[2]); n -= 1
            else: self.k(it[1])
    def drain(self): self.emit(10**6)
NB_PRE = 8
NB_ARR = 16
def b_feed(k):
    return Feed(k, [x for i in range(cfg.NB_LOOP, NB_PRE) for x in b_loads(i)])

WSLOT = 24576; RW = 4; XBASE = RW*WSLOT; XSLOT = 16384; RX = 3

def gemm_setup(k):
    k("v_lshrrev_b32 v28, 3, v0")
    k("v_and_b32 v29, 7, v0")
    k("v_bfe_u32 v26, v28, 1, 1")
    k("s_lshl_b32 s%d, s%d, 1" % (S_T0, S_RH))
    k("v_or_b32 v26, s%d, v26" % S_T0)
    k("v_lshlrev_b32 v26, 1, v26")
    k("v_xor_b32 v26, v26, v29")
    k("s_lshl_b32 s%d, s%d, 3" % (S_T0, S_W))
    k("v_add_u32 v27, s%d, v28" % S_T0)
    k("v_mul_lo_u32 v27, v27, s%d" % S_STRIDE)
    k("v_lshl_add_u32 v%d, v26, 4, v27" % V_WD)
    k("s_lshl_b32 s%d, s%d, 5" % (S_T0, S_W))
    k("v_lshrrev_b32 v26, 1, v28")
    k("v_xor_b32 v27, v26, v29")
    k("v_add_u32 v26, s%d, v28" % S_T0)
    k("v_mul_u32_u24 v26, 1280, v26")
    k("v_lshl_add_u32 v%d, v27, 4, v26" % V_XD)
    k("v_xor_b32 v%d, 64, v%d" % (V_XD+1, V_XD))
    k("v_add_u32 v%d, %d, v%d" % (V_XD+1, 8*1280, V_XD+1))
    k("v_add_u32 v%d, %d, v%d" % (V_XD+2, 16*1280, V_XD))
    k("v_add_u32 v%d, %d, v%d" % (V_XD+3, 16*1280, V_XD+1))
    k("s_mul_i32 s%d, s%d, 6144" % (S_WL, S_W))
    k("s_lshl_b32 s%d, s%d, 12" % (S_XL, S_W))
    k("s_add_u32 s%d, s%d, %d" % (S_XL, S_XL, XBASE))
    k("s_mov_b32 s%d, 0" % S_WOFF)
    k("s_lshl_b32 s%d, s%d, 5" % (S_T3, S_STRIDE))

V_TW, V_TX = 24, 25
SRD_T = 96
def touch_setup(k):
    k("v_lshrrev_b32 v26, 2, v0")
    k("v_and_b32 v27, 3, v0")
    k("s_lshl_b32 s%d, s%d, 1" % (S_T0, S_MT))
    k("s_add_u32 s%d, s%d, s%d" % (S_T0, S_T0, S_C))
    k("v_lshlrev_b32 v28, 5, v26")
    k("v_add_u32 v28, s%d, v28" % S_T0)
    k("v_mul_lo_u32 v28, v28, s%d" % S_STRIDE)
    k("v_min_u32 v29, 2, v27")
    k("v_lshl_add_u32 v%d, v29, 7, v28" % V_TW)
    k("s_lshl_b32 s%d, s%d, 4" % (S_T0, S_TY))
    k("s_lshl_b32 s%d, s%d, 2" % (S_T1, S_W))
    k("s_add_u32 s%d, s%d, s%d" % (S_T0, S_T0, S_T1))
    k("v_add_u32 v27, s%d, v27" % S_T0)
    k("v_mul_u32_u24 v27, 1280, v27")
    k("v_lshl_add_u32 v%d, v26, 7, v27" % V_TX)
def touch_srd(k):
    k("s_cmp_eq_u32 s%d, 0" % S_RH)
    for i in range(3): k("s_cselect_b32 s%d, s%d, s%d" % (SRD_T+i, SRD_W0+i, SRD_W1+i))
    k("s_mov_b32 s%d, 0x20000" % (SRD_T+3))
def masked(n, t):
    if n >= 16: return t
    return "s_bfm_b64 exec, %d, 0\n%s\ns_mov_b64 exec, -1" % (4*n, t)
def touch_items(stage):
    out = []
    for (st, first, n) in cfg.TW:
        if st == stage:
            out.append(("s_mul_i32 s101, s%d, %d" % (S_STRIDE, 32*first), masked(n, "buffer_load_dword v56, v%d, s[%d:%d], s101 offen%s" % (V_TW, SRD_T, SRD_T+3, cfg.TWF)), "pf"))
    for (st, first, n) in cfg.TX:
        if st == stage:
            out.append((None, masked(n, "buffer_load_dword v57, v%d, s[%d:%d], 0 offen offset:%d%s" % (V_TX, SRD_X, SRD_X+3, first*128, cfg.TXF)), "pf"))
    return out
def sched(first0, n0, rate, total):
    out = [(-1, first0, n0)]; f = first0 + n0; s = 0
    while f < total:
        n = min(rate[min(s, len(rate)-1)], total - f)
        if n: out.append((s, f, n))
        f += n; s += 1
    return out

def gemm_setup2(k, att):
    npt = 5 if att else 6
    k("v_and_b32 v54, 15, v0")
    k("v_lshrrev_b32 v55, 4, v0")
    k("v_bfe_u32 v26, v54, 1, 3")
    k("v_xor_b32 v26, v26, v55")
    k("s_lshl_b32 s%d, s%d, 13" % (S_T0, S_RH))
    k("s_add_u32 s%d, s%d, %d" % (S_T0, S_T0, XBASE))
    k("v_lshlrev_b32 v27, 7, v54")
    k("v_add_u32 v27, s%d, v27" % S_T0)
    k("v_lshl_add_u32 v%d, v26, 4, v27" % V_XR)
    k("v_xor_b32 v%d, 64, v%d" % (V_XR+1, V_XR))
    k("v_bfe_u32 v26, v0, 2, 2")
    k("v_and_b32 v27, 3, v0")
    k("v_lshrrev_b32 v28, 1, v26")
    k("v_and_b32 v29, 1, v55")
    k("v_lshl_or_b32 v28, v29, 1, v28")
    k("v_lshlrev_b32 v28, 5, v28")
    k("v_mul_u32_u24 v29, 6144, v55")
    k("v_lshl_add_u32 v29, v26, 7, v29")
    if att:
        k("s_mul_i32 s%d, s%d, 160" % (S_T0, S_C))
        k("s_add_u32 s%d, s%d, s%d" % (S_T0, S_T0, S_DELTA))
        k("v_mul_u32_u24 v27, 40, v27")
    else:
        k("s_mul_i32 s%d, s%d, 192" % (S_T0, S_C))
        k("v_lshlrev_b32 v27, 3, v27")
    k("v_add_u32 v27, s%d, v27" % S_T0)
    for p in range(npt):
        k("v_add_u32 v30, %d, v27" % (p * (8 if att else 32)))
        k("v_lshrrev_b32 v31, 7, v30")
        k("v_and_b32 v30, 127, v30")
        k("v_xor_b32 v30, v30, v28")
        k("v_lshl_add_u32 v31, v31, 10, v29")
        k("v_add_u32 v%d, v30, v31" % (V_TA+p))
        k("v_add_u32 v%d, %d, v%d" % (V_TA+6+p, 2*WSLOT, V_TA+p))

def w_dma(s):
    out = []
    for seg in range(2):
        for lc in range(3):
            out.append(("s_add_u32 m0, s%d, %d" % (S_WL, (s % RW)*WSLOT + (seg*3+lc)*1024 - lc*128),
                        "buffer_load_dwordx4 v%d, s[%d:%d], s%d offen offset:%d%s lds" % (V_WD, SRD_W0+4*seg, SRD_W0+4*seg+3, S_WOFF, lc*128, " nt" if cfg.WNT else ""), ("W", s)))
    return out
def x_dma(u, i):
    return ("s_add_u32 m0, s%d, %d" % (S_XL, (u % RX)*XSLOT + i*1024 - u*128),
            "buffer_load_dwordx4 v%d, s[%d:%d], 0 offen offset:%d lds" % (V_XD+i, SRD_X, SRD_X+3, u*128), ("X", u))

def reads_for(s, npt):
    out = []
    b = s & 1
    for rt in range(4):
        out.append("ds_read_b128 %s, v%d offset:%d" % (R(XF0 + (b*4+rt)*4, 4), V_XR + (s & 1), ((s >> 1) % RX)*XSLOT + rt*2048))
    slot = s % RW
    for p in range(npt):
        for seg in range(2):
            t = p*2 + seg
            for h in range(2):
                out.append("ds_read_b64_tr_b16 %s, v%d offset:%d" % (R(WF0 + (b*12+t)*4 + 2*h, 2), V_TA + p + (6 if slot >= 2 else 0), (slot & 1)*WSLOT + seg*3072 + h*512))
    return out

def acc(p, seg, rt): return ACC0 + ((p*2+seg)*4 + rt)*4

def common_late_setup(k):
    if cfg.P2M == 4:
        k("s_lshl_b32 s%d, s%d, 2" % (S_M64, S_RB)); k("s_and_b32 s%d, s%d, 3" % (S_T0, S_OH)); k("s_add_u32 s%d, s%d, s%d" % (S_M64, S_M64, S_T0))
        k("s_lshr_b32 s%d, s%d, 2" % (S_NT, S_OH))
    else:
        k("s_lshr_b32 s%d, s%d, 1" % (S_M64, S_RB)); k("s_lshl_b32 s%d, s%d, 3" % (S_M64, S_M64)); k("s_and_b32 s%d, s%d, 7" % (S_T0, S_OH)); k("s_add_u32 s%d, s%d, s%d" % (S_M64, S_M64, S_T0))
        k("s_and_b32 s%d, s%d, 1" % (S_NT, S_RB)); k("s_lshl_b32 s%d, s%d, 2" % (S_NT, S_NT)); k("s_lshr_b32 s%d, s%d, 3" % (S_T0, S_OH)); k("s_add_u32 s%d, s%d, s%d" % (S_NT, S_NT, S_T0))
    k("s_lshr_b32 s%d, s%d, 1" % (S_OMT, S_OH))
    k("s_and_b32 s%d, s%d, 1" % (S_OH, S_OH)); k("s_lshl_b32 s%d, s%d, 1" % (S_T0, S_RB)); k("s_add_u32 s%d, s%d, s%d" % (S_OH, S_OH, S_T0))
    k("s_mul_i32 s%d, s%d, %d" % (S_T0, S_NT, 74*5120))
    srd(k, SRD_B, P_WS, B2_OFF, 74*5120, S_T0)
    k("s_add_u32 s%d, s%d, 20" % (S_BOFF, S_W))
    k("s_mul_i32 s%d, s%d, 5120" % (S_BOFF, S_BOFF))
    k("s_add_u32 s%d, s%d, 0x%x" % (S_CNT, P_WS, CNT_OFF))
    k("s_addc_u32 s%d, s%d, 0" % (S_CNT+1, P_WS+1))
    k("v_add_u32 v%d, 4096, v%d" % (V_L16B, V_L16))
    k("s_mov_b32 s%d, %s" % (S_C2, f32(LOG2E))); k("s_mov_b32 s%d, %s" % (S_C2+1, f32(LOG2E)))

def dma_queue():
    Q = []
    for st in range(20):
        if st % 2 == 0:
            u = st // 2
            for i in range(4): Q.append((-1 if u < RX else 2*(u-RX)+1, x_dma(u, i), False))
        it = w_dma(st)
        for i, d in enumerate(it): Q.append((-1 if st < RW else st-RW, d, i == len(it)-1))
    return Q
def wadv(k): k("s_add_u32 s%d, s%d, s%d" % (S_WOFF, S_WOFF, S_T3))
def issue_now(k, Q, n):
    for _ in range(n):
        av, it, last = Q.pop(0)
        k(it[0]); k.vm(it[1], it[2])
        if last: wadv(k)

def down_touch(k):
    k("s_lshl_b32 s72, s2, 2"); k("s_add_u32 s72, s72, s%d" % S_W)
    k("s_cmp_lt_u32 s72, 720")
    k("s_cselect_b32 s76, s%d, s%d" % (P_WD, P_WO))
    k("s_cselect_b32 s77, s%d, s%d" % (P_WD+1, P_WO+1))
    k("s_cselect_b32 s73, 0, 720")
    k("s_mov_b32 s78, %d" % (640*1280))
    k("s_cselect_b32 s78, %d, s78" % (1728*1280))
    k("s_and_b32 s77, s77, 0xffff")
    k("s_mov_b32 s79, 0x20000")
    k("s_sub_u32 s72, s72, s73"); k("s_mul_i32 s72, s72, 3072")
    k("v_min_u32 v59, 23, v0"); k("v_lshlrev_b32 v59, 7, v59")
    k.vm("buffer_load_dword v59, v59, s[76:79], s72 offen", "pf")

def gemm_main(k, att, Q, extra=None, xrd=None, xwait=None, xpost=None, xsetup=None):
    npt = 5 if att else 6
    Q = list(Q)
    if att:
        for i in range(2):
            k("s_add_u32 m0, s%d, %d" % (S_XL, SPARE - XBASE))
            k.vm("buffer_load_dwordx4 v%d, s[%d:%d], 0 offen offset:%d lds" % (V_L16, SRD_O, SRD_O+3, i*1024), ("W", 0))
    issue_now(k, Q, cfg.N2)
    gemm_setup2(k, att)
    common_late_setup(k)
    if xsetup: xsetup(k)
    if att:
        k("s_add_u32 s%d, s%d, %d" % (S_T0, S_XL, SPARE - XBASE))
        k("v_lshrrev_b32 v17, 4, v0")
        k("v_lshlrev_b32 v17, 4, v17")
        k("v_add_u32 v17, s%d, v17" % S_T0)
    def rds(s):
        r = reads_for(s, npt)
        if att: r.append("ds_read_b128 %s, v17 offset:%d" % (R(GF0 + (s & 1)*4, 4), s*64))
        return r
    stamp(k, 2)
    k.wait(vm=[("X", 0), ("W", 0)])
    k("s_barrier")
    stamp(k, 3)
    for r in rds(0): k.lg(r)
    issue_now(k, Q, cfg.N3)
    if cfg.DTOUCH == 2: down_touch(k)
    k.wait(vm=[("W", 1)], lg="all")
    k("s_barrier")
    bq = []
    for s in range(20):
        b = s & 1
        rd = rds(s+1) if s < 19 else []
        if xrd and s in xrd: rd += xrd[s]
        dm = []
        while Q and Q[0][0] <= s and len(dm) < cfg.MAXD: dm.append(Q.pop(0))
        if extra and s in extra: dm += [(0, e, False) for e in extra[s]]
        if cfg.TOUCH:
            dm += [(0, e, False) for e in touch_items(s)]
        if s == 16: bq = [x for i in range(cfg.NB_LOOP) for x in b_loads(i)]
        if s >= 16:
            n = -(-sum(1 for x in bq if x[0] == "vm") // (20 - s))
            for _ in range(n):
                pre = None
                while bq[0][0] == "s":
                    assert pre is None
                    pre = bq.pop(0)[1]
                x = bq.pop(0)
                dm.append((0, (pre, x[1], x[2]), False))
        if cfg.NODMA and 5 <= s <= 12: dm = []
        if cfg.NORD and 7 <= s <= 12: rd = []
        mf = []
        for p in range(npt):
            for seg in range(2):
                for rt in range(4):
                    a = acc(p, seg, rt)
                    mf.append("v_mfma_f32_16x16x32_bf16 %s, %s, %s, %s" % (R(a,4), R(WF0 + (b*12+p*2+seg)*4, 4), R(XF0 + (b*4+rt)*4, 4), R(a,4) if s else "0"))
        if att:
            for rt in range(4):
                a = GACC + rt*4
                mf.append("v_mfma_f32_16x16x32_bf16 %s, %s, %s, %s" % (R(a,4), R(GF0 + b*4, 4), R(XF0 + (b*4+rt)*4, 4), R(a,4) if s else "0"))
        nm = len(mf)
        step = max(2, (nm - 3) // max(len(dm), 1))
        pend = None
        for m, t in enumerate(mf):
            k(t)
            if rd: k.lg(rd.pop(0))
            if s == 13 and m == nm - 2: poll_issue(k, P_DBG, 0, "pollB")
            if s == 18 and m == 1: poll_issue(k, P_DBG, 128, "pollB2")
            if pend is not None:
                k.vm(pend[1][1], pend[1][2])
                if pend[2]: wadv(k)
                pend = None
            elif dm and m % step == 0:
                pend = dm.pop(0)
                if pend[1][0]: k(pend[1][0])
        assert not rd and not dm and pend is None, (s, rd, dm, pend)
        if s < 19:
            k.wait(vm=[("W", s+2), ("X", (s+2) >> 1)] + (xwait.get(s, []) if xwait else []), lg="all")
            if s == 15: poll_check(k, P_DBG, NB_ARR, "pollB")
            if not (cfg.NOBAR and 7 <= s <= 11): k("s_barrier")
            if xpost and s in xpost: xpost[s](k)
            if cfg.STG and s % 2 == 1: stamp(k, 17 + s//2)
            if cfg.CYC and s in (6, 12):
                stamp(k, 23 if s == 6 else 24)
                k("s_memtime s[92:93]"); k("s_waitcnt lgkmcnt(0)"); k("v_writelane_b32 v1, s92, %d" % (25 if s == 6 else 31))
    assert not Q
    for x in bq: k(x[1])
    poll_check(k, P_DBG, NB_ARR, "pollB2")
    stamp(k, 4)

def dest_offsets(k, s_lc, s_ks, s_inv, dst):
    for b in range(4):
        k("s_lshl_b32 s72, s%d, 2" % s_lc); k("s_add_u32 s72, s72, %d" % b)
        k("s_mul_i32 s73, s72, 205"); k("s_lshr_b32 s73, s73, 10")
        k("s_mul_i32 s74, s73, 5"); k("s_sub_u32 s72, s72, s74")
        k("s_mul_i32 s73, s73, 74"); k("s_add_u32 s73, s73, s%d" % s_ks)
        k("s_mul_i32 s73, s73, 5"); k("s_add_u32 s73, s73, s72")
        k("s_lshl_b32 s73, s73, 10")
        k("s_add_u32 s%d, s73, s%d" % (dst+b, s_inv))
def tr_addrs(k, s_base, dst, t0):
    k("v_lshrrev_b32 v%d, 2, v0" % t0)
    k("v_bfe_u32 v%d, v%d, 1, 2" % (t0+1, t0))
    k("v_and_b32 v%d, 3, v0" % (t0+2))
    k("v_lshlrev_b32 v%d, 7, v%d" % (t0, t0))
    k("v_lshl_add_u32 v%d, v%d, 3, v%d" % (t0, t0+2, t0))
    k("v_add_u32 v%d, s%d, v%d" % (t0, s_base, t0))
    for b in range(4):
        k("v_xor_b32 v%d, %d, v%d" % (t0+2, b, t0+1))
        k("v_lshl_add_u32 v%d, v%d, 5, v%d" % (dst+b, t0+2, t0))
RL0 = 256 + 128
def rl_setup(k):
    k("s_lshl_b32 s75, s%d, 4" % S_TY); k("s_add_u32 s75, s75, s%d" % S_MT)
    k("s_lshl_b32 s75, s75, 2"); k("s_add_u32 s75, s75, s%d" % S_W)
    k("s_mul_i32 s80, s75, 6554"); k("s_lshr_b32 s80, s80, 16")
    k("s_mul_i32 s81, s80, 10"); k("s_sub_u32 s81, s75, s81")
    k("s_cmp_ge_u32 s75, 540")
    k("s_cselect_b32 s82, 0x4000000, 0")
    k("s_mul_i32 s100, s80, %d" % (32*1280))
    k("s_lshl_b32 s75, s81, 7"); k("s_add_u32 s100, s100, s75")
    k("s_add_u32 s80, s80, 20")
    dest_offsets(k, 81, 80, 82, 76)
    srd(k, SRD_P, P_WD, 0, 1728*1280)
    srd(k, SRD_O, P_WS, B2_OFF, B2_SZ)
    k("s_add_u32 s75, s%d, %d" % (S_XL, SPARE - XBASE))
    tr_addrs(k, 75, 27, 50)
    k("v_lshrrev_b32 v50, 3, v0"); k("v_and_b32 v51, 7, v0")
    k("v_and_b32 v52, 6, v50"); k("v_xor_b32 v52, v52, v51")
    k("v_mul_u32_u24 v50, 1280, v50")
    k("v_lshl_add_u32 v26, v52, 4, v50")
def rl_hooks():
    a, b, c = cfg.RLS
    extra = {a: [("s_add_u32 m0, s75, %d" % (j*1024) + ("\ns_add_u32 s100, s100, %d" % (8*1280) if j else ""),
                  "buffer_load_dwordx4 v26, s[%d:%d], s100 offen nt lds" % (SRD_P, SRD_P+3), "rl") for j in range(4)],
             b+1: [(None, "buffer_store_dwordx4 %s, v%d, s[%d:%d], s%d offen%s" % (R(RL0+4*j,4), V_L16, SRD_O, SRD_O+3, 76+j, SC), "rls") for j in range(4)]}
    xrd = {b: ["ds_read_b64_tr_b16 %s, v%d offset:%d" % (R(RL0+4*j+2*h,2), 27+j, h*2048) for j in range(4) for h in range(2)]}
    xwait = {b-1: ["rl"], c: ["rls"]}
    xpost = {c: lambda k: signal(k, P_DBG, 0, barrier=False)}
    return dict(extra=extra, xrd=xrd, xwait=xwait, xpost=xpost, xsetup=rl_setup)

def ffn_setup(k):
    k("s_lshl_b32 s75, s%d, 1" % S_MT)
    k("s_add_u32 s75, s75, s%d" % S_RH)
    k("s_mul_i32 s75, s75, 74")
    k("s_mul_i32 s76, s%d, 6" % S_TY)
    k("s_add_u32 s75, s75, s76")
    k("s_mul_i32 s76, s%d, 3" % S_C)
    k("s_add_u32 s75, s75, s76")
    k("s_add_u32 s75, s75, 20")
    k("s_lshl_b32 s75, s75, 12")
    k("s_lshl_b32 s%d, s%d, 7" % (S_SIG, S_MT))
    srd(k, SRD_O, P_WS, A2_OFF, A2_SZ)

def ffn_epilogue(k):
    fd = b_feed(k)
    n = 0
    for ks in range(3):
        for rt in range(4):
            T = 32 + (n & 1)*8; O = 48 + (n & 1)*4; n += 1
            G = [acc(2*ks+j, 0, rt) for j in range(2)]; U = [acc(2*ks+j, 1, rt) for j in range(2)]
            prs = [(j, h) for j in range(2) for h in range(2)]
            for i, (j, h) in enumerate(prs):
                k("v_pk_mul_f32 %s, %s, s[%d:%d] neg_lo:[0,1] neg_hi:[0,1]" % (vr(T+2*i,2), vr(G[j]+2*h,2), S_C2, S_C2+1))
            fd.emit(cfg.FFEED)
            for i in range(8): k("v_exp_f32 v%d, v%d" % (T+i, T+i))
            for i, (j, h) in enumerate(prs):
                k("v_pk_mul_f32 %s, %s, %s" % (vr(G[j]+2*h,2), vr(G[j]+2*h,2), vr(U[j]+2*h,2)))
            for i in range(4): k("v_pk_add_f32 %s, %s, 1.0 op_sel_hi:[1,0]" % (vr(T+2*i,2), vr(T+2*i,2)))
            fd.emit(cfg.FFEED)
            for i in range(8): k("v_rcp_f32 v%d, v%d" % (T+i, T+i))
            for i, (j, h) in enumerate(prs):
                k("v_pk_mul_f32 %s, %s, %s" % (vr(T+2*i,2), vr(G[j]+2*h,2), vr(T+2*i,2)))
            for i in range(4): k("v_cvt_pk_bf16_f32 v%d, v%d, v%d" % (O+i, T+2*i, T+2*i+1))
            k.vm("buffer_store_dwordx4 %s, v%d, s[%d:%d], s75 offen offset:%d%s" % (vr(O,4), V_L16, SRD_O, SRD_O+3, rt*1024, SC), "st")
        if ks < 2: k("s_add_u32 s75, s75, 4096")
    stamp(k, 26)
    k.wait(vm="st")
    stamp(k, 5)
    signal(k, S_CNT, "s%d" % S_SIG)
    fd.drain()

def phi_dma(seg, s_off):
    out = []
    for i in range(4):
        out.append(("s_add_u32 m0, s%d, %d" % (S_WL, seg*WSLOT),
                    "buffer_load_dwordx4 v%d, s[%d:%d], s%d offen offset:%d lds" % (V_L16, SRD_P, SRD_P+3, s_off, i*1024), ("P", seg)))
    out.append(("s_add_u32 m0, s%d, %d" % (S_WL, seg*WSLOT + 4096),
                "buffer_load_dwordx4 v%d, s[%d:%d], s82 offen lds" % (V_L16, SRD_P, SRD_P+3), ("P", seg)))
    return out

def phireg(seg, to, s):
    i = s*5 + to
    if seg == 1: return 256 + 48 + 4*i
    return 256 + 4*i if i < 12 else 256 + 128 + 4*(i-12)
V_PHA = 23
def phi_reads(seg):
    out = []
    for s in range(3):
        for to in range(5):
            for h in range(2):
                d = phireg(seg, to, s) + 2*h
                if s == 2 and h == 1: out.append("ds_read_b64_tr_b16 %s, v26 offset:%d" % (R(d,2), seg*WSLOT))
                else: out.append("ds_read_b64_tr_b16 %s, v%d offset:%d" % (R(d,2), V_PHA, seg*WSLOT + (8*s+4*h)*40 + 8*to))
    return out
def cvt_in(seg, rt, B):
    out = []
    for t in range(5):
        a = acc(t, seg, rt)
        out.append("v_cvt_pk_bf16_f32 v%d, v%d, v%d" % (B+2*t, a, a+1))
        out.append("v_cvt_pk_bf16_f32 v%d, v%d, v%d" % (B+2*t+1, a+2, a+3))
    return out
def phi_mf(seg, rt, B, wseg=None):
    out = []
    for s in range(3):
        for to in range(5):
            a = acc(to, seg, rt)
            out.append("v_mfma_f32_16x16x32_bf16 %s, %s, %s, %s" % (vr(a,4), R(phireg(seg, to, s),4), vr(B+4*s,4), vr(a,4) if s else "0"))
    return out

PKRS = 352; VRS = 224; PKSZ = 128*PKRS; VB = 2*PKSZ; VSZ = 128*VRS
V_E0, V_E1, V_E2, V_E3, V_E4, V_E5, V_E6 = 27, 28, 29, 30, 60, 61, 62
def att_setup(k):
    k("v_lshrrev_b32 v50, 4, v0")
    k("v_and_b32 v51, 15, v0")
    k("v_bfe_u32 v52, v0, 2, 2")
    k("v_and_b32 v53, 3, v0")
    k("v_mul_u32_u24 v48, 800, v50")
    k("v_mad_u32_u24 v48, v52, 40, v48")
    k("v_cmp_eq_u32 vcc, v50, v53")
    k("v_mov_b32 v49, 4096")
    k("v_cndmask_b32 v48, v49, v48, vcc")
    k("v_add_u32 v%d, s%d, v48" % (V_PHA, S_WL))
    k("v_add_u32 v26, s%d, v49" % S_WL)
    k("v_and_b32 v48, 31, v0"); k("v_lshlrev_b32 v48, 7, v48")
    k("v_lshrrev_b32 v49, 5, v0"); k("v_mul_u32_u24 v49, 12800, v49"); k("v_add_u32 v48, v48, v49")
    k.vm("buffer_load_dword v58, v48, s[%d:%d], s80 offen" % (SRD_P, SRD_P+3), "pf")
    d = k.newlabel("Lq"); e = k.newlabel("Le")
    k("s_cmp_ge_u32 s%d, 13" % S_TY); k("s_cbranch_scc1 %s" % d)
    k("s_add_u32 s%d, s%d, %d" % (S_SIG, S_TY, C_K - 9))
    k("s_lshl_b32 s%d, s%d, 7" % (S_SIG, S_SIG))
    k("s_lshl_b32 s%d, s%d, 6" % (S_T0, S_RH))
    k("v_add_u32 v48, s%d, v51" % S_T0)
    k("s_mul_i32 s%d, s%d, %d" % (S_T0, S_C, PKSZ))
    k("v_mul_u32_u24 v%d, %d, v48" % (V_E0, PKRS))
    k("v_mul_u32_u24 v49, 80, v50")
    k("v_add3_u32 v%d, v%d, v49, s%d" % (V_E0, V_E0, S_T0))
    k("s_mul_i32 s%d, s%d, %d" % (S_T1, S_C, VSZ))
    k("s_add_u32 s%d, s%d, %d" % (S_T1, S_T1, VB))
    k("v_mul_u32_u24 v%d, %d, v48" % (V_E1, VRS))
    k("v_mul_u32_u24 v49, 48, v50")
    k("v_add3_u32 v%d, v%d, v49, s%d" % (V_E1, V_E1, S_T1))
    k("v_lshrrev_b32 v48, 2, v0")
    k("v_lshlrev_b32 v49, 3, v53")
    k("s_mul_i32 s%d, s%d, 160" % (S_T2, S_RH))
    k("s_add_u32 s%d, s%d, s%d" % (S_T0, S_T0, S_T2))
    k("v_mul_u32_u24 v%d, %d, v48" % (V_E2, PKRS))
    k("v_add3_u32 v%d, v%d, v49, s%d" % (V_E2, V_E2, S_T0))
    k("s_mul_i32 s%d, s%d, 96" % (S_T2, S_RH))
    k("s_add_u32 s%d, s%d, s%d" % (S_T1, S_T1, S_T2))
    k("v_mul_u32_u24 v%d, %d, v48" % (V_E3, VRS))
    k("v_add3_u32 v%d, v%d, v49, s%d" % (V_E3, V_E3, S_T1))
    k("s_add_u32 s%d, s%d, %d" % (S_T2, S_XL, SPARE - XBASE))
    k("v_mul_u32_u24 v48, 80, v51")
    k("v_lshl_add_u32 v48, v50, 3, v48")
    k("v_add_u32 v%d, s%d, v48" % (V_E5, S_T2))
    k("v_add_u32 v%d, s%d, v%d" % (V_E6, S_T2, V_L16))
    k("s_lshl_b32 s78, s79, 1")
    k("s_add_u32 s78, s78, s%d" % S_RH)
    k("s_lshl_b32 s78, s78, 4")
    k("s_add_u32 s78, s78, s%d" % S_MT)
    k("s_mul_i32 s78, s78, %d" % KVPS)
    k("v_cmp_gt_u32 s[72:73], 2, v50")
    k("v_cmp_gt_u32 s[74:75], 5, v51")
    k("s_and_b64 s[76:77], s[72:73], s[74:75]")
    k("s_branch %s" % e)
    k.label(d)
    k("s_mov_b32 s%d, 81920" % S_T0)
    k("v_mul_lo_u32 v48, v50, s%d" % S_T0)
    k("v_lshl_add_u32 v%d, v51, 4, v48" % V_E0)
    k("v_lshl_add_u32 v%d, v51, 3, v48" % V_E1)
    k("v_lshlrev_b32 v%d, 2, v0" % V_E2)
    k("s_mul_i32 s%d, s79, %d" % (S_T1, 4*81920))
    k("s_lshl_b32 s%d, s%d, 1" % (S_T0, S_MT))
    k("s_add_u32 s%d, s%d, s%d" % (S_T0, S_T0, S_RH))
    k("s_lshl_b32 s75, s%d, 10" % S_T0)
    k("s_add_u32 s75, s75, s%d" % S_T1)
    k("s_add_u32 s76, s75, 32768")
    k("s_lshl_b32 s77, s%d, 9" % S_T0)
    k("s_add_u32 s77, s77, s%d" % S_T1)
    k("s_add_u32 s77, s77, 65536")
    k("s_lshl_b32 s78, s%d, 8" % S_T0)
    k("s_add_u32 s78, s78, %d" % (G_OFF - PQ_OFF))
    k("s_add_u32 s%d, s%d, %d" % (S_SIG, S_MT, C_Q))
    k("s_lshl_b32 s%d, s%d, 7" % (S_SIG, S_SIG))
    k.label(e)
    for r in (42, 43, 54, 55): k("v_mov_b32 v%d, 0" % r)

def softmax_pm(k, P, E, T, O, fd=None, mf=None, side=None):
    def fe(n=1):
        if fd: fd.emit(n)
    mf = list(mf or []); side = list(side or [])
    v = [p + i for p in P for i in range(2)]
    k("v_max3_f32 v%d, v%d, v%d, v%d" % (T, v[0], v[1], v[2]))
    k("v_min3_f32 v%d, v%d, v%d, v%d" % (T+2, v[0], v[1], v[2]))
    k("v_max3_f32 v%d, v%d, v%d, v%d" % (T+1, v[3], v[4], v[5]))
    k("v_min3_f32 v%d, v%d, v%d, v%d" % (T+3, v[3], v[4], v[5]))
    for n, i in enumerate(range(6, 20, 2)):
        c = n & 1
        k("v_max3_f32 v%d, v%d, v%d, v%d" % (T+c, T+c, v[i], v[i+1]))
        k("v_min3_f32 v%d, v%d, v%d, v%d" % (T+2+c, T+2+c, v[i], v[i+1]))
    fe()
    k("v_max_f32 v%d, v%d, v%d" % (T, T, T+1))
    k("v_min_f32 v%d, v%d, v%d" % (T+2, T+2, T+3))
    k("v_mul_f32 v%d, %s, v%d" % (T, f32(-LOG2E), T))
    k("v_mul_f32 v%d, %s, v%d" % (T+2, f32(LOG2E), T+2))
    for i, p in enumerate(P):
        k("v_pk_fma_f32 %s, %s, s[%d:%d], %s op_sel_hi:[1,1,0]" % (vr(E+2*i,2), vr(p,2), S_C2, S_C2+1, vr(T,2)))
    fe()
    for i, p in enumerate(P):
        k("v_pk_fma_f32 %s, %s, s[%d:%d], %s op_sel_hi:[1,1,0] neg_lo:[0,1,0] neg_hi:[0,1,0]" % (vr(p,2), vr(p,2), S_C2, S_C2+1, vr(T+2,2)))
    ex = [E+i for i in range(20)] + v
    for i, x in enumerate(ex):
        if mf and i % 2 == 0:
            k(mf.pop(0))
            if side: k.lg(*side.pop(0))
        elif side and i % 2 == 0: k.lg(*side.pop(0))
        if i % 12 == 5: fe()
        k("v_exp_f32 v%d, v%d" % (x, x))
    assert not mf and not side
    Ep = [E+2*i for i in range(10)]
    k("v_pk_add_f32 %s, %s, %s" % (vr(T+4,2), vr(Ep[0],2), vr(Ep[1],2)))
    k("v_pk_add_f32 %s, %s, %s" % (vr(T,2), vr(Ep[2],2), vr(Ep[3],2)))
    k("v_pk_add_f32 %s, %s, %s" % (vr(T+6,2), vr(P[0],2), vr(P[1],2)))
    k("v_pk_add_f32 %s, %s, %s" % (vr(T+2,2), vr(P[2],2), vr(P[3],2)))
    for i in range(4, 10, 2):
        k("v_pk_add_f32 %s, %s, %s" % (vr(T+4,2), vr(T+4,2), vr(Ep[i],2)))
        k("v_pk_add_f32 %s, %s, %s" % (vr(T,2), vr(T,2), vr(Ep[i+1],2)))
        k("v_pk_add_f32 %s, %s, %s" % (vr(T+6,2), vr(T+6,2), vr(P[i],2)))
        k("v_pk_add_f32 %s, %s, %s" % (vr(T+2,2), vr(T+2,2), vr(P[i+1],2)))
    k("v_pk_add_f32 %s, %s, %s" % (vr(T+4,2), vr(T+4,2), vr(T,2)))
    k("v_pk_add_f32 %s, %s, %s" % (vr(T+6,2), vr(T+6,2), vr(T+2,2)))
    fe()
    k("v_add_f32 v%d, v%d, v%d" % (T+4, T+4, T+5))
    k("v_add_f32 v%d, v%d, v%d" % (T+6, T+6, T+7))
    k("v_rcp_f32 v%d, v%d" % (T+4, T+4))
    k("v_rcp_f32 v%d, v%d" % (T+6, T+6))
    for i in range(10): k("v_pk_mul_f32 %s, %s, %s op_sel_hi:[1,0]" % (vr(Ep[i],2), vr(Ep[i],2), vr(T+4,2)))
    fe()
    for i in range(10): k("v_pk_mul_f32 %s, %s, %s op_sel_hi:[1,0]" % (vr(P[i],2), vr(P[i],2), vr(T+6,2)))
    for i in range(10): k("v_cvt_pk_bf16_f32 v%d, v%d, v%d" % (O+i, Ep[i], Ep[i]+1))
    fe()
    for i in range(10): k("v_cvt_pk_bf16_f32 v%d, v%d, v%d" % (O+10+i, P[i], P[i]+1))

def q_epilogue(k):
    srd(k, SRD_O, P_WS, PQ_OFF, G_OFF + G_SZ - PQ_OFF)
    k.wait(vm=("P", 1))
    for t in cvt_in(0, 0, 32): k(t)
    gate = ["v_lshrrev_b32 v24, 4, v0"]
    for rt in range(1, 4):
        gate += ["v_cmp_eq_u32 vcc, %d, v24" % rt, "v_cndmask_b32 v%d, v%d, v%d, vcc" % (GACC, GACC, GACC+4*rt)]
    gate += ["v_mul_f32 v25, %s, v%d" % (f32(-LOG2E), GACC), "v_exp_f32 v25, v25", "v_add_f32 v25, 1.0, v25", "v_rcp_f32 v25, v25",
             ("vm", "buffer_store_dword v25, v%d, s[%d:%d], s78 offen%s" % (V_E2, SRD_O, SRD_O+3, SC), "st")]
    rd1 = [("lg", r, "ph1") for r in phi_reads(1)]
    def outs(u):
        seg, rt = u >> 2, u & 3
        O = (240, 8)[u & 1]
        f = cvt_in(seg, rt, O)
        f.insert(4, ("vm", "buffer_store_dwordx4 %s, v%d, s[%d:%d], s75 offen offset:%d%s" % (vr(O,4), V_E0, SRD_O, SRD_O+3, rt*256, SC), "st"))
        f.insert(9, ("vm", "buffer_store_dwordx4 %s, v%d, s[%d:%d], s76 offen offset:%d%s" % (vr(O+4,4), V_E0, SRD_O, SRD_O+3, rt*256, SC), "st"))
        f.append(("vm", "buffer_store_dwordx2 %s, v%d, s[%d:%d], s77 offen offset:%d%s" % (vr(O+8,2), V_E1, SRD_O, SRD_O+3, rt*128, SC), "st"))
        if u == 3: f += ["s_add_u32 s%d, s%d, %d" % (x, x, 16*81920) for x in (75, 76, 77)]
        return f
    k.wait(lg="all")
    for u in range(8):
        seg, rt = u >> 2, u & 3
        fill = []
        if u < 7: fill += cvt_in((u+1) >> 2, (u+1) & 3, 32 + ((u+1) & 1)*12)
        if u == 0: fill += rd1[:14] + gate[:6]
        elif u == 1: fill += outs(0) + rd1[14:21]
        elif u == 2: fill += outs(1) + rd1[21:28]
        elif u == 3: fill += rd1[28:] + outs(2) + gate[6:]
        else: fill += outs(u-1)
        if u == 4: k.wait(lg="all")
        weave(k, phi_mf(seg, rt, 32 + (u & 1)*12), fill)
    weave(k, [], outs(7))
    k.wait(vm="st")
    stamp(k, 5)
    signal(k, S_CNT, "s%d" % S_SIG)
    b_feed(k).drain()

def kv_epilogue(k):
    srd(k, SRD_O, P_WS, KVP_OFF, KVP_SZ)
    fd = b_feed(k)
    for t in cvt_in(0, 0, 32): k(t)
    for O in (8, 244):
        k("v_mov_b32 v%d, 0x3f80" % (O+10)); k("v_mov_b32 v%d, 0" % (O+11))
    def vout(rt):
        O = (8, 244)[rt & 1]
        f = []
        if rt >= 2: f.append(lambda rt=rt: k.wait(lg=("vw", rt-2)))
        f += cvt_in(1, rt, O)
        f += [("lg", "ds_write_b128 v%d, %s offset:%d" % (V_E1, vr(O+4*i,4), rt*16*VRS + 16*i), ("vw", rt)) for i in range(3)]
        return f
    k.wait(lg="all")
    weave(k, phi_mf(0, 0, 32), cvt_in(0, 1, 44) + vout(0) + vout(1) + vout(2) + vout(3))
    k.wait(lg="all")
    k("s_barrier")
    stamp(k, 17)
    def vfr(n, bt): return acc((n*2+bt) >> 2, 1, (n*2+bt) & 3)
    vreads = []
    for n in range(8):
        j, ks = n >> 2, n & 3
        for bt in range(2):
            for h in range(2):
                vreads.append(("ds_read_b64_tr_b16 %s, v%d offset:%d" % (vr(vfr(n,bt)+2*h,2), V_E3, (32*ks+16*h)*VRS + j*48 + bt*32), "vf"))
    O = 224
    for rt in range(4):
        P = [acc(t, 0, rt) + 2*h for t in range(5) for h in range(2)]
        E = 4 + 0
        mf = phi_mf(0, rt+1, 32 + ((rt+1) & 1)*12) if rt < 3 else []
        side = vreads[rt*8:(rt+1)*8]
        softmax_pm(k, P, 5*0 + EREG, TREG, O, fd if cfg.KVFEED else None, mf, side)
        for i in range(5):
            k.lg("ds_write_b128 v%d, %s offset:%d" % (V_E0, vr(O+4*i,4), rt*16*PKRS + 16*i), ("pw", rt))
        if rt < 2:
            for t in cvt_in(0, rt+2, 32 + (rt & 1)*12): k(t)
        stamp(k, 18+rt)
    k("v_mov_b32 v31, 0x7fffffff")
    k("v_cmp_gt_u32 vcc, 32, v0")
    k("v_cndmask_b32 v%d, v31, v%d, vcc" % (V_E4, V_L16))
    k.wait(lg="all")
    k("s_barrier")
    stamp(k, 22)
    KAQ = [32, 36, 40, 44, 48, 52, 224, 228, 232, 236, 240, 244]
    def pfr(n, ft): return acc(((n % 6)*3+ft) >> 2, 0, ((n % 6)*3+ft) & 3)
    def rd(n):
        j, ks = n >> 2, n & 3
        return [("lg", "ds_read_b64_tr_b16 %s, v%d offset:%d" % (vr(pfr(n,ft)+2*h,2), V_E2, (32*ks+16*h)*PKRS + j*80 + ft*32), ("f", n)) for ft in range(3) for h in range(2)]
    def pack(jj):
        f = []
        for ft in range(3):
            for bt in range(2):
                a = KAQ[(jj*3+ft)*2+bt]
                f += ["v_cvt_pk_bf16_f32 v%d, v%d, v%d" % (a, a, a+1), "v_cvt_pk_bf16_f32 v%d, v%d, v%d" % (a+1, a+2, a+3)]
                mask = [[None, "s[74:75]"], [None, "s[74:75]"], ["s[72:73]", "s[76:77]"]][ft][bt]
                w = "ds_write_b64 v%d, %s offset:%d" % (V_E5, vr(a,2), jj*1680 + bt*1280 + ft*32)
                if mask: w = "s_mov_b64 exec, %s\n%s\ns_mov_b64 exec, -1" % (mask, w)
                f.append(("lg", w, "cw"))
        return f
    weave(k, [], rd(0) + rd(1))
    pk0 = pack(0)
    for n in range(8):
        j, ks = n >> 2, n & 3
        k.wait(lg=("f", n))
        mf = []
        for ft in range(3):
            for bt in range(2):
                a = KAQ[(j*3+ft)*2+bt]
                mf.append("v_mfma_f32_16x16x32_bf16 %s, %s, %s, %s" % (vr(a,4), vr(pfr(n,ft),4), vr(vfr(n,bt),4), vr(a,4) if ks else "0"))
        fill = rd(n+2) if n < 6 else []
        if n >= 5: fill += pk0[(n-5)*6:(n-4)*6]
        weave(k, mf, fill)
    weave(k, [], pack(1))
    k.wait(lg="all")
    for i in range(4): k.lg("ds_read_b128 %s, v%d offset:%d" % (vr(64+4*i,4), V_E6, i*1024), ("cr", i))
    for i in range(4):
        k.wait(lg=("cr", i))
        k.vm("buffer_store_dwordx4 %s, v%d, s[%d:%d], s78 offen offset:%d%s" % (vr(64+4*i,4), V_L16 if i < 3 else V_E4, SRD_O, SRD_O+3, i*1024, SC), "st")
    stamp(k, 26)
    k.wait(vm="st")
    stamp(k, 5)
    signal(k, S_CNT, "s%d" % S_SIG)
    fd.drain()
EREG = 6; TREG = 244

def aux_role(k):
    NU = 13; NSL = 9
    k("s_lshl_b32 s75, s%d, 2" % S_MT)
    k("s_add_u32 s75, s75, s%d" % S_W)
    k("s_mul_i32 s76, s75, 205"); k("s_lshr_b32 s76, s76, 11")
    k("s_mul_i32 s77, s76, 10"); k("s_sub_u32 s77, s75, s77")
    k("s_cmp_ge_u32 s76, 6")
    k("s_cselect_b32 s78, 0x4000000, 0")
    k("s_mul_i32 s79, s76, %d" % (32*1280))
    k("s_lshl_b32 s80, s77, 7")
    k("s_add_u32 s79, s79, s80")
    k("s_add_u32 s79, s79, s78")
    k("s_mov_b32 s81, s79")
    k("v_lshrrev_b32 v24, 3, v0"); k("v_and_b32 v25, 7, v0")
    k("v_and_b32 v26, 6, v24")
    k("v_xor_b32 v26, v26, v25")
    k("v_lshlrev_b32 v26, 4, v26")
    k("v_mad_u32_u24 v5, v24, s%d, v26" % S_STRIDE)
    for i in range(1, 4): k("v_add_u32 v%d, %d, v5" % (5+i, i*8*1280))
    k("s_mul_i32 s%d, s%d, %d" % (S_WL, S_W, NSL*4096))
    k("s_waitcnt lgkmcnt(0)")
    srd(k, SRD_W1, P_WD, 0, 1728*1280)
    def load(i):
        sg, vb, so = (SRD_W1, 5, 79) if i < 9 else (SRD_W0, 12, 81)
        for j in range(4):
            k("s_add_u32 m0, s%d, %d" % (S_WL, (i % NSL)*4096 + j*1024))
            k.vm("buffer_load_dwordx4 v%d, s[%d:%d], s%d offen nt lds" % (vb+j, sg, sg+3, so), ("u", i))
        k("s_add_u32 s%d, s%d, %d" % (so, so, 6*32*1280))
    D = cfg.AUXD
    for i in range(D): load(i)
    srd(k, SRD_W0, P_WO, 0, 640*1280)
    k("v_lshrrev_b32 v27, 2, v24"); k("v_and_b32 v28, 3, v24")
    k("v_lshl_add_u32 v27, v27, 3, v28")
    k("v_mad_u32_u24 v12, v27, s%d, v26" % S_STRIDE)
    for i in range(1, 4):
        k("v_add_u32 v%d, %d, v12" % (12+i, (16*(i&1) + 4*(i>>1))*1280))
    srd(k, SRD_O, P_WS, B2_OFF, B2_SZ)
    common_late_setup(k)
    k("s_cmp_eq_u32 s%d, 0" % S_MT)
    k("s_cselect_b32 s%d, 8192, 0" % S_T0)
    srd(k, 96, P_WS, CNT_OFF, "s%d" % S_T0)
    for i in range(4): k("v_mov_b32 v%d, 0" % (56+i))
    k("s_lshl_b32 s%d, s%d, 11" % (S_T0, S_W))
    for i in range(2): k.vm("buffer_store_dwordx4 v[56:59], v%d, s[96:99], s%d offen offset:%d%s" % (V_L16, S_T0, i*1024, SC), ("st", 0))
    tr_addrs(k, S_WL, 20, 24)
    k("s_add_u32 s80, s76, 20")
    dest_offsets(k, 77, 80, 78, 64)
    stamp(k, 1)
    for i in range(NU):
        k.wait(vm=("u", i))
        F = 64 + (i % 4)*16
        for b in range(4):
            for h in range(2):
                k.lg("ds_read_b64_tr_b16 %s, v%d offset:%d" % (vr(F+4*b+2*h,2), 20+b, (i % NSL)*4096 + h*2048))
        if i == 9:
            for b in range(4): k("s_sub_u32 s%d, s%d, %d" % (64+b, 64+b, 74*5120))
        if i == NU-1:
            k("s_cmp_lt_u32 s76, 2")
            k("s_cselect_b32 s72, 0, 0x4000000")
            for b in range(4): k("s_add_u32 s%d, s%d, s72" % (64+b, 64+b))
        k.wait(lg="all")
        for b in range(4):
            k.vm("buffer_store_dwordx4 %s, v%d, s[%d:%d], s%d offen%s" % (vr(F+4*b,4), V_L16, SRD_O, SRD_O+3, 64+b, SC), ("st", i))
            k("s_add_u32 s%d, s%d, %d" % (64+b, 64+b, 6*5120))
        if i + D < NU: load(i + D)
        if i == 5:
            k.wait(vm=("st", 3))
            signal(k, P_DBG, 0)
            stamp(k, 2)
    k.wait(vm="all")
    signal(k, P_DBG, 128)
    stamp(k, 4)
    poll(k, P_DBG, 128, NB_ARR, sleep=32)
    stamp(k, 5)
    if cfg.L2PF:
        k("s_and_b32 s72, s%d, 1" % S_MT); k("s_lshl_b32 s72, s72, 2"); k("s_add_u32 s72, s72, s%d" % S_W)
        k("s_mul_i32 s72, s72, %d" % (74*5120))
        k("v_lshlrev_b32 v24, 7, v0")
        first = 20 + 4*cfg.NB_LOOP
        k("s_add_u32 s73, s72, %d" % (first*5120))
        n1 = -(-(74-first)*40 // 64); n2 = -(-20*40 // 64)
        for i in range(n1 + n2):
            if i == n1: k("s_mov_b32 s73, s72")
            k.vm("buffer_load_dword v%d, v24, s[%d:%d], s73 offen%s" % (64 + i % 8, SRD_O, SRD_O+3, SC), ("t", i))
            k("s_add_u32 s73, s73, 8192")
            if i >= 3: k.wait(vm=("t", i-3))
    Feed(k, [x for i in range(NB_PRE) for x in b_loads(i)]).drain()

PHB = 102400; KVB = PHB + 20480; RED = PHB
def tail(k):
    k.flush_counters()
    stamp(k, 6)
    k("s_add_u32 s82, s%d, %d" % (S_OMT, C_Q)); k("s_lshl_b32 s82, s82, 7")
    poll_issue(k, S_CNT, "s82", "pq_ok")
    fd = Feed(k, [x for i in range(NB_PRE, 14) for x in b_loads(i)] + bo_loads())
    fd.emit(5)
    srd(k, SRD_P, P_WS, PQ_OFF, PQ_SZ)
    srd(k, SRD_W0, P_WS, KVP_OFF, KVP_SZ)
    srd(k, SRD_W1, P_WS, G_OFF, G_SZ)
    srd(k, SRD_O, P_WS, A2_OFF, A2_SZ)
    k("s_mul_i32 s%d, s%d, %d" % (S_T0, S_M64, 74*4096))
    srd(k, SRD_X, P_WS, A2_OFF, 74*4096, S_T0)
    k("v_and_b32 v24, 15, v0"); k("v_lshrrev_b32 v25, 4, v0")
    k("v_lshlrev_b32 v6, 2, v24")
    k("s_lshl_b32 s77, s%d, 1" % S_OMT); k("s_add_u32 s77, s77, s%d" % S_RH)
    k("s_lshl_b32 s78, s%d, 1" % S_OH); k("s_add_u32 s78, s78, s%d" % S_C)
    k("s_mul_i32 s78, s78, 81920")
    k("s_lshl_b32 s79, s77, 10"); k("s_add_u32 s79, s79, s78")
    k("s_add_u32 s80, s79, 32768")
    k("s_lshl_b32 s81, s77, 9"); k("s_add_u32 s81, s81, s78"); k("s_add_u32 s81, s81, 65536")
    k("v_lshlrev_b32 v7, 3, v0")
    k("s_lshl_b32 s76, s%d, 9" % S_OMT); k("s_lshl_b32 s75, s%d, 7" % S_W); k("s_add_u32 s76, s76, s75")
    poll_check(k, S_CNT, 2, "pq_ok")
    stamp(k, 7)
    k.vm("buffer_load_dwordx4 v[32:35], v%d, s[%d:%d], s79 offen%s" % (V_L16, SRD_P, SRD_P+3, SC), "pq")
    k.vm("buffer_load_dwordx4 v[36:39], v%d, s[%d:%d], s80 offen%s" % (V_L16, SRD_P, SRD_P+3, SC), "pq")
    k.vm("buffer_load_dwordx2 v[40:41], v7, s[%d:%d], s81 offen%s" % (SRD_P, SRD_P+3, SC), "pq")
    for r2 in range(2): k.vm("buffer_load_dword v%d, v6, s[%d:%d], s76 offen offset:%d%s" % (16+r2, SRD_W1, SRD_W1+3, r2*64, SC), "g")
    k("s_lshr_b32 s82, s%d, 1" % S_M64); k("s_add_u32 s82, s82, %d" % C_Q); k("s_lshl_b32 s82, s82, 7")
    poll_issue(k, S_CNT, "s82", "g_ok")
    fd.emit(4)
    k("s_mul_i32 s75, s%d, 5120" % S_W); k("s_add_u32 s75, s75, %d" % PHB)
    k("v_mul_u32_u24 v7, 80, v0"); k("v_add_u32 v7, s75, v7")
    k("s_mul_i32 s75, s%d, 2560" % S_W); k("s_add_u32 s75, s75, %d" % PHB)
    k("v_mul_u32_u24 v8, 80, v24"); k("v_add_u32 v8, s75, v8")
    k("v_lshl_add_u32 v9, v25, 4, v8")
    k("s_lshl_b32 s82, s%d, 10" % S_W)
    k("v_add_u32 v10, s82, v%d" % V_L16)
    k("v_mov_b32 v30, 0x7fffffff")
    k("v_cmp_gt_u32 vcc, 3360, v10")
    k("v_cndmask_b32 v11, v30, v10, vcc")
    k("v_add_u32 v10, %d, v10" % KVB)
    k("s_mul_i32 s72, s%d, 5" % S_OH)
    def stoff(dst, add, nvalid):
        k("v_add_u32 v28, s72, v25")
        if add: k("v_add_u32 v28, %d, v28" % add)
        k("v_lshrrev_b32 v26, 2, v28")
        k("v_lshlrev_b32 v26, 12, v26")
        k("v_and_b32 v27, 3, v28")
        k("v_lshl_add_u32 v26, v27, 8, v26")
        k("v_lshl_add_u32 v26, v24, 4, v26")
        k("v_cmp_gt_u32 vcc, %d, v25" % nvalid)
        k("v_cndmask_b32 v%d, v30, v26, vcc" % dst)
    stoff(12, 0, 3); stoff(13, 3, 2)
    fd.emit(2)
    k("s_lshl_b32 s73, s%d, 1" % S_OMT); k("s_add_u32 s73, s73, s%d" % S_C)
    k("s_mul_i32 s73, s73, %d" % (74*4096))
    k("s_lshl_b32 s75, s%d, 11" % S_RH); k("s_add_u32 s73, s73, s75")
    k("s_mul_i32 s74, s%d, %d" % (S_OH, 16*KVPS))
    k("v_bfe_u32 v26, v0, 2, 2"); k("v_and_b32 v27, 3, v0")
    k("v_lshl_add_u32 v28, v26, 3, v27")
    for hd in range(2):
        for i in range(3):
            d = 18 + hd*3 + i
            if i == 2: k("v_mov_b32 v%d, %d" % (d, KVB + 1600 + hd*1680))
            else:
                k("v_add_u32 v14, %d, v28" % (4*i + 4*hd)); k("v_min_u32 v14, 20, v14")
                if hd == 1 and i == 0:
                    k("v_cmp_eq_u32 vcc, 2, v26"); k("v_cndmask_b32 v14, v14, v27, vcc")
                k("v_mul_u32_u24 v14, 80, v14")
                k("v_add_u32 v%d, %d, v14" % (d, KVB + hd*1680))
    k("v_cmp_eq_u32 s[78:79], 0, v25")
    fd.emit(2)
    k.wait(vm="pq")
    for i in range(10):
        k("v_lshlrev_b32 v%d, 16, v%d" % (64+2*i, 32+i))
        k("v_and_b32 v%d, 0xffff0000, v%d" % (65+2*i, 32+i))
    fd.emit(1)
    poll_check(k, S_CNT, 2, "g_ok")
    k("s_lshl_b32 s82, s%d, 8" % S_M64); k("s_lshl_b32 s75, s%d, 6" % S_W); k("s_add_u32 s82, s82, s75")
    k.vm("buffer_load_dword v5, v6, s[%d:%d], s82 offen%s" % (SRD_W1, SRD_W1+3, SC), "g")
    softmax_pm(k, [64+2*i for i in range(10)], 84, 56, 104, fd)
    for i in range(5): k.lg("ds_write_b128 v7, %s offset:%d" % (vr(104+4*i,4), 16*i))
    stamp(k, 27)
    nleft = sum(1 for x in fd.q if x[0] == "vm")
    fd.emit(max(0, nleft - cfg.BOLATE))
    k("s_lshr_b32 s82, s%d, 1" % S_M64); k("s_lshl_b32 s82, s82, 7")
    poll_issue(k, S_CNT, "s82", "h_ok")
    k.wait(lg="all")
    stamp(k, 8)
    poll_check(k, S_CNT, 9, "h_ok")
    stamp(k, 9)
    A0 = 32; AF = 112; DA = 3
    k("s_add_u32 s80, s%d, 20" % S_W); k("s_lshl_b32 s80, s80, 12")
    def af(i): return AF + (i % DA)*16
    def a_load(i):
        return [("vm", "buffer_load_dwordx4 %s, v%d, s[%d:%d], s80 offen offset:%d%s" % (vr(af(i)+4*tt,4), V_L16, SRD_X, SRD_X+3, tt*1024, SC), ("A", i, tt)) for tt in range(4)] + ["s_add_u32 s80, s80, %d" % (4*4096)]
    for i in range(DA): weave(k, [], a_load(i))
    def step(i):
        nxt = a_load(i + DA) if i + DA < 14 else None
        for tt in range(4):
            k.wait(vm=[("A", i, tt), ("B", i)])
            for ct in range(5):
                a = A0 + (ct*4+tt)*4
                k("v_mfma_f32_16x16x32_bf16 %s, %s, %s, %s" % (vr(a,4), R(bslot(i)+4*ct,4), vr(af(i)+4*tt,4), vr(a,4) if i else "0"))
            if nxt: weave(k, [], [nxt[tt]] + ([nxt[4]] if tt == 3 else []))
            else: fd.emit(2)
    def ostage():
        stamp(k, 10)
        poll_check(k, S_CNT, 16, "k_ok")
        stamp(k, 11)
        PR = 208
        for p in range(12):
            k.vm("buffer_load_dwordx4 %s, v11, s[%d:%d], s74 offen%s" % (vr(PR+4*p,4), SRD_W0, SRD_W0+3, SC), ("kp", p))
            k("s_add_u32 s74, s74, %d" % KVPS)
        k("s_mov_b32 s75, 0x3f80"); k("s_mov_b32 s76, 0x3f800000")
        for i in range(8): k("v_mov_b32 v%d, 0" % (200+i))
        for p in range(16):
            k.wait(vm=("kp", p))
            r = PR + 4*(p % 12)
            for i in range(4):
                k("v_dot2c_f32_bf16 v%d, s75, v%d" % (200+2*i, r+i))
                k("v_dot2c_f32_bf16 v%d, s76, v%d" % (201+2*i, r+i))
            if p < 4:
                k.vm("buffer_load_dwordx4 %s, v11, s[%d:%d], s74 offen%s" % (vr(r,4), SRD_W0, SRD_W0+3, SC), ("kp", 12+p))
                k("s_add_u32 s74, s74, %d" % KVPS)
        k("s_nop 2")
        for i in range(4): k("v_cvt_pk_bf16_f32 v%d, v%d, v%d" % (PR+i, 200+2*i, 201+2*i))
        k.lg("ds_write_b128 v10, %s" % vr(PR,4))
        k("v_mov_b32 v30, %d" % (KVB + 3584 - 64))
        k.wait(lg="all")
        k("s_barrier")
        stamp(k, 28)
        assert cfg.OSPLIT >= 4
        OA = 256 + 140
        for hd in range(2):
            for i in range(3):
                k("v_lshl_add_u32 v15, v25, 4, v%d" % (18+hd*3+i))
                k("v_cndmask_b32 v14, v30, v%d, s[78:79]" % (18+hd*3+i))
                k.lg("ds_read_b128 %s, v15" % R(OA+hd*40+8*i,4), ("o", hd))
                k.lg("ds_read_b128 %s, v14 offset:64" % R(OA+hd*40+4+8*i,4), ("o", hd))
            for r2 in range(2):
                k.lg("ds_read_b128 %s, v9 offset:%d" % (R(OA+hd*40+24+8*r2,4), hd*10240 + r2*1280), ("o", hd))
                k.lg("ds_read_b128 %s, v8 offset:%d" % (R(OA+hd*40+28+8*r2,4), hd*10240 + r2*1280+64), ("o", hd))
        KO = 200
        for hd in range(2):
            k.wait(lg=("o", hd), vm="g")
            for s in range(2):
                for r2 in range(2):
                    for i in (2, 0, 1):
                        a = KO + (hd*2+r2)*12 + i*4
                        k("v_mfma_f32_16x16x32_bf16 %s, %s, %s, %s" % (vr(a,4), R(OA+hd*40+8*i+4*s,4), R(OA+hd*40+24+8*r2+4*s,4), vr(a,4) if s else "0"))
        for u in range(4):
            a = KO + u*12
            k("v_add_f32 v%d, %s, v%d" % (a+8, f32(1e-6), a+8))
        for u in range(4): k("v_rcp_f32 v%d, v%d" % (KO+u*12+8, KO+u*12+8))
        for u in range(4): k("v_mul_f32 v%d, v%d, v%d" % (KO+u*12+8, KO+u*12+8, 16+(u & 1)))
        for u in range(4):
            a = KO + u*12
            for i in range(4): k("v_pk_mul_f32 %s, %s, %s op_sel_hi:[1,0]" % (vr(a+2*i,2), vr(a+2*i,2), vr(a+8,2)))
        k("v_cmp_eq_u32 vcc, 2, v25")
        for r2 in range(2):
            a0 = KO + r2*12; a1 = KO + (2+r2)*12
            for a in (a1, a0):
                for i in range(4): k("v_cvt_pk_bf16_f32 v%d, v%d, v%d" % (a+8+i, a+2*i, a+2*i+1))
            k.vm("buffer_store_dwordx4 %s, v13, s[%d:%d], s73 offen offset:%d%s" % (vr(a1+8,4), SRD_O, SRD_O+3, r2*1024, SC), "st")
            k("v_cndmask_b32 v%d, v%d, v%d, vcc" % (a0+10, a0+10, a1+8))
            k("v_cndmask_b32 v%d, v%d, v%d, vcc" % (a0+11, a0+11, a1+9))
            k.vm("buffer_store_dwordx4 %s, v12, s[%d:%d], s73 offen offset:%d%s" % (vr(a0+8,4), SRD_O, SRD_O+3, r2*1024, SC), "st")
        stamp(k, 29)
    def osignal():
        k.wait(vm="st")
        k("s_add_u32 s82, s%d, %d" % (S_OMT, C_O)); k("s_lshl_b32 s82, s82, 7")
        signal(k, S_CNT, "s82")
        stamp(k, 12)
    for i in range(14):
        if i == cfg.OSPLIT - 1:
            k("s_lshr_b32 s82, s%d, 2" % S_OH); k("s_add_u32 s82, s82, %d" % C_K); k("s_lshl_b32 s82, s82, 7")
            poll_issue(k, S_CNT, "s82", "k_ok")
        if i == cfg.OSPLIT: ostage()
        if i == cfg.OSPLIT + cfg.OSIG: osignal()
        step(i)
    fd.drain()
    stamp(k, 13)
    k("s_lshr_b32 s82, s%d, 1" % S_M64); k("s_add_u32 s82, s82, %d" % C_O); k("s_lshl_b32 s82, s82, 7")
    poll_issue(k, S_CNT, "s82", "o_ok")
    labs = [k.newlabel("Lred") for _ in range(5)]
    k("v_add_u32 v7, %d, v%d" % (RED, V_L16))
    k("s_mul_i32 s82, s%d, 15360" % S_W)
    k("v_add_u32 v8, s82, v7")
    for w in range(1, 4):
        k("s_cmp_eq_u32 s%d, %d" % (S_W, w)); k("s_cbranch_scc1 %s" % labs[w])
    AO = 112
    for w in range(4):
        if w: k.label(labs[w]); k("s_nop 7")
        for tt in range(4):
            if tt == w: continue
            slot = w if w < tt else w - 1
            for ct in range(5): k("ds_write_b128 v7, %s offset:%d" % (vr(A0+(ct*4+tt)*4,4), (tt*15 + slot*5 + ct)*1024))
        for ct in range(5):
            for h in range(2): k("v_pk_mul_f32 %s, %s, 1.0 op_sel_hi:[1,0]" % (vr(AO+ct*4+2*h,2), vr(A0+(ct*4+w)*4+2*h,2)))
        if w < 3: k("s_branch %s" % labs[4])
    k.label(labs[4])
    k.wait(vm="BO")
    k("s_waitcnt lgkmcnt(0)")
    k("s_barrier")
    for j in range(15): k.lg("ds_read_b128 %s, v8 offset:%d" % (vr(A0+4*j,4), j*1024), ("r", j // 5))
    srd(k, SRD_O, P_OUT, 0, 2048*1280)
    k("s_lshl_b32 s81, s%d, 6" % S_M64); k("s_lshl_b32 s82, s%d, 4" % S_W); k("s_add_u32 s81, s81, s82")
    k("s_mul_i32 s81, s81, 1280"); k("s_mul_i32 s82, s%d, 160" % S_NT); k("s_add_u32 s81, s81, s82")
    k("v_mul_u32_u24 v16, 1280, v24"); k("v_lshl_add_u32 v16, v25, 3, v16")
    k("v_sub_f32 v10, 1.0, v5")
    k("v_add_u32 v9, 51200, v%d" % V_L16)
    poll_check(k, S_CNT, 16, "o_ok")
    stamp(k, 14)
    OF = 136
    k("s_lshl_b32 s80, s%d, 10" % S_W)
    al = []
    for ks in range(20):
        al.append(("vm", "buffer_load_dwordx4 %s, v%d, s[%d:%d], s80 offen%s" % (vr(OF+4*ks,4), V_L16, SRD_X, SRD_X+3, SC), ("Ao", ks)))
        al.append(("s", "s_add_u32 s80, s80, 4096"))
    fa = Feed(k, al)
    fa.emit(8)
    def bo_read(n):
        ks, ct = divmod(n, 5)
        off = n*1024
        return ("lg", "ds_read_b128 %s, v%d offset:%d" % (R(256 + (n % 60)*4, 4), V_L16 if off < 51200 else 9, off % 51200), ("bo", ks))
    for sl in range(3):
        k.wait(lg=("r", sl))
        for ct in range(5):
            for h in range(2): k("v_pk_add_f32 %s, %s, %s" % (vr(AO+ct*4+2*h,2), vr(AO+ct*4+2*h,2), vr(A0+(sl*5+ct)*4+2*h,2)))
        weave(k, [], [bo_read(n) for n in range(sl*5, sl*5+5)])
        fa.emit(2)
    for j in range(10): k("v_pk_mul_f32 %s, %s, v[10:11] op_sel_hi:[1,0]" % (vr(AO+2*j,2), vr(AO+2*j,2)))
    nr = 15
    for ks in range(20):
        k.wait(vm=("Ao", ks), lg=("bo", ks))
        mf = ["v_mfma_f32_16x16x32_bf16 %s, %s, %s, %s" % (vr(AO+ct*4,4), R(256 + ((ks*5+ct) % 60)*4, 4), vr(OF+4*ks,4), vr(AO+ct*4,4)) for ct in range(5)]
        fill = [bo_read(n) for n in range(nr, min(100, nr+5))]; nr += len(fill)
        weave(k, mf, fill, per=1)
        fa.emit(1)
    for ct in range(5):
        a = AO + ct*4
        k("v_cvt_pk_bf16_f32 v%d, v%d, v%d" % (32+2*ct, a, a+1)); k("v_cvt_pk_bf16_f32 v%d, v%d, v%d" % (33+2*ct, a+2, a+3))
        k.vm("buffer_store_dwordx2 %s, v16, s[%d:%d], s81 offen offset:%d" % (vr(32+2*ct,2), SRD_O, SRD_O+3, ct*32), "st")
    stamp(k, 30)
    stamp_out(k)

def kernel(k):
    TM, TT = cfg.TM, cfg.TT
    kernel_header(k, NAME)
    k("s_load_dwordx16 s[8:23], s[0:1], 0")
    k("s_load_dwordx8 s[24:31], s[0:1], 64")
    k("s_cmp_ge_u32 s2, 256")
    k("s_cbranch_scc1 L_end")
    code_prefetch(k, 60)
    k("v_lshrrev_b32 v2, 6, v0")
    k("v_and_b32 v0, 63, v0")
    k("v_readfirstlane_b32 s%d, v2" % S_W)
    if cfg.STAMP: k("v_mov_b32 v1, 0")
    stamp(k, 0)
    k("s_and_b32 s%d, s2, 7" % S_RB)
    k("s_lshr_b32 s%d, s2, 3" % S_OH)
    if cfg.MAP == 0:
        nxm = 16 // TM
        k("s_and_b32 s%d, s%d, %d" % (S_T2, S_RB, nxm-1))
        k("s_lshr_b32 s%d, s%d, %d" % (S_T0, S_RB, nxm.bit_length()-1))
        k("s_mul_i32 s%d, s%d, %d" % (S_MT, S_T2, TM))
        k("s_and_b32 s%d, s%d, %d" % (S_T2, S_OH, TM-1))
        k("s_add_u32 s%d, s%d, s%d" % (S_MT, S_MT, S_T2))
        k("s_lshr_b32 s%d, s%d, %d" % (S_T1, S_OH, TM.bit_length()-1))
        k("s_mul_i32 s%d, s%d, %d" % (S_TY, S_T1, 16 // TT))
        k("s_add_u32 s%d, s%d, s%d" % (S_TY, S_TY, S_T0))
        k("s_cmp_ge_u32 s%d, 14" % S_TY)
        k("s_cselect_b32 s%d, s%d, 0" % (S_T0, S_MT))
        k("s_bfe_u32 s%d, s%d, 0x10001" % (S_T0, S_T0))
        k("s_xor_b32 s%d, s%d, s%d" % (S_TY, S_TY, S_T0))
    elif cfg.MAP == 2:
        k("s_and_b32 s%d, s%d, 15" % (S_MT, S_OH))
        k("s_lshl_b32 s%d, s%d, 3" % (S_T0, S_RB))
        k("s_bfe_u32 s%d, s%d, 0x10004" % (S_T1, S_OH))
        k("s_lshl_b32 s%d, s%d, 2" % (S_T1, S_T1))
        k("s_add_u32 s%d, s%d, s%d" % (S_T0, S_T0, S_T1))
        tab = cfg.ORDER
        lo = sum(tab[i] << (4*i) for i in range(8)); hi = sum(tab[8+i] << (4*i) for i in range(8))
        k("s_mov_b32 s74, 0x%x" % lo); k("s_mov_b32 s75, 0x%x" % hi)
        k("s_lshr_b64 s[74:75], s[74:75], s%d" % S_T0)
        k("s_and_b32 s%d, s74, 15" % S_TY)
    else:
        k("s_mul_i32 s%d, s%d, 30" % (S_T0, S_RB))
        k("s_add_u32 s%d, s%d, s%d" % (S_T0, S_T0, S_OH))
        k("s_and_b32 s%d, s%d, 15" % (S_MT, S_T0))
        k("s_lshr_b32 s%d, s%d, 4" % (S_T0, S_T0))
        tab = cfg.ORDER
        lo = sum(tab[i] << (4*i) for i in range(8)); hi = sum(tab[8+i] << (4*i) for i in range(8))
        k("s_mov_b32 s72, 0x%x" % lo); k("s_mov_b32 s73, 0x%x" % hi)
        k("s_lshl_b32 s%d, s%d, 2" % (S_T0, S_T0))
        k("s_lshr_b64 s[72:73], s[72:73], s%d" % S_T0)
        k("s_and_b32 s%d, s72, 15" % S_TY)
        k("s_lshl_b32 s%d, s%d, 1" % (S_T0, S_RB))
        k("s_add_u32 s%d, s%d, s%d" % (S_T0, S_T0, S_OH))
        k("s_sub_u32 s%d, s%d, 30" % (S_T0, S_T0))
        k("s_cmp_ge_u32 s%d, 30" % S_OH)
        k("s_cselect_b32 s%d, 15, s%d" % (S_TY, S_TY))
        k("s_cselect_b32 s%d, s%d, s%d" % (S_MT, S_T0, S_MT))
    k("s_and_b32 s%d, s%d, 1" % (S_RH, S_W))
    k("s_lshr_b32 s%d, s%d, 1" % (S_C, S_W))
    k("v_lshlrev_b32 v%d, 4, v0" % V_L16)
    k("s_cmp_ge_u32 s%d, 15" % S_TY); k("s_cbranch_scc1 L_aux")
    k("s_cmp_ge_u32 s%d, 13" % S_TY)
    k("s_cselect_b32 s%d, 13, 9" % S_T0)
    k("s_cselect_b32 s75, 0, 1280")
    k("s_cselect_b32 s76, 0, 640")
    k("s_add_u32 s76, s76, 640")
    k("s_sub_u32 s79, s%d, s%d" % (S_TY, S_T0))
    k("s_mul_i32 s%d, s79, 320" % S_T1)
    k("s_and_b32 s%d, s%d, 127" % (S_DELTA, S_T1))
    k("s_sub_u32 s%d, s%d, s%d" % (S_T1, S_T1, S_DELTA))
    k("s_add_u32 s75, s75, s%d" % S_T1)
    k("s_add_u32 s76, s76, s75")
    k("s_mul_i32 s%d, s%d, 384" % (S_T1, S_TY))
    k("s_mov_b32 s%d, 3840" % S_STRIDE)
    k("s_cmp_lt_u32 s%d, 9" % S_TY)
    k("s_cselect_b32 s75, s%d, s75" % S_T1)
    k("s_cselect_b32 s76, s%d, s76" % S_T1)
    k("s_cselect_b32 s%d, 3456, s%d" % (S_STRIDE, S_STRIDE))
    k("s_mul_i32 s%d, s%d, 640" % (S_T1, S_STRIDE))
    k("s_sub_u32 s77, s%d, s75" % S_T1)
    k("s_sub_u32 s78, s%d, s76" % S_T1)
    if cfg.TOUCH: touch_setup(k)
    gemm_setup(k)
    k("s_mul_i32 s%d, s%d, %d" % (S_T0, S_MT, 128*1280))
    k("s_waitcnt lgkmcnt(0)")
    k("s_cmp_lt_u32 s%d, 9" % S_TY)
    k("s_cselect_b64 s[16:17], s[%d:%d], s[%d:%d]" % (P_WG, P_WG+1, P_WQKV, P_WQKV+1))
    k("s_cselect_b64 s[%d:%d], s[%d:%d], s[%d:%d]" % (P_WU, P_WU+1, P_WU, P_WU+1, P_WQKV, P_WQKV+1))
    srd(k, SRD_W0, 16, 0, "s77", 75)
    srd(k, SRD_W1, P_WU, 0, "s78", 76)
    srd(k, SRD_X, P_X, 0, 128*1280, S_T0)
    stamp(k, 1)
    Q = dma_queue()
    if cfg.TAFTER: issue_now(k, Q, 10)
    if cfg.TOUCH:
        touch_srd(k)
        for it in touch_items(-1):
            if it[0]: k(it[0])
            k.vm(it[1], it[2])
    if not cfg.TAFTER: issue_now(k, Q, 10)
    sv0 = list(k.vmq)
    k("s_cmp_ge_u32 s%d, 9" % S_TY); k("s_cbranch_scc1 L_att")
    gemm_main(k, False, Q, xsetup=ffn_setup)
    ffn_epilogue(k)
    k("s_branch L_tail")
    k.flush_counters(); k.vmq = sv0
    k.label("L_att")
    srd(k, SRD_O, P_GW, 0, 1280)
    k("s_lshl_b32 s79, s79, 1")
    k("s_add_u32 s79, s79, s%d" % S_C)
    k("s_mul_i32 s80, s79, 3200")
    k("s_add_u32 s81, s80, 12800")
    k("s_mov_b32 s82, 0x100000")
    srd(k, SRD_P, P_WPHI, 0, 25600)
    gemm_main(k, True, Q, extra={16: phi_dma(0, 80), 17: phi_dma(1, 81)}, xrd={19: phi_reads(0)}, xwait={18: [("P", 0)]}, xsetup=att_setup)
    k("s_cmp_ge_u32 s%d, 13" % S_TY); k("s_cbranch_scc1 L_q")
    sv = (list(k.vmq), list(k.lgq))
    kv_epilogue(k)
    k("s_branch L_tail")
    k.vmq, k.lgq = sv
    k.label("L_q")
    k("s_nop 3")
    q_epilogue(k)
    k("s_branch L_tail")
    k.flush_counters()
    k.label("L_aux")
    k("s_mov_b32 s%d, 1280" % S_STRIDE)
    aux_role(k)
    k.label("L_tail")
    tail(k)
    k.label("L_end")
    k("s_endpgm")

def build(fn, listform=True):
    k = K()
    k.raw(open("header.txt").read().rstrip())
    if listform: k.raw("; @launch kernel=%s grid=(256,1,1) block=(256,1,1) lds=163840" % NAME)
    else: k.raw("; @launch grid=(256,1,1) block=(256,1,1) lds=163840")
    k.raw('.amdgcn_target "amdgcn-amd-amdhsa--gfx950"')
    k.raw(".text")
    kernel(k)
    k.raw('.section .rodata,"a"')
    k.raw(kernel_desc(NAME, 512, 256))
    open(fn, "w").write(k.text())

if __name__ == "__main__":
    for a in sys.argv[2:]:
        if "=" in a:
            n, v = a.split("="); setattr(cfg, n, eval(v))
    if cfg.TW is None: cfg.TW = sched(1, cfg.W0N, cfg.WR, 20)
    if cfg.TX is None: cfg.TX = sched(1, cfg.X0N, cfg.XR, 10)
    if cfg.TWF: cfg.TWF = " nt"
    if cfg.TXF: cfg.TXF = " nt"
    build(sys.argv[1], listform="single" not in sys.argv)
```

```python
import sys
from fw import *

A2_OFF = 0;          A2_SZ = 32*74*4096
B2_OFF = 0xA00000;   B2_SZ = 8*74*5120
PQ_OFF = 0xD00000;   PQ_SZ = 32*2048*40
KVP_OFF = 0x1000000; KVPS = 3584; KVP_SZ = 16*16*KVPS
G_OFF = 0x1200000;   G_SZ = 8192
CNT_OFF = 0x1300000
ST_OFF = 0x1400000
LOG2E = 1.4426950408889634
NAME = "gated_mix__linear_kernel_hedgehog__swiglu_ffn__prompt_kernel"

class Cfg:
    STAMP = 0; STG = 0
    MAXD = 11; N2 = 6; N3 = 10
    P2M = 4
    TW = [(-1,1,5),(0,6,6),(3,12,8)]
    TX = [(-1,1,2),(0,3,3),(3,6,4)]
    ORDER = [0, 9, 1, 10, 2, 11, 3, 12, 4, 13, 5, 14, 6, 7, 8, 15]
    PS1 = 16
    NBF = 40
    NBA = 32
    AUXT = 6
    AUXD = 3
    FFE = (4, 10)
    MK = 30
    KLAT = 50
    PER = 2
    DBGWG = -1
    KL2 = 40
    OSD = 50
cfg = Cfg()
SC = " sc1"

P_X, P_WQKV, P_WPHI, P_WO, P_WG, P_WU, P_WD, P_GW, P_OUT, P_DBG, P_WS = 8, 10, 12, 14, 18, 20, 22, 24, 26, 28, 30
S_W, S_RH, S_C, S_MT, S_TY, S_M64, S_NT, S_OH = 32, 33, 34, 35, 36, 37, 38, 39
SRD_X, SRD_W0, SRD_W1, SRD_O, SRD_P = 40, 44, 48, 52, 56
S_STRIDE, S_WOFF, S_WL, S_XL, S_T0, S_T1, S_T2, S_T3, S_DELTA, S_SIG = 60, 61, 62, 63, 64, 65, 66, 67, 68, 69
S_C2 = 70
S_OMT = 83; SRD_B = 84; S_BOFF = 88; S_BB = 89; S_CNT = 90; SRD_T = 96
V_L16, V_L16B, V_PT = 2, 3, 4
V_WD = 5; V_XD = 6; V_XR = 10; V_TA = 12; V_TW = 24; V_TX = 25; V_JUNK = 63
ACC0 = 64
WF0 = 256; XF0 = 256 + 96; GF0 = 256 + 88; GACC = 224
C_H, C_K, C_Q, C_O = 0, 16, 20, 36
SPARE = 147456
D_S1, D_S2, D_S3 = 0, 64, 128

def srd(k, d, b, off, nbytes, soff=None):
    if off or soff is not None:
        if soff is not None:
            k("s_add_u32 s%d, s%d, s%d" % (d, b, soff)); k("s_addc_u32 s%d, s%d, 0" % (d+1, b+1))
            if off:
                k("s_add_u32 s%d, s%d, 0x%x" % (d, d, off)); k("s_addc_u32 s%d, s%d, 0" % (d+1, d+1))
        else:
            k("s_add_u32 s%d, s%d, 0x%x" % (d, b, off)); k("s_addc_u32 s%d, s%d, 0" % (d+1, b+1))
        k("s_and_b32 s%d, s%d, 0xffff" % (d+1, d+1))
    else:
        k("s_mov_b32 s%d, s%d" % (d, b)); k("s_and_b32 s%d, s%d, 0xffff" % (d+1, b+1))
    if isinstance(nbytes, int): k("s_mov_b32 s%d, 0x%x" % (d+2, nbytes))
    else: k("s_mov_b32 s%d, %s" % (d+2, nbytes))
    k("s_mov_b32 s%d, 0x20000" % (d+3))

def stamp(k, i):
    if not cfg.STAMP: return
    k("s_memrealtime s[92:93]")
    k("s_waitcnt lgkmcnt(0)")
    k.lgq = []
    k("v_writelane_b32 v1, s92, %d" % i)
def stamp_out(k):
    if not cfg.STAMP: return
    k("s_waitcnt vmcnt(0)")
    stamp(k, 15)
    k("v_writelane_b32 v1, s%d, 16" % S_TY)
    srd(k, 40, P_WS, ST_OFF, 1024*128)
    k("s_lshl_b32 s92, s2, 2"); k("s_add_u32 s92, s92, s%d" % S_W); k("s_lshl_b32 s92, s92, 7")
    k("v_lshlrev_b32 v5, 2, v0")
    k("v_cmp_gt_u32 vcc, 32, v0")
    k("v_mov_b32 v6, 0x7fffffff")
    k("v_cndmask_b32 v5, v6, v5, vcc")
    k("buffer_store_dword v1, v5, s[40:43], s92 offen")
    if cfg.DBGWG >= 0:
        k("s_cmp_eq_u32 s92, %d" % (cfg.DBGWG*512))
        k("s_cselect_b32 s93, 64, 0")
        srd(k, 44, P_DBG, 0, "s93")
        k("v_readlane_b32 s93, v1, 0")
        k("v_subrev_u32 v7, s93, v1")
        k("v_cmp_lt_u32 vcc, 0, v0")
        k("v_cndmask_b32 v5, v6, v5, vcc")
        k("buffer_store_dword v7, v5, s[44:47], 0 offen")

def code_prefetch(k, vt):
    k("s_getpc_b64 s[72:73]")
    l = k.newlabel("Lpc"); k.label(l)
    k("s_lshr_b32 s74, s2, 3")
    k("s_lshl_b32 s74, s74, 7")
    k("v_and_b32 v%d, 31, v0" % vt)
    k("v_lshlrev_b32 v%d, 12, v%d" % (vt, vt))
    k("v_add_u32 v%d, s74, v%d" % (vt, vt))
    k("v_min_u32 v%d, L_end-%s-4, v%d" % (vt, l, vt))
    k.vm("global_load_dword v%d, v%d, s[72:73]" % (vt, vt), "pf")

def poll_issue(k, base, off, tag):
    k("v_mov_b32 v%d, %s" % (V_PT, off))
    k.vm("global_load_dword v31, v%d, s[%d:%d] sc1" % (V_PT, base, base+1), tag)
def poll_check(k, base, target, tag, sleep=4):
    l = k.newlabel("Lpoll"); d = k.newlabel("Lpd")
    k.wait(vm=tag)
    k("v_readfirstlane_b32 s94, v31")
    k("s_mov_b32 s95, 0x8000")
    k("s_cmp_ge_u32 s94, %d" % target)
    k("s_cbranch_scc1 %s" % d)
    k.label(l)
    k("s_sleep %d" % sleep)
    k("global_load_dword v31, v%d, s[%d:%d] sc1" % (V_PT, base, base+1))
    k("s_waitcnt vmcnt(0)")
    k("v_readfirstlane_b32 s94, v31")
    k("s_sub_u32 s95, s95, 1")
    k("s_cmp_ge_u32 s94, %d" % target)
    k("s_cbranch_scc1 %s" % d)
    k("s_cmp_lg_u32 s95, 0")
    k("s_cbranch_scc1 %s" % l)
    k.label(d)
def signal(k, base, off):
    d = k.newlabel("Lsg")
    k("s_barrier")
    k("s_cmp_lg_u32 s%d, 0" % S_W)
    k("s_cbranch_scc1 %s" % d)
    k("v_mov_b32 v%d, %s" % (V_PT, off))
    k("v_mov_b32 v31, 1")
    k("s_mov_b64 exec, 1")
    k("global_atomic_add v%d, v31, s[%d:%d] sc1" % (V_PT, base, base+1))
    k("s_mov_b64 exec, -1")
    k.label(d)

def bloc(n):
    if n < 32: return 256 + 128 + 4*n
    if n < 40: return 32 + 4*(n-32)
    return 256 + 4*(n-40)
def b_items(frs):
    out = []; cur = None
    for n in frs:
        st, ct = divmod(n, 5)
        pre = None
        if st != cur: pre = "s_add_u32 s%d, s%d, %d" % (S_BOFF, S_BB, (20 + 4*st)*5120); cur = st
        if ct < 4: t = "buffer_load_dwordx4 %s, v%d, s[%d:%d], s%d offen offset:%d%s" % (R(bloc(n),4), V_L16, SRD_B, SRD_B+3, S_BOFF, ct*1024, SC)
        else: t = "buffer_load_dwordx4 %s, v%d, s[%d:%d], s%d offen%s" % (R(bloc(n),4), V_L16B, SRD_B, SRD_B+3, S_BOFF, SC)
        out.append((pre, t, "B"))
    return out
def bo_items():
    out = []
    for i in range(5):
        for ct in range(5):
            pre = "s_add_u32 m0, s%d, %d" % (S_BB, i*20480 + (4096 if ct == 4 else 0))
            if ct == 0: pre = "s_add_u32 s100, s%d, %d\n" % (S_BB, i*20480) + pre
            if ct < 4: t = "buffer_load_dwordx4 v%d, s[%d:%d], s100 offen offset:%d%s lds" % (V_L16, SRD_B, SRD_B+3, ct*1024, SC)
            else: t = "buffer_load_dwordx4 v%d, s[%d:%d], s100 offen%s lds" % (V_L16B, SRD_B, SRD_B+3, SC)
            out.append((pre, t, "BO"))
    return out
class Feed:
    def __init__(self, k, items): self.k = k; self.q = list(items)
    def emit(self, n=1):
        while self.q and n > 0:
            pre, t, tag = self.q.pop(0)
            if pre: self.k(pre)
            self.k.vm(t, tag); n -= 1
    def drain(self): self.emit(10**6)
def emit1(k, f):
    if callable(f): f()
    elif isinstance(f, tuple): (k.lg if f[0] == "lg" else k.vm)(f[1], f[2])
    else: k(f)
def weave(k, mf, fill, per=2):
    fill = list(fill)
    for m in mf:
        k(m)
        for _ in range(per):
            if fill: emit1(k, fill.pop(0))
    for f in fill: emit1(k, f)

WSLOT = 24576; RW = 4; XBASE = RW*WSLOT; XSLOT = 16384; RX = 3

def gemm_setup(k):
    k("v_lshrrev_b32 v28, 3, v0")
    k("v_and_b32 v29, 7, v0")
    k("v_bfe_u32 v26, v28, 1, 1")
    k("s_lshl_b32 s%d, s%d, 1" % (S_T0, S_RH))
    k("v_or_b32 v26, s%d, v26" % S_T0)
    k("v_lshlrev_b32 v26, 1, v26")
    k("v_xor_b32 v26, v26, v29")
    k("s_lshl_b32 s%d, s%d, 3" % (S_T0, S_W))
    k("v_add_u32 v27, s%d, v28" % S_T0)
    k("v_mul_lo_u32 v27, v27, s%d" % S_STRIDE)
    k("v_lshl_add_u32 v%d, v26, 4, v27" % V_WD)
    k("s_lshl_b32 s%d, s%d, 5" % (S_T0, S_W))
    k("v_lshrrev_b32 v26, 1, v28")
    k("v_xor_b32 v27, v26, v29")
    k("v_add_u32 v26, s%d, v28" % S_T0)
    k("v_mul_u32_u24 v26, 1280, v26")
    k("v_lshl_add_u32 v%d, v27, 4, v26" % V_XD)
    k("v_xor_b32 v%d, 64, v%d" % (V_XD+1, V_XD))
    k("v_add_u32 v%d, %d, v%d" % (V_XD+1, 8*1280, V_XD+1))
    k("v_add_u32 v%d, %d, v%d" % (V_XD+2, 16*1280, V_XD))
    k("v_add_u32 v%d, %d, v%d" % (V_XD+3, 16*1280, V_XD+1))
    k("s_mul_i32 s%d, s%d, 6144" % (S_WL, S_W))
    k("s_lshl_b32 s%d, s%d, 12" % (S_XL, S_W))
    k("s_add_u32 s%d, s%d, %d" % (S_XL, S_XL, XBASE))
    k("s_mov_b32 s%d, 0" % S_WOFF)
    k("s_lshl_b32 s%d, s%d, 5" % (S_T3, S_STRIDE))

def touch_setup(k):
    k("v_lshrrev_b32 v26, 2, v0")
    k("v_and_b32 v27, 3, v0")
    k("s_lshl_b32 s%d, s%d, 1" % (S_T0, S_MT))
    k("s_add_u32 s%d, s%d, s%d" % (S_T0, S_T0, S_C))
    k("v_lshlrev_b32 v28, 5, v26")
    k("v_add_u32 v28, s%d, v28" % S_T0)
    k("v_mul_lo_u32 v28, v28, s%d" % S_STRIDE)
    k("v_min_u32 v29, 2, v27")
    k("v_lshl_add_u32 v%d, v29, 7, v28" % V_TW)
    k("s_lshl_b32 s%d, s%d, 4" % (S_T0, S_TY))
    k("s_lshl_b32 s%d, s%d, 2" % (S_T1, S_W))
    k("s_add_u32 s%d, s%d, s%d" % (S_T0, S_T0, S_T1))
    k("v_add_u32 v27, s%d, v27" % S_T0)
    k("v_mul_u32_u24 v27, 1280, v27")
    k("v_lshl_add_u32 v%d, v26, 7, v27" % V_TX)
    k("s_cmp_eq_u32 s%d, 0" % S_RH)
    for i in range(3): k("s_cselect_b32 s%d, s%d, s%d" % (SRD_T+i, SRD_W0+i, SRD_W1+i))
    k("s_mov_b32 s%d, 0x20000" % (SRD_T+3))
def masked(n, t):
    if n >= 16: return t
    return "s_bfm_b64 exec, %d, 0\n%s\ns_mov_b64 exec, -1" % (4*n, t)
def touch_items(stage):
    out = []
    for (st, first, n) in cfg.TW:
        if st == stage:
            out.append(("s_mul_i32 s101, s%d, %d" % (S_STRIDE, 32*first), masked(n, "buffer_load_dword v%d, v%d, s[%d:%d], s101 offen nt" % (V_JUNK, V_TW, SRD_T, SRD_T+3)), "pf"))
    for (st, first, n) in cfg.TX:
        if st == stage:
            out.append((None, masked(n, "buffer_load_dword v%d, v%d, s[%d:%d], 0 offen offset:%d" % (V_JUNK, V_TX, SRD_X, SRD_X+3, first*128)), "pf"))
    return out

def gemm_setup2(k, att):
    npt = 5 if att else 6
    k("v_and_b32 v54, 15, v0")
    k("v_lshrrev_b32 v55, 4, v0")
    k("v_bfe_u32 v26, v54, 1, 3")
    k("v_xor_b32 v26, v26, v55")
    k("s_lshl_b32 s%d, s%d, 13" % (S_T0, S_RH))
    k("s_add_u32 s%d, s%d, %d" % (S_T0, S_T0, XBASE))
    k("v_lshlrev_b32 v27, 7, v54")
    k("v_add_u32 v27, s%d, v27" % S_T0)
    k("v_lshl_add_u32 v%d, v26, 4, v27" % V_XR)
    k("v_xor_b32 v%d, 64, v%d" % (V_XR+1, V_XR))
    k("v_bfe_u32 v26, v0, 2, 2")
    k("v_and_b32 v27, 3, v0")
    k("v_lshrrev_b32 v28, 1, v26")
    k("v_and_b32 v29, 1, v55")
    k("v_lshl_or_b32 v28, v29, 1, v28")
    k("v_lshlrev_b32 v28, 5, v28")
    k("v_mul_u32_u24 v29, 6144, v55")
    k("v_lshl_add_u32 v29, v26, 7, v29")
    if att:
        k("s_mul_i32 s%d, s%d, 160" % (S_T0, S_C))
        k("s_add_u32 s%d, s%d, s%d" % (S_T0, S_T0, S_DELTA))
        k("v_mul_u32_u24 v27, 40, v27")
    else:
        k("s_mul_i32 s%d, s%d, 192" % (S_T0, S_C))
        k("v_lshlrev_b32 v27, 3, v27")
    k("v_add_u32 v27, s%d, v27" % S_T0)
    for p in range(npt):
        k("v_add_u32 v30, %d, v27" % (p * (8 if att else 32)))
        k("v_lshrrev_b32 v31, 7, v30")
        k("v_and_b32 v30, 127, v30")
        k("v_xor_b32 v30, v30, v28")
        k("v_lshl_add_u32 v31, v31, 10, v29")
        k("v_add_u32 v%d, v30, v31" % (V_TA+p))
        k("v_add_u32 v%d, %d, v%d" % (V_TA+6+p, 2*WSLOT, V_TA+p))

def w_dma(s):
    return [("s_add_u32 m0, s%d, %d" % (S_WL, (s % RW)*WSLOT + (seg*3+lc)*1024 - lc*128),
             "buffer_load_dwordx4 v%d, s[%d:%d], s%d offen offset:%d lds" % (V_WD, SRD_W0+4*seg, SRD_W0+4*seg+3, S_WOFF, lc*128), ("W", s))
            for seg in range(2) for lc in range(3)]
def x_dma(u, i):
    return ("s_add_u32 m0, s%d, %d" % (S_XL, (u % RX)*XSLOT + i*1024 - u*128),
            "buffer_load_dwordx4 v%d, s[%d:%d], 0 offen offset:%d lds" % (V_XD+i, SRD_X, SRD_X+3, u*128), ("X", u))
def reads_for(s, npt):
    out = []; b = s & 1
    for rt in range(4):
        out.append("ds_read_b128 %s, v%d offset:%d" % (R(XF0 + (b*4+rt)*4, 4), V_XR + (s & 1), ((s >> 1) % RX)*XSLOT + rt*2048))
    slot = s % RW
    for p in range(npt):
        for seg in range(2):
            for h in range(2):
                out.append("ds_read_b64_tr_b16 %s, v%d offset:%d" % (R(WF0 + (b*12+p*2+seg)*4 + 2*h, 2), V_TA + p + (6 if slot >= 2 else 0), (slot & 1)*WSLOT + seg*3072 + h*512))
    return out
def acc(p, seg, rt): return ACC0 + ((p*2+seg)*4 + rt)*4

def late_setup_items():
    k = K()
    k("s_and_b32 s%d, s2, 7" % S_T1)
    k("s_lshr_b32 s%d, s2, 3" % S_OH)
    if cfg.P2M == 4:
        k("s_lshl_b32 s%d, s%d, 2" % (S_M64, S_T1)); k("s_and_b32 s%d, s%d, 3" % (S_T0, S_OH)); k("s_add_u32 s%d, s%d, s%d" % (S_M64, S_M64, S_T0))
        k("s_lshr_b32 s%d, s%d, 2" % (S_NT, S_OH))
    else:
        k("s_lshr_b32 s%d, s%d, 1" % (S_M64, S_T1)); k("s_lshl_b32 s%d, s%d, 3" % (S_M64, S_M64)); k("s_and_b32 s%d, s%d, 7" % (S_T0, S_OH)); k("s_add_u32 s%d, s%d, s%d" % (S_M64, S_M64, S_T0))
        k("s_and_b32 s%d, s%d, 1" % (S_NT, S_T1)); k("s_lshl_b32 s%d, s%d, 2" % (S_NT, S_NT)); k("s_lshr_b32 s%d, s%d, 3" % (S_T0, S_OH)); k("s_add_u32 s%d, s%d, s%d" % (S_NT, S_NT, S_T0))
    k("s_lshr_b32 s%d, s%d, 1" % (S_OMT, S_OH))
    k("s_and_b32 s%d, s%d, 1" % (S_OH, S_OH)); k("s_lshl_b32 s%d, s%d, 1" % (S_T0, S_T1)); k("s_add_u32 s%d, s%d, s%d" % (S_OH, S_OH, S_T0))
    k("s_mul_i32 s%d, s%d, %d" % (S_T0, S_NT, 74*5120))
    srd(k, SRD_B, P_WS, B2_OFF, 74*5120, S_T0)
    k("s_mul_i32 s%d, s%d, 5120" % (S_BB, S_W))
    k("s_add_u32 s%d, s%d, 0x%x" % (S_CNT, P_WS, CNT_OFF))
    k("s_addc_u32 s%d, s%d, 0" % (S_CNT+1, P_WS+1))
    k("v_add_u32 v%d, 4096, v%d" % (V_L16B, V_L16))
    k("s_mov_b32 s%d, %s" % (S_C2, f32(LOG2E))); k("s_mov_b32 s%d, %s" % (S_C2+1, f32(LOG2E)))
    return [t for _, t in k.items]

def dma_queue():
    Q = []
    for st in range(20):
        if st % 2 == 0:
            u = st // 2
            for i in range(4): Q.append((-1 if u < RX else 2*(u-RX)+1, x_dma(u, i), False))
        it = w_dma(st)
        for i, d in enumerate(it): Q.append((-1 if st < RW else st-RW, d, i == len(it)-1))
    return Q
def wadv(k): k("s_add_u32 s%d, s%d, s%d" % (S_WOFF, S_WOFF, S_T3))
def issue_now(k, Q, n):
    for _ in range(n):
        av, it, last = Q.pop(0)
        k(it[0]); k.vm(it[1], it[2])
        if last: wadv(k)

def spread(items, s0, s1):
    out = {}; n = len(items); i = 0
    for s in range(s0, s1):
        c = -(-(n - i) // (s1 - s)); out[s] = items[i:i+c]; i += c
    return out

def gemm_main(k, att, gate, Q, extra, polls, xrd=None, xwait=None, xsetup=None):
    npt = 5 if att else 6
    Q = list(Q)
    if gate:
        for i in range(2):
            k("s_add_u32 m0, s%d, %d" % (S_XL, SPARE - XBASE))
            k.vm("buffer_load_dwordx4 v%d, s[%d:%d], 0 offen offset:%d lds" % (V_L16, SRD_O, SRD_O+3, i*1024), ("W", 0))
    issue_now(k, Q, cfg.N2)
    gemm_setup2(k, att)
    if gate:
        k("s_add_u32 s%d, s%d, %d" % (S_T0, S_XL, SPARE - XBASE))
        k("v_lshrrev_b32 v17, 4, v0")
        k("v_lshlrev_b32 v17, 4, v17")
        k("v_add_u32 v17, s%d, v17" % S_T0)
    for t in late_setup_items(): k(t)
    if xsetup: xsetup(k)
    def rds(s):
        r = reads_for(s, npt)
        if gate: r.append("ds_read_b128 %s, v17 offset:%d" % (R(GF0 + (s & 1)*4, 4), s*64))
        return r
    stamp(k, 2)
    k.wait(vm=[("X", 0), ("W", 0)])
    k("s_barrier")
    stamp(k, 3)
    for r in rds(0): k.lg(r)
    issue_now(k, Q, cfg.N3)
    k.wait(vm=[("W", 1)], lg="all")
    k("s_barrier")
    for s in range(20):
        b = s & 1
        rd = rds(s+1) if s < 19 else []
        if xrd and s in xrd: rd += xrd[s]
        dm = []
        while Q and Q[0][0] <= s and len(dm) < cfg.MAXD: dm.append(Q.pop(0))
        ex = [(0, e, False) for e in extra.get(s, []) + touch_items(s)]
        mix = []
        while dm or ex:
            if dm: mix.append(dm.pop(0))
            if ex and len(ex) >= len(dm): mix.append(ex.pop(0))
        dm = mix
        mf = []
        for p in range(npt):
            for seg in range(2):
                for rt in range(4):
                    a = acc(p, seg, rt)
                    mf.append("v_mfma_f32_16x16x32_bf16 %s, %s, %s, %s" % (R(a,4), R(WF0 + (b*12+p*2+seg)*4, 4), R(XF0 + (b*4+rt)*4, 4), R(a,4) if s else "0"))
        if gate:
            for rt in range(4):
                a = GACC + rt*4
                mf.append("v_mfma_f32_16x16x32_bf16 %s, %s, %s, %s" % (R(a,4), R(GF0 + b*4, 4), R(XF0 + (b*4+rt)*4, 4), R(a,4) if s else "0"))
        nm = len(mf); nd = len(dm)
        at = [int(i * (nm - 3) / max(nd, 1)) for i in range(nd)]
        for i in range(1, nd): at[i] = max(at[i], at[i-1] + 2)
        pend = None
        for m, t in enumerate(mf):
            k(t)
            if rd: k.lg(rd.pop(0))
            if (s+1) in polls and m == nm - 1: poll_issue(k, P_DBG, polls[s+1], ("poll", s+1))
            if pend is not None:
                k.vm(pend[1][1], pend[1][2])
                if pend[2]: wadv(k)
                pend = None
            elif dm and m >= at[nd - len(dm)]:
                pend = dm.pop(0)
                if pend[1][0]: k(pend[1][0])
        assert not rd and not dm and pend is None, (s, rd, dm, pend)
        if s < 19:
            k.wait(vm=[("W", s+2), ("X", (s+2) >> 1)] + (xwait.get(s, []) if xwait else []), lg="all")
        if s in polls: poll_check(k, P_DBG, 16, ("poll", s), sleep=8)
        if s < 19:
            k("s_barrier")
            if cfg.STG and s % 2 == 1: stamp(k, 17 + s//2)
    assert not Q
    stamp(k, 4)

def ffn_setup(k):
    k("s_lshl_b32 s75, s%d, 1" % S_MT)
    k("s_add_u32 s75, s75, s%d" % S_RH)
    k("s_mul_i32 s75, s75, 74")
    k("s_mul_i32 s76, s%d, 6" % S_TY)
    k("s_add_u32 s75, s75, s76")
    k("s_mul_i32 s76, s%d, 3" % S_C)
    k("s_add_u32 s75, s75, s76")
    k("s_add_u32 s75, s75, 20")
    k("s_lshl_b32 s75, s75, 12")
    k("s_lshl_b32 s%d, s%d, 7" % (S_SIG, S_MT))
    srd(k, SRD_O, P_WS, A2_OFF, A2_SZ)

def ffn_role(k, Q):
    extra = spread(b_items(range(cfg.NBF)), cfg.PS1, 20)
    gemm_main(k, False, False, Q, extra, {cfg.PS1-1: D_S1, 19: D_S3}, xsetup=ffn_setup)
    fd = Feed(k, b_items(range(cfg.NBF, 70)) + bo_items())
    per, last = cfg.FFE
    n = 0
    for ks in range(3):
        for rt in range(4):
            T = 6 + (n & 1)*8; O = 22 + (n & 1)*4; n += 1
            if O & 3: O = (24, 28)[(n-1) & 1] - 0
            fe = lambda i: fd.emit(1) if (n <= last and i < per) else None
            G = [acc(2*ks+j, 0, rt) for j in range(2)]; U = [acc(2*ks+j, 1, rt) for j in range(2)]
            O = U[0]
            prs = [(j, h) for j in range(2) for h in range(2)]
            for i, (j, h) in enumerate(prs):
                k("v_pk_mul_f32 %s, %s, s[%d:%d] neg_lo:[0,1] neg_hi:[0,1]" % (vr(T+2*i,2), vr(G[j]+2*h,2), S_C2, S_C2+1))
            fe(0)
            for i in range(8): k("v_exp_f32 v%d, v%d" % (T+i, T+i))
            fe(2)
            for i, (j, h) in enumerate(prs):
                k("v_pk_mul_f32 %s, %s, %s" % (vr(G[j]+2*h,2), vr(G[j]+2*h,2), vr(U[j]+2*h,2)))
            for i in range(4): k("v_pk_add_f32 %s, %s, 1.0 op_sel_hi:[1,0]" % (vr(T+2*i,2), vr(T+2*i,2)))
            fe(1)
            for i in range(8): k("v_rcp_f32 v%d, v%d" % (T+i, T+i))
            fe(3)
            for i, (j, h) in enumerate(prs):
                k("v_pk_mul_f32 %s, %s, %s" % (vr(T+2*i,2), vr(G[j]+2*h,2), vr(T+2*i,2)))
            for i in range(4): k("v_cvt_pk_bf16_f32 v%d, v%d, v%d" % (O+i, T+2*i, T+2*i+1))
            k.vm("buffer_store_dwordx4 %s, v%d, s[%d:%d], s75 offen offset:%d%s" % (vr(O,4), V_L16, SRD_O, SRD_O+3, rt*1024, SC), "st")
        if ks < 2: k("s_add_u32 s75, s75, 4096")
    stamp(k, 26)
    k.wait(vm="st")
    stamp(k, 5)
    signal(k, S_CNT, "s%d" % S_SIG)
    fd.drain()

def phi_dma(seg, s_off):
    out = [("s_add_u32 m0, s%d, %d" % (S_WL, seg*WSLOT),
            "buffer_load_dwordx4 v%d, s[%d:%d], s%d offen offset:%d lds" % (V_L16, SRD_P, SRD_P+3, s_off, i*1024), ("P", seg)) for i in range(4)]
    out.append(("s_add_u32 m0, s%d, %d" % (S_WL, seg*WSLOT + 4096),
                "buffer_load_dwordx4 v%d, s[%d:%d], s82 offen lds" % (V_L16, SRD_P, SRD_P+3), ("P", seg)))
    return out
def phireg(seg, to, s):
    i = s*5 + to
    if seg == 1: return 256 + 48 + 4*i if i < 10 else 256 + 108 + 4*(i-10)
    return 256 + 4*i if i < 12 else 256 + 96 + 4*(i-12)
V_PHA = 23
def phi_reads(seg):
    out = []
    for s in range(3):
        for to in range(5):
            for h in range(2):
                d = phireg(seg, to, s) + 2*h
                if s == 2 and h == 1: out.append("ds_read_b64_tr_b16 %s, v26 offset:%d" % (R(d,2), seg*WSLOT))
                else: out.append("ds_read_b64_tr_b16 %s, v%d offset:%d" % (R(d,2), V_PHA, seg*WSLOT + (8*s+4*h)*40 + 8*to))
    return out
def cvt_in(seg, rt, B):
    out = []
    for t in range(5):
        a = acc(t, seg, rt)
        out.append("v_cvt_pk_bf16_f32 v%d, v%d, v%d" % (B+2*t, a, a+1))
        out.append("v_cvt_pk_bf16_f32 v%d, v%d, v%d" % (B+2*t+1, a+2, a+3))
    return out
def phi_mf(seg, rt, B):
    return ["v_mfma_f32_16x16x32_bf16 %s, %s, %s, %s" % (vr(acc(to,seg,rt),4), R(phireg(seg, to, s),4), vr(B+4*s,4), vr(acc(to,seg,rt),4) if s else "0")
            for s in range(3) for to in range(5)]

PKRS = 352; VRS = 224; PKSZ = 128*PKRS; VB = 2*PKSZ; VSZ = 128*VRS
V_E0, V_E1, V_E2, V_E3, V_E4, V_E5, V_E6 = 27, 28, 29, 30, 60, 61, 62
def att_common_setup(k):
    k("v_lshrrev_b32 v50, 4, v0")
    k("v_and_b32 v51, 15, v0")
    k("v_bfe_u32 v52, v0, 2, 2")
    k("v_and_b32 v53, 3, v0")
    k("v_mul_u32_u24 v48, 800, v50")
    k("v_mad_u32_u24 v48, v52, 40, v48")
    k("v_cmp_eq_u32 vcc, v50, v53")
    k("v_mov_b32 v49, 4096")
    k("v_cndmask_b32 v48, v49, v48, vcc")
    k("v_add_u32 v%d, s%d, v48" % (V_PHA, S_WL))
    k("v_add_u32 v26, s%d, v49" % S_WL)
    k("v_and_b32 v48, 31, v0"); k("v_lshlrev_b32 v48, 7, v48")
    k("v_lshrrev_b32 v49, 5, v0"); k("v_mul_u32_u24 v49, 12800, v49"); k("v_add_u32 v48, v48, v49")
    k.vm("buffer_load_dword v%d, v48, s[%d:%d], s80 offen" % (V_JUNK, SRD_P, SRD_P+3), "pf")
def kv_setup(k):
    att_common_setup(k)
    k("s_add_u32 s%d, s%d, %d" % (S_SIG, S_TY, C_K - 9))
    k("s_lshl_b32 s%d, s%d, 7" % (S_SIG, S_SIG))
    k("s_lshl_b32 s%d, s%d, 6" % (S_T0, S_RH))
    k("v_add_u32 v48, s%d, v51" % S_T0)
    k("s_mul_i32 s%d, s%d, %d" % (S_T0, S_C, PKSZ))
    k("v_mul_u32_u24 v%d, %d, v48" % (V_E0, PKRS))
    k("v_mul_u32_u24 v49, 80, v50")
    k("v_add3_u32 v%d, v%d, v49, s%d" % (V_E0, V_E0, S_T0))
    k("s_mul_i32 s%d, s%d, %d" % (S_T1, S_C, VSZ))
    k("s_add_u32 s%d, s%d, %d" % (S_T1, S_T1, VB))
    k("v_mul_u32_u24 v%d, %d, v48" % (V_E1, VRS))
    k("v_mul_u32_u24 v49, 48, v50")
    k("v_add3_u32 v%d, v%d, v49, s%d" % (V_E1, V_E1, S_T1))
    k("v_lshrrev_b32 v48, 2, v0")
    k("v_lshlrev_b32 v49, 3, v53")
    k("s_mul_i32 s%d, s%d, 160" % (S_T2, S_RH))
    k("s_add_u32 s%d, s%d, s%d" % (S_T0, S_T0, S_T2))
    k("v_mul_u32_u24 v%d, %d, v48" % (V_E2, PKRS))
    k("v_add3_u32 v%d, v%d, v49, s%d" % (V_E2, V_E2, S_T0))
    k("s_mul_i32 s%d, s%d, 96" % (S_T2, S_RH))
    k("s_add_u32 s%d, s%d, s%d" % (S_T1, S_T1, S_T2))
    k("v_mul_u32_u24 v%d, %d, v48" % (V_E3, VRS))
    k("v_add3_u32 v%d, v%d, v49, s%d" % (V_E3, V_E3, S_T1))
    k("s_add_u32 s%d, s%d, %d" % (S_T2, S_XL, SPARE - XBASE))
    k("v_mul_u32_u24 v48, 80, v51")
    k("v_lshl_add_u32 v48, v50, 3, v48")
    k("v_add_u32 v%d, s%d, v48" % (V_E5, S_T2))
    k("v_add_u32 v%d, s%d, v%d" % (V_E6, S_T2, V_L16))
    k("v_mov_b32 v48, 0x7fffffff")
    k("v_cmp_gt_u32 vcc, 32, v0")
    k("v_cndmask_b32 v%d, v48, v%d, vcc" % (V_E4, V_L16))
    k("s_lshl_b32 s78, s79, 1")
    k("s_add_u32 s78, s78, s%d" % S_RH)
    k("s_lshl_b32 s78, s78, 4")
    k("s_add_u32 s78, s78, s%d" % S_MT)
    k("s_mul_i32 s78, s78, %d" % KVPS)
    k("v_cmp_gt_u32 s[72:73], 2, v50")
    k("v_cmp_gt_u32 s[74:75], 5, v51")
    k("s_and_b64 s[76:77], s[72:73], s[74:75]")
    srd(k, SRD_O, P_WS, KVP_OFF, KVP_SZ)
    for r in (42, 43, 54, 55): k("v_mov_b32 v%d, 0" % r)
    for O in (232, 244):
        k("v_mov_b32 v%d, 0x3f80" % (O+10)); k("v_mov_b32 v%d, 0" % (O+11))
def q_setup(k):
    att_common_setup(k)
    k("s_mov_b32 s%d, 81920" % S_T0)
    k("v_mul_lo_u32 v48, v50, s%d" % S_T0)
    k("v_lshl_add_u32 v%d, v51, 4, v48" % V_E0)
    k("v_lshl_add_u32 v%d, v51, 3, v48" % V_E1)
    k("v_lshlrev_b32 v%d, 2, v0" % V_E2)
    k("s_mul_i32 s%d, s79, %d" % (S_T1, 4*81920))
    k("s_lshl_b32 s%d, s%d, 1" % (S_T0, S_MT))
    k("s_add_u32 s%d, s%d, s%d" % (S_T0, S_T0, S_RH))
    k("s_lshl_b32 s75, s%d, 10" % S_T0)
    k("s_add_u32 s75, s75, s%d" % S_T1)
    k("s_add_u32 s76, s75, 32768")
    k("s_lshl_b32 s77, s%d, 9" % S_T0)
    k("s_add_u32 s77, s77, s%d" % S_T1)
    k("s_add_u32 s77, s77, 65536")
    k("s_lshl_b32 s78, s%d, 8" % S_T0)
    k("s_add_u32 s78, s78, %d" % (G_OFF - PQ_OFF))
    k("s_add_u32 s%d, s%d, %d" % (S_SIG, S_MT, C_Q))
    k("s_lshl_b32 s%d, s%d, 7" % (S_SIG, S_SIG))
    srd(k, SRD_O, P_WS, PQ_OFF, G_OFF + G_SZ - PQ_OFF)
    for r in (42, 43, 54, 55): k("v_mov_b32 v%d, 0" % r)

def softmax_pm(k, P, E, T, O, fd=None, mf=None, side=None):
    def fe(n=1):
        if fd: fd.emit(n)
    mf = list(mf or []); side = list(side or [])
    v = [p + i for p in P for i in range(2)]
    k("v_max3_f32 v%d, v%d, v%d, v%d" % (T, v[0], v[1], v[2]))
    k("v_min3_f32 v%d, v%d, v%d, v%d" % (T+2, v[0], v[1], v[2]))
    k("v_max3_f32 v%d, v%d, v%d, v%d" % (T+1, v[3], v[4], v[5]))
    k("v_min3_f32 v%d, v%d, v%d, v%d" % (T+3, v[3], v[4], v[5]))
    for n, i in enumerate(range(6, 20, 2)):
        c = n & 1
        k("v_max3_f32 v%d, v%d, v%d, v%d" % (T+c, T+c, v[i], v[i+1]))
        k("v_min3_f32 v%d, v%d, v%d, v%d" % (T+2+c, T+2+c, v[i], v[i+1]))
    fe()
    k("v_max_f32 v%d, v%d, v%d" % (T, T, T+1))
    k("v_min_f32 v%d, v%d, v%d" % (T+2, T+2, T+3))
    k("v_mul_f32 v%d, %s, v%d" % (T, f32(-LOG2E), T))
    k("v_mul_f32 v%d, %s, v%d" % (T+2, f32(LOG2E), T+2))
    for i, p in enumerate(P):
        k("v_pk_fma_f32 %s, %s, s[%d:%d], %s op_sel_hi:[1,1,0]" % (vr(E+2*i,2), vr(p,2), S_C2, S_C2+1, vr(T,2)))
    fe()
    for i, p in enumerate(P):
        k("v_pk_fma_f32 %s, %s, s[%d:%d], %s op_sel_hi:[1,1,0] neg_lo:[0,1,0] neg_hi:[0,1,0]" % (vr(p,2), vr(p,2), S_C2, S_C2+1, vr(T+2,2)))
    ex = [E+i for i in range(20)] + v
    for i, x in enumerate(ex):
        if i % 2 == 0:
            if mf: k(mf.pop(0))
            if side: k.lg(*side.pop(0))
        if i % 12 == 5: fe()
        k("v_exp_f32 v%d, v%d" % (x, x))
    assert not mf and not side
    Ep = [E+2*i for i in range(10)]
    k("v_pk_add_f32 %s, %s, %s" % (vr(T+4,2), vr(Ep[0],2), vr(Ep[1],2)))
    k("v_pk_add_f32 %s, %s, %s" % (vr(T,2), vr(Ep[2],2), vr(Ep[3],2)))
    k("v_pk_add_f32 %s, %s, %s" % (vr(T+6,2), vr(P[0],2), vr(P[1],2)))
    k("v_pk_add_f32 %s, %s, %s" % (vr(T+2,2), vr(P[2],2), vr(P[3],2)))
    for i in range(4, 10, 2):
        k("v_pk_add_f32 %s, %s, %s" % (vr(T+4,2), vr(T+4,2), vr(Ep[i],2)))
        k("v_pk_add_f32 %s, %s, %s" % (vr(T,2), vr(T,2), vr(Ep[i+1],2)))
        k("v_pk_add_f32 %s, %s, %s" % (vr(T+6,2), vr(T+6,2), vr(P[i],2)))
        k("v_pk_add_f32 %s, %s, %s" % (vr(T+2,2), vr(T+2,2), vr(P[i+1],2)))
    k("v_pk_add_f32 %s, %s, %s" % (vr(T+4,2), vr(T+4,2), vr(T,2)))
    k("v_pk_add_f32 %s, %s, %s" % (vr(T+6,2), vr(T+6,2), vr(T+2,2)))
    fe()
    k("v_add_f32 v%d, v%d, v%d" % (T+4, T+4, T+5))
    k("v_add_f32 v%d, v%d, v%d" % (T+6, T+6, T+7))
    k("v_rcp_f32 v%d, v%d" % (T+4, T+4))
    k("v_rcp_f32 v%d, v%d" % (T+6, T+6))
    for i in range(10): k("v_pk_mul_f32 %s, %s, %s op_sel_hi:[1,0]" % (vr(Ep[i],2), vr(Ep[i],2), vr(T+4,2)))
    fe()
    for i in range(10): k("v_pk_mul_f32 %s, %s, %s op_sel_hi:[1,0]" % (vr(P[i],2), vr(P[i],2), vr(T+6,2)))
    for i in range(10): k("v_cvt_pk_bf16_f32 v%d, v%d, v%d" % (O+i, Ep[i], Ep[i]+1))
    fe()
    for i in range(10): k("v_cvt_pk_bf16_f32 v%d, v%d, v%d" % (O+10+i, P[i], P[i]+1))

def att_extra(two):
    extra = spread(b_items(range(cfg.NBA)), cfg.PS1, 20)
    extra[16] = phi_dma(0, 80) + extra[16]
    if two: extra[17] = phi_dma(1, 81) + extra[17]
    return extra

def q_role(k, Q):
    srd(k, SRD_O, P_GW, 0, 1280)
    gemm_main(k, True, True, Q, att_extra(True), {cfg.PS1-1: D_S1}, xrd={19: phi_reads(0)}, xwait={18: [("P", 0)]}, xsetup=q_setup)
    k.wait(vm=("P", 1))
    for t in cvt_in(0, 0, 32): k(t)
    gate = ["v_lshrrev_b32 v24, 4, v0"]
    for rt in range(1, 4):
        gate += ["v_cmp_eq_u32 vcc, %d, v24" % rt, "v_cndmask_b32 v%d, v%d, v%d, vcc" % (GACC, GACC, GACC+4*rt)]
    gate += ["v_mul_f32 v25, %s, v%d" % (f32(-LOG2E), GACC), "v_exp_f32 v25, v25", "v_add_f32 v25, 1.0, v25", "v_rcp_f32 v25, v25",
             ("vm", "buffer_store_dword v25, v%d, s[%d:%d], s78 offen%s" % (V_E2, SRD_O, SRD_O+3, SC), "st")]
    rd1 = [("lg", r, "ph1") for r in phi_reads(1)]
    def outs(u):
        seg, rt = u >> 2, u & 3
        O = (240, 8)[u & 1]
        f = cvt_in(seg, rt, O)
        f.insert(4, ("vm", "buffer_store_dwordx4 %s, v%d, s[%d:%d], s75 offen offset:%d%s" % (vr(O,4), V_E0, SRD_O, SRD_O+3, rt*256, SC), "st"))
        f.insert(9, ("vm", "buffer_store_dwordx4 %s, v%d, s[%d:%d], s76 offen offset:%d%s" % (vr(O+4,4), V_E0, SRD_O, SRD_O+3, rt*256, SC), "st"))
        f.append(("vm", "buffer_store_dwordx2 %s, v%d, s[%d:%d], s77 offen offset:%d%s" % (vr(O+8,2), V_E1, SRD_O, SRD_O+3, rt*128, SC), "st"))
        if u == 3: f += ["s_add_u32 s%d, s%d, %d" % (x, x, 16*81920) for x in (75, 76, 77)]
        return f
    k.wait(lg="all")
    for u in range(8):
        seg, rt = u >> 2, u & 3
        fill = []
        if u < 7: fill += cvt_in((u+1) >> 2, (u+1) & 3, 32 + ((u+1) & 1)*12)
        if u == 0: fill += rd1[:14] + gate[:6]
        elif u == 1: fill += outs(0) + rd1[14:21]
        elif u == 2: fill += outs(1) + rd1[21:28]
        elif u == 3: fill += rd1[28:] + outs(2) + gate[6:]
        else: fill += outs(u-1)
        if u == 4: k.wait(lg="all")
        weave(k, phi_mf(seg, rt, 32 + (u & 1)*12), fill)
    weave(k, [], outs(7))
    poll_issue(k, P_DBG, D_S3, "s3")
    k.wait(vm="st")
    poll_check(k, P_DBG, 16, "s3", sleep=8)
    stamp(k, 5)
    signal(k, S_CNT, "s%d" % S_SIG)
    Feed(k, b_items(range(cfg.NBA, 70)) + bo_items()).drain()

def kv_role(k, Q):
    gemm_main(k, True, False, Q, att_extra(False), {cfg.PS1-1: D_S1}, xrd={19: phi_reads(0)}, xwait={18: [("P", 0)]}, xsetup=kv_setup)
    EREG = 6; TREG = 244; O = 224
    for t in cvt_in(0, 0, 32): k(t)
    def vout(rt):
        B = (232, 244)[rt & 1]
        f = cvt_in(1, rt, B)
        f += [("lg", "ds_write_b128 v%d, %s offset:%d" % (V_E1, vr(B+4*i,4), rt*16*VRS + 16*i), ("vw", rt)) for i in range(3)]
        if rt >= 2: f.insert(0, lambda rt=rt: k.wait(lg=("vw", rt-2)))
        return f
    k.wait(lg="all")
    weave(k, phi_mf(0, 0, 32), cvt_in(0, 1, 44) + vout(0) + vout(1) + vout(2) + vout(3))
    k.wait(lg="all")
    k("s_barrier")
    if not cfg.STG: stamp(k, 17)
    def vfr(n, bt): return acc((n*2+bt) >> 2, 1, (n*2+bt) & 3)
    vreads = []
    for n in range(8):
        j, ks = n >> 2, n & 3
        for bt in range(2):
            for h in range(2):
                vreads.append(("ds_read_b64_tr_b16 %s, v%d offset:%d" % (vr(vfr(n,bt)+2*h,2), V_E3, (32*ks+16*h)*VRS + j*48 + bt*32), "vf"))
    free1 = list(range(52, 64)) + [67, 68, 69]
    free2 = list(range(40, 52)) + [64, 65, 66]
    fd = Feed(k, b_items(range(cfg.NBA, 32)))
    for rt in range(4):
        P = [acc(t, 0, rt) + 2*h for t in range(5) for h in range(2)]
        mf = phi_mf(0, rt+1, 32 + ((rt+1) & 1)*12) if rt < 3 else []
        if rt == 1: poll_issue(k, P_DBG, D_S3, "s3")
        if rt == 2:
            poll_check(k, P_DBG, 16, "s3", sleep=8)
            fd.q += b_items(free1)
        softmax_pm(k, P, EREG, TREG, O, fd, mf, vreads[rt*8:(rt+1)*8])
        for i in range(5):
            k.lg("ds_write_b128 v%d, %s offset:%d" % (V_E0, vr(O+4*i,4), rt*16*PKRS + 16*i), ("pw", rt))
        if rt < 2:
            for t in cvt_in(0, rt+2, 32 + (rt & 1)*12): k(t)
        if not cfg.STG: stamp(k, 18+rt)
    fd.drain()
    fd.q += b_items(free2)
    k.wait(lg="all")
    k("s_barrier")
    if not cfg.STG: stamp(k, 22)
    KAQ = [32, 36, 40, 44, 48, 52, 224, 228, 232, 236, 240, 244]
    def pfr(n, ft): return acc(((n % 6)*3+ft) >> 2, 0, ((n % 6)*3+ft) & 3)
    def rd(n):
        j, ks = n >> 2, n & 3
        return [("lg", "ds_read_b64_tr_b16 %s, v%d offset:%d" % (vr(pfr(n,ft)+2*h,2), V_E2, (32*ks+16*h)*PKRS + j*80 + ft*32), ("f", n)) for ft in range(3) for h in range(2)]
    def pack(jj):
        f = []
        for ft in range(3):
            for bt in range(2):
                a = KAQ[(jj*3+ft)*2+bt]
                f += ["v_cvt_pk_bf16_f32 v%d, v%d, v%d" % (a, a, a+1), "v_cvt_pk_bf16_f32 v%d, v%d, v%d" % (a+1, a+2, a+3)]
                mask = [[None, "s[74:75]"], [None, "s[74:75]"], ["s[72:73]", "s[76:77]"]][ft][bt]
                w = "ds_write_b64 v%d, %s offset:%d" % (V_E5, vr(a,2), jj*1680 + bt*1280 + ft*32)
                if mask: w = "s_mov_b64 exec, %s\n%s\ns_mov_b64 exec, -1" % (mask, w)
                f.append(("lg", w, "cw"))
        return f
    weave(k, [], rd(0) + rd(1))
    pk0 = pack(0)
    for n in range(8):
        j, ks = n >> 2, n & 3
        k.wait(lg=("f", n))
        mf = []
        for ft in range(3):
            for bt in range(2):
                a = KAQ[(j*3+ft)*2+bt]
                mf.append("v_mfma_f32_16x16x32_bf16 %s, %s, %s, %s" % (vr(a,4), vr(pfr(n,ft),4), vr(vfr(n,bt),4), vr(a,4) if ks else "0"))
        fill = rd(n+2) if n < 6 else []
        if n < 5: fill.append(lambda: fd.emit(1))
        if n >= 5: fill += pk0[(n-5)*6:(n-4)*6]
        weave(k, mf, fill)
    weave(k, [], pack(1))
    k.wait(lg="all")
    for i in range(4): k.lg("ds_read_b128 %s, v%d offset:%d" % (vr(64+4*i,4), V_E6, i*1024), ("cr", i))
    for i in range(4):
        k.wait(lg=("cr", i))
        k.vm("buffer_store_dwordx4 %s, v%d, s[%d:%d], s78 offen offset:%d%s" % (vr(64+4*i,4), V_L16 if i < 3 else V_E4, SRD_O, SRD_O+3, i*1024, SC), "st")
    stamp(k, 26)
    fd.emit(4)
    k.wait(vm="st")
    stamp(k, 5)
    signal(k, S_CNT, "s%d" % S_SIG)
    fd.drain()
    Feed(k, b_items(range(32, 40)) + bo_items()).drain()

def aux_role(k):
    NSL = 9
    order = [("d", i) for i in range(6)] + [("o", i) for i in range(4)] + [("d", i) for i in range(6, 9)]
    NU = len(order)
    k("s_mov_b32 s%d, 1280" % S_STRIDE)
    k("s_lshl_b32 s75, s%d, 2" % S_MT)
    k("s_add_u32 s75, s75, s%d" % S_W)
    k("s_mul_i32 s76, s75, 205"); k("s_lshr_b32 s76, s76, 11")
    k("s_mul_i32 s77, s76, 10"); k("s_sub_u32 s77, s75, s77")
    k("s_cmp_ge_u32 s76, 6")
    k("s_cselect_b32 s78, 0x4000000, 0")
    k("s_mul_i32 s79, s76, %d" % (32*1280))
    k("s_lshl_b32 s80, s77, 7")
    k("s_add_u32 s79, s79, s80")
    k("s_add_u32 s79, s79, s78")
    k("v_lshrrev_b32 v24, 3, v0"); k("v_and_b32 v25, 7, v0")
    k("v_and_b32 v26, 6, v24")
    k("v_xor_b32 v26, v26, v25")
    k("v_lshlrev_b32 v26, 4, v26")
    k("v_mad_u32_u24 v5, v24, s%d, v26" % S_STRIDE)
    for i in range(1, 4): k("v_add_u32 v%d, %d, v5" % (5+i, i*8*1280))
    k("s_mul_i32 s%d, s%d, %d" % (S_WL, S_W, NSL*4096))
    k("s_waitcnt lgkmcnt(0)")
    srd(k, SRD_W1, P_WD, 0, 1728*1280)
    def load(n):
        kind, i = order[n]
        sg, vb = (SRD_W1, 5) if kind == "d" else (SRD_W0, 12)
        k("s_add_u32 s81, s79, %d" % (i*6*32*1280))
        for j in range(4):
            k("s_add_u32 m0, s%d, %d" % (S_WL, (n % NSL)*4096 + j*1024))
            k.vm("buffer_load_dwordx4 v%d, s[%d:%d], s81 offen nt lds" % (vb+j, sg, sg+3), ("u", n))
    D = cfg.AUXD
    for n in range(D): load(n)
    srd(k, SRD_W0, P_WO, 0, 640*1280)
    k("v_lshrrev_b32 v27, 2, v24"); k("v_and_b32 v28, 3, v24")
    k("v_lshl_add_u32 v27, v27, 3, v28")
    k("v_mad_u32_u24 v12, v27, s%d, v26" % S_STRIDE)
    for i in range(1, 4): k("v_add_u32 v%d, %d, v12" % (12+i, (16*(i&1) + 4*(i>>1))*1280))
    srd(k, SRD_O, P_WS, B2_OFF, B2_SZ)
    for t in late_setup_items(): k(t)
    k("s_cmp_eq_u32 s%d, 0" % S_MT)
    k("s_cselect_b32 s%d, 8192, 0" % S_T0)
    srd(k, 96, P_WS, CNT_OFF, "s%d" % S_T0)
    for i in range(4): k("v_mov_b32 v%d, 0" % (56+i))
    k("s_lshl_b32 s%d, s%d, 11" % (S_T0, S_W))
    for i in range(2): k.vm("buffer_store_dwordx4 v[56:59], v%d, s[96:99], s%d offen offset:%d%s" % (V_L16, S_T0, i*1024, SC), ("st", 0))
    k("v_lshrrev_b32 v24, 2, v0")
    k("v_bfe_u32 v25, v24, 1, 2")
    k("v_and_b32 v26, 3, v0")
    k("v_lshlrev_b32 v24, 7, v24")
    k("v_lshl_add_u32 v24, v26, 3, v24")
    k("v_add_u32 v24, s%d, v24" % S_WL)
    for b in range(4):
        k("v_xor_b32 v26, %d, v25" % b)
        k("v_lshl_add_u32 v%d, v26, 5, v24" % (20+b))
    for b in range(4):
        k("s_lshl_b32 s72, s77, 2"); k("s_add_u32 s72, s72, %d" % b)
        k("s_mul_i32 s73, s72, 205"); k("s_lshr_b32 s73, s73, 10")
        k("s_mul_i32 s74, s73, 5"); k("s_sub_u32 s72, s72, s74")
        k("s_mul_i32 s73, s73, 74"); k("s_add_u32 s73, s73, s76")
        k("s_mul_i32 s73, s73, 5"); k("s_add_u32 s73, s73, s72")
        k("s_lshl_b32 s73, s73, 10")
        k("s_add_u32 s%d, s73, s78" % (64+b))
    k("s_cmp_lt_u32 s76, 2")
    k("s_cselect_b32 s82, %d, 0x4000000" % (18*5120) if False else "s_cselect_b32 s82, 0, 0x4000000")
    stamp(k, 1)
    for n in range(NU):
        kind, i = order[n]
        k.wait(vm=("u", n))
        F = 64 + (n % 4)*16
        for b in range(4):
            for h in range(2):
                k.lg("ds_read_b64_tr_b16 %s, v%d offset:%d" % (vr(F+4*b+2*h,2), 20+b, (n % NSL)*4096 + h*2048))
        off = ((20 if kind == "d" else 0) + 6*i)*5120
        for b in range(4):
            k("s_add_u32 s%d, s%d, %d" % (72+b, 64+b, off))
            if kind == "o" and i == 3: k("s_add_u32 s%d, s%d, s82" % (72+b, 72+b))
        k.wait(lg="all")
        for b in range(4):
            k.vm("buffer_store_dwordx4 %s, v%d, s[%d:%d], s%d offen%s" % (vr(F+4*b,4), V_L16, SRD_O, SRD_O+3, 72+b, SC), ("st", n))
        if n + D < NU: load(n + D)
        if n == 6:
            k.wait(vm=("st", 5)); signal(k, P_DBG, D_S1); stamp(k, 2)
    k.wait(vm="all")
    signal(k, P_DBG, D_S3)
    stamp(k, 4)
    poll_issue(k, P_DBG, D_S3, "s3")
    poll_check(k, P_DBG, 16, "s3", sleep=32)
    stamp(k, 5)
    it = b_items(range(70)) + bo_items()
    fd = Feed(k, it)
    for i in range(len(it)):
        fd.emit(1)
        k("s_waitcnt vmcnt(%d)" % cfg.AUXT)

PHB = 102400; KVB = PHB + 20480; RED = PHB
def tail(k):
    k.flush_counters()
    stamp(k, 6)
    k("s_add_u32 s82, s%d, %d" % (S_OMT, C_Q)); k("s_lshl_b32 s82, s82, 7")
    poll_issue(k, S_CNT, "s82", "pq_ok")
    srd(k, SRD_P, P_WS, PQ_OFF, PQ_SZ)
    srd(k, SRD_W0, P_WS, KVP_OFF, KVP_SZ)
    srd(k, SRD_W1, P_WS, G_OFF, G_SZ)
    srd(k, SRD_O, P_WS, A2_OFF, A2_SZ)
    k("s_mul_i32 s%d, s%d, %d" % (S_T0, S_M64, 74*4096))
    srd(k, SRD_X, P_WS, A2_OFF, 74*4096, S_T0)
    k("v_and_b32 v24, 15, v0"); k("v_lshrrev_b32 v25, 4, v0")
    k("v_lshlrev_b32 v6, 2, v24")
    k("s_lshl_b32 s77, s%d, 1" % S_OMT); k("s_add_u32 s77, s77, s%d" % S_RH)
    k("s_lshl_b32 s78, s%d, 1" % S_OH); k("s_add_u32 s78, s78, s%d" % S_C)
    k("s_mul_i32 s78, s78, 81920")
    k("s_lshl_b32 s79, s77, 10"); k("s_add_u32 s79, s79, s78")
    k("s_add_u32 s80, s79, 32768")
    k("s_lshl_b32 s81, s77, 9"); k("s_add_u32 s81, s81, s78"); k("s_add_u32 s81, s81, 65536")
    k("v_lshlrev_b32 v7, 3, v0")
    k("s_lshl_b32 s76, s%d, 9" % S_OMT); k("s_lshl_b32 s75, s%d, 7" % S_W); k("s_add_u32 s76, s76, s75")
    poll_check(k, S_CNT, 2, "pq_ok")
    stamp(k, 7)
    PQ = 192
    k.vm("buffer_load_dwordx4 %s, v%d, s[%d:%d], s79 offen%s" % (vr(PQ,4), V_L16, SRD_P, SRD_P+3, SC), "pq")
    k.vm("buffer_load_dwordx4 %s, v%d, s[%d:%d], s80 offen%s" % (vr(PQ+4,4), V_L16, SRD_P, SRD_P+3, SC), "pq")
    k.vm("buffer_load_dwordx2 %s, v7, s[%d:%d], s81 offen%s" % (vr(PQ+8,2), SRD_P, SRD_P+3, SC), "pq")
    for r2 in range(2): k.vm("buffer_load_dword v%d, v6, s[%d:%d], s76 offen offset:%d%s" % (16+r2, SRD_W1, SRD_W1+3, r2*64, SC), "g")
    k("s_lshr_b32 s82, s%d, 1" % S_M64); k("s_add_u32 s82, s82, %d" % C_Q); k("s_lshl_b32 s82, s82, 7")
    poll_issue(k, S_CNT, "s82", "g_ok")
    k("s_mul_i32 s75, s%d, 5120" % S_W); k("s_add_u32 s75, s75, %d" % PHB)
    k("v_mul_u32_u24 v7, 80, v0"); k("v_add_u32 v7, s75, v7")
    k("s_mul_i32 s75, s%d, 2560" % S_W); k("s_add_u32 s75, s75, %d" % PHB)
    k("v_mul_u32_u24 v8, 80, v24"); k("v_add_u32 v8, s75, v8")
    k("v_lshl_add_u32 v9, v25, 4, v8")
    k("s_lshl_b32 s82, s%d, 10" % S_W)
    k("v_add_u32 v10, s82, v%d" % V_L16)
    k("v_mov_b32 v30, 0x7fffffff")
    k("v_cmp_gt_u32 vcc, 3360, v10")
    k("v_cndmask_b32 v11, v30, v10, vcc")
    k("v_add_u32 v10, %d, v10" % KVB)
    k("s_mul_i32 s72, s%d, 5" % S_OH)
    def stoff(dst, add, nvalid):
        k("v_add_u32 v28, s72, v25")
        if add: k("v_add_u32 v28, %d, v28" % add)
        k("v_lshrrev_b32 v26, 2, v28")
        k("v_lshlrev_b32 v26, 12, v26")
        k("v_and_b32 v27, 3, v28")
        k("v_lshl_add_u32 v26, v27, 8, v26")
        k("v_lshl_add_u32 v26, v24, 4, v26")
        k("v_cmp_gt_u32 vcc, %d, v25" % nvalid)
        k("v_cndmask_b32 v%d, v30, v26, vcc" % dst)
    stoff(12, 0, 3); stoff(13, 3, 2)
    k("s_lshl_b32 s73, s%d, 1" % S_OMT); k("s_add_u32 s73, s73, s%d" % S_C)
    k("s_mul_i32 s73, s73, %d" % (74*4096))
    k("s_lshl_b32 s75, s%d, 11" % S_RH); k("s_add_u32 s73, s73, s75")
    k("s_mul_i32 s74, s%d, %d" % (S_OH, 16*KVPS))
    k("v_bfe_u32 v26, v0, 2, 2"); k("v_and_b32 v27, 3, v0")
    k("v_lshl_add_u32 v28, v26, 3, v27")
    for hd in range(2):
        for i in range(3):
            d = 18 + hd*3 + i
            if i == 2: k("v_mov_b32 v%d, %d" % (d, KVB + 1600 + hd*1680))
            else:
                k("v_add_u32 v14, %d, v28" % (4*i + 4*hd)); k("v_min_u32 v14, 20, v14")
                if hd == 1 and i == 0:
                    k("v_cmp_eq_u32 vcc, 2, v26"); k("v_cndmask_b32 v14, v14, v27, vcc")
                k("v_mul_u32_u24 v14, 80, v14")
                k("v_add_u32 v%d, %d, v14" % (d, KVB + hd*1680))
    k("v_cmp_eq_u32 s[78:79], 0, v25")
    k("v_cmp_eq_u32 s[76:77], 2, v25")
    k("v_mov_b32 v30, %d" % (KVB + 3584 - 64))
    k("v_and_b32 v28, 1, v0"); k("v_lshlrev_b32 v28, 4, v28")
    k("v_lshlrev_b32 v28, v28, 0x3f80" if False else "v_mov_b32 v29, 0x3f80")
    k("v_lshlrev_b32 v28, v28, v29")
    k("v_cmp_eq_u32 vcc, v26, v25")
    k("v_cndmask_b32 v28, 0, v28, vcc")
    k("v_cmp_gt_u32 vcc, 2, v27")
    k("v_cndmask_b32 v29, 0, v28, vcc")
    k("v_cndmask_b32 v28, v28, 0, vcc")
    for r, src in ((120, "v29"), (121, "v28"), (122, "0"), (123, "0"), (124, "0"), (125, "0"), (126, "v29"), (127, "v28")):
        k("v_accvgpr_write_b32 a%d, %s" % (r, src))
    k.wait(vm="pq")
    for i in range(10):
        k("v_lshlrev_b32 v%d, 16, v%d" % (64+2*i, PQ+i))
        k("v_and_b32 v%d, 0xffff0000, v%d" % (65+2*i, PQ+i))
    poll_check(k, S_CNT, 2, "g_ok")
    k("s_lshl_b32 s82, s%d, 8" % S_M64); k("s_lshl_b32 s75, s%d, 6" % S_W); k("s_add_u32 s82, s82, s75")
    k.vm("buffer_load_dword v5, v6, s[%d:%d], s82 offen%s" % (SRD_W1, SRD_W1+3, SC), "g")
    class Late:
        n = 0
        def emit(self, _=1):
            self.n += 1
            if self.n == 6:
                k("s_lshr_b32 s82, s%d, 1" % S_M64); k("s_lshl_b32 s82, s82, 7")
                poll_issue(k, S_CNT, "s82", "h_ok")
    softmax_pm(k, [64+2*i for i in range(10)], 84, 124, 104, Late())
    for i in range(5): k.lg("ds_write_b128 v7, %s offset:%d" % (vr(104+4*i,4), 16*i))
    stamp(k, 8)
    poll_check(k, S_CNT, 9, "h_ok")
    stamp(k, 9)
    A0 = 64; AF = 144; DA = 3
    k("s_add_u32 s80, s%d, 20" % S_W); k("s_lshl_b32 s80, s80, 12")
    def af(i): return AF + (i % DA)*16
    def a_load(i, tt):
        k.vm("buffer_load_dwordx4 %s, v%d, s[%d:%d], s80 offen offset:%d%s" % (vr(af(i)+4*tt,4), V_L16, SRD_X, SRD_X+3, tt*1024, SC), ("A", i, tt))
        if tt == 3: k("s_add_u32 s80, s80, %d" % (4*4096))
    for i in range(DA):
        for tt in range(4): a_load(i, tt)
    k("s_lshr_b32 s82, s%d, 2" % S_OH); k("s_add_u32 s82, s82, %d" % C_K); k("s_lshl_b32 s82, s82, 7")
    k.wait(lg="all")
    side = []
    def S(at, item, cost=1): side.append((at, cost, item))
    MK = cfg.MK
    S(max(0, MK-30), lambda: poll_issue(k, S_CNT, "s82", "k_ok"), 2)
    def chk():
        stamp(k, 10); poll_check(k, S_CNT, 16, "k_ok"); stamp(k, 11)
    S(MK, chk, 2)
    PR = 200
    def kp(p):
        k.vm("buffer_load_dwordx4 %s, v11, s[%d:%d], s74 offen%s" % (vr(PR+4*(p % 14),4), SRD_W0, SRD_W0+3, SC), ("kp", p))
        k("s_add_u32 s74, s74, %d" % KVPS)
    for p in range(14): S(MK + 2*p, lambda p=p: kp(p), 2)
    for p in range(16):
        r = PR + 4*(p % 14)
        def red(p=p, r=r):
            k.wait(vm=("kp", p))
            for h in range(2): k("v_mfma_f32_16x16x32_bf16 %s, %s, %s, %s" % (vr(192+4*h,4), ar(120+4*h,4), vr(r,4), vr(192+4*h,4) if p else "0"))
            if p < 2: kp(14+p)
        S(MK + cfg.KLAT + (cfg.KL2 if p >= 14 else 0), red, 2)
    S(0, None, 10)
    for i in range(4): S(0, "v_cvt_pk_bf16_f32 v%d, v%d, v%d" % (PR+i, 192+2*i, 193+2*i))
    S(0, ("lg", "ds_write_b128 v10, %s" % vr(PR,4), "kw"))
    S(0, None, 8)
    def bar():
        k.wait(lg="all"); k("s_barrier"); stamp(k, 28)
    S(80, bar, 2)
    OA = 256 + 128
    for hd in range(2):
        for i in range(3):
            S(0, "v_lshl_add_u32 v15, v25, 4, v%d" % (18+hd*3+i))
            S(0, "v_cndmask_b32 v14, v30, v%d, s[78:79]" % (18+hd*3+i))
            S(0, ("lg", "ds_read_b128 %s, v15" % R(OA+hd*40+8*i,4), ("o", hd)))
            S(0, ("lg", "ds_read_b128 %s, v14 offset:64" % R(OA+hd*40+4+8*i,4), ("o", hd)))
        for r2 in range(2):
            S(0, ("lg", "ds_read_b128 %s, v9 offset:%d" % (R(OA+hd*40+24+8*r2,4), hd*10240 + r2*1280), ("o", hd)))
            S(0, ("lg", "ds_read_b128 %s, v8 offset:%d" % (R(OA+hd*40+28+8*r2,4), hd*10240 + r2*1280+64), ("o", hd)))
    KO = 200
    for hd in range(2):
        if hd: S(0, None, 4)
        def mm(hd=hd):
            k.wait(lg=("o", hd), vm="g")
            for s in range(2):
                for r2 in range(2):
                    for i in (2, 0, 1):
                        a = KO + (hd*2+r2)*12 + i*4
                        k("v_mfma_f32_16x16x32_bf16 %s, %s, %s, %s" % (vr(a,4), R(OA+hd*40+8*i+4*s,4), R(OA+hd*40+24+8*r2+4*s,4), vr(a,4) if s else "0"))
        S(0, mm, 2)
    for u in range(4): S(0, "v_add_f32 v%d, %s, v%d" % (KO+u*12+8, f32(1e-6), KO+u*12+8))
    for u in range(4): S(0, "v_rcp_f32 v%d, v%d" % (KO+u*12+8, KO+u*12+8), 2)
    for u in range(4): S(0, "v_mul_f32 v%d, v%d, v%d" % (KO+u*12+8, KO+u*12+8, 16+(u & 1)))
    for r2 in range(2):
        a0 = KO + r2*12; a1 = KO + (2+r2)*12
        for a in (a1, a0):
            for i in range(8): S(0, "v_mul_f32 v%d, v%d, v%d" % (a+i, a+i, a+8))
            for i in range(4): S(0, "v_cvt_pk_bf16_f32 v%d, v%d, v%d" % (a+8+i, a+2*i, a+2*i+1))
            if a == a1: S(0, ("vm", "buffer_store_dwordx4 %s, v13, s[%d:%d], s73 offen offset:%d%s" % (vr(a1+8,4), SRD_O, SRD_O+3, r2*1024, SC), "st"))
        S(0, "v_cndmask_b32 v%d, v%d, v%d, s[76:77]" % (a0+10, a0+10, a1+8))
        S(0, "v_cndmask_b32 v%d, v%d, v%d, s[76:77]" % (a0+11, a0+11, a1+9))
        S(0, ("vm", "buffer_store_dwordx4 %s, v12, s[%d:%d], s73 offen offset:%d%s" % (vr(a0+8,4), SRD_O, SRD_O+3, r2*1024, SC), "st"))
    S(0, lambda: stamp(k, 29), 0)
    S(0, None, cfg.OSD)
    def osig():
        k.wait(vm="st")
        k("s_add_u32 s82, s%d, %d" % (S_OMT, C_O)); k("s_lshl_b32 s82, s82, 7")
        signal(k, S_CNT, "s82")
        stamp(k, 12)
    S(0, osig, 2)
    m = 0; credit = 0
    for i in range(14):
        for tt in range(4):
            k.wait(vm=("A", i, tt))
            for ct in range(5):
                a = A0 + (ct*4+tt)*4
                k("v_mfma_f32_16x16x32_bf16 %s, %s, %s, %s" % (vr(a,4), R(bloc(i*5+ct),4), vr(af(i)+4*tt,4), vr(a,4) if i else "0"))
                m += 1
                credit = min(credit, 0) + cfg.PER
                if ct == 4:
                    if i + DA < 14: a_load(i + DA, tt)
                    credit -= 2
                while side and side[0][0] <= m and credit > 0:
                    _, c, it = side.pop(0)
                    if it is not None: emit1(k, it)
                    credit -= c
    stamp(k, 13)
    for _, c, it in side:
        if it is not None: emit1(k, it)
    stamp(k, 27)
    k("s_lshr_b32 s82, s%d, 1" % S_M64); k("s_add_u32 s82, s82, %d" % C_O); k("s_lshl_b32 s82, s82, 7")
    labs = [k.newlabel("Lred") for _ in range(5)]
    k("v_add_u32 v7, %d, v%d" % (RED, V_L16))
    k("s_mul_i32 s81, s%d, 15360" % S_W)
    k("v_add_u32 v8, s81, v7")
    for w in range(1, 4):
        k("s_cmp_eq_u32 s%d, %d" % (S_W, w)); k("s_cbranch_scc1 %s" % labs[w])
    AO = 192
    for w in range(4):
        if w: k.label(labs[w]); k("s_nop 7")
        for tt in range(4):
            if tt == w: continue
            slot = w if w < tt else w - 1
            for ct in range(5): k("ds_write_b128 v7, %s offset:%d" % (vr(A0+(ct*4+tt)*4,4), (tt*15 + slot*5 + ct)*1024))
        for ct in range(5):
            for h in range(2): k("v_pk_mul_f32 %s, %s, 1.0 op_sel_hi:[1,0]" % (vr(AO+ct*4+2*h,2), vr(A0+(ct*4+w)*4+2*h,2)))
        if w < 3: k("s_branch %s" % labs[4])
    k.label(labs[4])
    poll_issue(k, S_CNT, "s82", "o_ok")
    k("v_add_u32 v9, 51200, v%d" % V_L16)
    k("s_waitcnt lgkmcnt(0)")
    k("s_barrier")
    for j in range(15): k.lg("ds_read_b128 %s, v8 offset:%d" % (vr(A0+4*j,4), j*1024), ("r", j // 5))
    srd(k, SRD_O, P_OUT, 0, 2048*1280)
    k("s_lshl_b32 s81, s%d, 6" % S_M64); k("s_lshl_b32 s75, s%d, 4" % S_W); k("s_add_u32 s81, s81, s75")
    k("s_mul_i32 s81, s81, 1280"); k("s_mul_i32 s75, s%d, 160" % S_NT); k("s_add_u32 s81, s81, s75")
    k("v_mul_u32_u24 v16, 1280, v24"); k("v_lshl_add_u32 v16, v25, 3, v16")
    k("v_sub_f32 v10, 1.0, v5")
    def bo_read(n):
        off = n*1024
        return ("lg", "ds_read_b128 %s, v%d offset:%d" % (R(256 + (n % 60)*4, 4), V_L16 if off < 51200 else 9, off % 51200), ("bo", n // 5))
    nr = 0
    for sl in range(3):
        k.wait(lg=("r", sl))
        weave(k, [], [bo_read(n) for n in range(nr, nr+5)]); nr += 5
        for ct in range(5):
            for h in range(2): k("v_pk_add_f32 %s, %s, %s" % (vr(AO+ct*4+2*h,2), vr(AO+ct*4+2*h,2), vr(A0+(sl*5+ct)*4+2*h,2)))
    poll_check(k, S_CNT, 16, "o_ok")
    stamp(k, 14)
    def of(ks): return 32 + 4*ks if ks < 8 else 144 + 4*(ks-8)
    k("s_lshl_b32 s80, s%d, 10" % S_W)
    fa = Feed(k, [("s_add_u32 s80, s80, 4096" if ks else None, "buffer_load_dwordx4 %s, v%d, s[%d:%d], s80 offen%s" % (vr(of(ks),4), V_L16, SRD_X, SRD_X+3, SC), ("Ao", ks)) for ks in range(20)])
    fa.emit(10)
    for j in range(10): k("v_pk_mul_f32 %s, %s, v[10:11] op_sel_hi:[1,0]" % (vr(AO+2*j,2), vr(AO+2*j,2)))
    while nr < 55:
        weave(k, [], [bo_read(n) for n in range(nr, nr+5)]); nr += 5
        fa.emit(1)
    for ks in range(20):
        k.wait(vm=("Ao", ks), lg=("bo", ks))
        mf = ["v_mfma_f32_16x16x32_bf16 %s, %s, %s, %s" % (vr(AO+ct*4,4), R(256 + ((ks*5+ct) % 60)*4, 4), vr(of(ks),4), vr(AO+ct*4,4)) for ct in range(5)]
        fill = [bo_read(n) for n in range(nr, min(100, nr+5))]; nr += len(fill)
        weave(k, mf, fill, per=1)
        fa.emit(1)
    for ct in range(5):
        a = AO + ct*4
        k("v_cvt_pk_bf16_f32 v%d, v%d, v%d" % (64+2*ct, a, a+1)); k("v_cvt_pk_bf16_f32 v%d, v%d, v%d" % (65+2*ct, a+2, a+3))
        k.vm("buffer_store_dwordx2 %s, v16, s[%d:%d], s81 offen offset:%d" % (vr(64+2*ct,2), SRD_O, SRD_O+3, ct*32), "st")
    stamp(k, 30)
    stamp_out(k)

def kernel(k):
    kernel_header(k, NAME)
    k("s_load_dwordx16 s[8:23], s[0:1], 0")
    k("s_load_dwordx8 s[24:31], s[0:1], 64")
    k("s_cmp_ge_u32 s2, 256")
    k("s_cbranch_scc1 L_end")
    code_prefetch(k, V_JUNK)
    k("v_lshrrev_b32 v2, 6, v0")
    k("v_and_b32 v0, 63, v0")
    k("v_readfirstlane_b32 s%d, v2" % S_W)
    if cfg.STAMP: k("v_mov_b32 v1, 0")
    stamp(k, 0)
    k("s_bfe_u32 s%d, s2, 0x40003" % S_MT)
    k("s_and_b32 s%d, s2, 7" % S_T0)
    k("s_lshl_b32 s%d, s%d, 3" % (S_T0, S_T0))
    k("s_bfe_u32 s%d, s2, 0x10007" % S_T1)
    k("s_lshl_b32 s%d, s%d, 2" % (S_T1, S_T1))
    k("s_add_u32 s%d, s%d, s%d" % (S_T0, S_T0, S_T1))
    tab = cfg.ORDER
    k("s_mov_b32 s74, 0x%x" % sum(tab[i] << (4*i) for i in range(8))); k("s_mov_b32 s75, 0x%x" % sum(tab[8+i] << (4*i) for i in range(8)))
    k("s_lshr_b64 s[74:75], s[74:75], s%d" % S_T0)
    k("s_and_b32 s%d, s74, 15" % S_TY)
    k("s_and_b32 s%d, s%d, 1" % (S_RH, S_W))
    k("s_lshr_b32 s%d, s%d, 1" % (S_C, S_W))
    k("v_lshlrev_b32 v%d, 4, v0" % V_L16)
    k("s_cmp_ge_u32 s%d, 15" % S_TY); k("s_cbranch_scc1 L_aux")
    k("s_cmp_ge_u32 s%d, 13" % S_TY)
    k("s_cselect_b32 s%d, 13, 9" % S_T0)
    k("s_cselect_b32 s75, 0, 1280")
    k("s_cselect_b32 s76, 0, 640")
    k("s_add_u32 s76, s76, 640")
    k("s_sub_u32 s79, s%d, s%d" % (S_TY, S_T0))
    k("s_mul_i32 s%d, s79, 320" % S_T1)
    k("s_and_b32 s%d, s%d, 127" % (S_DELTA, S_T1))
    k("s_sub_u32 s%d, s%d, s%d" % (S_T1, S_T1, S_DELTA))
    k("s_add_u32 s75, s75, s%d" % S_T1)
    k("s_add_u32 s76, s76, s75")
    k("s_mul_i32 s%d, s%d, 384" % (S_T1, S_TY))
    k("s_mov_b32 s%d, 3840" % S_STRIDE)
    k("s_cmp_lt_u32 s%d, 9" % S_TY)
    k("s_cselect_b32 s75, s%d, s75" % S_T1)
    k("s_cselect_b32 s76, s%d, s76" % S_T1)
    k("s_cselect_b32 s%d, 3456, s%d" % (S_STRIDE, S_STRIDE))
    k("s_mul_i32 s%d, s%d, 640" % (S_T1, S_STRIDE))
    k("s_sub_u32 s77, s%d, s75" % S_T1)
    k("s_sub_u32 s78, s%d, s76" % S_T1)
    gemm_setup(k)
    k("s_mul_i32 s%d, s%d, %d" % (S_T0, S_MT, 128*1280))
    k("s_waitcnt lgkmcnt(0)")
    k("s_cmp_lt_u32 s%d, 9" % S_TY)
    k("s_cselect_b64 s[16:17], s[%d:%d], s[%d:%d]" % (P_WG, P_WG+1, P_WQKV, P_WQKV+1))
    k("s_cselect_b64 s[%d:%d], s[%d:%d], s[%d:%d]" % (P_WU, P_WU+1, P_WU, P_WU+1, P_WQKV, P_WQKV+1))
    srd(k, SRD_X, P_X, 0, 128*1280, S_T0)
    stamp(k, 1)
    Q = dma_queue()
    issue_now(k, Q, 4)
    srd(k, SRD_W0, 16, 0, "s77", 75)
    srd(k, SRD_W1, P_WU, 0, "s78", 76)
    issue_now(k, Q, 6)
    touch_setup(k)
    for it in touch_items(-1):
        if it[0]: k(it[0])
        k.vm(it[1], it[2])
    sv0 = list(k.vmq)
    k("s_cmp_ge_u32 s%d, 9" % S_TY); k("s_cbranch_scc1 L_att")
    ffn_role(k, Q)
    k("s_branch L_tail")
    k.label("L_att")
    k("s_lshl_b32 s79, s79, 1")
    k("s_add_u32 s79, s79, s%d" % S_C)
    k("s_mul_i32 s80, s79, 3200")
    k("s_add_u32 s81, s80, 12800")
    k("s_mov_b32 s82, 0x100000")
    srd(k, SRD_P, P_WPHI, 0, 25600)
    k("s_cmp_ge_u32 s%d, 13" % S_TY); k("s_cbranch_scc1 L_q")
    k.flush_counters(); k.vmq = list(sv0)
    kv_role(k, Q)
    k("s_branch L_tail")
    k.label("L_q")
    k.flush_counters(); k.vmq = list(sv0)
    q_role(k, Q)
    k("s_branch L_tail")
    k.flush_counters()
    k.label("L_aux")
    aux_role(k)
    k.label("L_tail")
    tail(k)
    k.label("L_end")
    k("s_endpgm")

def build(fn, listform=True):
    k = K()
    k.raw(open("header.txt").read().rstrip())
    if listform: k.raw("; @launch kernel=%s grid=(256,1,1) block=(256,1,1) lds=163840" % NAME)
    else: k.raw("; @launch grid=(256,1,1) block=(256,1,1) lds=163840")
    k.raw('.amdgcn_target "amdgcn-amd-amdhsa--gfx950"')
    k.raw(".text")
    kernel(k)
    k.raw('.section .rodata,"a"')
    k.raw(kernel_desc(NAME, 512, 256))
    open(fn, "w").write(k.text())

if __name__ == "__main__":
    for a in sys.argv[2:]:
        if "=" in a:
            n, v = a.split("="); setattr(cfg, n, eval(v))
    build(sys.argv[1], listform="single" not in sys.argv)
```

```python
import sys
from fw import *

A2_OFF = 0;          A2_SZ = 32*74*4096
B2_OFF = 0xA00000;   B2_SZ = 8*74*5120
PQ_OFF = 0xD00000;   PQ_SZ = 32*2048*40
KVP_OFF = 0x1000000; KVPS = 3584; KVP_SZ = 16*16*KVPS
G_OFF = 0x1200000;   G_SZ = 8192
CNT_OFF = 0x1300000
ST_OFF = 0x1400000
LOG2E = 1.4426950408889634
NAME = "gated_mix__linear_kernel_hedgehog__swiglu_ffn__prompt_kernel"

class Cfg:
    STAMP = 0; STG = 0
    MAXD = 11; N2 = 6; N3 = 10
    P2M = 4
    TW = [(-1,1,5),(0,6,6),(3,12,8)]
    TX = [(-1,1,2),(0,3,3),(3,6,4)]
    ORDER = [0, 9, 1, 10, 2, 11, 3, 12, 4, 13, 5, 14, 6, 7, 8, 15]
    PS1 = 16
    NBF = 40
    NBA = 32
    AUXT = 6
    AUXD = 3
    FFE = (4, 10)
    MK = 30
    KLAT = 50
    PER = 2
    DBGWG = -1
    PADST = None
    KL2 = 40
    OSD = 50
cfg = Cfg()
SC = " sc1"

P_X, P_WQKV, P_WPHI, P_WO, P_WG, P_WU, P_WD, P_GW, P_OUT, P_DBG, P_WS = 8, 10, 12, 14, 18, 20, 22, 24, 26, 28, 30
S_W, S_RH, S_C, S_MT, S_TY, S_M64, S_NT, S_OH = 32, 33, 34, 35, 36, 37, 38, 39
SRD_X, SRD_W0, SRD_W1, SRD_O, SRD_P = 40, 44, 48, 52, 56
S_STRIDE, S_WOFF, S_WL, S_XL, S_T0, S_T1, S_T2, S_T3, S_DELTA, S_SIG = 60, 61, 62, 63, 64, 65, 66, 67, 68, 69
S_C2 = 70
S_OMT = 83; SRD_B = 84; S_BOFF = 88; S_BB = 89; S_CNT = 90; SRD_T = 96
V_L16, V_L16B, V_PT = 2, 3, 4
V_WD = 5; V_XD = 6; V_XR = 10; V_TA = 12; V_TW = 24; V_TX = 25; V_JUNK = 63
ACC0 = 64
WF0 = 256; XF0 = 256 + 96; GF0 = 256 + 88; GACC = 224
C_H, C_K, C_Q, C_O = 0, 16, 20, 36
SPARE = 147456
D_S1, D_S2, D_S3 = 0, 64, 128

def srd(k, d, b, off, nbytes, soff=None):
    if off or soff is not None:
        if soff is not None:
            k("s_add_u32 s%d, s%d, s%d" % (d, b, soff)); k("s_addc_u32 s%d, s%d, 0" % (d+1, b+1))
            if off:
                k("s_add_u32 s%d, s%d, 0x%x" % (d, d, off)); k("s_addc_u32 s%d, s%d, 0" % (d+1, d+1))
        else:
            k("s_add_u32 s%d, s%d, 0x%x" % (d, b, off)); k("s_addc_u32 s%d, s%d, 0" % (d+1, b+1))
        k("s_and_b32 s%d, s%d, 0xffff" % (d+1, d+1))
    else:
        k("s_mov_b32 s%d, s%d" % (d, b)); k("s_and_b32 s%d, s%d, 0xffff" % (d+1, b+1))
    if isinstance(nbytes, int): k("s_mov_b32 s%d, 0x%x" % (d+2, nbytes))
    else: k("s_mov_b32 s%d, %s" % (d+2, nbytes))
    k("s_mov_b32 s%d, 0x20000" % (d+3))

def stamp(k, i):
    if not cfg.STAMP: return
    k("s_memrealtime s[92:93]")
    k("s_waitcnt lgkmcnt(0)")
    k.lgq = []
    k("v_writelane_b32 v1, s92, %d" % i)
def stamp_out(k):
    if not cfg.STAMP: return
    k("s_waitcnt vmcnt(0)")
    stamp(k, 15)
    k("v_writelane_b32 v1, s%d, 16" % S_TY)
    srd(k, 40, P_WS, ST_OFF, 1024*128)
    k("s_lshl_b32 s92, s2, 2"); k("s_add_u32 s92, s92, s%d" % S_W); k("s_lshl_b32 s92, s92, 7")
    k("v_lshlrev_b32 v5, 2, v0")
    k("v_cmp_gt_u32 vcc, 32, v0")
    k("v_mov_b32 v6, 0x7fffffff")
    k("v_cndmask_b32 v5, v6, v5, vcc")
    k("buffer_store_dword v1, v5, s[40:43], s92 offen")
    if cfg.PADST is not None:
        k("v_readlane_b32 s94, v1, %d" % cfg.PADST)
        k("v_readlane_b32 s95, v1, 0")
        k("s_max_u32 s94, s94, s95")
        k("s_add_u32 s94, s94, 6000")
        k.label("Lpad")
        k("s_sleep 4")
        k("s_memrealtime s[96:97]")
        k("s_waitcnt lgkmcnt(0)")
        k("s_sub_u32 s98, s96, s94")
        k("s_cmp_lt_i32 s98, 0")
        k("s_cbranch_scc1 Lpad")
    if cfg.DBGWG >= 0:
        k("s_cmp_eq_u32 s92, %d" % (cfg.DBGWG*512))
        k("s_cselect_b32 s93, 64, 0")
        srd(k, 44, P_DBG, 0, "s93")
        k("v_readlane_b32 s93, v1, 0")
        k("v_subrev_u32 v7, s93, v1")
        k("v_cmp_lt_u32 vcc, 0, v0")
        k("v_cndmask_b32 v5, v6, v5, vcc")
        k("buffer_store_dword v7, v5, s[44:47], 0 offen")

def code_prefetch(k, vt):
    k("s_getpc_b64 s[72:73]")
    l = k.newlabel("Lpc"); k.label(l)
    k("s_lshr_b32 s74, s2, 3")
    k("s_lshl_b32 s74, s74, 7")
    k("v_and_b32 v%d, 31, v0" % vt)
    k("v_lshlrev_b32 v%d, 12, v%d" % (vt, vt))
    k("v_add_u32 v%d, s74, v%d" % (vt, vt))
    k("v_min_u32 v%d, L_end-%s-4, v%d" % (vt, l, vt))
    k.vm("global_load_dword v%d, v%d, s[72:73]" % (vt, vt), "pf")

def poll_issue(k, base, off, tag):
    k("v_mov_b32 v%d, %s" % (V_PT, off))
    k.vm("global_load_dword v31, v%d, s[%d:%d] sc1" % (V_PT, base, base+1), tag)
def poll_check(k, base, target, tag, sleep=4):
    l = k.newlabel("Lpoll"); d = k.newlabel("Lpd")
    k.wait(vm=tag)
    k("v_readfirstlane_b32 s94, v31")
    k("s_mov_b32 s95, 0x8000")
    k("s_cmp_ge_u32 s94, %d" % target)
    k("s_cbranch_scc1 %s" % d)
    k.label(l)
    k("s_sleep %d" % sleep)
    k("global_load_dword v31, v%d, s[%d:%d] sc1" % (V_PT, base, base+1))
    k("s_waitcnt vmcnt(0)")
    k("v_readfirstlane_b32 s94, v31")
    k("s_sub_u32 s95, s95, 1")
    k("s_cmp_ge_u32 s94, %d" % target)
    k("s_cbranch_scc1 %s" % d)
    k("s_cmp_lg_u32 s95, 0")
    k("s_cbranch_scc1 %s" % l)
    k.label(d)
def signal(k, base, off):
    d = k.newlabel("Lsg")
    k("s_barrier")
    k("s_cmp_lg_u32 s%d, 0" % S_W)
    k("s_cbranch_scc1 %s" % d)
    k("v_mov_b32 v%d, %s" % (V_PT, off))
    k("v_mov_b32 v31, 1")
    k("s_mov_b64 exec, 1")
    k("global_atomic_add v%d, v31, s[%d:%d] sc1" % (V_PT, base, base+1))
    k("s_mov_b64 exec, -1")
    k.label(d)

def bloc(n):
    if n < 32: return 256 + 128 + 4*n
    if n < 40: return 32 + 4*(n-32)
    return 256 + 4*(n-40)
def b_items(frs):
    out = []; cur = None
    for n in frs:
        st, ct = divmod(n, 5)
        pre = None
        if st != cur: pre = "s_add_u32 s%d, s%d, %d" % (S_BOFF, S_BB, (20 + 4*st)*5120); cur = st
        if ct < 4: t = "buffer_load_dwordx4 %s, v%d, s[%d:%d], s%d offen offset:%d%s" % (R(bloc(n),4), V_L16, SRD_B, SRD_B+3, S_BOFF, ct*1024, SC)
        else: t = "buffer_load_dwordx4 %s, v%d, s[%d:%d], s%d offen%s" % (R(bloc(n),4), V_L16B, SRD_B, SRD_B+3, S_BOFF, SC)
        out.append((pre, t, "B"))
    return out
def bo_items():
    out = []
    for i in range(5):
        for ct in range(5):
            pre = "s_add_u32 m0, s%d, %d" % (S_BB, i*20480 + (4096 if ct == 4 else 0))
            if ct == 0: pre = "s_add_u32 s100, s%d, %d\n" % (S_BB, i*20480) + pre
            if ct < 4: t = "buffer_load_dwordx4 v%d, s[%d:%d], s100 offen offset:%d%s lds" % (V_L16, SRD_B, SRD_B+3, ct*1024, SC)
            else: t = "buffer_load_dwordx4 v%d, s[%d:%d], s100 offen%s lds" % (V_L16B, SRD_B, SRD_B+3, SC)
            out.append((pre, t, "BO"))
    return out
class Feed:
    def __init__(self, k, items): self.k = k; self.q = list(items)
    def emit(self, n=1):
        while self.q and n > 0:
            pre, t, tag = self.q.pop(0)
            if pre: self.k(pre)
            self.k.vm(t, tag); n -= 1
    def drain(self): self.emit(10**6)
def emit1(k, f):
    if callable(f): f()
    elif isinstance(f, tuple): (k.lg if f[0] == "lg" else k.vm)(f[1], f[2])
    else: k(f)
def weave(k, mf, fill, per=2):
    fill = list(fill)
    for m in mf:
        k(m)
        for _ in range(per):
            if fill: emit1(k, fill.pop(0))
    for f in fill: emit1(k, f)

WSLOT = 24576; RW = 4; XBASE = RW*WSLOT; XSLOT = 16384; RX = 3

def gemm_setup(k):
    k("v_lshrrev_b32 v28, 3, v0")
    k("v_and_b32 v29, 7, v0")
    k("v_bfe_u32 v26, v28, 1, 1")
    k("s_lshl_b32 s%d, s%d, 1" % (S_T0, S_RH))
    k("v_or_b32 v26, s%d, v26" % S_T0)
    k("v_lshlrev_b32 v26, 1, v26")
    k("v_xor_b32 v26, v26, v29")
    k("s_lshl_b32 s%d, s%d, 3" % (S_T0, S_W))
    k("v_add_u32 v27, s%d, v28" % S_T0)
    k("v_mul_lo_u32 v27, v27, s%d" % S_STRIDE)
    k("v_lshl_add_u32 v%d, v26, 4, v27" % V_WD)
    k("s_lshl_b32 s%d, s%d, 5" % (S_T0, S_W))
    k("v_lshrrev_b32 v26, 1, v28")
    k("v_xor_b32 v27, v26, v29")
    k("v_add_u32 v26, s%d, v28" % S_T0)
    k("v_mul_u32_u24 v26, 1280, v26")
    k("v_lshl_add_u32 v%d, v27, 4, v26" % V_XD)
    k("v_xor_b32 v%d, 64, v%d" % (V_XD+1, V_XD))
    k("v_add_u32 v%d, %d, v%d" % (V_XD+1, 8*1280, V_XD+1))
    k("v_add_u32 v%d, %d, v%d" % (V_XD+2, 16*1280, V_XD))
    k("v_add_u32 v%d, %d, v%d" % (V_XD+3, 16*1280, V_XD+1))
    k("s_mul_i32 s%d, s%d, 6144" % (S_WL, S_W))
    k("s_lshl_b32 s%d, s%d, 12" % (S_XL, S_W))
    k("s_add_u32 s%d, s%d, %d" % (S_XL, S_XL, XBASE))
    k("s_mov_b32 s%d, 0" % S_WOFF)
    k("s_lshl_b32 s%d, s%d, 5" % (S_T3, S_STRIDE))

def touch_setup(k):
    k("v_lshrrev_b32 v26, 2, v0")
    k("v_and_b32 v27, 3, v0")
    k("s_lshl_b32 s%d, s%d, 1" % (S_T0, S_MT))
    k("s_add_u32 s%d, s%d, s%d" % (S_T0, S_T0, S_C))
    k("v_lshlrev_b32 v28, 5, v26")
    k("v_add_u32 v28, s%d, v28" % S_T0)
    k("v_mul_lo_u32 v28, v28, s%d" % S_STRIDE)
    k("v_min_u32 v29, 2, v27")
    k("v_lshl_add_u32 v%d, v29, 7, v28" % V_TW)
    k("s_lshl_b32 s%d, s%d, 4" % (S_T0, S_TY))
    k("s_lshl_b32 s%d, s%d, 2" % (S_T1, S_W))
    k("s_add_u32 s%d, s%d, s%d" % (S_T0, S_T0, S_T1))
    k("v_add_u32 v27, s%d, v27" % S_T0)
    k("v_mul_u32_u24 v27, 1280, v27")
    k("v_lshl_add_u32 v%d, v26, 7, v27" % V_TX)
    k("s_cmp_eq_u32 s%d, 0" % S_RH)
    for i in range(3): k("s_cselect_b32 s%d, s%d, s%d" % (SRD_T+i, SRD_W0+i, SRD_W1+i))
    k("s_mov_b32 s%d, 0x20000" % (SRD_T+3))
def masked(n, t):
    if n >= 16: return t
    return "s_bfm_b64 exec, %d, 0\n%s\ns_mov_b64 exec, -1" % (4*n, t)
def touch_items(stage):
    out = []
    for (st, first, n) in cfg.TW:
        if st == stage:
            out.append(("s_mul_i32 s101, s%d, %d" % (S_STRIDE, 32*first), masked(n, "buffer_load_dword v%d, v%d, s[%d:%d], s101 offen nt" % (V_JUNK, V_TW, SRD_T, SRD_T+3)), "pf"))
    for (st, first, n) in cfg.TX:
        if st == stage:
            out.append((None, masked(n, "buffer_load_dword v%d, v%d, s[%d:%d], 0 offen offset:%d" % (V_JUNK, V_TX, SRD_X, SRD_X+3, first*128)), "pf"))
    return out

def gemm_setup2(k, att):
    npt = 5 if att else 6
    k("v_and_b32 v54, 15, v0")
    k("v_lshrrev_b32 v55, 4, v0")
    k("v_bfe_u32 v26, v54, 1, 3")
    k("v_xor_b32 v26, v26, v55")
    k("s_lshl_b32 s%d, s%d, 13" % (S_T0, S_RH))
    k("s_add_u32 s%d, s%d, %d" % (S_T0, S_T0, XBASE))
    k("v_lshlrev_b32 v27, 7, v54")
    k("v_add_u32 v27, s%d, v27" % S_T0)
    k("v_lshl_add_u32 v%d, v26, 4, v27" % V_XR)
    k("v_xor_b32 v%d, 64, v%d" % (V_XR+1, V_XR))
    k("v_bfe_u32 v26, v0, 2, 2")
    k("v_and_b32 v27, 3, v0")
    k("v_lshrrev_b32 v28, 1, v26")
    k("v_and_b32 v29, 1, v55")
    k("v_lshl_or_b32 v28, v29, 1, v28")
    k("v_lshlrev_b32 v28, 5, v28")
    k("v_mul_u32_u24 v29, 6144, v55")
    k("v_lshl_add_u32 v29, v26, 7, v29")
    if att:
        k("s_mul_i32 s%d, s%d, 160" % (S_T0, S_C))
        k("s_add_u32 s%d, s%d, s%d" % (S_T0, S_T0, S_DELTA))
        k("v_mul_u32_u24 v27, 40, v27")
    else:
        k("s_mul_i32 s%d, s%d, 192" % (S_T0, S_C))
        k("v_lshlrev_b32 v27, 3, v27")
    k("v_add_u32 v27, s%d, v27" % S_T0)
    for p in range(npt):
        k("v_add_u32 v30, %d, v27" % (p * (8 if att else 32)))
        k("v_lshrrev_b32 v31, 7, v30")
        k("v_and_b32 v30, 127, v30")
        k("v_xor_b32 v30, v30, v28")
        k("v_lshl_add_u32 v31, v31, 10, v29")
        k("v_add_u32 v%d, v30, v31" % (V_TA+p))
        k("v_add_u32 v%d, %d, v%d" % (V_TA+6+p, 2*WSLOT, V_TA+p))

def w_dma(s):
    return [("s_add_u32 m0, s%d, %d" % (S_WL, (s % RW)*WSLOT + (seg*3+lc)*1024 - lc*128),
             "buffer_load_dwordx4 v%d, s[%d:%d], s%d offen offset:%d lds" % (V_WD, SRD_W0+4*seg, SRD_W0+4*seg+3, S_WOFF, lc*128), ("W", s))
            for seg in range(2) for lc in range(3)]
def x_dma(u, i):
    return ("s_add_u32 m0, s%d, %d" % (S_XL, (u % RX)*XSLOT + i*1024 - u*128),
            "buffer_load_dwordx4 v%d, s[%d:%d], 0 offen offset:%d lds" % (V_XD+i, SRD_X, SRD_X+3, u*128), ("X", u))
def reads_for(s, npt):
    out = []; b = s & 1
    for rt in range(4):
        out.append("ds_read_b128 %s, v%d offset:%d" % (R(XF0 + (b*4+rt)*4, 4), V_XR + (s & 1), ((s >> 1) % RX)*XSLOT + rt*2048))
    slot = s % RW
    for p in range(npt):
        for seg in range(2):
            for h in range(2):
                out.append("ds_read_b64_tr_b16 %s, v%d offset:%d" % (R(WF0 + (b*12+p*2+seg)*4 + 2*h, 2), V_TA + p + (6 if slot >= 2 else 0), (slot & 1)*WSLOT + seg*3072 + h*512))
    return out
def acc(p, seg, rt): return ACC0 + ((p*2+seg)*4 + rt)*4

def late_setup_items():
    k = K()
    k("s_and_b32 s%d, s2, 7" % S_T1)
    k("s_lshr_b32 s%d, s2, 3" % S_OH)
    if cfg.P2M == 4:
        k("s_lshl_b32 s%d, s%d, 2" % (S_M64, S_T1)); k("s_and_b32 s%d, s%d, 3" % (S_T0, S_OH)); k("s_add_u32 s%d, s%d, s%d" % (S_M64, S_M64, S_T0))
        k("s_lshr_b32 s%d, s%d, 2" % (S_NT, S_OH))
    else:
        k("s_lshr_b32 s%d, s%d, 1" % (S_M64, S_T1)); k("s_lshl_b32 s%d, s%d, 3" % (S_M64, S_M64)); k("s_and_b32 s%d, s%d, 7" % (S_T0, S_OH)); k("s_add_u32 s%d, s%d, s%d" % (S_M64, S_M64, S_T0))
        k("s_and_b32 s%d, s%d, 1" % (S_NT, S_T1)); k("s_lshl_b32 s%d, s%d, 2" % (S_NT, S_NT)); k("s_lshr_b32 s%d, s%d, 3" % (S_T0, S_OH)); k("s_add_u32 s%d, s%d, s%d" % (S_NT, S_NT, S_T0))
    k("s_lshr_b32 s%d, s%d, 1" % (S_OMT, S_OH))
    k("s_and_b32 s%d, s%d, 1" % (S_OH, S_OH)); k("s_lshl_b32 s%d, s%d, 1" % (S_T0, S_T1)); k("s_add_u32 s%d, s%d, s%d" % (S_OH, S_OH, S_T0))
    k("s_mul_i32 s%d, s%d, %d" % (S_T0, S_NT, 74*5120))
    srd(k, SRD_B, P_WS, B2_OFF, 74*5120, S_T0)
    k("s_mul_i32 s%d, s%d, 5120" % (S_BB, S_W))
    k("s_add_u32 s%d, s%d, 0x%x" % (S_CNT, P_WS, CNT_OFF))
    k("s_addc_u32 s%d, s%d, 0" % (S_CNT+1, P_WS+1))
    k("v_add_u32 v%d, 4096, v%d" % (V_L16B, V_L16))
    k("s_mov_b32 s%d, %s" % (S_C2, f32(LOG2E))); k("s_mov_b32 s%d, %s" % (S_C2+1, f32(LOG2E)))
    return [t for _, t in k.items]

def dma_queue():
    Q = []
    for st in range(20):
        if st % 2 == 0:
            u = st // 2
            for i in range(4): Q.append((-1 if u < RX else 2*(u-RX)+1, x_dma(u, i), False))
        it = w_dma(st)
        for i, d in enumerate(it): Q.append((-1 if st < RW else st-RW, d, i == len(it)-1))
    return Q
def wadv(k): k("s_add_u32 s%d, s%d, s%d" % (S_WOFF, S_WOFF, S_T3))
def issue_now(k, Q, n):
    for _ in range(n):
        av, it, last = Q.pop(0)
        k(it[0]); k.vm(it[1], it[2])
        if last: wadv(k)

def spread(items, s0, s1):
    out = {}; n = len(items); i = 0
    for s in range(s0, s1):
        c = -(-(n - i) // (s1 - s)); out[s] = items[i:i+c]; i += c
    return out

def gemm_main(k, att, gate, Q, extra, polls, xrd=None, xwait=None, xsetup=None):
    npt = 5 if att else 6
    Q = list(Q)
    if gate:
        for i in range(2):
            k("s_add_u32 m0, s%d, %d" % (S_XL, SPARE - XBASE))
            k.vm("buffer_load_dwordx4 v%d, s[%d:%d], 0 offen offset:%d lds" % (V_L16, SRD_O, SRD_O+3, i*1024), ("W", 0))
    issue_now(k, Q, cfg.N2)
    gemm_setup2(k, att)
    if gate:
        k("s_add_u32 s%d, s%d, %d" % (S_T0, S_XL, SPARE - XBASE))
        k("v_lshrrev_b32 v17, 4, v0")
        k("v_lshlrev_b32 v17, 4, v17")
        k("v_add_u32 v17, s%d, v17" % S_T0)
    for t in late_setup_items(): k(t)
    if xsetup: xsetup(k)
    def rds(s):
        r = reads_for(s, npt)
        if gate: r.append("ds_read_b128 %s, v17 offset:%d" % (R(GF0 + (s & 1)*4, 4), s*64))
        return r
    stamp(k, 2)
    k.wait(vm=[("X", 0), ("W", 0)])
    k("s_barrier")
    stamp(k, 3)
    for r in rds(0): k.lg(r)
    issue_now(k, Q, cfg.N3)
    k.wait(vm=[("W", 1)], lg="all")
    k("s_barrier")
    for s in range(20):
        b = s & 1
        rd = rds(s+1) if s < 19 else []
        if xrd and s in xrd: rd += xrd[s]
        dm = []
        while Q and Q[0][0] <= s and len(dm) < cfg.MAXD: dm.append(Q.pop(0))
        ex = [(0, e, False) for e in extra.get(s, []) + touch_items(s)]
        mix = []
        while dm or ex:
            if dm: mix.append(dm.pop(0))
            if ex and len(ex) >= len(dm): mix.append(ex.pop(0))
        dm = mix
        mf = []
        for p in range(npt):
            for seg in range(2):
                for rt in range(4):
                    a = acc(p, seg, rt)
                    mf.append("v_mfma_f32_16x16x32_bf16 %s, %s, %s, %s" % (R(a,4), R(WF0 + (b*12+p*2+seg)*4, 4), R(XF0 + (b*4+rt)*4, 4), R(a,4) if s else "0"))
        if gate:
            for rt in range(4):
                a = GACC + rt*4
                mf.append("v_mfma_f32_16x16x32_bf16 %s, %s, %s, %s" % (R(a,4), R(GF0 + b*4, 4), R(XF0 + (b*4+rt)*4, 4), R(a,4) if s else "0"))
        nm = len(mf); nd = len(dm)
        at = [int(i * (nm - 3) / max(nd, 1)) for i in range(nd)]
        for i in range(1, nd): at[i] = max(at[i], at[i-1] + 2)
        pend = None
        for m, t in enumerate(mf):
            k(t)
            if rd: k.lg(rd.pop(0))
            if (s+1) in polls and m == nm - 1: poll_issue(k, P_DBG, polls[s+1], ("poll", s+1))
            if pend is not None:
                k.vm(pend[1][1], pend[1][2])
                if pend[2]: wadv(k)
                pend = None
            elif dm and m >= at[nd - len(dm)]:
                pend = dm.pop(0)
                if pend[1][0]: k(pend[1][0])
        assert not rd and not dm and pend is None, (s, rd, dm, pend)
        if s < 19:
            k.wait(vm=[("W", s+2), ("X", (s+2) >> 1)] + (xwait.get(s, []) if xwait else []), lg="all")
        if s in polls: poll_check(k, P_DBG, 16, ("poll", s), sleep=8)
        if s < 19:
            k("s_barrier")
            if cfg.STG and s % 2 == 1: stamp(k, 17 + s//2)
    assert not Q
    stamp(k, 4)

def ffn_setup(k):
    k("s_lshl_b32 s75, s%d, 1" % S_MT)
    k("s_add_u32 s75, s75, s%d" % S_RH)
    k("s_mul_i32 s75, s75, 74")
    k("s_mul_i32 s76, s%d, 6" % S_TY)
    k("s_add_u32 s75, s75, s76")
    k("s_mul_i32 s76, s%d, 3" % S_C)
    k("s_add_u32 s75, s75, s76")
    k("s_add_u32 s75, s75, 20")
    k("s_lshl_b32 s75, s75, 12")
    k("s_lshl_b32 s%d, s%d, 7" % (S_SIG, S_MT))
    srd(k, SRD_O, P_WS, A2_OFF, A2_SZ)

def ffn_role(k, Q):
    extra = spread(b_items(range(cfg.NBF)), cfg.PS1, 20)
    gemm_main(k, False, False, Q, extra, {cfg.PS1-1: D_S1, 19: D_S3}, xsetup=ffn_setup)
    fd = Feed(k, b_items(range(cfg.NBF, 70)) + bo_items())
    per, last = cfg.FFE
    n = 0
    for ks in range(3):
        for rt in range(4):
            T = 6 + (n & 1)*8; O = 22 + (n & 1)*4; n += 1
            if O & 3: O = (24, 28)[(n-1) & 1] - 0
            fe = lambda i: fd.emit(1) if (n <= last and i < per) else None
            G = [acc(2*ks+j, 0, rt) for j in range(2)]; U = [acc(2*ks+j, 1, rt) for j in range(2)]
            O = U[0]
            prs = [(j, h) for j in range(2) for h in range(2)]
            for i, (j, h) in enumerate(prs):
                k("v_pk_mul_f32 %s, %s, s[%d:%d] neg_lo:[0,1] neg_hi:[0,1]" % (vr(T+2*i,2), vr(G[j]+2*h,2), S_C2, S_C2+1))
            fe(0)
            for i in range(8): k("v_exp_f32 v%d, v%d" % (T+i, T+i))
            fe(2)
            for i, (j, h) in enumerate(prs):
                k("v_pk_mul_f32 %s, %s, %s" % (vr(G[j]+2*h,2), vr(G[j]+2*h,2), vr(U[j]+2*h,2)))
            for i in range(4): k("v_pk_add_f32 %s, %s, 1.0 op_sel_hi:[1,0]" % (vr(T+2*i,2), vr(T+2*i,2)))
            fe(1)
            for i in range(8): k("v_rcp_f32 v%d, v%d" % (T+i, T+i))
            fe(3)
            for i, (j, h) in enumerate(prs):
                k("v_pk_mul_f32 %s, %s, %s" % (vr(T+2*i,2), vr(G[j]+2*h,2), vr(T+2*i,2)))
            for i in range(4): k("v_cvt_pk_bf16_f32 v%d, v%d, v%d" % (O+i, T+2*i, T+2*i+1))
            k.vm("buffer_store_dwordx4 %s, v%d, s[%d:%d], s75 offen offset:%d%s" % (vr(O,4), V_L16, SRD_O, SRD_O+3, rt*1024, SC), "st")
        if ks < 2: k("s_add_u32 s75, s75, 4096")
    stamp(k, 26)
    k.wait(vm="st")
    stamp(k, 5)
    signal(k, S_CNT, "s%d" % S_SIG)
    fd.drain()

def phi_dma(seg, s_off):
    out = [("s_add_u32 m0, s%d, %d" % (S_WL, seg*WSLOT),
            "buffer_load_dwordx4 v%d, s[%d:%d], s%d offen offset:%d lds" % (V_L16, SRD_P, SRD_P+3, s_off, i*1024), ("P", seg)) for i in range(4)]
    out.append(("s_add_u32 m0, s%d, %d" % (S_WL, seg*WSLOT + 4096),
                "buffer_load_dwordx4 v%d, s[%d:%d], s82 offen lds" % (V_L16, SRD_P, SRD_P+3), ("P", seg)))
    return out
def phireg(seg, to, s):
    i = s*5 + to
    if seg == 1: return 256 + 48 + 4*i if i < 10 else 256 + 108 + 4*(i-10)
    return 256 + 4*i if i < 12 else 256 + 96 + 4*(i-12)
V_PHA = 23
def phi_reads(seg):
    out = []
    for s in range(3):
        for to in range(5):
            for h in range(2):
                d = phireg(seg, to, s) + 2*h
                if s == 2 and h == 1: out.append("ds_read_b64_tr_b16 %s, v26 offset:%d" % (R(d,2), seg*WSLOT))
                else: out.append("ds_read_b64_tr_b16 %s, v%d offset:%d" % (R(d,2), V_PHA, seg*WSLOT + (8*s+4*h)*40 + 8*to))
    return out
def cvt_in(seg, rt, B):
    out = []
    for t in range(5):
        a = acc(t, seg, rt)
        out.append("v_cvt_pk_bf16_f32 v%d, v%d, v%d" % (B+2*t, a, a+1))
        out.append("v_cvt_pk_bf16_f32 v%d, v%d, v%d" % (B+2*t+1, a+2, a+3))
    return out
def phi_mf(seg, rt, B):
    return ["v_mfma_f32_16x16x32_bf16 %s, %s, %s, %s" % (vr(acc(to,seg,rt),4), R(phireg(seg, to, s),4), vr(B+4*s,4), vr(acc(to,seg,rt),4) if s else "0")
            for s in range(3) for to in range(5)]

PKRS = 352; VRS = 224; PKSZ = 128*PKRS; VB = 2*PKSZ; VSZ = 128*VRS
V_E0, V_E1, V_E2, V_E3, V_E4, V_E5, V_E6 = 27, 28, 29, 30, 60, 61, 62
def att_common_setup(k):
    k("v_lshrrev_b32 v50, 4, v0")
    k("v_and_b32 v51, 15, v0")
    k("v_bfe_u32 v52, v0, 2, 2")
    k("v_and_b32 v53, 3, v0")
    k("v_mul_u32_u24 v48, 800, v50")
    k("v_mad_u32_u24 v48, v52, 40, v48")
    k("v_cmp_eq_u32 vcc, v50, v53")
    k("v_mov_b32 v49, 4096")
    k("v_cndmask_b32 v48, v49, v48, vcc")
    k("v_add_u32 v%d, s%d, v48" % (V_PHA, S_WL))
    k("v_add_u32 v26, s%d, v49" % S_WL)
    k("v_and_b32 v48, 31, v0"); k("v_lshlrev_b32 v48, 7, v48")
    k("v_lshrrev_b32 v49, 5, v0"); k("v_mul_u32_u24 v49, 12800, v49"); k("v_add_u32 v48, v48, v49")
    k.vm("buffer_load_dword v%d, v48, s[%d:%d], s80 offen" % (V_JUNK, SRD_P, SRD_P+3), "pf")
def kv_setup(k):
    att_common_setup(k)
    k("s_add_u32 s%d, s%d, %d" % (S_SIG, S_TY, C_K - 9))
    k("s_lshl_b32 s%d, s%d, 7" % (S_SIG, S_SIG))
    k("s_lshl_b32 s%d, s%d, 6" % (S_T0, S_RH))
    k("v_add_u32 v48, s%d, v51" % S_T0)
    k("s_mul_i32 s%d, s%d, %d" % (S_T0, S_C, PKSZ))
    k("v_mul_u32_u24 v%d, %d, v48" % (V_E0, PKRS))
    k("v_mul_u32_u24 v49, 80, v50")
    k("v_add3_u32 v%d, v%d, v49, s%d" % (V_E0, V_E0, S_T0))
    k("s_mul_i32 s%d, s%d, %d" % (S_T1, S_C, VSZ))
    k("s_add_u32 s%d, s%d, %d" % (S_T1, S_T1, VB))
    k("v_mul_u32_u24 v%d, %d, v48" % (V_E1, VRS))
    k("v_mul_u32_u24 v49, 48, v50")
    k("v_add3_u32 v%d, v%d, v49, s%d" % (V_E1, V_E1, S_T1))
    k("v_lshrrev_b32 v48, 2, v0")
    k("v_lshlrev_b32 v49, 3, v53")
    k("s_mul_i32 s%d, s%d, 160" % (S_T2, S_RH))
    k("s_add_u32 s%d, s%d, s%d" % (S_T0, S_T0, S_T2))
    k("v_mul_u32_u24 v%d, %d, v48" % (V_E2, PKRS))
    k("v_add3_u32 v%d, v%d, v49, s%d" % (V_E2, V_E2, S_T0))
    k("s_mul_i32 s%d, s%d, 96" % (S_T2, S_RH))
    k("s_add_u32 s%d, s%d, s%d" % (S_T1, S_T1, S_T2))
    k("v_mul_u32_u24 v%d, %d, v48" % (V_E3, VRS))
    k("v_add3_u32 v%d, v%d, v49, s%d" % (V_E3, V_E3, S_T1))
    k("s_add_u32 s%d, s%d, %d" % (S_T2, S_XL, SPARE - XBASE))
    k("v_mul_u32_u24 v48, 80, v51")
    k("v_lshl_add_u32 v48, v50, 3, v48")
    k("v_add_u32 v%d, s%d, v48" % (V_E5, S_T2))
    k("v_add_u32 v%d, s%d, v%d" % (V_E6, S_T2, V_L16))
    k("v_mov_b32 v48, 0x7fffffff")
    k("v_cmp_gt_u32 vcc, 32, v0")
    k("v_cndmask_b32 v%d, v48, v%d, vcc" % (V_E4, V_L16))
    k("s_lshl_b32 s78, s79, 1")
    k("s_add_u32 s78, s78, s%d" % S_RH)
    k("s_lshl_b32 s78, s78, 4")
    k("s_add_u32 s78, s78, s%d" % S_MT)
    k("s_mul_i32 s78, s78, %d" % KVPS)
    k("v_cmp_gt_u32 s[72:73], 2, v50")
    k("v_cmp_gt_u32 s[74:75], 5, v51")
    k("s_and_b64 s[76:77], s[72:73], s[74:75]")
    srd(k, SRD_O, P_WS, KVP_OFF, KVP_SZ)
    for r in (42, 43, 54, 55): k("v_mov_b32 v%d, 0" % r)
    for O in (232, 244):
        k("v_mov_b32 v%d, 0x3f80" % (O+10)); k("v_mov_b32 v%d, 0" % (O+11))
def q_setup(k):
    att_common_setup(k)
    k("s_mov_b32 s%d, 81920" % S_T0)
    k("v_mul_lo_u32 v48, v50, s%d" % S_T0)
    k("v_lshl_add_u32 v%d, v51, 4, v48" % V_E0)
    k("v_lshl_add_u32 v%d, v51, 3, v48" % V_E1)
    k("v_lshlrev_b32 v%d, 2, v0" % V_E2)
    k("s_mul_i32 s%d, s79, %d" % (S_T1, 4*81920))
    k("s_lshl_b32 s%d, s%d, 1" % (S_T0, S_MT))
    k("s_add_u32 s%d, s%d, s%d" % (S_T0, S_T0, S_RH))
    k("s_lshl_b32 s75, s%d, 10" % S_T0)
    k("s_add_u32 s75, s75, s%d" % S_T1)
    k("s_add_u32 s76, s75, 32768")
    k("s_lshl_b32 s77, s%d, 9" % S_T0)
    k("s_add_u32 s77, s77, s%d" % S_T1)
    k("s_add_u32 s77, s77, 65536")
    k("s_lshl_b32 s78, s%d, 8" % S_T0)
    k("s_add_u32 s78, s78, %d" % (G_OFF - PQ_OFF))
    k("s_add_u32 s%d, s%d, %d" % (S_SIG, S_MT, C_Q))
    k("s_lshl_b32 s%d, s%d, 7" % (S_SIG, S_SIG))
    srd(k, SRD_O, P_WS, PQ_OFF, G_OFF + G_SZ - PQ_OFF)
    for r in (42, 43, 54, 55): k("v_mov_b32 v%d, 0" % r)

def softmax_pm(k, P, E, T, O, fd=None, mf=None, side=None):
    def fe(n=1):
        if fd: fd.emit(n)
    mf = list(mf or []); side = list(side or [])
    v = [p + i for p in P for i in range(2)]
    k("v_max3_f32 v%d, v%d, v%d, v%d" % (T, v[0], v[1], v[2]))
    k("v_min3_f32 v%d, v%d, v%d, v%d" % (T+2, v[0], v[1], v[2]))
    k("v_max3_f32 v%d, v%d, v%d, v%d" % (T+1, v[3], v[4], v[5]))
    k("v_min3_f32 v%d, v%d, v%d, v%d" % (T+3, v[3], v[4], v[5]))
    for n, i in enumerate(range(6, 20, 2)):
        c = n & 1
        k("v_max3_f32 v%d, v%d, v%d, v%d" % (T+c, T+c, v[i], v[i+1]))
        k("v_min3_f32 v%d, v%d, v%d, v%d" % (T+2+c, T+2+c, v[i], v[i+1]))
    fe()
    k("v_max_f32 v%d, v%d, v%d" % (T, T, T+1))
    k("v_min_f32 v%d, v%d, v%d" % (T+2, T+2, T+3))
    k("v_mul_f32 v%d, %s, v%d" % (T, f32(-LOG2E), T))
    k("v_mul_f32 v%d, %s, v%d" % (T+2, f32(LOG2E), T+2))
    for i, p in enumerate(P):
        k("v_pk_fma_f32 %s, %s, s[%d:%d], %s op_sel_hi:[1,1,0]" % (vr(E+2*i,2), vr(p,2), S_C2, S_C2+1, vr(T,2)))
    fe()
    for i, p in enumerate(P):
        k("v_pk_fma_f32 %s, %s, s[%d:%d], %s op_sel_hi:[1,1,0] neg_lo:[0,1,0] neg_hi:[0,1,0]" % (vr(p,2), vr(p,2), S_C2, S_C2+1, vr(T+2,2)))
    ex = [E+i for i in range(20)] + v
    for i, x in enumerate(ex):
        if i % 2 == 0:
            if mf: k(mf.pop(0))
            if side: k.lg(*side.pop(0))
        if i % 12 == 5: fe()
        k("v_exp_f32 v%d, v%d" % (x, x))
    assert not mf and not side
    Ep = [E+2*i for i in range(10)]
    k("v_pk_add_f32 %s, %s, %s" % (vr(T+4,2), vr(Ep[0],2), vr(Ep[1],2)))
    k("v_pk_add_f32 %s, %s, %s" % (vr(T,2), vr(Ep[2],2), vr(Ep[3],2)))
    k("v_pk_add_f32 %s, %s, %s" % (vr(T+6,2), vr(P[0],2), vr(P[1],2)))
    k("v_pk_add_f32 %s, %s, %s" % (vr(T+2,2), vr(P[2],2), vr(P[3],2)))
    for i in range(4, 10, 2):
        k("v_pk_add_f32 %s, %s, %s" % (vr(T+4,2), vr(T+4,2), vr(Ep[i],2)))
        k("v_pk_add_f32 %s, %s, %s" % (vr(T,2), vr(T,2), vr(Ep[i+1],2)))
        k("v_pk_add_f32 %s, %s, %s" % (vr(T+6,2), vr(T+6,2), vr(P[i],2)))
        k("v_pk_add_f32 %s, %s, %s" % (vr(T+2,2), vr(T+2,2), vr(P[i+1],2)))
    k("v_pk_add_f32 %s, %s, %s" % (vr(T+4,2), vr(T+4,2), vr(T,2)))
    k("v_pk_add_f32 %s, %s, %s" % (vr(T+6,2), vr(T+6,2), vr(T+2,2)))
    fe()
    k("v_add_f32 v%d, v%d, v%d" % (T+4, T+4, T+5))
    k("v_add_f32 v%d, v%d, v%d" % (T+6, T+6, T+7))
    k("v_rcp_f32 v%d, v%d" % (T+4, T+4))
    k("v_rcp_f32 v%d, v%d" % (T+6, T+6))
    for i in range(10): k("v_pk_mul_f32 %s, %s, %s op_sel_hi:[1,0]" % (vr(Ep[i],2), vr(Ep[i],2), vr(T+4,2)))
    fe()
    for i in range(10): k("v_pk_mul_f32 %s, %s, %s op_sel_hi:[1,0]" % (vr(P[i],2), vr(P[i],2), vr(T+6,2)))
    for i in range(10): k("v_cvt_pk_bf16_f32 v%d, v%d, v%d" % (O+i, Ep[i], Ep[i]+1))
    fe()
    for i in range(10): k("v_cvt_pk_bf16_f32 v%d, v%d, v%d" % (O+10+i, P[i], P[i]+1))

def att_extra(two):
    extra = spread(b_items(range(cfg.NBA)), cfg.PS1, 20)
    extra[16] = phi_dma(0, 80) + extra[16]
    if two: extra[17] = phi_dma(1, 81) + extra[17]
    return extra

def q_role(k, Q):
    srd(k, SRD_O, P_GW, 0, 1280)
    gemm_main(k, True, True, Q, att_extra(True), {cfg.PS1-1: D_S1}, xrd={19: phi_reads(0)}, xwait={18: [("P", 0)]}, xsetup=q_setup)
    k.wait(vm=("P", 1))
    for t in cvt_in(0, 0, 32): k(t)
    gate = ["v_lshrrev_b32 v24, 4, v0"]
    for rt in range(1, 4):
        gate += ["v_cmp_eq_u32 vcc, %d, v24" % rt, "v_cndmask_b32 v%d, v%d, v%d, vcc" % (GACC, GACC, GACC+4*rt)]
    gate += ["v_mul_f32 v25, %s, v%d" % (f32(-LOG2E), GACC), "v_exp_f32 v25, v25", "v_add_f32 v25, 1.0, v25", "v_rcp_f32 v25, v25",
             ("vm", "buffer_store_dword v25, v%d, s[%d:%d], s78 offen%s" % (V_E2, SRD_O, SRD_O+3, SC), "st")]
    rd1 = [("lg", r, "ph1") for r in phi_reads(1)]
    def outs(u):
        seg, rt = u >> 2, u & 3
        O = (240, 8)[u & 1]
        f = cvt_in(seg, rt, O)
        f.insert(4, ("vm", "buffer_store_dwordx4 %s, v%d, s[%d:%d], s75 offen offset:%d%s" % (vr(O,4), V_E0, SRD_O, SRD_O+3, rt*256, SC), "st"))
        f.insert(9, ("vm", "buffer_store_dwordx4 %s, v%d, s[%d:%d], s76 offen offset:%d%s" % (vr(O+4,4), V_E0, SRD_O, SRD_O+3, rt*256, SC), "st"))
        f.append(("vm", "buffer_store_dwordx2 %s, v%d, s[%d:%d], s77 offen offset:%d%s" % (vr(O+8,2), V_E1, SRD_O, SRD_O+3, rt*128, SC), "st"))
        if u == 3: f += ["s_add_u32 s%d, s%d, %d" % (x, x, 16*81920) for x in (75, 76, 77)]
        return f
    k.wait(lg="all")
    for u in range(8):
        seg, rt = u >> 2, u & 3
        fill = []
        if u < 7: fill += cvt_in((u+1) >> 2, (u+1) & 3, 32 + ((u+1) & 1)*12)
        if u == 0: fill += rd1[:14] + gate[:6]
        elif u == 1: fill += outs(0) + rd1[14:21]
        elif u == 2: fill += outs(1) + rd1[21:28]
        elif u == 3: fill += rd1[28:] + outs(2) + gate[6:]
        else: fill += outs(u-1)
        if u == 4: k.wait(lg="all")
        weave(k, phi_mf(seg, rt, 32 + (u & 1)*12), fill)
    weave(k, [], outs(7))
    poll_issue(k, P_DBG, D_S3, "s3")
    k.wait(vm="st")
    poll_check(k, P_DBG, 16, "s3", sleep=8)
    stamp(k, 5)
    signal(k, S_CNT, "s%d" % S_SIG)
    Feed(k, b_items(range(cfg.NBA, 70)) + bo_items()).drain()

def kv_role(k, Q):
    gemm_main(k, True, False, Q, att_extra(False), {cfg.PS1-1: D_S1}, xrd={19: phi_reads(0)}, xwait={18: [("P", 0)]}, xsetup=kv_setup)
    EREG = 6; TREG = 244; O = 224
    for t in cvt_in(0, 0, 32): k(t)
    def vout(rt):
        B = (232, 244)[rt & 1]
        f = cvt_in(1, rt, B)
        f += [("lg", "ds_write_b128 v%d, %s offset:%d" % (V_E1, vr(B+4*i,4), rt*16*VRS + 16*i), ("vw", rt)) for i in range(3)]
        if rt >= 2: f.insert(0, lambda rt=rt: k.wait(lg=("vw", rt-2)))
        return f
    k.wait(lg="all")
    weave(k, phi_mf(0, 0, 32), cvt_in(0, 1, 44) + vout(0) + vout(1) + vout(2) + vout(3))
    k.wait(lg="all")
    k("s_barrier")
    if not cfg.STG: stamp(k, 17)
    def vfr(n, bt): return acc((n*2+bt) >> 2, 1, (n*2+bt) & 3)
    vreads = []
    for n in range(8):
        j, ks = n >> 2, n & 3
        for bt in range(2):
            for h in range(2):
                vreads.append(("ds_read_b64_tr_b16 %s, v%d offset:%d" % (vr(vfr(n,bt)+2*h,2), V_E3, (32*ks+16*h)*VRS + j*48 + bt*32), "vf"))
    free1 = list(range(52, 64)) + [67, 68, 69]
    free2 = list(range(40, 52)) + [64, 65, 66]
    fd = Feed(k, b_items(range(cfg.NBA, 32)))
    for rt in range(4):
        P = [acc(t, 0, rt) + 2*h for t in range(5) for h in range(2)]
        mf = phi_mf(0, rt+1, 32 + ((rt+1) & 1)*12) if rt < 3 else []
        if rt == 1: poll_issue(k, P_DBG, D_S3, "s3")
        if rt == 2:
            poll_check(k, P_DBG, 16, "s3", sleep=8)
            fd.q += b_items(free1)
        softmax_pm(k, P, EREG, TREG, O, fd, mf, vreads[rt*8:(rt+1)*8])
        for i in range(5):
            k.lg("ds_write_b128 v%d, %s offset:%d" % (V_E0, vr(O+4*i,4), rt*16*PKRS + 16*i), ("pw", rt))
        if rt < 2:
            for t in cvt_in(0, rt+2, 32 + (rt & 1)*12): k(t)
        if not cfg.STG: stamp(k, 18+rt)
    fd.drain()
    fd.q += b_items(free2)
    k.wait(lg="all")
    k("s_barrier")
    if not cfg.STG: stamp(k, 22)
    KAQ = [32, 36, 40, 44, 48, 52, 224, 228, 232, 236, 240, 244]
    def pfr(n, ft): return acc(((n % 6)*3+ft) >> 2, 0, ((n % 6)*3+ft) & 3)
    def rd(n):
        j, ks = n >> 2, n & 3
        return [("lg", "ds_read_b64_tr_b16 %s, v%d offset:%d" % (vr(pfr(n,ft)+2*h,2), V_E2, (32*ks+16*h)*PKRS + j*80 + ft*32), ("f", n)) for ft in range(3) for h in range(2)]
    def pack(jj):
        f = []
        for ft in range(3):
            for bt in range(2):
                a = KAQ[(jj*3+ft)*2+bt]
                f += ["v_cvt_pk_bf16_f32 v%d, v%d, v%d" % (a, a, a+1), "v_cvt_pk_bf16_f32 v%d, v%d, v%d" % (a+1, a+2, a+3)]
                mask = [[None, "s[74:75]"], [None, "s[74:75]"], ["s[72:73]", "s[76:77]"]][ft][bt]
                w = "ds_write_b64 v%d, %s offset:%d" % (V_E5, vr(a,2), jj*1680 + bt*1280 + ft*32)
                if mask: w = "s_mov_b64 exec, %s\n%s\ns_mov_b64 exec, -1" % (mask, w)
                f.append(("lg", w, "cw"))
        return f
    weave(k, [], rd(0) + rd(1))
    pk0 = pack(0)
    for n in range(8):
        j, ks = n >> 2, n & 3
        k.wait(lg=("f", n))
        mf = []
        for ft in range(3):
            for bt in range(2):
                a = KAQ[(j*3+ft)*2+bt]
                mf.append("v_mfma_f32_16x16x32_bf16 %s, %s, %s, %s" % (vr(a,4), vr(pfr(n,ft),4), vr(vfr(n,bt),4), vr(a,4) if ks else "0"))
        fill = rd(n+2) if n < 6 else []
        if n < 5: fill.append(lambda: fd.emit(1))
        if n >= 5: fill += pk0[(n-5)*6:(n-4)*6]
        weave(k, mf, fill)
    weave(k, [], pack(1))
    k.wait(lg="all")
    for i in range(4): k.lg("ds_read_b128 %s, v%d offset:%d" % (vr(64+4*i,4), V_E6, i*1024), ("cr", i))
    for i in range(4):
        k.wait(lg=("cr", i))
        k.vm("buffer_store_dwordx4 %s, v%d, s[%d:%d], s78 offen offset:%d%s" % (vr(64+4*i,4), V_L16 if i < 3 else V_E4, SRD_O, SRD_O+3, i*1024, SC), "st")
    stamp(k, 26)
    fd.emit(4)
    k.wait(vm="st")
    stamp(k, 5)
    signal(k, S_CNT, "s%d" % S_SIG)
    fd.drain()
    Feed(k, b_items(range(32, 40)) + bo_items()).drain()

def aux_role(k):
    NSL = 9
    order = [("d", i) for i in range(6)] + [("o", i) for i in range(4)] + [("d", i) for i in range(6, 9)]
    NU = len(order)
    k("s_mov_b32 s%d, 1280" % S_STRIDE)
    k("s_lshl_b32 s75, s%d, 2" % S_MT)
    k("s_add_u32 s75, s75, s%d" % S_W)
    k("s_mul_i32 s76, s75, 205"); k("s_lshr_b32 s76, s76, 11")
    k("s_mul_i32 s77, s76, 10"); k("s_sub_u32 s77, s75, s77")
    k("s_cmp_ge_u32 s76, 6")
    k("s_cselect_b32 s78, 0x4000000, 0")
    k("s_mul_i32 s79, s76, %d" % (32*1280))
    k("s_lshl_b32 s80, s77, 7")
    k("s_add_u32 s79, s79, s80")
    k("s_add_u32 s79, s79, s78")
    k("v_lshrrev_b32 v24, 3, v0"); k("v_and_b32 v25, 7, v0")
    k("v_and_b32 v26, 6, v24")
    k("v_xor_b32 v26, v26, v25")
    k("v_lshlrev_b32 v26, 4, v26")
    k("v_mad_u32_u24 v5, v24, s%d, v26" % S_STRIDE)
    for i in range(1, 4): k("v_add_u32 v%d, %d, v5" % (5+i, i*8*1280))
    k("s_mul_i32 s%d, s%d, %d" % (S_WL, S_W, NSL*4096))
    k("s_waitcnt lgkmcnt(0)")
    srd(k, SRD_W1, P_WD, 0, 1728*1280)
    def load(n):
        kind, i = order[n]
        sg, vb = (SRD_W1, 5) if kind == "d" else (SRD_W0, 12)
        k("s_add_u32 s81, s79, %d" % (i*6*32*1280))
        for j in range(4):
            k("s_add_u32 m0, s%d, %d" % (S_WL, (n % NSL)*4096 + j*1024))
            k.vm("buffer_load_dwordx4 v%d, s[%d:%d], s81 offen nt lds" % (vb+j, sg, sg+3), ("u", n))
    D = cfg.AUXD
    for n in range(D): load(n)
    srd(k, SRD_W0, P_WO, 0, 640*1280)
    k("v_lshrrev_b32 v27, 2, v24"); k("v_and_b32 v28, 3, v24")
    k("v_lshl_add_u32 v27, v27, 3, v28")
    k("v_mad_u32_u24 v12, v27, s%d, v26" % S_STRIDE)
    for i in range(1, 4): k("v_add_u32 v%d, %d, v12" % (12+i, (16*(i&1) + 4*(i>>1))*1280))
    srd(k, SRD_O, P_WS, B2_OFF, B2_SZ)
    for t in late_setup_items(): k(t)
    k("s_cmp_eq_u32 s%d, 0" % S_MT)
    k("s_cselect_b32 s%d, 8192, 0" % S_T0)
    srd(k, 96, P_WS, CNT_OFF, "s%d" % S_T0)
    for i in range(4): k("v_mov_b32 v%d, 0" % (56+i))
    k("s_lshl_b32 s%d, s%d, 11" % (S_T0, S_W))
    for i in range(2): k.vm("buffer_store_dwordx4 v[56:59], v%d, s[96:99], s%d offen offset:%d%s" % (V_L16, S_T0, i*1024, SC), ("st", 0))
    k("v_lshrrev_b32 v24, 2, v0")
    k("v_bfe_u32 v25, v24, 1, 2")
    k("v_and_b32 v26, 3, v0")
    k("v_lshlrev_b32 v24, 7, v24")
    k("v_lshl_add_u32 v24, v26, 3, v24")
    k("v_add_u32 v24, s%d, v24" % S_WL)
    for b in range(4):
        k("v_xor_b32 v26, %d, v25" % b)
        k("v_lshl_add_u32 v%d, v26, 5, v24" % (20+b))
    for b in range(4):
        k("s_lshl_b32 s72, s77, 2"); k("s_add_u32 s72, s72, %d" % b)
        k("s_mul_i32 s73, s72, 205"); k("s_lshr_b32 s73, s73, 10")
        k("s_mul_i32 s74, s73, 5"); k("s_sub_u32 s72, s72, s74")
        k("s_mul_i32 s73, s73, 74"); k("s_add_u32 s73, s73, s76")
        k("s_mul_i32 s73, s73, 5"); k("s_add_u32 s73, s73, s72")
        k("s_lshl_b32 s73, s73, 10")
        k("s_add_u32 s%d, s73, s78" % (64+b))
    k("s_cmp_lt_u32 s76, 2")
    k("s_cselect_b32 s82, %d, 0x4000000" % (18*5120) if False else "s_cselect_b32 s82, 0, 0x4000000")
    stamp(k, 1)
    for n in range(NU):
        kind, i = order[n]
        k.wait(vm=("u", n))
        F = 64 + (n % 4)*16
        for b in range(4):
            for h in range(2):
                k.lg("ds_read_b64_tr_b16 %s, v%d offset:%d" % (vr(F+4*b+2*h,2), 20+b, (n % NSL)*4096 + h*2048))
        off = ((20 if kind == "d" else 0) + 6*i)*5120
        for b in range(4):
            k("s_add_u32 s%d, s%d, %d" % (72+b, 64+b, off))
            if kind == "o" and i == 3: k("s_add_u32 s%d, s%d, s82" % (72+b, 72+b))
        k.wait(lg="all")
        for b in range(4):
            k.vm("buffer_store_dwordx4 %s, v%d, s[%d:%d], s%d offen%s" % (vr(F+4*b,4), V_L16, SRD_O, SRD_O+3, 72+b, SC), ("st", n))
        if n + D < NU: load(n + D)
        if n == 6:
            k.wait(vm=("st", 5)); signal(k, P_DBG, D_S1); stamp(k, 2)
    k.wait(vm="all")
    signal(k, P_DBG, D_S3)
    stamp(k, 4)
    poll_issue(k, P_DBG, D_S3, "s3")
    poll_check(k, P_DBG, 16, "s3", sleep=32)
    stamp(k, 5)
    it = b_items(range(70)) + bo_items()
    fd = Feed(k, it)
    for i in range(len(it)):
        fd.emit(1)
        k("s_waitcnt vmcnt(%d)" % cfg.AUXT)

PHB = 102400; KVB = PHB + 20480; RED = PHB
def tail(k):
    k.flush_counters()
    stamp(k, 6)
    k("s_add_u32 s82, s%d, %d" % (S_OMT, C_Q)); k("s_lshl_b32 s82, s82, 7")
    poll_issue(k, S_CNT, "s82", "pq_ok")
    srd(k, SRD_P, P_WS, PQ_OFF, PQ_SZ)
    srd(k, SRD_W0, P_WS, KVP_OFF, KVP_SZ)
    srd(k, SRD_W1, P_WS, G_OFF, G_SZ)
    srd(k, SRD_O, P_WS, A2_OFF, A2_SZ)
    k("s_mul_i32 s%d, s%d, %d" % (S_T0, S_M64, 74*4096))
    srd(k, SRD_X, P_WS, A2_OFF, 74*4096, S_T0)
    k("v_and_b32 v24, 15, v0"); k("v_lshrrev_b32 v25, 4, v0")
    k("v_lshlrev_b32 v6, 2, v24")
    k("s_lshl_b32 s77, s%d, 1" % S_OMT); k("s_add_u32 s77, s77, s%d" % S_RH)
    k("s_lshl_b32 s78, s%d, 1" % S_OH); k("s_add_u32 s78, s78, s%d" % S_C)
    k("s_mul_i32 s78, s78, 81920")
    k("s_lshl_b32 s79, s77, 10"); k("s_add_u32 s79, s79, s78")
    k("s_add_u32 s80, s79, 32768")
    k("s_lshl_b32 s81, s77, 9"); k("s_add_u32 s81, s81, s78"); k("s_add_u32 s81, s81, 65536")
    k("v_lshlrev_b32 v7, 3, v0")
    k("s_lshl_b32 s76, s%d, 9" % S_OMT); k("s_lshl_b32 s75, s%d, 7" % S_W); k("s_add_u32 s76, s76, s75")
    poll_check(k, S_CNT, 2, "pq_ok")
    stamp(k, 7)
    PQ = 192
    k.vm("buffer_load_dwordx4 %s, v%d, s[%d:%d], s79 offen%s" % (vr(PQ,4), V_L16, SRD_P, SRD_P+3, SC), "pq")
    k.vm("buffer_load_dwordx4 %s, v%d, s[%d:%d], s80 offen%s" % (vr(PQ+4,4), V_L16, SRD_P, SRD_P+3, SC), "pq")
    k.vm("buffer_load_dwordx2 %s, v7, s[%d:%d], s81 offen%s" % (vr(PQ+8,2), SRD_P, SRD_P+3, SC), "pq")
    for r2 in range(2): k.vm("buffer_load_dword v%d, v6, s[%d:%d], s76 offen offset:%d%s" % (16+r2, SRD_W1, SRD_W1+3, r2*64, SC), "g")
    k("s_lshr_b32 s82, s%d, 1" % S_M64); k("s_add_u32 s82, s82, %d" % C_Q); k("s_lshl_b32 s82, s82, 7")
    poll_issue(k, S_CNT, "s82", "g_ok")
    k("s_mul_i32 s75, s%d, 5120" % S_W); k("s_add_u32 s75, s75, %d" % PHB)
    k("v_mul_u32_u24 v7, 80, v0"); k("v_add_u32 v7, s75, v7")
    k("s_mul_i32 s75, s%d, 2560" % S_W); k("s_add_u32 s75, s75, %d" % PHB)
    k("v_mul_u32_u24 v8, 80, v24"); k("v_add_u32 v8, s75, v8")
    k("v_lshl_add_u32 v9, v25, 4, v8")
    k("s_lshl_b32 s82, s%d, 10" % S_W)
    k("v_add_u32 v10, s82, v%d" % V_L16)
    k("v_mov_b32 v30, 0x7fffffff")
    k("v_cmp_gt_u32 vcc, 3360, v10")
    k("v_cndmask_b32 v11, v30, v10, vcc")
    k("v_add_u32 v10, %d, v10" % KVB)
    k("s_mul_i32 s72, s%d, 5" % S_OH)
    def stoff(dst, add, nvalid):
        k("v_add_u32 v28, s72, v25")
        if add: k("v_add_u32 v28, %d, v28" % add)
        k("v_lshrrev_b32 v26, 2, v28")
        k("v_lshlrev_b32 v26, 12, v26")
        k("v_and_b32 v27, 3, v28")
        k("v_lshl_add_u32 v26, v27, 8, v26")
        k("v_lshl_add_u32 v26, v24, 4, v26")
        k("v_cmp_gt_u32 vcc, %d, v25" % nvalid)
        k("v_cndmask_b32 v%d, v30, v26, vcc" % dst)
    stoff(12, 0, 3); stoff(13, 3, 2)
    k("s_lshl_b32 s73, s%d, 1" % S_OMT); k("s_add_u32 s73, s73, s%d" % S_C)
    k("s_mul_i32 s73, s73, %d" % (74*4096))
    k("s_lshl_b32 s75, s%d, 11" % S_RH); k("s_add_u32 s73, s73, s75")
    k("s_mul_i32 s74, s%d, %d" % (S_OH, 16*KVPS))
    k("v_bfe_u32 v26, v0, 2, 2"); k("v_and_b32 v27, 3, v0")
    k("v_lshl_add_u32 v28, v26, 3, v27")
    for hd in range(2):
        for i in range(3):
            d = 18 + hd*3 + i
            if i == 2: k("v_mov_b32 v%d, %d" % (d, KVB + 1600 + hd*1680))
            else:
                k("v_add_u32 v14, %d, v28" % (4*i + 4*hd)); k("v_min_u32 v14, 20, v14")
                if hd == 1 and i == 0:
                    k("v_cmp_eq_u32 vcc, 2, v26"); k("v_cndmask_b32 v14, v14, v27, vcc")
                k("v_mul_u32_u24 v14, 80, v14")
                k("v_add_u32 v%d, %d, v14" % (d, KVB + hd*1680))
    k("v_cmp_eq_u32 s[78:79], 0, v25")
    k("v_cmp_eq_u32 s[76:77], 2, v25")
    k("v_mov_b32 v30, %d" % (KVB + 3584 - 64))
    k("v_and_b32 v28, 1, v0"); k("v_lshlrev_b32 v28, 4, v28")
    k("v_lshlrev_b32 v28, v28, 0x3f80" if False else "v_mov_b32 v29, 0x3f80")
    k("v_lshlrev_b32 v28, v28, v29")
    k("v_cmp_eq_u32 vcc, v26, v25")
    k("v_cndmask_b32 v28, 0, v28, vcc")
    k("v_cmp_gt_u32 vcc, 2, v27")
    k("v_cndmask_b32 v29, 0, v28, vcc")
    k("v_cndmask_b32 v28, v28, 0, vcc")
    for r, src in ((120, "v29"), (121, "v28"), (122, "0"), (123, "0"), (124, "0"), (125, "0"), (126, "v29"), (127, "v28")):
        k("v_accvgpr_write_b32 a%d, %s" % (r, src))
    k.wait(vm="pq")
    for i in range(10):
        k("v_lshlrev_b32 v%d, 16, v%d" % (64+2*i, PQ+i))
        k("v_and_b32 v%d, 0xffff0000, v%d" % (65+2*i, PQ+i))
    poll_check(k, S_CNT, 2, "g_ok")
    k("s_lshl_b32 s82, s%d, 8" % S_M64); k("s_lshl_b32 s75, s%d, 6" % S_W); k("s_add_u32 s82, s82, s75")
    k.vm("buffer_load_dword v5, v6, s[%d:%d], s82 offen%s" % (SRD_W1, SRD_W1+3, SC), "g")
    class Late:
        n = 0
        def emit(self, _=1):
            self.n += 1
            if self.n == 6:
                k("s_lshr_b32 s82, s%d, 1" % S_M64); k("s_lshl_b32 s82, s82, 7")
                poll_issue(k, S_CNT, "s82", "h_ok")
    softmax_pm(k, [64+2*i for i in range(10)], 84, 124, 104, Late())
    for i in range(5): k.lg("ds_write_b128 v7, %s offset:%d" % (vr(104+4*i,4), 16*i))
    stamp(k, 8)
    poll_check(k, S_CNT, 9, "h_ok")
    stamp(k, 9)
    A0 = 64; AF = 144; DA = 3
    k("s_add_u32 s80, s%d, 20" % S_W); k("s_lshl_b32 s80, s80, 12")
    def af(i): return AF + (i % DA)*16
    def a_load(i, tt):
        k.vm("buffer_load_dwordx4 %s, v%d, s[%d:%d], s80 offen offset:%d%s" % (vr(af(i)+4*tt,4), V_L16, SRD_X, SRD_X+3, tt*1024, SC), ("A", i, tt))
        if tt == 3: k("s_add_u32 s80, s80, %d" % (4*4096))
    for i in range(DA):
        for tt in range(4): a_load(i, tt)
    k("s_lshr_b32 s82, s%d, 2" % S_OH); k("s_add_u32 s82, s82, %d" % C_K); k("s_lshl_b32 s82, s82, 7")
    k.wait(lg="all")
    side = []
    def S(at, item, cost=1): side.append((at, cost, item))
    MK = cfg.MK
    S(max(0, MK-30), lambda: poll_issue(k, S_CNT, "s82", "k_ok"), 2)
    def chk():
        stamp(k, 10); poll_check(k, S_CNT, 16, "k_ok"); stamp(k, 11)
    S(MK, chk, 2)
    PR = 200
    def kp(p):
        k.vm("buffer_load_dwordx4 %s, v11, s[%d:%d], s74 offen%s" % (vr(PR+4*(p % 14),4), SRD_W0, SRD_W0+3, SC), ("kp", p))
        k("s_add_u32 s74, s74, %d" % KVPS)
    for p in range(14): S(MK + 2*p, lambda p=p: kp(p), 2)
    for p in range(16):
        r = PR + 4*(p % 14)
        def red(p=p, r=r):
            k.wait(vm=("kp", p))
            for h in range(2): k("v_mfma_f32_16x16x32_bf16 %s, %s, %s, %s" % (vr(192+4*h,4), ar(120+4*h,4), vr(r,4), vr(192+4*h,4) if p else "0"))
            if p < 2: kp(14+p)
        S(MK + cfg.KLAT + (cfg.KL2 if p >= 14 else 0), red, 2)
    S(0, None, 10)
    for i in range(4): S(0, "v_cvt_pk_bf16_f32 v%d, v%d, v%d" % (PR+i, 192+2*i, 193+2*i))
    S(0, ("lg", "ds_write_b128 v10, %s" % vr(PR,4), "kw"))
    S(0, None, 8)
    def bar():
        k.wait(lg="all"); k("s_barrier"); stamp(k, 28)
    S(80, bar, 2)
    OA = 256 + 128
    for hd in range(2):
        for i in range(3):
            S(0, "v_lshl_add_u32 v15, v25, 4, v%d" % (18+hd*3+i))
            S(0, "v_cndmask_b32 v14, v30, v%d, s[78:79]" % (18+hd*3+i))
            S(0, ("lg", "ds_read_b128 %s, v15" % R(OA+hd*40+8*i,4), ("o", hd)))
            S(0, ("lg", "ds_read_b128 %s, v14 offset:64" % R(OA+hd*40+4+8*i,4), ("o", hd)))
        for r2 in range(2):
            S(0, ("lg", "ds_read_b128 %s, v9 offset:%d" % (R(OA+hd*40+24+8*r2,4), hd*10240 + r2*1280), ("o", hd)))
            S(0, ("lg", "ds_read_b128 %s, v8 offset:%d" % (R(OA+hd*40+28+8*r2,4), hd*10240 + r2*1280+64), ("o", hd)))
    KO = 200
    for hd in range(2):
        if hd: S(0, None, 4)
        def mm(hd=hd):
            k.wait(lg=("o", hd), vm="g")
            for s in range(2):
                for r2 in range(2):
                    for i in (2, 0, 1):
                        a = KO + (hd*2+r2)*12 + i*4
                        k("v_mfma_f32_16x16x32_bf16 %s, %s, %s, %s" % (vr(a,4), R(OA+hd*40+8*i+4*s,4), R(OA+hd*40+24+8*r2+4*s,4), vr(a,4) if s else "0"))
        S(0, mm, 2)
    for u in range(4): S(0, "v_add_f32 v%d, %s, v%d" % (KO+u*12+8, f32(1e-6), KO+u*12+8))
    for u in range(4): S(0, "v_rcp_f32 v%d, v%d" % (KO+u*12+8, KO+u*12+8), 2)
    for u in range(4): S(0, "v_mul_f32 v%d, v%d, v%d" % (KO+u*12+8, KO+u*12+8, 16+(u & 1)))
    for r2 in range(2):
        a0 = KO + r2*12; a1 = KO + (2+r2)*12
        for a in (a1, a0):
            for i in range(8): S(0, "v_mul_f32 v%d, v%d, v%d" % (a+i, a+i, a+8))
            for i in range(4): S(0, "v_cvt_pk_bf16_f32 v%d, v%d, v%d" % (a+8+i, a+2*i, a+2*i+1))
            if a == a1: S(0, ("vm", "buffer_store_dwordx4 %s, v13, s[%d:%d], s73 offen offset:%d%s" % (vr(a1+8,4), SRD_O, SRD_O+3, r2*1024, SC), "st"))
        S(0, "v_cndmask_b32 v%d, v%d, v%d, s[76:77]" % (a0+10, a0+10, a1+8))
        S(0, "v_cndmask_b32 v%d, v%d, v%d, s[76:77]" % (a0+11, a0+11, a1+9))
        S(0, ("vm", "buffer_store_dwordx4 %s, v12, s[%d:%d], s73 offen offset:%d%s" % (vr(a0+8,4), SRD_O, SRD_O+3, r2*1024, SC), "st"))
    S(0, lambda: stamp(k, 29), 0)
    S(0, None, cfg.OSD)
    def osig():
        k.wait(vm="st")
        k("s_add_u32 s82, s%d, %d" % (S_OMT, C_O)); k("s_lshl_b32 s82, s82, 7")
        signal(k, S_CNT, "s82")
        stamp(k, 12)
    S(0, osig, 2)
    m = 0; credit = 0
    for i in range(14):
        for tt in range(4):
            k.wait(vm=("A", i, tt))
            for ct in range(5):
                a = A0 + (ct*4+tt)*4
                k("v_mfma_f32_16x16x32_bf16 %s, %s, %s, %s" % (vr(a,4), R(bloc(i*5+ct),4), vr(af(i)+4*tt,4), vr(a,4) if i else "0"))
                m += 1
                credit = min(credit, 0) + cfg.PER
                if ct == 4:
                    if i + DA < 14: a_load(i + DA, tt)
                    credit -= 2
                while side and side[0][0] <= m and credit > 0:
                    _, c, it = side.pop(0)
                    if it is not None: emit1(k, it)
                    credit -= c
    stamp(k, 13)
    for _, c, it in side:
        if it is not None: emit1(k, it)
    stamp(k, 27)
    k("s_lshr_b32 s82, s%d, 1" % S_M64); k("s_add_u32 s82, s82, %d" % C_O); k("s_lshl_b32 s82, s82, 7")
    labs = [k.newlabel("Lred") for _ in range(5)]
    k("v_add_u32 v7, %d, v%d" % (RED, V_L16))
    k("s_mul_i32 s81, s%d, 15360" % S_W)
    k("v_add_u32 v8, s81, v7")
    for w in range(1, 4):
        k("s_cmp_eq_u32 s%d, %d" % (S_W, w)); k("s_cbranch_scc1 %s" % labs[w])
    AO = 192
    for w in range(4):
        if w: k.label(labs[w]); k("s_nop 7")
        for tt in range(4):
            if tt == w: continue
            slot = w if w < tt else w - 1
            for ct in range(5): k("ds_write_b128 v7, %s offset:%d" % (vr(A0+(ct*4+tt)*4,4), (tt*15 + slot*5 + ct)*1024))
        for ct in range(5):
            for h in range(2): k("v_pk_mul_f32 %s, %s, 1.0 op_sel_hi:[1,0]" % (vr(AO+ct*4+2*h,2), vr(A0+(ct*4+w)*4+2*h,2)))
        if w < 3: k("s_branch %s" % labs[4])
    k.label(labs[4])
    poll_issue(k, S_CNT, "s82", "o_ok")
    k("v_add_u32 v9, 51200, v%d" % V_L16)
    k("s_waitcnt lgkmcnt(0)")
    k("s_barrier")
    for j in range(15): k.lg("ds_read_b128 %s, v8 offset:%d" % (vr(A0+4*j,4), j*1024), ("r", j // 5))
    srd(k, SRD_O, P_OUT, 0, 2048*1280)
    k("s_lshl_b32 s81, s%d, 6" % S_M64); k("s_lshl_b32 s75, s%d, 4" % S_W); k("s_add_u32 s81, s81, s75")
    k("s_mul_i32 s81, s81, 1280"); k("s_mul_i32 s75, s%d, 160" % S_NT); k("s_add_u32 s81, s81, s75")
    k("v_mul_u32_u24 v16, 1280, v24"); k("v_lshl_add_u32 v16, v25, 3, v16")
    k("v_sub_f32 v10, 1.0, v5")
    def bo_read(n):
        off = n*1024
        return ("lg", "ds_read_b128 %s, v%d offset:%d" % (R(256 + (n % 60)*4, 4), V_L16 if off < 51200 else 9, off % 51200), ("bo", n // 5))
    nr = 0
    for sl in range(3):
        k.wait(lg=("r", sl))
        weave(k, [], [bo_read(n) for n in range(nr, nr+5)]); nr += 5
        for ct in range(5):
            for h in range(2): k("v_pk_add_f32 %s, %s, %s" % (vr(AO+ct*4+2*h,2), vr(AO+ct*4+2*h,2), vr(A0+(sl*5+ct)*4+2*h,2)))
    poll_check(k, S_CNT, 16, "o_ok")
    stamp(k, 14)
    def of(ks): return 32 + 4*ks if ks < 8 else 144 + 4*(ks-8)
    k("s_lshl_b32 s80, s%d, 10" % S_W)
    fa = Feed(k, [("s_add_u32 s80, s80, 4096" if ks else None, "buffer_load_dwordx4 %s, v%d, s[%d:%d], s80 offen%s" % (vr(of(ks),4), V_L16, SRD_X, SRD_X+3, SC), ("Ao", ks)) for ks in range(20)])
    fa.emit(10)
    for j in range(10): k("v_pk_mul_f32 %s, %s, v[10:11] op_sel_hi:[1,0]" % (vr(AO+2*j,2), vr(AO+2*j,2)))
    while nr < 55:
        weave(k, [], [bo_read(n) for n in range(nr, nr+5)]); nr += 5
        fa.emit(1)
    for ks in range(20):
        k.wait(vm=("Ao", ks), lg=("bo", ks))
        mf = ["v_mfma_f32_16x16x32_bf16 %s, %s, %s, %s" % (vr(AO+ct*4,4), R(256 + ((ks*5+ct) % 60)*4, 4), vr(of(ks),4), vr(AO+ct*4,4)) for ct in range(5)]
        fill = [bo_read(n) for n in range(nr, min(100, nr+5))]; nr += len(fill)
        weave(k, mf, fill, per=1)
        fa.emit(1)
    for ct in range(5):
        a = AO + ct*4
        k("v_cvt_pk_bf16_f32 v%d, v%d, v%d" % (64+2*ct, a, a+1)); k("v_cvt_pk_bf16_f32 v%d, v%d, v%d" % (65+2*ct, a+2, a+3))
        k.vm("buffer_store_dwordx2 %s, v16, s[%d:%d], s81 offen offset:%d" % (vr(64+2*ct,2), SRD_O, SRD_O+3, ct*32), "st")
    stamp(k, 30)
    stamp_out(k)

def kernel(k):
    kernel_header(k, NAME)
    k("s_load_dwordx16 s[8:23], s[0:1], 0")
    k("s_load_dwordx8 s[24:31], s[0:1], 64")
    k("s_cmp_ge_u32 s2, 256")
    k("s_cbranch_scc1 L_end")
    code_prefetch(k, V_JUNK)
    k("v_lshrrev_b32 v2, 6, v0")
    k("v_and_b32 v0, 63, v0")
    k("v_readfirstlane_b32 s%d, v2" % S_W)
    if cfg.STAMP: k("v_mov_b32 v1, 0")
    stamp(k, 0)
    k("s_bfe_u32 s%d, s2, 0x40003" % S_MT)
    k("s_and_b32 s%d, s2, 7" % S_T0)
    k("s_lshl_b32 s%d, s%d, 3" % (S_T0, S_T0))
    k("s_bfe_u32 s%d, s2, 0x10007" % S_T1)
    k("s_lshl_b32 s%d, s%d, 2" % (S_T1, S_T1))
    k("s_add_u32 s%d, s%d, s%d" % (S_T0, S_T0, S_T1))
    tab = cfg.ORDER
    k("s_mov_b32 s74, 0x%x" % sum(tab[i] << (4*i) for i in range(8))); k("s_mov_b32 s75, 0x%x" % sum(tab[8+i] << (4*i) for i in range(8)))
    k("s_lshr_b64 s[74:75], s[74:75], s%d" % S_T0)
    k("s_and_b32 s%d, s74, 15" % S_TY)
    k("s_and_b32 s%d, s%d, 1" % (S_RH, S_W))
    k("s_lshr_b32 s%d, s%d, 1" % (S_C, S_W))
    k("v_lshlrev_b32 v%d, 4, v0" % V_L16)
    k("s_cmp_ge_u32 s%d, 15" % S_TY); k("s_cbranch_scc1 L_aux")
    k("s_cmp_ge_u32 s%d, 13" % S_TY)
    k("s_cselect_b32 s%d, 13, 9" % S_T0)
    k("s_cselect_b32 s75, 0, 1280")
    k("s_cselect_b32 s76, 0, 640")
    k("s_add_u32 s76, s76, 640")
    k("s_sub_u32 s79, s%d, s%d" % (S_TY, S_T0))
    k("s_mul_i32 s%d, s79, 320" % S_T1)
    k("s_and_b32 s%d, s%d, 127" % (S_DELTA, S_T1))
    k("s_sub_u32 s%d, s%d, s%d" % (S_T1, S_T1, S_DELTA))
    k("s_add_u32 s75, s75, s%d" % S_T1)
    k("s_add_u32 s76, s76, s75")
    k("s_mul_i32 s%d, s%d, 384" % (S_T1, S_TY))
    k("s_mov_b32 s%d, 3840" % S_STRIDE)
    k("s_cmp_lt_u32 s%d, 9" % S_TY)
    k("s_cselect_b32 s75, s%d, s75" % S_T1)
    k("s_cselect_b32 s76, s%d, s76" % S_T1)
    k("s_cselect_b32 s%d, 3456, s%d" % (S_STRIDE, S_STRIDE))
    k("s_mul_i32 s%d, s%d, 640" % (S_T1, S_STRIDE))
    k("s_sub_u32 s77, s%d, s75" % S_T1)
    k("s_sub_u32 s78, s%d, s76" % S_T1)
    gemm_setup(k)
    k("s_mul_i32 s%d, s%d, %d" % (S_T0, S_MT, 128*1280))
    k("s_waitcnt lgkmcnt(0)")
    k("s_cmp_lt_u32 s%d, 9" % S_TY)
    k("s_cselect_b64 s[16:17], s[%d:%d], s[%d:%d]" % (P_WG, P_WG+1, P_WQKV, P_WQKV+1))
    k("s_cselect_b64 s[%d:%d], s[%d:%d], s[%d:%d]" % (P_WU, P_WU+1, P_WU, P_WU+1, P_WQKV, P_WQKV+1))
    srd(k, SRD_X, P_X, 0, 128*1280, S_T0)
    stamp(k, 1)
    Q = dma_queue()
    issue_now(k, Q, 4)
    srd(k, SRD_W0, 16, 0, "s77", 75)
    srd(k, SRD_W1, P_WU, 0, "s78", 76)
    issue_now(k, Q, 6)
    touch_setup(k)
    for it in touch_items(-1):
        if it[0]: k(it[0])
        k.vm(it[1], it[2])
    sv0 = list(k.vmq)
    k("s_cmp_ge_u32 s%d, 9" % S_TY); k("s_cbranch_scc1 L_att")
    ffn_role(k, Q)
    k("s_branch L_tail")
    k.label("L_att")
    k("s_lshl_b32 s79, s79, 1")
    k("s_add_u32 s79, s79, s%d" % S_C)
    k("s_mul_i32 s80, s79, 3200")
    k("s_add_u32 s81, s80, 12800")
    k("s_mov_b32 s82, 0x100000")
    srd(k, SRD_P, P_WPHI, 0, 25600)
    k("s_cmp_ge_u32 s%d, 13" % S_TY); k("s_cbranch_scc1 L_q")
    k.flush_counters(); k.vmq = list(sv0)
    kv_role(k, Q)
    k("s_branch L_tail")
    k.label("L_q")
    k.flush_counters(); k.vmq = list(sv0)
    q_role(k, Q)
    k("s_branch L_tail")
    k.flush_counters()
    k.label("L_aux")
    aux_role(k)
    k.label("L_tail")
    tail(k)
    k.label("L_end")
    k("s_endpgm")

def build(fn, listform=True):
    k = K()
    k.raw(open("header.txt").read().rstrip())
    if listform: k.raw("; @launch kernel=%s grid=(256,1,1) block=(256,1,1) lds=163840" % NAME)
    else: k.raw("; @launch grid=(256,1,1) block=(256,1,1) lds=163840")
    k.raw('.amdgcn_target "amdgcn-amd-amdhsa--gfx950"')
    k.raw(".text")
    kernel(k)
    k.raw('.section .rodata,"a"')
    k.raw(kernel_desc(NAME, 512, 256))
    open(fn, "w").write(k.text())

if __name__ == "__main__":
    for a in sys.argv[2:]:
        if "=" in a:
            n, v = a.split("="); setattr(cfg, n, eval(v))
    build(sys.argv[1], listform="single" not in sys.argv)
```

```python
import sys
from fw import *

A2_OFF = 0;          A2_SZ = 32*74*4096
B2_OFF = 0xA00000;   B2_SZ = 8*74*5120
PQ_OFF = 0xD00000;   PQ_SZ = 32*2048*40
KVP_OFF = 0x1000000; KVPS = 3584; KVP_SZ = 16*16*KVPS
G_OFF = 0x1200000;   G_SZ = 8192
CNT_OFF = 0x1300000
ST_OFF = 0x1400000
LOG2E = 1.4426950408889634
NAME = "gated_mix__linear_kernel_hedgehog__swiglu_ffn__prompt_kernel"

class Cfg:
    STAMP = 0; STG = 0
    MAXD = 11; N2 = 6; N3 = 10
    P2M = 4
    TW = [(-1,1,5),(0,6,6),(3,12,8)]
    TX = [(-1,1,2),(0,3,3),(3,6,4)]
    ORDER = [0, 9, 1, 10, 2, 11, 3, 12, 4, 13, 5, 14, 6, 7, 8, 15]
    PS1 = 16
    NBF = 40
    NBA = 32
    AUXT = 6
    AUXD = 3
    FFE = (4, 10)
    MK = 30
    KLAT = 50
    PER = 2
    DBGWG = -1
    PADST = None
    PADMIN = 0
    EARLY0 = 0
    KL2 = 40
    OSD = 50
cfg = Cfg()
SC = " sc1"

P_X, P_WQKV, P_WPHI, P_WO, P_WG, P_WU, P_WD, P_GW, P_OUT, P_DBG, P_WS = 8, 10, 12, 14, 18, 20, 22, 24, 26, 28, 30
S_W, S_RH, S_C, S_MT, S_TY, S_M64, S_NT, S_OH = 32, 33, 34, 35, 36, 37, 38, 39
SRD_X, SRD_W0, SRD_W1, SRD_O, SRD_P = 40, 44, 48, 52, 56
S_STRIDE, S_WOFF, S_WL, S_XL, S_T0, S_T1, S_T2, S_T3, S_DELTA, S_SIG = 60, 61, 62, 63, 64, 65, 66, 67, 68, 69
S_C2 = 70
S_OMT = 83; SRD_B = 84; S_BOFF = 88; S_BB = 89; S_CNT = 90; SRD_T = 96
V_L16, V_L16B, V_PT = 2, 3, 4
V_WD = 5; V_XD = 6; V_XR = 10; V_TA = 12; V_TW = 24; V_TX = 25; V_JUNK = 63
ACC0 = 64
WF0 = 256; XF0 = 256 + 96; GF0 = 256 + 88; GACC = 224
C_H, C_K, C_Q, C_O = 0, 16, 20, 36
SPARE = 147456
D_S1, D_S2, D_S3 = 0, 64, 128

def srd(k, d, b, off, nbytes, soff=None):
    if off or soff is not None:
        if soff is not None:
            k("s_add_u32 s%d, s%d, s%d" % (d, b, soff)); k("s_addc_u32 s%d, s%d, 0" % (d+1, b+1))
            if off:
                k("s_add_u32 s%d, s%d, 0x%x" % (d, d, off)); k("s_addc_u32 s%d, s%d, 0" % (d+1, d+1))
        else:
            k("s_add_u32 s%d, s%d, 0x%x" % (d, b, off)); k("s_addc_u32 s%d, s%d, 0" % (d+1, b+1))
        k("s_and_b32 s%d, s%d, 0xffff" % (d+1, d+1))
    else:
        k("s_mov_b32 s%d, s%d" % (d, b)); k("s_and_b32 s%d, s%d, 0xffff" % (d+1, b+1))
    if isinstance(nbytes, int): k("s_mov_b32 s%d, 0x%x" % (d+2, nbytes))
    else: k("s_mov_b32 s%d, %s" % (d+2, nbytes))
    k("s_mov_b32 s%d, 0x20000" % (d+3))

def stamp(k, i):
    if not cfg.STAMP: return
    k("s_memrealtime s[92:93]")
    k("s_waitcnt lgkmcnt(0)")
    k.lgq = []
    k("v_writelane_b32 v1, s92, %d" % i)
def stamp_out(k):
    if not cfg.STAMP: return
    k("s_waitcnt vmcnt(0)")
    stamp(k, 15)
    k("v_writelane_b32 v1, s%d, 16" % S_TY)
    srd(k, 40, P_WS, ST_OFF, 1024*128)
    k("s_lshl_b32 s92, s2, 2"); k("s_add_u32 s92, s92, s%d" % S_W); k("s_lshl_b32 s92, s92, 7")
    k("v_lshlrev_b32 v5, 2, v0")
    k("v_cmp_gt_u32 vcc, 32, v0")
    k("v_mov_b32 v6, 0x7fffffff")
    k("v_cndmask_b32 v5, v6, v5, vcc")
    k("buffer_store_dword v1, v5, s[40:43], s92 offen")
    if cfg.PADST is not None:
        k("v_readlane_b32 s94, v1, %d" % abs(cfg.PADST))
        k("v_readlane_b32 s95, v1, 0")
        k("s_max_u32 s94, s94, s95")
        if cfg.PADMIN:
            k("s_not_b32 s95, s94")
            k("v_mov_b32 v7, s95"); k("v_mov_b32 v8, 192")
            k("s_cmp_eq_u32 s%d, 0" % S_W)
            k("s_cselect_b64 exec, 1, 0")
            k("s_cbranch_execz Lnoat")
            k("global_atomic_umax v8, v7, s[%d:%d] sc1" % (P_DBG, P_DBG+1))
            k.label("Lnoat")
            k("s_mov_b64 exec, -1")
            k("s_add_u32 s94, s94, 4500")
            k.label("Lpad0")
            k("s_sleep 4")
            k("s_memrealtime s[96:97]")
            k("s_waitcnt lgkmcnt(0)")
            k("s_sub_u32 s98, s96, s94")
            k("s_cmp_lt_i32 s98, 0")
            k("s_cbranch_scc1 Lpad0")
            k("global_load_dword v7, v8, s[%d:%d] sc1" % (P_DBG, P_DBG+1))
            k("s_waitcnt vmcnt(0)")
            k("v_readfirstlane_b32 s94, v7")
            k("s_not_b32 s94, s94")
        k("s_add_u32 s94, s94, 6000")
        k.label("Lpad")
        k("s_sleep 4")
        k("s_memrealtime s[96:97]")
        k("s_waitcnt lgkmcnt(0)")
        k("s_sub_u32 s98, s96, s94")
        k("s_cmp_lt_i32 s98, 0")
        k("s_cbranch_scc1 Lpad")
    if cfg.DBGWG >= 0:
        k("s_cmp_eq_u32 s92, %d" % (cfg.DBGWG*512))
        k("s_cselect_b32 s93, 64, 0")
        srd(k, 44, P_DBG, 0, "s93")
        k("v_readlane_b32 s93, v1, 0")
        k("v_subrev_u32 v7, s93, v1")
        k("v_cmp_lt_u32 vcc, 0, v0")
        k("v_cndmask_b32 v5, v6, v5, vcc")
        k("buffer_store_dword v7, v5, s[44:47], 0 offen")

def code_prefetch(k, vt):
    k("s_getpc_b64 s[72:73]")
    l = k.newlabel("Lpc"); k.label(l)
    k("s_lshr_b32 s74, s2, 3")
    k("s_lshl_b32 s74, s74, 7")
    k("v_and_b32 v%d, 31, v0" % vt)
    k("v_lshlrev_b32 v%d, 12, v%d" % (vt, vt))
    k("v_add_u32 v%d, s74, v%d" % (vt, vt))
    k("v_min_u32 v%d, L_end-%s-4, v%d" % (vt, l, vt))
    k.vm("global_load_dword v%d, v%d, s[72:73]" % (vt, vt), "pf")

def poll_issue(k, base, off, tag):
    k("v_mov_b32 v%d, %s" % (V_PT, off))
    k.vm("global_load_dword v31, v%d, s[%d:%d] sc1" % (V_PT, base, base+1), tag)
def poll_check(k, base, target, tag, sleep=4):
    l = k.newlabel("Lpoll"); d = k.newlabel("Lpd")
    k.wait(vm=tag)
    k("v_readfirstlane_b32 s94, v31")
    k("s_mov_b32 s95, 0x8000")
    k("s_cmp_ge_u32 s94, %d" % target)
    k("s_cbranch_scc1 %s" % d)
    k.label(l)
    k("s_sleep %d" % sleep)
    k("global_load_dword v31, v%d, s[%d:%d] sc1" % (V_PT, base, base+1))
    k("s_waitcnt vmcnt(0)")
    k("v_readfirstlane_b32 s94, v31")
    k("s_sub_u32 s95, s95, 1")
    k("s_cmp_ge_u32 s94, %d" % target)
    k("s_cbranch_scc1 %s" % d)
    k("s_cmp_lg_u32 s95, 0")
    k("s_cbranch_scc1 %s" % l)
    k.label(d)
def signal(k, base, off):
    d = k.newlabel("Lsg")
    k("s_barrier")
    k("s_cmp_lg_u32 s%d, 0" % S_W)
    k("s_cbranch_scc1 %s" % d)
    k("v_mov_b32 v%d, %s" % (V_PT, off))
    k("v_mov_b32 v31, 1")
    k("s_mov_b64 exec, 1")
    k("global_atomic_add v%d, v31, s[%d:%d] sc1" % (V_PT, base, base+1))
    k("s_mov_b64 exec, -1")
    k.label(d)

def bloc(n):
    if n < 32: return 256 + 128 + 4*n
    if n < 40: return 32 + 4*(n-32)
    return 256 + 4*(n-40)
def b_items(frs):
    out = []; cur = None
    for n in frs:
        st, ct = divmod(n, 5)
        pre = None
        if st != cur: pre = "s_add_u32 s%d, s%d, %d" % (S_BOFF, S_BB, (20 + 4*st)*5120); cur = st
        if ct < 4: t = "buffer_load_dwordx4 %s, v%d, s[%d:%d], s%d offen offset:%d%s" % (R(bloc(n),4), V_L16, SRD_B, SRD_B+3, S_BOFF, ct*1024, SC)
        else: t = "buffer_load_dwordx4 %s, v%d, s[%d:%d], s%d offen%s" % (R(bloc(n),4), V_L16B, SRD_B, SRD_B+3, S_BOFF, SC)
        out.append((pre, t, "B"))
    return out
def bo_items():
    out = []
    for i in range(5):
        for ct in range(5):
            pre = "s_add_u32 m0, s%d, %d" % (S_BB, i*20480 + (4096 if ct == 4 else 0))
            if ct == 0: pre = "s_add_u32 s100, s%d, %d\n" % (S_BB, i*20480) + pre
            if ct < 4: t = "buffer_load_dwordx4 v%d, s[%d:%d], s100 offen offset:%d%s lds" % (V_L16, SRD_B, SRD_B+3, ct*1024, SC)
            else: t = "buffer_load_dwordx4 v%d, s[%d:%d], s100 offen%s lds" % (V_L16B, SRD_B, SRD_B+3, SC)
            out.append((pre, t, "BO"))
    return out
class Feed:
    def __init__(self, k, items): self.k = k; self.q = list(items)
    def emit(self, n=1):
        while self.q and n > 0:
            pre, t, tag = self.q.pop(0)
            if pre: self.k(pre)
            self.k.vm(t, tag); n -= 1
    def drain(self): self.emit(10**6)
def emit1(k, f):
    if callable(f): f()
    elif isinstance(f, tuple): (k.lg if f[0] == "lg" else k.vm)(f[1], f[2])
    else: k(f)
def weave(k, mf, fill, per=2):
    fill = list(fill)
    for m in mf:
        k(m)
        for _ in range(per):
            if fill: emit1(k, fill.pop(0))
    for f in fill: emit1(k, f)

WSLOT = 24576; RW = 4; XBASE = RW*WSLOT; XSLOT = 16384; RX = 3

def gemm_setup(k):
    k("v_lshrrev_b32 v28, 3, v0")
    k("v_and_b32 v29, 7, v0")
    k("v_bfe_u32 v26, v28, 1, 1")
    k("s_lshl_b32 s%d, s%d, 1" % (S_T0, S_RH))
    k("v_or_b32 v26, s%d, v26" % S_T0)
    k("v_lshlrev_b32 v26, 1, v26")
    k("v_xor_b32 v26, v26, v29")
    k("s_lshl_b32 s%d, s%d, 3" % (S_T0, S_W))
    k("v_add_u32 v27, s%d, v28" % S_T0)
    k("v_mul_lo_u32 v27, v27, s%d" % S_STRIDE)
    k("v_lshl_add_u32 v%d, v26, 4, v27" % V_WD)
    k("s_lshl_b32 s%d, s%d, 5" % (S_T0, S_W))
    k("v_lshrrev_b32 v26, 1, v28")
    k("v_xor_b32 v27, v26, v29")
    k("v_add_u32 v26, s%d, v28" % S_T0)
    k("v_mul_u32_u24 v26, 1280, v26")
    k("v_lshl_add_u32 v%d, v27, 4, v26" % V_XD)
    k("v_xor_b32 v%d, 64, v%d" % (V_XD+1, V_XD))
    k("v_add_u32 v%d, %d, v%d" % (V_XD+1, 8*1280, V_XD+1))
    k("v_add_u32 v%d, %d, v%d" % (V_XD+2, 16*1280, V_XD))
    k("v_add_u32 v%d, %d, v%d" % (V_XD+3, 16*1280, V_XD+1))
    k("s_mul_i32 s%d, s%d, 6144" % (S_WL, S_W))
    k("s_lshl_b32 s%d, s%d, 12" % (S_XL, S_W))
    k("s_add_u32 s%d, s%d, %d" % (S_XL, S_XL, XBASE))
    k("s_mov_b32 s%d, 0" % S_WOFF)
    k("s_lshl_b32 s%d, s%d, 5" % (S_T3, S_STRIDE))

def touch_setup(k):
    k("v_lshrrev_b32 v26, 2, v0")
    k("v_and_b32 v27, 3, v0")
    k("s_lshl_b32 s%d, s%d, 1" % (S_T0, S_MT))
    k("s_add_u32 s%d, s%d, s%d" % (S_T0, S_T0, S_C))
    k("v_lshlrev_b32 v28, 5, v26")
    k("v_add_u32 v28, s%d, v28" % S_T0)
    k("v_mul_lo_u32 v28, v28, s%d" % S_STRIDE)
    k("v_min_u32 v29, 2, v27")
    k("v_lshl_add_u32 v%d, v29, 7, v28" % V_TW)
    k("s_lshl_b32 s%d, s%d, 4" % (S_T0, S_TY))
    k("s_lshl_b32 s%d, s%d, 2" % (S_T1, S_W))
    k("s_add_u32 s%d, s%d, s%d" % (S_T0, S_T0, S_T1))
    k("v_add_u32 v27, s%d, v27" % S_T0)
    k("v_mul_u32_u24 v27, 1280, v27")
    k("v_lshl_add_u32 v%d, v26, 7, v27" % V_TX)
    k("s_cmp_eq_u32 s%d, 0" % S_RH)
    for i in range(3): k("s_cselect_b32 s%d, s%d, s%d" % (SRD_T+i, SRD_W0+i, SRD_W1+i))
    k("s_mov_b32 s%d, 0x20000" % (SRD_T+3))
def masked(n, t):
    if n >= 16: return t
    return "s_bfm_b64 exec, %d, 0\n%s\ns_mov_b64 exec, -1" % (4*n, t)
def touch_items(stage):
    out = []
    for (st, first, n) in cfg.TW:
        if st == stage:
            out.append(("s_mul_i32 s101, s%d, %d" % (S_STRIDE, 32*first), masked(n, "buffer_load_dword v%d, v%d, s[%d:%d], s101 offen nt" % (V_JUNK, V_TW, SRD_T, SRD_T+3)), "pf"))
    for (st, first, n) in cfg.TX:
        if st == stage:
            out.append((None, masked(n, "buffer_load_dword v%d, v%d, s[%d:%d], 0 offen offset:%d" % (V_JUNK, V_TX, SRD_X, SRD_X+3, first*128)), "pf"))
    return out

def gemm_setup2(k, att):
    npt = 5 if att else 6
    k("v_and_b32 v54, 15, v0")
    k("v_lshrrev_b32 v55, 4, v0")
    k("v_bfe_u32 v26, v54, 1, 3")
    k("v_xor_b32 v26, v26, v55")
    k("s_lshl_b32 s%d, s%d, 13" % (S_T0, S_RH))
    k("s_add_u32 s%d, s%d, %d" % (S_T0, S_T0, XBASE))
    k("v_lshlrev_b32 v27, 7, v54")
    k("v_add_u32 v27, s%d, v27" % S_T0)
    k("v_lshl_add_u32 v%d, v26, 4, v27" % V_XR)
    k("v_xor_b32 v%d, 64, v%d" % (V_XR+1, V_XR))
    k("v_bfe_u32 v26, v0, 2, 2")
    k("v_and_b32 v27, 3, v0")
    k("v_lshrrev_b32 v28, 1, v26")
    k("v_and_b32 v29, 1, v55")
    k("v_lshl_or_b32 v28, v29, 1, v28")
    k("v_lshlrev_b32 v28, 5, v28")
    k("v_mul_u32_u24 v29, 6144, v55")
    k("v_lshl_add_u32 v29, v26, 7, v29")
    if att:
        k("s_mul_i32 s%d, s%d, 160" % (S_T0, S_C))
        k("s_add_u32 s%d, s%d, s%d" % (S_T0, S_T0, S_DELTA))
        k("v_mul_u32_u24 v27, 40, v27")
    else:
        k("s_mul_i32 s%d, s%d, 192" % (S_T0, S_C))
        k("v_lshlrev_b32 v27, 3, v27")
    k("v_add_u32 v27, s%d, v27" % S_T0)
    for p in range(npt):
        k("v_add_u32 v30, %d, v27" % (p * (8 if att else 32)))
        k("v_lshrrev_b32 v31, 7, v30")
        k("v_and_b32 v30, 127, v30")
        k("v_xor_b32 v30, v30, v28")
        k("v_lshl_add_u32 v31, v31, 10, v29")
        k("v_add_u32 v%d, v30, v31" % (V_TA+p))
        k("v_add_u32 v%d, %d, v%d" % (V_TA+6+p, 2*WSLOT, V_TA+p))

def w_dma(s):
    return [("s_add_u32 m0, s%d, %d" % (S_WL, (s % RW)*WSLOT + (seg*3+lc)*1024 - lc*128),
             "buffer_load_dwordx4 v%d, s[%d:%d], s%d offen offset:%d lds" % (V_WD, SRD_W0+4*seg, SRD_W0+4*seg+3, S_WOFF, lc*128), ("W", s))
            for seg in range(2) for lc in range(3)]
def x_dma(u, i):
    return ("s_add_u32 m0, s%d, %d" % (S_XL, (u % RX)*XSLOT + i*1024 - u*128),
            "buffer_load_dwordx4 v%d, s[%d:%d], 0 offen offset:%d lds" % (V_XD+i, SRD_X, SRD_X+3, u*128), ("X", u))
def reads_for(s, npt):
    out = []; b = s & 1
    for rt in range(4):
        out.append("ds_read_b128 %s, v%d offset:%d" % (R(XF0 + (b*4+rt)*4, 4), V_XR + (s & 1), ((s >> 1) % RX)*XSLOT + rt*2048))
    slot = s % RW
    for p in range(npt):
        for seg in range(2):
            for h in range(2):
                out.append("ds_read_b64_tr_b16 %s, v%d offset:%d" % (R(WF0 + (b*12+p*2+seg)*4 + 2*h, 2), V_TA + p + (6 if slot >= 2 else 0), (slot & 1)*WSLOT + seg*3072 + h*512))
    return out
def acc(p, seg, rt): return ACC0 + ((p*2+seg)*4 + rt)*4

def late_setup_items():
    k = K()
    k("s_and_b32 s%d, s2, 7" % S_T1)
    k("s_lshr_b32 s%d, s2, 3" % S_OH)
    if cfg.P2M == 4:
        k("s_lshl_b32 s%d, s%d, 2" % (S_M64, S_T1)); k("s_and_b32 s%d, s%d, 3" % (S_T0, S_OH)); k("s_add_u32 s%d, s%d, s%d" % (S_M64, S_M64, S_T0))
        k("s_lshr_b32 s%d, s%d, 2" % (S_NT, S_OH))
    else:
        k("s_lshr_b32 s%d, s%d, 1" % (S_M64, S_T1)); k("s_lshl_b32 s%d, s%d, 3" % (S_M64, S_M64)); k("s_and_b32 s%d, s%d, 7" % (S_T0, S_OH)); k("s_add_u32 s%d, s%d, s%d" % (S_M64, S_M64, S_T0))
        k("s_and_b32 s%d, s%d, 1" % (S_NT, S_T1)); k("s_lshl_b32 s%d, s%d, 2" % (S_NT, S_NT)); k("s_lshr_b32 s%d, s%d, 3" % (S_T0, S_OH)); k("s_add_u32 s%d, s%d, s%d" % (S_NT, S_NT, S_T0))
    k("s_lshr_b32 s%d, s%d, 1" % (S_OMT, S_OH))
    k("s_and_b32 s%d, s%d, 1" % (S_OH, S_OH)); k("s_lshl_b32 s%d, s%d, 1" % (S_T0, S_T1)); k("s_add_u32 s%d, s%d, s%d" % (S_OH, S_OH, S_T0))
    k("s_mul_i32 s%d, s%d, %d" % (S_T0, S_NT, 74*5120))
    srd(k, SRD_B, P_WS, B2_OFF, 74*5120, S_T0)
    k("s_mul_i32 s%d, s%d, 5120" % (S_BB, S_W))
    k("s_add_u32 s%d, s%d, 0x%x" % (S_CNT, P_WS, CNT_OFF))
    k("s_addc_u32 s%d, s%d, 0" % (S_CNT+1, P_WS+1))
    k("v_add_u32 v%d, 4096, v%d" % (V_L16B, V_L16))
    k("s_mov_b32 s%d, %s" % (S_C2, f32(LOG2E))); k("s_mov_b32 s%d, %s" % (S_C2+1, f32(LOG2E)))
    return [t for _, t in k.items]

def dma_queue():
    Q = []
    for st in range(20):
        if st % 2 == 0:
            u = st // 2
            for i in range(4): Q.append((-1 if u < RX else 2*(u-RX)+1, x_dma(u, i), False))
        it = w_dma(st)
        for i, d in enumerate(it): Q.append((-1 if st < RW else st-RW, d, i == len(it)-1))
    return Q
def wadv(k): k("s_add_u32 s%d, s%d, s%d" % (S_WOFF, S_WOFF, S_T3))
def issue_now(k, Q, n):
    for _ in range(n):
        av, it, last = Q.pop(0)
        k(it[0]); k.vm(it[1], it[2])
        if last: wadv(k)

def spread(items, s0, s1):
    out = {}; n = len(items); i = 0
    for s in range(s0, s1):
        c = -(-(n - i) // (s1 - s)); out[s] = items[i:i+c]; i += c
    return out

def gemm_main(k, att, gate, Q, extra, polls, xrd=None, xwait=None, xsetup=None):
    npt = 5 if att else 6
    Q = list(Q)
    if gate:
        for i in range(2):
            k("s_add_u32 m0, s%d, %d" % (S_XL, SPARE - XBASE))
            k.vm("buffer_load_dwordx4 v%d, s[%d:%d], 0 offen offset:%d lds" % (V_L16, SRD_O, SRD_O+3, i*1024), ("W", 0))
    issue_now(k, Q, cfg.N2)
    gemm_setup2(k, att)
    if gate:
        k("s_add_u32 s%d, s%d, %d" % (S_T0, S_XL, SPARE - XBASE))
        k("v_lshrrev_b32 v17, 4, v0")
        k("v_lshlrev_b32 v17, 4, v17")
        k("v_add_u32 v17, s%d, v17" % S_T0)
    for t in late_setup_items(): k(t)
    if xsetup: xsetup(k)
    def rds(s):
        r = reads_for(s, npt)
        if gate: r.append("ds_read_b128 %s, v17 offset:%d" % (R(GF0 + (s & 1)*4, 4), s*64))
        return r
    stamp(k, 2)
    k.wait(vm=[("X", 0), ("W", 0)])
    k("s_barrier")
    stamp(k, 3)
    for r in rds(0): k.lg(r)
    issue_now(k, Q, cfg.N3)
    k.wait(vm=[("W", 1)], lg="all")
    k("s_barrier")
    for s in range(20):
        b = s & 1
        rd = rds(s+1) if s < 19 else []
        if xrd and s in xrd: rd += xrd[s]
        dm = []
        while Q and Q[0][0] <= s and len(dm) < cfg.MAXD: dm.append(Q.pop(0))
        ex = [(0, e, False) for e in extra.get(s, []) + touch_items(s)]
        mix = []
        while dm or ex:
            if dm: mix.append(dm.pop(0))
            if ex and len(ex) >= len(dm): mix.append(ex.pop(0))
        dm = mix
        mf = []
        for p in range(npt):
            for seg in range(2):
                for rt in range(4):
                    a = acc(p, seg, rt)
                    mf.append("v_mfma_f32_16x16x32_bf16 %s, %s, %s, %s" % (R(a,4), R(WF0 + (b*12+p*2+seg)*4, 4), R(XF0 + (b*4+rt)*4, 4), R(a,4) if s else "0"))
        if gate:
            for rt in range(4):
                a = GACC + rt*4
                mf.append("v_mfma_f32_16x16x32_bf16 %s, %s, %s, %s" % (R(a,4), R(GF0 + b*4, 4), R(XF0 + (b*4+rt)*4, 4), R(a,4) if s else "0"))
        nm = len(mf); nd = len(dm)
        at = [int(i * (nm - 3) / max(nd, 1)) for i in range(nd)]
        for i in range(1, nd): at[i] = max(at[i], at[i-1] + 2)
        pend = None
        for m, t in enumerate(mf):
            k(t)
            if rd: k.lg(rd.pop(0))
            if (s+1) in polls and m == nm - 1: poll_issue(k, P_DBG, polls[s+1], ("poll", s+1))
            if pend is not None:
                k.vm(pend[1][1], pend[1][2])
                if pend[2]: wadv(k)
                pend = None
            elif dm and m >= at[nd - len(dm)]:
                pend = dm.pop(0)
                if pend[1][0]: k(pend[1][0])
        assert not rd and not dm and pend is None, (s, rd, dm, pend)
        if s < 19:
            k.wait(vm=[("W", s+2), ("X", (s+2) >> 1)] + (xwait.get(s, []) if xwait else []), lg="all")
        if s in polls: poll_check(k, P_DBG, 16, ("poll", s), sleep=8)
        if s < 19:
            k("s_barrier")
            if cfg.STG and s % 2 == 1: stamp(k, 17 + s//2)
    assert not Q
    stamp(k, 4)

def ffn_setup(k):
    k("s_lshl_b32 s75, s%d, 1" % S_MT)
    k("s_add_u32 s75, s75, s%d" % S_RH)
    k("s_mul_i32 s75, s75, 74")
    k("s_mul_i32 s76, s%d, 6" % S_TY)
    k("s_add_u32 s75, s75, s76")
    k("s_mul_i32 s76, s%d, 3" % S_C)
    k("s_add_u32 s75, s75, s76")
    k("s_add_u32 s75, s75, 20")
    k("s_lshl_b32 s75, s75, 12")
    k("s_lshl_b32 s%d, s%d, 7" % (S_SIG, S_MT))
    srd(k, SRD_O, P_WS, A2_OFF, A2_SZ)

def ffn_role(k, Q):
    extra = spread(b_items(range(cfg.NBF)), cfg.PS1, 20)
    gemm_main(k, False, False, Q, extra, {cfg.PS1-1: D_S1, 19: D_S3}, xsetup=ffn_setup)
    fd = Feed(k, b_items(range(cfg.NBF, 70)) + bo_items())
    per, last = cfg.FFE
    n = 0
    for ks in range(3):
        for rt in range(4):
            T = 6 + (n & 1)*8; O = 22 + (n & 1)*4; n += 1
            if O & 3: O = (24, 28)[(n-1) & 1] - 0
            fe = lambda i: fd.emit(1) if (n <= last and i < per) else None
            G = [acc(2*ks+j, 0, rt) for j in range(2)]; U = [acc(2*ks+j, 1, rt) for j in range(2)]
            O = U[0]
            prs = [(j, h) for j in range(2) for h in range(2)]
            for i, (j, h) in enumerate(prs):
                k("v_pk_mul_f32 %s, %s, s[%d:%d] neg_lo:[0,1] neg_hi:[0,1]" % (vr(T+2*i,2), vr(G[j]+2*h,2), S_C2, S_C2+1))
            fe(0)
            for i in range(8): k("v_exp_f32 v%d, v%d" % (T+i, T+i))
            fe(2)
            for i, (j, h) in enumerate(prs):
                k("v_pk_mul_f32 %s, %s, %s" % (vr(G[j]+2*h,2), vr(G[j]+2*h,2), vr(U[j]+2*h,2)))
            for i in range(4): k("v_pk_add_f32 %s, %s, 1.0 op_sel_hi:[1,0]" % (vr(T+2*i,2), vr(T+2*i,2)))
            fe(1)
            for i in range(8): k("v_rcp_f32 v%d, v%d" % (T+i, T+i))
            fe(3)
            for i, (j, h) in enumerate(prs):
                k("v_pk_mul_f32 %s, %s, %s" % (vr(T+2*i,2), vr(G[j]+2*h,2), vr(T+2*i,2)))
            for i in range(4): k("v_cvt_pk_bf16_f32 v%d, v%d, v%d" % (O+i, T+2*i, T+2*i+1))
            k.vm("buffer_store_dwordx4 %s, v%d, s[%d:%d], s75 offen offset:%d%s" % (vr(O,4), V_L16, SRD_O, SRD_O+3, rt*1024, SC), "st")
        if ks < 2: k("s_add_u32 s75, s75, 4096")
    stamp(k, 26)
    k.wait(vm="st")
    stamp(k, 5)
    signal(k, S_CNT, "s%d" % S_SIG)
    fd.drain()

def phi_dma(seg, s_off):
    out = [("s_add_u32 m0, s%d, %d" % (S_WL, seg*WSLOT),
            "buffer_load_dwordx4 v%d, s[%d:%d], s%d offen offset:%d lds" % (V_L16, SRD_P, SRD_P+3, s_off, i*1024), ("P", seg)) for i in range(4)]
    out.append(("s_add_u32 m0, s%d, %d" % (S_WL, seg*WSLOT + 4096),
                "buffer_load_dwordx4 v%d, s[%d:%d], s82 offen lds" % (V_L16, SRD_P, SRD_P+3), ("P", seg)))
    return out
def phireg(seg, to, s):
    i = s*5 + to
    if seg == 1: return 256 + 48 + 4*i if i < 10 else 256 + 108 + 4*(i-10)
    return 256 + 4*i if i < 12 else 256 + 96 + 4*(i-12)
V_PHA = 23
def phi_reads(seg):
    out = []
    for s in range(3):
        for to in range(5):
            for h in range(2):
                d = phireg(seg, to, s) + 2*h
                if s == 2 and h == 1: out.append("ds_read_b64_tr_b16 %s, v26 offset:%d" % (R(d,2), seg*WSLOT))
                else: out.append("ds_read_b64_tr_b16 %s, v%d offset:%d" % (R(d,2), V_PHA, seg*WSLOT + (8*s+4*h)*40 + 8*to))
    return out
def cvt_in(seg, rt, B):
    out = []
    for t in range(5):
        a = acc(t, seg, rt)
        out.append("v_cvt_pk_bf16_f32 v%d, v%d, v%d" % (B+2*t, a, a+1))
        out.append("v_cvt_pk_bf16_f32 v%d, v%d, v%d" % (B+2*t+1, a+2, a+3))
    return out
def phi_mf(seg, rt, B):
    return ["v_mfma_f32_16x16x32_bf16 %s, %s, %s, %s" % (vr(acc(to,seg,rt),4), R(phireg(seg, to, s),4), vr(B+4*s,4), vr(acc(to,seg,rt),4) if s else "0")
            for s in range(3) for to in range(5)]

PKRS = 352; VRS = 224; PKSZ = 128*PKRS; VB = 2*PKSZ; VSZ = 128*VRS
V_E0, V_E1, V_E2, V_E3, V_E4, V_E5, V_E6 = 27, 28, 29, 30, 60, 61, 62
def att_common_setup(k):
    k("v_lshrrev_b32 v50, 4, v0")
    k("v_and_b32 v51, 15, v0")
    k("v_bfe_u32 v52, v0, 2, 2")
    k("v_and_b32 v53, 3, v0")
    k("v_mul_u32_u24 v48, 800, v50")
    k("v_mad_u32_u24 v48, v52, 40, v48")
    k("v_cmp_eq_u32 vcc, v50, v53")
    k("v_mov_b32 v49, 4096")
    k("v_cndmask_b32 v48, v49, v48, vcc")
    k("v_add_u32 v%d, s%d, v48" % (V_PHA, S_WL))
    k("v_add_u32 v26, s%d, v49" % S_WL)
    k("v_and_b32 v48, 31, v0"); k("v_lshlrev_b32 v48, 7, v48")
    k("v_lshrrev_b32 v49, 5, v0"); k("v_mul_u32_u24 v49, 12800, v49"); k("v_add_u32 v48, v48, v49")
    k.vm("buffer_load_dword v%d, v48, s[%d:%d], s80 offen" % (V_JUNK, SRD_P, SRD_P+3), "pf")
def kv_setup(k):
    att_common_setup(k)
    k("s_add_u32 s%d, s%d, %d" % (S_SIG, S_TY, C_K - 9))
    k("s_lshl_b32 s%d, s%d, 7" % (S_SIG, S_SIG))
    k("s_lshl_b32 s%d, s%d, 6" % (S_T0, S_RH))
    k("v_add_u32 v48, s%d, v51" % S_T0)
    k("s_mul_i32 s%d, s%d, %d" % (S_T0, S_C, PKSZ))
    k("v_mul_u32_u24 v%d, %d, v48" % (V_E0, PKRS))
    k("v_mul_u32_u24 v49, 80, v50")
    k("v_add3_u32 v%d, v%d, v49, s%d" % (V_E0, V_E0, S_T0))
    k("s_mul_i32 s%d, s%d, %d" % (S_T1, S_C, VSZ))
    k("s_add_u32 s%d, s%d, %d" % (S_T1, S_T1, VB))
    k("v_mul_u32_u24 v%d, %d, v48" % (V_E1, VRS))
    k("v_mul_u32_u24 v49, 48, v50")
    k("v_add3_u32 v%d, v%d, v49, s%d" % (V_E1, V_E1, S_T1))
    k("v_lshrrev_b32 v48, 2, v0")
    k("v_lshlrev_b32 v49, 3, v53")
    k("s_mul_i32 s%d, s%d, 160" % (S_T2, S_RH))
    k("s_add_u32 s%d, s%d, s%d" % (S_T0, S_T0, S_T2))
    k("v_mul_u32_u24 v%d, %d, v48" % (V_E2, PKRS))
    k("v_add3_u32 v%d, v%d, v49, s%d" % (V_E2, V_E2, S_T0))
    k("s_mul_i32 s%d, s%d, 96" % (S_T2, S_RH))
    k("s_add_u32 s%d, s%d, s%d" % (S_T1, S_T1, S_T2))
    k("v_mul_u32_u24 v%d, %d, v48" % (V_E3, VRS))
    k("v_add3_u32 v%d, v%d, v49, s%d" % (V_E3, V_E3, S_T1))
    k("s_add_u32 s%d, s%d, %d" % (S_T2, S_XL, SPARE - XBASE))
    k("v_mul_u32_u24 v48, 80, v51")
    k("v_lshl_add_u32 v48, v50, 3, v48")
    k("v_add_u32 v%d, s%d, v48" % (V_E5, S_T2))
    k("v_add_u32 v%d, s%d, v%d" % (V_E6, S_T2, V_L16))
    k("v_mov_b32 v48, 0x7fffffff")
    k("v_cmp_gt_u32 vcc, 32, v0")
    k("v_cndmask_b32 v%d, v48, v%d, vcc" % (V_E4, V_L16))
    k("s_lshl_b32 s78, s79, 1")
    k("s_add_u32 s78, s78, s%d" % S_RH)
    k("s_lshl_b32 s78, s78, 4")
    k("s_add_u32 s78, s78, s%d" % S_MT)
    k("s_mul_i32 s78, s78, %d" % KVPS)
    k("v_cmp_gt_u32 s[72:73], 2, v50")
    k("v_cmp_gt_u32 s[74:75], 5, v51")
    k("s_and_b64 s[76:77], s[72:73], s[74:75]")
    srd(k, SRD_O, P_WS, KVP_OFF, KVP_SZ)
    for r in (42, 43, 54, 55): k("v_mov_b32 v%d, 0" % r)
    for O in (232, 244):
        k("v_mov_b32 v%d, 0x3f80" % (O+10)); k("v_mov_b32 v%d, 0" % (O+11))
def q_setup(k):
    att_common_setup(k)
    k("s_mov_b32 s%d, 81920" % S_T0)
    k("v_mul_lo_u32 v48, v50, s%d" % S_T0)
    k("v_lshl_add_u32 v%d, v51, 4, v48" % V_E0)
    k("v_lshl_add_u32 v%d, v51, 3, v48" % V_E1)
    k("v_lshlrev_b32 v%d, 2, v0" % V_E2)
    k("s_mul_i32 s%d, s79, %d" % (S_T1, 4*81920))
    k("s_lshl_b32 s%d, s%d, 1" % (S_T0, S_MT))
    k("s_add_u32 s%d, s%d, s%d" % (S_T0, S_T0, S_RH))
    k("s_lshl_b32 s75, s%d, 10" % S_T0)
    k("s_add_u32 s75, s75, s%d" % S_T1)
    k("s_add_u32 s76, s75, 32768")
    k("s_lshl_b32 s77, s%d, 9" % S_T0)
    k("s_add_u32 s77, s77, s%d" % S_T1)
    k("s_add_u32 s77, s77, 65536")
    k("s_lshl_b32 s78, s%d, 8" % S_T0)
    k("s_add_u32 s78, s78, %d" % (G_OFF - PQ_OFF))
    k("s_add_u32 s%d, s%d, %d" % (S_SIG, S_MT, C_Q))
    k("s_lshl_b32 s%d, s%d, 7" % (S_SIG, S_SIG))
    srd(k, SRD_O, P_WS, PQ_OFF, G_OFF + G_SZ - PQ_OFF)
    for r in (42, 43, 54, 55): k("v_mov_b32 v%d, 0" % r)

def softmax_pm(k, P, E, T, O, fd=None, mf=None, side=None):
    def fe(n=1):
        if fd: fd.emit(n)
    mf = list(mf or []); side = list(side or [])
    v = [p + i for p in P for i in range(2)]
    k("v_max3_f32 v%d, v%d, v%d, v%d" % (T, v[0], v[1], v[2]))
    k("v_min3_f32 v%d, v%d, v%d, v%d" % (T+2, v[0], v[1], v[2]))
    k("v_max3_f32 v%d, v%d, v%d, v%d" % (T+1, v[3], v[4], v[5]))
    k("v_min3_f32 v%d, v%d, v%d, v%d" % (T+3, v[3], v[4], v[5]))
    for n, i in enumerate(range(6, 20, 2)):
        c = n & 1
        k("v_max3_f32 v%d, v%d, v%d, v%d" % (T+c, T+c, v[i], v[i+1]))
        k("v_min3_f32 v%d, v%d, v%d, v%d" % (T+2+c, T+2+c, v[i], v[i+1]))
    fe()
    k("v_max_f32 v%d, v%d, v%d" % (T, T, T+1))
    k("v_min_f32 v%d, v%d, v%d" % (T+2, T+2, T+3))
    k("v_mul_f32 v%d, %s, v%d" % (T, f32(-LOG2E), T))
    k("v_mul_f32 v%d, %s, v%d" % (T+2, f32(LOG2E), T+2))
    for i, p in enumerate(P):
        k("v_pk_fma_f32 %s, %s, s[%d:%d], %s op_sel_hi:[1,1,0]" % (vr(E+2*i,2), vr(p,2), S_C2, S_C2+1, vr(T,2)))
    fe()
    for i, p in enumerate(P):
        k("v_pk_fma_f32 %s, %s, s[%d:%d], %s op_sel_hi:[1,1,0] neg_lo:[0,1,0] neg_hi:[0,1,0]" % (vr(p,2), vr(p,2), S_C2, S_C2+1, vr(T+2,2)))
    ex = [E+i for i in range(20)] + v
    for i, x in enumerate(ex):
        if i % 2 == 0:
            if mf: k(mf.pop(0))
            if side: k.lg(*side.pop(0))
        if i % 12 == 5: fe()
        k("v_exp_f32 v%d, v%d" % (x, x))
    assert not mf and not side
    Ep = [E+2*i for i in range(10)]
    k("v_pk_add_f32 %s, %s, %s" % (vr(T+4,2), vr(Ep[0],2), vr(Ep[1],2)))
    k("v_pk_add_f32 %s, %s, %s" % (vr(T,2), vr(Ep[2],2), vr(Ep[3],2)))
    k("v_pk_add_f32 %s, %s, %s" % (vr(T+6,2), vr(P[0],2), vr(P[1],2)))
    k("v_pk_add_f32 %s, %s, %s" % (vr(T+2,2), vr(P[2],2), vr(P[3],2)))
    for i in range(4, 10, 2):
        k("v_pk_add_f32 %s, %s, %s" % (vr(T+4,2), vr(T+4,2), vr(Ep[i],2)))
        k("v_pk_add_f32 %s, %s, %s" % (vr(T,2), vr(T,2), vr(Ep[i+1],2)))
        k("v_pk_add_f32 %s, %s, %s" % (vr(T+6,2), vr(T+6,2), vr(P[i],2)))
        k("v_pk_add_f32 %s, %s, %s" % (vr(T+2,2), vr(T+2,2), vr(P[i+1],2)))
    k("v_pk_add_f32 %s, %s, %s" % (vr(T+4,2), vr(T+4,2), vr(T,2)))
    k("v_pk_add_f32 %s, %s, %s" % (vr(T+6,2), vr(T+6,2), vr(T+2,2)))
    fe()
    k("v_add_f32 v%d, v%d, v%d" % (T+4, T+4, T+5))
    k("v_add_f32 v%d, v%d, v%d" % (T+6, T+6, T+7))
    k("v_rcp_f32 v%d, v%d" % (T+4, T+4))
    k("v_rcp_f32 v%d, v%d" % (T+6, T+6))
    for i in range(10): k("v_pk_mul_f32 %s, %s, %s op_sel_hi:[1,0]" % (vr(Ep[i],2), vr(Ep[i],2), vr(T+4,2)))
    fe()
    for i in range(10): k("v_pk_mul_f32 %s, %s, %s op_sel_hi:[1,0]" % (vr(P[i],2), vr(P[i],2), vr(T+6,2)))
    for i in range(10): k("v_cvt_pk_bf16_f32 v%d, v%d, v%d" % (O+i, Ep[i], Ep[i]+1))
    fe()
    for i in range(10): k("v_cvt_pk_bf16_f32 v%d, v%d, v%d" % (O+10+i, P[i], P[i]+1))

def att_extra(two):
    extra = spread(b_items(range(cfg.NBA)), cfg.PS1, 20)
    extra[16] = phi_dma(0, 80) + extra[16]
    if two: extra[17] = phi_dma(1, 81) + extra[17]
    return extra

def q_role(k, Q):
    srd(k, SRD_O, P_GW, 0, 1280)
    gemm_main(k, True, True, Q, att_extra(True), {cfg.PS1-1: D_S1}, xrd={19: phi_reads(0)}, xwait={18: [("P", 0)]}, xsetup=q_setup)
    k.wait(vm=("P", 1))
    for t in cvt_in(0, 0, 32): k(t)
    gate = ["v_lshrrev_b32 v24, 4, v0"]
    for rt in range(1, 4):
        gate += ["v_cmp_eq_u32 vcc, %d, v24" % rt, "v_cndmask_b32 v%d, v%d, v%d, vcc" % (GACC, GACC, GACC+4*rt)]
    gate += ["v_mul_f32 v25, %s, v%d" % (f32(-LOG2E), GACC), "v_exp_f32 v25, v25", "v_add_f32 v25, 1.0, v25", "v_rcp_f32 v25, v25",
             ("vm", "buffer_store_dword v25, v%d, s[%d:%d], s78 offen%s" % (V_E2, SRD_O, SRD_O+3, SC), "st")]
    rd1 = [("lg", r, "ph1") for r in phi_reads(1)]
    def outs(u):
        seg, rt = u >> 2, u & 3
        O = (240, 8)[u & 1]
        f = cvt_in(seg, rt, O)
        f.insert(4, ("vm", "buffer_store_dwordx4 %s, v%d, s[%d:%d], s75 offen offset:%d%s" % (vr(O,4), V_E0, SRD_O, SRD_O+3, rt*256, SC), "st"))
        f.insert(9, ("vm", "buffer_store_dwordx4 %s, v%d, s[%d:%d], s76 offen offset:%d%s" % (vr(O+4,4), V_E0, SRD_O, SRD_O+3, rt*256, SC), "st"))
        f.append(("vm", "buffer_store_dwordx2 %s, v%d, s[%d:%d], s77 offen offset:%d%s" % (vr(O+8,2), V_E1, SRD_O, SRD_O+3, rt*128, SC), "st"))
        if u == 3: f += ["s_add_u32 s%d, s%d, %d" % (x, x, 16*81920) for x in (75, 76, 77)]
        return f
    k.wait(lg="all")
    for u in range(8):
        seg, rt = u >> 2, u & 3
        fill = []
        if u < 7: fill += cvt_in((u+1) >> 2, (u+1) & 3, 32 + ((u+1) & 1)*12)
        if u == 0: fill += rd1[:14] + gate[:6]
        elif u == 1: fill += outs(0) + rd1[14:21]
        elif u == 2: fill += outs(1) + rd1[21:28]
        elif u == 3: fill += rd1[28:] + outs(2) + gate[6:]
        else: fill += outs(u-1)
        if u == 4: k.wait(lg="all")
        weave(k, phi_mf(seg, rt, 32 + (u & 1)*12), fill)
    weave(k, [], outs(7))
    poll_issue(k, P_DBG, D_S3, "s3")
    k.wait(vm="st")
    poll_check(k, P_DBG, 16, "s3", sleep=8)
    stamp(k, 5)
    signal(k, S_CNT, "s%d" % S_SIG)
    Feed(k, b_items(range(cfg.NBA, 70)) + bo_items()).drain()

def kv_role(k, Q):
    gemm_main(k, True, False, Q, att_extra(False), {cfg.PS1-1: D_S1}, xrd={19: phi_reads(0)}, xwait={18: [("P", 0)]}, xsetup=kv_setup)
    EREG = 6; TREG = 244; O = 224
    for t in cvt_in(0, 0, 32): k(t)
    def vout(rt):
        B = (232, 244)[rt & 1]
        f = cvt_in(1, rt, B)
        f += [("lg", "ds_write_b128 v%d, %s offset:%d" % (V_E1, vr(B+4*i,4), rt*16*VRS + 16*i), ("vw", rt)) for i in range(3)]
        if rt >= 2: f.insert(0, lambda rt=rt: k.wait(lg=("vw", rt-2)))
        return f
    k.wait(lg="all")
    weave(k, phi_mf(0, 0, 32), cvt_in(0, 1, 44) + vout(0) + vout(1) + vout(2) + vout(3))
    k.wait(lg="all")
    k("s_barrier")
    if not cfg.STG: stamp(k, 17)
    def vfr(n, bt): return acc((n*2+bt) >> 2, 1, (n*2+bt) & 3)
    vreads = []
    for n in range(8):
        j, ks = n >> 2, n & 3
        for bt in range(2):
            for h in range(2):
                vreads.append(("ds_read_b64_tr_b16 %s, v%d offset:%d" % (vr(vfr(n,bt)+2*h,2), V_E3, (32*ks+16*h)*VRS + j*48 + bt*32), "vf"))
    free1 = list(range(52, 64)) + [67, 68, 69]
    free2 = list(range(40, 52)) + [64, 65, 66]
    fd = Feed(k, b_items(range(cfg.NBA, 32)))
    for rt in range(4):
        P = [acc(t, 0, rt) + 2*h for t in range(5) for h in range(2)]
        mf = phi_mf(0, rt+1, 32 + ((rt+1) & 1)*12) if rt < 3 else []
        if rt == 1: poll_issue(k, P_DBG, D_S3, "s3")
        if rt == 2:
            poll_check(k, P_DBG, 16, "s3", sleep=8)
            fd.q += b_items(free1)
        softmax_pm(k, P, EREG, TREG, O, fd, mf, vreads[rt*8:(rt+1)*8])
        for i in range(5):
            k.lg("ds_write_b128 v%d, %s offset:%d" % (V_E0, vr(O+4*i,4), rt*16*PKRS + 16*i), ("pw", rt))
        if rt < 2:
            for t in cvt_in(0, rt+2, 32 + (rt & 1)*12): k(t)
        if not cfg.STG: stamp(k, 18+rt)
    fd.drain()
    fd.q += b_items(free2)
    k.wait(lg="all")
    k("s_barrier")
    if not cfg.STG: stamp(k, 22)
    KAQ = [32, 36, 40, 44, 48, 52, 224, 228, 232, 236, 240, 244]
    def pfr(n, ft): return acc(((n % 6)*3+ft) >> 2, 0, ((n % 6)*3+ft) & 3)
    def rd(n):
        j, ks = n >> 2, n & 3
        return [("lg", "ds_read_b64_tr_b16 %s, v%d offset:%d" % (vr(pfr(n,ft)+2*h,2), V_E2, (32*ks+16*h)*PKRS + j*80 + ft*32), ("f", n)) for ft in range(3) for h in range(2)]
    def pack(jj):
        f = []
        for ft in range(3):
            for bt in range(2):
                a = KAQ[(jj*3+ft)*2+bt]
                f += ["v_cvt_pk_bf16_f32 v%d, v%d, v%d" % (a, a, a+1), "v_cvt_pk_bf16_f32 v%d, v%d, v%d" % (a+1, a+2, a+3)]
                mask = [[None, "s[74:75]"], [None, "s[74:75]"], ["s[72:73]", "s[76:77]"]][ft][bt]
                w = "ds_write_b64 v%d, %s offset:%d" % (V_E5, vr(a,2), jj*1680 + bt*1280 + ft*32)
                if mask: w = "s_mov_b64 exec, %s\n%s\ns_mov_b64 exec, -1" % (mask, w)
                f.append(("lg", w, "cw"))
        return f
    weave(k, [], rd(0) + rd(1))
    pk0 = pack(0)
    for n in range(8):
        j, ks = n >> 2, n & 3
        k.wait(lg=("f", n))
        mf = []
        for ft in range(3):
            for bt in range(2):
                a = KAQ[(j*3+ft)*2+bt]
                mf.append("v_mfma_f32_16x16x32_bf16 %s, %s, %s, %s" % (vr(a,4), vr(pfr(n,ft),4), vr(vfr(n,bt),4), vr(a,4) if ks else "0"))
        fill = rd(n+2) if n < 6 else []
        if n < 5: fill.append(lambda: fd.emit(1))
        if n >= 5: fill += pk0[(n-5)*6:(n-4)*6]
        weave(k, mf, fill)
    weave(k, [], pack(1))
    k.wait(lg="all")
    for i in range(4): k.lg("ds_read_b128 %s, v%d offset:%d" % (vr(64+4*i,4), V_E6, i*1024), ("cr", i))
    for i in range(4):
        k.wait(lg=("cr", i))
        k.vm("buffer_store_dwordx4 %s, v%d, s[%d:%d], s78 offen offset:%d%s" % (vr(64+4*i,4), V_L16 if i < 3 else V_E4, SRD_O, SRD_O+3, i*1024, SC), "st")
    stamp(k, 26)
    fd.emit(4)
    k.wait(vm="st")
    stamp(k, 5)
    signal(k, S_CNT, "s%d" % S_SIG)
    fd.drain()
    Feed(k, b_items(range(32, 40)) + bo_items()).drain()

def aux_role(k):
    NSL = 9
    order = [("d", i) for i in range(6)] + [("o", i) for i in range(4)] + [("d", i) for i in range(6, 9)]
    NU = len(order)
    k("s_mov_b32 s%d, 1280" % S_STRIDE)
    k("s_lshl_b32 s75, s%d, 2" % S_MT)
    k("s_add_u32 s75, s75, s%d" % S_W)
    k("s_mul_i32 s76, s75, 205"); k("s_lshr_b32 s76, s76, 11")
    k("s_mul_i32 s77, s76, 10"); k("s_sub_u32 s77, s75, s77")
    k("s_cmp_ge_u32 s76, 6")
    k("s_cselect_b32 s78, 0x4000000, 0")
    k("s_mul_i32 s79, s76, %d" % (32*1280))
    k("s_lshl_b32 s80, s77, 7")
    k("s_add_u32 s79, s79, s80")
    k("s_add_u32 s79, s79, s78")
    k("v_lshrrev_b32 v24, 3, v0"); k("v_and_b32 v25, 7, v0")
    k("v_and_b32 v26, 6, v24")
    k("v_xor_b32 v26, v26, v25")
    k("v_lshlrev_b32 v26, 4, v26")
    k("v_mad_u32_u24 v5, v24, s%d, v26" % S_STRIDE)
    for i in range(1, 4): k("v_add_u32 v%d, %d, v5" % (5+i, i*8*1280))
    k("s_mul_i32 s%d, s%d, %d" % (S_WL, S_W, NSL*4096))
    k("s_waitcnt lgkmcnt(0)")
    srd(k, SRD_W1, P_WD, 0, 1728*1280)
    def load(n):
        kind, i = order[n]
        sg, vb = (SRD_W1, 5) if kind == "d" else (SRD_W0, 12)
        k("s_add_u32 s81, s79, %d" % (i*6*32*1280))
        for j in range(4):
            k("s_add_u32 m0, s%d, %d" % (S_WL, (n % NSL)*4096 + j*1024))
            k.vm("buffer_load_dwordx4 v%d, s[%d:%d], s81 offen nt lds" % (vb+j, sg, sg+3), ("u", n))
    D = cfg.AUXD
    for n in range(D): load(n)
    srd(k, SRD_W0, P_WO, 0, 640*1280)
    k("v_lshrrev_b32 v27, 2, v24"); k("v_and_b32 v28, 3, v24")
    k("v_lshl_add_u32 v27, v27, 3, v28")
    k("v_mad_u32_u24 v12, v27, s%d, v26" % S_STRIDE)
    for i in range(1, 4): k("v_add_u32 v%d, %d, v12" % (12+i, (16*(i&1) + 4*(i>>1))*1280))
    srd(k, SRD_O, P_WS, B2_OFF, B2_SZ)
    for t in late_setup_items(): k(t)
    k("s_cmp_eq_u32 s%d, 0" % S_MT)
    k("s_cselect_b32 s%d, 8192, 0" % S_T0)
    srd(k, 96, P_WS, CNT_OFF, "s%d" % S_T0)
    for i in range(4): k("v_mov_b32 v%d, 0" % (56+i))
    k("s_lshl_b32 s%d, s%d, 11" % (S_T0, S_W))
    for i in range(2): k.vm("buffer_store_dwordx4 v[56:59], v%d, s[96:99], s%d offen offset:%d%s" % (V_L16, S_T0, i*1024, SC), ("st", 0))
    k("v_lshrrev_b32 v24, 2, v0")
    k("v_bfe_u32 v25, v24, 1, 2")
    k("v_and_b32 v26, 3, v0")
    k("v_lshlrev_b32 v24, 7, v24")
    k("v_lshl_add_u32 v24, v26, 3, v24")
    k("v_add_u32 v24, s%d, v24" % S_WL)
    for b in range(4):
        k("v_xor_b32 v26, %d, v25" % b)
        k("v_lshl_add_u32 v%d, v26, 5, v24" % (20+b))
    for b in range(4):
        k("s_lshl_b32 s72, s77, 2"); k("s_add_u32 s72, s72, %d" % b)
        k("s_mul_i32 s73, s72, 205"); k("s_lshr_b32 s73, s73, 10")
        k("s_mul_i32 s74, s73, 5"); k("s_sub_u32 s72, s72, s74")
        k("s_mul_i32 s73, s73, 74"); k("s_add_u32 s73, s73, s76")
        k("s_mul_i32 s73, s73, 5"); k("s_add_u32 s73, s73, s72")
        k("s_lshl_b32 s73, s73, 10")
        k("s_add_u32 s%d, s73, s78" % (64+b))
    k("s_cmp_lt_u32 s76, 2")
    k("s_cselect_b32 s82, %d, 0x4000000" % (18*5120) if False else "s_cselect_b32 s82, 0, 0x4000000")
    stamp(k, 1)
    for n in range(NU):
        kind, i = order[n]
        k.wait(vm=("u", n))
        F = 64 + (n % 4)*16
        for b in range(4):
            for h in range(2):
                k.lg("ds_read_b64_tr_b16 %s, v%d offset:%d" % (vr(F+4*b+2*h,2), 20+b, (n % NSL)*4096 + h*2048))
        off = ((20 if kind == "d" else 0) + 6*i)*5120
        for b in range(4):
            k("s_add_u32 s%d, s%d, %d" % (72+b, 64+b, off))
            if kind == "o" and i == 3: k("s_add_u32 s%d, s%d, s82" % (72+b, 72+b))
        k.wait(lg="all")
        for b in range(4):
            k.vm("buffer_store_dwordx4 %s, v%d, s[%d:%d], s%d offen%s" % (vr(F+4*b,4), V_L16, SRD_O, SRD_O+3, 72+b, SC), ("st", n))
        if n + D < NU: load(n + D)
        if n == 6:
            k.wait(vm=("st", 5)); signal(k, P_DBG, D_S1); stamp(k, 2)
    k.wait(vm="all")
    signal(k, P_DBG, D_S3)
    stamp(k, 4)
    poll_issue(k, P_DBG, D_S3, "s3")
    poll_check(k, P_DBG, 16, "s3", sleep=32)
    stamp(k, 5)
    it = b_items(range(70)) + bo_items()
    fd = Feed(k, it)
    for i in range(len(it)):
        fd.emit(1)
        k("s_waitcnt vmcnt(%d)" % cfg.AUXT)

PHB = 102400; KVB = PHB + 20480; RED = PHB
def tail(k):
    k.flush_counters()
    stamp(k, 6)
    k("s_add_u32 s82, s%d, %d" % (S_OMT, C_Q)); k("s_lshl_b32 s82, s82, 7")
    poll_issue(k, S_CNT, "s82", "pq_ok")
    srd(k, SRD_P, P_WS, PQ_OFF, PQ_SZ)
    srd(k, SRD_W0, P_WS, KVP_OFF, KVP_SZ)
    srd(k, SRD_W1, P_WS, G_OFF, G_SZ)
    srd(k, SRD_O, P_WS, A2_OFF, A2_SZ)
    k("s_mul_i32 s%d, s%d, %d" % (S_T0, S_M64, 74*4096))
    srd(k, SRD_X, P_WS, A2_OFF, 74*4096, S_T0)
    k("v_and_b32 v24, 15, v0"); k("v_lshrrev_b32 v25, 4, v0")
    k("v_lshlrev_b32 v6, 2, v24")
    k("s_lshl_b32 s77, s%d, 1" % S_OMT); k("s_add_u32 s77, s77, s%d" % S_RH)
    k("s_lshl_b32 s78, s%d, 1" % S_OH); k("s_add_u32 s78, s78, s%d" % S_C)
    k("s_mul_i32 s78, s78, 81920")
    k("s_lshl_b32 s79, s77, 10"); k("s_add_u32 s79, s79, s78")
    k("s_add_u32 s80, s79, 32768")
    k("s_lshl_b32 s81, s77, 9"); k("s_add_u32 s81, s81, s78"); k("s_add_u32 s81, s81, 65536")
    k("v_lshlrev_b32 v7, 3, v0")
    k("s_lshl_b32 s76, s%d, 9" % S_OMT); k("s_lshl_b32 s75, s%d, 7" % S_W); k("s_add_u32 s76, s76, s75")
    poll_check(k, S_CNT, 2, "pq_ok")
    stamp(k, 7)
    PQ = 192
    k.vm("buffer_load_dwordx4 %s, v%d, s[%d:%d], s79 offen%s" % (vr(PQ,4), V_L16, SRD_P, SRD_P+3, SC), "pq")
    k.vm("buffer_load_dwordx4 %s, v%d, s[%d:%d], s80 offen%s" % (vr(PQ+4,4), V_L16, SRD_P, SRD_P+3, SC), "pq")
    k.vm("buffer_load_dwordx2 %s, v7, s[%d:%d], s81 offen%s" % (vr(PQ+8,2), SRD_P, SRD_P+3, SC), "pq")
    for r2 in range(2): k.vm("buffer_load_dword v%d, v6, s[%d:%d], s76 offen offset:%d%s" % (16+r2, SRD_W1, SRD_W1+3, r2*64, SC), "g")
    k("s_lshr_b32 s82, s%d, 1" % S_M64); k("s_add_u32 s82, s82, %d" % C_Q); k("s_lshl_b32 s82, s82, 7")
    poll_issue(k, S_CNT, "s82", "g_ok")
    k("s_mul_i32 s75, s%d, 5120" % S_W); k("s_add_u32 s75, s75, %d" % PHB)
    k("v_mul_u32_u24 v7, 80, v0"); k("v_add_u32 v7, s75, v7")
    k("s_mul_i32 s75, s%d, 2560" % S_W); k("s_add_u32 s75, s75, %d" % PHB)
    k("v_mul_u32_u24 v8, 80, v24"); k("v_add_u32 v8, s75, v8")
    k("v_lshl_add_u32 v9, v25, 4, v8")
    k("s_lshl_b32 s82, s%d, 10" % S_W)
    k("v_add_u32 v10, s82, v%d" % V_L16)
    k("v_mov_b32 v30, 0x7fffffff")
    k("v_cmp_gt_u32 vcc, 3360, v10")
    k("v_cndmask_b32 v11, v30, v10, vcc")
    k("v_add_u32 v10, %d, v10" % KVB)
    k("s_mul_i32 s72, s%d, 5" % S_OH)
    def stoff(dst, add, nvalid):
        k("v_add_u32 v28, s72, v25")
        if add: k("v_add_u32 v28, %d, v28" % add)
        k("v_lshrrev_b32 v26, 2, v28")
        k("v_lshlrev_b32 v26, 12, v26")
        k("v_and_b32 v27, 3, v28")
        k("v_lshl_add_u32 v26, v27, 8, v26")
        k("v_lshl_add_u32 v26, v24, 4, v26")
        k("v_cmp_gt_u32 vcc, %d, v25" % nvalid)
        k("v_cndmask_b32 v%d, v30, v26, vcc" % dst)
    stoff(12, 0, 3); stoff(13, 3, 2)
    k("s_lshl_b32 s73, s%d, 1" % S_OMT); k("s_add_u32 s73, s73, s%d" % S_C)
    k("s_mul_i32 s73, s73, %d" % (74*4096))
    k("s_lshl_b32 s75, s%d, 11" % S_RH); k("s_add_u32 s73, s73, s75")
    k("s_mul_i32 s74, s%d, %d" % (S_OH, 16*KVPS))
    k("v_bfe_u32 v26, v0, 2, 2"); k("v_and_b32 v27, 3, v0")
    k("v_lshl_add_u32 v28, v26, 3, v27")
    for hd in range(2):
        for i in range(3):
            d = 18 + hd*3 + i
            if i == 2: k("v_mov_b32 v%d, %d" % (d, KVB + 1600 + hd*1680))
            else:
                k("v_add_u32 v14, %d, v28" % (4*i + 4*hd)); k("v_min_u32 v14, 20, v14")
                if hd == 1 and i == 0:
                    k("v_cmp_eq_u32 vcc, 2, v26"); k("v_cndmask_b32 v14, v14, v27, vcc")
                k("v_mul_u32_u24 v14, 80, v14")
                k("v_add_u32 v%d, %d, v14" % (d, KVB + hd*1680))
    k("v_cmp_eq_u32 s[78:79], 0, v25")
    k("v_cmp_eq_u32 s[76:77], 2, v25")
    k("v_mov_b32 v30, %d" % (KVB + 3584 - 64))
    k("v_and_b32 v28, 1, v0"); k("v_lshlrev_b32 v28, 4, v28")
    k("v_lshlrev_b32 v28, v28, 0x3f80" if False else "v_mov_b32 v29, 0x3f80")
    k("v_lshlrev_b32 v28, v28, v29")
    k("v_cmp_eq_u32 vcc, v26, v25")
    k("v_cndmask_b32 v28, 0, v28, vcc")
    k("v_cmp_gt_u32 vcc, 2, v27")
    k("v_cndmask_b32 v29, 0, v28, vcc")
    k("v_cndmask_b32 v28, v28, 0, vcc")
    for r, src in ((120, "v29"), (121, "v28"), (122, "0"), (123, "0"), (124, "0"), (125, "0"), (126, "v29"), (127, "v28")):
        k("v_accvgpr_write_b32 a%d, %s" % (r, src))
    k.wait(vm="pq")
    for i in range(10):
        k("v_lshlrev_b32 v%d, 16, v%d" % (64+2*i, PQ+i))
        k("v_and_b32 v%d, 0xffff0000, v%d" % (65+2*i, PQ+i))
    poll_check(k, S_CNT, 2, "g_ok")
    k("s_lshl_b32 s82, s%d, 8" % S_M64); k("s_lshl_b32 s75, s%d, 6" % S_W); k("s_add_u32 s82, s82, s75")
    k.vm("buffer_load_dword v5, v6, s[%d:%d], s82 offen%s" % (SRD_W1, SRD_W1+3, SC), "g")
    class Late:
        n = 0
        def emit(self, _=1):
            self.n += 1
            if self.n == 6:
                k("s_lshr_b32 s82, s%d, 1" % S_M64); k("s_lshl_b32 s82, s82, 7")
                poll_issue(k, S_CNT, "s82", "h_ok")
    softmax_pm(k, [64+2*i for i in range(10)], 84, 124, 104, Late())
    for i in range(5): k.lg("ds_write_b128 v7, %s offset:%d" % (vr(104+4*i,4), 16*i))
    stamp(k, 8)
    poll_check(k, S_CNT, 9, "h_ok")
    stamp(k, 9)
    A0 = 64; AF = 144; DA = 3
    k("s_add_u32 s80, s%d, 20" % S_W); k("s_lshl_b32 s80, s80, 12")
    def af(i): return AF + (i % DA)*16
    def a_load(i, tt):
        k.vm("buffer_load_dwordx4 %s, v%d, s[%d:%d], s80 offen offset:%d%s" % (vr(af(i)+4*tt,4), V_L16, SRD_X, SRD_X+3, tt*1024, SC), ("A", i, tt))
        if tt == 3: k("s_add_u32 s80, s80, %d" % (4*4096))
    for i in range(DA):
        for tt in range(4): a_load(i, tt)
    k("s_lshr_b32 s82, s%d, 2" % S_OH); k("s_add_u32 s82, s82, %d" % C_K); k("s_lshl_b32 s82, s82, 7")
    k.wait(lg="all")
    side = []
    def S(at, item, cost=1): side.append((at, cost, item))
    MK = cfg.MK
    S(max(0, MK-30), lambda: poll_issue(k, S_CNT, "s82", "k_ok"), 2)
    def chk():
        stamp(k, 10); poll_check(k, S_CNT, 16, "k_ok"); stamp(k, 11)
    S(MK, chk, 2)
    PR = 200
    def kp(p):
        k.vm("buffer_load_dwordx4 %s, v11, s[%d:%d], s74 offen%s" % (vr(PR+4*(p % 14),4), SRD_W0, SRD_W0+3, SC), ("kp", p))
        k("s_add_u32 s74, s74, %d" % KVPS)
    for p in range(14): S(MK + 2*p, lambda p=p: kp(p), 2)
    for p in range(16):
        r = PR + 4*(p % 14)
        def red(p=p, r=r):
            k.wait(vm=("kp", p))
            for h in range(2): k("v_mfma_f32_16x16x32_bf16 %s, %s, %s, %s" % (vr(192+4*h,4), ar(120+4*h,4), vr(r,4), vr(192+4*h,4) if p else "0"))
            if p < 2: kp(14+p)
        S(MK + cfg.KLAT + (cfg.KL2 if p >= 14 else 0), red, 2)
    S(0, None, 10)
    for i in range(4): S(0, "v_cvt_pk_bf16_f32 v%d, v%d, v%d" % (PR+i, 192+2*i, 193+2*i))
    S(0, ("lg", "ds_write_b128 v10, %s" % vr(PR,4), "kw"))
    S(0, None, 8)
    def bar():
        k.wait(lg="all"); k("s_barrier"); stamp(k, 28)
    S(80, bar, 2)
    OA = 256 + 128
    for hd in range(2):
        for i in range(3):
            S(0, "v_lshl_add_u32 v15, v25, 4, v%d" % (18+hd*3+i))
            S(0, "v_cndmask_b32 v14, v30, v%d, s[78:79]" % (18+hd*3+i))
            S(0, ("lg", "ds_read_b128 %s, v15" % R(OA+hd*40+8*i,4), ("o", hd)))
            S(0, ("lg", "ds_read_b128 %s, v14 offset:64" % R(OA+hd*40+4+8*i,4), ("o", hd)))
        for r2 in range(2):
            S(0, ("lg", "ds_read_b128 %s, v9 offset:%d" % (R(OA+hd*40+24+8*r2,4), hd*10240 + r2*1280), ("o", hd)))
            S(0, ("lg", "ds_read_b128 %s, v8 offset:%d" % (R(OA+hd*40+28+8*r2,4), hd*10240 + r2*1280+64), ("o", hd)))
    KO = 200
    for hd in range(2):
        if hd: S(0, None, 4)
        def mm(hd=hd):
            k.wait(lg=("o", hd), vm="g")
            for s in range(2):
                for r2 in range(2):
                    for i in (2, 0, 1):
                        a = KO + (hd*2+r2)*12 + i*4
                        k("v_mfma_f32_16x16x32_bf16 %s, %s, %s, %s" % (vr(a,4), R(OA+hd*40+8*i+4*s,4), R(OA+hd*40+24+8*r2+4*s,4), vr(a,4) if s else "0"))
        S(0, mm, 2)
    for u in range(4): S(0, "v_add_f32 v%d, %s, v%d" % (KO+u*12+8, f32(1e-6), KO+u*12+8))
    for u in range(4): S(0, "v_rcp_f32 v%d, v%d" % (KO+u*12+8, KO+u*12+8), 2)
    for u in range(4): S(0, "v_mul_f32 v%d, v%d, v%d" % (KO+u*12+8, KO+u*12+8, 16+(u & 1)))
    for r2 in range(2):
        a0 = KO + r2*12; a1 = KO + (2+r2)*12
        for a in (a1, a0):
            for i in range(8): S(0, "v_mul_f32 v%d, v%d, v%d" % (a+i, a+i, a+8))
            for i in range(4): S(0, "v_cvt_pk_bf16_f32 v%d, v%d, v%d" % (a+8+i, a+2*i, a+2*i+1))
            if a == a1: S(0, ("vm", "buffer_store_dwordx4 %s, v13, s[%d:%d], s73 offen offset:%d%s" % (vr(a1+8,4), SRD_O, SRD_O+3, r2*1024, SC), "st"))
        S(0, "v_cndmask_b32 v%d, v%d, v%d, s[76:77]" % (a0+10, a0+10, a1+8))
        S(0, "v_cndmask_b32 v%d, v%d, v%d, s[76:77]" % (a0+11, a0+11, a1+9))
        S(0, ("vm", "buffer_store_dwordx4 %s, v12, s[%d:%d], s73 offen offset:%d%s" % (vr(a0+8,4), SRD_O, SRD_O+3, r2*1024, SC), "st"))
    S(0, lambda: stamp(k, 29), 0)
    S(0, None, cfg.OSD)
    def osig():
        k.wait(vm="st")
        k("s_add_u32 s82, s%d, %d" % (S_OMT, C_O)); k("s_lshl_b32 s82, s82, 7")
        signal(k, S_CNT, "s82")
        stamp(k, 12)
    S(0, osig, 2)
    m = 0; credit = 0
    for i in range(14):
        for tt in range(4):
            k.wait(vm=("A", i, tt))
            for ct in range(5):
                a = A0 + (ct*4+tt)*4
                k("v_mfma_f32_16x16x32_bf16 %s, %s, %s, %s" % (vr(a,4), R(bloc(i*5+ct),4), vr(af(i)+4*tt,4), vr(a,4) if i else "0"))
                m += 1
                credit = min(credit, 0) + cfg.PER
                if ct == 4:
                    if i + DA < 14: a_load(i + DA, tt)
                    credit -= 2
                while side and side[0][0] <= m and credit > 0:
                    _, c, it = side.pop(0)
                    if it is not None: emit1(k, it)
                    credit -= c
    stamp(k, 13)
    for _, c, it in side:
        if it is not None: emit1(k, it)
    stamp(k, 27)
    k("s_lshr_b32 s82, s%d, 1" % S_M64); k("s_add_u32 s82, s82, %d" % C_O); k("s_lshl_b32 s82, s82, 7")
    labs = [k.newlabel("Lred") for _ in range(5)]
    k("v_add_u32 v7, %d, v%d" % (RED, V_L16))
    k("s_mul_i32 s81, s%d, 15360" % S_W)
    k("v_add_u32 v8, s81, v7")
    for w in range(1, 4):
        k("s_cmp_eq_u32 s%d, %d" % (S_W, w)); k("s_cbranch_scc1 %s" % labs[w])
    AO = 192
    for w in range(4):
        if w: k.label(labs[w]); k("s_nop 7")
        for tt in range(4):
            if tt == w: continue
            slot = w if w < tt else w - 1
            for ct in range(5): k("ds_write_b128 v7, %s offset:%d" % (vr(A0+(ct*4+tt)*4,4), (tt*15 + slot*5 + ct)*1024))
        for ct in range(5):
            for h in range(2): k("v_pk_mul_f32 %s, %s, 1.0 op_sel_hi:[1,0]" % (vr(AO+ct*4+2*h,2), vr(A0+(ct*4+w)*4+2*h,2)))
        if w < 3: k("s_branch %s" % labs[4])
    k.label(labs[4])
    poll_issue(k, S_CNT, "s82", "o_ok")
    k("v_add_u32 v9, 51200, v%d" % V_L16)
    k("s_waitcnt lgkmcnt(0)")
    k("s_barrier")
    for j in range(15): k.lg("ds_read_b128 %s, v8 offset:%d" % (vr(A0+4*j,4), j*1024), ("r", j // 5))
    srd(k, SRD_O, P_OUT, 0, 2048*1280)
    k("s_lshl_b32 s81, s%d, 6" % S_M64); k("s_lshl_b32 s75, s%d, 4" % S_W); k("s_add_u32 s81, s81, s75")
    k("s_mul_i32 s81, s81, 1280"); k("s_mul_i32 s75, s%d, 160" % S_NT); k("s_add_u32 s81, s81, s75")
    k("v_mul_u32_u24 v16, 1280, v24"); k("v_lshl_add_u32 v16, v25, 3, v16")
    k("v_sub_f32 v10, 1.0, v5")
    def bo_read(n):
        off = n*1024
        return ("lg", "ds_read_b128 %s, v%d offset:%d" % (R(256 + (n % 60)*4, 4), V_L16 if off < 51200 else 9, off % 51200), ("bo", n // 5))
    nr = 0
    for sl in range(3):
        k.wait(lg=("r", sl))
        weave(k, [], [bo_read(n) for n in range(nr, nr+5)]); nr += 5
        for ct in range(5):
            for h in range(2): k("v_pk_add_f32 %s, %s, %s" % (vr(AO+ct*4+2*h,2), vr(AO+ct*4+2*h,2), vr(A0+(sl*5+ct)*4+2*h,2)))
    poll_check(k, S_CNT, 16, "o_ok")
    stamp(k, 14)
    def of(ks): return 32 + 4*ks if ks < 8 else 144 + 4*(ks-8)
    k("s_lshl_b32 s80, s%d, 10" % S_W)
    fa = Feed(k, [("s_add_u32 s80, s80, 4096" if ks else None, "buffer_load_dwordx4 %s, v%d, s[%d:%d], s80 offen%s" % (vr(of(ks),4), V_L16, SRD_X, SRD_X+3, SC), ("Ao", ks)) for ks in range(20)])
    fa.emit(10)
    for j in range(10): k("v_pk_mul_f32 %s, %s, v[10:11] op_sel_hi:[1,0]" % (vr(AO+2*j,2), vr(AO+2*j,2)))
    while nr < 55:
        weave(k, [], [bo_read(n) for n in range(nr, nr+5)]); nr += 5
        fa.emit(1)
    for ks in range(20):
        k.wait(vm=("Ao", ks), lg=("bo", ks))
        mf = ["v_mfma_f32_16x16x32_bf16 %s, %s, %s, %s" % (vr(AO+ct*4,4), R(256 + ((ks*5+ct) % 60)*4, 4), vr(of(ks),4), vr(AO+ct*4,4)) for ct in range(5)]
        fill = [bo_read(n) for n in range(nr, min(100, nr+5))]; nr += len(fill)
        weave(k, mf, fill, per=1)
        fa.emit(1)
    for ct in range(5):
        a = AO + ct*4
        k("v_cvt_pk_bf16_f32 v%d, v%d, v%d" % (64+2*ct, a, a+1)); k("v_cvt_pk_bf16_f32 v%d, v%d, v%d" % (65+2*ct, a+2, a+3))
        k.vm("buffer_store_dwordx2 %s, v16, s[%d:%d], s81 offen offset:%d" % (vr(64+2*ct,2), SRD_O, SRD_O+3, ct*32), "st")
    stamp(k, 30)
    stamp_out(k)

def kernel(k):
    kernel_header(k, NAME)
    if cfg.EARLY0: k("s_memrealtime s[98:99]")
    k("s_load_dwordx16 s[8:23], s[0:1], 0")
    k("s_load_dwordx8 s[24:31], s[0:1], 64")
    k("s_cmp_ge_u32 s2, 256")
    k("s_cbranch_scc1 L_end")
    code_prefetch(k, V_JUNK)
    k("v_lshrrev_b32 v2, 6, v0")
    k("v_and_b32 v0, 63, v0")
    k("v_readfirstlane_b32 s%d, v2" % S_W)
    if cfg.STAMP: k("v_mov_b32 v1, 0")
    stamp(k, 0)
    if cfg.EARLY0: k("v_writelane_b32 v1, s98, 0")
    k("s_bfe_u32 s%d, s2, 0x40003" % S_MT)
    k("s_and_b32 s%d, s2, 7" % S_T0)
    k("s_lshl_b32 s%d, s%d, 3" % (S_T0, S_T0))
    k("s_bfe_u32 s%d, s2, 0x10007" % S_T1)
    k("s_lshl_b32 s%d, s%d, 2" % (S_T1, S_T1))
    k("s_add_u32 s%d, s%d, s%d" % (S_T0, S_T0, S_T1))
    tab = cfg.ORDER
    k("s_mov_b32 s74, 0x%x" % sum(tab[i] << (4*i) for i in range(8))); k("s_mov_b32 s75, 0x%x" % sum(tab[8+i] << (4*i) for i in range(8)))
    k("s_lshr_b64 s[74:75], s[74:75], s%d" % S_T0)
    k("s_and_b32 s%d, s74, 15" % S_TY)
    k("s_and_b32 s%d, s%d, 1" % (S_RH, S_W))
    k("s_lshr_b32 s%d, s%d, 1" % (S_C, S_W))
    k("v_lshlrev_b32 v%d, 4, v0" % V_L16)
    k("s_cmp_ge_u32 s%d, 15" % S_TY); k("s_cbranch_scc1 L_aux")
    k("s_cmp_ge_u32 s%d, 13" % S_TY)
    k("s_cselect_b32 s%d, 13, 9" % S_T0)
    k("s_cselect_b32 s75, 0, 1280")
    k("s_cselect_b32 s76, 0, 640")
    k("s_add_u32 s76, s76, 640")
    k("s_sub_u32 s79, s%d, s%d" % (S_TY, S_T0))
    k("s_mul_i32 s%d, s79, 320" % S_T1)
    k("s_and_b32 s%d, s%d, 127" % (S_DELTA, S_T1))
    k("s_sub_u32 s%d, s%d, s%d" % (S_T1, S_T1, S_DELTA))
    k("s_add_u32 s75, s75, s%d" % S_T1)
    k("s_add_u32 s76, s76, s75")
    k("s_mul_i32 s%d, s%d, 384" % (S_T1, S_TY))
    k("s_mov_b32 s%d, 3840" % S_STRIDE)
    k("s_cmp_lt_u32 s%d, 9" % S_TY)
    k("s_cselect_b32 s75, s%d, s75" % S_T1)
    k("s_cselect_b32 s76, s%d, s76" % S_T1)
    k("s_cselect_b32 s%d, 3456, s%d" % (S_STRIDE, S_STRIDE))
    k("s_mul_i32 s%d, s%d, 640" % (S_T1, S_STRIDE))
    k("s_sub_u32 s77, s%d, s75" % S_T1)
    k("s_sub_u32 s78, s%d, s76" % S_T1)
    gemm_setup(k)
    k("s_mul_i32 s%d, s%d, %d" % (S_T0, S_MT, 128*1280))
    k("s_waitcnt lgkmcnt(0)")
    k("s_cmp_lt_u32 s%d, 9" % S_TY)
    k("s_cselect_b64 s[16:17], s[%d:%d], s[%d:%d]" % (P_WG, P_WG+1, P_WQKV, P_WQKV+1))
    k("s_cselect_b64 s[%d:%d], s[%d:%d], s[%d:%d]" % (P_WU, P_WU+1, P_WU, P_WU+1, P_WQKV, P_WQKV+1))
    srd(k, SRD_X, P_X, 0, 128*1280, S_T0)
    stamp(k, 1)
    Q = dma_queue()
    issue_now(k, Q, 4)
    srd(k, SRD_W0, 16, 0, "s77", 75)
    srd(k, SRD_W1, P_WU, 0, "s78", 76)
    issue_now(k, Q, 6)
    touch_setup(k)
    for it in touch_items(-1):
        if it[0]: k(it[0])
        k.vm(it[1], it[2])
    sv0 = list(k.vmq)
    k("s_cmp_ge_u32 s%d, 9" % S_TY); k("s_cbranch_scc1 L_att")
    ffn_role(k, Q)
    k("s_branch L_tail")
    k.label("L_att")
    k("s_lshl_b32 s79, s79, 1")
    k("s_add_u32 s79, s79, s%d" % S_C)
    k("s_mul_i32 s80, s79, 3200")
    k("s_add_u32 s81, s80, 12800")
    k("s_mov_b32 s82, 0x100000")
    srd(k, SRD_P, P_WPHI, 0, 25600)
    k("s_cmp_ge_u32 s%d, 13" % S_TY); k("s_cbranch_scc1 L_q")
    k.flush_counters(); k.vmq = list(sv0)
    kv_role(k, Q)
    k("s_branch L_tail")
    k.label("L_q")
    k.flush_counters(); k.vmq = list(sv0)
    q_role(k, Q)
    k("s_branch L_tail")
    k.flush_counters()
    k.label("L_aux")
    aux_role(k)
    k.label("L_tail")
    tail(k)
    k.label("L_end")
    k("s_endpgm")

def build(fn, listform=True):
    k = K()
    k.raw(open("header.txt").read().rstrip())
    if listform: k.raw("; @launch kernel=%s grid=(256,1,1) block=(256,1,1) lds=163840" % NAME)
    else: k.raw("; @launch grid=(256,1,1) block=(256,1,1) lds=163840")
    k.raw('.amdgcn_target "amdgcn-amd-amdhsa--gfx950"')
    k.raw(".text")
    kernel(k)
    k.raw('.section .rodata,"a"')
    k.raw(kernel_desc(NAME, 512, 256))
    open(fn, "w").write(k.text())

if __name__ == "__main__":
    for a in sys.argv[2:]:
        if "=" in a:
            n, v = a.split("="); setattr(cfg, n, eval(v))
    build(sys.argv[1], listform="single" not in sys.argv)
```

```python
import sys
from fw import *

A2_OFF = 0;          A2_SZ = 32*74*4096
B2_OFF = 0xA00000;   B2_SZ = 8*74*5120
PQ_OFF = 0xD00000;   PQ_SZ = 32*2048*40
KVP_OFF = 0x1000000; KVPS = 3584; KVP_SZ = 16*16*KVPS
G_OFF = 0x1200000;   G_SZ = 8192
CNT_OFF = 0x1300000
ST_OFF = 0x1400000
LOG2E = 1.4426950408889634
NAME = "gated_mix__linear_kernel_hedgehog__swiglu_ffn__prompt_kernel"

class Cfg:
    STAMP = 0; STG = 0
    MAXD = 11; N2 = 6; N3 = 10
    P2M = 4
    TW = [(-1,1,5),(0,6,6),(3,12,8)]
    TX = [(-1,1,2),(0,3,3),(3,6,4)]
    ORDER = [0, 9, 1, 10, 2, 11, 3, 12, 4, 13, 5, 14, 6, 7, 8, 15]
    PS1 = 16
    NBF = 40
    NBA = 32
    AUXT = 6
    AUXD = 3
    FFE = (4, 10)
    MK = 30
    KLAT = 50
    PER = 2
    DBGWG = -1
    PADST = None
    PADMIN = 0
    PADTY = None
    EARLY0 = 0
    KL2 = 40
    OSD = 50
cfg = Cfg()
SC = " sc1"

P_X, P_WQKV, P_WPHI, P_WO, P_WG, P_WU, P_WD, P_GW, P_OUT, P_DBG, P_WS = 8, 10, 12, 14, 18, 20, 22, 24, 26, 28, 30
S_W, S_RH, S_C, S_MT, S_TY, S_M64, S_NT, S_OH = 32, 33, 34, 35, 36, 37, 38, 39
SRD_X, SRD_W0, SRD_W1, SRD_O, SRD_P = 40, 44, 48, 52, 56
S_STRIDE, S_WOFF, S_WL, S_XL, S_T0, S_T1, S_T2, S_T3, S_DELTA, S_SIG = 60, 61, 62, 63, 64, 65, 66, 67, 68, 69
S_C2 = 70
S_OMT = 83; SRD_B = 84; S_BOFF = 88; S_BB = 89; S_CNT = 90; SRD_T = 96
V_L16, V_L16B, V_PT = 2, 3, 4
V_WD = 5; V_XD = 6; V_XR = 10; V_TA = 12; V_TW = 24; V_TX = 25; V_JUNK = 63
ACC0 = 64
WF0 = 256; XF0 = 256 + 96; GF0 = 256 + 88; GACC = 224
C_H, C_K, C_Q, C_O = 0, 16, 20, 36
SPARE = 147456
D_S1, D_S2, D_S3 = 0, 64, 128

def srd(k, d, b, off, nbytes, soff=None):
    if off or soff is not None:
        if soff is not None:
            k("s_add_u32 s%d, s%d, s%d" % (d, b, soff)); k("s_addc_u32 s%d, s%d, 0" % (d+1, b+1))
            if off:
                k("s_add_u32 s%d, s%d, 0x%x" % (d, d, off)); k("s_addc_u32 s%d, s%d, 0" % (d+1, d+1))
        else:
            k("s_add_u32 s%d, s%d, 0x%x" % (d, b, off)); k("s_addc_u32 s%d, s%d, 0" % (d+1, b+1))
        k("s_and_b32 s%d, s%d, 0xffff" % (d+1, d+1))
    else:
        k("s_mov_b32 s%d, s%d" % (d, b)); k("s_and_b32 s%d, s%d, 0xffff" % (d+1, b+1))
    if isinstance(nbytes, int): k("s_mov_b32 s%d, 0x%x" % (d+2, nbytes))
    else: k("s_mov_b32 s%d, %s" % (d+2, nbytes))
    k("s_mov_b32 s%d, 0x20000" % (d+3))

def stamp(k, i):
    if not cfg.STAMP: return
    k("s_memrealtime s[92:93]")
    k("s_waitcnt lgkmcnt(0)")
    k.lgq = []
    k("v_writelane_b32 v1, s92, %d" % i)
def stamp_out(k):
    if not cfg.STAMP: return
    k("s_waitcnt vmcnt(0)")
    stamp(k, 15)
    k("v_writelane_b32 v1, s%d, 16" % S_TY)
    srd(k, 40, P_WS, ST_OFF, 1024*128)
    k("s_lshl_b32 s92, s2, 2"); k("s_add_u32 s92, s92, s%d" % S_W); k("s_lshl_b32 s92, s92, 7")
    k("v_lshlrev_b32 v5, 2, v0")
    k("v_cmp_gt_u32 vcc, 32, v0")
    k("v_mov_b32 v6, 0x7fffffff")
    k("v_cndmask_b32 v5, v6, v5, vcc")
    k("buffer_store_dword v1, v5, s[40:43], s92 offen")
    if cfg.PADST is not None:
        k("v_readlane_b32 s94, v1, %d" % abs(cfg.PADST))
        k("v_readlane_b32 s95, v1, 0")
        k("s_max_u32 s94, s94, s95")
        if cfg.PADTY:
            k("s_cmp_lt_u32 s%d, %d" % (S_TY, cfg.PADTY[0])); k("s_cselect_b32 s94, s95, s94")
            k("s_cmp_gt_u32 s%d, %d" % (S_TY, cfg.PADTY[1])); k("s_cselect_b32 s94, s95, s94")
        if cfg.PADMIN:
            k("s_not_b32 s95, s94")
            k("v_mov_b32 v7, s95"); k("v_mov_b32 v8, 192")
            k("s_cmp_eq_u32 s%d, 0" % S_W)
            k("s_cselect_b64 exec, 1, 0")
            k("s_cbranch_execz Lnoat")
            k("global_atomic_umax v8, v7, s[%d:%d] sc1" % (P_DBG, P_DBG+1))
            k.label("Lnoat")
            k("s_mov_b64 exec, -1")
            k("s_add_u32 s94, s94, 4500")
            k.label("Lpad0")
            k("s_sleep 4")
            k("s_memrealtime s[96:97]")
            k("s_waitcnt lgkmcnt(0)")
            k("s_sub_u32 s98, s96, s94")
            k("s_cmp_lt_i32 s98, 0")
            k("s_cbranch_scc1 Lpad0")
            k("global_load_dword v7, v8, s[%d:%d] sc1" % (P_DBG, P_DBG+1))
            k("s_waitcnt vmcnt(0)")
            k("v_readfirstlane_b32 s94, v7")
            k("s_not_b32 s94, s94")
        k("s_add_u32 s94, s94, 6000")
        k.label("Lpad")
        k("s_sleep 4")
        k("s_memrealtime s[96:97]")
        k("s_waitcnt lgkmcnt(0)")
        k("s_sub_u32 s98, s96, s94")
        k("s_cmp_lt_i32 s98, 0")
        k("s_cbranch_scc1 Lpad")
    if cfg.DBGWG >= 0:
        k("s_cmp_eq_u32 s92, %d" % (cfg.DBGWG*512))
        k("s_cselect_b32 s93, 64, 0")
        srd(k, 44, P_DBG, 0, "s93")
        k("v_readlane_b32 s93, v1, 0")
        k("v_subrev_u32 v7, s93, v1")
        k("v_cmp_lt_u32 vcc, 0, v0")
        k("v_cndmask_b32 v5, v6, v5, vcc")
        k("buffer_store_dword v7, v5, s[44:47], 0 offen")

def code_prefetch(k, vt):
    k("s_getpc_b64 s[72:73]")
    l = k.newlabel("Lpc"); k.label(l)
    k("s_lshr_b32 s74, s2, 3")
    k("s_lshl_b32 s74, s74, 7")
    k("v_and_b32 v%d, 31, v0" % vt)
    k("v_lshlrev_b32 v%d, 12, v%d" % (vt, vt))
    k("v_add_u32 v%d, s74, v%d" % (vt, vt))
    k("v_min_u32 v%d, L_end-%s-4, v%d" % (vt, l, vt))
    k.vm("global_load_dword v%d, v%d, s[72:73]" % (vt, vt), "pf")

def poll_issue(k, base, off, tag):
    k("v_mov_b32 v%d, %s" % (V_PT, off))
    k.vm("global_load_dword v31, v%d, s[%d:%d] sc1" % (V_PT, base, base+1), tag)
def poll_check(k, base, target, tag, sleep=4):
    l = k.newlabel("Lpoll"); d = k.newlabel("Lpd")
    k.wait(vm=tag)
    k("v_readfirstlane_b32 s94, v31")
    k("s_mov_b32 s95, 0x8000")
    k("s_cmp_ge_u32 s94, %d" % target)
    k("s_cbranch_scc1 %s" % d)
    k.label(l)
    k("s_sleep %d" % sleep)
    k("global_load_dword v31, v%d, s[%d:%d] sc1" % (V_PT, base, base+1))
    k("s_waitcnt vmcnt(0)")
    k("v_readfirstlane_b32 s94, v31")
    k("s_sub_u32 s95, s95, 1")
    k("s_cmp_ge_u32 s94, %d" % target)
    k("s_cbranch_scc1 %s" % d)
    k("s_cmp_lg_u32 s95, 0")
    k("s_cbranch_scc1 %s" % l)
    k.label(d)
def signal(k, base, off):
    d = k.newlabel("Lsg")
    k("s_barrier")
    k("s_cmp_lg_u32 s%d, 0" % S_W)
    k("s_cbranch_scc1 %s" % d)
    k("v_mov_b32 v%d, %s" % (V_PT, off))
    k("v_mov_b32 v31, 1")
    k("s_mov_b64 exec, 1")
    k("global_atomic_add v%d, v31, s[%d:%d] sc1" % (V_PT, base, base+1))
    k("s_mov_b64 exec, -1")
    k.label(d)

def bloc(n):
    if n < 32: return 256 + 128 + 4*n
    if n < 40: return 32 + 4*(n-32)
    return 256 + 4*(n-40)
def b_items(frs):
    out = []; cur = None
    for n in frs:
        st, ct = divmod(n, 5)
        pre = None
        if st != cur: pre = "s_add_u32 s%d, s%d, %d" % (S_BOFF, S_BB, (20 + 4*st)*5120); cur = st
        if ct < 4: t = "buffer_load_dwordx4 %s, v%d, s[%d:%d], s%d offen offset:%d%s" % (R(bloc(n),4), V_L16, SRD_B, SRD_B+3, S_BOFF, ct*1024, SC)
        else: t = "buffer_load_dwordx4 %s, v%d, s[%d:%d], s%d offen%s" % (R(bloc(n),4), V_L16B, SRD_B, SRD_B+3, S_BOFF, SC)
        out.append((pre, t, "B"))
    return out
def bo_items():
    out = []
    for i in range(5):
        for ct in range(5):
            pre = "s_add_u32 m0, s%d, %d" % (S_BB, i*20480 + (4096 if ct == 4 else 0))
            if ct == 0: pre = "s_add_u32 s100, s%d, %d\n" % (S_BB, i*20480) + pre
            if ct < 4: t = "buffer_load_dwordx4 v%d, s[%d:%d], s100 offen offset:%d%s lds" % (V_L16, SRD_B, SRD_B+3, ct*1024, SC)
            else: t = "buffer_load_dwordx4 v%d, s[%d:%d], s100 offen%s lds" % (V_L16B, SRD_B, SRD_B+3, SC)
            out.append((pre, t, "BO"))
    return out
class Feed:
    def __init__(self, k, items): self.k = k; self.q = list(items)
    def emit(self, n=1):
        while self.q and n > 0:
            pre, t, tag = self.q.pop(0)
            if pre: self.k(pre)
            self.k.vm(t, tag); n -= 1
    def drain(self): self.emit(10**6)
def emit1(k, f):
    if callable(f): f()
    elif isinstance(f, tuple): (k.lg if f[0] == "lg" else k.vm)(f[1], f[2])
    else: k(f)
def weave(k, mf, fill, per=2):
    fill = list(fill)
    for m in mf:
        k(m)
        for _ in range(per):
            if fill: emit1(k, fill.pop(0))
    for f in fill: emit1(k, f)

WSLOT = 24576; RW = 4; XBASE = RW*WSLOT; XSLOT = 16384; RX = 3

def gemm_setup(k):
    k("v_lshrrev_b32 v28, 3, v0")
    k("v_and_b32 v29, 7, v0")
    k("v_bfe_u32 v26, v28, 1, 1")
    k("s_lshl_b32 s%d, s%d, 1" % (S_T0, S_RH))
    k("v_or_b32 v26, s%d, v26" % S_T0)
    k("v_lshlrev_b32 v26, 1, v26")
    k("v_xor_b32 v26, v26, v29")
    k("s_lshl_b32 s%d, s%d, 3" % (S_T0, S_W))
    k("v_add_u32 v27, s%d, v28" % S_T0)
    k("v_mul_lo_u32 v27, v27, s%d" % S_STRIDE)
    k("v_lshl_add_u32 v%d, v26, 4, v27" % V_WD)
    k("s_lshl_b32 s%d, s%d, 5" % (S_T0, S_W))
    k("v_lshrrev_b32 v26, 1, v28")
    k("v_xor_b32 v27, v26, v29")
    k("v_add_u32 v26, s%d, v28" % S_T0)
    k("v_mul_u32_u24 v26, 1280, v26")
    k("v_lshl_add_u32 v%d, v27, 4, v26" % V_XD)
    k("v_xor_b32 v%d, 64, v%d" % (V_XD+1, V_XD))
    k("v_add_u32 v%d, %d, v%d" % (V_XD+1, 8*1280, V_XD+1))
    k("v_add_u32 v%d, %d, v%d" % (V_XD+2, 16*1280, V_XD))
    k("v_add_u32 v%d, %d, v%d" % (V_XD+3, 16*1280, V_XD+1))
    k("s_mul_i32 s%d, s%d, 6144" % (S_WL, S_W))
    k("s_lshl_b32 s%d, s%d, 12" % (S_XL, S_W))
    k("s_add_u32 s%d, s%d, %d" % (S_XL, S_XL, XBASE))
    k("s_mov_b32 s%d, 0" % S_WOFF)
    k("s_lshl_b32 s%d, s%d, 5" % (S_T3, S_STRIDE))

def touch_setup(k):
    k("v_lshrrev_b32 v26, 2, v0")
    k("v_and_b32 v27, 3, v0")
    k("s_lshl_b32 s%d, s%d, 1" % (S_T0, S_MT))
    k("s_add_u32 s%d, s%d, s%d" % (S_T0, S_T0, S_C))
    k("v_lshlrev_b32 v28, 5, v26")
    k("v_add_u32 v28, s%d, v28" % S_T0)
    k("v_mul_lo_u32 v28, v28, s%d" % S_STRIDE)
    k("v_min_u32 v29, 2, v27")
    k("v_lshl_add_u32 v%d, v29, 7, v28" % V_TW)
    k("s_lshl_b32 s%d, s%d, 4" % (S_T0, S_TY))
    k("s_lshl_b32 s%d, s%d, 2" % (S_T1, S_W))
    k("s_add_u32 s%d, s%d, s%d" % (S_T0, S_T0, S_T1))
    k("v_add_u32 v27, s%d, v27" % S_T0)
    k("v_mul_u32_u24 v27, 1280, v27")
    k("v_lshl_add_u32 v%d, v26, 7, v27" % V_TX)
    k("s_cmp_eq_u32 s%d, 0" % S_RH)
    for i in range(3): k("s_cselect_b32 s%d, s%d, s%d" % (SRD_T+i, SRD_W0+i, SRD_W1+i))
    k("s_mov_b32 s%d, 0x20000" % (SRD_T+3))
def masked(n, t):
    if n >= 16: return t
    return "s_bfm_b64 exec, %d, 0\n%s\ns_mov_b64 exec, -1" % (4*n, t)
def touch_items(stage):
    out = []
    for (st, first, n) in cfg.TW:
        if st == stage:
            out.append(("s_mul_i32 s101, s%d, %d" % (S_STRIDE, 32*first), masked(n, "buffer_load_dword v%d, v%d, s[%d:%d], s101 offen nt" % (V_JUNK, V_TW, SRD_T, SRD_T+3)), "pf"))
    for (st, first, n) in cfg.TX:
        if st == stage:
            out.append((None, masked(n, "buffer_load_dword v%d, v%d, s[%d:%d], 0 offen offset:%d" % (V_JUNK, V_TX, SRD_X, SRD_X+3, first*128)), "pf"))
    return out

def gemm_setup2(k, att):
    npt = 5 if att else 6
    k("v_and_b32 v54, 15, v0")
    k("v_lshrrev_b32 v55, 4, v0")
    k("v_bfe_u32 v26, v54, 1, 3")
    k("v_xor_b32 v26, v26, v55")
    k("s_lshl_b32 s%d, s%d, 13" % (S_T0, S_RH))
    k("s_add_u32 s%d, s%d, %d" % (S_T0, S_T0, XBASE))
    k("v_lshlrev_b32 v27, 7, v54")
    k("v_add_u32 v27, s%d, v27" % S_T0)
    k("v_lshl_add_u32 v%d, v26, 4, v27" % V_XR)
    k("v_xor_b32 v%d, 64, v%d" % (V_XR+1, V_XR))
    k("v_bfe_u32 v26, v0, 2, 2")
    k("v_and_b32 v27, 3, v0")
    k("v_lshrrev_b32 v28, 1, v26")
    k("v_and_b32 v29, 1, v55")
    k("v_lshl_or_b32 v28, v29, 1, v28")
    k("v_lshlrev_b32 v28, 5, v28")
    k("v_mul_u32_u24 v29, 6144, v55")
    k("v_lshl_add_u32 v29, v26, 7, v29")
    if att:
        k("s_mul_i32 s%d, s%d, 160" % (S_T0, S_C))
        k("s_add_u32 s%d, s%d, s%d" % (S_T0, S_T0, S_DELTA))
        k("v_mul_u32_u24 v27, 40, v27")
    else:
        k("s_mul_i32 s%d, s%d, 192" % (S_T0, S_C))
        k("v_lshlrev_b32 v27, 3, v27")
    k("v_add_u32 v27, s%d, v27" % S_T0)
    for p in range(npt):
        k("v_add_u32 v30, %d, v27" % (p * (8 if att else 32)))
        k("v_lshrrev_b32 v31, 7, v30")
        k("v_and_b32 v30, 127, v30")
        k("v_xor_b32 v30, v30, v28")
        k("v_lshl_add_u32 v31, v31, 10, v29")
        k("v_add_u32 v%d, v30, v31" % (V_TA+p))
        k("v_add_u32 v%d, %d, v%d" % (V_TA+6+p, 2*WSLOT, V_TA+p))

def w_dma(s):
    return [("s_add_u32 m0, s%d, %d" % (S_WL, (s % RW)*WSLOT + (seg*3+lc)*1024 - lc*128),
             "buffer_load_dwordx4 v%d, s[%d:%d], s%d offen offset:%d lds" % (V_WD, SRD_W0+4*seg, SRD_W0+4*seg+3, S_WOFF, lc*128), ("W", s))
            for seg in range(2) for lc in range(3)]
def x_dma(u, i):
    return ("s_add_u32 m0, s%d, %d" % (S_XL, (u % RX)*XSLOT + i*1024 - u*128),
            "buffer_load_dwordx4 v%d, s[%d:%d], 0 offen offset:%d lds" % (V_XD+i, SRD_X, SRD_X+3, u*128), ("X", u))
def reads_for(s, npt):
    out = []; b = s & 1
    for rt in range(4):
        out.append("ds_read_b128 %s, v%d offset:%d" % (R(XF0 + (b*4+rt)*4, 4), V_XR + (s & 1), ((s >> 1) % RX)*XSLOT + rt*2048))
    slot = s % RW
    for p in range(npt):
        for seg in range(2):
            for h in range(2):
                out.append("ds_read_b64_tr_b16 %s, v%d offset:%d" % (R(WF0 + (b*12+p*2+seg)*4 + 2*h, 2), V_TA + p + (6 if slot >= 2 else 0), (slot & 1)*WSLOT + seg*3072 + h*512))
    return out
def acc(p, seg, rt): return ACC0 + ((p*2+seg)*4 + rt)*4

def late_setup_items():
    k = K()
    k("s_and_b32 s%d, s2, 7" % S_T1)
    k("s_lshr_b32 s%d, s2, 3" % S_OH)
    if cfg.P2M == 4:
        k("s_lshl_b32 s%d, s%d, 2" % (S_M64, S_T1)); k("s_and_b32 s%d, s%d, 3" % (S_T0, S_OH)); k("s_add_u32 s%d, s%d, s%d" % (S_M64, S_M64, S_T0))
        k("s_lshr_b32 s%d, s%d, 2" % (S_NT, S_OH))
    else:
        k("s_lshr_b32 s%d, s%d, 1" % (S_M64, S_T1)); k("s_lshl_b32 s%d, s%d, 3" % (S_M64, S_M64)); k("s_and_b32 s%d, s%d, 7" % (S_T0, S_OH)); k("s_add_u32 s%d, s%d, s%d" % (S_M64, S_M64, S_T0))
        k("s_and_b32 s%d, s%d, 1" % (S_NT, S_T1)); k("s_lshl_b32 s%d, s%d, 2" % (S_NT, S_NT)); k("s_lshr_b32 s%d, s%d, 3" % (S_T0, S_OH)); k("s_add_u32 s%d, s%d, s%d" % (S_NT, S_NT, S_T0))
    k("s_lshr_b32 s%d, s%d, 1" % (S_OMT, S_OH))
    k("s_and_b32 s%d, s%d, 1" % (S_OH, S_OH)); k("s_lshl_b32 s%d, s%d, 1" % (S_T0, S_T1)); k("s_add_u32 s%d, s%d, s%d" % (S_OH, S_OH, S_T0))
    k("s_mul_i32 s%d, s%d, %d" % (S_T0, S_NT, 74*5120))
    srd(k, SRD_B, P_WS, B2_OFF, 74*5120, S_T0)
    k("s_mul_i32 s%d, s%d, 5120" % (S_BB, S_W))
    k("s_add_u32 s%d, s%d, 0x%x" % (S_CNT, P_WS, CNT_OFF))
    k("s_addc_u32 s%d, s%d, 0" % (S_CNT+1, P_WS+1))
    k("v_add_u32 v%d, 4096, v%d" % (V_L16B, V_L16))
    k("s_mov_b32 s%d, %s" % (S_C2, f32(LOG2E))); k("s_mov_b32 s%d, %s" % (S_C2+1, f32(LOG2E)))
    return [t for _, t in k.items]

def dma_queue():
    Q = []
    for st in range(20):
        if st % 2 == 0:
            u = st // 2
            for i in range(4): Q.append((-1 if u < RX else 2*(u-RX)+1, x_dma(u, i), False))
        it = w_dma(st)
        for i, d in enumerate(it): Q.append((-1 if st < RW else st-RW, d, i == len(it)-1))
    return Q
def wadv(k): k("s_add_u32 s%d, s%d, s%d" % (S_WOFF, S_WOFF, S_T3))
def issue_now(k, Q, n):
    for _ in range(n):
        av, it, last = Q.pop(0)
        k(it[0]); k.vm(it[1], it[2])
        if last: wadv(k)

def spread(items, s0, s1):
    out = {}; n = len(items); i = 0
    for s in range(s0, s1):
        c = -(-(n - i) // (s1 - s)); out[s] = items[i:i+c]; i += c
    return out

def gemm_main(k, att, gate, Q, extra, polls, xrd=None, xwait=None, xsetup=None):
    npt = 5 if att else 6
    Q = list(Q)
    if gate:
        for i in range(2):
            k("s_add_u32 m0, s%d, %d" % (S_XL, SPARE - XBASE))
            k.vm("buffer_load_dwordx4 v%d, s[%d:%d], 0 offen offset:%d lds" % (V_L16, SRD_O, SRD_O+3, i*1024), ("W", 0))
    issue_now(k, Q, cfg.N2)
    gemm_setup2(k, att)
    if gate:
        k("s_add_u32 s%d, s%d, %d" % (S_T0, S_XL, SPARE - XBASE))
        k("v_lshrrev_b32 v17, 4, v0")
        k("v_lshlrev_b32 v17, 4, v17")
        k("v_add_u32 v17, s%d, v17" % S_T0)
    for t in late_setup_items(): k(t)
    if xsetup: xsetup(k)
    def rds(s):
        r = reads_for(s, npt)
        if gate: r.append("ds_read_b128 %s, v17 offset:%d" % (R(GF0 + (s & 1)*4, 4), s*64))
        return r
    stamp(k, 2)
    k.wait(vm=[("X", 0), ("W", 0)])
    k("s_barrier")
    stamp(k, 3)
    for r in rds(0): k.lg(r)
    issue_now(k, Q, cfg.N3)
    k.wait(vm=[("W", 1)], lg="all")
    k("s_barrier")
    for s in range(20):
        b = s & 1
        rd = rds(s+1) if s < 19 else []
        if xrd and s in xrd: rd += xrd[s]
        dm = []
        while Q and Q[0][0] <= s and len(dm) < cfg.MAXD: dm.append(Q.pop(0))
        ex = [(0, e, False) for e in extra.get(s, []) + touch_items(s)]
        mix = []
        while dm or ex:
            if dm: mix.append(dm.pop(0))
            if ex and len(ex) >= len(dm): mix.append(ex.pop(0))
        dm = mix
        mf = []
        for p in range(npt):
            for seg in range(2):
                for rt in range(4):
                    a = acc(p, seg, rt)
                    mf.append("v_mfma_f32_16x16x32_bf16 %s, %s, %s, %s" % (R(a,4), R(WF0 + (b*12+p*2+seg)*4, 4), R(XF0 + (b*4+rt)*4, 4), R(a,4) if s else "0"))
        if gate:
            for rt in range(4):
                a = GACC + rt*4
                mf.append("v_mfma_f32_16x16x32_bf16 %s, %s, %s, %s" % (R(a,4), R(GF0 + b*4, 4), R(XF0 + (b*4+rt)*4, 4), R(a,4) if s else "0"))
        nm = len(mf); nd = len(dm)
        at = [int(i * (nm - 3) / max(nd, 1)) for i in range(nd)]
        for i in range(1, nd): at[i] = max(at[i], at[i-1] + 2)
        pend = None
        for m, t in enumerate(mf):
            k(t)
            if rd: k.lg(rd.pop(0))
            if (s+1) in polls and m == nm - 1: poll_issue(k, P_DBG, polls[s+1], ("poll", s+1))
            if pend is not None:
                k.vm(pend[1][1], pend[1][2])
                if pend[2]: wadv(k)
                pend = None
            elif dm and m >= at[nd - len(dm)]:
                pend = dm.pop(0)
                if pend[1][0]: k(pend[1][0])
        assert not rd and not dm and pend is None, (s, rd, dm, pend)
        if s < 19:
            k.wait(vm=[("W", s+2), ("X", (s+2) >> 1)] + (xwait.get(s, []) if xwait else []), lg="all")
        if s in polls: poll_check(k, P_DBG, 16, ("poll", s), sleep=8)
        if s < 19:
            k("s_barrier")
            if cfg.STG and s % 2 == 1: stamp(k, 17 + s//2)
    assert not Q
    stamp(k, 4)

def ffn_setup(k):
    k("s_lshl_b32 s75, s%d, 1" % S_MT)
    k("s_add_u32 s75, s75, s%d" % S_RH)
    k("s_mul_i32 s75, s75, 74")
    k("s_mul_i32 s76, s%d, 6" % S_TY)
    k("s_add_u32 s75, s75, s76")
    k("s_mul_i32 s76, s%d, 3" % S_C)
    k("s_add_u32 s75, s75, s76")
    k("s_add_u32 s75, s75, 20")
    k("s_lshl_b32 s75, s75, 12")
    k("s_lshl_b32 s%d, s%d, 7" % (S_SIG, S_MT))
    srd(k, SRD_O, P_WS, A2_OFF, A2_SZ)

def ffn_role(k, Q):
    extra = spread(b_items(range(cfg.NBF)), cfg.PS1, 20)
    gemm_main(k, False, False, Q, extra, {cfg.PS1-1: D_S1, 19: D_S3}, xsetup=ffn_setup)
    fd = Feed(k, b_items(range(cfg.NBF, 70)) + bo_items())
    per, last = cfg.FFE
    n = 0
    for ks in range(3):
        for rt in range(4):
            T = 6 + (n & 1)*8; O = 22 + (n & 1)*4; n += 1
            if O & 3: O = (24, 28)[(n-1) & 1] - 0
            fe = lambda i: fd.emit(1) if (n <= last and i < per) else None
            G = [acc(2*ks+j, 0, rt) for j in range(2)]; U = [acc(2*ks+j, 1, rt) for j in range(2)]
            O = U[0]
            prs = [(j, h) for j in range(2) for h in range(2)]
            for i, (j, h) in enumerate(prs):
                k("v_pk_mul_f32 %s, %s, s[%d:%d] neg_lo:[0,1] neg_hi:[0,1]" % (vr(T+2*i,2), vr(G[j]+2*h,2), S_C2, S_C2+1))
            fe(0)
            for i in range(8): k("v_exp_f32 v%d, v%d" % (T+i, T+i))
            fe(2)
            for i, (j, h) in enumerate(prs):
                k("v_pk_mul_f32 %s, %s, %s" % (vr(G[j]+2*h,2), vr(G[j]+2*h,2), vr(U[j]+2*h,2)))
            for i in range(4): k("v_pk_add_f32 %s, %s, 1.0 op_sel_hi:[1,0]" % (vr(T+2*i,2), vr(T+2*i,2)))
            fe(1)
            for i in range(8): k("v_rcp_f32 v%d, v%d" % (T+i, T+i))
            fe(3)
            for i, (j, h) in enumerate(prs):
                k("v_pk_mul_f32 %s, %s, %s" % (vr(T+2*i,2), vr(G[j]+2*h,2), vr(T+2*i,2)))
            for i in range(4): k("v_cvt_pk_bf16_f32 v%d, v%d, v%d" % (O+i, T+2*i, T+2*i+1))
            k.vm("buffer_store_dwordx4 %s, v%d, s[%d:%d], s75 offen offset:%d%s" % (vr(O,4), V_L16, SRD_O, SRD_O+3, rt*1024, SC), "st")
        if ks < 2: k("s_add_u32 s75, s75, 4096")
    stamp(k, 26)
    k.wait(vm="st")
    stamp(k, 5)
    signal(k, S_CNT, "s%d" % S_SIG)
    fd.drain()

def phi_dma(seg, s_off):
    out = [("s_add_u32 m0, s%d, %d" % (S_WL, seg*WSLOT),
            "buffer_load_dwordx4 v%d, s[%d:%d], s%d offen offset:%d lds" % (V_L16, SRD_P, SRD_P+3, s_off, i*1024), ("P", seg)) for i in range(4)]
    out.append(("s_add_u32 m0, s%d, %d" % (S_WL, seg*WSLOT + 4096),
                "buffer_load_dwordx4 v%d, s[%d:%d], s82 offen lds" % (V_L16, SRD_P, SRD_P+3), ("P", seg)))
    return out
def phireg(seg, to, s):
    i = s*5 + to
    if seg == 1: return 256 + 48 + 4*i if i < 10 else 256 + 108 + 4*(i-10)
    return 256 + 4*i if i < 12 else 256 + 96 + 4*(i-12)
V_PHA = 23
def phi_reads(seg):
    out = []
    for s in range(3):
        for to in range(5):
            for h in range(2):
                d = phireg(seg, to, s) + 2*h
                if s == 2 and h == 1: out.append("ds_read_b64_tr_b16 %s, v26 offset:%d" % (R(d,2), seg*WSLOT))
                else: out.append("ds_read_b64_tr_b16 %s, v%d offset:%d" % (R(d,2), V_PHA, seg*WSLOT + (8*s+4*h)*40 + 8*to))
    return out
def cvt_in(seg, rt, B):
    out = []
    for t in range(5):
        a = acc(t, seg, rt)
        out.append("v_cvt_pk_bf16_f32 v%d, v%d, v%d" % (B+2*t, a, a+1))
        out.append("v_cvt_pk_bf16_f32 v%d, v%d, v%d" % (B+2*t+1, a+2, a+3))
    return out
def phi_mf(seg, rt, B):
    return ["v_mfma_f32_16x16x32_bf16 %s, %s, %s, %s" % (vr(acc(to,seg,rt),4), R(phireg(seg, to, s),4), vr(B+4*s,4), vr(acc(to,seg,rt),4) if s else "0")
            for s in range(3) for to in range(5)]

PKRS = 352; VRS = 224; PKSZ = 128*PKRS; VB = 2*PKSZ; VSZ = 128*VRS
V_E0, V_E1, V_E2, V_E3, V_E4, V_E5, V_E6 = 27, 28, 29, 30, 60, 61, 62
def att_common_setup(k):
    k("v_lshrrev_b32 v50, 4, v0")
    k("v_and_b32 v51, 15, v0")
    k("v_bfe_u32 v52, v0, 2, 2")
    k("v_and_b32 v53, 3, v0")
    k("v_mul_u32_u24 v48, 800, v50")
    k("v_mad_u32_u24 v48, v52, 40, v48")
    k("v_cmp_eq_u32 vcc, v50, v53")
    k("v_mov_b32 v49, 4096")
    k("v_cndmask_b32 v48, v49, v48, vcc")
    k("v_add_u32 v%d, s%d, v48" % (V_PHA, S_WL))
    k("v_add_u32 v26, s%d, v49" % S_WL)
    k("v_and_b32 v48, 31, v0"); k("v_lshlrev_b32 v48, 7, v48")
    k("v_lshrrev_b32 v49, 5, v0"); k("v_mul_u32_u24 v49, 12800, v49"); k("v_add_u32 v48, v48, v49")
    k.vm("buffer_load_dword v%d, v48, s[%d:%d], s80 offen" % (V_JUNK, SRD_P, SRD_P+3), "pf")
def kv_setup(k):
    att_common_setup(k)
    k("s_add_u32 s%d, s%d, %d" % (S_SIG, S_TY, C_K - 9))
    k("s_lshl_b32 s%d, s%d, 7" % (S_SIG, S_SIG))
    k("s_lshl_b32 s%d, s%d, 6" % (S_T0, S_RH))
    k("v_add_u32 v48, s%d, v51" % S_T0)
    k("s_mul_i32 s%d, s%d, %d" % (S_T0, S_C, PKSZ))
    k("v_mul_u32_u24 v%d, %d, v48" % (V_E0, PKRS))
    k("v_mul_u32_u24 v49, 80, v50")
    k("v_add3_u32 v%d, v%d, v49, s%d" % (V_E0, V_E0, S_T0))
    k("s_mul_i32 s%d, s%d, %d" % (S_T1, S_C, VSZ))
    k("s_add_u32 s%d, s%d, %d" % (S_T1, S_T1, VB))
    k("v_mul_u32_u24 v%d, %d, v48" % (V_E1, VRS))
    k("v_mul_u32_u24 v49, 48, v50")
    k("v_add3_u32 v%d, v%d, v49, s%d" % (V_E1, V_E1, S_T1))
    k("v_lshrrev_b32 v48, 2, v0")
    k("v_lshlrev_b32 v49, 3, v53")
    k("s_mul_i32 s%d, s%d, 160" % (S_T2, S_RH))
    k("s_add_u32 s%d, s%d, s%d" % (S_T0, S_T0, S_T2))
    k("v_mul_u32_u24 v%d, %d, v48" % (V_E2, PKRS))
    k("v_add3_u32 v%d, v%d, v49, s%d" % (V_E2, V_E2, S_T0))
    k("s_mul_i32 s%d, s%d, 96" % (S_T2, S_RH))
    k("s_add_u32 s%d, s%d, s%d" % (S_T1, S_T1, S_T2))
    k("v_mul_u32_u24 v%d, %d, v48" % (V_E3, VRS))
    k("v_add3_u32 v%d, v%d, v49, s%d" % (V_E3, V_E3, S_T1))
    k("s_add_u32 s%d, s%d, %d" % (S_T2, S_XL, SPARE - XBASE))
    k("v_mul_u32_u24 v48, 80, v51")
    k("v_lshl_add_u32 v48, v50, 3, v48")
    k("v_add_u32 v%d, s%d, v48" % (V_E5, S_T2))
    k("v_add_u32 v%d, s%d, v%d" % (V_E6, S_T2, V_L16))
    k("v_mov_b32 v48, 0x7fffffff")
    k("v_cmp_gt_u32 vcc, 32, v0")
    k("v_cndmask_b32 v%d, v48, v%d, vcc" % (V_E4, V_L16))
    k("s_lshl_b32 s78, s79, 1")
    k("s_add_u32 s78, s78, s%d" % S_RH)
    k("s_lshl_b32 s78, s78, 4")
    k("s_add_u32 s78, s78, s%d" % S_MT)
    k("s_mul_i32 s78, s78, %d" % KVPS)
    k("v_cmp_gt_u32 s[72:73], 2, v50")
    k("v_cmp_gt_u32 s[74:75], 5, v51")
    k("s_and_b64 s[76:77], s[72:73], s[74:75]")
    srd(k, SRD_O, P_WS, KVP_OFF, KVP_SZ)
    for r in (42, 43, 54, 55): k("v_mov_b32 v%d, 0" % r)
    for O in (232, 244):
        k("v_mov_b32 v%d, 0x3f80" % (O+10)); k("v_mov_b32 v%d, 0" % (O+11))
def q_setup(k):
    att_common_setup(k)
    k("s_mov_b32 s%d, 81920" % S_T0)
    k("v_mul_lo_u32 v48, v50, s%d" % S_T0)
    k("v_lshl_add_u32 v%d, v51, 4, v48" % V_E0)
    k("v_lshl_add_u32 v%d, v51, 3, v48" % V_E1)
    k("v_lshlrev_b32 v%d, 2, v0" % V_E2)
    k("s_mul_i32 s%d, s79, %d" % (S_T1, 4*81920))
    k("s_lshl_b32 s%d, s%d, 1" % (S_T0, S_MT))
    k("s_add_u32 s%d, s%d, s%d" % (S_T0, S_T0, S_RH))
    k("s_lshl_b32 s75, s%d, 10" % S_T0)
    k("s_add_u32 s75, s75, s%d" % S_T1)
    k("s_add_u32 s76, s75, 32768")
    k("s_lshl_b32 s77, s%d, 9" % S_T0)
    k("s_add_u32 s77, s77, s%d" % S_T1)
    k("s_add_u32 s77, s77, 65536")
    k("s_lshl_b32 s78, s%d, 8" % S_T0)
    k("s_add_u32 s78, s78, %d" % (G_OFF - PQ_OFF))
    k("s_add_u32 s%d, s%d, %d" % (S_SIG, S_MT, C_Q))
    k("s_lshl_b32 s%d, s%d, 7" % (S_SIG, S_SIG))
    srd(k, SRD_O, P_WS, PQ_OFF, G_OFF + G_SZ - PQ_OFF)
    for r in (42, 43, 54, 55): k("v_mov_b32 v%d, 0" % r)

def softmax_pm(k, P, E, T, O, fd=None, mf=None, side=None):
    def fe(n=1):
        if fd: fd.emit(n)
    mf = list(mf or []); side = list(side or [])
    v = [p + i for p in P for i in range(2)]
    k("v_max3_f32 v%d, v%d, v%d, v%d" % (T, v[0], v[1], v[2]))
    k("v_min3_f32 v%d, v%d, v%d, v%d" % (T+2, v[0], v[1], v[2]))
    k("v_max3_f32 v%d, v%d, v%d, v%d" % (T+1, v[3], v[4], v[5]))
    k("v_min3_f32 v%d, v%d, v%d, v%d" % (T+3, v[3], v[4], v[5]))
    for n, i in enumerate(range(6, 20, 2)):
        c = n & 1
        k("v_max3_f32 v%d, v%d, v%d, v%d" % (T+c, T+c, v[i], v[i+1]))
        k("v_min3_f32 v%d, v%d, v%d, v%d" % (T+2+c, T+2+c, v[i], v[i+1]))
    fe()
    k("v_max_f32 v%d, v%d, v%d" % (T, T, T+1))
    k("v_min_f32 v%d, v%d, v%d" % (T+2, T+2, T+3))
    k("v_mul_f32 v%d, %s, v%d" % (T, f32(-LOG2E), T))
    k("v_mul_f32 v%d, %s, v%d" % (T+2, f32(LOG2E), T+2))
    for i, p in enumerate(P):
        k("v_pk_fma_f32 %s, %s, s[%d:%d], %s op_sel_hi:[1,1,0]" % (vr(E+2*i,2), vr(p,2), S_C2, S_C2+1, vr(T,2)))
    fe()
    for i, p in enumerate(P):
        k("v_pk_fma_f32 %s, %s, s[%d:%d], %s op_sel_hi:[1,1,0] neg_lo:[0,1,0] neg_hi:[0,1,0]" % (vr(p,2), vr(p,2), S_C2, S_C2+1, vr(T+2,2)))
    ex = [E+i for i in range(20)] + v
    for i, x in enumerate(ex):
        if i % 2 == 0:
            if mf: k(mf.pop(0))
            if side: k.lg(*side.pop(0))
        if i % 12 == 5: fe()
        k("v_exp_f32 v%d, v%d" % (x, x))
    assert not mf and not side
    Ep = [E+2*i for i in range(10)]
    k("v_pk_add_f32 %s, %s, %s" % (vr(T+4,2), vr(Ep[0],2), vr(Ep[1],2)))
    k("v_pk_add_f32 %s, %s, %s" % (vr(T,2), vr(Ep[2],2), vr(Ep[3],2)))
    k("v_pk_add_f32 %s, %s, %s" % (vr(T+6,2), vr(P[0],2), vr(P[1],2)))
    k("v_pk_add_f32 %s, %s, %s" % (vr(T+2,2), vr(P[2],2), vr(P[3],2)))
    for i in range(4, 10, 2):
        k("v_pk_add_f32 %s, %s, %s" % (vr(T+4,2), vr(T+4,2), vr(Ep[i],2)))
        k("v_pk_add_f32 %s, %s, %s" % (vr(T,2), vr(T,2), vr(Ep[i+1],2)))
        k("v_pk_add_f32 %s, %s, %s" % (vr(T+6,2), vr(T+6,2), vr(P[i],2)))
        k("v_pk_add_f32 %s, %s, %s" % (vr(T+2,2), vr(T+2,2), vr(P[i+1],2)))
    k("v_pk_add_f32 %s, %s, %s" % (vr(T+4,2), vr(T+4,2), vr(T,2)))
    k("v_pk_add_f32 %s, %s, %s" % (vr(T+6,2), vr(T+6,2), vr(T+2,2)))
    fe()
    k("v_add_f32 v%d, v%d, v%d" % (T+4, T+4, T+5))
    k("v_add_f32 v%d, v%d, v%d" % (T+6, T+6, T+7))
    k("v_rcp_f32 v%d, v%d" % (T+4, T+4))
    k("v_rcp_f32 v%d, v%d" % (T+6, T+6))
    for i in range(10): k("v_pk_mul_f32 %s, %s, %s op_sel_hi:[1,0]" % (vr(Ep[i],2), vr(Ep[i],2), vr(T+4,2)))
    fe()
    for i in range(10): k("v_pk_mul_f32 %s, %s, %s op_sel_hi:[1,0]" % (vr(P[i],2), vr(P[i],2), vr(T+6,2)))
    for i in range(10): k("v_cvt_pk_bf16_f32 v%d, v%d, v%d" % (O+i, Ep[i], Ep[i]+1))
    fe()
    for i in range(10): k("v_cvt_pk_bf16_f32 v%d, v%d, v%d" % (O+10+i, P[i], P[i]+1))

def att_extra(two):
    extra = spread(b_items(range(cfg.NBA)), cfg.PS1, 20)
    extra[16] = phi_dma(0, 80) + extra[16]
    if two: extra[17] = phi_dma(1, 81) + extra[17]
    return extra

def q_role(k, Q):
    srd(k, SRD_O, P_GW, 0, 1280)
    gemm_main(k, True, True, Q, att_extra(True), {cfg.PS1-1: D_S1}, xrd={19: phi_reads(0)}, xwait={18: [("P", 0)]}, xsetup=q_setup)
    k.wait(vm=("P", 1))
    for t in cvt_in(0, 0, 32): k(t)
    gate = ["v_lshrrev_b32 v24, 4, v0"]
    for rt in range(1, 4):
        gate += ["v_cmp_eq_u32 vcc, %d, v24" % rt, "v_cndmask_b32 v%d, v%d, v%d, vcc" % (GACC, GACC, GACC+4*rt)]
    gate += ["v_mul_f32 v25, %s, v%d" % (f32(-LOG2E), GACC), "v_exp_f32 v25, v25", "v_add_f32 v25, 1.0, v25", "v_rcp_f32 v25, v25",
             ("vm", "buffer_store_dword v25, v%d, s[%d:%d], s78 offen%s" % (V_E2, SRD_O, SRD_O+3, SC), "st")]
    rd1 = [("lg", r, "ph1") for r in phi_reads(1)]
    def outs(u):
        seg, rt = u >> 2, u & 3
        O = (240, 8)[u & 1]
        f = cvt_in(seg, rt, O)
        f.insert(4, ("vm", "buffer_store_dwordx4 %s, v%d, s[%d:%d], s75 offen offset:%d%s" % (vr(O,4), V_E0, SRD_O, SRD_O+3, rt*256, SC), "st"))
        f.insert(9, ("vm", "buffer_store_dwordx4 %s, v%d, s[%d:%d], s76 offen offset:%d%s" % (vr(O+4,4), V_E0, SRD_O, SRD_O+3, rt*256, SC), "st"))
        f.append(("vm", "buffer_store_dwordx2 %s, v%d, s[%d:%d], s77 offen offset:%d%s" % (vr(O+8,2), V_E1, SRD_O, SRD_O+3, rt*128, SC), "st"))
        if u == 3: f += ["s_add_u32 s%d, s%d, %d" % (x, x, 16*81920) for x in (75, 76, 77)]
        return f
    k.wait(lg="all")
    for u in range(8):
        seg, rt = u >> 2, u & 3
        fill = []
        if u < 7: fill += cvt_in((u+1) >> 2, (u+1) & 3, 32 + ((u+1) & 1)*12)
        if u == 0: fill += rd1[:14] + gate[:6]
        elif u == 1: fill += outs(0) + rd1[14:21]
        elif u == 2: fill += outs(1) + rd1[21:28]
        elif u == 3: fill += rd1[28:] + outs(2) + gate[6:]
        else: fill += outs(u-1)
        if u == 4: k.wait(lg="all")
        weave(k, phi_mf(seg, rt, 32 + (u & 1)*12), fill)
    weave(k, [], outs(7))
    poll_issue(k, P_DBG, D_S3, "s3")
    k.wait(vm="st")
    poll_check(k, P_DBG, 16, "s3", sleep=8)
    stamp(k, 5)
    signal(k, S_CNT, "s%d" % S_SIG)
    Feed(k, b_items(range(cfg.NBA, 70)) + bo_items()).drain()

def kv_role(k, Q):
    gemm_main(k, True, False, Q, att_extra(False), {cfg.PS1-1: D_S1}, xrd={19: phi_reads(0)}, xwait={18: [("P", 0)]}, xsetup=kv_setup)
    EREG = 6; TREG = 244; O = 224
    for t in cvt_in(0, 0, 32): k(t)
    def vout(rt):
        B = (232, 244)[rt & 1]
        f = cvt_in(1, rt, B)
        f += [("lg", "ds_write_b128 v%d, %s offset:%d" % (V_E1, vr(B+4*i,4), rt*16*VRS + 16*i), ("vw", rt)) for i in range(3)]
        if rt >= 2: f.insert(0, lambda rt=rt: k.wait(lg=("vw", rt-2)))
        return f
    k.wait(lg="all")
    weave(k, phi_mf(0, 0, 32), cvt_in(0, 1, 44) + vout(0) + vout(1) + vout(2) + vout(3))
    k.wait(lg="all")
    k("s_barrier")
    if not cfg.STG: stamp(k, 17)
    def vfr(n, bt): return acc((n*2+bt) >> 2, 1, (n*2+bt) & 3)
    vreads = []
    for n in range(8):
        j, ks = n >> 2, n & 3
        for bt in range(2):
            for h in range(2):
                vreads.append(("ds_read_b64_tr_b16 %s, v%d offset:%d" % (vr(vfr(n,bt)+2*h,2), V_E3, (32*ks+16*h)*VRS + j*48 + bt*32), "vf"))
    free1 = list(range(52, 64)) + [67, 68, 69]
    free2 = list(range(40, 52)) + [64, 65, 66]
    fd = Feed(k, b_items(range(cfg.NBA, 32)))
    for rt in range(4):
        P = [acc(t, 0, rt) + 2*h for t in range(5) for h in range(2)]
        mf = phi_mf(0, rt+1, 32 + ((rt+1) & 1)*12) if rt < 3 else []
        if rt == 1: poll_issue(k, P_DBG, D_S3, "s3")
        if rt == 2:
            poll_check(k, P_DBG, 16, "s3", sleep=8)
            fd.q += b_items(free1)
        softmax_pm(k, P, EREG, TREG, O, fd, mf, vreads[rt*8:(rt+1)*8])
        for i in range(5):
            k.lg("ds_write_b128 v%d, %s offset:%d" % (V_E0, vr(O+4*i,4), rt*16*PKRS + 16*i), ("pw", rt))
        if rt < 2:
            for t in cvt_in(0, rt+2, 32 + (rt & 1)*12): k(t)
        if not cfg.STG: stamp(k, 18+rt)
    fd.drain()
    fd.q += b_items(free2)
    k.wait(lg="all")
    k("s_barrier")
    if not cfg.STG: stamp(k, 22)
    KAQ = [32, 36, 40, 44, 48, 52, 224, 228, 232, 236, 240, 244]
    def pfr(n, ft): return acc(((n % 6)*3+ft) >> 2, 0, ((n % 6)*3+ft) & 3)
    def rd(n):
        j, ks = n >> 2, n & 3
        return [("lg", "ds_read_b64_tr_b16 %s, v%d offset:%d" % (vr(pfr(n,ft)+2*h,2), V_E2, (32*ks+16*h)*PKRS + j*80 + ft*32), ("f", n)) for ft in range(3) for h in range(2)]
    def pack(jj):
        f = []
        for ft in range(3):
            for bt in range(2):
                a = KAQ[(jj*3+ft)*2+bt]
                f += ["v_cvt_pk_bf16_f32 v%d, v%d, v%d" % (a, a, a+1), "v_cvt_pk_bf16_f32 v%d, v%d, v%d" % (a+1, a+2, a+3)]
                mask = [[None, "s[74:75]"], [None, "s[74:75]"], ["s[72:73]", "s[76:77]"]][ft][bt]
                w = "ds_write_b64 v%d, %s offset:%d" % (V_E5, vr(a,2), jj*1680 + bt*1280 + ft*32)
                if mask: w = "s_mov_b64 exec, %s\n%s\ns_mov_b64 exec, -1" % (mask, w)
                f.append(("lg", w, "cw"))
        return f
    weave(k, [], rd(0) + rd(1))
    pk0 = pack(0)
    for n in range(8):
        j, ks = n >> 2, n & 3
        k.wait(lg=("f", n))
        mf = []
        for ft in range(3):
            for bt in range(2):
                a = KAQ[(j*3+ft)*2+bt]
                mf.append("v_mfma_f32_16x16x32_bf16 %s, %s, %s, %s" % (vr(a,4), vr(pfr(n,ft),4), vr(vfr(n,bt),4), vr(a,4) if ks else "0"))
        fill = rd(n+2) if n < 6 else []
        if n < 5: fill.append(lambda: fd.emit(1))
        if n >= 5: fill += pk0[(n-5)*6:(n-4)*6]
        weave(k, mf, fill)
    weave(k, [], pack(1))
    k.wait(lg="all")
    for i in range(4): k.lg("ds_read_b128 %s, v%d offset:%d" % (vr(64+4*i,4), V_E6, i*1024), ("cr", i))
    for i in range(4):
        k.wait(lg=("cr", i))
        k.vm("buffer_store_dwordx4 %s, v%d, s[%d:%d], s78 offen offset:%d%s" % (vr(64+4*i,4), V_L16 if i < 3 else V_E4, SRD_O, SRD_O+3, i*1024, SC), "st")
    stamp(k, 26)
    fd.emit(4)
    k.wait(vm="st")
    stamp(k, 5)
    signal(k, S_CNT, "s%d" % S_SIG)
    fd.drain()
    Feed(k, b_items(range(32, 40)) + bo_items()).drain()

def aux_role(k):
    NSL = 9
    order = [("d", i) for i in range(6)] + [("o", i) for i in range(4)] + [("d", i) for i in range(6, 9)]
    NU = len(order)
    k("s_mov_b32 s%d, 1280" % S_STRIDE)
    k("s_lshl_b32 s75, s%d, 2" % S_MT)
    k("s_add_u32 s75, s75, s%d" % S_W)
    k("s_mul_i32 s76, s75, 205"); k("s_lshr_b32 s76, s76, 11")
    k("s_mul_i32 s77, s76, 10"); k("s_sub_u32 s77, s75, s77")
    k("s_cmp_ge_u32 s76, 6")
    k("s_cselect_b32 s78, 0x4000000, 0")
    k("s_mul_i32 s79, s76, %d" % (32*1280))
    k("s_lshl_b32 s80, s77, 7")
    k("s_add_u32 s79, s79, s80")
    k("s_add_u32 s79, s79, s78")
    k("v_lshrrev_b32 v24, 3, v0"); k("v_and_b32 v25, 7, v0")
    k("v_and_b32 v26, 6, v24")
    k("v_xor_b32 v26, v26, v25")
    k("v_lshlrev_b32 v26, 4, v26")
    k("v_mad_u32_u24 v5, v24, s%d, v26" % S_STRIDE)
    for i in range(1, 4): k("v_add_u32 v%d, %d, v5" % (5+i, i*8*1280))
    k("s_mul_i32 s%d, s%d, %d" % (S_WL, S_W, NSL*4096))
    k("s_waitcnt lgkmcnt(0)")
    srd(k, SRD_W1, P_WD, 0, 1728*1280)
    def load(n):
        kind, i = order[n]
        sg, vb = (SRD_W1, 5) if kind == "d" else (SRD_W0, 12)
        k("s_add_u32 s81, s79, %d" % (i*6*32*1280))
        for j in range(4):
            k("s_add_u32 m0, s%d, %d" % (S_WL, (n % NSL)*4096 + j*1024))
            k.vm("buffer_load_dwordx4 v%d, s[%d:%d], s81 offen nt lds" % (vb+j, sg, sg+3), ("u", n))
    D = cfg.AUXD
    for n in range(D): load(n)
    srd(k, SRD_W0, P_WO, 0, 640*1280)
    k("v_lshrrev_b32 v27, 2, v24"); k("v_and_b32 v28, 3, v24")
    k("v_lshl_add_u32 v27, v27, 3, v28")
    k("v_mad_u32_u24 v12, v27, s%d, v26" % S_STRIDE)
    for i in range(1, 4): k("v_add_u32 v%d, %d, v12" % (12+i, (16*(i&1) + 4*(i>>1))*1280))
    srd(k, SRD_O, P_WS, B2_OFF, B2_SZ)
    for t in late_setup_items(): k(t)
    k("s_cmp_eq_u32 s%d, 0" % S_MT)
    k("s_cselect_b32 s%d, 8192, 0" % S_T0)
    srd(k, 96, P_WS, CNT_OFF, "s%d" % S_T0)
    for i in range(4): k("v_mov_b32 v%d, 0" % (56+i))
    k("s_lshl_b32 s%d, s%d, 11" % (S_T0, S_W))
    for i in range(2): k.vm("buffer_store_dwordx4 v[56:59], v%d, s[96:99], s%d offen offset:%d%s" % (V_L16, S_T0, i*1024, SC), ("st", 0))
    k("v_lshrrev_b32 v24, 2, v0")
    k("v_bfe_u32 v25, v24, 1, 2")
    k("v_and_b32 v26, 3, v0")
    k("v_lshlrev_b32 v24, 7, v24")
    k("v_lshl_add_u32 v24, v26, 3, v24")
    k("v_add_u32 v24, s%d, v24" % S_WL)
    for b in range(4):
        k("v_xor_b32 v26, %d, v25" % b)
        k("v_lshl_add_u32 v%d, v26, 5, v24" % (20+b))
    for b in range(4):
        k("s_lshl_b32 s72, s77, 2"); k("s_add_u32 s72, s72, %d" % b)
        k("s_mul_i32 s73, s72, 205"); k("s_lshr_b32 s73, s73, 10")
        k("s_mul_i32 s74, s73, 5"); k("s_sub_u32 s72, s72, s74")
        k("s_mul_i32 s73, s73, 74"); k("s_add_u32 s73, s73, s76")
        k("s_mul_i32 s73, s73, 5"); k("s_add_u32 s73, s73, s72")
        k("s_lshl_b32 s73, s73, 10")
        k("s_add_u32 s%d, s73, s78" % (64+b))
    k("s_cmp_lt_u32 s76, 2")
    k("s_cselect_b32 s82, %d, 0x4000000" % (18*5120) if False else "s_cselect_b32 s82, 0, 0x4000000")
    stamp(k, 1)
    for n in range(NU):
        kind, i = order[n]
        k.wait(vm=("u", n))
        F = 64 + (n % 4)*16
        for b in range(4):
            for h in range(2):
                k.lg("ds_read_b64_tr_b16 %s, v%d offset:%d" % (vr(F+4*b+2*h,2), 20+b, (n % NSL)*4096 + h*2048))
        off = ((20 if kind == "d" else 0) + 6*i)*5120
        for b in range(4):
            k("s_add_u32 s%d, s%d, %d" % (72+b, 64+b, off))
            if kind == "o" and i == 3: k("s_add_u32 s%d, s%d, s82" % (72+b, 72+b))
        k.wait(lg="all")
        for b in range(4):
            k.vm("buffer_store_dwordx4 %s, v%d, s[%d:%d], s%d offen%s" % (vr(F+4*b,4), V_L16, SRD_O, SRD_O+3, 72+b, SC), ("st", n))
        if n + D < NU: load(n + D)
        if n == 6:
            k.wait(vm=("st", 5)); signal(k, P_DBG, D_S1); stamp(k, 2)
    k.wait(vm="all")
    signal(k, P_DBG, D_S3)
    stamp(k, 4)
    poll_issue(k, P_DBG, D_S3, "s3")
    poll_check(k, P_DBG, 16, "s3", sleep=32)
    stamp(k, 5)
    it = b_items(range(70)) + bo_items()
    fd = Feed(k, it)
    for i in range(len(it)):
        fd.emit(1)
        k("s_waitcnt vmcnt(%d)" % cfg.AUXT)

PHB = 102400; KVB = PHB + 20480; RED = PHB
def tail(k):
    k.flush_counters()
    stamp(k, 6)
    k("s_add_u32 s82, s%d, %d" % (S_OMT, C_Q)); k("s_lshl_b32 s82, s82, 7")
    poll_issue(k, S_CNT, "s82", "pq_ok")
    srd(k, SRD_P, P_WS, PQ_OFF, PQ_SZ)
    srd(k, SRD_W0, P_WS, KVP_OFF, KVP_SZ)
    srd(k, SRD_W1, P_WS, G_OFF, G_SZ)
    srd(k, SRD_O, P_WS, A2_OFF, A2_SZ)
    k("s_mul_i32 s%d, s%d, %d" % (S_T0, S_M64, 74*4096))
    srd(k, SRD_X, P_WS, A2_OFF, 74*4096, S_T0)
    k("v_and_b32 v24, 15, v0"); k("v_lshrrev_b32 v25, 4, v0")
    k("v_lshlrev_b32 v6, 2, v24")
    k("s_lshl_b32 s77, s%d, 1" % S_OMT); k("s_add_u32 s77, s77, s%d" % S_RH)
    k("s_lshl_b32 s78, s%d, 1" % S_OH); k("s_add_u32 s78, s78, s%d" % S_C)
    k("s_mul_i32 s78, s78, 81920")
    k("s_lshl_b32 s79, s77, 10"); k("s_add_u32 s79, s79, s78")
    k("s_add_u32 s80, s79, 32768")
    k("s_lshl_b32 s81, s77, 9"); k("s_add_u32 s81, s81, s78"); k("s_add_u32 s81, s81, 65536")
    k("v_lshlrev_b32 v7, 3, v0")
    k("s_lshl_b32 s76, s%d, 9" % S_OMT); k("s_lshl_b32 s75, s%d, 7" % S_W); k("s_add_u32 s76, s76, s75")
    poll_check(k, S_CNT, 2, "pq_ok")
    stamp(k, 7)
    PQ = 192
    k.vm("buffer_load_dwordx4 %s, v%d, s[%d:%d], s79 offen%s" % (vr(PQ,4), V_L16, SRD_P, SRD_P+3, SC), "pq")
    k.vm("buffer_load_dwordx4 %s, v%d, s[%d:%d], s80 offen%s" % (vr(PQ+4,4), V_L16, SRD_P, SRD_P+3, SC), "pq")
    k.vm("buffer_load_dwordx2 %s, v7, s[%d:%d], s81 offen%s" % (vr(PQ+8,2), SRD_P, SRD_P+3, SC), "pq")
    for r2 in range(2): k.vm("buffer_load_dword v%d, v6, s[%d:%d], s76 offen offset:%d%s" % (16+r2, SRD_W1, SRD_W1+3, r2*64, SC), "g")
    k("s_lshr_b32 s82, s%d, 1" % S_M64); k("s_add_u32 s82, s82, %d" % C_Q); k("s_lshl_b32 s82, s82, 7")
    poll_issue(k, S_CNT, "s82", "g_ok")
    k("s_mul_i32 s75, s%d, 5120" % S_W); k("s_add_u32 s75, s75, %d" % PHB)
    k("v_mul_u32_u24 v7, 80, v0"); k("v_add_u32 v7, s75, v7")
    k("s_mul_i32 s75, s%d, 2560" % S_W); k("s_add_u32 s75, s75, %d" % PHB)
    k("v_mul_u32_u24 v8, 80, v24"); k("v_add_u32 v8, s75, v8")
    k("v_lshl_add_u32 v9, v25, 4, v8")
    k("s_lshl_b32 s82, s%d, 10" % S_W)
    k("v_add_u32 v10, s82, v%d" % V_L16)
    k("v_mov_b32 v30, 0x7fffffff")
    k("v_cmp_gt_u32 vcc, 3360, v10")
    k("v_cndmask_b32 v11, v30, v10, vcc")
    k("v_add_u32 v10, %d, v10" % KVB)
    k("s_mul_i32 s72, s%d, 5" % S_OH)
    def stoff(dst, add, nvalid):
        k("v_add_u32 v28, s72, v25")
        if add: k("v_add_u32 v28, %d, v28" % add)
        k("v_lshrrev_b32 v26, 2, v28")
        k("v_lshlrev_b32 v26, 12, v26")
        k("v_and_b32 v27, 3, v28")
        k("v_lshl_add_u32 v26, v27, 8, v26")
        k("v_lshl_add_u32 v26, v24, 4, v26")
        k("v_cmp_gt_u32 vcc, %d, v25" % nvalid)
        k("v_cndmask_b32 v%d, v30, v26, vcc" % dst)
    stoff(12, 0, 3); stoff(13, 3, 2)
    k("s_lshl_b32 s73, s%d, 1" % S_OMT); k("s_add_u32 s73, s73, s%d" % S_C)
    k("s_mul_i32 s73, s73, %d" % (74*4096))
    k("s_lshl_b32 s75, s%d, 11" % S_RH); k("s_add_u32 s73, s73, s75")
    k("s_mul_i32 s74, s%d, %d" % (S_OH, 16*KVPS))
    k("v_bfe_u32 v26, v0, 2, 2"); k("v_and_b32 v27, 3, v0")
    k("v_lshl_add_u32 v28, v26, 3, v27")
    for hd in range(2):
        for i in range(3):
            d = 18 + hd*3 + i
            if i == 2: k("v_mov_b32 v%d, %d" % (d, KVB + 1600 + hd*1680))
            else:
                k("v_add_u32 v14, %d, v28" % (4*i + 4*hd)); k("v_min_u32 v14, 20, v14")
                if hd == 1 and i == 0:
                    k("v_cmp_eq_u32 vcc, 2, v26"); k("v_cndmask_b32 v14, v14, v27, vcc")
                k("v_mul_u32_u24 v14, 80, v14")
                k("v_add_u32 v%d, %d, v14" % (d, KVB + hd*1680))
    k("v_cmp_eq_u32 s[78:79], 0, v25")
    k("v_cmp_eq_u32 s[76:77], 2, v25")
    k("v_mov_b32 v30, %d" % (KVB + 3584 - 64))
    k("v_and_b32 v28, 1, v0"); k("v_lshlrev_b32 v28, 4, v28")
    k("v_lshlrev_b32 v28, v28, 0x3f80" if False else "v_mov_b32 v29, 0x3f80")
    k("v_lshlrev_b32 v28, v28, v29")
    k("v_cmp_eq_u32 vcc, v26, v25")
    k("v_cndmask_b32 v28, 0, v28, vcc")
    k("v_cmp_gt_u32 vcc, 2, v27")
    k("v_cndmask_b32 v29, 0, v28, vcc")
    k("v_cndmask_b32 v28, v28, 0, vcc")
    for r, src in ((120, "v29"), (121, "v28"), (122, "0"), (123, "0"), (124, "0"), (125, "0"), (126, "v29"), (127, "v28")):
        k("v_accvgpr_write_b32 a%d, %s" % (r, src))
    k.wait(vm="pq")
    for i in range(10):
        k("v_lshlrev_b32 v%d, 16, v%d" % (64+2*i, PQ+i))
        k("v_and_b32 v%d, 0xffff0000, v%d" % (65+2*i, PQ+i))
    poll_check(k, S_CNT, 2, "g_ok")
    k("s_lshl_b32 s82, s%d, 8" % S_M64); k("s_lshl_b32 s75, s%d, 6" % S_W); k("s_add_u32 s82, s82, s75")
    k.vm("buffer_load_dword v5, v6, s[%d:%d], s82 offen%s" % (SRD_W1, SRD_W1+3, SC), "g")
    class Late:
        n = 0
        def emit(self, _=1):
            self.n += 1
            if self.n == 6:
                k("s_lshr_b32 s82, s%d, 1" % S_M64); k("s_lshl_b32 s82, s82, 7")
                poll_issue(k, S_CNT, "s82", "h_ok")
    softmax_pm(k, [64+2*i for i in range(10)], 84, 124, 104, Late())
    for i in range(5): k.lg("ds_write_b128 v7, %s offset:%d" % (vr(104+4*i,4), 16*i))
    stamp(k, 8)
    poll_check(k, S_CNT, 9, "h_ok")
    stamp(k, 9)
    A0 = 64; AF = 144; DA = 3
    k("s_add_u32 s80, s%d, 20" % S_W); k("s_lshl_b32 s80, s80, 12")
    def af(i): return AF + (i % DA)*16
    def a_load(i, tt):
        k.vm("buffer_load_dwordx4 %s, v%d, s[%d:%d], s80 offen offset:%d%s" % (vr(af(i)+4*tt,4), V_L16, SRD_X, SRD_X+3, tt*1024, SC), ("A", i, tt))
        if tt == 3: k("s_add_u32 s80, s80, %d" % (4*4096))
    for i in range(DA):
        for tt in range(4): a_load(i, tt)
    k("s_lshr_b32 s82, s%d, 2" % S_OH); k("s_add_u32 s82, s82, %d" % C_K); k("s_lshl_b32 s82, s82, 7")
    k.wait(lg="all")
    side = []
    def S(at, item, cost=1): side.append((at, cost, item))
    MK = cfg.MK
    S(max(0, MK-30), lambda: poll_issue(k, S_CNT, "s82", "k_ok"), 2)
    def chk():
        stamp(k, 10); poll_check(k, S_CNT, 16, "k_ok"); stamp(k, 11)
    S(MK, chk, 2)
    PR = 200
    def kp(p):
        k.vm("buffer_load_dwordx4 %s, v11, s[%d:%d], s74 offen%s" % (vr(PR+4*(p % 14),4), SRD_W0, SRD_W0+3, SC), ("kp", p))
        k("s_add_u32 s74, s74, %d" % KVPS)
    for p in range(14): S(MK + 2*p, lambda p=p: kp(p), 2)
    for p in range(16):
        r = PR + 4*(p % 14)
        def red(p=p, r=r):
            k.wait(vm=("kp", p))
            for h in range(2): k("v_mfma_f32_16x16x32_bf16 %s, %s, %s, %s" % (vr(192+4*h,4), ar(120+4*h,4), vr(r,4), vr(192+4*h,4) if p else "0"))
            if p < 2: kp(14+p)
        S(MK + cfg.KLAT + (cfg.KL2 if p >= 14 else 0), red, 2)
    S(0, None, 10)
    for i in range(4): S(0, "v_cvt_pk_bf16_f32 v%d, v%d, v%d" % (PR+i, 192+2*i, 193+2*i))
    S(0, ("lg", "ds_write_b128 v10, %s" % vr(PR,4), "kw"))
    S(0, None, 8)
    def bar():
        k.wait(lg="all"); k("s_barrier"); stamp(k, 28)
    S(80, bar, 2)
    OA = 256 + 128
    for hd in range(2):
        for i in range(3):
            S(0, "v_lshl_add_u32 v15, v25, 4, v%d" % (18+hd*3+i))
            S(0, "v_cndmask_b32 v14, v30, v%d, s[78:79]" % (18+hd*3+i))
            S(0, ("lg", "ds_read_b128 %s, v15" % R(OA+hd*40+8*i,4), ("o", hd)))
            S(0, ("lg", "ds_read_b128 %s, v14 offset:64" % R(OA+hd*40+4+8*i,4), ("o", hd)))
        for r2 in range(2):
            S(0, ("lg", "ds_read_b128 %s, v9 offset:%d" % (R(OA+hd*40+24+8*r2,4), hd*10240 + r2*1280), ("o", hd)))
            S(0, ("lg", "ds_read_b128 %s, v8 offset:%d" % (R(OA+hd*40+28+8*r2,4), hd*10240 + r2*1280+64), ("o", hd)))
    KO = 200
    for hd in range(2):
        if hd: S(0, None, 4)
        def mm(hd=hd):
            k.wait(lg=("o", hd), vm="g")
            for s in range(2):
                for r2 in range(2):
                    for i in (2, 0, 1):
                        a = KO + (hd*2+r2)*12 + i*4
                        k("v_mfma_f32_16x16x32_bf16 %s, %s, %s, %s" % (vr(a,4), R(OA+hd*40+8*i+4*s,4), R(OA+hd*40+24+8*r2+4*s,4), vr(a,4) if s else "0"))
        S(0, mm, 2)
    for u in range(4): S(0, "v_add_f32 v%d, %s, v%d" % (KO+u*12+8, f32(1e-6), KO+u*12+8))
    for u in range(4): S(0, "v_rcp_f32 v%d, v%d" % (KO+u*12+8, KO+u*12+8), 2)
    for u in range(4): S(0, "v_mul_f32 v%d, v%d, v%d" % (KO+u*12+8, KO+u*12+8, 16+(u & 1)))
    for r2 in range(2):
        a0 = KO + r2*12; a1 = KO + (2+r2)*12
        for a in (a1, a0):
            for i in range(8): S(0, "v_mul_f32 v%d, v%d, v%d" % (a+i, a+i, a+8))
            for i in range(4): S(0, "v_cvt_pk_bf16_f32 v%d, v%d, v%d" % (a+8+i, a+2*i, a+2*i+1))
            if a == a1: S(0, ("vm", "buffer_store_dwordx4 %s, v13, s[%d:%d], s73 offen offset:%d%s" % (vr(a1+8,4), SRD_O, SRD_O+3, r2*1024, SC), "st"))
        S(0, "v_cndmask_b32 v%d, v%d, v%d, s[76:77]" % (a0+10, a0+10, a1+8))
        S(0, "v_cndmask_b32 v%d, v%d, v%d, s[76:77]" % (a0+11, a0+11, a1+9))
        S(0, ("vm", "buffer_store_dwordx4 %s, v12, s[%d:%d], s73 offen offset:%d%s" % (vr(a0+8,4), SRD_O, SRD_O+3, r2*1024, SC), "st"))
    S(0, lambda: stamp(k, 29), 0)
    S(0, None, cfg.OSD)
    def osig():
        k.wait(vm="st")
        k("s_add_u32 s82, s%d, %d" % (S_OMT, C_O)); k("s_lshl_b32 s82, s82, 7")
        signal(k, S_CNT, "s82")
        stamp(k, 12)
    S(0, osig, 2)
    m = 0; credit = 0
    for i in range(14):
        for tt in range(4):
            k.wait(vm=("A", i, tt))
            for ct in range(5):
                a = A0 + (ct*4+tt)*4
                k("v_mfma_f32_16x16x32_bf16 %s, %s, %s, %s" % (vr(a,4), R(bloc(i*5+ct),4), vr(af(i)+4*tt,4), vr(a,4) if i else "0"))
                m += 1
                credit = min(credit, 0) + cfg.PER
                if ct == 4:
                    if i + DA < 14: a_load(i + DA, tt)
                    credit -= 2
                while side and side[0][0] <= m and credit > 0:
                    _, c, it = side.pop(0)
                    if it is not None: emit1(k, it)
                    credit -= c
    stamp(k, 13)
    for _, c, it in side:
        if it is not None: emit1(k, it)
    stamp(k, 27)
    k("s_lshr_b32 s82, s%d, 1" % S_M64); k("s_add_u32 s82, s82, %d" % C_O); k("s_lshl_b32 s82, s82, 7")
    labs = [k.newlabel("Lred") for _ in range(5)]
    k("v_add_u32 v7, %d, v%d" % (RED, V_L16))
    k("s_mul_i32 s81, s%d, 15360" % S_W)
    k("v_add_u32 v8, s81, v7")
    for w in range(1, 4):
        k("s_cmp_eq_u32 s%d, %d" % (S_W, w)); k("s_cbranch_scc1 %s" % labs[w])
    AO = 192
    for w in range(4):
        if w: k.label(labs[w]); k("s_nop 7")
        for tt in range(4):
            if tt == w: continue
            slot = w if w < tt else w - 1
            for ct in range(5): k("ds_write_b128 v7, %s offset:%d" % (vr(A0+(ct*4+tt)*4,4), (tt*15 + slot*5 + ct)*1024))
        for ct in range(5):
            for h in range(2): k("v_pk_mul_f32 %s, %s, 1.0 op_sel_hi:[1,0]" % (vr(AO+ct*4+2*h,2), vr(A0+(ct*4+w)*4+2*h,2)))
        if w < 3: k("s_branch %s" % labs[4])
    k.label(labs[4])
    poll_issue(k, S_CNT, "s82", "o_ok")
    k("v_add_u32 v9, 51200, v%d" % V_L16)
    k("s_waitcnt lgkmcnt(0)")
    k("s_barrier")
    for j in range(15): k.lg("ds_read_b128 %s, v8 offset:%d" % (vr(A0+4*j,4), j*1024), ("r", j // 5))
    srd(k, SRD_O, P_OUT, 0, 2048*1280)
    k("s_lshl_b32 s81, s%d, 6" % S_M64); k("s_lshl_b32 s75, s%d, 4" % S_W); k("s_add_u32 s81, s81, s75")
    k("s_mul_i32 s81, s81, 1280"); k("s_mul_i32 s75, s%d, 160" % S_NT); k("s_add_u32 s81, s81, s75")
    k("v_mul_u32_u24 v16, 1280, v24"); k("v_lshl_add_u32 v16, v25, 3, v16")
    k("v_sub_f32 v10, 1.0, v5")
    def bo_read(n):
        off = n*1024
        return ("lg", "ds_read_b128 %s, v%d offset:%d" % (R(256 + (n % 60)*4, 4), V_L16 if off < 51200 else 9, off % 51200), ("bo", n // 5))
    nr = 0
    for sl in range(3):
        k.wait(lg=("r", sl))
        weave(k, [], [bo_read(n) for n in range(nr, nr+5)]); nr += 5
        for ct in range(5):
            for h in range(2): k("v_pk_add_f32 %s, %s, %s" % (vr(AO+ct*4+2*h,2), vr(AO+ct*4+2*h,2), vr(A0+(sl*5+ct)*4+2*h,2)))
    poll_check(k, S_CNT, 16, "o_ok")
    stamp(k, 14)
    def of(ks): return 32 + 4*ks if ks < 8 else 144 + 4*(ks-8)
    k("s_lshl_b32 s80, s%d, 10" % S_W)
    fa = Feed(k, [("s_add_u32 s80, s80, 4096" if ks else None, "buffer_load_dwordx4 %s, v%d, s[%d:%d], s80 offen%s" % (vr(of(ks),4), V_L16, SRD_X, SRD_X+3, SC), ("Ao", ks)) for ks in range(20)])
    fa.emit(10)
    for j in range(10): k("v_pk_mul_f32 %s, %s, v[10:11] op_sel_hi:[1,0]" % (vr(AO+2*j,2), vr(AO+2*j,2)))
    while nr < 55:
        weave(k, [], [bo_read(n) for n in range(nr, nr+5)]); nr += 5
        fa.emit(1)
    for ks in range(20):
        k.wait(vm=("Ao", ks), lg=("bo", ks))
        mf = ["v_mfma_f32_16x16x32_bf16 %s, %s, %s, %s" % (vr(AO+ct*4,4), R(256 + ((ks*5+ct) % 60)*4, 4), vr(of(ks),4), vr(AO+ct*4,4)) for ct in range(5)]
        fill = [bo_read(n) for n in range(nr, min(100, nr+5))]; nr += len(fill)
        weave(k, mf, fill, per=1)
        fa.emit(1)
    for ct in range(5):
        a = AO + ct*4
        k("v_cvt_pk_bf16_f32 v%d, v%d, v%d" % (64+2*ct, a, a+1)); k("v_cvt_pk_bf16_f32 v%d, v%d, v%d" % (65+2*ct, a+2, a+3))
        k.vm("buffer_store_dwordx2 %s, v16, s[%d:%d], s81 offen offset:%d" % (vr(64+2*ct,2), SRD_O, SRD_O+3, ct*32), "st")
    stamp(k, 30)
    stamp_out(k)

def kernel(k):
    kernel_header(k, NAME)
    if cfg.EARLY0: k("s_memrealtime s[98:99]")
    k("s_load_dwordx16 s[8:23], s[0:1], 0")
    k("s_load_dwordx8 s[24:31], s[0:1], 64")
    k("s_cmp_ge_u32 s2, 256")
    k("s_cbranch_scc1 L_end")
    code_prefetch(k, V_JUNK)
    k("v_lshrrev_b32 v2, 6, v0")
    k("v_and_b32 v0, 63, v0")
    k("v_readfirstlane_b32 s%d, v2" % S_W)
    if cfg.STAMP: k("v_mov_b32 v1, 0")
    stamp(k, 0)
    if cfg.EARLY0: k("v_writelane_b32 v1, s98, 0")
    k("s_bfe_u32 s%d, s2, 0x40003" % S_MT)
    k("s_and_b32 s%d, s2, 7" % S_T0)
    k("s_lshl_b32 s%d, s%d, 3" % (S_T0, S_T0))
    k("s_bfe_u32 s%d, s2, 0x10007" % S_T1)
    k("s_lshl_b32 s%d, s%d, 2" % (S_T1, S_T1))
    k("s_add_u32 s%d, s%d, s%d" % (S_T0, S_T0, S_T1))
    tab = cfg.ORDER
    k("s_mov_b32 s74, 0x%x" % sum(tab[i] << (4*i) for i in range(8))); k("s_mov_b32 s75, 0x%x" % sum(tab[8+i] << (4*i) for i in range(8)))
    k("s_lshr_b64 s[74:75], s[74:75], s%d" % S_T0)
    k("s_and_b32 s%d, s74, 15" % S_TY)
    k("s_and_b32 s%d, s%d, 1" % (S_RH, S_W))
    k("s_lshr_b32 s%d, s%d, 1" % (S_C, S_W))
    k("v_lshlrev_b32 v%d, 4, v0" % V_L16)
    k("s_cmp_ge_u32 s%d, 15" % S_TY); k("s_cbranch_scc1 L_aux")
    k("s_cmp_ge_u32 s%d, 13" % S_TY)
    k("s_cselect_b32 s%d, 13, 9" % S_T0)
    k("s_cselect_b32 s75, 0, 1280")
    k("s_cselect_b32 s76, 0, 640")
    k("s_add_u32 s76, s76, 640")
    k("s_sub_u32 s79, s%d, s%d" % (S_TY, S_T0))
    k("s_mul_i32 s%d, s79, 320" % S_T1)
    k("s_and_b32 s%d, s%d, 127" % (S_DELTA, S_T1))
    k("s_sub_u32 s%d, s%d, s%d" % (S_T1, S_T1, S_DELTA))
    k("s_add_u32 s75, s75, s%d" % S_T1)
    k("s_add_u32 s76, s76, s75")
    k("s_mul_i32 s%d, s%d, 384" % (S_T1, S_TY))
    k("s_mov_b32 s%d, 3840" % S_STRIDE)
    k("s_cmp_lt_u32 s%d, 9" % S_TY)
    k("s_cselect_b32 s75, s%d, s75" % S_T1)
    k("s_cselect_b32 s76, s%d, s76" % S_T1)
    k("s_cselect_b32 s%d, 3456, s%d" % (S_STRIDE, S_STRIDE))
    k("s_mul_i32 s%d, s%d, 640" % (S_T1, S_STRIDE))
    k("s_sub_u32 s77, s%d, s75" % S_T1)
    k("s_sub_u32 s78, s%d, s76" % S_T1)
    gemm_setup(k)
    k("s_mul_i32 s%d, s%d, %d" % (S_T0, S_MT, 128*1280))
    k("s_waitcnt lgkmcnt(0)")
    k("s_cmp_lt_u32 s%d, 9" % S_TY)
    k("s_cselect_b64 s[16:17], s[%d:%d], s[%d:%d]" % (P_WG, P_WG+1, P_WQKV, P_WQKV+1))
    k("s_cselect_b64 s[%d:%d], s[%d:%d], s[%d:%d]" % (P_WU, P_WU+1, P_WU, P_WU+1, P_WQKV, P_WQKV+1))
    srd(k, SRD_X, P_X, 0, 128*1280, S_T0)
    stamp(k, 1)
    Q = dma_queue()
    issue_now(k, Q, 4)
    srd(k, SRD_W0, 16, 0, "s77", 75)
    srd(k, SRD_W1, P_WU, 0, "s78", 76)
    issue_now(k, Q, 6)
    touch_setup(k)
    for it in touch_items(-1):
        if it[0]: k(it[0])
        k.vm(it[1], it[2])
    sv0 = list(k.vmq)
    k("s_cmp_ge_u32 s%d, 9" % S_TY); k("s_cbranch_scc1 L_att")
    ffn_role(k, Q)
    k("s_branch L_tail")
    k.label("L_att")
    k("s_lshl_b32 s79, s79, 1")
    k("s_add_u32 s79, s79, s%d" % S_C)
    k("s_mul_i32 s80, s79, 3200")
    k("s_add_u32 s81, s80, 12800")
    k("s_mov_b32 s82, 0x100000")
    srd(k, SRD_P, P_WPHI, 0, 25600)
    k("s_cmp_ge_u32 s%d, 13" % S_TY); k("s_cbranch_scc1 L_q")
    k.flush_counters(); k.vmq = list(sv0)
    kv_role(k, Q)
    k("s_branch L_tail")
    k.label("L_q")
    k.flush_counters(); k.vmq = list(sv0)
    q_role(k, Q)
    k("s_branch L_tail")
    k.flush_counters()
    k.label("L_aux")
    aux_role(k)
    k.label("L_tail")
    tail(k)
    k.label("L_end")
    k("s_endpgm")

def build(fn, listform=True):
    k = K()
    k.raw(open("header.txt").read().rstrip())
    if listform: k.raw("; @launch kernel=%s grid=(256,1,1) block=(256,1,1) lds=163840" % NAME)
    else: k.raw("; @launch grid=(256,1,1) block=(256,1,1) lds=163840")
    k.raw('.amdgcn_target "amdgcn-amd-amdhsa--gfx950"')
    k.raw(".text")
    kernel(k)
    k.raw('.section .rodata,"a"')
    k.raw(kernel_desc(NAME, 512, 256))
    open(fn, "w").write(k.text())

if __name__ == "__main__":
    for a in sys.argv[2:]:
        if "=" in a:
            n, v = a.split("="); setattr(cfg, n, eval(v))
    build(sys.argv[1], listform="single" not in sys.argv)
```

```python
import sys
from fw import *

A2_OFF = 0;          A2_SZ = 32*74*4096
B2_OFF = 0xA00000;   B2_SZ = 8*74*5120
PQ_OFF = 0xD00000;   PQ_SZ = 32*2048*40
KVP_OFF = 0x1000000; KVPS = 3584; KVP_SZ = 16*16*KVPS
G_OFF = 0x1200000;   G_SZ = 8192
CNT_OFF = 0x1300000
ST_OFF = 0x1400000
LOG2E = 1.4426950408889634
NAME = "gated_mix__linear_kernel_hedgehog__swiglu_ffn__prompt_kernel"

class Cfg:
    STAMP = 0; STG = 0
    MAXD = 11; N2 = 6; N3 = 10
    P2M = 4
    TW = [(-1,1,5),(0,6,6),(3,12,8)]
    TX = [(-1,1,2),(0,3,3),(3,6,4)]
    ORDER = [0, 9, 1, 10, 2, 11, 3, 12, 4, 13, 5, 14, 6, 7, 8, 15]
    PS1 = 16
    NBF = 40
    NBA = 32
    AUXT = 6
    AUXD = 3
    FFE = (4, 10)
    MK = 30
    KLAT = 50
    PER = 2
    DBGWG = -1
    PADST = None
    PADMIN = 0
    CYC = 0
    PADTY = None
    EARLY0 = 0
    KL2 = 40
    OSD = 50
cfg = Cfg()
SC = " sc1"

P_X, P_WQKV, P_WPHI, P_WO, P_WG, P_WU, P_WD, P_GW, P_OUT, P_DBG, P_WS = 8, 10, 12, 14, 18, 20, 22, 24, 26, 28, 30
S_W, S_RH, S_C, S_MT, S_TY, S_M64, S_NT, S_OH = 32, 33, 34, 35, 36, 37, 38, 39
SRD_X, SRD_W0, SRD_W1, SRD_O, SRD_P = 40, 44, 48, 52, 56
S_STRIDE, S_WOFF, S_WL, S_XL, S_T0, S_T1, S_T2, S_T3, S_DELTA, S_SIG = 60, 61, 62, 63, 64, 65, 66, 67, 68, 69
S_C2 = 70
S_OMT = 83; SRD_B = 84; S_BOFF = 88; S_BB = 89; S_CNT = 90; SRD_T = 96
V_L16, V_L16B, V_PT = 2, 3, 4
V_WD = 5; V_XD = 6; V_XR = 10; V_TA = 12; V_TW = 24; V_TX = 25; V_JUNK = 63
ACC0 = 64
WF0 = 256; XF0 = 256 + 96; GF0 = 256 + 88; GACC = 224
C_H, C_K, C_Q, C_O = 0, 16, 20, 36
SPARE = 147456
D_S1, D_S2, D_S3 = 0, 64, 128

def srd(k, d, b, off, nbytes, soff=None):
    if off or soff is not None:
        if soff is not None:
            k("s_add_u32 s%d, s%d, s%d" % (d, b, soff)); k("s_addc_u32 s%d, s%d, 0" % (d+1, b+1))
            if off:
                k("s_add_u32 s%d, s%d, 0x%x" % (d, d, off)); k("s_addc_u32 s%d, s%d, 0" % (d+1, d+1))
        else:
            k("s_add_u32 s%d, s%d, 0x%x" % (d, b, off)); k("s_addc_u32 s%d, s%d, 0" % (d+1, b+1))
        k("s_and_b32 s%d, s%d, 0xffff" % (d+1, d+1))
    else:
        k("s_mov_b32 s%d, s%d" % (d, b)); k("s_and_b32 s%d, s%d, 0xffff" % (d+1, b+1))
    if isinstance(nbytes, int): k("s_mov_b32 s%d, 0x%x" % (d+2, nbytes))
    else: k("s_mov_b32 s%d, %s" % (d+2, nbytes))
    k("s_mov_b32 s%d, 0x20000" % (d+3))

def stamp(k, i):
    if not cfg.STAMP: return
    k("s_memrealtime s[92:93]")
    k("s_waitcnt lgkmcnt(0)")
    k.lgq = []
    k("v_writelane_b32 v1, s92, %d" % i)
def stamp_out(k):
    if not cfg.STAMP: return
    k("s_waitcnt vmcnt(0)")
    stamp(k, 15)
    k("v_writelane_b32 v1, s%d, 16" % S_TY)
    srd(k, 40, P_WS, ST_OFF, 1024*128)
    k("s_lshl_b32 s92, s2, 2"); k("s_add_u32 s92, s92, s%d" % S_W); k("s_lshl_b32 s92, s92, 7")
    k("v_lshlrev_b32 v5, 2, v0")
    k("v_cmp_gt_u32 vcc, 32, v0")
    k("v_mov_b32 v6, 0x7fffffff")
    k("v_cndmask_b32 v5, v6, v5, vcc")
    k("buffer_store_dword v1, v5, s[40:43], s92 offen")
    if cfg.PADST is not None:
        k("v_readlane_b32 s94, v1, %d" % abs(cfg.PADST))
        k("v_readlane_b32 s95, v1, 0")
        k("s_max_u32 s94, s94, s95")
        if cfg.CYC:
            a, b = ((31, 25) if cfg.CYC == 1 else (24, 23))
            k("v_readlane_b32 s96, v1, %d" % a); k("v_readlane_b32 s97, v1, %d" % b)
            k("s_sub_u32 s96, s96, s97")
            if cfg.CYC == 1: k("s_lshr_b32 s96, s96, 2")
            else: k("s_lshl_b32 s96, s96, 2")
            k("s_add_u32 s94, s95, s96")
        if cfg.PADTY:
            k("s_cmp_lt_u32 s%d, %d" % (S_TY, cfg.PADTY[0])); k("s_cselect_b32 s94, s95, s94")
            k("s_cmp_gt_u32 s%d, %d" % (S_TY, cfg.PADTY[1])); k("s_cselect_b32 s94, s95, s94")
        if cfg.PADMIN:
            k("s_not_b32 s95, s94")
            k("v_mov_b32 v7, s95"); k("v_mov_b32 v8, 192")
            k("s_cmp_eq_u32 s%d, 0" % S_W)
            k("s_cselect_b64 exec, 1, 0")
            k("s_cbranch_execz Lnoat")
            k("global_atomic_umax v8, v7, s[%d:%d] sc1" % (P_DBG, P_DBG+1))
            k.label("Lnoat")
            k("s_mov_b64 exec, -1")
            k("s_add_u32 s94, s94, 4500")
            k.label("Lpad0")
            k("s_sleep 4")
            k("s_memrealtime s[96:97]")
            k("s_waitcnt lgkmcnt(0)")
            k("s_sub_u32 s98, s96, s94")
            k("s_cmp_lt_i32 s98, 0")
            k("s_cbranch_scc1 Lpad0")
            k("global_load_dword v7, v8, s[%d:%d] sc1" % (P_DBG, P_DBG+1))
            k("s_waitcnt vmcnt(0)")
            k("v_readfirstlane_b32 s94, v7")
            k("s_not_b32 s94, s94")
        k("s_add_u32 s94, s94, 6000")
        k.label("Lpad")
        k("s_sleep 4")
        k("s_memrealtime s[96:97]")
        k("s_waitcnt lgkmcnt(0)")
        k("s_sub_u32 s98, s96, s94")
        k("s_cmp_lt_i32 s98, 0")
        k("s_cbranch_scc1 Lpad")
    if cfg.DBGWG >= 0:
        k("s_cmp_eq_u32 s92, %d" % (cfg.DBGWG*512))
        k("s_cselect_b32 s93, 64, 0")
        srd(k, 44, P_DBG, 0, "s93")
        k("v_readlane_b32 s93, v1, 0")
        k("v_subrev_u32 v7, s93, v1")
        k("v_cmp_lt_u32 vcc, 0, v0")
        k("v_cndmask_b32 v5, v6, v5, vcc")
        k("buffer_store_dword v7, v5, s[44:47], 0 offen")

def code_prefetch(k, vt):
    k("s_getpc_b64 s[72:73]")
    l = k.newlabel("Lpc"); k.label(l)
    k("s_lshr_b32 s74, s2, 3")
    k("s_lshl_b32 s74, s74, 7")
    k("v_and_b32 v%d, 31, v0" % vt)
    k("v_lshlrev_b32 v%d, 12, v%d" % (vt, vt))
    k("v_add_u32 v%d, s74, v%d" % (vt, vt))
    k("v_min_u32 v%d, L_end-%s-4, v%d" % (vt, l, vt))
    k.vm("global_load_dword v%d, v%d, s[72:73]" % (vt, vt), "pf")

def poll_issue(k, base, off, tag):
    k("v_mov_b32 v%d, %s" % (V_PT, off))
    k.vm("global_load_dword v31, v%d, s[%d:%d] sc1" % (V_PT, base, base+1), tag)
def poll_check(k, base, target, tag, sleep=4):
    l = k.newlabel("Lpoll"); d = k.newlabel("Lpd")
    k.wait(vm=tag)
    k("v_readfirstlane_b32 s94, v31")
    k("s_mov_b32 s95, 0x8000")
    k("s_cmp_ge_u32 s94, %d" % target)
    k("s_cbranch_scc1 %s" % d)
    k.label(l)
    k("s_sleep %d" % sleep)
    k("global_load_dword v31, v%d, s[%d:%d] sc1" % (V_PT, base, base+1))
    k("s_waitcnt vmcnt(0)")
    k("v_readfirstlane_b32 s94, v31")
    k("s_sub_u32 s95, s95, 1")
    k("s_cmp_ge_u32 s94, %d" % target)
    k("s_cbranch_scc1 %s" % d)
    k("s_cmp_lg_u32 s95, 0")
    k("s_cbranch_scc1 %s" % l)
    k.label(d)
def signal(k, base, off):
    d = k.newlabel("Lsg")
    k("s_barrier")
    k("s_cmp_lg_u32 s%d, 0" % S_W)
    k("s_cbranch_scc1 %s" % d)
    k("v_mov_b32 v%d, %s" % (V_PT, off))
    k("v_mov_b32 v31, 1")
    k("s_mov_b64 exec, 1")
    k("global_atomic_add v%d, v31, s[%d:%d] sc1" % (V_PT, base, base+1))
    k("s_mov_b64 exec, -1")
    k.label(d)

def bloc(n):
    if n < 32: return 256 + 128 + 4*n
    if n < 40: return 32 + 4*(n-32)
    return 256 + 4*(n-40)
def b_items(frs):
    out = []; cur = None
    for n in frs:
        st, ct = divmod(n, 5)
        pre = None
        if st != cur: pre = "s_add_u32 s%d, s%d, %d" % (S_BOFF, S_BB, (20 + 4*st)*5120); cur = st
        if ct < 4: t = "buffer_load_dwordx4 %s, v%d, s[%d:%d], s%d offen offset:%d%s" % (R(bloc(n),4), V_L16, SRD_B, SRD_B+3, S_BOFF, ct*1024, SC)
        else: t = "buffer_load_dwordx4 %s, v%d, s[%d:%d], s%d offen%s" % (R(bloc(n),4), V_L16B, SRD_B, SRD_B+3, S_BOFF, SC)
        out.append((pre, t, "B"))
    return out
def bo_items():
    out = []
    for i in range(5):
        for ct in range(5):
            pre = "s_add_u32 m0, s%d, %d" % (S_BB, i*20480 + (4096 if ct == 4 else 0))
            if ct == 0: pre = "s_add_u32 s100, s%d, %d\n" % (S_BB, i*20480) + pre
            if ct < 4: t = "buffer_load_dwordx4 v%d, s[%d:%d], s100 offen offset:%d%s lds" % (V_L16, SRD_B, SRD_B+3, ct*1024, SC)
            else: t = "buffer_load_dwordx4 v%d, s[%d:%d], s100 offen%s lds" % (V_L16B, SRD_B, SRD_B+3, SC)
            out.append((pre, t, "BO"))
    return out
class Feed:
    def __init__(self, k, items): self.k = k; self.q = list(items)
    def emit(self, n=1):
        while self.q and n > 0:
            pre, t, tag = self.q.pop(0)
            if pre: self.k(pre)
            self.k.vm(t, tag); n -= 1
    def drain(self): self.emit(10**6)
def emit1(k, f):
    if callable(f): f()
    elif isinstance(f, tuple): (k.lg if f[0] == "lg" else k.vm)(f[1], f[2])
    else: k(f)
def weave(k, mf, fill, per=2):
    fill = list(fill)
    for m in mf:
        k(m)
        for _ in range(per):
            if fill: emit1(k, fill.pop(0))
    for f in fill: emit1(k, f)

WSLOT = 24576; RW = 4; XBASE = RW*WSLOT; XSLOT = 16384; RX = 3

def gemm_setup(k):
    k("v_lshrrev_b32 v28, 3, v0")
    k("v_and_b32 v29, 7, v0")
    k("v_bfe_u32 v26, v28, 1, 1")
    k("s_lshl_b32 s%d, s%d, 1" % (S_T0, S_RH))
    k("v_or_b32 v26, s%d, v26" % S_T0)
    k("v_lshlrev_b32 v26, 1, v26")
    k("v_xor_b32 v26, v26, v29")
    k("s_lshl_b32 s%d, s%d, 3" % (S_T0, S_W))
    k("v_add_u32 v27, s%d, v28" % S_T0)
    k("v_mul_lo_u32 v27, v27, s%d" % S_STRIDE)
    k("v_lshl_add_u32 v%d, v26, 4, v27" % V_WD)
    k("s_lshl_b32 s%d, s%d, 5" % (S_T0, S_W))
    k("v_lshrrev_b32 v26, 1, v28")
    k("v_xor_b32 v27, v26, v29")
    k("v_add_u32 v26, s%d, v28" % S_T0)
    k("v_mul_u32_u24 v26, 1280, v26")
    k("v_lshl_add_u32 v%d, v27, 4, v26" % V_XD)
    k("v_xor_b32 v%d, 64, v%d" % (V_XD+1, V_XD))
    k("v_add_u32 v%d, %d, v%d" % (V_XD+1, 8*1280, V_XD+1))
    k("v_add_u32 v%d, %d, v%d" % (V_XD+2, 16*1280, V_XD))
    k("v_add_u32 v%d, %d, v%d" % (V_XD+3, 16*1280, V_XD+1))
    k("s_mul_i32 s%d, s%d, 6144" % (S_WL, S_W))
    k("s_lshl_b32 s%d, s%d, 12" % (S_XL, S_W))
    k("s_add_u32 s%d, s%d, %d" % (S_XL, S_XL, XBASE))
    k("s_mov_b32 s%d, 0" % S_WOFF)
    k("s_lshl_b32 s%d, s%d, 5" % (S_T3, S_STRIDE))

def touch_setup(k):
    k("v_lshrrev_b32 v26, 2, v0")
    k("v_and_b32 v27, 3, v0")
    k("s_lshl_b32 s%d, s%d, 1" % (S_T0, S_MT))
    k("s_add_u32 s%d, s%d, s%d" % (S_T0, S_T0, S_C))
    k("v_lshlrev_b32 v28, 5, v26")
    k("v_add_u32 v28, s%d, v28" % S_T0)
    k("v_mul_lo_u32 v28, v28, s%d" % S_STRIDE)
    k("v_min_u32 v29, 2, v27")
    k("v_lshl_add_u32 v%d, v29, 7, v28" % V_TW)
    k("s_lshl_b32 s%d, s%d, 4" % (S_T0, S_TY))
    k("s_lshl_b32 s%d, s%d, 2" % (S_T1, S_W))
    k("s_add_u32 s%d, s%d, s%d" % (S_T0, S_T0, S_T1))
    k("v_add_u32 v27, s%d, v27" % S_T0)
    k("v_mul_u32_u24 v27, 1280, v27")
    k("v_lshl_add_u32 v%d, v26, 7, v27" % V_TX)
    k("s_cmp_eq_u32 s%d, 0" % S_RH)
    for i in range(3): k("s_cselect_b32 s%d, s%d, s%d" % (SRD_T+i, SRD_W0+i, SRD_W1+i))
    k("s_mov_b32 s%d, 0x20000" % (SRD_T+3))
def masked(n, t):
    if n >= 16: return t
    return "s_bfm_b64 exec, %d, 0\n%s\ns_mov_b64 exec, -1" % (4*n, t)
def touch_items(stage):
    out = []
    for (st, first, n) in cfg.TW:
        if st == stage:
            out.append(("s_mul_i32 s101, s%d, %d" % (S_STRIDE, 32*first), masked(n, "buffer_load_dword v%d, v%d, s[%d:%d], s101 offen nt" % (V_JUNK, V_TW, SRD_T, SRD_T+3)), "pf"))
    for (st, first, n) in cfg.TX:
        if st == stage:
            out.append((None, masked(n, "buffer_load_dword v%d, v%d, s[%d:%d], 0 offen offset:%d" % (V_JUNK, V_TX, SRD_X, SRD_X+3, first*128)), "pf"))
    return out

def gemm_setup2(k, att):
    npt = 5 if att else 6
    k("v_and_b32 v54, 15, v0")
    k("v_lshrrev_b32 v55, 4, v0")
    k("v_bfe_u32 v26, v54, 1, 3")
    k("v_xor_b32 v26, v26, v55")
    k("s_lshl_b32 s%d, s%d, 13" % (S_T0, S_RH))
    k("s_add_u32 s%d, s%d, %d" % (S_T0, S_T0, XBASE))
    k("v_lshlrev_b32 v27, 7, v54")
    k("v_add_u32 v27, s%d, v27" % S_T0)
    k("v_lshl_add_u32 v%d, v26, 4, v27" % V_XR)
    k("v_xor_b32 v%d, 64, v%d" % (V_XR+1, V_XR))
    k("v_bfe_u32 v26, v0, 2, 2")
    k("v_and_b32 v27, 3, v0")
    k("v_lshrrev_b32 v28, 1, v26")
    k("v_and_b32 v29, 1, v55")
    k("v_lshl_or_b32 v28, v29, 1, v28")
    k("v_lshlrev_b32 v28, 5, v28")
    k("v_mul_u32_u24 v29, 6144, v55")
    k("v_lshl_add_u32 v29, v26, 7, v29")
    if att:
        k("s_mul_i32 s%d, s%d, 160" % (S_T0, S_C))
        k("s_add_u32 s%d, s%d, s%d" % (S_T0, S_T0, S_DELTA))
        k("v_mul_u32_u24 v27, 40, v27")
    else:
        k("s_mul_i32 s%d, s%d, 192" % (S_T0, S_C))
        k("v_lshlrev_b32 v27, 3, v27")
    k("v_add_u32 v27, s%d, v27" % S_T0)
    for p in range(npt):
        k("v_add_u32 v30, %d, v27" % (p * (8 if att else 32)))
        k("v_lshrrev_b32 v31, 7, v30")
        k("v_and_b32 v30, 127, v30")
        k("v_xor_b32 v30, v30, v28")
        k("v_lshl_add_u32 v31, v31, 10, v29")
        k("v_add_u32 v%d, v30, v31" % (V_TA+p))
        k("v_add_u32 v%d, %d, v%d" % (V_TA+6+p, 2*WSLOT, V_TA+p))

def w_dma(s):
    return [("s_add_u32 m0, s%d, %d" % (S_WL, (s % RW)*WSLOT + (seg*3+lc)*1024 - lc*128),
             "buffer_load_dwordx4 v%d, s[%d:%d], s%d offen offset:%d lds" % (V_WD, SRD_W0+4*seg, SRD_W0+4*seg+3, S_WOFF, lc*128), ("W", s))
            for seg in range(2) for lc in range(3)]
def x_dma(u, i):
    return ("s_add_u32 m0, s%d, %d" % (S_XL, (u % RX)*XSLOT + i*1024 - u*128),
            "buffer_load_dwordx4 v%d, s[%d:%d], 0 offen offset:%d lds" % (V_XD+i, SRD_X, SRD_X+3, u*128), ("X", u))
def reads_for(s, npt):
    out = []; b = s & 1
    for rt in range(4):
        out.append("ds_read_b128 %s, v%d offset:%d" % (R(XF0 + (b*4+rt)*4, 4), V_XR + (s & 1), ((s >> 1) % RX)*XSLOT + rt*2048))
    slot = s % RW
    for p in range(npt):
        for seg in range(2):
            for h in range(2):
                out.append("ds_read_b64_tr_b16 %s, v%d offset:%d" % (R(WF0 + (b*12+p*2+seg)*4 + 2*h, 2), V_TA + p + (6 if slot >= 2 else 0), (slot & 1)*WSLOT + seg*3072 + h*512))
    return out
def acc(p, seg, rt): return ACC0 + ((p*2+seg)*4 + rt)*4

def late_setup_items():
    k = K()
    k("s_and_b32 s%d, s2, 7" % S_T1)
    k("s_lshr_b32 s%d, s2, 3" % S_OH)
    if cfg.P2M == 4:
        k("s_lshl_b32 s%d, s%d, 2" % (S_M64, S_T1)); k("s_and_b32 s%d, s%d, 3" % (S_T0, S_OH)); k("s_add_u32 s%d, s%d, s%d" % (S_M64, S_M64, S_T0))
        k("s_lshr_b32 s%d, s%d, 2" % (S_NT, S_OH))
    else:
        k("s_lshr_b32 s%d, s%d, 1" % (S_M64, S_T1)); k("s_lshl_b32 s%d, s%d, 3" % (S_M64, S_M64)); k("s_and_b32 s%d, s%d, 7" % (S_T0, S_OH)); k("s_add_u32 s%d, s%d, s%d" % (S_M64, S_M64, S_T0))
        k("s_and_b32 s%d, s%d, 1" % (S_NT, S_T1)); k("s_lshl_b32 s%d, s%d, 2" % (S_NT, S_NT)); k("s_lshr_b32 s%d, s%d, 3" % (S_T0, S_OH)); k("s_add_u32 s%d, s%d, s%d" % (S_NT, S_NT, S_T0))
    k("s_lshr_b32 s%d, s%d, 1" % (S_OMT, S_OH))
    k("s_and_b32 s%d, s%d, 1" % (S_OH, S_OH)); k("s_lshl_b32 s%d, s%d, 1" % (S_T0, S_T1)); k("s_add_u32 s%d, s%d, s%d" % (S_OH, S_OH, S_T0))
    k("s_mul_i32 s%d, s%d, %d" % (S_T0, S_NT, 74*5120))
    srd(k, SRD_B, P_WS, B2_OFF, 74*5120, S_T0)
    k("s_mul_i32 s%d, s%d, 5120" % (S_BB, S_W))
    k("s_add_u32 s%d, s%d, 0x%x" % (S_CNT, P_WS, CNT_OFF))
    k("s_addc_u32 s%d, s%d, 0" % (S_CNT+1, P_WS+1))
    k("v_add_u32 v%d, 4096, v%d" % (V_L16B, V_L16))
    k("s_mov_b32 s%d, %s" % (S_C2, f32(LOG2E))); k("s_mov_b32 s%d, %s" % (S_C2+1, f32(LOG2E)))
    return [t for _, t in k.items]

def dma_queue():
    Q = []
    for st in range(20):
        if st % 2 == 0:
            u = st // 2
            for i in range(4): Q.append((-1 if u < RX else 2*(u-RX)+1, x_dma(u, i), False))
        it = w_dma(st)
        for i, d in enumerate(it): Q.append((-1 if st < RW else st-RW, d, i == len(it)-1))
    return Q
def wadv(k): k("s_add_u32 s%d, s%d, s%d" % (S_WOFF, S_WOFF, S_T3))
def issue_now(k, Q, n):
    for _ in range(n):
        av, it, last = Q.pop(0)
        k(it[0]); k.vm(it[1], it[2])
        if last: wadv(k)

def spread(items, s0, s1):
    out = {}; n = len(items); i = 0
    for s in range(s0, s1):
        c = -(-(n - i) // (s1 - s)); out[s] = items[i:i+c]; i += c
    return out

def gemm_main(k, att, gate, Q, extra, polls, xrd=None, xwait=None, xsetup=None):
    npt = 5 if att else 6
    Q = list(Q)
    if gate:
        for i in range(2):
            k("s_add_u32 m0, s%d, %d" % (S_XL, SPARE - XBASE))
            k.vm("buffer_load_dwordx4 v%d, s[%d:%d], 0 offen offset:%d lds" % (V_L16, SRD_O, SRD_O+3, i*1024), ("W", 0))
    issue_now(k, Q, cfg.N2)
    gemm_setup2(k, att)
    if gate:
        k("s_add_u32 s%d, s%d, %d" % (S_T0, S_XL, SPARE - XBASE))
        k("v_lshrrev_b32 v17, 4, v0")
        k("v_lshlrev_b32 v17, 4, v17")
        k("v_add_u32 v17, s%d, v17" % S_T0)
    for t in late_setup_items(): k(t)
    if xsetup: xsetup(k)
    def rds(s):
        r = reads_for(s, npt)
        if gate: r.append("ds_read_b128 %s, v17 offset:%d" % (R(GF0 + (s & 1)*4, 4), s*64))
        return r
    stamp(k, 2)
    k.wait(vm=[("X", 0), ("W", 0)])
    k("s_barrier")
    stamp(k, 3)
    for r in rds(0): k.lg(r)
    issue_now(k, Q, cfg.N3)
    k.wait(vm=[("W", 1)], lg="all")
    k("s_barrier")
    for s in range(20):
        b = s & 1
        rd = rds(s+1) if s < 19 else []
        if xrd and s in xrd: rd += xrd[s]
        dm = []
        while Q and Q[0][0] <= s and len(dm) < cfg.MAXD: dm.append(Q.pop(0))
        ex = [(0, e, False) for e in extra.get(s, []) + touch_items(s)]
        mix = []
        while dm or ex:
            if dm: mix.append(dm.pop(0))
            if ex and len(ex) >= len(dm): mix.append(ex.pop(0))
        dm = mix
        mf = []
        for p in range(npt):
            for seg in range(2):
                for rt in range(4):
                    a = acc(p, seg, rt)
                    mf.append("v_mfma_f32_16x16x32_bf16 %s, %s, %s, %s" % (R(a,4), R(WF0 + (b*12+p*2+seg)*4, 4), R(XF0 + (b*4+rt)*4, 4), R(a,4) if s else "0"))
        if gate:
            for rt in range(4):
                a = GACC + rt*4
                mf.append("v_mfma_f32_16x16x32_bf16 %s, %s, %s, %s" % (R(a,4), R(GF0 + b*4, 4), R(XF0 + (b*4+rt)*4, 4), R(a,4) if s else "0"))
        nm = len(mf); nd = len(dm)
        at = [int(i * (nm - 3) / max(nd, 1)) for i in range(nd)]
        for i in range(1, nd): at[i] = max(at[i], at[i-1] + 2)
        pend = None
        for m, t in enumerate(mf):
            k(t)
            if rd: k.lg(rd.pop(0))
            if (s+1) in polls and m == nm - 1: poll_issue(k, P_DBG, polls[s+1], ("poll", s+1))
            if pend is not None:
                k.vm(pend[1][1], pend[1][2])
                if pend[2]: wadv(k)
                pend = None
            elif dm and m >= at[nd - len(dm)]:
                pend = dm.pop(0)
                if pend[1][0]: k(pend[1][0])
        assert not rd and not dm and pend is None, (s, rd, dm, pend)
        if s < 19:
            k.wait(vm=[("W", s+2), ("X", (s+2) >> 1)] + (xwait.get(s, []) if xwait else []), lg="all")
        if s in polls: poll_check(k, P_DBG, 16, ("poll", s), sleep=8)
        if s < 19:
            k("s_barrier")
            if cfg.STG and s % 2 == 1: stamp(k, 17 + s//2)
            if cfg.CYC and s in (5, 13):
                stamp(k, 23 if s == 5 else 24)
                k("s_memtime s[92:93]"); k("s_waitcnt lgkmcnt(0)"); k("v_writelane_b32 v1, s92, %d" % (25 if s == 5 else 31))
    assert not Q
    stamp(k, 4)

def ffn_setup(k):
    k("s_lshl_b32 s75, s%d, 1" % S_MT)
    k("s_add_u32 s75, s75, s%d" % S_RH)
    k("s_mul_i32 s75, s75, 74")
    k("s_mul_i32 s76, s%d, 6" % S_TY)
    k("s_add_u32 s75, s75, s76")
    k("s_mul_i32 s76, s%d, 3" % S_C)
    k("s_add_u32 s75, s75, s76")
    k("s_add_u32 s75, s75, 20")
    k("s_lshl_b32 s75, s75, 12")
    k("s_lshl_b32 s%d, s%d, 7" % (S_SIG, S_MT))
    srd(k, SRD_O, P_WS, A2_OFF, A2_SZ)

def ffn_role(k, Q):
    extra = spread(b_items(range(cfg.NBF)), cfg.PS1, 20)
    gemm_main(k, False, False, Q, extra, {cfg.PS1-1: D_S1, 19: D_S3}, xsetup=ffn_setup)
    fd = Feed(k, b_items(range(cfg.NBF, 70)) + bo_items())
    per, last = cfg.FFE
    n = 0
    for ks in range(3):
        for rt in range(4):
            T = 6 + (n & 1)*8; O = 22 + (n & 1)*4; n += 1
            if O & 3: O = (24, 28)[(n-1) & 1] - 0
            fe = lambda i: fd.emit(1) if (n <= last and i < per) else None
            G = [acc(2*ks+j, 0, rt) for j in range(2)]; U = [acc(2*ks+j, 1, rt) for j in range(2)]
            O = U[0]
            prs = [(j, h) for j in range(2) for h in range(2)]
            for i, (j, h) in enumerate(prs):
                k("v_pk_mul_f32 %s, %s, s[%d:%d] neg_lo:[0,1] neg_hi:[0,1]" % (vr(T+2*i,2), vr(G[j]+2*h,2), S_C2, S_C2+1))
            fe(0)
            for i in range(8): k("v_exp_f32 v%d, v%d" % (T+i, T+i))
            fe(2)
            for i, (j, h) in enumerate(prs):
                k("v_pk_mul_f32 %s, %s, %s" % (vr(G[j]+2*h,2), vr(G[j]+2*h,2), vr(U[j]+2*h,2)))
            for i in range(4): k("v_pk_add_f32 %s, %s, 1.0 op_sel_hi:[1,0]" % (vr(T+2*i,2), vr(T+2*i,2)))
            fe(1)
            for i in range(8): k("v_rcp_f32 v%d, v%d" % (T+i, T+i))
            fe(3)
            for i, (j, h) in enumerate(prs):
                k("v_pk_mul_f32 %s, %s, %s" % (vr(T+2*i,2), vr(G[j]+2*h,2), vr(T+2*i,2)))
            for i in range(4): k("v_cvt_pk_bf16_f32 v%d, v%d, v%d" % (O+i, T+2*i, T+2*i+1))
            k.vm("buffer_store_dwordx4 %s, v%d, s[%d:%d], s75 offen offset:%d%s" % (vr(O,4), V_L16, SRD_O, SRD_O+3, rt*1024, SC), "st")
        if ks < 2: k("s_add_u32 s75, s75, 4096")
    stamp(k, 26)
    k.wait(vm="st")
    stamp(k, 5)
    signal(k, S_CNT, "s%d" % S_SIG)
    fd.drain()

def phi_dma(seg, s_off):
    out = [("s_add_u32 m0, s%d, %d" % (S_WL, seg*WSLOT),
            "buffer_load_dwordx4 v%d, s[%d:%d], s%d offen offset:%d lds" % (V_L16, SRD_P, SRD_P+3, s_off, i*1024), ("P", seg)) for i in range(4)]
    out.append(("s_add_u32 m0, s%d, %d" % (S_WL, seg*WSLOT + 4096),
                "buffer_load_dwordx4 v%d, s[%d:%d], s82 offen lds" % (V_L16, SRD_P, SRD_P+3), ("P", seg)))
    return out
def phireg(seg, to, s):
    i = s*5 + to
    if seg == 1: return 256 + 48 + 4*i if i < 10 else 256 + 108 + 4*(i-10)
    return 256 + 4*i if i < 12 else 256 + 96 + 4*(i-12)
V_PHA = 23
def phi_reads(seg):
    out = []
    for s in range(3):
        for to in range(5):
            for h in range(2):
                d = phireg(seg, to, s) + 2*h
                if s == 2 and h == 1: out.append("ds_read_b64_tr_b16 %s, v26 offset:%d" % (R(d,2), seg*WSLOT))
                else: out.append("ds_read_b64_tr_b16 %s, v%d offset:%d" % (R(d,2), V_PHA, seg*WSLOT + (8*s+4*h)*40 + 8*to))
    return out
def cvt_in(seg, rt, B):
    out = []
    for t in range(5):
        a = acc(t, seg, rt)
        out.append("v_cvt_pk_bf16_f32 v%d, v%d, v%d" % (B+2*t, a, a+1))
        out.append("v_cvt_pk_bf16_f32 v%d, v%d, v%d" % (B+2*t+1, a+2, a+3))
    return out
def phi_mf(seg, rt, B):
    return ["v_mfma_f32_16x16x32_bf16 %s, %s, %s, %s" % (vr(acc(to,seg,rt),4), R(phireg(seg, to, s),4), vr(B+4*s,4), vr(acc(to,seg,rt),4) if s else "0")
            for s in range(3) for to in range(5)]

PKRS = 352; VRS = 224; PKSZ = 128*PKRS; VB = 2*PKSZ; VSZ = 128*VRS
V_E0, V_E1, V_E2, V_E3, V_E4, V_E5, V_E6 = 27, 28, 29, 30, 60, 61, 62
def att_common_setup(k):
    k("v_lshrrev_b32 v50, 4, v0")
    k("v_and_b32 v51, 15, v0")
    k("v_bfe_u32 v52, v0, 2, 2")
    k("v_and_b32 v53, 3, v0")
    k("v_mul_u32_u24 v48, 800, v50")
    k("v_mad_u32_u24 v48, v52, 40, v48")
    k("v_cmp_eq_u32 vcc, v50, v53")
    k("v_mov_b32 v49, 4096")
    k("v_cndmask_b32 v48, v49, v48, vcc")
    k("v_add_u32 v%d, s%d, v48" % (V_PHA, S_WL))
    k("v_add_u32 v26, s%d, v49" % S_WL)
    k("v_and_b32 v48, 31, v0"); k("v_lshlrev_b32 v48, 7, v48")
    k("v_lshrrev_b32 v49, 5, v0"); k("v_mul_u32_u24 v49, 12800, v49"); k("v_add_u32 v48, v48, v49")
    k.vm("buffer_load_dword v%d, v48, s[%d:%d], s80 offen" % (V_JUNK, SRD_P, SRD_P+3), "pf")
def kv_setup(k):
    att_common_setup(k)
    k("s_add_u32 s%d, s%d, %d" % (S_SIG, S_TY, C_K - 9))
    k("s_lshl_b32 s%d, s%d, 7" % (S_SIG, S_SIG))
    k("s_lshl_b32 s%d, s%d, 6" % (S_T0, S_RH))
    k("v_add_u32 v48, s%d, v51" % S_T0)
    k("s_mul_i32 s%d, s%d, %d" % (S_T0, S_C, PKSZ))
    k("v_mul_u32_u24 v%d, %d, v48" % (V_E0, PKRS))
    k("v_mul_u32_u24 v49, 80, v50")
    k("v_add3_u32 v%d, v%d, v49, s%d" % (V_E0, V_E0, S_T0))
    k("s_mul_i32 s%d, s%d, %d" % (S_T1, S_C, VSZ))
    k("s_add_u32 s%d, s%d, %d" % (S_T1, S_T1, VB))
    k("v_mul_u32_u24 v%d, %d, v48" % (V_E1, VRS))
    k("v_mul_u32_u24 v49, 48, v50")
    k("v_add3_u32 v%d, v%d, v49, s%d" % (V_E1, V_E1, S_T1))
    k("v_lshrrev_b32 v48, 2, v0")
    k("v_lshlrev_b32 v49, 3, v53")
    k("s_mul_i32 s%d, s%d, 160" % (S_T2, S_RH))
    k("s_add_u32 s%d, s%d, s%d" % (S_T0, S_T0, S_T2))
    k("v_mul_u32_u24 v%d, %d, v48" % (V_E2, PKRS))
    k("v_add3_u32 v%d, v%d, v49, s%d" % (V_E2, V_E2, S_T0))
    k("s_mul_i32 s%d, s%d, 96" % (S_T2, S_RH))
    k("s_add_u32 s%d, s%d, s%d" % (S_T1, S_T1, S_T2))
    k("v_mul_u32_u24 v%d, %d, v48" % (V_E3, VRS))
    k("v_add3_u32 v%d, v%d, v49, s%d" % (V_E3, V_E3, S_T1))
    k("s_add_u32 s%d, s%d, %d" % (S_T2, S_XL, SPARE - XBASE))
    k("v_mul_u32_u24 v48, 80, v51")
    k("v_lshl_add_u32 v48, v50, 3, v48")
    k("v_add_u32 v%d, s%d, v48" % (V_E5, S_T2))
    k("v_add_u32 v%d, s%d, v%d" % (V_E6, S_T2, V_L16))
    k("v_mov_b32 v48, 0x7fffffff")
    k("v_cmp_gt_u32 vcc, 32, v0")
    k("v_cndmask_b32 v%d, v48, v%d, vcc" % (V_E4, V_L16))
    k("s_lshl_b32 s78, s79, 1")
    k("s_add_u32 s78, s78, s%d" % S_RH)
    k("s_lshl_b32 s78, s78, 4")
    k("s_add_u32 s78, s78, s%d" % S_MT)
    k("s_mul_i32 s78, s78, %d" % KVPS)
    k("v_cmp_gt_u32 s[72:73], 2, v50")
    k("v_cmp_gt_u32 s[74:75], 5, v51")
    k("s_and_b64 s[76:77], s[72:73], s[74:75]")
    srd(k, SRD_O, P_WS, KVP_OFF, KVP_SZ)
    for r in (42, 43, 54, 55): k("v_mov_b32 v%d, 0" % r)
    for O in (232, 244):
        k("v_mov_b32 v%d, 0x3f80" % (O+10)); k("v_mov_b32 v%d, 0" % (O+11))
def q_setup(k):
    att_common_setup(k)
    k("s_mov_b32 s%d, 81920" % S_T0)
    k("v_mul_lo_u32 v48, v50, s%d" % S_T0)
    k("v_lshl_add_u32 v%d, v51, 4, v48" % V_E0)
    k("v_lshl_add_u32 v%d, v51, 3, v48" % V_E1)
    k("v_lshlrev_b32 v%d, 2, v0" % V_E2)
    k("s_mul_i32 s%d, s79, %d" % (S_T1, 4*81920))
    k("s_lshl_b32 s%d, s%d, 1" % (S_T0, S_MT))
    k("s_add_u32 s%d, s%d, s%d" % (S_T0, S_T0, S_RH))
    k("s_lshl_b32 s75, s%d, 10" % S_T0)
    k("s_add_u32 s75, s75, s%d" % S_T1)
    k("s_add_u32 s76, s75, 32768")
    k("s_lshl_b32 s77, s%d, 9" % S_T0)
    k("s_add_u32 s77, s77, s%d" % S_T1)
    k("s_add_u32 s77, s77, 65536")
    k("s_lshl_b32 s78, s%d, 8" % S_T0)
    k("s_add_u32 s78, s78, %d" % (G_OFF - PQ_OFF))
    k("s_add_u32 s%d, s%d, %d" % (S_SIG, S_MT, C_Q))
    k("s_lshl_b32 s%d, s%d, 7" % (S_SIG, S_SIG))
    srd(k, SRD_O, P_WS, PQ_OFF, G_OFF + G_SZ - PQ_OFF)
    for r in (42, 43, 54, 55): k("v_mov_b32 v%d, 0" % r)

def softmax_pm(k, P, E, T, O, fd=None, mf=None, side=None):
    def fe(n=1):
        if fd: fd.emit(n)
    mf = list(mf or []); side = list(side or [])
    v = [p + i for p in P for i in range(2)]
    k("v_max3_f32 v%d, v%d, v%d, v%d" % (T, v[0], v[1], v[2]))
    k("v_min3_f32 v%d, v%d, v%d, v%d" % (T+2, v[0], v[1], v[2]))
    k("v_max3_f32 v%d, v%d, v%d, v%d" % (T+1, v[3], v[4], v[5]))
    k("v_min3_f32 v%d, v%d, v%d, v%d" % (T+3, v[3], v[4], v[5]))
    for n, i in enumerate(range(6, 20, 2)):
        c = n & 1
        k("v_max3_f32 v%d, v%d, v%d, v%d" % (T+c, T+c, v[i], v[i+1]))
        k("v_min3_f32 v%d, v%d, v%d, v%d" % (T+2+c, T+2+c, v[i], v[i+1]))
    fe()
    k("v_max_f32 v%d, v%d, v%d" % (T, T, T+1))
    k("v_min_f32 v%d, v%d, v%d" % (T+2, T+2, T+3))
    k("v_mul_f32 v%d, %s, v%d" % (T, f32(-LOG2E), T))
    k("v_mul_f32 v%d, %s, v%d" % (T+2, f32(LOG2E), T+2))
    for i, p in enumerate(P):
        k("v_pk_fma_f32 %s, %s, s[%d:%d], %s op_sel_hi:[1,1,0]" % (vr(E+2*i,2), vr(p,2), S_C2, S_C2+1, vr(T,2)))
    fe()
    for i, p in enumerate(P):
        k("v_pk_fma_f32 %s, %s, s[%d:%d], %s op_sel_hi:[1,1,0] neg_lo:[0,1,0] neg_hi:[0,1,0]" % (vr(p,2), vr(p,2), S_C2, S_C2+1, vr(T+2,2)))
    ex = [E+i for i in range(20)] + v
    for i, x in enumerate(ex):
        if i % 2 == 0:
            if mf: k(mf.pop(0))
            if side: k.lg(*side.pop(0))
        if i % 12 == 5: fe()
        k("v_exp_f32 v%d, v%d" % (x, x))
    assert not mf and not side
    Ep = [E+2*i for i in range(10)]
    k("v_pk_add_f32 %s, %s, %s" % (vr(T+4,2), vr(Ep[0],2), vr(Ep[1],2)))
    k("v_pk_add_f32 %s, %s, %s" % (vr(T,2), vr(Ep[2],2), vr(Ep[3],2)))
    k("v_pk_add_f32 %s, %s, %s" % (vr(T+6,2), vr(P[0],2), vr(P[1],2)))
    k("v_pk_add_f32 %s, %s, %s" % (vr(T+2,2), vr(P[2],2), vr(P[3],2)))
    for i in range(4, 10, 2):
        k("v_pk_add_f32 %s, %s, %s" % (vr(T+4,2), vr(T+4,2), vr(Ep[i],2)))
        k("v_pk_add_f32 %s, %s, %s" % (vr(T,2), vr(T,2), vr(Ep[i+1],2)))
        k("v_pk_add_f32 %s, %s, %s" % (vr(T+6,2), vr(T+6,2), vr(P[i],2)))
        k("v_pk_add_f32 %s, %s, %s" % (vr(T+2,2), vr(T+2,2), vr(P[i+1],2)))
    k("v_pk_add_f32 %s, %s, %s" % (vr(T+4,2), vr(T+4,2), vr(T,2)))
    k("v_pk_add_f32 %s, %s, %s" % (vr(T+6,2), vr(T+6,2), vr(T+2,2)))
    fe()
    k("v_add_f32 v%d, v%d, v%d" % (T+4, T+4, T+5))
    k("v_add_f32 v%d, v%d, v%d" % (T+6, T+6, T+7))
    k("v_rcp_f32 v%d, v%d" % (T+4, T+4))
    k("v_rcp_f32 v%d, v%d" % (T+6, T+6))
    for i in range(10): k("v_pk_mul_f32 %s, %s, %s op_sel_hi:[1,0]" % (vr(Ep[i],2), vr(Ep[i],2), vr(T+4,2)))
    fe()
    for i in range(10): k("v_pk_mul_f32 %s, %s, %s op_sel_hi:[1,0]" % (vr(P[i],2), vr(P[i],2), vr(T+6,2)))
    for i in range(10): k("v_cvt_pk_bf16_f32 v%d, v%d, v%d" % (O+i, Ep[i], Ep[i]+1))
    fe()
    for i in range(10): k("v_cvt_pk_bf16_f32 v%d, v%d, v%d" % (O+10+i, P[i], P[i]+1))

def att_extra(two):
    extra = spread(b_items(range(cfg.NBA)), cfg.PS1, 20)
    extra[16] = phi_dma(0, 80) + extra[16]
    if two: extra[17] = phi_dma(1, 81) + extra[17]
    return extra

def q_role(k, Q):
    srd(k, SRD_O, P_GW, 0, 1280)
    gemm_main(k, True, True, Q, att_extra(True), {cfg.PS1-1: D_S1}, xrd={19: phi_reads(0)}, xwait={18: [("P", 0)]}, xsetup=q_setup)
    k.wait(vm=("P", 1))
    for t in cvt_in(0, 0, 32): k(t)
    gate = ["v_lshrrev_b32 v24, 4, v0"]
    for rt in range(1, 4):
        gate += ["v_cmp_eq_u32 vcc, %d, v24" % rt, "v_cndmask_b32 v%d, v%d, v%d, vcc" % (GACC, GACC, GACC+4*rt)]
    gate += ["v_mul_f32 v25, %s, v%d" % (f32(-LOG2E), GACC), "v_exp_f32 v25, v25", "v_add_f32 v25, 1.0, v25", "v_rcp_f32 v25, v25",
             ("vm", "buffer_store_dword v25, v%d, s[%d:%d], s78 offen%s" % (V_E2, SRD_O, SRD_O+3, SC), "st")]
    rd1 = [("lg", r, "ph1") for r in phi_reads(1)]
    def outs(u):
        seg, rt = u >> 2, u & 3
        O = (240, 8)[u & 1]
        f = cvt_in(seg, rt, O)
        f.insert(4, ("vm", "buffer_store_dwordx4 %s, v%d, s[%d:%d], s75 offen offset:%d%s" % (vr(O,4), V_E0, SRD_O, SRD_O+3, rt*256, SC), "st"))
        f.insert(9, ("vm", "buffer_store_dwordx4 %s, v%d, s[%d:%d], s76 offen offset:%d%s" % (vr(O+4,4), V_E0, SRD_O, SRD_O+3, rt*256, SC), "st"))
        f.append(("vm", "buffer_store_dwordx2 %s, v%d, s[%d:%d], s77 offen offset:%d%s" % (vr(O+8,2), V_E1, SRD_O, SRD_O+3, rt*128, SC), "st"))
        if u == 3: f += ["s_add_u32 s%d, s%d, %d" % (x, x, 16*81920) for x in (75, 76, 77)]
        return f
    k.wait(lg="all")
    for u in range(8):
        seg, rt = u >> 2, u & 3
        fill = []
        if u < 7: fill += cvt_in((u+1) >> 2, (u+1) & 3, 32 + ((u+1) & 1)*12)
        if u == 0: fill += rd1[:14] + gate[:6]
        elif u == 1: fill += outs(0) + rd1[14:21]
        elif u == 2: fill += outs(1) + rd1[21:28]
        elif u == 3: fill += rd1[28:] + outs(2) + gate[6:]
        else: fill += outs(u-1)
        if u == 4: k.wait(lg="all")
        weave(k, phi_mf(seg, rt, 32 + (u & 1)*12), fill)
    weave(k, [], outs(7))
    poll_issue(k, P_DBG, D_S3, "s3")
    k.wait(vm="st")
    poll_check(k, P_DBG, 16, "s3", sleep=8)
    stamp(k, 5)
    signal(k, S_CNT, "s%d" % S_SIG)
    Feed(k, b_items(range(cfg.NBA, 70)) + bo_items()).drain()

def kv_role(k, Q):
    gemm_main(k, True, False, Q, att_extra(False), {cfg.PS1-1: D_S1}, xrd={19: phi_reads(0)}, xwait={18: [("P", 0)]}, xsetup=kv_setup)
    EREG = 6; TREG = 244; O = 224
    for t in cvt_in(0, 0, 32): k(t)
    def vout(rt):
        B = (232, 244)[rt & 1]
        f = cvt_in(1, rt, B)
        f += [("lg", "ds_write_b128 v%d, %s offset:%d" % (V_E1, vr(B+4*i,4), rt*16*VRS + 16*i), ("vw", rt)) for i in range(3)]
        if rt >= 2: f.insert(0, lambda rt=rt: k.wait(lg=("vw", rt-2)))
        return f
    k.wait(lg="all")
    weave(k, phi_mf(0, 0, 32), cvt_in(0, 1, 44) + vout(0) + vout(1) + vout(2) + vout(3))
    k.wait(lg="all")
    k("s_barrier")
    if not cfg.STG: stamp(k, 17)
    def vfr(n, bt): return acc((n*2+bt) >> 2, 1, (n*2+bt) & 3)
    vreads = []
    for n in range(8):
        j, ks = n >> 2, n & 3
        for bt in range(2):
            for h in range(2):
                vreads.append(("ds_read_b64_tr_b16 %s, v%d offset:%d" % (vr(vfr(n,bt)+2*h,2), V_E3, (32*ks+16*h)*VRS + j*48 + bt*32), "vf"))
    free1 = list(range(52, 64)) + [67, 68, 69]
    free2 = list(range(40, 52)) + [64, 65, 66]
    fd = Feed(k, b_items(range(cfg.NBA, 32)))
    for rt in range(4):
        P = [acc(t, 0, rt) + 2*h for t in range(5) for h in range(2)]
        mf = phi_mf(0, rt+1, 32 + ((rt+1) & 1)*12) if rt < 3 else []
        if rt == 1: poll_issue(k, P_DBG, D_S3, "s3")
        if rt == 2:
            poll_check(k, P_DBG, 16, "s3", sleep=8)
            fd.q += b_items(free1)
        softmax_pm(k, P, EREG, TREG, O, fd, mf, vreads[rt*8:(rt+1)*8])
        for i in range(5):
            k.lg("ds_write_b128 v%d, %s offset:%d" % (V_E0, vr(O+4*i,4), rt*16*PKRS + 16*i), ("pw", rt))
        if rt < 2:
            for t in cvt_in(0, rt+2, 32 + (rt & 1)*12): k(t)
        if not cfg.STG: stamp(k, 18+rt)
    fd.drain()
    fd.q += b_items(free2)
    k.wait(lg="all")
    k("s_barrier")
    if not cfg.STG: stamp(k, 22)
    KAQ = [32, 36, 40, 44, 48, 52, 224, 228, 232, 236, 240, 244]
    def pfr(n, ft): return acc(((n % 6)*3+ft) >> 2, 0, ((n % 6)*3+ft) & 3)
    def rd(n):
        j, ks = n >> 2, n & 3
        return [("lg", "ds_read_b64_tr_b16 %s, v%d offset:%d" % (vr(pfr(n,ft)+2*h,2), V_E2, (32*ks+16*h)*PKRS + j*80 + ft*32), ("f", n)) for ft in range(3) for h in range(2)]
    def pack(jj):
        f = []
        for ft in range(3):
            for bt in range(2):
                a = KAQ[(jj*3+ft)*2+bt]
                f += ["v_cvt_pk_bf16_f32 v%d, v%d, v%d" % (a, a, a+1), "v_cvt_pk_bf16_f32 v%d, v%d, v%d" % (a+1, a+2, a+3)]
                mask = [[None, "s[74:75]"], [None, "s[74:75]"], ["s[72:73]", "s[76:77]"]][ft][bt]
                w = "ds_write_b64 v%d, %s offset:%d" % (V_E5, vr(a,2), jj*1680 + bt*1280 + ft*32)
                if mask: w = "s_mov_b64 exec, %s\n%s\ns_mov_b64 exec, -1" % (mask, w)
                f.append(("lg", w, "cw"))
        return f
    weave(k, [], rd(0) + rd(1))
    pk0 = pack(0)
    for n in range(8):
        j, ks = n >> 2, n & 3
        k.wait(lg=("f", n))
        mf = []
        for ft in range(3):
            for bt in range(2):
                a = KAQ[(j*3+ft)*2+bt]
                mf.append("v_mfma_f32_16x16x32_bf16 %s, %s, %s, %s" % (vr(a,4), vr(pfr(n,ft),4), vr(vfr(n,bt),4), vr(a,4) if ks else "0"))
        fill = rd(n+2) if n < 6 else []
        if n < 5: fill.append(lambda: fd.emit(1))
        if n >= 5: fill += pk0[(n-5)*6:(n-4)*6]
        weave(k, mf, fill)
    weave(k, [], pack(1))
    k.wait(lg="all")
    for i in range(4): k.lg("ds_read_b128 %s, v%d offset:%d" % (vr(64+4*i,4), V_E6, i*1024), ("cr", i))
    for i in range(4):
        k.wait(lg=("cr", i))
        k.vm("buffer_store_dwordx4 %s, v%d, s[%d:%d], s78 offen offset:%d%s" % (vr(64+4*i,4), V_L16 if i < 3 else V_E4, SRD_O, SRD_O+3, i*1024, SC), "st")
    stamp(k, 26)
    fd.emit(4)
    k.wait(vm="st")
    stamp(k, 5)
    signal(k, S_CNT, "s%d" % S_SIG)
    fd.drain()
    Feed(k, b_items(range(32, 40)) + bo_items()).drain()

def aux_role(k):
    NSL = 9
    order = [("d", i) for i in range(6)] + [("o", i) for i in range(4)] + [("d", i) for i in range(6, 9)]
    NU = len(order)
    k("s_mov_b32 s%d, 1280" % S_STRIDE)
    k("s_lshl_b32 s75, s%d, 2" % S_MT)
    k("s_add_u32 s75, s75, s%d" % S_W)
    k("s_mul_i32 s76, s75, 205"); k("s_lshr_b32 s76, s76, 11")
    k("s_mul_i32 s77, s76, 10"); k("s_sub_u32 s77, s75, s77")
    k("s_cmp_ge_u32 s76, 6")
    k("s_cselect_b32 s78, 0x4000000, 0")
    k("s_mul_i32 s79, s76, %d" % (32*1280))
    k("s_lshl_b32 s80, s77, 7")
    k("s_add_u32 s79, s79, s80")
    k("s_add_u32 s79, s79, s78")
    k("v_lshrrev_b32 v24, 3, v0"); k("v_and_b32 v25, 7, v0")
    k("v_and_b32 v26, 6, v24")
    k("v_xor_b32 v26, v26, v25")
    k("v_lshlrev_b32 v26, 4, v26")
    k("v_mad_u32_u24 v5, v24, s%d, v26" % S_STRIDE)
    for i in range(1, 4): k("v_add_u32 v%d, %d, v5" % (5+i, i*8*1280))
    k("s_mul_i32 s%d, s%d, %d" % (S_WL, S_W, NSL*4096))
    k("s_waitcnt lgkmcnt(0)")
    srd(k, SRD_W1, P_WD, 0, 1728*1280)
    def load(n):
        kind, i = order[n]
        sg, vb = (SRD_W1, 5) if kind == "d" else (SRD_W0, 12)
        k("s_add_u32 s81, s79, %d" % (i*6*32*1280))
        for j in range(4):
            k("s_add_u32 m0, s%d, %d" % (S_WL, (n % NSL)*4096 + j*1024))
            k.vm("buffer_load_dwordx4 v%d, s[%d:%d], s81 offen nt lds" % (vb+j, sg, sg+3), ("u", n))
    D = cfg.AUXD
    for n in range(D): load(n)
    srd(k, SRD_W0, P_WO, 0, 640*1280)
    k("v_lshrrev_b32 v27, 2, v24"); k("v_and_b32 v28, 3, v24")
    k("v_lshl_add_u32 v27, v27, 3, v28")
    k("v_mad_u32_u24 v12, v27, s%d, v26" % S_STRIDE)
    for i in range(1, 4): k("v_add_u32 v%d, %d, v12" % (12+i, (16*(i&1) + 4*(i>>1))*1280))
    srd(k, SRD_O, P_WS, B2_OFF, B2_SZ)
    for t in late_setup_items(): k(t)
    k("s_cmp_eq_u32 s%d, 0" % S_MT)
    k("s_cselect_b32 s%d, 8192, 0" % S_T0)
    srd(k, 96, P_WS, CNT_OFF, "s%d" % S_T0)
    for i in range(4): k("v_mov_b32 v%d, 0" % (56+i))
    k("s_lshl_b32 s%d, s%d, 11" % (S_T0, S_W))
    for i in range(2): k.vm("buffer_store_dwordx4 v[56:59], v%d, s[96:99], s%d offen offset:%d%s" % (V_L16, S_T0, i*1024, SC), ("st", 0))
    k("v_lshrrev_b32 v24, 2, v0")
    k("v_bfe_u32 v25, v24, 1, 2")
    k("v_and_b32 v26, 3, v0")
    k("v_lshlrev_b32 v24, 7, v24")
    k("v_lshl_add_u32 v24, v26, 3, v24")
    k("v_add_u32 v24, s%d, v24" % S_WL)
    for b in range(4):
        k("v_xor_b32 v26, %d, v25" % b)
        k("v_lshl_add_u32 v%d, v26, 5, v24" % (20+b))
    for b in range(4):
        k("s_lshl_b32 s72, s77, 2"); k("s_add_u32 s72, s72, %d" % b)
        k("s_mul_i32 s73, s72, 205"); k("s_lshr_b32 s73, s73, 10")
        k("s_mul_i32 s74, s73, 5"); k("s_sub_u32 s72, s72, s74")
        k("s_mul_i32 s73, s73, 74"); k("s_add_u32 s73, s73, s76")
        k("s_mul_i32 s73, s73, 5"); k("s_add_u32 s73, s73, s72")
        k("s_lshl_b32 s73, s73, 10")
        k("s_add_u32 s%d, s73, s78" % (64+b))
    k("s_cmp_lt_u32 s76, 2")
    k("s_cselect_b32 s82, %d, 0x4000000" % (18*5120) if False else "s_cselect_b32 s82, 0, 0x4000000")
    stamp(k, 1)
    for n in range(NU):
        kind, i = order[n]
        k.wait(vm=("u", n))
        F = 64 + (n % 4)*16
        for b in range(4):
            for h in range(2):
                k.lg("ds_read_b64_tr_b16 %s, v%d offset:%d" % (vr(F+4*b+2*h,2), 20+b, (n % NSL)*4096 + h*2048))
        off = ((20 if kind == "d" else 0) + 6*i)*5120
        for b in range(4):
            k("s_add_u32 s%d, s%d, %d" % (72+b, 64+b, off))
            if kind == "o" and i == 3: k("s_add_u32 s%d, s%d, s82" % (72+b, 72+b))
        k.wait(lg="all")
        for b in range(4):
            k.vm("buffer_store_dwordx4 %s, v%d, s[%d:%d], s%d offen%s" % (vr(F+4*b,4), V_L16, SRD_O, SRD_O+3, 72+b, SC), ("st", n))
        if n + D < NU: load(n + D)
        if n == 6:
            k.wait(vm=("st", 5)); signal(k, P_DBG, D_S1); stamp(k, 2)
    k.wait(vm="all")
    signal(k, P_DBG, D_S3)
    stamp(k, 4)
    poll_issue(k, P_DBG, D_S3, "s3")
    poll_check(k, P_DBG, 16, "s3", sleep=32)
    stamp(k, 5)
    it = b_items(range(70)) + bo_items()
    fd = Feed(k, it)
    for i in range(len(it)):
        fd.emit(1)
        k("s_waitcnt vmcnt(%d)" % cfg.AUXT)

PHB = 102400; KVB = PHB + 20480; RED = PHB
def tail(k):
    k.flush_counters()
    stamp(k, 6)
    k("s_add_u32 s82, s%d, %d" % (S_OMT, C_Q)); k("s_lshl_b32 s82, s82, 7")
    poll_issue(k, S_CNT, "s82", "pq_ok")
    srd(k, SRD_P, P_WS, PQ_OFF, PQ_SZ)
    srd(k, SRD_W0, P_WS, KVP_OFF, KVP_SZ)
    srd(k, SRD_W1, P_WS, G_OFF, G_SZ)
    srd(k, SRD_O, P_WS, A2_OFF, A2_SZ)
    k("s_mul_i32 s%d, s%d, %d" % (S_T0, S_M64, 74*4096))
    srd(k, SRD_X, P_WS, A2_OFF, 74*4096, S_T0)
    k("v_and_b32 v24, 15, v0"); k("v_lshrrev_b32 v25, 4, v0")
    k("v_lshlrev_b32 v6, 2, v24")
    k("s_lshl_b32 s77, s%d, 1" % S_OMT); k("s_add_u32 s77, s77, s%d" % S_RH)
    k("s_lshl_b32 s78, s%d, 1" % S_OH); k("s_add_u32 s78, s78, s%d" % S_C)
    k("s_mul_i32 s78, s78, 81920")
    k("s_lshl_b32 s79, s77, 10"); k("s_add_u32 s79, s79, s78")
    k("s_add_u32 s80, s79, 32768")
    k("s_lshl_b32 s81, s77, 9"); k("s_add_u32 s81, s81, s78"); k("s_add_u32 s81, s81, 65536")
    k("v_lshlrev_b32 v7, 3, v0")
    k("s_lshl_b32 s76, s%d, 9" % S_OMT); k("s_lshl_b32 s75, s%d, 7" % S_W); k("s_add_u32 s76, s76, s75")
    poll_check(k, S_CNT, 2, "pq_ok")
    stamp(k, 7)
    PQ = 192
    k.vm("buffer_load_dwordx4 %s, v%d, s[%d:%d], s79 offen%s" % (vr(PQ,4), V_L16, SRD_P, SRD_P+3, SC), "pq")
    k.vm("buffer_load_dwordx4 %s, v%d, s[%d:%d], s80 offen%s" % (vr(PQ+4,4), V_L16, SRD_P, SRD_P+3, SC), "pq")
    k.vm("buffer_load_dwordx2 %s, v7, s[%d:%d], s81 offen%s" % (vr(PQ+8,2), SRD_P, SRD_P+3, SC), "pq")
    for r2 in range(2): k.vm("buffer_load_dword v%d, v6, s[%d:%d], s76 offen offset:%d%s" % (16+r2, SRD_W1, SRD_W1+3, r2*64, SC), "g")
    k("s_lshr_b32 s82, s%d, 1" % S_M64); k("s_add_u32 s82, s82, %d" % C_Q); k("s_lshl_b32 s82, s82, 7")
    poll_issue(k, S_CNT, "s82", "g_ok")
    k("s_mul_i32 s75, s%d, 5120" % S_W); k("s_add_u32 s75, s75, %d" % PHB)
    k("v_mul_u32_u24 v7, 80, v0"); k("v_add_u32 v7, s75, v7")
    k("s_mul_i32 s75, s%d, 2560" % S_W); k("s_add_u32 s75, s75, %d" % PHB)
    k("v_mul_u32_u24 v8, 80, v24"); k("v_add_u32 v8, s75, v8")
    k("v_lshl_add_u32 v9, v25, 4, v8")
    k("s_lshl_b32 s82, s%d, 10" % S_W)
    k("v_add_u32 v10, s82, v%d" % V_L16)
    k("v_mov_b32 v30, 0x7fffffff")
    k("v_cmp_gt_u32 vcc, 3360, v10")
    k("v_cndmask_b32 v11, v30, v10, vcc")
    k("v_add_u32 v10, %d, v10" % KVB)
    k("s_mul_i32 s72, s%d, 5" % S_OH)
    def stoff(dst, add, nvalid):
        k("v_add_u32 v28, s72, v25")
        if add: k("v_add_u32 v28, %d, v28" % add)
        k("v_lshrrev_b32 v26, 2, v28")
        k("v_lshlrev_b32 v26, 12, v26")
        k("v_and_b32 v27, 3, v28")
        k("v_lshl_add_u32 v26, v27, 8, v26")
        k("v_lshl_add_u32 v26, v24, 4, v26")
        k("v_cmp_gt_u32 vcc, %d, v25" % nvalid)
        k("v_cndmask_b32 v%d, v30, v26, vcc" % dst)
    stoff(12, 0, 3); stoff(13, 3, 2)
    k("s_lshl_b32 s73, s%d, 1" % S_OMT); k("s_add_u32 s73, s73, s%d" % S_C)
    k("s_mul_i32 s73, s73, %d" % (74*4096))
    k("s_lshl_b32 s75, s%d, 11" % S_RH); k("s_add_u32 s73, s73, s75")
    k("s_mul_i32 s74, s%d, %d" % (S_OH, 16*KVPS))
    k("v_bfe_u32 v26, v0, 2, 2"); k("v_and_b32 v27, 3, v0")
    k("v_lshl_add_u32 v28, v26, 3, v27")
    for hd in range(2):
        for i in range(3):
            d = 18 + hd*3 + i
            if i == 2: k("v_mov_b32 v%d, %d" % (d, KVB + 1600 + hd*1680))
            else:
                k("v_add_u32 v14, %d, v28" % (4*i + 4*hd)); k("v_min_u32 v14, 20, v14")
                if hd == 1 and i == 0:
                    k("v_cmp_eq_u32 vcc, 2, v26"); k("v_cndmask_b32 v14, v14, v27, vcc")
                k("v_mul_u32_u24 v14, 80, v14")
                k("v_add_u32 v%d, %d, v14" % (d, KVB + hd*1680))
    k("v_cmp_eq_u32 s[78:79], 0, v25")
    k("v_cmp_eq_u32 s[76:77], 2, v25")
    k("v_mov_b32 v30, %d" % (KVB + 3584 - 64))
    k("v_and_b32 v28, 1, v0"); k("v_lshlrev_b32 v28, 4, v28")
    k("v_lshlrev_b32 v28, v28, 0x3f80" if False else "v_mov_b32 v29, 0x3f80")
    k("v_lshlrev_b32 v28, v28, v29")
    k("v_cmp_eq_u32 vcc, v26, v25")
    k("v_cndmask_b32 v28, 0, v28, vcc")
    k("v_cmp_gt_u32 vcc, 2, v27")
    k("v_cndmask_b32 v29, 0, v28, vcc")
    k("v_cndmask_b32 v28, v28, 0, vcc")
    for r, src in ((120, "v29"), (121, "v28"), (122, "0"), (123, "0"), (124, "0"), (125, "0"), (126, "v29"), (127, "v28")):
        k("v_accvgpr_write_b32 a%d, %s" % (r, src))
    k.wait(vm="pq")
    for i in range(10):
        k("v_lshlrev_b32 v%d, 16, v%d" % (64+2*i, PQ+i))
        k("v_and_b32 v%d, 0xffff0000, v%d" % (65+2*i, PQ+i))
    poll_check(k, S_CNT, 2, "g_ok")
    k("s_lshl_b32 s82, s%d, 8" % S_M64); k("s_lshl_b32 s75, s%d, 6" % S_W); k("s_add_u32 s82, s82, s75")
    k.vm("buffer_load_dword v5, v6, s[%d:%d], s82 offen%s" % (SRD_W1, SRD_W1+3, SC), "g")
    class Late:
        n = 0
        def emit(self, _=1):
            self.n += 1
            if self.n == 6:
                k("s_lshr_b32 s82, s%d, 1" % S_M64); k("s_lshl_b32 s82, s82, 7")
                poll_issue(k, S_CNT, "s82", "h_ok")
    softmax_pm(k, [64+2*i for i in range(10)], 84, 124, 104, Late())
    for i in range(5): k.lg("ds_write_b128 v7, %s offset:%d" % (vr(104+4*i,4), 16*i))
    stamp(k, 8)
    poll_check(k, S_CNT, 9, "h_ok")
    stamp(k, 9)
    A0 = 64; AF = 144; DA = 3
    k("s_add_u32 s80, s%d, 20" % S_W); k("s_lshl_b32 s80, s80, 12")
    def af(i): return AF + (i % DA)*16
    def a_load(i, tt):
        k.vm("buffer_load_dwordx4 %s, v%d, s[%d:%d], s80 offen offset:%d%s" % (vr(af(i)+4*tt,4), V_L16, SRD_X, SRD_X+3, tt*1024, SC), ("A", i, tt))
        if tt == 3: k("s_add_u32 s80, s80, %d" % (4*4096))
    for i in range(DA):
        for tt in range(4): a_load(i, tt)
    k("s_lshr_b32 s82, s%d, 2" % S_OH); k("s_add_u32 s82, s82, %d" % C_K); k("s_lshl_b32 s82, s82, 7")
    k.wait(lg="all")
    side = []
    def S(at, item, cost=1): side.append((at, cost, item))
    MK = cfg.MK
    S(max(0, MK-30), lambda: poll_issue(k, S_CNT, "s82", "k_ok"), 2)
    def chk():
        stamp(k, 10); poll_check(k, S_CNT, 16, "k_ok"); stamp(k, 11)
    S(MK, chk, 2)
    PR = 200
    def kp(p):
        k.vm("buffer_load_dwordx4 %s, v11, s[%d:%d], s74 offen%s" % (vr(PR+4*(p % 14),4), SRD_W0, SRD_W0+3, SC), ("kp", p))
        k("s_add_u32 s74, s74, %d" % KVPS)
    for p in range(14): S(MK + 2*p, lambda p=p: kp(p), 2)
    for p in range(16):
        r = PR + 4*(p % 14)
        def red(p=p, r=r):
            k.wait(vm=("kp", p))
            for h in range(2): k("v_mfma_f32_16x16x32_bf16 %s, %s, %s, %s" % (vr(192+4*h,4), ar(120+4*h,4), vr(r,4), vr(192+4*h,4) if p else "0"))
            if p < 2: kp(14+p)
        S(MK + cfg.KLAT + (cfg.KL2 if p >= 14 else 0), red, 2)
    S(0, None, 10)
    for i in range(4): S(0, "v_cvt_pk_bf16_f32 v%d, v%d, v%d" % (PR+i, 192+2*i, 193+2*i))
    S(0, ("lg", "ds_write_b128 v10, %s" % vr(PR,4), "kw"))
    S(0, None, 8)
    def bar():
        k.wait(lg="all"); k("s_barrier"); stamp(k, 28)
    S(80, bar, 2)
    OA = 256 + 128
    for hd in range(2):
        for i in range(3):
            S(0, "v_lshl_add_u32 v15, v25, 4, v%d" % (18+hd*3+i))
            S(0, "v_cndmask_b32 v14, v30, v%d, s[78:79]" % (18+hd*3+i))
            S(0, ("lg", "ds_read_b128 %s, v15" % R(OA+hd*40+8*i,4), ("o", hd)))
            S(0, ("lg", "ds_read_b128 %s, v14 offset:64" % R(OA+hd*40+4+8*i,4), ("o", hd)))
        for r2 in range(2):
            S(0, ("lg", "ds_read_b128 %s, v9 offset:%d" % (R(OA+hd*40+24+8*r2,4), hd*10240 + r2*1280), ("o", hd)))
            S(0, ("lg", "ds_read_b128 %s, v8 offset:%d" % (R(OA+hd*40+28+8*r2,4), hd*10240 + r2*1280+64), ("o", hd)))
    KO = 200
    for hd in range(2):
        if hd: S(0, None, 4)
        def mm(hd=hd):
            k.wait(lg=("o", hd), vm="g")
            for s in range(2):
                for r2 in range(2):
                    for i in (2, 0, 1):
                        a = KO + (hd*2+r2)*12 + i*4
                        k("v_mfma_f32_16x16x32_bf16 %s, %s, %s, %s" % (vr(a,4), R(OA+hd*40+8*i+4*s,4), R(OA+hd*40+24+8*r2+4*s,4), vr(a,4) if s else "0"))
        S(0, mm, 2)
    for u in range(4): S(0, "v_add_f32 v%d, %s, v%d" % (KO+u*12+8, f32(1e-6), KO+u*12+8))
    for u in range(4): S(0, "v_rcp_f32 v%d, v%d" % (KO+u*12+8, KO+u*12+8), 2)
    for u in range(4): S(0, "v_mul_f32 v%d, v%d, v%d" % (KO+u*12+8, KO+u*12+8, 16+(u & 1)))
    for r2 in range(2):
        a0 = KO + r2*12; a1 = KO + (2+r2)*12
        for a in (a1, a0):
            for i in range(8): S(0, "v_mul_f32 v%d, v%d, v%d" % (a+i, a+i, a+8))
            for i in range(4): S(0, "v_cvt_pk_bf16_f32 v%d, v%d, v%d" % (a+8+i, a+2*i, a+2*i+1))
            if a == a1: S(0, ("vm", "buffer_store_dwordx4 %s, v13, s[%d:%d], s73 offen offset:%d%s" % (vr(a1+8,4), SRD_O, SRD_O+3, r2*1024, SC), "st"))
        S(0, "v_cndmask_b32 v%d, v%d, v%d, s[76:77]" % (a0+10, a0+10, a1+8))
        S(0, "v_cndmask_b32 v%d, v%d, v%d, s[76:77]" % (a0+11, a0+11, a1+9))
        S(0, ("vm", "buffer_store_dwordx4 %s, v12, s[%d:%d], s73 offen offset:%d%s" % (vr(a0+8,4), SRD_O, SRD_O+3, r2*1024, SC), "st"))
    S(0, lambda: stamp(k, 29), 0)
    S(0, None, cfg.OSD)
    def osig():
        k.wait(vm="st")
        k("s_add_u32 s82, s%d, %d" % (S_OMT, C_O)); k("s_lshl_b32 s82, s82, 7")
        signal(k, S_CNT, "s82")
        stamp(k, 12)
    S(0, osig, 2)
    m = 0; credit = 0
    for i in range(14):
        for tt in range(4):
            k.wait(vm=("A", i, tt))
            for ct in range(5):
                a = A0 + (ct*4+tt)*4
                k("v_mfma_f32_16x16x32_bf16 %s, %s, %s, %s" % (vr(a,4), R(bloc(i*5+ct),4), vr(af(i)+4*tt,4), vr(a,4) if i else "0"))
                m += 1
                credit = min(credit, 0) + cfg.PER
                if ct == 4:
                    if i + DA < 14: a_load(i + DA, tt)
                    credit -= 2
                while side and side[0][0] <= m and credit > 0:
                    _, c, it = side.pop(0)
                    if it is not None: emit1(k, it)
                    credit -= c
    stamp(k, 13)
    for _, c, it in side:
        if it is not None: emit1(k, it)
    stamp(k, 27)
    k("s_lshr_b32 s82, s%d, 1" % S_M64); k("s_add_u32 s82, s82, %d" % C_O); k("s_lshl_b32 s82, s82, 7")
    labs = [k.newlabel("Lred") for _ in range(5)]
    k("v_add_u32 v7, %d, v%d" % (RED, V_L16))
    k("s_mul_i32 s81, s%d, 15360" % S_W)
    k("v_add_u32 v8, s81, v7")
    for w in range(1, 4):
        k("s_cmp_eq_u32 s%d, %d" % (S_W, w)); k("s_cbranch_scc1 %s" % labs[w])
    AO = 192
    for w in range(4):
        if w: k.label(labs[w]); k("s_nop 7")
        for tt in range(4):
            if tt == w: continue
            slot = w if w < tt else w - 1
            for ct in range(5): k("ds_write_b128 v7, %s offset:%d" % (vr(A0+(ct*4+tt)*4,4), (tt*15 + slot*5 + ct)*1024))
        for ct in range(5):
            for h in range(2): k("v_pk_mul_f32 %s, %s, 1.0 op_sel_hi:[1,0]" % (vr(AO+ct*4+2*h,2), vr(A0+(ct*4+w)*4+2*h,2)))
        if w < 3: k("s_branch %s" % labs[4])
    k.label(labs[4])
    poll_issue(k, S_CNT, "s82", "o_ok")
    k("v_add_u32 v9, 51200, v%d" % V_L16)
    k("s_waitcnt lgkmcnt(0)")
    k("s_barrier")
    for j in range(15): k.lg("ds_read_b128 %s, v8 offset:%d" % (vr(A0+4*j,4), j*1024), ("r", j // 5))
    srd(k, SRD_O, P_OUT, 0, 2048*1280)
    k("s_lshl_b32 s81, s%d, 6" % S_M64); k("s_lshl_b32 s75, s%d, 4" % S_W); k("s_add_u32 s81, s81, s75")
    k("s_mul_i32 s81, s81, 1280"); k("s_mul_i32 s75, s%d, 160" % S_NT); k("s_add_u32 s81, s81, s75")
    k("v_mul_u32_u24 v16, 1280, v24"); k("v_lshl_add_u32 v16, v25, 3, v16")
    k("v_sub_f32 v10, 1.0, v5")
    def bo_read(n):
        off = n*1024
        return ("lg", "ds_read_b128 %s, v%d offset:%d" % (R(256 + (n % 60)*4, 4), V_L16 if off < 51200 else 9, off % 51200), ("bo", n // 5))
    nr = 0
    for sl in range(3):
        k.wait(lg=("r", sl))
        weave(k, [], [bo_read(n) for n in range(nr, nr+5)]); nr += 5
        for ct in range(5):
            for h in range(2): k("v_pk_add_f32 %s, %s, %s" % (vr(AO+ct*4+2*h,2), vr(AO+ct*4+2*h,2), vr(A0+(sl*5+ct)*4+2*h,2)))
    poll_check(k, S_CNT, 16, "o_ok")
    stamp(k, 14)
    def of(ks): return 32 + 4*ks if ks < 8 else 144 + 4*(ks-8)
    k("s_lshl_b32 s80, s%d, 10" % S_W)
    fa = Feed(k, [("s_add_u32 s80, s80, 4096" if ks else None, "buffer_load_dwordx4 %s, v%d, s[%d:%d], s80 offen%s" % (vr(of(ks),4), V_L16, SRD_X, SRD_X+3, SC), ("Ao", ks)) for ks in range(20)])
    fa.emit(10)
    for j in range(10): k("v_pk_mul_f32 %s, %s, v[10:11] op_sel_hi:[1,0]" % (vr(AO+2*j,2), vr(AO+2*j,2)))
    while nr < 55:
        weave(k, [], [bo_read(n) for n in range(nr, nr+5)]); nr += 5
        fa.emit(1)
    for ks in range(20):
        k.wait(vm=("Ao", ks), lg=("bo", ks))
        mf = ["v_mfma_f32_16x16x32_bf16 %s, %s, %s, %s" % (vr(AO+ct*4,4), R(256 + ((ks*5+ct) % 60)*4, 4), vr(of(ks),4), vr(AO+ct*4,4)) for ct in range(5)]
        fill = [bo_read(n) for n in range(nr, min(100, nr+5))]; nr += len(fill)
        weave(k, mf, fill, per=1)
        fa.emit(1)
    for ct in range(5):
        a = AO + ct*4
        k("v_cvt_pk_bf16_f32 v%d, v%d, v%d" % (64+2*ct, a, a+1)); k("v_cvt_pk_bf16_f32 v%d, v%d, v%d" % (65+2*ct, a+2, a+3))
        k.vm("buffer_store_dwordx2 %s, v16, s[%d:%d], s81 offen offset:%d" % (vr(64+2*ct,2), SRD_O, SRD_O+3, ct*32), "st")
    stamp(k, 30)
    stamp_out(k)

def kernel(k):
    kernel_header(k, NAME)
    if cfg.EARLY0: k("s_memrealtime s[98:99]")
    k("s_load_dwordx16 s[8:23], s[0:1], 0")
    k("s_load_dwordx8 s[24:31], s[0:1], 64")
    k("s_cmp_ge_u32 s2, 256")
    k("s_cbranch_scc1 L_end")
    code_prefetch(k, V_JUNK)
    k("v_lshrrev_b32 v2, 6, v0")
    k("v_and_b32 v0, 63, v0")
    k("v_readfirstlane_b32 s%d, v2" % S_W)
    if cfg.STAMP: k("v_mov_b32 v1, 0")
    stamp(k, 0)
    if cfg.EARLY0: k("v_writelane_b32 v1, s98, 0")
    k("s_bfe_u32 s%d, s2, 0x40003" % S_MT)
    k("s_and_b32 s%d, s2, 7" % S_T0)
    k("s_lshl_b32 s%d, s%d, 3" % (S_T0, S_T0))
    k("s_bfe_u32 s%d, s2, 0x10007" % S_T1)
    k("s_lshl_b32 s%d, s%d, 2" % (S_T1, S_T1))
    k("s_add_u32 s%d, s%d, s%d" % (S_T0, S_T0, S_T1))
    tab = cfg.ORDER
    k("s_mov_b32 s74, 0x%x" % sum(tab[i] << (4*i) for i in range(8))); k("s_mov_b32 s75, 0x%x" % sum(tab[8+i] << (4*i) for i in range(8)))
    k("s_lshr_b64 s[74:75], s[74:75], s%d" % S_T0)
    k("s_and_b32 s%d, s74, 15" % S_TY)
    k("s_and_b32 s%d, s%d, 1" % (S_RH, S_W))
    k("s_lshr_b32 s%d, s%d, 1" % (S_C, S_W))
    k("v_lshlrev_b32 v%d, 4, v0" % V_L16)
    k("s_cmp_ge_u32 s%d, 15" % S_TY); k("s_cbranch_scc1 L_aux")
    k("s_cmp_ge_u32 s%d, 13" % S_TY)
    k("s_cselect_b32 s%d, 13, 9" % S_T0)
    k("s_cselect_b32 s75, 0, 1280")
    k("s_cselect_b32 s76, 0, 640")
    k("s_add_u32 s76, s76, 640")
    k("s_sub_u32 s79, s%d, s%d" % (S_TY, S_T0))
    k("s_mul_i32 s%d, s79, 320" % S_T1)
    k("s_and_b32 s%d, s%d, 127" % (S_DELTA, S_T1))
    k("s_sub_u32 s%d, s%d, s%d" % (S_T1, S_T1, S_DELTA))
    k("s_add_u32 s75, s75, s%d" % S_T1)
    k("s_add_u32 s76, s76, s75")
    k("s_mul_i32 s%d, s%d, 384" % (S_T1, S_TY))
    k("s_mov_b32 s%d, 3840" % S_STRIDE)
    k("s_cmp_lt_u32 s%d, 9" % S_TY)
    k("s_cselect_b32 s75, s%d, s75" % S_T1)
    k("s_cselect_b32 s76, s%d, s76" % S_T1)
    k("s_cselect_b32 s%d, 3456, s%d" % (S_STRIDE, S_STRIDE))
    k("s_mul_i32 s%d, s%d, 640" % (S_T1, S_STRIDE))
    k("s_sub_u32 s77, s%d, s75" % S_T1)
    k("s_sub_u32 s78, s%d, s76" % S_T1)
    gemm_setup(k)
    k("s_mul_i32 s%d, s%d, %d" % (S_T0, S_MT, 128*1280))
    k("s_waitcnt lgkmcnt(0)")
    k("s_cmp_lt_u32 s%d, 9" % S_TY)
    k("s_cselect_b64 s[16:17], s[%d:%d], s[%d:%d]" % (P_WG, P_WG+1, P_WQKV, P_WQKV+1))
    k("s_cselect_b64 s[%d:%d], s[%d:%d], s[%d:%d]" % (P_WU, P_WU+1, P_WU, P_WU+1, P_WQKV, P_WQKV+1))
    srd(k, SRD_X, P_X, 0, 128*1280, S_T0)
    stamp(k, 1)
    Q = dma_queue()
    issue_now(k, Q, 4)
    srd(k, SRD_W0, 16, 0, "s77", 75)
    srd(k, SRD_W1, P_WU, 0, "s78", 76)
    issue_now(k, Q, 6)
    touch_setup(k)
    for it in touch_items(-1):
        if it[0]: k(it[0])
        k.vm(it[1], it[2])
    sv0 = list(k.vmq)
    k("s_cmp_ge_u32 s%d, 9" % S_TY); k("s_cbranch_scc1 L_att")
    ffn_role(k, Q)
    k("s_branch L_tail")
    k.label("L_att")
    k("s_lshl_b32 s79, s79, 1")
    k("s_add_u32 s79, s79, s%d" % S_C)
    k("s_mul_i32 s80, s79, 3200")
    k("s_add_u32 s81, s80, 12800")
    k("s_mov_b32 s82, 0x100000")
    srd(k, SRD_P, P_WPHI, 0, 25600)
    k("s_cmp_ge_u32 s%d, 13" % S_TY); k("s_cbranch_scc1 L_q")
    k.flush_counters(); k.vmq = list(sv0)
    kv_role(k, Q)
    k("s_branch L_tail")
    k.label("L_q")
    k.flush_counters(); k.vmq = list(sv0)
    q_role(k, Q)
    k("s_branch L_tail")
    k.flush_counters()
    k.label("L_aux")
    aux_role(k)
    k.label("L_tail")
    tail(k)
    k.label("L_end")
    k("s_endpgm")

def build(fn, listform=True):
    k = K()
    k.raw(open("header.txt").read().rstrip())
    if listform: k.raw("; @launch kernel=%s grid=(256,1,1) block=(256,1,1) lds=163840" % NAME)
    else: k.raw("; @launch grid=(256,1,1) block=(256,1,1) lds=163840")
    k.raw('.amdgcn_target "amdgcn-amd-amdhsa--gfx950"')
    k.raw(".text")
    kernel(k)
    k.raw('.section .rodata,"a"')
    k.raw(kernel_desc(NAME, 512, 256))
    open(fn, "w").write(k.text())

if __name__ == "__main__":
    for a in sys.argv[2:]:
        if "=" in a:
            n, v = a.split("="); setattr(cfg, n, eval(v))
    build(sys.argv[1], listform="single" not in sys.argv)
```

```python
import sys
from fw import *

A2_OFF = 0;          A2_SZ = 32*74*4096
B2_OFF = 0xA00000;   B2_SZ = 8*74*5120
PQ_OFF = 0xD00000;   PQ_SZ = 32*2048*40
KVP_OFF = 0x1000000; KVPS = 3584; KVP_SZ = 16*16*KVPS
G_OFF = 0x1200000;   G_SZ = 8192
CNT_OFF = 0x1300000
ST_OFF = 0x1400000
LOG2E = 1.4426950408889634
NAME = "gated_mix__linear_kernel_hedgehog__swiglu_ffn__prompt_kernel"

class Cfg:
    STAMP = 0; STG = 0
    MAXD = 11; N2 = 6; N3 = 10
    P2M = 4
    TW = [(-1,1,5),(0,6,6),(3,12,8)]
    TX = [(-1,1,2),(0,3,3),(3,6,4)]
    ORDER = [0, 9, 1, 10, 2, 11, 3, 12, 4, 13, 5, 14, 6, 7, 8, 15]
    PS1 = 16
    NBF = 40
    NBA = 32
    AUXT = 6
    AUXD = 3
    FFE = (4, 10)
    MK = 30
    KLAT = 50
    PER = 2
    DBGWG = -1
    PADST = None
    PADMIN = 0
    CPF = 1
    TNT = 0
    NODMA = 0
    CYC = 0
    PADTY = None
    EARLY0 = 0
    KL2 = 40
    OSD = 50
cfg = Cfg()
SC = " sc1"

P_X, P_WQKV, P_WPHI, P_WO, P_WG, P_WU, P_WD, P_GW, P_OUT, P_DBG, P_WS = 8, 10, 12, 14, 18, 20, 22, 24, 26, 28, 30
S_W, S_RH, S_C, S_MT, S_TY, S_M64, S_NT, S_OH = 32, 33, 34, 35, 36, 37, 38, 39
SRD_X, SRD_W0, SRD_W1, SRD_O, SRD_P = 40, 44, 48, 52, 56
S_STRIDE, S_WOFF, S_WL, S_XL, S_T0, S_T1, S_T2, S_T3, S_DELTA, S_SIG = 60, 61, 62, 63, 64, 65, 66, 67, 68, 69
S_C2 = 70
S_OMT = 83; SRD_B = 84; S_BOFF = 88; S_BB = 89; S_CNT = 90; SRD_T = 96
V_L16, V_L16B, V_PT = 2, 3, 4
V_WD = 5; V_XD = 6; V_XR = 10; V_TA = 12; V_TW = 24; V_TX = 25; V_JUNK = 63
ACC0 = 64
WF0 = 256; XF0 = 256 + 96; GF0 = 256 + 88; GACC = 224
C_H, C_K, C_Q, C_O = 0, 16, 20, 36
SPARE = 147456
D_S1, D_S2, D_S3 = 0, 64, 128

def srd(k, d, b, off, nbytes, soff=None):
    if off or soff is not None:
        if soff is not None:
            k("s_add_u32 s%d, s%d, s%d" % (d, b, soff)); k("s_addc_u32 s%d, s%d, 0" % (d+1, b+1))
            if off:
                k("s_add_u32 s%d, s%d, 0x%x" % (d, d, off)); k("s_addc_u32 s%d, s%d, 0" % (d+1, d+1))
        else:
            k("s_add_u32 s%d, s%d, 0x%x" % (d, b, off)); k("s_addc_u32 s%d, s%d, 0" % (d+1, b+1))
        k("s_and_b32 s%d, s%d, 0xffff" % (d+1, d+1))
    else:
        k("s_mov_b32 s%d, s%d" % (d, b)); k("s_and_b32 s%d, s%d, 0xffff" % (d+1, b+1))
    if isinstance(nbytes, int): k("s_mov_b32 s%d, 0x%x" % (d+2, nbytes))
    else: k("s_mov_b32 s%d, %s" % (d+2, nbytes))
    k("s_mov_b32 s%d, 0x20000" % (d+3))

def stamp(k, i):
    if not cfg.STAMP: return
    k("s_memrealtime s[92:93]")
    k("s_waitcnt lgkmcnt(0)")
    k.lgq = []
    k("v_writelane_b32 v1, s92, %d" % i)
def stamp_out(k):
    if not cfg.STAMP: return
    k("s_waitcnt vmcnt(0)")
    stamp(k, 15)
    k("v_writelane_b32 v1, s%d, 16" % S_TY)
    srd(k, 40, P_WS, ST_OFF, 1024*128)
    k("s_lshl_b32 s92, s2, 2"); k("s_add_u32 s92, s92, s%d" % S_W); k("s_lshl_b32 s92, s92, 7")
    k("v_lshlrev_b32 v5, 2, v0")
    k("v_cmp_gt_u32 vcc, 32, v0")
    k("v_mov_b32 v6, 0x7fffffff")
    k("v_cndmask_b32 v5, v6, v5, vcc")
    k("buffer_store_dword v1, v5, s[40:43], s92 offen")
    if cfg.PADST is not None:
        k("v_readlane_b32 s94, v1, %d" % abs(cfg.PADST))
        k("v_readlane_b32 s95, v1, 0")
        k("s_max_u32 s94, s94, s95")
        if cfg.CYC:
            a, b = ((31, 25) if cfg.CYC == 1 else (24, 23))
            k("v_readlane_b32 s96, v1, %d" % a); k("v_readlane_b32 s97, v1, %d" % b)
            k("s_sub_u32 s96, s96, s97")
            if cfg.CYC == 1: k("s_lshr_b32 s96, s96, 2")
            else: k("s_lshl_b32 s96, s96, 2")
            k("s_add_u32 s94, s95, s96")
        if cfg.PADTY:
            k("s_cmp_lt_u32 s%d, %d" % (S_TY, cfg.PADTY[0])); k("s_cselect_b32 s94, s95, s94")
            k("s_cmp_gt_u32 s%d, %d" % (S_TY, cfg.PADTY[1])); k("s_cselect_b32 s94, s95, s94")
        if cfg.PADMIN:
            k("s_not_b32 s95, s94")
            k("v_mov_b32 v7, s95"); k("v_mov_b32 v8, 192")
            k("s_cmp_eq_u32 s%d, 0" % S_W)
            k("s_cselect_b64 exec, 1, 0")
            k("s_cbranch_execz Lnoat")
            k("global_atomic_umax v8, v7, s[%d:%d] sc1" % (P_DBG, P_DBG+1))
            k.label("Lnoat")
            k("s_mov_b64 exec, -1")
            k("s_add_u32 s94, s94, 4500")
            k.label("Lpad0")
            k("s_sleep 4")
            k("s_memrealtime s[96:97]")
            k("s_waitcnt lgkmcnt(0)")
            k("s_sub_u32 s98, s96, s94")
            k("s_cmp_lt_i32 s98, 0")
            k("s_cbranch_scc1 Lpad0")
            k("global_load_dword v7, v8, s[%d:%d] sc1" % (P_DBG, P_DBG+1))
            k("s_waitcnt vmcnt(0)")
            k("v_readfirstlane_b32 s94, v7")
            k("s_not_b32 s94, s94")
        k("s_add_u32 s94, s94, 6000")
        k.label("Lpad")
        k("s_sleep 4")
        k("s_memrealtime s[96:97]")
        k("s_waitcnt lgkmcnt(0)")
        k("s_sub_u32 s98, s96, s94")
        k("s_cmp_lt_i32 s98, 0")
        k("s_cbranch_scc1 Lpad")
    if cfg.DBGWG >= 0:
        k("s_cmp_eq_u32 s92, %d" % (cfg.DBGWG*512))
        k("s_cselect_b32 s93, 64, 0")
        srd(k, 44, P_DBG, 0, "s93")
        k("v_readlane_b32 s93, v1, 0")
        k("v_subrev_u32 v7, s93, v1")
        k("v_cmp_lt_u32 vcc, 0, v0")
        k("v_cndmask_b32 v5, v6, v5, vcc")
        k("buffer_store_dword v7, v5, s[44:47], 0 offen")

def code_prefetch(k, vt):
    k("s_getpc_b64 s[72:73]")
    l = k.newlabel("Lpc"); k.label(l)
    k("s_lshr_b32 s74, s2, 3")
    k("s_lshl_b32 s74, s74, 7")
    k("v_and_b32 v%d, 31, v0" % vt)
    k("v_lshlrev_b32 v%d, 12, v%d" % (vt, vt))
    k("v_add_u32 v%d, s74, v%d" % (vt, vt))
    k("v_min_u32 v%d, L_end-%s-4, v%d" % (vt, l, vt))
    k.vm("global_load_dword v%d, v%d, s[72:73]" % (vt, vt), "pf")

def poll_issue(k, base, off, tag):
    k("v_mov_b32 v%d, %s" % (V_PT, off))
    k.vm("global_load_dword v31, v%d, s[%d:%d] sc1" % (V_PT, base, base+1), tag)
def poll_check(k, base, target, tag, sleep=4):
    l = k.newlabel("Lpoll"); d = k.newlabel("Lpd")
    k.wait(vm=tag)
    k("v_readfirstlane_b32 s94, v31")
    k("s_mov_b32 s95, 0x8000")
    k("s_cmp_ge_u32 s94, %d" % target)
    k("s_cbranch_scc1 %s" % d)
    k.label(l)
    k("s_sleep %d" % sleep)
    k("global_load_dword v31, v%d, s[%d:%d] sc1" % (V_PT, base, base+1))
    k("s_waitcnt vmcnt(0)")
    k("v_readfirstlane_b32 s94, v31")
    k("s_sub_u32 s95, s95, 1")
    k("s_cmp_ge_u32 s94, %d" % target)
    k("s_cbranch_scc1 %s" % d)
    k("s_cmp_lg_u32 s95, 0")
    k("s_cbranch_scc1 %s" % l)
    k.label(d)
def signal(k, base, off):
    d = k.newlabel("Lsg")
    k("s_barrier")
    k("s_cmp_lg_u32 s%d, 0" % S_W)
    k("s_cbranch_scc1 %s" % d)
    k("v_mov_b32 v%d, %s" % (V_PT, off))
    k("v_mov_b32 v31, 1")
    k("s_mov_b64 exec, 1")
    k("global_atomic_add v%d, v31, s[%d:%d] sc1" % (V_PT, base, base+1))
    k("s_mov_b64 exec, -1")
    k.label(d)

def bloc(n):
    if n < 32: return 256 + 128 + 4*n
    if n < 40: return 32 + 4*(n-32)
    return 256 + 4*(n-40)
def b_items(frs):
    out = []; cur = None
    for n in frs:
        st, ct = divmod(n, 5)
        pre = None
        if st != cur: pre = "s_add_u32 s%d, s%d, %d" % (S_BOFF, S_BB, (20 + 4*st)*5120); cur = st
        if ct < 4: t = "buffer_load_dwordx4 %s, v%d, s[%d:%d], s%d offen offset:%d%s" % (R(bloc(n),4), V_L16, SRD_B, SRD_B+3, S_BOFF, ct*1024, SC)
        else: t = "buffer_load_dwordx4 %s, v%d, s[%d:%d], s%d offen%s" % (R(bloc(n),4), V_L16B, SRD_B, SRD_B+3, S_BOFF, SC)
        out.append((pre, t, "B"))
    return out
def bo_items():
    out = []
    for i in range(5):
        for ct in range(5):
            pre = "s_add_u32 m0, s%d, %d" % (S_BB, i*20480 + (4096 if ct == 4 else 0))
            if ct == 0: pre = "s_add_u32 s100, s%d, %d\n" % (S_BB, i*20480) + pre
            if ct < 4: t = "buffer_load_dwordx4 v%d, s[%d:%d], s100 offen offset:%d%s lds" % (V_L16, SRD_B, SRD_B+3, ct*1024, SC)
            else: t = "buffer_load_dwordx4 v%d, s[%d:%d], s100 offen%s lds" % (V_L16B, SRD_B, SRD_B+3, SC)
            out.append((pre, t, "BO"))
    return out
class Feed:
    def __init__(self, k, items): self.k = k; self.q = list(items)
    def emit(self, n=1):
        while self.q and n > 0:
            pre, t, tag = self.q.pop(0)
            if pre: self.k(pre)
            self.k.vm(t, tag); n -= 1
    def drain(self): self.emit(10**6)
def emit1(k, f):
    if callable(f): f()
    elif isinstance(f, tuple): (k.lg if f[0] == "lg" else k.vm)(f[1], f[2])
    else: k(f)
def weave(k, mf, fill, per=2):
    fill = list(fill)
    for m in mf:
        k(m)
        for _ in range(per):
            if fill: emit1(k, fill.pop(0))
    for f in fill: emit1(k, f)

WSLOT = 24576; RW = 4; XBASE = RW*WSLOT; XSLOT = 16384; RX = 3

def gemm_setup(k):
    k("v_lshrrev_b32 v28, 3, v0")
    k("v_and_b32 v29, 7, v0")
    k("v_bfe_u32 v26, v28, 1, 1")
    k("s_lshl_b32 s%d, s%d, 1" % (S_T0, S_RH))
    k("v_or_b32 v26, s%d, v26" % S_T0)
    k("v_lshlrev_b32 v26, 1, v26")
    k("v_xor_b32 v26, v26, v29")
    k("s_lshl_b32 s%d, s%d, 3" % (S_T0, S_W))
    k("v_add_u32 v27, s%d, v28" % S_T0)
    k("v_mul_lo_u32 v27, v27, s%d" % S_STRIDE)
    k("v_lshl_add_u32 v%d, v26, 4, v27" % V_WD)
    k("s_lshl_b32 s%d, s%d, 5" % (S_T0, S_W))
    k("v_lshrrev_b32 v26, 1, v28")
    k("v_xor_b32 v27, v26, v29")
    k("v_add_u32 v26, s%d, v28" % S_T0)
    k("v_mul_u32_u24 v26, 1280, v26")
    k("v_lshl_add_u32 v%d, v27, 4, v26" % V_XD)
    k("v_xor_b32 v%d, 64, v%d" % (V_XD+1, V_XD))
    k("v_add_u32 v%d, %d, v%d" % (V_XD+1, 8*1280, V_XD+1))
    k("v_add_u32 v%d, %d, v%d" % (V_XD+2, 16*1280, V_XD))
    k("v_add_u32 v%d, %d, v%d" % (V_XD+3, 16*1280, V_XD+1))
    k("s_mul_i32 s%d, s%d, 6144" % (S_WL, S_W))
    k("s_lshl_b32 s%d, s%d, 12" % (S_XL, S_W))
    k("s_add_u32 s%d, s%d, %d" % (S_XL, S_XL, XBASE))
    k("s_mov_b32 s%d, 0" % S_WOFF)
    k("s_lshl_b32 s%d, s%d, 5" % (S_T3, S_STRIDE))

def touch_setup(k):
    k("v_lshrrev_b32 v26, 2, v0")
    k("v_and_b32 v27, 3, v0")
    k("s_lshl_b32 s%d, s%d, 1" % (S_T0, S_MT))
    k("s_add_u32 s%d, s%d, s%d" % (S_T0, S_T0, S_C))
    k("v_lshlrev_b32 v28, 5, v26")
    k("v_add_u32 v28, s%d, v28" % S_T0)
    k("v_mul_lo_u32 v28, v28, s%d" % S_STRIDE)
    k("v_min_u32 v29, 2, v27")
    k("v_lshl_add_u32 v%d, v29, 7, v28" % V_TW)
    k("s_lshl_b32 s%d, s%d, 4" % (S_T0, S_TY))
    k("s_lshl_b32 s%d, s%d, 2" % (S_T1, S_W))
    k("s_add_u32 s%d, s%d, s%d" % (S_T0, S_T0, S_T1))
    k("v_add_u32 v27, s%d, v27" % S_T0)
    k("v_mul_u32_u24 v27, 1280, v27")
    k("v_lshl_add_u32 v%d, v26, 7, v27" % V_TX)
    k("s_cmp_eq_u32 s%d, 0" % S_RH)
    for i in range(3): k("s_cselect_b32 s%d, s%d, s%d" % (SRD_T+i, SRD_W0+i, SRD_W1+i))
    k("s_mov_b32 s%d, 0x20000" % (SRD_T+3))
def masked(n, t):
    if n >= 16: return t
    return "s_bfm_b64 exec, %d, 0\n%s\ns_mov_b64 exec, -1" % (4*n, t)
def touch_items(stage):
    out = []
    for (st, first, n) in cfg.TW:
        if st == stage:
            out.append(("s_mul_i32 s101, s%d, %d" % (S_STRIDE, 32*first), masked(n, "buffer_load_dword v%d, v%d, s[%d:%d], s101 offen%s" % (V_JUNK, V_TW, SRD_T, SRD_T+3, " nt" if cfg.TNT else "")), "pf"))
    for (st, first, n) in cfg.TX:
        if st == stage:
            out.append((None, masked(n, "buffer_load_dword v%d, v%d, s[%d:%d], 0 offen offset:%d" % (V_JUNK, V_TX, SRD_X, SRD_X+3, first*128)), "pf"))
    return out

def gemm_setup2(k, att):
    npt = 5 if att else 6
    k("v_and_b32 v54, 15, v0")
    k("v_lshrrev_b32 v55, 4, v0")
    k("v_bfe_u32 v26, v54, 1, 3")
    k("v_xor_b32 v26, v26, v55")
    k("s_lshl_b32 s%d, s%d, 13" % (S_T0, S_RH))
    k("s_add_u32 s%d, s%d, %d" % (S_T0, S_T0, XBASE))
    k("v_lshlrev_b32 v27, 7, v54")
    k("v_add_u32 v27, s%d, v27" % S_T0)
    k("v_lshl_add_u32 v%d, v26, 4, v27" % V_XR)
    k("v_xor_b32 v%d, 64, v%d" % (V_XR+1, V_XR))
    k("v_bfe_u32 v26, v0, 2, 2")
    k("v_and_b32 v27, 3, v0")
    k("v_lshrrev_b32 v28, 1, v26")
    k("v_and_b32 v29, 1, v55")
    k("v_lshl_or_b32 v28, v29, 1, v28")
    k("v_lshlrev_b32 v28, 5, v28")
    k("v_mul_u32_u24 v29, 6144, v55")
    k("v_lshl_add_u32 v29, v26, 7, v29")
    if att:
        k("s_mul_i32 s%d, s%d, 160" % (S_T0, S_C))
        k("s_add_u32 s%d, s%d, s%d" % (S_T0, S_T0, S_DELTA))
        k("v_mul_u32_u24 v27, 40, v27")
    else:
        k("s_mul_i32 s%d, s%d, 192" % (S_T0, S_C))
        k("v_lshlrev_b32 v27, 3, v27")
    k("v_add_u32 v27, s%d, v27" % S_T0)
    for p in range(npt):
        k("v_add_u32 v30, %d, v27" % (p * (8 if att else 32)))
        k("v_lshrrev_b32 v31, 7, v30")
        k("v_and_b32 v30, 127, v30")
        k("v_xor_b32 v30, v30, v28")
        k("v_lshl_add_u32 v31, v31, 10, v29")
        k("v_add_u32 v%d, v30, v31" % (V_TA+p))
        k("v_add_u32 v%d, %d, v%d" % (V_TA+6+p, 2*WSLOT, V_TA+p))

def w_dma(s):
    return [("s_add_u32 m0, s%d, %d" % (S_WL, (s % RW)*WSLOT + (seg*3+lc)*1024 - lc*128),
             "buffer_load_dwordx4 v%d, s[%d:%d], s%d offen offset:%d lds" % (V_WD, SRD_W0+4*seg, SRD_W0+4*seg+3, S_WOFF, lc*128), ("W", s))
            for seg in range(2) for lc in range(3)]
def x_dma(u, i):
    return ("s_add_u32 m0, s%d, %d" % (S_XL, (u % RX)*XSLOT + i*1024 - u*128),
            "buffer_load_dwordx4 v%d, s[%d:%d], 0 offen offset:%d lds" % (V_XD+i, SRD_X, SRD_X+3, u*128), ("X", u))
def reads_for(s, npt):
    out = []; b = s & 1
    for rt in range(4):
        out.append("ds_read_b128 %s, v%d offset:%d" % (R(XF0 + (b*4+rt)*4, 4), V_XR + (s & 1), ((s >> 1) % RX)*XSLOT + rt*2048))
    slot = s % RW
    for p in range(npt):
        for seg in range(2):
            for h in range(2):
                out.append("ds_read_b64_tr_b16 %s, v%d offset:%d" % (R(WF0 + (b*12+p*2+seg)*4 + 2*h, 2), V_TA + p + (6 if slot >= 2 else 0), (slot & 1)*WSLOT + seg*3072 + h*512))
    return out
def acc(p, seg, rt): return ACC0 + ((p*2+seg)*4 + rt)*4

def late_setup_items():
    k = K()
    k("s_and_b32 s%d, s2, 7" % S_T1)
    k("s_lshr_b32 s%d, s2, 3" % S_OH)
    if cfg.P2M == 4:
        k("s_lshl_b32 s%d, s%d, 2" % (S_M64, S_T1)); k("s_and_b32 s%d, s%d, 3" % (S_T0, S_OH)); k("s_add_u32 s%d, s%d, s%d" % (S_M64, S_M64, S_T0))
        k("s_lshr_b32 s%d, s%d, 2" % (S_NT, S_OH))
    else:
        k("s_lshr_b32 s%d, s%d, 1" % (S_M64, S_T1)); k("s_lshl_b32 s%d, s%d, 3" % (S_M64, S_M64)); k("s_and_b32 s%d, s%d, 7" % (S_T0, S_OH)); k("s_add_u32 s%d, s%d, s%d" % (S_M64, S_M64, S_T0))
        k("s_and_b32 s%d, s%d, 1" % (S_NT, S_T1)); k("s_lshl_b32 s%d, s%d, 2" % (S_NT, S_NT)); k("s_lshr_b32 s%d, s%d, 3" % (S_T0, S_OH)); k("s_add_u32 s%d, s%d, s%d" % (S_NT, S_NT, S_T0))
    k("s_lshr_b32 s%d, s%d, 1" % (S_OMT, S_OH))
    k("s_and_b32 s%d, s%d, 1" % (S_OH, S_OH)); k("s_lshl_b32 s%d, s%d, 1" % (S_T0, S_T1)); k("s_add_u32 s%d, s%d, s%d" % (S_OH, S_OH, S_T0))
    k("s_mul_i32 s%d, s%d, %d" % (S_T0, S_NT, 74*5120))
    srd(k, SRD_B, P_WS, B2_OFF, 74*5120, S_T0)
    k("s_mul_i32 s%d, s%d, 5120" % (S_BB, S_W))
    k("s_add_u32 s%d, s%d, 0x%x" % (S_CNT, P_WS, CNT_OFF))
    k("s_addc_u32 s%d, s%d, 0" % (S_CNT+1, P_WS+1))
    k("v_add_u32 v%d, 4096, v%d" % (V_L16B, V_L16))
    k("s_mov_b32 s%d, %s" % (S_C2, f32(LOG2E))); k("s_mov_b32 s%d, %s" % (S_C2+1, f32(LOG2E)))
    return [t for _, t in k.items]

def dma_queue():
    Q = []
    for st in range(20):
        if st % 2 == 0:
            u = st // 2
            for i in range(4): Q.append((-1 if u < RX else 2*(u-RX)+1, x_dma(u, i), False))
        it = w_dma(st)
        for i, d in enumerate(it): Q.append((-1 if st < RW else st-RW, d, i == len(it)-1))
    return Q
def wadv(k): k("s_add_u32 s%d, s%d, s%d" % (S_WOFF, S_WOFF, S_T3))
def issue_now(k, Q, n):
    for _ in range(n):
        av, it, last = Q.pop(0)
        k(it[0]); k.vm(it[1], it[2])
        if last: wadv(k)

def spread(items, s0, s1):
    out = {}; n = len(items); i = 0
    for s in range(s0, s1):
        c = -(-(n - i) // (s1 - s)); out[s] = items[i:i+c]; i += c
    return out

def gemm_main(k, att, gate, Q, extra, polls, xrd=None, xwait=None, xsetup=None):
    npt = 5 if att else 6
    Q = list(Q)
    if gate:
        for i in range(2):
            k("s_add_u32 m0, s%d, %d" % (S_XL, SPARE - XBASE))
            k.vm("buffer_load_dwordx4 v%d, s[%d:%d], 0 offen offset:%d lds" % (V_L16, SRD_O, SRD_O+3, i*1024), ("W", 0))
    issue_now(k, Q, cfg.N2)
    gemm_setup2(k, att)
    if gate:
        k("s_add_u32 s%d, s%d, %d" % (S_T0, S_XL, SPARE - XBASE))
        k("v_lshrrev_b32 v17, 4, v0")
        k("v_lshlrev_b32 v17, 4, v17")
        k("v_add_u32 v17, s%d, v17" % S_T0)
    for t in late_setup_items(): k(t)
    if xsetup: xsetup(k)
    def rds(s):
        r = reads_for(s, npt)
        if gate: r.append("ds_read_b128 %s, v17 offset:%d" % (R(GF0 + (s & 1)*4, 4), s*64))
        return r
    stamp(k, 2)
    k.wait(vm=[("X", 0), ("W", 0)])
    k("s_barrier")
    stamp(k, 3)
    for r in rds(0): k.lg(r)
    issue_now(k, Q, cfg.N3)
    k.wait(vm=[("W", 1)], lg="all")
    k("s_barrier")
    for s in range(20):
        b = s & 1
        rd = rds(s+1) if s < 19 else []
        if xrd and s in xrd: rd += xrd[s]
        dm = []
        while Q and Q[0][0] <= s and len(dm) < cfg.MAXD: dm.append(Q.pop(0))
        ex = [(0, e, False) for e in extra.get(s, []) + touch_items(s)]
        mix = []
        while dm or ex:
            if dm: mix.append(dm.pop(0))
            if ex and len(ex) >= len(dm): mix.append(ex.pop(0))
        dm = mix
        mf = []
        for p in range(npt):
            for seg in range(2):
                for rt in range(4):
                    a = acc(p, seg, rt)
                    mf.append("v_mfma_f32_16x16x32_bf16 %s, %s, %s, %s" % (R(a,4), R(WF0 + (b*12+p*2+seg)*4, 4), R(XF0 + (b*4+rt)*4, 4), R(a,4) if s else "0"))
        if gate:
            for rt in range(4):
                a = GACC + rt*4
                mf.append("v_mfma_f32_16x16x32_bf16 %s, %s, %s, %s" % (R(a,4), R(GF0 + b*4, 4), R(XF0 + (b*4+rt)*4, 4), R(a,4) if s else "0"))
        nm = len(mf); nd = len(dm)
        at = [int(i * (nm - 3) / max(nd, 1)) for i in range(nd)]
        for i in range(1, nd): at[i] = max(at[i], at[i-1] + 2)
        pend = None
        for m, t in enumerate(mf):
            k(t)
            if rd: k.lg(rd.pop(0))
            if (s+1) in polls and m == nm - 1: poll_issue(k, P_DBG, polls[s+1], ("poll", s+1))
            if pend is not None:
                k.vm(pend[1][1], pend[1][2])
                if pend[2]: wadv(k)
                pend = None
            elif dm and m >= at[nd - len(dm)]:
                pend = dm.pop(0)
                if pend[1][0]: k(pend[1][0])
        assert not rd and not dm and pend is None, (s, rd, dm, pend)
        if s < 19:
            k.wait(vm=[("W", s+2), ("X", (s+2) >> 1)] + (xwait.get(s, []) if xwait else []), lg="all")
        if s in polls: poll_check(k, P_DBG, 16, ("poll", s), sleep=8)
        if s < 19:
            k("s_barrier")
            if cfg.STG and s % 2 == 1: stamp(k, 17 + s//2)
            if cfg.CYC and s in (5, 13):
                stamp(k, 23 if s == 5 else 24)
                k("s_memtime s[92:93]"); k("s_waitcnt lgkmcnt(0)"); k("v_writelane_b32 v1, s92, %d" % (25 if s == 5 else 31))
    assert not Q
    stamp(k, 4)

def ffn_setup(k):
    k("s_lshl_b32 s75, s%d, 1" % S_MT)
    k("s_add_u32 s75, s75, s%d" % S_RH)
    k("s_mul_i32 s75, s75, 74")
    k("s_mul_i32 s76, s%d, 6" % S_TY)
    k("s_add_u32 s75, s75, s76")
    k("s_mul_i32 s76, s%d, 3" % S_C)
    k("s_add_u32 s75, s75, s76")
    k("s_add_u32 s75, s75, 20")
    k("s_lshl_b32 s75, s75, 12")
    k("s_lshl_b32 s%d, s%d, 7" % (S_SIG, S_MT))
    srd(k, SRD_O, P_WS, A2_OFF, A2_SZ)

def ffn_role(k, Q):
    extra = spread(b_items(range(cfg.NBF)), cfg.PS1, 20)
    gemm_main(k, False, False, Q, extra, {cfg.PS1-1: D_S1, 19: D_S3}, xsetup=ffn_setup)
    fd = Feed(k, b_items(range(cfg.NBF, 70)) + bo_items())
    per, last = cfg.FFE
    n = 0
    for ks in range(3):
        for rt in range(4):
            T = 6 + (n & 1)*8; O = 22 + (n & 1)*4; n += 1
            if O & 3: O = (24, 28)[(n-1) & 1] - 0
            fe = lambda i: fd.emit(1) if (n <= last and i < per) else None
            G = [acc(2*ks+j, 0, rt) for j in range(2)]; U = [acc(2*ks+j, 1, rt) for j in range(2)]
            O = U[0]
            prs = [(j, h) for j in range(2) for h in range(2)]
            for i, (j, h) in enumerate(prs):
                k("v_pk_mul_f32 %s, %s, s[%d:%d] neg_lo:[0,1] neg_hi:[0,1]" % (vr(T+2*i,2), vr(G[j]+2*h,2), S_C2, S_C2+1))
            fe(0)
            for i in range(8): k("v_exp_f32 v%d, v%d" % (T+i, T+i))
            fe(2)
            for i, (j, h) in enumerate(prs):
                k("v_pk_mul_f32 %s, %s, %s" % (vr(G[j]+2*h,2), vr(G[j]+2*h,2), vr(U[j]+2*h,2)))
            for i in range(4): k("v_pk_add_f32 %s, %s, 1.0 op_sel_hi:[1,0]" % (vr(T+2*i,2), vr(T+2*i,2)))
            fe(1)
            for i in range(8): k("v_rcp_f32 v%d, v%d" % (T+i, T+i))
            fe(3)
            for i, (j, h) in enumerate(prs):
                k("v_pk_mul_f32 %s, %s, %s" % (vr(T+2*i,2), vr(G[j]+2*h,2), vr(T+2*i,2)))
            for i in range(4): k("v_cvt_pk_bf16_f32 v%d, v%d, v%d" % (O+i, T+2*i, T+2*i+1))
            k.vm("buffer_store_dwordx4 %s, v%d, s[%d:%d], s75 offen offset:%d%s" % (vr(O,4), V_L16, SRD_O, SRD_O+3, rt*1024, SC), "st")
        if ks < 2: k("s_add_u32 s75, s75, 4096")
    stamp(k, 26)
    k.wait(vm="st")
    stamp(k, 5)
    signal(k, S_CNT, "s%d" % S_SIG)
    fd.drain()

def phi_dma(seg, s_off):
    out = [("s_add_u32 m0, s%d, %d" % (S_WL, seg*WSLOT),
            "buffer_load_dwordx4 v%d, s[%d:%d], s%d offen offset:%d lds" % (V_L16, SRD_P, SRD_P+3, s_off, i*1024), ("P", seg)) for i in range(4)]
    out.append(("s_add_u32 m0, s%d, %d" % (S_WL, seg*WSLOT + 4096),
                "buffer_load_dwordx4 v%d, s[%d:%d], s82 offen lds" % (V_L16, SRD_P, SRD_P+3), ("P", seg)))
    return out
def phireg(seg, to, s):
    i = s*5 + to
    if seg == 1: return 256 + 48 + 4*i if i < 10 else 256 + 108 + 4*(i-10)
    return 256 + 4*i if i < 12 else 256 + 96 + 4*(i-12)
V_PHA = 23
def phi_reads(seg):
    out = []
    for s in range(3):
        for to in range(5):
            for h in range(2):
                d = phireg(seg, to, s) + 2*h
                if s == 2 and h == 1: out.append("ds_read_b64_tr_b16 %s, v26 offset:%d" % (R(d,2), seg*WSLOT))
                else: out.append("ds_read_b64_tr_b16 %s, v%d offset:%d" % (R(d,2), V_PHA, seg*WSLOT + (8*s+4*h)*40 + 8*to))
    return out
def cvt_in(seg, rt, B):
    out = []
    for t in range(5):
        a = acc(t, seg, rt)
        out.append("v_cvt_pk_bf16_f32 v%d, v%d, v%d" % (B+2*t, a, a+1))
        out.append("v_cvt_pk_bf16_f32 v%d, v%d, v%d" % (B+2*t+1, a+2, a+3))
    return out
def phi_mf(seg, rt, B):
    return ["v_mfma_f32_16x16x32_bf16 %s, %s, %s, %s" % (vr(acc(to,seg,rt),4), R(phireg(seg, to, s),4), vr(B+4*s,4), vr(acc(to,seg,rt),4) if s else "0")
            for s in range(3) for to in range(5)]

PKRS = 352; VRS = 224; PKSZ = 128*PKRS; VB = 2*PKSZ; VSZ = 128*VRS
V_E0, V_E1, V_E2, V_E3, V_E4, V_E5, V_E6 = 27, 28, 29, 30, 60, 61, 62
def att_common_setup(k):
    k("v_lshrrev_b32 v50, 4, v0")
    k("v_and_b32 v51, 15, v0")
    k("v_bfe_u32 v52, v0, 2, 2")
    k("v_and_b32 v53, 3, v0")
    k("v_mul_u32_u24 v48, 800, v50")
    k("v_mad_u32_u24 v48, v52, 40, v48")
    k("v_cmp_eq_u32 vcc, v50, v53")
    k("v_mov_b32 v49, 4096")
    k("v_cndmask_b32 v48, v49, v48, vcc")
    k("v_add_u32 v%d, s%d, v48" % (V_PHA, S_WL))
    k("v_add_u32 v26, s%d, v49" % S_WL)
    k("v_and_b32 v48, 31, v0"); k("v_lshlrev_b32 v48, 7, v48")
    k("v_lshrrev_b32 v49, 5, v0"); k("v_mul_u32_u24 v49, 12800, v49"); k("v_add_u32 v48, v48, v49")
    k.vm("buffer_load_dword v%d, v48, s[%d:%d], s80 offen" % (V_JUNK, SRD_P, SRD_P+3), "pf")
def kv_setup(k):
    att_common_setup(k)
    k("s_add_u32 s%d, s%d, %d" % (S_SIG, S_TY, C_K - 9))
    k("s_lshl_b32 s%d, s%d, 7" % (S_SIG, S_SIG))
    k("s_lshl_b32 s%d, s%d, 6" % (S_T0, S_RH))
    k("v_add_u32 v48, s%d, v51" % S_T0)
    k("s_mul_i32 s%d, s%d, %d" % (S_T0, S_C, PKSZ))
    k("v_mul_u32_u24 v%d, %d, v48" % (V_E0, PKRS))
    k("v_mul_u32_u24 v49, 80, v50")
    k("v_add3_u32 v%d, v%d, v49, s%d" % (V_E0, V_E0, S_T0))
    k("s_mul_i32 s%d, s%d, %d" % (S_T1, S_C, VSZ))
    k("s_add_u32 s%d, s%d, %d" % (S_T1, S_T1, VB))
    k("v_mul_u32_u24 v%d, %d, v48" % (V_E1, VRS))
    k("v_mul_u32_u24 v49, 48, v50")
    k("v_add3_u32 v%d, v%d, v49, s%d" % (V_E1, V_E1, S_T1))
    k("v_lshrrev_b32 v48, 2, v0")
    k("v_lshlrev_b32 v49, 3, v53")
    k("s_mul_i32 s%d, s%d, 160" % (S_T2, S_RH))
    k("s_add_u32 s%d, s%d, s%d" % (S_T0, S_T0, S_T2))
    k("v_mul_u32_u24 v%d, %d, v48" % (V_E2, PKRS))
    k("v_add3_u32 v%d, v%d, v49, s%d" % (V_E2, V_E2, S_T0))
    k("s_mul_i32 s%d, s%d, 96" % (S_T2, S_RH))
    k("s_add_u32 s%d, s%d, s%d" % (S_T1, S_T1, S_T2))
    k("v_mul_u32_u24 v%d, %d, v48" % (V_E3, VRS))
    k("v_add3_u32 v%d, v%d, v49, s%d" % (V_E3, V_E3, S_T1))
    k("s_add_u32 s%d, s%d, %d" % (S_T2, S_XL, SPARE - XBASE))
    k("v_mul_u32_u24 v48, 80, v51")
    k("v_lshl_add_u32 v48, v50, 3, v48")
    k("v_add_u32 v%d, s%d, v48" % (V_E5, S_T2))
    k("v_add_u32 v%d, s%d, v%d" % (V_E6, S_T2, V_L16))
    k("v_mov_b32 v48, 0x7fffffff")
    k("v_cmp_gt_u32 vcc, 32, v0")
    k("v_cndmask_b32 v%d, v48, v%d, vcc" % (V_E4, V_L16))
    k("s_lshl_b32 s78, s79, 1")
    k("s_add_u32 s78, s78, s%d" % S_RH)
    k("s_lshl_b32 s78, s78, 4")
    k("s_add_u32 s78, s78, s%d" % S_MT)
    k("s_mul_i32 s78, s78, %d" % KVPS)
    k("v_cmp_gt_u32 s[72:73], 2, v50")
    k("v_cmp_gt_u32 s[74:75], 5, v51")
    k("s_and_b64 s[76:77], s[72:73], s[74:75]")
    srd(k, SRD_O, P_WS, KVP_OFF, KVP_SZ)
    for r in (42, 43, 54, 55): k("v_mov_b32 v%d, 0" % r)
    for O in (232, 244):
        k("v_mov_b32 v%d, 0x3f80" % (O+10)); k("v_mov_b32 v%d, 0" % (O+11))
def q_setup(k):
    att_common_setup(k)
    k("s_mov_b32 s%d, 81920" % S_T0)
    k("v_mul_lo_u32 v48, v50, s%d" % S_T0)
    k("v_lshl_add_u32 v%d, v51, 4, v48" % V_E0)
    k("v_lshl_add_u32 v%d, v51, 3, v48" % V_E1)
    k("v_lshlrev_b32 v%d, 2, v0" % V_E2)
    k("s_mul_i32 s%d, s79, %d" % (S_T1, 4*81920))
    k("s_lshl_b32 s%d, s%d, 1" % (S_T0, S_MT))
    k("s_add_u32 s%d, s%d, s%d" % (S_T0, S_T0, S_RH))
    k("s_lshl_b32 s75, s%d, 10" % S_T0)
    k("s_add_u32 s75, s75, s%d" % S_T1)
    k("s_add_u32 s76, s75, 32768")
    k("s_lshl_b32 s77, s%d, 9" % S_T0)
    k("s_add_u32 s77, s77, s%d" % S_T1)
    k("s_add_u32 s77, s77, 65536")
    k("s_lshl_b32 s78, s%d, 8" % S_T0)
    k("s_add_u32 s78, s78, %d" % (G_OFF - PQ_OFF))
    k("s_add_u32 s%d, s%d, %d" % (S_SIG, S_MT, C_Q))
    k("s_lshl_b32 s%d, s%d, 7" % (S_SIG, S_SIG))
    srd(k, SRD_O, P_WS, PQ_OFF, G_OFF + G_SZ - PQ_OFF)
    for r in (42, 43, 54, 55): k("v_mov_b32 v%d, 0" % r)

def softmax_pm(k, P, E, T, O, fd=None, mf=None, side=None):
    def fe(n=1):
        if fd: fd.emit(n)
    mf = list(mf or []); side = list(side or [])
    v = [p + i for p in P for i in range(2)]
    k("v_max3_f32 v%d, v%d, v%d, v%d" % (T, v[0], v[1], v[2]))
    k("v_min3_f32 v%d, v%d, v%d, v%d" % (T+2, v[0], v[1], v[2]))
    k("v_max3_f32 v%d, v%d, v%d, v%d" % (T+1, v[3], v[4], v[5]))
    k("v_min3_f32 v%d, v%d, v%d, v%d" % (T+3, v[3], v[4], v[5]))
    for n, i in enumerate(range(6, 20, 2)):
        c = n & 1
        k("v_max3_f32 v%d, v%d, v%d, v%d" % (T+c, T+c, v[i], v[i+1]))
        k("v_min3_f32 v%d, v%d, v%d, v%d" % (T+2+c, T+2+c, v[i], v[i+1]))
    fe()
    k("v_max_f32 v%d, v%d, v%d" % (T, T, T+1))
    k("v_min_f32 v%d, v%d, v%d" % (T+2, T+2, T+3))
    k("v_mul_f32 v%d, %s, v%d" % (T, f32(-LOG2E), T))
    k("v_mul_f32 v%d, %s, v%d" % (T+2, f32(LOG2E), T+2))
    for i, p in enumerate(P):
        k("v_pk_fma_f32 %s, %s, s[%d:%d], %s op_sel_hi:[1,1,0]" % (vr(E+2*i,2), vr(p,2), S_C2, S_C2+1, vr(T,2)))
    fe()
    for i, p in enumerate(P):
        k("v_pk_fma_f32 %s, %s, s[%d:%d], %s op_sel_hi:[1,1,0] neg_lo:[0,1,0] neg_hi:[0,1,0]" % (vr(p,2), vr(p,2), S_C2, S_C2+1, vr(T+2,2)))
    ex = [E+i for i in range(20)] + v
    for i, x in enumerate(ex):
        if i % 2 == 0:
            if mf: k(mf.pop(0))
            if side: k.lg(*side.pop(0))
        if i % 12 == 5: fe()
        k("v_exp_f32 v%d, v%d" % (x, x))
    assert not mf and not side
    Ep = [E+2*i for i in range(10)]
    k("v_pk_add_f32 %s, %s, %s" % (vr(T+4,2), vr(Ep[0],2), vr(Ep[1],2)))
    k("v_pk_add_f32 %s, %s, %s" % (vr(T,2), vr(Ep[2],2), vr(Ep[3],2)))
    k("v_pk_add_f32 %s, %s, %s" % (vr(T+6,2), vr(P[0],2), vr(P[1],2)))
    k("v_pk_add_f32 %s, %s, %s" % (vr(T+2,2), vr(P[2],2), vr(P[3],2)))
    for i in range(4, 10, 2):
        k("v_pk_add_f32 %s, %s, %s" % (vr(T+4,2), vr(T+4,2), vr(Ep[i],2)))
        k("v_pk_add_f32 %s, %s, %s" % (vr(T,2), vr(T,2), vr(Ep[i+1],2)))
        k("v_pk_add_f32 %s, %s, %s" % (vr(T+6,2), vr(T+6,2), vr(P[i],2)))
        k("v_pk_add_f32 %s, %s, %s" % (vr(T+2,2), vr(T+2,2), vr(P[i+1],2)))
    k("v_pk_add_f32 %s, %s, %s" % (vr(T+4,2), vr(T+4,2), vr(T,2)))
    k("v_pk_add_f32 %s, %s, %s" % (vr(T+6,2), vr(T+6,2), vr(T+2,2)))
    fe()
    k("v_add_f32 v%d, v%d, v%d" % (T+4, T+4, T+5))
    k("v_add_f32 v%d, v%d, v%d" % (T+6, T+6, T+7))
    k("v_rcp_f32 v%d, v%d" % (T+4, T+4))
    k("v_rcp_f32 v%d, v%d" % (T+6, T+6))
    for i in range(10): k("v_pk_mul_f32 %s, %s, %s op_sel_hi:[1,0]" % (vr(Ep[i],2), vr(Ep[i],2), vr(T+4,2)))
    fe()
    for i in range(10): k("v_pk_mul_f32 %s, %s, %s op_sel_hi:[1,0]" % (vr(P[i],2), vr(P[i],2), vr(T+6,2)))
    for i in range(10): k("v_cvt_pk_bf16_f32 v%d, v%d, v%d" % (O+i, Ep[i], Ep[i]+1))
    fe()
    for i in range(10): k("v_cvt_pk_bf16_f32 v%d, v%d, v%d" % (O+10+i, P[i], P[i]+1))

def att_extra(two):
    extra = spread(b_items(range(cfg.NBA)), cfg.PS1, 20)
    extra[16] = phi_dma(0, 80) + extra[16]
    if two: extra[17] = phi_dma(1, 81) + extra[17]
    return extra

def q_role(k, Q):
    srd(k, SRD_O, P_GW, 0, 1280)
    gemm_main(k, True, True, Q, att_extra(True), {cfg.PS1-1: D_S1}, xrd={19: phi_reads(0)}, xwait={18: [("P", 0)]}, xsetup=q_setup)
    k.wait(vm=("P", 1))
    for t in cvt_in(0, 0, 32): k(t)
    gate = ["v_lshrrev_b32 v24, 4, v0"]
    for rt in range(1, 4):
        gate += ["v_cmp_eq_u32 vcc, %d, v24" % rt, "v_cndmask_b32 v%d, v%d, v%d, vcc" % (GACC, GACC, GACC+4*rt)]
    gate += ["v_mul_f32 v25, %s, v%d" % (f32(-LOG2E), GACC), "v_exp_f32 v25, v25", "v_add_f32 v25, 1.0, v25", "v_rcp_f32 v25, v25",
             ("vm", "buffer_store_dword v25, v%d, s[%d:%d], s78 offen%s" % (V_E2, SRD_O, SRD_O+3, SC), "st")]
    rd1 = [("lg", r, "ph1") for r in phi_reads(1)]
    def outs(u):
        seg, rt = u >> 2, u & 3
        O = (240, 8)[u & 1]
        f = cvt_in(seg, rt, O)
        f.insert(4, ("vm", "buffer_store_dwordx4 %s, v%d, s[%d:%d], s75 offen offset:%d%s" % (vr(O,4), V_E0, SRD_O, SRD_O+3, rt*256, SC), "st"))
        f.insert(9, ("vm", "buffer_store_dwordx4 %s, v%d, s[%d:%d], s76 offen offset:%d%s" % (vr(O+4,4), V_E0, SRD_O, SRD_O+3, rt*256, SC), "st"))
        f.append(("vm", "buffer_store_dwordx2 %s, v%d, s[%d:%d], s77 offen offset:%d%s" % (vr(O+8,2), V_E1, SRD_O, SRD_O+3, rt*128, SC), "st"))
        if u == 3: f += ["s_add_u32 s%d, s%d, %d" % (x, x, 16*81920) for x in (75, 76, 77)]
        return f
    k.wait(lg="all")
    for u in range(8):
        seg, rt = u >> 2, u & 3
        fill = []
        if u < 7: fill += cvt_in((u+1) >> 2, (u+1) & 3, 32 + ((u+1) & 1)*12)
        if u == 0: fill += rd1[:14] + gate[:6]
        elif u == 1: fill += outs(0) + rd1[14:21]
        elif u == 2: fill += outs(1) + rd1[21:28]
        elif u == 3: fill += rd1[28:] + outs(2) + gate[6:]
        else: fill += outs(u-1)
        if u == 4: k.wait(lg="all")
        weave(k, phi_mf(seg, rt, 32 + (u & 1)*12), fill)
    weave(k, [], outs(7))
    poll_issue(k, P_DBG, D_S3, "s3")
    k.wait(vm="st")
    poll_check(k, P_DBG, 16, "s3", sleep=8)
    stamp(k, 5)
    signal(k, S_CNT, "s%d" % S_SIG)
    Feed(k, b_items(range(cfg.NBA, 70)) + bo_items()).drain()

def kv_role(k, Q):
    gemm_main(k, True, False, Q, att_extra(False), {cfg.PS1-1: D_S1}, xrd={19: phi_reads(0)}, xwait={18: [("P", 0)]}, xsetup=kv_setup)
    EREG = 6; TREG = 244; O = 224
    for t in cvt_in(0, 0, 32): k(t)
    def vout(rt):
        B = (232, 244)[rt & 1]
        f = cvt_in(1, rt, B)
        f += [("lg", "ds_write_b128 v%d, %s offset:%d" % (V_E1, vr(B+4*i,4), rt*16*VRS + 16*i), ("vw", rt)) for i in range(3)]
        if rt >= 2: f.insert(0, lambda rt=rt: k.wait(lg=("vw", rt-2)))
        return f
    k.wait(lg="all")
    weave(k, phi_mf(0, 0, 32), cvt_in(0, 1, 44) + vout(0) + vout(1) + vout(2) + vout(3))
    k.wait(lg="all")
    k("s_barrier")
    if not cfg.STG: stamp(k, 17)
    def vfr(n, bt): return acc((n*2+bt) >> 2, 1, (n*2+bt) & 3)
    vreads = []
    for n in range(8):
        j, ks = n >> 2, n & 3
        for bt in range(2):
            for h in range(2):
                vreads.append(("ds_read_b64_tr_b16 %s, v%d offset:%d" % (vr(vfr(n,bt)+2*h,2), V_E3, (32*ks+16*h)*VRS + j*48 + bt*32), "vf"))
    free1 = list(range(52, 64)) + [67, 68, 69]
    free2 = list(range(40, 52)) + [64, 65, 66]
    fd = Feed(k, b_items(range(cfg.NBA, 32)))
    for rt in range(4):
        P = [acc(t, 0, rt) + 2*h for t in range(5) for h in range(2)]
        mf = phi_mf(0, rt+1, 32 + ((rt+1) & 1)*12) if rt < 3 else []
        if rt == 1: poll_issue(k, P_DBG, D_S3, "s3")
        if rt == 2:
            poll_check(k, P_DBG, 16, "s3", sleep=8)
            fd.q += b_items(free1)
        softmax_pm(k, P, EREG, TREG, O, fd, mf, vreads[rt*8:(rt+1)*8])
        for i in range(5):
            k.lg("ds_write_b128 v%d, %s offset:%d" % (V_E0, vr(O+4*i,4), rt*16*PKRS + 16*i), ("pw", rt))
        if rt < 2:
            for t in cvt_in(0, rt+2, 32 + (rt & 1)*12): k(t)
        if not cfg.STG: stamp(k, 18+rt)
    fd.drain()
    fd.q += b_items(free2)
    k.wait(lg="all")
    k("s_barrier")
    if not cfg.STG: stamp(k, 22)
    KAQ = [32, 36, 40, 44, 48, 52, 224, 228, 232, 236, 240, 244]
    def pfr(n, ft): return acc(((n % 6)*3+ft) >> 2, 0, ((n % 6)*3+ft) & 3)
    def rd(n):
        j, ks = n >> 2, n & 3
        return [("lg", "ds_read_b64_tr_b16 %s, v%d offset:%d" % (vr(pfr(n,ft)+2*h,2), V_E2, (32*ks+16*h)*PKRS + j*80 + ft*32), ("f", n)) for ft in range(3) for h in range(2)]
    def pack(jj):
        f = []
        for ft in range(3):
            for bt in range(2):
                a = KAQ[(jj*3+ft)*2+bt]
                f += ["v_cvt_pk_bf16_f32 v%d, v%d, v%d" % (a, a, a+1), "v_cvt_pk_bf16_f32 v%d, v%d, v%d" % (a+1, a+2, a+3)]
                mask = [[None, "s[74:75]"], [None, "s[74:75]"], ["s[72:73]", "s[76:77]"]][ft][bt]
                w = "ds_write_b64 v%d, %s offset:%d" % (V_E5, vr(a,2), jj*1680 + bt*1280 + ft*32)
                if mask: w = "s_mov_b64 exec, %s\n%s\ns_mov_b64 exec, -1" % (mask, w)
                f.append(("lg", w, "cw"))
        return f
    weave(k, [], rd(0) + rd(1))
    pk0 = pack(0)
    for n in range(8):
        j, ks = n >> 2, n & 3
        k.wait(lg=("f", n))
        mf = []
        for ft in range(3):
            for bt in range(2):
                a = KAQ[(j*3+ft)*2+bt]
                mf.append("v_mfma_f32_16x16x32_bf16 %s, %s, %s, %s" % (vr(a,4), vr(pfr(n,ft),4), vr(vfr(n,bt),4), vr(a,4) if ks else "0"))
        fill = rd(n+2) if n < 6 else []
        if n < 5: fill.append(lambda: fd.emit(1))
        if n >= 5: fill += pk0[(n-5)*6:(n-4)*6]
        weave(k, mf, fill)
    weave(k, [], pack(1))
    k.wait(lg="all")
    for i in range(4): k.lg("ds_read_b128 %s, v%d offset:%d" % (vr(64+4*i,4), V_E6, i*1024), ("cr", i))
    for i in range(4):
        k.wait(lg=("cr", i))
        k.vm("buffer_store_dwordx4 %s, v%d, s[%d:%d], s78 offen offset:%d%s" % (vr(64+4*i,4), V_L16 if i < 3 else V_E4, SRD_O, SRD_O+3, i*1024, SC), "st")
    stamp(k, 26)
    fd.emit(4)
    k.wait(vm="st")
    stamp(k, 5)
    signal(k, S_CNT, "s%d" % S_SIG)
    fd.drain()
    Feed(k, b_items(range(32, 40)) + bo_items()).drain()

def aux_role(k):
    NSL = 9
    order = [("d", i) for i in range(6)] + [("o", i) for i in range(4)] + [("d", i) for i in range(6, 9)]
    NU = len(order)
    k("s_mov_b32 s%d, 1280" % S_STRIDE)
    k("s_lshl_b32 s75, s%d, 2" % S_MT)
    k("s_add_u32 s75, s75, s%d" % S_W)
    k("s_mul_i32 s76, s75, 205"); k("s_lshr_b32 s76, s76, 11")
    k("s_mul_i32 s77, s76, 10"); k("s_sub_u32 s77, s75, s77")
    k("s_cmp_ge_u32 s76, 6")
    k("s_cselect_b32 s78, 0x4000000, 0")
    k("s_mul_i32 s79, s76, %d" % (32*1280))
    k("s_lshl_b32 s80, s77, 7")
    k("s_add_u32 s79, s79, s80")
    k("s_add_u32 s79, s79, s78")
    k("v_lshrrev_b32 v24, 3, v0"); k("v_and_b32 v25, 7, v0")
    k("v_and_b32 v26, 6, v24")
    k("v_xor_b32 v26, v26, v25")
    k("v_lshlrev_b32 v26, 4, v26")
    k("v_mad_u32_u24 v5, v24, s%d, v26" % S_STRIDE)
    for i in range(1, 4): k("v_add_u32 v%d, %d, v5" % (5+i, i*8*1280))
    k("s_mul_i32 s%d, s%d, %d" % (S_WL, S_W, NSL*4096))
    k("s_waitcnt lgkmcnt(0)")
    srd(k, SRD_W1, P_WD, 0, 1728*1280)
    def load(n):
        kind, i = order[n]
        sg, vb = (SRD_W1, 5) if kind == "d" else (SRD_W0, 12)
        k("s_add_u32 s81, s79, %d" % (i*6*32*1280))
        for j in range(4):
            k("s_add_u32 m0, s%d, %d" % (S_WL, (n % NSL)*4096 + j*1024))
            k.vm("buffer_load_dwordx4 v%d, s[%d:%d], s81 offen nt lds" % (vb+j, sg, sg+3), ("u", n))
    D = cfg.AUXD
    for n in range(D): load(n)
    srd(k, SRD_W0, P_WO, 0, 640*1280)
    k("v_lshrrev_b32 v27, 2, v24"); k("v_and_b32 v28, 3, v24")
    k("v_lshl_add_u32 v27, v27, 3, v28")
    k("v_mad_u32_u24 v12, v27, s%d, v26" % S_STRIDE)
    for i in range(1, 4): k("v_add_u32 v%d, %d, v12" % (12+i, (16*(i&1) + 4*(i>>1))*1280))
    srd(k, SRD_O, P_WS, B2_OFF, B2_SZ)
    for t in late_setup_items(): k(t)
    k("s_cmp_eq_u32 s%d, 0" % S_MT)
    k("s_cselect_b32 s%d, 8192, 0" % S_T0)
    srd(k, 96, P_WS, CNT_OFF, "s%d" % S_T0)
    for i in range(4): k("v_mov_b32 v%d, 0" % (56+i))
    k("s_lshl_b32 s%d, s%d, 11" % (S_T0, S_W))
    for i in range(2): k.vm("buffer_store_dwordx4 v[56:59], v%d, s[96:99], s%d offen offset:%d%s" % (V_L16, S_T0, i*1024, SC), ("st", 0))
    k("v_lshrrev_b32 v24, 2, v0")
    k("v_bfe_u32 v25, v24, 1, 2")
    k("v_and_b32 v26, 3, v0")
    k("v_lshlrev_b32 v24, 7, v24")
    k("v_lshl_add_u32 v24, v26, 3, v24")
    k("v_add_u32 v24, s%d, v24" % S_WL)
    for b in range(4):
        k("v_xor_b32 v26, %d, v25" % b)
        k("v_lshl_add_u32 v%d, v26, 5, v24" % (20+b))
    for b in range(4):
        k("s_lshl_b32 s72, s77, 2"); k("s_add_u32 s72, s72, %d" % b)
        k("s_mul_i32 s73, s72, 205"); k("s_lshr_b32 s73, s73, 10")
        k("s_mul_i32 s74, s73, 5"); k("s_sub_u32 s72, s72, s74")
        k("s_mul_i32 s73, s73, 74"); k("s_add_u32 s73, s73, s76")
        k("s_mul_i32 s73, s73, 5"); k("s_add_u32 s73, s73, s72")
        k("s_lshl_b32 s73, s73, 10")
        k("s_add_u32 s%d, s73, s78" % (64+b))
    k("s_cmp_lt_u32 s76, 2")
    k("s_cselect_b32 s82, %d, 0x4000000" % (18*5120) if False else "s_cselect_b32 s82, 0, 0x4000000")
    stamp(k, 1)
    for n in range(NU):
        kind, i = order[n]
        k.wait(vm=("u", n))
        F = 64 + (n % 4)*16
        for b in range(4):
            for h in range(2):
                k.lg("ds_read_b64_tr_b16 %s, v%d offset:%d" % (vr(F+4*b+2*h,2), 20+b, (n % NSL)*4096 + h*2048))
        off = ((20 if kind == "d" else 0) + 6*i)*5120
        for b in range(4):
            k("s_add_u32 s%d, s%d, %d" % (72+b, 64+b, off))
            if kind == "o" and i == 3: k("s_add_u32 s%d, s%d, s82" % (72+b, 72+b))
        k.wait(lg="all")
        for b in range(4):
            k.vm("buffer_store_dwordx4 %s, v%d, s[%d:%d], s%d offen%s" % (vr(F+4*b,4), V_L16, SRD_O, SRD_O+3, 72+b, SC), ("st", n))
        if n + D < NU: load(n + D)
        if n == 6:
            k.wait(vm=("st", 5)); signal(k, P_DBG, D_S1); stamp(k, 2)
    k.wait(vm="all")
    signal(k, P_DBG, D_S3)
    stamp(k, 4)
    poll_issue(k, P_DBG, D_S3, "s3")
    poll_check(k, P_DBG, 16, "s3", sleep=32)
    stamp(k, 5)
    it = b_items(range(70)) + bo_items()
    fd = Feed(k, it)
    for i in range(len(it)):
        fd.emit(1)
        k("s_waitcnt vmcnt(%d)" % cfg.AUXT)

PHB = 102400; KVB = PHB + 20480; RED = PHB
def tail(k):
    k.flush_counters()
    stamp(k, 6)
    k("s_add_u32 s82, s%d, %d" % (S_OMT, C_Q)); k("s_lshl_b32 s82, s82, 7")
    poll_issue(k, S_CNT, "s82", "pq_ok")
    srd(k, SRD_P, P_WS, PQ_OFF, PQ_SZ)
    srd(k, SRD_W0, P_WS, KVP_OFF, KVP_SZ)
    srd(k, SRD_W1, P_WS, G_OFF, G_SZ)
    srd(k, SRD_O, P_WS, A2_OFF, A2_SZ)
    k("s_mul_i32 s%d, s%d, %d" % (S_T0, S_M64, 74*4096))
    srd(k, SRD_X, P_WS, A2_OFF, 74*4096, S_T0)
    k("v_and_b32 v24, 15, v0"); k("v_lshrrev_b32 v25, 4, v0")
    k("v_lshlrev_b32 v6, 2, v24")
    k("s_lshl_b32 s77, s%d, 1" % S_OMT); k("s_add_u32 s77, s77, s%d" % S_RH)
    k("s_lshl_b32 s78, s%d, 1" % S_OH); k("s_add_u32 s78, s78, s%d" % S_C)
    k("s_mul_i32 s78, s78, 81920")
    k("s_lshl_b32 s79, s77, 10"); k("s_add_u32 s79, s79, s78")
    k("s_add_u32 s80, s79, 32768")
    k("s_lshl_b32 s81, s77, 9"); k("s_add_u32 s81, s81, s78"); k("s_add_u32 s81, s81, 65536")
    k("v_lshlrev_b32 v7, 3, v0")
    k("s_lshl_b32 s76, s%d, 9" % S_OMT); k("s_lshl_b32 s75, s%d, 7" % S_W); k("s_add_u32 s76, s76, s75")
    poll_check(k, S_CNT, 2, "pq_ok")
    stamp(k, 7)
    PQ = 192
    k.vm("buffer_load_dwordx4 %s, v%d, s[%d:%d], s79 offen%s" % (vr(PQ,4), V_L16, SRD_P, SRD_P+3, SC), "pq")
    k.vm("buffer_load_dwordx4 %s, v%d, s[%d:%d], s80 offen%s" % (vr(PQ+4,4), V_L16, SRD_P, SRD_P+3, SC), "pq")
    k.vm("buffer_load_dwordx2 %s, v7, s[%d:%d], s81 offen%s" % (vr(PQ+8,2), SRD_P, SRD_P+3, SC), "pq")
    for r2 in range(2): k.vm("buffer_load_dword v%d, v6, s[%d:%d], s76 offen offset:%d%s" % (16+r2, SRD_W1, SRD_W1+3, r2*64, SC), "g")
    k("s_lshr_b32 s82, s%d, 1" % S_M64); k("s_add_u32 s82, s82, %d" % C_Q); k("s_lshl_b32 s82, s82, 7")
    poll_issue(k, S_CNT, "s82", "g_ok")
    k("s_mul_i32 s75, s%d, 5120" % S_W); k("s_add_u32 s75, s75, %d" % PHB)
    k("v_mul_u32_u24 v7, 80, v0"); k("v_add_u32 v7, s75, v7")
    k("s_mul_i32 s75, s%d, 2560" % S_W); k("s_add_u32 s75, s75, %d" % PHB)
    k("v_mul_u32_u24 v8, 80, v24"); k("v_add_u32 v8, s75, v8")
    k("v_lshl_add_u32 v9, v25, 4, v8")
    k("s_lshl_b32 s82, s%d, 10" % S_W)
    k("v_add_u32 v10, s82, v%d" % V_L16)
    k("v_mov_b32 v30, 0x7fffffff")
    k("v_cmp_gt_u32 vcc, 3360, v10")
    k("v_cndmask_b32 v11, v30, v10, vcc")
    k("v_add_u32 v10, %d, v10" % KVB)
    k("s_mul_i32 s72, s%d, 5" % S_OH)
    def stoff(dst, add, nvalid):
        k("v_add_u32 v28, s72, v25")
        if add: k("v_add_u32 v28, %d, v28" % add)
        k("v_lshrrev_b32 v26, 2, v28")
        k("v_lshlrev_b32 v26, 12, v26")
        k("v_and_b32 v27, 3, v28")
        k("v_lshl_add_u32 v26, v27, 8, v26")
        k("v_lshl_add_u32 v26, v24, 4, v26")
        k("v_cmp_gt_u32 vcc, %d, v25" % nvalid)
        k("v_cndmask_b32 v%d, v30, v26, vcc" % dst)
    stoff(12, 0, 3); stoff(13, 3, 2)
    k("s_lshl_b32 s73, s%d, 1" % S_OMT); k("s_add_u32 s73, s73, s%d" % S_C)
    k("s_mul_i32 s73, s73, %d" % (74*4096))
    k("s_lshl_b32 s75, s%d, 11" % S_RH); k("s_add_u32 s73, s73, s75")
    k("s_mul_i32 s74, s%d, %d" % (S_OH, 16*KVPS))
    k("v_bfe_u32 v26, v0, 2, 2"); k("v_and_b32 v27, 3, v0")
    k("v_lshl_add_u32 v28, v26, 3, v27")
    for hd in range(2):
        for i in range(3):
            d = 18 + hd*3 + i
            if i == 2: k("v_mov_b32 v%d, %d" % (d, KVB + 1600 + hd*1680))
            else:
                k("v_add_u32 v14, %d, v28" % (4*i + 4*hd)); k("v_min_u32 v14, 20, v14")
                if hd == 1 and i == 0:
                    k("v_cmp_eq_u32 vcc, 2, v26"); k("v_cndmask_b32 v14, v14, v27, vcc")
                k("v_mul_u32_u24 v14, 80, v14")
                k("v_add_u32 v%d, %d, v14" % (d, KVB + hd*1680))
    k("v_cmp_eq_u32 s[78:79], 0, v25")
    k("v_cmp_eq_u32 s[76:77], 2, v25")
    k("v_mov_b32 v30, %d" % (KVB + 3584 - 64))
    k("v_and_b32 v28, 1, v0"); k("v_lshlrev_b32 v28, 4, v28")
    k("v_lshlrev_b32 v28, v28, 0x3f80" if False else "v_mov_b32 v29, 0x3f80")
    k("v_lshlrev_b32 v28, v28, v29")
    k("v_cmp_eq_u32 vcc, v26, v25")
    k("v_cndmask_b32 v28, 0, v28, vcc")
    k("v_cmp_gt_u32 vcc, 2, v27")
    k("v_cndmask_b32 v29, 0, v28, vcc")
    k("v_cndmask_b32 v28, v28, 0, vcc")
    for r, src in ((120, "v29"), (121, "v28"), (122, "0"), (123, "0"), (124, "0"), (125, "0"), (126, "v29"), (127, "v28")):
        k("v_accvgpr_write_b32 a%d, %s" % (r, src))
    k.wait(vm="pq")
    for i in range(10):
        k("v_lshlrev_b32 v%d, 16, v%d" % (64+2*i, PQ+i))
        k("v_and_b32 v%d, 0xffff0000, v%d" % (65+2*i, PQ+i))
    poll_check(k, S_CNT, 2, "g_ok")
    k("s_lshl_b32 s82, s%d, 8" % S_M64); k("s_lshl_b32 s75, s%d, 6" % S_W); k("s_add_u32 s82, s82, s75")
    k.vm("buffer_load_dword v5, v6, s[%d:%d], s82 offen%s" % (SRD_W1, SRD_W1+3, SC), "g")
    class Late:
        n = 0
        def emit(self, _=1):
            self.n += 1
            if self.n == 6:
                k("s_lshr_b32 s82, s%d, 1" % S_M64); k("s_lshl_b32 s82, s82, 7")
                poll_issue(k, S_CNT, "s82", "h_ok")
    softmax_pm(k, [64+2*i for i in range(10)], 84, 124, 104, Late())
    for i in range(5): k.lg("ds_write_b128 v7, %s offset:%d" % (vr(104+4*i,4), 16*i))
    stamp(k, 8)
    poll_check(k, S_CNT, 9, "h_ok")
    stamp(k, 9)
    A0 = 64; AF = 144; DA = 3
    k("s_add_u32 s80, s%d, 20" % S_W); k("s_lshl_b32 s80, s80, 12")
    def af(i): return AF + (i % DA)*16
    def a_load(i, tt):
        k.vm("buffer_load_dwordx4 %s, v%d, s[%d:%d], s80 offen offset:%d%s" % (vr(af(i)+4*tt,4), V_L16, SRD_X, SRD_X+3, tt*1024, SC), ("A", i, tt))
        if tt == 3: k("s_add_u32 s80, s80, %d" % (4*4096))
    for i in range(DA):
        for tt in range(4): a_load(i, tt)
    k("s_lshr_b32 s82, s%d, 2" % S_OH); k("s_add_u32 s82, s82, %d" % C_K); k("s_lshl_b32 s82, s82, 7")
    k.wait(lg="all")
    side = []
    def S(at, item, cost=1): side.append((at, cost, item))
    MK = cfg.MK
    S(max(0, MK-30), lambda: poll_issue(k, S_CNT, "s82", "k_ok"), 2)
    def chk():
        stamp(k, 10); poll_check(k, S_CNT, 16, "k_ok"); stamp(k, 11)
    S(MK, chk, 2)
    PR = 200
    def kp(p):
        k.vm("buffer_load_dwordx4 %s, v11, s[%d:%d], s74 offen%s" % (vr(PR+4*(p % 14),4), SRD_W0, SRD_W0+3, SC), ("kp", p))
        k("s_add_u32 s74, s74, %d" % KVPS)
    for p in range(14): S(MK + 2*p, lambda p=p: kp(p), 2)
    for p in range(16):
        r = PR + 4*(p % 14)
        def red(p=p, r=r):
            k.wait(vm=("kp", p))
            for h in range(2): k("v_mfma_f32_16x16x32_bf16 %s, %s, %s, %s" % (vr(192+4*h,4), ar(120+4*h,4), vr(r,4), vr(192+4*h,4) if p else "0"))
            if p < 2: kp(14+p)
        S(MK + cfg.KLAT + (cfg.KL2 if p >= 14 else 0), red, 2)
    S(0, None, 10)
    for i in range(4): S(0, "v_cvt_pk_bf16_f32 v%d, v%d, v%d" % (PR+i, 192+2*i, 193+2*i))
    S(0, ("lg", "ds_write_b128 v10, %s" % vr(PR,4), "kw"))
    S(0, None, 8)
    def bar():
        k.wait(lg="all"); k("s_barrier"); stamp(k, 28)
    S(80, bar, 2)
    OA = 256 + 128
    for hd in range(2):
        for i in range(3):
            S(0, "v_lshl_add_u32 v15, v25, 4, v%d" % (18+hd*3+i))
            S(0, "v_cndmask_b32 v14, v30, v%d, s[78:79]" % (18+hd*3+i))
            S(0, ("lg", "ds_read_b128 %s, v15" % R(OA+hd*40+8*i,4), ("o", hd)))
            S(0, ("lg", "ds_read_b128 %s, v14 offset:64" % R(OA+hd*40+4+8*i,4), ("o", hd)))
        for r2 in range(2):
            S(0, ("lg", "ds_read_b128 %s, v9 offset:%d" % (R(OA+hd*40+24+8*r2,4), hd*10240 + r2*1280), ("o", hd)))
            S(0, ("lg", "ds_read_b128 %s, v8 offset:%d" % (R(OA+hd*40+28+8*r2,4), hd*10240 + r2*1280+64), ("o", hd)))
    KO = 200
    for hd in range(2):
        if hd: S(0, None, 4)
        def mm(hd=hd):
            k.wait(lg=("o", hd), vm="g")
            for s in range(2):
                for r2 in range(2):
                    for i in (2, 0, 1):
                        a = KO + (hd*2+r2)*12 + i*4
                        k("v_mfma_f32_16x16x32_bf16 %s, %s, %s, %s" % (vr(a,4), R(OA+hd*40+8*i+4*s,4), R(OA+hd*40+24+8*r2+4*s,4), vr(a,4) if s else "0"))
        S(0, mm, 2)
    for u in range(4): S(0, "v_add_f32 v%d, %s, v%d" % (KO+u*12+8, f32(1e-6), KO+u*12+8))
    for u in range(4): S(0, "v_rcp_f32 v%d, v%d" % (KO+u*12+8, KO+u*12+8), 2)
    for u in range(4): S(0, "v_mul_f32 v%d, v%d, v%d" % (KO+u*12+8, KO+u*12+8, 16+(u & 1)))
    for r2 in range(2):
        a0 = KO + r2*12; a1 = KO + (2+r2)*12
        for a in (a1, a0):
            for i in range(8): S(0, "v_mul_f32 v%d, v%d, v%d" % (a+i, a+i, a+8))
            for i in range(4): S(0, "v_cvt_pk_bf16_f32 v%d, v%d, v%d" % (a+8+i, a+2*i, a+2*i+1))
            if a == a1: S(0, ("vm", "buffer_store_dwordx4 %s, v13, s[%d:%d], s73 offen offset:%d%s" % (vr(a1+8,4), SRD_O, SRD_O+3, r2*1024, SC), "st"))
        S(0, "v_cndmask_b32 v%d, v%d, v%d, s[76:77]" % (a0+10, a0+10, a1+8))
        S(0, "v_cndmask_b32 v%d, v%d, v%d, s[76:77]" % (a0+11, a0+11, a1+9))
        S(0, ("vm", "buffer_store_dwordx4 %s, v12, s[%d:%d], s73 offen offset:%d%s" % (vr(a0+8,4), SRD_O, SRD_O+3, r2*1024, SC), "st"))
    S(0, lambda: stamp(k, 29), 0)
    S(0, None, cfg.OSD)
    def osig():
        k.wait(vm="st")
        k("s_add_u32 s82, s%d, %d" % (S_OMT, C_O)); k("s_lshl_b32 s82, s82, 7")
        signal(k, S_CNT, "s82")
        stamp(k, 12)
    S(0, osig, 2)
    m = 0; credit = 0
    for i in range(14):
        for tt in range(4):
            k.wait(vm=("A", i, tt))
            for ct in range(5):
                a = A0 + (ct*4+tt)*4
                k("v_mfma_f32_16x16x32_bf16 %s, %s, %s, %s" % (vr(a,4), R(bloc(i*5+ct),4), vr(af(i)+4*tt,4), vr(a,4) if i else "0"))
                m += 1
                credit = min(credit, 0) + cfg.PER
                if ct == 4:
                    if i + DA < 14: a_load(i + DA, tt)
                    credit -= 2
                while side and side[0][0] <= m and credit > 0:
                    _, c, it = side.pop(0)
                    if it is not None: emit1(k, it)
                    credit -= c
    stamp(k, 13)
    for _, c, it in side:
        if it is not None: emit1(k, it)
    stamp(k, 27)
    k("s_lshr_b32 s82, s%d, 1" % S_M64); k("s_add_u32 s82, s82, %d" % C_O); k("s_lshl_b32 s82, s82, 7")
    labs = [k.newlabel("Lred") for _ in range(5)]
    k("v_add_u32 v7, %d, v%d" % (RED, V_L16))
    k("s_mul_i32 s81, s%d, 15360" % S_W)
    k("v_add_u32 v8, s81, v7")
    for w in range(1, 4):
        k("s_cmp_eq_u32 s%d, %d" % (S_W, w)); k("s_cbranch_scc1 %s" % labs[w])
    AO = 192
    for w in range(4):
        if w: k.label(labs[w]); k("s_nop 7")
        for tt in range(4):
            if tt == w: continue
            slot = w if w < tt else w - 1
            for ct in range(5): k("ds_write_b128 v7, %s offset:%d" % (vr(A0+(ct*4+tt)*4,4), (tt*15 + slot*5 + ct)*1024))
        for ct in range(5):
            for h in range(2): k("v_pk_mul_f32 %s, %s, 1.0 op_sel_hi:[1,0]" % (vr(AO+ct*4+2*h,2), vr(A0+(ct*4+w)*4+2*h,2)))
        if w < 3: k("s_branch %s" % labs[4])
    k.label(labs[4])
    poll_issue(k, S_CNT, "s82", "o_ok")
    k("v_add_u32 v9, 51200, v%d" % V_L16)
    k("s_waitcnt lgkmcnt(0)")
    k("s_barrier")
    for j in range(15): k.lg("ds_read_b128 %s, v8 offset:%d" % (vr(A0+4*j,4), j*1024), ("r", j // 5))
    srd(k, SRD_O, P_OUT, 0, 2048*1280)
    k("s_lshl_b32 s81, s%d, 6" % S_M64); k("s_lshl_b32 s75, s%d, 4" % S_W); k("s_add_u32 s81, s81, s75")
    k("s_mul_i32 s81, s81, 1280"); k("s_mul_i32 s75, s%d, 160" % S_NT); k("s_add_u32 s81, s81, s75")
    k("v_mul_u32_u24 v16, 1280, v24"); k("v_lshl_add_u32 v16, v25, 3, v16")
    k("v_sub_f32 v10, 1.0, v5")
    def bo_read(n):
        off = n*1024
        return ("lg", "ds_read_b128 %s, v%d offset:%d" % (R(256 + (n % 60)*4, 4), V_L16 if off < 51200 else 9, off % 51200), ("bo", n // 5))
    nr = 0
    for sl in range(3):
        k.wait(lg=("r", sl))
        weave(k, [], [bo_read(n) for n in range(nr, nr+5)]); nr += 5
        for ct in range(5):
            for h in range(2): k("v_pk_add_f32 %s, %s, %s" % (vr(AO+ct*4+2*h,2), vr(AO+ct*4+2*h,2), vr(A0+(sl*5+ct)*4+2*h,2)))
    poll_check(k, S_CNT, 16, "o_ok")
    stamp(k, 14)
    def of(ks): return 32 + 4*ks if ks < 8 else 144 + 4*(ks-8)
    k("s_lshl_b32 s80, s%d, 10" % S_W)
    fa = Feed(k, [("s_add_u32 s80, s80, 4096" if ks else None, "buffer_load_dwordx4 %s, v%d, s[%d:%d], s80 offen%s" % (vr(of(ks),4), V_L16, SRD_X, SRD_X+3, SC), ("Ao", ks)) for ks in range(20)])
    fa.emit(10)
    for j in range(10): k("v_pk_mul_f32 %s, %s, v[10:11] op_sel_hi:[1,0]" % (vr(AO+2*j,2), vr(AO+2*j,2)))
    while nr < 55:
        weave(k, [], [bo_read(n) for n in range(nr, nr+5)]); nr += 5
        fa.emit(1)
    for ks in range(20):
        k.wait(vm=("Ao", ks), lg=("bo", ks))
        mf = ["v_mfma_f32_16x16x32_bf16 %s, %s, %s, %s" % (vr(AO+ct*4,4), R(256 + ((ks*5+ct) % 60)*4, 4), vr(of(ks),4), vr(AO+ct*4,4)) for ct in range(5)]
        fill = [bo_read(n) for n in range(nr, min(100, nr+5))]; nr += len(fill)
        weave(k, mf, fill, per=1)
        fa.emit(1)
    for ct in range(5):
        a = AO + ct*4
        k("v_cvt_pk_bf16_f32 v%d, v%d, v%d" % (64+2*ct, a, a+1)); k("v_cvt_pk_bf16_f32 v%d, v%d, v%d" % (65+2*ct, a+2, a+3))
        k.vm("buffer_store_dwordx2 %s, v16, s[%d:%d], s81 offen offset:%d" % (vr(64+2*ct,2), SRD_O, SRD_O+3, ct*32), "st")
    stamp(k, 30)
    stamp_out(k)

def kernel(k):
    kernel_header(k, NAME)
    if cfg.EARLY0: k("s_memrealtime s[98:99]")
    k("s_load_dwordx16 s[8:23], s[0:1], 0")
    k("s_load_dwordx8 s[24:31], s[0:1], 64")
    k("s_cmp_ge_u32 s2, 256")
    k("s_cbranch_scc1 L_end")
    if cfg.CPF: code_prefetch(k, V_JUNK)
    k("v_lshrrev_b32 v2, 6, v0")
    k("v_and_b32 v0, 63, v0")
    k("v_readfirstlane_b32 s%d, v2" % S_W)
    if cfg.STAMP: k("v_mov_b32 v1, 0")
    stamp(k, 0)
    if cfg.EARLY0: k("v_writelane_b32 v1, s98, 0")
    k("s_bfe_u32 s%d, s2, 0x40003" % S_MT)
    k("s_and_b32 s%d, s2, 7" % S_T0)
    k("s_lshl_b32 s%d, s%d, 3" % (S_T0, S_T0))
    k("s_bfe_u32 s%d, s2, 0x10007" % S_T1)
    k("s_lshl_b32 s%d, s%d, 2" % (S_T1, S_T1))
    k("s_add_u32 s%d, s%d, s%d" % (S_T0, S_T0, S_T1))
    tab = cfg.ORDER
    k("s_mov_b32 s74, 0x%x" % sum(tab[i] << (4*i) for i in range(8))); k("s_mov_b32 s75, 0x%x" % sum(tab[8+i] << (4*i) for i in range(8)))
    k("s_lshr_b64 s[74:75], s[74:75], s%d" % S_T0)
    k("s_and_b32 s%d, s74, 15" % S_TY)
    k("s_and_b32 s%d, s%d, 1" % (S_RH, S_W))
    k("s_lshr_b32 s%d, s%d, 1" % (S_C, S_W))
    k("v_lshlrev_b32 v%d, 4, v0" % V_L16)
    k("s_cmp_ge_u32 s%d, 15" % S_TY); k("s_cbranch_scc1 L_aux")
    k("s_cmp_ge_u32 s%d, 13" % S_TY)
    k("s_cselect_b32 s%d, 13, 9" % S_T0)
    k("s_cselect_b32 s75, 0, 1280")
    k("s_cselect_b32 s76, 0, 640")
    k("s_add_u32 s76, s76, 640")
    k("s_sub_u32 s79, s%d, s%d" % (S_TY, S_T0))
    k("s_mul_i32 s%d, s79, 320" % S_T1)
    k("s_and_b32 s%d, s%d, 127" % (S_DELTA, S_T1))
    k("s_sub_u32 s%d, s%d, s%d" % (S_T1, S_T1, S_DELTA))
    k("s_add_u32 s75, s75, s%d" % S_T1)
    k("s_add_u32 s76, s76, s75")
    k("s_mul_i32 s%d, s%d, 384" % (S_T1, S_TY))
    k("s_mov_b32 s%d, 3840" % S_STRIDE)
    k("s_cmp_lt_u32 s%d, 9" % S_TY)
    k("s_cselect_b32 s75, s%d, s75" % S_T1)
    k("s_cselect_b32 s76, s%d, s76" % S_T1)
    k("s_cselect_b32 s%d, 3456, s%d" % (S_STRIDE, S_STRIDE))
    k("s_mul_i32 s%d, s%d, 640" % (S_T1, S_STRIDE))
    k("s_sub_u32 s77, s%d, s75" % S_T1)
    k("s_sub_u32 s78, s%d, s76" % S_T1)
    gemm_setup(k)
    k("s_mul_i32 s%d, s%d, %d" % (S_T0, S_MT, 128*1280))
    k("s_waitcnt lgkmcnt(0)")
    k("s_cmp_lt_u32 s%d, 9" % S_TY)
    k("s_cselect_b64 s[16:17], s[%d:%d], s[%d:%d]" % (P_WG, P_WG+1, P_WQKV, P_WQKV+1))
    k("s_cselect_b64 s[%d:%d], s[%d:%d], s[%d:%d]" % (P_WU, P_WU+1, P_WU, P_WU+1, P_WQKV, P_WQKV+1))
    srd(k, SRD_X, P_X, 0, 128*1280, S_T0)
    stamp(k, 1)
    Q = dma_queue()
    issue_now(k, Q, 4)
    srd(k, SRD_W0, 16, 0, "s77", 75)
    srd(k, SRD_W1, P_WU, 0, "s78", 76)
    issue_now(k, Q, 6)
    touch_setup(k)
    for it in touch_items(-1):
        if it[0]: k(it[0])
        k.vm(it[1], it[2])
    sv0 = list(k.vmq)
    k("s_cmp_ge_u32 s%d, 9" % S_TY); k("s_cbranch_scc1 L_att")
    ffn_role(k, Q)
    k("s_branch L_tail")
    k.label("L_att")
    k("s_lshl_b32 s79, s79, 1")
    k("s_add_u32 s79, s79, s%d" % S_C)
    k("s_mul_i32 s80, s79, 3200")
    k("s_add_u32 s81, s80, 12800")
    k("s_mov_b32 s82, 0x100000")
    srd(k, SRD_P, P_WPHI, 0, 25600)
    k("s_cmp_ge_u32 s%d, 13" % S_TY); k("s_cbranch_scc1 L_q")
    k.flush_counters(); k.vmq = list(sv0)
    kv_role(k, Q)
    k("s_branch L_tail")
    k.label("L_q")
    k.flush_counters(); k.vmq = list(sv0)
    q_role(k, Q)
    k("s_branch L_tail")
    k.flush_counters()
    k.label("L_aux")
    aux_role(k)
    k.label("L_tail")
    tail(k)
    k.label("L_end")
    k("s_endpgm")

def build(fn, listform=True):
    k = K()
    k.raw(open("header.txt").read().rstrip())
    if listform: k.raw("; @launch kernel=%s grid=(256,1,1) block=(256,1,1) lds=163840" % NAME)
    else: k.raw("; @launch grid=(256,1,1) block=(256,1,1) lds=163840")
    k.raw('.amdgcn_target "amdgcn-amd-amdhsa--gfx950"')
    k.raw(".text")
    kernel(k)
    k.raw('.section .rodata,"a"')
    k.raw(kernel_desc(NAME, 512, 256))
    open(fn, "w").write(k.text())

if __name__ == "__main__":
    for a in sys.argv[2:]:
        if "=" in a:
            n, v = a.split("="); setattr(cfg, n, eval(v))
    build(sys.argv[1], listform="single" not in sys.argv)
```

```python
import sys
from fw import *

A2_OFF = 0;          A2_SZ = 32*74*4096
B2_OFF = 0xA00000;   B2_SZ = 8*74*5120
PQ_OFF = 0xD00000;   PQ_SZ = 32*2048*40
KVP_OFF = 0x1000000; KVPS = 3584; KVP_SZ = 16*16*KVPS
G_OFF = 0x1200000;   G_SZ = 8192
CNT_OFF = 0x1300000
ST_OFF = 0x1400000
LOG2E = 1.4426950408889634
NAME = "gated_mix__linear_kernel_hedgehog__swiglu_ffn__prompt_kernel"

class Cfg:
    STAMP = 0; STG = 0
    MAXD = 11; N2 = 6; N3 = 10
    P2M = 4
    TW = [(-1,1,5),(0,6,6),(3,12,8)]
    TX = [(-1,1,2),(0,3,3),(3,6,4)]
    ORDER = [0, 9, 1, 10, 2, 11, 3, 12, 4, 13, 5, 14, 6, 7, 8, 15]
    PS1 = 16
    NBF = 40
    NBA = 32
    AUXT = 10
    AUXD = 3
    FFE = (3, 10)
    MK = 60
    KLAT = 10
    PER = 2
    BOF = 10
    KVB0 = 1
    TPER = 2
    BLP = 5
    X_NOWAIT = 0
    X_NOO = 0
    X_NOB = 0
    X_END = 0
    X_NOA = 0
    MO = 238
    NOSC = 0
    NOMF = 0
    CS = 4096+256
    ONE = 1
    SLP = 2
    KI = 1
    MIX = 6
    FLAT = (1, 3)
    XD = 3
    BOQ = 10
    QPRE = 6
    FQ = (7, 10)
    OFIRST = 1
    OUTF = ''
    BOEARLY = 0
    QLAT = 40
    MAP = 3
    AORD = [9, 13, 10, 11, 14, 12]
    DBGWG = -1
    PADST = None
    PADMIN = 0
    CPF = 1
    TNT = 0
    NODMA = 0
    CYC = 0
    PADTY = None
    EARLY0 = 0
    KL2 = 40
    OSD = 20
cfg = Cfg()
SC = " sc1"
LSC = " sc1"

P_X, P_WQKV, P_WPHI, P_WO, P_WG, P_WU, P_WD, P_GW, P_OUT, P_DBG, P_WS = 8, 10, 12, 14, 18, 20, 22, 24, 26, 28, 30
S_W, S_RH, S_C, S_MT, S_TY, S_M64, S_NT, S_OH = 32, 33, 34, 35, 36, 37, 38, 39
SRD_X, SRD_W0, SRD_W1, SRD_O, SRD_P = 40, 44, 48, 52, 56
S_STRIDE, S_WOFF, S_WL, S_XL, S_T0, S_T1, S_T2, S_T3, S_DELTA, S_SIG = 60, 61, 62, 63, 64, 65, 66, 67, 68, 69
S_C2 = 70
S_OMT = 83; SRD_B = 84; S_BOFF = 88; S_BB = 89; S_CNT = 90; SRD_T = 96
V_L16, V_L16B, V_PT = 2, 3, 4
V_WD = 5; V_XD = 6; V_XR = 10; V_TA = 12; V_TW = 24; V_TX = 25; V_JUNK = 63; V_Z = 0
ACC0 = 64
WF0 = 256; XF0 = 256 + 96; GF0 = 256 + 88; GACC = 224
C_H, C_K, C_Q, C_O = 0, 16, 20, 36
SPARE = 147456
D_S1, D_S2, D_S3 = 0, 64, 128

def srd(k, d, b, off, nbytes, soff=None):
    if off or soff is not None:
        if soff is not None:
            k("s_add_u32 s%d, s%d, s%d" % (d, b, soff)); k("s_addc_u32 s%d, s%d, 0" % (d+1, b+1))
            if off:
                k("s_add_u32 s%d, s%d, 0x%x" % (d, d, off)); k("s_addc_u32 s%d, s%d, 0" % (d+1, d+1))
        else:
            k("s_add_u32 s%d, s%d, 0x%x" % (d, b, off)); k("s_addc_u32 s%d, s%d, 0" % (d+1, b+1))
        k("s_and_b32 s%d, s%d, 0xffff" % (d+1, d+1))
    else:
        k("s_mov_b32 s%d, s%d" % (d, b)); k("s_and_b32 s%d, s%d, 0xffff" % (d+1, b+1))
    if isinstance(nbytes, int): k("s_mov_b32 s%d, 0x%x" % (d+2, nbytes))
    else: k("s_mov_b32 s%d, %s" % (d+2, nbytes))
    k("s_mov_b32 s%d, 0x20000" % (d+3))

def stamp(k, i):
    if not cfg.STAMP: return
    k("s_memtime s[92:93]" if cfg.STAMP == 2 else "s_memrealtime s[92:93]")
    k("s_waitcnt lgkmcnt(0)")
    k.lgq = []
    k("v_writelane_b32 v1, s92, %d" % i)
def stamp_out(k):
    if not cfg.STAMP: return
    k("s_waitcnt vmcnt(0)")
    stamp(k, 15)
    k("v_writelane_b32 v1, s%d, 16" % S_TY)
    srd(k, 40, P_WS, ST_OFF, 1024*128)
    k("s_lshl_b32 s92, s2, 2"); k("s_add_u32 s92, s92, s%d" % S_W); k("s_lshl_b32 s92, s92, 7")
    k("v_lshlrev_b32 v5, 2, v0")
    k("v_cmp_gt_u32 vcc, 32, v0")
    k("v_mov_b32 v6, 0x7fffffff")
    k("v_cndmask_b32 v5, v6, v5, vcc")
    k("buffer_store_dword v1, v5, s[40:43], s92 offen")
    if cfg.PADST is not None:
        k("v_readlane_b32 s94, v1, %d" % abs(cfg.PADST))
        k("v_readlane_b32 s95, v1, 0")
        k("s_max_u32 s94, s94, s95")
        if cfg.CYC:
            a, b = ((31, 25) if cfg.CYC == 1 else (24, 23))
            k("v_readlane_b32 s96, v1, %d" % a); k("v_readlane_b32 s97, v1, %d" % b)
            k("s_sub_u32 s96, s96, s97")
            if cfg.CYC == 1: k("s_lshr_b32 s96, s96, 2")
            else: k("s_lshl_b32 s96, s96, 2")
            k("s_add_u32 s94, s95, s96")
        if cfg.PADTY:
            k("s_cmp_lt_u32 s%d, %d" % (S_TY, cfg.PADTY[0])); k("s_cselect_b32 s94, s95, s94")
            k("s_cmp_gt_u32 s%d, %d" % (S_TY, cfg.PADTY[1])); k("s_cselect_b32 s94, s95, s94")
        if cfg.PADMIN:
            k("s_not_b32 s95, s94")
            k("v_mov_b32 v7, s95"); k("v_mov_b32 v8, 192")
            k("s_cmp_eq_u32 s%d, 0" % S_W)
            k("s_cselect_b64 exec, 1, 0")
            k("s_cbranch_execz Lnoat")
            k("global_atomic_umax v8, v7, s[%d:%d] sc1" % (P_DBG, P_DBG+1))
            k.label("Lnoat")
            k("s_mov_b64 exec, -1")
            k("s_add_u32 s94, s94, 4500")
            k.label("Lpad0")
            k("s_sleep 4")
            k("s_memrealtime s[96:97]")
            k("s_waitcnt lgkmcnt(0)")
            k("s_sub_u32 s98, s96, s94")
            k("s_cmp_lt_i32 s98, 0")
            k("s_cbranch_scc1 Lpad0")
            k("global_load_dword v7, v8, s[%d:%d] sc1" % (P_DBG, P_DBG+1))
            k("s_waitcnt vmcnt(0)")
            k("v_readfirstlane_b32 s94, v7")
            k("s_not_b32 s94, s94")
        k("s_add_u32 s94, s94, 6000")
        lp = k.newlabel("Lpad"); k.label(lp)
        k("s_sleep 4")
        k("s_memrealtime s[96:97]")
        k("s_waitcnt lgkmcnt(0)")
        k("s_sub_u32 s98, s96, s94")
        k("s_cmp_lt_i32 s98, 0")
        k("s_cbranch_scc1 %s" % lp)
    if cfg.DBGWG >= 0:
        k("s_cmp_eq_u32 s92, %d" % (cfg.DBGWG*512))
        k("s_cselect_b32 s93, 64, 0")
        srd(k, 44, P_DBG, 0, "s93")
        k("v_readlane_b32 s93, v1, 0")
        k("v_subrev_u32 v7, s93, v1")
        k("v_cmp_lt_u32 vcc, 0, v0")
        k("v_cndmask_b32 v5, v6, v5, vcc")
        k("buffer_store_dword v7, v5, s[44:47], 0 offen")

def code_prefetch(k, vt):
    k("s_getpc_b64 s[72:73]")
    l = k.newlabel("Lpc"); k.label(l)
    k("s_lshr_b32 s74, s2, 3")
    k("s_lshl_b32 s74, s74, 7")
    k("v_and_b32 v%d, 31, v0" % vt)
    k("v_lshlrev_b32 v%d, 12, v%d" % (vt, vt))
    k("v_add_u32 v%d, s74, v%d" % (vt, vt))
    k("v_min_u32 v%d, L_end-%s-4, v%d" % (vt, l, vt))
    k.vm("global_load_dword v%d, v%d, s[72:73]" % (vt, vt), "pf")

def _pload(k, base, tag):
    if cfg.ONE:
        a = k.newlabel("Lp0"); b = k.newlabel("Lp1")
        k("s_cmp_lg_u32 s%d, 0" % S_W); k("s_cbranch_scc1 %s" % a)
        k("global_load_dword v31, v%d, s[%d:%d] sc1" % (V_PT, base, base+1))
        k("s_branch %s" % b)
        k.label(a)
        k("v_mov_b32 v%d, 0" % V_PT)
        k("global_load_dword v31, v%d, s[%d:%d]" % (V_PT, P_X, P_X+1))
        k.label(b)
        k.vmq.append(tag)
    else: k.vm("global_load_dword v31, v%d, s[%d:%d] sc1" % (V_PT, base, base+1), tag)
def poll_issue(k, base, off, tag):
    k("v_mov_b32 v%d, %s" % (V_PT, off))
    _pload(k, base, tag)
def vpoll_issue(k, off, n, tag):
    k("v_min_u32 v%d, %d, v0" % (V_PT, n-1)); k("v_mul_u32_u24 v%d, %d, v%d" % (V_PT, cfg.CS, V_PT)); k("v_add_u32 v%d, %s, v%d" % (V_PT, off, V_PT))
    _pload(k, S_CNT, tag)
def poll_check(k, base, target, tag, sleep=None, barrier=True):
    l = k.newlabel("Lpoll"); d = k.newlabel("Lpd")
    if base == S_CNT and (cfg.X_NOWAIT == 1 or (cfg.X_NOWAIT and tag in cfg.X_NOWAIT)): target = 0
    k.wait(vm=tag)
    if cfg.ONE:
        k("s_cmp_lg_u32 s%d, 0" % S_W); k("s_cbranch_scc1 %s" % d)
    k("v_cmp_gt_u32 vcc, %d, v31" % target)
    k("s_mov_b32 s95, 0x8000")
    k("s_cmp_eq_u64 vcc, 0")
    k("s_cbranch_scc1 %s" % d)
    k.label(l)
    k("s_sleep %d" % (sleep or cfg.SLP))
    k("global_load_dword v31, v%d, s[%d:%d] sc1" % (V_PT, base, base+1))
    k("s_waitcnt vmcnt(0)")
    k("v_cmp_gt_u32 vcc, %d, v31" % target)
    k("s_sub_u32 s95, s95, 1")
    k("s_cmp_eq_u64 vcc, 0")
    k("s_cbranch_scc1 %s" % d)
    k("s_cmp_lg_u32 s95, 0")
    k("s_cbranch_scc1 %s" % l)
    k.label(d)
    if cfg.ONE and barrier: k("s_barrier")
def vpoll_check(k, target, tag): poll_check(k, S_CNT, target, tag)
def signal(k, base, off):
    d = k.newlabel("Lsg")
    k("s_barrier")
    k("s_cmp_lg_u32 s%d, 0" % S_W)
    k("s_cbranch_scc1 %s" % d)
    k("v_mov_b32 v%d, %s" % (V_PT, off))
    k("v_mov_b32 v31, 1")
    k("s_mov_b64 exec, 1")
    k("global_atomic_add v%d, v31, s[%d:%d] sc1" % (V_PT, base, base+1))
    k("s_mov_b64 exec, -1")
    k.label(d)

BL = [256+128+4*i for i in range(32)] + [256+48+4*i for i in range(12)] + [256+108+4*i for i in range(3)] \
   + [256+4*i for i in range(12)] + [256+96+4*i for i in range(3)] + [32+4*i for i in range(8)]
def bloc(n): return BL[n]
def b_items(frs):
    out = []; cur = None
    for n in frs:
        st, ct = divmod(n, 5)
        pre = None
        if st != cur: pre = "s_add_u32 s%d, s%d, %d" % (S_BOFF, S_BB, (20 + 4*st)*5120); cur = st
        if ct < 4: t = "buffer_load_dwordx4 %s, v%d, s[%d:%d], s%d offen offset:%d%s" % (R(bloc(n),4), V_L16, SRD_B, SRD_B+3, S_BOFF, ct*1024, LSC)
        else: t = "buffer_load_dwordx4 %s, v%d, s[%d:%d], s%d offen%s" % (R(bloc(n),4), V_L16B, SRD_B, SRD_B+3, S_BOFF, LSC)
        out.append((pre, t, ("B", n)))
    return out
def bo_items():
    out = []
    for i in range(5):
        for ct in range(5):
            pre = "s_add_u32 m0, s%d, %d" % (S_BB, i*20480 + (4096 if ct == 4 else 0))
            if ct == 0: pre = "s_add_u32 s100, s%d, %d\n" % (S_BB, i*20480) + pre
            if ct < 4: t = "buffer_load_dwordx4 v%d, s[%d:%d], s100 offen offset:%d%s lds" % (V_L16, SRD_B, SRD_B+3, ct*1024, LSC)
            else: t = "buffer_load_dwordx4 v%d, s[%d:%d], s100 offen%s lds" % (V_L16B, SRD_B, SRD_B+3, LSC)
            out.append((pre, t, "BO"))
    return out
class Feed:
    def __init__(self, k, items): self.k = k; self.q = list(items)
    def emit(self, n=1):
        while self.q and n > 0:
            pre, t, tag = self.q.pop(0)
            if pre: self.k(pre)
            self.k.vm(t, tag); n -= 1
    def drain(self): self.emit(10**6)
def emit1(k, f):
    if callable(f): f()
    elif isinstance(f, tuple): (k.lg if f[0] == "lg" else k.vm)(f[1], f[2])
    else: k(f)
def weave(k, mf, fill, per=2):
    fill = list(fill)
    for m in mf:
        k(m)
        for _ in range(per):
            if fill: emit1(k, fill.pop(0))
    for f in fill: emit1(k, f)

WSLOT = 24576; RW = 4; XBASE = RW*WSLOT; XSLOT = 16384; RX = 3

def gemm_setup(k):
    k("v_lshrrev_b32 v28, 3, v0")
    k("v_and_b32 v29, 7, v0")
    k("v_bfe_u32 v26, v28, 1, 1")
    k("s_lshl_b32 s%d, s%d, 1" % (S_T0, S_RH))
    k("v_or_b32 v26, s%d, v26" % S_T0)
    k("v_lshlrev_b32 v26, 1, v26")
    k("v_xor_b32 v26, v26, v29")
    k("s_lshl_b32 s%d, s%d, 3" % (S_T0, S_W))
    k("v_add_u32 v27, s%d, v28" % S_T0)
    k("v_mul_lo_u32 v27, v27, s%d" % S_STRIDE)
    k("v_lshl_add_u32 v%d, v26, 4, v27" % V_WD)
    k("s_lshl_b32 s%d, s%d, 5" % (S_T0, S_W))
    k("v_lshrrev_b32 v26, 1, v28")
    k("v_xor_b32 v27, v26, v29")
    k("v_add_u32 v26, s%d, v28" % S_T0)
    k("v_mul_u32_u24 v26, 1280, v26")
    k("v_lshl_add_u32 v%d, v27, 4, v26" % V_XD)
    k("v_xor_b32 v%d, 64, v%d" % (V_XD+1, V_XD))
    k("v_add_u32 v%d, %d, v%d" % (V_XD+1, 8*1280, V_XD+1))
    k("v_add_u32 v%d, %d, v%d" % (V_XD+2, 16*1280, V_XD))
    k("v_add_u32 v%d, %d, v%d" % (V_XD+3, 16*1280, V_XD+1))
    k("s_mul_i32 s%d, s%d, 6144" % (S_WL, S_W))
    k("s_lshl_b32 s%d, s%d, 12" % (S_XL, S_W))
    k("s_add_u32 s%d, s%d, %d" % (S_XL, S_XL, XBASE))
    k("s_mov_b32 s%d, 0" % S_WOFF)
    k("s_lshl_b32 s%d, s%d, 5" % (S_T3, S_STRIDE))

def touch_setup(k):
    k("v_lshrrev_b32 v26, 2, v0")
    k("v_and_b32 v27, 3, v0")
    k("s_lshl_b32 s%d, s%d, 1" % (S_T0, S_MT))
    k("s_add_u32 s%d, s%d, s%d" % (S_T0, S_T0, S_C))
    k("v_lshlrev_b32 v28, 5, v26")
    k("v_add_u32 v28, s%d, v28" % S_T0)
    k("v_mul_lo_u32 v28, v28, s%d" % S_STRIDE)
    k("v_min_u32 v29, 2, v27")
    k("v_lshl_add_u32 v%d, v29, 7, v28" % V_TW)
    k("s_lshl_b32 s%d, s%d, 4" % (S_T0, S_TY))
    k("s_lshl_b32 s%d, s%d, 2" % (S_T1, S_W))
    k("s_add_u32 s%d, s%d, s%d" % (S_T0, S_T0, S_T1))
    k("v_add_u32 v27, s%d, v27" % S_T0)
    k("v_mul_u32_u24 v27, 1280, v27")
    k("v_lshl_add_u32 v%d, v26, 7, v27" % V_TX)
    k("s_cmp_eq_u32 s%d, 0" % S_RH)
    for i in range(3): k("s_cselect_b32 s%d, s%d, s%d" % (SRD_T+i, SRD_W0+i, SRD_W1+i))
    k("s_mov_b32 s%d, 0x20000" % (SRD_T+3))
def masked(n, t):
    if n >= 16: return t
    return "s_bfm_b64 exec, %d, 0\n%s\ns_mov_b64 exec, -1" % (4*n, t)
def touch_items(stage):
    out = []
    for (st, first, n) in cfg.TW:
        if st == stage:
            out.append(("s_mul_i32 s101, s%d, %d" % (S_STRIDE, 32*first), masked(n, "buffer_load_dword v%d, v%d, s[%d:%d], s101 offen%s" % (V_JUNK, V_TW, SRD_T, SRD_T+3, " nt" if cfg.TNT else "")), "pf"))
    for (st, first, n) in cfg.TX:
        if st == stage:
            out.append((None, masked(n, "buffer_load_dword v%d, v%d, s[%d:%d], 0 offen offset:%d" % (V_JUNK, V_TX, SRD_X, SRD_X+3, first*128)), "pf"))
    return out

def gemm_setup2(k, att):
    npt = 5 if att else 6
    k("v_and_b32 v54, 15, v0")
    k("v_lshrrev_b32 v55, 4, v0")
    k("v_bfe_u32 v26, v54, 1, 3")
    k("v_xor_b32 v26, v26, v55")
    k("s_lshl_b32 s%d, s%d, 13" % (S_T0, S_RH))
    k("s_add_u32 s%d, s%d, %d" % (S_T0, S_T0, XBASE))
    k("v_lshlrev_b32 v27, 7, v54")
    k("v_add_u32 v27, s%d, v27" % S_T0)
    k("v_lshl_add_u32 v%d, v26, 4, v27" % V_XR)
    k("v_xor_b32 v%d, 64, v%d" % (V_XR+1, V_XR))
    k("v_bfe_u32 v26, v0, 2, 2")
    k("v_and_b32 v27, 3, v0")
    k("v_lshrrev_b32 v28, 1, v26")
    k("v_and_b32 v29, 1, v55")
    k("v_lshl_or_b32 v28, v29, 1, v28")
    k("v_lshlrev_b32 v28, 5, v28")
    k("v_mul_u32_u24 v29, 6144, v55")
    k("v_lshl_add_u32 v29, v26, 7, v29")
    if att:
        k("s_mul_i32 s%d, s%d, 160" % (S_T0, S_C))
        k("s_add_u32 s%d, s%d, s%d" % (S_T0, S_T0, S_DELTA))
        k("v_mul_u32_u24 v27, 40, v27")
    else:
        k("s_mul_i32 s%d, s%d, 192" % (S_T0, S_C))
        k("v_lshlrev_b32 v27, 3, v27")
    k("v_add_u32 v27, s%d, v27" % S_T0)
    for p in range(npt):
        k("v_add_u32 v30, %d, v27" % (p * (8 if att else 32)))
        k("v_lshrrev_b32 v31, 7, v30")
        k("v_and_b32 v30, 127, v30")
        k("v_xor_b32 v30, v30, v28")
        k("v_lshl_add_u32 v31, v31, 10, v29")
        k("v_add_u32 v%d, v30, v31" % (V_TA+p))
        k("v_add_u32 v%d, %d, v%d" % (V_TA+6+p, 2*WSLOT, V_TA+p))

def w_dma(s):
    return [("s_add_u32 m0, s%d, %d" % (S_WL, (s % RW)*WSLOT + (seg*3+lc)*1024 - lc*128),
             "buffer_load_dwordx4 v%d, s[%d:%d], s%d offen offset:%d lds" % (V_WD, SRD_W0+4*seg, SRD_W0+4*seg+3, S_WOFF, lc*128), ("W", s))
            for seg in range(2) for lc in range(3)]
def x_dma(u, i):
    return ("s_add_u32 m0, s%d, %d" % (S_XL, (u % RX)*XSLOT + i*1024 - u*128),
            "buffer_load_dwordx4 v%d, s[%d:%d], 0 offen offset:%d lds" % (V_XD+i, SRD_X, SRD_X+3, u*128), ("X", u))
def reads_for(s, npt):
    out = []; b = s & 1
    for rt in range(4):
        out.append("ds_read_b128 %s, v%d offset:%d" % (R(XF0 + (b*4+rt)*4, 4), V_XR + (s & 1), ((s >> 1) % RX)*XSLOT + rt*2048))
    slot = s % RW
    for p in range(npt):
        for seg in range(2):
            for h in range(2):
                out.append("ds_read_b64_tr_b16 %s, v%d offset:%d" % (R(WF0 + (b*12+p*2+seg)*4 + 2*h, 2), V_TA + p + (6 if slot >= 2 else 0), (slot & 1)*WSLOT + seg*3072 + h*512))
    return out
def acc(p, seg, rt): return ACC0 + ((p*2+seg)*4 + rt)*4

def late_setup_items():
    k = K()
    k("s_and_b32 s%d, s2, 7" % S_T1)
    k("s_lshr_b32 s%d, s2, 3" % S_OH)
    if cfg.P2M == 4:
        k("s_lshl_b32 s%d, s%d, 2" % (S_M64, S_T1)); k("s_and_b32 s%d, s%d, 3" % (S_T0, S_OH)); k("s_add_u32 s%d, s%d, s%d" % (S_M64, S_M64, S_T0))
        k("s_lshr_b32 s%d, s%d, 2" % (S_NT, S_OH))
    else:
        k("s_lshr_b32 s%d, s%d, 1" % (S_M64, S_T1)); k("s_lshl_b32 s%d, s%d, 3" % (S_M64, S_M64)); k("s_and_b32 s%d, s%d, 7" % (S_T0, S_OH)); k("s_add_u32 s%d, s%d, s%d" % (S_M64, S_M64, S_T0))
        k("s_and_b32 s%d, s%d, 1" % (S_NT, S_T1)); k("s_lshl_b32 s%d, s%d, 2" % (S_NT, S_NT)); k("s_lshr_b32 s%d, s%d, 3" % (S_T0, S_OH)); k("s_add_u32 s%d, s%d, s%d" % (S_NT, S_NT, S_T0))
    k("s_bfe_u32 s%d, s%d, 0x10001" % (S_T0, S_OH)); k("s_lshl_b32 s%d, s%d, 4" % (S_T0, S_T0))
    k("s_and_b32 s%d, s%d, 1" % (S_T2, S_OH)); k("s_lshl_b32 s%d, s%d, 1" % (S_OMT, S_T2))
    k("s_add_u32 s%d, s%d, s%d" % (S_OMT, S_OMT, S_T0)); k("s_add_u32 s%d, s%d, 12" % (S_OMT, S_OMT))
    k("s_lshl_b32 s%d, s%d, 4" % (S_T0, S_T2)); k("s_add_u32 s%d, s%d, 9" % (S_T0, S_T0))
    k("s_cmp_lt_u32 s%d, 20" % S_OH); k("s_cselect_b32 s%d, s%d, s%d" % (S_OMT, S_T0, S_OMT))
    k("s_add_u32 s%d, s%d, 7" % (S_T0, S_OH))
    k("s_cmp_lt_u32 s%d, 18" % S_OH); k("s_cselect_b32 s%d, s%d, s%d" % (S_OMT, S_T0, S_OMT))
    k("s_cmp_lt_u32 s%d, 9" % S_OH); k("s_cselect_b32 s%d, s%d, s%d" % (S_OMT, S_OH, S_OMT))
    k("s_lshr_b32 s%d, s%d, 4" % (S_OH, S_OMT)); k("s_and_b32 s%d, s%d, 15" % (S_OMT, S_OMT))
    k("s_lshl_b32 s%d, s%d, 1" % (S_T0, S_T1)); k("s_add_u32 s%d, s%d, s%d" % (S_OH, S_OH, S_T0))
    k("s_mul_i32 s%d, s%d, %d" % (S_T0, S_NT, 74*5120))
    srd(k, SRD_B, P_WS, B2_OFF, 74*5120, S_T0)
    k("s_mul_i32 s%d, s%d, 5120" % (S_BB, S_W))
    k("s_add_u32 s%d, s%d, 0x%x" % (S_CNT, P_WS, CNT_OFF))
    k("s_addc_u32 s%d, s%d, 0" % (S_CNT+1, P_WS+1))
    k("v_add_u32 v%d, 4096, v%d" % (V_L16B, V_L16))
    k("s_mov_b32 s%d, %s" % (S_C2, f32(LOG2E))); k("s_mov_b32 s%d, %s" % (S_C2+1, f32(LOG2E)))
    return [t for _, t in k.items]

def dma_queue():
    Q = []
    for st in range(20):
        if st % 2 == 0:
            u = st // 2
            for i in range(4): Q.append((-1 if u < RX else 2*(u-RX)+1, x_dma(u, i), False))
        it = w_dma(st)
        for i, d in enumerate(it): Q.append((-1 if st < RW else st-RW, d, i == len(it)-1))
    return Q
def wadv(k): k("s_add_u32 s%d, s%d, s%d" % (S_WOFF, S_WOFF, S_T3))
def issue_now(k, Q, n):
    for _ in range(n):
        av, it, last = Q.pop(0)
        k(it[0]); k.vm(it[1], it[2])
        if last: wadv(k)

def spread(items, s0, s1):
    out = {}; n = len(items); i = 0
    for s in range(s0, s1):
        c = -(-(n - i) // (s1 - s)); out[s] = items[i:i+c]; i += c
    return out

def gemm_main(k, att, gate, Q, extra, polls, xrd=None, xwait=None, xsetup=None):
    npt = 5 if att else 6
    Q = list(Q)
    if gate:
        for i in range(2):
            k("s_add_u32 m0, s%d, %d" % (S_XL, SPARE - XBASE))
            k.vm("buffer_load_dwordx4 v%d, s[%d:%d], 0 offen offset:%d lds" % (V_L16, SRD_O, SRD_O+3, i*1024), ("W", 0))
    issue_now(k, Q, cfg.N2)
    gemm_setup2(k, att)
    if gate:
        k("s_add_u32 s%d, s%d, %d" % (S_T0, S_XL, SPARE - XBASE))
        k("v_lshrrev_b32 v17, 4, v0")
        k("v_lshlrev_b32 v17, 4, v17")
        k("v_add_u32 v17, s%d, v17" % S_T0)
    for t in late_setup_items(): k(t)
    if xsetup: xsetup(k)
    def rds(s):
        r = reads_for(s, npt)
        if gate: r.append("ds_read_b128 %s, v17 offset:%d" % (R(GF0 + (s & 1)*4, 4), s*64))
        return r
    stamp(k, 2)
    k.wait(vm=[("X", 0), ("W", 0)])
    k("s_barrier")
    stamp(k, 3)
    for r in rds(0): k.lg(r)
    issue_now(k, Q, cfg.N3)
    k.wait(vm=[("W", 1)], lg="all")
    k("s_barrier")
    for s in range(20):
        b = s & 1
        rd = rds(s+1) if s < 19 else []
        if xrd and s in xrd: rd += xrd[s]
        dm = []
        while Q and Q[0][0] <= s and len(dm) < cfg.MAXD: dm.append(Q.pop(0))
        ex = [(0, e, False) for e in extra.get(s, []) + touch_items(s)]
        mix = []
        while dm or ex:
            if dm: mix.append(dm.pop(0))
            if ex and len(ex) >= len(dm): mix.append(ex.pop(0))
        dm = mix
        mf = []
        for p in range(npt):
            for seg in range(2):
                for rt in range(4):
                    a = acc(p, seg, rt)
                    mf.append("v_mfma_f32_16x16x32_bf16 %s, %s, %s, %s" % (R(a,4), R(WF0 + (b*12+p*2+seg)*4, 4), R(XF0 + (b*4+rt)*4, 4), R(a,4) if s else "0"))
        if gate:
            for rt in range(4):
                a = GACC + rt*4
                mf.append("v_mfma_f32_16x16x32_bf16 %s, %s, %s, %s" % (R(a,4), R(GF0 + b*4, 4), R(XF0 + (b*4+rt)*4, 4), R(a,4) if s else "0"))
        nm = len(mf); nd = len(dm)
        at = [int(i * (nm - 3) / max(nd, 1)) for i in range(nd)]
        for i in range(1, nd): at[i] = max(at[i], at[i-1] + 2)
        pend = None
        for m, t in enumerate(mf):
            k(t)
            if rd: k.lg(rd.pop(0))
            if (s+1) in polls and m == nm - 1: poll_issue(k, P_DBG, polls[s+1], ("poll", s+1))
            if pend is not None:
                k.vm(pend[1][1], pend[1][2])
                if pend[2]: wadv(k)
                pend = None
            elif dm and m >= at[nd - len(dm)]:
                pend = dm.pop(0)
                if pend[1][0]: k(pend[1][0])
        assert not rd and not dm and pend is None, (s, rd, dm, pend)
        if s < 19:
            k.wait(vm=[("W", s+2), ("X", (s+2) >> 1)] + (xwait.get(s, []) if xwait else []), lg="all")
        if s in polls: poll_check(k, P_DBG, 16, ("poll", s), sleep=8, barrier=(s == 19))
        if s < 19:
            k("s_barrier")
            if cfg.STG and s % 2 == 1: stamp(k, 17 + s//2)
            if cfg.CYC and s in (5, 13):
                stamp(k, 23 if s == 5 else 24)
                k("s_memtime s[92:93]"); k("s_waitcnt lgkmcnt(0)"); k("v_writelane_b32 v1, s92, %d" % (25 if s == 5 else 31))
    assert not Q
    stamp(k, 4)

def ffn_setup(k):
    k("s_lshl_b32 s75, s%d, 1" % S_MT)
    k("s_add_u32 s75, s75, s%d" % S_RH)
    k("s_mul_i32 s75, s75, 74")
    k("s_mul_i32 s76, s%d, 6" % S_TY)
    k("s_add_u32 s75, s75, s76")
    k("s_mul_i32 s76, s%d, 3" % S_C)
    k("s_add_u32 s75, s75, s76")
    k("s_add_u32 s75, s75, 20")
    k("s_lshl_b32 s75, s75, 12")
    k("s_mul_i32 s%d, s%d, %d" % (S_SIG, S_MT, cfg.CS))
    srd(k, SRD_O, P_WS, A2_OFF, A2_SZ)

def ffn_role(k, Q):
    extra = spread(b_items(list(range(32)) + list(range(62, 70))), cfg.PS1, 20)
    gemm_main(k, False, False, Q, extra, {cfg.PS1-1: D_S1, 19: D_S3}, xsetup=ffn_setup)
    fd = Feed(k, b_items(range(32, 62)) + bo_items())
    per, last = cfg.FFE
    n = 0
    for ks in range(3):
        for rt in range(4):
            T = 6 + (n & 1)*8; O = 22 + (n & 1)*4; n += 1
            if O & 3: O = (24, 28)[(n-1) & 1] - 0
            fe = lambda i: fd.emit(1) if (n <= last and i < per) else None
            G = [acc(2*ks+j, 0, rt) for j in range(2)]; U = [acc(2*ks+j, 1, rt) for j in range(2)]
            O = U[0]
            prs = [(j, h) for j in range(2) for h in range(2)]
            for i, (j, h) in enumerate(prs):
                k("v_pk_mul_f32 %s, %s, s[%d:%d] neg_lo:[0,1] neg_hi:[0,1]" % (vr(T+2*i,2), vr(G[j]+2*h,2), S_C2, S_C2+1))
            fe(0)
            for i in range(8): k("v_exp_f32 v%d, v%d" % (T+i, T+i))
            fe(2)
            for i, (j, h) in enumerate(prs):
                k("v_pk_mul_f32 %s, %s, %s" % (vr(G[j]+2*h,2), vr(G[j]+2*h,2), vr(U[j]+2*h,2)))
            for i in range(4): k("v_pk_add_f32 %s, %s, 1.0 op_sel_hi:[1,0]" % (vr(T+2*i,2), vr(T+2*i,2)))
            fe(1)
            for i in range(8): k("v_rcp_f32 v%d, v%d" % (T+i, T+i))
            fe(3)
            for i, (j, h) in enumerate(prs):
                k("v_pk_mul_f32 %s, %s, %s" % (vr(T+2*i,2), vr(G[j]+2*h,2), vr(T+2*i,2)))
            for i in range(4): k("v_cvt_pk_bf16_f32 v%d, v%d, v%d" % (O+i, T+2*i, T+2*i+1))
            k.vm("buffer_store_dwordx4 %s, v%d, s[%d:%d], s75 offen offset:%d%s" % (vr(O,4), V_L16, SRD_O, SRD_O+3, rt*1024, SC), "st")
        if ks < 2: k("s_add_u32 s75, s75, 4096")
    stamp(k, 26)
    def presig():
        k.wait(vm="st")
        stamp(k, 5)
        signal(k, S_CNT, "s%d" % S_SIG)
    return presig, fd.q

def phi_dma(seg):
    pre = "s_add_u32 s%d, s%d, s81\ns_addc_u32 s%d, s%d, 0\n" % (SRD_P, SRD_P, SRD_P+1, SRD_P+1) if seg else ""
    return [((pre if i == 0 else "") + "s_add_u32 m0, s%d, %d" % (S_XL, XSLOT if seg else SPARE - XBASE),
             "buffer_load_dwordx4 v%d, s[%d:%d], 0 offen offset:%d lds" % (V_L16, SRD_P, SRD_P+3, i*1024), ("P", seg)) for i in range(4)]
def phireg(seg, to, s):
    i = s*5 + to
    if seg == 1: return 256 + 48 + 4*i if i < 10 else 256 + 108 + 4*(i-10)
    return 256 + 4*i if i < 12 else 256 + 96 + 4*(i-12)
V_PHA = 23
def phi_reads(seg):
    out = []
    for s in range(3):
        for to in range(5):
            for h in range(2):
                d = phireg(seg, to, s) + 2*h
                b = 0 if seg else SPARE - XBASE - XSLOT
                if s == 2 and h == 1: out.append("ds_read_b64_tr_b16 %s, v26 offset:%d" % (R(d,2), b))
                else: out.append("ds_read_b64_tr_b16 %s, v%d offset:%d" % (R(d,2), V_PHA, b + (8*s+4*h)*40 + 8*to))
    return out
def cvt_in(seg, rt, B):
    out = []
    for t in range(5):
        a = acc(t, seg, rt)
        out.append("v_cvt_pk_bf16_f32 v%d, v%d, v%d" % (B+2*t, a, a+1))
        out.append("v_cvt_pk_bf16_f32 v%d, v%d, v%d" % (B+2*t+1, a+2, a+3))
    return out
def phi_mf(seg, rt, B):
    return ["v_mfma_f32_16x16x32_bf16 %s, %s, %s, %s" % (vr(acc(to,seg,rt),4), R(phireg(seg, to, s),4), vr(B+4*s,4), vr(acc(to,seg,rt),4) if s else "0")
            for s in range(3) for to in range(5)]

PKRS = 352; VRS = 224; PKSZ = 128*PKRS; VB = 2*PKSZ; VSZ = 128*VRS
V_E0, V_E1, V_E2, V_E3, V_E4, V_E5, V_E6 = 27, 28, 29, 30, 60, 61, 62
def att_common_setup(k):
    k("v_lshrrev_b32 v50, 4, v0")
    k("v_and_b32 v51, 15, v0")
    k("v_bfe_u32 v52, v0, 2, 2")
    k("v_and_b32 v53, 3, v0")
    k("v_mul_u32_u24 v48, 800, v50")
    k("v_mad_u32_u24 v48, v52, 40, v48")
    k("v_cmp_eq_u32 vcc, v50, v53")
    k("v_mov_b32 v49, 3200")
    k("v_cndmask_b32 v48, v49, v48, vcc")
    k("s_add_u32 s%d, s%d, %d" % (S_T2, S_XL, XSLOT))
    k("v_add_u32 v%d, s%d, v48" % (V_PHA, S_T2))
    k("v_add_u32 v26, s%d, v49" % S_T2)
def kv_setup(k):
    k("s_add_u32 s%d, s%d, %d" % (S_SIG, S_TY, C_K - 9))
    k("s_mul_i32 s%d, s%d, %d" % (S_SIG, S_SIG, cfg.CS))
    k("s_lshl_b32 s%d, s%d, 6" % (S_T0, S_RH))
    k("v_add_u32 v48, s%d, v51" % S_T0)
    k("s_mul_i32 s%d, s%d, %d" % (S_T0, S_C, PKSZ))
    k("v_mul_u32_u24 v%d, %d, v48" % (V_E0, PKRS))
    k("v_mul_u32_u24 v49, 80, v50")
    k("v_add3_u32 v%d, v%d, v49, s%d" % (V_E0, V_E0, S_T0))
    k("s_mul_i32 s%d, s%d, %d" % (S_T1, S_C, VSZ))
    k("s_add_u32 s%d, s%d, %d" % (S_T1, S_T1, VB))
    k("v_mul_u32_u24 v%d, %d, v48" % (V_E1, VRS))
    k("v_mul_u32_u24 v49, 48, v50")
    k("v_add3_u32 v%d, v%d, v49, s%d" % (V_E1, V_E1, S_T1))
    k("v_lshrrev_b32 v48, 2, v0")
    k("v_lshlrev_b32 v49, 3, v53")
    k("s_mul_i32 s%d, s%d, 160" % (S_T2, S_RH))
    k("s_add_u32 s%d, s%d, s%d" % (S_T0, S_T0, S_T2))
    k("v_mul_u32_u24 v%d, %d, v48" % (V_E2, PKRS))
    k("v_add3_u32 v%d, v%d, v49, s%d" % (V_E2, V_E2, S_T0))
    k("s_mul_i32 s%d, s%d, 96" % (S_T2, S_RH))
    k("s_add_u32 s%d, s%d, s%d" % (S_T1, S_T1, S_T2))
    k("v_mul_u32_u24 v%d, %d, v48" % (V_E3, VRS))
    k("v_add3_u32 v%d, v%d, v49, s%d" % (V_E3, V_E3, S_T1))
    k("s_add_u32 s%d, s%d, %d" % (S_T2, S_XL, SPARE - XBASE))
    k("v_mul_u32_u24 v48, 80, v51")
    k("v_lshl_add_u32 v48, v50, 3, v48")
    k("v_add_u32 v%d, s%d, v48" % (V_E5, S_T2))
    k("v_add_u32 v%d, s%d, v%d" % (V_E6, S_T2, V_L16))
    k("v_mov_b32 v48, 0x7fffffff")
    k("v_cmp_gt_u32 vcc, 32, v0")
    k("v_cndmask_b32 v%d, v48, v%d, vcc" % (V_E4, V_L16))
    k("s_lshl_b32 s78, s79, 1")
    k("s_add_u32 s78, s78, s%d" % S_RH)
    k("s_lshl_b32 s78, s78, 4")
    k("s_add_u32 s78, s78, s%d" % S_MT)
    k("s_mul_i32 s78, s78, %d" % KVPS)
    k("v_cmp_gt_u32 s[72:73], 2, v50")
    k("v_cmp_gt_u32 s[74:75], 5, v51")
    k("s_and_b64 s[76:77], s[72:73], s[74:75]")
    srd(k, SRD_O, P_WS, KVP_OFF, KVP_SZ)
    for r in (42, 43, 54, 55): k("v_mov_b32 v%d, 0" % r)
def q_setup(k):
    k("s_mov_b32 s%d, 81920" % S_T0)
    k("v_mul_lo_u32 v48, v50, s%d" % S_T0)
    k("v_lshl_add_u32 v%d, v51, 4, v48" % V_E0)
    k("v_lshl_add_u32 v%d, v51, 3, v48" % V_E1)
    k("v_lshlrev_b32 v%d, 2, v0" % V_E2)
    k("s_mul_i32 s%d, s79, %d" % (S_T1, 4*81920))
    k("s_lshl_b32 s%d, s%d, 1" % (S_T0, S_MT))
    k("s_add_u32 s%d, s%d, s%d" % (S_T0, S_T0, S_RH))
    k("s_lshl_b32 s75, s%d, 10" % S_T0)
    k("s_add_u32 s75, s75, s%d" % S_T1)
    k("s_add_u32 s76, s75, 32768")
    k("s_lshl_b32 s77, s%d, 9" % S_T0)
    k("s_add_u32 s77, s77, s%d" % S_T1)
    k("s_add_u32 s77, s77, 65536")
    k("s_lshl_b32 s78, s%d, 8" % S_T0)
    k("s_add_u32 s78, s78, %d" % (G_OFF - PQ_OFF))
    k("s_add_u32 s%d, s%d, %d" % (S_SIG, S_MT, C_Q))
    k("s_mul_i32 s%d, s%d, %d" % (S_SIG, S_SIG, cfg.CS))
    srd(k, SRD_O, P_WS, PQ_OFF, G_OFF + G_SZ - PQ_OFF)
    for r in (42, 43, 54, 55): k("v_mov_b32 v%d, 0" % r)

def softmax_pm(k, P, E, T, O, fd=None, mf=None, side=None):
    def fe(n=1):
        if fd: fd.emit(n)
    mf = list(mf or []); side = list(side or [])
    v = [p + i for p in P for i in range(2)]
    k("v_max3_f32 v%d, v%d, v%d, v%d" % (T, v[0], v[1], v[2]))
    k("v_min3_f32 v%d, v%d, v%d, v%d" % (T+2, v[0], v[1], v[2]))
    k("v_max3_f32 v%d, v%d, v%d, v%d" % (T+1, v[3], v[4], v[5]))
    k("v_min3_f32 v%d, v%d, v%d, v%d" % (T+3, v[3], v[4], v[5]))
    for n, i in enumerate(range(6, 20, 2)):
        c = n & 1
        k("v_max3_f32 v%d, v%d, v%d, v%d" % (T+c, T+c, v[i], v[i+1]))
        k("v_min3_f32 v%d, v%d, v%d, v%d" % (T+2+c, T+2+c, v[i], v[i+1]))
    fe()
    k("v_max_f32 v%d, v%d, v%d" % (T, T, T+1))
    k("v_min_f32 v%d, v%d, v%d" % (T+2, T+2, T+3))
    k("v_mul_f32 v%d, %s, v%d" % (T, f32(-LOG2E), T))
    k("v_mul_f32 v%d, %s, v%d" % (T+2, f32(LOG2E), T+2))
    for i, p in enumerate(P):
        k("v_pk_fma_f32 %s, %s, s[%d:%d], %s op_sel_hi:[1,1,0]" % (vr(E+2*i,2), vr(p,2), S_C2, S_C2+1, vr(T,2)))
    fe()
    for i, p in enumerate(P):
        k("v_pk_fma_f32 %s, %s, s[%d:%d], %s op_sel_hi:[1,1,0] neg_lo:[0,1,0] neg_hi:[0,1,0]" % (vr(p,2), vr(p,2), S_C2, S_C2+1, vr(T+2,2)))
    ex = [E+i for i in range(20)] + v
    for i, x in enumerate(ex):
        if i % 2 == 0:
            if mf: k(mf.pop(0))
            if side: k.lg(*side.pop(0))
        if i % 12 == 5: fe()
        k("v_exp_f32 v%d, v%d" % (x, x))
    assert not mf and not side
    Ep = [E+2*i for i in range(10)]
    k("v_pk_add_f32 %s, %s, %s" % (vr(T+4,2), vr(Ep[0],2), vr(Ep[1],2)))
    k("v_pk_add_f32 %s, %s, %s" % (vr(T,2), vr(Ep[2],2), vr(Ep[3],2)))
    k("v_pk_add_f32 %s, %s, %s" % (vr(T+6,2), vr(P[0],2), vr(P[1],2)))
    k("v_pk_add_f32 %s, %s, %s" % (vr(T+2,2), vr(P[2],2), vr(P[3],2)))
    for i in range(4, 10, 2):
        k("v_pk_add_f32 %s, %s, %s" % (vr(T+4,2), vr(T+4,2), vr(Ep[i],2)))
        k("v_pk_add_f32 %s, %s, %s" % (vr(T,2), vr(T,2), vr(Ep[i+1],2)))
        k("v_pk_add_f32 %s, %s, %s" % (vr(T+6,2), vr(T+6,2), vr(P[i],2)))
        k("v_pk_add_f32 %s, %s, %s" % (vr(T+2,2), vr(T+2,2), vr(P[i+1],2)))
    k("v_pk_add_f32 %s, %s, %s" % (vr(T+4,2), vr(T+4,2), vr(T,2)))
    k("v_pk_add_f32 %s, %s, %s" % (vr(T+6,2), vr(T+6,2), vr(T+2,2)))
    fe()
    k("v_add_f32 v%d, v%d, v%d" % (T+4, T+4, T+5))
    k("v_add_f32 v%d, v%d, v%d" % (T+6, T+6, T+7))
    k("v_rcp_f32 v%d, v%d" % (T+4, T+4))
    k("v_rcp_f32 v%d, v%d" % (T+6, T+6))
    for i in range(10): k("v_pk_mul_f32 %s, %s, %s op_sel_hi:[1,0]" % (vr(Ep[i],2), vr(Ep[i],2), vr(T+4,2)))
    fe()
    for i in range(10): k("v_pk_mul_f32 %s, %s, %s op_sel_hi:[1,0]" % (vr(P[i],2), vr(P[i],2), vr(T+6,2)))
    for i in range(10): k("v_cvt_pk_bf16_f32 v%d, v%d, v%d" % (O+i, Ep[i], Ep[i]+1))
    fe()
    for i in range(10): k("v_cvt_pk_bf16_f32 v%d, v%d, v%d" % (O+10+i, P[i], P[i]+1))

def att_extra(two):
    extra = spread(b_items(range(cfg.NBA)), cfg.PS1, 20)
    extra[3] = phi_dma(0)
    extra[15] = phi_dma(1)
    return extra

def att_setup(k):
    d = k.newlabel("Lq"); e = k.newlabel("Le")
    att_common_setup(k)
    k("v_mov_b32 v%d, 0x7fffffff" % V_E4)
    k("s_cmp_ge_u32 s%d, 13" % S_TY); k("s_cbranch_scc1 %s" % d)
    kv_setup(k)
    k("s_branch %s" % e)
    k.label(d)
    q_setup(k)
    k.label(e)
def att_loop(k, Q):
    gemm_main(k, True, False, Q, att_extra(True), {cfg.PS1-1: D_S1}, xrd={19: phi_reads(0)}, xwait={18: [("P", 0)]}, xsetup=att_setup)

def q_role(k):
    k("s_nop 7")
    k.wait(vm=("P", 1))
    for t in cvt_in(0, 0, 32): k(t)
    rd1 = [("lg", r, "ph1") for r in phi_reads(1)]
    def outs(u):
        seg, rt = u >> 2, u & 3
        O = (240, 8)[u & 1]
        f = cvt_in(seg, rt, O)
        f.insert(4, ("vm", "buffer_store_dwordx4 %s, v%d, s[%d:%d], s75 offen offset:%d%s" % (vr(O,4), V_E0, SRD_O, SRD_O+3, rt*256, SC), "st"))
        f.insert(9, ("vm", "buffer_store_dwordx4 %s, v%d, s[%d:%d], s76 offen offset:%d%s" % (vr(O+4,4), V_E0, SRD_O, SRD_O+3, rt*256, SC), "st"))
        f.append(("vm", "buffer_store_dwordx2 %s, v%d, s[%d:%d], s77 offen offset:%d%s" % (vr(O+8,2), V_E1, SRD_O, SRD_O+3, rt*128, SC), "st"))
        if u == 3: f += ["s_add_u32 s%d, s%d, %d" % (x, x, 16*81920) for x in (75, 76, 77)]
        return f
    k.wait(lg="all")
    for u in range(8):
        seg, rt = u >> 2, u & 3
        fill = []
        if u < 7: fill += cvt_in((u+1) >> 2, (u+1) & 3, 32 + ((u+1) & 1)*12)
        if u == 0: fill += rd1[:14]
        elif u == 1: fill += outs(0) + rd1[14:21]
        elif u == 2: fill += outs(1) + rd1[21:28]
        elif u == 3: fill += rd1[28:] + outs(2)
        else: fill += outs(u-1)
        if u == 4: k.wait(lg="all")
        weave(k, phi_mf(seg, rt, 32 + (u & 1)*12), fill)
    weave(k, [], outs(7))
    k.wait(vm="st")
    stamp(k, 5)
    signal(k, S_CNT, "s%d" % S_SIG)

def kv_role(k):
    EREG = 6; TREG = 244; O = 224
    for t in cvt_in(0, 0, 32): k(t)
    k.wait(lg="all")
    weave(k, phi_mf(0, 0, 32), cvt_in(0, 1, 44))
    if not cfg.STG: stamp(k, 17)
    def vout(rt):
        q = [acc(t, 1, rt) + i for t in range(5) for i in range(4)]
        f = ["v_cvt_pk_bf16_f32 v%d, v%d, v%d" % (q[i], q[2*i], q[2*i+1]) for i in range(10)]
        f += ["v_mov_b32 v%d, 0x3f80" % q[10], "v_mov_b32 v%d, 0" % q[11]]
        w = [("ds_write_b128 v%d, %s offset:%d" % (V_E1, vr(q[4*i],4), rt*16*VRS + 16*i), "vw") for i in range(3)]
        return f, w
    def vfr(n, bt): return acc((n*2+bt) >> 2, 1, (n*2+bt) & 3)
    vreads = []
    for n in range(8):
        j, ks = n >> 2, n & 3
        for bt in range(2):
            for h in range(2):
                vreads.append(("ds_read_b64_tr_b16 %s, v%d offset:%d" % (vr(vfr(n,bt)+2*h,2), V_E3, (32*ks+16*h)*VRS + j*48 + bt*32), "vf"))
    fd = Feed(k, [])
    for rt in range(4):
        P = [acc(t, 0, rt) + 2*h for t in range(5) for h in range(2)]
        mf = phi_mf(0, rt+1, 32 + ((rt+1) & 1)*12) if rt < 3 else []
        if rt == 3: poll_issue(k, P_DBG, D_S3, "s3")
        if rt == cfg.KVB0: fd.q += b_items(range(32, 47))
        if rt == 3: fd.q += b_items(range(47, 62))
        side = []
        if rt < 2:
            for r in (2*rt, 2*rt+1):
                f, w = vout(r)
                for t in f: k(t)
                side += w
        else:
            if rt == 2: k.wait(lg="vw"); k("s_barrier")
            side = vreads[(rt-2)*16:(rt-1)*16]
        softmax_pm(k, P, EREG, TREG, O, fd, mf, side)
        for i in range(5):
            k.lg("ds_write_b128 v%d, %s offset:%d" % (V_E0, vr(O+4*i,4), rt*16*PKRS + 16*i), ("pw", rt))
        if rt < 2:
            for t in cvt_in(0, rt+2, 32 + (rt & 1)*12): k(t)
        if not cfg.STG: stamp(k, 18+rt)
    k.wait(lg="all")
    k("s_barrier")
    if not cfg.STG: stamp(k, 22)
    KAQ = [32, 36, 40, 44, 48, 52, 224, 228, 232, 236, 240, 244]
    def pfr(n, ft): return acc(((n % 6)*3+ft) >> 2, 0, ((n % 6)*3+ft) & 3)
    def rd(n):
        j, ks = n >> 2, n & 3
        return [("lg", "ds_read_b64_tr_b16 %s, v%d offset:%d" % (vr(pfr(n,ft)+2*h,2), V_E2, (32*ks+16*h)*PKRS + j*80 + ft*32), ("f", n)) for ft in range(3) for h in range(2)]
    def pack(jj):
        f = []
        for ft in range(3):
            for bt in range(2):
                a = KAQ[(jj*3+ft)*2+bt]
                f += ["v_cvt_pk_bf16_f32 v%d, v%d, v%d" % (a, a, a+1), "v_cvt_pk_bf16_f32 v%d, v%d, v%d" % (a+1, a+2, a+3)]
                mask = [[None, "s[74:75]"], [None, "s[74:75]"], ["s[72:73]", "s[76:77]"]][ft][bt]
                w = "ds_write_b64 v%d, %s offset:%d" % (V_E5, vr(a,2), jj*1680 + bt*1280 + ft*32)
                if mask: w = "s_mov_b64 exec, %s\n%s\ns_mov_b64 exec, -1" % (mask, w)
                f.append(("lg", w, "cw"))
        return f
    weave(k, [], rd(0) + rd(1))
    pk0 = pack(0)
    for n in range(8):
        j, ks = n >> 2, n & 3
        k.wait(lg=("f", n))
        mf = []
        for ft in range(3):
            for bt in range(2):
                a = KAQ[(j*3+ft)*2+bt]
                mf.append("v_mfma_f32_16x16x32_bf16 %s, %s, %s, %s" % (vr(a,4), vr(pfr(n,ft),4), vr(vfr(n,bt),4), vr(a,4) if ks else "0"))
        fill = rd(n+2) if n < 6 else []
        if n < 4: fill.append(lambda: fd.emit(1))
        if n >= 5: fill += pk0[(n-5)*6:(n-4)*6]
        weave(k, mf, fill)
    weave(k, [], pack(1))
    k.wait(lg="all")
    for i in range(4): k.lg("ds_read_b128 %s, v%d offset:%d" % (vr(64+4*i,4), V_E6, i*1024), ("cr", i))
    for i in range(4):
        k.wait(lg=("cr", i))
        k.vm("buffer_store_dwordx4 %s, v%d, s[%d:%d], s78 offen offset:%d%s" % (vr(64+4*i,4), V_L16 if i < 3 else V_E4, SRD_O, SRD_O+3, i*1024, SC), "st")
    stamp(k, 26)
    k.wait(vm="st")
    poll_check(k, P_DBG, 16, "s3", sleep=8, barrier=False)
    stamp(k, 5)
    signal(k, S_CNT, "s%d" % S_SIG)
    fd.drain()

def aux_role(k):
    NSL = 9
    order = [("d", i) for i in range(9)] + [("o", i) for i in range(4)]
    NU = len(order)
    k("s_mov_b32 s%d, 1280" % S_STRIDE)
    k("s_lshl_b32 s75, s%d, 2" % S_MT)
    k("s_add_u32 s75, s75, s%d" % S_W)
    k("s_mul_i32 s76, s75, 205"); k("s_lshr_b32 s76, s76, 11")
    k("s_mul_i32 s77, s76, 10"); k("s_sub_u32 s77, s75, s77")
    k("s_cmp_ge_u32 s76, 6")
    k("s_cselect_b32 s78, 0x4000000, 0")
    k("s_mul_i32 s79, s76, %d" % (32*1280))
    k("s_lshl_b32 s80, s77, 7")
    k("s_add_u32 s79, s79, s80")
    k("s_add_u32 s79, s79, s78")
    k("v_lshrrev_b32 v24, 3, v0"); k("v_and_b32 v25, 7, v0")
    k("v_and_b32 v26, 6, v24")
    k("v_xor_b32 v26, v26, v25")
    k("v_lshlrev_b32 v26, 4, v26")
    k("v_mad_u32_u24 v5, v24, s%d, v26" % S_STRIDE)
    for i in range(1, 4): k("v_add_u32 v%d, %d, v5" % (5+i, i*8*1280))
    k("s_mul_i32 s%d, s%d, %d" % (S_WL, S_W, NSL*4096))
    k("s_waitcnt lgkmcnt(0)")
    srd(k, SRD_W1, P_WD, 0, 1728*1280)
    def load(n):
        kind, i = order[n]
        sg, vb = (SRD_W1, 5) if kind == "d" else (SRD_W0, 12)
        k("s_add_u32 s81, s79, %d" % (i*6*32*1280))
        for j in range(4):
            k("s_add_u32 m0, s%d, %d" % (S_WL, (n % NSL)*4096 + j*1024))
            k.vm("buffer_load_dwordx4 v%d, s[%d:%d], s81 offen nt lds" % (vb+j, sg, sg+3), ("u", n))
    D = cfg.AUXD
    for n in range(D): load(n)
    srd(k, SRD_W0, P_WO, 0, 640*1280)
    k("v_lshrrev_b32 v27, 2, v24"); k("v_and_b32 v28, 3, v24")
    k("v_lshl_add_u32 v27, v27, 3, v28")
    k("v_mad_u32_u24 v12, v27, s%d, v26" % S_STRIDE)
    for i in range(1, 4): k("v_add_u32 v%d, %d, v12" % (12+i, (16*(i&1) + 4*(i>>1))*1280))
    srd(k, SRD_O, P_WS, B2_OFF, B2_SZ)
    for t in late_setup_items(): k(t)
    k("s_cmp_eq_u32 s%d, 0" % S_MT)
    k("s_cselect_b32 s%d, %d, 0" % (S_T0, 64*cfg.CS))
    srd(k, 96, P_WS, CNT_OFF, "s%d" % S_T0)
    for i in range(4): k("v_mov_b32 v%d, 0" % (56+i))
    k("s_mul_i32 s%d, s%d, %d" % (S_T0, S_W, 16*cfg.CS))
    k("v_mul_u32_u24 v60, %d, v24" % cfg.CS); k("v_lshl_add_u32 v60, v25, 4, v60")
    for i in range(2):
        k.vm("buffer_store_dwordx4 v[56:59], v60, s[96:99], s%d offen%s" % (S_T0, SC), ("st", 0))
        k("s_add_u32 s%d, s%d, %d" % (S_T0, S_T0, 8*cfg.CS))
    k("v_lshrrev_b32 v24, 2, v0")
    k("v_bfe_u32 v25, v24, 1, 2")
    k("v_and_b32 v26, 3, v0")
    k("v_lshlrev_b32 v24, 7, v24")
    k("v_lshl_add_u32 v24, v26, 3, v24")
    k("v_add_u32 v24, s%d, v24" % S_WL)
    for b in range(4):
        k("v_xor_b32 v26, %d, v25" % b)
        k("v_lshl_add_u32 v%d, v26, 5, v24" % (20+b))
    for b in range(4):
        k("s_lshl_b32 s72, s77, 2"); k("s_add_u32 s72, s72, %d" % b)
        k("s_mul_i32 s73, s72, 205"); k("s_lshr_b32 s73, s73, 10")
        k("s_mul_i32 s74, s73, 5"); k("s_sub_u32 s72, s72, s74")
        k("s_mul_i32 s73, s73, 74"); k("s_add_u32 s73, s73, s76")
        k("s_mul_i32 s73, s73, 5"); k("s_add_u32 s73, s73, s72")
        k("s_lshl_b32 s73, s73, 10")
        k("s_add_u32 s%d, s73, s78" % (64+b))
    k("s_cmp_lt_u32 s76, 2")
    k("s_cselect_b32 s82, %d, 0x4000000" % (18*5120) if False else "s_cselect_b32 s82, 0, 0x4000000")
    stamp(k, 1)
    for n in range(NU):
        kind, i = order[n]
        k.wait(vm=("u", n))
        F = 64 + (n % 4)*16
        for b in range(4):
            for h in range(2):
                k.lg("ds_read_b64_tr_b16 %s, v%d offset:%d" % (vr(F+4*b+2*h,2), 20+b, (n % NSL)*4096 + h*2048))
        off = ((20 if kind == "d" else 0) + 6*i)*5120
        for b in range(4):
            k("s_add_u32 s%d, s%d, %d" % (72+b, 64+b, off))
            if kind == "o" and i == 3: k("s_add_u32 s%d, s%d, s82" % (72+b, 72+b))
        k.wait(lg="all")
        for b in range(4):
            k.vm("buffer_store_dwordx4 %s, v%d, s[%d:%d], s%d offen%s" % (vr(F+4*b,4), V_L16, SRD_O, SRD_O+3, 72+b, SC), ("st", n))
        if n + D < NU: load(n + D)
        if n == 9:
            k.wait(vm=("st", 8)); signal(k, P_DBG, D_S1); stamp(k, 2)
    k.wait(vm="all")
    signal(k, P_DBG, D_S3)
    stamp(k, 4)
    k("s_mul_i32 s%d, s%d, %d" % (S_T0, S_MT, 128*1280))
    srd(k, SRD_X, P_X, 0, 128*1280, S_T0)
    srd(k, SRD_P, P_GW, 0, 1280)
    srd(k, SRD_W0, P_WS, G_OFF, G_SZ)
    k("v_and_b32 v24, 15, v0"); k("v_lshrrev_b32 v25, 4, v0")
    k("v_lshlrev_b32 v26, 4, v24")
    for j in range(5): k.vm("buffer_load_dwordx4 %s, v26, s[%d:%d], 0 offen offset:%d" % (vr(72+4*j,4), SRD_P, SRD_P+3, 256*j), "gw")
    k("s_lshl_b32 s76, s%d, 5" % S_W)
    k("v_lshlrev_b32 v27, 3, v25"); k("v_add_u32 v27, s76, v27")
    k("v_mul_u32_u24 v27, 1280, v27")
    k("v_add_u32 v27, v27, v26")
    k("s_mov_b32 s74, 0")
    for it in range(8):
        for j in range(5): k.vm("buffer_load_dwordx4 %s, v27, s[%d:%d], s74 offen offset:%d" % (vr(96+it*20+4*j,4), SRD_X, SRD_X+3, 256*j), ("gx", it))
        k("s_add_u32 s74, s74, 1280")
    poll_issue(k, P_DBG, D_S3, "s3")
    k("v_mov_b32 v29, 0")
    for it in range(8):
        k.wait(vm=("gx", it))
        k("v_mov_b32 v30, 0")
        for j in range(20): k("v_dot2c_f32_bf16 v30, v%d, v%d" % (96+it*20+j, 72+j))
        k("s_nop 3")
        for sh in (8, 4, 2, 1): k("v_add_f32_dpp v30, v30, v30 row_ror:%d row_mask:0xf bank_mask:0xf" % sh)
        k("v_cmp_eq_u32 vcc, %d, v24" % it)
        k("v_cndmask_b32 v29, v29, v30, vcc")
    k("v_mul_f32 v29, %s, v29" % f32(-LOG2E))
    k("v_exp_f32 v29, v29")
    k("v_add_f32 v29, 1.0, v29")
    k("v_rcp_f32 v29, v29")
    k("v_lshl_add_u32 v28, v25, 3, v24"); k("v_lshlrev_b32 v28, 2, v28")
    k("v_mov_b32 v30, 0x7fffffff")
    k("v_cmp_gt_u32 vcc, 8, v24")
    k("v_cndmask_b32 v28, v30, v28, vcc")
    k("s_lshl_b32 s74, s%d, 9" % S_MT); k("s_lshl_b32 s76, s%d, 7" % S_W); k("s_add_u32 s74, s74, s76")
    k.vm("buffer_store_dword v29, v28, s[%d:%d], s74 offen%s" % (SRD_W0, SRD_W0+3, SC), "gs")
    poll_check(k, P_DBG, 16, "s3", sleep=32, barrier=False)
    k.wait(vm="gs")
    k("s_add_u32 s74, s%d, %d" % (S_MT, C_Q)); k("s_mul_i32 s74, s74, %d" % cfg.CS)
    signal(k, S_CNT, "s74")
    stamp(k, 5)
    it = b_items(range(70)) + bo_items()[:15]
    fd = Feed(k, it)
    for i in range(len(it)):
        fd.emit(1)
        k("s_waitcnt vmcnt(%d)" % cfg.AUXT)

def pack_inplace(v, E):
    out = ["v_cvt_pk_bf16_f32 v%d, v%d, v%d" % (v[10+i], v[2*i], v[2*i+1]) for i in range(9, -1, -1)]
    out += ["v_cvt_pk_bf16_f32 v%d, v%d, v%d" % (v[i], E+2*i, E+2*i+1) for i in range(10)]
    return out
def minmax(v, T):
    out = ["v_max3_f32 v%d, v%d, v%d, v%d" % (T, v[0], v[1], v[2]), "v_min3_f32 v%d, v%d, v%d, v%d" % (T+2, v[0], v[1], v[2]),
           "v_max3_f32 v%d, v%d, v%d, v%d" % (T+1, v[3], v[4], v[5]), "v_min3_f32 v%d, v%d, v%d, v%d" % (T+3, v[3], v[4], v[5])]
    for n, i in enumerate(range(6, 20, 2)):
        c = n & 1
        out += ["v_max3_f32 v%d, v%d, v%d, v%d" % (T+c, T+c, v[i], v[i+1]), "v_min3_f32 v%d, v%d, v%d, v%d" % (T+2+c, T+2+c, v[i], v[i+1])]
    out += ["v_max_f32 v%d, v%d, v%d" % (T, T, T+1), "v_min_f32 v%d, v%d, v%d" % (T+2, T+2, T+3),
            "v_mul_f32 v%d, %s, v%d" % (T, f32(-LOG2E), T), "v_mul_f32 v%d, %s, v%d" % (T+2, f32(LOG2E), T+2)]
    return out
def softmax_scalar(v, E, T):
    o = [(1, t) for t in minmax(v, T)]
    for i in range(20): o.append((1, "v_fma_f32 v%d, v%d, s%d, v%d" % (E+i, v[i], S_C2, T)))
    for i in range(20): o.append((1, "v_fma_f32 v%d, -v%d, s%d, v%d" % (v[i], v[i], S_C2, T+2)))
    for x in [E+i for i in range(20)] + v: o.append((2, "v_exp_f32 v%d, v%d" % (x, x)))
    e = [E+i for i in range(20)]
    for c, (src, d) in enumerate(((e, T), (v, T+2))):
        o += [(1, "v_add_f32 v%d, v%d, v%d" % (d, src[0], src[1])), (1, "v_add_f32 v%d, v%d, v%d" % (d+1, src[2], src[3]))]
    for i in range(4, 20, 2):
        for src, d in ((e, T), (v, T+2)):
            o += [(1, "v_add_f32 v%d, v%d, v%d" % (d, d, src[i])), (1, "v_add_f32 v%d, v%d, v%d" % (d+1, d+1, src[i+1]))]
    o += [(1, "v_add_f32 v%d, v%d, v%d" % (T, T, T+1)), (1, "v_add_f32 v%d, v%d, v%d" % (T+2, T+2, T+3)),
          (2, "v_rcp_f32 v%d, v%d" % (T, T)), (2, "v_rcp_f32 v%d, v%d" % (T+2, T+2))]
    for x in e: o.append((1, "v_mul_f32 v%d, v%d, v%d" % (x, x, T)))
    for x in v: o.append((1, "v_mul_f32 v%d, v%d, v%d" % (x, x, T+2)))
    o += [(1, t) for t in pack_inplace(v, E)]
    return o

PHB = 102400; KVB = PHB + 20480; RED = PHB
def pq_setup(k):
    srd(k, SRD_P, P_WS, PQ_OFF, PQ_SZ)
    srd(k, SRD_W1, P_WS, G_OFF, G_SZ)
    k("s_lshl_b32 s77, s%d, 1" % S_OMT); k("s_add_u32 s77, s77, s%d" % S_RH)
    k("s_lshl_b32 s78, s%d, 1" % S_OH); k("s_add_u32 s78, s78, s%d" % S_C)
    k("s_mul_i32 s78, s78, 81920")
    k("s_lshl_b32 s79, s77, 10"); k("s_add_u32 s79, s79, s78")
    k("s_add_u32 s101, s79, 32768")
    k("s_lshl_b32 s81, s77, 9"); k("s_add_u32 s81, s81, s78"); k("s_add_u32 s81, s81, 65536")
    k("s_lshl_b32 s76, s%d, 9" % S_OMT); k("s_lshl_b32 s77, s%d, 7" % S_W); k("s_add_u32 s76, s76, s77")
    k("s_add_u32 s82, s%d, %d" % (S_OMT, C_Q)); k("s_mul_i32 s82, s82, %d" % cfg.CS)
    k("v_lshlrev_b32 v5, 3, v0")
    k("v_and_b32 v24, 15, v0"); k("v_lshrrev_b32 v25, 4, v0")
    k("v_lshlrev_b32 v23, 2, v24")
PQR = 132
def pq_loads(k, nu):
    for i in range(nu):
        PQ = PQR + 12*i
        so = ("s79", "s101") if i < 2 else ("s72", "s73")
        if i == 2: k("s_add_u32 s72, s79, 4096"); k("s_add_u32 s73, s101, 4096")
        k.vm("buffer_load_dwordx4 %s, v%d, s[%d:%d], %s offen offset:%d%s" % (vr(PQ,4), V_L16, SRD_P, SRD_P+3, so[0], (i & 1)*2048 if i < 2 else 0, SC), ("pq", i))
        k.vm("buffer_load_dwordx4 %s, v%d, s[%d:%d], %s offen offset:%d%s" % (vr(PQ+4,4), V_L16, SRD_P, SRD_P+3, so[1], (i & 1)*2048 if i < 2 else 0, SC), ("pq", i))
        k.vm("buffer_load_dwordx2 %s, v5, s[%d:%d], s81 offen offset:%d%s" % (vr(PQ+8,2), SRD_P, SRD_P+3, i*1024, SC), ("pq", i))
        for r2 in range(2): k.vm("buffer_load_dword v%d, v17, s[%d:%d], s76 offen offset:%d%s" % (PQ+10+r2, SRD_W1, SRD_W1+3, i*512 + r2*64, SC), ("pq", i))

OAL = list(range(42, 62))
def tail(k, nu, pre, late, bolate, presig=None):
    if cfg.X_END:
        if presig: presig()
        k("s_endpgm"); return
    if cfg.X_NOO:
        if presig: presig(); presig = None
        nu = 0
    if cfg.X_NOB: pre = []; late = []; bolate = []
    if not presig: k.flush_counters()
    stamp(k, 6)
    fd = Feed(k, [] if presig else pre)
    def ch():
        k("s_lshr_b32 s82, s%d, 1" % S_M64); k("s_mul_i32 s82, s82, %d" % cfg.CS)
        poll_issue(k, S_CNT, "s82", "h_ok")
    if not nu:
        ch()
        srd(k, SRD_W1, P_WS, G_OFF, G_SZ)
        k("v_and_b32 v24, 15, v0"); k("v_lshrrev_b32 v25, 4, v0")
    else:
        fd.emit(cfg.QPRE)
        pq_setup(k)
        k("s_mov_b32 s%d, s82" % S_T2)
        k("v_mov_b32 v17, v23")
    k("s_mul_i32 s%d, s%d, %d" % (S_T0, S_M64, 74*4096))
    srd(k, SRD_X, P_WS, A2_OFF, 74*4096, S_T0)
    k("s_add_u32 s80, s%d, 20" % S_W); k("s_lshl_b32 s80, s80, 12")
    k("v_lshlrev_b32 v6, 2, v24")
    VA = 26
    for j in range(4):
        k("s_add_u32 s75, s%d, %d" % (S_W, j)); k("s_and_b32 s75, s75, 3"); k("s_lshl_b32 s75, s75, 10")
        k("v_add_u32 v%d, s75, v%d" % (VA+j, V_L16))
    if nu:
        if presig:
            presig(); fd.q += pre
        vpoll_issue(k, "s%d" % S_T2, nu, "q_ok")
        fd.emit(4)
        T0, T1, T2 = 64, 65, 66
        srd(k, SRD_W0, P_WS, KVP_OFF, KVP_SZ)
        srd(k, SRD_O, P_WS, A2_OFF, A2_SZ)
        PB = PHB - 20480*(nu-1)
        k("s_mul_i32 s75, s%d, 5120" % S_W); k("s_add_u32 s75, s75, %d" % PB)
        k("v_mul_u32_u24 v7, 80, v0"); k("v_add_u32 v7, s75, v7")
        k("s_mul_i32 s75, s%d, 2560" % S_W); k("s_add_u32 s75, s75, %d" % PB)
        k("v_mul_u32_u24 v8, 80, v24"); k("v_add_u32 v8, s75, v8")
        k("v_lshl_add_u32 v9, v25, 4, v8")
        k("s_lshl_b32 s82, s%d, 10" % S_W)
        k("v_add_u32 v10, s82, v%d" % V_L16)
        k("v_mov_b32 v30, 0x7fffffff")
        k("v_cmp_gt_u32 vcc, 3360, v10")
        k("v_cndmask_b32 v11, v30, v10, vcc")
        k("v_add_u32 v10, %d, v10" % KVB)
        vpoll_check(k, 3, "q_ok")
        pq_loads(k, nu)
        stamp(k, 7)
        fd.emit(3)
        k("s_mul_i32 s72, s%d, 5" % S_OH)
        for dst, add, nvalid in ((12, 0, 3), (13, 3, 2)):
            k("v_add_u32 v%d, s72, v25" % T2)
            if add: k("v_add_u32 v%d, %d, v%d" % (T2, add, T2))
            k("v_lshrrev_b32 v%d, 2, v%d" % (T0, T2))
            k("v_lshlrev_b32 v%d, 12, v%d" % (T0, T0))
            k("v_and_b32 v%d, 3, v%d" % (T1, T2))
            k("v_lshl_add_u32 v%d, v%d, 8, v%d" % (T0, T1, T0))
            k("v_lshl_add_u32 v%d, v24, 4, v%d" % (T0, T0))
            k("v_cmp_gt_u32 vcc, %d, v25" % nvalid)
            k("v_cndmask_b32 v%d, v30, v%d, vcc" % (dst, T0))
        fd.emit(2)
        k("s_lshl_b32 s73, s%d, 1" % S_OMT); k("s_add_u32 s73, s73, s%d" % S_C)
        k("s_mul_i32 s73, s73, %d" % (74*4096))
        k("s_lshl_b32 s75, s%d, 11" % S_RH); k("s_add_u32 s73, s73, s75")
        k("s_mul_i32 s74, s%d, %d" % (S_OH, 16*KVPS))
        k("v_bfe_u32 v%d, v0, 2, 2" % T0); k("v_and_b32 v%d, 3, v0" % T1)
        k("v_lshl_add_u32 v%d, v%d, 3, v%d" % (T2, T0, T1))
        for hd in range(2):
            for i in range(3):
                d = 18 + hd*3 + i
                if i == 2: k("v_mov_b32 v%d, %d" % (d, KVB + 1600 + hd*1680))
                else:
                    k("v_add_u32 v14, %d, v%d" % (4*i + 4*hd, T2)); k("v_min_u32 v14, 20, v14")
                    if hd == 1 and i == 0:
                        k("v_cmp_eq_u32 vcc, 2, v%d" % T0); k("v_cndmask_b32 v14, v14, v%d, vcc" % T1)
                    k("v_mul_u32_u24 v14, 80, v14")
                    k("v_add_u32 v%d, %d, v14" % (d, KVB + hd*1680))
        fd.emit(2)
        k("v_cmp_eq_u32 s[78:79], 0, v25")
        k("v_cmp_eq_u32 s[76:77], 2, v25")
        k("v_mov_b32 v30, %d" % (KVB + 3584 - 64))
        k("v_and_b32 v14, 1, v0"); k("v_lshlrev_b32 v14, 4, v14")
        k("v_mov_b32 v15, 0x3f80")
        k("v_lshlrev_b32 v14, v14, v15")
        k("v_cmp_eq_u32 vcc, v%d, v25" % T0)
        k("v_cndmask_b32 v14, 0, v14, vcc")
        k("v_cmp_gt_u32 vcc, 2, v%d" % T1)
        k("v_cndmask_b32 v15, 0, v14, vcc")
        k("v_cndmask_b32 v14, v14, 0, vcc")
        for r, src in ((120, "v15"), (121, "v14"), (122, "0"), (123, "0"), (124, "0"), (125, "0"), (126, "v15"), (127, "v14")):
            k("v_accvgpr_write_b32 a%d, %s" % (r, src))
        for i in range(nu):
            k.wait(vm=("pq", i))
            for j in range(10):
                k("v_lshlrev_b32 v%d, 16, v%d" % (64+2*j, PQR+12*i+j))
                k("v_and_b32 v%d, 0xffff0000, v%d" % (65+2*j, PQR+12*i+j))
            for r2 in range(2): k("v_mov_b32 v%d, v%d" % (250+2*i+r2, PQR+12*i+10+r2))
            fd.emit(2)
            softmax_pm(k, [64+2*j for j in range(10)], 84, 124, 104, fd)
            if i == nu-1: fd.drain(); ch()
            for j in range(5): k.lg("ds_write_b128 v7, %s offset:%d" % (vr(104+4*j,4), i*20480 + 16*j))
        stamp(k, 27)
    else:
        fd.drain()
    stamp(k, 8)
    poll_check(k, S_CNT, 9, "h_ok")
    stamp(k, 9)
    A0 = 64
    XD = 0 if nu else 4
    def af(i): return 192 + 16*i if i < XD else 144 + ((i - XD) % 3)*16
    TO = (1, 2, 3, 0)
    def a_load(i, j):
        if cfg.X_NOA and i >= 3: return
        k.vm("buffer_load_dwordx4 %s, v%d, s[%d:%d], s80 offen%s" % (vr(af(i)+4*j,4), VA+j, SRD_X, SRD_X+3, LSC), ("A", i, j))
        if j == TO[3]: k("s_add_u32 s80, s80, %d" % (4*4096))
    if nu:
        k("s_lshr_b32 s82, s%d, 2" % S_OH); k("s_add_u32 s82, s82, %d" % C_K); k("s_mul_i32 s82, s82, %d" % cfg.CS)
    for i in range(3 + XD):
        for j in TO: a_load(i, j)
    k.wait(lg="all")
    fl = Feed(k, b_items(late) + ([] if nu else bolate))
    lds = []
    cnt = [0]
    order = [(i, j) for i in range(11) for j in TO] + [(i, j) for j in TO for i in range(11, 14)]
    def main():
        for (i, j) in order:
            pend = set(t[2][1] for t in fl.q if isinstance(t[2], tuple) and t[2][0] == "B")
            assert not (pend & set(range(i*5, i*5+5))), (nu, i, pend)
            k.wait(vm=[("A", i, j)] + [("B", i*5+ct) for ct in range(5)])
            for ct in range(5):
                a = A0 + (j*5+ct)*4
                k("v_mfma_f32_16x16x32_bf16 %s, %s, %s, %s" % (vr(a,4), R(bloc(i*5+ct),4), vr(af(i)+4*j,4), vr(a,4) if i else "0"))
                cnt[0] += 1
                if lds: emit1(k, lds.pop(0))
                if ct == 4 and i >= XD and i + 3 < 14: a_load(i + 3, j)
                if ct in cfg.FLAT: fl.emit(1)
                yield 1
    g = main()
    def run(n):
        for _ in range(n): next(g, None)
    def upto(m): run(max(0, m - cnt[0]))
    def mix(items, per):
        for i, it in enumerate(items):
            emit1(k, it)
            if i % per == per-1: run(1)
    if nu:
        def oa(i): return bloc(i)
        def pr(p): return 192 + 4*p if p < 12 else bloc(p-12)
        upto(cfg.MK - 25); poll_issue(k, S_CNT, "s82", "k_ok"); upto(cfg.MK)
        stamp(k, 10); poll_check(k, S_CNT, 16, "k_ok"); stamp(k, 11)
        assert cnt[0] >= 20
        for p in range(16):
            k.vm("buffer_load_dwordx4 %s, v11, s[%d:%d], s74 offen%s" % (R(pr(p),4), SRD_W0, SRD_W0+3, SC), ("kp", p))
            k("s_add_u32 s74, s74, %d" % KVPS)
            run(cfg.KI)
        run(cfg.KLAT)
        RA = 240
        for p in range(16):
            k.wait(vm=("kp", p))
            for h in range(2): k("v_mfma_f32_16x16x32_bf16 %s, %s, %s, %s" % (vr(RA+4*h,4), ar(120+4*h,4), R(pr(p),4), vr(RA+4*h,4) if p else "0"))
        run(3)
        for i in range(4): k("v_cvt_pk_bf16_f32 v%d, v%d, v%d" % (192+i, RA+2*i, RA+1+2*i))
        k.lg("ds_write_b128 v10, v[192:195]", "kw")
        run(4); upto(80)
        k.wait(lg="all"); k("s_barrier"); stamp(k, 28)
        def brd(u):
            o = []
            for hd in range(2):
                for r2 in range(2):
                    o.append(("lg", "ds_read_b128 %s, v9 offset:%d" % (R(oa(12+hd*4+2*r2),4), u*20480 + hd*10240 + r2*1280), ("o", u, hd)))
                    o.append(("lg", "ds_read_b128 %s, v8 offset:%d" % (R(oa(13+hd*4+2*r2),4), u*20480 + hd*10240 + r2*1280+64), ("o", u, hd)))
            return o
        it = []
        for hd in range(2):
            for i in range(3):
                it += ["v_lshl_add_u32 v15, v25, 4, v%d" % (18+hd*3+i), "v_cndmask_b32 v14, v30, v%d, s[78:79]" % (18+hd*3+i),
                       ("lg", "ds_read_b128 %s, v15" % R(oa(hd*6+2*i),4), "oa"), ("lg", "ds_read_b128 %s, v14 offset:64" % R(oa(hd*6+2*i+1),4), "oa")]
        mix(it + brd(0), cfg.MIX)
        run(4)
        KO = 192
        for u in range(nu):
            for hd in range(2):
                k.wait(lg=("o", u, hd))
                for s in range(2):
                    for r2 in range(2):
                        for i in (2, 0, 1):
                            a = KO + (hd*2+r2)*12 + i*4
                            k("v_mfma_f32_16x16x32_bf16 %s, %s, %s, %s" % (vr(a,4), R(oa(hd*6+2*i+s),4), R(oa(12+hd*4+2*r2+s),4), vr(a,4) if s else "0"))
            it = brd(u+1) if u + 1 < nu else []
            for q in range(4): it.append("v_add_f32 v%d, %s, v%d" % (KO+q*12+8, f32(1e-6), KO+q*12+8))
            for q in range(4): it.append("v_rcp_f32 v%d, v%d" % (KO+q*12+8, KO+q*12+8))
            for q in range(4): it.append("v_mul_f32 v%d, v%d, v%d" % (KO+q*12+8, KO+q*12+8, 250+2*u+(q & 1)))
            for r2 in range(2):
                a0 = KO + r2*12; a1 = KO + (2+r2)*12
                for a in (a1, a0):
                    for i in range(8): it.append("v_mul_f32 v%d, v%d, v%d" % (a+i, a+i, a+8))
                    for i in range(4): it.append("v_cvt_pk_bf16_f32 v%d, v%d, v%d" % (a+8+i, a+2*i, a+2*i+1))
                    if a == a1: it.append(("vm", "buffer_store_dwordx4 %s, v13, s[%d:%d], s73 offen offset:%d%s" % (vr(a1+8,4), SRD_O, SRD_O+3, r2*1024, SC), "st"))
                it.append("v_cndmask_b32 v%d, v%d, v%d, s[76:77]" % (a0+10, a0+10, a1+8))
                it.append("v_cndmask_b32 v%d, v%d, v%d, s[76:77]" % (a0+11, a0+11, a1+9))
                it.append(("vm", "buffer_store_dwordx4 %s, v12, s[%d:%d], s73 offen offset:%d%s" % (vr(a0+8,4), SRD_O, SRD_O+3, r2*1024, SC), "st"))
            if u + 1 < nu: it.append("s_add_u32 s73, s73, %d" % (2*74*4096))
            mix(it, cfg.MIX * nu)
        stamp(k, 29)
        run(cfg.OSD)
        k.wait(vm="st")
        d = k.newlabel("Lsg")
        k("s_add_u32 s82, s%d, %d" % (S_OMT, C_O)); k("s_mul_i32 s82, s82, %d" % cfg.CS)
        k("s_barrier")
        k("s_cmp_lg_u32 s%d, 0" % S_W)
        k("s_cbranch_scc1 %s" % d)
        k("v_mul_u32_u24 v%d, %d, v0" % (V_PT, cfg.CS)); k("v_add_u32 v%d, s82, v%d" % (V_PT, V_PT))
        k("v_mov_b32 v31, 1")
        k("s_mov_b64 exec, %d" % ((1 << nu) - 1))
        k("global_atomic_add v%d, v31, s[%d:%d] sc1" % (V_PT, S_CNT, S_CNT+1))
        k("s_mov_b64 exec, -1")
        k.label(d)
        stamp(k, 12)
        fl.q += bolate
    q = K()
    for j in range(1, 4):
        q("s_add_u32 s75, s%d, %d" % (S_W, j)); q("s_and_b32 s75, s75, 3"); q("s_mul_i32 s75, s75, 15360")
        q("s_add_u32 s75, s75, %d" % (RED + (j-1)*5120))
        q("v_add_u32 v%d, s75, v%d" % (10+j, V_L16))
    q("s_mul_i32 s75, s%d, 15360" % S_W); q("s_add_u32 s75, s75, %d" % RED)
    q("v_add_u32 v8, s75, v%d" % V_L16)
    q("v_add_u32 v9, 51200, v%d" % V_L16)
    srd(q, SRD_O, P_OUT, 0, 2048*1280)
    q("s_lshl_b32 s81, s%d, 6" % S_M64); q("s_lshl_b32 s75, s%d, 4" % S_W); q("s_add_u32 s81, s81, s75")
    q("s_lshl_b32 s74, s81, 2")
    q("s_mul_i32 s81, s81, 1280"); q("s_mul_i32 s75, s%d, 160" % S_NT); q("s_add_u32 s81, s81, s75")
    q("v_mul_u32_u24 v16, 1280, v24"); q("v_lshl_add_u32 v16, v25, 3, v16")
    q("s_lshr_b32 s82, s%d, 1" % S_M64); q("s_add_u32 s82, s82, %d" % C_O); q("s_mul_i32 s82, s82, %d" % cfg.CS)
    q("s_mov_b32 s73, 0")
    mix([t for _, t in q.items], 2)
    while fl.q: run(1)
    upto(cfg.MO - 20)
    poll_issue(k, S_CNT, "s82", "o_ok")
    upto(cfg.MO)
    def of(ks): return 192 + 4*ks if ks < 16 else 148 + 16*(ks-16) if ks < 19 else 152
    def bol(n): return bloc(n % 70)
    def bo_read(n):
        off = n*1024
        return ("lg", "ds_read_b128 %s, v%d offset:%d" % (R(bol(n), 4), V_L16 if off < 51200 else 9, off % 51200), ("bo", n // 5))
    def ao(ks): return ("s_add_u32 s73, s73, 4096" if ks else None, "buffer_load_dwordx4 %s, v%d, s[%d:%d], s73 offen%s" % (vr(of(ks),4), VA, SRD_X, SRD_X+3, LSC), ("Ao", ks))
    def red_w(j): return [("lg", "ds_write_b128 v%d, %s offset:%d" % (10+j, vr(A0+(j*5+ct)*4,4), ct*1024), "rw") for ct in range(5)]
    def oready():
        stamp(k, 13)
        poll_check(k, S_CNT, 16, "o_ok")
        stamp(k, 14)
        k.vm("buffer_load_dword v5, v6, s[%d:%d], s74 offen%s" % (SRD_W1, SRD_W1+3, SC), "g2")
        fa = Feed(k, [ao(ks) for ks in range(20)])
        fa.emit(6)
        return fa
    assert cnt[0] <= 238 or cnt[0] >= 280, cnt[0]
    nr = 0
    if cnt[0] < 280:
        fa = oready()
        fl.q = fa.q[:10]; fa.q = fa.q[10:]
        free = min(cnt[0] // 20, 11) * 5
        for c in (238, 253, 268, 280):
            n = min(free - nr, c - cnt[0] - len(lds))
            lds += [bo_read(x) for x in range(nr, nr + max(n, 0))]; nr += max(n, 0)
            upto(c)
            if c < 280: lds[:0] = red_w((238, 253, 268).index(c) + 1)
        weave(k, [], lds); del lds[:]
        fl.drain()
    else:
        for j in (1, 2, 3): weave(k, [], red_w(j))
        fa = oready()
    fa.drain()
    k.wait(vm="g2")
    k("v_sub_f32 v10, 1.0, v5")
    for j in range(10): k("v_pk_mul_f32 %s, %s, v[10:11] op_sel_hi:[1,0]" % (vr(A0+2*j,2), vr(A0+2*j,2)))
    k.wait(lg="rw")
    k("s_barrier")
    rr = [("lg", "ds_read_b128 %s, v8 offset:%d" % (vr(A0+20+4*j,4), j*1024), ("r", j // 5)) for j in range(15)]
    while nr < 15:
        emit1(k, bo_read(nr)); nr += 1
    for ks in range(20):
        k.wait(vm=("Ao", ks), lg=("bo", ks))
        mf = ["v_mfma_f32_16x16x32_bf16 %s, %s, %s, %s" % (vr(A0+ct*4,4), R(bol(ks*5+ct), 4), vr(of(ks),4), vr(A0+ct*4,4)) for ct in range(5)]
        fill = [bo_read(n) for n in range(nr, min(100, nr+5, ks*5+70))]; nr += len(fill)
        while len(fill) < 5 and rr: fill.append(rr.pop(0))
        weave(k, mf, fill, per=1)
    weave(k, [], rr)
    k.wait(lg="all")
    for j in range(10): k("v_pk_add_f32 %s, %s, %s" % (vr(A0+20+2*j,2), vr(A0+20+2*j,2), vr(A0+40+2*j,2)))
    for j in range(10): k("v_pk_add_f32 %s, %s, %s" % (vr(A0+20+2*j,2), vr(A0+20+2*j,2), vr(A0+60+2*j,2)))
    for ct in range(5):
        a = A0 + ct*4
        for h in range(2): k("v_pk_fma_f32 %s, %s, v[10:11], %s op_sel_hi:[1,0,1]" % (vr(a+2*h,2), vr(a+20+2*h,2), vr(a+2*h,2)))
        k("v_cvt_pk_bf16_f32 v%d, v%d, v%d" % (A0+40+2*ct, a, a+1)); k("v_cvt_pk_bf16_f32 v%d, v%d, v%d" % (A0+41+2*ct, a+2, a+3))
        k.vm("buffer_store_dwordx2 %s, v16, s[%d:%d], s81 offen offset:%d%s" % (vr(A0+40+2*ct,2), SRD_O, SRD_O+3, ct*32, cfg.OUTF), "st")
    stamp(k, 30)
    stamp_out(k)
    k("s_endpgm")

def kernel(k):
    kernel_header(k, NAME)
    if cfg.EARLY0: k("s_memrealtime s[98:99]")
    k("s_load_dwordx16 s[8:23], s[0:1], 0")
    k("s_load_dwordx8 s[24:31], s[0:1], 64")
    k("s_cmp_ge_u32 s2, 256")
    k("s_cbranch_scc1 L_end")
    if cfg.CPF: code_prefetch(k, V_JUNK)
    k("v_lshrrev_b32 v2, 6, v0")
    k("v_and_b32 v0, 63, v0")
    k("v_readfirstlane_b32 s%d, v2" % S_W)
    if cfg.STAMP: k("v_mov_b32 v1, 0")
    stamp(k, 0)
    if cfg.EARLY0: k("v_writelane_b32 v1, s98, 0")
    if cfg.MAP == 2:
        k("s_bfe_u32 s%d, s2, 0x40003" % S_MT)
        k("s_and_b32 s%d, s2, 7" % S_T0)
        k("s_lshl_b32 s%d, s%d, 3" % (S_T0, S_T0))
        k("s_bfe_u32 s%d, s2, 0x10007" % S_T1)
        k("s_lshl_b32 s%d, s%d, 2" % (S_T1, S_T1))
        k("s_add_u32 s%d, s%d, s%d" % (S_T0, S_T0, S_T1))
        tab = cfg.ORDER
        k("s_mov_b32 s74, 0x%x" % sum(tab[i] << (4*i) for i in range(8))); k("s_mov_b32 s75, 0x%x" % sum(tab[8+i] << (4*i) for i in range(8)))
        k("s_lshr_b64 s[74:75], s[74:75], s%d" % S_T0)
        k("s_and_b32 s%d, s74, 15" % S_TY)
    else:
        k("s_and_b32 s%d, s2, 7" % S_T0)
        k("s_lshr_b32 s%d, s2, 3" % S_T1)
        k("s_lshl_b32 s74, s%d, 2" % S_T0); k("s_and_b32 s75, s%d, 3" % S_T1); k("s_add_u32 s74, s74, s75")
        k("s_add_u32 s74, s74, %d" % (13*16))
        k("s_lshl_b32 s75, s%d, 3" % S_T0); k("s_add_u32 s75, s75, s%d" % S_T1); k("s_add_u32 s75, s75, %d" % (9*16 - 20))
        k("s_cmp_lt_u32 s%d, 28" % S_T1); k("s_cselect_b32 s74, s75, s74")
        k("s_lshl_b32 s75, s%d, 1" % S_T0); k("s_add_u32 s75, s75, s%d" % S_T1)
        k("s_add_u32 s76, s75, %d" % (15*16 - 18))
        k("s_cmp_lt_u32 s%d, 20" % S_T1); k("s_cselect_b32 s74, s76, s74")
        k("s_add_u32 s76, s75, %d" % (8*16 - 16))
        k("s_cmp_lt_u32 s%d, 18" % S_T1); k("s_cselect_b32 s74, s76, s74")
        k("s_lshl_b32 s76, s%d, 4" % S_T0); k("s_add_u32 s76, s76, s%d" % S_T1)
        k("s_cmp_lt_u32 s%d, 16" % S_T1); k("s_cselect_b32 s74, s76, s74")
        k("s_and_b32 s%d, s74, 15" % S_MT)
        k("s_lshr_b32 s%d, s74, 4" % S_TY)
    k("s_and_b32 s%d, s%d, 1" % (S_RH, S_W))
    k("s_lshr_b32 s%d, s%d, 1" % (S_C, S_W))
    k("v_lshlrev_b32 v%d, 4, v0" % V_L16)
    k("s_cmp_ge_u32 s%d, 15" % S_TY); k("s_cbranch_scc1 L_aux")
    k("s_cmp_ge_u32 s%d, 13" % S_TY)
    k("s_cselect_b32 s%d, 13, 9" % S_T0)
    k("s_cselect_b32 s75, 0, 1280")
    k("s_cselect_b32 s76, 0, 640")
    k("s_add_u32 s76, s76, 640")
    k("s_sub_u32 s79, s%d, s%d" % (S_TY, S_T0))
    k("s_mul_i32 s%d, s79, 320" % S_T1)
    k("s_and_b32 s%d, s%d, 127" % (S_DELTA, S_T1))
    k("s_sub_u32 s%d, s%d, s%d" % (S_T1, S_T1, S_DELTA))
    k("s_add_u32 s75, s75, s%d" % S_T1)
    k("s_add_u32 s76, s76, s75")
    k("s_mul_i32 s%d, s%d, 384" % (S_T1, S_TY))
    k("s_mov_b32 s%d, 3840" % S_STRIDE)
    k("s_cmp_lt_u32 s%d, 9" % S_TY)
    k("s_cselect_b32 s75, s%d, s75" % S_T1)
    k("s_cselect_b32 s76, s%d, s76" % S_T1)
    k("s_cselect_b32 s%d, 3456, s%d" % (S_STRIDE, S_STRIDE))
    k("s_mul_i32 s%d, s%d, 640" % (S_T1, S_STRIDE))
    k("s_sub_u32 s77, s%d, s75" % S_T1)
    k("s_sub_u32 s78, s%d, s76" % S_T1)
    gemm_setup(k)
    k("s_mul_i32 s%d, s%d, %d" % (S_T0, S_MT, 128*1280))
    k("s_waitcnt lgkmcnt(0)")
    k("s_cmp_lt_u32 s%d, 9" % S_TY)
    k("s_cselect_b64 s[16:17], s[%d:%d], s[%d:%d]" % (P_WG, P_WG+1, P_WQKV, P_WQKV+1))
    k("s_cselect_b64 s[%d:%d], s[%d:%d], s[%d:%d]" % (P_WU, P_WU+1, P_WU, P_WU+1, P_WQKV, P_WQKV+1))
    srd(k, SRD_X, P_X, 0, 128*1280, S_T0)
    stamp(k, 1)
    Q = dma_queue()
    issue_now(k, Q, 4)
    srd(k, SRD_W0, 16, 0, "s77", 75)
    srd(k, SRD_W1, P_WU, 0, "s78", 76)
    issue_now(k, Q, 6)
    touch_setup(k)
    for it in touch_items(-1):
        if it[0]: k(it[0])
        k.vm(it[1], it[2])
    sv0 = list(k.vmq)
    k("s_cmp_ge_u32 s%d, 9" % S_TY); k("s_cbranch_scc1 L_att")
    ps, rest = ffn_role(k, Q)
    tail(k, 1, rest, [], [], presig=ps)
    k.label("L_att")
    k("s_lshl_b32 s79, s79, 1")
    k("s_add_u32 s79, s79, s%d" % S_C)
    k("s_mul_i32 s80, s79, 3200")
    srd(k, SRD_P, P_WPHI, 0, 3200, 80)
    k("s_cmp_ge_u32 s%d, 13" % S_TY); k("s_cselect_b32 s81, 12800, 0")
    k.flush_counters(); k.vmq = list(sv0)
    att_loop(k, Q)
    sv1 = (list(k.vmq), list(k.lgq))
    k("s_cmp_ge_u32 s%d, 13" % S_TY); k("s_cbranch_scc1 L_q")
    kv_role(k)
    tail(k, 0, [], list(range(62, 70)), bo_items())
    k.label("L_q")
    k.vmq, k.lgq = sv1
    q_role(k)
    tail(k, 2, b_items(range(32, 70)) + bo_items()[:cfg.BOQ], [], bo_items()[cfg.BOQ:])
    k.flush_counters()
    k.label("L_aux")
    aux_role(k)
    tail(k, 3, [], [], bo_items()[15:])
    k.label("L_end")
    k("s_endpgm")

def build(fn, listform=True):
    k = K()
    k.raw(open("header.txt").read().rstrip())
    if listform: k.raw("; @launch kernel=%s grid=(256,1,1) block=(256,1,1) lds=163840" % NAME)
    else: k.raw("; @launch grid=(256,1,1) block=(256,1,1) lds=163840")
    k.raw('.amdgcn_target "amdgcn-amd-amdhsa--gfx950"')
    k.raw(".text")
    kernel(k)
    k.raw('.section .rodata,"a"')
    k.raw(kernel_desc(NAME, 512, 256))
    open(fn, "w").write(k.text())

if __name__ == "__main__":
    for a in sys.argv[2:]:
        if "=" in a:
            n, v = a.split("="); setattr(cfg, n, eval(v))
    if cfg.NOSC: LSC = ""
    build(sys.argv[1], listform="single" not in sys.argv)
```

```python
import sys
from fw import *

A2_OFF = 0;          A2_SZ = 32*74*4096
B2_OFF = 0xA00000;   B2_SZ = 8*74*5120
PQ_OFF = 0xD00000;   PQ_SZ = 32*2048*40
KVP_OFF = 0x1000000; KVPS = 3584; KVP_SZ = 16*16*KVPS
G_OFF = 0x1200000;   G_SZ = 8192
CNT_OFF = 0x1300000
ST_OFF = 0x1400000
LOG2E = 1.4426950408889634
NAME = "gated_mix__linear_kernel_hedgehog__swiglu_ffn__prompt_kernel"

class Cfg:
    STAMP = 0; STG = 0
    MAXD = 11; N2 = 6; N3 = 10
    P2M = 4
    TW = [(-1,1,7),(1,8,6),(4,14,6)]
    TX = [(-1,1,3),(1,4,3),(4,7,3)]
    ORDER = [0, 9, 1, 10, 2, 11, 3, 12, 4, 13, 5, 14, 6, 7, 8, 15]
    PS1 = 16
    NBF = 40
    NBA = 32
    AUXT = 10
    AUXD = 3
    FFE = (3, 10)
    MK = 40
    KLAT = 20
    PER = 2
    BOF = 10
    KVB0 = 1
    TPER = 2
    BLP = 5
    KVN = 62
    BPRE = 50
    RFIRST = 1
    MF = 150
    MAXD0 = 16
    BLK = 2
    PHS = 3
    AST = 0
    X_NOWAIT = 0
    X_NOO = 0
    X_NOB = 0
    X_END = 0
    X_NOA = 0
    MO = 238
    NOSC = 0
    NOMF = 0
    CS = 4096+256
    ONE = 1
    SLP = 2
    KI = 1
    MIX = 6
    FLAT = (1, 3)
    XD = 3
    BOQ = 10
    QPRE = 6
    FQ = (7, 10)
    OFIRST = 1
    OUTF = ''
    BOEARLY = 0
    QLAT = 40
    MAP = 3
    AORD = [9, 13, 10, 11, 14, 12]
    DBGWG = -1
    PADST = None
    PADMIN = 0
    CPF = 1
    TNT = 0
    NODMA = 0
    CYC = 0
    PADTY = None
    EARLY0 = 0
    KL2 = 40
    OSD = 20
cfg = Cfg()
SC = " sc1"
LSC = " sc1"

P_X, P_WQKV, P_WPHI, P_WO, P_WG, P_WU, P_WD, P_GW, P_OUT, P_DBG, P_WS = 8, 10, 12, 14, 18, 20, 22, 24, 26, 28, 30
S_W, S_RH, S_C, S_MT, S_TY, S_M64, S_NT, S_OH = 32, 33, 34, 35, 36, 37, 38, 39
SRD_X, SRD_W0, SRD_W1, SRD_O, SRD_P = 40, 44, 48, 52, 56
S_STRIDE, S_WOFF, S_WL, S_XL, S_T0, S_T1, S_T2, S_T3, S_DELTA, S_SIG = 60, 61, 62, 63, 64, 65, 66, 67, 68, 69
S_C2 = 70
S_OMT = 83; SRD_B = 84; S_BOFF = 88; S_BB = 89; S_CNT = 90; SRD_T = 96
V_L16, V_L16B, V_PT = 2, 3, 4
V_WD = 5; V_XD = 6; V_XR = 10; V_TA = 12; V_TW = 24; V_TX = 25; V_JUNK = 63; V_Z = 0
ACC0 = 64
WF0 = 256; XF0 = 256 + 96; GF0 = 256 + 88; GACC = 224
C_H, C_K, C_Q, C_O, C_F = 0, 16, 20, 36, 52
KVF_OFF = 0x1100000
SPARE = 147456
D_S1, D_S2, D_S3 = 0, 64, 128

def srd(k, d, b, off, nbytes, soff=None):
    if off or soff is not None:
        if soff is not None:
            k("s_add_u32 s%d, s%d, s%d" % (d, b, soff)); k("s_addc_u32 s%d, s%d, 0" % (d+1, b+1))
            if off:
                k("s_add_u32 s%d, s%d, 0x%x" % (d, d, off)); k("s_addc_u32 s%d, s%d, 0" % (d+1, d+1))
        else:
            k("s_add_u32 s%d, s%d, 0x%x" % (d, b, off)); k("s_addc_u32 s%d, s%d, 0" % (d+1, b+1))
        k("s_and_b32 s%d, s%d, 0xffff" % (d+1, d+1))
    else:
        k("s_mov_b32 s%d, s%d" % (d, b)); k("s_and_b32 s%d, s%d, 0xffff" % (d+1, b+1))
    if isinstance(nbytes, int): k("s_mov_b32 s%d, 0x%x" % (d+2, nbytes))
    else: k("s_mov_b32 s%d, %s" % (d+2, nbytes))
    k("s_mov_b32 s%d, 0x20000" % (d+3))

def stamp(k, i):
    if not cfg.STAMP or (cfg.AST and i != 15): return
    k("s_memtime s[92:93]" if cfg.STAMP == 2 else "s_memrealtime s[92:93]")
    k("s_waitcnt lgkmcnt(0)")
    k.lgq = []
    k("v_writelane_b32 v1, s92, %d" % i)
_ap = []
def astamp(k, idx):
    if not cfg.AST: return
    pair = (4, 6, 92, 94, 52, 54, 56, 58)[len(_ap)]
    k("s_memrealtime s[%d:%d]" % (pair, pair+1)); _ap.append((pair, idx))
def aflush(k):
    if not cfg.AST: return
    k("s_waitcnt lgkmcnt(0)"); k.lgq = []
    for p, i in _ap: k("v_writelane_b32 v1, s%d, %d" % (p, i))
    del _ap[:]
def stamp_out(k):
    if not cfg.STAMP: return
    k("s_waitcnt vmcnt(0)")
    stamp(k, 15)
    k("v_writelane_b32 v1, s%d, 16" % S_TY)
    srd(k, 40, P_WS, ST_OFF, 1024*128)
    k("s_lshl_b32 s92, s2, 2"); k("s_add_u32 s92, s92, s%d" % S_W); k("s_lshl_b32 s92, s92, 7")
    k("v_lshlrev_b32 v5, 2, v0")
    k("v_cmp_gt_u32 vcc, 32, v0")
    k("v_mov_b32 v6, 0x7fffffff")
    k("v_cndmask_b32 v5, v6, v5, vcc")
    k("buffer_store_dword v1, v5, s[40:43], s92 offen")
    if cfg.PADST is not None:
        k("v_readlane_b32 s94, v1, %d" % abs(cfg.PADST))
        k("v_readlane_b32 s95, v1, 0")
        k("s_max_u32 s94, s94, s95")
        if cfg.CYC:
            a, b = ((31, 25) if cfg.CYC == 1 else (24, 23))
            k("v_readlane_b32 s96, v1, %d" % a); k("v_readlane_b32 s97, v1, %d" % b)
            k("s_sub_u32 s96, s96, s97")
            if cfg.CYC == 1: k("s_lshr_b32 s96, s96, 2")
            else: k("s_lshl_b32 s96, s96, 2")
            k("s_add_u32 s94, s95, s96")
        if cfg.PADTY:
            k("s_cmp_lt_u32 s%d, %d" % (S_TY, cfg.PADTY[0])); k("s_cselect_b32 s94, s95, s94")
            k("s_cmp_gt_u32 s%d, %d" % (S_TY, cfg.PADTY[1])); k("s_cselect_b32 s94, s95, s94")
        if cfg.PADMIN:
            k("s_not_b32 s95, s94")
            k("v_mov_b32 v7, s95"); k("v_mov_b32 v8, 192")
            k("s_cmp_eq_u32 s%d, 0" % S_W)
            k("s_cselect_b64 exec, 1, 0")
            k("s_cbranch_execz Lnoat")
            k("global_atomic_umax v8, v7, s[%d:%d] sc1" % (P_DBG, P_DBG+1))
            k.label("Lnoat")
            k("s_mov_b64 exec, -1")
            k("s_add_u32 s94, s94, 4500")
            k.label("Lpad0")
            k("s_sleep 4")
            k("s_memrealtime s[96:97]")
            k("s_waitcnt lgkmcnt(0)")
            k("s_sub_u32 s98, s96, s94")
            k("s_cmp_lt_i32 s98, 0")
            k("s_cbranch_scc1 Lpad0")
            k("global_load_dword v7, v8, s[%d:%d] sc1" % (P_DBG, P_DBG+1))
            k("s_waitcnt vmcnt(0)")
            k("v_readfirstlane_b32 s94, v7")
            k("s_not_b32 s94, s94")
        k("s_add_u32 s94, s94, 6000")
        lp = k.newlabel("Lpad"); k.label(lp)
        k("s_sleep 4")
        k("s_memrealtime s[96:97]")
        k("s_waitcnt lgkmcnt(0)")
        k("s_sub_u32 s98, s96, s94")
        k("s_cmp_lt_i32 s98, 0")
        k("s_cbranch_scc1 %s" % lp)
    if cfg.DBGWG >= 0:
        k("s_cmp_eq_u32 s92, %d" % (cfg.DBGWG*512))
        k("s_cselect_b32 s93, 64, 0")
        srd(k, 44, P_DBG, 0, "s93")
        k("v_readlane_b32 s93, v1, 0")
        k("v_subrev_u32 v7, s93, v1")
        k("v_cmp_lt_u32 vcc, 0, v0")
        k("v_cndmask_b32 v5, v6, v5, vcc")
        k("buffer_store_dword v7, v5, s[44:47], 0 offen")

def code_prefetch(k, vt):
    k("s_getpc_b64 s[72:73]")
    l = k.newlabel("Lpc"); k.label(l)
    k("s_lshr_b32 s74, s2, 3")
    k("s_lshl_b32 s74, s74, 7")
    k("v_and_b32 v%d, 31, v0" % vt)
    k("v_lshlrev_b32 v%d, 12, v%d" % (vt, vt))
    k("v_add_u32 v%d, s74, v%d" % (vt, vt))
    k("v_min_u32 v%d, L_end-%s-4, v%d" % (vt, l, vt))
    k.vm("global_load_dword v%d, v%d, s[72:73]" % (vt, vt), "pf")

def _pload(k, base, tag):
    if cfg.ONE:
        a = k.newlabel("Lp0"); b = k.newlabel("Lp1")
        k("s_cmp_lg_u32 s%d, 0" % S_W); k("s_cbranch_scc1 %s" % a)
        k("global_load_dword v31, v%d, s[%d:%d] sc1" % (V_PT, base, base+1))
        k("s_branch %s" % b)
        k.label(a)
        k("v_mov_b32 v%d, 0" % V_PT)
        k("global_load_dword v31, v%d, s[%d:%d]" % (V_PT, P_X, P_X+1))
        k.label(b)
        k.vmq.append(tag)
    else: k.vm("global_load_dword v31, v%d, s[%d:%d] sc1" % (V_PT, base, base+1), tag)
def poll_issue(k, base, off, tag):
    k("v_mov_b32 v%d, %s" % (V_PT, off))
    _pload(k, base, tag)
def vpoll_issue(k, off, n, tag):
    k("v_min_u32 v%d, %d, v0" % (V_PT, n-1)); k("v_mul_u32_u24 v%d, %d, v%d" % (V_PT, cfg.CS, V_PT)); k("v_add_u32 v%d, %s, v%d" % (V_PT, off, V_PT))
    _pload(k, S_CNT, tag)
def poll_check(k, base, target, tag, sleep=None, barrier=True):
    l = k.newlabel("Lpoll"); d = k.newlabel("Lpd")
    if base == S_CNT and (cfg.X_NOWAIT == 1 or (cfg.X_NOWAIT and tag in cfg.X_NOWAIT)): target = 0
    k.wait(vm=tag)
    if cfg.ONE:
        k("s_cmp_lg_u32 s%d, 0" % S_W); k("s_cbranch_scc1 %s" % d)
    k("v_cmp_gt_u32 vcc, %d, v31" % target)
    k("s_mov_b32 s95, 0x8000")
    k("s_cmp_eq_u64 vcc, 0")
    k("s_cbranch_scc1 %s" % d)
    k.label(l)
    k("s_sleep %d" % (sleep or cfg.SLP))
    k("global_load_dword v31, v%d, s[%d:%d] sc1" % (V_PT, base, base+1))
    k("s_waitcnt vmcnt(0)")
    k("v_cmp_gt_u32 vcc, %d, v31" % target)
    k("s_sub_u32 s95, s95, 1")
    k("s_cmp_eq_u64 vcc, 0")
    k("s_cbranch_scc1 %s" % d)
    k("s_cmp_lg_u32 s95, 0")
    k("s_cbranch_scc1 %s" % l)
    k.label(d)
    if cfg.ONE and barrier: k("s_barrier")
def vpoll_check(k, target, tag): poll_check(k, S_CNT, target, tag)
def signal(k, base, off):
    d = k.newlabel("Lsg")
    k("s_barrier")
    k("s_cmp_lg_u32 s%d, 0" % S_W)
    k("s_cbranch_scc1 %s" % d)
    k("v_mov_b32 v%d, %s" % (V_PT, off))
    k("v_mov_b32 v31, 1")
    k("s_mov_b64 exec, 1")
    k("global_atomic_add v%d, v31, s[%d:%d] sc1" % (V_PT, base, base+1))
    k("s_mov_b64 exec, -1")
    k.label(d)

BL = [256+128+4*i for i in range(32)] + [256+48+4*i for i in range(12)] + [256+108+4*i for i in range(3)] \
   + [256+4*i for i in range(12)] + [256+96+4*i for i in range(3)] + [32+4*i for i in range(8)]
def bloc(n): return BL[n]
def b_items(frs):
    out = []; cur = None
    for n in frs:
        st, ct = divmod(n, 5)
        pre = None
        if st != cur: pre = "s_add_u32 s%d, s%d, %d" % (S_BOFF, S_BB, (20 + 4*st)*5120); cur = st
        if ct < 4: t = "buffer_load_dwordx4 %s, v%d, s[%d:%d], s%d offen offset:%d%s" % (R(bloc(n),4), V_L16, SRD_B, SRD_B+3, S_BOFF, ct*1024, LSC)
        else: t = "buffer_load_dwordx4 %s, v%d, s[%d:%d], s%d offen%s" % (R(bloc(n),4), V_L16B, SRD_B, SRD_B+3, S_BOFF, LSC)
        out.append((pre, t, ("B", n)))
    return out
def bo_items():
    out = []
    for i in range(5):
        for ct in range(5):
            pre = "s_add_u32 m0, s%d, %d" % (S_BB, i*20480 + (4096 if ct == 4 else 0))
            if ct == 0: pre = "s_add_u32 s100, s%d, %d\n" % (S_BB, i*20480) + pre
            if ct < 4: t = "buffer_load_dwordx4 v%d, s[%d:%d], s100 offen offset:%d%s lds" % (V_L16, SRD_B, SRD_B+3, ct*1024, LSC)
            else: t = "buffer_load_dwordx4 v%d, s[%d:%d], s100 offen%s lds" % (V_L16B, SRD_B, SRD_B+3, LSC)
            out.append((pre, t, "BO"))
    return out
class Feed:
    def __init__(self, k, items): self.k = k; self.q = list(items)
    def emit(self, n=1):
        while self.q and n > 0:
            pre, t, tag = self.q.pop(0)
            if pre: self.k(pre)
            self.k.vm(t, tag); n -= 1
    def drain(self): self.emit(10**6)
def emit1(k, f):
    if callable(f): f()
    elif isinstance(f, tuple): (k.lg if f[0] == "lg" else k.vm)(f[1], f[2])
    else: k(f)
def weave(k, mf, fill, per=2):
    fill = list(fill)
    for m in mf:
        k(m)
        for _ in range(per):
            if fill: emit1(k, fill.pop(0))
    for f in fill: emit1(k, f)

WSLOT = 24576; RW = 4; XBASE = RW*WSLOT; XSLOT = 16384; RX = 3

def gemm_setup(k):
    k("v_lshrrev_b32 v28, 3, v0")
    k("v_and_b32 v29, 7, v0")
    k("v_bfe_u32 v26, v28, 1, 1")
    k("s_lshl_b32 s%d, s%d, 1" % (S_T0, S_RH))
    k("v_or_b32 v26, s%d, v26" % S_T0)
    k("v_lshlrev_b32 v26, 1, v26")
    k("v_xor_b32 v26, v26, v29")
    k("s_lshl_b32 s%d, s%d, 3" % (S_T0, S_W))
    k("v_add_u32 v27, s%d, v28" % S_T0)
    k("v_mul_lo_u32 v27, v27, s%d" % S_STRIDE)
    k("v_lshl_add_u32 v%d, v26, 4, v27" % V_WD)
    k("s_lshl_b32 s%d, s%d, 5" % (S_T0, S_W))
    k("v_lshrrev_b32 v26, 1, v28")
    k("v_xor_b32 v27, v26, v29")
    k("v_add_u32 v26, s%d, v28" % S_T0)
    k("v_mul_u32_u24 v26, 1280, v26")
    k("v_lshl_add_u32 v%d, v27, 4, v26" % V_XD)
    k("v_xor_b32 v%d, 64, v%d" % (V_XD+1, V_XD))
    k("v_add_u32 v%d, %d, v%d" % (V_XD+1, 8*1280, V_XD+1))
    k("v_add_u32 v%d, %d, v%d" % (V_XD+2, 16*1280, V_XD))
    k("v_add_u32 v%d, %d, v%d" % (V_XD+3, 16*1280, V_XD+1))
    k("s_mul_i32 s%d, s%d, 6144" % (S_WL, S_W))
    k("s_lshl_b32 s%d, s%d, 12" % (S_XL, S_W))
    k("s_add_u32 s%d, s%d, %d" % (S_XL, S_XL, XBASE))
    k("s_mov_b32 s%d, 0" % S_WOFF)
    k("s_lshl_b32 s%d, s%d, 5" % (S_T3, S_STRIDE))

def touch_setup(k):
    k("v_lshrrev_b32 v26, 2, v0")
    k("v_and_b32 v27, 3, v0")
    k("s_lshl_b32 s%d, s%d, 1" % (S_T0, S_MT))
    k("s_add_u32 s%d, s%d, s%d" % (S_T0, S_T0, S_C))
    k("v_lshlrev_b32 v28, 5, v26")
    k("v_add_u32 v28, s%d, v28" % S_T0)
    k("v_mul_lo_u32 v28, v28, s%d" % S_STRIDE)
    k("v_min_u32 v29, 2, v27")
    k("v_lshl_add_u32 v%d, v29, 7, v28" % V_TW)
    k("s_lshl_b32 s%d, s%d, 4" % (S_T0, S_TY))
    k("s_lshl_b32 s%d, s%d, 2" % (S_T1, S_W))
    k("s_add_u32 s%d, s%d, s%d" % (S_T0, S_T0, S_T1))
    k("v_add_u32 v27, s%d, v27" % S_T0)
    k("v_mul_u32_u24 v27, 1280, v27")
    k("v_lshl_add_u32 v%d, v26, 7, v27" % V_TX)
    k("s_cmp_eq_u32 s%d, 0" % S_RH)
    for i in range(3): k("s_cselect_b32 s%d, s%d, s%d" % (SRD_T+i, SRD_W0+i, SRD_W1+i))
    k("s_mov_b32 s%d, 0x20000" % (SRD_T+3))
def masked(n, t):
    if n >= 16: return t
    return "s_bfm_b64 exec, %d, 0\n%s\ns_mov_b64 exec, -1" % (4*n, t)
def touch_items(stage):
    out = []
    for (st, first, n) in cfg.TW:
        if st == stage:
            out.append(("s_mul_i32 s101, s%d, %d" % (S_STRIDE, 32*first), masked(n, "buffer_load_dword v%d, v%d, s[%d:%d], s101 offen%s" % (V_JUNK, V_TW, SRD_T, SRD_T+3, " nt" if cfg.TNT else "")), "pf"))
    for (st, first, n) in cfg.TX:
        if st == stage:
            out.append((None, masked(n, "buffer_load_dword v%d, v%d, s[%d:%d], 0 offen offset:%d" % (V_JUNK, V_TX, SRD_X, SRD_X+3, first*128)), "pf"))
    return out

def gemm_setup2(k, att):
    npt = 5 if att else 6
    k("v_and_b32 v54, 15, v0")
    k("v_lshrrev_b32 v55, 4, v0")
    k("v_bfe_u32 v26, v54, 1, 3")
    k("v_xor_b32 v26, v26, v55")
    k("s_lshl_b32 s%d, s%d, 13" % (S_T0, S_RH))
    k("s_add_u32 s%d, s%d, %d" % (S_T0, S_T0, XBASE))
    k("v_lshlrev_b32 v27, 7, v54")
    k("v_add_u32 v27, s%d, v27" % S_T0)
    k("v_lshl_add_u32 v%d, v26, 4, v27" % V_XR)
    k("v_xor_b32 v%d, 64, v%d" % (V_XR+1, V_XR))
    k("v_bfe_u32 v26, v0, 2, 2")
    k("v_and_b32 v27, 3, v0")
    k("v_lshrrev_b32 v28, 1, v26")
    k("v_and_b32 v29, 1, v55")
    k("v_lshl_or_b32 v28, v29, 1, v28")
    k("v_lshlrev_b32 v28, 5, v28")
    k("v_mul_u32_u24 v29, 6144, v55")
    k("v_lshl_add_u32 v29, v26, 7, v29")
    if att:
        k("s_mul_i32 s%d, s%d, 160" % (S_T0, S_C))
        k("s_add_u32 s%d, s%d, s%d" % (S_T0, S_T0, S_DELTA))
        k("v_mul_u32_u24 v27, 40, v27")
    else:
        k("s_mul_i32 s%d, s%d, 192" % (S_T0, S_C))
        k("v_lshlrev_b32 v27, 3, v27")
    k("v_add_u32 v27, s%d, v27" % S_T0)
    for p in range(npt):
        k("v_add_u32 v30, %d, v27" % (p * (8 if att else 32)))
        k("v_lshrrev_b32 v31, 7, v30")
        k("v_and_b32 v30, 127, v30")
        k("v_xor_b32 v30, v30, v28")
        k("v_lshl_add_u32 v31, v31, 10, v29")
        k("v_add_u32 v%d, v30, v31" % (V_TA+p))
        k("v_add_u32 v%d, %d, v%d" % (V_TA+6+p, 2*WSLOT, V_TA+p))

def w_dma(s):
    return [("s_add_u32 m0, s%d, %d" % (S_WL, (s % RW)*WSLOT + (seg*3+lc)*1024 - lc*128),
             "buffer_load_dwordx4 v%d, s[%d:%d], s%d offen offset:%d lds" % (V_WD, SRD_W0+4*seg, SRD_W0+4*seg+3, S_WOFF, lc*128), ("W", s))
            for seg in range(2) for lc in range(3)]
def x_dma(u, i):
    return ("s_add_u32 m0, s%d, %d" % (S_XL, (u % RX)*XSLOT + i*1024 - u*128),
            "buffer_load_dwordx4 v%d, s[%d:%d], 0 offen offset:%d lds" % (V_XD+i, SRD_X, SRD_X+3, u*128), ("X", u))
def reads_for(s, npt):
    out = []; b = s & 1
    for rt in range(4):
        out.append("ds_read_b128 %s, v%d offset:%d" % (R(XF0 + (b*4+rt)*4, 4), V_XR + (s & 1), ((s >> 1) % RX)*XSLOT + rt*2048))
    slot = s % RW
    for p in range(npt):
        for seg in range(2):
            for h in range(2):
                out.append("ds_read_b64_tr_b16 %s, v%d offset:%d" % (R(WF0 + (b*12+p*2+seg)*4 + 2*h, 2), V_TA + p + (6 if slot >= 2 else 0), (slot & 1)*WSLOT + seg*3072 + h*512))
    return out
def acc(p, seg, rt): return ACC0 + ((p*2+seg)*4 + rt)*4

def late_setup_items():
    k = K()
    k("s_and_b32 s%d, s2, 7" % S_T1)
    k("s_lshr_b32 s%d, s2, 3" % S_OH)
    if cfg.P2M == 4:
        k("s_lshl_b32 s%d, s%d, 2" % (S_M64, S_T1)); k("s_and_b32 s%d, s%d, 3" % (S_T0, S_OH)); k("s_add_u32 s%d, s%d, s%d" % (S_M64, S_M64, S_T0))
        k("s_lshr_b32 s%d, s%d, 2" % (S_NT, S_OH))
    else:
        k("s_lshr_b32 s%d, s%d, 1" % (S_M64, S_T1)); k("s_lshl_b32 s%d, s%d, 3" % (S_M64, S_M64)); k("s_and_b32 s%d, s%d, 7" % (S_T0, S_OH)); k("s_add_u32 s%d, s%d, s%d" % (S_M64, S_M64, S_T0))
        k("s_and_b32 s%d, s%d, 1" % (S_NT, S_T1)); k("s_lshl_b32 s%d, s%d, 2" % (S_NT, S_NT)); k("s_lshr_b32 s%d, s%d, 3" % (S_T0, S_OH)); k("s_add_u32 s%d, s%d, s%d" % (S_NT, S_NT, S_T0))
    k("s_bfe_u32 s%d, s%d, 0x10001" % (S_T0, S_OH)); k("s_lshl_b32 s%d, s%d, 4" % (S_T0, S_T0))
    k("s_and_b32 s%d, s%d, 1" % (S_T2, S_OH)); k("s_lshl_b32 s%d, s%d, 1" % (S_OMT, S_T2))
    k("s_add_u32 s%d, s%d, s%d" % (S_OMT, S_OMT, S_T0)); k("s_add_u32 s%d, s%d, 12" % (S_OMT, S_OMT))
    k("s_lshl_b32 s%d, s%d, 4" % (S_T0, S_T2)); k("s_add_u32 s%d, s%d, 9" % (S_T0, S_T0))
    k("s_cmp_lt_u32 s%d, 20" % S_OH); k("s_cselect_b32 s%d, s%d, s%d" % (S_OMT, S_T0, S_OMT))
    k("s_cmp_ge_u32 s%d, 9" % S_OH); k("s_cselect_b32 s%d, 9, 0" % S_T2); k("s_cselect_b32 s94, 16, 0")
    k("s_sub_u32 s%d, s%d, s%d" % (S_T2, S_OH, S_T2))
    k("s_min_u32 s%d, s%d, 3" % (S_T0, S_T2)); k("s_add_u32 s%d, s%d, s%d" % (S_T0, S_T0, S_T2)); k("s_add_u32 s%d, s%d, s94" % (S_T0, S_T0))
    k("s_cmp_lt_u32 s%d, 18" % S_OH); k("s_cselect_b32 s%d, s%d, s%d" % (S_OMT, S_T0, S_OMT))
    k("s_lshr_b32 s%d, s%d, 4" % (S_OH, S_OMT)); k("s_and_b32 s%d, s%d, 15" % (S_OMT, S_OMT))
    k("s_lshl_b32 s%d, s%d, 1" % (S_T0, S_T1)); k("s_add_u32 s%d, s%d, s%d" % (S_OH, S_OH, S_T0))
    k("s_mul_i32 s%d, s%d, %d" % (S_T0, S_NT, 74*5120))
    srd(k, SRD_B, P_WS, B2_OFF, 74*5120, S_T0)
    k("s_mul_i32 s%d, s%d, 5120" % (S_BB, S_W))
    k("s_add_u32 s%d, s%d, 0x%x" % (S_CNT, P_WS, CNT_OFF))
    k("s_addc_u32 s%d, s%d, 0" % (S_CNT+1, P_WS+1))
    k("v_add_u32 v%d, 4096, v%d" % (V_L16B, V_L16))
    k("s_mov_b32 s%d, %s" % (S_C2, f32(LOG2E))); k("s_mov_b32 s%d, %s" % (S_C2+1, f32(LOG2E)))
    return [t for _, t in k.items]

def dma_queue():
    Q = []
    for st in range(20):
        if st % 2 == 0:
            u = st // 2
            for i in range(4): Q.append((-1 if u < RX else 2*(u-RX)+1, x_dma(u, i), False))
        it = w_dma(st)
        for i, d in enumerate(it): Q.append((-1 if st < RW else max(1, st-RW), d, i == len(it)-1))
    return Q
def wadv(k): k("s_add_u32 s%d, s%d, s%d" % (S_WOFF, S_WOFF, S_T3))
def issue_now(k, Q, n):
    for _ in range(n):
        av, it, last = Q.pop(0)
        k(it[0]); k.vm(it[1], it[2])
        if last: wadv(k)

def spread(items, s0, s1):
    out = {}; n = len(items); i = 0
    for s in range(s0, s1):
        c = -(-(n - i) // (s1 - s)); out[s] = items[i:i+c]; i += c
    return out

def capture(fn):
    q = K(); q.nl = 100000 + capture.n; capture.n += 100
    fn(q)
    assert not q.vmq and not q.lgq
    return q.items
capture.n = 0

def gemm_main(k, att, Q, extra, polls, xrd=None, xwait=None, xsetup=None):
    npt = 5 if att else 6
    Q = list(Q)
    astamp(k, 4)
    gemm_setup2(k, att)
    astamp(k, 5)
    issue_now(k, Q, cfg.N2)
    side = []
    for t in late_setup_items():
        if side and (t.startswith(("s_addc", "s_cselect", "v_cndmask")) ): side[-1] += "\n" + t
        else: side.append(t)
    blocks = []
    if xsetup:
        its = capture(xsetup)
        if any(kd == "l" for kd, _ in its): blocks = its
        else:
            for _, t in its:
                if side and t.startswith(("s_addc", "s_cselect", "v_cndmask")): side[-1] += "\n" + t
                else: side.append(t)
    rds = lambda s: reads_for(s, npt)
    stamp(k, 2)
    astamp(k, 6)
    k.wait(vm=[("X", 0), ("W", 0)])
    k("s_barrier")
    astamp(k, 7)
    aflush(k)
    stamp(k, 3)
    r0 = rds(0)
    for i, r in enumerate(r0): k.lg(r, ("r0", max(0, i-4)//2))
    astamp(k, 8)
    for s in range(20):
        b = s & 1
        rd = rds(s+1) if s < 19 else []
        if xrd and s in xrd: rd += xrd[s]
        dm = []
        while Q and Q[0][0] <= s and len(dm) < (cfg.MAXD0 if s == 0 else cfg.MAXD): dm.append(Q.pop(0))
        ex = [(0, e, False) for e in extra.get(s, [])]
        mix = []
        while dm or ex:
            if dm: mix.append(dm.pop(0))
            if ex and len(ex) >= len(dm): mix.append(ex.pop(0))
        dm = mix + [(0, e, False) for e in touch_items(s)]
        mf = []
        for p in range(npt):
            for seg in range(2):
                for rt in range(4):
                    a = acc(p, seg, rt)
                    mf.append("v_mfma_f32_16x16x32_bf16 %s, %s, %s, %s" % (R(a,4), R(WF0 + (b*12+p*2+seg)*4, 4), R(XF0 + (b*4+rt)*4, 4), R(a,4) if s else "0"))
        nm = len(mf); nd = len(dm)
        at = [int(i * (nm - 3) / max(nd, 1)) for i in range(nd)]
        for i in range(1, nd): at[i] = max(at[i], at[i-1] + 2)
        pend = None
        m1 = nm - 4 - (len(rd) + 1)//2 if s == 0 else 0
        for m, t in enumerate(mf):
            if s == 0 and m % 4 == 0 and not cfg.AST: k.wait(lg=("r0", m//4))
            if s == 0 and m == 0 and cfg.AST: k.wait(lg="all")
            if s == 0 and m == m1:
                k.wait(vm=("W", 1), lg="all"); k("s_barrier")
            k(t)
            used = 0
            if m >= m1:
                for _ in range(2 if s == 0 else 1):
                    if rd: k.lg(rd.pop(0)); used += 1
            if (s+1) in polls and m == nm - 1: poll_issue(k, P_DBG, polls[s+1], ("poll", s+1))
            if pend is not None:
                k.vm(pend[1][1], pend[1][2]); used += 1
                if pend[2]: wadv(k)
                pend = None
            elif dm and m >= at[nd - len(dm)]:
                pend = dm.pop(0)
                if pend[1][0]: k(pend[1][0]); used += 1
            while side and used < 2 and s >= 1:
                k(side.pop(0)); used += 1
        assert not rd and not dm and pend is None, (s, rd, dm, pend)
        if s == cfg.BLK and blocks:
            assert not side
            k.items += blocks
        if s < 19:
            k.wait(vm=[("W", s+2), ("X", (s+2) >> 1)] + (xwait.get(s, []) if xwait else []), lg="all")
        if s in polls: poll_check(k, P_DBG, 16, ("poll", s), sleep=8, barrier=(s == 19))
        if s < 19:
            k("s_barrier")
            if s == 0: aflush(k)
            if s < 4: astamp(k, 11 + s)
            if s == 4: aflush(k)
            if cfg.STG and s % 2 == 1: stamp(k, 17 + s//2)
    assert not Q and not side
    stamp(k, 4)

def ffn_setup(k):
    k("s_lshl_b32 s75, s%d, 1" % S_MT)
    k("s_add_u32 s75, s75, s%d" % S_RH)
    k("s_mul_i32 s75, s75, 74")
    k("s_mul_i32 s76, s%d, 6" % S_TY)
    k("s_add_u32 s75, s75, s76")
    k("s_mul_i32 s76, s%d, 3" % S_C)
    k("s_add_u32 s75, s75, s76")
    k("s_add_u32 s75, s75, 20")
    k("s_lshl_b32 s75, s75, 12")
    k("s_mul_i32 s%d, s%d, %d" % (S_SIG, S_MT, cfg.CS))
    srd(k, SRD_O, P_WS, A2_OFF, A2_SZ)

def ffn_role(k, Q):
    extra = spread(b_items(list(range(32)) + list(range(62, 70))), cfg.PS1, 20)
    gemm_main(k, False, Q, extra, {cfg.PS1-1: D_S1, 19: D_S3}, xsetup=ffn_setup)
    fd = Feed(k, b_items(range(32, 62)) + bo_items())
    per, last = cfg.FFE
    n = 0
    for ks in range(3):
        for rt in range(4):
            T = 6 + (n & 1)*8; O = 22 + (n & 1)*4; n += 1
            if O & 3: O = (24, 28)[(n-1) & 1] - 0
            fe = lambda i: fd.emit(1) if (n <= last and i < per) else None
            G = [acc(2*ks+j, 0, rt) for j in range(2)]; U = [acc(2*ks+j, 1, rt) for j in range(2)]
            O = U[0]
            prs = [(j, h) for j in range(2) for h in range(2)]
            for i, (j, h) in enumerate(prs):
                k("v_pk_mul_f32 %s, %s, s[%d:%d] neg_lo:[0,1] neg_hi:[0,1]" % (vr(T+2*i,2), vr(G[j]+2*h,2), S_C2, S_C2+1))
            fe(0)
            for i in range(8): k("v_exp_f32 v%d, v%d" % (T+i, T+i))
            fe(2)
            for i, (j, h) in enumerate(prs):
                k("v_pk_mul_f32 %s, %s, %s" % (vr(G[j]+2*h,2), vr(G[j]+2*h,2), vr(U[j]+2*h,2)))
            for i in range(4): k("v_pk_add_f32 %s, %s, 1.0 op_sel_hi:[1,0]" % (vr(T+2*i,2), vr(T+2*i,2)))
            fe(1)
            for i in range(8): k("v_rcp_f32 v%d, v%d" % (T+i, T+i))
            fe(3)
            for i, (j, h) in enumerate(prs):
                k("v_pk_mul_f32 %s, %s, %s" % (vr(T+2*i,2), vr(G[j]+2*h,2), vr(T+2*i,2)))
            for i in range(4): k("v_cvt_pk_bf16_f32 v%d, v%d, v%d" % (O+i, T+2*i, T+2*i+1))
            k.vm("buffer_store_dwordx4 %s, v%d, s[%d:%d], s75 offen offset:%d%s" % (vr(O,4), V_L16, SRD_O, SRD_O+3, rt*1024, SC), "st")
        if ks < 2: k("s_add_u32 s75, s75, 4096")
    stamp(k, 26)
    def presig():
        k.wait(vm="st")
        stamp(k, 5)
        signal(k, S_CNT, "s%d" % S_SIG)
    return presig, fd.q

def phi_dma(seg):
    pre = "s_add_u32 s%d, s%d, s81\ns_addc_u32 s%d, s%d, 0\n" % (SRD_P, SRD_P, SRD_P+1, SRD_P+1) if seg else ""
    return [((pre if i == 0 else "") + "s_add_u32 m0, s%d, %d" % (S_XL, XSLOT if seg else SPARE - XBASE),
             "buffer_load_dwordx4 v%d, s[%d:%d], 0 offen offset:%d lds" % (V_L16, SRD_P, SRD_P+3, i*1024), ("P", seg)) for i in range(4)]
def phireg(seg, to, s):
    i = s*5 + to
    if seg == 1: return 256 + 48 + 4*i if i < 10 else 256 + 108 + 4*(i-10)
    return 256 + 4*i if i < 12 else 256 + 96 + 4*(i-12)
V_PHA = 23
def phi_reads(seg):
    out = []
    for s in range(3):
        for to in range(5):
            for h in range(2):
                d = phireg(seg, to, s) + 2*h
                b = 0 if seg else SPARE - XBASE - XSLOT
                if s == 2 and h == 1: out.append("ds_read_b64_tr_b16 %s, v26 offset:%d" % (R(d,2), b))
                else: out.append("ds_read_b64_tr_b16 %s, v%d offset:%d" % (R(d,2), V_PHA, b + (8*s+4*h)*40 + 8*to))
    return out
def cvt_in(seg, rt, B):
    out = []
    for t in range(5):
        a = acc(t, seg, rt)
        out.append("v_cvt_pk_bf16_f32 v%d, v%d, v%d" % (B+2*t, a, a+1))
        out.append("v_cvt_pk_bf16_f32 v%d, v%d, v%d" % (B+2*t+1, a+2, a+3))
    return out
def phi_mf(seg, rt, B):
    return ["v_mfma_f32_16x16x32_bf16 %s, %s, %s, %s" % (vr(acc(to,seg,rt),4), R(phireg(seg, to, s),4), vr(B+4*s,4), vr(acc(to,seg,rt),4) if s else "0")
            for s in range(3) for to in range(5)]

PKRS = 352; VRS = 224; PKSZ = 128*PKRS; VB = 2*PKSZ; VSZ = 128*VRS
V_E0, V_E1, V_E2, V_E3, V_E4, V_E5, V_E6 = 27, 28, 29, 30, 60, 61, 62
def att_common_setup(k):
    k("v_lshrrev_b32 v50, 4, v0")
    k("v_and_b32 v51, 15, v0")
    k("v_bfe_u32 v52, v0, 2, 2")
    k("v_and_b32 v53, 3, v0")
    k("v_mul_u32_u24 v48, 800, v50")
    k("v_mad_u32_u24 v48, v52, 40, v48")
    k("v_cmp_eq_u32 vcc, v50, v53")
    k("v_mov_b32 v49, 3200")
    k("v_cndmask_b32 v48, v49, v48, vcc")
    k("s_add_u32 s%d, s%d, %d" % (S_T2, S_XL, XSLOT))
    k("v_add_u32 v%d, s%d, v48" % (V_PHA, S_T2))
    k("v_add_u32 v26, s%d, v49" % S_T2)
def kv_setup(k):
    k("s_add_u32 s%d, s%d, %d" % (S_SIG, S_TY, C_K - 9))
    k("s_mul_i32 s%d, s%d, %d" % (S_SIG, S_SIG, cfg.CS))
    k("s_lshl_b32 s%d, s%d, 6" % (S_T0, S_RH))
    k("v_add_u32 v48, s%d, v51" % S_T0)
    k("s_mul_i32 s%d, s%d, %d" % (S_T0, S_C, PKSZ))
    k("v_mul_u32_u24 v%d, %d, v48" % (V_E0, PKRS))
    k("v_mul_u32_u24 v49, 80, v50")
    k("v_add3_u32 v%d, v%d, v49, s%d" % (V_E0, V_E0, S_T0))
    k("s_mul_i32 s%d, s%d, %d" % (S_T1, S_C, VSZ))
    k("s_add_u32 s%d, s%d, %d" % (S_T1, S_T1, VB))
    k("v_mul_u32_u24 v%d, %d, v48" % (V_E1, VRS))
    k("v_mul_u32_u24 v49, 48, v50")
    k("v_add3_u32 v%d, v%d, v49, s%d" % (V_E1, V_E1, S_T1))
    k("v_lshrrev_b32 v48, 2, v0")
    k("v_lshlrev_b32 v49, 3, v53")
    k("s_mul_i32 s%d, s%d, 160" % (S_T2, S_RH))
    k("s_add_u32 s%d, s%d, s%d" % (S_T0, S_T0, S_T2))
    k("v_mul_u32_u24 v%d, %d, v48" % (V_E2, PKRS))
    k("v_add3_u32 v%d, v%d, v49, s%d" % (V_E2, V_E2, S_T0))
    k("s_mul_i32 s%d, s%d, 96" % (S_T2, S_RH))
    k("s_add_u32 s%d, s%d, s%d" % (S_T1, S_T1, S_T2))
    k("v_mul_u32_u24 v%d, %d, v48" % (V_E3, VRS))
    k("v_add3_u32 v%d, v%d, v49, s%d" % (V_E3, V_E3, S_T1))
    k("s_add_u32 s%d, s%d, %d" % (S_T2, S_XL, SPARE - XBASE))
    k("v_mul_u32_u24 v48, 80, v51")
    k("v_lshl_add_u32 v48, v50, 3, v48")
    k("v_add_u32 v%d, s%d, v48" % (V_E5, S_T2))
    k("v_add_u32 v%d, s%d, v%d" % (V_E6, S_T2, V_L16))
    k("v_mov_b32 v48, 0x7fffffff")
    k("v_cmp_gt_u32 vcc, 32, v0")
    k("v_cndmask_b32 v%d, v48, v%d, vcc" % (V_E4, V_L16))
    k("s_lshl_b32 s78, s79, 1")
    k("s_add_u32 s78, s78, s%d" % S_RH)
    k("s_lshl_b32 s78, s78, 4")
    k("s_add_u32 s78, s78, s%d" % S_MT)
    k("s_mul_i32 s78, s78, %d" % KVPS)
    k("v_cmp_gt_u32 s[72:73], 2, v50")
    k("v_cmp_gt_u32 s[74:75], 5, v51")
    k("s_and_b64 s[76:77], s[72:73], s[74:75]")
    srd(k, SRD_O, P_WS, KVP_OFF, KVP_SZ)
    for r in (42, 43, 54, 55): k("v_mov_b32 v%d, 0" % r)
def q_setup(k):
    k("s_mov_b32 s%d, 81920" % S_T0)
    k("v_mul_lo_u32 v48, v50, s%d" % S_T0)
    k("v_lshl_add_u32 v%d, v51, 4, v48" % V_E0)
    k("v_lshl_add_u32 v%d, v51, 3, v48" % V_E1)
    k("v_lshlrev_b32 v%d, 2, v0" % V_E2)
    k("s_mul_i32 s%d, s79, %d" % (S_T1, 4*81920))
    k("s_lshl_b32 s%d, s%d, 1" % (S_T0, S_MT))
    k("s_add_u32 s%d, s%d, s%d" % (S_T0, S_T0, S_RH))
    k("s_lshl_b32 s75, s%d, 10" % S_T0)
    k("s_add_u32 s75, s75, s%d" % S_T1)
    k("s_add_u32 s76, s75, 32768")
    k("s_lshl_b32 s77, s%d, 9" % S_T0)
    k("s_add_u32 s77, s77, s%d" % S_T1)
    k("s_add_u32 s77, s77, 65536")
    k("s_lshl_b32 s78, s%d, 8" % S_T0)
    k("s_add_u32 s78, s78, %d" % (G_OFF - PQ_OFF))
    k("s_add_u32 s%d, s%d, %d" % (S_SIG, S_MT, C_Q))
    k("s_mul_i32 s%d, s%d, %d" % (S_SIG, S_SIG, cfg.CS))
    srd(k, SRD_O, P_WS, PQ_OFF, G_OFF + G_SZ - PQ_OFF)
    for r in (42, 43, 54, 55): k("v_mov_b32 v%d, 0" % r)

def softmax_pm(k, P, E, T, O, fd=None, mf=None, side=None):
    def fe(n=1):
        if fd: fd.emit(n)
    mf = list(mf or []); side = list(side or [])
    v = [p + i for p in P for i in range(2)]
    k("v_max3_f32 v%d, v%d, v%d, v%d" % (T, v[0], v[1], v[2]))
    k("v_min3_f32 v%d, v%d, v%d, v%d" % (T+2, v[0], v[1], v[2]))
    k("v_max3_f32 v%d, v%d, v%d, v%d" % (T+1, v[3], v[4], v[5]))
    k("v_min3_f32 v%d, v%d, v%d, v%d" % (T+3, v[3], v[4], v[5]))
    for n, i in enumerate(range(6, 20, 2)):
        c = n & 1
        k("v_max3_f32 v%d, v%d, v%d, v%d" % (T+c, T+c, v[i], v[i+1]))
        k("v_min3_f32 v%d, v%d, v%d, v%d" % (T+2+c, T+2+c, v[i], v[i+1]))
    fe()
    k("v_max_f32 v%d, v%d, v%d" % (T, T, T+1))
    k("v_min_f32 v%d, v%d, v%d" % (T+2, T+2, T+3))
    k("v_mul_f32 v%d, %s, v%d" % (T, f32(-LOG2E), T))
    k("v_mul_f32 v%d, %s, v%d" % (T+2, f32(LOG2E), T+2))
    for i, p in enumerate(P):
        k("v_pk_fma_f32 %s, %s, s[%d:%d], %s op_sel_hi:[1,1,0]" % (vr(E+2*i,2), vr(p,2), S_C2, S_C2+1, vr(T,2)))
    fe()
    for i, p in enumerate(P):
        k("v_pk_fma_f32 %s, %s, s[%d:%d], %s op_sel_hi:[1,1,0] neg_lo:[0,1,0] neg_hi:[0,1,0]" % (vr(p,2), vr(p,2), S_C2, S_C2+1, vr(T+2,2)))
    ex = [E+i for i in range(20)] + v
    for i, x in enumerate(ex):
        if i % 2 == 0:
            if mf: k(mf.pop(0))
            if side: k.lg(*side.pop(0))
        if i % 12 == 5: fe()
        k("v_exp_f32 v%d, v%d" % (x, x))
    assert not mf and not side
    Ep = [E+2*i for i in range(10)]
    k("v_pk_add_f32 %s, %s, %s" % (vr(T+4,2), vr(Ep[0],2), vr(Ep[1],2)))
    k("v_pk_add_f32 %s, %s, %s" % (vr(T,2), vr(Ep[2],2), vr(Ep[3],2)))
    k("v_pk_add_f32 %s, %s, %s" % (vr(T+6,2), vr(P[0],2), vr(P[1],2)))
    k("v_pk_add_f32 %s, %s, %s" % (vr(T+2,2), vr(P[2],2), vr(P[3],2)))
    for i in range(4, 10, 2):
        k("v_pk_add_f32 %s, %s, %s" % (vr(T+4,2), vr(T+4,2), vr(Ep[i],2)))
        k("v_pk_add_f32 %s, %s, %s" % (vr(T,2), vr(T,2), vr(Ep[i+1],2)))
        k("v_pk_add_f32 %s, %s, %s" % (vr(T+6,2), vr(T+6,2), vr(P[i],2)))
        k("v_pk_add_f32 %s, %s, %s" % (vr(T+2,2), vr(T+2,2), vr(P[i+1],2)))
    k("v_pk_add_f32 %s, %s, %s" % (vr(T+4,2), vr(T+4,2), vr(T,2)))
    k("v_pk_add_f32 %s, %s, %s" % (vr(T+6,2), vr(T+6,2), vr(T+2,2)))
    fe()
    k("v_add_f32 v%d, v%d, v%d" % (T+4, T+4, T+5))
    k("v_add_f32 v%d, v%d, v%d" % (T+6, T+6, T+7))
    k("v_rcp_f32 v%d, v%d" % (T+4, T+4))
    k("v_rcp_f32 v%d, v%d" % (T+6, T+6))
    for i in range(10): k("v_pk_mul_f32 %s, %s, %s op_sel_hi:[1,0]" % (vr(Ep[i],2), vr(Ep[i],2), vr(T+4,2)))
    fe()
    for i in range(10): k("v_pk_mul_f32 %s, %s, %s op_sel_hi:[1,0]" % (vr(P[i],2), vr(P[i],2), vr(T+6,2)))
    for i in range(10): k("v_cvt_pk_bf16_f32 v%d, v%d, v%d" % (O+i, Ep[i], Ep[i]+1))
    fe()
    for i in range(10): k("v_cvt_pk_bf16_f32 v%d, v%d, v%d" % (O+10+i, P[i], P[i]+1))

def att_extra(two):
    extra = spread(b_items(range(cfg.NBA)), cfg.PS1, 20)
    extra[cfg.PHS] = phi_dma(0)
    extra[15] = phi_dma(1)
    return extra

def att_setup(k):
    d = k.newlabel("Lq"); e = k.newlabel("Le")
    att_common_setup(k)
    k("v_mov_b32 v%d, 0x7fffffff" % V_E4)
    k("s_cmp_ge_u32 s%d, 13" % S_TY); k("s_cbranch_scc1 %s" % d)
    kv_setup(k)
    k("s_branch %s" % e)
    k.label(d)
    q_setup(k)
    k.label(e)
def att_loop(k, Q):
    gemm_main(k, True, Q, att_extra(True), {cfg.PS1-1: D_S1}, xrd={19: phi_reads(0)}, xwait={18: [("P", 0)]}, xsetup=att_setup)

def q_role(k):
    k("s_nop 7")
    k.wait(vm=("P", 1))
    for t in cvt_in(0, 0, 32): k(t)
    rd1 = [("lg", r, "ph1") for r in phi_reads(1)]
    def outs(u):
        seg, rt = u >> 2, u & 3
        O = (240, 8)[u & 1]
        f = cvt_in(seg, rt, O)
        f.insert(4, ("vm", "buffer_store_dwordx4 %s, v%d, s[%d:%d], s75 offen offset:%d%s" % (vr(O,4), V_E0, SRD_O, SRD_O+3, rt*256, SC), "st"))
        f.insert(9, ("vm", "buffer_store_dwordx4 %s, v%d, s[%d:%d], s76 offen offset:%d%s" % (vr(O+4,4), V_E0, SRD_O, SRD_O+3, rt*256, SC), "st"))
        f.append(("vm", "buffer_store_dwordx2 %s, v%d, s[%d:%d], s77 offen offset:%d%s" % (vr(O+8,2), V_E1, SRD_O, SRD_O+3, rt*128, SC), "st"))
        if u == 3: f += ["s_add_u32 s%d, s%d, %d" % (x, x, 16*81920) for x in (75, 76, 77)]
        return f
    k.wait(lg="all")
    for u in range(8):
        seg, rt = u >> 2, u & 3
        fill = []
        if u < 7: fill += cvt_in((u+1) >> 2, (u+1) & 3, 32 + ((u+1) & 1)*12)
        if u == 0: fill += rd1[:14]
        elif u == 1: fill += outs(0) + rd1[14:21]
        elif u == 2: fill += outs(1) + rd1[21:28]
        elif u == 3: fill += rd1[28:] + outs(2)
        else: fill += outs(u-1)
        if u == 4: k.wait(lg="all")
        weave(k, phi_mf(seg, rt, 32 + (u & 1)*12), fill)
    weave(k, [], outs(7))
    k.wait(vm="st")
    stamp(k, 5)
    signal(k, S_CNT, "s%d" % S_SIG)

def kv_role(k):
    EREG = 6; TREG = 244; O = 224
    for t in cvt_in(0, 0, 32): k(t)
    k.wait(lg="all")
    weave(k, phi_mf(0, 0, 32), cvt_in(0, 1, 44))
    if not cfg.STG: stamp(k, 17)
    def vout(rt):
        q = [acc(t, 1, rt) + i for t in range(5) for i in range(4)]
        f = ["v_cvt_pk_bf16_f32 v%d, v%d, v%d" % (q[i], q[2*i], q[2*i+1]) for i in range(10)]
        f += ["v_mov_b32 v%d, 0x3f80" % q[10], "v_mov_b32 v%d, 0" % q[11]]
        w = [("ds_write_b128 v%d, %s offset:%d" % (V_E1, vr(q[4*i],4), rt*16*VRS + 16*i), "vw") for i in range(3)]
        return f, w
    def vfr(n, bt): return acc((n*2+bt) >> 2, 1, (n*2+bt) & 3)
    vreads = []
    for n in range(8):
        j, ks = n >> 2, n & 3
        for bt in range(2):
            for h in range(2):
                vreads.append(("ds_read_b64_tr_b16 %s, v%d offset:%d" % (vr(vfr(n,bt)+2*h,2), V_E3, (32*ks+16*h)*VRS + j*48 + bt*32), "vf"))
    fd = Feed(k, [])
    for rt in range(4):
        P = [acc(t, 0, rt) + 2*h for t in range(5) for h in range(2)]
        mf = phi_mf(0, rt+1, 32 + ((rt+1) & 1)*12) if rt < 3 else []
        if rt == 3: poll_issue(k, P_DBG, D_S3, "s3")
        if rt == cfg.KVB0 and cfg.KVN >= 47: fd.q += b_items(range(32, 47))
        if rt == 3 and cfg.KVN >= 62: fd.q += b_items(range(47, 62))
        side = []
        if rt < 2:
            for r in (2*rt, 2*rt+1):
                f, w = vout(r)
                for t in f: k(t)
                side += w
        else:
            if rt == 2: k.wait(lg="vw"); k("s_barrier")
            side = vreads[(rt-2)*16:(rt-1)*16]
        softmax_pm(k, P, EREG, TREG, O, fd, mf, side)
        for i in range(5):
            k.lg("ds_write_b128 v%d, %s offset:%d" % (V_E0, vr(O+4*i,4), rt*16*PKRS + 16*i), ("pw", rt))
        if rt < 2:
            for t in cvt_in(0, rt+2, 32 + (rt & 1)*12): k(t)
        if not cfg.STG: stamp(k, 18+rt)
    k.wait(lg="all")
    k("s_barrier")
    if not cfg.STG: stamp(k, 22)
    KAQ = [32, 36, 40, 44, 48, 52, 224, 228, 232, 236, 240, 244]
    def pfr(n, ft): return acc(((n % 6)*3+ft) >> 2, 0, ((n % 6)*3+ft) & 3)
    def rd(n):
        j, ks = n >> 2, n & 3
        return [("lg", "ds_read_b64_tr_b16 %s, v%d offset:%d" % (vr(pfr(n,ft)+2*h,2), V_E2, (32*ks+16*h)*PKRS + j*80 + ft*32), ("f", n)) for ft in range(3) for h in range(2)]
    def pack(jj):
        f = []
        for ft in range(3):
            for bt in range(2):
                a = KAQ[(jj*3+ft)*2+bt]
                f += ["v_cvt_pk_bf16_f32 v%d, v%d, v%d" % (a, a, a+1), "v_cvt_pk_bf16_f32 v%d, v%d, v%d" % (a+1, a+2, a+3)]
                mask = [[None, "s[74:75]"], [None, "s[74:75]"], ["s[72:73]", "s[76:77]"]][ft][bt]
                w = "ds_write_b64 v%d, %s offset:%d" % (V_E5, vr(a,2), jj*1680 + bt*1280 + ft*32)
                if mask: w = "s_mov_b64 exec, %s\n%s\ns_mov_b64 exec, -1" % (mask, w)
                f.append(("lg", w, "cw"))
        return f
    weave(k, [], rd(0) + rd(1))
    pk0 = pack(0)
    for n in range(8):
        j, ks = n >> 2, n & 3
        k.wait(lg=("f", n))
        mf = []
        for ft in range(3):
            for bt in range(2):
                a = KAQ[(j*3+ft)*2+bt]
                mf.append("v_mfma_f32_16x16x32_bf16 %s, %s, %s, %s" % (vr(a,4), vr(pfr(n,ft),4), vr(vfr(n,bt),4), vr(a,4) if ks else "0"))
        fill = rd(n+2) if n < 6 else []
        if n < 4: fill.append(lambda: fd.emit(1))
        if n >= 5: fill += pk0[(n-5)*6:(n-4)*6]
        weave(k, mf, fill)
    weave(k, [], pack(1))
    k.wait(lg="all")
    for i in range(4): k.lg("ds_read_b128 %s, v%d offset:%d" % (vr(64+4*i,4), V_E6, i*1024), ("cr", i))
    for i in range(4):
        k.wait(lg=("cr", i))
        k.vm("buffer_store_dwordx4 %s, v%d, s[%d:%d], s78 offen offset:%d%s" % (vr(64+4*i,4), V_L16 if i < 3 else V_E4, SRD_O, SRD_O+3, i*1024, SC), "st")
    stamp(k, 26)
    k.wait(vm="st")
    poll_check(k, P_DBG, 16, "s3", sleep=8, barrier=False)
    stamp(k, 5)
    signal(k, S_CNT, "s%d" % S_SIG)
    fd.drain()

def aux_role(k):
    NSL = 9
    order = [("d", i) for i in range(9)] + [("o", i) for i in range(4)]
    NU = len(order)
    k("s_mov_b32 s%d, 1280" % S_STRIDE)
    k("s_lshl_b32 s75, s%d, 2" % S_MT)
    k("s_add_u32 s75, s75, s%d" % S_W)
    k("s_mul_i32 s76, s75, 205"); k("s_lshr_b32 s76, s76, 11")
    k("s_mul_i32 s77, s76, 10"); k("s_sub_u32 s77, s75, s77")
    k("s_cmp_ge_u32 s76, 6")
    k("s_cselect_b32 s78, 0x4000000, 0")
    k("s_mul_i32 s79, s76, %d" % (32*1280))
    k("s_lshl_b32 s80, s77, 7")
    k("s_add_u32 s79, s79, s80")
    k("s_add_u32 s79, s79, s78")
    k("v_lshrrev_b32 v24, 3, v0"); k("v_and_b32 v25, 7, v0")
    k("v_and_b32 v26, 6, v24")
    k("v_xor_b32 v26, v26, v25")
    k("v_lshlrev_b32 v26, 4, v26")
    k("v_mad_u32_u24 v5, v24, s%d, v26" % S_STRIDE)
    for i in range(1, 4): k("v_add_u32 v%d, %d, v5" % (5+i, i*8*1280))
    k("s_mul_i32 s%d, s%d, %d" % (S_WL, S_W, NSL*4096))
    k("s_waitcnt lgkmcnt(0)")
    srd(k, SRD_W1, P_WD, 0, 1728*1280)
    def load(n):
        kind, i = order[n]
        sg, vb = (SRD_W1, 5) if kind == "d" else (SRD_W0, 12)
        k("s_add_u32 s81, s79, %d" % (i*6*32*1280))
        for j in range(4):
            k("s_add_u32 m0, s%d, %d" % (S_WL, (n % NSL)*4096 + j*1024))
            k.vm("buffer_load_dwordx4 v%d, s[%d:%d], s81 offen nt lds" % (vb+j, sg, sg+3), ("u", n))
    D = cfg.AUXD
    for n in range(D): load(n)
    srd(k, SRD_W0, P_WO, 0, 640*1280)
    k("v_lshrrev_b32 v27, 2, v24"); k("v_and_b32 v28, 3, v24")
    k("v_lshl_add_u32 v27, v27, 3, v28")
    k("v_mad_u32_u24 v12, v27, s%d, v26" % S_STRIDE)
    for i in range(1, 4): k("v_add_u32 v%d, %d, v12" % (12+i, (16*(i&1) + 4*(i>>1))*1280))
    srd(k, SRD_O, P_WS, B2_OFF, B2_SZ)
    for t in late_setup_items(): k(t)
    k("s_cmp_eq_u32 s%d, 0" % S_MT)
    k("s_cselect_b32 s%d, %d, 0" % (S_T0, 96*cfg.CS))
    srd(k, 96, P_WS, CNT_OFF, "s%d" % S_T0)
    for i in range(4): k("v_mov_b32 v%d, 0" % (56+i))
    k("s_mul_i32 s%d, s%d, %d" % (S_T0, S_W, 24*cfg.CS))
    k("v_mul_u32_u24 v60, %d, v24" % cfg.CS); k("v_lshl_add_u32 v60, v25, 4, v60")
    for i in range(3):
        k.vm("buffer_store_dwordx4 v[56:59], v60, s[96:99], s%d offen%s" % (S_T0, SC), ("st", 0))
        k("s_add_u32 s%d, s%d, %d" % (S_T0, S_T0, 8*cfg.CS))
    k("v_lshrrev_b32 v24, 2, v0")
    k("v_bfe_u32 v25, v24, 1, 2")
    k("v_and_b32 v26, 3, v0")
    k("v_lshlrev_b32 v24, 7, v24")
    k("v_lshl_add_u32 v24, v26, 3, v24")
    k("v_add_u32 v24, s%d, v24" % S_WL)
    for b in range(4):
        k("v_xor_b32 v26, %d, v25" % b)
        k("v_lshl_add_u32 v%d, v26, 5, v24" % (20+b))
    for b in range(4):
        k("s_lshl_b32 s72, s77, 2"); k("s_add_u32 s72, s72, %d" % b)
        k("s_mul_i32 s73, s72, 205"); k("s_lshr_b32 s73, s73, 10")
        k("s_mul_i32 s74, s73, 5"); k("s_sub_u32 s72, s72, s74")
        k("s_mul_i32 s73, s73, 74"); k("s_add_u32 s73, s73, s76")
        k("s_mul_i32 s73, s73, 5"); k("s_add_u32 s73, s73, s72")
        k("s_lshl_b32 s73, s73, 10")
        k("s_add_u32 s%d, s73, s78" % (64+b))
    k("s_cmp_lt_u32 s76, 2")
    k("s_cselect_b32 s82, %d, 0x4000000" % (18*5120) if False else "s_cselect_b32 s82, 0, 0x4000000")
    stamp(k, 1)
    for n in range(NU):
        kind, i = order[n]
        k.wait(vm=("u", n))
        F = 64 + (n % 4)*16
        for b in range(4):
            for h in range(2):
                k.lg("ds_read_b64_tr_b16 %s, v%d offset:%d" % (vr(F+4*b+2*h,2), 20+b, (n % NSL)*4096 + h*2048))
        off = ((20 if kind == "d" else 0) + 6*i)*5120
        for b in range(4):
            k("s_add_u32 s%d, s%d, %d" % (72+b, 64+b, off))
            if kind == "o" and i == 3: k("s_add_u32 s%d, s%d, s82" % (72+b, 72+b))
        k.wait(lg="all")
        for b in range(4):
            k.vm("buffer_store_dwordx4 %s, v%d, s[%d:%d], s%d offen%s" % (vr(F+4*b,4), V_L16, SRD_O, SRD_O+3, 72+b, SC), ("st", n))
        if n + D < NU: load(n + D)
        if n == 9:
            k.wait(vm=("st", 8)); signal(k, P_DBG, D_S1); stamp(k, 2)
    k.wait(vm="all")
    signal(k, P_DBG, D_S3)
    stamp(k, 4)
    k("s_mul_i32 s%d, s%d, %d" % (S_T0, S_MT, 128*1280))
    srd(k, SRD_X, P_X, 0, 128*1280, S_T0)
    srd(k, SRD_P, P_GW, 0, 1280)
    srd(k, SRD_W0, P_WS, G_OFF, G_SZ)
    k("v_and_b32 v24, 15, v0"); k("v_lshrrev_b32 v25, 4, v0")
    k("v_lshlrev_b32 v26, 4, v24")
    for j in range(5): k.vm("buffer_load_dwordx4 %s, v26, s[%d:%d], 0 offen offset:%d" % (vr(72+4*j,4), SRD_P, SRD_P+3, 256*j), "gw")
    k("s_lshl_b32 s76, s%d, 5" % S_W)
    k("v_lshlrev_b32 v27, 3, v25"); k("v_add_u32 v27, s76, v27")
    k("v_mul_u32_u24 v27, 1280, v27")
    k("v_add_u32 v27, v27, v26")
    k("s_mov_b32 s74, 0")
    for it in range(8):
        for j in range(5): k.vm("buffer_load_dwordx4 %s, v27, s[%d:%d], s74 offen offset:%d" % (vr(96+it*20+4*j,4), SRD_X, SRD_X+3, 256*j), ("gx", it))
        k("s_add_u32 s74, s74, 1280")
    poll_issue(k, P_DBG, D_S3, "s3")
    k("v_mov_b32 v29, 0")
    for it in range(8):
        k.wait(vm=("gx", it))
        k("v_mov_b32 v30, 0")
        for j in range(20): k("v_dot2c_f32_bf16 v30, v%d, v%d" % (96+it*20+j, 72+j))
        k("s_nop 3")
        for sh in (8, 4, 2, 1): k("v_add_f32_dpp v30, v30, v30 row_ror:%d row_mask:0xf bank_mask:0xf" % sh)
        k("v_cmp_eq_u32 vcc, %d, v24" % it)
        k("v_cndmask_b32 v29, v29, v30, vcc")
    k("v_mul_f32 v29, %s, v29" % f32(-LOG2E))
    k("v_exp_f32 v29, v29")
    k("v_add_f32 v29, 1.0, v29")
    k("v_rcp_f32 v29, v29")
    k("v_lshl_add_u32 v28, v25, 3, v24"); k("v_lshlrev_b32 v28, 2, v28")
    k("v_mov_b32 v30, 0x7fffffff")
    k("v_cmp_gt_u32 vcc, 8, v24")
    k("v_cndmask_b32 v28, v30, v28, vcc")
    k("s_lshl_b32 s74, s%d, 9" % S_MT); k("s_lshl_b32 s76, s%d, 7" % S_W); k("s_add_u32 s74, s74, s76")
    k.vm("buffer_store_dword v29, v28, s[%d:%d], s74 offen%s" % (SRD_W0, SRD_W0+3, SC), "gs")
    poll_check(k, P_DBG, 16, "s3", sleep=32, barrier=False)
    k.wait(vm="gs")
    k("s_add_u32 s74, s%d, %d" % (S_MT, C_Q)); k("s_mul_i32 s74, s74, %d" % cfg.CS)
    signal(k, S_CNT, "s74")
    stamp(k, 5)
    it = b_items(range(70)) + bo_items()
    fd = Feed(k, it)
    for i in range(len(it)):
        fd.emit(1)
        k("s_waitcnt vmcnt(%d)" % cfg.AUXT)

def pack_inplace(v, E):
    out = ["v_cvt_pk_bf16_f32 v%d, v%d, v%d" % (v[10+i], v[2*i], v[2*i+1]) for i in range(9, -1, -1)]
    out += ["v_cvt_pk_bf16_f32 v%d, v%d, v%d" % (v[i], E+2*i, E+2*i+1) for i in range(10)]
    return out
def minmax(v, T):
    out = ["v_max3_f32 v%d, v%d, v%d, v%d" % (T, v[0], v[1], v[2]), "v_min3_f32 v%d, v%d, v%d, v%d" % (T+2, v[0], v[1], v[2]),
           "v_max3_f32 v%d, v%d, v%d, v%d" % (T+1, v[3], v[4], v[5]), "v_min3_f32 v%d, v%d, v%d, v%d" % (T+3, v[3], v[4], v[5])]
    for n, i in enumerate(range(6, 20, 2)):
        c = n & 1
        out += ["v_max3_f32 v%d, v%d, v%d, v%d" % (T+c, T+c, v[i], v[i+1]), "v_min3_f32 v%d, v%d, v%d, v%d" % (T+2+c, T+2+c, v[i], v[i+1])]
    out += ["v_max_f32 v%d, v%d, v%d" % (T, T, T+1), "v_min_f32 v%d, v%d, v%d" % (T+2, T+2, T+3),
            "v_mul_f32 v%d, %s, v%d" % (T, f32(-LOG2E), T), "v_mul_f32 v%d, %s, v%d" % (T+2, f32(LOG2E), T+2)]
    return out
def softmax_scalar(v, E, T):
    o = [(1, t) for t in minmax(v, T)]
    for i in range(20): o.append((1, "v_fma_f32 v%d, v%d, s%d, v%d" % (E+i, v[i], S_C2, T)))
    for i in range(20): o.append((1, "v_fma_f32 v%d, -v%d, s%d, v%d" % (v[i], v[i], S_C2, T+2)))
    for x in [E+i for i in range(20)] + v: o.append((2, "v_exp_f32 v%d, v%d" % (x, x)))
    e = [E+i for i in range(20)]
    for c, (src, d) in enumerate(((e, T), (v, T+2))):
        o += [(1, "v_add_f32 v%d, v%d, v%d" % (d, src[0], src[1])), (1, "v_add_f32 v%d, v%d, v%d" % (d+1, src[2], src[3]))]
    for i in range(4, 20, 2):
        for src, d in ((e, T), (v, T+2)):
            o += [(1, "v_add_f32 v%d, v%d, v%d" % (d, d, src[i])), (1, "v_add_f32 v%d, v%d, v%d" % (d+1, d+1, src[i+1]))]
    o += [(1, "v_add_f32 v%d, v%d, v%d" % (T, T, T+1)), (1, "v_add_f32 v%d, v%d, v%d" % (T+2, T+2, T+3)),
          (2, "v_rcp_f32 v%d, v%d" % (T, T)), (2, "v_rcp_f32 v%d, v%d" % (T+2, T+2))]
    for x in e: o.append((1, "v_mul_f32 v%d, v%d, v%d" % (x, x, T)))
    for x in v: o.append((1, "v_mul_f32 v%d, v%d, v%d" % (x, x, T+2)))
    o += [(1, t) for t in pack_inplace(v, E)]
    return o

PHB = 102400; KVB = PHB + 20480; RED = PHB
def pq_setup(k):
    srd(k, SRD_P, P_WS, PQ_OFF, PQ_SZ)
    srd(k, SRD_W1, P_WS, G_OFF, G_SZ)
    k("s_lshl_b32 s77, s%d, 1" % S_OMT); k("s_add_u32 s77, s77, s%d" % S_RH)
    k("s_lshl_b32 s78, s%d, 1" % S_OH); k("s_add_u32 s78, s78, s%d" % S_C)
    k("s_mul_i32 s78, s78, 81920")
    k("s_lshl_b32 s79, s77, 10"); k("s_add_u32 s79, s79, s78")
    k("s_add_u32 s101, s79, 32768")
    k("s_lshl_b32 s81, s77, 9"); k("s_add_u32 s81, s81, s78"); k("s_add_u32 s81, s81, 65536")
    k("s_lshl_b32 s76, s%d, 9" % S_OMT); k("s_lshl_b32 s77, s%d, 7" % S_W); k("s_add_u32 s76, s76, s77")
    k("s_add_u32 s82, s%d, %d" % (S_OMT, C_Q)); k("s_mul_i32 s82, s82, %d" % cfg.CS)
    k("v_lshlrev_b32 v5, 3, v0")
    k("v_and_b32 v24, 15, v0"); k("v_lshrrev_b32 v25, 4, v0")
    k("v_lshlrev_b32 v23, 2, v24")
PQR = 132
def pq_loads(k, nu):
    for i in range(nu):
        PQ = PQR + 12*i
        so = ("s79", "s101") if i < 2 else ("s72", "s73")
        if i == 2: k("s_add_u32 s72, s79, 4096"); k("s_add_u32 s73, s101, 4096")
        k.vm("buffer_load_dwordx4 %s, v%d, s[%d:%d], %s offen offset:%d%s" % (vr(PQ,4), V_L16, SRD_P, SRD_P+3, so[0], (i & 1)*2048 if i < 2 else 0, SC), ("pq", i))
        k.vm("buffer_load_dwordx4 %s, v%d, s[%d:%d], %s offen offset:%d%s" % (vr(PQ+4,4), V_L16, SRD_P, SRD_P+3, so[1], (i & 1)*2048 if i < 2 else 0, SC), ("pq", i))
        k.vm("buffer_load_dwordx2 %s, v5, s[%d:%d], s81 offen offset:%d%s" % (vr(PQ+8,2), SRD_P, SRD_P+3, i*1024, SC), ("pq", i))
        for r2 in range(2): k.vm("buffer_load_dword v%d, v17, s[%d:%d], s76 offen offset:%d%s" % (PQ+10+r2, SRD_W1, SRD_W1+3, i*512 + r2*64, SC), ("pq", i))

OAL = list(range(42, 62))
def tail(k, nu, pre, late, bolate, presig=None, reducer=False):
    if cfg.X_END:
        if presig: presig()
        k("s_endpgm"); return
    if cfg.X_NOO:
        if presig: presig(); presig = None
        nu = 0
    if cfg.X_NOB: pre = []; late = []; bolate = []
    if not presig: k.flush_counters()
    stamp(k, 6)
    fd = Feed(k, [] if presig else pre)
    def ch():
        k("s_lshr_b32 s82, s%d, 1" % S_M64); k("s_mul_i32 s82, s82, %d" % cfg.CS)
        poll_issue(k, S_CNT, "s82", "h_ok")
    if not nu:
        ch()
        srd(k, SRD_W1, P_WS, G_OFF, G_SZ)
        k("v_and_b32 v24, 15, v0"); k("v_lshrrev_b32 v25, 4, v0")
    else:
        fd.emit(cfg.QPRE)
        pq_setup(k)
        k("s_mov_b32 s%d, s82" % S_T2)
        k("v_mov_b32 v17, v23")
    k("s_mul_i32 s%d, s%d, %d" % (S_T0, S_M64, 74*4096))
    srd(k, SRD_X, P_WS, A2_OFF, 74*4096, S_T0)
    k("s_add_u32 s80, s%d, 20" % S_W); k("s_lshl_b32 s80, s80, 12")
    k("v_lshlrev_b32 v6, 2, v24")
    VA = 26
    for j in range(4):
        k("s_add_u32 s75, s%d, %d" % (S_W, j)); k("s_and_b32 s75, s75, 3"); k("s_lshl_b32 s75, s75, 10")
        k("v_add_u32 v%d, s75, v%d" % (VA+j, V_L16))
    if nu:
        if presig:
            presig(); fd.q += pre
        vpoll_issue(k, "s%d" % S_T2, nu, "q_ok")
        fd.emit(4)
        T0, T1, T2 = 64, 65, 66
        srd(k, SRD_W0, P_WS, KVF_OFF, 16*4096)
        srd(k, SRD_O, P_WS, A2_OFF, A2_SZ)
        PB = PHB - 20480*(nu-1)
        k("s_mul_i32 s75, s%d, 5120" % S_W); k("s_add_u32 s75, s75, %d" % PB)
        k("v_mul_u32_u24 v7, 80, v0"); k("v_add_u32 v7, s75, v7")
        k("s_mul_i32 s75, s%d, 2560" % S_W); k("s_add_u32 s75, s75, %d" % PB)
        k("v_mul_u32_u24 v8, 80, v24"); k("v_add_u32 v8, s75, v8")
        k("v_lshl_add_u32 v9, v25, 4, v8")
        k("v_mov_b32 v30, 0x7fffffff")
        vpoll_check(k, 3, "q_ok")
        pq_loads(k, nu)
        stamp(k, 7)
        fd.emit(3)
        k("s_mul_i32 s72, s%d, 5" % S_OH)
        for dst, add, nvalid in ((12, 0, 3), (13, 3, 2)):
            k("v_add_u32 v%d, s72, v25" % T2)
            if add: k("v_add_u32 v%d, %d, v%d" % (T2, add, T2))
            k("v_lshrrev_b32 v%d, 2, v%d" % (T0, T2))
            k("v_lshlrev_b32 v%d, 12, v%d" % (T0, T0))
            k("v_and_b32 v%d, 3, v%d" % (T1, T2))
            k("v_lshl_add_u32 v%d, v%d, 8, v%d" % (T0, T1, T0))
            k("v_lshl_add_u32 v%d, v24, 4, v%d" % (T0, T0))
            k("v_cmp_gt_u32 vcc, %d, v25" % nvalid)
            k("v_cndmask_b32 v%d, v30, v%d, vcc" % (dst, T0))
        fd.emit(2)
        k("s_lshl_b32 s73, s%d, 1" % S_OMT); k("s_add_u32 s73, s73, s%d" % S_C)
        k("s_mul_i32 s73, s73, %d" % (74*4096))
        k("s_lshl_b32 s75, s%d, 11" % S_RH); k("s_add_u32 s73, s73, s75")
        k("s_lshl_b32 s74, s%d, 2" % S_OH); k("s_add_u32 s74, s74, s%d" % S_W); k("s_lshl_b32 s74, s74, 10")
        k("v_bfe_u32 v%d, v0, 2, 2" % T0); k("v_and_b32 v%d, 3, v0" % T1)
        k("v_lshl_add_u32 v%d, v%d, 3, v%d" % (T2, T0, T1))
        for hd in range(2):
            for i in range(3):
                d = 18 + hd*3 + i
                if i == 2: k("v_mov_b32 v%d, %d" % (d, KVB + 1600 + hd*1680))
                else:
                    k("v_add_u32 v14, %d, v%d" % (4*i + 4*hd, T2)); k("v_min_u32 v14, 20, v14")
                    if hd == 1 and i == 0:
                        k("v_cmp_eq_u32 vcc, 2, v%d" % T0); k("v_cndmask_b32 v14, v14, v%d, vcc" % T1)
                    k("v_mul_u32_u24 v14, 80, v14")
                    k("v_add_u32 v%d, %d, v14" % (d, KVB + hd*1680))
        fd.emit(2)
        k("v_cmp_eq_u32 s[78:79], 0, v25")
        k("v_cmp_eq_u32 s[76:77], 2, v25")
        k("v_mov_b32 v30, %d" % (KVB + 3584 - 64))
        for i in range(nu):
            k.wait(vm=("pq", i))
            for j in range(10):
                k("v_lshlrev_b32 v%d, 16, v%d" % (64+2*j, PQR+12*i+j))
                k("v_and_b32 v%d, 0xffff0000, v%d" % (65+2*j, PQR+12*i+j))
            for r2 in range(2): k("v_mov_b32 v%d, v%d" % (250+2*i+r2, PQR+12*i+10+r2))
            fd.emit(2)
            softmax_pm(k, [64+2*j for j in range(10)], 84, 124, 104, fd)
            if i == nu-1: fd.drain(); ch()
            for j in range(5): k.lg("ds_write_b128 v7, %s offset:%d" % (vr(104+4*j,4), i*20480 + 16*j))
        stamp(k, 27)
    else:
        fd.drain()
    if reducer:
        srd(k, SRD_W0, P_WS, KVP_OFF, KVP_SZ)
        srd(k, SRD_O, P_WS, KVF_OFF, 16*4096)
        k("s_lshl_b32 s75, s%d, 10" % S_W)
        k("v_add_u32 v10, s75, v%d" % V_L16)
        k("v_mov_b32 v30, 0x7fffffff")
        k("v_cmp_gt_u32 vcc, 3360, v10")
        k("v_cndmask_b32 v11, v30, v10, vcc")
        k("s_mul_i32 s74, s%d, %d" % (S_OH, 16*KVPS))
        k("s_lshl_b32 s73, s%d, 12" % S_OH)
        k("v_bfe_u32 v64, v0, 2, 2"); k("v_and_b32 v65, 3, v0")
        k("v_and_b32 v14, 1, v0"); k("v_lshlrev_b32 v14, 4, v14")
        k("v_mov_b32 v15, 0x3f80")
        k("v_lshlrev_b32 v14, v14, v15")
        k("v_cmp_eq_u32 vcc, v64, v25")
        k("v_cndmask_b32 v14, 0, v14, vcc")
        k("v_cmp_gt_u32 vcc, 2, v65")
        k("v_cndmask_b32 v15, 0, v14, vcc")
        k("v_cndmask_b32 v14, v14, 0, vcc")
        for r, src in ((120, "v15"), (121, "v14"), (122, "0"), (123, "0"), (124, "0"), (125, "0"), (126, "v15"), (127, "v14")):
            k("v_accvgpr_write_b32 a%d, %s" % (r, src))
    def do_reduce(upto, run):
        def pr(p): return 192 + 4*p if (p < 14 or cfg.RFIRST) else bloc(p-14)
        k("s_lshr_b32 s82, s%d, 2" % S_OH); k("s_add_u32 s82, s82, %d" % C_K); k("s_mul_i32 s82, s82, %d" % cfg.CS)
        upto(cfg.MK - 15); poll_issue(k, S_CNT, "s82", "k_ok"); upto(cfg.MK)
        stamp(k, 10); poll_check(k, S_CNT, 16, "k_ok", sleep=1); stamp(k, 11)
        for p in range(16):
            k.vm("buffer_load_dwordx4 %s, v11, s[%d:%d], s74 offen%s" % (R(pr(p),4), SRD_W0, SRD_W0+3, SC), ("kp", p))
            k("s_add_u32 s74, s74, %d" % KVPS)
        RA = 64 if cfg.RFIRST else 248
        for p in range(16):
            k.wait(vm=("kp", p))
            for h in range(2): k("v_mfma_f32_16x16x32_bf16 %s, %s, %s, %s" % (vr(RA+4*h,4), ar(120+4*h,4), R(pr(p),4), vr(RA+4*h,4) if p else "0"))
        for i in range(4): k("v_cvt_pk_bf16_f32 v%d, v%d, v%d" % (192+i, RA+2*i, RA+1+2*i))
        k.vm("buffer_store_dwordx4 v[192:195], v10, s[%d:%d], s73 offen%s" % (SRD_O, SRD_O+3, SC), "st")
        stamp(k, 28)
        run(cfg.OSD)
        k.wait(vm="st")
        k("s_add_u32 s82, s%d, %d" % (S_OH, C_F)); k("s_mul_i32 s82, s82, %d" % cfg.CS)
        signal(k, S_CNT, "s82")
        stamp(k, 12)
    stamp(k, 8)
    poll_check(k, S_CNT, 9, "h_ok")
    stamp(k, 9)
    A0 = 64
    XD = 0 if reducer else (cfg.XD if nu else 4)
    def af(i): return 192 + 16*i if i < XD else 144 + ((i - XD) % 3)*16
    TO = (1, 2, 3, 0)
    def a_load(i, j):
        if cfg.X_NOA and i >= 3: return
        k.vm("buffer_load_dwordx4 %s, v%d, s[%d:%d], s80 offen%s" % (vr(af(i)+4*j,4), VA+j, SRD_X, SRD_X+3, LSC), ("A", i, j))
        if j == TO[3]: k("s_add_u32 s80, s80, %d" % (4*4096))
    if nu:
        k("s_add_u32 s82, s%d, %d" % (S_OH, C_F)); k("s_mul_i32 s82, s82, %d" % cfg.CS)
    for i in range(3 + XD):
        for j in TO: a_load(i, j)
    k.wait(lg="all")
    if reducer and cfg.RFIRST: do_reduce(lambda m: None, lambda n: None)
    ncon = 5*(nu-1) if nu else 0
    fl = Feed(k, b_items(late) + (bolate[:len(bolate)-ncon]))
    bolate = bolate[len(bolate)-ncon:]
    lds = []
    cnt = [0]
    order = [(i, j) for i in range(11) for j in TO] + [(i, j) for j in TO for i in range(11, 14)]
    def main():
        for (i, j) in order:
            pend = set(t[2][1] for t in fl.q if isinstance(t[2], tuple) and t[2][0] == "B")
            assert not (pend & set(range(i*5, i*5+5))), (nu, i, pend)
            k.wait(vm=[("A", i, j)] + [("B", i*5+ct) for ct in range(5)])
            for ct in range(5):
                a = A0 + (j*5+ct)*4
                k("v_mfma_f32_16x16x32_bf16 %s, %s, %s, %s" % (vr(a,4), R(bloc(i*5+ct),4), vr(af(i)+4*j,4), vr(a,4) if i else "0"))
                cnt[0] += 1
                if lds: emit1(k, lds.pop(0))
                if ct == 4 and i >= XD and i + 3 < 14: a_load(i + 3, j)
                if ct in cfg.FLAT: fl.emit(1)
                yield 1
    g = main()
    def run(n):
        for _ in range(n): next(g, None)
    def upto(m): run(max(0, m - cnt[0]))
    def mix(items, per):
        for i, it in enumerate(items):
            emit1(k, it)
            if i % per == per-1: run(1)
    if reducer and not cfg.RFIRST: do_reduce(upto, run)
    if nu:
        def oa(i): return bloc(i)
        upto(cfg.MF - 20); poll_issue(k, S_CNT, "s82", "f_ok"); upto(cfg.MF)
        stamp(k, 10); poll_check(k, S_CNT, 1, "f_ok"); stamp(k, 11)
        k("s_lshl_b32 s75, s%d, 10" % S_W); k("s_add_u32 m0, s75, %d" % KVB)
        k.vm("buffer_load_dwordx4 v%d, s[%d:%d], s74 offen%s lds" % (V_L16, SRD_W0, SRD_W0+3, SC), "kf")
        run(cfg.KLAT); upto(80)
        k.wait(vm="kf"); k("s_barrier"); stamp(k, 28)
        def brd(u):
            o = []
            for hd in range(2):
                for r2 in range(2):
                    o.append(("lg", "ds_read_b128 %s, v9 offset:%d" % (R(oa(12+hd*4+2*r2),4), u*20480 + hd*10240 + r2*1280), ("o", u, hd)))
                    o.append(("lg", "ds_read_b128 %s, v8 offset:%d" % (R(oa(13+hd*4+2*r2),4), u*20480 + hd*10240 + r2*1280+64), ("o", u, hd)))
            return o
        it = []
        for hd in range(2):
            for i in range(3):
                it += ["v_lshl_add_u32 v15, v25, 4, v%d" % (18+hd*3+i), "v_cndmask_b32 v14, v30, v%d, s[78:79]" % (18+hd*3+i),
                       ("lg", "ds_read_b128 %s, v15" % R(oa(hd*6+2*i),4), "oa"), ("lg", "ds_read_b128 %s, v14 offset:64" % R(oa(hd*6+2*i+1),4), "oa")]
        mix(it + brd(0), cfg.MIX)
        run(4)
        KO = 192
        for u in range(nu):
            for hd in range(2):
                k.wait(lg=("o", u, hd))
                for s in range(2):
                    for r2 in range(2):
                        for i in (2, 0, 1):
                            a = KO + (hd*2+r2)*12 + i*4
                            k("v_mfma_f32_16x16x32_bf16 %s, %s, %s, %s" % (vr(a,4), R(oa(hd*6+2*i+s),4), R(oa(12+hd*4+2*r2+s),4), vr(a,4) if s else "0"))
            it = brd(u+1) if u + 1 < nu else []
            for q in range(4): it.append("v_add_f32 v%d, %s, v%d" % (KO+q*12+8, f32(1e-6), KO+q*12+8))
            for q in range(4): it.append("v_rcp_f32 v%d, v%d" % (KO+q*12+8, KO+q*12+8))
            for q in range(4): it.append("v_mul_f32 v%d, v%d, v%d" % (KO+q*12+8, KO+q*12+8, 250+2*u+(q & 1)))
            for r2 in range(2):
                a0 = KO + r2*12; a1 = KO + (2+r2)*12
                for a in (a1, a0):
                    for i in range(8): it.append("v_mul_f32 v%d, v%d, v%d" % (a+i, a+i, a+8))
                    for i in range(4): it.append("v_cvt_pk_bf16_f32 v%d, v%d, v%d" % (a+8+i, a+2*i, a+2*i+1))
                    if a == a1: it.append(("vm", "buffer_store_dwordx4 %s, v13, s[%d:%d], s73 offen offset:%d%s" % (vr(a1+8,4), SRD_O, SRD_O+3, r2*1024, SC), "st"))
                it.append("v_cndmask_b32 v%d, v%d, v%d, s[76:77]" % (a0+10, a0+10, a1+8))
                it.append("v_cndmask_b32 v%d, v%d, v%d, s[76:77]" % (a0+11, a0+11, a1+9))
                it.append(("vm", "buffer_store_dwordx4 %s, v12, s[%d:%d], s73 offen offset:%d%s" % (vr(a0+8,4), SRD_O, SRD_O+3, r2*1024, SC), "st"))
            if u + 1 < nu: it.append("s_add_u32 s73, s73, %d" % (2*74*4096))
            mix(it, cfg.MIX * nu)
        stamp(k, 29)
        run(cfg.OSD)
        k.wait(vm="st")
        d = k.newlabel("Lsg")
        k("s_add_u32 s82, s%d, %d" % (S_OMT, C_O)); k("s_mul_i32 s82, s82, %d" % cfg.CS)
        k("s_barrier")
        k("s_cmp_lg_u32 s%d, 0" % S_W)
        k("s_cbranch_scc1 %s" % d)
        k("v_mul_u32_u24 v%d, %d, v0" % (V_PT, cfg.CS)); k("v_add_u32 v%d, s82, v%d" % (V_PT, V_PT))
        k("v_mov_b32 v31, 1")
        k("s_mov_b64 exec, %d" % ((1 << nu) - 1))
        k("global_atomic_add v%d, v31, s[%d:%d] sc1" % (V_PT, S_CNT, S_CNT+1))
        k("s_mov_b64 exec, -1")
        k.label(d)
        stamp(k, 12)
        fl.q += bolate
    q = K()
    for j in range(1, 4):
        q("s_add_u32 s75, s%d, %d" % (S_W, j)); q("s_and_b32 s75, s75, 3"); q("s_mul_i32 s75, s75, 15360")
        q("s_add_u32 s75, s75, %d" % (RED + (j-1)*5120))
        q("v_add_u32 v%d, s75, v%d" % (10+j, V_L16))
    q("s_mul_i32 s75, s%d, 15360" % S_W); q("s_add_u32 s75, s75, %d" % RED)
    q("v_add_u32 v8, s75, v%d" % V_L16)
    q("v_add_u32 v9, 51200, v%d" % V_L16)
    srd(q, SRD_O, P_OUT, 0, 2048*1280)
    q("s_lshl_b32 s81, s%d, 6" % S_M64); q("s_lshl_b32 s75, s%d, 4" % S_W); q("s_add_u32 s81, s81, s75")
    q("s_lshl_b32 s74, s81, 2")
    q("s_mul_i32 s81, s81, 1280"); q("s_mul_i32 s75, s%d, 160" % S_NT); q("s_add_u32 s81, s81, s75")
    q("v_mul_u32_u24 v16, 1280, v24"); q("v_lshl_add_u32 v16, v25, 3, v16")
    q("s_lshr_b32 s82, s%d, 1" % S_M64); q("s_add_u32 s82, s82, %d" % C_O); q("s_mul_i32 s82, s82, %d" % cfg.CS)
    q("s_mov_b32 s73, 0")
    mix([t for _, t in q.items], 2)
    upto(min(cfg.MO, 238) - 20)
    fl.drain()
    if cfg.MO < 280 and cnt[0] <= 238:
        poll_issue(k, S_CNT, "s82", "o_ok")
        upto(cfg.MO)
    def of(ks): return 192 + 4*ks if ks < 16 else 148 + 16*(ks-16) if ks < 19 else 152
    def bol(n): return bloc(n % 70)
    def bo_read(n):
        off = n*1024
        return ("lg", "ds_read_b128 %s, v%d offset:%d" % (R(bol(n), 4), V_L16 if off < 51200 else 9, off % 51200), ("bo", n // 5))
    def ao(ks): return ("s_add_u32 s73, s73, 4096" if ks else None, "buffer_load_dwordx4 %s, v%d, s[%d:%d], s73 offen%s" % (vr(of(ks),4), VA, SRD_X, SRD_X+3, LSC), ("Ao", ks))
    def red_w(j): return [("lg", "ds_write_b128 v%d, %s offset:%d" % (10+j, vr(A0+(j*5+ct)*4,4), ct*1024), "rw") for ct in range(5)]
    def oready():
        stamp(k, 13)
        poll_check(k, S_CNT, 16, "o_ok")
        stamp(k, 14)
        k.vm("buffer_load_dword v5, v6, s[%d:%d], s74 offen%s" % (SRD_W1, SRD_W1+3, SC), "g2")
        fa = Feed(k, [ao(ks) for ks in range(20)])
        fa.emit(6)
        return fa
    nr = 0
    rr = [("lg", "ds_read_b128 %s, v8 offset:%d" % (vr(A0+20+4*j,4), j*1024), ("r", j // 5)) for j in range(15)]
    late_o = cfg.MO >= 280 or cnt[0] > 238
    if not late_o:
        fa = oready()
        fl.q = fa.q[:10]; fa.q = fa.q[10:]
        free = min(cnt[0] // 20, 11) * 5
        for c in (238, 253, 268, 280):
            n = min(free - nr, c - cnt[0] - len(lds))
            lds += [bo_read(x) for x in range(nr, nr + max(n, 0))]; nr += max(n, 0)
            upto(c)
            if c < 280: lds[:0] = red_w((238, 253, 268).index(c) + 1)
        weave(k, [], lds); del lds[:]
        fl.drain()
        fa.drain()
        k.wait(vm="g2")
        k("v_sub_f32 v10, 1.0, v5")
        for j in range(10): k("v_pk_mul_f32 %s, %s, v[10:11] op_sel_hi:[1,0]" % (vr(A0+2*j,2), vr(A0+2*j,2)))
        k.wait(lg="rw")
        k("s_barrier")
        while nr < 15:
            emit1(k, bo_read(nr)); nr += 1
    else:
        for j, c in enumerate((238, 253, 268)):
            upto(c); lds += red_w(j+1)
        upto(280)
        weave(k, [], lds); del lds[:]
        k.wait(lg="rw", vm="BO")
        k("s_barrier")
        weave(k, [], rr); del rr[:]
        poll_issue(k, S_CNT, "s82", "o_ok")
        for sl in range(3):
            k.wait(lg=("r", sl))
            weave(k, [], [bo_read(x) for x in range(nr, nr+10)]); nr += 10
            for j in range(10): k("v_pk_add_f32 %s, %s, %s" % (vr(A0+2*j,2), vr(A0+2*j,2), vr(A0+20+20*sl+2*j,2)))
        weave(k, [], [bo_read(x) for x in range(nr, cfg.BPRE)]); nr = cfg.BPRE
        fa = oready()
        fa.emit(6)
        weave(k, [], [bo_read(x) for x in range(nr, 70)]); nr = 70
        fa.drain()
        k.wait(vm="g2")
        k("v_sub_f32 v10, 1.0, v5")
        for j in range(10): k("v_pk_mul_f32 %s, %s, v[10:11] op_sel_hi:[1,0]" % (vr(A0+2*j,2), vr(A0+2*j,2)))
    for ks in range(20):
        k.wait(vm=("Ao", ks), lg=("bo", ks))
        mf = ["v_mfma_f32_16x16x32_bf16 %s, %s, %s, %s" % (vr(A0+ct*4,4), R(bol(ks*5+ct), 4), vr(of(ks),4), vr(A0+ct*4,4)) for ct in range(5)]
        fill = [bo_read(n) for n in range(nr, min(100, nr+5, ks*5+70))]; nr += len(fill)
        while len(fill) < 5 and rr: fill.append(rr.pop(0))
        weave(k, mf, fill, per=1)
    if not late_o:
        weave(k, [], rr)
        k.wait(lg="all")
        for j in range(10): k("v_pk_add_f32 %s, %s, %s" % (vr(A0+20+2*j,2), vr(A0+20+2*j,2), vr(A0+40+2*j,2)))
        for j in range(10): k("v_pk_add_f32 %s, %s, %s" % (vr(A0+20+2*j,2), vr(A0+20+2*j,2), vr(A0+60+2*j,2)))
    for ct in range(5):
        a = A0 + ct*4
        for h in range(2 if not late_o else 0): k("v_pk_fma_f32 %s, %s, v[10:11], %s op_sel_hi:[1,0,1]" % (vr(a+2*h,2), vr(a+20+2*h,2), vr(a+2*h,2)))
        k("v_cvt_pk_bf16_f32 v%d, v%d, v%d" % (A0+40+2*ct, a, a+1)); k("v_cvt_pk_bf16_f32 v%d, v%d, v%d" % (A0+41+2*ct, a+2, a+3))
        k.vm("buffer_store_dwordx2 %s, v16, s[%d:%d], s81 offen offset:%d%s" % (vr(A0+40+2*ct,2), SRD_O, SRD_O+3, ct*32, cfg.OUTF), "st")
    stamp(k, 30)
    stamp_out(k)
    k("s_endpgm")

def kernel(k):
    kernel_header(k, NAME)
    astamp(k, 0)
    k("s_load_dwordx16 s[8:23], s[0:1], 0")
    k("s_load_dwordx8 s[24:31], s[0:1], 64")
    k("s_cmp_ge_u32 s2, 256")
    k("s_cbranch_scc1 L_end")
    if cfg.CPF: code_prefetch(k, V_JUNK)
    k("v_lshrrev_b32 v2, 6, v0")
    k("v_and_b32 v0, 63, v0")
    k("v_readfirstlane_b32 s%d, v2" % S_W)
    if cfg.STAMP: k("v_mov_b32 v1, 0")
    stamp(k, 0)
    if cfg.EARLY0: k("v_writelane_b32 v1, s98, 0")
    if cfg.MAP == 2:
        k("s_bfe_u32 s%d, s2, 0x40003" % S_MT)
        k("s_and_b32 s%d, s2, 7" % S_T0)
        k("s_lshl_b32 s%d, s%d, 3" % (S_T0, S_T0))
        k("s_bfe_u32 s%d, s2, 0x10007" % S_T1)
        k("s_lshl_b32 s%d, s%d, 2" % (S_T1, S_T1))
        k("s_add_u32 s%d, s%d, s%d" % (S_T0, S_T0, S_T1))
        tab = cfg.ORDER
        k("s_mov_b32 s74, 0x%x" % sum(tab[i] << (4*i) for i in range(8))); k("s_mov_b32 s75, 0x%x" % sum(tab[8+i] << (4*i) for i in range(8)))
        k("s_lshr_b64 s[74:75], s[74:75], s%d" % S_T0)
        k("s_and_b32 s%d, s74, 15" % S_TY)
    else:
        k("s_and_b32 s%d, s2, 7" % S_T0)
        k("s_lshr_b32 s%d, s2, 3" % S_T1)
        k("s_lshl_b32 s74, s%d, 2" % S_T0); k("s_and_b32 s75, s%d, 3" % S_T1); k("s_add_u32 s74, s74, s75")
        k("s_add_u32 s74, s74, %d" % (13*16))
        k("s_lshl_b32 s75, s%d, 3" % S_T0); k("s_add_u32 s75, s75, s%d" % S_T1); k("s_add_u32 s75, s75, %d" % (9*16 - 20))
        k("s_cmp_lt_u32 s%d, 28" % S_T1); k("s_cselect_b32 s74, s75, s74")
        k("s_lshl_b32 s75, s%d, 1" % S_T0); k("s_add_u32 s75, s75, s%d" % S_T1)
        k("s_add_u32 s76, s75, %d" % (15*16 - 18))
        k("s_cmp_lt_u32 s%d, 20" % S_T1); k("s_cselect_b32 s74, s76, s74")
        k("s_add_u32 s76, s75, %d" % (8*16 - 16))
        k("s_cmp_lt_u32 s%d, 18" % S_T1); k("s_cselect_b32 s74, s76, s74")
        k("s_lshl_b32 s76, s%d, 4" % S_T0); k("s_add_u32 s76, s76, s%d" % S_T1)
        k("s_cmp_lt_u32 s%d, 16" % S_T1); k("s_cselect_b32 s74, s76, s74")
        k("s_and_b32 s%d, s74, 15" % S_MT)
        k("s_lshr_b32 s%d, s74, 4" % S_TY)
    k("s_and_b32 s%d, s%d, 1" % (S_RH, S_W))
    k("s_lshr_b32 s%d, s%d, 1" % (S_C, S_W))
    k("v_lshlrev_b32 v%d, 4, v0" % V_L16)
    k("s_cmp_ge_u32 s%d, 15" % S_TY); k("s_cbranch_scc1 L_aux")
    k("s_cmp_ge_u32 s%d, 13" % S_TY)
    k("s_cselect_b32 s%d, 13, 9" % S_T0)
    k("s_cselect_b32 s75, 0, 1280")
    k("s_cselect_b32 s76, 0, 640")
    k("s_add_u32 s76, s76, 640")
    k("s_sub_u32 s79, s%d, s%d" % (S_TY, S_T0))
    k("s_mul_i32 s%d, s79, 320" % S_T1)
    k("s_and_b32 s%d, s%d, 127" % (S_DELTA, S_T1))
    k("s_sub_u32 s%d, s%d, s%d" % (S_T1, S_T1, S_DELTA))
    k("s_add_u32 s75, s75, s%d" % S_T1)
    k("s_add_u32 s76, s76, s75")
    k("s_mul_i32 s%d, s%d, 384" % (S_T1, S_TY))
    k("s_mov_b32 s%d, 3840" % S_STRIDE)
    k("s_cmp_lt_u32 s%d, 9" % S_TY)
    k("s_cselect_b32 s75, s%d, s75" % S_T1)
    k("s_cselect_b32 s76, s%d, s76" % S_T1)
    k("s_cselect_b32 s%d, 3456, s%d" % (S_STRIDE, S_STRIDE))
    k("s_mul_i32 s%d, s%d, 640" % (S_T1, S_STRIDE))
    k("s_sub_u32 s77, s%d, s75" % S_T1)
    k("s_sub_u32 s78, s%d, s76" % S_T1)
    gemm_setup(k)
    k("s_mul_i32 s%d, s%d, %d" % (S_T0, S_MT, 128*1280))
    astamp(k, 1)
    k("s_waitcnt lgkmcnt(0)")
    astamp(k, 2)
    k("s_cmp_lt_u32 s%d, 9" % S_TY)
    k("s_cselect_b64 s[16:17], s[%d:%d], s[%d:%d]" % (P_WG, P_WG+1, P_WQKV, P_WQKV+1))
    k("s_cselect_b64 s[%d:%d], s[%d:%d], s[%d:%d]" % (P_WU, P_WU+1, P_WU, P_WU+1, P_WQKV, P_WQKV+1))
    srd(k, SRD_X, P_X, 0, 128*1280, S_T0)
    stamp(k, 1)
    Q = dma_queue()
    issue_now(k, Q, 4)
    srd(k, SRD_W0, 16, 0, "s77", 75)
    srd(k, SRD_W1, P_WU, 0, "s78", 76)
    issue_now(k, Q, 6)
    astamp(k, 3)
    touch_setup(k)
    for it in touch_items(-1):
        if it[0]: k(it[0])
        k.vm(it[1], it[2])
    sv0 = list(k.vmq)
    aflush(k)
    k("s_cmp_ge_u32 s%d, 9" % S_TY); k("s_cbranch_scc1 L_att")
    ps, rest = ffn_role(k, Q)
    sv = (list(k.vmq), list(k.lgq))
    k("s_cmp_lt_u32 s%d, 6" % S_OMT); k("s_cbranch_scc1 L_f2")
    tail(k, 1, list(rest), [], [], presig=ps)
    k.label("L_f2")
    k.vmq, k.lgq = sv
    assert len(rest) >= 5
    tail(k, 2, list(rest[:-5]), [], list(rest[-5:]), presig=ps)
    k.label("L_att")
    k("s_lshl_b32 s79, s79, 1")
    k("s_add_u32 s79, s79, s%d" % S_C)
    k("s_mul_i32 s80, s79, 3200")
    srd(k, SRD_P, P_WPHI, 0, 3200, 80)
    k("s_cmp_ge_u32 s%d, 13" % S_TY); k("s_cselect_b32 s81, 12800, 0")
    k.flush_counters(); k.vmq = list(sv0)
    att_loop(k, Q)
    sv1 = (list(k.vmq), list(k.lgq))
    k("s_cmp_ge_u32 s%d, 13" % S_TY); k("s_cbranch_scc1 L_q")
    kv_role(k)
    tail(k, 0, [], list(range(cfg.KVN, 70)), bo_items())
    k.label("L_q")
    k.vmq, k.lgq = sv1
    q_role(k)
    tail(k, 2, b_items(range(32, 70)) + bo_items()[:cfg.BOQ], [], bo_items()[cfg.BOQ:])
    k.flush_counters()
    k.label("L_aux")
    aux_role(k)
    tail(k, 0, [], [], [], reducer=True)
    k.label("L_end")
    k("s_endpgm")

def build(fn, listform=True):
    k = K()
    k.raw(open("header.txt").read().rstrip())
    if listform: k.raw("; @launch kernel=%s grid=(256,1,1) block=(256,1,1) lds=163840" % NAME)
    else: k.raw("; @launch grid=(256,1,1) block=(256,1,1) lds=163840")
    k.raw('.amdgcn_target "amdgcn-amd-amdhsa--gfx950"')
    k.raw(".text")
    kernel(k)
    k.raw('.section .rodata,"a"')
    k.raw(kernel_desc(NAME, 512, 256))
    open(fn, "w").write(k.text())

if __name__ == "__main__":
    for a in sys.argv[2:]:
        if "=" in a:
            n, v = a.split("="); setattr(cfg, n, eval(v))
    if cfg.NOSC: LSC = ""
    build(sys.argv[1], listform="single" not in sys.argv)
```

```python
import sys
from fw import *

A2_OFF = 0;          A2_SZ = 32*74*4096
B2_OFF = 0xA00000;   B2_SZ = 8*74*5120
PQ_OFF = 0xD00000;   PQ_SZ = 32*2048*40
KVP_OFF = 0x1000000; KVPS = 3584; KVP_SZ = 16*16*KVPS
G_OFF = 0x1200000;   G_SZ = 8192
CNT_OFF = 0x1300000
ST_OFF = 0x1400000
LOG2E = 1.4426950408889634
NAME = "gated_mix__linear_kernel_hedgehog__swiglu_ffn__prompt_kernel"

class Cfg:
    STAMP = 0; STG = 0
    MAXD = 11; N2 = 6; N3 = 10
    P2M = 4
    TW = [(-1,1,7),(1,8,6),(4,14,6)]
    TX = [(-1,1,3),(1,4,3),(4,7,3)]
    ORDER = [0, 9, 1, 10, 2, 11, 3, 12, 4, 13, 5, 14, 6, 7, 8, 15]
    PS1 = 16
    NBF = 40
    NBA = 32
    AUXT = 10
    AUXD = 3
    FFE = (3, 10)
    MK = 25
    KLAT = 20
    PER = 2
    BOF = 10
    KVB0 = 1
    TPER = 2
    BLP = 5
    HP = (1, 5)
    QEARLY = 1
    AUXU = 0
    BT = 0
    BT2 = 0
    AUXNT = 1
    L2PF = 0
    PE1 = 20
    BOL = 0
    BOS = 0
    PSA = 16
    KVN = 62
    BPRE = 50
    RFIRST = 0
    MF = 90
    MAXD0 = 16
    BLK = 2
    PHS = 3
    AST = 0
    X_NOWAIT = 0
    X_NOO = 0
    X_NOB = 0
    X_END = 0
    X_NOA = 0
    MO = 238
    NOSC = 0
    NOMF = 0
    CS = 4096+256
    ONE = 1
    SLP = 2
    KI = 1
    MIX = 6
    FLAT = (1, 3)
    XD = 0
    BOQ = 10
    QPRE = 6
    FQ = (7, 10)
    OFIRST = 1
    OUTF = ''
    BOEARLY = 0
    QLAT = 40
    MAP = 3
    AORD = [9, 13, 10, 11, 14, 12]
    DBGWG = -1
    PADST = None
    PADMIN = 0
    CPF = 1
    TNT = 0
    NODMA = 0
    CYC = 0
    PADTY = None
    EARLY0 = 0
    KL2 = 40
    OSD = 20
cfg = Cfg()
SC = " sc1"
LSC = " sc1"

P_X, P_WQKV, P_WPHI, P_WO, P_WG, P_WU, P_WD, P_GW, P_OUT, P_DBG, P_WS = 8, 10, 12, 14, 18, 20, 22, 24, 26, 28, 30
S_W, S_RH, S_C, S_MT, S_TY, S_M64, S_NT, S_OH = 32, 33, 34, 35, 36, 37, 38, 39
SRD_X, SRD_W0, SRD_W1, SRD_O, SRD_P = 40, 44, 48, 52, 56
S_STRIDE, S_WOFF, S_WL, S_XL, S_T0, S_T1, S_T2, S_T3, S_DELTA, S_SIG = 60, 61, 62, 63, 64, 65, 66, 67, 68, 69
S_C2 = 70
S_OMT = 83; SRD_B = 84; S_BOFF = 88; S_BB = 89; S_CNT = 90; SRD_T = 96
V_L16, V_L16B, V_PT = 2, 3, 4
V_WD = 5; V_XD = 6; V_XR = 10; V_TA = 12; V_TW = 24; V_TX = 25; V_JUNK = 63; V_Z = 0
ACC0 = 64
WF0 = 256; XF0 = 256 + 96; GF0 = 256 + 88; GACC = 224
C_H, C_K, C_Q, C_O, C_F = 0, 16, 20, 36, 52
KVF_OFF = 0x1100000
SPARE = 147456
D_S1, D_S2, D_S3 = 0, 64, 128

def srd(k, d, b, off, nbytes, soff=None):
    if off or soff is not None:
        if soff is not None:
            k("s_add_u32 s%d, s%d, s%d" % (d, b, soff)); k("s_addc_u32 s%d, s%d, 0" % (d+1, b+1))
            if off:
                k("s_add_u32 s%d, s%d, 0x%x" % (d, d, off)); k("s_addc_u32 s%d, s%d, 0" % (d+1, d+1))
        else:
            k("s_add_u32 s%d, s%d, 0x%x" % (d, b, off)); k("s_addc_u32 s%d, s%d, 0" % (d+1, b+1))
        k("s_and_b32 s%d, s%d, 0xffff" % (d+1, d+1))
    else:
        k("s_mov_b32 s%d, s%d" % (d, b)); k("s_and_b32 s%d, s%d, 0xffff" % (d+1, b+1))
    if isinstance(nbytes, int): k("s_mov_b32 s%d, 0x%x" % (d+2, nbytes))
    else: k("s_mov_b32 s%d, %s" % (d+2, nbytes))
    k("s_mov_b32 s%d, 0x20000" % (d+3))

def stamp(k, i):
    if not cfg.STAMP or (cfg.AST and i != 15): return
    k("s_memtime s[92:93]" if cfg.STAMP == 2 else "s_memrealtime s[92:93]")
    k("s_waitcnt lgkmcnt(0)")
    k.lgq = []
    k("v_writelane_b32 v1, s92, %d" % i)
_ap = []
def astamp(k, idx):
    if not cfg.AST: return
    pair = (4, 6, 92, 94, 52, 54, 56, 58)[len(_ap)]
    k("s_memrealtime s[%d:%d]" % (pair, pair+1)); _ap.append((pair, idx))
def aflush(k):
    if not cfg.AST: return
    k("s_waitcnt lgkmcnt(0)"); k.lgq = []
    for p, i in _ap: k("v_writelane_b32 v1, s%d, %d" % (p, i))
    del _ap[:]
def stamp_out(k):
    if not cfg.STAMP: return
    k("s_waitcnt vmcnt(0)")
    stamp(k, 15)
    k("v_writelane_b32 v1, s%d, 16" % S_TY)
    srd(k, 40, P_WS, ST_OFF, 1024*128)
    k("s_lshl_b32 s92, s2, 2"); k("s_add_u32 s92, s92, s%d" % S_W); k("s_lshl_b32 s92, s92, 7")
    k("v_lshlrev_b32 v5, 2, v0")
    k("v_cmp_gt_u32 vcc, 32, v0")
    k("v_mov_b32 v6, 0x7fffffff")
    k("v_cndmask_b32 v5, v6, v5, vcc")
    k("buffer_store_dword v1, v5, s[40:43], s92 offen")
    if cfg.PADST is not None:
        k("v_readlane_b32 s94, v1, %d" % abs(cfg.PADST))
        k("v_readlane_b32 s95, v1, 0")
        k("s_max_u32 s94, s94, s95")
        if cfg.CYC:
            a, b = ((31, 25) if cfg.CYC == 1 else (24, 23))
            k("v_readlane_b32 s96, v1, %d" % a); k("v_readlane_b32 s97, v1, %d" % b)
            k("s_sub_u32 s96, s96, s97")
            if cfg.CYC == 1: k("s_lshr_b32 s96, s96, 2")
            else: k("s_lshl_b32 s96, s96, 2")
            k("s_add_u32 s94, s95, s96")
        if cfg.PADTY:
            k("s_cmp_lt_u32 s%d, %d" % (S_TY, cfg.PADTY[0])); k("s_cselect_b32 s94, s95, s94")
            k("s_cmp_gt_u32 s%d, %d" % (S_TY, cfg.PADTY[1])); k("s_cselect_b32 s94, s95, s94")
        if cfg.PADMIN:
            k("s_not_b32 s95, s94")
            k("v_mov_b32 v7, s95"); k("v_mov_b32 v8, 192")
            k("s_cmp_eq_u32 s%d, 0" % S_W)
            k("s_cselect_b64 exec, 1, 0")
            k("s_cbranch_execz Lnoat")
            k("global_atomic_umax v8, v7, s[%d:%d] sc1" % (P_DBG, P_DBG+1))
            k.label("Lnoat")
            k("s_mov_b64 exec, -1")
            k("s_add_u32 s94, s94, 4500")
            k.label("Lpad0")
            k("s_sleep 4")
            k("s_memrealtime s[96:97]")
            k("s_waitcnt lgkmcnt(0)")
            k("s_sub_u32 s98, s96, s94")
            k("s_cmp_lt_i32 s98, 0")
            k("s_cbranch_scc1 Lpad0")
            k("global_load_dword v7, v8, s[%d:%d] sc1" % (P_DBG, P_DBG+1))
            k("s_waitcnt vmcnt(0)")
            k("v_readfirstlane_b32 s94, v7")
            k("s_not_b32 s94, s94")
        k("s_add_u32 s94, s94, 6000")
        lp = k.newlabel("Lpad"); k.label(lp)
        k("s_sleep 4")
        k("s_memrealtime s[96:97]")
        k("s_waitcnt lgkmcnt(0)")
        k("s_sub_u32 s98, s96, s94")
        k("s_cmp_lt_i32 s98, 0")
        k("s_cbranch_scc1 %s" % lp)
    if cfg.DBGWG >= 0:
        k("s_cmp_eq_u32 s92, %d" % (cfg.DBGWG*512))
        k("s_cselect_b32 s93, 64, 0")
        srd(k, 44, P_DBG, 0, "s93")
        k("v_readlane_b32 s93, v1, 0")
        k("v_subrev_u32 v7, s93, v1")
        k("v_cmp_lt_u32 vcc, 0, v0")
        k("v_cndmask_b32 v5, v6, v5, vcc")
        k("buffer_store_dword v7, v5, s[44:47], 0 offen")

def code_prefetch(k, vt):
    k("s_getpc_b64 s[72:73]")
    l = k.newlabel("Lpc"); k.label(l)
    k("s_lshr_b32 s74, s2, 3")
    k("s_lshl_b32 s74, s74, 7")
    k("v_and_b32 v%d, 31, v0" % vt)
    k("v_lshlrev_b32 v%d, 12, v%d" % (vt, vt))
    k("v_add_u32 v%d, s74, v%d" % (vt, vt))
    k("v_min_u32 v%d, L_end-%s-4, v%d" % (vt, l, vt))
    k.vm("global_load_dword v%d, v%d, s[72:73]" % (vt, vt), "pf")

def _pload(k, base, tag):
    if cfg.ONE:
        a = k.newlabel("Lp0"); b = k.newlabel("Lp1")
        k("s_cmp_lg_u32 s%d, 0" % S_W); k("s_cbranch_scc1 %s" % a)
        k("global_load_dword v31, v%d, s[%d:%d] sc1" % (V_PT, base, base+1))
        k("s_branch %s" % b)
        k.label(a)
        k("v_mov_b32 v%d, 0" % V_PT)
        k("global_load_dword v31, v%d, s[%d:%d]" % (V_PT, P_X, P_X+1))
        k.label(b)
        k.vmq.append(tag)
    else: k.vm("global_load_dword v31, v%d, s[%d:%d] sc1" % (V_PT, base, base+1), tag)
def poll_issue(k, base, off, tag):
    k("v_mov_b32 v%d, %s" % (V_PT, off))
    _pload(k, base, tag)
def vpoll_issue(k, off, n, tag):
    k("v_min_u32 v%d, %d, v0" % (V_PT, n-1)); k("v_mul_u32_u24 v%d, %d, v%d" % (V_PT, cfg.CS, V_PT)); k("v_add_u32 v%d, %s, v%d" % (V_PT, off, V_PT))
    _pload(k, S_CNT, tag)
def poll_check(k, base, target, tag, sleep=None, barrier=True):
    l = k.newlabel("Lpoll"); d = k.newlabel("Lpd")
    if base == S_CNT and (cfg.X_NOWAIT == 1 or (cfg.X_NOWAIT and tag in cfg.X_NOWAIT)): target = 0
    k.wait(vm=tag)
    if cfg.ONE:
        k("s_cmp_lg_u32 s%d, 0" % S_W); k("s_cbranch_scc1 %s" % d)
    k("v_cmp_gt_u32 vcc, %d, v31" % target)
    k("s_mov_b32 s95, 0x8000")
    k("s_cmp_eq_u64 vcc, 0")
    k("s_cbranch_scc1 %s" % d)
    k.label(l)
    k("s_sleep %d" % (sleep or cfg.SLP))
    k("global_load_dword v31, v%d, s[%d:%d] sc1" % (V_PT, base, base+1))
    k("s_waitcnt vmcnt(0)")
    k("v_cmp_gt_u32 vcc, %d, v31" % target)
    k("s_sub_u32 s95, s95, 1")
    k("s_cmp_eq_u64 vcc, 0")
    k("s_cbranch_scc1 %s" % d)
    k("s_cmp_lg_u32 s95, 0")
    k("s_cbranch_scc1 %s" % l)
    k.label(d)
    if cfg.ONE and barrier: k("s_barrier")
def vpoll_check(k, target, tag): poll_check(k, S_CNT, target, tag)
def signal(k, base, off, ra=V_PT, rd=31):
    d = k.newlabel("Lsg")
    k("s_barrier")
    k("s_cmp_lg_u32 s%d, 0" % S_W)
    k("s_cbranch_scc1 %s" % d)
    k("v_mov_b32 v%d, %s" % (ra, off))
    k("v_mov_b32 v%d, 1" % rd)
    k("s_mov_b64 exec, 1")
    k("global_atomic_add v%d, v%d, s[%d:%d] sc1" % (ra, rd, base, base+1))
    k("s_mov_b64 exec, -1")
    k.label(d)

BL = [256+128+4*i for i in range(32)] + [256+48+4*i for i in range(12)] + [256+108+4*i for i in range(3)] \
   + [256+4*i for i in range(12)] + [256+96+4*i for i in range(3)] + [32+4*i for i in range(8)]
def bloc(n): return BL[n]
def b_items(frs):
    out = []; cur = None
    for n in frs:
        st, ct = divmod(n, 5)
        pre = None
        if st != cur: pre = "s_add_u32 s%d, s%d, %d" % (S_BOFF, S_BB, (20 + 4*st)*5120); cur = st
        if ct < 4: t = "buffer_load_dwordx4 %s, v%d, s[%d:%d], s%d offen offset:%d%s" % (R(bloc(n),4), V_L16, SRD_B, SRD_B+3, S_BOFF, ct*1024, LSC)
        else: t = "buffer_load_dwordx4 %s, v%d, s[%d:%d], s%d offen%s" % (R(bloc(n),4), V_L16B, SRD_B, SRD_B+3, S_BOFF, LSC)
        out.append((pre, t, ("B", n)))
    return out
def bo_items():
    out = []
    for i in range(5):
        for ct in range(5):
            pre = "s_add_u32 m0, s%d, %d" % (S_BB, i*20480 + (4096 if ct == 4 else 0))
            if ct == 0: pre = "s_add_u32 s100, s%d, %d\n" % (S_BB, i*20480) + pre
            if ct < 4: t = "buffer_load_dwordx4 v%d, s[%d:%d], s100 offen offset:%d%s lds" % (V_L16, SRD_B, SRD_B+3, ct*1024, LSC)
            else: t = "buffer_load_dwordx4 v%d, s[%d:%d], s100 offen%s lds" % (V_L16B, SRD_B, SRD_B+3, LSC)
            out.append((pre, t, "BO"))
    return out
class Feed:
    def __init__(self, k, items): self.k = k; self.q = list(items)
    def emit(self, n=1):
        while self.q and n > 0:
            pre, t, tag = self.q.pop(0)
            if pre: self.k(pre)
            self.k.vm(t, tag); n -= 1
    def drain(self): self.emit(10**6)
def emit1(k, f):
    if callable(f): f()
    elif isinstance(f, tuple): (k.lg if f[0] == "lg" else k.vm)(f[1], f[2])
    else: k(f)
def weave(k, mf, fill, per=2):
    fill = list(fill)
    for m in mf:
        k(m)
        for _ in range(per):
            if fill: emit1(k, fill.pop(0))
    for f in fill: emit1(k, f)

WSLOT = 24576; RW = 4; XBASE = RW*WSLOT; XSLOT = 16384; RX = 3

def gemm_setup(k):
    k("v_lshrrev_b32 v28, 3, v0")
    k("v_and_b32 v29, 7, v0")
    k("v_bfe_u32 v26, v28, 1, 1")
    k("s_lshl_b32 s%d, s%d, 1" % (S_T0, S_RH))
    k("v_or_b32 v26, s%d, v26" % S_T0)
    k("v_lshlrev_b32 v26, 1, v26")
    k("v_xor_b32 v26, v26, v29")
    k("s_lshl_b32 s%d, s%d, 3" % (S_T0, S_W))
    k("v_add_u32 v27, s%d, v28" % S_T0)
    k("v_mul_lo_u32 v27, v27, s%d" % S_STRIDE)
    k("v_lshl_add_u32 v%d, v26, 4, v27" % V_WD)
    k("s_lshl_b32 s%d, s%d, 5" % (S_T0, S_W))
    k("v_lshrrev_b32 v26, 1, v28")
    k("v_xor_b32 v27, v26, v29")
    k("v_add_u32 v26, s%d, v28" % S_T0)
    k("v_mul_u32_u24 v26, 1280, v26")
    k("v_lshl_add_u32 v%d, v27, 4, v26" % V_XD)
    k("v_xor_b32 v%d, 64, v%d" % (V_XD+1, V_XD))
    k("v_add_u32 v%d, %d, v%d" % (V_XD+1, 8*1280, V_XD+1))
    k("v_add_u32 v%d, %d, v%d" % (V_XD+2, 16*1280, V_XD))
    k("v_add_u32 v%d, %d, v%d" % (V_XD+3, 16*1280, V_XD+1))
    k("s_mul_i32 s%d, s%d, 6144" % (S_WL, S_W))
    k("s_lshl_b32 s%d, s%d, 12" % (S_XL, S_W))
    k("s_add_u32 s%d, s%d, %d" % (S_XL, S_XL, XBASE))
    k("s_mov_b32 s%d, 0" % S_WOFF)
    k("s_lshl_b32 s%d, s%d, 5" % (S_T3, S_STRIDE))

def touch_setup(k):
    k("v_lshrrev_b32 v26, 2, v0")
    k("v_and_b32 v27, 3, v0")
    k("s_lshl_b32 s%d, s%d, 1" % (S_T0, S_MT))
    k("s_add_u32 s%d, s%d, s%d" % (S_T0, S_T0, S_C))
    k("v_lshlrev_b32 v28, 5, v26")
    k("v_add_u32 v28, s%d, v28" % S_T0)
    k("v_mul_lo_u32 v28, v28, s%d" % S_STRIDE)
    k("v_min_u32 v29, 2, v27")
    k("v_lshl_add_u32 v%d, v29, 7, v28" % V_TW)
    k("s_lshl_b32 s%d, s%d, 4" % (S_T0, S_TY))
    k("s_lshl_b32 s%d, s%d, 2" % (S_T1, S_W))
    k("s_add_u32 s%d, s%d, s%d" % (S_T0, S_T0, S_T1))
    k("v_add_u32 v27, s%d, v27" % S_T0)
    k("v_mul_u32_u24 v27, 1280, v27")
    k("v_lshl_add_u32 v%d, v26, 7, v27" % V_TX)
    k("s_cmp_eq_u32 s%d, 0" % S_RH)
    for i in range(3): k("s_cselect_b32 s%d, s%d, s%d" % (SRD_T+i, SRD_W0+i, SRD_W1+i))
    k("s_mov_b32 s%d, 0x20000" % (SRD_T+3))
def masked(n, t):
    if n >= 16: return t
    return "s_bfm_b64 exec, %d, 0\n%s\ns_mov_b64 exec, -1" % (4*n, t)
def touch_items(stage):
    out = []
    for (st, first, n) in cfg.TW:
        if st == stage:
            out.append(("s_mul_i32 s101, s%d, %d" % (S_STRIDE, 32*first), masked(n, "buffer_load_dword v%d, v%d, s[%d:%d], s101 offen%s" % (V_JUNK, V_TW, SRD_T, SRD_T+3, " nt" if cfg.TNT else "")), "pf"))
    for (st, first, n) in cfg.TX:
        if st == stage:
            out.append((None, masked(n, "buffer_load_dword v%d, v%d, s[%d:%d], 0 offen offset:%d" % (V_JUNK, V_TX, SRD_X, SRD_X+3, first*128)), "pf"))
    return out

def gemm_setup2(k, att):
    npt = 5 if att else 6
    k("v_and_b32 v54, 15, v0")
    k("v_lshrrev_b32 v55, 4, v0")
    k("v_bfe_u32 v26, v54, 1, 3")
    k("v_xor_b32 v26, v26, v55")
    k("s_lshl_b32 s%d, s%d, 13" % (S_T0, S_RH))
    k("s_add_u32 s%d, s%d, %d" % (S_T0, S_T0, XBASE))
    k("v_lshlrev_b32 v27, 7, v54")
    k("v_add_u32 v27, s%d, v27" % S_T0)
    k("v_lshl_add_u32 v%d, v26, 4, v27" % V_XR)
    k("v_xor_b32 v%d, 64, v%d" % (V_XR+1, V_XR))
    k("v_bfe_u32 v26, v0, 2, 2")
    k("v_and_b32 v27, 3, v0")
    k("v_lshrrev_b32 v28, 1, v26")
    k("v_and_b32 v29, 1, v55")
    k("v_lshl_or_b32 v28, v29, 1, v28")
    k("v_lshlrev_b32 v28, 5, v28")
    k("v_mul_u32_u24 v29, 6144, v55")
    k("v_lshl_add_u32 v29, v26, 7, v29")
    if att:
        k("s_mul_i32 s%d, s%d, 160" % (S_T0, S_C))
        k("s_add_u32 s%d, s%d, s%d" % (S_T0, S_T0, S_DELTA))
        k("v_mul_u32_u24 v27, 40, v27")
    else:
        k("s_mul_i32 s%d, s%d, 192" % (S_T0, S_C))
        k("v_lshlrev_b32 v27, 3, v27")
    k("v_add_u32 v27, s%d, v27" % S_T0)
    for p in range(npt):
        k("v_add_u32 v30, %d, v27" % (p * (8 if att else 32)))
        k("v_lshrrev_b32 v31, 7, v30")
        k("v_and_b32 v30, 127, v30")
        k("v_xor_b32 v30, v30, v28")
        k("v_lshl_add_u32 v31, v31, 10, v29")
        k("v_add_u32 v%d, v30, v31" % (V_TA+p))
        k("v_add_u32 v%d, %d, v%d" % (V_TA+6+p, 2*WSLOT, V_TA+p))

def w_dma(s):
    return [("s_add_u32 m0, s%d, %d" % (S_WL, (s % RW)*WSLOT + (seg*3+lc)*1024 - lc*128),
             "buffer_load_dwordx4 v%d, s[%d:%d], s%d offen offset:%d lds" % (V_WD, SRD_W0+4*seg, SRD_W0+4*seg+3, S_WOFF, lc*128), ("W", s))
            for seg in range(2) for lc in range(3)]
def x_dma(u, i):
    return ("s_add_u32 m0, s%d, %d" % (S_XL, (u % RX)*XSLOT + i*1024 - u*128),
            "buffer_load_dwordx4 v%d, s[%d:%d], 0 offen offset:%d lds" % (V_XD+i, SRD_X, SRD_X+3, u*128), ("X", u))
def reads_for(s, npt):
    out = []; b = s & 1
    for rt in range(4):
        out.append("ds_read_b128 %s, v%d offset:%d" % (R(XF0 + (b*4+rt)*4, 4), V_XR + (s & 1), ((s >> 1) % RX)*XSLOT + rt*2048))
    slot = s % RW
    for p in range(npt):
        for seg in range(2):
            for h in range(2):
                out.append("ds_read_b64_tr_b16 %s, v%d offset:%d" % (R(WF0 + (b*12+p*2+seg)*4 + 2*h, 2), V_TA + p + (6 if slot >= 2 else 0), (slot & 1)*WSLOT + seg*3072 + h*512))
    return out
def acc(p, seg, rt): return ACC0 + ((p*2+seg)*4 + rt)*4

def late_setup_items():
    k = K()
    k("s_and_b32 s%d, s2, 7" % S_T1)
    k("s_lshr_b32 s%d, s2, 3" % S_OH)
    if cfg.P2M == 4:
        k("s_lshl_b32 s%d, s%d, 2" % (S_M64, S_T1)); k("s_and_b32 s%d, s%d, 3" % (S_T0, S_OH)); k("s_add_u32 s%d, s%d, s%d" % (S_M64, S_M64, S_T0))
        k("s_lshr_b32 s%d, s%d, 2" % (S_NT, S_OH))
    else:
        k("s_lshr_b32 s%d, s%d, 1" % (S_M64, S_T1)); k("s_lshl_b32 s%d, s%d, 3" % (S_M64, S_M64)); k("s_and_b32 s%d, s%d, 7" % (S_T0, S_OH)); k("s_add_u32 s%d, s%d, s%d" % (S_M64, S_M64, S_T0))
        k("s_and_b32 s%d, s%d, 1" % (S_NT, S_T1)); k("s_lshl_b32 s%d, s%d, 2" % (S_NT, S_NT)); k("s_lshr_b32 s%d, s%d, 3" % (S_T0, S_OH)); k("s_add_u32 s%d, s%d, s%d" % (S_NT, S_NT, S_T0))
    k("s_bfe_u32 s%d, s%d, 0x10001" % (S_T0, S_OH)); k("s_lshl_b32 s%d, s%d, 4" % (S_T0, S_T0))
    k("s_and_b32 s%d, s%d, 1" % (S_T2, S_OH)); k("s_lshl_b32 s%d, s%d, 1" % (S_OMT, S_T2))
    k("s_add_u32 s%d, s%d, s%d" % (S_OMT, S_OMT, S_T0)); k("s_add_u32 s%d, s%d, 12" % (S_OMT, S_OMT))
    k("s_lshl_b32 s%d, s%d, 4" % (S_T0, S_T2)); k("s_add_u32 s%d, s%d, %d" % (S_T0, S_T0, 12 - cfg.AUXU))
    k("s_cmp_lt_u32 s%d, 20" % S_OH); k("s_cselect_b32 s%d, s%d, s%d" % (S_OMT, S_T0, S_OMT))
    k("s_cmp_ge_u32 s%d, 9" % S_OH); k("s_cselect_b32 s%d, 9, 0" % S_T2); k("s_cselect_b32 s94, 16, 0")
    k("s_sub_u32 s%d, s%d, s%d" % (S_T2, S_OH, S_T2))
    k("s_min_u32 s%d, s%d, %d" % (S_T0, S_T2, 3 - cfg.AUXU)); k("s_add_u32 s%d, s%d, s%d" % (S_T0, S_T0, S_T2)); k("s_add_u32 s%d, s%d, s94" % (S_T0, S_T0))
    k("s_cmp_lt_u32 s%d, 18" % S_OH); k("s_cselect_b32 s%d, s%d, s%d" % (S_OMT, S_T0, S_OMT))
    k("s_lshr_b32 s%d, s%d, 4" % (S_OH, S_OMT)); k("s_and_b32 s%d, s%d, 15" % (S_OMT, S_OMT))
    k("s_lshl_b32 s%d, s%d, 1" % (S_T0, S_T1)); k("s_add_u32 s%d, s%d, s%d" % (S_OH, S_OH, S_T0))
    k("s_mul_i32 s%d, s%d, %d" % (S_T0, S_NT, 74*5120))
    srd(k, SRD_B, P_WS, B2_OFF, 74*5120, S_T0)
    k("s_mul_i32 s%d, s%d, 5120" % (S_BB, S_W))
    k("s_add_u32 s%d, s%d, 0x%x" % (S_CNT, P_WS, CNT_OFF))
    k("s_addc_u32 s%d, s%d, 0" % (S_CNT+1, P_WS+1))
    k("v_add_u32 v%d, 4096, v%d" % (V_L16B, V_L16))
    k("s_mov_b32 s%d, %s" % (S_C2, f32(LOG2E))); k("s_mov_b32 s%d, %s" % (S_C2+1, f32(LOG2E)))
    return [t for _, t in k.items]

def dma_queue():
    Q = []
    for st in range(20):
        if st % 2 == 0:
            u = st // 2
            for i in range(4): Q.append((-1 if u < RX else 2*(u-RX)+1, x_dma(u, i), False))
        it = w_dma(st)
        for i, d in enumerate(it): Q.append((-1 if st < RW else max(1, st-RW), d, i == len(it)-1))
    return Q
def wadv(k): k("s_add_u32 s%d, s%d, s%d" % (S_WOFF, S_WOFF, S_T3))
def issue_now(k, Q, n):
    for _ in range(n):
        av, it, last = Q.pop(0)
        k(it[0]); k.vm(it[1], it[2])
        if last: wadv(k)

def btouch(first_ks, n):
    out = []
    for i in range(n):
        pre = "s_and_b32 s101, s%d, 3\ns_lshl_b32 s101, s101, 2\ns_add_u32 s101, s101, s%d\ns_lshl_b32 s101, s101, 13\ns_add_u32 s101, s101, %d\nv_lshlrev_b32 v24, 7, v0" % (S_M64, S_W, first_ks*5120 + i*131072)
        out.append((pre, "buffer_load_dword v25, v24, s[%d:%d], s101 offen%s" % (SRD_B, SRD_B+3, SC), "pf"))
    return out
def spread(items, s0, s1):
    out = {}; n = len(items); i = 0
    for s in range(s0, s1):
        c = -(-(n - i) // (s1 - s)); out[s] = items[i:i+c]; i += c
    return out

def capture(fn):
    q = K(); q.nl = 100000 + capture.n; capture.n += 100
    fn(q)
    assert not q.vmq and not q.lgq
    return q.items
capture.n = 0

def gemm_main(k, att, Q, extra, polls, xrd=None, xwait=None, xsetup=None):
    npt = 5 if att else 6
    Q = list(Q)
    astamp(k, 4)
    gemm_setup2(k, att)
    astamp(k, 5)
    issue_now(k, Q, cfg.N2)
    side = []
    for t in late_setup_items():
        if side and (t.startswith(("s_addc", "s_cselect", "v_cndmask")) ): side[-1] += "\n" + t
        else: side.append(t)
    blocks = []
    if xsetup:
        its = capture(xsetup)
        if any(kd == "l" for kd, _ in its): blocks = its
        else:
            for _, t in its:
                if side and t.startswith(("s_addc", "s_cselect", "v_cndmask")): side[-1] += "\n" + t
                else: side.append(t)
    rds = lambda s: reads_for(s, npt)
    stamp(k, 2)
    astamp(k, 6)
    k.wait(vm=[("X", 0), ("W", 0)])
    k("s_barrier")
    astamp(k, 7)
    aflush(k)
    stamp(k, 3)
    r0 = rds(0)
    for i, r in enumerate(r0): k.lg(r, ("r0", max(0, i-4)//2))
    astamp(k, 8)
    for s in range(20):
        b = s & 1
        rd = rds(s+1) if s < 19 else []
        if xrd and s in xrd: rd += xrd[s]
        dm = []
        while Q and Q[0][0] <= s and len(dm) < (cfg.MAXD0 if s == 0 else cfg.MAXD): dm.append(Q.pop(0))
        ex = [(0, e, False) for e in extra.get(s, [])]
        mix = []
        while dm or ex:
            if dm: mix.append(dm.pop(0))
            if ex and len(ex) >= len(dm): mix.append(ex.pop(0))
        dm = mix + [(0, e, False) for e in touch_items(s)]
        mf = []
        for p in range(npt):
            for seg in range(2):
                for rt in range(4):
                    a = acc(p, seg, rt)
                    mf.append("v_mfma_f32_16x16x32_bf16 %s, %s, %s, %s" % (R(a,4), R(WF0 + (b*12+p*2+seg)*4, 4), R(XF0 + (b*4+rt)*4, 4), R(a,4) if s else "0"))
        nm = len(mf); nd = len(dm)
        at = [int(i * (nm - 3) / max(nd, 1)) for i in range(nd)]
        for i in range(1, nd): at[i] = max(at[i], at[i-1] + 2)
        pend = None
        m1 = nm - 4 - (len(rd) + 1)//2 if s == 0 else 0
        for m, t in enumerate(mf):
            if s == 0 and m % 4 == 0 and not cfg.AST: k.wait(lg=("r0", m//4))
            if s == 0 and m == 0 and cfg.AST: k.wait(lg="all")
            if s == 0 and m == m1:
                k.wait(vm=("W", 1), lg="all"); k("s_barrier")
            k(t)
            used = 0
            if m >= m1:
                for _ in range(2 if s == 0 else 1):
                    if rd: k.lg(rd.pop(0)); used += 1
            if (s+1) in polls and m == nm - 1: poll_issue(k, P_DBG, polls[s+1], ("poll", s+1))
            if pend is not None:
                k.vm(pend[1][1], pend[1][2]); used += 1
                if pend[2]: wadv(k)
                pend = None
            elif dm and m >= at[nd - len(dm)]:
                pend = dm.pop(0)
                if pend[1][0]: k(pend[1][0]); used += 1
            while side and used < 2 and s >= 1:
                k(side.pop(0)); used += 1
        assert not rd and not dm and pend is None, (s, rd, dm, pend)
        if s == cfg.BLK and blocks:
            assert not side
            k.items += blocks
        if s < 19:
            k.wait(vm=[("W", s+2), ("X", (s+2) >> 1)] + (xwait.get(s, []) if xwait else []), lg="all")
        if s in polls: poll_check(k, P_DBG, 16, ("poll", s), sleep=8, barrier=(s == 19))
        if s < 19:
            k("s_barrier")
            if s == 0: aflush(k)
            if s < 4: astamp(k, 11 + s)
            if s == 4: aflush(k)
            if cfg.STG and s % 2 == 1: stamp(k, 17 + s//2)
    assert not Q and not side
    stamp(k, 4)

def ffn_setup(k):
    k("s_lshl_b32 s75, s%d, 1" % S_MT)
    k("s_add_u32 s75, s75, s%d" % S_RH)
    k("s_mul_i32 s75, s75, 74")
    k("s_mul_i32 s76, s%d, 6" % S_TY)
    k("s_add_u32 s75, s75, s76")
    k("s_mul_i32 s76, s%d, 3" % S_C)
    k("s_add_u32 s75, s75, s76")
    k("s_add_u32 s75, s75, 20")
    k("s_lshl_b32 s75, s75, 12")
    k("s_mul_i32 s%d, s%d, %d" % (S_SIG, S_MT, cfg.CS))
    srd(k, SRD_O, P_WS, A2_OFF, A2_SZ)

def ffn_role(k, Q):
    extra = spread(b_items(list(range(32)) + list(range(62, 70))), cfg.PS1, cfg.PE1)
    bo = bo_items()
    for g in range(cfg.BOL):
        st = max(16 + g, 20 - cfg.BOL + g, cfg.BOS)
        extra[st] = extra.get(st, []) + bo[5*g:5*g+5]
    polls = {cfg.PS1-1: D_S1, (max(20 - cfg.BOL, cfg.BOS) - 1 if cfg.BOL else 19): D_S3}
    if cfg.BT: extra[cfg.BT] = btouch(44, 1) + extra.get(cfg.BT, [])
    if cfg.BT2:
        polls = {cfg.PS1-1: D_S1, cfg.BT2-1: D_S3}
        extra[cfg.BT2] = btouch(0, 1) + extra.get(cfg.BT2, [])
    gemm_main(k, False, Q, extra, polls, xsetup=ffn_setup)
    fd = Feed(k, b_items(range(32, 62)) + bo[5*cfg.BOL:])
    per, last = cfg.FFE
    n = 0
    for ks in range(3):
        for rt in range(4):
            T = 6 + (n & 1)*8; O = 22 + (n & 1)*4; n += 1
            if O & 3: O = (24, 28)[(n-1) & 1] - 0
            fe = lambda i: fd.emit(1) if (n <= last and i < per) else None
            G = [acc(2*ks+j, 0, rt) for j in range(2)]; U = [acc(2*ks+j, 1, rt) for j in range(2)]
            O = U[0]
            prs = [(j, h) for j in range(2) for h in range(2)]
            for i, (j, h) in enumerate(prs):
                k("v_pk_mul_f32 %s, %s, s[%d:%d] neg_lo:[0,1] neg_hi:[0,1]" % (vr(T+2*i,2), vr(G[j]+2*h,2), S_C2, S_C2+1))
            fe(0)
            for i in range(8): k("v_exp_f32 v%d, v%d" % (T+i, T+i))
            fe(2)
            for i, (j, h) in enumerate(prs):
                k("v_pk_mul_f32 %s, %s, %s" % (vr(G[j]+2*h,2), vr(G[j]+2*h,2), vr(U[j]+2*h,2)))
            for i in range(4): k("v_pk_add_f32 %s, %s, 1.0 op_sel_hi:[1,0]" % (vr(T+2*i,2), vr(T+2*i,2)))
            fe(1)
            for i in range(8): k("v_rcp_f32 v%d, v%d" % (T+i, T+i))
            fe(3)
            for i, (j, h) in enumerate(prs):
                k("v_pk_mul_f32 %s, %s, %s" % (vr(T+2*i,2), vr(G[j]+2*h,2), vr(T+2*i,2)))
            for i in range(4): k("v_cvt_pk_bf16_f32 v%d, v%d, v%d" % (O+i, T+2*i, T+2*i+1))
            k.vm("buffer_store_dwordx4 %s, v%d, s[%d:%d], s75 offen offset:%d%s" % (vr(O,4), V_L16, SRD_O, SRD_O+3, rt*1024, SC), "st")
        if ks < 2: k("s_add_u32 s75, s75, 4096")
    stamp(k, 26)
    def presig():
        k.wait(vm="st")
        stamp(k, 5)
        signal(k, S_CNT, "s%d" % S_SIG, 14, 15)
    return presig, fd.q

def phi_dma(seg):
    pre = "s_add_u32 s%d, s%d, s81\ns_addc_u32 s%d, s%d, 0\n" % (SRD_P, SRD_P, SRD_P+1, SRD_P+1) if seg else ""
    return [((pre if i == 0 else "") + "s_add_u32 m0, s%d, %d" % (S_XL, XSLOT if seg else SPARE - XBASE),
             "buffer_load_dwordx4 v%d, s[%d:%d], 0 offen offset:%d lds" % (V_L16, SRD_P, SRD_P+3, i*1024), ("P", seg)) for i in range(4)]
def phireg(seg, to, s):
    i = s*5 + to
    if seg == 1: return 256 + 48 + 4*i if i < 10 else 256 + 108 + 4*(i-10)
    return 256 + 4*i if i < 12 else 256 + 96 + 4*(i-12)
V_PHA = 23
def phi_reads(seg):
    out = []
    for s in range(3):
        for to in range(5):
            for h in range(2):
                d = phireg(seg, to, s) + 2*h
                b = 0 if seg else SPARE - XBASE - XSLOT
                if s == 2 and h == 1: out.append("ds_read_b64_tr_b16 %s, v26 offset:%d" % (R(d,2), b))
                else: out.append("ds_read_b64_tr_b16 %s, v%d offset:%d" % (R(d,2), V_PHA, b + (8*s+4*h)*40 + 8*to))
    return out
def cvt_in(seg, rt, B):
    out = []
    for t in range(5):
        a = acc(t, seg, rt)
        out.append("v_cvt_pk_bf16_f32 v%d, v%d, v%d" % (B+2*t, a, a+1))
        out.append("v_cvt_pk_bf16_f32 v%d, v%d, v%d" % (B+2*t+1, a+2, a+3))
    return out
def phi_mf(seg, rt, B):
    return ["v_mfma_f32_16x16x32_bf16 %s, %s, %s, %s" % (vr(acc(to,seg,rt),4), R(phireg(seg, to, s),4), vr(B+4*s,4), vr(acc(to,seg,rt),4) if s else "0")
            for s in range(3) for to in range(5)]

PKRS = 352; VRS = 224; PKSZ = 128*PKRS; VB = 2*PKSZ; VSZ = 128*VRS
V_E0, V_E1, V_E2, V_E3, V_E4, V_E5, V_E6 = 27, 28, 29, 30, 60, 61, 62
def att_common_setup(k):
    k("v_lshrrev_b32 v50, 4, v0")
    k("v_and_b32 v51, 15, v0")
    k("v_bfe_u32 v52, v0, 2, 2")
    k("v_and_b32 v53, 3, v0")
    k("v_mul_u32_u24 v48, 800, v50")
    k("v_mad_u32_u24 v48, v52, 40, v48")
    k("v_cmp_eq_u32 vcc, v50, v53")
    k("v_mov_b32 v49, 3200")
    k("v_cndmask_b32 v48, v49, v48, vcc")
    k("s_add_u32 s%d, s%d, %d" % (S_T2, S_XL, XSLOT))
    k("v_add_u32 v%d, s%d, v48" % (V_PHA, S_T2))
    k("v_add_u32 v26, s%d, v49" % S_T2)
def kv_setup(k):
    k("s_add_u32 s%d, s%d, %d" % (S_SIG, S_TY, C_K - 9))
    k("s_mul_i32 s%d, s%d, %d" % (S_SIG, S_SIG, cfg.CS))
    k("s_lshl_b32 s%d, s%d, 6" % (S_T0, S_RH))
    k("v_add_u32 v48, s%d, v51" % S_T0)
    k("s_mul_i32 s%d, s%d, %d" % (S_T0, S_C, PKSZ))
    k("v_mul_u32_u24 v%d, %d, v48" % (V_E0, PKRS))
    k("v_mul_u32_u24 v49, 80, v50")
    k("v_add3_u32 v%d, v%d, v49, s%d" % (V_E0, V_E0, S_T0))
    k("s_mul_i32 s%d, s%d, %d" % (S_T1, S_C, VSZ))
    k("s_add_u32 s%d, s%d, %d" % (S_T1, S_T1, VB))
    k("v_mul_u32_u24 v%d, %d, v48" % (V_E1, VRS))
    k("v_mul_u32_u24 v49, 48, v50")
    k("v_add3_u32 v%d, v%d, v49, s%d" % (V_E1, V_E1, S_T1))
    k("v_lshrrev_b32 v48, 2, v0")
    k("v_lshlrev_b32 v49, 3, v53")
    k("s_mul_i32 s%d, s%d, 160" % (S_T2, S_RH))
    k("s_add_u32 s%d, s%d, s%d" % (S_T0, S_T0, S_T2))
    k("v_mul_u32_u24 v%d, %d, v48" % (V_E2, PKRS))
    k("v_add3_u32 v%d, v%d, v49, s%d" % (V_E2, V_E2, S_T0))
    k("s_mul_i32 s%d, s%d, 96" % (S_T2, S_RH))
    k("s_add_u32 s%d, s%d, s%d" % (S_T1, S_T1, S_T2))
    k("v_mul_u32_u24 v%d, %d, v48" % (V_E3, VRS))
    k("v_add3_u32 v%d, v%d, v49, s%d" % (V_E3, V_E3, S_T1))
    k("s_add_u32 s%d, s%d, %d" % (S_T2, S_XL, SPARE - XBASE))
    k("v_mul_u32_u24 v48, 80, v51")
    k("v_lshl_add_u32 v48, v50, 3, v48")
    k("v_add_u32 v%d, s%d, v48" % (V_E5, S_T2))
    k("v_add_u32 v%d, s%d, v%d" % (V_E6, S_T2, V_L16))
    k("v_mov_b32 v48, 0x7fffffff")
    k("v_cmp_gt_u32 vcc, 32, v0")
    k("v_cndmask_b32 v%d, v48, v%d, vcc" % (V_E4, V_L16))
    k("s_lshl_b32 s78, s79, 1")
    k("s_add_u32 s78, s78, s%d" % S_RH)
    k("s_lshl_b32 s78, s78, 4")
    k("s_add_u32 s78, s78, s%d" % S_MT)
    k("s_mul_i32 s78, s78, %d" % KVPS)
    k("v_cmp_gt_u32 s[72:73], 2, v50")
    k("v_cmp_gt_u32 s[74:75], 5, v51")
    k("s_and_b64 s[76:77], s[72:73], s[74:75]")
    srd(k, SRD_O, P_WS, KVP_OFF, KVP_SZ)
    for r in (42, 43, 54, 55): k("v_mov_b32 v%d, 0" % r)
def q_setup(k):
    k("s_mov_b32 s%d, 81920" % S_T0)
    k("v_mul_lo_u32 v48, v50, s%d" % S_T0)
    k("v_lshl_add_u32 v%d, v51, 4, v48" % V_E0)
    k("v_lshl_add_u32 v%d, v51, 3, v48" % V_E1)
    k("v_lshlrev_b32 v%d, 2, v0" % V_E2)
    k("s_mul_i32 s%d, s79, %d" % (S_T1, 4*81920))
    k("s_lshl_b32 s%d, s%d, 1" % (S_T0, S_MT))
    k("s_add_u32 s%d, s%d, s%d" % (S_T0, S_T0, S_RH))
    k("s_lshl_b32 s75, s%d, 10" % S_T0)
    k("s_add_u32 s75, s75, s%d" % S_T1)
    k("s_add_u32 s76, s75, 32768")
    k("s_lshl_b32 s77, s%d, 9" % S_T0)
    k("s_add_u32 s77, s77, s%d" % S_T1)
    k("s_add_u32 s77, s77, 65536")
    k("s_lshl_b32 s78, s%d, 8" % S_T0)
    k("s_add_u32 s78, s78, %d" % (G_OFF - PQ_OFF))
    k("s_add_u32 s%d, s%d, %d" % (S_SIG, S_MT, C_Q))
    k("s_mul_i32 s%d, s%d, %d" % (S_SIG, S_SIG, cfg.CS))
    srd(k, SRD_O, P_WS, PQ_OFF, G_OFF + G_SZ - PQ_OFF)
    for r in (42, 43, 54, 55): k("v_mov_b32 v%d, 0" % r)

def softmax_pm(k, P, E, T, O, fd=None, mf=None, side=None):
    def fe(n=1):
        if fd: fd.emit(n)
    mf = list(mf or []); side = list(side or [])
    v = [p + i for p in P for i in range(2)]
    k("v_max3_f32 v%d, v%d, v%d, v%d" % (T, v[0], v[1], v[2]))
    k("v_min3_f32 v%d, v%d, v%d, v%d" % (T+2, v[0], v[1], v[2]))
    k("v_max3_f32 v%d, v%d, v%d, v%d" % (T+1, v[3], v[4], v[5]))
    k("v_min3_f32 v%d, v%d, v%d, v%d" % (T+3, v[3], v[4], v[5]))
    for n, i in enumerate(range(6, 20, 2)):
        c = n & 1
        k("v_max3_f32 v%d, v%d, v%d, v%d" % (T+c, T+c, v[i], v[i+1]))
        k("v_min3_f32 v%d, v%d, v%d, v%d" % (T+2+c, T+2+c, v[i], v[i+1]))
    fe()
    k("v_max_f32 v%d, v%d, v%d" % (T, T, T+1))
    k("v_min_f32 v%d, v%d, v%d" % (T+2, T+2, T+3))
    k("v_mul_f32 v%d, %s, v%d" % (T, f32(-LOG2E), T))
    k("v_mul_f32 v%d, %s, v%d" % (T+2, f32(LOG2E), T+2))
    for i, p in enumerate(P):
        k("v_pk_fma_f32 %s, %s, s[%d:%d], %s op_sel_hi:[1,1,0]" % (vr(E+2*i,2), vr(p,2), S_C2, S_C2+1, vr(T,2)))
    fe()
    for i, p in enumerate(P):
        k("v_pk_fma_f32 %s, %s, s[%d:%d], %s op_sel_hi:[1,1,0] neg_lo:[0,1,0] neg_hi:[0,1,0]" % (vr(p,2), vr(p,2), S_C2, S_C2+1, vr(T+2,2)))
    ex = [E+i for i in range(20)] + v
    for i, x in enumerate(ex):
        if i % 2 == 0:
            if mf: k(mf.pop(0))
            if side: k.lg(*side.pop(0))
        if i % 12 == 5: fe()
        k("v_exp_f32 v%d, v%d" % (x, x))
    assert not mf and not side
    Ep = [E+2*i for i in range(10)]
    k("v_pk_add_f32 %s, %s, %s" % (vr(T+4,2), vr(Ep[0],2), vr(Ep[1],2)))
    k("v_pk_add_f32 %s, %s, %s" % (vr(T,2), vr(Ep[2],2), vr(Ep[3],2)))
    k("v_pk_add_f32 %s, %s, %s" % (vr(T+6,2), vr(P[0],2), vr(P[1],2)))
    k("v_pk_add_f32 %s, %s, %s" % (vr(T+2,2), vr(P[2],2), vr(P[3],2)))
    for i in range(4, 10, 2):
        k("v_pk_add_f32 %s, %s, %s" % (vr(T+4,2), vr(T+4,2), vr(Ep[i],2)))
        k("v_pk_add_f32 %s, %s, %s" % (vr(T,2), vr(T,2), vr(Ep[i+1],2)))
        k("v_pk_add_f32 %s, %s, %s" % (vr(T+6,2), vr(T+6,2), vr(P[i],2)))
        k("v_pk_add_f32 %s, %s, %s" % (vr(T+2,2), vr(T+2,2), vr(P[i+1],2)))
    k("v_pk_add_f32 %s, %s, %s" % (vr(T+4,2), vr(T+4,2), vr(T,2)))
    k("v_pk_add_f32 %s, %s, %s" % (vr(T+6,2), vr(T+6,2), vr(T+2,2)))
    fe()
    k("v_add_f32 v%d, v%d, v%d" % (T+4, T+4, T+5))
    k("v_add_f32 v%d, v%d, v%d" % (T+6, T+6, T+7))
    k("v_rcp_f32 v%d, v%d" % (T+4, T+4))
    k("v_rcp_f32 v%d, v%d" % (T+6, T+6))
    for i in range(10): k("v_pk_mul_f32 %s, %s, %s op_sel_hi:[1,0]" % (vr(Ep[i],2), vr(Ep[i],2), vr(T+4,2)))
    fe()
    for i in range(10): k("v_pk_mul_f32 %s, %s, %s op_sel_hi:[1,0]" % (vr(P[i],2), vr(P[i],2), vr(T+6,2)))
    for i in range(10): k("v_cvt_pk_bf16_f32 v%d, v%d, v%d" % (O+i, Ep[i], Ep[i]+1))
    fe()
    for i in range(10): k("v_cvt_pk_bf16_f32 v%d, v%d, v%d" % (O+10+i, P[i], P[i]+1))

def att_extra(two):
    extra = spread(b_items(range(cfg.NBA)), cfg.PSA, 20)
    if cfg.BT: extra[cfg.BT] = btouch(44, 1) + extra.get(cfg.BT, [])
    extra[cfg.PHS] = phi_dma(0)
    extra[15] = phi_dma(1) + extra.get(15, [])
    return extra

def att_setup(k):
    d = k.newlabel("Lq"); e = k.newlabel("Le")
    att_common_setup(k)
    k("v_mov_b32 v%d, 0x7fffffff" % V_E4)
    k("s_cmp_ge_u32 s%d, 13" % S_TY); k("s_cbranch_scc1 %s" % d)
    kv_setup(k)
    k("s_branch %s" % e)
    k.label(d)
    q_setup(k)
    k.label(e)
def att_loop(k, Q):
    gemm_main(k, True, Q, att_extra(True), {cfg.PSA-1: D_S1}, xrd={19: phi_reads(0)}, xwait={18: [("P", 0)]}, xsetup=att_setup)

def q_role(k):
    k("s_nop 7")
    k.wait(vm=("P", 1))
    for t in cvt_in(0, 0, 32): k(t)
    rd1 = [("lg", r, "ph1") for r in phi_reads(1)]
    def outs(u):
        seg, rt = u >> 2, u & 3
        O = (240, 8)[u & 1]
        f = cvt_in(seg, rt, O)
        f.insert(4, ("vm", "buffer_store_dwordx4 %s, v%d, s[%d:%d], s75 offen offset:%d%s" % (vr(O,4), V_E0, SRD_O, SRD_O+3, rt*256, SC), "st"))
        f.insert(9, ("vm", "buffer_store_dwordx4 %s, v%d, s[%d:%d], s76 offen offset:%d%s" % (vr(O+4,4), V_E0, SRD_O, SRD_O+3, rt*256, SC), "st"))
        f.append(("vm", "buffer_store_dwordx2 %s, v%d, s[%d:%d], s77 offen offset:%d%s" % (vr(O+8,2), V_E1, SRD_O, SRD_O+3, rt*128, SC), "st"))
        if u == 3: f += ["s_add_u32 s%d, s%d, %d" % (x, x, 16*81920) for x in (75, 76, 77)]
        return f
    k.wait(lg="all")
    for u in range(8):
        seg, rt = u >> 2, u & 3
        fill = []
        if u < 7: fill += cvt_in((u+1) >> 2, (u+1) & 3, 32 + ((u+1) & 1)*12)
        if u == 0: fill += rd1[:14]
        elif u == 1: fill += outs(0) + rd1[14:21]
        elif u == 2: fill += outs(1) + rd1[21:28]
        elif u == 3: fill += rd1[28:] + outs(2)
        else: fill += outs(u-1)
        if u == 4: k.wait(lg="all")
        weave(k, phi_mf(seg, rt, 32 + (u & 1)*12), fill)
    weave(k, [], outs(7))
    k.wait(vm="st")
    stamp(k, 5)
    signal(k, S_CNT, "s%d" % S_SIG)

def kv_role(k):
    EREG = 6; TREG = 244; O = 224
    for t in cvt_in(0, 0, 32): k(t)
    k.wait(lg="all")
    weave(k, phi_mf(0, 0, 32), cvt_in(0, 1, 44))
    if not cfg.STG: stamp(k, 17)
    def vout(rt):
        q = [acc(t, 1, rt) + i for t in range(5) for i in range(4)]
        f = ["v_cvt_pk_bf16_f32 v%d, v%d, v%d" % (q[i], q[2*i], q[2*i+1]) for i in range(10)]
        f += ["v_mov_b32 v%d, 0x3f80" % q[10], "v_mov_b32 v%d, 0" % q[11]]
        w = [("ds_write_b128 v%d, %s offset:%d" % (V_E1, vr(q[4*i],4), rt*16*VRS + 16*i), "vw") for i in range(3)]
        return f, w
    def vfr(n, bt): return acc((n*2+bt) >> 2, 1, (n*2+bt) & 3)
    vreads = []
    for n in range(8):
        j, ks = n >> 2, n & 3
        for bt in range(2):
            for h in range(2):
                vreads.append(("ds_read_b64_tr_b16 %s, v%d offset:%d" % (vr(vfr(n,bt)+2*h,2), V_E3, (32*ks+16*h)*VRS + j*48 + bt*32), "vf"))
    fd = Feed(k, [])
    for rt in range(4):
        P = [acc(t, 0, rt) + 2*h for t in range(5) for h in range(2)]
        mf = phi_mf(0, rt+1, 32 + ((rt+1) & 1)*12) if rt < 3 else []
        if rt == 3: poll_issue(k, P_DBG, D_S3, "s3")
        if rt == cfg.KVB0 and cfg.KVN >= 47: fd.q += b_items(range(32, 47))
        if rt == 3 and cfg.KVN >= 62: fd.q += b_items(range(47, 62))
        side = []
        if rt < 2:
            for r in (2*rt, 2*rt+1):
                f, w = vout(r)
                for t in f: k(t)
                side += w
        else:
            if rt == 2: k.wait(lg="vw"); k("s_barrier")
            side = vreads[(rt-2)*16:(rt-1)*16]
        softmax_pm(k, P, EREG, TREG, O, fd, mf, side)
        for i in range(5):
            k.lg("ds_write_b128 v%d, %s offset:%d" % (V_E0, vr(O+4*i,4), rt*16*PKRS + 16*i), ("pw", rt))
        if rt < 2:
            for t in cvt_in(0, rt+2, 32 + (rt & 1)*12): k(t)
        if not cfg.STG: stamp(k, 18+rt)
    k.wait(lg="all")
    k("s_barrier")
    if not cfg.STG: stamp(k, 22)
    KAQ = [32, 36, 40, 44, 48, 52, 224, 228, 232, 236, 240, 244]
    def pfr(n, ft): return acc(((n % 6)*3+ft) >> 2, 0, ((n % 6)*3+ft) & 3)
    def rd(n):
        j, ks = n >> 2, n & 3
        return [("lg", "ds_read_b64_tr_b16 %s, v%d offset:%d" % (vr(pfr(n,ft)+2*h,2), V_E2, (32*ks+16*h)*PKRS + j*80 + ft*32), ("f", n)) for ft in range(3) for h in range(2)]
    def pack(jj):
        f = []
        for ft in range(3):
            for bt in range(2):
                a = KAQ[(jj*3+ft)*2+bt]
                f += ["v_cvt_pk_bf16_f32 v%d, v%d, v%d" % (a, a, a+1), "v_cvt_pk_bf16_f32 v%d, v%d, v%d" % (a+1, a+2, a+3)]
                mask = [[None, "s[74:75]"], [None, "s[74:75]"], ["s[72:73]", "s[76:77]"]][ft][bt]
                w = "ds_write_b64 v%d, %s offset:%d" % (V_E5, vr(a,2), jj*1680 + bt*1280 + ft*32)
                if mask: w = "s_mov_b64 exec, %s\n%s\ns_mov_b64 exec, -1" % (mask, w)
                f.append(("lg", w, "cw"))
        return f
    weave(k, [], rd(0) + rd(1))
    pk0 = pack(0)
    for n in range(8):
        j, ks = n >> 2, n & 3
        k.wait(lg=("f", n))
        mf = []
        for ft in range(3):
            for bt in range(2):
                a = KAQ[(j*3+ft)*2+bt]
                mf.append("v_mfma_f32_16x16x32_bf16 %s, %s, %s, %s" % (vr(a,4), vr(pfr(n,ft),4), vr(vfr(n,bt),4), vr(a,4) if ks else "0"))
        fill = rd(n+2) if n < 6 else []
        if n < 4: fill.append(lambda: fd.emit(1))
        if n >= 5: fill += pk0[(n-5)*6:(n-4)*6]
        weave(k, mf, fill)
    weave(k, [], pack(1))
    k.wait(lg="all")
    for i in range(4): k.lg("ds_read_b128 %s, v%d offset:%d" % (vr(64+4*i,4), V_E6, i*1024), ("cr", i))
    for i in range(4):
        k.wait(lg=("cr", i))
        k.vm("buffer_store_dwordx4 %s, v%d, s[%d:%d], s78 offen offset:%d%s" % (vr(64+4*i,4), V_L16 if i < 3 else V_E4, SRD_O, SRD_O+3, i*1024, SC), "st")
    stamp(k, 26)
    poll_check(k, P_DBG, 16, "s3", sleep=8, barrier=False)
    stamp(k, 5)
    fd.drain()

def aux_role(k):
    NSL = 9
    order = [("d", i) for i in range(9)] + [("o", i) for i in range(4)]
    NU = len(order)
    k("s_mov_b32 s%d, 1280" % S_STRIDE)
    k("s_lshl_b32 s75, s%d, 2" % S_MT)
    k("s_add_u32 s75, s75, s%d" % S_W)
    k("s_mul_i32 s76, s75, 205"); k("s_lshr_b32 s76, s76, 11")
    k("s_mul_i32 s77, s76, 10"); k("s_sub_u32 s77, s75, s77")
    k("s_cmp_ge_u32 s76, 6")
    k("s_cselect_b32 s78, 0x4000000, 0")
    k("s_mul_i32 s79, s76, %d" % (32*1280))
    k("s_lshl_b32 s80, s77, 7")
    k("s_add_u32 s79, s79, s80")
    k("s_add_u32 s79, s79, s78")
    k("v_lshrrev_b32 v24, 3, v0"); k("v_and_b32 v25, 7, v0")
    k("v_and_b32 v26, 6, v24")
    k("v_xor_b32 v26, v26, v25")
    k("v_lshlrev_b32 v26, 4, v26")
    k("v_mad_u32_u24 v5, v24, s%d, v26" % S_STRIDE)
    for i in range(1, 4): k("v_add_u32 v%d, %d, v5" % (5+i, i*8*1280))
    k("s_mul_i32 s%d, s%d, %d" % (S_WL, S_W, NSL*4096))
    k("s_waitcnt lgkmcnt(0)")
    srd(k, SRD_W1, P_WD, 0, 1728*1280)
    def load(n):
        kind, i = order[n]
        sg, vb = (SRD_W1, 5) if kind == "d" else (SRD_W0, 12)
        k("s_add_u32 s81, s79, %d" % (i*6*32*1280))
        for j in range(4):
            k("s_add_u32 m0, s%d, %d" % (S_WL, (n % NSL)*4096 + j*1024))
            k.vm("buffer_load_dwordx4 v%d, s[%d:%d], s81 offen%s lds" % (vb+j, sg, sg+3, " nt" if cfg.AUXNT else ""), ("u", n))
    D = cfg.AUXD
    for n in range(D): load(n)
    srd(k, SRD_W0, P_WO, 0, 640*1280)
    k("v_lshrrev_b32 v27, 2, v24"); k("v_and_b32 v28, 3, v24")
    k("v_lshl_add_u32 v27, v27, 3, v28")
    k("v_mad_u32_u24 v12, v27, s%d, v26" % S_STRIDE)
    for i in range(1, 4): k("v_add_u32 v%d, %d, v12" % (12+i, (16*(i&1) + 4*(i>>1))*1280))
    srd(k, SRD_O, P_WS, B2_OFF, B2_SZ)
    for t in late_setup_items(): k(t)
    k("s_cmp_eq_u32 s%d, 0" % S_MT)
    k("s_cselect_b32 s%d, %d, 0" % (S_T0, 96*cfg.CS))
    srd(k, 96, P_WS, CNT_OFF, "s%d" % S_T0)
    for i in range(4): k("v_mov_b32 v%d, 0" % (56+i))
    k("s_mul_i32 s%d, s%d, %d" % (S_T0, S_W, 24*cfg.CS))
    k("v_mul_u32_u24 v60, %d, v24" % cfg.CS); k("v_lshl_add_u32 v60, v25, 4, v60")
    for i in range(3):
        k.vm("buffer_store_dwordx4 v[56:59], v60, s[96:99], s%d offen%s" % (S_T0, SC), ("st", 0))
        k("s_add_u32 s%d, s%d, %d" % (S_T0, S_T0, 8*cfg.CS))
    srd(k, 96, P_WS, KVP_OFF, KVF_OFF + 16*4096 - KVP_OFF)
    for i in range(4): k("v_mov_b32 v%d, -1" % (52+i))
    k("s_mul_i32 s%d, s%d, %d" % (S_T0, S_OH, 16*KVPS)); k("s_mul_i32 s%d, s%d, %d" % (S_T1, S_W, 4*KVPS)); k("s_add_u32 s%d, s%d, s%d" % (S_T0, S_T0, S_T1))
    fill = []
    for i in range(14):
        fill.append(("s_add_u32 s%d, s%d, %d" % (S_T1, S_T0, (i//4)*4096) if i % 4 == 0 else None,
                     "buffer_store_dwordx4 v[52:55], v%d, s[96:99], s%d offen offset:%d%s" % (V_L16, S_T1, (i % 4)*1024, SC), ("st", 0)))
    Feed(k, fill).drain()
    k("s_lshl_b32 s%d, s%d, 2" % (S_T0, S_OH)); k("s_add_u32 s%d, s%d, s%d" % (S_T0, S_T0, S_W)); k("s_lshl_b32 s%d, s%d, 10" % (S_T0, S_T0))
    k("s_add_u32 s%d, s%d, %d" % (S_T0, S_T0, KVF_OFF - KVP_OFF))
    k.vm("buffer_store_dwordx4 v[52:55], v%d, s[96:99], s%d offen%s" % (V_L16, S_T0, SC), ("st", 0))
    k("v_lshrrev_b32 v24, 2, v0")
    k("v_bfe_u32 v25, v24, 1, 2")
    k("v_and_b32 v26, 3, v0")
    k("v_lshlrev_b32 v24, 7, v24")
    k("v_lshl_add_u32 v24, v26, 3, v24")
    k("v_add_u32 v24, s%d, v24" % S_WL)
    for b in range(4):
        k("v_xor_b32 v26, %d, v25" % b)
        k("v_lshl_add_u32 v%d, v26, 5, v24" % (20+b))
    for b in range(4):
        k("s_lshl_b32 s72, s77, 2"); k("s_add_u32 s72, s72, %d" % b)
        k("s_mul_i32 s73, s72, 205"); k("s_lshr_b32 s73, s73, 10")
        k("s_mul_i32 s74, s73, 5"); k("s_sub_u32 s72, s72, s74")
        k("s_mul_i32 s73, s73, 74"); k("s_add_u32 s73, s73, s76")
        k("s_mul_i32 s73, s73, 5"); k("s_add_u32 s73, s73, s72")
        k("s_lshl_b32 s73, s73, 10")
        k("s_add_u32 s%d, s73, s78" % (64+b))
    k("s_cmp_lt_u32 s76, 2")
    k("s_cselect_b32 s82, %d, 0x4000000" % (18*5120) if False else "s_cselect_b32 s82, 0, 0x4000000")
    stamp(k, 1)
    for n in range(NU):
        kind, i = order[n]
        k.wait(vm=("u", n))
        F = 64 + (n % 4)*16
        for b in range(4):
            for h in range(2):
                k.lg("ds_read_b64_tr_b16 %s, v%d offset:%d" % (vr(F+4*b+2*h,2), 20+b, (n % NSL)*4096 + h*2048))
        off = ((20 if kind == "d" else 0) + 6*i)*5120
        for b in range(4):
            k("s_add_u32 s%d, s%d, %d" % (72+b, 64+b, off))
            if kind == "o" and i == 3: k("s_add_u32 s%d, s%d, s82" % (72+b, 72+b))
        k.wait(lg="all")
        for b in range(4):
            k.vm("buffer_store_dwordx4 %s, v%d, s[%d:%d], s%d offen%s" % (vr(F+4*b,4), V_L16, SRD_O, SRD_O+3, 72+b, SC), ("st", n))
        if n + D < NU: load(n + D)
        if n == 9:
            k.wait(vm=("st", 8)); signal(k, P_DBG, D_S1); stamp(k, 2)
    k.wait(vm="all")
    signal(k, P_DBG, D_S3)
    stamp(k, 4)
    if cfg.L2PF:
        poll_issue(k, P_DBG, D_S1, "s1"); poll_check(k, P_DBG, 16, "s1", sleep=16)
        k("s_and_b32 s72, s%d, 1" % S_MT); k("s_lshl_b32 s72, s72, 2"); k("s_add_u32 s72, s72, s%d" % S_W)
        k("s_mul_i32 s72, s72, %d" % (74*5120)); k("s_add_u32 s72, s72, %d" % (44*5120))
        k("v_lshlrev_b32 v24, 7, v0")
        for i in range(cfg.L2PF):
            k.vm("buffer_load_dword v%d, v24, s[%d:%d], s72 offen%s" % (64 + i % 8, SRD_O, SRD_O+3, SC), ("t", i))
            k("s_add_u32 s72, s72, 8192")
        stamp(k, 3)
    k("s_mul_i32 s%d, s%d, %d" % (S_T0, S_MT, 128*1280))
    srd(k, SRD_X, P_X, 0, 128*1280, S_T0)
    srd(k, SRD_P, P_GW, 0, 1280)
    srd(k, SRD_W0, P_WS, G_OFF, G_SZ)
    k("v_and_b32 v24, 15, v0"); k("v_lshrrev_b32 v25, 4, v0")
    k("v_lshlrev_b32 v26, 4, v24")
    for j in range(5): k.vm("buffer_load_dwordx4 %s, v26, s[%d:%d], 0 offen offset:%d" % (vr(72+4*j,4), SRD_P, SRD_P+3, 256*j), "gw")
    k("s_lshl_b32 s76, s%d, 5" % S_W)
    k("v_lshlrev_b32 v27, 3, v25"); k("v_add_u32 v27, s76, v27")
    k("v_mul_u32_u24 v27, 1280, v27")
    k("v_add_u32 v27, v27, v26")
    k("s_mov_b32 s74, 0")
    for it in range(8):
        for j in range(5): k.vm("buffer_load_dwordx4 %s, v27, s[%d:%d], s74 offen offset:%d" % (vr(96+it*20+4*j,4), SRD_X, SRD_X+3, 256*j), ("gx", it))
        k("s_add_u32 s74, s74, 1280")
    poll_issue(k, P_DBG, D_S3, "s3")
    k("v_mov_b32 v29, 0")
    for it in range(8):
        k.wait(vm=("gx", it))
        k("v_mov_b32 v30, 0")
        for j in range(20): k("v_dot2c_f32_bf16 v30, v%d, v%d" % (96+it*20+j, 72+j))
        k("s_nop 3")
        for sh in (8, 4, 2, 1): k("v_add_f32_dpp v30, v30, v30 row_ror:%d row_mask:0xf bank_mask:0xf" % sh)
        k("v_cmp_eq_u32 vcc, %d, v24" % it)
        k("v_cndmask_b32 v29, v29, v30, vcc")
    k("v_mul_f32 v29, %s, v29" % f32(-LOG2E))
    k("v_exp_f32 v29, v29")
    k("v_add_f32 v29, 1.0, v29")
    k("v_rcp_f32 v29, v29")
    k("v_lshl_add_u32 v28, v25, 3, v24"); k("v_lshlrev_b32 v28, 2, v28")
    k("v_mov_b32 v30, 0x7fffffff")
    k("v_cmp_gt_u32 vcc, 8, v24")
    k("v_cndmask_b32 v28, v30, v28, vcc")
    k("s_lshl_b32 s74, s%d, 9" % S_MT); k("s_lshl_b32 s76, s%d, 7" % S_W); k("s_add_u32 s74, s74, s76")
    k.vm("buffer_store_dword v29, v28, s[%d:%d], s74 offen%s" % (SRD_W0, SRD_W0+3, SC), "gs")
    poll_check(k, P_DBG, 16, "s3", sleep=32, barrier=False)
    k.wait(vm="gs")
    k("s_add_u32 s74, s%d, %d" % (S_MT, C_Q)); k("s_mul_i32 s74, s74, %d" % cfg.CS)
    signal(k, S_CNT, "s74")
    stamp(k, 5)
    it = b_items(range(70)) + bo_items()[:25-5*max(0, cfg.AUXU-1)]
    fd = Feed(k, it)
    for i in range(len(it)):
        fd.emit(1)
        k("s_waitcnt vmcnt(%d)" % cfg.AUXT)

def pack_inplace(v, E):
    out = ["v_cvt_pk_bf16_f32 v%d, v%d, v%d" % (v[10+i], v[2*i], v[2*i+1]) for i in range(9, -1, -1)]
    out += ["v_cvt_pk_bf16_f32 v%d, v%d, v%d" % (v[i], E+2*i, E+2*i+1) for i in range(10)]
    return out
def minmax(v, T):
    out = ["v_max3_f32 v%d, v%d, v%d, v%d" % (T, v[0], v[1], v[2]), "v_min3_f32 v%d, v%d, v%d, v%d" % (T+2, v[0], v[1], v[2]),
           "v_max3_f32 v%d, v%d, v%d, v%d" % (T+1, v[3], v[4], v[5]), "v_min3_f32 v%d, v%d, v%d, v%d" % (T+3, v[3], v[4], v[5])]
    for n, i in enumerate(range(6, 20, 2)):
        c = n & 1
        out += ["v_max3_f32 v%d, v%d, v%d, v%d" % (T+c, T+c, v[i], v[i+1]), "v_min3_f32 v%d, v%d, v%d, v%d" % (T+2+c, T+2+c, v[i], v[i+1])]
    out += ["v_max_f32 v%d, v%d, v%d" % (T, T, T+1), "v_min_f32 v%d, v%d, v%d" % (T+2, T+2, T+3),
            "v_mul_f32 v%d, %s, v%d" % (T, f32(-LOG2E), T), "v_mul_f32 v%d, %s, v%d" % (T+2, f32(LOG2E), T+2)]
    return out
def softmax_scalar(v, E, T):
    o = [(1, t) for t in minmax(v, T)]
    for i in range(20): o.append((1, "v_fma_f32 v%d, v%d, s%d, v%d" % (E+i, v[i], S_C2, T)))
    for i in range(20): o.append((1, "v_fma_f32 v%d, -v%d, s%d, v%d" % (v[i], v[i], S_C2, T+2)))
    for x in [E+i for i in range(20)] + v: o.append((2, "v_exp_f32 v%d, v%d" % (x, x)))
    e = [E+i for i in range(20)]
    for c, (src, d) in enumerate(((e, T), (v, T+2))):
        o += [(1, "v_add_f32 v%d, v%d, v%d" % (d, src[0], src[1])), (1, "v_add_f32 v%d, v%d, v%d" % (d+1, src[2], src[3]))]
    for i in range(4, 20, 2):
        for src, d in ((e, T), (v, T+2)):
            o += [(1, "v_add_f32 v%d, v%d, v%d" % (d, d, src[i])), (1, "v_add_f32 v%d, v%d, v%d" % (d+1, d+1, src[i+1]))]
    o += [(1, "v_add_f32 v%d, v%d, v%d" % (T, T, T+1)), (1, "v_add_f32 v%d, v%d, v%d" % (T+2, T+2, T+3)),
          (2, "v_rcp_f32 v%d, v%d" % (T, T)), (2, "v_rcp_f32 v%d, v%d" % (T+2, T+2))]
    for x in e: o.append((1, "v_mul_f32 v%d, v%d, v%d" % (x, x, T)))
    for x in v: o.append((1, "v_mul_f32 v%d, v%d, v%d" % (x, x, T+2)))
    o += [(1, t) for t in pack_inplace(v, E)]
    return o

PHB = 102400; KVB = PHB + 20480; RED = PHB
def pq_setup(k):
    srd(k, SRD_P, P_WS, PQ_OFF, PQ_SZ)
    srd(k, SRD_W1, P_WS, G_OFF, G_SZ)
    k("s_lshl_b32 s77, s%d, 1" % S_OMT); k("s_add_u32 s77, s77, s%d" % S_RH)
    k("s_lshl_b32 s78, s%d, 1" % S_OH); k("s_add_u32 s78, s78, s%d" % S_C)
    k("s_mul_i32 s78, s78, 81920")
    k("s_lshl_b32 s79, s77, 10"); k("s_add_u32 s79, s79, s78")
    k("s_add_u32 s101, s79, 32768")
    k("s_lshl_b32 s81, s77, 9"); k("s_add_u32 s81, s81, s78"); k("s_add_u32 s81, s81, 65536")
    k("s_lshl_b32 s76, s%d, 9" % S_OMT); k("s_lshl_b32 s77, s%d, 7" % S_W); k("s_add_u32 s76, s76, s77")
    k("s_add_u32 s82, s%d, %d" % (S_OMT, C_Q)); k("s_mul_i32 s82, s82, %d" % cfg.CS)
    k("v_lshlrev_b32 v5, 3, v0")
    k("v_and_b32 v24, 15, v0"); k("v_lshrrev_b32 v25, 4, v0")
    k("v_lshlrev_b32 v23, 2, v24")
PQR = 192
def pq_loads(k, nu):
    for i in range(nu):
        PQ = PQR + 12*i
        so = ("s79", "s101") if i < 2 else ("s72", "s73")
        if i == 2: k("s_add_u32 s72, s79, 4096"); k("s_add_u32 s73, s101, 4096")
        k.vm("buffer_load_dwordx4 %s, v%d, s[%d:%d], %s offen offset:%d%s" % (vr(PQ,4), V_L16, SRD_P, SRD_P+3, so[0], (i & 1)*2048 if i < 2 else 0, SC), ("pq", i))
        k.vm("buffer_load_dwordx4 %s, v%d, s[%d:%d], %s offen offset:%d%s" % (vr(PQ+4,4), V_L16, SRD_P, SRD_P+3, so[1], (i & 1)*2048 if i < 2 else 0, SC), ("pq", i))
        k.vm("buffer_load_dwordx2 %s, v5, s[%d:%d], s81 offen offset:%d%s" % (vr(PQ+8,2), SRD_P, SRD_P+3, i*1024, SC), ("pq", i))
        for r2 in range(2): k.vm("buffer_load_dword v%d, v17, s[%d:%d], s76 offen offset:%d%s" % (PQ+10+r2, SRD_W1, SRD_W1+3, i*512 + r2*64, SC), ("pq", i))

OAL = list(range(42, 62))
def tail(k, nu, pre, late, bolate, presig=None, reducer=False):
    if cfg.X_END:
        if presig: presig()
        k("s_endpgm"); return
    if cfg.X_NOO:
        if presig: presig(); presig = None
        nu = 0
    if cfg.X_NOB: pre = []; late = []; bolate = []
    if not presig: k.flush_counters()
    stamp(k, 6)
    fd = Feed(k, [] if presig else pre)
    def ch():
        k("s_lshr_b32 s82, s%d, 1" % S_M64); k("s_mul_i32 s82, s82, %d" % cfg.CS)
        poll_issue(k, S_CNT, "s82", "h_ok")
    if not nu:
        ch()
        srd(k, SRD_W1, P_WS, G_OFF, G_SZ)
        k("v_and_b32 v24, 15, v0"); k("v_lshrrev_b32 v25, 4, v0")
    else:
        fd.emit(cfg.QPRE)
        pq_setup(k)
        k("s_mov_b32 s%d, s82" % S_T2)
        k("v_mov_b32 v17, v23")
    k("s_mul_i32 s%d, s%d, %d" % (S_T0, S_M64, 74*4096))
    srd(k, SRD_X, P_WS, A2_OFF, 74*4096, S_T0)
    k("s_add_u32 s80, s%d, 20" % S_W); k("s_lshl_b32 s80, s80, 12")
    k("v_lshlrev_b32 v6, 2, v24")
    VA = 26
    for j in range(4):
        k("s_add_u32 s75, s%d, %d" % (S_W, j)); k("s_and_b32 s75, s75, 3"); k("s_lshl_b32 s75, s75, 10")
        k("v_add_u32 v%d, s75, v%d" % (VA+j, V_L16))
    A0 = 64
    XD = 0 if reducer else (cfg.XD if nu else 4)
    def af(i): return 192 + 16*i if i < XD else 144 + ((i - XD) % 3)*16
    TO = (1, 2, 3, 0)
    def a_load(i, j):
        if cfg.X_NOA and i >= 3: return
        k.vm("buffer_load_dwordx4 %s, v%d, s[%d:%d], s80 offen%s" % (vr(af(i)+4*j,4), VA+j, SRD_X, SRD_X+3, LSC), ("A", i, j))
        if j == TO[3]: k("s_add_u32 s80, s80, %d" % (4*4096))
    started = []
    aq = [(i, j) for i in range(3 + XD) for j in TO]
    def hstart():
        stamp(k, 8)
        poll_check(k, S_CNT, 9, "h_ok")
        stamp(k, 9)
        started.append(1)
    if nu:
        if presig and cfg.QEARLY: vpoll_issue(k, "s%d" % S_T2, nu, "q_ok")
        if presig:
            presig(); fd.q += pre
        if not (presig and cfg.QEARLY): vpoll_issue(k, "s%d" % S_T2, nu, "q_ok")
        fd.emit(4)
        T0, T1, T2 = 64, 65, 66
        srd(k, SRD_W0, P_WS, KVF_OFF, 16*4096)
        srd(k, SRD_O, P_WS, A2_OFF, A2_SZ)
        PB = PHB - 20480*(nu-1)
        k("s_mul_i32 s75, s%d, 5120" % S_W); k("s_add_u32 s75, s75, %d" % PB)
        k("v_mul_u32_u24 v7, 80, v0"); k("v_add_u32 v7, s75, v7")
        k("s_mul_i32 s75, s%d, 2560" % S_W); k("s_add_u32 s75, s75, %d" % PB)
        k("v_mul_u32_u24 v8, 80, v24"); k("v_add_u32 v8, s75, v8")
        k("v_lshl_add_u32 v9, v25, 4, v8")
        k("v_mov_b32 v30, 0x7fffffff")
        vpoll_check(k, 3, "q_ok")
        pq_loads(k, nu)
        stamp(k, 7)
        fd.emit(3)
        k("s_mul_i32 s72, s%d, 5" % S_OH)
        for dst, add, nvalid in ((12, 0, 3), (13, 3, 2)):
            k("v_add_u32 v%d, s72, v25" % T2)
            if add: k("v_add_u32 v%d, %d, v%d" % (T2, add, T2))
            k("v_lshrrev_b32 v%d, 2, v%d" % (T0, T2))
            k("v_lshlrev_b32 v%d, 12, v%d" % (T0, T0))
            k("v_and_b32 v%d, 3, v%d" % (T1, T2))
            k("v_lshl_add_u32 v%d, v%d, 8, v%d" % (T0, T1, T0))
            k("v_lshl_add_u32 v%d, v24, 4, v%d" % (T0, T0))
            k("v_cmp_gt_u32 vcc, %d, v25" % nvalid)
            k("v_cndmask_b32 v%d, v30, v%d, vcc" % (dst, T0))
        fd.emit(2)
        k("s_lshl_b32 s73, s%d, 1" % S_OMT); k("s_add_u32 s73, s73, s%d" % S_C)
        k("s_mul_i32 s73, s73, %d" % (74*4096))
        k("s_lshl_b32 s75, s%d, 11" % S_RH); k("s_add_u32 s73, s73, s75")
        k("s_lshl_b32 s74, s%d, 2" % S_OH); k("s_add_u32 s74, s74, s%d" % S_W); k("s_lshl_b32 s74, s74, 10")
        k("v_bfe_u32 v%d, v0, 2, 2" % T0); k("v_and_b32 v%d, 3, v0" % T1)
        k("v_lshl_add_u32 v%d, v%d, 3, v%d" % (T2, T0, T1))
        for hd in range(2):
            for i in range(3):
                d = 18 + hd*3 + i
                if i == 2: k("v_mov_b32 v%d, %d" % (d, KVB + 1600 + hd*1680))
                else:
                    k("v_add_u32 v14, %d, v%d" % (4*i + 4*hd, T2)); k("v_min_u32 v14, 20, v14")
                    if hd == 1 and i == 0:
                        k("v_cmp_eq_u32 vcc, 2, v%d" % T0); k("v_cndmask_b32 v14, v14, v%d, vcc" % T1)
                    k("v_mul_u32_u24 v14, 80, v14")
                    k("v_add_u32 v%d, %d, v14" % (d, KVB + hd*1680))
        fd.emit(2)
        k("v_cmp_eq_u32 s[78:79], 0, v25")
        k("v_cmp_eq_u32 s[76:77], 2, v25")
        k("v_mov_b32 v30, %d" % (KVB + 3584 - 64))
        for i in range(nu):
            k.wait(vm=("pq", i))
            for j in range(10):
                k("v_lshlrev_b32 v%d, 16, v%d" % (64+2*j, PQR+12*i+j))
                k("v_and_b32 v%d, 0xffff0000, v%d" % (65+2*j, PQR+12*i+j))
            for r2 in range(2): k("v_mov_b32 v%d, v%d" % (250+2*i+r2, PQR+12*i+10+r2))
            fd.emit(2)
            class Hook:
                n = 0
                def emit(self, _=1):
                    self.n += 1
                    last = i == nu-1
                    if last and self.n == cfg.HP[0]: ch()
                    elif last and self.n == cfg.HP[1]: hstart()
                    if started and aq:
                        for _ in range(4):
                            if aq: a_load(*aq.pop(0))
                    else: fd.emit(1)
            softmax_pm(k, [64+2*j for j in range(10)], 84, 124, 104, Hook())
            for j in range(5): k.lg("ds_write_b128 v7, %s offset:%d" % (vr(104+4*j,4), i*20480 + 16*j))
        stamp(k, 27)
    else:
        fd.drain()
    if reducer:
        srd(k, SRD_P, P_WS, KVP_OFF, KVP_SZ)
        srd(k, SRD_T, P_WS, KVF_OFF, 16*4096)
        k("s_lshl_b32 s75, s%d, 10" % S_W)
        k("v_add_u32 v10, s75, v%d" % V_L16)
        k("v_mov_b32 v14, 0x7fffffff")
        k("v_cmp_gt_u32 vcc, 3360, v10")
        k("v_cndmask_b32 v11, v14, v10, vcc")
        k("s_mul_i32 s72, s%d, %d" % (S_OH, 16*KVPS))
        k("s_lshl_b32 s81, s%d, 12" % S_OH)
        k("v_bfe_u32 v64, v0, 2, 2"); k("v_and_b32 v65, 3, v0")
        k("v_and_b32 v14, 1, v0"); k("v_lshlrev_b32 v14, 4, v14")
        k("v_mov_b32 v15, 0x3f80")
        k("v_lshlrev_b32 v14, v14, v15")
        k("v_cmp_eq_u32 vcc, v64, v25")
        k("v_cndmask_b32 v14, 0, v14, vcc")
        k("v_cmp_gt_u32 vcc, 2, v65")
        k("v_cndmask_b32 v15, 0, v14, vcc")
        k("v_cndmask_b32 v14, v14, 0, vcc")
        for r, src in ((120, "v15"), (121, "v14"), (122, "0"), (123, "0"), (124, "0"), (125, "0"), (126, "v15"), (127, "v14")):
            k("v_accvgpr_write_b32 a%d, %s" % (r, src))
    def sent(regs, t):
        k("v_max3_u32 v%d, v%d, v%d, v%d" % (t, regs[0], regs[1], regs[2]))
        rest = regs[3:]
        while len(rest) >= 2:
            k("v_max3_u32 v%d, v%d, v%d, v%d" % (t, t, rest[0], rest[1])); rest = rest[2:]
        if rest: k("v_max_u32 v%d, v%d, v%d" % (t, t, rest[0]))
    def do_reduce():
        l = k.newlabel("Lkp"); d = k.newlabel("Lkd")
        KP = 76
        stamp(k, 10)
        k("s_mov_b32 s95, 0x4000")
        k.label(l)
        k.vmq = []
        for p in range(16):
            k("s_add_u32 s75, s72, %d" % (p*KVPS))
            k.vm("buffer_load_dwordx4 %s, v11, s[%d:%d], s75 offen%s" % (vr(KP+4*p,4), SRD_P, SRD_P+3, SC), ("kp", p))
        RA = 64
        for p in range(16):
            k.wait(vm=("kp", p))
            for h in range(2): k("v_mfma_f32_16x16x32_bf16 %s, %s, %s, %s" % (vr(RA+4*h,4), ar(120+4*h,4), vr(KP+4*p,4), vr(RA+4*h,4) if p else "0"))
            r = [KP+4*p+i for i in range(4)]
            sent(r if p == 0 else [72] + r, 72)
        k("v_cmp_eq_u32 vcc, -1, v72")
        k("s_sub_u32 s95, s95, 1")
        k("s_cmp_eq_u64 vcc, 0")
        k("s_cbranch_scc1 %s" % d)
        k("s_cmp_lg_u32 s95, 0")
        k("s_cbranch_scc1 %s" % l)
        k.label(d)
        k("s_nop 3")
        stamp(k, 11)
        for i in range(4): k("v_cvt_pk_bf16_f32 v%d, v%d, v%d" % (192+i, RA+2*i, RA+1+2*i))
        k.vm("buffer_store_dwordx4 v[192:195], v10, s[%d:%d], s81 offen%s" % (SRD_T, SRD_T+3, SC), "st")
        stamp(k, 28)
    if not started: hstart()
    while aq: a_load(*aq.pop(0))
    k.wait(lg="all")
    if reducer: do_reduce()
    ncon = 5*(nu-1) if nu else 0
    fl = Feed(k, fd.q + b_items(late) + (bolate[:len(bolate)-ncon]))
    bolate = bolate[len(bolate)-ncon:]
    lds = []
    cnt = [0]
    order = [(i, j) for i in range(11) for j in TO] + [(i, j) for j in TO for i in range(11, 14)]
    def main():
        for (i, j) in order:
            pend = set(t[2][1] for t in fl.q if isinstance(t[2], tuple) and t[2][0] == "B")
            assert not (pend & set(range(i*5, i*5+5))), (nu, i, pend)
            k.wait(vm=[("A", i, j)] + [("B", i*5+ct) for ct in range(5)])
            for ct in range(5):
                a = A0 + (j*5+ct)*4
                k("v_mfma_f32_16x16x32_bf16 %s, %s, %s, %s" % (vr(a,4), R(bloc(i*5+ct),4), vr(af(i)+4*j,4), vr(a,4) if i else "0"))
                cnt[0] += 1
                if lds: emit1(k, lds.pop(0))
                if ct == 4 and i >= XD and i + 3 < 14: a_load(i + 3, j)
                if ct in cfg.FLAT: fl.emit(1)
                yield 1
    g = main()
    def run(n):
        for _ in range(n): next(g, None)
    def upto(m): run(max(0, m - cnt[0]))
    def mix(items, per):
        for i, it in enumerate(items):
            emit1(k, it)
            if i % per == per-1: run(1)
    if nu:
        def oa(i): return bloc(i)
        ld = "buffer_load_dwordx4 v[192:195], v%d, s[%d:%d], s74 offen%s" % (V_L16, SRD_W0, SRD_W0+3, SC)
        k("s_lshl_b32 s75, s%d, 10" % S_W); k("s_add_u32 s75, s75, %d" % KVB); k("v_add_u32 v10, s75, v%d" % V_L16)
        upto(max(cfg.MF - 25, 20*XD)); k.vm(ld, "kf"); upto(max(cfg.MF, 80))
        stamp(k, 10)
        l = k.newlabel("Lkf"); d = k.newlabel("Lkg")
        k.wait(vm="kf")
        k("s_mov_b32 s95, 0x8000")
        k.label(l)
        sent([192, 193, 194, 195], 196)
        k("v_cmp_eq_u32 vcc, -1, v196")
        k("s_sub_u32 s95, s95, 1")
        k("s_cmp_eq_u64 vcc, 0")
        k("s_cbranch_scc1 %s" % d)
        k("s_sleep %d" % cfg.SLP)
        k(ld)
        k("s_waitcnt vmcnt(0)")
        k("s_cmp_lg_u32 s95, 0")
        k("s_cbranch_scc1 %s" % l)
        k.label(d)
        stamp(k, 11)
        k.lg("ds_write_b128 v10, v[192:195]", "kw")
        run(4)
        k.wait(lg="all"); k("s_barrier"); stamp(k, 28)
        def brd(u):
            o = []
            for hd in range(2):
                for r2 in range(2):
                    o.append(("lg", "ds_read_b128 %s, v9 offset:%d" % (R(oa(12+hd*4+2*r2),4), u*20480 + hd*10240 + r2*1280), ("o", u, hd)))
                    o.append(("lg", "ds_read_b128 %s, v8 offset:%d" % (R(oa(13+hd*4+2*r2),4), u*20480 + hd*10240 + r2*1280+64), ("o", u, hd)))
            return o
        it = []
        for hd in range(2):
            for i in range(3):
                it += ["v_lshl_add_u32 v15, v25, 4, v%d" % (18+hd*3+i), "v_cndmask_b32 v14, v30, v%d, s[78:79]" % (18+hd*3+i),
                       ("lg", "ds_read_b128 %s, v15" % R(oa(hd*6+2*i),4), "oa"), ("lg", "ds_read_b128 %s, v14 offset:64" % R(oa(hd*6+2*i+1),4), "oa")]
        mix(it + brd(0), cfg.MIX)
        run(4)
        KO = 192
        for u in range(nu):
            for hd in range(2):
                k.wait(lg=("o", u, hd))
                for s in range(2):
                    for r2 in range(2):
                        for i in (2, 0, 1):
                            a = KO + (hd*2+r2)*12 + i*4
                            k("v_mfma_f32_16x16x32_bf16 %s, %s, %s, %s" % (vr(a,4), R(oa(hd*6+2*i+s),4), R(oa(12+hd*4+2*r2+s),4), vr(a,4) if s else "0"))
            it = brd(u+1) if u + 1 < nu else []
            for q in range(4): it.append("v_add_f32 v%d, %s, v%d" % (KO+q*12+8, f32(1e-6), KO+q*12+8))
            for q in range(4): it.append("v_rcp_f32 v%d, v%d" % (KO+q*12+8, KO+q*12+8))
            for q in range(4): it.append("v_mul_f32 v%d, v%d, v%d" % (KO+q*12+8, KO+q*12+8, 250+2*u+(q & 1)))
            for r2 in range(2):
                a0 = KO + r2*12; a1 = KO + (2+r2)*12
                for a in (a1, a0):
                    for i in range(8): it.append("v_mul_f32 v%d, v%d, v%d" % (a+i, a+i, a+8))
                    for i in range(4): it.append("v_cvt_pk_bf16_f32 v%d, v%d, v%d" % (a+8+i, a+2*i, a+2*i+1))
                    if a == a1: it.append(("vm", "buffer_store_dwordx4 %s, v13, s[%d:%d], s73 offen offset:%d%s" % (vr(a1+8,4), SRD_O, SRD_O+3, r2*1024, SC), "st"))
                it.append("v_cndmask_b32 v%d, v%d, v%d, s[76:77]" % (a0+10, a0+10, a1+8))
                it.append("v_cndmask_b32 v%d, v%d, v%d, s[76:77]" % (a0+11, a0+11, a1+9))
                it.append(("vm", "buffer_store_dwordx4 %s, v12, s[%d:%d], s73 offen offset:%d%s" % (vr(a0+8,4), SRD_O, SRD_O+3, r2*1024, SC), "st"))
            if u + 1 < nu: it.append("s_add_u32 s73, s73, %d" % (2*74*4096))
            mix(it, cfg.MIX * nu)
        stamp(k, 29)
        run(cfg.OSD)
        k.wait(vm="st")
        d = k.newlabel("Lsg")
        k("s_add_u32 s82, s%d, %d" % (S_OMT, C_O)); k("s_mul_i32 s82, s82, %d" % cfg.CS)
        k("s_barrier")
        k("s_cmp_lg_u32 s%d, 0" % S_W)
        k("s_cbranch_scc1 %s" % d)
        k("v_mul_u32_u24 v%d, %d, v0" % (V_PT, cfg.CS)); k("v_add_u32 v%d, s82, v%d" % (V_PT, V_PT))
        k("v_mov_b32 v31, 1")
        k("s_mov_b64 exec, %d" % ((1 << nu) - 1))
        k("global_atomic_add v%d, v31, s[%d:%d] sc1" % (V_PT, S_CNT, S_CNT+1))
        k("s_mov_b64 exec, -1")
        k.label(d)
        stamp(k, 12)
        fl.q += bolate
    q = K()
    for j in range(1, 4):
        q("s_add_u32 s75, s%d, %d" % (S_W, j)); q("s_and_b32 s75, s75, 3"); q("s_mul_i32 s75, s75, 15360")
        q("s_add_u32 s75, s75, %d" % (RED + (j-1)*5120))
        q("v_add_u32 v%d, s75, v%d" % (10+j, V_L16))
    q("s_mul_i32 s75, s%d, 15360" % S_W); q("s_add_u32 s75, s75, %d" % RED)
    q("v_add_u32 v8, s75, v%d" % V_L16)
    q("v_add_u32 v9, 51200, v%d" % V_L16)
    srd(q, SRD_O, P_OUT, 0, 2048*1280)
    q("s_lshl_b32 s81, s%d, 6" % S_M64); q("s_lshl_b32 s75, s%d, 4" % S_W); q("s_add_u32 s81, s81, s75")
    q("s_lshl_b32 s74, s81, 2")
    q("s_mul_i32 s81, s81, 1280"); q("s_mul_i32 s75, s%d, 160" % S_NT); q("s_add_u32 s81, s81, s75")
    q("v_mul_u32_u24 v16, 1280, v24"); q("v_lshl_add_u32 v16, v25, 3, v16")
    q("s_lshr_b32 s82, s%d, 1" % S_M64); q("s_add_u32 s82, s82, %d" % C_O); q("s_mul_i32 s82, s82, %d" % cfg.CS)
    q("s_mov_b32 s73, 0")
    mix([t for _, t in q.items], 2)
    upto(min(cfg.MO, 238) - 20)
    fl.drain()
    if cfg.MO < 280 and cnt[0] <= 238:
        poll_issue(k, S_CNT, "s82", "o_ok")
        upto(cfg.MO)
    def of(ks): return 192 + 4*ks if ks < 16 else 148 + 16*(ks-16) if ks < 19 else 152
    def bol(n): return bloc(n % 70)
    def bo_read(n):
        off = n*1024
        return ("lg", "ds_read_b128 %s, v%d offset:%d" % (R(bol(n), 4), V_L16 if off < 51200 else 9, off % 51200), ("bo", n // 5))
    def ao(ks): return ("s_add_u32 s73, s73, 4096" if ks else None, "buffer_load_dwordx4 %s, v%d, s[%d:%d], s73 offen%s" % (vr(of(ks),4), VA, SRD_X, SRD_X+3, LSC), ("Ao", ks))
    def red_w(j): return [("lg", "ds_write_b128 v%d, %s offset:%d" % (10+j, vr(A0+(j*5+ct)*4,4), ct*1024), "rw") for ct in range(5)]
    def oready():
        stamp(k, 13)
        poll_check(k, S_CNT, 16, "o_ok")
        stamp(k, 14)
        k.vm("buffer_load_dword v5, v6, s[%d:%d], s74 offen%s" % (SRD_W1, SRD_W1+3, SC), "g2")
        fa = Feed(k, [ao(ks) for ks in range(20)])
        fa.emit(6)
        return fa
    nr = 0
    rr = [("lg", "ds_read_b128 %s, v8 offset:%d" % (vr(A0+20+4*j,4), j*1024), ("r", j // 5)) for j in range(15)]
    late_o = cfg.MO >= 280 or cnt[0] > 238
    if not late_o:
        fa = oready()
        fl.q = fa.q[:10]; fa.q = fa.q[10:]
        free = min(cnt[0] // 20, 11) * 5
        for c in (238, 253, 268, 280):
            n = min(free - nr, c - cnt[0] - len(lds))
            lds += [bo_read(x) for x in range(nr, nr + max(n, 0))]; nr += max(n, 0)
            upto(c)
            if c < 280: lds[:0] = red_w((238, 253, 268).index(c) + 1)
        weave(k, [], lds); del lds[:]
        fl.drain()
        fa.drain()
        k.wait(vm="g2")
        k("v_sub_f32 v10, 1.0, v5")
        for j in range(10): k("v_pk_mul_f32 %s, %s, v[10:11] op_sel_hi:[1,0]" % (vr(A0+2*j,2), vr(A0+2*j,2)))
        k.wait(lg="rw")
        k("s_barrier")
        while nr < 15:
            emit1(k, bo_read(nr)); nr += 1
    else:
        for j, c in enumerate((238, 253, 268)):
            upto(c); lds += red_w(j+1)
        upto(280)
        weave(k, [], lds); del lds[:]
        k.wait(lg="rw", vm="BO")
        k("s_barrier")
        weave(k, [], rr); del rr[:]
        poll_issue(k, S_CNT, "s82", "o_ok")
        for sl in range(3):
            k.wait(lg=("r", sl))
            weave(k, [], [bo_read(x) for x in range(nr, nr+10)]); nr += 10
            for j in range(10): k("v_pk_add_f32 %s, %s, %s" % (vr(A0+2*j,2), vr(A0+2*j,2), vr(A0+20+20*sl+2*j,2)))
        weave(k, [], [bo_read(x) for x in range(nr, cfg.BPRE)]); nr = cfg.BPRE
        fa = oready()
        fa.emit(6)
        weave(k, [], [bo_read(x) for x in range(nr, 70)]); nr = 70
        fa.drain()
        k.wait(vm="g2")
        k("v_sub_f32 v10, 1.0, v5")
        for j in range(10): k("v_pk_mul_f32 %s, %s, v[10:11] op_sel_hi:[1,0]" % (vr(A0+2*j,2), vr(A0+2*j,2)))
    for ks in range(20):
        k.wait(vm=("Ao", ks), lg=("bo", ks))
        mf = ["v_mfma_f32_16x16x32_bf16 %s, %s, %s, %s" % (vr(A0+ct*4,4), R(bol(ks*5+ct), 4), vr(of(ks),4), vr(A0+ct*4,4)) for ct in range(5)]
        fill = [bo_read(n) for n in range(nr, min(100, nr+5, ks*5+70))]; nr += len(fill)
        while len(fill) < 5 and rr: fill.append(rr.pop(0))
        weave(k, mf, fill, per=1)
    if not late_o:
        weave(k, [], rr)
        k.wait(lg="all")
        for j in range(10): k("v_pk_add_f32 %s, %s, %s" % (vr(A0+20+2*j,2), vr(A0+20+2*j,2), vr(A0+40+2*j,2)))
        for j in range(10): k("v_pk_add_f32 %s, %s, %s" % (vr(A0+20+2*j,2), vr(A0+20+2*j,2), vr(A0+60+2*j,2)))
    for ct in range(5):
        a = A0 + ct*4
        for h in range(2 if not late_o else 0): k("v_pk_fma_f32 %s, %s, v[10:11], %s op_sel_hi:[1,0,1]" % (vr(a+2*h,2), vr(a+20+2*h,2), vr(a+2*h,2)))
        k("v_cvt_pk_bf16_f32 v%d, v%d, v%d" % (A0+40+2*ct, a, a+1)); k("v_cvt_pk_bf16_f32 v%d, v%d, v%d" % (A0+41+2*ct, a+2, a+3))
        k.vm("buffer_store_dwordx2 %s, v16, s[%d:%d], s81 offen offset:%d%s" % (vr(A0+40+2*ct,2), SRD_O, SRD_O+3, ct*32, cfg.OUTF), "st")
    stamp(k, 30)
    stamp_out(k)
    k("s_endpgm")

def kernel(k):
    kernel_header(k, NAME)
    astamp(k, 0)
    k("s_load_dwordx16 s[8:23], s[0:1], 0")
    k("s_load_dwordx8 s[24:31], s[0:1], 64")
    k("s_cmp_ge_u32 s2, 256")
    k("s_cbranch_scc1 L_end")
    if cfg.CPF: code_prefetch(k, V_JUNK)
    k("v_lshrrev_b32 v2, 6, v0")
    k("v_and_b32 v0, 63, v0")
    k("v_readfirstlane_b32 s%d, v2" % S_W)
    if cfg.STAMP: k("v_mov_b32 v1, 0")
    stamp(k, 0)
    if cfg.EARLY0: k("v_writelane_b32 v1, s98, 0")
    if cfg.MAP == 2:
        k("s_bfe_u32 s%d, s2, 0x40003" % S_MT)
        k("s_and_b32 s%d, s2, 7" % S_T0)
        k("s_lshl_b32 s%d, s%d, 3" % (S_T0, S_T0))
        k("s_bfe_u32 s%d, s2, 0x10007" % S_T1)
        k("s_lshl_b32 s%d, s%d, 2" % (S_T1, S_T1))
        k("s_add_u32 s%d, s%d, s%d" % (S_T0, S_T0, S_T1))
        tab = cfg.ORDER
        k("s_mov_b32 s74, 0x%x" % sum(tab[i] << (4*i) for i in range(8))); k("s_mov_b32 s75, 0x%x" % sum(tab[8+i] << (4*i) for i in range(8)))
        k("s_lshr_b64 s[74:75], s[74:75], s%d" % S_T0)
        k("s_and_b32 s%d, s74, 15" % S_TY)
    else:
        k("s_and_b32 s%d, s2, 7" % S_T0)
        k("s_lshr_b32 s%d, s2, 3" % S_T1)
        k("s_lshl_b32 s74, s%d, 2" % S_T0); k("s_and_b32 s75, s%d, 3" % S_T1); k("s_add_u32 s74, s74, s75")
        k("s_add_u32 s74, s74, %d" % (13*16))
        k("s_lshl_b32 s75, s%d, 3" % S_T0); k("s_add_u32 s75, s75, s%d" % S_T1); k("s_add_u32 s75, s75, %d" % (9*16 - 20))
        k("s_cmp_lt_u32 s%d, 28" % S_T1); k("s_cselect_b32 s74, s75, s74")
        k("s_lshl_b32 s75, s%d, 1" % S_T0); k("s_add_u32 s75, s75, s%d" % S_T1)
        k("s_add_u32 s76, s75, %d" % (15*16 - 18))
        k("s_cmp_lt_u32 s%d, 20" % S_T1); k("s_cselect_b32 s74, s76, s74")
        k("s_add_u32 s76, s75, %d" % (8*16 - 16))
        k("s_cmp_lt_u32 s%d, 18" % S_T1); k("s_cselect_b32 s74, s76, s74")
        k("s_lshl_b32 s76, s%d, 4" % S_T0); k("s_add_u32 s76, s76, s%d" % S_T1)
        k("s_cmp_lt_u32 s%d, 16" % S_T1); k("s_cselect_b32 s74, s76, s74")
        k("s_and_b32 s%d, s74, 15" % S_MT)
        k("s_lshr_b32 s%d, s74, 4" % S_TY)
    k("s_and_b32 s%d, s%d, 1" % (S_RH, S_W))
    k("s_lshr_b32 s%d, s%d, 1" % (S_C, S_W))
    k("v_lshlrev_b32 v%d, 4, v0" % V_L16)
    k("s_cmp_ge_u32 s%d, 15" % S_TY); k("s_cbranch_scc1 L_aux")
    k("s_cmp_ge_u32 s%d, 13" % S_TY)
    k("s_cselect_b32 s%d, 13, 9" % S_T0)
    k("s_cselect_b32 s75, 0, 1280")
    k("s_cselect_b32 s76, 0, 640")
    k("s_add_u32 s76, s76, 640")
    k("s_sub_u32 s79, s%d, s%d" % (S_TY, S_T0))
    k("s_mul_i32 s%d, s79, 320" % S_T1)
    k("s_and_b32 s%d, s%d, 127" % (S_DELTA, S_T1))
    k("s_sub_u32 s%d, s%d, s%d" % (S_T1, S_T1, S_DELTA))
    k("s_add_u32 s75, s75, s%d" % S_T1)
    k("s_add_u32 s76, s76, s75")
    k("s_mul_i32 s%d, s%d, 384" % (S_T1, S_TY))
    k("s_mov_b32 s%d, 3840" % S_STRIDE)
    k("s_cmp_lt_u32 s%d, 9" % S_TY)
    k("s_cselect_b32 s75, s%d, s75" % S_T1)
    k("s_cselect_b32 s76, s%d, s76" % S_T1)
    k("s_cselect_b32 s%d, 3456, s%d" % (S_STRIDE, S_STRIDE))
    k("s_mul_i32 s%d, s%d, 640" % (S_T1, S_STRIDE))
    k("s_sub_u32 s77, s%d, s75" % S_T1)
    k("s_sub_u32 s78, s%d, s76" % S_T1)
    gemm_setup(k)
    k("s_mul_i32 s%d, s%d, %d" % (S_T0, S_MT, 128*1280))
    astamp(k, 1)
    k("s_waitcnt lgkmcnt(0)")
    astamp(k, 2)
    k("s_cmp_lt_u32 s%d, 9" % S_TY)
    k("s_cselect_b64 s[16:17], s[%d:%d], s[%d:%d]" % (P_WG, P_WG+1, P_WQKV, P_WQKV+1))
    k("s_cselect_b64 s[%d:%d], s[%d:%d], s[%d:%d]" % (P_WU, P_WU+1, P_WU, P_WU+1, P_WQKV, P_WQKV+1))
    srd(k, SRD_X, P_X, 0, 128*1280, S_T0)
    stamp(k, 1)
    Q = dma_queue()
    issue_now(k, Q, 4)
    srd(k, SRD_W0, 16, 0, "s77", 75)
    srd(k, SRD_W1, P_WU, 0, "s78", 76)
    issue_now(k, Q, 6)
    astamp(k, 3)
    touch_setup(k)
    for it in touch_items(-1):
        if it[0]: k(it[0])
        k.vm(it[1], it[2])
    sv0 = list(k.vmq)
    aflush(k)
    k("s_cmp_ge_u32 s%d, 9" % S_TY); k("s_cbranch_scc1 L_att")
    ps, rest = ffn_role(k, Q)
    sv = (list(k.vmq), list(k.lgq))
    k("s_cmp_lt_u32 s%d, %d" % (S_OMT, 2*(3 - cfg.AUXU))); k("s_cbranch_scc1 L_f2")
    tail(k, 1, list(rest), [], [], presig=ps)
    k.label("L_f2")
    k.vmq, k.lgq = sv
    assert len(rest) >= 5
    tail(k, 2, list(rest[:-5]), [], list(rest[-5:]), presig=ps)
    k.label("L_att")
    k("s_lshl_b32 s79, s79, 1")
    k("s_add_u32 s79, s79, s%d" % S_C)
    k("s_mul_i32 s80, s79, 3200")
    srd(k, SRD_P, P_WPHI, 0, 3200, 80)
    k("s_cmp_ge_u32 s%d, 13" % S_TY); k("s_cselect_b32 s81, 12800, 0")
    k.flush_counters(); k.vmq = list(sv0)
    att_loop(k, Q)
    sv1 = (list(k.vmq), list(k.lgq))
    k("s_cmp_ge_u32 s%d, 13" % S_TY); k("s_cbranch_scc1 L_q")
    kv_role(k)
    tail(k, 0, [], list(range(cfg.KVN, 70)), bo_items())
    k.label("L_q")
    k.vmq, k.lgq = sv1
    q_role(k)
    tail(k, 2, b_items(range(32, 70)) + bo_items()[:cfg.BOQ], [], bo_items()[cfg.BOQ:])
    k.flush_counters()
    k.label("L_aux")
    aux_role(k)
    tail(k, cfg.AUXU, [], [], bo_items()[25-5*max(0, cfg.AUXU-1):], reducer=True)
    k.label("L_end")
    k("s_endpgm")

def build(fn, listform=True):
    k = K()
    k.raw(open("header.txt").read().rstrip())
    if listform: k.raw("; @launch kernel=%s grid=(256,1,1) block=(256,1,1) lds=163840" % NAME)
    else: k.raw("; @launch grid=(256,1,1) block=(256,1,1) lds=163840")
    k.raw('.amdgcn_target "amdgcn-amd-amdhsa--gfx950"')
    k.raw(".text")
    kernel(k)
    k.raw('.section .rodata,"a"')
    k.raw(kernel_desc(NAME, 512, 256))
    open(fn, "w").write(k.text())

if __name__ == "__main__":
    for a in sys.argv[2:]:
        if "=" in a:
            n, v = a.split("="); setattr(cfg, n, eval(v))
    if cfg.NOSC: LSC = ""
    build(sys.argv[1], listform="single" not in sys.argv)
```

```python
import sys
from fw import *

A2_OFF = 0;          A2_SZ = 32*74*4096
B2_OFF = 0xA00000;   B2_SZ = 8*74*5120
PQ_OFF = 0xD00000;   PQ_SZ = 32*2048*40
KVP_OFF = 0x1000000; KVPS = 3584; KVP_SZ = 16*16*KVPS
G_OFF = 0x1200000;   G_SZ = 8192
CNT_OFF = 0x1300000
ST_OFF = 0x1400000
LOG2E = 1.4426950408889634
NAME = "gated_mix__linear_kernel_hedgehog__swiglu_ffn__prompt_kernel"

class Cfg:
    STAMP = 0; STG = 0
    MAXD = 11; N2 = 6; N3 = 10
    P2M = 4
    TW = [(-1,1,7),(1,8,6),(4,14,6)]
    TX = [(-1,1,3),(1,4,3),(4,7,3)]
    ORDER = [0, 9, 1, 10, 2, 11, 3, 12, 4, 13, 5, 14, 6, 7, 8, 15]
    PS1 = 16
    NBF = 40
    NBA = 32
    AUXT = 10
    AUXD = 3
    FFE = (3, 10)
    MK = 25
    KLAT = 20
    PER = 2
    BOF = 10
    KVB0 = 1
    TPER = 2
    BLP = 5
    AUXB = 70
    RBH = 0
    MF2 = 80
    MFQ = 80
    BPR = 1
    BPW = 40
    LORD = 0
    RSP = 0
    HP = (1, 5)
    QEARLY = 1
    AUXU = 0
    BT = 0
    BT2 = 0
    AUXNT = 1
    L2PF = 0
    PE1 = 20
    BOL = 0
    BOS = 0
    PSA = 16
    KVN = 62
    BPRE = 50
    RFIRST = 0
    MF = 110
    MAXD0 = 16
    BLK = 2
    PHS = 3
    AST = 0
    X_NOWAIT = 0
    X_NOO = 0
    X_NOB = 0
    X_END = 0
    X_NOA = 0
    MO = 238
    NOSC = 0
    NOMF = 0
    CS = 4096+256
    ONE = 1
    SLP = 2
    KI = 1
    MIX = 6
    FLAT = (1, 3)
    XD = 0
    BOQ = 10
    QPRE = 6
    FQ = (7, 10)
    OFIRST = 1
    OUTF = ''
    BOEARLY = 0
    QLAT = 40
    MAP = 3
    AORD = [9, 13, 10, 11, 14, 12]
    DBGWG = -1
    PADST = None
    PADMIN = 0
    CPF = 1
    TNT = 0
    NODMA = 0
    CYC = 0
    PADTY = None
    EARLY0 = 0
    KL2 = 40
    OSD = 20
cfg = Cfg()
SC = " sc1"
LSC = " sc1"

P_X, P_WQKV, P_WPHI, P_WO, P_WG, P_WU, P_WD, P_GW, P_OUT, P_DBG, P_WS = 8, 10, 12, 14, 18, 20, 22, 24, 26, 28, 30
S_W, S_RH, S_C, S_MT, S_TY, S_M64, S_NT, S_OH = 32, 33, 34, 35, 36, 37, 38, 39
SRD_X, SRD_W0, SRD_W1, SRD_O, SRD_P = 40, 44, 48, 52, 56
S_STRIDE, S_WOFF, S_WL, S_XL, S_T0, S_T1, S_T2, S_T3, S_DELTA, S_SIG = 60, 61, 62, 63, 64, 65, 66, 67, 68, 69
S_C2 = 70
S_OMT = 83; SRD_B = 84; S_BOFF = 88; S_BB = 89; S_CNT = 90; SRD_T = 96
V_L16, V_L16B, V_PT = 2, 3, 4
V_WD = 5; V_XD = 6; V_XR = 10; V_TA = 12; V_TW = 24; V_TX = 25; V_JUNK = 63; V_Z = 0
ACC0 = 64
WF0 = 256; XF0 = 256 + 96; GF0 = 256 + 88; GACC = 224
C_H, C_K, C_Q, C_O, C_F = 0, 16, 20, 36, 52
KVF_OFF = 0x1100000
SPARE = 147456
D_S1, D_S2, D_S3 = 0, 64, 128

def srd(k, d, b, off, nbytes, soff=None):
    if off or soff is not None:
        if soff is not None:
            k("s_add_u32 s%d, s%d, s%d" % (d, b, soff)); k("s_addc_u32 s%d, s%d, 0" % (d+1, b+1))
            if off:
                k("s_add_u32 s%d, s%d, 0x%x" % (d, d, off)); k("s_addc_u32 s%d, s%d, 0" % (d+1, d+1))
        else:
            k("s_add_u32 s%d, s%d, 0x%x" % (d, b, off)); k("s_addc_u32 s%d, s%d, 0" % (d+1, b+1))
        k("s_and_b32 s%d, s%d, 0xffff" % (d+1, d+1))
    else:
        k("s_mov_b32 s%d, s%d" % (d, b)); k("s_and_b32 s%d, s%d, 0xffff" % (d+1, b+1))
    if isinstance(nbytes, int): k("s_mov_b32 s%d, 0x%x" % (d+2, nbytes))
    else: k("s_mov_b32 s%d, %s" % (d+2, nbytes))
    k("s_mov_b32 s%d, 0x20000" % (d+3))

def stamp(k, i):
    if not cfg.STAMP or (cfg.AST and i != 15): return
    k("s_memtime s[92:93]" if cfg.STAMP == 2 else "s_memrealtime s[92:93]")
    k("s_waitcnt lgkmcnt(0)")
    k.lgq = []
    k("v_writelane_b32 v1, s92, %d" % i)
_ap = []
def astamp(k, idx):
    if not cfg.AST: return
    pair = (4, 6, 92, 94, 52, 54, 56, 58)[len(_ap)]
    k("s_memrealtime s[%d:%d]" % (pair, pair+1)); _ap.append((pair, idx))
def aflush(k):
    if not cfg.AST: return
    k("s_waitcnt lgkmcnt(0)"); k.lgq = []
    for p, i in _ap: k("v_writelane_b32 v1, s%d, %d" % (p, i))
    del _ap[:]
def stamp_out(k):
    if not cfg.STAMP: return
    k("s_waitcnt vmcnt(0)")
    stamp(k, 15)
    k("v_writelane_b32 v1, s%d, 16" % S_TY)
    srd(k, 40, P_WS, ST_OFF, 1024*128)
    k("s_lshl_b32 s92, s2, 2"); k("s_add_u32 s92, s92, s%d" % S_W); k("s_lshl_b32 s92, s92, 7")
    k("v_lshlrev_b32 v5, 2, v0")
    k("v_cmp_gt_u32 vcc, 32, v0")
    k("v_mov_b32 v6, 0x7fffffff")
    k("v_cndmask_b32 v5, v6, v5, vcc")
    k("buffer_store_dword v1, v5, s[40:43], s92 offen")
    if cfg.PADST is not None:
        k("v_readlane_b32 s94, v1, %d" % abs(cfg.PADST))
        k("v_readlane_b32 s95, v1, 0")
        k("s_max_u32 s94, s94, s95")
        if cfg.CYC:
            a, b = ((31, 25) if cfg.CYC == 1 else (24, 23))
            k("v_readlane_b32 s96, v1, %d" % a); k("v_readlane_b32 s97, v1, %d" % b)
            k("s_sub_u32 s96, s96, s97")
            if cfg.CYC == 1: k("s_lshr_b32 s96, s96, 2")
            else: k("s_lshl_b32 s96, s96, 2")
            k("s_add_u32 s94, s95, s96")
        if cfg.PADTY:
            k("s_cmp_lt_u32 s%d, %d" % (S_TY, cfg.PADTY[0])); k("s_cselect_b32 s94, s95, s94")
            k("s_cmp_gt_u32 s%d, %d" % (S_TY, cfg.PADTY[1])); k("s_cselect_b32 s94, s95, s94")
        if cfg.PADMIN:
            k("s_not_b32 s95, s94")
            k("v_mov_b32 v7, s95"); k("v_mov_b32 v8, 192")
            k("s_cmp_eq_u32 s%d, 0" % S_W)
            k("s_cselect_b64 exec, 1, 0")
            k("s_cbranch_execz Lnoat")
            k("global_atomic_umax v8, v7, s[%d:%d] sc1" % (P_DBG, P_DBG+1))
            k.label("Lnoat")
            k("s_mov_b64 exec, -1")
            k("s_add_u32 s94, s94, 4500")
            k.label("Lpad0")
            k("s_sleep 4")
            k("s_memrealtime s[96:97]")
            k("s_waitcnt lgkmcnt(0)")
            k("s_sub_u32 s98, s96, s94")
            k("s_cmp_lt_i32 s98, 0")
            k("s_cbranch_scc1 Lpad0")
            k("global_load_dword v7, v8, s[%d:%d] sc1" % (P_DBG, P_DBG+1))
            k("s_waitcnt vmcnt(0)")
            k("v_readfirstlane_b32 s94, v7")
            k("s_not_b32 s94, s94")
        k("s_add_u32 s94, s94, 6000")
        lp = k.newlabel("Lpad"); k.label(lp)
        k("s_sleep 4")
        k("s_memrealtime s[96:97]")
        k("s_waitcnt lgkmcnt(0)")
        k("s_sub_u32 s98, s96, s94")
        k("s_cmp_lt_i32 s98, 0")
        k("s_cbranch_scc1 %s" % lp)
    if cfg.DBGWG >= 0:
        k("s_cmp_eq_u32 s92, %d" % (cfg.DBGWG*512))
        k("s_cselect_b32 s93, 64, 0")
        srd(k, 44, P_DBG, 0, "s93")
        k("v_readlane_b32 s93, v1, 0")
        k("v_subrev_u32 v7, s93, v1")
        k("v_cmp_lt_u32 vcc, 0, v0")
        k("v_cndmask_b32 v5, v6, v5, vcc")
        k("buffer_store_dword v7, v5, s[44:47], 0 offen")

def code_prefetch(k, vt):
    k("s_getpc_b64 s[72:73]")
    l = k.newlabel("Lpc"); k.label(l)
    k("s_lshr_b32 s74, s2, 3")
    k("s_lshl_b32 s74, s74, 7")
    k("v_and_b32 v%d, 31, v0" % vt)
    k("v_lshlrev_b32 v%d, 12, v%d" % (vt, vt))
    k("v_add_u32 v%d, s74, v%d" % (vt, vt))
    k("v_min_u32 v%d, L_end-%s-4, v%d" % (vt, l, vt))
    k.vm("global_load_dword v%d, v%d, s[72:73]" % (vt, vt), "pf")

def _pload(k, base, tag):
    if cfg.ONE:
        a = k.newlabel("Lp0"); b = k.newlabel("Lp1")
        k("s_cmp_lg_u32 s%d, 0" % S_W); k("s_cbranch_scc1 %s" % a)
        k("global_load_dword v31, v%d, s[%d:%d] sc1" % (V_PT, base, base+1))
        k("s_branch %s" % b)
        k.label(a)
        k("v_mov_b32 v%d, 0" % V_PT)
        k("global_load_dword v31, v%d, s[%d:%d]" % (V_PT, P_X, P_X+1))
        k.label(b)
        k.vmq.append(tag)
    else: k.vm("global_load_dword v31, v%d, s[%d:%d] sc1" % (V_PT, base, base+1), tag)
def poll_issue(k, base, off, tag):
    k("v_mov_b32 v%d, %s" % (V_PT, off))
    _pload(k, base, tag)
def vpoll_issue(k, off, n, tag):
    k("v_min_u32 v%d, %d, v0" % (V_PT, n-1)); k("v_mul_u32_u24 v%d, %d, v%d" % (V_PT, cfg.CS, V_PT)); k("v_add_u32 v%d, %s, v%d" % (V_PT, off, V_PT))
    _pload(k, S_CNT, tag)
def poll_check(k, base, target, tag, sleep=None, barrier=True):
    l = k.newlabel("Lpoll"); d = k.newlabel("Lpd")
    if base == S_CNT and (cfg.X_NOWAIT == 1 or (cfg.X_NOWAIT and tag in cfg.X_NOWAIT)): target = 0
    k.wait(vm=tag)
    if cfg.ONE:
        k("s_cmp_lg_u32 s%d, 0" % S_W); k("s_cbranch_scc1 %s" % d)
    k("v_cmp_gt_u32 vcc, %d, v31" % target)
    k("s_mov_b32 s95, 0x8000")
    k("s_cmp_eq_u64 vcc, 0")
    k("s_cbranch_scc1 %s" % d)
    k.label(l)
    k("s_sleep %d" % (sleep or cfg.SLP))
    k("global_load_dword v31, v%d, s[%d:%d] sc1" % (V_PT, base, base+1))
    k("s_waitcnt vmcnt(0)")
    k("v_cmp_gt_u32 vcc, %d, v31" % target)
    k("s_sub_u32 s95, s95, 1")
    k("s_cmp_eq_u64 vcc, 0")
    k("s_cbranch_scc1 %s" % d)
    k("s_cmp_lg_u32 s95, 0")
    k("s_cbranch_scc1 %s" % l)
    k.label(d)
    if cfg.ONE and barrier: k("s_barrier")
def vpoll_check(k, target, tag): poll_check(k, S_CNT, target, tag)
def signal(k, base, off, ra=V_PT, rd=31):
    d = k.newlabel("Lsg")
    k("s_barrier")
    k("s_cmp_lg_u32 s%d, 0" % S_W)
    k("s_cbranch_scc1 %s" % d)
    k("v_mov_b32 v%d, %s" % (ra, off))
    k("v_mov_b32 v%d, 1" % rd)
    k("s_mov_b64 exec, 1")
    k("global_atomic_add v%d, v%d, s[%d:%d] sc1" % (ra, rd, base, base+1))
    k("s_mov_b64 exec, -1")
    k.label(d)

BL = [256+128+4*i for i in range(32)] + [256+48+4*i for i in range(12)] + [256+108+4*i for i in range(3)] \
   + [256+4*i for i in range(12)] + [256+96+4*i for i in range(3)] + [32+4*i for i in range(8)]
def bloc(n): return BL[n]
def b_items(frs):
    out = []; cur = None
    for n in frs:
        st, ct = divmod(n, 5)
        pre = None
        if st != cur: pre = "s_add_u32 s%d, s%d, %d" % (S_BOFF, S_BB, (20 + 4*st)*5120); cur = st
        if ct < 4: t = "buffer_load_dwordx4 %s, v%d, s[%d:%d], s%d offen offset:%d%s" % (R(bloc(n),4), V_L16, SRD_B, SRD_B+3, S_BOFF, ct*1024, LSC)
        else: t = "buffer_load_dwordx4 %s, v%d, s[%d:%d], s%d offen%s" % (R(bloc(n),4), V_L16B, SRD_B, SRD_B+3, S_BOFF, LSC)
        out.append((pre, t, ("B", n)))
    return out
def bo_items():
    out = []
    for i in range(5):
        for ct in range(5):
            pre = "s_add_u32 m0, s%d, %d" % (S_BB, i*20480 + (4096 if ct == 4 else 0))
            if ct == 0: pre = "s_add_u32 s100, s%d, %d\n" % (S_BB, i*20480) + pre
            if ct < 4: t = "buffer_load_dwordx4 v%d, s[%d:%d], s100 offen offset:%d%s lds" % (V_L16, SRD_B, SRD_B+3, ct*1024, LSC)
            else: t = "buffer_load_dwordx4 v%d, s[%d:%d], s100 offen%s lds" % (V_L16B, SRD_B, SRD_B+3, LSC)
            out.append((pre, t, "BO"))
    return out
class Feed:
    def __init__(self, k, items): self.k = k; self.q = list(items)
    def emit(self, n=1):
        while self.q and n > 0:
            pre, t, tag = self.q.pop(0)
            if pre: self.k(pre)
            self.k.vm(t, tag); n -= 1
    def drain(self): self.emit(10**6)
def emit1(k, f):
    if callable(f): f()
    elif isinstance(f, tuple): (k.lg if f[0] == "lg" else k.vm)(f[1], f[2])
    else: k(f)
def weave(k, mf, fill, per=2):
    fill = list(fill)
    for m in mf:
        k(m)
        for _ in range(per):
            if fill: emit1(k, fill.pop(0))
    for f in fill: emit1(k, f)

WSLOT = 24576; RW = 4; XBASE = RW*WSLOT; XSLOT = 16384; RX = 3

def gemm_setup(k):
    k("v_lshrrev_b32 v28, 3, v0")
    k("v_and_b32 v29, 7, v0")
    k("v_bfe_u32 v26, v28, 1, 1")
    k("s_lshl_b32 s%d, s%d, 1" % (S_T0, S_RH))
    k("v_or_b32 v26, s%d, v26" % S_T0)
    k("v_lshlrev_b32 v26, 1, v26")
    k("v_xor_b32 v26, v26, v29")
    k("s_lshl_b32 s%d, s%d, 3" % (S_T0, S_W))
    k("v_add_u32 v27, s%d, v28" % S_T0)
    k("v_mul_lo_u32 v27, v27, s%d" % S_STRIDE)
    k("v_lshl_add_u32 v%d, v26, 4, v27" % V_WD)
    k("s_lshl_b32 s%d, s%d, 5" % (S_T0, S_W))
    k("v_lshrrev_b32 v26, 1, v28")
    k("v_xor_b32 v27, v26, v29")
    k("v_add_u32 v26, s%d, v28" % S_T0)
    k("v_mul_u32_u24 v26, 1280, v26")
    k("v_lshl_add_u32 v%d, v27, 4, v26" % V_XD)
    k("v_xor_b32 v%d, 64, v%d" % (V_XD+1, V_XD))
    k("v_add_u32 v%d, %d, v%d" % (V_XD+1, 8*1280, V_XD+1))
    k("v_add_u32 v%d, %d, v%d" % (V_XD+2, 16*1280, V_XD))
    k("v_add_u32 v%d, %d, v%d" % (V_XD+3, 16*1280, V_XD+1))
    k("s_mul_i32 s%d, s%d, 6144" % (S_WL, S_W))
    k("s_lshl_b32 s%d, s%d, 12" % (S_XL, S_W))
    k("s_add_u32 s%d, s%d, %d" % (S_XL, S_XL, XBASE))
    k("s_mov_b32 s%d, 0" % S_WOFF)
    k("s_lshl_b32 s%d, s%d, 5" % (S_T3, S_STRIDE))

def touch_setup(k):
    k("v_lshrrev_b32 v26, 2, v0")
    k("v_and_b32 v27, 3, v0")
    k("s_lshl_b32 s%d, s%d, 1" % (S_T0, S_MT))
    k("s_add_u32 s%d, s%d, s%d" % (S_T0, S_T0, S_C))
    k("v_lshlrev_b32 v28, 5, v26")
    k("v_add_u32 v28, s%d, v28" % S_T0)
    k("v_mul_lo_u32 v28, v28, s%d" % S_STRIDE)
    k("v_min_u32 v29, 2, v27")
    k("v_lshl_add_u32 v%d, v29, 7, v28" % V_TW)
    k("s_lshl_b32 s%d, s%d, 4" % (S_T0, S_TY))
    k("s_lshl_b32 s%d, s%d, 2" % (S_T1, S_W))
    k("s_add_u32 s%d, s%d, s%d" % (S_T0, S_T0, S_T1))
    k("v_add_u32 v27, s%d, v27" % S_T0)
    k("v_mul_u32_u24 v27, 1280, v27")
    k("v_lshl_add_u32 v%d, v26, 7, v27" % V_TX)
    k("s_cmp_eq_u32 s%d, 0" % S_RH)
    for i in range(3): k("s_cselect_b32 s%d, s%d, s%d" % (SRD_T+i, SRD_W0+i, SRD_W1+i))
    k("s_mov_b32 s%d, 0x20000" % (SRD_T+3))
def masked(n, t):
    if n >= 16: return t
    return "s_bfm_b64 exec, %d, 0\n%s\ns_mov_b64 exec, -1" % (4*n, t)
def touch_items(stage):
    out = []
    for (st, first, n) in cfg.TW:
        if st == stage:
            out.append(("s_mul_i32 s101, s%d, %d" % (S_STRIDE, 32*first), masked(n, "buffer_load_dword v%d, v%d, s[%d:%d], s101 offen%s" % (V_JUNK, V_TW, SRD_T, SRD_T+3, " nt" if cfg.TNT else "")), "pf"))
    for (st, first, n) in cfg.TX:
        if st == stage:
            out.append((None, masked(n, "buffer_load_dword v%d, v%d, s[%d:%d], 0 offen offset:%d" % (V_JUNK, V_TX, SRD_X, SRD_X+3, first*128)), "pf"))
    return out

def gemm_setup2(k, att):
    npt = 5 if att else 6
    k("v_and_b32 v54, 15, v0")
    k("v_lshrrev_b32 v55, 4, v0")
    k("v_bfe_u32 v26, v54, 1, 3")
    k("v_xor_b32 v26, v26, v55")
    k("s_lshl_b32 s%d, s%d, 13" % (S_T0, S_RH))
    k("s_add_u32 s%d, s%d, %d" % (S_T0, S_T0, XBASE))
    k("v_lshlrev_b32 v27, 7, v54")
    k("v_add_u32 v27, s%d, v27" % S_T0)
    k("v_lshl_add_u32 v%d, v26, 4, v27" % V_XR)
    k("v_xor_b32 v%d, 64, v%d" % (V_XR+1, V_XR))
    k("v_bfe_u32 v26, v0, 2, 2")
    k("v_and_b32 v27, 3, v0")
    k("v_lshrrev_b32 v28, 1, v26")
    k("v_and_b32 v29, 1, v55")
    k("v_lshl_or_b32 v28, v29, 1, v28")
    k("v_lshlrev_b32 v28, 5, v28")
    k("v_mul_u32_u24 v29, 6144, v55")
    k("v_lshl_add_u32 v29, v26, 7, v29")
    if att:
        k("s_mul_i32 s%d, s%d, 160" % (S_T0, S_C))
        k("s_add_u32 s%d, s%d, s%d" % (S_T0, S_T0, S_DELTA))
        k("v_mul_u32_u24 v27, 40, v27")
    else:
        k("s_mul_i32 s%d, s%d, 192" % (S_T0, S_C))
        k("v_lshlrev_b32 v27, 3, v27")
    k("v_add_u32 v27, s%d, v27" % S_T0)
    for p in range(npt):
        k("v_add_u32 v30, %d, v27" % (p * (8 if att else 32)))
        k("v_lshrrev_b32 v31, 7, v30")
        k("v_and_b32 v30, 127, v30")
        k("v_xor_b32 v30, v30, v28")
        k("v_lshl_add_u32 v31, v31, 10, v29")
        k("v_add_u32 v%d, v30, v31" % (V_TA+p))
        k("v_add_u32 v%d, %d, v%d" % (V_TA+6+p, 2*WSLOT, V_TA+p))

def w_dma(s):
    return [("s_add_u32 m0, s%d, %d" % (S_WL, (s % RW)*WSLOT + (seg*3+lc)*1024 - lc*128),
             "buffer_load_dwordx4 v%d, s[%d:%d], s%d offen offset:%d lds" % (V_WD, SRD_W0+4*seg, SRD_W0+4*seg+3, S_WOFF, lc*128), ("W", s))
            for seg in range(2) for lc in range(3)]
def x_dma(u, i):
    return ("s_add_u32 m0, s%d, %d" % (S_XL, (u % RX)*XSLOT + i*1024 - u*128),
            "buffer_load_dwordx4 v%d, s[%d:%d], 0 offen offset:%d lds" % (V_XD+i, SRD_X, SRD_X+3, u*128), ("X", u))
def reads_for(s, npt):
    out = []; b = s & 1
    for rt in range(4):
        out.append("ds_read_b128 %s, v%d offset:%d" % (R(XF0 + (b*4+rt)*4, 4), V_XR + (s & 1), ((s >> 1) % RX)*XSLOT + rt*2048))
    slot = s % RW
    for p in range(npt):
        for seg in range(2):
            for h in range(2):
                out.append("ds_read_b64_tr_b16 %s, v%d offset:%d" % (R(WF0 + (b*12+p*2+seg)*4 + 2*h, 2), V_TA + p + (6 if slot >= 2 else 0), (slot & 1)*WSLOT + seg*3072 + h*512))
    return out
def acc(p, seg, rt): return ACC0 + ((p*2+seg)*4 + rt)*4

def late_setup_items():
    k = K()
    k("s_and_b32 s%d, s2, 7" % S_T1)
    k("s_lshr_b32 s%d, s2, 3" % S_OH)
    if cfg.P2M == 4:
        k("s_lshl_b32 s%d, s%d, 2" % (S_M64, S_T1)); k("s_and_b32 s%d, s%d, 3" % (S_T0, S_OH)); k("s_add_u32 s%d, s%d, s%d" % (S_M64, S_M64, S_T0))
        k("s_lshr_b32 s%d, s%d, 2" % (S_NT, S_OH))
    else:
        k("s_lshr_b32 s%d, s%d, 1" % (S_M64, S_T1)); k("s_lshl_b32 s%d, s%d, 3" % (S_M64, S_M64)); k("s_and_b32 s%d, s%d, 7" % (S_T0, S_OH)); k("s_add_u32 s%d, s%d, s%d" % (S_M64, S_M64, S_T0))
        k("s_and_b32 s%d, s%d, 1" % (S_NT, S_T1)); k("s_lshl_b32 s%d, s%d, 2" % (S_NT, S_NT)); k("s_lshr_b32 s%d, s%d, 3" % (S_T0, S_OH)); k("s_add_u32 s%d, s%d, s%d" % (S_NT, S_NT, S_T0))
    k("s_bfe_u32 s%d, s%d, 0x10001" % (S_T0, S_OH)); k("s_lshl_b32 s%d, s%d, 4" % (S_T0, S_T0))
    k("s_and_b32 s%d, s%d, 1" % (S_T2, S_OH)); k("s_lshl_b32 s%d, s%d, 1" % (S_OMT, S_T2))
    k("s_add_u32 s%d, s%d, s%d" % (S_OMT, S_OMT, S_T0)); k("s_add_u32 s%d, s%d, 12" % (S_OMT, S_OMT))
    k("s_lshl_b32 s%d, s%d, 4" % (S_T0, S_T2)); k("s_add_u32 s%d, s%d, %d" % (S_T0, S_T0, 12 - cfg.AUXU))
    k("s_cmp_lt_u32 s%d, 20" % S_OH); k("s_cselect_b32 s%d, s%d, s%d" % (S_OMT, S_T0, S_OMT))
    k("s_cmp_ge_u32 s%d, 9" % S_OH); k("s_cselect_b32 s%d, 9, 0" % S_T2); k("s_cselect_b32 s94, 16, 0")
    k("s_sub_u32 s%d, s%d, s%d" % (S_T2, S_OH, S_T2))
    k("s_min_u32 s%d, s%d, %d" % (S_T0, S_T2, 3 - cfg.AUXU)); k("s_add_u32 s%d, s%d, s%d" % (S_T0, S_T0, S_T2)); k("s_add_u32 s%d, s%d, s94" % (S_T0, S_T0))
    k("s_cmp_lt_u32 s%d, 18" % S_OH); k("s_cselect_b32 s%d, s%d, s%d" % (S_OMT, S_T0, S_OMT))
    k("s_lshr_b32 s%d, s%d, 4" % (S_OH, S_OMT)); k("s_and_b32 s%d, s%d, 15" % (S_OMT, S_OMT))
    k("s_lshl_b32 s%d, s%d, 1" % (S_T0, S_T1)); k("s_add_u32 s%d, s%d, s%d" % (S_OH, S_OH, S_T0))
    k("s_mul_i32 s%d, s%d, %d" % (S_T0, S_NT, 74*5120))
    srd(k, SRD_B, P_WS, B2_OFF, 74*5120, S_T0)
    k("s_mul_i32 s%d, s%d, 5120" % (S_BB, S_W))
    k("s_add_u32 s%d, s%d, 0x%x" % (S_CNT, P_WS, CNT_OFF))
    k("s_addc_u32 s%d, s%d, 0" % (S_CNT+1, P_WS+1))
    k("v_add_u32 v%d, 4096, v%d" % (V_L16B, V_L16))
    k("s_mov_b32 s%d, %s" % (S_C2, f32(LOG2E))); k("s_mov_b32 s%d, %s" % (S_C2+1, f32(LOG2E)))
    return [t for _, t in k.items]

def dma_queue():
    Q = []
    for st in range(20):
        if st % 2 == 0:
            u = st // 2
            for i in range(4): Q.append((-1 if u < RX else 2*(u-RX)+1, x_dma(u, i), False))
        it = w_dma(st)
        for i, d in enumerate(it): Q.append((-1 if st < RW else max(1, st-RW), d, i == len(it)-1))
    return Q
def wadv(k): k("s_add_u32 s%d, s%d, s%d" % (S_WOFF, S_WOFF, S_T3))
def issue_now(k, Q, n):
    for _ in range(n):
        av, it, last = Q.pop(0)
        k(it[0]); k.vm(it[1], it[2])
        if last: wadv(k)

def btouch(first_ks, n):
    out = []
    for i in range(n):
        pre = "s_and_b32 s101, s%d, 3\ns_lshl_b32 s101, s101, 2\ns_add_u32 s101, s101, s%d\ns_lshl_b32 s101, s101, 13\ns_add_u32 s101, s101, %d\nv_lshlrev_b32 v24, 7, v0" % (S_M64, S_W, first_ks*5120 + i*131072)
        out.append((pre, "buffer_load_dword v25, v24, s[%d:%d], s101 offen%s" % (SRD_B, SRD_B+3, SC), "pf"))
    return out
def spread(items, s0, s1):
    out = {}; n = len(items); i = 0
    for s in range(s0, s1):
        c = -(-(n - i) // (s1 - s)); out[s] = items[i:i+c]; i += c
    return out

def capture(fn):
    q = K(); q.nl = 100000 + capture.n; capture.n += 100
    fn(q)
    assert not q.vmq and not q.lgq
    return q.items
capture.n = 0

def gemm_main(k, att, Q, extra, polls, xrd=None, xwait=None, xsetup=None):
    npt = 5 if att else 6
    Q = list(Q)
    astamp(k, 4)
    gemm_setup2(k, att)
    astamp(k, 5)
    issue_now(k, Q, cfg.N2)
    side = []
    for t in late_setup_items():
        if side and (t.startswith(("s_addc", "s_cselect", "v_cndmask")) ): side[-1] += "\n" + t
        else: side.append(t)
    blocks = []
    if xsetup:
        its = capture(xsetup)
        if any(kd == "l" for kd, _ in its): blocks = its
        else:
            for _, t in its:
                if side and t.startswith(("s_addc", "s_cselect", "v_cndmask")): side[-1] += "\n" + t
                else: side.append(t)
    rds = lambda s: reads_for(s, npt)
    stamp(k, 2)
    astamp(k, 6)
    k.wait(vm=[("X", 0), ("W", 0)])
    k("s_barrier")
    astamp(k, 7)
    aflush(k)
    stamp(k, 3)
    r0 = rds(0)
    for i, r in enumerate(r0): k.lg(r, ("r0", max(0, i-4)//2))
    astamp(k, 8)
    for s in range(20):
        b = s & 1
        rd = rds(s+1) if s < 19 else []
        if xrd and s in xrd: rd += xrd[s]
        dm = []
        while Q and Q[0][0] <= s and len(dm) < (cfg.MAXD0 if s == 0 else cfg.MAXD): dm.append(Q.pop(0))
        ex = [(0, e, False) for e in extra.get(s, [])]
        mix = []
        while dm or ex:
            if dm: mix.append(dm.pop(0))
            if ex and len(ex) >= len(dm): mix.append(ex.pop(0))
        dm = mix + [(0, e, False) for e in touch_items(s)]
        mf = []
        idx = [(p, seg, rt) for p in range(npt) for seg in range(2) for rt in range(4)]
        if cfg.LORD == 1 and s: idx = [(p, seg, rt) for rt in range(4) for p in range(npt) for seg in range(2)]
        if cfg.LORD == 2 and s: idx = [(p, seg, (rt if (p*2+seg) % 2 == 0 else 3-rt)) for p in range(npt) for seg in range(2) for rt in range(4)]
        for p, seg, rt in idx:
            a = acc(p, seg, rt)
            mf.append("v_mfma_f32_16x16x32_bf16 %s, %s, %s, %s" % (R(a,4), R(WF0 + (b*12+p*2+seg)*4, 4), R(XF0 + (b*4+rt)*4, 4), R(a,4) if s else "0"))
        nm = len(mf); nd = len(dm)
        at = [int(i * (nm - 3) / max(nd, 1)) for i in range(nd)]
        for i in range(1, nd): at[i] = max(at[i], at[i-1] + 2)
        pend = None
        m1 = nm - 4 - (len(rd) + 1)//2 if s == 0 else 0
        for m, t in enumerate(mf):
            if s == 0 and m % 4 == 0 and not cfg.AST: k.wait(lg=("r0", m//4))
            if s == 0 and m == 0 and cfg.AST: k.wait(lg="all")
            if s == 0 and m == m1:
                k.wait(vm=("W", 1), lg="all"); k("s_barrier")
            k(t)
            used = 0
            if m >= m1 and not (cfg.RSP and s and len(rd) <= (nm - 6 - m) * 2 // 3 + 0 and m % 3 == 2):
                for _ in range(2 if s == 0 else 1):
                    if rd: k.lg(rd.pop(0)); used += 1
            if (s+1) in polls and m == nm - 1: poll_issue(k, P_DBG, polls[s+1], ("poll", s+1))
            if pend is not None:
                k.vm(pend[1][1], pend[1][2]); used += 1
                if pend[2]: wadv(k)
                pend = None
            elif dm and m >= at[nd - len(dm)]:
                pend = dm.pop(0)
                if pend[1][0]: k(pend[1][0]); used += 1
            while side and used < 2 and s >= 1:
                k(side.pop(0)); used += 1
        assert not rd and not dm and pend is None, (s, rd, dm, pend)
        if s == cfg.BLK and blocks:
            assert not side
            k.items += blocks
        if s < 19:
            k.wait(vm=[("W", s+2), ("X", (s+2) >> 1)] + (xwait.get(s, []) if xwait else []), lg="all")
        if s in polls: poll_check(k, P_DBG, 16, ("poll", s), sleep=8, barrier=(s == 19))
        if s < 19:
            k("s_barrier")
            if s == 0: aflush(k)
            if s < 4: astamp(k, 11 + s)
            if s == 4: aflush(k)
            if cfg.STG and s % 2 == 1: stamp(k, 17 + s//2)
    assert not Q and not side
    stamp(k, 4)

def ffn_setup(k):
    k("s_lshl_b32 s75, s%d, 1" % S_MT)
    k("s_add_u32 s75, s75, s%d" % S_RH)
    k("s_mul_i32 s75, s75, 74")
    k("s_mul_i32 s76, s%d, 6" % S_TY)
    k("s_add_u32 s75, s75, s76")
    k("s_mul_i32 s76, s%d, 3" % S_C)
    k("s_add_u32 s75, s75, s76")
    k("s_add_u32 s75, s75, 20")
    k("s_lshl_b32 s75, s75, 12")
    k("s_mul_i32 s%d, s%d, %d" % (S_SIG, S_MT, cfg.CS))
    srd(k, SRD_O, P_WS, A2_OFF, A2_SZ)

def ffn_role(k, Q):
    extra = spread(b_items(list(range(32)) + list(range(62, 70))), cfg.PS1, cfg.PE1)
    bo = bo_items()
    for g in range(cfg.BOL):
        st = max(16 + g, 20 - cfg.BOL + g, cfg.BOS)
        extra[st] = extra.get(st, []) + bo[5*g:5*g+5]
    polls = {cfg.PS1-1: D_S1, (max(20 - cfg.BOL, cfg.BOS) - 1 if cfg.BOL else 19): D_S3}
    if cfg.BT: extra[cfg.BT] = btouch(44, 1) + extra.get(cfg.BT, [])
    if cfg.BT2:
        polls = {cfg.PS1-1: D_S1, cfg.BT2-1: D_S3}
        extra[cfg.BT2] = btouch(0, 1) + extra.get(cfg.BT2, [])
    gemm_main(k, False, Q, extra, polls, xsetup=ffn_setup)
    fd = Feed(k, b_items(range(32, 62)) + bo[5*cfg.BOL:])
    per, last = cfg.FFE
    n = 0
    for ks in range(3):
        for rt in range(4):
            T = 6 + (n & 1)*8; O = 22 + (n & 1)*4; n += 1
            if O & 3: O = (24, 28)[(n-1) & 1] - 0
            fe = lambda i: fd.emit(1) if (n <= last and i < per) else None
            G = [acc(2*ks+j, 0, rt) for j in range(2)]; U = [acc(2*ks+j, 1, rt) for j in range(2)]
            O = U[0]
            prs = [(j, h) for j in range(2) for h in range(2)]
            for i, (j, h) in enumerate(prs):
                k("v_pk_mul_f32 %s, %s, s[%d:%d] neg_lo:[0,1] neg_hi:[0,1]" % (vr(T+2*i,2), vr(G[j]+2*h,2), S_C2, S_C2+1))
            fe(0)
            for i in range(8): k("v_exp_f32 v%d, v%d" % (T+i, T+i))
            fe(2)
            for i, (j, h) in enumerate(prs):
                k("v_pk_mul_f32 %s, %s, %s" % (vr(G[j]+2*h,2), vr(G[j]+2*h,2), vr(U[j]+2*h,2)))
            for i in range(4): k("v_pk_add_f32 %s, %s, 1.0 op_sel_hi:[1,0]" % (vr(T+2*i,2), vr(T+2*i,2)))
            fe(1)
            for i in range(8): k("v_rcp_f32 v%d, v%d" % (T+i, T+i))
            fe(3)
            for i, (j, h) in enumerate(prs):
                k("v_pk_mul_f32 %s, %s, %s" % (vr(T+2*i,2), vr(G[j]+2*h,2), vr(T+2*i,2)))
            for i in range(4): k("v_cvt_pk_bf16_f32 v%d, v%d, v%d" % (O+i, T+2*i, T+2*i+1))
            k.vm("buffer_store_dwordx4 %s, v%d, s[%d:%d], s75 offen offset:%d%s" % (vr(O,4), V_L16, SRD_O, SRD_O+3, rt*1024, SC), "st")
        if ks < 2: k("s_add_u32 s75, s75, 4096")
    stamp(k, 26)
    def presig():
        k.wait(vm="st")
        stamp(k, 5)
        signal(k, S_CNT, "s%d" % S_SIG, 14, 15)
    return presig, fd.q

def phi_dma(seg):
    pre = "s_add_u32 s%d, s%d, s81\ns_addc_u32 s%d, s%d, 0\n" % (SRD_P, SRD_P, SRD_P+1, SRD_P+1) if seg else ""
    return [((pre if i == 0 else "") + "s_add_u32 m0, s%d, %d" % (S_XL, XSLOT if seg else SPARE - XBASE),
             "buffer_load_dwordx4 v%d, s[%d:%d], 0 offen offset:%d lds" % (V_L16, SRD_P, SRD_P+3, i*1024), ("P", seg)) for i in range(4)]
def phireg(seg, to, s):
    i = s*5 + to
    if seg == 1: return 256 + 48 + 4*i if i < 10 else 256 + 108 + 4*(i-10)
    return 256 + 4*i if i < 12 else 256 + 96 + 4*(i-12)
V_PHA = 23
def phi_reads(seg):
    out = []
    for s in range(3):
        for to in range(5):
            for h in range(2):
                d = phireg(seg, to, s) + 2*h
                b = 0 if seg else SPARE - XBASE - XSLOT
                if s == 2 and h == 1: out.append("ds_read_b64_tr_b16 %s, v26 offset:%d" % (R(d,2), b))
                else: out.append("ds_read_b64_tr_b16 %s, v%d offset:%d" % (R(d,2), V_PHA, b + (8*s+4*h)*40 + 8*to))
    return out
def cvt_in(seg, rt, B):
    out = []
    for t in range(5):
        a = acc(t, seg, rt)
        out.append("v_cvt_pk_bf16_f32 v%d, v%d, v%d" % (B+2*t, a, a+1))
        out.append("v_cvt_pk_bf16_f32 v%d, v%d, v%d" % (B+2*t+1, a+2, a+3))
    return out
def phi_mf(seg, rt, B):
    return ["v_mfma_f32_16x16x32_bf16 %s, %s, %s, %s" % (vr(acc(to,seg,rt),4), R(phireg(seg, to, s),4), vr(B+4*s,4), vr(acc(to,seg,rt),4) if s else "0")
            for s in range(3) for to in range(5)]

PKRS = 352; VRS = 224; PKSZ = 128*PKRS; VB = 2*PKSZ; VSZ = 128*VRS
V_E0, V_E1, V_E2, V_E3, V_E4, V_E5, V_E6 = 27, 28, 29, 30, 60, 61, 62
def att_common_setup(k):
    k("v_lshrrev_b32 v50, 4, v0")
    k("v_and_b32 v51, 15, v0")
    k("v_bfe_u32 v52, v0, 2, 2")
    k("v_and_b32 v53, 3, v0")
    k("v_mul_u32_u24 v48, 800, v50")
    k("v_mad_u32_u24 v48, v52, 40, v48")
    k("v_cmp_eq_u32 vcc, v50, v53")
    k("v_mov_b32 v49, 3200")
    k("v_cndmask_b32 v48, v49, v48, vcc")
    k("s_add_u32 s%d, s%d, %d" % (S_T2, S_XL, XSLOT))
    k("v_add_u32 v%d, s%d, v48" % (V_PHA, S_T2))
    k("v_add_u32 v26, s%d, v49" % S_T2)
def kv_setup(k):
    k("s_add_u32 s%d, s%d, %d" % (S_SIG, S_TY, C_K - 9))
    k("s_mul_i32 s%d, s%d, %d" % (S_SIG, S_SIG, cfg.CS))
    k("s_lshl_b32 s%d, s%d, 6" % (S_T0, S_RH))
    k("v_add_u32 v48, s%d, v51" % S_T0)
    k("s_mul_i32 s%d, s%d, %d" % (S_T0, S_C, PKSZ))
    k("v_mul_u32_u24 v%d, %d, v48" % (V_E0, PKRS))
    k("v_mul_u32_u24 v49, 80, v50")
    k("v_add3_u32 v%d, v%d, v49, s%d" % (V_E0, V_E0, S_T0))
    k("s_mul_i32 s%d, s%d, %d" % (S_T1, S_C, VSZ))
    k("s_add_u32 s%d, s%d, %d" % (S_T1, S_T1, VB))
    k("v_mul_u32_u24 v%d, %d, v48" % (V_E1, VRS))
    k("v_mul_u32_u24 v49, 48, v50")
    k("v_add3_u32 v%d, v%d, v49, s%d" % (V_E1, V_E1, S_T1))
    k("v_lshrrev_b32 v48, 2, v0")
    k("v_lshlrev_b32 v49, 3, v53")
    k("s_mul_i32 s%d, s%d, 160" % (S_T2, S_RH))
    k("s_add_u32 s%d, s%d, s%d" % (S_T0, S_T0, S_T2))
    k("v_mul_u32_u24 v%d, %d, v48" % (V_E2, PKRS))
    k("v_add3_u32 v%d, v%d, v49, s%d" % (V_E2, V_E2, S_T0))
    k("s_mul_i32 s%d, s%d, 96" % (S_T2, S_RH))
    k("s_add_u32 s%d, s%d, s%d" % (S_T1, S_T1, S_T2))
    k("v_mul_u32_u24 v%d, %d, v48" % (V_E3, VRS))
    k("v_add3_u32 v%d, v%d, v49, s%d" % (V_E3, V_E3, S_T1))
    k("s_add_u32 s%d, s%d, %d" % (S_T2, S_XL, SPARE - XBASE))
    k("v_mul_u32_u24 v48, 80, v51")
    k("v_lshl_add_u32 v48, v50, 3, v48")
    k("v_add_u32 v%d, s%d, v48" % (V_E5, S_T2))
    k("v_add_u32 v%d, s%d, v%d" % (V_E6, S_T2, V_L16))
    k("v_mov_b32 v48, 0x7fffffff")
    k("v_cmp_gt_u32 vcc, 32, v0")
    k("v_cndmask_b32 v%d, v48, v%d, vcc" % (V_E4, V_L16))
    k("s_lshl_b32 s78, s79, 1")
    k("s_add_u32 s78, s78, s%d" % S_RH)
    k("s_lshl_b32 s78, s78, 4")
    k("s_add_u32 s78, s78, s%d" % S_MT)
    k("s_mul_i32 s78, s78, %d" % KVPS)
    k("v_cmp_gt_u32 s[72:73], 2, v50")
    k("v_cmp_gt_u32 s[74:75], 5, v51")
    k("s_and_b64 s[76:77], s[72:73], s[74:75]")
    srd(k, SRD_O, P_WS, KVP_OFF, KVP_SZ)
    for r in (42, 43, 54, 55): k("v_mov_b32 v%d, 0" % r)
def q_setup(k):
    k("s_mov_b32 s%d, 81920" % S_T0)
    k("v_mul_lo_u32 v48, v50, s%d" % S_T0)
    k("v_lshl_add_u32 v%d, v51, 4, v48" % V_E0)
    k("v_lshl_add_u32 v%d, v51, 3, v48" % V_E1)
    k("v_lshlrev_b32 v%d, 2, v0" % V_E2)
    k("s_mul_i32 s%d, s79, %d" % (S_T1, 4*81920))
    k("s_lshl_b32 s%d, s%d, 1" % (S_T0, S_MT))
    k("s_add_u32 s%d, s%d, s%d" % (S_T0, S_T0, S_RH))
    k("s_lshl_b32 s75, s%d, 10" % S_T0)
    k("s_add_u32 s75, s75, s%d" % S_T1)
    k("s_add_u32 s76, s75, 32768")
    k("s_lshl_b32 s77, s%d, 9" % S_T0)
    k("s_add_u32 s77, s77, s%d" % S_T1)
    k("s_add_u32 s77, s77, 65536")
    k("s_lshl_b32 s78, s%d, 8" % S_T0)
    k("s_add_u32 s78, s78, %d" % (G_OFF - PQ_OFF))
    k("s_add_u32 s%d, s%d, %d" % (S_SIG, S_MT, C_Q))
    k("s_mul_i32 s%d, s%d, %d" % (S_SIG, S_SIG, cfg.CS))
    srd(k, SRD_O, P_WS, PQ_OFF, G_OFF + G_SZ - PQ_OFF)
    for r in (42, 43, 54, 55): k("v_mov_b32 v%d, 0" % r)

def softmax_pm(k, P, E, T, O, fd=None, mf=None, side=None):
    def fe(n=1):
        if fd: fd.emit(n)
    mf = list(mf or []); side = list(side or [])
    v = [p + i for p in P for i in range(2)]
    k("v_max3_f32 v%d, v%d, v%d, v%d" % (T, v[0], v[1], v[2]))
    k("v_min3_f32 v%d, v%d, v%d, v%d" % (T+2, v[0], v[1], v[2]))
    k("v_max3_f32 v%d, v%d, v%d, v%d" % (T+1, v[3], v[4], v[5]))
    k("v_min3_f32 v%d, v%d, v%d, v%d" % (T+3, v[3], v[4], v[5]))
    for n, i in enumerate(range(6, 20, 2)):
        c = n & 1
        k("v_max3_f32 v%d, v%d, v%d, v%d" % (T+c, T+c, v[i], v[i+1]))
        k("v_min3_f32 v%d, v%d, v%d, v%d" % (T+2+c, T+2+c, v[i], v[i+1]))
    fe()
    k("v_max_f32 v%d, v%d, v%d" % (T, T, T+1))
    k("v_min_f32 v%d, v%d, v%d" % (T+2, T+2, T+3))
    k("v_mul_f32 v%d, %s, v%d" % (T, f32(-LOG2E), T))
    k("v_mul_f32 v%d, %s, v%d" % (T+2, f32(LOG2E), T+2))
    for i, p in enumerate(P):
        k("v_pk_fma_f32 %s, %s, s[%d:%d], %s op_sel_hi:[1,1,0]" % (vr(E+2*i,2), vr(p,2), S_C2, S_C2+1, vr(T,2)))
    fe()
    for i, p in enumerate(P):
        k("v_pk_fma_f32 %s, %s, s[%d:%d], %s op_sel_hi:[1,1,0] neg_lo:[0,1,0] neg_hi:[0,1,0]" % (vr(p,2), vr(p,2), S_C2, S_C2+1, vr(T+2,2)))
    ex = [E+i for i in range(20)] + v
    for i, x in enumerate(ex):
        if i % 2 == 0:
            if mf: k(mf.pop(0))
            if side: k.lg(*side.pop(0))
        if i % 12 == 5: fe()
        k("v_exp_f32 v%d, v%d" % (x, x))
    assert not mf and not side
    Ep = [E+2*i for i in range(10)]
    k("v_pk_add_f32 %s, %s, %s" % (vr(T+4,2), vr(Ep[0],2), vr(Ep[1],2)))
    k("v_pk_add_f32 %s, %s, %s" % (vr(T,2), vr(Ep[2],2), vr(Ep[3],2)))
    k("v_pk_add_f32 %s, %s, %s" % (vr(T+6,2), vr(P[0],2), vr(P[1],2)))
    k("v_pk_add_f32 %s, %s, %s" % (vr(T+2,2), vr(P[2],2), vr(P[3],2)))
    for i in range(4, 10, 2):
        k("v_pk_add_f32 %s, %s, %s" % (vr(T+4,2), vr(T+4,2), vr(Ep[i],2)))
        k("v_pk_add_f32 %s, %s, %s" % (vr(T,2), vr(T,2), vr(Ep[i+1],2)))
        k("v_pk_add_f32 %s, %s, %s" % (vr(T+6,2), vr(T+6,2), vr(P[i],2)))
        k("v_pk_add_f32 %s, %s, %s" % (vr(T+2,2), vr(T+2,2), vr(P[i+1],2)))
    k("v_pk_add_f32 %s, %s, %s" % (vr(T+4,2), vr(T+4,2), vr(T,2)))
    k("v_pk_add_f32 %s, %s, %s" % (vr(T+6,2), vr(T+6,2), vr(T+2,2)))
    fe()
    k("v_add_f32 v%d, v%d, v%d" % (T+4, T+4, T+5))
    k("v_add_f32 v%d, v%d, v%d" % (T+6, T+6, T+7))
    k("v_rcp_f32 v%d, v%d" % (T+4, T+4))
    k("v_rcp_f32 v%d, v%d" % (T+6, T+6))
    for i in range(10): k("v_pk_mul_f32 %s, %s, %s op_sel_hi:[1,0]" % (vr(Ep[i],2), vr(Ep[i],2), vr(T+4,2)))
    fe()
    for i in range(10): k("v_pk_mul_f32 %s, %s, %s op_sel_hi:[1,0]" % (vr(P[i],2), vr(P[i],2), vr(T+6,2)))
    for i in range(10): k("v_cvt_pk_bf16_f32 v%d, v%d, v%d" % (O+i, Ep[i], Ep[i]+1))
    fe()
    for i in range(10): k("v_cvt_pk_bf16_f32 v%d, v%d, v%d" % (O+10+i, P[i], P[i]+1))

def att_extra(two):
    extra = spread(b_items(range(cfg.NBA)), cfg.PSA, 20)
    if cfg.BT: extra[cfg.BT] = btouch(44, 1) + extra.get(cfg.BT, [])
    extra[cfg.PHS] = phi_dma(0)
    extra[15] = phi_dma(1) + extra.get(15, [])
    return extra

def att_setup(k):
    d = k.newlabel("Lq"); e = k.newlabel("Le")
    att_common_setup(k)
    k("v_mov_b32 v%d, 0x7fffffff" % V_E4)
    k("s_cmp_ge_u32 s%d, 13" % S_TY); k("s_cbranch_scc1 %s" % d)
    kv_setup(k)
    k("s_branch %s" % e)
    k.label(d)
    q_setup(k)
    k.label(e)
def att_loop(k, Q):
    gemm_main(k, True, Q, att_extra(True), {cfg.PSA-1: D_S1}, xrd={19: phi_reads(0)}, xwait={18: [("P", 0)]}, xsetup=att_setup)

def q_role(k):
    k("s_nop 7")
    k.wait(vm=("P", 1))
    for t in cvt_in(0, 0, 32): k(t)
    rd1 = [("lg", r, "ph1") for r in phi_reads(1)]
    def outs(u):
        seg, rt = u >> 2, u & 3
        O = (240, 8)[u & 1]
        f = cvt_in(seg, rt, O)
        f.insert(4, ("vm", "buffer_store_dwordx4 %s, v%d, s[%d:%d], s75 offen offset:%d%s" % (vr(O,4), V_E0, SRD_O, SRD_O+3, rt*256, SC), "st"))
        f.insert(9, ("vm", "buffer_store_dwordx4 %s, v%d, s[%d:%d], s76 offen offset:%d%s" % (vr(O+4,4), V_E0, SRD_O, SRD_O+3, rt*256, SC), "st"))
        f.append(("vm", "buffer_store_dwordx2 %s, v%d, s[%d:%d], s77 offen offset:%d%s" % (vr(O+8,2), V_E1, SRD_O, SRD_O+3, rt*128, SC), "st"))
        if u == 3: f += ["s_add_u32 s%d, s%d, %d" % (x, x, 16*81920) for x in (75, 76, 77)]
        return f
    k.wait(lg="all")
    for u in range(8):
        seg, rt = u >> 2, u & 3
        fill = []
        if u < 7: fill += cvt_in((u+1) >> 2, (u+1) & 3, 32 + ((u+1) & 1)*12)
        if u == 0: fill += rd1[:14]
        elif u == 1: fill += outs(0) + rd1[14:21]
        elif u == 2: fill += outs(1) + rd1[21:28]
        elif u == 3: fill += rd1[28:] + outs(2)
        else: fill += outs(u-1)
        if u == 4: k.wait(lg="all")
        weave(k, phi_mf(seg, rt, 32 + (u & 1)*12), fill)
    weave(k, [], outs(7))
    k.wait(vm="st")
    stamp(k, 5)
    signal(k, S_CNT, "s%d" % S_SIG)

def kv_role(k):
    EREG = 6; TREG = 244; O = 224
    for t in cvt_in(0, 0, 32): k(t)
    k.wait(lg="all")
    weave(k, phi_mf(0, 0, 32), cvt_in(0, 1, 44))
    if not cfg.STG: stamp(k, 17)
    def vout(rt):
        q = [acc(t, 1, rt) + i for t in range(5) for i in range(4)]
        f = ["v_cvt_pk_bf16_f32 v%d, v%d, v%d" % (q[i], q[2*i], q[2*i+1]) for i in range(10)]
        f += ["v_mov_b32 v%d, 0x3f80" % q[10], "v_mov_b32 v%d, 0" % q[11]]
        w = [("ds_write_b128 v%d, %s offset:%d" % (V_E1, vr(q[4*i],4), rt*16*VRS + 16*i), "vw") for i in range(3)]
        return f, w
    def vfr(n, bt): return acc((n*2+bt) >> 2, 1, (n*2+bt) & 3)
    vreads = []
    for n in range(8):
        j, ks = n >> 2, n & 3
        for bt in range(2):
            for h in range(2):
                vreads.append(("ds_read_b64_tr_b16 %s, v%d offset:%d" % (vr(vfr(n,bt)+2*h,2), V_E3, (32*ks+16*h)*VRS + j*48 + bt*32), "vf"))
    fd = Feed(k, [])
    for rt in range(4):
        P = [acc(t, 0, rt) + 2*h for t in range(5) for h in range(2)]
        mf = phi_mf(0, rt+1, 32 + ((rt+1) & 1)*12) if rt < 3 else []
        if rt == 3: poll_issue(k, P_DBG, D_S3, "s3")
        if rt == cfg.KVB0 and cfg.KVN >= 47: fd.q += b_items(range(32, 47))
        if rt == 3 and cfg.KVN >= 62: fd.q += b_items(range(47, 62))
        side = []
        if rt < 2:
            for r in (2*rt, 2*rt+1):
                f, w = vout(r)
                for t in f: k(t)
                side += w
        else:
            if rt == 2: k.wait(lg="vw"); k("s_barrier")
            side = vreads[(rt-2)*16:(rt-1)*16]
        softmax_pm(k, P, EREG, TREG, O, fd, mf, side)
        for i in range(5):
            k.lg("ds_write_b128 v%d, %s offset:%d" % (V_E0, vr(O+4*i,4), rt*16*PKRS + 16*i), ("pw", rt))
        if rt < 2:
            for t in cvt_in(0, rt+2, 32 + (rt & 1)*12): k(t)
        if not cfg.STG: stamp(k, 18+rt)
    k.wait(lg="all")
    k("s_barrier")
    if not cfg.STG: stamp(k, 22)
    KAQ = [32, 36, 40, 44, 48, 52, 224, 228, 232, 236, 240, 244]
    def pfr(n, ft): return acc(((n % 6)*3+ft) >> 2, 0, ((n % 6)*3+ft) & 3)
    def rd(n):
        j, ks = n >> 2, n & 3
        return [("lg", "ds_read_b64_tr_b16 %s, v%d offset:%d" % (vr(pfr(n,ft)+2*h,2), V_E2, (32*ks+16*h)*PKRS + j*80 + ft*32), ("f", n)) for ft in range(3) for h in range(2)]
    def pack(jj):
        f = []
        for ft in range(3):
            for bt in range(2):
                a = KAQ[(jj*3+ft)*2+bt]
                f += ["v_cvt_pk_bf16_f32 v%d, v%d, v%d" % (a, a, a+1), "v_cvt_pk_bf16_f32 v%d, v%d, v%d" % (a+1, a+2, a+3)]
                mask = [[None, "s[74:75]"], [None, "s[74:75]"], ["s[72:73]", "s[76:77]"]][ft][bt]
                w = "ds_write_b64 v%d, %s offset:%d" % (V_E5, vr(a,2), jj*1680 + bt*1280 + ft*32)
                if mask: w = "s_mov_b64 exec, %s\n%s\ns_mov_b64 exec, -1" % (mask, w)
                f.append(("lg", w, "cw"))
        return f
    weave(k, [], rd(0) + rd(1))
    pk0 = pack(0)
    for n in range(8):
        j, ks = n >> 2, n & 3
        k.wait(lg=("f", n))
        mf = []
        for ft in range(3):
            for bt in range(2):
                a = KAQ[(j*3+ft)*2+bt]
                mf.append("v_mfma_f32_16x16x32_bf16 %s, %s, %s, %s" % (vr(a,4), vr(pfr(n,ft),4), vr(vfr(n,bt),4), vr(a,4) if ks else "0"))
        fill = rd(n+2) if n < 6 else []
        if n < 4: fill.append(lambda: fd.emit(1))
        if n >= 5: fill += pk0[(n-5)*6:(n-4)*6]
        weave(k, mf, fill)
    weave(k, [], pack(1))
    k.wait(lg="all")
    for i in range(4): k.lg("ds_read_b128 %s, v%d offset:%d" % (vr(64+4*i,4), V_E6, i*1024), ("cr", i))
    for i in range(4):
        k.wait(lg=("cr", i))
        k.vm("buffer_store_dwordx4 %s, v%d, s[%d:%d], s78 offen offset:%d%s" % (vr(64+4*i,4), V_L16 if i < 3 else V_E4, SRD_O, SRD_O+3, i*1024, SC), "st")
    stamp(k, 26)
    poll_check(k, P_DBG, 16, "s3", sleep=8, barrier=False)
    stamp(k, 5)
    fd.drain()

def aux_role(k):
    NSL = 9
    order = [("d", i) for i in range(9)] + [("o", i) for i in range(4)]
    NU = len(order)
    k("s_mov_b32 s%d, 1280" % S_STRIDE)
    k("s_lshl_b32 s75, s%d, 2" % S_MT)
    k("s_add_u32 s75, s75, s%d" % S_W)
    k("s_mul_i32 s76, s75, 205"); k("s_lshr_b32 s76, s76, 11")
    k("s_mul_i32 s77, s76, 10"); k("s_sub_u32 s77, s75, s77")
    k("s_cmp_ge_u32 s76, 6")
    k("s_cselect_b32 s78, 0x4000000, 0")
    k("s_mul_i32 s79, s76, %d" % (32*1280))
    k("s_lshl_b32 s80, s77, 7")
    k("s_add_u32 s79, s79, s80")
    k("s_add_u32 s79, s79, s78")
    k("v_lshrrev_b32 v24, 3, v0"); k("v_and_b32 v25, 7, v0")
    k("v_and_b32 v26, 6, v24")
    k("v_xor_b32 v26, v26, v25")
    k("v_lshlrev_b32 v26, 4, v26")
    k("v_mad_u32_u24 v5, v24, s%d, v26" % S_STRIDE)
    for i in range(1, 4): k("v_add_u32 v%d, %d, v5" % (5+i, i*8*1280))
    k("s_mul_i32 s%d, s%d, %d" % (S_WL, S_W, NSL*4096))
    k("s_waitcnt lgkmcnt(0)")
    srd(k, SRD_W1, P_WD, 0, 1728*1280)
    def load(n):
        kind, i = order[n]
        sg, vb = (SRD_W1, 5) if kind == "d" else (SRD_W0, 12)
        k("s_add_u32 s81, s79, %d" % (i*6*32*1280))
        for j in range(4):
            k("s_add_u32 m0, s%d, %d" % (S_WL, (n % NSL)*4096 + j*1024))
            k.vm("buffer_load_dwordx4 v%d, s[%d:%d], s81 offen%s lds" % (vb+j, sg, sg+3, " nt" if cfg.AUXNT else ""), ("u", n))
    D = cfg.AUXD
    for n in range(D): load(n)
    srd(k, SRD_W0, P_WO, 0, 640*1280)
    k("v_lshrrev_b32 v27, 2, v24"); k("v_and_b32 v28, 3, v24")
    k("v_lshl_add_u32 v27, v27, 3, v28")
    k("v_mad_u32_u24 v12, v27, s%d, v26" % S_STRIDE)
    for i in range(1, 4): k("v_add_u32 v%d, %d, v12" % (12+i, (16*(i&1) + 4*(i>>1))*1280))
    srd(k, SRD_O, P_WS, B2_OFF, B2_SZ)
    for t in late_setup_items(): k(t)
    k("s_cmp_eq_u32 s%d, 0" % S_MT)
    k("s_cselect_b32 s%d, %d, 0" % (S_T0, 96*cfg.CS))
    srd(k, 96, P_WS, CNT_OFF, "s%d" % S_T0)
    for i in range(4): k("v_mov_b32 v%d, 0" % (56+i))
    k("s_mul_i32 s%d, s%d, %d" % (S_T0, S_W, 24*cfg.CS))
    k("v_mul_u32_u24 v60, %d, v24" % cfg.CS); k("v_lshl_add_u32 v60, v25, 4, v60")
    for i in range(3):
        k.vm("buffer_store_dwordx4 v[56:59], v60, s[96:99], s%d offen%s" % (S_T0, SC), ("st", 0))
        k("s_add_u32 s%d, s%d, %d" % (S_T0, S_T0, 8*cfg.CS))
    srd(k, 96, P_WS, KVP_OFF, KVF_OFF + 16*4096 - KVP_OFF)
    for i in range(4): k("v_mov_b32 v%d, -1" % (52+i))
    k("s_mul_i32 s%d, s%d, %d" % (S_T0, S_OH, 16*KVPS)); k("s_mul_i32 s%d, s%d, %d" % (S_T1, S_W, 4*KVPS)); k("s_add_u32 s%d, s%d, s%d" % (S_T0, S_T0, S_T1))
    fill = []
    for i in range(14):
        fill.append(("s_add_u32 s%d, s%d, %d" % (S_T1, S_T0, (i//4)*4096) if i % 4 == 0 else None,
                     "buffer_store_dwordx4 v[52:55], v%d, s[96:99], s%d offen offset:%d%s" % (V_L16, S_T1, (i % 4)*1024, SC), ("st", 0)))
    Feed(k, fill).drain()
    k("s_lshl_b32 s%d, s%d, 2" % (S_T0, S_OH)); k("s_add_u32 s%d, s%d, s%d" % (S_T0, S_T0, S_W)); k("s_lshl_b32 s%d, s%d, 10" % (S_T0, S_T0))
    k("s_add_u32 s%d, s%d, %d" % (S_T0, S_T0, KVF_OFF - KVP_OFF))
    k.vm("buffer_store_dwordx4 v[52:55], v%d, s[96:99], s%d offen%s" % (V_L16, S_T0, SC), ("st", 0))
    k("v_lshrrev_b32 v24, 2, v0")
    k("v_bfe_u32 v25, v24, 1, 2")
    k("v_and_b32 v26, 3, v0")
    k("v_lshlrev_b32 v24, 7, v24")
    k("v_lshl_add_u32 v24, v26, 3, v24")
    k("v_add_u32 v24, s%d, v24" % S_WL)
    for b in range(4):
        k("v_xor_b32 v26, %d, v25" % b)
        k("v_lshl_add_u32 v%d, v26, 5, v24" % (20+b))
    for b in range(4):
        k("s_lshl_b32 s72, s77, 2"); k("s_add_u32 s72, s72, %d" % b)
        k("s_mul_i32 s73, s72, 205"); k("s_lshr_b32 s73, s73, 10")
        k("s_mul_i32 s74, s73, 5"); k("s_sub_u32 s72, s72, s74")
        k("s_mul_i32 s73, s73, 74"); k("s_add_u32 s73, s73, s76")
        k("s_mul_i32 s73, s73, 5"); k("s_add_u32 s73, s73, s72")
        k("s_lshl_b32 s73, s73, 10")
        k("s_add_u32 s%d, s73, s78" % (64+b))
    k("s_cmp_lt_u32 s76, 2")
    k("s_cselect_b32 s82, %d, 0x4000000" % (18*5120) if False else "s_cselect_b32 s82, 0, 0x4000000")
    stamp(k, 1)
    for n in range(NU):
        kind, i = order[n]
        k.wait(vm=("u", n))
        F = 64 + (n % 4)*16
        for b in range(4):
            for h in range(2):
                k.lg("ds_read_b64_tr_b16 %s, v%d offset:%d" % (vr(F+4*b+2*h,2), 20+b, (n % NSL)*4096 + h*2048))
        off = ((20 if kind == "d" else 0) + 6*i)*5120
        for b in range(4):
            k("s_add_u32 s%d, s%d, %d" % (72+b, 64+b, off))
            if kind == "o" and i == 3: k("s_add_u32 s%d, s%d, s82" % (72+b, 72+b))
        k.wait(lg="all")
        for b in range(4):
            k.vm("buffer_store_dwordx4 %s, v%d, s[%d:%d], s%d offen%s" % (vr(F+4*b,4), V_L16, SRD_O, SRD_O+3, 72+b, SC), ("st", n))
        if n + D < NU: load(n + D)
        if n == 9:
            k.wait(vm=("st", 8)); signal(k, P_DBG, D_S1); stamp(k, 2)
    k.wait(vm="all")
    signal(k, P_DBG, D_S3)
    stamp(k, 4)
    if cfg.L2PF:
        poll_issue(k, P_DBG, D_S1, "s1"); poll_check(k, P_DBG, 16, "s1", sleep=16)
        k("s_and_b32 s72, s%d, 1" % S_MT); k("s_lshl_b32 s72, s72, 2"); k("s_add_u32 s72, s72, s%d" % S_W)
        k("s_mul_i32 s72, s72, %d" % (74*5120)); k("s_add_u32 s72, s72, %d" % (44*5120))
        k("v_lshlrev_b32 v24, 7, v0")
        for i in range(cfg.L2PF):
            k.vm("buffer_load_dword v%d, v24, s[%d:%d], s72 offen%s" % (64 + i % 8, SRD_O, SRD_O+3, SC), ("t", i))
            k("s_add_u32 s72, s72, 8192")
        stamp(k, 3)
    k("s_mul_i32 s%d, s%d, %d" % (S_T0, S_MT, 128*1280))
    srd(k, SRD_X, P_X, 0, 128*1280, S_T0)
    srd(k, SRD_P, P_GW, 0, 1280)
    srd(k, SRD_W0, P_WS, G_OFF, G_SZ)
    k("v_and_b32 v24, 15, v0"); k("v_lshrrev_b32 v25, 4, v0")
    k("v_lshlrev_b32 v26, 4, v24")
    for j in range(5): k.vm("buffer_load_dwordx4 %s, v26, s[%d:%d], 0 offen offset:%d" % (vr(72+4*j,4), SRD_P, SRD_P+3, 256*j), "gw")
    k("s_lshl_b32 s76, s%d, 5" % S_W)
    k("v_lshlrev_b32 v27, 3, v25"); k("v_add_u32 v27, s76, v27")
    k("v_mul_u32_u24 v27, 1280, v27")
    k("v_add_u32 v27, v27, v26")
    k("s_mov_b32 s74, 0")
    for it in range(8):
        for j in range(5): k.vm("buffer_load_dwordx4 %s, v27, s[%d:%d], s74 offen offset:%d" % (vr(96+it*20+4*j,4), SRD_X, SRD_X+3, 256*j), ("gx", it))
        k("s_add_u32 s74, s74, 1280")
    poll_issue(k, P_DBG, D_S3, "s3")
    k("v_mov_b32 v29, 0")
    for it in range(8):
        k.wait(vm=("gx", it))
        k("v_mov_b32 v30, 0")
        for j in range(20): k("v_dot2c_f32_bf16 v30, v%d, v%d" % (96+it*20+j, 72+j))
        k("s_nop 3")
        for sh in (8, 4, 2, 1): k("v_add_f32_dpp v30, v30, v30 row_ror:%d row_mask:0xf bank_mask:0xf" % sh)
        k("v_cmp_eq_u32 vcc, %d, v24" % it)
        k("v_cndmask_b32 v29, v29, v30, vcc")
    k("v_mul_f32 v29, %s, v29" % f32(-LOG2E))
    k("v_exp_f32 v29, v29")
    k("v_add_f32 v29, 1.0, v29")
    k("v_rcp_f32 v29, v29")
    k("v_lshl_add_u32 v28, v25, 3, v24"); k("v_lshlrev_b32 v28, 2, v28")
    k("v_mov_b32 v30, 0x7fffffff")
    k("v_cmp_gt_u32 vcc, 8, v24")
    k("v_cndmask_b32 v28, v30, v28, vcc")
    k("s_lshl_b32 s74, s%d, 9" % S_MT); k("s_lshl_b32 s76, s%d, 7" % S_W); k("s_add_u32 s74, s74, s76")
    k.vm("buffer_store_dword v29, v28, s[%d:%d], s74 offen%s" % (SRD_W0, SRD_W0+3, SC), "gs")
    poll_check(k, P_DBG, 16, "s3", sleep=32, barrier=False)
    k.wait(vm="gs")
    k("s_add_u32 s74, s%d, %d" % (S_MT, C_Q)); k("s_mul_i32 s74, s74, %d" % cfg.CS)
    signal(k, S_CNT, "s74")
    stamp(k, 5)
    it = b_items(range(cfg.AUXB))
    fd = Feed(k, it)
    for i in range(len(it)):
        fd.emit(1)
        k("s_waitcnt vmcnt(%d)" % cfg.AUXT)

def pack_inplace(v, E):
    out = ["v_cvt_pk_bf16_f32 v%d, v%d, v%d" % (v[10+i], v[2*i], v[2*i+1]) for i in range(9, -1, -1)]
    out += ["v_cvt_pk_bf16_f32 v%d, v%d, v%d" % (v[i], E+2*i, E+2*i+1) for i in range(10)]
    return out
def minmax(v, T):
    out = ["v_max3_f32 v%d, v%d, v%d, v%d" % (T, v[0], v[1], v[2]), "v_min3_f32 v%d, v%d, v%d, v%d" % (T+2, v[0], v[1], v[2]),
           "v_max3_f32 v%d, v%d, v%d, v%d" % (T+1, v[3], v[4], v[5]), "v_min3_f32 v%d, v%d, v%d, v%d" % (T+3, v[3], v[4], v[5])]
    for n, i in enumerate(range(6, 20, 2)):
        c = n & 1
        out += ["v_max3_f32 v%d, v%d, v%d, v%d" % (T+c, T+c, v[i], v[i+1]), "v_min3_f32 v%d, v%d, v%d, v%d" % (T+2+c, T+2+c, v[i], v[i+1])]
    out += ["v_max_f32 v%d, v%d, v%d" % (T, T, T+1), "v_min_f32 v%d, v%d, v%d" % (T+2, T+2, T+3),
            "v_mul_f32 v%d, %s, v%d" % (T, f32(-LOG2E), T), "v_mul_f32 v%d, %s, v%d" % (T+2, f32(LOG2E), T+2)]
    return out
def softmax_scalar(v, E, T):
    o = [(1, t) for t in minmax(v, T)]
    for i in range(20): o.append((1, "v_fma_f32 v%d, v%d, s%d, v%d" % (E+i, v[i], S_C2, T)))
    for i in range(20): o.append((1, "v_fma_f32 v%d, -v%d, s%d, v%d" % (v[i], v[i], S_C2, T+2)))
    for x in [E+i for i in range(20)] + v: o.append((2, "v_exp_f32 v%d, v%d" % (x, x)))
    e = [E+i for i in range(20)]
    for c, (src, d) in enumerate(((e, T), (v, T+2))):
        o += [(1, "v_add_f32 v%d, v%d, v%d" % (d, src[0], src[1])), (1, "v_add_f32 v%d, v%d, v%d" % (d+1, src[2], src[3]))]
    for i in range(4, 20, 2):
        for src, d in ((e, T), (v, T+2)):
            o += [(1, "v_add_f32 v%d, v%d, v%d" % (d, d, src[i])), (1, "v_add_f32 v%d, v%d, v%d" % (d+1, d+1, src[i+1]))]
    o += [(1, "v_add_f32 v%d, v%d, v%d" % (T, T, T+1)), (1, "v_add_f32 v%d, v%d, v%d" % (T+2, T+2, T+3)),
          (2, "v_rcp_f32 v%d, v%d" % (T, T)), (2, "v_rcp_f32 v%d, v%d" % (T+2, T+2))]
    for x in e: o.append((1, "v_mul_f32 v%d, v%d, v%d" % (x, x, T)))
    for x in v: o.append((1, "v_mul_f32 v%d, v%d, v%d" % (x, x, T+2)))
    o += [(1, t) for t in pack_inplace(v, E)]
    return o

PHB = 102400; KVB = PHB + 20480; RED = PHB
def pq_setup(k):
    srd(k, SRD_P, P_WS, PQ_OFF, PQ_SZ)
    srd(k, SRD_W1, P_WS, G_OFF, G_SZ)
    k("s_lshl_b32 s77, s%d, 1" % S_OMT); k("s_add_u32 s77, s77, s%d" % S_RH)
    k("s_lshl_b32 s78, s%d, 1" % S_OH); k("s_add_u32 s78, s78, s%d" % S_C)
    k("s_mul_i32 s78, s78, 81920")
    k("s_lshl_b32 s79, s77, 10"); k("s_add_u32 s79, s79, s78")
    k("s_add_u32 s101, s79, 32768")
    k("s_lshl_b32 s81, s77, 9"); k("s_add_u32 s81, s81, s78"); k("s_add_u32 s81, s81, 65536")
    k("s_lshl_b32 s76, s%d, 9" % S_OMT); k("s_lshl_b32 s77, s%d, 7" % S_W); k("s_add_u32 s76, s76, s77")
    k("s_add_u32 s82, s%d, %d" % (S_OMT, C_Q)); k("s_mul_i32 s82, s82, %d" % cfg.CS)
    k("v_lshlrev_b32 v5, 3, v0")
    k("v_and_b32 v24, 15, v0"); k("v_lshrrev_b32 v25, 4, v0")
    k("v_lshlrev_b32 v23, 2, v24")
PQR = 192
def pq_loads(k, nu):
    for i in range(nu):
        PQ = PQR + 12*i
        so = ("s79", "s101") if i < 2 else ("s72", "s73")
        if i == 2: k("s_add_u32 s72, s79, 4096"); k("s_add_u32 s73, s101, 4096")
        k.vm("buffer_load_dwordx4 %s, v%d, s[%d:%d], %s offen offset:%d%s" % (vr(PQ,4), V_L16, SRD_P, SRD_P+3, so[0], (i & 1)*2048 if i < 2 else 0, SC), ("pq", i))
        k.vm("buffer_load_dwordx4 %s, v%d, s[%d:%d], %s offen offset:%d%s" % (vr(PQ+4,4), V_L16, SRD_P, SRD_P+3, so[1], (i & 1)*2048 if i < 2 else 0, SC), ("pq", i))
        k.vm("buffer_load_dwordx2 %s, v5, s[%d:%d], s81 offen offset:%d%s" % (vr(PQ+8,2), SRD_P, SRD_P+3, i*1024, SC), ("pq", i))
        for r2 in range(2): k.vm("buffer_load_dword v%d, v17, s[%d:%d], s76 offen offset:%d%s" % (PQ+10+r2, SRD_W1, SRD_W1+3, i*512 + r2*64, SC), ("pq", i))

OAL = list(range(42, 62))
def tail(k, nu, pre, late, bolate, presig=None, reducer=False):
    if cfg.X_END:
        if presig: presig()
        k("s_endpgm"); return
    if cfg.X_NOO:
        if presig: presig(); presig = None
        nu = 0
    if cfg.X_NOB: pre = []; late = []; bolate = []
    if not presig: k.flush_counters()
    stamp(k, 6)
    fd = Feed(k, [] if presig else pre)
    def ch():
        k("s_lshr_b32 s82, s%d, 1" % S_M64); k("s_mul_i32 s82, s82, %d" % cfg.CS)
        poll_issue(k, S_CNT, "s82", "h_ok")
    if not nu:
        ch()
        srd(k, SRD_W1, P_WS, G_OFF, G_SZ)
        k("v_and_b32 v24, 15, v0"); k("v_lshrrev_b32 v25, 4, v0")
    else:
        fd.emit(cfg.QPRE)
        pq_setup(k)
        k("s_mov_b32 s%d, s82" % S_T2)
        k("v_mov_b32 v17, v23")
    k("s_mul_i32 s%d, s%d, %d" % (S_T0, S_M64, 74*4096))
    srd(k, SRD_X, P_WS, A2_OFF, 74*4096, S_T0)
    k("s_add_u32 s80, s%d, 20" % S_W); k("s_lshl_b32 s80, s80, 12")
    k("v_lshlrev_b32 v6, 2, v24")
    VA = 26
    for j in range(4):
        k("s_add_u32 s75, s%d, %d" % (S_W, j)); k("s_and_b32 s75, s75, 3"); k("s_lshl_b32 s75, s75, 10")
        k("v_add_u32 v%d, s75, v%d" % (VA+j, V_L16))
    A0 = 64
    XD = (4 if cfg.RBH else 0) if reducer else (cfg.XD if nu else 4)
    def af(i): return 192 + 16*i if i < XD else 144 + ((i - XD) % 3)*16
    TO = (1, 2, 3, 0)
    def a_load(i, j):
        if cfg.X_NOA and i >= 3: return
        k.vm("buffer_load_dwordx4 %s, v%d, s[%d:%d], s80 offen%s" % (vr(af(i)+4*j,4), VA+j, SRD_X, SRD_X+3, LSC), ("A", i, j))
        if j == TO[3]: k("s_add_u32 s80, s80, %d" % (4*4096))
    started = []
    aq = [(i, j) for i in range(3 + XD) for j in TO]
    def hstart():
        stamp(k, 8)
        poll_check(k, S_CNT, 9, "h_ok")
        stamp(k, 9)
        started.append(1)
    if nu:
        if presig and cfg.QEARLY: vpoll_issue(k, "s%d" % S_T2, nu, "q_ok")
        if presig:
            presig(); fd.q += pre
        if not (presig and cfg.QEARLY): vpoll_issue(k, "s%d" % S_T2, nu, "q_ok")
        fd.emit(4)
        T0, T1, T2 = 64, 65, 66
        srd(k, SRD_W0, P_WS, KVF_OFF, 16*4096)
        srd(k, SRD_O, P_WS, A2_OFF, A2_SZ)
        PB = PHB - 20480*(nu-1)
        k("s_mul_i32 s75, s%d, 5120" % S_W); k("s_add_u32 s75, s75, %d" % PB)
        k("v_mul_u32_u24 v7, 80, v0"); k("v_add_u32 v7, s75, v7")
        k("s_mul_i32 s75, s%d, 2560" % S_W); k("s_add_u32 s75, s75, %d" % PB)
        k("v_mul_u32_u24 v8, 80, v24"); k("v_add_u32 v8, s75, v8")
        k("v_lshl_add_u32 v9, v25, 4, v8")
        k("v_mov_b32 v30, 0x7fffffff")
        vpoll_check(k, 3, "q_ok")
        pq_loads(k, nu)
        stamp(k, 7)
        fd.emit(3)
        k("s_mul_i32 s72, s%d, 5" % S_OH)
        for dst, add, nvalid in ((12, 0, 3), (13, 3, 2)):
            k("v_add_u32 v%d, s72, v25" % T2)
            if add: k("v_add_u32 v%d, %d, v%d" % (T2, add, T2))
            k("v_lshrrev_b32 v%d, 2, v%d" % (T0, T2))
            k("v_lshlrev_b32 v%d, 12, v%d" % (T0, T0))
            k("v_and_b32 v%d, 3, v%d" % (T1, T2))
            k("v_lshl_add_u32 v%d, v%d, 8, v%d" % (T0, T1, T0))
            k("v_lshl_add_u32 v%d, v24, 4, v%d" % (T0, T0))
            k("v_cmp_gt_u32 vcc, %d, v25" % nvalid)
            k("v_cndmask_b32 v%d, v30, v%d, vcc" % (dst, T0))
        fd.emit(2)
        k("s_lshl_b32 s73, s%d, 1" % S_OMT); k("s_add_u32 s73, s73, s%d" % S_C)
        k("s_mul_i32 s73, s73, %d" % (74*4096))
        k("s_lshl_b32 s75, s%d, 11" % S_RH); k("s_add_u32 s73, s73, s75")
        k("s_lshl_b32 s74, s%d, 2" % S_OH); k("s_add_u32 s74, s74, s%d" % S_W); k("s_lshl_b32 s74, s74, 10")
        k("v_bfe_u32 v%d, v0, 2, 2" % T0); k("v_and_b32 v%d, 3, v0" % T1)
        k("v_lshl_add_u32 v%d, v%d, 3, v%d" % (T2, T0, T1))
        for hd in range(2):
            for i in range(3):
                d = 18 + hd*3 + i
                if i == 2: k("v_mov_b32 v%d, %d" % (d, KVB + 1600 + hd*1680))
                else:
                    k("v_add_u32 v14, %d, v%d" % (4*i + 4*hd, T2)); k("v_min_u32 v14, 20, v14")
                    if hd == 1 and i == 0:
                        k("v_cmp_eq_u32 vcc, 2, v%d" % T0); k("v_cndmask_b32 v14, v14, v%d, vcc" % T1)
                    k("v_mul_u32_u24 v14, 80, v14")
                    k("v_add_u32 v%d, %d, v14" % (d, KVB + hd*1680))
        fd.emit(2)
        k("v_cmp_eq_u32 s[78:79], 0, v25")
        k("v_cmp_eq_u32 s[76:77], 2, v25")
        k("v_mov_b32 v30, %d" % (KVB + 3584 - 64))
        for i in range(nu):
            k.wait(vm=("pq", i))
            for j in range(10):
                k("v_lshlrev_b32 v%d, 16, v%d" % (64+2*j, PQR+12*i+j))
                k("v_and_b32 v%d, 0xffff0000, v%d" % (65+2*j, PQR+12*i+j))
            for r2 in range(2): k("v_mov_b32 v%d, v%d" % (250+2*i+r2, PQR+12*i+10+r2))
            fd.emit(2)
            class Hook:
                n = 0
                def emit(self, _=1):
                    self.n += 1
                    last = i == nu-1
                    if last and self.n == cfg.HP[0]: ch()
                    elif last and self.n == cfg.HP[1]: hstart()
                    if started and aq:
                        for _ in range(4):
                            if aq: a_load(*aq.pop(0))
                    else: fd.emit(1)
            softmax_pm(k, [64+2*j for j in range(10)], 84, 124, 104, Hook())
            for j in range(5): k.lg("ds_write_b128 v7, %s offset:%d" % (vr(104+4*j,4), i*20480 + 16*j))
        stamp(k, 27)
    else:
        fd.drain()
    if reducer:
        srd(k, SRD_P, P_WS, KVP_OFF, KVP_SZ)
        srd(k, SRD_T, P_WS, KVF_OFF, 16*4096)
        k("s_lshl_b32 s75, s%d, 10" % S_W)
        k("v_add_u32 v10, s75, v%d" % V_L16)
        k("v_mov_b32 v14, 0x7fffffff")
        k("v_cmp_gt_u32 vcc, 3360, v10")
        k("v_cndmask_b32 v11, v14, v10, vcc")
        k("s_mul_i32 s72, s%d, %d" % (S_OH, 16*KVPS))
        k("s_lshl_b32 s81, s%d, 12" % S_OH)
        k("v_bfe_u32 v64, v0, 2, 2"); k("v_and_b32 v65, 3, v0")
        k("v_and_b32 v14, 1, v0"); k("v_lshlrev_b32 v14, 4, v14")
        k("v_mov_b32 v15, 0x3f80")
        k("v_lshlrev_b32 v14, v14, v15")
        k("v_cmp_eq_u32 vcc, v64, v25")
        k("v_cndmask_b32 v14, 0, v14, vcc")
        k("v_cmp_gt_u32 vcc, 2, v65")
        k("v_cndmask_b32 v15, 0, v14, vcc")
        k("v_cndmask_b32 v14, v14, 0, vcc")
        for r, src in ((120, "v15"), (121, "v14"), (122, "0"), (123, "0"), (124, "0"), (125, "0"), (126, "v15"), (127, "v14")):
            k("v_accvgpr_write_b32 a%d, %s" % (r, src))
    def sent(regs, t):
        k("v_max3_u32 v%d, v%d, v%d, v%d" % (t, regs[0], regs[1], regs[2]))
        rest = regs[3:]
        while len(rest) >= 2:
            k("v_max3_u32 v%d, v%d, v%d, v%d" % (t, t, rest[0], rest[1])); rest = rest[2:]
        if rest: k("v_max_u32 v%d, v%d, v%d" % (t, t, rest[0]))
    def do_reduce():
        l = k.newlabel("Lkp"); d = k.newlabel("Lkd")
        KP = 76
        stamp(k, 10)
        k("s_mov_b32 s95, 0x4000")
        k.label(l)
        k.vmq = []
        for p in range(16):
            k("s_add_u32 s75, s72, %d" % (p*KVPS))
            k.vm("buffer_load_dwordx4 %s, v11, s[%d:%d], s75 offen%s" % (vr(KP+4*p,4), SRD_P, SRD_P+3, SC), ("kp", p))
        RA = 64
        for p in range(16):
            k.wait(vm=("kp", p))
            for h in range(2): k("v_mfma_f32_16x16x32_bf16 %s, %s, %s, %s" % (vr(RA+4*h,4), ar(120+4*h,4), vr(KP+4*p,4), vr(RA+4*h,4) if p else "0"))
            r = [KP+4*p+i for i in range(4)]
            sent(r if p == 0 else [72] + r, 72)
        k("v_cmp_eq_u32 vcc, -1, v72")
        k("s_sub_u32 s95, s95, 1")
        k("s_cmp_eq_u64 vcc, 0")
        k("s_cbranch_scc1 %s" % d)
        k("s_cmp_lg_u32 s95, 0")
        k("s_cbranch_scc1 %s" % l)
        k.label(d)
        k("s_nop 3")
        stamp(k, 11)
        for i in range(4): k("v_cvt_pk_bf16_f32 v%d, v%d, v%d" % (192+i, RA+2*i, RA+1+2*i))
        k.vm("buffer_store_dwordx4 v[192:195], v10, s[%d:%d], s81 offen%s" % (SRD_T, SRD_T+3, SC), "st")
        stamp(k, 28)
    if reducer and cfg.RBH: do_reduce(); ch()
    if not started: hstart()
    while aq: a_load(*aq.pop(0))
    k.wait(lg="all")
    if reducer and not cfg.RBH: do_reduce()
    ncon = 5*(nu-1) if nu else 0
    fl = Feed(k, fd.q + b_items(late) + (bolate[:len(bolate)-ncon]))
    bolate = bolate[len(bolate)-ncon:]
    lds = []
    cnt = [0]
    order = [(i, j) for i in range(11) for j in TO] + [(i, j) for j in TO for i in range(11, 14)]
    def main():
        for (i, j) in order:
            pend = set(t[2][1] for t in fl.q if isinstance(t[2], tuple) and t[2][0] == "B")
            assert not (pend & set(range(i*5, i*5+5))), (nu, i, pend)
            k.wait(vm=[("A", i, j)] + [("B", i*5+ct) for ct in range(5)])
            for ct in range(5):
                a = A0 + (j*5+ct)*4
                k("v_mfma_f32_16x16x32_bf16 %s, %s, %s, %s" % (vr(a,4), R(bloc(i*5+ct),4), vr(af(i)+4*j,4), vr(a,4) if i else "0"))
                cnt[0] += 1
                if lds: emit1(k, lds.pop(0))
                if ct == 4 and i >= XD and i + 3 < 14: a_load(i + 3, j)
                if ct in cfg.FLAT: fl.emit(1)
                yield 1
    g = main()
    def run(n):
        for _ in range(n): next(g, None)
    def upto(m): run(max(0, m - cnt[0]))
    def mix(items, per):
        for i, it in enumerate(items):
            emit1(k, it)
            if i % per == per-1: run(1)
    if nu:
        def oa(i): return bloc(i)
        ld = "buffer_load_dwordx4 v[192:195], v%d, s[%d:%d], s74 offen%s" % (V_L16, SRD_W0, SRD_W0+3, SC)
        k("s_lshl_b32 s75, s%d, 10" % S_W); k("s_add_u32 s75, s75, %d" % KVB); k("v_add_u32 v10, s75, v%d" % V_L16)
        MF = cfg.MF if nu == 1 else (cfg.MF2 if presig else cfg.MFQ)
        upto(max(MF - 25, 20*XD)); k.vm(ld, "kf"); upto(max(MF, 80))
        stamp(k, 10)
        l = k.newlabel("Lkf"); d = k.newlabel("Lkg")
        k.wait(vm="kf")
        k("s_mov_b32 s95, 0x8000")
        k.label(l)
        sent([192, 193, 194, 195], 196)
        k("v_cmp_eq_u32 vcc, -1, v196")
        k("s_sub_u32 s95, s95, 1")
        k("s_cmp_eq_u64 vcc, 0")
        k("s_cbranch_scc1 %s" % d)
        k("s_sleep %d" % cfg.SLP)
        k(ld)
        k("s_waitcnt vmcnt(0)")
        k("s_cmp_lg_u32 s95, 0")
        k("s_cbranch_scc1 %s" % l)
        k.label(d)
        stamp(k, 11)
        k.lg("ds_write_b128 v10, v[192:195]", "kw")
        run(4)
        k.wait(lg="all"); k("s_barrier"); stamp(k, 28)
        def brd(u):
            o = []
            for hd in range(2):
                for r2 in range(2):
                    o.append(("lg", "ds_read_b128 %s, v9 offset:%d" % (R(oa(12+hd*4+2*r2),4), u*20480 + hd*10240 + r2*1280), ("o", u, hd)))
                    o.append(("lg", "ds_read_b128 %s, v8 offset:%d" % (R(oa(13+hd*4+2*r2),4), u*20480 + hd*10240 + r2*1280+64), ("o", u, hd)))
            return o
        it = []
        for hd in range(2):
            for i in range(3):
                it += ["v_lshl_add_u32 v15, v25, 4, v%d" % (18+hd*3+i), "v_cndmask_b32 v14, v30, v%d, s[78:79]" % (18+hd*3+i),
                       ("lg", "ds_read_b128 %s, v15" % R(oa(hd*6+2*i),4), "oa"), ("lg", "ds_read_b128 %s, v14 offset:64" % R(oa(hd*6+2*i+1),4), "oa")]
        mix(it + brd(0), cfg.MIX)
        run(4)
        KO = 192
        for u in range(nu):
            for hd in range(2):
                k.wait(lg=("o", u, hd))
                for s in range(2):
                    for r2 in range(2):
                        for i in (2, 0, 1):
                            a = KO + (hd*2+r2)*12 + i*4
                            k("v_mfma_f32_16x16x32_bf16 %s, %s, %s, %s" % (vr(a,4), R(oa(hd*6+2*i+s),4), R(oa(12+hd*4+2*r2+s),4), vr(a,4) if s else "0"))
            it = brd(u+1) if u + 1 < nu else []
            for q in range(4): it.append("v_add_f32 v%d, %s, v%d" % (KO+q*12+8, f32(1e-6), KO+q*12+8))
            for q in range(4): it.append("v_rcp_f32 v%d, v%d" % (KO+q*12+8, KO+q*12+8))
            for q in range(4): it.append("v_mul_f32 v%d, v%d, v%d" % (KO+q*12+8, KO+q*12+8, 250+2*u+(q & 1)))
            for r2 in range(2):
                a0 = KO + r2*12; a1 = KO + (2+r2)*12
                for a in (a1, a0):
                    for i in range(8): it.append("v_mul_f32 v%d, v%d, v%d" % (a+i, a+i, a+8))
                    for i in range(4): it.append("v_cvt_pk_bf16_f32 v%d, v%d, v%d" % (a+8+i, a+2*i, a+2*i+1))
                    if a == a1: it.append(("vm", "buffer_store_dwordx4 %s, v13, s[%d:%d], s73 offen offset:%d%s" % (vr(a1+8,4), SRD_O, SRD_O+3, r2*1024, SC), "st"))
                it.append("v_cndmask_b32 v%d, v%d, v%d, s[76:77]" % (a0+10, a0+10, a1+8))
                it.append("v_cndmask_b32 v%d, v%d, v%d, s[76:77]" % (a0+11, a0+11, a1+9))
                it.append(("vm", "buffer_store_dwordx4 %s, v12, s[%d:%d], s73 offen offset:%d%s" % (vr(a0+8,4), SRD_O, SRD_O+3, r2*1024, SC), "st"))
            if u + 1 < nu: it.append("s_add_u32 s73, s73, %d" % (2*74*4096))
            mix(it, cfg.MIX * nu)
        stamp(k, 29)
        run(cfg.OSD)
        if cfg.BPR: fl.drain()
        k.wait(vm=["st", "BO"])
        d = k.newlabel("Lsg")
        k("s_add_u32 s82, s%d, %d" % (S_OMT, C_O)); k("s_mul_i32 s82, s82, %d" % cfg.CS)
        k("s_barrier")
        k("s_cmp_lg_u32 s%d, 0" % S_W)
        k("s_cbranch_scc1 %s" % d)
        k("v_mul_u32_u24 v%d, %d, v0" % (V_PT, cfg.CS)); k("v_add_u32 v%d, s82, v%d" % (V_PT, V_PT))
        k("v_mov_b32 v31, 1")
        k("s_mov_b64 exec, %d" % ((1 << nu) - 1))
        k("global_atomic_add v%d, v31, s[%d:%d] sc1" % (V_PT, S_CNT, S_CNT+1))
        k("s_mov_b64 exec, -1")
        k.label(d)
        stamp(k, 12)
        fl.q += bolate
    q = K()
    for j in range(1, 4):
        q("s_add_u32 s75, s%d, %d" % (S_W, j)); q("s_and_b32 s75, s75, 3"); q("s_mul_i32 s75, s75, 15360")
        q("s_add_u32 s75, s75, %d" % (RED + (j-1)*5120))
        q("v_add_u32 v%d, s75, v%d" % (10+j, V_L16))
    q("s_mul_i32 s75, s%d, 15360" % S_W); q("s_add_u32 s75, s75, %d" % RED)
    q("v_add_u32 v8, s75, v%d" % V_L16)
    q("v_add_u32 v9, 51200, v%d" % V_L16)
    srd(q, SRD_O, P_OUT, 0, 2048*1280)
    q("s_lshl_b32 s81, s%d, 6" % S_M64); q("s_lshl_b32 s75, s%d, 4" % S_W); q("s_add_u32 s81, s81, s75")
    q("s_lshl_b32 s74, s81, 2")
    q("s_mul_i32 s81, s81, 1280"); q("s_mul_i32 s75, s%d, 160" % S_NT); q("s_add_u32 s81, s81, s75")
    q("v_mul_u32_u24 v16, 1280, v24"); q("v_lshl_add_u32 v16, v25, 3, v16")
    q("s_lshr_b32 s82, s%d, 1" % S_M64); q("s_add_u32 s82, s82, %d" % C_O); q("s_mul_i32 s82, s82, %d" % cfg.CS)
    q("s_mov_b32 s73, 0")
    mix([t for _, t in q.items], 2)
    def bol(n): return bloc(n % 70)
    def bo_read(n):
        off = n*1024
        return ("lg", "ds_read_b128 %s, v%d offset:%d" % (R(bol(n), 4), V_L16 if off < 51200 else 9, off % 51200), ("bo", n // 5))
    nr = 0
    if cfg.BPR:
        if not nu:
            while fl.q: run(1)
            run(cfg.BPW)
            k.wait(vm="BO"); k("s_barrier")
        while cnt[0] < min(cfg.MO, 238) - 20:
            if nr < min(cnt[0] // 20, 11) * 5 and not lds: lds.append(bo_read(nr)); nr += 1
            run(1)
    upto(min(cfg.MO, 238) - 20)
    fl.drain()
    if cfg.MO < 280 and cnt[0] <= 238:
        poll_issue(k, S_CNT, "s82", "o_ok")
        while cfg.BPR and cnt[0] < cfg.MO:
            if nr < min(cnt[0] // 20, 11) * 5 and not lds: lds.append(bo_read(nr)); nr += 1
            run(1)
        upto(cfg.MO)
    def of(ks): return 192 + 4*ks if ks < 16 else 148 + 16*(ks-16) if ks < 19 else 152
    def ao(ks): return ("s_add_u32 s73, s73, 4096" if ks else None, "buffer_load_dwordx4 %s, v%d, s[%d:%d], s73 offen%s" % (vr(of(ks),4), VA, SRD_X, SRD_X+3, LSC), ("Ao", ks))
    def red_w(j): return [("lg", "ds_write_b128 v%d, %s offset:%d" % (10+j, vr(A0+(j*5+ct)*4,4), ct*1024), "rw") for ct in range(5)]
    def oready():
        stamp(k, 13)
        poll_check(k, S_CNT, 16, "o_ok")
        stamp(k, 14)
        k.vm("buffer_load_dword v5, v6, s[%d:%d], s74 offen%s" % (SRD_W1, SRD_W1+3, SC), "g2")
        fa = Feed(k, [ao(ks) for ks in range(20)])
        fa.emit(6)
        return fa
    rr = [("lg", "ds_read_b128 %s, v8 offset:%d" % (vr(A0+20+4*j,4), j*1024), ("r", j // 5)) for j in range(15)]
    late_o = cfg.MO >= 280 or cnt[0] > 238
    if not late_o:
        fa = oready()
        fl.q = fa.q[:10]; fa.q = fa.q[10:]
        free = min(cnt[0] // 20, 11) * 5
        for c in (238, 253, 268, 280):
            n = min(free - nr, c - cnt[0] - len(lds))
            lds += [bo_read(x) for x in range(nr, nr + max(n, 0))]; nr += max(n, 0)
            upto(c)
            if c < 280: lds[:0] = red_w((238, 253, 268).index(c) + 1)
        weave(k, [], lds); del lds[:]
        fl.drain()
        fa.drain()
        k.wait(vm="g2")
        k("v_sub_f32 v10, 1.0, v5")
        for j in range(10): k("v_pk_mul_f32 %s, %s, v[10:11] op_sel_hi:[1,0]" % (vr(A0+2*j,2), vr(A0+2*j,2)))
        k.wait(lg="rw")
        k("s_barrier")
        while nr < 15:
            emit1(k, bo_read(nr)); nr += 1
    else:
        for j, c in enumerate((238, 253, 268)):
            upto(c); lds += red_w(j+1)
        upto(280)
        weave(k, [], lds); del lds[:]
        k.wait(lg="rw", vm="BO")
        k("s_barrier")
        weave(k, [], rr); del rr[:]
        poll_issue(k, S_CNT, "s82", "o_ok")
        for sl in range(3):
            k.wait(lg=("r", sl))
            weave(k, [], [bo_read(x) for x in range(nr, min(70, nr+10))]); nr = min(70, nr+10)
            for j in range(10): k("v_pk_add_f32 %s, %s, %s" % (vr(A0+2*j,2), vr(A0+2*j,2), vr(A0+20+20*sl+2*j,2)))
        weave(k, [], [bo_read(x) for x in range(nr, cfg.BPRE)]); nr = max(nr, cfg.BPRE)
        fa = oready()
        fa.emit(6)
        weave(k, [], [bo_read(x) for x in range(nr, 70)]); nr = 70
        fa.drain()
        k.wait(vm="g2")
        k("v_sub_f32 v10, 1.0, v5")
        for j in range(10): k("v_pk_mul_f32 %s, %s, v[10:11] op_sel_hi:[1,0]" % (vr(A0+2*j,2), vr(A0+2*j,2)))
    for ks in range(20):
        k.wait(vm=("Ao", ks), lg=("bo", ks))
        mf = ["v_mfma_f32_16x16x32_bf16 %s, %s, %s, %s" % (vr(A0+ct*4,4), R(bol(ks*5+ct), 4), vr(of(ks),4), vr(A0+ct*4,4)) for ct in range(5)]
        fill = [bo_read(n) for n in range(nr, min(100, nr+5, ks*5+70))]; nr += len(fill)
        while len(fill) < 5 and rr: fill.append(rr.pop(0))
        weave(k, mf, fill, per=1)
    if not late_o:
        weave(k, [], rr)
        k.wait(lg="all")
        for j in range(10): k("v_pk_add_f32 %s, %s, %s" % (vr(A0+20+2*j,2), vr(A0+20+2*j,2), vr(A0+40+2*j,2)))
        for j in range(10): k("v_pk_add_f32 %s, %s, %s" % (vr(A0+20+2*j,2), vr(A0+20+2*j,2), vr(A0+60+2*j,2)))
    for ct in range(5):
        a = A0 + ct*4
        for h in range(2 if not late_o else 0): k("v_pk_fma_f32 %s, %s, v[10:11], %s op_sel_hi:[1,0,1]" % (vr(a+2*h,2), vr(a+20+2*h,2), vr(a+2*h,2)))
        k("v_cvt_pk_bf16_f32 v%d, v%d, v%d" % (A0+40+2*ct, a, a+1)); k("v_cvt_pk_bf16_f32 v%d, v%d, v%d" % (A0+41+2*ct, a+2, a+3))
        k.vm("buffer_store_dwordx2 %s, v16, s[%d:%d], s81 offen offset:%d%s" % (vr(A0+40+2*ct,2), SRD_O, SRD_O+3, ct*32, cfg.OUTF), "st")
    stamp(k, 30)
    stamp_out(k)
    k("s_endpgm")

def kernel(k):
    kernel_header(k, NAME)
    astamp(k, 0)
    k("s_load_dwordx16 s[8:23], s[0:1], 0")
    k("s_load_dwordx8 s[24:31], s[0:1], 64")
    k("s_cmp_ge_u32 s2, 256")
    k("s_cbranch_scc1 L_end")
    if cfg.CPF: code_prefetch(k, V_JUNK)
    k("v_lshrrev_b32 v2, 6, v0")
    k("v_and_b32 v0, 63, v0")
    k("v_readfirstlane_b32 s%d, v2" % S_W)
    if cfg.STAMP: k("v_mov_b32 v1, 0")
    stamp(k, 0)
    if cfg.EARLY0: k("v_writelane_b32 v1, s98, 0")
    if cfg.MAP == 2:
        k("s_bfe_u32 s%d, s2, 0x40003" % S_MT)
        k("s_and_b32 s%d, s2, 7" % S_T0)
        k("s_lshl_b32 s%d, s%d, 3" % (S_T0, S_T0))
        k("s_bfe_u32 s%d, s2, 0x10007" % S_T1)
        k("s_lshl_b32 s%d, s%d, 2" % (S_T1, S_T1))
        k("s_add_u32 s%d, s%d, s%d" % (S_T0, S_T0, S_T1))
        tab = cfg.ORDER
        k("s_mov_b32 s74, 0x%x" % sum(tab[i] << (4*i) for i in range(8))); k("s_mov_b32 s75, 0x%x" % sum(tab[8+i] << (4*i) for i in range(8)))
        k("s_lshr_b64 s[74:75], s[74:75], s%d" % S_T0)
        k("s_and_b32 s%d, s74, 15" % S_TY)
    else:
        k("s_and_b32 s%d, s2, 7" % S_T0)
        k("s_lshr_b32 s%d, s2, 3" % S_T1)
        k("s_lshl_b32 s74, s%d, 2" % S_T0); k("s_and_b32 s75, s%d, 3" % S_T1); k("s_add_u32 s74, s74, s75")
        k("s_add_u32 s74, s74, %d" % (13*16))
        k("s_lshl_b32 s75, s%d, 3" % S_T0); k("s_add_u32 s75, s75, s%d" % S_T1); k("s_add_u32 s75, s75, %d" % (9*16 - 20))
        k("s_cmp_lt_u32 s%d, 28" % S_T1); k("s_cselect_b32 s74, s75, s74")
        k("s_lshl_b32 s75, s%d, 1" % S_T0); k("s_add_u32 s75, s75, s%d" % S_T1)
        k("s_add_u32 s76, s75, %d" % (15*16 - 18))
        k("s_cmp_lt_u32 s%d, 20" % S_T1); k("s_cselect_b32 s74, s76, s74")
        k("s_add_u32 s76, s75, %d" % (8*16 - 16))
        k("s_cmp_lt_u32 s%d, 18" % S_T1); k("s_cselect_b32 s74, s76, s74")
        k("s_lshl_b32 s76, s%d, 4" % S_T0); k("s_add_u32 s76, s76, s%d" % S_T1)
        k("s_cmp_lt_u32 s%d, 16" % S_T1); k("s_cselect_b32 s74, s76, s74")
        k("s_and_b32 s%d, s74, 15" % S_MT)
        k("s_lshr_b32 s%d, s74, 4" % S_TY)
    k("s_and_b32 s%d, s%d, 1" % (S_RH, S_W))
    k("s_lshr_b32 s%d, s%d, 1" % (S_C, S_W))
    k("v_lshlrev_b32 v%d, 4, v0" % V_L16)
    k("s_cmp_ge_u32 s%d, 15" % S_TY); k("s_cbranch_scc1 L_aux")
    k("s_cmp_ge_u32 s%d, 13" % S_TY)
    k("s_cselect_b32 s%d, 13, 9" % S_T0)
    k("s_cselect_b32 s75, 0, 1280")
    k("s_cselect_b32 s76, 0, 640")
    k("s_add_u32 s76, s76, 640")
    k("s_sub_u32 s79, s%d, s%d" % (S_TY, S_T0))
    k("s_mul_i32 s%d, s79, 320" % S_T1)
    k("s_and_b32 s%d, s%d, 127" % (S_DELTA, S_T1))
    k("s_sub_u32 s%d, s%d, s%d" % (S_T1, S_T1, S_DELTA))
    k("s_add_u32 s75, s75, s%d" % S_T1)
    k("s_add_u32 s76, s76, s75")
    k("s_mul_i32 s%d, s%d, 384" % (S_T1, S_TY))
    k("s_mov_b32 s%d, 3840" % S_STRIDE)
    k("s_cmp_lt_u32 s%d, 9" % S_TY)
    k("s_cselect_b32 s75, s%d, s75" % S_T1)
    k("s_cselect_b32 s76, s%d, s76" % S_T1)
    k("s_cselect_b32 s%d, 3456, s%d" % (S_STRIDE, S_STRIDE))
    k("s_mul_i32 s%d, s%d, 640" % (S_T1, S_STRIDE))
    k("s_sub_u32 s77, s%d, s75" % S_T1)
    k("s_sub_u32 s78, s%d, s76" % S_T1)
    gemm_setup(k)
    k("s_mul_i32 s%d, s%d, %d" % (S_T0, S_MT, 128*1280))
    astamp(k, 1)
    k("s_waitcnt lgkmcnt(0)")
    astamp(k, 2)
    k("s_cmp_lt_u32 s%d, 9" % S_TY)
    k("s_cselect_b64 s[16:17], s[%d:%d], s[%d:%d]" % (P_WG, P_WG+1, P_WQKV, P_WQKV+1))
    k("s_cselect_b64 s[%d:%d], s[%d:%d], s[%d:%d]" % (P_WU, P_WU+1, P_WU, P_WU+1, P_WQKV, P_WQKV+1))
    srd(k, SRD_X, P_X, 0, 128*1280, S_T0)
    stamp(k, 1)
    Q = dma_queue()
    issue_now(k, Q, 4)
    srd(k, SRD_W0, 16, 0, "s77", 75)
    srd(k, SRD_W1, P_WU, 0, "s78", 76)
    issue_now(k, Q, 6)
    astamp(k, 3)
    touch_setup(k)
    for it in touch_items(-1):
        if it[0]: k(it[0])
        k.vm(it[1], it[2])
    sv0 = list(k.vmq)
    aflush(k)
    k("s_cmp_ge_u32 s%d, 9" % S_TY); k("s_cbranch_scc1 L_att")
    ps, rest = ffn_role(k, Q)
    sv = (list(k.vmq), list(k.lgq))
    k("s_cmp_lt_u32 s%d, %d" % (S_OMT, 2*(3 - cfg.AUXU))); k("s_cbranch_scc1 L_f2")
    tail(k, 1, list(rest), [], [], presig=ps)
    k.label("L_f2")
    k.vmq, k.lgq = sv
    assert len(rest) >= 5
    tail(k, 2, list(rest[:-5]), [], list(rest[-5:]), presig=ps)
    k.label("L_att")
    k("s_lshl_b32 s79, s79, 1")
    k("s_add_u32 s79, s79, s%d" % S_C)
    k("s_mul_i32 s80, s79, 3200")
    srd(k, SRD_P, P_WPHI, 0, 3200, 80)
    k("s_cmp_ge_u32 s%d, 13" % S_TY); k("s_cselect_b32 s81, 12800, 0")
    k.flush_counters(); k.vmq = list(sv0)
    att_loop(k, Q)
    sv1 = (list(k.vmq), list(k.lgq))
    k("s_cmp_ge_u32 s%d, 13" % S_TY); k("s_cbranch_scc1 L_q")
    kv_role(k)
    tail(k, 0, [], list(range(cfg.KVN, 70)), bo_items())
    k.label("L_q")
    k.vmq, k.lgq = sv1
    q_role(k)
    tail(k, 2, b_items(range(32, 70)) + bo_items()[:cfg.BOQ], [], bo_items()[cfg.BOQ:])
    k.flush_counters()
    k.label("L_aux")
    aux_role(k)
    tail(k, 0, [], list(range(cfg.AUXB, 70)), bo_items(), reducer=True)
    k.label("L_end")
    k("s_endpgm")

def build(fn, listform=True):
    k = K()
    k.raw(open("header.txt").read().rstrip())
    if listform: k.raw("; @launch kernel=%s grid=(256,1,1) block=(256,1,1) lds=163840" % NAME)
    else: k.raw("; @launch grid=(256,1,1) block=(256,1,1) lds=163840")
    k.raw('.amdgcn_target "amdgcn-amd-amdhsa--gfx950"')
    k.raw(".text")
    kernel(k)
    k.raw('.section .rodata,"a"')
    k.raw(kernel_desc(NAME, 512, 256))
    open(fn, "w").write(k.text())

if __name__ == "__main__":
    for a in sys.argv[2:]:
        if "=" in a:
            n, v = a.split("="); setattr(cfg, n, eval(v))
    if cfg.NOSC: LSC = ""
    build(sys.argv[1], listform="single" not in sys.argv)
```

```python
import sys
from fw import *

A2_OFF = 0;          A2_SZ = 32*74*4096
B2_OFF = 0xA00000;   B2_SZ = 8*74*5120
PQ_OFF = 0xD00000;   PQ_SZ = 32*2048*40
KVP_OFF = 0x1000000; KVPS = 3584; KVP_SZ = 16*16*KVPS
G_OFF = 0x1200000;   G_SZ = 8192
CNT_OFF = 0x1300000
ST_OFF = 0x1400000
LOG2E = 1.4426950408889634
NAME = "gated_mix__linear_kernel_hedgehog__swiglu_ffn__prompt_kernel"

class Cfg:
    STAMP = 0; STG = 0
    MAXD = 11; N2 = 6; N3 = 10
    P2M = 4
    TW = [(-1,1,7),(1,8,6),(4,14,6)]
    TX = [(-1,1,3),(1,4,3),(4,7,3)]
    ORDER = [0, 9, 1, 10, 2, 11, 3, 12, 4, 13, 5, 14, 6, 7, 8, 15]
    PS1 = 16
    NBF = 40
    NBA = 32
    AUXT = 10
    AUXD = 3
    FFE = (3, 10)
    MK = 25
    KLAT = 20
    PER = 2
    BOF = 10
    KVB0 = 1
    TPER = 2
    BLP = 5
    X_LIGHT = 0
    AUXB = 70
    RBH = 0
    MF2 = 80
    MFQ = 80
    BPR = 1
    BPW = 40
    LORD = 0
    RSP = 0
    HP = (1, 5)
    QEARLY = 1
    AUXU = 0
    BT = 0
    BT2 = 0
    AUXNT = 1
    L2PF = 0
    PE1 = 20
    BOL = 0
    BOS = 0
    PSA = 16
    KVN = 62
    BPRE = 50
    RFIRST = 0
    MF = 110
    MAXD0 = 16
    BLK = 2
    PHS = 3
    AST = 0
    X_NOWAIT = 0
    X_NOO = 0
    X_NOB = 0
    X_END = 0
    X_NOA = 0
    MO = 238
    NOSC = 0
    NOMF = 0
    CS = 4096+256
    ONE = 1
    SLP = 2
    KI = 1
    MIX = 6
    FLAT = (1, 3)
    XD = 0
    BOQ = 10
    QPRE = 6
    FQ = (7, 10)
    OFIRST = 1
    OUTF = ''
    BOEARLY = 0
    QLAT = 40
    MAP = 3
    AORD = [9, 13, 10, 11, 14, 12]
    DBGWG = -1
    PADST = None
    PADMIN = 0
    CPF = 1
    TNT = 0
    NODMA = 0
    CYC = 0
    PADTY = None
    EARLY0 = 0
    KL2 = 40
    OSD = 20
cfg = Cfg()
SC = " sc1"
LSC = " sc1"

P_X, P_WQKV, P_WPHI, P_WO, P_WG, P_WU, P_WD, P_GW, P_OUT, P_DBG, P_WS = 8, 10, 12, 14, 18, 20, 22, 24, 26, 28, 30
S_W, S_RH, S_C, S_MT, S_TY, S_M64, S_NT, S_OH = 32, 33, 34, 35, 36, 37, 38, 39
SRD_X, SRD_W0, SRD_W1, SRD_O, SRD_P = 40, 44, 48, 52, 56
S_STRIDE, S_WOFF, S_WL, S_XL, S_T0, S_T1, S_T2, S_T3, S_DELTA, S_SIG = 60, 61, 62, 63, 64, 65, 66, 67, 68, 69
S_C2 = 70
S_OMT = 83; SRD_B = 84; S_BOFF = 88; S_BB = 89; S_CNT = 90; SRD_T = 96
V_L16, V_L16B, V_PT = 2, 3, 4
V_WD = 5; V_XD = 6; V_XR = 10; V_TA = 12; V_TW = 24; V_TX = 25; V_JUNK = 63; V_Z = 0
ACC0 = 64
WF0 = 256; XF0 = 256 + 96; GF0 = 256 + 88; GACC = 224
C_H, C_K, C_Q, C_O, C_F = 0, 16, 20, 36, 52
KVF_OFF = 0x1100000
SPARE = 147456
D_S1, D_S2, D_S3 = 0, 64, 128

def srd(k, d, b, off, nbytes, soff=None):
    if off or soff is not None:
        if soff is not None:
            k("s_add_u32 s%d, s%d, s%d" % (d, b, soff)); k("s_addc_u32 s%d, s%d, 0" % (d+1, b+1))
            if off:
                k("s_add_u32 s%d, s%d, 0x%x" % (d, d, off)); k("s_addc_u32 s%d, s%d, 0" % (d+1, d+1))
        else:
            k("s_add_u32 s%d, s%d, 0x%x" % (d, b, off)); k("s_addc_u32 s%d, s%d, 0" % (d+1, b+1))
        k("s_and_b32 s%d, s%d, 0xffff" % (d+1, d+1))
    else:
        k("s_mov_b32 s%d, s%d" % (d, b)); k("s_and_b32 s%d, s%d, 0xffff" % (d+1, b+1))
    if isinstance(nbytes, int): k("s_mov_b32 s%d, 0x%x" % (d+2, nbytes))
    else: k("s_mov_b32 s%d, %s" % (d+2, nbytes))
    k("s_mov_b32 s%d, 0x20000" % (d+3))

def stamp(k, i):
    if not cfg.STAMP or (cfg.AST and i != 15): return
    k("s_memtime s[92:93]" if cfg.STAMP == 2 else "s_memrealtime s[92:93]")
    k("s_waitcnt lgkmcnt(0)")
    k.lgq = []
    k("v_writelane_b32 v1, s92, %d" % i)
_ap = []
def astamp(k, idx):
    if not cfg.AST: return
    pair = (4, 6, 92, 94, 52, 54, 56, 58)[len(_ap)]
    k("s_memrealtime s[%d:%d]" % (pair, pair+1)); _ap.append((pair, idx))
def aflush(k):
    if not cfg.AST: return
    k("s_waitcnt lgkmcnt(0)"); k.lgq = []
    for p, i in _ap: k("v_writelane_b32 v1, s%d, %d" % (p, i))
    del _ap[:]
def stamp_out(k):
    if not cfg.STAMP: return
    k("s_waitcnt vmcnt(0)")
    stamp(k, 15)
    k("v_writelane_b32 v1, s%d, 16" % S_TY)
    srd(k, 40, P_WS, ST_OFF, 1024*128)
    k("s_lshl_b32 s92, s2, 2"); k("s_add_u32 s92, s92, s%d" % S_W); k("s_lshl_b32 s92, s92, 7")
    k("v_lshlrev_b32 v5, 2, v0")
    k("v_cmp_gt_u32 vcc, 32, v0")
    k("v_mov_b32 v6, 0x7fffffff")
    k("v_cndmask_b32 v5, v6, v5, vcc")
    k("buffer_store_dword v1, v5, s[40:43], s92 offen")
    if cfg.PADST is not None:
        k("v_readlane_b32 s94, v1, %d" % abs(cfg.PADST))
        k("v_readlane_b32 s95, v1, 0")
        k("s_max_u32 s94, s94, s95")
        if cfg.CYC:
            a, b = ((31, 25) if cfg.CYC == 1 else (24, 23))
            k("v_readlane_b32 s96, v1, %d" % a); k("v_readlane_b32 s97, v1, %d" % b)
            k("s_sub_u32 s96, s96, s97")
            if cfg.CYC == 1: k("s_lshr_b32 s96, s96, 2")
            else: k("s_lshl_b32 s96, s96, 2")
            k("s_add_u32 s94, s95, s96")
        if cfg.PADTY:
            k("s_cmp_lt_u32 s%d, %d" % (S_TY, cfg.PADTY[0])); k("s_cselect_b32 s94, s95, s94")
            k("s_cmp_gt_u32 s%d, %d" % (S_TY, cfg.PADTY[1])); k("s_cselect_b32 s94, s95, s94")
        if cfg.PADMIN:
            k("s_not_b32 s95, s94")
            k("v_mov_b32 v7, s95"); k("v_mov_b32 v8, 192")
            k("s_cmp_eq_u32 s%d, 0" % S_W)
            k("s_cselect_b64 exec, 1, 0")
            k("s_cbranch_execz Lnoat")
            k("global_atomic_umax v8, v7, s[%d:%d] sc1" % (P_DBG, P_DBG+1))
            k.label("Lnoat")
            k("s_mov_b64 exec, -1")
            k("s_add_u32 s94, s94, 4500")
            k.label("Lpad0")
            k("s_sleep 4")
            k("s_memrealtime s[96:97]")
            k("s_waitcnt lgkmcnt(0)")
            k("s_sub_u32 s98, s96, s94")
            k("s_cmp_lt_i32 s98, 0")
            k("s_cbranch_scc1 Lpad0")
            k("global_load_dword v7, v8, s[%d:%d] sc1" % (P_DBG, P_DBG+1))
            k("s_waitcnt vmcnt(0)")
            k("v_readfirstlane_b32 s94, v7")
            k("s_not_b32 s94, s94")
        k("s_add_u32 s94, s94, 6000")
        lp = k.newlabel("Lpad"); k.label(lp)
        k("s_sleep 4")
        k("s_memrealtime s[96:97]")
        k("s_waitcnt lgkmcnt(0)")
        k("s_sub_u32 s98, s96, s94")
        k("s_cmp_lt_i32 s98, 0")
        k("s_cbranch_scc1 %s" % lp)
    if cfg.DBGWG >= 0:
        k("s_cmp_eq_u32 s92, %d" % (cfg.DBGWG*512))
        k("s_cselect_b32 s93, 64, 0")
        srd(k, 44, P_DBG, 0, "s93")
        k("v_readlane_b32 s93, v1, 0")
        k("v_subrev_u32 v7, s93, v1")
        k("v_cmp_lt_u32 vcc, 0, v0")
        k("v_cndmask_b32 v5, v6, v5, vcc")
        k("buffer_store_dword v7, v5, s[44:47], 0 offen")

def code_prefetch(k, vt):
    k("s_getpc_b64 s[72:73]")
    l = k.newlabel("Lpc"); k.label(l)
    k("s_lshr_b32 s74, s2, 3")
    k("s_lshl_b32 s74, s74, 7")
    k("v_and_b32 v%d, 31, v0" % vt)
    k("v_lshlrev_b32 v%d, 12, v%d" % (vt, vt))
    k("v_add_u32 v%d, s74, v%d" % (vt, vt))
    k("v_min_u32 v%d, L_end-%s-4, v%d" % (vt, l, vt))
    k.vm("global_load_dword v%d, v%d, s[72:73]" % (vt, vt), "pf")

def _pload(k, base, tag):
    if cfg.ONE:
        a = k.newlabel("Lp0"); b = k.newlabel("Lp1")
        k("s_cmp_lg_u32 s%d, 0" % S_W); k("s_cbranch_scc1 %s" % a)
        k("global_load_dword v31, v%d, s[%d:%d] sc1" % (V_PT, base, base+1))
        k("s_branch %s" % b)
        k.label(a)
        k("v_mov_b32 v%d, 0" % V_PT)
        k("global_load_dword v31, v%d, s[%d:%d]" % (V_PT, P_X, P_X+1))
        k.label(b)
        k.vmq.append(tag)
    else: k.vm("global_load_dword v31, v%d, s[%d:%d] sc1" % (V_PT, base, base+1), tag)
def poll_issue(k, base, off, tag):
    k("v_mov_b32 v%d, %s" % (V_PT, off))
    _pload(k, base, tag)
def vpoll_issue(k, off, n, tag):
    k("v_min_u32 v%d, %d, v0" % (V_PT, n-1)); k("v_mul_u32_u24 v%d, %d, v%d" % (V_PT, cfg.CS, V_PT)); k("v_add_u32 v%d, %s, v%d" % (V_PT, off, V_PT))
    _pload(k, S_CNT, tag)
def poll_check(k, base, target, tag, sleep=None, barrier=True):
    l = k.newlabel("Lpoll"); d = k.newlabel("Lpd")
    if base == S_CNT and (cfg.X_NOWAIT == 1 or (cfg.X_NOWAIT and tag in cfg.X_NOWAIT)): target = 0
    k.wait(vm=tag)
    if cfg.ONE:
        k("s_cmp_lg_u32 s%d, 0" % S_W); k("s_cbranch_scc1 %s" % d)
    k("v_cmp_gt_u32 vcc, %d, v31" % target)
    k("s_mov_b32 s95, 0x8000")
    k("s_cmp_eq_u64 vcc, 0")
    k("s_cbranch_scc1 %s" % d)
    k.label(l)
    k("s_sleep %d" % (sleep or cfg.SLP))
    k("global_load_dword v31, v%d, s[%d:%d] sc1" % (V_PT, base, base+1))
    k("s_waitcnt vmcnt(0)")
    k("v_cmp_gt_u32 vcc, %d, v31" % target)
    k("s_sub_u32 s95, s95, 1")
    k("s_cmp_eq_u64 vcc, 0")
    k("s_cbranch_scc1 %s" % d)
    k("s_cmp_lg_u32 s95, 0")
    k("s_cbranch_scc1 %s" % l)
    k.label(d)
    if cfg.ONE and barrier: k("s_barrier")
def vpoll_check(k, target, tag): poll_check(k, S_CNT, target, tag)
def signal(k, base, off, ra=V_PT, rd=31):
    d = k.newlabel("Lsg")
    k("s_barrier")
    k("s_cmp_lg_u32 s%d, 0" % S_W)
    k("s_cbranch_scc1 %s" % d)
    k("v_mov_b32 v%d, %s" % (ra, off))
    k("v_mov_b32 v%d, 1" % rd)
    k("s_mov_b64 exec, 1")
    k("global_atomic_add v%d, v%d, s[%d:%d] sc1" % (ra, rd, base, base+1))
    k("s_mov_b64 exec, -1")
    k.label(d)

BL = [256+128+4*i for i in range(32)] + [256+48+4*i for i in range(12)] + [256+108+4*i for i in range(3)] \
   + [256+4*i for i in range(12)] + [256+96+4*i for i in range(3)] + [32+4*i for i in range(8)]
def bloc(n): return BL[n]
def b_items(frs):
    out = []; cur = None
    for n in frs:
        st, ct = divmod(n, 5)
        pre = None
        if st != cur: pre = "s_add_u32 s%d, s%d, %d" % (S_BOFF, S_BB, (20 + 4*st)*5120); cur = st
        if ct < 4: t = "buffer_load_dwordx4 %s, v%d, s[%d:%d], s%d offen offset:%d%s" % (R(bloc(n),4), V_L16, SRD_B, SRD_B+3, S_BOFF, ct*1024, LSC)
        else: t = "buffer_load_dwordx4 %s, v%d, s[%d:%d], s%d offen%s" % (R(bloc(n),4), V_L16B, SRD_B, SRD_B+3, S_BOFF, LSC)
        out.append((pre, t, ("B", n)))
    return out
def bo_items():
    out = []
    for i in range(5):
        for ct in range(5):
            pre = "s_add_u32 m0, s%d, %d" % (S_BB, i*20480 + (4096 if ct == 4 else 0))
            if ct == 0: pre = "s_add_u32 s100, s%d, %d\n" % (S_BB, i*20480) + pre
            if ct < 4: t = "buffer_load_dwordx4 v%d, s[%d:%d], s100 offen offset:%d%s lds" % (V_L16, SRD_B, SRD_B+3, ct*1024, LSC)
            else: t = "buffer_load_dwordx4 v%d, s[%d:%d], s100 offen%s lds" % (V_L16B, SRD_B, SRD_B+3, LSC)
            out.append((pre, t, "BO"))
    return out
class Feed:
    def __init__(self, k, items): self.k = k; self.q = list(items)
    def emit(self, n=1):
        while self.q and n > 0:
            pre, t, tag = self.q.pop(0)
            if pre: self.k(pre)
            self.k.vm(t, tag); n -= 1
    def drain(self): self.emit(10**6)
def emit1(k, f):
    if callable(f): f()
    elif isinstance(f, tuple): (k.lg if f[0] == "lg" else k.vm)(f[1], f[2])
    else: k(f)
def weave(k, mf, fill, per=2):
    fill = list(fill)
    for m in mf:
        k(m)
        for _ in range(per):
            if fill: emit1(k, fill.pop(0))
    for f in fill: emit1(k, f)

WSLOT = 24576; RW = 4; XBASE = RW*WSLOT; XSLOT = 16384; RX = 3

def gemm_setup(k):
    k("v_lshrrev_b32 v28, 3, v0")
    k("v_and_b32 v29, 7, v0")
    k("v_bfe_u32 v26, v28, 1, 1")
    k("s_lshl_b32 s%d, s%d, 1" % (S_T0, S_RH))
    k("v_or_b32 v26, s%d, v26" % S_T0)
    k("v_lshlrev_b32 v26, 1, v26")
    k("v_xor_b32 v26, v26, v29")
    k("s_lshl_b32 s%d, s%d, 3" % (S_T0, S_W))
    k("v_add_u32 v27, s%d, v28" % S_T0)
    k("v_mul_lo_u32 v27, v27, s%d" % S_STRIDE)
    k("v_lshl_add_u32 v%d, v26, 4, v27" % V_WD)
    k("s_lshl_b32 s%d, s%d, 5" % (S_T0, S_W))
    k("v_lshrrev_b32 v26, 1, v28")
    k("v_xor_b32 v27, v26, v29")
    k("v_add_u32 v26, s%d, v28" % S_T0)
    k("v_mul_u32_u24 v26, 1280, v26")
    k("v_lshl_add_u32 v%d, v27, 4, v26" % V_XD)
    k("v_xor_b32 v%d, 64, v%d" % (V_XD+1, V_XD))
    k("v_add_u32 v%d, %d, v%d" % (V_XD+1, 8*1280, V_XD+1))
    k("v_add_u32 v%d, %d, v%d" % (V_XD+2, 16*1280, V_XD))
    k("v_add_u32 v%d, %d, v%d" % (V_XD+3, 16*1280, V_XD+1))
    k("s_mul_i32 s%d, s%d, 6144" % (S_WL, S_W))
    k("s_lshl_b32 s%d, s%d, 12" % (S_XL, S_W))
    k("s_add_u32 s%d, s%d, %d" % (S_XL, S_XL, XBASE))
    k("s_mov_b32 s%d, 0" % S_WOFF)
    k("s_lshl_b32 s%d, s%d, 5" % (S_T3, S_STRIDE))

def touch_setup(k):
    k("v_lshrrev_b32 v26, 2, v0")
    k("v_and_b32 v27, 3, v0")
    k("s_lshl_b32 s%d, s%d, 1" % (S_T0, S_MT))
    k("s_add_u32 s%d, s%d, s%d" % (S_T0, S_T0, S_C))
    k("v_lshlrev_b32 v28, 5, v26")
    k("v_add_u32 v28, s%d, v28" % S_T0)
    k("v_mul_lo_u32 v28, v28, s%d" % S_STRIDE)
    k("v_min_u32 v29, 2, v27")
    k("v_lshl_add_u32 v%d, v29, 7, v28" % V_TW)
    k("s_lshl_b32 s%d, s%d, 4" % (S_T0, S_TY))
    k("s_lshl_b32 s%d, s%d, 2" % (S_T1, S_W))
    k("s_add_u32 s%d, s%d, s%d" % (S_T0, S_T0, S_T1))
    k("v_add_u32 v27, s%d, v27" % S_T0)
    k("v_mul_u32_u24 v27, 1280, v27")
    k("v_lshl_add_u32 v%d, v26, 7, v27" % V_TX)
    k("s_cmp_eq_u32 s%d, 0" % S_RH)
    for i in range(3): k("s_cselect_b32 s%d, s%d, s%d" % (SRD_T+i, SRD_W0+i, SRD_W1+i))
    k("s_mov_b32 s%d, 0x20000" % (SRD_T+3))
def masked(n, t):
    if n >= 16: return t
    return "s_bfm_b64 exec, %d, 0\n%s\ns_mov_b64 exec, -1" % (4*n, t)
def touch_items(stage):
    out = []
    for (st, first, n) in cfg.TW:
        if st == stage:
            out.append(("s_mul_i32 s101, s%d, %d" % (S_STRIDE, 32*first), masked(n, "buffer_load_dword v%d, v%d, s[%d:%d], s101 offen%s" % (V_JUNK, V_TW, SRD_T, SRD_T+3, " nt" if cfg.TNT else "")), "pf"))
    for (st, first, n) in cfg.TX:
        if st == stage:
            out.append((None, masked(n, "buffer_load_dword v%d, v%d, s[%d:%d], 0 offen offset:%d" % (V_JUNK, V_TX, SRD_X, SRD_X+3, first*128)), "pf"))
    return out

def gemm_setup2(k, att):
    npt = 5 if att else 6
    k("v_and_b32 v54, 15, v0")
    k("v_lshrrev_b32 v55, 4, v0")
    k("v_bfe_u32 v26, v54, 1, 3")
    k("v_xor_b32 v26, v26, v55")
    k("s_lshl_b32 s%d, s%d, 13" % (S_T0, S_RH))
    k("s_add_u32 s%d, s%d, %d" % (S_T0, S_T0, XBASE))
    k("v_lshlrev_b32 v27, 7, v54")
    k("v_add_u32 v27, s%d, v27" % S_T0)
    k("v_lshl_add_u32 v%d, v26, 4, v27" % V_XR)
    k("v_xor_b32 v%d, 64, v%d" % (V_XR+1, V_XR))
    k("v_bfe_u32 v26, v0, 2, 2")
    k("v_and_b32 v27, 3, v0")
    k("v_lshrrev_b32 v28, 1, v26")
    k("v_and_b32 v29, 1, v55")
    k("v_lshl_or_b32 v28, v29, 1, v28")
    k("v_lshlrev_b32 v28, 5, v28")
    k("v_mul_u32_u24 v29, 6144, v55")
    k("v_lshl_add_u32 v29, v26, 7, v29")
    if att:
        k("s_mul_i32 s%d, s%d, 160" % (S_T0, S_C))
        k("s_add_u32 s%d, s%d, s%d" % (S_T0, S_T0, S_DELTA))
        k("v_mul_u32_u24 v27, 40, v27")
    else:
        k("s_mul_i32 s%d, s%d, 192" % (S_T0, S_C))
        k("v_lshlrev_b32 v27, 3, v27")
    k("v_add_u32 v27, s%d, v27" % S_T0)
    for p in range(npt):
        k("v_add_u32 v30, %d, v27" % (p * (8 if att else 32)))
        k("v_lshrrev_b32 v31, 7, v30")
        k("v_and_b32 v30, 127, v30")
        k("v_xor_b32 v30, v30, v28")
        k("v_lshl_add_u32 v31, v31, 10, v29")
        k("v_add_u32 v%d, v30, v31" % (V_TA+p))
        k("v_add_u32 v%d, %d, v%d" % (V_TA+6+p, 2*WSLOT, V_TA+p))

def w_dma(s):
    return [("s_add_u32 m0, s%d, %d" % (S_WL, (s % RW)*WSLOT + (seg*3+lc)*1024 - lc*128),
             "buffer_load_dwordx4 v%d, s[%d:%d], s%d offen offset:%d lds" % (V_WD, SRD_W0+4*seg, SRD_W0+4*seg+3, S_WOFF, lc*128), ("W", s))
            for seg in range(2) for lc in range(3)]
def x_dma(u, i):
    return ("s_add_u32 m0, s%d, %d" % (S_XL, (u % RX)*XSLOT + i*1024 - u*128),
            "buffer_load_dwordx4 v%d, s[%d:%d], 0 offen offset:%d lds" % (V_XD+i, SRD_X, SRD_X+3, u*128), ("X", u))
def reads_for(s, npt):
    out = []; b = s & 1
    for rt in range(4):
        out.append("ds_read_b128 %s, v%d offset:%d" % (R(XF0 + (b*4+rt)*4, 4), V_XR + (s & 1), ((s >> 1) % RX)*XSLOT + rt*2048))
    slot = s % RW
    for p in range(npt):
        for seg in range(2):
            for h in range(2):
                out.append("ds_read_b64_tr_b16 %s, v%d offset:%d" % (R(WF0 + (b*12+p*2+seg)*4 + 2*h, 2), V_TA + p + (6 if slot >= 2 else 0), (slot & 1)*WSLOT + seg*3072 + h*512))
    return out
def acc(p, seg, rt): return ACC0 + ((p*2+seg)*4 + rt)*4

def late_setup_items():
    k = K()
    k("s_and_b32 s%d, s2, 7" % S_T1)
    k("s_lshr_b32 s%d, s2, 3" % S_OH)
    if cfg.P2M == 4:
        k("s_lshl_b32 s%d, s%d, 2" % (S_M64, S_T1)); k("s_and_b32 s%d, s%d, 3" % (S_T0, S_OH)); k("s_add_u32 s%d, s%d, s%d" % (S_M64, S_M64, S_T0))
        k("s_lshr_b32 s%d, s%d, 2" % (S_NT, S_OH))
    else:
        k("s_lshr_b32 s%d, s%d, 1" % (S_M64, S_T1)); k("s_lshl_b32 s%d, s%d, 3" % (S_M64, S_M64)); k("s_and_b32 s%d, s%d, 7" % (S_T0, S_OH)); k("s_add_u32 s%d, s%d, s%d" % (S_M64, S_M64, S_T0))
        k("s_and_b32 s%d, s%d, 1" % (S_NT, S_T1)); k("s_lshl_b32 s%d, s%d, 2" % (S_NT, S_NT)); k("s_lshr_b32 s%d, s%d, 3" % (S_T0, S_OH)); k("s_add_u32 s%d, s%d, s%d" % (S_NT, S_NT, S_T0))
    k("s_bfe_u32 s%d, s%d, 0x10001" % (S_T0, S_OH)); k("s_lshl_b32 s%d, s%d, 4" % (S_T0, S_T0))
    k("s_and_b32 s%d, s%d, 1" % (S_T2, S_OH)); k("s_lshl_b32 s%d, s%d, 1" % (S_OMT, S_T2))
    k("s_add_u32 s%d, s%d, s%d" % (S_OMT, S_OMT, S_T0)); k("s_add_u32 s%d, s%d, 12" % (S_OMT, S_OMT))
    k("s_lshl_b32 s%d, s%d, 4" % (S_T0, S_T2)); k("s_add_u32 s%d, s%d, %d" % (S_T0, S_T0, 12 - cfg.AUXU))
    k("s_cmp_lt_u32 s%d, 20" % S_OH); k("s_cselect_b32 s%d, s%d, s%d" % (S_OMT, S_T0, S_OMT))
    k("s_cmp_ge_u32 s%d, 9" % S_OH); k("s_cselect_b32 s%d, 9, 0" % S_T2); k("s_cselect_b32 s94, 16, 0")
    k("s_sub_u32 s%d, s%d, s%d" % (S_T2, S_OH, S_T2))
    k("s_min_u32 s%d, s%d, %d" % (S_T0, S_T2, 3 - cfg.AUXU)); k("s_add_u32 s%d, s%d, s%d" % (S_T0, S_T0, S_T2)); k("s_add_u32 s%d, s%d, s94" % (S_T0, S_T0))
    k("s_cmp_lt_u32 s%d, 18" % S_OH); k("s_cselect_b32 s%d, s%d, s%d" % (S_OMT, S_T0, S_OMT))
    k("s_lshr_b32 s%d, s%d, 4" % (S_OH, S_OMT)); k("s_and_b32 s%d, s%d, 15" % (S_OMT, S_OMT))
    k("s_lshl_b32 s%d, s%d, 1" % (S_T0, S_T1)); k("s_add_u32 s%d, s%d, s%d" % (S_OH, S_OH, S_T0))
    k("s_mul_i32 s%d, s%d, %d" % (S_T0, S_NT, 74*5120))
    srd(k, SRD_B, P_WS, B2_OFF, 74*5120, S_T0)
    k("s_mul_i32 s%d, s%d, 5120" % (S_BB, S_W))
    k("s_add_u32 s%d, s%d, 0x%x" % (S_CNT, P_WS, CNT_OFF))
    k("s_addc_u32 s%d, s%d, 0" % (S_CNT+1, P_WS+1))
    k("v_add_u32 v%d, 4096, v%d" % (V_L16B, V_L16))
    k("s_mov_b32 s%d, %s" % (S_C2, f32(LOG2E))); k("s_mov_b32 s%d, %s" % (S_C2+1, f32(LOG2E)))
    return [t for _, t in k.items]

def dma_queue():
    Q = []
    for st in range(20):
        if st % 2 == 0:
            u = st // 2
            for i in range(4): Q.append((-1 if u < RX else 2*(u-RX)+1, x_dma(u, i), False))
        it = w_dma(st)
        for i, d in enumerate(it): Q.append((-1 if st < RW else max(1, st-RW), d, i == len(it)-1))
    return Q
def wadv(k): k("s_add_u32 s%d, s%d, s%d" % (S_WOFF, S_WOFF, S_T3))
def issue_now(k, Q, n):
    for _ in range(n):
        av, it, last = Q.pop(0)
        k(it[0]); k.vm(it[1], it[2])
        if last: wadv(k)

def btouch(first_ks, n):
    out = []
    for i in range(n):
        pre = "s_and_b32 s101, s%d, 3\ns_lshl_b32 s101, s101, 2\ns_add_u32 s101, s101, s%d\ns_lshl_b32 s101, s101, 13\ns_add_u32 s101, s101, %d\nv_lshlrev_b32 v24, 7, v0" % (S_M64, S_W, first_ks*5120 + i*131072)
        out.append((pre, "buffer_load_dword v25, v24, s[%d:%d], s101 offen%s" % (SRD_B, SRD_B+3, SC), "pf"))
    return out
def spread(items, s0, s1):
    out = {}; n = len(items); i = 0
    for s in range(s0, s1):
        c = -(-(n - i) // (s1 - s)); out[s] = items[i:i+c]; i += c
    return out

def capture(fn):
    q = K(); q.nl = 100000 + capture.n; capture.n += 100
    fn(q)
    assert not q.vmq and not q.lgq
    return q.items
capture.n = 0

def gemm_main(k, att, Q, extra, polls, xrd=None, xwait=None, xsetup=None):
    npt = 5 if att else 6
    Q = list(Q)
    astamp(k, 4)
    gemm_setup2(k, att)
    astamp(k, 5)
    issue_now(k, Q, cfg.N2)
    side = []
    for t in late_setup_items():
        if side and (t.startswith(("s_addc", "s_cselect", "v_cndmask")) ): side[-1] += "\n" + t
        else: side.append(t)
    blocks = []
    if xsetup:
        its = capture(xsetup)
        if any(kd == "l" for kd, _ in its): blocks = its
        else:
            for _, t in its:
                if side and t.startswith(("s_addc", "s_cselect", "v_cndmask")): side[-1] += "\n" + t
                else: side.append(t)
    rds = lambda s: reads_for(s, npt)
    stamp(k, 2)
    astamp(k, 6)
    k.wait(vm=[("X", 0), ("W", 0)])
    k("s_barrier")
    astamp(k, 7)
    aflush(k)
    stamp(k, 3)
    r0 = rds(0)
    for i, r in enumerate(r0): k.lg(r, ("r0", max(0, i-4)//2))
    astamp(k, 8)
    for s in range(20):
        b = s & 1
        rd = rds(s+1) if s < 19 else []
        if xrd and s in xrd: rd += xrd[s]
        dm = []
        while Q and Q[0][0] <= s and len(dm) < (cfg.MAXD0 if s == 0 else cfg.MAXD): dm.append(Q.pop(0))
        ex = [(0, e, False) for e in extra.get(s, [])]
        mix = []
        while dm or ex:
            if dm: mix.append(dm.pop(0))
            if ex and len(ex) >= len(dm): mix.append(ex.pop(0))
        dm = mix + [(0, e, False) for e in touch_items(s)]
        mf = []
        idx = [(p, seg, rt) for p in range(npt) for seg in range(2) for rt in range(4)]
        if cfg.LORD == 1 and s: idx = [(p, seg, rt) for rt in range(4) for p in range(npt) for seg in range(2)]
        if cfg.LORD == 2 and s: idx = [(p, seg, (rt if (p*2+seg) % 2 == 0 else 3-rt)) for p in range(npt) for seg in range(2) for rt in range(4)]
        for p, seg, rt in idx:
            a = acc(p, seg, rt)
            mf.append("v_mfma_f32_16x16x32_bf16 %s, %s, %s, %s" % (R(a,4), R(WF0 + (b*12+p*2+seg)*4, 4), R(XF0 + (b*4+rt)*4, 4), R(a,4) if s else "0"))
        nm = len(mf); nd = len(dm)
        at = [int(i * (nm - 3) / max(nd, 1)) for i in range(nd)]
        for i in range(1, nd): at[i] = max(at[i], at[i-1] + 2)
        pend = None
        m1 = nm - 4 - (len(rd) + 1)//2 if s == 0 else 0
        for m, t in enumerate(mf):
            if s == 0 and m % 4 == 0 and not cfg.AST: k.wait(lg=("r0", m//4))
            if s == 0 and m == 0 and cfg.AST: k.wait(lg="all")
            if s == 0 and m == m1:
                k.wait(vm=("W", 1), lg="all"); k("s_barrier")
            k(t)
            used = 0
            if m >= m1 and not (cfg.RSP and s and len(rd) <= (nm - 6 - m) * 2 // 3 + 0 and m % 3 == 2):
                for _ in range(2 if s == 0 else 1):
                    if rd: k.lg(rd.pop(0)); used += 1
            if (s+1) in polls and m == nm - 1: poll_issue(k, P_DBG, polls[s+1], ("poll", s+1))
            if pend is not None:
                k.vm(pend[1][1], pend[1][2]); used += 1
                if pend[2]: wadv(k)
                pend = None
            elif dm and m >= at[nd - len(dm)]:
                pend = dm.pop(0)
                if pend[1][0]: k(pend[1][0]); used += 1
            while side and used < 2 and s >= 1:
                k(side.pop(0)); used += 1
        assert not rd and not dm and pend is None, (s, rd, dm, pend)
        if s == cfg.BLK and blocks:
            assert not side
            k.items += blocks
        if s < 19:
            k.wait(vm=[("W", s+2), ("X", (s+2) >> 1)] + (xwait.get(s, []) if xwait else []), lg="all")
        if s in polls: poll_check(k, P_DBG, 16, ("poll", s), sleep=8, barrier=(s == 19))
        if s < 19:
            k("s_barrier")
            if s == 0: aflush(k)
            if s < 4: astamp(k, 11 + s)
            if s == 4: aflush(k)
            if cfg.STG and s % 2 == 1: stamp(k, 17 + s//2)
    assert not Q and not side
    stamp(k, 4)

def ffn_setup(k):
    k("s_lshl_b32 s75, s%d, 1" % S_MT)
    k("s_add_u32 s75, s75, s%d" % S_RH)
    k("s_mul_i32 s75, s75, 74")
    k("s_mul_i32 s76, s%d, 6" % S_TY)
    k("s_add_u32 s75, s75, s76")
    k("s_mul_i32 s76, s%d, 3" % S_C)
    k("s_add_u32 s75, s75, s76")
    k("s_add_u32 s75, s75, 20")
    k("s_lshl_b32 s75, s75, 12")
    k("s_mul_i32 s%d, s%d, %d" % (S_SIG, S_MT, cfg.CS))
    srd(k, SRD_O, P_WS, A2_OFF, A2_SZ)

def ffn_role(k, Q):
    extra = spread(b_items(list(range(32)) + list(range(62, 70))), cfg.PS1, cfg.PE1)
    bo = bo_items()
    for g in range(cfg.BOL):
        st = max(16 + g, 20 - cfg.BOL + g, cfg.BOS)
        extra[st] = extra.get(st, []) + bo[5*g:5*g+5]
    polls = {cfg.PS1-1: D_S1, (max(20 - cfg.BOL, cfg.BOS) - 1 if cfg.BOL else 19): D_S3}
    if cfg.BT: extra[cfg.BT] = btouch(44, 1) + extra.get(cfg.BT, [])
    if cfg.BT2:
        polls = {cfg.PS1-1: D_S1, cfg.BT2-1: D_S3}
        extra[cfg.BT2] = btouch(0, 1) + extra.get(cfg.BT2, [])
    gemm_main(k, False, Q, extra, polls, xsetup=ffn_setup)
    fd = Feed(k, b_items(range(32, 62)) + bo[5*cfg.BOL:])
    per, last = cfg.FFE
    n = 0
    for ks in range(3):
        for rt in range(4):
            T = 6 + (n & 1)*8; O = 22 + (n & 1)*4; n += 1
            if O & 3: O = (24, 28)[(n-1) & 1] - 0
            fe = lambda i: fd.emit(1) if (n <= last and i < per) else None
            G = [acc(2*ks+j, 0, rt) for j in range(2)]; U = [acc(2*ks+j, 1, rt) for j in range(2)]
            O = U[0]
            prs = [(j, h) for j in range(2) for h in range(2)]
            for i, (j, h) in enumerate(prs):
                k("v_pk_mul_f32 %s, %s, s[%d:%d] neg_lo:[0,1] neg_hi:[0,1]" % (vr(T+2*i,2), vr(G[j]+2*h,2), S_C2, S_C2+1))
            fe(0)
            for i in range(8): k("v_exp_f32 v%d, v%d" % (T+i, T+i))
            fe(2)
            for i, (j, h) in enumerate(prs):
                k("v_pk_mul_f32 %s, %s, %s" % (vr(G[j]+2*h,2), vr(G[j]+2*h,2), vr(U[j]+2*h,2)))
            for i in range(4): k("v_pk_add_f32 %s, %s, 1.0 op_sel_hi:[1,0]" % (vr(T+2*i,2), vr(T+2*i,2)))
            fe(1)
            for i in range(8): k("v_rcp_f32 v%d, v%d" % (T+i, T+i))
            fe(3)
            for i, (j, h) in enumerate(prs):
                k("v_pk_mul_f32 %s, %s, %s" % (vr(T+2*i,2), vr(G[j]+2*h,2), vr(T+2*i,2)))
            for i in range(4): k("v_cvt_pk_bf16_f32 v%d, v%d, v%d" % (O+i, T+2*i, T+2*i+1))
            k.vm("buffer_store_dwordx4 %s, v%d, s[%d:%d], s75 offen offset:%d%s" % (vr(O,4), V_L16, SRD_O, SRD_O+3, rt*1024, SC), "st")
        if ks < 2: k("s_add_u32 s75, s75, 4096")
    stamp(k, 26)
    def presig():
        k.wait(vm="st")
        stamp(k, 5)
        signal(k, S_CNT, "s%d" % S_SIG, 14, 15)
    return presig, fd.q

def phi_dma(seg):
    pre = "s_add_u32 s%d, s%d, s81\ns_addc_u32 s%d, s%d, 0\n" % (SRD_P, SRD_P, SRD_P+1, SRD_P+1) if seg else ""
    return [((pre if i == 0 else "") + "s_add_u32 m0, s%d, %d" % (S_XL, XSLOT if seg else SPARE - XBASE),
             "buffer_load_dwordx4 v%d, s[%d:%d], 0 offen offset:%d lds" % (V_L16, SRD_P, SRD_P+3, i*1024), ("P", seg)) for i in range(4)]
def phireg(seg, to, s):
    i = s*5 + to
    if seg == 1: return 256 + 48 + 4*i if i < 10 else 256 + 108 + 4*(i-10)
    return 256 + 4*i if i < 12 else 256 + 96 + 4*(i-12)
V_PHA = 23
def phi_reads(seg):
    out = []
    for s in range(3):
        for to in range(5):
            for h in range(2):
                d = phireg(seg, to, s) + 2*h
                b = 0 if seg else SPARE - XBASE - XSLOT
                if s == 2 and h == 1: out.append("ds_read_b64_tr_b16 %s, v26 offset:%d" % (R(d,2), b))
                else: out.append("ds_read_b64_tr_b16 %s, v%d offset:%d" % (R(d,2), V_PHA, b + (8*s+4*h)*40 + 8*to))
    return out
def cvt_in(seg, rt, B):
    out = []
    for t in range(5):
        a = acc(t, seg, rt)
        out.append("v_cvt_pk_bf16_f32 v%d, v%d, v%d" % (B+2*t, a, a+1))
        out.append("v_cvt_pk_bf16_f32 v%d, v%d, v%d" % (B+2*t+1, a+2, a+3))
    return out
def phi_mf(seg, rt, B):
    return ["v_mfma_f32_16x16x32_bf16 %s, %s, %s, %s" % (vr(acc(to,seg,rt),4), R(phireg(seg, to, s),4), vr(B+4*s,4), vr(acc(to,seg,rt),4) if s else "0")
            for s in range(3) for to in range(5)]

PKRS = 352; VRS = 224; PKSZ = 128*PKRS; VB = 2*PKSZ; VSZ = 128*VRS
V_E0, V_E1, V_E2, V_E3, V_E4, V_E5, V_E6 = 27, 28, 29, 30, 60, 61, 62
def att_common_setup(k):
    k("v_lshrrev_b32 v50, 4, v0")
    k("v_and_b32 v51, 15, v0")
    k("v_bfe_u32 v52, v0, 2, 2")
    k("v_and_b32 v53, 3, v0")
    k("v_mul_u32_u24 v48, 800, v50")
    k("v_mad_u32_u24 v48, v52, 40, v48")
    k("v_cmp_eq_u32 vcc, v50, v53")
    k("v_mov_b32 v49, 3200")
    k("v_cndmask_b32 v48, v49, v48, vcc")
    k("s_add_u32 s%d, s%d, %d" % (S_T2, S_XL, XSLOT))
    k("v_add_u32 v%d, s%d, v48" % (V_PHA, S_T2))
    k("v_add_u32 v26, s%d, v49" % S_T2)
def kv_setup(k):
    k("s_add_u32 s%d, s%d, %d" % (S_SIG, S_TY, C_K - 9))
    k("s_mul_i32 s%d, s%d, %d" % (S_SIG, S_SIG, cfg.CS))
    k("s_lshl_b32 s%d, s%d, 6" % (S_T0, S_RH))
    k("v_add_u32 v48, s%d, v51" % S_T0)
    k("s_mul_i32 s%d, s%d, %d" % (S_T0, S_C, PKSZ))
    k("v_mul_u32_u24 v%d, %d, v48" % (V_E0, PKRS))
    k("v_mul_u32_u24 v49, 80, v50")
    k("v_add3_u32 v%d, v%d, v49, s%d" % (V_E0, V_E0, S_T0))
    k("s_mul_i32 s%d, s%d, %d" % (S_T1, S_C, VSZ))
    k("s_add_u32 s%d, s%d, %d" % (S_T1, S_T1, VB))
    k("v_mul_u32_u24 v%d, %d, v48" % (V_E1, VRS))
    k("v_mul_u32_u24 v49, 48, v50")
    k("v_add3_u32 v%d, v%d, v49, s%d" % (V_E1, V_E1, S_T1))
    k("v_lshrrev_b32 v48, 2, v0")
    k("v_lshlrev_b32 v49, 3, v53")
    k("s_mul_i32 s%d, s%d, 160" % (S_T2, S_RH))
    k("s_add_u32 s%d, s%d, s%d" % (S_T0, S_T0, S_T2))
    k("v_mul_u32_u24 v%d, %d, v48" % (V_E2, PKRS))
    k("v_add3_u32 v%d, v%d, v49, s%d" % (V_E2, V_E2, S_T0))
    k("s_mul_i32 s%d, s%d, 96" % (S_T2, S_RH))
    k("s_add_u32 s%d, s%d, s%d" % (S_T1, S_T1, S_T2))
    k("v_mul_u32_u24 v%d, %d, v48" % (V_E3, VRS))
    k("v_add3_u32 v%d, v%d, v49, s%d" % (V_E3, V_E3, S_T1))
    k("s_add_u32 s%d, s%d, %d" % (S_T2, S_XL, SPARE - XBASE))
    k("v_mul_u32_u24 v48, 80, v51")
    k("v_lshl_add_u32 v48, v50, 3, v48")
    k("v_add_u32 v%d, s%d, v48" % (V_E5, S_T2))
    k("v_add_u32 v%d, s%d, v%d" % (V_E6, S_T2, V_L16))
    k("v_mov_b32 v48, 0x7fffffff")
    k("v_cmp_gt_u32 vcc, 32, v0")
    k("v_cndmask_b32 v%d, v48, v%d, vcc" % (V_E4, V_L16))
    k("s_lshl_b32 s78, s79, 1")
    k("s_add_u32 s78, s78, s%d" % S_RH)
    k("s_lshl_b32 s78, s78, 4")
    k("s_add_u32 s78, s78, s%d" % S_MT)
    k("s_mul_i32 s78, s78, %d" % KVPS)
    k("v_cmp_gt_u32 s[72:73], 2, v50")
    k("v_cmp_gt_u32 s[74:75], 5, v51")
    k("s_and_b64 s[76:77], s[72:73], s[74:75]")
    srd(k, SRD_O, P_WS, KVP_OFF, KVP_SZ)
    for r in (42, 43, 54, 55): k("v_mov_b32 v%d, 0" % r)
def q_setup(k):
    k("s_mov_b32 s%d, 81920" % S_T0)
    k("v_mul_lo_u32 v48, v50, s%d" % S_T0)
    k("v_lshl_add_u32 v%d, v51, 4, v48" % V_E0)
    k("v_lshl_add_u32 v%d, v51, 3, v48" % V_E1)
    k("v_lshlrev_b32 v%d, 2, v0" % V_E2)
    k("s_mul_i32 s%d, s79, %d" % (S_T1, 4*81920))
    k("s_lshl_b32 s%d, s%d, 1" % (S_T0, S_MT))
    k("s_add_u32 s%d, s%d, s%d" % (S_T0, S_T0, S_RH))
    k("s_lshl_b32 s75, s%d, 10" % S_T0)
    k("s_add_u32 s75, s75, s%d" % S_T1)
    k("s_add_u32 s76, s75, 32768")
    k("s_lshl_b32 s77, s%d, 9" % S_T0)
    k("s_add_u32 s77, s77, s%d" % S_T1)
    k("s_add_u32 s77, s77, 65536")
    k("s_lshl_b32 s78, s%d, 8" % S_T0)
    k("s_add_u32 s78, s78, %d" % (G_OFF - PQ_OFF))
    k("s_add_u32 s%d, s%d, %d" % (S_SIG, S_MT, C_Q))
    k("s_mul_i32 s%d, s%d, %d" % (S_SIG, S_SIG, cfg.CS))
    srd(k, SRD_O, P_WS, PQ_OFF, G_OFF + G_SZ - PQ_OFF)
    for r in (42, 43, 54, 55): k("v_mov_b32 v%d, 0" % r)

def softmax_pm(k, P, E, T, O, fd=None, mf=None, side=None):
    def fe(n=1):
        if fd: fd.emit(n)
    mf = list(mf or []); side = list(side or [])
    v = [p + i for p in P for i in range(2)]
    k("v_max3_f32 v%d, v%d, v%d, v%d" % (T, v[0], v[1], v[2]))
    k("v_min3_f32 v%d, v%d, v%d, v%d" % (T+2, v[0], v[1], v[2]))
    k("v_max3_f32 v%d, v%d, v%d, v%d" % (T+1, v[3], v[4], v[5]))
    k("v_min3_f32 v%d, v%d, v%d, v%d" % (T+3, v[3], v[4], v[5]))
    for n, i in enumerate(range(6, 20, 2)):
        c = n & 1
        k("v_max3_f32 v%d, v%d, v%d, v%d" % (T+c, T+c, v[i], v[i+1]))
        k("v_min3_f32 v%d, v%d, v%d, v%d" % (T+2+c, T+2+c, v[i], v[i+1]))
    fe()
    k("v_max_f32 v%d, v%d, v%d" % (T, T, T+1))
    k("v_min_f32 v%d, v%d, v%d" % (T+2, T+2, T+3))
    k("v_mul_f32 v%d, %s, v%d" % (T, f32(-LOG2E), T))
    k("v_mul_f32 v%d, %s, v%d" % (T+2, f32(LOG2E), T+2))
    for i, p in enumerate(P):
        k("v_pk_fma_f32 %s, %s, s[%d:%d], %s op_sel_hi:[1,1,0]" % (vr(E+2*i,2), vr(p,2), S_C2, S_C2+1, vr(T,2)))
    fe()
    for i, p in enumerate(P):
        k("v_pk_fma_f32 %s, %s, s[%d:%d], %s op_sel_hi:[1,1,0] neg_lo:[0,1,0] neg_hi:[0,1,0]" % (vr(p,2), vr(p,2), S_C2, S_C2+1, vr(T+2,2)))
    ex = [E+i for i in range(20)] + v
    for i, x in enumerate(ex):
        if i % 2 == 0:
            if mf: k(mf.pop(0))
            if side: k.lg(*side.pop(0))
        if i % 12 == 5: fe()
        k("v_exp_f32 v%d, v%d" % (x, x))
    assert not mf and not side
    Ep = [E+2*i for i in range(10)]
    k("v_pk_add_f32 %s, %s, %s" % (vr(T+4,2), vr(Ep[0],2), vr(Ep[1],2)))
    k("v_pk_add_f32 %s, %s, %s" % (vr(T,2), vr(Ep[2],2), vr(Ep[3],2)))
    k("v_pk_add_f32 %s, %s, %s" % (vr(T+6,2), vr(P[0],2), vr(P[1],2)))
    k("v_pk_add_f32 %s, %s, %s" % (vr(T+2,2), vr(P[2],2), vr(P[3],2)))
    for i in range(4, 10, 2):
        k("v_pk_add_f32 %s, %s, %s" % (vr(T+4,2), vr(T+4,2), vr(Ep[i],2)))
        k("v_pk_add_f32 %s, %s, %s" % (vr(T,2), vr(T,2), vr(Ep[i+1],2)))
        k("v_pk_add_f32 %s, %s, %s" % (vr(T+6,2), vr(T+6,2), vr(P[i],2)))
        k("v_pk_add_f32 %s, %s, %s" % (vr(T+2,2), vr(T+2,2), vr(P[i+1],2)))
    k("v_pk_add_f32 %s, %s, %s" % (vr(T+4,2), vr(T+4,2), vr(T,2)))
    k("v_pk_add_f32 %s, %s, %s" % (vr(T+6,2), vr(T+6,2), vr(T+2,2)))
    fe()
    k("v_add_f32 v%d, v%d, v%d" % (T+4, T+4, T+5))
    k("v_add_f32 v%d, v%d, v%d" % (T+6, T+6, T+7))
    k("v_rcp_f32 v%d, v%d" % (T+4, T+4))
    k("v_rcp_f32 v%d, v%d" % (T+6, T+6))
    for i in range(10): k("v_pk_mul_f32 %s, %s, %s op_sel_hi:[1,0]" % (vr(Ep[i],2), vr(Ep[i],2), vr(T+4,2)))
    fe()
    for i in range(10): k("v_pk_mul_f32 %s, %s, %s op_sel_hi:[1,0]" % (vr(P[i],2), vr(P[i],2), vr(T+6,2)))
    for i in range(10): k("v_cvt_pk_bf16_f32 v%d, v%d, v%d" % (O+i, Ep[i], Ep[i]+1))
    fe()
    for i in range(10): k("v_cvt_pk_bf16_f32 v%d, v%d, v%d" % (O+10+i, P[i], P[i]+1))

def att_extra(two):
    extra = spread(b_items(range(cfg.NBA)), cfg.PSA, 20)
    if cfg.BT: extra[cfg.BT] = btouch(44, 1) + extra.get(cfg.BT, [])
    extra[cfg.PHS] = phi_dma(0)
    extra[15] = phi_dma(1) + extra.get(15, [])
    return extra

def att_setup(k):
    d = k.newlabel("Lq"); e = k.newlabel("Le")
    att_common_setup(k)
    k("v_mov_b32 v%d, 0x7fffffff" % V_E4)
    k("s_cmp_ge_u32 s%d, 13" % S_TY); k("s_cbranch_scc1 %s" % d)
    kv_setup(k)
    k("s_branch %s" % e)
    k.label(d)
    q_setup(k)
    k.label(e)
def att_loop(k, Q):
    gemm_main(k, True, Q, att_extra(True), {cfg.PSA-1: D_S1}, xrd={19: phi_reads(0)}, xwait={18: [("P", 0)]}, xsetup=att_setup)

def q_role(k):
    k("s_nop 7")
    k.wait(vm=("P", 1))
    for t in cvt_in(0, 0, 32): k(t)
    rd1 = [("lg", r, "ph1") for r in phi_reads(1)]
    def outs(u):
        seg, rt = u >> 2, u & 3
        O = (240, 8)[u & 1]
        f = cvt_in(seg, rt, O)
        f.insert(4, ("vm", "buffer_store_dwordx4 %s, v%d, s[%d:%d], s75 offen offset:%d%s" % (vr(O,4), V_E0, SRD_O, SRD_O+3, rt*256, SC), "st"))
        f.insert(9, ("vm", "buffer_store_dwordx4 %s, v%d, s[%d:%d], s76 offen offset:%d%s" % (vr(O+4,4), V_E0, SRD_O, SRD_O+3, rt*256, SC), "st"))
        f.append(("vm", "buffer_store_dwordx2 %s, v%d, s[%d:%d], s77 offen offset:%d%s" % (vr(O+8,2), V_E1, SRD_O, SRD_O+3, rt*128, SC), "st"))
        if u == 3: f += ["s_add_u32 s%d, s%d, %d" % (x, x, 16*81920) for x in (75, 76, 77)]
        return f
    k.wait(lg="all")
    for u in range(8):
        seg, rt = u >> 2, u & 3
        fill = []
        if u < 7: fill += cvt_in((u+1) >> 2, (u+1) & 3, 32 + ((u+1) & 1)*12)
        if u == 0: fill += rd1[:14]
        elif u == 1: fill += outs(0) + rd1[14:21]
        elif u == 2: fill += outs(1) + rd1[21:28]
        elif u == 3: fill += rd1[28:] + outs(2)
        else: fill += outs(u-1)
        if u == 4: k.wait(lg="all")
        weave(k, phi_mf(seg, rt, 32 + (u & 1)*12), fill)
    weave(k, [], outs(7))
    k.wait(vm="st")
    stamp(k, 5)
    signal(k, S_CNT, "s%d" % S_SIG)

def kv_role(k):
    EREG = 6; TREG = 244; O = 224
    for t in cvt_in(0, 0, 32): k(t)
    k.wait(lg="all")
    weave(k, phi_mf(0, 0, 32), cvt_in(0, 1, 44))
    if not cfg.STG: stamp(k, 17)
    def vout(rt):
        q = [acc(t, 1, rt) + i for t in range(5) for i in range(4)]
        f = ["v_cvt_pk_bf16_f32 v%d, v%d, v%d" % (q[i], q[2*i], q[2*i+1]) for i in range(10)]
        f += ["v_mov_b32 v%d, 0x3f80" % q[10], "v_mov_b32 v%d, 0" % q[11]]
        w = [("ds_write_b128 v%d, %s offset:%d" % (V_E1, vr(q[4*i],4), rt*16*VRS + 16*i), "vw") for i in range(3)]
        return f, w
    def vfr(n, bt): return acc((n*2+bt) >> 2, 1, (n*2+bt) & 3)
    vreads = []
    for n in range(8):
        j, ks = n >> 2, n & 3
        for bt in range(2):
            for h in range(2):
                vreads.append(("ds_read_b64_tr_b16 %s, v%d offset:%d" % (vr(vfr(n,bt)+2*h,2), V_E3, (32*ks+16*h)*VRS + j*48 + bt*32), "vf"))
    fd = Feed(k, [])
    for rt in range(4):
        P = [acc(t, 0, rt) + 2*h for t in range(5) for h in range(2)]
        mf = phi_mf(0, rt+1, 32 + ((rt+1) & 1)*12) if rt < 3 else []
        if rt == 3: poll_issue(k, P_DBG, D_S3, "s3")
        if rt == cfg.KVB0 and cfg.KVN >= 47: fd.q += b_items(range(32, 47))
        if rt == 3 and cfg.KVN >= 62: fd.q += b_items(range(47, 62))
        side = []
        if rt < 2:
            for r in (2*rt, 2*rt+1):
                f, w = vout(r)
                for t in f: k(t)
                side += w
        else:
            if rt == 2: k.wait(lg="vw"); k("s_barrier")
            side = vreads[(rt-2)*16:(rt-1)*16]
        softmax_pm(k, P, EREG, TREG, O, fd, mf, side)
        for i in range(5):
            k.lg("ds_write_b128 v%d, %s offset:%d" % (V_E0, vr(O+4*i,4), rt*16*PKRS + 16*i), ("pw", rt))
        if rt < 2:
            for t in cvt_in(0, rt+2, 32 + (rt & 1)*12): k(t)
        if not cfg.STG: stamp(k, 18+rt)
    k.wait(lg="all")
    k("s_barrier")
    if not cfg.STG: stamp(k, 22)
    KAQ = [32, 36, 40, 44, 48, 52, 224, 228, 232, 236, 240, 244]
    def pfr(n, ft): return acc(((n % 6)*3+ft) >> 2, 0, ((n % 6)*3+ft) & 3)
    def rd(n):
        j, ks = n >> 2, n & 3
        return [("lg", "ds_read_b64_tr_b16 %s, v%d offset:%d" % (vr(pfr(n,ft)+2*h,2), V_E2, (32*ks+16*h)*PKRS + j*80 + ft*32), ("f", n)) for ft in range(3) for h in range(2)]
    def pack(jj):
        f = []
        for ft in range(3):
            for bt in range(2):
                a = KAQ[(jj*3+ft)*2+bt]
                f += ["v_cvt_pk_bf16_f32 v%d, v%d, v%d" % (a, a, a+1), "v_cvt_pk_bf16_f32 v%d, v%d, v%d" % (a+1, a+2, a+3)]
                mask = [[None, "s[74:75]"], [None, "s[74:75]"], ["s[72:73]", "s[76:77]"]][ft][bt]
                w = "ds_write_b64 v%d, %s offset:%d" % (V_E5, vr(a,2), jj*1680 + bt*1280 + ft*32)
                if mask: w = "s_mov_b64 exec, %s\n%s\ns_mov_b64 exec, -1" % (mask, w)
                f.append(("lg", w, "cw"))
        return f
    weave(k, [], rd(0) + rd(1))
    pk0 = pack(0)
    for n in range(8):
        j, ks = n >> 2, n & 3
        k.wait(lg=("f", n))
        mf = []
        for ft in range(3):
            for bt in range(2):
                a = KAQ[(j*3+ft)*2+bt]
                mf.append("v_mfma_f32_16x16x32_bf16 %s, %s, %s, %s" % (vr(a,4), vr(pfr(n,ft),4), vr(vfr(n,bt),4), vr(a,4) if ks else "0"))
        fill = rd(n+2) if n < 6 else []
        if n < 4: fill.append(lambda: fd.emit(1))
        if n >= 5: fill += pk0[(n-5)*6:(n-4)*6]
        weave(k, mf, fill)
    weave(k, [], pack(1))
    k.wait(lg="all")
    for i in range(4): k.lg("ds_read_b128 %s, v%d offset:%d" % (vr(64+4*i,4), V_E6, i*1024), ("cr", i))
    for i in range(4):
        k.wait(lg=("cr", i))
        k.vm("buffer_store_dwordx4 %s, v%d, s[%d:%d], s78 offen offset:%d%s" % (vr(64+4*i,4), V_L16 if i < 3 else V_E4, SRD_O, SRD_O+3, i*1024, SC), "st")
    stamp(k, 26)
    poll_check(k, P_DBG, 16, "s3", sleep=8, barrier=False)
    stamp(k, 5)
    fd.drain()

def aux_role(k):
    NSL = 9
    order = [("d", i) for i in range(9)] + [("o", i) for i in range(4)]
    NU = len(order)
    k("s_mov_b32 s%d, 1280" % S_STRIDE)
    k("s_lshl_b32 s75, s%d, 2" % S_MT)
    k("s_add_u32 s75, s75, s%d" % S_W)
    k("s_mul_i32 s76, s75, 205"); k("s_lshr_b32 s76, s76, 11")
    k("s_mul_i32 s77, s76, 10"); k("s_sub_u32 s77, s75, s77")
    k("s_cmp_ge_u32 s76, 6")
    k("s_cselect_b32 s78, 0x4000000, 0")
    k("s_mul_i32 s79, s76, %d" % (32*1280))
    k("s_lshl_b32 s80, s77, 7")
    k("s_add_u32 s79, s79, s80")
    k("s_add_u32 s79, s79, s78")
    k("v_lshrrev_b32 v24, 3, v0"); k("v_and_b32 v25, 7, v0")
    k("v_and_b32 v26, 6, v24")
    k("v_xor_b32 v26, v26, v25")
    k("v_lshlrev_b32 v26, 4, v26")
    k("v_mad_u32_u24 v5, v24, s%d, v26" % S_STRIDE)
    for i in range(1, 4): k("v_add_u32 v%d, %d, v5" % (5+i, i*8*1280))
    k("s_mul_i32 s%d, s%d, %d" % (S_WL, S_W, NSL*4096))
    k("s_waitcnt lgkmcnt(0)")
    srd(k, SRD_W1, P_WD, 0, 1728*1280)
    def load(n):
        kind, i = order[n]
        sg, vb = (SRD_W1, 5) if kind == "d" else (SRD_W0, 12)
        k("s_add_u32 s81, s79, %d" % (i*6*32*1280))
        for j in range(4):
            k("s_add_u32 m0, s%d, %d" % (S_WL, (n % NSL)*4096 + j*1024))
            k.vm("buffer_load_dwordx4 v%d, s[%d:%d], s81 offen%s lds" % (vb+j, sg, sg+3, " nt" if cfg.AUXNT else ""), ("u", n))
    D = cfg.AUXD
    for n in range(D): load(n)
    srd(k, SRD_W0, P_WO, 0, 640*1280)
    k("v_lshrrev_b32 v27, 2, v24"); k("v_and_b32 v28, 3, v24")
    k("v_lshl_add_u32 v27, v27, 3, v28")
    k("v_mad_u32_u24 v12, v27, s%d, v26" % S_STRIDE)
    for i in range(1, 4): k("v_add_u32 v%d, %d, v12" % (12+i, (16*(i&1) + 4*(i>>1))*1280))
    srd(k, SRD_O, P_WS, B2_OFF, B2_SZ)
    for t in late_setup_items(): k(t)
    k("s_cmp_eq_u32 s%d, 0" % S_MT)
    k("s_cselect_b32 s%d, %d, 0" % (S_T0, 96*cfg.CS))
    srd(k, 96, P_WS, CNT_OFF, "s%d" % S_T0)
    for i in range(4): k("v_mov_b32 v%d, 0" % (56+i))
    k("s_mul_i32 s%d, s%d, %d" % (S_T0, S_W, 24*cfg.CS))
    k("v_mul_u32_u24 v60, %d, v24" % cfg.CS); k("v_lshl_add_u32 v60, v25, 4, v60")
    for i in range(3):
        k.vm("buffer_store_dwordx4 v[56:59], v60, s[96:99], s%d offen%s" % (S_T0, SC), ("st", 0))
        k("s_add_u32 s%d, s%d, %d" % (S_T0, S_T0, 8*cfg.CS))
    srd(k, 96, P_WS, KVP_OFF, KVF_OFF + 16*4096 - KVP_OFF)
    for i in range(4): k("v_mov_b32 v%d, -1" % (52+i))
    k("s_mul_i32 s%d, s%d, %d" % (S_T0, S_OH, 16*KVPS)); k("s_mul_i32 s%d, s%d, %d" % (S_T1, S_W, 4*KVPS)); k("s_add_u32 s%d, s%d, s%d" % (S_T0, S_T0, S_T1))
    fill = []
    for i in range(14):
        fill.append(("s_add_u32 s%d, s%d, %d" % (S_T1, S_T0, (i//4)*4096) if i % 4 == 0 else None,
                     "buffer_store_dwordx4 v[52:55], v%d, s[96:99], s%d offen offset:%d%s" % (V_L16, S_T1, (i % 4)*1024, SC), ("st", 0)))
    Feed(k, fill).drain()
    k("s_lshl_b32 s%d, s%d, 2" % (S_T0, S_OH)); k("s_add_u32 s%d, s%d, s%d" % (S_T0, S_T0, S_W)); k("s_lshl_b32 s%d, s%d, 10" % (S_T0, S_T0))
    k("s_add_u32 s%d, s%d, %d" % (S_T0, S_T0, KVF_OFF - KVP_OFF))
    k.vm("buffer_store_dwordx4 v[52:55], v%d, s[96:99], s%d offen%s" % (V_L16, S_T0, SC), ("st", 0))
    k("v_lshrrev_b32 v24, 2, v0")
    k("v_bfe_u32 v25, v24, 1, 2")
    k("v_and_b32 v26, 3, v0")
    k("v_lshlrev_b32 v24, 7, v24")
    k("v_lshl_add_u32 v24, v26, 3, v24")
    k("v_add_u32 v24, s%d, v24" % S_WL)
    for b in range(4):
        k("v_xor_b32 v26, %d, v25" % b)
        k("v_lshl_add_u32 v%d, v26, 5, v24" % (20+b))
    for b in range(4):
        k("s_lshl_b32 s72, s77, 2"); k("s_add_u32 s72, s72, %d" % b)
        k("s_mul_i32 s73, s72, 205"); k("s_lshr_b32 s73, s73, 10")
        k("s_mul_i32 s74, s73, 5"); k("s_sub_u32 s72, s72, s74")
        k("s_mul_i32 s73, s73, 74"); k("s_add_u32 s73, s73, s76")
        k("s_mul_i32 s73, s73, 5"); k("s_add_u32 s73, s73, s72")
        k("s_lshl_b32 s73, s73, 10")
        k("s_add_u32 s%d, s73, s78" % (64+b))
    k("s_cmp_lt_u32 s76, 2")
    k("s_cselect_b32 s82, %d, 0x4000000" % (18*5120) if False else "s_cselect_b32 s82, 0, 0x4000000")
    stamp(k, 1)
    for n in range(NU):
        kind, i = order[n]
        k.wait(vm=("u", n))
        F = 64 + (n % 4)*16
        for b in range(4):
            for h in range(2):
                k.lg("ds_read_b64_tr_b16 %s, v%d offset:%d" % (vr(F+4*b+2*h,2), 20+b, (n % NSL)*4096 + h*2048))
        off = ((20 if kind == "d" else 0) + 6*i)*5120
        for b in range(4):
            k("s_add_u32 s%d, s%d, %d" % (72+b, 64+b, off))
            if kind == "o" and i == 3: k("s_add_u32 s%d, s%d, s82" % (72+b, 72+b))
        k.wait(lg="all")
        for b in range(4):
            k.vm("buffer_store_dwordx4 %s, v%d, s[%d:%d], s%d offen%s" % (vr(F+4*b,4), V_L16, SRD_O, SRD_O+3, 72+b, SC), ("st", n))
        if n + D < NU: load(n + D)
        if n == 9:
            k.wait(vm=("st", 8)); signal(k, P_DBG, D_S1); stamp(k, 2)
    k.wait(vm="all")
    signal(k, P_DBG, D_S3)
    stamp(k, 4)
    if cfg.L2PF:
        poll_issue(k, P_DBG, D_S1, "s1"); poll_check(k, P_DBG, 16, "s1", sleep=16)
        k("s_and_b32 s72, s%d, 1" % S_MT); k("s_lshl_b32 s72, s72, 2"); k("s_add_u32 s72, s72, s%d" % S_W)
        k("s_mul_i32 s72, s72, %d" % (74*5120)); k("s_add_u32 s72, s72, %d" % (44*5120))
        k("v_lshlrev_b32 v24, 7, v0")
        for i in range(cfg.L2PF):
            k.vm("buffer_load_dword v%d, v24, s[%d:%d], s72 offen%s" % (64 + i % 8, SRD_O, SRD_O+3, SC), ("t", i))
            k("s_add_u32 s72, s72, 8192")
        stamp(k, 3)
    k("s_mul_i32 s%d, s%d, %d" % (S_T0, S_MT, 128*1280))
    srd(k, SRD_X, P_X, 0, 128*1280, S_T0)
    srd(k, SRD_P, P_GW, 0, 1280)
    srd(k, SRD_W0, P_WS, G_OFF, G_SZ)
    k("v_and_b32 v24, 15, v0"); k("v_lshrrev_b32 v25, 4, v0")
    k("v_lshlrev_b32 v26, 4, v24")
    for j in range(5): k.vm("buffer_load_dwordx4 %s, v26, s[%d:%d], 0 offen offset:%d" % (vr(72+4*j,4), SRD_P, SRD_P+3, 256*j), "gw")
    k("s_lshl_b32 s76, s%d, 5" % S_W)
    k("v_lshlrev_b32 v27, 3, v25"); k("v_add_u32 v27, s76, v27")
    k("v_mul_u32_u24 v27, 1280, v27")
    k("v_add_u32 v27, v27, v26")
    k("s_mov_b32 s74, 0")
    for it in range(8):
        for j in range(5): k.vm("buffer_load_dwordx4 %s, v27, s[%d:%d], s74 offen offset:%d" % (vr(96+it*20+4*j,4), SRD_X, SRD_X+3, 256*j), ("gx", it))
        k("s_add_u32 s74, s74, 1280")
    poll_issue(k, P_DBG, D_S3, "s3")
    k("v_mov_b32 v29, 0")
    for it in range(8):
        k.wait(vm=("gx", it))
        k("v_mov_b32 v30, 0")
        for j in range(20): k("v_dot2c_f32_bf16 v30, v%d, v%d" % (96+it*20+j, 72+j))
        k("s_nop 3")
        for sh in (8, 4, 2, 1): k("v_add_f32_dpp v30, v30, v30 row_ror:%d row_mask:0xf bank_mask:0xf" % sh)
        k("v_cmp_eq_u32 vcc, %d, v24" % it)
        k("v_cndmask_b32 v29, v29, v30, vcc")
    k("v_mul_f32 v29, %s, v29" % f32(-LOG2E))
    k("v_exp_f32 v29, v29")
    k("v_add_f32 v29, 1.0, v29")
    k("v_rcp_f32 v29, v29")
    k("v_lshl_add_u32 v28, v25, 3, v24"); k("v_lshlrev_b32 v28, 2, v28")
    k("v_mov_b32 v30, 0x7fffffff")
    k("v_cmp_gt_u32 vcc, 8, v24")
    k("v_cndmask_b32 v28, v30, v28, vcc")
    k("s_lshl_b32 s74, s%d, 9" % S_MT); k("s_lshl_b32 s76, s%d, 7" % S_W); k("s_add_u32 s74, s74, s76")
    k.vm("buffer_store_dword v29, v28, s[%d:%d], s74 offen%s" % (SRD_W0, SRD_W0+3, SC), "gs")
    poll_check(k, P_DBG, 16, "s3", sleep=32, barrier=False)
    k.wait(vm="gs")
    k("s_add_u32 s74, s%d, %d" % (S_MT, C_Q)); k("s_mul_i32 s74, s74, %d" % cfg.CS)
    signal(k, S_CNT, "s74")
    stamp(k, 5)
    it = b_items(range(cfg.AUXB))
    fd = Feed(k, it)
    for i in range(len(it)):
        fd.emit(1)
        k("s_waitcnt vmcnt(%d)" % cfg.AUXT)

def pack_inplace(v, E):
    out = ["v_cvt_pk_bf16_f32 v%d, v%d, v%d" % (v[10+i], v[2*i], v[2*i+1]) for i in range(9, -1, -1)]
    out += ["v_cvt_pk_bf16_f32 v%d, v%d, v%d" % (v[i], E+2*i, E+2*i+1) for i in range(10)]
    return out
def minmax(v, T):
    out = ["v_max3_f32 v%d, v%d, v%d, v%d" % (T, v[0], v[1], v[2]), "v_min3_f32 v%d, v%d, v%d, v%d" % (T+2, v[0], v[1], v[2]),
           "v_max3_f32 v%d, v%d, v%d, v%d" % (T+1, v[3], v[4], v[5]), "v_min3_f32 v%d, v%d, v%d, v%d" % (T+3, v[3], v[4], v[5])]
    for n, i in enumerate(range(6, 20, 2)):
        c = n & 1
        out += ["v_max3_f32 v%d, v%d, v%d, v%d" % (T+c, T+c, v[i], v[i+1]), "v_min3_f32 v%d, v%d, v%d, v%d" % (T+2+c, T+2+c, v[i], v[i+1])]
    out += ["v_max_f32 v%d, v%d, v%d" % (T, T, T+1), "v_min_f32 v%d, v%d, v%d" % (T+2, T+2, T+3),
            "v_mul_f32 v%d, %s, v%d" % (T, f32(-LOG2E), T), "v_mul_f32 v%d, %s, v%d" % (T+2, f32(LOG2E), T+2)]
    return out
def softmax_scalar(v, E, T):
    o = [(1, t) for t in minmax(v, T)]
    for i in range(20): o.append((1, "v_fma_f32 v%d, v%d, s%d, v%d" % (E+i, v[i], S_C2, T)))
    for i in range(20): o.append((1, "v_fma_f32 v%d, -v%d, s%d, v%d" % (v[i], v[i], S_C2, T+2)))
    for x in [E+i for i in range(20)] + v: o.append((2, "v_exp_f32 v%d, v%d" % (x, x)))
    e = [E+i for i in range(20)]
    for c, (src, d) in enumerate(((e, T), (v, T+2))):
        o += [(1, "v_add_f32 v%d, v%d, v%d" % (d, src[0], src[1])), (1, "v_add_f32 v%d, v%d, v%d" % (d+1, src[2], src[3]))]
    for i in range(4, 20, 2):
        for src, d in ((e, T), (v, T+2)):
            o += [(1, "v_add_f32 v%d, v%d, v%d" % (d, d, src[i])), (1, "v_add_f32 v%d, v%d, v%d" % (d+1, d+1, src[i+1]))]
    o += [(1, "v_add_f32 v%d, v%d, v%d" % (T, T, T+1)), (1, "v_add_f32 v%d, v%d, v%d" % (T+2, T+2, T+3)),
          (2, "v_rcp_f32 v%d, v%d" % (T, T)), (2, "v_rcp_f32 v%d, v%d" % (T+2, T+2))]
    for x in e: o.append((1, "v_mul_f32 v%d, v%d, v%d" % (x, x, T)))
    for x in v: o.append((1, "v_mul_f32 v%d, v%d, v%d" % (x, x, T+2)))
    o += [(1, t) for t in pack_inplace(v, E)]
    return o

PHB = 102400; KVB = PHB + 20480; RED = PHB
def pq_setup(k):
    srd(k, SRD_P, P_WS, PQ_OFF, PQ_SZ)
    srd(k, SRD_W1, P_WS, G_OFF, G_SZ)
    k("s_lshl_b32 s77, s%d, 1" % S_OMT); k("s_add_u32 s77, s77, s%d" % S_RH)
    k("s_lshl_b32 s78, s%d, 1" % S_OH); k("s_add_u32 s78, s78, s%d" % S_C)
    k("s_mul_i32 s78, s78, 81920")
    k("s_lshl_b32 s79, s77, 10"); k("s_add_u32 s79, s79, s78")
    k("s_add_u32 s101, s79, 32768")
    k("s_lshl_b32 s81, s77, 9"); k("s_add_u32 s81, s81, s78"); k("s_add_u32 s81, s81, 65536")
    k("s_lshl_b32 s76, s%d, 9" % S_OMT); k("s_lshl_b32 s77, s%d, 7" % S_W); k("s_add_u32 s76, s76, s77")
    k("s_add_u32 s82, s%d, %d" % (S_OMT, C_Q)); k("s_mul_i32 s82, s82, %d" % cfg.CS)
    k("v_lshlrev_b32 v5, 3, v0")
    k("v_and_b32 v24, 15, v0"); k("v_lshrrev_b32 v25, 4, v0")
    k("v_lshlrev_b32 v23, 2, v24")
PQR = 192
def pq_loads(k, nu):
    for i in range(nu):
        PQ = PQR + 12*i
        so = ("s79", "s101") if i < 2 else ("s72", "s73")
        if i == 2: k("s_add_u32 s72, s79, 4096"); k("s_add_u32 s73, s101, 4096")
        k.vm("buffer_load_dwordx4 %s, v%d, s[%d:%d], %s offen offset:%d%s" % (vr(PQ,4), V_L16, SRD_P, SRD_P+3, so[0], (i & 1)*2048 if i < 2 else 0, SC), ("pq", i))
        k.vm("buffer_load_dwordx4 %s, v%d, s[%d:%d], %s offen offset:%d%s" % (vr(PQ+4,4), V_L16, SRD_P, SRD_P+3, so[1], (i & 1)*2048 if i < 2 else 0, SC), ("pq", i))
        k.vm("buffer_load_dwordx2 %s, v5, s[%d:%d], s81 offen offset:%d%s" % (vr(PQ+8,2), SRD_P, SRD_P+3, i*1024, SC), ("pq", i))
        for r2 in range(2): k.vm("buffer_load_dword v%d, v17, s[%d:%d], s76 offen offset:%d%s" % (PQ+10+r2, SRD_W1, SRD_W1+3, i*512 + r2*64, SC), ("pq", i))

OAL = list(range(42, 62))
def tail(k, nu, pre, late, bolate, presig=None, reducer=False):
    if cfg.X_END:
        if presig: presig()
        k("s_endpgm"); return
    if cfg.X_NOO:
        if presig: presig(); presig = None
        nu = 0
    nsig = nu
    if cfg.X_LIGHT and nu > 1: nu = 1
    if cfg.X_NOB: pre = []; late = []; bolate = []
    if not presig: k.flush_counters()
    stamp(k, 6)
    fd = Feed(k, [] if presig else pre)
    def ch():
        k("s_lshr_b32 s82, s%d, 1" % S_M64); k("s_mul_i32 s82, s82, %d" % cfg.CS)
        poll_issue(k, S_CNT, "s82", "h_ok")
    if not nu:
        ch()
        srd(k, SRD_W1, P_WS, G_OFF, G_SZ)
        k("v_and_b32 v24, 15, v0"); k("v_lshrrev_b32 v25, 4, v0")
    else:
        fd.emit(cfg.QPRE)
        pq_setup(k)
        k("s_mov_b32 s%d, s82" % S_T2)
        k("v_mov_b32 v17, v23")
    k("s_mul_i32 s%d, s%d, %d" % (S_T0, S_M64, 74*4096))
    srd(k, SRD_X, P_WS, A2_OFF, 74*4096, S_T0)
    k("s_add_u32 s80, s%d, 20" % S_W); k("s_lshl_b32 s80, s80, 12")
    k("v_lshlrev_b32 v6, 2, v24")
    VA = 26
    for j in range(4):
        k("s_add_u32 s75, s%d, %d" % (S_W, j)); k("s_and_b32 s75, s75, 3"); k("s_lshl_b32 s75, s75, 10")
        k("v_add_u32 v%d, s75, v%d" % (VA+j, V_L16))
    A0 = 64
    XD = (4 if cfg.RBH else 0) if reducer else (cfg.XD if nu else 4)
    def af(i): return 192 + 16*i if i < XD else 144 + ((i - XD) % 3)*16
    TO = (1, 2, 3, 0)
    def a_load(i, j):
        if cfg.X_NOA and i >= 3: return
        k.vm("buffer_load_dwordx4 %s, v%d, s[%d:%d], s80 offen%s" % (vr(af(i)+4*j,4), VA+j, SRD_X, SRD_X+3, LSC), ("A", i, j))
        if j == TO[3]: k("s_add_u32 s80, s80, %d" % (4*4096))
    started = []
    aq = [(i, j) for i in range(3 + XD) for j in TO]
    def hstart():
        stamp(k, 8)
        poll_check(k, S_CNT, 9, "h_ok")
        stamp(k, 9)
        started.append(1)
    if nu:
        if presig and cfg.QEARLY: vpoll_issue(k, "s%d" % S_T2, nu, "q_ok")
        if presig:
            presig(); fd.q += pre
        if not (presig and cfg.QEARLY): vpoll_issue(k, "s%d" % S_T2, nu, "q_ok")
        fd.emit(4)
        T0, T1, T2 = 64, 65, 66
        srd(k, SRD_W0, P_WS, KVF_OFF, 16*4096)
        srd(k, SRD_O, P_WS, A2_OFF, A2_SZ)
        PB = PHB - 20480*(nu-1)
        k("s_mul_i32 s75, s%d, 5120" % S_W); k("s_add_u32 s75, s75, %d" % PB)
        k("v_mul_u32_u24 v7, 80, v0"); k("v_add_u32 v7, s75, v7")
        k("s_mul_i32 s75, s%d, 2560" % S_W); k("s_add_u32 s75, s75, %d" % PB)
        k("v_mul_u32_u24 v8, 80, v24"); k("v_add_u32 v8, s75, v8")
        k("v_lshl_add_u32 v9, v25, 4, v8")
        k("v_mov_b32 v30, 0x7fffffff")
        if not cfg.X_LIGHT:
            vpoll_check(k, 3, "q_ok")
            pq_loads(k, nu)
        stamp(k, 7)
        fd.emit(3)
        k("s_mul_i32 s72, s%d, 5" % S_OH)
        for dst, add, nvalid in ((12, 0, 3), (13, 3, 2)):
            k("v_add_u32 v%d, s72, v25" % T2)
            if add: k("v_add_u32 v%d, %d, v%d" % (T2, add, T2))
            k("v_lshrrev_b32 v%d, 2, v%d" % (T0, T2))
            k("v_lshlrev_b32 v%d, 12, v%d" % (T0, T0))
            k("v_and_b32 v%d, 3, v%d" % (T1, T2))
            k("v_lshl_add_u32 v%d, v%d, 8, v%d" % (T0, T1, T0))
            k("v_lshl_add_u32 v%d, v24, 4, v%d" % (T0, T0))
            k("v_cmp_gt_u32 vcc, %d, v25" % nvalid)
            k("v_cndmask_b32 v%d, v30, v%d, vcc" % (dst, T0))
        fd.emit(2)
        k("s_lshl_b32 s73, s%d, 1" % S_OMT); k("s_add_u32 s73, s73, s%d" % S_C)
        k("s_mul_i32 s73, s73, %d" % (74*4096))
        k("s_lshl_b32 s75, s%d, 11" % S_RH); k("s_add_u32 s73, s73, s75")
        k("s_lshl_b32 s74, s%d, 2" % S_OH); k("s_add_u32 s74, s74, s%d" % S_W); k("s_lshl_b32 s74, s74, 10")
        k("v_bfe_u32 v%d, v0, 2, 2" % T0); k("v_and_b32 v%d, 3, v0" % T1)
        k("v_lshl_add_u32 v%d, v%d, 3, v%d" % (T2, T0, T1))
        for hd in range(2):
            for i in range(3):
                d = 18 + hd*3 + i
                if i == 2: k("v_mov_b32 v%d, %d" % (d, KVB + 1600 + hd*1680))
                else:
                    k("v_add_u32 v14, %d, v%d" % (4*i + 4*hd, T2)); k("v_min_u32 v14, 20, v14")
                    if hd == 1 and i == 0:
                        k("v_cmp_eq_u32 vcc, 2, v%d" % T0); k("v_cndmask_b32 v14, v14, v%d, vcc" % T1)
                    k("v_mul_u32_u24 v14, 80, v14")
                    k("v_add_u32 v%d, %d, v14" % (d, KVB + hd*1680))
        fd.emit(2)
        k("v_cmp_eq_u32 s[78:79], 0, v25")
        k("v_cmp_eq_u32 s[76:77], 2, v25")
        k("v_mov_b32 v30, %d" % (KVB + 3584 - 64))
        for i in range(nu):
            k.wait(vm=("pq", i))
            for j in range(10):
                k("v_lshlrev_b32 v%d, 16, v%d" % (64+2*j, PQR+12*i+j))
                k("v_and_b32 v%d, 0xffff0000, v%d" % (65+2*j, PQR+12*i+j))
            for r2 in range(2): k("v_mov_b32 v%d, v%d" % (250+2*i+r2, PQR+12*i+10+r2))
            fd.emit(2)
            class Hook:
                n = 0
                def emit(self, _=1):
                    self.n += 1
                    last = i == nu-1
                    if last and self.n == cfg.HP[0]: ch()
                    elif last and self.n == cfg.HP[1]: hstart()
                    if started and aq:
                        for _ in range(4):
                            if aq: a_load(*aq.pop(0))
                    else: fd.emit(1)
            if cfg.X_LIGHT:
                hk = Hook()
                for _ in range(8): hk.emit()
            else: softmax_pm(k, [64+2*j for j in range(10)], 84, 124, 104, Hook())
            for j in range(5): k.lg("ds_write_b128 v7, %s offset:%d" % (vr(104+4*j,4), i*20480 + 16*j))
        stamp(k, 27)
    else:
        fd.drain()
    if reducer:
        srd(k, SRD_P, P_WS, KVP_OFF, KVP_SZ)
        srd(k, SRD_T, P_WS, KVF_OFF, 16*4096)
        k("s_lshl_b32 s75, s%d, 10" % S_W)
        k("v_add_u32 v10, s75, v%d" % V_L16)
        k("v_mov_b32 v14, 0x7fffffff")
        k("v_cmp_gt_u32 vcc, 3360, v10")
        k("v_cndmask_b32 v11, v14, v10, vcc")
        k("s_mul_i32 s72, s%d, %d" % (S_OH, 16*KVPS))
        k("s_lshl_b32 s81, s%d, 12" % S_OH)
        k("v_bfe_u32 v64, v0, 2, 2"); k("v_and_b32 v65, 3, v0")
        k("v_and_b32 v14, 1, v0"); k("v_lshlrev_b32 v14, 4, v14")
        k("v_mov_b32 v15, 0x3f80")
        k("v_lshlrev_b32 v14, v14, v15")
        k("v_cmp_eq_u32 vcc, v64, v25")
        k("v_cndmask_b32 v14, 0, v14, vcc")
        k("v_cmp_gt_u32 vcc, 2, v65")
        k("v_cndmask_b32 v15, 0, v14, vcc")
        k("v_cndmask_b32 v14, v14, 0, vcc")
        for r, src in ((120, "v15"), (121, "v14"), (122, "0"), (123, "0"), (124, "0"), (125, "0"), (126, "v15"), (127, "v14")):
            k("v_accvgpr_write_b32 a%d, %s" % (r, src))
    def sent(regs, t):
        k("v_max3_u32 v%d, v%d, v%d, v%d" % (t, regs[0], regs[1], regs[2]))
        rest = regs[3:]
        while len(rest) >= 2:
            k("v_max3_u32 v%d, v%d, v%d, v%d" % (t, t, rest[0], rest[1])); rest = rest[2:]
        if rest: k("v_max_u32 v%d, v%d, v%d" % (t, t, rest[0]))
    def do_reduce():
        l = k.newlabel("Lkp"); d = k.newlabel("Lkd")
        KP = 76
        stamp(k, 10)
        k("s_mov_b32 s95, 0x4000")
        k.label(l)
        k.vmq = []
        for p in range(16):
            k("s_add_u32 s75, s72, %d" % (p*KVPS))
            k.vm("buffer_load_dwordx4 %s, v11, s[%d:%d], s75 offen%s" % (vr(KP+4*p,4), SRD_P, SRD_P+3, SC), ("kp", p))
        RA = 64
        for p in range(16):
            k.wait(vm=("kp", p))
            for h in range(2): k("v_mfma_f32_16x16x32_bf16 %s, %s, %s, %s" % (vr(RA+4*h,4), ar(120+4*h,4), vr(KP+4*p,4), vr(RA+4*h,4) if p else "0"))
            r = [KP+4*p+i for i in range(4)]
            sent(r if p == 0 else [72] + r, 72)
        k("v_cmp_eq_u32 vcc, -1, v72")
        k("s_sub_u32 s95, s95, 1")
        k("s_cmp_eq_u64 vcc, 0")
        k("s_cbranch_scc1 %s" % d)
        k("s_cmp_lg_u32 s95, 0")
        k("s_cbranch_scc1 %s" % l)
        k.label(d)
        k("s_nop 3")
        stamp(k, 11)
        for i in range(4): k("v_cvt_pk_bf16_f32 v%d, v%d, v%d" % (192+i, RA+2*i, RA+1+2*i))
        k.vm("buffer_store_dwordx4 v[192:195], v10, s[%d:%d], s81 offen%s" % (SRD_T, SRD_T+3, SC), "st")
        stamp(k, 28)
    if reducer and cfg.RBH: do_reduce(); ch()
    if not started: hstart()
    while aq: a_load(*aq.pop(0))
    k.wait(lg="all")
    if reducer and not cfg.RBH: do_reduce()
    ncon = 5*(nu-1) if nu else 0
    fl = Feed(k, fd.q + b_items(late) + (bolate[:len(bolate)-ncon]))
    bolate = bolate[len(bolate)-ncon:]
    lds = []
    cnt = [0]
    order = [(i, j) for i in range(11) for j in TO] + [(i, j) for j in TO for i in range(11, 14)]
    def main():
        for (i, j) in order:
            pend = set(t[2][1] for t in fl.q if isinstance(t[2], tuple) and t[2][0] == "B")
            assert not (pend & set(range(i*5, i*5+5))), (nu, i, pend)
            k.wait(vm=[("A", i, j)] + [("B", i*5+ct) for ct in range(5)])
            for ct in range(5):
                a = A0 + (j*5+ct)*4
                k("v_mfma_f32_16x16x32_bf16 %s, %s, %s, %s" % (vr(a,4), R(bloc(i*5+ct),4), vr(af(i)+4*j,4), vr(a,4) if i else "0"))
                cnt[0] += 1
                if lds: emit1(k, lds.pop(0))
                if ct == 4 and i >= XD and i + 3 < 14: a_load(i + 3, j)
                if ct in cfg.FLAT: fl.emit(1)
                yield 1
    g = main()
    def run(n):
        for _ in range(n): next(g, None)
    def upto(m): run(max(0, m - cnt[0]))
    def mix(items, per):
        for i, it in enumerate(items):
            emit1(k, it)
            if i % per == per-1: run(1)
    if nu:
        def oa(i): return bloc(i)
        ld = "buffer_load_dwordx4 v[192:195], v%d, s[%d:%d], s74 offen%s" % (V_L16, SRD_W0, SRD_W0+3, SC)
        k("s_lshl_b32 s75, s%d, 10" % S_W); k("s_add_u32 s75, s75, %d" % KVB); k("v_add_u32 v10, s75, v%d" % V_L16)
        MF = cfg.MF if nu == 1 else (cfg.MF2 if presig else cfg.MFQ)
        upto(max(MF - 25, 20*XD)); k.vm(ld, "kf"); upto(max(MF, 80))
        stamp(k, 10)
        l = k.newlabel("Lkf"); d = k.newlabel("Lkg")
        k.wait(vm="kf")
        k("s_mov_b32 s95, 0x8000")
        k.label(l)
        sent([192, 193, 194, 195], 196)
        k("v_cmp_eq_u32 vcc, -1, v196")
        k("s_sub_u32 s95, s95, 1")
        k("s_cmp_eq_u64 vcc, 0")
        k("s_cbranch_scc1 %s" % d)
        k("s_sleep %d" % cfg.SLP)
        k(ld)
        k("s_waitcnt vmcnt(0)")
        k("s_cmp_lg_u32 s95, 0")
        k("s_cbranch_scc1 %s" % l)
        k.label(d)
        stamp(k, 11)
        k.lg("ds_write_b128 v10, v[192:195]", "kw")
        run(4)
        k.wait(lg="all"); k("s_barrier"); stamp(k, 28)
        def brd(u):
            o = []
            for hd in range(2):
                for r2 in range(2):
                    o.append(("lg", "ds_read_b128 %s, v9 offset:%d" % (R(oa(12+hd*4+2*r2),4), u*20480 + hd*10240 + r2*1280), ("o", u, hd)))
                    o.append(("lg", "ds_read_b128 %s, v8 offset:%d" % (R(oa(13+hd*4+2*r2),4), u*20480 + hd*10240 + r2*1280+64), ("o", u, hd)))
            return o
        it = []
        for hd in range(2):
            for i in range(3):
                it += ["v_lshl_add_u32 v15, v25, 4, v%d" % (18+hd*3+i), "v_cndmask_b32 v14, v30, v%d, s[78:79]" % (18+hd*3+i),
                       ("lg", "ds_read_b128 %s, v15" % R(oa(hd*6+2*i),4), "oa"), ("lg", "ds_read_b128 %s, v14 offset:64" % R(oa(hd*6+2*i+1),4), "oa")]
        mix(it + brd(0), cfg.MIX)
        run(4)
        KO = 192
        for u in range(nu):
            for hd in range(2):
                k.wait(lg=("o", u, hd))
                for s in range(2):
                    for r2 in range(2):
                        for i in (2, 0, 1):
                            a = KO + (hd*2+r2)*12 + i*4
                            k("v_mfma_f32_16x16x32_bf16 %s, %s, %s, %s" % (vr(a,4), R(oa(hd*6+2*i+s),4), R(oa(12+hd*4+2*r2+s),4), vr(a,4) if s else "0"))
            it = brd(u+1) if u + 1 < nu else []
            for q in range(4): it.append("v_add_f32 v%d, %s, v%d" % (KO+q*12+8, f32(1e-6), KO+q*12+8))
            for q in range(4): it.append("v_rcp_f32 v%d, v%d" % (KO+q*12+8, KO+q*12+8))
            for q in range(4): it.append("v_mul_f32 v%d, v%d, v%d" % (KO+q*12+8, KO+q*12+8, 250+2*u+(q & 1)))
            for r2 in range(2):
                a0 = KO + r2*12; a1 = KO + (2+r2)*12
                for a in (a1, a0):
                    for i in range(8): it.append("v_mul_f32 v%d, v%d, v%d" % (a+i, a+i, a+8))
                    for i in range(4): it.append("v_cvt_pk_bf16_f32 v%d, v%d, v%d" % (a+8+i, a+2*i, a+2*i+1))
                    if a == a1: it.append(("vm", "buffer_store_dwordx4 %s, v13, s[%d:%d], s73 offen offset:%d%s" % (vr(a1+8,4), SRD_O, SRD_O+3, r2*1024, SC), "st"))
                it.append("v_cndmask_b32 v%d, v%d, v%d, s[76:77]" % (a0+10, a0+10, a1+8))
                it.append("v_cndmask_b32 v%d, v%d, v%d, s[76:77]" % (a0+11, a0+11, a1+9))
                it.append(("vm", "buffer_store_dwordx4 %s, v12, s[%d:%d], s73 offen offset:%d%s" % (vr(a0+8,4), SRD_O, SRD_O+3, r2*1024, SC), "st"))
            if u + 1 < nu: it.append("s_add_u32 s73, s73, %d" % (2*74*4096))
            mix(it, cfg.MIX * nu)
        stamp(k, 29)
        run(cfg.OSD)
        if cfg.BPR: fl.drain()
        k.wait(vm=["st", "BO"])
        d = k.newlabel("Lsg")
        k("s_add_u32 s82, s%d, %d" % (S_OMT, C_O)); k("s_mul_i32 s82, s82, %d" % cfg.CS)
        k("s_barrier")
        k("s_cmp_lg_u32 s%d, 0" % S_W)
        k("s_cbranch_scc1 %s" % d)
        k("v_mul_u32_u24 v%d, %d, v0" % (V_PT, cfg.CS)); k("v_add_u32 v%d, s82, v%d" % (V_PT, V_PT))
        k("v_mov_b32 v31, 1")
        k("s_mov_b64 exec, %d" % ((1 << nsig) - 1))
        k("global_atomic_add v%d, v31, s[%d:%d] sc1" % (V_PT, S_CNT, S_CNT+1))
        k("s_mov_b64 exec, -1")
        k.label(d)
        stamp(k, 12)
        fl.q += bolate
    q = K()
    for j in range(1, 4):
        q("s_add_u32 s75, s%d, %d" % (S_W, j)); q("s_and_b32 s75, s75, 3"); q("s_mul_i32 s75, s75, 15360")
        q("s_add_u32 s75, s75, %d" % (RED + (j-1)*5120))
        q("v_add_u32 v%d, s75, v%d" % (10+j, V_L16))
    q("s_mul_i32 s75, s%d, 15360" % S_W); q("s_add_u32 s75, s75, %d" % RED)
    q("v_add_u32 v8, s75, v%d" % V_L16)
    q("v_add_u32 v9, 51200, v%d" % V_L16)
    srd(q, SRD_O, P_OUT, 0, 2048*1280)
    q("s_lshl_b32 s81, s%d, 6" % S_M64); q("s_lshl_b32 s75, s%d, 4" % S_W); q("s_add_u32 s81, s81, s75")
    q("s_lshl_b32 s74, s81, 2")
    q("s_mul_i32 s81, s81, 1280"); q("s_mul_i32 s75, s%d, 160" % S_NT); q("s_add_u32 s81, s81, s75")
    q("v_mul_u32_u24 v16, 1280, v24"); q("v_lshl_add_u32 v16, v25, 3, v16")
    q("s_lshr_b32 s82, s%d, 1" % S_M64); q("s_add_u32 s82, s82, %d" % C_O); q("s_mul_i32 s82, s82, %d" % cfg.CS)
    q("s_mov_b32 s73, 0")
    mix([t for _, t in q.items], 2)
    def bol(n): return bloc(n % 70)
    def bo_read(n):
        off = n*1024
        return ("lg", "ds_read_b128 %s, v%d offset:%d" % (R(bol(n), 4), V_L16 if off < 51200 else 9, off % 51200), ("bo", n // 5))
    nr = 0
    if cfg.BPR:
        if not nu:
            while fl.q: run(1)
            run(cfg.BPW)
            k.wait(vm="BO"); k("s_barrier")
        while cnt[0] < min(cfg.MO, 238) - 20:
            if nr < min(cnt[0] // 20, 11) * 5 and not lds: lds.append(bo_read(nr)); nr += 1
            run(1)
    upto(min(cfg.MO, 238) - 20)
    fl.drain()
    if cfg.MO < 280 and cnt[0] <= 238:
        poll_issue(k, S_CNT, "s82", "o_ok")
        while cfg.BPR and cnt[0] < cfg.MO:
            if nr < min(cnt[0] // 20, 11) * 5 and not lds: lds.append(bo_read(nr)); nr += 1
            run(1)
        upto(cfg.MO)
    def of(ks): return 192 + 4*ks if ks < 16 else 148 + 16*(ks-16) if ks < 19 else 152
    def ao(ks): return ("s_add_u32 s73, s73, 4096" if ks else None, "buffer_load_dwordx4 %s, v%d, s[%d:%d], s73 offen%s" % (vr(of(ks),4), VA, SRD_X, SRD_X+3, LSC), ("Ao", ks))
    def red_w(j): return [("lg", "ds_write_b128 v%d, %s offset:%d" % (10+j, vr(A0+(j*5+ct)*4,4), ct*1024), "rw") for ct in range(5)]
    def oready():
        stamp(k, 13)
        poll_check(k, S_CNT, 16, "o_ok")
        stamp(k, 14)
        k.vm("buffer_load_dword v5, v6, s[%d:%d], s74 offen%s" % (SRD_W1, SRD_W1+3, SC), "g2")
        fa = Feed(k, [ao(ks) for ks in range(20)])
        fa.emit(6)
        return fa
    rr = [("lg", "ds_read_b128 %s, v8 offset:%d" % (vr(A0+20+4*j,4), j*1024), ("r", j // 5)) for j in range(15)]
    late_o = cfg.MO >= 280 or cnt[0] > 238
    if not late_o:
        fa = oready()
        fl.q = fa.q[:10]; fa.q = fa.q[10:]
        free = min(cnt[0] // 20, 11) * 5
        for c in (238, 253, 268, 280):
            n = min(free - nr, c - cnt[0] - len(lds))
            lds += [bo_read(x) for x in range(nr, nr + max(n, 0))]; nr += max(n, 0)
            upto(c)
            if c < 280: lds[:0] = red_w((238, 253, 268).index(c) + 1)
        weave(k, [], lds); del lds[:]
        fl.drain()
        fa.drain()
        k.wait(vm="g2")
        k("v_sub_f32 v10, 1.0, v5")
        for j in range(10): k("v_pk_mul_f32 %s, %s, v[10:11] op_sel_hi:[1,0]" % (vr(A0+2*j,2), vr(A0+2*j,2)))
        k.wait(lg="rw")
        k("s_barrier")
        while nr < 15:
            emit1(k, bo_read(nr)); nr += 1
    else:
        for j, c in enumerate((238, 253, 268)):
            upto(c); lds += red_w(j+1)
        upto(280)
        weave(k, [], lds); del lds[:]
        k.wait(lg="rw", vm="BO")
        k("s_barrier")
        weave(k, [], rr); del rr[:]
        poll_issue(k, S_CNT, "s82", "o_ok")
        for sl in range(3):
            k.wait(lg=("r", sl))
            weave(k, [], [bo_read(x) for x in range(nr, min(70, nr+10))]); nr = min(70, nr+10)
            for j in range(10): k("v_pk_add_f32 %s, %s, %s" % (vr(A0+2*j,2), vr(A0+2*j,2), vr(A0+20+20*sl+2*j,2)))
        weave(k, [], [bo_read(x) for x in range(nr, cfg.BPRE)]); nr = max(nr, cfg.BPRE)
        fa = oready()
        fa.emit(6)
        weave(k, [], [bo_read(x) for x in range(nr, 70)]); nr = 70
        fa.drain()
        k.wait(vm="g2")
        k("v_sub_f32 v10, 1.0, v5")
        for j in range(10): k("v_pk_mul_f32 %s, %s, v[10:11] op_sel_hi:[1,0]" % (vr(A0+2*j,2), vr(A0+2*j,2)))
    for ks in range(20):
        k.wait(vm=("Ao", ks), lg=("bo", ks))
        mf = ["v_mfma_f32_16x16x32_bf16 %s, %s, %s, %s" % (vr(A0+ct*4,4), R(bol(ks*5+ct), 4), vr(of(ks),4), vr(A0+ct*4,4)) for ct in range(5)]
        fill = [bo_read(n) for n in range(nr, min(100, nr+5, ks*5+70))]; nr += len(fill)
        while len(fill) < 5 and rr: fill.append(rr.pop(0))
        weave(k, mf, fill, per=1)
    if not late_o:
        weave(k, [], rr)
        k.wait(lg="all")
        for j in range(10): k("v_pk_add_f32 %s, %s, %s" % (vr(A0+20+2*j,2), vr(A0+20+2*j,2), vr(A0+40+2*j,2)))
        for j in range(10): k("v_pk_add_f32 %s, %s, %s" % (vr(A0+20+2*j,2), vr(A0+20+2*j,2), vr(A0+60+2*j,2)))
    for ct in range(5):
        a = A0 + ct*4
        for h in range(2 if not late_o else 0): k("v_pk_fma_f32 %s, %s, v[10:11], %s op_sel_hi:[1,0,1]" % (vr(a+2*h,2), vr(a+20+2*h,2), vr(a+2*h,2)))
        k("v_cvt_pk_bf16_f32 v%d, v%d, v%d" % (A0+40+2*ct, a, a+1)); k("v_cvt_pk_bf16_f32 v%d, v%d, v%d" % (A0+41+2*ct, a+2, a+3))
        k.vm("buffer_store_dwordx2 %s, v16, s[%d:%d], s81 offen offset:%d%s" % (vr(A0+40+2*ct,2), SRD_O, SRD_O+3, ct*32, cfg.OUTF), "st")
    stamp(k, 30)
    stamp_out(k)
    k("s_endpgm")

def kernel(k):
    kernel_header(k, NAME)
    astamp(k, 0)
    k("s_load_dwordx16 s[8:23], s[0:1], 0")
    k("s_load_dwordx8 s[24:31], s[0:1], 64")
    k("s_cmp_ge_u32 s2, 256")
    k("s_cbranch_scc1 L_end")
    if cfg.CPF: code_prefetch(k, V_JUNK)
    k("v_lshrrev_b32 v2, 6, v0")
    k("v_and_b32 v0, 63, v0")
    k("v_readfirstlane_b32 s%d, v2" % S_W)
    if cfg.STAMP: k("v_mov_b32 v1, 0")
    stamp(k, 0)
    if cfg.EARLY0: k("v_writelane_b32 v1, s98, 0")
    if cfg.MAP == 2:
        k("s_bfe_u32 s%d, s2, 0x40003" % S_MT)
        k("s_and_b32 s%d, s2, 7" % S_T0)
        k("s_lshl_b32 s%d, s%d, 3" % (S_T0, S_T0))
        k("s_bfe_u32 s%d, s2, 0x10007" % S_T1)
        k("s_lshl_b32 s%d, s%d, 2" % (S_T1, S_T1))
        k("s_add_u32 s%d, s%d, s%d" % (S_T0, S_T0, S_T1))
        tab = cfg.ORDER
        k("s_mov_b32 s74, 0x%x" % sum(tab[i] << (4*i) for i in range(8))); k("s_mov_b32 s75, 0x%x" % sum(tab[8+i] << (4*i) for i in range(8)))
        k("s_lshr_b64 s[74:75], s[74:75], s%d" % S_T0)
        k("s_and_b32 s%d, s74, 15" % S_TY)
    else:
        k("s_and_b32 s%d, s2, 7" % S_T0)
        k("s_lshr_b32 s%d, s2, 3" % S_T1)
        k("s_lshl_b32 s74, s%d, 2" % S_T0); k("s_and_b32 s75, s%d, 3" % S_T1); k("s_add_u32 s74, s74, s75")
        k("s_add_u32 s74, s74, %d" % (13*16))
        k("s_lshl_b32 s75, s%d, 3" % S_T0); k("s_add_u32 s75, s75, s%d" % S_T1); k("s_add_u32 s75, s75, %d" % (9*16 - 20))
        k("s_cmp_lt_u32 s%d, 28" % S_T1); k("s_cselect_b32 s74, s75, s74")
        k("s_lshl_b32 s75, s%d, 1" % S_T0); k("s_add_u32 s75, s75, s%d" % S_T1)
        k("s_add_u32 s76, s75, %d" % (15*16 - 18))
        k("s_cmp_lt_u32 s%d, 20" % S_T1); k("s_cselect_b32 s74, s76, s74")
        k("s_add_u32 s76, s75, %d" % (8*16 - 16))
        k("s_cmp_lt_u32 s%d, 18" % S_T1); k("s_cselect_b32 s74, s76, s74")
        k("s_lshl_b32 s76, s%d, 4" % S_T0); k("s_add_u32 s76, s76, s%d" % S_T1)
        k("s_cmp_lt_u32 s%d, 16" % S_T1); k("s_cselect_b32 s74, s76, s74")
        k("s_and_b32 s%d, s74, 15" % S_MT)
        k("s_lshr_b32 s%d, s74, 4" % S_TY)
    k("s_and_b32 s%d, s%d, 1" % (S_RH, S_W))
    k("s_lshr_b32 s%d, s%d, 1" % (S_C, S_W))
    k("v_lshlrev_b32 v%d, 4, v0" % V_L16)
    k("s_cmp_ge_u32 s%d, 15" % S_TY); k("s_cbranch_scc1 L_aux")
    k("s_cmp_ge_u32 s%d, 13" % S_TY)
    k("s_cselect_b32 s%d, 13, 9" % S_T0)
    k("s_cselect_b32 s75, 0, 1280")
    k("s_cselect_b32 s76, 0, 640")
    k("s_add_u32 s76, s76, 640")
    k("s_sub_u32 s79, s%d, s%d" % (S_TY, S_T0))
    k("s_mul_i32 s%d, s79, 320" % S_T1)
    k("s_and_b32 s%d, s%d, 127" % (S_DELTA, S_T1))
    k("s_sub_u32 s%d, s%d, s%d" % (S_T1, S_T1, S_DELTA))
    k("s_add_u32 s75, s75, s%d" % S_T1)
    k("s_add_u32 s76, s76, s75")
    k("s_mul_i32 s%d, s%d, 384" % (S_T1, S_TY))
    k("s_mov_b32 s%d, 3840" % S_STRIDE)
    k("s_cmp_lt_u32 s%d, 9" % S_TY)
    k("s_cselect_b32 s75, s%d, s75" % S_T1)
    k("s_cselect_b32 s76, s%d, s76" % S_T1)
    k("s_cselect_b32 s%d, 3456, s%d" % (S_STRIDE, S_STRIDE))
    k("s_mul_i32 s%d, s%d, 640" % (S_T1, S_STRIDE))
    k("s_sub_u32 s77, s%d, s75" % S_T1)
    k("s_sub_u32 s78, s%d, s76" % S_T1)
    gemm_setup(k)
    k("s_mul_i32 s%d, s%d, %d" % (S_T0, S_MT, 128*1280))
    astamp(k, 1)
    k("s_waitcnt lgkmcnt(0)")
    astamp(k, 2)
    k("s_cmp_lt_u32 s%d, 9" % S_TY)
    k("s_cselect_b64 s[16:17], s[%d:%d], s[%d:%d]" % (P_WG, P_WG+1, P_WQKV, P_WQKV+1))
    k("s_cselect_b64 s[%d:%d], s[%d:%d], s[%d:%d]" % (P_WU, P_WU+1, P_WU, P_WU+1, P_WQKV, P_WQKV+1))
    srd(k, SRD_X, P_X, 0, 128*1280, S_T0)
    stamp(k, 1)
    Q = dma_queue()
    issue_now(k, Q, 4)
    srd(k, SRD_W0, 16, 0, "s77", 75)
    srd(k, SRD_W1, P_WU, 0, "s78", 76)
    issue_now(k, Q, 6)
    astamp(k, 3)
    touch_setup(k)
    for it in touch_items(-1):
        if it[0]: k(it[0])
        k.vm(it[1], it[2])
    sv0 = list(k.vmq)
    aflush(k)
    k("s_cmp_ge_u32 s%d, 9" % S_TY); k("s_cbranch_scc1 L_att")
    ps, rest = ffn_role(k, Q)
    sv = (list(k.vmq), list(k.lgq))
    k("s_cmp_lt_u32 s%d, %d" % (S_OMT, 2*(3 - cfg.AUXU))); k("s_cbranch_scc1 L_f2")
    tail(k, 1, list(rest), [], [], presig=ps)
    k.label("L_f2")
    k.vmq, k.lgq = sv
    assert len(rest) >= 5
    tail(k, 2, list(rest[:-5]), [], list(rest[-5:]), presig=ps)
    k.label("L_att")
    k("s_lshl_b32 s79, s79, 1")
    k("s_add_u32 s79, s79, s%d" % S_C)
    k("s_mul_i32 s80, s79, 3200")
    srd(k, SRD_P, P_WPHI, 0, 3200, 80)
    k("s_cmp_ge_u32 s%d, 13" % S_TY); k("s_cselect_b32 s81, 12800, 0")
    k.flush_counters(); k.vmq = list(sv0)
    att_loop(k, Q)
    sv1 = (list(k.vmq), list(k.lgq))
    k("s_cmp_ge_u32 s%d, 13" % S_TY); k("s_cbranch_scc1 L_q")
    kv_role(k)
    tail(k, 0, [], list(range(cfg.KVN, 70)), bo_items())
    k.label("L_q")
    k.vmq, k.lgq = sv1
    q_role(k)
    tail(k, 2, b_items(range(32, 70)) + bo_items()[:cfg.BOQ], [], bo_items()[cfg.BOQ:])
    k.flush_counters()
    k.label("L_aux")
    aux_role(k)
    tail(k, 0, [], list(range(cfg.AUXB, 70)), bo_items(), reducer=True)
    k.label("L_end")
    k("s_endpgm")

def build(fn, listform=True):
    k = K()
    k.raw(open("header.txt").read().rstrip())
    if listform: k.raw("; @launch kernel=%s grid=(256,1,1) block=(256,1,1) lds=163840" % NAME)
    else: k.raw("; @launch grid=(256,1,1) block=(256,1,1) lds=163840")
    k.raw('.amdgcn_target "amdgcn-amd-amdhsa--gfx950"')
    k.raw(".text")
    kernel(k)
    k.raw('.section .rodata,"a"')
    k.raw(kernel_desc(NAME, 512, 256))
    open(fn, "w").write(k.text())

if __name__ == "__main__":
    for a in sys.argv[2:]:
        if "=" in a:
            n, v = a.split("="); setattr(cfg, n, eval(v))
    if cfg.NOSC: LSC = ""
    build(sys.argv[1], listform="single" not in sys.argv)
```

```python
import sys
from fw import *

A2_OFF = 0;          A2_SZ = 32*74*4096
B2_OFF = 0xA00000;   B2_SZ = 8*74*5120
PQ_OFF = 0x1800000;  PQ_SZ = 32*128*1280
KVP_OFF = 0x1000000; KVPS = 3584; KVP_SZ = 16*16*KVPS
G_OFF = 0x1200000;   G_SZ = 8192
CNT_OFF = 0x1300000
ST_OFF = 0x1400000
LOG2E = 1.4426950408889634
NAME = "gated_mix__linear_kernel_hedgehog__swiglu_ffn__prompt_kernel"

class Cfg:
    STAMP = 0; STG = 0
    MAXD = 11; N2 = 6; N3 = 10
    P2M = 4
    TW = [(-1,1,7),(1,8,6),(4,14,6)]
    TX = [(-1,1,3),(1,4,3),(4,7,3)]
    ORDER = [0, 9, 1, 10, 2, 11, 3, 12, 4, 13, 5, 14, 6, 7, 8, 15]
    PS1 = 10
    NBF = 40
    NBA = 32
    AUXT = 10
    AUXD = 3
    FFE = (2, 7)
    MK = 0
    KLAT = 15
    PER = 2
    BOF = 10
    KVB0 = 1
    TPER = 2
    BLP = 5
    U2 = 1
    BTL = []
    MF1 = 120
    FPRE = 20
    MFK = 100
    X_LIGHT = 0
    AUXB = 70
    RBH = 0
    MF2 = 80
    MFQ = 120
    BPR = 1
    BPW = 40
    LORD = 0
    RSP = 0
    HP = (1, 5)
    QEARLY = 1
    AUXU = 0
    BT = 0
    BT2 = 0
    AUXNT = 1
    L2PF = 0
    PE1 = 20
    BOL = 3
    BOS = 0
    PSA = 16
    KVN = 62
    BPRE = 50
    RFIRST = 0
    MF = 120
    MAXD0 = 16
    BLK = 2
    PHS = 3
    AST = 0
    X_NOWAIT = 0
    X_NOO = 0
    X_NOB = 0
    X_END = 0
    X_NOA = 0
    MO = 238
    NOSC = 0
    NOMF = 0
    CS = 4096+256
    ONE = 1
    SLP = 2
    KI = 1
    MIX = 6
    FLAT = (1, 3)
    XD = 0
    BOQ = 5
    QPRE = 6
    FQ = (7, 10)
    OFIRST = 1
    OUTF = ''
    BOEARLY = 0
    QLAT = 40
    MAP = 3
    AORD = [9, 13, 10, 11, 14, 12]
    DBGWG = -1
    PADST = None
    PADMIN = 0
    CPF = 1
    TNT = 0
    NODMA = 0
    CYC = 0
    PADTY = None
    EARLY0 = 0
    KL2 = 40
    OSD = 20
cfg = Cfg()
SC = " sc1"
LSC = " sc1"

P_X, P_WQKV, P_WPHI, P_WO, P_WG, P_WU, P_WD, P_GW, P_OUT, P_DBG, P_WS = 8, 10, 12, 14, 18, 20, 22, 24, 26, 28, 30
S_W, S_RH, S_C, S_MT, S_TY, S_M64, S_NT, S_OH = 32, 33, 34, 35, 36, 37, 38, 39
SRD_X, SRD_W0, SRD_W1, SRD_O, SRD_P = 40, 44, 48, 52, 56
S_STRIDE, S_WOFF, S_WL, S_XL, S_T0, S_T1, S_T2, S_T3, S_DELTA, S_SIG = 60, 61, 62, 63, 64, 65, 66, 67, 68, 69
S_C2 = 70
S_OMT = 83; SRD_B = 84; S_BOFF = 88; S_BB = 89; S_CNT = 90; SRD_T = 96
V_L16, V_L16B, V_PT = 2, 3, 4
V_WD = 5; V_XD = 6; V_XR = 10; V_TA = 12; V_TW = 24; V_TX = 25; V_JUNK = 63; V_Z = 0
ACC0 = 64
WF0 = 256; XF0 = 256 + 96; GF0 = 256 + 88; GACC = 224
C_H, C_O, C_P = 0, 16, 32
N_S1 = 48; N_S3 = 4
KVF_OFF = KVP_OFF + KVP_SZ
SPARE = 147456
D_S1, D_S2, D_S3 = 0, 64, 128

def srd(k, d, b, off, nbytes, soff=None):
    if off or soff is not None:
        if soff is not None:
            k("s_add_u32 s%d, s%d, s%d" % (d, b, soff)); k("s_addc_u32 s%d, s%d, 0" % (d+1, b+1))
            if off:
                k("s_add_u32 s%d, s%d, 0x%x" % (d, d, off)); k("s_addc_u32 s%d, s%d, 0" % (d+1, d+1))
        else:
            k("s_add_u32 s%d, s%d, 0x%x" % (d, b, off)); k("s_addc_u32 s%d, s%d, 0" % (d+1, b+1))
        k("s_and_b32 s%d, s%d, 0xffff" % (d+1, d+1))
    else:
        k("s_mov_b32 s%d, s%d" % (d, b)); k("s_and_b32 s%d, s%d, 0xffff" % (d+1, b+1))
    if isinstance(nbytes, int): k("s_mov_b32 s%d, 0x%x" % (d+2, nbytes))
    else: k("s_mov_b32 s%d, %s" % (d+2, nbytes))
    k("s_mov_b32 s%d, 0x20000" % (d+3))

def stamp(k, i):
    if not cfg.STAMP or (cfg.AST and i != 15): return
    k("s_memtime s[92:93]" if cfg.STAMP == 2 else "s_memrealtime s[92:93]")
    k("s_waitcnt lgkmcnt(0)")
    k.lgq = []
    k("v_writelane_b32 v1, s92, %d" % i)
_ap = []
def astamp(k, idx):
    if not cfg.AST: return
    pair = (4, 6, 92, 94, 52, 54, 56, 58)[len(_ap)]
    k("s_memrealtime s[%d:%d]" % (pair, pair+1)); _ap.append((pair, idx))
def aflush(k):
    if not cfg.AST: return
    k("s_waitcnt lgkmcnt(0)"); k.lgq = []
    for p, i in _ap: k("v_writelane_b32 v1, s%d, %d" % (p, i))
    del _ap[:]
def stamp_out(k):
    if not cfg.STAMP: return
    k("s_waitcnt vmcnt(0)")
    stamp(k, 15)
    k("v_writelane_b32 v1, s%d, 16" % S_TY)
    srd(k, 40, P_WS, ST_OFF, 1024*128)
    k("s_lshl_b32 s92, s2, 2"); k("s_add_u32 s92, s92, s%d" % S_W); k("s_lshl_b32 s92, s92, 7")
    k("v_lshlrev_b32 v5, 2, v0")
    k("v_cmp_gt_u32 vcc, 32, v0")
    k("v_mov_b32 v6, 0x7fffffff")
    k("v_cndmask_b32 v5, v6, v5, vcc")
    k("buffer_store_dword v1, v5, s[40:43], s92 offen")
    if cfg.PADST is not None:
        k("v_readlane_b32 s94, v1, %d" % abs(cfg.PADST))
        k("v_readlane_b32 s95, v1, 0")
        k("s_max_u32 s94, s94, s95")
        if cfg.CYC:
            a, b = ((31, 25) if cfg.CYC == 1 else (24, 23))
            k("v_readlane_b32 s96, v1, %d" % a); k("v_readlane_b32 s97, v1, %d" % b)
            k("s_sub_u32 s96, s96, s97")
            if cfg.CYC == 1: k("s_lshr_b32 s96, s96, 2")
            else: k("s_lshl_b32 s96, s96, 2")
            k("s_add_u32 s94, s95, s96")
        if cfg.PADTY:
            k("s_cmp_lt_u32 s%d, %d" % (S_TY, cfg.PADTY[0])); k("s_cselect_b32 s94, s95, s94")
            k("s_cmp_gt_u32 s%d, %d" % (S_TY, cfg.PADTY[1])); k("s_cselect_b32 s94, s95, s94")
        if cfg.PADMIN:
            k("s_not_b32 s95, s94")
            k("v_mov_b32 v7, s95"); k("v_mov_b32 v8, 192")
            k("s_cmp_eq_u32 s%d, 0" % S_W)
            k("s_cselect_b64 exec, 1, 0")
            k("s_cbranch_execz Lnoat")
            k("global_atomic_umax v8, v7, s[%d:%d] sc1" % (P_DBG, P_DBG+1))
            k.label("Lnoat")
            k("s_mov_b64 exec, -1")
            k("s_add_u32 s94, s94, 4500")
            k.label("Lpad0")
            k("s_sleep 4")
            k("s_memrealtime s[96:97]")
            k("s_waitcnt lgkmcnt(0)")
            k("s_sub_u32 s98, s96, s94")
            k("s_cmp_lt_i32 s98, 0")
            k("s_cbranch_scc1 Lpad0")
            k("global_load_dword v7, v8, s[%d:%d] sc1" % (P_DBG, P_DBG+1))
            k("s_waitcnt vmcnt(0)")
            k("v_readfirstlane_b32 s94, v7")
            k("s_not_b32 s94, s94")
        k("s_add_u32 s94, s94, 6000")
        lp = k.newlabel("Lpad"); k.label(lp)
        k("s_sleep 4")
        k("s_memrealtime s[96:97]")
        k("s_waitcnt lgkmcnt(0)")
        k("s_sub_u32 s98, s96, s94")
        k("s_cmp_lt_i32 s98, 0")
        k("s_cbranch_scc1 %s" % lp)
    if cfg.DBGWG >= 0:
        k("s_cmp_eq_u32 s92, %d" % (cfg.DBGWG*512))
        k("s_cselect_b32 s93, 64, 0")
        srd(k, 44, P_DBG, 0, "s93")
        k("v_readlane_b32 s93, v1, 0")
        k("v_subrev_u32 v7, s93, v1")
        k("v_cmp_lt_u32 vcc, 0, v0")
        k("v_cndmask_b32 v5, v6, v5, vcc")
        k("buffer_store_dword v7, v5, s[44:47], 0 offen")

def code_prefetch(k, vt):
    k("s_getpc_b64 s[72:73]")
    l = k.newlabel("Lpc"); k.label(l)
    k("s_lshr_b32 s74, s2, 3")
    k("s_lshl_b32 s74, s74, 7")
    k("v_and_b32 v%d, 31, v0" % vt)
    k("v_lshlrev_b32 v%d, 12, v%d" % (vt, vt))
    k("v_add_u32 v%d, s74, v%d" % (vt, vt))
    k("v_min_u32 v%d, L_end-%s-4, v%d" % (vt, l, vt))
    k.vm("global_load_dword v%d, v%d, s[72:73]" % (vt, vt), "pf")

def _pload(k, base, tag):
    if cfg.ONE:
        a = k.newlabel("Lp0"); b = k.newlabel("Lp1")
        k("s_cmp_lg_u32 s%d, 0" % S_W); k("s_cbranch_scc1 %s" % a)
        k("global_load_dword v31, v%d, s[%d:%d] sc1" % (V_PT, base, base+1))
        k("s_branch %s" % b)
        k.label(a)
        k("v_mov_b32 v%d, 0" % V_PT)
        k("global_load_dword v31, v%d, s[%d:%d]" % (V_PT, P_X, P_X+1))
        k.label(b)
        k.vmq.append(tag)
    else: k.vm("global_load_dword v31, v%d, s[%d:%d] sc1" % (V_PT, base, base+1), tag)
def poll_issue(k, base, off, tag):
    k("v_mov_b32 v%d, %s" % (V_PT, off))
    _pload(k, base, tag)
def vpoll_issue(k, off, n, tag):
    k("v_min_u32 v%d, %d, v0" % (V_PT, n-1)); k("v_mul_u32_u24 v%d, %d, v%d" % (V_PT, cfg.CS, V_PT)); k("v_add_u32 v%d, %s, v%d" % (V_PT, off, V_PT))
    _pload(k, S_CNT, tag)
def poll_check(k, base, target, tag, sleep=None, barrier=True):
    l = k.newlabel("Lpoll"); d = k.newlabel("Lpd")
    if base == S_CNT and (cfg.X_NOWAIT == 1 or (cfg.X_NOWAIT and tag in cfg.X_NOWAIT)): target = 0
    k.wait(vm=tag)
    if cfg.ONE:
        k("s_cmp_lg_u32 s%d, 0" % S_W); k("s_cbranch_scc1 %s" % d)
    k("v_cmp_gt_u32 vcc, %d, v31" % target)
    k("s_mov_b32 s95, 0x8000")
    k("s_cmp_eq_u64 vcc, 0")
    k("s_cbranch_scc1 %s" % d)
    k.label(l)
    k("s_sleep %d" % (sleep or cfg.SLP))
    k("global_load_dword v31, v%d, s[%d:%d] sc1" % (V_PT, base, base+1))
    k("s_waitcnt vmcnt(0)")
    k("v_cmp_gt_u32 vcc, %d, v31" % target)
    k("s_sub_u32 s95, s95, 1")
    k("s_cmp_eq_u64 vcc, 0")
    k("s_cbranch_scc1 %s" % d)
    k("s_cmp_lg_u32 s95, 0")
    k("s_cbranch_scc1 %s" % l)
    k.label(d)
    if cfg.ONE and barrier: k("s_barrier")
def vpoll_check(k, target, tag): poll_check(k, S_CNT, target, tag)
def signal(k, base, off, ra=V_PT, rd=31):
    d = k.newlabel("Lsg")
    k("s_barrier")
    k("s_cmp_lg_u32 s%d, 0" % S_W)
    k("s_cbranch_scc1 %s" % d)
    k("v_mov_b32 v%d, %s" % (ra, off))
    k("v_mov_b32 v%d, 1" % rd)
    k("s_mov_b64 exec, 1")
    k("global_atomic_add v%d, v%d, s[%d:%d] sc1" % (ra, rd, base, base+1))
    k("s_mov_b64 exec, -1")
    k.label(d)

BL = [256+128+4*i for i in range(32)] + [256+48+4*i for i in range(12)] + [256+108+4*i for i in range(3)] \
   + [256+4*i for i in range(12)] + [256+96+4*i for i in range(3)] + [32+4*i for i in range(8)]
def bloc(n): return BL[n]
def b_items(frs):
    out = []; cur = None
    for n in frs:
        st, ct = divmod(n, 5)
        pre = None
        if st != cur: pre = "s_add_u32 s%d, s%d, %d" % (S_BOFF, S_BB, (20 + 4*st)*5120); cur = st
        if ct < 4: t = "buffer_load_dwordx4 %s, v%d, s[%d:%d], s%d offen offset:%d%s" % (R(bloc(n),4), V_L16, SRD_B, SRD_B+3, S_BOFF, ct*1024, LSC)
        else: t = "buffer_load_dwordx4 %s, v%d, s[%d:%d], s%d offen%s" % (R(bloc(n),4), V_L16B, SRD_B, SRD_B+3, S_BOFF, LSC)
        out.append((pre, t, ("B", n)))
    return out
def bo_items():
    out = []
    for i in range(5):
        for ct in range(5):
            pre = "s_add_u32 m0, s%d, %d" % (S_BB, i*20480 + (4096 if ct == 4 else 0))
            if ct == 0: pre = "s_add_u32 s100, s%d, %d\n" % (S_BB, i*20480) + pre
            if ct < 4: t = "buffer_load_dwordx4 v%d, s[%d:%d], s100 offen offset:%d%s lds" % (V_L16, SRD_B, SRD_B+3, ct*1024, LSC)
            else: t = "buffer_load_dwordx4 v%d, s[%d:%d], s100 offen%s lds" % (V_L16B, SRD_B, SRD_B+3, LSC)
            out.append((pre, t, "BO"))
    return out
class Feed:
    def __init__(self, k, items): self.k = k; self.q = list(items)
    def emit(self, n=1):
        while self.q and n > 0:
            pre, t, tag = self.q.pop(0)
            if pre: self.k(pre)
            self.k.vm(t, tag); n -= 1
    def drain(self): self.emit(10**6)
def emit1(k, f):
    if callable(f): f()
    elif isinstance(f, tuple): (k.lg if f[0] == "lg" else k.vm)(f[1], f[2])
    else: k(f)
def weave(k, mf, fill, per=2):
    fill = list(fill)
    for m in mf:
        k(m)
        for _ in range(per):
            if fill: emit1(k, fill.pop(0))
    for f in fill: emit1(k, f)

WSLOT = 24576; RW = 4; XBASE = RW*WSLOT; XSLOT = 16384; RX = 3

def gemm_setup(k):
    k("v_lshrrev_b32 v28, 3, v0")
    k("v_and_b32 v29, 7, v0")
    k("v_bfe_u32 v26, v28, 1, 1")
    k("s_lshl_b32 s%d, s%d, 1" % (S_T0, S_RH))
    k("v_or_b32 v26, s%d, v26" % S_T0)
    k("v_lshlrev_b32 v26, 1, v26")
    k("v_xor_b32 v26, v26, v29")
    k("s_lshl_b32 s%d, s%d, 3" % (S_T0, S_W))
    k("v_add_u32 v27, s%d, v28" % S_T0)
    k("v_mul_lo_u32 v27, v27, s%d" % S_STRIDE)
    k("v_lshl_add_u32 v%d, v26, 4, v27" % V_WD)
    k("s_lshl_b32 s%d, s%d, 5" % (S_T0, S_W))
    k("v_lshrrev_b32 v26, 1, v28")
    k("v_xor_b32 v27, v26, v29")
    k("v_add_u32 v26, s%d, v28" % S_T0)
    k("v_mul_u32_u24 v26, 1280, v26")
    k("v_lshl_add_u32 v%d, v27, 4, v26" % V_XD)
    k("v_xor_b32 v%d, 64, v%d" % (V_XD+1, V_XD))
    k("v_add_u32 v%d, %d, v%d" % (V_XD+1, 8*1280, V_XD+1))
    k("v_add_u32 v%d, %d, v%d" % (V_XD+2, 16*1280, V_XD))
    k("v_add_u32 v%d, %d, v%d" % (V_XD+3, 16*1280, V_XD+1))
    k("s_mul_i32 s%d, s%d, 6144" % (S_WL, S_W))
    k("s_lshl_b32 s%d, s%d, 12" % (S_XL, S_W))
    k("s_add_u32 s%d, s%d, %d" % (S_XL, S_XL, XBASE))
    k("s_mov_b32 s%d, 0" % S_WOFF)
    k("s_lshl_b32 s%d, s%d, 5" % (S_T3, S_STRIDE))

def touch_setup(k):
    k("v_lshrrev_b32 v26, 2, v0")
    k("v_and_b32 v27, 3, v0")
    k("s_lshl_b32 s%d, s%d, 1" % (S_T0, S_MT))
    k("s_add_u32 s%d, s%d, s%d" % (S_T0, S_T0, S_C))
    k("v_lshlrev_b32 v28, 5, v26")
    k("v_add_u32 v28, s%d, v28" % S_T0)
    k("v_mul_lo_u32 v28, v28, s%d" % S_STRIDE)
    k("v_min_u32 v29, 2, v27")
    k("v_lshl_add_u32 v%d, v29, 7, v28" % V_TW)
    k("s_lshl_b32 s%d, s%d, 4" % (S_T0, S_TY))
    k("s_lshl_b32 s%d, s%d, 2" % (S_T1, S_W))
    k("s_add_u32 s%d, s%d, s%d" % (S_T0, S_T0, S_T1))
    k("v_add_u32 v27, s%d, v27" % S_T0)
    k("v_mul_u32_u24 v27, 1280, v27")
    k("v_lshl_add_u32 v%d, v26, 7, v27" % V_TX)
    k("s_cmp_eq_u32 s%d, 0" % S_RH)
    for i in range(3): k("s_cselect_b32 s%d, s%d, s%d" % (SRD_T+i, SRD_W0+i, SRD_W1+i))
    k("s_mov_b32 s%d, 0x20000" % (SRD_T+3))
def masked(n, t):
    if n >= 16: return t
    return "s_bfm_b64 exec, %d, 0\n%s\ns_mov_b64 exec, -1" % (4*n, t)
def touch_items(stage):
    out = []
    for (st, first, n) in cfg.TW:
        if st == stage:
            out.append(("s_mul_i32 s101, s%d, %d" % (S_STRIDE, 32*first), masked(n, "buffer_load_dword v%d, v%d, s[%d:%d], s101 offen%s" % (V_JUNK, V_TW, SRD_T, SRD_T+3, " nt" if cfg.TNT else "")), "pf"))
    for (st, first, n) in cfg.TX:
        if st == stage:
            out.append((None, masked(n, "buffer_load_dword v%d, v%d, s[%d:%d], 0 offen offset:%d" % (V_JUNK, V_TX, SRD_X, SRD_X+3, first*128)), "pf"))
    return out

def gemm_setup2(k, att):
    npt = 5 if att else 6
    k("v_and_b32 v54, 15, v0")
    k("v_lshrrev_b32 v55, 4, v0")
    k("v_bfe_u32 v26, v54, 1, 3")
    k("v_xor_b32 v26, v26, v55")
    k("s_lshl_b32 s%d, s%d, 13" % (S_T0, S_RH))
    k("s_add_u32 s%d, s%d, %d" % (S_T0, S_T0, XBASE))
    k("v_lshlrev_b32 v27, 7, v54")
    k("v_add_u32 v27, s%d, v27" % S_T0)
    k("v_lshl_add_u32 v%d, v26, 4, v27" % V_XR)
    k("v_xor_b32 v%d, 64, v%d" % (V_XR+1, V_XR))
    k("v_bfe_u32 v26, v0, 2, 2")
    k("v_and_b32 v27, 3, v0")
    k("v_lshrrev_b32 v28, 1, v26")
    k("v_and_b32 v29, 1, v55")
    k("v_lshl_or_b32 v28, v29, 1, v28")
    k("v_lshlrev_b32 v28, 5, v28")
    k("v_mul_u32_u24 v29, 6144, v55")
    k("v_lshl_add_u32 v29, v26, 7, v29")
    if att:
        k("s_mul_i32 s%d, s%d, 160" % (S_T0, S_C))
        k("s_add_u32 s%d, s%d, s%d" % (S_T0, S_T0, S_DELTA))
        k("v_mul_u32_u24 v27, 40, v27")
    else:
        k("s_mul_i32 s%d, s%d, 192" % (S_T0, S_C))
        k("v_lshlrev_b32 v27, 3, v27")
    k("v_add_u32 v27, s%d, v27" % S_T0)
    for p in range(npt):
        k("v_add_u32 v30, %d, v27" % (p * (8 if att else 32)))
        k("v_lshrrev_b32 v31, 7, v30")
        k("v_and_b32 v30, 127, v30")
        k("v_xor_b32 v30, v30, v28")
        k("v_lshl_add_u32 v31, v31, 10, v29")
        k("v_add_u32 v%d, v30, v31" % (V_TA+p))
        k("v_add_u32 v%d, %d, v%d" % (V_TA+6+p, 2*WSLOT, V_TA+p))

def w_dma(s):
    return [("s_add_u32 m0, s%d, %d" % (S_WL, (s % RW)*WSLOT + (seg*3+lc)*1024 - lc*128),
             "buffer_load_dwordx4 v%d, s[%d:%d], s%d offen offset:%d lds" % (V_WD, SRD_W0+4*seg, SRD_W0+4*seg+3, S_WOFF, lc*128), ("W", s))
            for seg in range(2) for lc in range(3)]
def x_dma(u, i):
    return ("s_add_u32 m0, s%d, %d" % (S_XL, (u % RX)*XSLOT + i*1024 - u*128),
            "buffer_load_dwordx4 v%d, s[%d:%d], 0 offen offset:%d lds" % (V_XD+i, SRD_X, SRD_X+3, u*128), ("X", u))
def reads_for(s, npt):
    out = []; b = s & 1
    for rt in range(4):
        out.append("ds_read_b128 %s, v%d offset:%d" % (R(XF0 + (b*4+rt)*4, 4), V_XR + (s & 1), ((s >> 1) % RX)*XSLOT + rt*2048))
    slot = s % RW
    for p in range(npt):
        for seg in range(2):
            for h in range(2):
                out.append("ds_read_b64_tr_b16 %s, v%d offset:%d" % (R(WF0 + (b*12+p*2+seg)*4 + 2*h, 2), V_TA + p + (6 if slot >= 2 else 0), (slot & 1)*WSLOT + seg*3072 + h*512))
    return out
def acc(p, seg, rt): return ACC0 + ((p*2+seg)*4 + rt)*4

def late_setup_items():
    k = K()
    k("s_and_b32 s%d, s2, 7" % S_T1)
    k("s_lshr_b32 s%d, s2, 3" % S_OH)
    if cfg.P2M == 4:
        k("s_lshl_b32 s%d, s%d, 2" % (S_M64, S_T1)); k("s_and_b32 s%d, s%d, 3" % (S_T0, S_OH)); k("s_add_u32 s%d, s%d, s%d" % (S_M64, S_M64, S_T0))
        k("s_lshr_b32 s%d, s%d, 2" % (S_NT, S_OH))
    else:
        k("s_lshr_b32 s%d, s%d, 1" % (S_M64, S_T1)); k("s_lshl_b32 s%d, s%d, 3" % (S_M64, S_M64)); k("s_and_b32 s%d, s%d, 7" % (S_T0, S_OH)); k("s_add_u32 s%d, s%d, s%d" % (S_M64, S_M64, S_T0))
        k("s_and_b32 s%d, s%d, 1" % (S_NT, S_T1)); k("s_lshl_b32 s%d, s%d, 2" % (S_NT, S_NT)); k("s_lshr_b32 s%d, s%d, 3" % (S_T0, S_OH)); k("s_add_u32 s%d, s%d, s%d" % (S_NT, S_NT, S_T0))
    k("s_lshr_b32 s%d, s%d, 1" % (S_OMT, S_OH))
    k("s_lshl_b32 s%d, s%d, 1" % (S_OMT, S_OMT))
    k("s_and_b32 s%d, s%d, 1" % (S_OH, S_OH)); k("s_lshl_b32 s%d, s%d, 1" % (S_T0, S_T1)); k("s_add_u32 s%d, s%d, s%d" % (S_OH, S_OH, S_T0))
    k("s_mul_i32 s%d, s%d, %d" % (S_T0, S_NT, 74*5120))
    srd(k, SRD_B, P_WS, B2_OFF, 74*5120, S_T0)
    k("s_mul_i32 s%d, s%d, 5120" % (S_BB, S_W))
    k("s_add_u32 s%d, s%d, 0x%x" % (S_CNT, P_WS, CNT_OFF))
    k("s_addc_u32 s%d, s%d, 0" % (S_CNT+1, P_WS+1))
    k("v_add_u32 v%d, 4096, v%d" % (V_L16B, V_L16))
    k("s_mov_b32 s%d, %s" % (S_C2, f32(LOG2E))); k("s_mov_b32 s%d, %s" % (S_C2+1, f32(LOG2E)))
    return [t for _, t in k.items]

def dma_queue():
    Q = []
    for st in range(20):
        if st % 2 == 0:
            u = st // 2
            for i in range(4): Q.append((-1 if u < RX else 2*(u-RX)+1, x_dma(u, i), False))
        it = w_dma(st)
        for i, d in enumerate(it): Q.append((-1 if st < RW else max(1, st-RW), d, i == len(it)-1))
    return Q
def wadv(k): k("s_add_u32 s%d, s%d, s%d" % (S_WOFF, S_WOFF, S_T3))
def issue_now(k, Q, n):
    for _ in range(n):
        av, it, last = Q.pop(0)
        k(it[0]); k.vm(it[1], it[2])
        if last: wadv(k)

def btouch(first_ks, n):
    out = []
    for i in range(n):
        pre = "s_and_b32 s101, s%d, 3\ns_lshl_b32 s101, s101, 2\ns_add_u32 s101, s101, s%d\ns_lshl_b32 s101, s101, 13\ns_add_u32 s101, s101, %d\nv_lshlrev_b32 v24, 7, v0" % (S_M64, S_W, first_ks*5120 + i*131072)
        out.append((pre, "buffer_load_dword v25, v24, s[%d:%d], s101 offen%s" % (SRD_B, SRD_B+3, SC), "pf"))
    return out
def spread(items, s0, s1):
    out = {}; n = len(items); i = 0
    for s in range(s0, s1):
        c = -(-(n - i) // (s1 - s)); out[s] = items[i:i+c]; i += c
    return out

def capture(fn):
    q = K(); q.nl = 100000 + capture.n; capture.n += 100
    fn(q)
    assert not q.vmq and not q.lgq
    return q.items
capture.n = 0

def gemm_main(k, att, Q, extra, polls, xrd=None, xwait=None, xsetup=None):
    npt = 5 if att else 6
    Q = list(Q)
    astamp(k, 4)
    gemm_setup2(k, att)
    astamp(k, 5)
    issue_now(k, Q, cfg.N2)
    side = []
    for t in late_setup_items():
        if side and (t.startswith(("s_addc", "s_cselect", "v_cndmask")) ): side[-1] += "\n" + t
        else: side.append(t)
    blocks = []
    if xsetup:
        its = capture(xsetup)
        if any(kd == "l" for kd, _ in its): blocks = its
        else:
            for _, t in its:
                if side and t.startswith(("s_addc", "s_cselect", "v_cndmask", "s_and_b64")): side[-1] += "\n" + t
                else: side.append(t)
    rds = lambda s: reads_for(s, npt)
    stamp(k, 2)
    astamp(k, 6)
    k.wait(vm=[("X", 0), ("W", 0)])
    k("s_barrier")
    astamp(k, 7)
    aflush(k)
    stamp(k, 3)
    r0 = rds(0)
    for i, r in enumerate(r0): k.lg(r, ("r0", max(0, i-4)//2))
    astamp(k, 8)
    for s in range(20):
        b = s & 1
        rd = rds(s+1) if s < 19 else []
        if xrd and s in xrd: rd += xrd[s]
        dm = []
        while Q and Q[0][0] <= s and len(dm) < (cfg.MAXD0 if s == 0 else cfg.MAXD): dm.append(Q.pop(0))
        ex = [(0, e, False) for e in extra.get(s, [])]
        mix = []
        while dm or ex:
            if dm: mix.append(dm.pop(0))
            if ex and len(ex) >= len(dm): mix.append(ex.pop(0))
        dm = mix + [(0, e, False) for e in touch_items(s)]
        mf = []
        idx = [(p, seg, rt) for p in range(npt) for seg in range(2) for rt in range(4)]
        if cfg.LORD == 1 and s: idx = [(p, seg, rt) for rt in range(4) for p in range(npt) for seg in range(2)]
        if cfg.LORD == 2 and s: idx = [(p, seg, (rt if (p*2+seg) % 2 == 0 else 3-rt)) for p in range(npt) for seg in range(2) for rt in range(4)]
        for p, seg, rt in idx:
            a = acc(p, seg, rt)
            mf.append("v_mfma_f32_16x16x32_bf16 %s, %s, %s, %s" % (R(a,4), R(WF0 + (b*12+p*2+seg)*4, 4), R(XF0 + (b*4+rt)*4, 4), R(a,4) if s else "0"))
        nm = len(mf); nd = len(dm)
        at = [int(i * (nm - 3) / max(nd, 1)) for i in range(nd)]
        for i in range(1, nd): at[i] = max(at[i], at[i-1] + 2)
        pend = None
        m1 = nm - 4 - (len(rd) + 1)//2 if s == 0 else 0
        for m, t in enumerate(mf):
            if s == 0 and m % 4 == 0 and not cfg.AST: k.wait(lg=("r0", m//4))
            if s == 0 and m == 0 and cfg.AST: k.wait(lg="all")
            if s == 0 and m == m1:
                k.wait(vm=("W", 1), lg="all"); k("s_barrier")
            k(t)
            used = 0
            if m >= m1 and not (cfg.RSP and s and len(rd) <= (nm - 6 - m) * 2 // 3 + 0 and m % 3 == 2):
                for _ in range(2 if s == 0 else 1):
                    if rd: k.lg(rd.pop(0)); used += 1
            if (s+1) in polls and m == nm - 1: poll_issue(k, P_DBG, polls[s+1], ("poll", s+1))
            if pend is not None:
                k.vm(pend[1][1], pend[1][2]); used += 1
                if pend[2]: wadv(k)
                pend = None
            elif dm and m >= at[nd - len(dm)]:
                pend = dm.pop(0)
                if pend[1][0]: k(pend[1][0]); used += 1
            while side and used < 2 and s >= 1:
                k(side.pop(0)); used += 1
        assert not rd and not dm and pend is None, (s, rd, dm, pend)
        if s == cfg.BLK and blocks:
            assert not side
            k.items += blocks
        if s < 19:
            k.wait(vm=[("W", s+2), ("X", (s+2) >> 1)] + (xwait.get(s, []) if xwait else []), lg="all")
        if s in polls: poll_check(k, P_DBG, N_S1 if polls[s] == D_S1 else N_S3, ("poll", s), sleep=8, barrier=(s == 19))
        if s < 19:
            k("s_barrier")
            if s == 0: aflush(k)
            if s < 4: astamp(k, 11 + s)
            if s == 4: aflush(k)
            if cfg.STG and s % 2 == 1: stamp(k, 17 + s//2)
    assert not Q and not side
    stamp(k, 4)

def ffn_setup(k):
    k("s_lshl_b32 s75, s%d, 1" % S_MT)
    k("s_add_u32 s75, s75, s%d" % S_RH)
    k("s_mul_i32 s75, s75, 74")
    k("s_mul_i32 s76, s%d, 6" % S_TY)
    k("s_add_u32 s75, s75, s76")
    k("s_mul_i32 s76, s%d, 3" % S_C)
    k("s_add_u32 s75, s75, s76")
    k("s_add_u32 s75, s75, 20")
    k("s_lshl_b32 s75, s75, 12")
    k("s_mul_i32 s%d, s%d, %d" % (S_SIG, S_MT, cfg.CS))
    srd(k, SRD_O, P_WS, A2_OFF, A2_SZ)

def ffn_role(k, Q):
    extra = spread(b_items(list(range(32)) + list(range(62, 70))), cfg.PS1, cfg.PE1)
    bo = bo_items()
    for g in range(cfg.BOL):
        st = max(16 + g, 20 - cfg.BOL + g, cfg.BOS)
        extra[st] = extra.get(st, []) + bo[5*g:5*g+5]
    polls = {cfg.PS1-1: D_S1}
    for st, ks in cfg.BTL: extra[st] = extra.get(st, []) + btouch(ks, 1)
    if cfg.BTL: polls = {min(cfg.PS1, cfg.BTL[0][0]) - 1: D_S1}
    if cfg.BT2:
        polls = {cfg.PS1-1: D_S1, cfg.BT2-1: D_S3}
        extra[cfg.BT2] = btouch(0, 1) + extra.get(cfg.BT2, [])
    gemm_main(k, False, Q, extra, polls, xsetup=ffn_setup)
    fd = Feed(k, b_items(range(32, 62)) + bo[5*cfg.BOL:])
    per, last = cfg.FFE
    n = 0
    for ks in range(3):
        for rt in range(4):
            T = 6 + (n & 1)*8; O = 22 + (n & 1)*4; n += 1
            if O & 3: O = (24, 28)[(n-1) & 1] - 0
            fe = lambda i: fd.emit(1) if (n <= last and i < per) else None
            G = [acc(2*ks+j, 0, rt) for j in range(2)]; U = [acc(2*ks+j, 1, rt) for j in range(2)]
            O = U[0]
            prs = [(j, h) for j in range(2) for h in range(2)]
            for i, (j, h) in enumerate(prs):
                k("v_pk_mul_f32 %s, %s, s[%d:%d] neg_lo:[0,1] neg_hi:[0,1]" % (vr(T+2*i,2), vr(G[j]+2*h,2), S_C2, S_C2+1))
            fe(0)
            for i in range(8): k("v_exp_f32 v%d, v%d" % (T+i, T+i))
            fe(2)
            for i, (j, h) in enumerate(prs):
                k("v_pk_mul_f32 %s, %s, %s" % (vr(G[j]+2*h,2), vr(G[j]+2*h,2), vr(U[j]+2*h,2)))
            for i in range(4): k("v_pk_add_f32 %s, %s, 1.0 op_sel_hi:[1,0]" % (vr(T+2*i,2), vr(T+2*i,2)))
            fe(1)
            for i in range(8): k("v_rcp_f32 v%d, v%d" % (T+i, T+i))
            fe(3)
            for i, (j, h) in enumerate(prs):
                k("v_pk_mul_f32 %s, %s, %s" % (vr(T+2*i,2), vr(G[j]+2*h,2), vr(T+2*i,2)))
            for i in range(4): k("v_cvt_pk_bf16_f32 v%d, v%d, v%d" % (O+i, T+2*i, T+2*i+1))
            k.vm("buffer_store_dwordx4 %s, v%d, s[%d:%d], s75 offen offset:%d%s" % (vr(O,4), V_L16, SRD_O, SRD_O+3, rt*1024, SC), "st")
        if ks < 2: k("s_add_u32 s75, s75, 4096")
    stamp(k, 26)
    def presig():
        k.wait(vm="st")
        stamp(k, 5)
        signal(k, S_CNT, "s%d" % S_SIG, 14, 15)
    return presig, fd.q

def phi_dma(seg):
    pre = "s_add_u32 s%d, s%d, s81\ns_addc_u32 s%d, s%d, 0\n" % (SRD_P, SRD_P, SRD_P+1, SRD_P+1) if seg else ""
    return [((pre if i == 0 else "") + "s_add_u32 m0, s%d, %d" % (S_XL, XSLOT if seg else SPARE - XBASE),
             "buffer_load_dwordx4 v%d, s[%d:%d], 0 offen offset:%d lds" % (V_L16, SRD_P, SRD_P+3, i*1024), ("P", seg)) for i in range(4)]
def phireg(seg, to, s):
    i = s*5 + to
    if seg == 1: return 256 + 48 + 4*i if i < 10 else 256 + 108 + 4*(i-10)
    return 256 + 4*i if i < 12 else 256 + 96 + 4*(i-12)
V_PHA = 23
def phi_reads(seg):
    out = []
    for s in range(3):
        for to in range(5):
            for h in range(2):
                d = phireg(seg, to, s) + 2*h
                b = 0 if seg else SPARE - XBASE - XSLOT
                if s == 2 and h == 1: out.append("ds_read_b64_tr_b16 %s, v26 offset:%d" % (R(d,2), b))
                else: out.append("ds_read_b64_tr_b16 %s, v%d offset:%d" % (R(d,2), V_PHA, b + (8*s+4*h)*40 + 8*to))
    return out
def cvt_in(seg, rt, B):
    out = []
    for t in range(5):
        a = acc(t, seg, rt)
        out.append("v_cvt_pk_bf16_f32 v%d, v%d, v%d" % (B+2*t, a, a+1))
        out.append("v_cvt_pk_bf16_f32 v%d, v%d, v%d" % (B+2*t+1, a+2, a+3))
    return out
def phi_mf(seg, rt, B):
    return ["v_mfma_f32_16x16x32_bf16 %s, %s, %s, %s" % (vr(acc(to,seg,rt),4), R(phireg(seg, to, s),4), vr(B+4*s,4), vr(acc(to,seg,rt),4) if s else "0")
            for s in range(3) for to in range(5)]

PKRS = 352; VRS = 224; PKSZ = 128*PKRS; VB = 2*PKSZ; VSZ = 128*VRS
V_E0, V_E1, V_E2, V_E3, V_E4, V_E5, V_E6 = 27, 28, 29, 30, 60, 61, 62
def att_common_setup(k):
    k("v_lshrrev_b32 v50, 4, v0")
    k("v_and_b32 v51, 15, v0")
    k("v_bfe_u32 v52, v0, 2, 2")
    k("v_and_b32 v53, 3, v0")
    k("v_mul_u32_u24 v48, 800, v50")
    k("v_mad_u32_u24 v48, v52, 40, v48")
    k("v_cmp_eq_u32 vcc, v50, v53")
    k("v_mov_b32 v49, 3200")
    k("v_cndmask_b32 v48, v49, v48, vcc")
    k("s_add_u32 s%d, s%d, %d" % (S_T2, S_XL, XSLOT))
    k("v_add_u32 v%d, s%d, v48" % (V_PHA, S_T2))
    k("v_add_u32 v26, s%d, v49" % S_T2)
def kv_setup(k):
    k("s_lshl_b32 s%d, s%d, 6" % (S_T0, S_RH))
    k("v_add_u32 v48, s%d, v51" % S_T0)
    k("s_mul_i32 s%d, s%d, %d" % (S_T0, S_C, PKSZ))
    k("v_mul_u32_u24 v%d, %d, v48" % (V_E0, PKRS))
    k("v_mul_u32_u24 v49, 80, v50")
    k("v_add3_u32 v%d, v%d, v49, s%d" % (V_E0, V_E0, S_T0))
    k("s_mul_i32 s%d, s%d, %d" % (S_T1, S_C, VSZ))
    k("s_add_u32 s%d, s%d, %d" % (S_T1, S_T1, VB))
    k("v_mul_u32_u24 v%d, %d, v48" % (V_E1, VRS))
    k("v_mul_u32_u24 v49, 48, v50")
    k("v_add3_u32 v%d, v%d, v49, s%d" % (V_E1, V_E1, S_T1))
    k("v_lshrrev_b32 v48, 2, v0")
    k("v_lshlrev_b32 v49, 3, v53")
    k("s_mul_i32 s%d, s%d, 160" % (S_T2, S_RH))
    k("s_add_u32 s%d, s%d, s%d" % (S_T0, S_T0, S_T2))
    k("v_mul_u32_u24 v%d, %d, v48" % (V_E2, PKRS))
    k("v_add3_u32 v%d, v%d, v49, s%d" % (V_E2, V_E2, S_T0))
    k("s_mul_i32 s%d, s%d, 96" % (S_T2, S_RH))
    k("s_add_u32 s%d, s%d, s%d" % (S_T1, S_T1, S_T2))
    k("v_mul_u32_u24 v%d, %d, v48" % (V_E3, VRS))
    k("v_add3_u32 v%d, v%d, v49, s%d" % (V_E3, V_E3, S_T1))
    k("s_add_u32 s%d, s%d, %d" % (S_T2, S_XL, SPARE - XBASE))
    k("v_mul_u32_u24 v48, 80, v51")
    k("v_lshl_add_u32 v48, v50, 3, v48")
    k("v_add_u32 v%d, s%d, v48" % (V_E5, S_T2))
    k("v_add_u32 v%d, s%d, v%d" % (V_E6, S_T2, V_L16))
    k("v_mov_b32 v48, 0x7fffffff")
    k("v_cmp_gt_u32 vcc, 32, v0")
    k("v_cndmask_b32 v%d, v48, v%d, vcc" % (V_E4, V_L16))
    k("s_lshl_b32 s78, s79, 1")
    k("s_add_u32 s78, s78, s%d" % S_RH)
    k("s_lshl_b32 s78, s78, 4")
    k("s_add_u32 s78, s78, s%d" % S_MT)
    k("s_mul_i32 s78, s78, %d" % KVPS)
    k("v_cmp_gt_u32 s[72:73], 2, v50")
    k("v_cmp_gt_u32 s[74:75], 5, v51")
    k("s_and_b64 s[76:77], s[72:73], s[74:75]")
    srd(k, SRD_O, P_WS, KVP_OFF, KVP_SZ)
    for r in (42, 43, 54, 55): k("v_mov_b32 v%d, 0" % r)
def q_setup(k):
    k("s_mov_b32 s%d, 81920" % S_T0)
    k("v_mul_lo_u32 v48, v50, s%d" % S_T0)
    k("v_lshl_add_u32 v%d, v51, 4, v48" % V_E0)
    k("v_lshl_add_u32 v%d, v51, 3, v48" % V_E1)
    k("v_lshlrev_b32 v%d, 2, v0" % V_E2)
    k("s_mul_i32 s%d, s79, %d" % (S_T1, 4*81920))
    k("s_lshl_b32 s%d, s%d, 1" % (S_T0, S_MT))
    k("s_add_u32 s%d, s%d, s%d" % (S_T0, S_T0, S_RH))
    k("s_lshl_b32 s75, s%d, 10" % S_T0)
    k("s_add_u32 s75, s75, s%d" % S_T1)
    k("s_add_u32 s76, s75, 32768")
    k("s_lshl_b32 s77, s%d, 9" % S_T0)
    k("s_add_u32 s77, s77, s%d" % S_T1)
    k("s_add_u32 s77, s77, 65536")
    k("s_lshl_b32 s78, s%d, 8" % S_T0)
    k("s_add_u32 s78, s78, %d" % (G_OFF - PQ_OFF))
    k("s_add_u32 s%d, s%d, %d" % (S_SIG, S_MT, C_Q))
    k("s_mul_i32 s%d, s%d, %d" % (S_SIG, S_SIG, cfg.CS))
    srd(k, SRD_O, P_WS, PQ_OFF, G_OFF + G_SZ - PQ_OFF)
    for r in (42, 43, 54, 55): k("v_mov_b32 v%d, 0" % r)

def softmax_pm(k, P, E, T, O, fd=None, mf=None, side=None, inplace=None):
    def fe(n=1):
        if fd: fd.emit(n)
    mf = list(mf or []); side = list(side or [])
    v = [p + i for p in P for i in range(2)]
    k("v_max3_f32 v%d, v%d, v%d, v%d" % (T, v[0], v[1], v[2]))
    k("v_min3_f32 v%d, v%d, v%d, v%d" % (T+2, v[0], v[1], v[2]))
    k("v_max3_f32 v%d, v%d, v%d, v%d" % (T+1, v[3], v[4], v[5]))
    k("v_min3_f32 v%d, v%d, v%d, v%d" % (T+3, v[3], v[4], v[5]))
    for n, i in enumerate(range(6, 20, 2)):
        c = n & 1
        k("v_max3_f32 v%d, v%d, v%d, v%d" % (T+c, T+c, v[i], v[i+1]))
        k("v_min3_f32 v%d, v%d, v%d, v%d" % (T+2+c, T+2+c, v[i], v[i+1]))
    fe()
    k("v_max_f32 v%d, v%d, v%d" % (T, T, T+1))
    k("v_min_f32 v%d, v%d, v%d" % (T+2, T+2, T+3))
    k("v_mul_f32 v%d, %s, v%d" % (T, f32(-LOG2E), T))
    k("v_mul_f32 v%d, %s, v%d" % (T+2, f32(LOG2E), T+2))
    for i, p in enumerate(P):
        k("v_pk_fma_f32 %s, %s, s[%d:%d], %s op_sel_hi:[1,1,0]" % (vr(E+2*i,2), vr(p,2), S_C2, S_C2+1, vr(T,2)))
    fe()
    for i, p in enumerate(P):
        k("v_pk_fma_f32 %s, %s, s[%d:%d], %s op_sel_hi:[1,1,0] neg_lo:[0,1,0] neg_hi:[0,1,0]" % (vr(p,2), vr(p,2), S_C2, S_C2+1, vr(T+2,2)))
    ex = [E+i for i in range(20)] + v
    for i, x in enumerate(ex):
        if i % 2 == 0:
            if mf: k(mf.pop(0))
            if side:
                y = side.pop(0)
                if isinstance(y, str) or len(y) == 3: emit1(k, y)
                else: k.lg(*y)
        if i % 12 == 5: fe()
        k("v_exp_f32 v%d, v%d" % (x, x))
    assert not mf and not side
    Ep = [E+2*i for i in range(10)]
    k("v_pk_add_f32 %s, %s, %s" % (vr(T+4,2), vr(Ep[0],2), vr(Ep[1],2)))
    k("v_pk_add_f32 %s, %s, %s" % (vr(T,2), vr(Ep[2],2), vr(Ep[3],2)))
    k("v_pk_add_f32 %s, %s, %s" % (vr(T+6,2), vr(P[0],2), vr(P[1],2)))
    k("v_pk_add_f32 %s, %s, %s" % (vr(T+2,2), vr(P[2],2), vr(P[3],2)))
    for i in range(4, 10, 2):
        k("v_pk_add_f32 %s, %s, %s" % (vr(T+4,2), vr(T+4,2), vr(Ep[i],2)))
        k("v_pk_add_f32 %s, %s, %s" % (vr(T,2), vr(T,2), vr(Ep[i+1],2)))
        k("v_pk_add_f32 %s, %s, %s" % (vr(T+6,2), vr(T+6,2), vr(P[i],2)))
        k("v_pk_add_f32 %s, %s, %s" % (vr(T+2,2), vr(T+2,2), vr(P[i+1],2)))
    k("v_pk_add_f32 %s, %s, %s" % (vr(T+4,2), vr(T+4,2), vr(T,2)))
    k("v_pk_add_f32 %s, %s, %s" % (vr(T+6,2), vr(T+6,2), vr(T+2,2)))
    fe()
    k("v_add_f32 v%d, v%d, v%d" % (T+4, T+4, T+5))
    k("v_add_f32 v%d, v%d, v%d" % (T+6, T+6, T+7))
    k("v_rcp_f32 v%d, v%d" % (T+4, T+4))
    k("v_rcp_f32 v%d, v%d" % (T+6, T+6))
    for i in range(10): k("v_pk_mul_f32 %s, %s, %s op_sel_hi:[1,0]" % (vr(Ep[i],2), vr(Ep[i],2), vr(T+4,2)))
    fe()
    for i in range(10): k("v_pk_mul_f32 %s, %s, %s op_sel_hi:[1,0]" % (vr(P[i],2), vr(P[i],2), vr(T+6,2)))
    if inplace:
        fe()
        for t in pack_inplace(inplace, E): k(t)
        return
    for i in range(10): k("v_cvt_pk_bf16_f32 v%d, v%d, v%d" % (O+i, Ep[i], Ep[i]+1))
    fe()
    for i in range(10): k("v_cvt_pk_bf16_f32 v%d, v%d, v%d" % (O+10+i, P[i], P[i]+1))

def att_extra(two):
    extra = spread(b_items(range(cfg.NBA)), cfg.PSA, 20)
    for st, ks in cfg.BTL: extra[st] = extra.get(st, []) + btouch(ks, 1)
    extra[cfg.PHS] = phi_dma(0)
    return extra

def att_loop(k, Q):
    def setup(q): att_common_setup(q); kv_setup(q)
    gemm_main(k, True, Q, att_extra(True), {(min(cfg.PSA, cfg.BTL[0][0]) if cfg.BTL else cfg.PSA)-1: D_S1}, xrd={19: phi_reads(0)}, xwait={18: [("P", 0)]}, xsetup=setup)

def kv_role(k):
    EREG = 6; TREG = 244; O = 224
    for t in cvt_in(0, 0, 32): k(t)
    k.wait(lg="all")
    weave(k, phi_mf(0, 0, 32), cvt_in(0, 1, 44))
    if not cfg.STG: stamp(k, 17)
    def vout(rt):
        q = [acc(t, 1, rt) + i for t in range(5) for i in range(4)]
        f = ["v_cvt_pk_bf16_f32 v%d, v%d, v%d" % (q[i], q[2*i], q[2*i+1]) for i in range(10)]
        f += ["v_mov_b32 v%d, 0x3f80" % q[10], "v_mov_b32 v%d, 0" % q[11]]
        w = [("ds_write_b128 v%d, %s offset:%d" % (V_E1, vr(q[4*i],4), rt*16*VRS + 16*i), "vw") for i in range(3)]
        return f, w
    def vfr(n, bt): return acc((n*2+bt) >> 2, 1, (n*2+bt) & 3)
    vreads = []
    for n in range(8):
        j, ks = n >> 2, n & 3
        for bt in range(2):
            for h in range(2):
                vreads.append(("ds_read_b64_tr_b16 %s, v%d offset:%d" % (vr(vfr(n,bt)+2*h,2), V_E3, (32*ks+16*h)*VRS + j*48 + bt*32), "vf"))
    fd = Feed(k, [])
    for rt in range(4):
        P = [acc(t, 0, rt) + 2*h for t in range(5) for h in range(2)]
        mf = phi_mf(0, rt+1, 32 + ((rt+1) & 1)*12) if rt < 3 else []
        if rt == cfg.KVB0 and cfg.KVN >= 47: fd.q += b_items(range(32, 47))
        if rt == 3 and cfg.KVN >= 62: fd.q += b_items(range(47, 62))
        side = []
        if rt < 2:
            for r in (2*rt, 2*rt+1):
                f, w = vout(r)
                for t in f: k(t)
                side += w
        else:
            if rt == 2: k.wait(lg="vw"); k("s_barrier")
            side = vreads[(rt-2)*16:(rt-1)*16]
        softmax_pm(k, P, EREG, TREG, O, fd, mf, side)
        for i in range(5):
            k.lg("ds_write_b128 v%d, %s offset:%d" % (V_E0, vr(O+4*i,4), rt*16*PKRS + 16*i), ("pw", rt))
        if rt < 2:
            for t in cvt_in(0, rt+2, 32 + (rt & 1)*12): k(t)
        if not cfg.STG: stamp(k, 18+rt)
    k.wait(lg="all")
    k("s_barrier")
    if not cfg.STG: stamp(k, 22)
    KAQ = [32, 36, 40, 44, 48, 52, 224, 228, 232, 236, 240, 244]
    def pfr(n, ft): return acc(((n % 6)*3+ft) >> 2, 0, ((n % 6)*3+ft) & 3)
    def rd(n):
        j, ks = n >> 2, n & 3
        return [("lg", "ds_read_b64_tr_b16 %s, v%d offset:%d" % (vr(pfr(n,ft)+2*h,2), V_E2, (32*ks+16*h)*PKRS + j*80 + ft*32), ("f", n)) for ft in range(3) for h in range(2)]
    def pack(jj):
        f = []
        for ft in range(3):
            for bt in range(2):
                a = KAQ[(jj*3+ft)*2+bt]
                f += ["v_cvt_pk_bf16_f32 v%d, v%d, v%d" % (a, a, a+1), "v_cvt_pk_bf16_f32 v%d, v%d, v%d" % (a+1, a+2, a+3)]
                mask = [[None, "s[74:75]"], [None, "s[74:75]"], ["s[72:73]", "s[76:77]"]][ft][bt]
                w = "ds_write_b64 v%d, %s offset:%d" % (V_E5, vr(a,2), jj*1680 + bt*1280 + ft*32)
                if mask: w = "s_mov_b64 exec, %s\n%s\ns_mov_b64 exec, -1" % (mask, w)
                f.append(("lg", w, "cw"))
        return f
    weave(k, [], rd(0) + rd(1))
    pk0 = pack(0)
    for n in range(8):
        j, ks = n >> 2, n & 3
        k.wait(lg=("f", n))
        mf = []
        for ft in range(3):
            for bt in range(2):
                a = KAQ[(j*3+ft)*2+bt]
                mf.append("v_mfma_f32_16x16x32_bf16 %s, %s, %s, %s" % (vr(a,4), vr(pfr(n,ft),4), vr(vfr(n,bt),4), vr(a,4) if ks else "0"))
        fill = rd(n+2) if n < 6 else []
        if n < 4: fill.append(lambda: fd.emit(1))
        if n >= 5: fill += pk0[(n-5)*6:(n-4)*6]
        weave(k, mf, fill)
    weave(k, [], pack(1))
    k.wait(lg="all")
    for i in range(4): k.lg("ds_read_b128 %s, v%d offset:%d" % (vr(64+4*i,4), V_E6, i*1024), ("cr", i))
    for i in range(4):
        k.wait(lg=("cr", i))
        k.vm("buffer_store_dwordx4 %s, v%d, s[%d:%d], s78 offen offset:%d%s" % (vr(64+4*i,4), V_L16 if i < 3 else V_E4, SRD_O, SRD_O+3, i*1024, SC), "st")
    stamp(k, 26)
    stamp(k, 5)
    fd.drain()

QXB = 3*WSLOT; QST = 98304
def qacc(t, rt): return 64 + (t*6+rt)*4
QW0 = 256; QX0 = 256 + 80; QPH = 256 + 176
def qa_role(k):
    k("s_mov_b32 s%d, 13" % S_TY)
    k("s_mul_i32 s75, s%d, 6" % S_T0); k("s_add_u32 s75, s75, s%d" % S_T1); k("s_sub_u32 s75, s75, 26")
    k("s_lshr_b32 s79, s%d, 1" % S_T0)
    k("s_mul_i32 s%d, s79, 12" % S_MT); k("s_sub_u32 s%d, s75, s%d" % (S_MT, S_MT))
    k("s_add_u32 s%d, s75, %d" % (S_SIG, C_P)); k("s_mul_i32 s%d, s%d, %d" % (S_SIG, S_SIG, cfg.CS))
    k("s_lshl_b32 s75, s75, 2"); k("s_add_u32 s75, s75, s%d" % S_W)
    k("s_mul_i32 s76, s75, 205"); k("s_lshr_b32 s76, s76, 11")
    k("s_mul_i32 s77, s76, 10"); k("s_sub_u32 s77, s75, s77")
    k("s_cmp_ge_u32 s76, 19")
    k("s_cselect_b32 s78, 0x4000000, 0")
    k("s_mul_i32 s80, s76, %d" % (32*1280)); k("s_lshl_b32 s81, s77, 7"); k("s_add_u32 s80, s80, s81"); k("s_add_u32 s80, s80, s78")
    k("v_lshrrev_b32 v24, 3, v0"); k("v_and_b32 v25, 7, v0")
    k("v_and_b32 v26, 6, v24"); k("v_xor_b32 v26, v26, v25"); k("v_lshlrev_b32 v26, 4, v26")
    k("v_mul_u32_u24 v32, 1280, v24"); k("v_add_u32 v32, v32, v26")
    k("v_lshrrev_b32 v27, 2, v24"); k("v_and_b32 v28, 3, v24"); k("v_lshl_add_u32 v27, v27, 3, v28")
    k("v_mul_u32_u24 v36, 1280, v27"); k("v_add_u32 v36, v36, v26")
    for i in range(1, 4):
        k("v_add_u32 v%d, %d, v32" % (32+i, i*8*1280))
        k("v_add_u32 v%d, %d, v36" % (36+i, (16*(i&1) + 4*(i>>1))*1280))
    k("s_lshl_b32 s82, s%d, 14" % S_W); k("s_add_u32 s82, s82, %d" % QST)
    k("s_waitcnt lgkmcnt(0)")
    srd(k, SRD_W1, P_WD, 0, 1728*1280)
    srd(k, SRD_W0, P_WO, 0, 640*1280)
    def load(n, sg, vb, off):
        k("s_add_u32 s81, s80, %s" % off)
        for j in range(4):
            k("s_add_u32 m0, s82, %d" % (n*4096 + j*1024))
            k.vm("buffer_load_dwordx4 v%d, s[%d:%d], s81 offen nt lds" % (vb+j, sg, sg+3), ("u", n))
    load(0, SRD_W1, 32, "%d" % (18*32*1280))
    load(1, SRD_W1, 32, "%d" % (37*32*1280))
    load(2, SRD_W0, 36, "0")
    k("s_cmp_eq_u32 s76, 0")
    for i in range(3): k("s_cselect_b32 s%d, s%d, s%d" % (96+i, SRD_W0+i, SRD_W1+i))
    k("s_mov_b32 s99, 0x20000")
    k("s_cselect_b64 vcc, -1, 0")
    k("s_mov_b32 s72, %d" % (19*32*1280))
    k("s_cselect_b32 s72, s72, %d" % (-32*1280 & 0xffffffff))
    for j in range(4): k("v_cndmask_b32 v%d, v%d, v%d, vcc" % (40+j, 32+j, 36+j))
    load(3, 96, 40, "s72")
    k("s_mul_i32 s3, s75, 5120")
    srd(k, SRD_O, P_WS, B2_OFF, B2_SZ)
    for t in late_setup_items(): k(t)
    k("v_lshrrev_b32 v44, 2, v0"); k("v_bfe_u32 v45, v44, 1, 2"); k("v_and_b32 v46, 3, v0")
    k("v_lshlrev_b32 v44, 7, v44"); k("v_lshl_add_u32 v44, v46, 3, v44"); k("v_add_u32 v44, s82, v44")
    for b in range(4):
        k("v_xor_b32 v46, %d, v45" % b); k("v_lshl_add_u32 v%d, v46, 5, v44" % (48+b))
    D0 = 4
    for b in range(4):
        k("s_lshl_b32 s72, s77, 2"); k("s_add_u32 s72, s72, %d" % b)
        k("s_mul_i32 s73, s72, 205"); k("s_lshr_b32 s73, s73, 10")
        k("s_mul_i32 s74, s73, 5"); k("s_sub_u32 s72, s72, s74")
        k("s_mul_i32 s73, s73, 74"); k("s_add_u32 s73, s73, s76")
        k("s_mul_i32 s73, s73, 5"); k("s_add_u32 s73, s73, s72")
        k("s_lshl_b32 s73, s73, 10")
        k("s_add_u32 s%d, s73, s78" % (D0+b))
    k("s_cmp_lt_u32 s76, 17"); k("s_cselect_b32 s100, 0, 0x4000000")
    k("s_mov_b32 s%d, 3840" % S_STRIDE)
    k("s_mul_i32 s%d, s79, 320" % S_T1)
    k("s_and_b32 s%d, s%d, 127" % (S_DELTA, S_T1)); k("s_sub_u32 s75, s%d, s%d" % (S_T1, S_DELTA))
    k("s_add_u32 s76, s75, %d" % (32*3840))
    k("s_sub_u32 s77, %d, s75" % (640*3840)); k("s_sub_u32 s78, %d, s76" % (640*3840))
    srd(k, SRD_W0, P_WQKV, 0, "s77", 75)
    srd(k, SRD_W1, P_WQKV, 0, "s78", 76)
    gemm_setup(k)
    k("s_mov_b32 s%d, %d" % (S_T3, 64*3840))
    k("s_mul_i32 s%d, s%d, %d" % (S_T0, S_W, 16*1280))
    for i in range(4): k("v_add_u32 v%d, s%d, v%d" % (V_XD+i, S_T0, V_XD+i))
    k("s_add_u32 s%d, s%d, %d" % (S_XL, S_WL, QXB))
    k("s_mov_b32 s101, %d" % (32*1280))
    k("s_mul_i32 s%d, s%d, %d" % (S_T0, S_MT, 192*1280))
    k("s_min_u32 s%d, s%d, %d" % (S_T0, S_T0, 2048*1280))
    k("s_sub_u32 s%d, %d, s%d" % (S_T1, 2048*1280, S_T0))
    srd(k, SRD_X, P_X, 0, "s%d" % S_T1, S_T0)
    k("s_lshl_b32 s%d, s%d, 2" % (S_T0, S_MT)); k("s_add_u32 s%d, s%d, s%d" % (S_T0, S_T0, S_W)); k("s_mul_i32 s%d, s%d, %d" % (S_T0, S_T0, 16*3840))
    k("v_lshrrev_b32 v44, 2, v0"); k("v_mul_u32_u24 v44, 3840, v44"); k("v_and_b32 v45, 3, v0"); k("v_min_u32 v45, 2, v45"); k("v_lshl_add_u32 v44, v45, 7, v44")
    k.vm("buffer_load_dword v%d, v44, s[%d:%d], s%d offen" % (V_JUNK, SRD_W0, SRD_W0+3, S_T0), "pf")
    gemm_setup2(k, True)
    k("s_mul_i32 s%d, s%d, %d" % (S_T0, S_RH, 12288 - 8192)); k("s_sub_u32 s%d, s%d, %d" % (S_T0, S_T0, XBASE - QXB))
    for i in range(2): k("v_add_u32 v%d, s%d, v%d" % (V_XR+i, S_T0, V_XR+i))
    stamp(k, 1)
    for n, ks0 in enumerate((38, 57, 0, 19)):
        k.wait(vm=("u", n))
        F = 64 + n*16
        for b in range(4):
            for h in range(2): k.lg("ds_read_b64_tr_b16 %s, v%d offset:%d" % (vr(F+4*b+2*h,2), 48+b, n*4096 + h*2048))
        for b in range(4):
            k("s_add_u32 s%d, s%d, %d" % (72+b, D0+b, ks0*5120))
            if ks0 == 57: k("s_add_u32 s%d, s%d, s100" % (72+b, 72+b))
        k.wait(lg="all")
        for b in range(4):
            k.vm("buffer_store_dwordx4 %s, v%d, s[%d:%d], s%d offen%s" % (vr(F+4*b,4), V_L16, SRD_O, SRD_O+3, 72+b, SC), "rs")
    srd(k, 96, P_WS, KVP_OFF, KVP_SZ + 16*4096)
    for i in range(4): k("v_mov_b32 v%d, -1" % (56+i))
    for j in range(4): k.vm("buffer_store_dwordx4 v[56:59], v%d, s[96:99], s3 offen offset:%d%s" % (V_L16, j*1024, SC), "rs")
    k.vm("buffer_store_dwordx4 v[56:59], v%d, s[96:99], s3 offen%s" % (V_L16B, SC), "rs")
    sv = list(k.vmq)
    k("s_cmp_eq_u32 s%d, 11" % S_MT); k("s_cbranch_scc1 L_spare")
    def wd(s): return [("s_add_u32 m0, s%d, %d" % (S_WL, (s % 3)*WSLOT + i*1024 - (i % 3)*128), b, c) for i, (a, b, c) in enumerate(w_dma(s))]
    def xd(s): return [("s_add_u32 m0, s%d, %d" % (S_XL, (s % 3)*WSLOT + i*1024 - s*128),
                        "buffer_load_dwordx4 v%d, s[%d:%d], %s offen offset:%d lds" % (V_XD + (i if i < 4 else i-4), SRD_X, SRD_X+3, "0" if i < 4 else "s101", s*128), ("X", s)) for i in range(6)]
    def now(items, adv):
        for it in items: k(it[0]); k.vm(it[1], it[2])
        if adv: wadv(k)
    now(xd(0), 0); now(wd(0), 1); now(wd(1), 1)
    k("s_lshl_b32 s79, s79, 1"); k("s_add_u32 s79, s79, s%d" % S_C); k("s_mul_i32 s80, s79, 3200")
    srd(k, SRD_P, P_WPHI, 0, 3200, 80)
    k.wait(vm="rs")
    signal(k, P_DBG, D_S1)
    stamp(k, 2)
    now(xd(1), 0)
    k("s_lshl_b32 s82, s%d, 12" % S_W); k("s_add_u32 s82, s82, %d" % SPARE)
    now([("s_mov_b32 m0, s82", "buffer_load_dwordx4 v%d, s[%d:%d], 0 offen offset:%d lds" % (V_L16, SRD_P, SRD_P+3, i*1024), "P") for i in range(4)], 0)
    k("v_lshrrev_b32 v50, 4, v0"); k("v_and_b32 v51, 15, v0"); k("v_bfe_u32 v52, v0, 2, 2"); k("v_and_b32 v53, 3, v0")
    k("v_mul_u32_u24 v48, 800, v50"); k("v_mad_u32_u24 v48, v52, 40, v48")
    k("v_cmp_eq_u32 vcc, v50, v53"); k("v_mov_b32 v49, 3200"); k("v_cndmask_b32 v48, v49, v48, vcc")
    k("v_add_u32 v%d, s82, v48" % V_PHA); k("v_add_u32 v26, s82, v49")
    k("s_mov_b32 s%d, %d" % (S_T0, 128*1280)); k("v_mul_lo_u32 v48, v50, s%d" % S_T0); k("v_lshl_add_u32 v%d, v51, 4, v48" % V_E0)
    k("s_mul_i32 s76, s%d, 12" % S_MT); k("s_mul_i32 s77, s%d, 6" % S_RH); k("s_add_u32 s76, s76, s77")
    k("s_mul_i32 s75, s79, %d" % (4*128*1280)); k("s_mul_i32 s77, s76, 1280"); k("s_add_u32 s75, s75, s77")
    srd(k, SRD_O, P_WS, PQ_OFF, PQ_SZ)
    for r in (42, 43, 54, 55): k("v_mov_b32 v%d, 0" % r)
    def rds(s):
        out = []; b = s & 1; sl = (s % 3)*WSLOT
        for rt in range(6):
            for hh in range(2): out.append("ds_read_b128 %s, v%d offset:%d" % (R(QX0 + (b*12+rt*2+hh)*4, 4), V_XR + hh, sl + rt*2048))
        for p in range(5):
            for hh in range(2):
                for h in range(2): out.append("ds_read_b64_tr_b16 %s, v%d offset:%d" % (R(QW0 + (b*10+p*2+hh)*4 + 2*h, 2), V_TA + p, sl + hh*3072 + h*512))
        return out
    def ph(to, s): return QPH + 4*(s*5 + to)
    prd = []
    for s in range(3):
        for to in range(5):
            for h in range(2):
                if s == 2 and h == 1: prd.append("ds_read_b64_tr_b16 %s, v26" % R(ph(to,s)+2*h,2))
                else: prd.append("ds_read_b64_tr_b16 %s, v%d offset:%d" % (R(ph(to,s)+2*h,2), V_PHA, (8*s+4*h)*40 + 8*to))
    k.wait(vm=[("X", 0), ("W", 0)])
    k("s_barrier")
    stamp(k, 3)
    for r in rds(0): k.lg(r)
    now(wd(2), 1); now(xd(2), 0)
    k.wait(vm=[("X", 1), ("W", 1)], lg="all")
    k("s_barrier")
    for s in range(10):
        b = s & 1
        rd = rds(s+1) if s < 9 else list(prd)
        dm = [(e, i == 5) for i, e in enumerate(wd(s+3))] + [(e, False) for e in xd(s+3)] if s + 3 < 10 else []
        if s == 9: dm = [(e, False) for e in b_items(range(27, 32))]
        mf = ["v_mfma_f32_16x16x32_bf16 %s, %s, %s, %s" % (vr(qacc(p,rt),4), R(QW0 + (b*10+p*2+hh)*4, 4), R(QX0 + (b*12+rt*2+hh)*4, 4), vr(qacc(p,rt),4) if (s or hh) else "0")
              for p in range(5) for rt in range(6) for hh in range(2)]
        nm = len(mf); nd = len(dm)
        at = [int(i * (nm - 3) / max(nd, 1)) for i in range(nd)]
        pend = None
        for m, t in enumerate(mf):
            k(t)
            if rd: k.lg(rd.pop(0))
            if s == 7 and m == nm - 1: poll_issue(k, P_DBG, D_S1, "s1")
            if pend is not None:
                k.vm(pend[0][1], pend[0][2])
                if pend[1]: wadv(k)
                pend = None
            elif dm and m >= at[nd - len(dm)]:
                pend = dm.pop(0)
                if pend[0][0]: k(pend[0][0])
        assert not rd and not dm and pend is None
        if s < 9:
            k.wait(vm=[("W", s+2), ("X", s+2)], lg="all")
            if s == 8: poll_check(k, P_DBG, N_S1, "s1", sleep=8, barrier=False)
            k("s_barrier")
    stamp(k, 4)
    def cin(rt):
        o = []
        for t in range(5):
            a = qacc(t, rt); B = 32 + (rt & 1)*12
            o += ["v_cvt_pk_bf16_f32 v%d, v%d, v%d" % (B+2*t, a, a+1), "v_cvt_pk_bf16_f32 v%d, v%d, v%d" % (B+2*t+1, a+2, a+3)]
        return o
    def pmf(rt): return ["v_mfma_f32_16x16x32_bf16 %s, %s, %s, %s" % (vr(qacc(to,rt),4), R(ph(to, s),4), vr(32+(rt & 1)*12+4*s,4), vr(qacc(to,rt),4) if s else "0") for s in range(3) for to in range(5)]
    def stores(rt):
        o = ["s_add_u32 s77, s75, %d\ns_cmp_lt_u32 s76, %d\ns_cselect_b32 s77, s77, 0x4000000" % (rt*1280, 128 - rt)]
        return o + [("vm", "buffer_store_dwordx4 %s, v%d, s[%d:%d], s77 offen offset:%d%s" % (vr(qacc(t,rt),4), V_E0, SRD_O, SRD_O+3, t*256, SC), "st") for t in range(5)]
    for t in cin(0): k(t)
    k.wait(lg="all")
    weave(k, pmf(0), cin(1))
    fd = Feed(k, b_items(list(range(0, 12)) + list(range(32, 62))) + bo_items()[:cfg.BOQ])
    prev = []
    for rt in range(6):
        v = [qacc(t, rt) + i for t in range(5) for i in range(4)]
        softmax_pm(k, v[::2], 184, 204, None, fd, pmf(rt+1) if rt < 5 else None, prev, inplace=v)
        if rt < 4:
            for t in cin(rt+2): k(t)
        prev = stores(rt)
    weave(k, [], prev)
    stamp(k, 26)
    rest = b_items(list(range(12, 27)) + list(range(62, 70)))
    Feed(k, rest[:6]).drain()
    k.wait(vm="st")
    stamp(k, 5)
    signal(k, S_CNT, "s%d" % S_SIG)
    left = [x for x in fd.q]
    nb = [x[2][1] for x in left if isinstance(x[2], tuple)]
    nbo = sum(1 for x in left if x[2] == "BO")
    assert nbo % 5 == 0 or True
    assert not nb
    Feed(k, left).drain()
    k("s_branch L_qtail")
    k.label("L_spare")
    k.vmq = sv; k.lgq = []
    k("s_cmp_eq_u32 s79, 0")
    k("s_cselect_b32 s%d, %d, 0" % (S_T0, 96*cfg.CS))
    srd(k, 96, P_WS, CNT_OFF, "s%d" % S_T0)
    for i in range(4): k("v_mov_b32 v%d, 0" % (56+i))
    k("s_mul_i32 s%d, s%d, %d" % (S_T0, S_W, 24*cfg.CS))
    k("v_mul_u32_u24 v60, %d, v24" % cfg.CS); k("v_lshl_add_u32 v60, v25, 4, v60")
    for i in range(3):
        k.vm("buffer_store_dwordx4 v[56:59], v60, s[96:99], s%d offen%s" % (S_T0, SC), "rs")
        k("s_add_u32 s%d, s%d, %d" % (S_T0, S_T0, 8*cfg.CS))
    k("s_lshl_b32 s72, s79, 2"); k("s_add_u32 s72, s72, s%d" % S_W)
    srd(k, SRD_X, P_X, 0, 2048*1280)
    srd(k, SRD_P, P_GW, 0, 1280)
    srd(k, SRD_W0, P_WS, G_OFF, G_SZ)
    k("v_and_b32 v24, 15, v0"); k("v_lshrrev_b32 v25, 4, v0")
    k("v_lshlrev_b32 v26, 4, v24")
    for j in range(5): k.vm("buffer_load_dwordx4 %s, v26, s[%d:%d], 0 offen offset:%d" % (vr(32+4*j,4), SRD_P, SRD_P+3, 256*j), "gw")
    k.wait(vm="rs")
    signal(k, P_DBG, D_S1)
    stamp(k, 2)
    k("v_lshlrev_b32 v27, 3, v25"); k("v_mul_u32_u24 v27, 1280, v27"); k("v_add_u32 v27, v27, v26")
    k("v_lshl_add_u32 v28, v25, 3, v24"); k("v_lshlrev_b32 v28, 2, v28")
    k("v_mov_b32 v30, 0x7fffffff"); k("v_cmp_gt_u32 vcc, 8, v24"); k("v_cndmask_b32 v28, v30, v28, vcc")
    k("s_mul_i32 s74, s72, %d" % (128*1280)); k("s_lshl_b32 s75, s72, 9")
    def gl(n):
        for j in range(5): k.vm("buffer_load_dwordx4 %s, v27, s[%d:%d], s74 offen offset:%d" % (vr(64+(n % 8)*20+4*j,4), SRD_X, SRD_X+3, 256*j), ("gx", n))
        k("s_add_u32 s74, s74, %d" % (1280 if n % 8 != 7 else 25*1280))
    for n in range(3): gl(n)
    k("s_mov_b32 s76, 0")
    k.label("L_gate")
    for it in range(8):
        k.wait(vm=("gx", it))
        gl(it + 3)
        k("v_mov_b32 v30, 0")
        for j in range(20): k("v_dot2c_f32_bf16 v30, v%d, v%d" % (64+it*20+j, 32+j))
        k("s_nop 3")
        for sh in (8, 4, 2, 1): k("v_add_f32_dpp v30, v30, v30 row_ror:%d row_mask:0xf bank_mask:0xf" % sh)
        k("v_cmp_eq_u32 vcc, %d, v24" % it)
        k("v_cndmask_b32 v29, v29, v30, vcc")
    k("v_mul_f32 v31, %s, v29" % f32(-LOG2E)); k("v_exp_f32 v31, v31"); k("v_add_f32 v31, 1.0, v31"); k("v_rcp_f32 v31, v31")
    k("s_nop 0")
    k("buffer_store_dword v31, v28, s[%d:%d], s75 offen%s" % (SRD_W0, SRD_W0+3, SC))
    k("s_add_u32 s75, s75, 128"); k("s_add_u32 s76, s76, 1"); k("s_cmp_lt_u32 s76, 4"); k("s_cbranch_scc1 L_gate")
    k("s_waitcnt vmcnt(0)"); k.vmq = []
    signal(k, P_DBG, D_S3)
    stamp(k, 4)
    poll_issue(k, P_DBG, D_S1, "s1"); poll_check(k, P_DBG, N_S1, "s1", sleep=16)
    Feed(k, b_items(list(range(18)) + list(range(27, 62))) + bo_items()[:cfg.BOQ]).drain()
    stamp(k, 5)
    k.label("L_qtail")

def pack_inplace(v, E):
    out = ["v_cvt_pk_bf16_f32 v%d, v%d, v%d" % (v[10+i], v[2*i], v[2*i+1]) for i in range(9, -1, -1)]
    out += ["v_cvt_pk_bf16_f32 v%d, v%d, v%d" % (v[i], E+2*i, E+2*i+1) for i in range(10)]
    return out
def minmax(v, T):
    out = ["v_max3_f32 v%d, v%d, v%d, v%d" % (T, v[0], v[1], v[2]), "v_min3_f32 v%d, v%d, v%d, v%d" % (T+2, v[0], v[1], v[2]),
           "v_max3_f32 v%d, v%d, v%d, v%d" % (T+1, v[3], v[4], v[5]), "v_min3_f32 v%d, v%d, v%d, v%d" % (T+3, v[3], v[4], v[5])]
    for n, i in enumerate(range(6, 20, 2)):
        c = n & 1
        out += ["v_max3_f32 v%d, v%d, v%d, v%d" % (T+c, T+c, v[i], v[i+1]), "v_min3_f32 v%d, v%d, v%d, v%d" % (T+2+c, T+2+c, v[i], v[i+1])]
    out += ["v_max_f32 v%d, v%d, v%d" % (T, T, T+1), "v_min_f32 v%d, v%d, v%d" % (T+2, T+2, T+3),
            "v_mul_f32 v%d, %s, v%d" % (T, f32(-LOG2E), T), "v_mul_f32 v%d, %s, v%d" % (T+2, f32(LOG2E), T+2)]
    return out
def softmax_scalar(v, E, T):
    o = [(1, t) for t in minmax(v, T)]
    for i in range(20): o.append((1, "v_fma_f32 v%d, v%d, s%d, v%d" % (E+i, v[i], S_C2, T)))
    for i in range(20): o.append((1, "v_fma_f32 v%d, -v%d, s%d, v%d" % (v[i], v[i], S_C2, T+2)))
    for x in [E+i for i in range(20)] + v: o.append((2, "v_exp_f32 v%d, v%d" % (x, x)))
    e = [E+i for i in range(20)]
    for c, (src, d) in enumerate(((e, T), (v, T+2))):
        o += [(1, "v_add_f32 v%d, v%d, v%d" % (d, src[0], src[1])), (1, "v_add_f32 v%d, v%d, v%d" % (d+1, src[2], src[3]))]
    for i in range(4, 20, 2):
        for src, d in ((e, T), (v, T+2)):
            o += [(1, "v_add_f32 v%d, v%d, v%d" % (d, d, src[i])), (1, "v_add_f32 v%d, v%d, v%d" % (d+1, d+1, src[i+1]))]
    o += [(1, "v_add_f32 v%d, v%d, v%d" % (T, T, T+1)), (1, "v_add_f32 v%d, v%d, v%d" % (T+2, T+2, T+3)),
          (2, "v_rcp_f32 v%d, v%d" % (T, T)), (2, "v_rcp_f32 v%d, v%d" % (T+2, T+2))]
    for x in e: o.append((1, "v_mul_f32 v%d, v%d, v%d" % (x, x, T)))
    for x in v: o.append((1, "v_mul_f32 v%d, v%d, v%d" % (x, x, T+2)))
    o += [(1, t) for t in pack_inplace(v, E)]
    return o

PHB = 102400; KVB = PHB + 20480; RED = PHB
def tail(k, nu, pre, late, bolate, MF, presig=None, reducer=False):
    nsig = nu
    if cfg.X_END:
        if presig: presig()
        k("s_endpgm"); return
    if not presig: k.flush_counters()
    stamp(k, 6)
    def ch():
        k("s_lshr_b32 s82, s%d, 1" % S_M64); k("s_mul_i32 s82, s82, %d" % cfg.CS)
        poll_issue(k, S_CNT, "s82", "h_ok")
    if not presig: ch()
    k("v_and_b32 v24, 15, v0"); k("v_lshrrev_b32 v25, 4, v0")
    k("s_mul_i32 s%d, s%d, %d" % (S_T0, S_M64, 74*4096))
    srd(k, SRD_X, P_WS, A2_OFF, 74*4096, S_T0)
    k("s_add_u32 s80, s%d, 20" % S_W); k("s_lshl_b32 s80, s80, 12")
    VA = 26
    for j in range(4):
        k("s_add_u32 s75, s%d, %d" % (S_W, j)); k("s_and_b32 s75, s75, 3"); k("s_lshl_b32 s75, s75, 10")
        k("v_add_u32 v%d, s75, v%d" % (VA+j, V_L16))
    A0 = 64
    XD = 0 if reducer else (cfg.XD if nu else 4)
    def af(i): return 192 + 16*i if i < XD else 144 + ((i - XD) % 3)*16
    TO = (1, 2, 3, 0)
    def a_load(i, j):
        k.vm("buffer_load_dwordx4 %s, v%d, s[%d:%d], s80 offen%s" % (vr(af(i)+4*j,4), VA+j, SRD_X, SRD_X+3, LSC), ("A", i, j))
        if j == TO[3]: k("s_add_u32 s80, s80, %d" % (4*4096))
    def setup(q):
        T0, T1, T2 = 5, 8, 9
        srd(q, SRD_W1, P_WS, G_OFF, G_SZ)
        srd(q, SRD_P, P_WS, PQ_OFF, PQ_SZ)
        srd(q, SRD_W0, P_WS, KVF_OFF, 16*4096)
        srd(q, SRD_O, P_WS, A2_OFF, A2_SZ)
        q("v_lshlrev_b32 v6, 2, v24"); q("v_lshlrev_b32 v7, 4, v24")
        q("s_mul_i32 s72, s%d, %d" % (S_OH, 2*128*1280))
        q("s_lshl_b32 s75, s%d, 2" % S_OMT); q("s_add_u32 s75, s75, s%d" % S_W); q("s_mul_i32 s81, s75, 2560")
        q("s_add_u32 s81, s81, s72"); q("s_add_u32 s101, s81, %d" % (128*1280))
        q("s_lshl_b32 s%d, s75, 7" % S_T2)
        q("s_lshl_b32 s75, s%d, 1" % S_OMT)
        q("v_min_u32 v17, 1, v0"); q("v_mul_u32_u24 v17, %d, v17" % (2*nu-1)); q("v_add_u32 v17, s75, v17"); q("v_mul_u32_u24 v17, 171, v17"); q("v_lshrrev_b32 v17, 9, v17")
        q("s_lshr_b32 s75, s%d, 2" % S_OH); q("s_mul_i32 s75, s75, 12"); q("s_add_u32 s75, s75, %d" % C_P)
        q("v_add_u32 v17, s75, v17"); q("v_mul_u32_u24 v17, %d, v17" % cfg.CS)
        q("v_mov_b32 v30, 0x7fffffff")
        q("s_mul_i32 s72, s%d, 5" % S_OH)
        for dst, add, nvalid in ((12, 0, 3), (13, 3, 2)):
            q("v_add_u32 v%d, s72, v25" % T2)
            if add: q("v_add_u32 v%d, %d, v%d" % (T2, add, T2))
            q("v_lshrrev_b32 v%d, 2, v%d" % (T0, T2))
            q("v_lshlrev_b32 v%d, 12, v%d" % (T0, T0))
            q("v_and_b32 v%d, 3, v%d" % (T1, T2))
            q("v_lshl_add_u32 v%d, v%d, 8, v%d" % (T0, T1, T0))
            q("v_lshl_add_u32 v%d, v24, 4, v%d" % (T0, T0))
            q("v_cmp_gt_u32 vcc, %d, v25" % nvalid)
            q("v_cndmask_b32 v%d, v30, v%d, vcc" % (dst, T0))
        q("s_lshl_b32 s73, s%d, 1" % S_OMT); q("s_add_u32 s73, s73, s%d" % S_C)
        q("s_mul_i32 s73, s73, %d" % (74*4096))
        q("s_lshl_b32 s75, s%d, 11" % S_RH); q("s_add_u32 s73, s73, s75")
        q("s_lshl_b32 s74, s%d, 2" % S_OH); q("s_add_u32 s74, s74, s%d" % S_W); q("s_lshl_b32 s74, s74, 10")
        q("v_bfe_u32 v%d, v0, 2, 2" % T0); q("v_and_b32 v%d, 3, v0" % T1)
        q("v_lshl_add_u32 v%d, v%d, 3, v%d" % (T2, T0, T1))
        for hd in range(2):
            for i in range(3):
                d = 18 + hd*3 + i
                if i == 2: q("v_mov_b32 v%d, %d" % (d, KVB + 1600 + hd*1680))
                else:
                    q("v_add_u32 v16, %d, v%d" % (4*i + 4*hd, T2)); q("v_min_u32 v16, 20, v16")
                    if hd == 1 and i == 0:
                        q("v_cmp_eq_u32 vcc, 2, v%d" % T0); q("v_cndmask_b32 v16, v16, v%d, vcc" % T1)
                    q("v_mul_u32_u24 v16, 80, v16")
                    q("v_add_u32 v%d, %d, v16" % (d, KVB + hd*1680))
        q("v_cmp_eq_u32 s[78:79], 0, v25")
        q("v_cmp_eq_u32 s[76:77], 2, v25")
        q("v_mov_b32 v30, %d" % (KVB + 3584 - 64))
        q("s_lshl_b32 s75, s%d, 10" % S_W); q("s_add_u32 s75, s75, %d" % KVB); q("v_add_u32 v10, s75, v%d" % V_L16)
    def setup0(q):
        srd(q, SRD_W1, P_WS, G_OFF, G_SZ)
        q("v_lshlrev_b32 v6, 2, v24")
    su = [t for _, t in capture(setup if nu else setup0)]
    fd = Feed(k, [])
    if presig:
        for t in su: k(t)
        su = []
        presig()
        fd.q += pre[:cfg.FPRE]; pre = pre[cfg.FPRE:]
        fd.emit(max(0, len(fd.q) - 4)); ch(); fd.drain()
    stamp(k, 8)
    poll_check(k, S_CNT, 9, "h_ok")
    stamp(k, 9)
    for i in range(3 + XD):
        for j in TO: a_load(i, j)
    for t in su: k(t)
    def sent(regs, t):
        k("v_max3_u32 v%d, v%d, v%d, v%d" % (t, regs[0], regs[1], regs[2]))
        rest = regs[3:]
        while len(rest) >= 2:
            k("v_max3_u32 v%d, v%d, v%d, v%d" % (t, t, rest[0], rest[1])); rest = rest[2:]
        if rest: k("v_max_u32 v%d, v%d, v%d" % (t, t, rest[0]))
    def do_reduce():
        e = k.newlabel("Lnr")
        sv = list(k.vmq)
        srd(k, SRD_W0, P_WS, KVF_OFF, 16*4096)
        k("s_lshl_b32 s74, s%d, 2" % S_OH); k("s_add_u32 s74, s74, s%d" % S_W); k("s_lshl_b32 s74, s74, 10")
        stamp(k, 17)
        srd(k, SRD_T, P_WS, KVP_OFF, KVP_SZ)
        k("s_lshl_b32 s75, s%d, 10" % S_W)
        k("v_add_u32 v11, s75, v%d" % V_L16)
        k("v_mov_b32 v14, 0x7fffffff")
        k("v_cmp_gt_u32 vcc, 3360, v11")
        k("v_cndmask_b32 v11, v14, v11, vcc")
        k("s_mul_i32 s72, s%d, %d" % (S_OH, 16*KVPS))
        SEL = 240
        k("v_bfe_u32 v5, v0, 2, 2"); k("v_and_b32 v8, 3, v0")
        k("v_and_b32 v14, 1, v0"); k("v_lshlrev_b32 v14, 4, v14")
        k("v_mov_b32 v15, 0x3f80"); k("v_lshlrev_b32 v14, v14, v15")
        k("v_cmp_eq_u32 vcc, v5, v25"); k("v_cndmask_b32 v14, 0, v14, vcc")
        k("v_cmp_gt_u32 vcc, 2, v8"); k("v_cndmask_b32 v15, 0, v14, vcc"); k("v_cndmask_b32 v14, v14, 0, vcc")
        for r, src in ((120, "v15"), (121, "v14"), (122, "0"), (123, "0"), (124, "0"), (125, "0"), (126, "v15"), (127, "v14")):
            k("v_accvgpr_write_b32 a%d, %s" % (r, src))
        l = k.newlabel("Lkp"); d = k.newlabel("Lkd")
        k("s_mov_b32 s95, 0x4000")
        k.label(l)
        k.vmq = []
        RA = 248
        def kr(p): return 192 + 4*(p % 14)
        def kl(p):
            k("s_add_u32 s75, s72, %d" % (p*KVPS))
            k.vm("buffer_load_dwordx4 %s, v11, s[%d:%d], s75 offen%s" % (vr(kr(p),4), SRD_T, SRD_T+3, SC), ("kp", p))
        for p in range(14): kl(p)
        for p in range(16):
            k.wait(vm=("kp", p))
            for h in range(2): k("v_mfma_f32_16x16x32_bf16 %s, %s, %s, %s" % (vr(RA+4*h,4), ar(120+4*h,4), vr(kr(p),4), vr(RA+4*h,4) if p else "0"))
            r = [kr(p)+i for i in range(4)]
            sent(r if p == 0 else [9] + r, 9)
            if p < 2: kl(14+p)
        k("v_cmp_eq_u32 vcc, -1, v9")
        k("s_sub_u32 s95, s95, 1")
        k("s_cmp_eq_u64 vcc, 0")
        k("s_cbranch_scc1 %s" % d)
        k("s_cmp_lg_u32 s95, 0")
        k("s_cbranch_scc1 %s" % l)
        k.label(d)
        k("s_nop 3")
        for i in range(4): k("v_cvt_pk_bf16_f32 v%d, v%d, v%d" % (192+i, RA+2*i, RA+1+2*i))
        k("buffer_store_dwordx4 v[192:195], v%d, s[%d:%d], s74 offen%s" % (V_L16, SRD_W0, SRD_W0+3, SC))
        stamp(k, 18)
        k.label(e)
        k.vmq = sv
    fl = Feed(k, list(pre) + b_items(late) + bolate)
    bolate = []
    lds = []
    cnt = [0]
    order = [(i, j) for i in range(11) for j in TO] + [(i, j) for j in TO for i in range(11, 14)]
    def main():
        for (i, j) in order:
            pend = set(t[2][1] for t in fl.q if isinstance(t[2], tuple) and t[2][0] == "B")
            assert not (pend & set(range(i*5, i*5+5))), (i, pend)
            k.wait(vm=[("A", i, j)] + [("B", i*5+ct) for ct in range(5)])
            for ct in range(5):
                a = A0 + (j*5+ct)*4
                k("v_mfma_f32_16x16x32_bf16 %s, %s, %s, %s" % (vr(a,4), R(bloc(i*5+ct),4), vr(af(i)+4*j,4), vr(a,4) if i else "0"))
                cnt[0] += 1
                if lds: emit1(k, lds.pop(0))
                if ct == 4 and i >= XD and i + 3 < 14: a_load(i + 3, j)
                if ct in cfg.FLAT: fl.emit(1)
                yield 1
    g = main()
    def run(n):
        for _ in range(n): next(g, None)
    def upto(m): run(max(0, m - cnt[0]))
    def mix(items, per):
        for i, it in enumerate(items):
            emit1(k, it)
            if i % per == per-1: run(1)
    if reducer:
        upto(cfg.MK); do_reduce()
    if nu:
        run(5); poll_issue(k, P_DBG, D_S3, "s3"); run(25)
        poll_check(k, P_DBG, N_S3, "s3", sleep=8, barrier=False)
    if nu:
        def oa(i): return bloc(i)
        MF = max(MF, 100)
        upto(max(MF - 60, 20*XD))
        k("v_mov_b32 v%d, v17" % V_PT); _pload(k, S_CNT, "p_ok")
        upto(max(MF - 35, 80))
        poll_check(k, S_CNT, 1, "p_ok"); stamp(k, 7)
        UO = 8 if cfg.U2 else 0
        def pql(u):
            it = ["s_add_u32 s81, s81, 10240", "s_add_u32 s101, s101, 10240"] if u else []
            for hd in range(2):
                so = ("s81", "s101")[hd]
                for r2 in range(2):
                    it.append(("vm", "buffer_load_dwordx4 %s, v%d, s[%d:%d], %s offen offset:%d%s" % (R(oa(12+UO*u+hd*4+2*r2),4), V_L16, SRD_P, SRD_P+3, so, r2*1280, SC), ("pq", u)))
                    it.append(("vm", "buffer_load_dwordx4 %s, v7, s[%d:%d], %s offen offset:%d%s" % (R(oa(13+UO*u+hd*4+2*r2),4), SRD_P, SRD_P+3, so, r2*1280+1024, SC), ("pq", u)))
            return it
        gl = [("vm", "buffer_load_dword v%d, v6, s[%d:%d], s%d offen offset:%d%s" % (250+2*u+r2, SRD_W1, SRD_W1+3, S_T2, u*512 + r2*64, SC), ("pq", 0)) for u in range(nu) for r2 in range(2)]
        mix(pql(0) + gl, 1)
        ld = "buffer_load_dwordx4 v[192:195], v%d, s[%d:%d], s74 offen%s" % (V_L16, SRD_W0, SRD_W0+3, SC)
        k.vm(ld, "kf"); run(cfg.KLAT); upto(MF)
        stamp(k, 10)
        l = k.newlabel("Lkf"); d = k.newlabel("Lkg")
        k.wait(vm="kf")
        k("s_mov_b32 s95, 0x8000")
        k.label(l)
        sent([192, 193, 194, 195], 196)
        k("v_cmp_eq_u32 vcc, -1, v196")
        k("s_sub_u32 s95, s95, 1")
        k("s_cmp_eq_u64 vcc, 0")
        k("s_cbranch_scc1 %s" % d)
        k("s_sleep %d" % cfg.SLP)
        k(ld)
        k("s_waitcnt vmcnt(0)")
        k("s_cmp_lg_u32 s95, 0")
        k("s_cbranch_scc1 %s" % l)
        k.label(d)
        stamp(k, 11)
        k.lg("ds_write_b128 v10, v[192:195]", "kw")
        run(4)
        k.wait(lg="all"); k("s_barrier"); stamp(k, 28)
        it = []
        for hd in range(2):
            for i in range(3):
                it += ["v_lshl_add_u32 v15, v25, 4, v%d" % (18+hd*3+i), "v_cndmask_b32 v14, v30, v%d, s[78:79]" % (18+hd*3+i),
                       ("lg", "ds_read_b128 %s, v15" % R(oa(hd*6+2*i),4), ("o", 0, hd)), ("lg", "ds_read_b128 %s, v14 offset:64" % R(oa(hd*6+2*i+1),4), ("o", 0, hd))]
        mix(it, cfg.MIX)
        run(4)
        if cfg.U2:
            upto(120); mix(pql(1), 2)
        def brd(u): return [] if cfg.U2 else pql(u)
        KO = 192
        for u in range(nu):
            for hd in range(2):
                k.wait(lg=("o", u, hd), vm=("pq", u))
                for s in range(2):
                    for r2 in range(2):
                        for i in (2, 0, 1):
                            a = KO + (hd*2+r2)*12 + i*4
                            k("v_mfma_f32_16x16x32_bf16 %s, %s, %s, %s" % (vr(a,4), R(oa(hd*6+2*i+s),4), R(oa(12+UO*u+hd*4+2*r2+s),4), vr(a,4) if s else "0"))
            it = brd(u+1) if u + 1 < nu else []
            for q in range(4): it.append("v_add_f32 v%d, %s, v%d" % (KO+q*12+8, f32(1e-6), KO+q*12+8))
            for q in range(4): it.append("v_rcp_f32 v%d, v%d" % (KO+q*12+8, KO+q*12+8))
            for q in range(4): it.append("v_mul_f32 v%d, v%d, v%d" % (KO+q*12+8, KO+q*12+8, 250+2*u+(q & 1)))
            for r2 in range(2):
                a0 = KO + r2*12; a1 = KO + (2+r2)*12
                for a in (a1, a0):
                    for i in range(8): it.append("v_mul_f32 v%d, v%d, v%d" % (a+i, a+i, a+8))
                    for i in range(4): it.append("v_cvt_pk_bf16_f32 v%d, v%d, v%d" % (a+8+i, a+2*i, a+2*i+1))
                    if a == a1: it.append(("vm", "buffer_store_dwordx4 %s, v13, s[%d:%d], s73 offen offset:%d%s" % (vr(a1+8,4), SRD_O, SRD_O+3, r2*1024, SC), "st"))
                it.append("v_cndmask_b32 v%d, v%d, v%d, s[76:77]" % (a0+10, a0+10, a1+8))
                it.append("v_cndmask_b32 v%d, v%d, v%d, s[76:77]" % (a0+11, a0+11, a1+9))
                it.append(("vm", "buffer_store_dwordx4 %s, v12, s[%d:%d], s73 offen offset:%d%s" % (vr(a0+8,4), SRD_O, SRD_O+3, r2*1024, SC), "st"))
            if u + 1 < nu: it.append("s_add_u32 s73, s73, %d" % (2*74*4096))
            mix(it, cfg.MIX * nu)
        stamp(k, 29)
        run(cfg.OSD)
        if cfg.BPR: fl.drain()
        k.wait(vm=["st", "BO"])
        d = k.newlabel("Lsg")
        k("s_add_u32 s82, s%d, %d" % (S_OMT, C_O)); k("s_mul_i32 s82, s82, %d" % cfg.CS)
        k("s_barrier")
        k("s_cmp_lg_u32 s%d, 0" % S_W)
        k("s_cbranch_scc1 %s" % d)
        k("v_mul_u32_u24 v%d, %d, v0" % (V_PT, cfg.CS)); k("v_add_u32 v%d, s82, v%d" % (V_PT, V_PT))
        k("v_mov_b32 v31, 1")
        k("s_mov_b64 exec, %d" % ((1 << nsig) - 1))
        k("global_atomic_add v%d, v31, s[%d:%d] sc1" % (V_PT, S_CNT, S_CNT+1))
        k("s_mov_b64 exec, -1")
        k.label(d)
        stamp(k, 12)
        fl.q += bolate
    q = K()
    for j in range(1, 4):
        q("s_add_u32 s75, s%d, %d" % (S_W, j)); q("s_and_b32 s75, s75, 3"); q("s_mul_i32 s75, s75, 15360")
        q("s_add_u32 s75, s75, %d" % (RED + (j-1)*5120))
        q("v_add_u32 v%d, s75, v%d" % (10+j, V_L16))
    q("s_mul_i32 s75, s%d, 15360" % S_W); q("s_add_u32 s75, s75, %d" % RED)
    q("v_add_u32 v8, s75, v%d" % V_L16)
    q("v_add_u32 v9, 51200, v%d" % V_L16)
    srd(q, SRD_O, P_OUT, 0, 2048*1280)
    q("s_lshl_b32 s81, s%d, 6" % S_M64); q("s_lshl_b32 s75, s%d, 4" % S_W); q("s_add_u32 s81, s81, s75")
    q("s_lshl_b32 s74, s81, 2")
    q("s_mul_i32 s81, s81, 1280"); q("s_mul_i32 s75, s%d, 160" % S_NT); q("s_add_u32 s81, s81, s75")
    q("v_mul_u32_u24 v16, 1280, v24"); q("v_lshl_add_u32 v16, v25, 3, v16")
    q("s_lshr_b32 s82, s%d, 1" % S_M64); q("s_add_u32 s82, s82, %d" % C_O); q("s_mul_i32 s82, s82, %d" % cfg.CS)
    q("s_mov_b32 s73, 0")
    mix([t for _, t in q.items], 2)
    def bol(n): return bloc(n % 70)
    def bo_read(n):
        off = n*1024
        return ("lg", "ds_read_b128 %s, v%d offset:%d" % (R(bol(n), 4), V_L16 if off < 51200 else 9, off % 51200), ("bo", n // 5))
    nr = 0
    if cfg.BPR:
        if not nu:
            while fl.q: run(1)
            run(cfg.BPW)
            k.wait(vm="BO"); k("s_barrier")
        while cnt[0] < min(cfg.MO, 238) - 20:
            if nr < min(cnt[0] // 20, 11) * 5 and not lds: lds.append(bo_read(nr)); nr += 1
            run(1)
    upto(min(cfg.MO, 238) - 20)
    fl.drain()
    if cfg.MO < 280 and cnt[0] <= 238:
        poll_issue(k, S_CNT, "s82", "o_ok")
        while cfg.BPR and cnt[0] < cfg.MO:
            if nr < min(cnt[0] // 20, 11) * 5 and not lds: lds.append(bo_read(nr)); nr += 1
            run(1)
        upto(cfg.MO)
    def of(ks): return 192 + 4*ks if ks < 16 else 148 + 16*(ks-16) if ks < 19 else 152
    def ao(ks): return ("s_add_u32 s73, s73, 4096" if ks else None, "buffer_load_dwordx4 %s, v%d, s[%d:%d], s73 offen%s" % (vr(of(ks),4), VA, SRD_X, SRD_X+3, LSC), ("Ao", ks))
    def red_w(j): return [("lg", "ds_write_b128 v%d, %s offset:%d" % (10+j, vr(A0+(j*5+ct)*4,4), ct*1024), "rw") for ct in range(5)]
    def oready():
        stamp(k, 13)
        poll_check(k, S_CNT, 16, "o_ok")
        stamp(k, 14)
        k.vm("buffer_load_dword v5, v6, s[%d:%d], s74 offen%s" % (SRD_W1, SRD_W1+3, SC), "g2")
        fa = Feed(k, [ao(ks) for ks in range(20)])
        fa.emit(6)
        return fa
    rr = [("lg", "ds_read_b128 %s, v8 offset:%d" % (vr(A0+20+4*j,4), j*1024), ("r", j // 5)) for j in range(15)]
    late_o = cfg.MO >= 280 or cnt[0] > 238
    if not late_o:
        fa = oready()
        fl.q = fa.q[:10]; fa.q = fa.q[10:]
        free = min(cnt[0] // 20, 11) * 5
        for c in (238, 253, 268, 280):
            n = min(free - nr, c - cnt[0] - len(lds))
            lds += [bo_read(x) for x in range(nr, nr + max(n, 0))]; nr += max(n, 0)
            upto(c)
            if c < 280: lds[:0] = red_w((238, 253, 268).index(c) + 1)
        weave(k, [], lds); del lds[:]
        fl.drain()
        fa.drain()
        k.wait(vm="g2")
        k("v_sub_f32 v10, 1.0, v5")
        for j in range(10): k("v_pk_mul_f32 %s, %s, v[10:11] op_sel_hi:[1,0]" % (vr(A0+2*j,2), vr(A0+2*j,2)))
        k.wait(lg="rw")
        k("s_barrier")
        while nr < 15:
            emit1(k, bo_read(nr)); nr += 1
    else:
        for j, c in enumerate((238, 253, 268)):
            upto(c); lds += red_w(j+1)
        upto(280)
        weave(k, [], lds); del lds[:]
        k.wait(lg="rw", vm="BO")
        k("s_barrier")
        weave(k, [], rr); del rr[:]
        poll_issue(k, S_CNT, "s82", "o_ok")
        for sl in range(3):
            k.wait(lg=("r", sl))
            weave(k, [], [bo_read(x) for x in range(nr, min(70, nr+10))]); nr = min(70, nr+10)
            for j in range(10): k("v_pk_add_f32 %s, %s, %s" % (vr(A0+2*j,2), vr(A0+2*j,2), vr(A0+20+20*sl+2*j,2)))
        weave(k, [], [bo_read(x) for x in range(nr, cfg.BPRE)]); nr = max(nr, cfg.BPRE)
        fa = oready()
        fa.emit(6)
        weave(k, [], [bo_read(x) for x in range(nr, 70)]); nr = 70
        fa.drain()
        k.wait(vm="g2")
        k("v_sub_f32 v10, 1.0, v5")
        for j in range(10): k("v_pk_mul_f32 %s, %s, v[10:11] op_sel_hi:[1,0]" % (vr(A0+2*j,2), vr(A0+2*j,2)))
    for ks in range(20):
        k.wait(vm=("Ao", ks), lg=("bo", ks))
        mf = ["v_mfma_f32_16x16x32_bf16 %s, %s, %s, %s" % (vr(A0+ct*4,4), R(bol(ks*5+ct), 4), vr(of(ks),4), vr(A0+ct*4,4)) for ct in range(5)]
        fill = [bo_read(n) for n in range(nr, min(100, nr+5, ks*5+70))]; nr += len(fill)
        while len(fill) < 5 and rr: fill.append(rr.pop(0))
        weave(k, mf, fill, per=1)
    if not late_o:
        weave(k, [], rr)
        k.wait(lg="all")
        for j in range(10): k("v_pk_add_f32 %s, %s, %s" % (vr(A0+20+2*j,2), vr(A0+20+2*j,2), vr(A0+40+2*j,2)))
        for j in range(10): k("v_pk_add_f32 %s, %s, %s" % (vr(A0+20+2*j,2), vr(A0+20+2*j,2), vr(A0+60+2*j,2)))
    for ct in range(5):
        a = A0 + ct*4
        for h in range(2 if not late_o else 0): k("v_pk_fma_f32 %s, %s, v[10:11], %s op_sel_hi:[1,0,1]" % (vr(a+2*h,2), vr(a+20+2*h,2), vr(a+2*h,2)))
        k("v_cvt_pk_bf16_f32 v%d, v%d, v%d" % (A0+40+2*ct, a, a+1)); k("v_cvt_pk_bf16_f32 v%d, v%d, v%d" % (A0+41+2*ct, a+2, a+3))
        k.vm("buffer_store_dwordx2 %s, v16, s[%d:%d], s81 offen offset:%d%s" % (vr(A0+40+2*ct,2), SRD_O, SRD_O+3, ct*32, cfg.OUTF), "st")
    stamp(k, 30)
    stamp_out(k)
    k("s_endpgm")

def kernel(k):
    kernel_header(k, NAME)
    astamp(k, 0)
    k("s_load_dwordx16 s[8:23], s[0:1], 0")
    k("s_load_dwordx8 s[24:31], s[0:1], 64")
    k("s_cmp_ge_u32 s2, 256")
    k("s_cbranch_scc1 L_end")
    if cfg.CPF: code_prefetch(k, V_JUNK)
    k("v_lshrrev_b32 v2, 6, v0")
    k("v_and_b32 v0, 63, v0")
    k("v_readfirstlane_b32 s%d, v2" % S_W)
    if cfg.STAMP: k("v_mov_b32 v1, 0")
    stamp(k, 0)
    if cfg.EARLY0: k("v_writelane_b32 v1, s98, 0")
    if cfg.MAP == 2:
        k("s_bfe_u32 s%d, s2, 0x40003" % S_MT)
        k("s_and_b32 s%d, s2, 7" % S_T0)
        k("s_lshl_b32 s%d, s%d, 3" % (S_T0, S_T0))
        k("s_bfe_u32 s%d, s2, 0x10007" % S_T1)
        k("s_lshl_b32 s%d, s%d, 2" % (S_T1, S_T1))
        k("s_add_u32 s%d, s%d, s%d" % (S_T0, S_T0, S_T1))
        tab = cfg.ORDER
        k("s_mov_b32 s74, 0x%x" % sum(tab[i] << (4*i) for i in range(8))); k("s_mov_b32 s75, 0x%x" % sum(tab[8+i] << (4*i) for i in range(8)))
        k("s_lshr_b64 s[74:75], s[74:75], s%d" % S_T0)
        k("s_and_b32 s%d, s74, 15" % S_TY)
    else:
        k("s_and_b32 s%d, s2, 7" % S_T0)
        k("s_lshr_b32 s%d, s2, 3" % S_T1)
        k("s_lshl_b32 s74, s%d, 3" % S_T0); k("s_add_u32 s74, s74, s%d" % S_T1); k("s_add_u32 s74, s74, %d" % (9*16 - 18))
        k("s_lshl_b32 s75, s%d, 1" % S_T0); k("s_add_u32 s75, s75, s%d" % S_T1)
        k("s_add_u32 s76, s75, %d" % (8*16 - 16))
        k("s_cmp_lt_u32 s%d, 18" % S_T1); k("s_cselect_b32 s74, s76, s74")
        k("s_lshl_b32 s76, s%d, 4" % S_T0); k("s_add_u32 s76, s76, s%d" % S_T1)
        k("s_cmp_lt_u32 s%d, 16" % S_T1); k("s_cselect_b32 s74, s76, s74")
        k("s_and_b32 s%d, s74, 15" % S_MT)
        k("s_lshr_b32 s%d, s74, 4" % S_TY)
    k("s_and_b32 s%d, s%d, 1" % (S_RH, S_W))
    k("s_lshr_b32 s%d, s%d, 1" % (S_C, S_W))
    k("v_lshlrev_b32 v%d, 4, v0" % V_L16)
    k("s_cmp_ge_u32 s%d, 26" % S_T1); k("s_cbranch_scc1 L_qa")
    k("s_mov_b32 s75, 1280")
    k("s_mov_b32 s76, 1280")
    k("s_sub_u32 s79, s%d, 9" % S_TY)
    k("s_mul_i32 s%d, s79, 320" % S_T1)
    k("s_and_b32 s%d, s%d, 127" % (S_DELTA, S_T1))
    k("s_sub_u32 s%d, s%d, s%d" % (S_T1, S_T1, S_DELTA))
    k("s_add_u32 s75, s75, s%d" % S_T1)
    k("s_add_u32 s76, s76, s75")
    k("s_mul_i32 s%d, s%d, 384" % (S_T1, S_TY))
    k("s_mov_b32 s%d, 3840" % S_STRIDE)
    k("s_cmp_lt_u32 s%d, 9" % S_TY)
    k("s_cselect_b32 s75, s%d, s75" % S_T1)
    k("s_cselect_b32 s76, s%d, s76" % S_T1)
    k("s_cselect_b32 s%d, 3456, s%d" % (S_STRIDE, S_STRIDE))
    k("s_mul_i32 s%d, s%d, 640" % (S_T1, S_STRIDE))
    k("s_sub_u32 s77, s%d, s75" % S_T1)
    k("s_sub_u32 s78, s%d, s76" % S_T1)
    gemm_setup(k)
    k("s_mul_i32 s%d, s%d, %d" % (S_T0, S_MT, 128*1280))
    astamp(k, 1)
    k("s_waitcnt lgkmcnt(0)")
    astamp(k, 2)
    k("s_cmp_lt_u32 s%d, 9" % S_TY)
    k("s_cselect_b64 s[16:17], s[%d:%d], s[%d:%d]" % (P_WG, P_WG+1, P_WQKV, P_WQKV+1))
    k("s_cselect_b64 s[%d:%d], s[%d:%d], s[%d:%d]" % (P_WU, P_WU+1, P_WU, P_WU+1, P_WQKV, P_WQKV+1))
    srd(k, SRD_X, P_X, 0, 128*1280, S_T0)
    stamp(k, 1)
    Q = dma_queue()
    issue_now(k, Q, 4)
    srd(k, SRD_W0, 16, 0, "s77", 75)
    srd(k, SRD_W1, P_WU, 0, "s78", 76)
    issue_now(k, Q, 6)
    astamp(k, 3)
    touch_setup(k)
    for it in touch_items(-1):
        if it[0]: k(it[0])
        k.vm(it[1], it[2])
    sv0 = list(k.vmq)
    aflush(k)
    k("s_cmp_ge_u32 s%d, 9" % S_TY); k("s_cbranch_scc1 L_att")
    ps, rest = ffn_role(k, Q)
    sv = (list(k.vmq), list(k.lgq))
    k("s_cmp_ge_u32 s%d, 8" % S_TY); k("s_cbranch_scc1 L_f1")
    tail(k, 2, list(rest), [], [], cfg.MF, presig=ps)
    k.label("L_f1")
    k.vmq, k.lgq = sv
    tail(k, 0, list(rest), [], [], 0, presig=ps, reducer=True)
    k.label("L_att")
    k("s_lshl_b32 s79, s79, 1")
    k("s_add_u32 s79, s79, s%d" % S_C)
    k("s_mul_i32 s80, s79, 3200")
    srd(k, SRD_P, P_WPHI, 0, 3200, 80)
    k.flush_counters(); k.vmq = list(sv0)
    att_loop(k, Q)
    kv_role(k)
    tail(k, 0, [], list(range(cfg.KVN, 70)), bo_items(), 0)
    k.flush_counters()
    k.label("L_qa")
    k.vmq = ["pf"]
    qa_role(k)
    tail(k, 0, [], list(range(18, 27)) + list(range(62, 70)), bo_items()[cfg.BOQ:], 0)
    k.label("L_end")
    k("s_endpgm")

def build(fn, listform=True):
    k = K()
    k.raw(open("header.txt").read().rstrip())
    if listform: k.raw("; @launch kernel=%s grid=(256,1,1) block=(256,1,1) lds=163840" % NAME)
    else: k.raw("; @launch grid=(256,1,1) block=(256,1,1) lds=163840")
    k.raw('.amdgcn_target "amdgcn-amd-amdhsa--gfx950"')
    k.raw(".text")
    kernel(k)
    k.raw('.section .rodata,"a"')
    k.raw(kernel_desc(NAME, 512, 256))
    open(fn, "w").write(k.text())

if __name__ == "__main__":
    for a in sys.argv[2:]:
        if "=" in a:
            n, v = a.split("="); setattr(cfg, n, eval(v))
    if cfg.NOSC: LSC = ""
    build(sys.argv[1], listform="single" not in sys.argv)
```

```python
import sys
from fw import *

A2_OFF = 0;          A2_SZ = 32*74*4096
B2_OFF = 0xA00000;   B2_SZ = 8*74*5120
PQ_OFF = 0x1800000;  PQ_SZ = 32*128*1280
KVP_OFF = 0x1000000; KVPS = 3584; KVP_SZ = 16*16*KVPS
G_OFF = 0x1200000;   G_SZ = 8192
CNT_OFF = 0x1300000
ST_OFF = 0x1400000
LOG2E = 1.4426950408889634
NAME = "gated_mix__linear_kernel_hedgehog__swiglu_ffn__prompt_kernel"

class Cfg:
    STAMP = 0; STG = 0
    MAXD = 11; N2 = 6; N3 = 10
    P2M = 4
    TW = [(-1,1,7),(1,8,6),(4,14,6)]
    TX = [(-1,1,3),(1,4,3),(4,7,3)]
    ORDER = [0, 9, 1, 10, 2, 11, 3, 12, 4, 13, 5, 14, 6, 7, 8, 15]
    PS1 = 10
    NBF = 40
    NBA = 32
    AUXT = 10
    AUXD = 3
    FFE = (2, 7)
    MK = 0
    KLAT = 15
    PER = 2
    BOF = 10
    KVB0 = 1
    TPER = 2
    BLP = 5
    PREW = 0
    PREN = 5
    QX = 0
    UNI = 0
    U2 = 1
    BTL = []
    MF1 = 120
    FPRE = 20
    MFK = 100
    X_LIGHT = 0
    AUXB = 70
    RBH = 0
    MF2 = 80
    MFQ = 120
    BPR = 1
    BPW = 40
    LORD = 0
    RSP = 0
    HP = (1, 5)
    QEARLY = 1
    AUXU = 0
    BT = 0
    BT2 = 0
    AUXNT = 1
    L2PF = 0
    PE1 = 20
    BOL = 3
    BOS = 0
    PSA = 16
    KVN = 62
    BPRE = 50
    RFIRST = 0
    MF = 120
    MAXD0 = 16
    BLK = 2
    PHS = 3
    AST = 0
    X_NOWAIT = 0
    X_NOO = 0
    X_NOB = 0
    X_END = 0
    X_NOA = 0
    MO = 238
    NOSC = 0
    NOMF = 0
    CS = 4096+256
    ONE = 1
    SLP = 2
    KI = 1
    MIX = 6
    FLAT = (1, 3)
    XD = 0
    BOQ = 5
    QPRE = 6
    FQ = (7, 10)
    OFIRST = 1
    OUTF = ''
    BOEARLY = 0
    QLAT = 40
    MAP = 3
    AORD = [9, 13, 10, 11, 14, 12]
    DBGWG = -1
    PADST = None
    PADMIN = 0
    CPF = 1
    TNT = 0
    NODMA = 0
    CYC = 0
    PADTY = None
    EARLY0 = 0
    KL2 = 40
    OSD = 20
cfg = Cfg()
SC = " sc1"
LSC = " sc1"

P_X, P_WQKV, P_WPHI, P_WO, P_WG, P_WU, P_WD, P_GW, P_OUT, P_DBG, P_WS = 8, 10, 12, 14, 18, 20, 22, 24, 26, 28, 30
S_W, S_RH, S_C, S_MT, S_TY, S_M64, S_NT, S_OH = 32, 33, 34, 35, 36, 37, 38, 39
SRD_X, SRD_W0, SRD_W1, SRD_O, SRD_P = 40, 44, 48, 52, 56
S_STRIDE, S_WOFF, S_WL, S_XL, S_T0, S_T1, S_T2, S_T3, S_DELTA, S_SIG = 60, 61, 62, 63, 64, 65, 66, 67, 68, 69
S_C2 = 70
S_OMT = 83; SRD_B = 84; S_BOFF = 88; S_BB = 89; S_CNT = 90; SRD_T = 96
V_L16, V_L16B, V_PT = 2, 3, 4
V_WD = 5; V_XD = 6; V_XR = 10; V_TA = 12; V_TW = 24; V_TX = 25; V_JUNK = 63; V_Z = 0
ACC0 = 64
WF0 = 256; XF0 = 256 + 96; GF0 = 256 + 88; GACC = 224
C_H, C_O, C_P = 0, 16, 32
N_S1 = 48; N_S3 = 4
KVF_OFF = KVP_OFF + KVP_SZ
SPARE = 147456
D_S1, D_S2, D_S3 = 0, 64, 128

def srd(k, d, b, off, nbytes, soff=None):
    if off or soff is not None:
        if soff is not None:
            k("s_add_u32 s%d, s%d, s%d" % (d, b, soff)); k("s_addc_u32 s%d, s%d, 0" % (d+1, b+1))
            if off:
                k("s_add_u32 s%d, s%d, 0x%x" % (d, d, off)); k("s_addc_u32 s%d, s%d, 0" % (d+1, d+1))
        else:
            k("s_add_u32 s%d, s%d, 0x%x" % (d, b, off)); k("s_addc_u32 s%d, s%d, 0" % (d+1, b+1))
        k("s_and_b32 s%d, s%d, 0xffff" % (d+1, d+1))
    else:
        k("s_mov_b32 s%d, s%d" % (d, b)); k("s_and_b32 s%d, s%d, 0xffff" % (d+1, b+1))
    if isinstance(nbytes, int): k("s_mov_b32 s%d, 0x%x" % (d+2, nbytes))
    else: k("s_mov_b32 s%d, %s" % (d+2, nbytes))
    k("s_mov_b32 s%d, 0x20000" % (d+3))

def stamp(k, i):
    if not cfg.STAMP or (cfg.AST and i != 15): return
    k("s_memtime s[92:93]" if cfg.STAMP == 2 else "s_memrealtime s[92:93]")
    k("s_waitcnt lgkmcnt(0)")
    k.lgq = []
    k("v_writelane_b32 v1, s92, %d" % i)
_ap = []
def astamp(k, idx):
    if not cfg.AST: return
    pair = (4, 6, 92, 94, 52, 54, 56, 58)[len(_ap)]
    k("s_memrealtime s[%d:%d]" % (pair, pair+1)); _ap.append((pair, idx))
def aflush(k):
    if not cfg.AST: return
    k("s_waitcnt lgkmcnt(0)"); k.lgq = []
    for p, i in _ap: k("v_writelane_b32 v1, s%d, %d" % (p, i))
    del _ap[:]
def stamp_out(k):
    if not cfg.STAMP: return
    k("s_waitcnt vmcnt(0)")
    stamp(k, 15)
    k("v_writelane_b32 v1, s%d, 16" % S_TY)
    srd(k, 40, P_WS, ST_OFF, 1024*128)
    k("s_lshl_b32 s92, s2, 2"); k("s_add_u32 s92, s92, s%d" % S_W); k("s_lshl_b32 s92, s92, 7")
    k("v_lshlrev_b32 v5, 2, v0")
    k("v_cmp_gt_u32 vcc, 32, v0")
    k("v_mov_b32 v6, 0x7fffffff")
    k("v_cndmask_b32 v5, v6, v5, vcc")
    k("buffer_store_dword v1, v5, s[40:43], s92 offen")
    if cfg.PADST is not None:
        k("v_readlane_b32 s94, v1, %d" % abs(cfg.PADST))
        k("v_readlane_b32 s95, v1, 0")
        k("s_max_u32 s94, s94, s95")
        if cfg.CYC:
            a, b = ((31, 25) if cfg.CYC == 1 else (24, 23))
            k("v_readlane_b32 s96, v1, %d" % a); k("v_readlane_b32 s97, v1, %d" % b)
            k("s_sub_u32 s96, s96, s97")
            if cfg.CYC == 1: k("s_lshr_b32 s96, s96, 2")
            else: k("s_lshl_b32 s96, s96, 2")
            k("s_add_u32 s94, s95, s96")
        if cfg.PADTY:
            k("s_cmp_lt_u32 s%d, %d" % (S_TY, cfg.PADTY[0])); k("s_cselect_b32 s94, s95, s94")
            k("s_cmp_gt_u32 s%d, %d" % (S_TY, cfg.PADTY[1])); k("s_cselect_b32 s94, s95, s94")
        if cfg.PADMIN:
            k("s_not_b32 s95, s94")
            k("v_mov_b32 v7, s95"); k("v_mov_b32 v8, 192")
            k("s_cmp_eq_u32 s%d, 0" % S_W)
            k("s_cselect_b64 exec, 1, 0")
            k("s_cbranch_execz Lnoat")
            k("global_atomic_umax v8, v7, s[%d:%d] sc1" % (P_DBG, P_DBG+1))
            k.label("Lnoat")
            k("s_mov_b64 exec, -1")
            k("s_add_u32 s94, s94, 4500")
            k.label("Lpad0")
            k("s_sleep 4")
            k("s_memrealtime s[96:97]")
            k("s_waitcnt lgkmcnt(0)")
            k("s_sub_u32 s98, s96, s94")
            k("s_cmp_lt_i32 s98, 0")
            k("s_cbranch_scc1 Lpad0")
            k("global_load_dword v7, v8, s[%d:%d] sc1" % (P_DBG, P_DBG+1))
            k("s_waitcnt vmcnt(0)")
            k("v_readfirstlane_b32 s94, v7")
            k("s_not_b32 s94, s94")
        k("s_add_u32 s94, s94, 6000")
        lp = k.newlabel("Lpad"); k.label(lp)
        k("s_sleep 4")
        k("s_memrealtime s[96:97]")
        k("s_waitcnt lgkmcnt(0)")
        k("s_sub_u32 s98, s96, s94")
        k("s_cmp_lt_i32 s98, 0")
        k("s_cbranch_scc1 %s" % lp)
    if cfg.DBGWG >= 0:
        k("s_cmp_eq_u32 s92, %d" % (cfg.DBGWG*512))
        k("s_cselect_b32 s93, 64, 0")
        srd(k, 44, P_DBG, 0, "s93")
        k("v_readlane_b32 s93, v1, 0")
        k("v_subrev_u32 v7, s93, v1")
        k("v_cmp_lt_u32 vcc, 0, v0")
        k("v_cndmask_b32 v5, v6, v5, vcc")
        k("buffer_store_dword v7, v5, s[44:47], 0 offen")

def code_prefetch(k, vt):
    k("s_getpc_b64 s[72:73]")
    l = k.newlabel("Lpc"); k.label(l)
    k("s_lshr_b32 s74, s2, 3")
    k("s_lshl_b32 s74, s74, 7")
    k("v_and_b32 v%d, 31, v0" % vt)
    k("v_lshlrev_b32 v%d, 12, v%d" % (vt, vt))
    k("v_add_u32 v%d, s74, v%d" % (vt, vt))
    k("v_min_u32 v%d, L_end-%s-4, v%d" % (vt, l, vt))
    k.vm("global_load_dword v%d, v%d, s[72:73]" % (vt, vt), "pf")

def _pload(k, base, tag):
    if cfg.ONE:
        a = k.newlabel("Lp0"); b = k.newlabel("Lp1")
        k("s_cmp_lg_u32 s%d, 0" % S_W); k("s_cbranch_scc1 %s" % a)
        k("global_load_dword v31, v%d, s[%d:%d] sc1" % (V_PT, base, base+1))
        k("s_branch %s" % b)
        k.label(a)
        k("v_mov_b32 v%d, 0" % V_PT)
        k("global_load_dword v31, v%d, s[%d:%d]" % (V_PT, P_X, P_X+1))
        k.label(b)
        k.vmq.append(tag)
    else: k.vm("global_load_dword v31, v%d, s[%d:%d] sc1" % (V_PT, base, base+1), tag)
def poll_issue(k, base, off, tag):
    k("v_mov_b32 v%d, %s" % (V_PT, off))
    _pload(k, base, tag)
def vpoll_issue(k, off, n, tag):
    k("v_min_u32 v%d, %d, v0" % (V_PT, n-1)); k("v_mul_u32_u24 v%d, %d, v%d" % (V_PT, cfg.CS, V_PT)); k("v_add_u32 v%d, %s, v%d" % (V_PT, off, V_PT))
    _pload(k, S_CNT, tag)
def poll_check(k, base, target, tag, sleep=None, barrier=True):
    l = k.newlabel("Lpoll"); d = k.newlabel("Lpd")
    if base == S_CNT and (cfg.X_NOWAIT == 1 or (cfg.X_NOWAIT and tag in cfg.X_NOWAIT)): target = 0
    k.wait(vm=tag)
    if cfg.ONE:
        k("s_cmp_lg_u32 s%d, 0" % S_W); k("s_cbranch_scc1 %s" % d)
    k("v_cmp_gt_u32 vcc, %d, v31" % target)
    k("s_mov_b32 s95, 0x8000")
    k("s_cmp_eq_u64 vcc, 0")
    k("s_cbranch_scc1 %s" % d)
    k.label(l)
    k("s_sleep %d" % (sleep or cfg.SLP))
    k("global_load_dword v31, v%d, s[%d:%d] sc1" % (V_PT, base, base+1))
    k("s_waitcnt vmcnt(0)")
    k("v_cmp_gt_u32 vcc, %d, v31" % target)
    k("s_sub_u32 s95, s95, 1")
    k("s_cmp_eq_u64 vcc, 0")
    k("s_cbranch_scc1 %s" % d)
    k("s_cmp_lg_u32 s95, 0")
    k("s_cbranch_scc1 %s" % l)
    k.label(d)
    if cfg.ONE and barrier: k("s_barrier")
def vpoll_check(k, target, tag): poll_check(k, S_CNT, target, tag)
def signal(k, base, off, ra=V_PT, rd=31):
    d = k.newlabel("Lsg")
    k("s_barrier")
    k("s_cmp_lg_u32 s%d, 0" % S_W)
    k("s_cbranch_scc1 %s" % d)
    k("v_mov_b32 v%d, %s" % (ra, off))
    k("v_mov_b32 v%d, 1" % rd)
    k("s_mov_b64 exec, 1")
    k("global_atomic_add v%d, v%d, s[%d:%d] sc1" % (ra, rd, base, base+1))
    k("s_mov_b64 exec, -1")
    k.label(d)

BL = [256+128+4*i for i in range(32)] + [256+48+4*i for i in range(12)] + [256+108+4*i for i in range(3)] \
   + [256+4*i for i in range(12)] + [256+96+4*i for i in range(3)] + [32+4*i for i in range(8)]
def bloc(n): return BL[n]
def b_items(frs):
    out = []; cur = None
    for n in frs:
        st, ct = divmod(n, 5)
        pre = None
        if st != cur: pre = "s_add_u32 s%d, s%d, %d" % (S_BOFF, S_BB, (20 + 4*st)*5120); cur = st
        if ct < 4: t = "buffer_load_dwordx4 %s, v%d, s[%d:%d], s%d offen offset:%d%s" % (R(bloc(n),4), V_L16, SRD_B, SRD_B+3, S_BOFF, ct*1024, LSC)
        else: t = "buffer_load_dwordx4 %s, v%d, s[%d:%d], s%d offen%s" % (R(bloc(n),4), V_L16B, SRD_B, SRD_B+3, S_BOFF, LSC)
        out.append((pre, t, ("B", n)))
    return out
def bo_items():
    out = []
    for i in range(5):
        for ct in range(5):
            pre = "s_add_u32 m0, s%d, %d" % (S_BB, i*20480 + (4096 if ct == 4 else 0))
            if ct == 0: pre = "s_add_u32 s100, s%d, %d\n" % (S_BB, i*20480) + pre
            if ct < 4: t = "buffer_load_dwordx4 v%d, s[%d:%d], s100 offen offset:%d%s lds" % (V_L16, SRD_B, SRD_B+3, ct*1024, LSC)
            else: t = "buffer_load_dwordx4 v%d, s[%d:%d], s100 offen%s lds" % (V_L16B, SRD_B, SRD_B+3, LSC)
            out.append((pre, t, "BO"))
    return out
class Feed:
    def __init__(self, k, items): self.k = k; self.q = list(items)
    def emit(self, n=1):
        while self.q and n > 0:
            pre, t, tag = self.q.pop(0)
            if pre: self.k(pre)
            self.k.vm(t, tag); n -= 1
    def drain(self): self.emit(10**6)
def emit1(k, f):
    if callable(f): f()
    elif isinstance(f, tuple): (k.lg if f[0] == "lg" else k.vm)(f[1], f[2])
    else: k(f)
def weave(k, mf, fill, per=2):
    fill = list(fill)
    for m in mf:
        k(m)
        for _ in range(per):
            if fill: emit1(k, fill.pop(0))
    for f in fill: emit1(k, f)

WSLOT = 24576; RW = 4; XBASE = RW*WSLOT; XSLOT = 16384; RX = 3

def gemm_setup(k):
    k("v_lshrrev_b32 v28, 3, v0")
    k("v_and_b32 v29, 7, v0")
    k("v_bfe_u32 v26, v28, 1, 1")
    k("s_lshl_b32 s%d, s%d, 1" % (S_T0, S_RH))
    k("v_or_b32 v26, s%d, v26" % S_T0)
    k("v_lshlrev_b32 v26, 1, v26")
    k("v_xor_b32 v26, v26, v29")
    k("s_lshl_b32 s%d, s%d, 3" % (S_T0, S_W))
    k("v_add_u32 v27, s%d, v28" % S_T0)
    k("v_mul_lo_u32 v27, v27, s%d" % S_STRIDE)
    k("v_lshl_add_u32 v%d, v26, 4, v27" % V_WD)
    k("s_lshl_b32 s%d, s%d, 5" % (S_T0, S_W))
    k("v_lshrrev_b32 v26, 1, v28")
    k("v_xor_b32 v27, v26, v29")
    k("v_add_u32 v26, s%d, v28" % S_T0)
    k("v_mul_u32_u24 v26, 1280, v26")
    k("v_lshl_add_u32 v%d, v27, 4, v26" % V_XD)
    k("v_xor_b32 v%d, 64, v%d" % (V_XD+1, V_XD))
    k("v_add_u32 v%d, %d, v%d" % (V_XD+1, 8*1280, V_XD+1))
    k("v_add_u32 v%d, %d, v%d" % (V_XD+2, 16*1280, V_XD))
    k("v_add_u32 v%d, %d, v%d" % (V_XD+3, 16*1280, V_XD+1))
    k("s_mul_i32 s%d, s%d, 6144" % (S_WL, S_W))
    k("s_lshl_b32 s%d, s%d, 12" % (S_XL, S_W))
    k("s_add_u32 s%d, s%d, %d" % (S_XL, S_XL, XBASE))
    k("s_mov_b32 s%d, 0" % S_WOFF)
    k("s_lshl_b32 s%d, s%d, 5" % (S_T3, S_STRIDE))

def touch_setup(k):
    k("v_lshrrev_b32 v26, 2, v0")
    k("v_and_b32 v27, 3, v0")
    k("s_lshl_b32 s%d, s%d, 1" % (S_T0, S_MT))
    k("s_add_u32 s%d, s%d, s%d" % (S_T0, S_T0, S_C))
    k("v_lshlrev_b32 v28, 5, v26")
    k("v_add_u32 v28, s%d, v28" % S_T0)
    k("v_mul_lo_u32 v28, v28, s%d" % S_STRIDE)
    k("v_min_u32 v29, 2, v27")
    k("v_lshl_add_u32 v%d, v29, 7, v28" % V_TW)
    k("s_lshl_b32 s%d, s%d, 4" % (S_T0, S_TY))
    k("s_lshl_b32 s%d, s%d, 2" % (S_T1, S_W))
    k("s_add_u32 s%d, s%d, s%d" % (S_T0, S_T0, S_T1))
    k("v_add_u32 v27, s%d, v27" % S_T0)
    k("v_mul_u32_u24 v27, 1280, v27")
    k("v_lshl_add_u32 v%d, v26, 7, v27" % V_TX)
    k("s_cmp_eq_u32 s%d, 0" % S_RH)
    for i in range(3): k("s_cselect_b32 s%d, s%d, s%d" % (SRD_T+i, SRD_W0+i, SRD_W1+i))
    k("s_mov_b32 s%d, 0x20000" % (SRD_T+3))
def masked(n, t):
    if n >= 16: return t
    return "s_bfm_b64 exec, %d, 0\n%s\ns_mov_b64 exec, -1" % (4*n, t)
def touch_items(stage):
    out = []
    for (st, first, n) in cfg.TW:
        if st == stage:
            out.append(("s_mul_i32 s101, s%d, %d" % (S_STRIDE, 32*first), masked(n, "buffer_load_dword v%d, v%d, s[%d:%d], s101 offen%s" % (V_JUNK, V_TW, SRD_T, SRD_T+3, " nt" if cfg.TNT else "")), "pf"))
    for (st, first, n) in cfg.TX:
        if st == stage:
            out.append((None, masked(n, "buffer_load_dword v%d, v%d, s[%d:%d], 0 offen offset:%d" % (V_JUNK, V_TX, SRD_X, SRD_X+3, first*128)), "pf"))
    return out

def gemm_setup2(k, att):
    npt = 5 if att else 6
    k("v_and_b32 v54, 15, v0")
    k("v_lshrrev_b32 v55, 4, v0")
    k("v_bfe_u32 v26, v54, 1, 3")
    k("v_xor_b32 v26, v26, v55")
    k("s_lshl_b32 s%d, s%d, 13" % (S_T0, S_RH))
    k("s_add_u32 s%d, s%d, %d" % (S_T0, S_T0, XBASE))
    k("v_lshlrev_b32 v27, 7, v54")
    k("v_add_u32 v27, s%d, v27" % S_T0)
    k("v_lshl_add_u32 v%d, v26, 4, v27" % V_XR)
    k("v_xor_b32 v%d, 64, v%d" % (V_XR+1, V_XR))
    k("v_bfe_u32 v26, v0, 2, 2")
    k("v_and_b32 v27, 3, v0")
    k("v_lshrrev_b32 v28, 1, v26")
    k("v_and_b32 v29, 1, v55")
    k("v_lshl_or_b32 v28, v29, 1, v28")
    k("v_lshlrev_b32 v28, 5, v28")
    k("v_mul_u32_u24 v29, 6144, v55")
    k("v_lshl_add_u32 v29, v26, 7, v29")
    if att:
        k("s_mul_i32 s%d, s%d, 160" % (S_T0, S_C))
        k("s_add_u32 s%d, s%d, s%d" % (S_T0, S_T0, S_DELTA))
        k("v_mul_u32_u24 v27, 40, v27")
    else:
        k("s_mul_i32 s%d, s%d, 192" % (S_T0, S_C))
        k("v_lshlrev_b32 v27, 3, v27")
    k("v_add_u32 v27, s%d, v27" % S_T0)
    for p in range(npt):
        k("v_add_u32 v30, %d, v27" % (p * (8 if att else 32)))
        k("v_lshrrev_b32 v31, 7, v30")
        k("v_and_b32 v30, 127, v30")
        k("v_xor_b32 v30, v30, v28")
        k("v_lshl_add_u32 v31, v31, 10, v29")
        k("v_add_u32 v%d, v30, v31" % (V_TA+p))
        k("v_add_u32 v%d, %d, v%d" % (V_TA+6+p, 2*WSLOT, V_TA+p))

def w_dma(s):
    return [("s_add_u32 m0, s%d, %d" % (S_WL, (s % RW)*WSLOT + (seg*3+lc)*1024 - lc*128),
             "buffer_load_dwordx4 v%d, s[%d:%d], s%d offen offset:%d lds" % (V_WD, SRD_W0+4*seg, SRD_W0+4*seg+3, S_WOFF, lc*128), ("W", s))
            for seg in range(2) for lc in range(3)]
def x_dma(u, i):
    return ("s_add_u32 m0, s%d, %d" % (S_XL, (u % RX)*XSLOT + i*1024 - u*128),
            "buffer_load_dwordx4 v%d, s[%d:%d], 0 offen offset:%d lds" % (V_XD+i, SRD_X, SRD_X+3, u*128), ("X", u))
def reads_for(s, npt):
    out = []; b = s & 1
    for rt in range(4):
        out.append("ds_read_b128 %s, v%d offset:%d" % (R(XF0 + (b*4+rt)*4, 4), V_XR + (s & 1), ((s >> 1) % RX)*XSLOT + rt*2048))
    slot = s % RW
    for p in range(npt):
        for seg in range(2):
            for h in range(2):
                out.append("ds_read_b64_tr_b16 %s, v%d offset:%d" % (R(WF0 + (b*12+p*2+seg)*4 + 2*h, 2), V_TA + p + (6 if slot >= 2 else 0), (slot & 1)*WSLOT + seg*3072 + h*512))
    return out
def acc(p, seg, rt): return ACC0 + ((p*2+seg)*4 + rt)*4

def late_setup_items():
    k = K()
    k("s_and_b32 s%d, s2, 7" % S_T1)
    k("s_lshr_b32 s%d, s2, 3" % S_OH)
    if cfg.P2M == 4:
        k("s_lshl_b32 s%d, s%d, 2" % (S_M64, S_T1)); k("s_and_b32 s%d, s%d, 3" % (S_T0, S_OH)); k("s_add_u32 s%d, s%d, s%d" % (S_M64, S_M64, S_T0))
        k("s_lshr_b32 s%d, s%d, 2" % (S_NT, S_OH))
    else:
        k("s_lshr_b32 s%d, s%d, 1" % (S_M64, S_T1)); k("s_lshl_b32 s%d, s%d, 3" % (S_M64, S_M64)); k("s_and_b32 s%d, s%d, 7" % (S_T0, S_OH)); k("s_add_u32 s%d, s%d, s%d" % (S_M64, S_M64, S_T0))
        k("s_and_b32 s%d, s%d, 1" % (S_NT, S_T1)); k("s_lshl_b32 s%d, s%d, 2" % (S_NT, S_NT)); k("s_lshr_b32 s%d, s%d, 3" % (S_T0, S_OH)); k("s_add_u32 s%d, s%d, s%d" % (S_NT, S_NT, S_T0))
    k("s_lshr_b32 s%d, s%d, 1" % (S_OMT, S_OH))
    if not cfg.UNI: k("s_lshl_b32 s%d, s%d, 1" % (S_OMT, S_OMT))
    k("s_and_b32 s%d, s%d, 1" % (S_OH, S_OH)); k("s_lshl_b32 s%d, s%d, 1" % (S_T0, S_T1)); k("s_add_u32 s%d, s%d, s%d" % (S_OH, S_OH, S_T0))
    k("s_mul_i32 s%d, s%d, %d" % (S_T0, S_NT, 74*5120))
    srd(k, SRD_B, P_WS, B2_OFF, 74*5120, S_T0)
    k("s_mul_i32 s%d, s%d, 5120" % (S_BB, S_W))
    k("s_add_u32 s%d, s%d, 0x%x" % (S_CNT, P_WS, CNT_OFF))
    k("s_addc_u32 s%d, s%d, 0" % (S_CNT+1, P_WS+1))
    k("v_add_u32 v%d, 4096, v%d" % (V_L16B, V_L16))
    k("s_mov_b32 s%d, %s" % (S_C2, f32(LOG2E))); k("s_mov_b32 s%d, %s" % (S_C2+1, f32(LOG2E)))
    return [t for _, t in k.items]

def dma_queue():
    Q = []
    for st in range(20):
        if st % 2 == 0:
            u = st // 2
            for i in range(4): Q.append((-1 if u < RX else 2*(u-RX)+1, x_dma(u, i), False))
        it = w_dma(st)
        for i, d in enumerate(it): Q.append((-1 if st < RW else max(1, st-RW), d, i == len(it)-1))
    return Q
def wadv(k): k("s_add_u32 s%d, s%d, s%d" % (S_WOFF, S_WOFF, S_T3))
def issue_now(k, Q, n):
    for _ in range(n):
        av, it, last = Q.pop(0)
        k(it[0]); k.vm(it[1], it[2])
        if last: wadv(k)

def btouch(first_ks, n):
    out = []
    for i in range(n):
        pre = "s_and_b32 s101, s%d, 3\ns_lshl_b32 s101, s101, 2\ns_add_u32 s101, s101, s%d\ns_lshl_b32 s101, s101, 13\ns_add_u32 s101, s101, %d\nv_lshlrev_b32 v24, 7, v0" % (S_M64, S_W, first_ks*5120 + i*131072)
        out.append((pre, "buffer_load_dword v25, v24, s[%d:%d], s101 offen%s" % (SRD_B, SRD_B+3, SC), "pf"))
    return out
def spread(items, s0, s1):
    out = {}; n = len(items); i = 0
    for s in range(s0, s1):
        c = -(-(n - i) // (s1 - s)); out[s] = items[i:i+c]; i += c
    return out

def capture(fn):
    q = K(); q.nl = 100000 + capture.n; capture.n += 100
    fn(q)
    assert not q.vmq and not q.lgq
    return q.items
capture.n = 0

def gemm_main(k, att, Q, extra, polls, xrd=None, xwait=None, xsetup=None):
    npt = 5 if att else 6
    Q = list(Q)
    astamp(k, 4)
    gemm_setup2(k, att)
    astamp(k, 5)
    issue_now(k, Q, cfg.N2)
    side = []
    for t in late_setup_items():
        if side and (t.startswith(("s_addc", "s_cselect", "v_cndmask")) ): side[-1] += "\n" + t
        else: side.append(t)
    blocks = []
    if xsetup:
        its = capture(xsetup)
        if any(kd == "l" for kd, _ in its): blocks = its
        else:
            for _, t in its:
                if side and t.startswith(("s_addc", "s_cselect", "v_cndmask", "s_and_b64")): side[-1] += "\n" + t
                else: side.append(t)
    rds = lambda s: reads_for(s, npt)
    stamp(k, 2)
    astamp(k, 6)
    k.wait(vm=[("X", 0), ("W", 0)])
    k("s_barrier")
    astamp(k, 7)
    aflush(k)
    stamp(k, 3)
    r0 = rds(0)
    for i, r in enumerate(r0): k.lg(r, ("r0", max(0, i-4)//2))
    astamp(k, 8)
    for s in range(20):
        b = s & 1
        rd = rds(s+1) if s < 19 else []
        if xrd and s in xrd: rd += xrd[s]
        dm = []
        while Q and Q[0][0] <= s and len(dm) < (cfg.MAXD0 if s == 0 else cfg.MAXD): dm.append(Q.pop(0))
        ex = [(0, e, False) for e in extra.get(s, [])]
        mix = []
        while dm or ex:
            if dm: mix.append(dm.pop(0))
            if ex and len(ex) >= len(dm): mix.append(ex.pop(0))
        dm = mix + [(0, e, False) for e in touch_items(s)]
        mf = []
        idx = [(p, seg, rt) for p in range(npt) for seg in range(2) for rt in range(4)]
        if cfg.LORD == 1 and s: idx = [(p, seg, rt) for rt in range(4) for p in range(npt) for seg in range(2)]
        if cfg.LORD == 2 and s: idx = [(p, seg, (rt if (p*2+seg) % 2 == 0 else 3-rt)) for p in range(npt) for seg in range(2) for rt in range(4)]
        for p, seg, rt in idx:
            a = acc(p, seg, rt)
            mf.append("v_mfma_f32_16x16x32_bf16 %s, %s, %s, %s" % (R(a,4), R(WF0 + (b*12+p*2+seg)*4, 4), R(XF0 + (b*4+rt)*4, 4), R(a,4) if s else "0"))
        nm = len(mf); nd = len(dm)
        at = [int(i * (nm - 3) / max(nd, 1)) for i in range(nd)]
        for i in range(1, nd): at[i] = max(at[i], at[i-1] + 2)
        pend = None
        m1 = nm - 4 - (len(rd) + 1)//2 if s == 0 else 0
        for m, t in enumerate(mf):
            if s == 0 and m % 4 == 0 and not cfg.AST: k.wait(lg=("r0", m//4))
            if s == 0 and m == 0 and cfg.AST: k.wait(lg="all")
            if s == 0 and m == m1:
                k.wait(vm=("W", 1), lg="all"); k("s_barrier")
            k(t)
            used = 0
            if m >= m1 and not (cfg.RSP and s and len(rd) <= (nm - 6 - m) * 2 // 3 + 0 and m % 3 == 2):
                for _ in range(2 if s == 0 else 1):
                    if rd: k.lg(rd.pop(0)); used += 1
            if (s+1) in polls and m == nm - 1: poll_issue(k, P_DBG, polls[s+1], ("poll", s+1))
            if pend is not None:
                k.vm(pend[1][1], pend[1][2]); used += 1
                if pend[2]: wadv(k)
                pend = None
            elif dm and m >= at[nd - len(dm)]:
                pend = dm.pop(0)
                if pend[1][0]: k(pend[1][0]); used += 1
            while side and used < 2 and s >= 1:
                k(side.pop(0)); used += 1
        assert not rd and not dm and pend is None, (s, rd, dm, pend)
        if s == cfg.BLK and blocks:
            assert not side
            k.items += blocks
        if s < 19:
            k.wait(vm=[("W", s+2), ("X", (s+2) >> 1)] + (xwait.get(s, []) if xwait else []), lg="all")
        if s in polls: poll_check(k, P_DBG, N_S1 if polls[s] == D_S1 else N_S3, ("poll", s), sleep=8, barrier=(s == 19))
        if s < 19:
            k("s_barrier")
            if s == 0: aflush(k)
            if s < 4: astamp(k, 11 + s)
            if s == 4: aflush(k)
            if cfg.STG and s % 2 == 1: stamp(k, 17 + s//2)
    assert not Q and not side
    stamp(k, 4)

def ffn_setup(k):
    k("s_lshl_b32 s75, s%d, 1" % S_MT)
    k("s_add_u32 s75, s75, s%d" % S_RH)
    k("s_mul_i32 s75, s75, 74")
    k("s_mul_i32 s76, s%d, 6" % S_TY)
    k("s_add_u32 s75, s75, s76")
    k("s_mul_i32 s76, s%d, 3" % S_C)
    k("s_add_u32 s75, s75, s76")
    k("s_add_u32 s75, s75, 20")
    k("s_lshl_b32 s75, s75, 12")
    k("s_mul_i32 s%d, s%d, %d" % (S_SIG, S_MT, cfg.CS))
    srd(k, SRD_O, P_WS, A2_OFF, A2_SZ)
    if cfg.PREW:
        k("s_mul_i32 s77, s%d, %d" % (S_MT, 128*1280))
        srd(k, SRD_P, P_OUT, 0, 128*1280, 77)
        k("s_lshl_b32 s76, s%d, 2" % S_TY); k("s_add_u32 s76, s76, s%d" % S_W); k("s_mul_i32 s76, s76, 5120")
        for i in range(4): k("v_mov_b32 v%d, 0" % (26+i))

def ffn_role(k, Q):
    extra = spread(b_items(list(range(32)) + list(range(62, 70))), cfg.PS1, cfg.PE1)
    bo = bo_items()
    for g in range(cfg.BOL):
        st = max(16 + g, 20 - cfg.BOL + g, cfg.BOS)
        extra[st] = extra.get(st, []) + bo[5*g:5*g+5]
    polls = {cfg.PS1-1: D_S1}
    for st, ks in cfg.BTL: extra[st] = extra.get(st, []) + btouch(ks, 1)
    if cfg.BTL: polls = {min(cfg.PS1, cfg.BTL[0][0]) - 1: D_S1}
    if cfg.BT2:
        polls = {cfg.PS1-1: D_S1, cfg.BT2-1: D_S3}
        extra[cfg.BT2] = btouch(0, 1) + extra.get(cfg.BT2, [])
    if cfg.PREW:
        pw = [(None, "buffer_store_dwordx4 v[26:29], v%d, s[%d:%d], s76 offen offset:%d%s" % (V_L16 if j < 4 else V_L16B, SRD_P, SRD_P+3, (j % 4)*1024, SC), "st") for j in range(5)]
        for j, e in enumerate(pw): extra[cfg.PREW + j//cfg.PREN] = extra.get(cfg.PREW + j//cfg.PREN, []) + [e]
    gemm_main(k, False, Q, extra, polls, xsetup=ffn_setup)
    fd = Feed(k, b_items(range(32, 62)) + bo[5*cfg.BOL:])
    per, last = cfg.FFE
    n = 0
    for ks in range(3):
        for rt in range(4):
            T = 6 + (n & 1)*8; O = 22 + (n & 1)*4; n += 1
            if O & 3: O = (24, 28)[(n-1) & 1] - 0
            fe = lambda i: fd.emit(1) if (n <= last and i < per) else None
            G = [acc(2*ks+j, 0, rt) for j in range(2)]; U = [acc(2*ks+j, 1, rt) for j in range(2)]
            O = U[0]
            prs = [(j, h) for j in range(2) for h in range(2)]
            for i, (j, h) in enumerate(prs):
                k("v_pk_mul_f32 %s, %s, s[%d:%d] neg_lo:[0,1] neg_hi:[0,1]" % (vr(T+2*i,2), vr(G[j]+2*h,2), S_C2, S_C2+1))
            fe(0)
            for i in range(8): k("v_exp_f32 v%d, v%d" % (T+i, T+i))
            fe(2)
            for i, (j, h) in enumerate(prs):
                k("v_pk_mul_f32 %s, %s, %s" % (vr(G[j]+2*h,2), vr(G[j]+2*h,2), vr(U[j]+2*h,2)))
            for i in range(4): k("v_pk_add_f32 %s, %s, 1.0 op_sel_hi:[1,0]" % (vr(T+2*i,2), vr(T+2*i,2)))
            fe(1)
            for i in range(8): k("v_rcp_f32 v%d, v%d" % (T+i, T+i))
            fe(3)
            for i, (j, h) in enumerate(prs):
                k("v_pk_mul_f32 %s, %s, %s" % (vr(T+2*i,2), vr(G[j]+2*h,2), vr(T+2*i,2)))
            for i in range(4): k("v_cvt_pk_bf16_f32 v%d, v%d, v%d" % (O+i, T+2*i, T+2*i+1))
            k.vm("buffer_store_dwordx4 %s, v%d, s[%d:%d], s75 offen offset:%d%s" % (vr(O,4), V_L16, SRD_O, SRD_O+3, rt*1024, SC), "st")
        if ks < 2: k("s_add_u32 s75, s75, 4096")
    stamp(k, 26)
    def presig():
        k.wait(vm="st")
        stamp(k, 5)
        signal(k, S_CNT, "s%d" % S_SIG, 14, 15)
    return presig, fd.q

def phi_dma(seg):
    pre = "s_add_u32 s%d, s%d, s81\ns_addc_u32 s%d, s%d, 0\n" % (SRD_P, SRD_P, SRD_P+1, SRD_P+1) if seg else ""
    return [((pre if i == 0 else "") + "s_add_u32 m0, s%d, %d" % (S_XL, XSLOT if seg else SPARE - XBASE),
             "buffer_load_dwordx4 v%d, s[%d:%d], 0 offen offset:%d lds" % (V_L16, SRD_P, SRD_P+3, i*1024), ("P", seg)) for i in range(4)]
def phireg(seg, to, s):
    i = s*5 + to
    if seg == 1: return 256 + 48 + 4*i if i < 10 else 256 + 108 + 4*(i-10)
    return 256 + 4*i if i < 12 else 256 + 96 + 4*(i-12)
V_PHA = 23
def phi_reads(seg):
    out = []
    for s in range(3):
        for to in range(5):
            for h in range(2):
                d = phireg(seg, to, s) + 2*h
                b = 0 if seg else SPARE - XBASE - XSLOT
                if s == 2 and h == 1: out.append("ds_read_b64_tr_b16 %s, v26 offset:%d" % (R(d,2), b))
                else: out.append("ds_read_b64_tr_b16 %s, v%d offset:%d" % (R(d,2), V_PHA, b + (8*s+4*h)*40 + 8*to))
    return out
def cvt_in(seg, rt, B):
    out = []
    for t in range(5):
        a = acc(t, seg, rt)
        out.append("v_cvt_pk_bf16_f32 v%d, v%d, v%d" % (B+2*t, a, a+1))
        out.append("v_cvt_pk_bf16_f32 v%d, v%d, v%d" % (B+2*t+1, a+2, a+3))
    return out
def phi_mf(seg, rt, B):
    return ["v_mfma_f32_16x16x32_bf16 %s, %s, %s, %s" % (vr(acc(to,seg,rt),4), R(phireg(seg, to, s),4), vr(B+4*s,4), vr(acc(to,seg,rt),4) if s else "0")
            for s in range(3) for to in range(5)]

PKRS = 352; VRS = 224; PKSZ = 128*PKRS; VB = 2*PKSZ; VSZ = 128*VRS
V_E0, V_E1, V_E2, V_E3, V_E4, V_E5, V_E6 = 27, 28, 29, 30, 60, 61, 62
def att_common_setup(k):
    k("v_lshrrev_b32 v50, 4, v0")
    k("v_and_b32 v51, 15, v0")
    k("v_bfe_u32 v52, v0, 2, 2")
    k("v_and_b32 v53, 3, v0")
    k("v_mul_u32_u24 v48, 800, v50")
    k("v_mad_u32_u24 v48, v52, 40, v48")
    k("v_cmp_eq_u32 vcc, v50, v53")
    k("v_mov_b32 v49, 3200")
    k("v_cndmask_b32 v48, v49, v48, vcc")
    k("s_add_u32 s%d, s%d, %d" % (S_T2, S_XL, XSLOT))
    k("v_add_u32 v%d, s%d, v48" % (V_PHA, S_T2))
    k("v_add_u32 v26, s%d, v49" % S_T2)
def kv_setup(k):
    k("s_lshl_b32 s%d, s%d, 6" % (S_T0, S_RH))
    k("v_add_u32 v48, s%d, v51" % S_T0)
    k("s_mul_i32 s%d, s%d, %d" % (S_T0, S_C, PKSZ))
    k("v_mul_u32_u24 v%d, %d, v48" % (V_E0, PKRS))
    k("v_mul_u32_u24 v49, 80, v50")
    k("v_add3_u32 v%d, v%d, v49, s%d" % (V_E0, V_E0, S_T0))
    k("s_mul_i32 s%d, s%d, %d" % (S_T1, S_C, VSZ))
    k("s_add_u32 s%d, s%d, %d" % (S_T1, S_T1, VB))
    k("v_mul_u32_u24 v%d, %d, v48" % (V_E1, VRS))
    k("v_mul_u32_u24 v49, 48, v50")
    k("v_add3_u32 v%d, v%d, v49, s%d" % (V_E1, V_E1, S_T1))
    k("v_lshrrev_b32 v48, 2, v0")
    k("v_lshlrev_b32 v49, 3, v53")
    k("s_mul_i32 s%d, s%d, 160" % (S_T2, S_RH))
    k("s_add_u32 s%d, s%d, s%d" % (S_T0, S_T0, S_T2))
    k("v_mul_u32_u24 v%d, %d, v48" % (V_E2, PKRS))
    k("v_add3_u32 v%d, v%d, v49, s%d" % (V_E2, V_E2, S_T0))
    k("s_mul_i32 s%d, s%d, 96" % (S_T2, S_RH))
    k("s_add_u32 s%d, s%d, s%d" % (S_T1, S_T1, S_T2))
    k("v_mul_u32_u24 v%d, %d, v48" % (V_E3, VRS))
    k("v_add3_u32 v%d, v%d, v49, s%d" % (V_E3, V_E3, S_T1))
    k("s_add_u32 s%d, s%d, %d" % (S_T2, S_XL, SPARE - XBASE))
    k("v_mul_u32_u24 v48, 80, v51")
    k("v_lshl_add_u32 v48, v50, 3, v48")
    k("v_add_u32 v%d, s%d, v48" % (V_E5, S_T2))
    k("v_add_u32 v%d, s%d, v%d" % (V_E6, S_T2, V_L16))
    k("v_mov_b32 v48, 0x7fffffff")
    k("v_cmp_gt_u32 vcc, 32, v0")
    k("v_cndmask_b32 v%d, v48, v%d, vcc" % (V_E4, V_L16))
    k("s_lshl_b32 s78, s79, 1")
    k("s_add_u32 s78, s78, s%d" % S_RH)
    k("s_lshl_b32 s78, s78, 4")
    k("s_add_u32 s78, s78, s%d" % S_MT)
    k("s_mul_i32 s78, s78, %d" % KVPS)
    k("v_cmp_gt_u32 s[72:73], 2, v50")
    k("v_cmp_gt_u32 s[74:75], 5, v51")
    k("s_and_b64 s[76:77], s[72:73], s[74:75]")
    srd(k, SRD_O, P_WS, KVP_OFF, KVP_SZ)
    for r in (42, 43, 54, 55): k("v_mov_b32 v%d, 0" % r)
def q_setup(k):
    k("s_mov_b32 s%d, 81920" % S_T0)
    k("v_mul_lo_u32 v48, v50, s%d" % S_T0)
    k("v_lshl_add_u32 v%d, v51, 4, v48" % V_E0)
    k("v_lshl_add_u32 v%d, v51, 3, v48" % V_E1)
    k("v_lshlrev_b32 v%d, 2, v0" % V_E2)
    k("s_mul_i32 s%d, s79, %d" % (S_T1, 4*81920))
    k("s_lshl_b32 s%d, s%d, 1" % (S_T0, S_MT))
    k("s_add_u32 s%d, s%d, s%d" % (S_T0, S_T0, S_RH))
    k("s_lshl_b32 s75, s%d, 10" % S_T0)
    k("s_add_u32 s75, s75, s%d" % S_T1)
    k("s_add_u32 s76, s75, 32768")
    k("s_lshl_b32 s77, s%d, 9" % S_T0)
    k("s_add_u32 s77, s77, s%d" % S_T1)
    k("s_add_u32 s77, s77, 65536")
    k("s_lshl_b32 s78, s%d, 8" % S_T0)
    k("s_add_u32 s78, s78, %d" % (G_OFF - PQ_OFF))
    k("s_add_u32 s%d, s%d, %d" % (S_SIG, S_MT, C_Q))
    k("s_mul_i32 s%d, s%d, %d" % (S_SIG, S_SIG, cfg.CS))
    srd(k, SRD_O, P_WS, PQ_OFF, G_OFF + G_SZ - PQ_OFF)
    for r in (42, 43, 54, 55): k("v_mov_b32 v%d, 0" % r)

def softmax_pm(k, P, E, T, O, fd=None, mf=None, side=None, inplace=None):
    def fe(n=1):
        if fd: fd.emit(n)
    mf = list(mf or []); side = list(side or [])
    v = [p + i for p in P for i in range(2)]
    k("v_max3_f32 v%d, v%d, v%d, v%d" % (T, v[0], v[1], v[2]))
    k("v_min3_f32 v%d, v%d, v%d, v%d" % (T+2, v[0], v[1], v[2]))
    k("v_max3_f32 v%d, v%d, v%d, v%d" % (T+1, v[3], v[4], v[5]))
    k("v_min3_f32 v%d, v%d, v%d, v%d" % (T+3, v[3], v[4], v[5]))
    for n, i in enumerate(range(6, 20, 2)):
        c = n & 1
        k("v_max3_f32 v%d, v%d, v%d, v%d" % (T+c, T+c, v[i], v[i+1]))
        k("v_min3_f32 v%d, v%d, v%d, v%d" % (T+2+c, T+2+c, v[i], v[i+1]))
    fe()
    k("v_max_f32 v%d, v%d, v%d" % (T, T, T+1))
    k("v_min_f32 v%d, v%d, v%d" % (T+2, T+2, T+3))
    k("v_mul_f32 v%d, %s, v%d" % (T, f32(-LOG2E), T))
    k("v_mul_f32 v%d, %s, v%d" % (T+2, f32(LOG2E), T+2))
    for i, p in enumerate(P):
        k("v_pk_fma_f32 %s, %s, s[%d:%d], %s op_sel_hi:[1,1,0]" % (vr(E+2*i,2), vr(p,2), S_C2, S_C2+1, vr(T,2)))
    fe()
    for i, p in enumerate(P):
        k("v_pk_fma_f32 %s, %s, s[%d:%d], %s op_sel_hi:[1,1,0] neg_lo:[0,1,0] neg_hi:[0,1,0]" % (vr(p,2), vr(p,2), S_C2, S_C2+1, vr(T+2,2)))
    ex = [E+i for i in range(20)] + v
    for i, x in enumerate(ex):
        if i % 2 == 0:
            if mf: k(mf.pop(0))
            if side:
                y = side.pop(0)
                if isinstance(y, str) or len(y) == 3: emit1(k, y)
                else: k.lg(*y)
        if i % 12 == 5: fe()
        k("v_exp_f32 v%d, v%d" % (x, x))
    assert not mf and not side
    Ep = [E+2*i for i in range(10)]
    k("v_pk_add_f32 %s, %s, %s" % (vr(T+4,2), vr(Ep[0],2), vr(Ep[1],2)))
    k("v_pk_add_f32 %s, %s, %s" % (vr(T,2), vr(Ep[2],2), vr(Ep[3],2)))
    k("v_pk_add_f32 %s, %s, %s" % (vr(T+6,2), vr(P[0],2), vr(P[1],2)))
    k("v_pk_add_f32 %s, %s, %s" % (vr(T+2,2), vr(P[2],2), vr(P[3],2)))
    for i in range(4, 10, 2):
        k("v_pk_add_f32 %s, %s, %s" % (vr(T+4,2), vr(T+4,2), vr(Ep[i],2)))
        k("v_pk_add_f32 %s, %s, %s" % (vr(T,2), vr(T,2), vr(Ep[i+1],2)))
        k("v_pk_add_f32 %s, %s, %s" % (vr(T+6,2), vr(T+6,2), vr(P[i],2)))
        k("v_pk_add_f32 %s, %s, %s" % (vr(T+2,2), vr(T+2,2), vr(P[i+1],2)))
    k("v_pk_add_f32 %s, %s, %s" % (vr(T+4,2), vr(T+4,2), vr(T,2)))
    k("v_pk_add_f32 %s, %s, %s" % (vr(T+6,2), vr(T+6,2), vr(T+2,2)))
    fe()
    k("v_add_f32 v%d, v%d, v%d" % (T+4, T+4, T+5))
    k("v_add_f32 v%d, v%d, v%d" % (T+6, T+6, T+7))
    k("v_rcp_f32 v%d, v%d" % (T+4, T+4))
    k("v_rcp_f32 v%d, v%d" % (T+6, T+6))
    for i in range(10): k("v_pk_mul_f32 %s, %s, %s op_sel_hi:[1,0]" % (vr(Ep[i],2), vr(Ep[i],2), vr(T+4,2)))
    fe()
    for i in range(10): k("v_pk_mul_f32 %s, %s, %s op_sel_hi:[1,0]" % (vr(P[i],2), vr(P[i],2), vr(T+6,2)))
    if inplace:
        fe()
        for t in pack_inplace(inplace, E): k(t)
        return
    for i in range(10): k("v_cvt_pk_bf16_f32 v%d, v%d, v%d" % (O+i, Ep[i], Ep[i]+1))
    fe()
    for i in range(10): k("v_cvt_pk_bf16_f32 v%d, v%d, v%d" % (O+10+i, P[i], P[i]+1))

def att_extra(two):
    extra = spread(b_items(range(cfg.NBA)), cfg.PSA, 20)
    for st, ks in cfg.BTL: extra[st] = extra.get(st, []) + btouch(ks, 1)
    extra[cfg.PHS] = phi_dma(0)
    return extra

def att_loop(k, Q):
    def setup(q): att_common_setup(q); kv_setup(q)
    gemm_main(k, True, Q, att_extra(True), {(min(cfg.PSA, cfg.BTL[0][0]) if cfg.BTL else cfg.PSA)-1: D_S1}, xrd={19: phi_reads(0)}, xwait={18: [("P", 0)]}, xsetup=setup)

def kv_role(k):
    EREG = 6; TREG = 244; O = 224
    for t in cvt_in(0, 0, 32): k(t)
    k.wait(lg="all")
    weave(k, phi_mf(0, 0, 32), cvt_in(0, 1, 44))
    if not cfg.STG: stamp(k, 17)
    def vout(rt):
        q = [acc(t, 1, rt) + i for t in range(5) for i in range(4)]
        f = ["v_cvt_pk_bf16_f32 v%d, v%d, v%d" % (q[i], q[2*i], q[2*i+1]) for i in range(10)]
        f += ["v_mov_b32 v%d, 0x3f80" % q[10], "v_mov_b32 v%d, 0" % q[11]]
        w = [("ds_write_b128 v%d, %s offset:%d" % (V_E1, vr(q[4*i],4), rt*16*VRS + 16*i), "vw") for i in range(3)]
        return f, w
    def vfr(n, bt): return acc((n*2+bt) >> 2, 1, (n*2+bt) & 3)
    vreads = []
    for n in range(8):
        j, ks = n >> 2, n & 3
        for bt in range(2):
            for h in range(2):
                vreads.append(("ds_read_b64_tr_b16 %s, v%d offset:%d" % (vr(vfr(n,bt)+2*h,2), V_E3, (32*ks+16*h)*VRS + j*48 + bt*32), "vf"))
    fd = Feed(k, [])
    for rt in range(4):
        P = [acc(t, 0, rt) + 2*h for t in range(5) for h in range(2)]
        mf = phi_mf(0, rt+1, 32 + ((rt+1) & 1)*12) if rt < 3 else []
        if rt == cfg.KVB0 and cfg.KVN >= 47: fd.q += b_items(range(32, 47))
        if rt == 3 and cfg.KVN >= 62: fd.q += b_items(range(47, 62))
        side = []
        if rt < 2:
            for r in (2*rt, 2*rt+1):
                f, w = vout(r)
                for t in f: k(t)
                side += w
        else:
            if rt == 2: k.wait(lg="vw"); k("s_barrier")
            side = vreads[(rt-2)*16:(rt-1)*16]
        softmax_pm(k, P, EREG, TREG, O, fd, mf, side)
        for i in range(5):
            k.lg("ds_write_b128 v%d, %s offset:%d" % (V_E0, vr(O+4*i,4), rt*16*PKRS + 16*i), ("pw", rt))
        if rt < 2:
            for t in cvt_in(0, rt+2, 32 + (rt & 1)*12): k(t)
        if not cfg.STG: stamp(k, 18+rt)
    k.wait(lg="all")
    k("s_barrier")
    if not cfg.STG: stamp(k, 22)
    KAQ = [32, 36, 40, 44, 48, 52, 224, 228, 232, 236, 240, 244]
    def pfr(n, ft): return acc(((n % 6)*3+ft) >> 2, 0, ((n % 6)*3+ft) & 3)
    def rd(n):
        j, ks = n >> 2, n & 3
        return [("lg", "ds_read_b64_tr_b16 %s, v%d offset:%d" % (vr(pfr(n,ft)+2*h,2), V_E2, (32*ks+16*h)*PKRS + j*80 + ft*32), ("f", n)) for ft in range(3) for h in range(2)]
    def pack(jj):
        f = []
        for ft in range(3):
            for bt in range(2):
                a = KAQ[(jj*3+ft)*2+bt]
                f += ["v_cvt_pk_bf16_f32 v%d, v%d, v%d" % (a, a, a+1), "v_cvt_pk_bf16_f32 v%d, v%d, v%d" % (a+1, a+2, a+3)]
                mask = [[None, "s[74:75]"], [None, "s[74:75]"], ["s[72:73]", "s[76:77]"]][ft][bt]
                w = "ds_write_b64 v%d, %s offset:%d" % (V_E5, vr(a,2), jj*1680 + bt*1280 + ft*32)
                if mask: w = "s_mov_b64 exec, %s\n%s\ns_mov_b64 exec, -1" % (mask, w)
                f.append(("lg", w, "cw"))
        return f
    weave(k, [], rd(0) + rd(1))
    pk0 = pack(0)
    for n in range(8):
        j, ks = n >> 2, n & 3
        k.wait(lg=("f", n))
        mf = []
        for ft in range(3):
            for bt in range(2):
                a = KAQ[(j*3+ft)*2+bt]
                mf.append("v_mfma_f32_16x16x32_bf16 %s, %s, %s, %s" % (vr(a,4), vr(pfr(n,ft),4), vr(vfr(n,bt),4), vr(a,4) if ks else "0"))
        fill = rd(n+2) if n < 6 else []
        if n < 4: fill.append(lambda: fd.emit(1))
        if n >= 5: fill += pk0[(n-5)*6:(n-4)*6]
        weave(k, mf, fill)
    weave(k, [], pack(1))
    k.wait(lg="all")
    for i in range(4): k.lg("ds_read_b128 %s, v%d offset:%d" % (vr(64+4*i,4), V_E6, i*1024), ("cr", i))
    for i in range(4):
        k.wait(lg=("cr", i))
        k.vm("buffer_store_dwordx4 %s, v%d, s[%d:%d], s78 offen offset:%d%s" % (vr(64+4*i,4), V_L16 if i < 3 else V_E4, SRD_O, SRD_O+3, i*1024, SC), "st")
    stamp(k, 26)
    stamp(k, 5)
    fd.drain()

QXB = 3*WSLOT; QST = 98304
def qacc(t, rt): return 64 + (t*6+rt)*4
QW0 = 256; QX0 = 256 + 80; QPH = 256 + 176
def qa_role(k):
    k("s_mov_b32 s%d, 13" % S_TY)
    k("s_mul_i32 s75, s%d, 6" % S_T0); k("s_add_u32 s75, s75, s%d" % S_T1); k("s_sub_u32 s75, s75, 26")
    k("s_lshr_b32 s79, s%d, 1" % S_T0)
    k("s_mul_i32 s%d, s79, 12" % S_MT); k("s_sub_u32 s%d, s75, s%d" % (S_MT, S_MT))
    k("s_add_u32 s%d, s75, %d" % (S_SIG, C_P)); k("s_mul_i32 s%d, s%d, %d" % (S_SIG, S_SIG, cfg.CS))
    k("s_lshl_b32 s75, s75, 2"); k("s_add_u32 s75, s75, s%d" % S_W)
    k("s_mul_i32 s76, s75, 205"); k("s_lshr_b32 s76, s76, 11")
    k("s_mul_i32 s77, s76, 10"); k("s_sub_u32 s77, s75, s77")
    k("s_cmp_ge_u32 s76, 19")
    k("s_cselect_b32 s78, 0x4000000, 0")
    k("s_mul_i32 s80, s76, %d" % (32*1280)); k("s_lshl_b32 s81, s77, 7"); k("s_add_u32 s80, s80, s81"); k("s_add_u32 s80, s80, s78")
    k("v_lshrrev_b32 v24, 3, v0"); k("v_and_b32 v25, 7, v0")
    k("v_and_b32 v26, 6, v24"); k("v_xor_b32 v26, v26, v25"); k("v_lshlrev_b32 v26, 4, v26")
    k("v_mul_u32_u24 v32, 1280, v24"); k("v_add_u32 v32, v32, v26")
    k("v_lshrrev_b32 v27, 2, v24"); k("v_and_b32 v28, 3, v24"); k("v_lshl_add_u32 v27, v27, 3, v28")
    k("v_mul_u32_u24 v36, 1280, v27"); k("v_add_u32 v36, v36, v26")
    for i in range(1, 4):
        k("v_add_u32 v%d, %d, v32" % (32+i, i*8*1280))
        k("v_add_u32 v%d, %d, v36" % (36+i, (16*(i&1) + 4*(i>>1))*1280))
    k("s_lshl_b32 s82, s%d, 14" % S_W); k("s_add_u32 s82, s82, %d" % QST)
    k("s_waitcnt lgkmcnt(0)")
    srd(k, SRD_W1, P_WD, 0, 1728*1280)
    srd(k, SRD_W0, P_WO, 0, 640*1280)
    def load(n, sg, vb, off):
        k("s_add_u32 s81, s80, %s" % off)
        for j in range(4):
            k("s_add_u32 m0, s82, %d" % (n*4096 + j*1024))
            k.vm("buffer_load_dwordx4 v%d, s[%d:%d], s81 offen nt lds" % (vb+j, sg, sg+3), ("u", n))
    load(0, SRD_W1, 32, "%d" % (18*32*1280))
    load(1, SRD_W1, 32, "%d" % (37*32*1280))
    load(2, SRD_W0, 36, "0")
    k("s_cmp_eq_u32 s76, 0")
    for i in range(3): k("s_cselect_b32 s%d, s%d, s%d" % (96+i, SRD_W0+i, SRD_W1+i))
    k("s_mov_b32 s99, 0x20000")
    k("s_cselect_b64 vcc, -1, 0")
    k("s_mov_b32 s72, %d" % (19*32*1280))
    k("s_cselect_b32 s72, s72, %d" % (-32*1280 & 0xffffffff))
    for j in range(4): k("v_cndmask_b32 v%d, v%d, v%d, vcc" % (40+j, 32+j, 36+j))
    load(3, 96, 40, "s72")
    k("s_mul_i32 s3, s75, 5120")
    srd(k, SRD_O, P_WS, B2_OFF, B2_SZ)
    for t in late_setup_items(): k(t)
    k("v_lshrrev_b32 v44, 2, v0"); k("v_bfe_u32 v45, v44, 1, 2"); k("v_and_b32 v46, 3, v0")
    k("v_lshlrev_b32 v44, 7, v44"); k("v_lshl_add_u32 v44, v46, 3, v44"); k("v_add_u32 v44, s82, v44")
    for b in range(4):
        k("v_xor_b32 v46, %d, v45" % b); k("v_lshl_add_u32 v%d, v46, 5, v44" % (48+b))
    D0 = 4
    for b in range(4):
        k("s_lshl_b32 s72, s77, 2"); k("s_add_u32 s72, s72, %d" % b)
        k("s_mul_i32 s73, s72, 205"); k("s_lshr_b32 s73, s73, 10")
        k("s_mul_i32 s74, s73, 5"); k("s_sub_u32 s72, s72, s74")
        k("s_mul_i32 s73, s73, 74"); k("s_add_u32 s73, s73, s76")
        k("s_mul_i32 s73, s73, 5"); k("s_add_u32 s73, s73, s72")
        k("s_lshl_b32 s73, s73, 10")
        k("s_add_u32 s%d, s73, s78" % (D0+b))
    k("s_cmp_lt_u32 s76, 17"); k("s_cselect_b32 s100, 0, 0x4000000")
    k("s_mov_b32 s%d, 3840" % S_STRIDE)
    k("s_mul_i32 s%d, s79, 320" % S_T1)
    k("s_and_b32 s%d, s%d, 127" % (S_DELTA, S_T1)); k("s_sub_u32 s75, s%d, s%d" % (S_T1, S_DELTA))
    k("s_add_u32 s76, s75, %d" % (32*3840))
    k("s_sub_u32 s77, %d, s75" % (640*3840)); k("s_sub_u32 s78, %d, s76" % (640*3840))
    srd(k, SRD_W0, P_WQKV, 0, "s77", 75)
    srd(k, SRD_W1, P_WQKV, 0, "s78", 76)
    gemm_setup(k)
    k("s_mov_b32 s%d, %d" % (S_T3, 64*3840))
    k("s_mul_i32 s%d, s%d, %d" % (S_T0, S_W, 16*1280))
    for i in range(4): k("v_add_u32 v%d, s%d, v%d" % (V_XD+i, S_T0, V_XD+i))
    k("s_add_u32 s%d, s%d, %d" % (S_XL, S_WL, QXB))
    k("s_mov_b32 s101, %d" % (32*1280))
    k("s_mul_i32 s%d, s%d, %d" % (S_T0, S_MT, 192*1280))
    k("s_min_u32 s%d, s%d, %d" % (S_T0, S_T0, 2048*1280))
    k("s_sub_u32 s%d, %d, s%d" % (S_T1, 2048*1280, S_T0))
    srd(k, SRD_X, P_X, 0, "s%d" % S_T1, S_T0)
    k("s_lshl_b32 s%d, s%d, 2" % (S_T0, S_MT)); k("s_add_u32 s%d, s%d, s%d" % (S_T0, S_T0, S_W)); k("s_mul_i32 s%d, s%d, %d" % (S_T0, S_T0, 16*3840))
    k("v_lshrrev_b32 v44, 2, v0"); k("v_mul_u32_u24 v44, 3840, v44"); k("v_and_b32 v45, 3, v0"); k("v_min_u32 v45, 2, v45"); k("v_lshl_add_u32 v44, v45, 7, v44")
    k.vm("buffer_load_dword v%d, v44, s[%d:%d], s%d offen" % (V_JUNK, SRD_W0, SRD_W0+3, S_T0), "pf")
    gemm_setup2(k, True)
    k("s_mul_i32 s%d, s%d, %d" % (S_T0, S_RH, 12288 - 8192)); k("s_sub_u32 s%d, s%d, %d" % (S_T0, S_T0, XBASE - QXB))
    for i in range(2): k("v_add_u32 v%d, s%d, v%d" % (V_XR+i, S_T0, V_XR+i))
    stamp(k, 1)
    for n, ks0 in enumerate((38, 57, 0, 19)):
        k.wait(vm=("u", n))
        F = 64 + n*16
        for b in range(4):
            for h in range(2): k.lg("ds_read_b64_tr_b16 %s, v%d offset:%d" % (vr(F+4*b+2*h,2), 48+b, n*4096 + h*2048))
        for b in range(4):
            k("s_add_u32 s%d, s%d, %d" % (72+b, D0+b, ks0*5120))
            if ks0 == 57: k("s_add_u32 s%d, s%d, s100" % (72+b, 72+b))
        k.wait(lg="all")
        for b in range(4):
            k.vm("buffer_store_dwordx4 %s, v%d, s[%d:%d], s%d offen%s" % (vr(F+4*b,4), V_L16, SRD_O, SRD_O+3, 72+b, SC), "rs")
    srd(k, 96, P_WS, KVP_OFF, KVP_SZ + 16*4096)
    for i in range(4): k("v_mov_b32 v%d, -1" % (56+i))
    for j in range(4): k.vm("buffer_store_dwordx4 v[56:59], v%d, s[96:99], s3 offen offset:%d%s" % (V_L16, j*1024, SC), "rs")
    k.vm("buffer_store_dwordx4 v[56:59], v%d, s[96:99], s3 offen%s" % (V_L16B, SC), "rs")
    sv = list(k.vmq)
    k("s_cmp_eq_u32 s%d, 11" % S_MT); k("s_cbranch_scc1 L_spare")
    def wd(s): return [("s_add_u32 m0, s%d, %d" % (S_WL, (s % 3)*WSLOT + i*1024 - (i % 3)*128), b, c) for i, (a, b, c) in enumerate(w_dma(s))]
    def xd(s): return [("s_add_u32 m0, s%d, %d" % (S_XL, (s % 3)*WSLOT + i*1024 - s*128),
                        "buffer_load_dwordx4 v%d, s[%d:%d], %s offen offset:%d lds" % (V_XD + (i if i < 4 else i-4), SRD_X, SRD_X+3, "0" if i < 4 else "s101", s*128), ("X", s)) for i in range(6)]
    def now(items, adv):
        for it in items: k(it[0]); k.vm(it[1], it[2])
        if adv: wadv(k)
    now(xd(0), 0); now(wd(0), 1); now(wd(1), 1)
    k("s_lshl_b32 s79, s79, 1"); k("s_add_u32 s79, s79, s%d" % S_C); k("s_mul_i32 s80, s79, 3200")
    srd(k, SRD_P, P_WPHI, 0, 3200, 80)
    k.wait(vm="rs")
    signal(k, P_DBG, D_S1)
    stamp(k, 2)
    now(xd(1), 0)
    k("s_lshl_b32 s82, s%d, 12" % S_W); k("s_add_u32 s82, s82, %d" % SPARE)
    now([("s_mov_b32 m0, s82", "buffer_load_dwordx4 v%d, s[%d:%d], 0 offen offset:%d lds" % (V_L16, SRD_P, SRD_P+3, i*1024), "P") for i in range(4)], 0)
    k("v_lshrrev_b32 v50, 4, v0"); k("v_and_b32 v51, 15, v0"); k("v_bfe_u32 v52, v0, 2, 2"); k("v_and_b32 v53, 3, v0")
    k("v_mul_u32_u24 v48, 800, v50"); k("v_mad_u32_u24 v48, v52, 40, v48")
    k("v_cmp_eq_u32 vcc, v50, v53"); k("v_mov_b32 v49, 3200"); k("v_cndmask_b32 v48, v49, v48, vcc")
    k("v_add_u32 v%d, s82, v48" % V_PHA); k("v_add_u32 v26, s82, v49")
    k("s_mov_b32 s%d, %d" % (S_T0, 128*1280)); k("v_mul_lo_u32 v48, v50, s%d" % S_T0); k("v_lshl_add_u32 v%d, v51, 4, v48" % V_E0)
    k("s_mul_i32 s76, s%d, 12" % S_MT); k("s_mul_i32 s77, s%d, 6" % S_RH); k("s_add_u32 s76, s76, s77")
    k("s_mul_i32 s75, s79, %d" % (4*128*1280)); k("s_mul_i32 s77, s76, 1280"); k("s_add_u32 s75, s75, s77")
    srd(k, SRD_O, P_WS, PQ_OFF, PQ_SZ)
    for r in (42, 43, 54, 55): k("v_mov_b32 v%d, 0" % r)
    def rds(s):
        out = []; b = s & 1; sl = (s % 3)*WSLOT
        for rt in range(6):
            for hh in range(2): out.append("ds_read_b128 %s, v%d offset:%d" % (R(QX0 + (b*12+rt*2+hh)*4, 4), V_XR + hh, sl + rt*2048))
        for p in range(5):
            for hh in range(2):
                for h in range(2): out.append("ds_read_b64_tr_b16 %s, v%d offset:%d" % (R(QW0 + (b*10+p*2+hh)*4 + 2*h, 2), V_TA + p, sl + hh*3072 + h*512))
        return out
    def ph(to, s): return QPH + 4*(s*5 + to)
    prd = []
    for s in range(3):
        for to in range(5):
            for h in range(2):
                if s == 2 and h == 1: prd.append("ds_read_b64_tr_b16 %s, v26" % R(ph(to,s)+2*h,2))
                else: prd.append("ds_read_b64_tr_b16 %s, v%d offset:%d" % (R(ph(to,s)+2*h,2), V_PHA, (8*s+4*h)*40 + 8*to))
    k.wait(vm=[("X", 0), ("W", 0)])
    k("s_barrier")
    stamp(k, 3)
    for r in rds(0): k.lg(r)
    now(wd(2), 1); now(xd(2), 0)
    k.wait(vm=[("X", 1), ("W", 1)], lg="all")
    k("s_barrier")
    for s in range(10):
        b = s & 1
        rd = rds(s+1) if s < 9 else list(prd)
        dm = [(e, i == 5) for i, e in enumerate(wd(s+3))] + [(e, False) for e in xd(s+3)] if s + 3 < 10 else []
        if s == 9: dm = [(e, False) for e in b_items(range(27, 32))]
        mf = ["v_mfma_f32_16x16x32_bf16 %s, %s, %s, %s" % (vr(qacc(p,rt),4), R(QW0 + (b*10+p*2+hh)*4, 4), R(QX0 + (b*12+rt*2+hh)*4, 4), vr(qacc(p,rt),4) if (s or hh) else "0")
              for p in range(5) for rt in range(6) for hh in range(2)]
        nm = len(mf); nd = len(dm)
        at = [int(i * (nm - 3) / max(nd, 1)) for i in range(nd)]
        pend = None
        for m, t in enumerate(mf):
            k(t)
            if rd: k.lg(rd.pop(0))
            if s == 7 and m == nm - 1: poll_issue(k, P_DBG, D_S1, "s1")
            if pend is not None:
                k.vm(pend[0][1], pend[0][2])
                if pend[1]: wadv(k)
                pend = None
            elif dm and m >= at[nd - len(dm)]:
                pend = dm.pop(0)
                if pend[0][0]: k(pend[0][0])
        assert not rd and not dm and pend is None
        if s < 9:
            k.wait(vm=[("W", s+2), ("X", s+2)], lg="all")
            if s == 8: poll_check(k, P_DBG, N_S1, "s1", sleep=8, barrier=False)
            k("s_barrier")
    stamp(k, 4)
    def cin(rt):
        o = []
        for t in range(5):
            a = qacc(t, rt); B = 32 + (rt & 1)*12
            o += ["v_cvt_pk_bf16_f32 v%d, v%d, v%d" % (B+2*t, a, a+1), "v_cvt_pk_bf16_f32 v%d, v%d, v%d" % (B+2*t+1, a+2, a+3)]
        return o
    def pmf(rt): return ["v_mfma_f32_16x16x32_bf16 %s, %s, %s, %s" % (vr(qacc(to,rt),4), R(ph(to, s),4), vr(32+(rt & 1)*12+4*s,4), vr(qacc(to,rt),4) if s else "0") for s in range(3) for to in range(5)]
    def stores(rt):
        o = ["s_add_u32 s77, s75, %d\ns_cmp_lt_u32 s76, %d\ns_cselect_b32 s77, s77, 0x4000000" % (rt*1280, 128 - rt)]
        return o + [("vm", "buffer_store_dwordx4 %s, v%d, s[%d:%d], s77 offen offset:%d%s" % (vr(qacc(t,rt),4), V_E0, SRD_O, SRD_O+3, t*256, SC), "st") for t in range(5)]
    for t in cin(0): k(t)
    k.wait(lg="all")
    weave(k, pmf(0), cin(1))
    fd = Feed(k, b_items(list(range(0, 12)) + list(range(32, 62))) + bo_items()[:cfg.BOQ])
    prev = []
    for rt in range(6):
        v = [qacc(t, rt) + i for t in range(5) for i in range(4)]
        fd.emit(cfg.QX)
        softmax_pm(k, v[::2], 184, 204, None, fd, pmf(rt+1) if rt < 5 else None, prev, inplace=v)
        fd.emit(cfg.QX)
        if rt < 4:
            for t in cin(rt+2): k(t)
        prev = stores(rt)
    weave(k, [], prev)
    stamp(k, 26)
    rest = b_items(list(range(12, 27)) + list(range(62, 70)))
    Feed(k, rest[:6]).drain()
    k.wait(vm="st")
    stamp(k, 5)
    signal(k, S_CNT, "s%d" % S_SIG)
    left = [x for x in fd.q]
    nb = [x[2][1] for x in left if isinstance(x[2], tuple)]
    nbo = sum(1 for x in left if x[2] == "BO")
    assert nbo % 5 == 0 or True
    assert not nb
    Feed(k, left).drain()
    k("s_branch L_qtail")
    k.label("L_spare")
    k.vmq = sv; k.lgq = []
    k("s_cmp_eq_u32 s79, 0")
    k("s_cselect_b32 s%d, %d, 0" % (S_T0, 96*cfg.CS))
    srd(k, 96, P_WS, CNT_OFF, "s%d" % S_T0)
    for i in range(4): k("v_mov_b32 v%d, 0" % (56+i))
    k("s_mul_i32 s%d, s%d, %d" % (S_T0, S_W, 24*cfg.CS))
    k("v_mul_u32_u24 v60, %d, v24" % cfg.CS); k("v_lshl_add_u32 v60, v25, 4, v60")
    for i in range(3):
        k.vm("buffer_store_dwordx4 v[56:59], v60, s[96:99], s%d offen%s" % (S_T0, SC), "rs")
        k("s_add_u32 s%d, s%d, %d" % (S_T0, S_T0, 8*cfg.CS))
    k("s_lshl_b32 s72, s79, 2"); k("s_add_u32 s72, s72, s%d" % S_W)
    srd(k, SRD_X, P_X, 0, 2048*1280)
    srd(k, SRD_P, P_GW, 0, 1280)
    srd(k, SRD_W0, P_WS, G_OFF, G_SZ)
    k("v_and_b32 v24, 15, v0"); k("v_lshrrev_b32 v25, 4, v0")
    k("v_lshlrev_b32 v26, 4, v24")
    for j in range(5): k.vm("buffer_load_dwordx4 %s, v26, s[%d:%d], 0 offen offset:%d" % (vr(32+4*j,4), SRD_P, SRD_P+3, 256*j), "gw")
    k.wait(vm="rs")
    signal(k, P_DBG, D_S1)
    stamp(k, 2)
    k("v_lshlrev_b32 v27, 3, v25"); k("v_mul_u32_u24 v27, 1280, v27"); k("v_add_u32 v27, v27, v26")
    k("v_lshl_add_u32 v28, v25, 3, v24"); k("v_lshlrev_b32 v28, 2, v28")
    k("v_mov_b32 v30, 0x7fffffff"); k("v_cmp_gt_u32 vcc, 8, v24"); k("v_cndmask_b32 v28, v30, v28, vcc")
    k("s_mul_i32 s74, s72, %d" % (128*1280)); k("s_lshl_b32 s75, s72, 9")
    def gl(n):
        for j in range(5): k.vm("buffer_load_dwordx4 %s, v27, s[%d:%d], s74 offen offset:%d" % (vr(64+(n % 8)*20+4*j,4), SRD_X, SRD_X+3, 256*j), ("gx", n))
        k("s_add_u32 s74, s74, %d" % (1280 if n % 8 != 7 else 25*1280))
    for n in range(3): gl(n)
    k("s_mov_b32 s76, 0")
    k.label("L_gate")
    for it in range(8):
        k.wait(vm=("gx", it))
        gl(it + 3)
        k("v_mov_b32 v30, 0")
        for j in range(20): k("v_dot2c_f32_bf16 v30, v%d, v%d" % (64+it*20+j, 32+j))
        k("s_nop 3")
        for sh in (8, 4, 2, 1): k("v_add_f32_dpp v30, v30, v30 row_ror:%d row_mask:0xf bank_mask:0xf" % sh)
        k("v_cmp_eq_u32 vcc, %d, v24" % it)
        k("v_cndmask_b32 v29, v29, v30, vcc")
    k("v_mul_f32 v31, %s, v29" % f32(-LOG2E)); k("v_exp_f32 v31, v31"); k("v_add_f32 v31, 1.0, v31"); k("v_rcp_f32 v31, v31")
    k("s_nop 0")
    k("buffer_store_dword v31, v28, s[%d:%d], s75 offen%s" % (SRD_W0, SRD_W0+3, SC))
    k("s_add_u32 s75, s75, 128"); k("s_add_u32 s76, s76, 1"); k("s_cmp_lt_u32 s76, 4"); k("s_cbranch_scc1 L_gate")
    k("s_waitcnt vmcnt(0)"); k.vmq = []
    signal(k, P_DBG, D_S3)
    stamp(k, 4)
    poll_issue(k, P_DBG, D_S1, "s1"); poll_check(k, P_DBG, N_S1, "s1", sleep=16)
    Feed(k, b_items(list(range(18)) + list(range(27, 62))) + bo_items()[:cfg.BOQ]).drain()
    stamp(k, 5)
    k.label("L_qtail")

def pack_inplace(v, E):
    out = ["v_cvt_pk_bf16_f32 v%d, v%d, v%d" % (v[10+i], v[2*i], v[2*i+1]) for i in range(9, -1, -1)]
    out += ["v_cvt_pk_bf16_f32 v%d, v%d, v%d" % (v[i], E+2*i, E+2*i+1) for i in range(10)]
    return out
def minmax(v, T):
    out = ["v_max3_f32 v%d, v%d, v%d, v%d" % (T, v[0], v[1], v[2]), "v_min3_f32 v%d, v%d, v%d, v%d" % (T+2, v[0], v[1], v[2]),
           "v_max3_f32 v%d, v%d, v%d, v%d" % (T+1, v[3], v[4], v[5]), "v_min3_f32 v%d, v%d, v%d, v%d" % (T+3, v[3], v[4], v[5])]
    for n, i in enumerate(range(6, 20, 2)):
        c = n & 1
        out += ["v_max3_f32 v%d, v%d, v%d, v%d" % (T+c, T+c, v[i], v[i+1]), "v_min3_f32 v%d, v%d, v%d, v%d" % (T+2+c, T+2+c, v[i], v[i+1])]
    out += ["v_max_f32 v%d, v%d, v%d" % (T, T, T+1), "v_min_f32 v%d, v%d, v%d" % (T+2, T+2, T+3),
            "v_mul_f32 v%d, %s, v%d" % (T, f32(-LOG2E), T), "v_mul_f32 v%d, %s, v%d" % (T+2, f32(LOG2E), T+2)]
    return out
def softmax_scalar(v, E, T):
    o = [(1, t) for t in minmax(v, T)]
    for i in range(20): o.append((1, "v_fma_f32 v%d, v%d, s%d, v%d" % (E+i, v[i], S_C2, T)))
    for i in range(20): o.append((1, "v_fma_f32 v%d, -v%d, s%d, v%d" % (v[i], v[i], S_C2, T+2)))
    for x in [E+i for i in range(20)] + v: o.append((2, "v_exp_f32 v%d, v%d" % (x, x)))
    e = [E+i for i in range(20)]
    for c, (src, d) in enumerate(((e, T), (v, T+2))):
        o += [(1, "v_add_f32 v%d, v%d, v%d" % (d, src[0], src[1])), (1, "v_add_f32 v%d, v%d, v%d" % (d+1, src[2], src[3]))]
    for i in range(4, 20, 2):
        for src, d in ((e, T), (v, T+2)):
            o += [(1, "v_add_f32 v%d, v%d, v%d" % (d, d, src[i])), (1, "v_add_f32 v%d, v%d, v%d" % (d+1, d+1, src[i+1]))]
    o += [(1, "v_add_f32 v%d, v%d, v%d" % (T, T, T+1)), (1, "v_add_f32 v%d, v%d, v%d" % (T+2, T+2, T+3)),
          (2, "v_rcp_f32 v%d, v%d" % (T, T)), (2, "v_rcp_f32 v%d, v%d" % (T+2, T+2))]
    for x in e: o.append((1, "v_mul_f32 v%d, v%d, v%d" % (x, x, T)))
    for x in v: o.append((1, "v_mul_f32 v%d, v%d, v%d" % (x, x, T+2)))
    o += [(1, t) for t in pack_inplace(v, E)]
    return o

PHB = 102400; KVB = PHB + 20480; RED = PHB
def tail(k, nu, pre, late, bolate, MF, presig=None, reducer=False):
    nsig = nu
    if cfg.X_END:
        if presig: presig()
        k("s_endpgm"); return
    if not presig: k.flush_counters()
    stamp(k, 6)
    def ch():
        k("s_lshr_b32 s82, s%d, 1" % S_M64); k("s_mul_i32 s82, s82, %d" % cfg.CS)
        poll_issue(k, S_CNT, "s82", "h_ok")
    if not presig: ch()
    k("v_and_b32 v24, 15, v0"); k("v_lshrrev_b32 v25, 4, v0")
    k("s_mul_i32 s%d, s%d, %d" % (S_T0, S_M64, 74*4096))
    srd(k, SRD_X, P_WS, A2_OFF, 74*4096, S_T0)
    k("s_add_u32 s80, s%d, 20" % S_W); k("s_lshl_b32 s80, s80, 12")
    VA = 26
    for j in range(4):
        k("s_add_u32 s75, s%d, %d" % (S_W, j)); k("s_and_b32 s75, s75, 3"); k("s_lshl_b32 s75, s75, 10")
        k("v_add_u32 v%d, s75, v%d" % (VA+j, V_L16))
    A0 = 64
    XD = 0 if reducer else (cfg.XD if nu else 4)
    def af(i): return 192 + 16*i if i < XD else 144 + ((i - XD) % 3)*16
    TO = (1, 2, 3, 0)
    def a_load(i, j):
        k.vm("buffer_load_dwordx4 %s, v%d, s[%d:%d], s80 offen%s" % (vr(af(i)+4*j,4), VA+j, SRD_X, SRD_X+3, LSC), ("A", i, j))
        if j == TO[3]: k("s_add_u32 s80, s80, %d" % (4*4096))
    def setup(q):
        T0, T1, T2 = 5, 8, 9
        srd(q, SRD_W1, P_WS, G_OFF, G_SZ)
        srd(q, SRD_P, P_WS, PQ_OFF, PQ_SZ)
        srd(q, SRD_W0, P_WS, KVF_OFF, 16*4096)
        srd(q, SRD_O, P_WS, A2_OFF, A2_SZ)
        q("v_lshlrev_b32 v6, 2, v24"); q("v_lshlrev_b32 v7, 4, v24")
        q("s_mul_i32 s72, s%d, %d" % (S_OH, 2*128*1280))
        q("s_lshl_b32 s75, s%d, 2" % S_OMT); q("s_add_u32 s75, s75, s%d" % S_W); q("s_mul_i32 s81, s75, 2560")
        q("s_add_u32 s81, s81, s72"); q("s_add_u32 s101, s81, %d" % (128*1280))
        q("s_lshl_b32 s%d, s75, 7" % S_T2)
        q("s_lshl_b32 s75, s%d, 1" % S_OMT)
        q("v_min_u32 v17, 1, v0"); q("v_mul_u32_u24 v17, %d, v17" % (2*nu-1)); q("v_add_u32 v17, s75, v17"); q("v_mul_u32_u24 v17, 171, v17"); q("v_lshrrev_b32 v17, 9, v17")
        q("s_lshr_b32 s75, s%d, 2" % S_OH); q("s_mul_i32 s75, s75, 12"); q("s_add_u32 s75, s75, %d" % C_P)
        q("v_add_u32 v17, s75, v17"); q("v_mul_u32_u24 v17, %d, v17" % cfg.CS)
        q("v_mov_b32 v30, 0x7fffffff")
        q("s_mul_i32 s72, s%d, 5" % S_OH)
        for dst, add, nvalid in ((12, 0, 3), (13, 3, 2)):
            q("v_add_u32 v%d, s72, v25" % T2)
            if add: q("v_add_u32 v%d, %d, v%d" % (T2, add, T2))
            q("v_lshrrev_b32 v%d, 2, v%d" % (T0, T2))
            q("v_lshlrev_b32 v%d, 12, v%d" % (T0, T0))
            q("v_and_b32 v%d, 3, v%d" % (T1, T2))
            q("v_lshl_add_u32 v%d, v%d, 8, v%d" % (T0, T1, T0))
            q("v_lshl_add_u32 v%d, v24, 4, v%d" % (T0, T0))
            q("v_cmp_gt_u32 vcc, %d, v25" % nvalid)
            q("v_cndmask_b32 v%d, v30, v%d, vcc" % (dst, T0))
        q("s_lshl_b32 s73, s%d, 1" % S_OMT); q("s_add_u32 s73, s73, s%d" % S_C)
        q("s_mul_i32 s73, s73, %d" % (74*4096))
        q("s_lshl_b32 s75, s%d, 11" % S_RH); q("s_add_u32 s73, s73, s75")
        q("s_lshl_b32 s74, s%d, 2" % S_OH); q("s_add_u32 s74, s74, s%d" % S_W); q("s_lshl_b32 s74, s74, 10")
        q("v_bfe_u32 v%d, v0, 2, 2" % T0); q("v_and_b32 v%d, 3, v0" % T1)
        q("v_lshl_add_u32 v%d, v%d, 3, v%d" % (T2, T0, T1))
        for hd in range(2):
            for i in range(3):
                d = 18 + hd*3 + i
                if i == 2: q("v_mov_b32 v%d, %d" % (d, KVB + 1600 + hd*1680))
                else:
                    q("v_add_u32 v16, %d, v%d" % (4*i + 4*hd, T2)); q("v_min_u32 v16, 20, v16")
                    if hd == 1 and i == 0:
                        q("v_cmp_eq_u32 vcc, 2, v%d" % T0); q("v_cndmask_b32 v16, v16, v%d, vcc" % T1)
                    q("v_mul_u32_u24 v16, 80, v16")
                    q("v_add_u32 v%d, %d, v16" % (d, KVB + hd*1680))
        q("v_cmp_eq_u32 s[78:79], 0, v25")
        q("v_cmp_eq_u32 s[76:77], 2, v25")
        q("v_mov_b32 v30, %d" % (KVB + 3584 - 64))
        q("s_lshl_b32 s75, s%d, 10" % S_W); q("s_add_u32 s75, s75, %d" % KVB); q("v_add_u32 v10, s75, v%d" % V_L16)
    def setup0(q):
        srd(q, SRD_W1, P_WS, G_OFF, G_SZ)
        q("v_lshlrev_b32 v6, 2, v24")
    su = [t for _, t in capture(setup if nu else setup0)]
    fd = Feed(k, [])
    if presig:
        for t in su: k(t)
        su = []
        presig()
        fd.q += pre[:cfg.FPRE]; pre = pre[cfg.FPRE:]
        fd.emit(max(0, len(fd.q) - 4)); ch(); fd.drain()
    stamp(k, 8)
    poll_check(k, S_CNT, 9, "h_ok")
    stamp(k, 9)
    for i in range(3 + XD):
        for j in TO: a_load(i, j)
    for t in su: k(t)
    def sent(regs, t):
        k("v_max3_u32 v%d, v%d, v%d, v%d" % (t, regs[0], regs[1], regs[2]))
        rest = regs[3:]
        while len(rest) >= 2:
            k("v_max3_u32 v%d, v%d, v%d, v%d" % (t, t, rest[0], rest[1])); rest = rest[2:]
        if rest: k("v_max_u32 v%d, v%d, v%d" % (t, t, rest[0]))
    def do_reduce():
        e = k.newlabel("Lnr")
        sv = list(k.vmq)
        srd(k, SRD_W0, P_WS, KVF_OFF, 16*4096)
        k("s_lshl_b32 s74, s%d, 2" % S_OH); k("s_add_u32 s74, s74, s%d" % S_W); k("s_lshl_b32 s74, s74, 10")
        stamp(k, 17)
        srd(k, SRD_T, P_WS, KVP_OFF, KVP_SZ)
        k("s_lshl_b32 s75, s%d, 10" % S_W)
        k("v_add_u32 v11, s75, v%d" % V_L16)
        k("v_mov_b32 v14, 0x7fffffff")
        k("v_cmp_gt_u32 vcc, 3360, v11")
        k("v_cndmask_b32 v11, v14, v11, vcc")
        k("s_mul_i32 s72, s%d, %d" % (S_OH, 16*KVPS))
        SEL = 240
        k("v_bfe_u32 v5, v0, 2, 2"); k("v_and_b32 v8, 3, v0")
        k("v_and_b32 v14, 1, v0"); k("v_lshlrev_b32 v14, 4, v14")
        k("v_mov_b32 v15, 0x3f80"); k("v_lshlrev_b32 v14, v14, v15")
        k("v_cmp_eq_u32 vcc, v5, v25"); k("v_cndmask_b32 v14, 0, v14, vcc")
        k("v_cmp_gt_u32 vcc, 2, v8"); k("v_cndmask_b32 v15, 0, v14, vcc"); k("v_cndmask_b32 v14, v14, 0, vcc")
        for r, src in ((120, "v15"), (121, "v14"), (122, "0"), (123, "0"), (124, "0"), (125, "0"), (126, "v15"), (127, "v14")):
            k("v_accvgpr_write_b32 a%d, %s" % (r, src))
        l = k.newlabel("Lkp"); d = k.newlabel("Lkd")
        k("s_mov_b32 s95, 0x4000")
        k.label(l)
        k.vmq = []
        RA = 248
        def kr(p): return 192 + 4*(p % 14)
        def kl(p):
            k("s_add_u32 s75, s72, %d" % (p*KVPS))
            k.vm("buffer_load_dwordx4 %s, v11, s[%d:%d], s75 offen%s" % (vr(kr(p),4), SRD_T, SRD_T+3, SC), ("kp", p))
        for p in range(14): kl(p)
        for p in range(16):
            k.wait(vm=("kp", p))
            for h in range(2): k("v_mfma_f32_16x16x32_bf16 %s, %s, %s, %s" % (vr(RA+4*h,4), ar(120+4*h,4), vr(kr(p),4), vr(RA+4*h,4) if p else "0"))
            r = [kr(p)+i for i in range(4)]
            sent(r if p == 0 else [9] + r, 9)
            if p < 2: kl(14+p)
        k("v_cmp_eq_u32 vcc, -1, v9")
        k("s_sub_u32 s95, s95, 1")
        k("s_cmp_eq_u64 vcc, 0")
        k("s_cbranch_scc1 %s" % d)
        k("s_cmp_lg_u32 s95, 0")
        k("s_cbranch_scc1 %s" % l)
        k.label(d)
        k("s_nop 3")
        for i in range(4): k("v_cvt_pk_bf16_f32 v%d, v%d, v%d" % (192+i, RA+2*i, RA+1+2*i))
        k("buffer_store_dwordx4 v[192:195], v%d, s[%d:%d], s74 offen%s" % (V_L16, SRD_W0, SRD_W0+3, SC))
        stamp(k, 18)
        k.label(e)
        k.vmq = sv
    fl = Feed(k, list(pre) + b_items(late) + bolate)
    bolate = []
    lds = []
    cnt = [0]
    order = [(i, j) for i in range(11) for j in TO] + [(i, j) for j in TO for i in range(11, 14)]
    def main():
        for (i, j) in order:
            pend = set(t[2][1] for t in fl.q if isinstance(t[2], tuple) and t[2][0] == "B")
            assert not (pend & set(range(i*5, i*5+5))), (i, pend)
            k.wait(vm=[("A", i, j)] + [("B", i*5+ct) for ct in range(5)])
            for ct in range(5):
                a = A0 + (j*5+ct)*4
                k("v_mfma_f32_16x16x32_bf16 %s, %s, %s, %s" % (vr(a,4), R(bloc(i*5+ct),4), vr(af(i)+4*j,4), vr(a,4) if i else "0"))
                cnt[0] += 1
                if lds: emit1(k, lds.pop(0))
                if ct == 4 and i >= XD and i + 3 < 14: a_load(i + 3, j)
                if ct in cfg.FLAT: fl.emit(1)
                yield 1
    g = main()
    def run(n):
        for _ in range(n): next(g, None)
    def upto(m): run(max(0, m - cnt[0]))
    def mix(items, per):
        for i, it in enumerate(items):
            emit1(k, it)
            if i % per == per-1: run(1)
    if reducer:
        upto(cfg.MK); do_reduce()
    if nu:
        run(5); poll_issue(k, P_DBG, D_S3, "s3"); run(25)
        poll_check(k, P_DBG, N_S3, "s3", sleep=8, barrier=False)
    if nu:
        def oa(i): return bloc(i)
        MF = max(MF, 100)
        upto(max(MF - 60, 20*XD))
        k("v_mov_b32 v%d, v17" % V_PT); _pload(k, S_CNT, "p_ok")
        upto(max(MF - 35, 80))
        poll_check(k, S_CNT, 1, "p_ok"); stamp(k, 7)
        UO = 8 if cfg.U2 else 0
        def pql(u):
            it = ["s_add_u32 s81, s81, 10240", "s_add_u32 s101, s101, 10240"] if u else []
            for hd in range(2):
                so = ("s81", "s101")[hd]
                for r2 in range(2):
                    it.append(("vm", "buffer_load_dwordx4 %s, v%d, s[%d:%d], %s offen offset:%d%s" % (R(oa(12+UO*u+hd*4+2*r2),4), V_L16, SRD_P, SRD_P+3, so, r2*1280, SC), ("pq", u)))
                    it.append(("vm", "buffer_load_dwordx4 %s, v7, s[%d:%d], %s offen offset:%d%s" % (R(oa(13+UO*u+hd*4+2*r2),4), SRD_P, SRD_P+3, so, r2*1280+1024, SC), ("pq", u)))
            return it
        gl = [("vm", "buffer_load_dword v%d, v6, s[%d:%d], s%d offen offset:%d%s" % (250+2*u+r2, SRD_W1, SRD_W1+3, S_T2, u*512 + r2*64, SC), ("pq", 0)) for u in range(nu) for r2 in range(2)]
        mix(pql(0) + gl, 1)
        ld = "buffer_load_dwordx4 v[192:195], v%d, s[%d:%d], s74 offen%s" % (V_L16, SRD_W0, SRD_W0+3, SC)
        k.vm(ld, "kf"); run(cfg.KLAT); upto(MF)
        stamp(k, 10)
        l = k.newlabel("Lkf"); d = k.newlabel("Lkg")
        k.wait(vm="kf")
        k("s_mov_b32 s95, 0x8000")
        k.label(l)
        sent([192, 193, 194, 195], 196)
        k("v_cmp_eq_u32 vcc, -1, v196")
        k("s_sub_u32 s95, s95, 1")
        k("s_cmp_eq_u64 vcc, 0")
        k("s_cbranch_scc1 %s" % d)
        k("s_sleep %d" % cfg.SLP)
        k(ld)
        k("s_waitcnt vmcnt(0)")
        k("s_cmp_lg_u32 s95, 0")
        k("s_cbranch_scc1 %s" % l)
        k.label(d)
        stamp(k, 11)
        k.lg("ds_write_b128 v10, v[192:195]", "kw")
        run(4)
        k.wait(lg="all"); k("s_barrier"); stamp(k, 28)
        it = []
        for hd in range(2):
            for i in range(3):
                it += ["v_lshl_add_u32 v15, v25, 4, v%d" % (18+hd*3+i), "v_cndmask_b32 v14, v30, v%d, s[78:79]" % (18+hd*3+i),
                       ("lg", "ds_read_b128 %s, v15" % R(oa(hd*6+2*i),4), ("o", 0, hd)), ("lg", "ds_read_b128 %s, v14 offset:64" % R(oa(hd*6+2*i+1),4), ("o", 0, hd))]
        mix(it, cfg.MIX)
        run(4)
        if cfg.U2 and nu > 1:
            upto(120); mix(pql(1), 2)
        def brd(u): return [] if cfg.U2 else pql(u)
        KO = 192
        for u in range(nu):
            for hd in range(2):
                k.wait(lg=("o", u, hd), vm=("pq", u))
                for s in range(2):
                    for r2 in range(2):
                        for i in (2, 0, 1):
                            a = KO + (hd*2+r2)*12 + i*4
                            k("v_mfma_f32_16x16x32_bf16 %s, %s, %s, %s" % (vr(a,4), R(oa(hd*6+2*i+s),4), R(oa(12+UO*u+hd*4+2*r2+s),4), vr(a,4) if s else "0"))
            it = brd(u+1) if u + 1 < nu else []
            for q in range(4): it.append("v_add_f32 v%d, %s, v%d" % (KO+q*12+8, f32(1e-6), KO+q*12+8))
            for q in range(4): it.append("v_rcp_f32 v%d, v%d" % (KO+q*12+8, KO+q*12+8))
            for q in range(4): it.append("v_mul_f32 v%d, v%d, v%d" % (KO+q*12+8, KO+q*12+8, 250+2*u+(q & 1)))
            for r2 in range(2):
                a0 = KO + r2*12; a1 = KO + (2+r2)*12
                for a in (a1, a0):
                    for i in range(8): it.append("v_mul_f32 v%d, v%d, v%d" % (a+i, a+i, a+8))
                    for i in range(4): it.append("v_cvt_pk_bf16_f32 v%d, v%d, v%d" % (a+8+i, a+2*i, a+2*i+1))
                    if a == a1: it.append(("vm", "buffer_store_dwordx4 %s, v13, s[%d:%d], s73 offen offset:%d%s" % (vr(a1+8,4), SRD_O, SRD_O+3, r2*1024, SC), "st"))
                it.append("v_cndmask_b32 v%d, v%d, v%d, s[76:77]" % (a0+10, a0+10, a1+8))
                it.append("v_cndmask_b32 v%d, v%d, v%d, s[76:77]" % (a0+11, a0+11, a1+9))
                it.append(("vm", "buffer_store_dwordx4 %s, v12, s[%d:%d], s73 offen offset:%d%s" % (vr(a0+8,4), SRD_O, SRD_O+3, r2*1024, SC), "st"))
            if u + 1 < nu: it.append("s_add_u32 s73, s73, %d" % (2*74*4096))
            mix(it, cfg.MIX * nu)
        stamp(k, 29)
        run(cfg.OSD)
        if cfg.BPR: fl.drain()
        k.wait(vm=["st", "BO"])
        d = k.newlabel("Lsg")
        k("s_add_u32 s82, s%d, %d" % (S_OMT, C_O)); k("s_mul_i32 s82, s82, %d" % cfg.CS)
        k("s_barrier")
        k("s_cmp_lg_u32 s%d, 0" % S_W)
        k("s_cbranch_scc1 %s" % d)
        k("v_mul_u32_u24 v%d, %d, v0" % (V_PT, cfg.CS)); k("v_add_u32 v%d, s82, v%d" % (V_PT, V_PT))
        k("v_mov_b32 v31, 1")
        k("s_mov_b64 exec, %d" % ((1 << nsig) - 1))
        k("global_atomic_add v%d, v31, s[%d:%d] sc1" % (V_PT, S_CNT, S_CNT+1))
        k("s_mov_b64 exec, -1")
        k.label(d)
        stamp(k, 12)
        fl.q += bolate
    q = K()
    for j in range(1, 4):
        q("s_add_u32 s75, s%d, %d" % (S_W, j)); q("s_and_b32 s75, s75, 3"); q("s_mul_i32 s75, s75, 15360")
        q("s_add_u32 s75, s75, %d" % (RED + (j-1)*5120))
        q("v_add_u32 v%d, s75, v%d" % (10+j, V_L16))
    q("s_mul_i32 s75, s%d, 15360" % S_W); q("s_add_u32 s75, s75, %d" % RED)
    q("v_add_u32 v8, s75, v%d" % V_L16)
    q("v_add_u32 v9, 51200, v%d" % V_L16)
    srd(q, SRD_O, P_OUT, 0, 2048*1280)
    q("s_lshl_b32 s81, s%d, 6" % S_M64); q("s_lshl_b32 s75, s%d, 4" % S_W); q("s_add_u32 s81, s81, s75")
    q("s_lshl_b32 s74, s81, 2")
    q("s_mul_i32 s81, s81, 1280"); q("s_mul_i32 s75, s%d, 160" % S_NT); q("s_add_u32 s81, s81, s75")
    q("v_mul_u32_u24 v16, 1280, v24"); q("v_lshl_add_u32 v16, v25, 3, v16")
    q("s_lshr_b32 s82, s%d, 1" % S_M64); q("s_add_u32 s82, s82, %d" % C_O); q("s_mul_i32 s82, s82, %d" % cfg.CS)
    q("s_mov_b32 s73, 0")
    mix([t for _, t in q.items], 2)
    def bol(n): return bloc(n % 70)
    def bo_read(n):
        off = n*1024
        return ("lg", "ds_read_b128 %s, v%d offset:%d" % (R(bol(n), 4), V_L16 if off < 51200 else 9, off % 51200), ("bo", n // 5))
    nr = 0
    if cfg.BPR:
        if not nu:
            while fl.q: run(1)
            run(cfg.BPW)
            k.wait(vm="BO"); k("s_barrier")
        while cnt[0] < min(cfg.MO, 238) - 20:
            if nr < min(cnt[0] // 20, 11) * 5 and not lds: lds.append(bo_read(nr)); nr += 1
            run(1)
    upto(min(cfg.MO, 238) - 20)
    fl.drain()
    if cfg.MO < 280 and cnt[0] <= 238:
        poll_issue(k, S_CNT, "s82", "o_ok")
        while cfg.BPR and cnt[0] < cfg.MO:
            if nr < min(cnt[0] // 20, 11) * 5 and not lds: lds.append(bo_read(nr)); nr += 1
            run(1)
        upto(cfg.MO)
    def of(ks): return 192 + 4*ks if ks < 16 else 148 + 16*(ks-16) if ks < 19 else 152
    def ao(ks): return ("s_add_u32 s73, s73, 4096" if ks else None, "buffer_load_dwordx4 %s, v%d, s[%d:%d], s73 offen%s" % (vr(of(ks),4), VA, SRD_X, SRD_X+3, LSC), ("Ao", ks))
    def red_w(j): return [("lg", "ds_write_b128 v%d, %s offset:%d" % (10+j, vr(A0+(j*5+ct)*4,4), ct*1024), "rw") for ct in range(5)]
    def oready():
        stamp(k, 13)
        poll_check(k, S_CNT, 16, "o_ok")
        stamp(k, 14)
        k.vm("buffer_load_dword v5, v6, s[%d:%d], s74 offen%s" % (SRD_W1, SRD_W1+3, SC), "g2")
        fa = Feed(k, [ao(ks) for ks in range(20)])
        fa.emit(6)
        return fa
    rr = [("lg", "ds_read_b128 %s, v8 offset:%d" % (vr(A0+20+4*j,4), j*1024), ("r", j // 5)) for j in range(15)]
    late_o = cfg.MO >= 280 or cnt[0] > 238
    if not late_o:
        fa = oready()
        fl.q = fa.q[:10]; fa.q = fa.q[10:]
        free = min(cnt[0] // 20, 11) * 5
        for c in (238, 253, 268, 280):
            n = min(free - nr, c - cnt[0] - len(lds))
            lds += [bo_read(x) for x in range(nr, nr + max(n, 0))]; nr += max(n, 0)
            upto(c)
            if c < 280: lds[:0] = red_w((238, 253, 268).index(c) + 1)
        weave(k, [], lds); del lds[:]
        fl.drain()
        fa.drain()
        k.wait(vm="g2")
        k("v_sub_f32 v10, 1.0, v5")
        for j in range(10): k("v_pk_mul_f32 %s, %s, v[10:11] op_sel_hi:[1,0]" % (vr(A0+2*j,2), vr(A0+2*j,2)))
        k.wait(lg="rw")
        k("s_barrier")
        while nr < 15:
            emit1(k, bo_read(nr)); nr += 1
    else:
        for j, c in enumerate((238, 253, 268)):
            upto(c); lds += red_w(j+1)
        upto(280)
        weave(k, [], lds); del lds[:]
        k.wait(lg="rw", vm="BO")
        k("s_barrier")
        weave(k, [], rr); del rr[:]
        poll_issue(k, S_CNT, "s82", "o_ok")
        for sl in range(3):
            k.wait(lg=("r", sl))
            weave(k, [], [bo_read(x) for x in range(nr, min(70, nr+10))]); nr = min(70, nr+10)
            for j in range(10): k("v_pk_add_f32 %s, %s, %s" % (vr(A0+2*j,2), vr(A0+2*j,2), vr(A0+20+20*sl+2*j,2)))
        weave(k, [], [bo_read(x) for x in range(nr, cfg.BPRE)]); nr = max(nr, cfg.BPRE)
        fa = oready()
        fa.emit(6)
        weave(k, [], [bo_read(x) for x in range(nr, 70)]); nr = 70
        fa.drain()
        k.wait(vm="g2")
        k("v_sub_f32 v10, 1.0, v5")
        for j in range(10): k("v_pk_mul_f32 %s, %s, v[10:11] op_sel_hi:[1,0]" % (vr(A0+2*j,2), vr(A0+2*j,2)))
    for ks in range(20):
        k.wait(vm=("Ao", ks), lg=("bo", ks))
        mf = ["v_mfma_f32_16x16x32_bf16 %s, %s, %s, %s" % (vr(A0+ct*4,4), R(bol(ks*5+ct), 4), vr(of(ks),4), vr(A0+ct*4,4)) for ct in range(5)]
        fill = [bo_read(n) for n in range(nr, min(100, nr+5, ks*5+70))]; nr += len(fill)
        while len(fill) < 5 and rr: fill.append(rr.pop(0))
        weave(k, mf, fill, per=1)
    if not late_o:
        weave(k, [], rr)
        k.wait(lg="all")
        for j in range(10): k("v_pk_add_f32 %s, %s, %s" % (vr(A0+20+2*j,2), vr(A0+20+2*j,2), vr(A0+40+2*j,2)))
        for j in range(10): k("v_pk_add_f32 %s, %s, %s" % (vr(A0+20+2*j,2), vr(A0+20+2*j,2), vr(A0+60+2*j,2)))
    for ct in range(5):
        a = A0 + ct*4
        for h in range(2 if not late_o else 0): k("v_pk_fma_f32 %s, %s, v[10:11], %s op_sel_hi:[1,0,1]" % (vr(a+2*h,2), vr(a+20+2*h,2), vr(a+2*h,2)))
        k("v_cvt_pk_bf16_f32 v%d, v%d, v%d" % (A0+40+2*ct, a, a+1)); k("v_cvt_pk_bf16_f32 v%d, v%d, v%d" % (A0+41+2*ct, a+2, a+3))
        k.vm("buffer_store_dwordx2 %s, v16, s[%d:%d], s81 offen offset:%d%s" % (vr(A0+40+2*ct,2), SRD_O, SRD_O+3, ct*32, cfg.OUTF), "st")
    stamp(k, 30)
    stamp_out(k)
    k("s_endpgm")

def kernel(k):
    kernel_header(k, NAME)
    astamp(k, 0)
    k("s_load_dwordx16 s[8:23], s[0:1], 0")
    k("s_load_dwordx8 s[24:31], s[0:1], 64")
    k("s_cmp_ge_u32 s2, 256")
    k("s_cbranch_scc1 L_end")
    if cfg.CPF: code_prefetch(k, V_JUNK)
    k("v_lshrrev_b32 v2, 6, v0")
    k("v_and_b32 v0, 63, v0")
    k("v_readfirstlane_b32 s%d, v2" % S_W)
    if cfg.STAMP: k("v_mov_b32 v1, 0")
    stamp(k, 0)
    if cfg.EARLY0: k("v_writelane_b32 v1, s98, 0")
    if cfg.MAP == 2:
        k("s_bfe_u32 s%d, s2, 0x40003" % S_MT)
        k("s_and_b32 s%d, s2, 7" % S_T0)
        k("s_lshl_b32 s%d, s%d, 3" % (S_T0, S_T0))
        k("s_bfe_u32 s%d, s2, 0x10007" % S_T1)
        k("s_lshl_b32 s%d, s%d, 2" % (S_T1, S_T1))
        k("s_add_u32 s%d, s%d, s%d" % (S_T0, S_T0, S_T1))
        tab = cfg.ORDER
        k("s_mov_b32 s74, 0x%x" % sum(tab[i] << (4*i) for i in range(8))); k("s_mov_b32 s75, 0x%x" % sum(tab[8+i] << (4*i) for i in range(8)))
        k("s_lshr_b64 s[74:75], s[74:75], s%d" % S_T0)
        k("s_and_b32 s%d, s74, 15" % S_TY)
    else:
        k("s_and_b32 s%d, s2, 7" % S_T0)
        k("s_lshr_b32 s%d, s2, 3" % S_T1)
        k("s_lshl_b32 s74, s%d, 3" % S_T0); k("s_add_u32 s74, s74, s%d" % S_T1); k("s_add_u32 s74, s74, %d" % (9*16 - 18))
        k("s_lshl_b32 s75, s%d, 1" % S_T0); k("s_add_u32 s75, s75, s%d" % S_T1)
        k("s_add_u32 s76, s75, %d" % (8*16 - 16))
        k("s_cmp_lt_u32 s%d, 18" % S_T1); k("s_cselect_b32 s74, s76, s74")
        k("s_lshl_b32 s76, s%d, 4" % S_T0); k("s_add_u32 s76, s76, s%d" % S_T1)
        k("s_cmp_lt_u32 s%d, 16" % S_T1); k("s_cselect_b32 s74, s76, s74")
        k("s_and_b32 s%d, s74, 15" % S_MT)
        k("s_lshr_b32 s%d, s74, 4" % S_TY)
    k("s_and_b32 s%d, s%d, 1" % (S_RH, S_W))
    k("s_lshr_b32 s%d, s%d, 1" % (S_C, S_W))
    k("v_lshlrev_b32 v%d, 4, v0" % V_L16)
    k("s_cmp_ge_u32 s%d, 26" % S_T1); k("s_cbranch_scc1 L_qa")
    k("s_mov_b32 s75, 1280")
    k("s_mov_b32 s76, 1280")
    k("s_sub_u32 s79, s%d, 9" % S_TY)
    k("s_mul_i32 s%d, s79, 320" % S_T1)
    k("s_and_b32 s%d, s%d, 127" % (S_DELTA, S_T1))
    k("s_sub_u32 s%d, s%d, s%d" % (S_T1, S_T1, S_DELTA))
    k("s_add_u32 s75, s75, s%d" % S_T1)
    k("s_add_u32 s76, s76, s75")
    k("s_mul_i32 s%d, s%d, 384" % (S_T1, S_TY))
    k("s_mov_b32 s%d, 3840" % S_STRIDE)
    k("s_cmp_lt_u32 s%d, 9" % S_TY)
    k("s_cselect_b32 s75, s%d, s75" % S_T1)
    k("s_cselect_b32 s76, s%d, s76" % S_T1)
    k("s_cselect_b32 s%d, 3456, s%d" % (S_STRIDE, S_STRIDE))
    k("s_mul_i32 s%d, s%d, 640" % (S_T1, S_STRIDE))
    k("s_sub_u32 s77, s%d, s75" % S_T1)
    k("s_sub_u32 s78, s%d, s76" % S_T1)
    gemm_setup(k)
    k("s_mul_i32 s%d, s%d, %d" % (S_T0, S_MT, 128*1280))
    astamp(k, 1)
    k("s_waitcnt lgkmcnt(0)")
    astamp(k, 2)
    k("s_cmp_lt_u32 s%d, 9" % S_TY)
    k("s_cselect_b64 s[16:17], s[%d:%d], s[%d:%d]" % (P_WG, P_WG+1, P_WQKV, P_WQKV+1))
    k("s_cselect_b64 s[%d:%d], s[%d:%d], s[%d:%d]" % (P_WU, P_WU+1, P_WU, P_WU+1, P_WQKV, P_WQKV+1))
    srd(k, SRD_X, P_X, 0, 128*1280, S_T0)
    stamp(k, 1)
    Q = dma_queue()
    issue_now(k, Q, 4)
    srd(k, SRD_W0, 16, 0, "s77", 75)
    srd(k, SRD_W1, P_WU, 0, "s78", 76)
    issue_now(k, Q, 6)
    astamp(k, 3)
    touch_setup(k)
    for it in touch_items(-1):
        if it[0]: k(it[0])
        k.vm(it[1], it[2])
    sv0 = list(k.vmq)
    aflush(k)
    k("s_cmp_ge_u32 s%d, 9" % S_TY); k("s_cbranch_scc1 L_att")
    ps, rest = ffn_role(k, Q)
    sv = (list(k.vmq), list(k.lgq))
    k("s_cmp_ge_u32 s%d, 8" % S_TY); k("s_cbranch_scc1 L_f1")
    tail(k, 1 if cfg.UNI else 2, list(rest), [], [], cfg.MF, presig=ps)
    k.label("L_f1")
    k.vmq, k.lgq = sv
    tail(k, cfg.UNI, list(rest), [], [], 100, presig=ps, reducer=True)
    k.label("L_att")
    k("s_lshl_b32 s79, s79, 1")
    k("s_add_u32 s79, s79, s%d" % S_C)
    k("s_mul_i32 s80, s79, 3200")
    srd(k, SRD_P, P_WPHI, 0, 3200, 80)
    k.flush_counters(); k.vmq = list(sv0)
    att_loop(k, Q)
    kv_role(k)
    tail(k, cfg.UNI, [], list(range(cfg.KVN, 70)), bo_items(), cfg.MFK)
    k.flush_counters()
    k.label("L_qa")
    k.vmq = ["pf"]
    qa_role(k)
    tail(k, cfg.UNI, [], list(range(18, 27)) + list(range(62, 70)), bo_items()[cfg.BOQ:], cfg.MFK)
    k.label("L_end")
    k("s_endpgm")

DOC = """; One fused launch, 256 workgroups (one per CU, 4 waves, 512 registers), generated by a script of my own.
;   the same launch); sc1 loads on the reading side; every spin is bounded."""
def build(fn, listform=True):
    k = K()
    k.raw(open("header.txt").read().rstrip())
    if listform: k.raw("; @launch kernel=%s grid=(256,1,1) block=(256,1,1) lds=163840" % NAME)
    else: k.raw("; @launch grid=(256,1,1) block=(256,1,1) lds=163840")
    k.raw(DOC)
    k.raw('.amdgcn_target "amdgcn-amd-amdhsa--gfx950"')
    k.raw(".text")
    kernel(k)
    k.raw('.section .rodata,"a"')
    k.raw(kernel_desc(NAME, 512, 256))
    open(fn, "w").write(k.text())

if __name__ == "__main__":
    for a in sys.argv[2:]:
        if "=" in a:
            n, v = a.split("="); setattr(cfg, n, eval(v))
    if cfg.NOSC: LSC = ""
    if cfg.OUTF == 1: cfg.OUTF = " sc1"
    build(sys.argv[1], listform="single" not in sys.argv)
```

```python
import sys
from fw import *

A2_OFF = 0;          A2_SZ = 32*74*4096
B2_OFF = 0xA00000;   B2_SZ = 8*74*5120
PQ_OFF = 0x1800000;  PQ_SZ = 32*128*1280
KVP_OFF = 0x1000000; KVPS = 3584; KVP_SZ = 16*16*KVPS
G_OFF = 0x1200000;   G_SZ = 8192
CNT_OFF = 0x1300000
ST_OFF = 0x1400000
LOG2E = 1.4426950408889634
NAME = "gated_mix__linear_kernel_hedgehog__swiglu_ffn__prompt_kernel"

class Cfg:
    STAMP = 0; STG = 0
    MAXD = 11; N2 = 6; N3 = 10
    P2M = 4
    TW = [(-1,1,7),(1,8,6),(4,14,6)]
    TX = [(-1,1,3),(1,4,3),(4,7,3)]
    ORDER = [0, 9, 1, 10, 2, 11, 3, 12, 4, 13, 5, 14, 6, 7, 8, 15]
    PS1 = 10
    NBF = 40
    NBA = 32
    AUXT = 10
    AUXD = 3
    FFE = (2, 7)
    MK = 0
    KLAT = 15
    PER = 2
    BOF = 10
    KVB0 = 1
    TPER = 2
    BLP = 5
    WIDE = 0
    PREW = 0
    PREN = 5
    QX = 0
    UNI = 0
    U2 = 1
    BTL = []
    MF1 = 120
    FPRE = 20
    MFK = 100
    X_LIGHT = 0
    AUXB = 70
    RBH = 0
    MF2 = 80
    MFQ = 120
    BPR = 1
    BPW = 40
    LORD = 0
    RSP = 0
    HP = (1, 5)
    QEARLY = 1
    AUXU = 0
    BT = 0
    BT2 = 0
    AUXNT = 1
    L2PF = 0
    PE1 = 20
    BOL = 3
    BOS = 0
    PSA = 16
    KVN = 62
    BPRE = 50
    RFIRST = 0
    MF = 120
    MAXD0 = 16
    BLK = 2
    PHS = 3
    AST = 0
    X_NOWAIT = 0
    X_NOO = 0
    X_NOB = 0
    X_END = 0
    X_NOA = 0
    MO = 238
    NOSC = 0
    NOMF = 0
    CS = 4096+256
    ONE = 1
    SLP = 2
    KI = 1
    MIX = 6
    FLAT = (1, 3)
    XD = 0
    BOQ = 5
    QPRE = 6
    FQ = (7, 10)
    OFIRST = 1
    OUTF = ''
    BOEARLY = 0
    QLAT = 40
    MAP = 3
    AORD = [9, 13, 10, 11, 14, 12]
    DBGWG = -1
    PADST = None
    PADMIN = 0
    CPF = 1
    TNT = 0
    NODMA = 0
    CYC = 0
    PADTY = None
    EARLY0 = 0
    KL2 = 40
    OSD = 20
cfg = Cfg()
SC = " sc1"
LSC = " sc1"

P_X, P_WQKV, P_WPHI, P_WO, P_WG, P_WU, P_WD, P_GW, P_OUT, P_DBG, P_WS = 8, 10, 12, 14, 18, 20, 22, 24, 26, 28, 30
S_W, S_RH, S_C, S_MT, S_TY, S_M64, S_NT, S_OH = 32, 33, 34, 35, 36, 37, 38, 39
SRD_X, SRD_W0, SRD_W1, SRD_O, SRD_P = 40, 44, 48, 52, 56
S_STRIDE, S_WOFF, S_WL, S_XL, S_T0, S_T1, S_T2, S_T3, S_DELTA, S_SIG = 60, 61, 62, 63, 64, 65, 66, 67, 68, 69
S_C2 = 70
S_OMT = 83; SRD_B = 84; S_BOFF = 88; S_BB = 89; S_CNT = 90; SRD_T = 96
V_L16, V_L16B, V_PT = 2, 3, 4
V_WD = 5; V_XD = 6; V_XR = 10; V_TA = 12; V_TW = 24; V_TX = 25; V_JUNK = 63; V_Z = 0
ACC0 = 64
WF0 = 256; XF0 = 256 + 96; GF0 = 256 + 88; GACC = 224
C_H, C_O, C_P = 0, 16, 32
N_S1 = 48; N_S3 = 4
KVF_OFF = KVP_OFF + KVP_SZ
SPARE = 147456
D_S1, D_S2, D_S3 = 0, 64, 128

def srd(k, d, b, off, nbytes, soff=None):
    if off or soff is not None:
        if soff is not None:
            k("s_add_u32 s%d, s%d, s%d" % (d, b, soff)); k("s_addc_u32 s%d, s%d, 0" % (d+1, b+1))
            if off:
                k("s_add_u32 s%d, s%d, 0x%x" % (d, d, off)); k("s_addc_u32 s%d, s%d, 0" % (d+1, d+1))
        else:
            k("s_add_u32 s%d, s%d, 0x%x" % (d, b, off)); k("s_addc_u32 s%d, s%d, 0" % (d+1, b+1))
        k("s_and_b32 s%d, s%d, 0xffff" % (d+1, d+1))
    else:
        k("s_mov_b32 s%d, s%d" % (d, b)); k("s_and_b32 s%d, s%d, 0xffff" % (d+1, b+1))
    if isinstance(nbytes, int): k("s_mov_b32 s%d, 0x%x" % (d+2, nbytes))
    else: k("s_mov_b32 s%d, %s" % (d+2, nbytes))
    k("s_mov_b32 s%d, 0x20000" % (d+3))

def stamp(k, i):
    if not cfg.STAMP or (cfg.AST and i != 15): return
    k("s_memtime s[92:93]" if cfg.STAMP == 2 else "s_memrealtime s[92:93]")
    k("s_waitcnt lgkmcnt(0)")
    k.lgq = []
    k("v_writelane_b32 v1, s92, %d" % i)
_ap = []
def astamp(k, idx):
    if not cfg.AST: return
    pair = (4, 6, 92, 94, 52, 54, 56, 58)[len(_ap)]
    k("s_memrealtime s[%d:%d]" % (pair, pair+1)); _ap.append((pair, idx))
def aflush(k):
    if not cfg.AST: return
    k("s_waitcnt lgkmcnt(0)"); k.lgq = []
    for p, i in _ap: k("v_writelane_b32 v1, s%d, %d" % (p, i))
    del _ap[:]
def stamp_out(k):
    if not cfg.STAMP: return
    k("s_waitcnt vmcnt(0)")
    stamp(k, 15)
    k("v_writelane_b32 v1, s%d, 16" % S_TY)
    srd(k, 40, P_WS, ST_OFF, 1024*128)
    k("s_lshl_b32 s92, s2, 2"); k("s_add_u32 s92, s92, s%d" % S_W); k("s_lshl_b32 s92, s92, 7")
    k("v_lshlrev_b32 v5, 2, v0")
    k("v_cmp_gt_u32 vcc, 32, v0")
    k("v_mov_b32 v6, 0x7fffffff")
    k("v_cndmask_b32 v5, v6, v5, vcc")
    k("buffer_store_dword v1, v5, s[40:43], s92 offen")
    if cfg.PADST is not None:
        k("v_readlane_b32 s94, v1, %d" % abs(cfg.PADST))
        k("v_readlane_b32 s95, v1, 0")
        k("s_max_u32 s94, s94, s95")
        if cfg.CYC:
            a, b = ((31, 25) if cfg.CYC == 1 else (24, 23))
            k("v_readlane_b32 s96, v1, %d" % a); k("v_readlane_b32 s97, v1, %d" % b)
            k("s_sub_u32 s96, s96, s97")
            if cfg.CYC == 1: k("s_lshr_b32 s96, s96, 2")
            else: k("s_lshl_b32 s96, s96, 2")
            k("s_add_u32 s94, s95, s96")
        if cfg.PADTY:
            k("s_cmp_lt_u32 s%d, %d" % (S_TY, cfg.PADTY[0])); k("s_cselect_b32 s94, s95, s94")
            k("s_cmp_gt_u32 s%d, %d" % (S_TY, cfg.PADTY[1])); k("s_cselect_b32 s94, s95, s94")
        if cfg.PADMIN:
            k("s_not_b32 s95, s94")
            k("v_mov_b32 v7, s95"); k("v_mov_b32 v8, 192")
            k("s_cmp_eq_u32 s%d, 0" % S_W)
            k("s_cselect_b64 exec, 1, 0")
            k("s_cbranch_execz Lnoat")
            k("global_atomic_umax v8, v7, s[%d:%d] sc1" % (P_DBG, P_DBG+1))
            k.label("Lnoat")
            k("s_mov_b64 exec, -1")
            k("s_add_u32 s94, s94, 4500")
            k.label("Lpad0")
            k("s_sleep 4")
            k("s_memrealtime s[96:97]")
            k("s_waitcnt lgkmcnt(0)")
            k("s_sub_u32 s98, s96, s94")
            k("s_cmp_lt_i32 s98, 0")
            k("s_cbranch_scc1 Lpad0")
            k("global_load_dword v7, v8, s[%d:%d] sc1" % (P_DBG, P_DBG+1))
            k("s_waitcnt vmcnt(0)")
            k("v_readfirstlane_b32 s94, v7")
            k("s_not_b32 s94, s94")
        k("s_add_u32 s94, s94, 6000")
        lp = k.newlabel("Lpad"); k.label(lp)
        k("s_sleep 4")
        k("s_memrealtime s[96:97]")
        k("s_waitcnt lgkmcnt(0)")
        k("s_sub_u32 s98, s96, s94")
        k("s_cmp_lt_i32 s98, 0")
        k("s_cbranch_scc1 %s" % lp)
    if cfg.DBGWG >= 0:
        k("s_cmp_eq_u32 s92, %d" % (cfg.DBGWG*512))
        k("s_cselect_b32 s93, 64, 0")
        srd(k, 44, P_DBG, 0, "s93")
        k("v_readlane_b32 s93, v1, 0")
        k("v_subrev_u32 v7, s93, v1")
        k("v_cmp_lt_u32 vcc, 0, v0")
        k("v_cndmask_b32 v5, v6, v5, vcc")
        k("buffer_store_dword v7, v5, s[44:47], 0 offen")

def code_prefetch(k, vt):
    k("s_getpc_b64 s[72:73]")
    l = k.newlabel("Lpc"); k.label(l)
    k("s_lshr_b32 s74, s2, 3")
    k("s_lshl_b32 s74, s74, 7")
    k("v_and_b32 v%d, 31, v0" % vt)
    k("v_lshlrev_b32 v%d, 12, v%d" % (vt, vt))
    k("v_add_u32 v%d, s74, v%d" % (vt, vt))
    k("v_min_u32 v%d, L_end-%s-4, v%d" % (vt, l, vt))
    k.vm("global_load_dword v%d, v%d, s[72:73]" % (vt, vt), "pf")

def _pload(k, base, tag):
    if cfg.ONE:
        a = k.newlabel("Lp0"); b = k.newlabel("Lp1")
        k("s_cmp_lg_u32 s%d, 0" % S_W); k("s_cbranch_scc1 %s" % a)
        k("global_load_dword v31, v%d, s[%d:%d] sc1" % (V_PT, base, base+1))
        k("s_branch %s" % b)
        k.label(a)
        k("v_mov_b32 v%d, 0" % V_PT)
        k("global_load_dword v31, v%d, s[%d:%d]" % (V_PT, P_X, P_X+1))
        k.label(b)
        k.vmq.append(tag)
    else: k.vm("global_load_dword v31, v%d, s[%d:%d] sc1" % (V_PT, base, base+1), tag)
def poll_issue(k, base, off, tag):
    k("v_mov_b32 v%d, %s" % (V_PT, off))
    _pload(k, base, tag)
def vpoll_issue(k, off, n, tag):
    k("v_min_u32 v%d, %d, v0" % (V_PT, n-1)); k("v_mul_u32_u24 v%d, %d, v%d" % (V_PT, cfg.CS, V_PT)); k("v_add_u32 v%d, %s, v%d" % (V_PT, off, V_PT))
    _pload(k, S_CNT, tag)
def poll_check(k, base, target, tag, sleep=None, barrier=True):
    l = k.newlabel("Lpoll"); d = k.newlabel("Lpd")
    if base == S_CNT and (cfg.X_NOWAIT == 1 or (cfg.X_NOWAIT and tag in cfg.X_NOWAIT)): target = 0
    k.wait(vm=tag)
    if cfg.ONE:
        k("s_cmp_lg_u32 s%d, 0" % S_W); k("s_cbranch_scc1 %s" % d)
    k("v_cmp_gt_u32 vcc, %d, v31" % target)
    k("s_mov_b32 s95, 0x8000")
    k("s_cmp_eq_u64 vcc, 0")
    k("s_cbranch_scc1 %s" % d)
    k.label(l)
    k("s_sleep %d" % (sleep or cfg.SLP))
    k("global_load_dword v31, v%d, s[%d:%d] sc1" % (V_PT, base, base+1))
    k("s_waitcnt vmcnt(0)")
    k("v_cmp_gt_u32 vcc, %d, v31" % target)
    k("s_sub_u32 s95, s95, 1")
    k("s_cmp_eq_u64 vcc, 0")
    k("s_cbranch_scc1 %s" % d)
    k("s_cmp_lg_u32 s95, 0")
    k("s_cbranch_scc1 %s" % l)
    k.label(d)
    if cfg.ONE and barrier: k("s_barrier")
def vpoll_check(k, target, tag): poll_check(k, S_CNT, target, tag)
def signal(k, base, off, ra=V_PT, rd=31):
    d = k.newlabel("Lsg")
    k("s_barrier")
    k("s_cmp_lg_u32 s%d, 0" % S_W)
    k("s_cbranch_scc1 %s" % d)
    k("v_mov_b32 v%d, %s" % (ra, off))
    k("v_mov_b32 v%d, 1" % rd)
    k("s_mov_b64 exec, 1")
    k("global_atomic_add v%d, v%d, s[%d:%d] sc1" % (ra, rd, base, base+1))
    k("s_mov_b64 exec, -1")
    k.label(d)

BL = [256+128+4*i for i in range(32)] + [256+48+4*i for i in range(12)] + [256+108+4*i for i in range(3)] \
   + [256+4*i for i in range(12)] + [256+96+4*i for i in range(3)] + [32+4*i for i in range(8)]
def bloc(n): return BL[n]
def b_items(frs):
    out = []; cur = None
    for n in frs:
        st, ct = divmod(n, 5)
        pre = None
        if st != cur: pre = "s_add_u32 s%d, s%d, %d" % (S_BOFF, S_BB, (20 + 4*st)*5120); cur = st
        if ct < 4: t = "buffer_load_dwordx4 %s, v%d, s[%d:%d], s%d offen offset:%d%s" % (R(bloc(n),4), V_L16, SRD_B, SRD_B+3, S_BOFF, ct*1024, LSC)
        else: t = "buffer_load_dwordx4 %s, v%d, s[%d:%d], s%d offen%s" % (R(bloc(n),4), V_L16B, SRD_B, SRD_B+3, S_BOFF, LSC)
        out.append((pre, t, ("B", n)))
    return out
def bo_items():
    out = []
    for i in range(5):
        for ct in range(5):
            pre = "s_add_u32 m0, s%d, %d" % (S_BB, i*20480 + (4096 if ct == 4 else 0))
            if ct == 0: pre = "s_add_u32 s100, s%d, %d\n" % (S_BB, i*20480) + pre
            if ct < 4: t = "buffer_load_dwordx4 v%d, s[%d:%d], s100 offen offset:%d%s lds" % (V_L16, SRD_B, SRD_B+3, ct*1024, LSC)
            else: t = "buffer_load_dwordx4 v%d, s[%d:%d], s100 offen%s lds" % (V_L16B, SRD_B, SRD_B+3, LSC)
            out.append((pre, t, "BO"))
    return out
class Feed:
    def __init__(self, k, items): self.k = k; self.q = list(items)
    def emit(self, n=1):
        while self.q and n > 0:
            pre, t, tag = self.q.pop(0)
            if pre: self.k(pre)
            self.k.vm(t, tag); n -= 1
    def drain(self): self.emit(10**6)
def emit1(k, f):
    if callable(f): f()
    elif isinstance(f, tuple): (k.lg if f[0] == "lg" else k.vm)(f[1], f[2])
    else: k(f)
def weave(k, mf, fill, per=2):
    fill = list(fill)
    for m in mf:
        k(m)
        for _ in range(per):
            if fill: emit1(k, fill.pop(0))
    for f in fill: emit1(k, f)

WSLOT = 24576; RW = 4; XBASE = RW*WSLOT; XSLOT = 16384; RX = 3

def gemm_setup(k):
    k("v_lshrrev_b32 v28, 3, v0")
    k("v_and_b32 v29, 7, v0")
    k("v_bfe_u32 v26, v28, 1, 1")
    k("s_lshl_b32 s%d, s%d, 1" % (S_T0, S_RH))
    k("v_or_b32 v26, s%d, v26" % S_T0)
    k("v_lshlrev_b32 v26, 1, v26")
    k("v_xor_b32 v26, v26, v29")
    k("s_lshl_b32 s%d, s%d, 3" % (S_T0, S_W))
    k("v_add_u32 v27, s%d, v28" % S_T0)
    k("v_mul_lo_u32 v27, v27, s%d" % S_STRIDE)
    k("v_lshl_add_u32 v%d, v26, 4, v27" % V_WD)
    k("s_lshl_b32 s%d, s%d, 5" % (S_T0, S_W))
    k("v_lshrrev_b32 v26, 1, v28")
    k("v_xor_b32 v27, v26, v29")
    k("v_add_u32 v26, s%d, v28" % S_T0)
    k("v_mul_u32_u24 v26, 1280, v26")
    k("v_lshl_add_u32 v%d, v27, 4, v26" % V_XD)
    k("v_xor_b32 v%d, 64, v%d" % (V_XD+1, V_XD))
    k("v_add_u32 v%d, %d, v%d" % (V_XD+1, 8*1280, V_XD+1))
    k("v_add_u32 v%d, %d, v%d" % (V_XD+2, 16*1280, V_XD))
    k("v_add_u32 v%d, %d, v%d" % (V_XD+3, 16*1280, V_XD+1))
    k("s_mul_i32 s%d, s%d, 6144" % (S_WL, S_W))
    k("s_lshl_b32 s%d, s%d, 12" % (S_XL, S_W))
    k("s_add_u32 s%d, s%d, %d" % (S_XL, S_XL, XBASE))
    k("s_mov_b32 s%d, 0" % S_WOFF)
    k("s_lshl_b32 s%d, s%d, 5" % (S_T3, S_STRIDE))

def touch_setup(k):
    k("v_lshrrev_b32 v26, 2, v0")
    k("v_and_b32 v27, 3, v0")
    k("s_lshl_b32 s%d, s%d, 1" % (S_T0, S_MT))
    k("s_add_u32 s%d, s%d, s%d" % (S_T0, S_T0, S_C))
    k("v_lshlrev_b32 v28, 5, v26")
    k("v_add_u32 v28, s%d, v28" % S_T0)
    k("v_mul_lo_u32 v28, v28, s%d" % S_STRIDE)
    k("v_min_u32 v29, 2, v27")
    k("v_lshl_add_u32 v%d, v29, 7, v28" % V_TW)
    k("s_lshl_b32 s%d, s%d, 4" % (S_T0, S_TY))
    k("s_lshl_b32 s%d, s%d, 2" % (S_T1, S_W))
    k("s_add_u32 s%d, s%d, s%d" % (S_T0, S_T0, S_T1))
    k("v_add_u32 v27, s%d, v27" % S_T0)
    k("v_mul_u32_u24 v27, 1280, v27")
    k("v_lshl_add_u32 v%d, v26, 7, v27" % V_TX)
    k("s_cmp_eq_u32 s%d, 0" % S_RH)
    for i in range(3): k("s_cselect_b32 s%d, s%d, s%d" % (SRD_T+i, SRD_W0+i, SRD_W1+i))
    k("s_mov_b32 s%d, 0x20000" % (SRD_T+3))
def masked(n, t):
    if n >= 16: return t
    return "s_bfm_b64 exec, %d, 0\n%s\ns_mov_b64 exec, -1" % (4*n, t)
def touch_items(stage):
    out = []
    for (st, first, n) in cfg.TW:
        if st == stage:
            out.append(("s_mul_i32 s101, s%d, %d" % (S_STRIDE, 32*first), masked(n, "buffer_load_dword v%d, v%d, s[%d:%d], s101 offen%s" % (V_JUNK, V_TW, SRD_T, SRD_T+3, " nt" if cfg.TNT else "")), "pf"))
    for (st, first, n) in cfg.TX:
        if st == stage:
            out.append((None, masked(n, "buffer_load_dword v%d, v%d, s[%d:%d], 0 offen offset:%d" % (V_JUNK, V_TX, SRD_X, SRD_X+3, first*128)), "pf"))
    return out

def gemm_setup2(k, att):
    npt = 5 if att else 6
    k("v_and_b32 v54, 15, v0")
    k("v_lshrrev_b32 v55, 4, v0")
    k("v_bfe_u32 v26, v54, 1, 3")
    k("v_xor_b32 v26, v26, v55")
    k("s_lshl_b32 s%d, s%d, 13" % (S_T0, S_RH))
    k("s_add_u32 s%d, s%d, %d" % (S_T0, S_T0, XBASE))
    k("v_lshlrev_b32 v27, 7, v54")
    k("v_add_u32 v27, s%d, v27" % S_T0)
    k("v_lshl_add_u32 v%d, v26, 4, v27" % V_XR)
    k("v_xor_b32 v%d, 64, v%d" % (V_XR+1, V_XR))
    k("v_bfe_u32 v26, v0, 2, 2")
    k("v_and_b32 v27, 3, v0")
    k("v_lshrrev_b32 v28, 1, v26")
    k("v_and_b32 v29, 1, v55")
    k("v_lshl_or_b32 v28, v29, 1, v28")
    k("v_lshlrev_b32 v28, 5, v28")
    k("v_mul_u32_u24 v29, 6144, v55")
    k("v_lshl_add_u32 v29, v26, 7, v29")
    if att:
        k("s_mul_i32 s%d, s%d, 160" % (S_T0, S_C))
        k("s_add_u32 s%d, s%d, s%d" % (S_T0, S_T0, S_DELTA))
        k("v_mul_u32_u24 v27, 40, v27")
    else:
        k("s_mul_i32 s%d, s%d, 192" % (S_T0, S_C))
        k("v_lshlrev_b32 v27, 3, v27")
    k("v_add_u32 v27, s%d, v27" % S_T0)
    for p in range(npt):
        k("v_add_u32 v30, %d, v27" % (p * (8 if att else 32)))
        k("v_lshrrev_b32 v31, 7, v30")
        k("v_and_b32 v30, 127, v30")
        k("v_xor_b32 v30, v30, v28")
        k("v_lshl_add_u32 v31, v31, 10, v29")
        k("v_add_u32 v%d, v30, v31" % (V_TA+p))
        k("v_add_u32 v%d, %d, v%d" % (V_TA+6+p, 2*WSLOT, V_TA+p))

def w_dma(s):
    return [("s_add_u32 m0, s%d, %d" % (S_WL, (s % RW)*WSLOT + (seg*3+lc)*1024 - lc*128),
             "buffer_load_dwordx4 v%d, s[%d:%d], s%d offen offset:%d lds" % (V_WD, SRD_W0+4*seg, SRD_W0+4*seg+3, S_WOFF, lc*128), ("W", s))
            for seg in range(2) for lc in range(3)]
def x_dma(u, i):
    return ("s_add_u32 m0, s%d, %d" % (S_XL, (u % RX)*XSLOT + i*1024 - u*128),
            "buffer_load_dwordx4 v%d, s[%d:%d], 0 offen offset:%d lds" % (V_XD+i, SRD_X, SRD_X+3, u*128), ("X", u))
def reads_for(s, npt):
    out = []; b = s & 1
    for rt in range(4):
        out.append("ds_read_b128 %s, v%d offset:%d" % (R(XF0 + (b*4+rt)*4, 4), V_XR + (s & 1), ((s >> 1) % RX)*XSLOT + rt*2048))
    slot = s % RW
    for p in range(npt):
        for seg in range(2):
            for h in range(2):
                out.append("ds_read_b64_tr_b16 %s, v%d offset:%d" % (R(WF0 + (b*12+p*2+seg)*4 + 2*h, 2), V_TA + p + (6 if slot >= 2 else 0), (slot & 1)*WSLOT + seg*3072 + h*512))
    return out
def acc(p, seg, rt): return ACC0 + ((p*2+seg)*4 + rt)*4

def late_setup_items():
    k = K()
    k("s_and_b32 s%d, s2, 7" % S_T1)
    k("s_lshr_b32 s%d, s2, 3" % S_OH)
    if cfg.P2M == 4:
        k("s_lshl_b32 s%d, s%d, 2" % (S_M64, S_T1)); k("s_and_b32 s%d, s%d, 3" % (S_T0, S_OH)); k("s_add_u32 s%d, s%d, s%d" % (S_M64, S_M64, S_T0))
        k("s_lshr_b32 s%d, s%d, 2" % (S_NT, S_OH))
    else:
        k("s_lshr_b32 s%d, s%d, 1" % (S_M64, S_T1)); k("s_lshl_b32 s%d, s%d, 3" % (S_M64, S_M64)); k("s_and_b32 s%d, s%d, 7" % (S_T0, S_OH)); k("s_add_u32 s%d, s%d, s%d" % (S_M64, S_M64, S_T0))
        k("s_and_b32 s%d, s%d, 1" % (S_NT, S_T1)); k("s_lshl_b32 s%d, s%d, 2" % (S_NT, S_NT)); k("s_lshr_b32 s%d, s%d, 3" % (S_T0, S_OH)); k("s_add_u32 s%d, s%d, s%d" % (S_NT, S_NT, S_T0))
    k("s_lshr_b32 s%d, s%d, 1" % (S_OMT, S_OH))
    if not cfg.UNI: k("s_lshl_b32 s%d, s%d, 1" % (S_OMT, S_OMT))
    k("s_and_b32 s%d, s%d, 1" % (S_OH, S_OH)); k("s_lshl_b32 s%d, s%d, 1" % (S_T0, S_T1)); k("s_add_u32 s%d, s%d, s%d" % (S_OH, S_OH, S_T0))
    k("s_mul_i32 s%d, s%d, %d" % (S_T0, S_NT, 74*5120))
    srd(k, SRD_B, P_WS, B2_OFF, 74*5120, S_T0)
    k("s_mul_i32 s%d, s%d, 5120" % (S_BB, S_W))
    k("s_add_u32 s%d, s%d, 0x%x" % (S_CNT, P_WS, CNT_OFF))
    k("s_addc_u32 s%d, s%d, 0" % (S_CNT+1, P_WS+1))
    k("v_add_u32 v%d, 4096, v%d" % (V_L16B, V_L16))
    k("s_mov_b32 s%d, %s" % (S_C2, f32(LOG2E))); k("s_mov_b32 s%d, %s" % (S_C2+1, f32(LOG2E)))
    return [t for _, t in k.items]

def dma_queue():
    Q = []
    for st in range(20):
        if st % 2 == 0:
            u = st // 2
            for i in range(4): Q.append((-1 if u < RX else 2*(u-RX)+1, x_dma(u, i), False))
        it = w_dma(st)
        for i, d in enumerate(it): Q.append((-1 if st < RW else max(1, st-RW), d, i == len(it)-1))
    return Q
def wadv(k): k("s_add_u32 s%d, s%d, s%d" % (S_WOFF, S_WOFF, S_T3))
def issue_now(k, Q, n):
    for _ in range(n):
        av, it, last = Q.pop(0)
        k(it[0]); k.vm(it[1], it[2])
        if last: wadv(k)

def btouch(first_ks, n):
    out = []
    for i in range(n):
        pre = "s_and_b32 s101, s%d, 3\ns_lshl_b32 s101, s101, 2\ns_add_u32 s101, s101, s%d\ns_lshl_b32 s101, s101, 13\ns_add_u32 s101, s101, %d\nv_lshlrev_b32 v24, 7, v0" % (S_M64, S_W, first_ks*5120 + i*131072)
        out.append((pre, "buffer_load_dword v25, v24, s[%d:%d], s101 offen%s" % (SRD_B, SRD_B+3, SC), "pf"))
    return out
def spread(items, s0, s1):
    out = {}; n = len(items); i = 0
    for s in range(s0, s1):
        c = -(-(n - i) // (s1 - s)); out[s] = items[i:i+c]; i += c
    return out

def capture(fn):
    q = K(); q.nl = 100000 + capture.n; capture.n += 100
    fn(q)
    assert not q.vmq and not q.lgq
    return q.items
capture.n = 0

def gemm_main(k, att, Q, extra, polls, xrd=None, xwait=None, xsetup=None):
    npt = 5 if att else 6
    Q = list(Q)
    astamp(k, 4)
    gemm_setup2(k, att)
    astamp(k, 5)
    issue_now(k, Q, cfg.N2)
    side = []
    for t in late_setup_items():
        if side and (t.startswith(("s_addc", "s_cselect", "v_cndmask")) ): side[-1] += "\n" + t
        else: side.append(t)
    blocks = []
    if xsetup:
        its = capture(xsetup)
        if any(kd == "l" for kd, _ in its): blocks = its
        else:
            for _, t in its:
                if side and t.startswith(("s_addc", "s_cselect", "v_cndmask", "s_and_b64")): side[-1] += "\n" + t
                else: side.append(t)
    rds = lambda s: reads_for(s, npt)
    stamp(k, 2)
    astamp(k, 6)
    k.wait(vm=[("X", 0), ("W", 0)])
    k("s_barrier")
    astamp(k, 7)
    aflush(k)
    stamp(k, 3)
    r0 = rds(0)
    for i, r in enumerate(r0): k.lg(r, ("r0", max(0, i-4)//2))
    astamp(k, 8)
    for s in range(20):
        b = s & 1
        rd = rds(s+1) if s < 19 else []
        if xrd and s in xrd: rd += xrd[s]
        dm = []
        while Q and Q[0][0] <= s and len(dm) < (cfg.MAXD0 if s == 0 else cfg.MAXD): dm.append(Q.pop(0))
        ex = [(0, e, False) for e in extra.get(s, [])]
        mix = []
        while dm or ex:
            if dm: mix.append(dm.pop(0))
            if ex and len(ex) >= len(dm): mix.append(ex.pop(0))
        dm = mix + [(0, e, False) for e in touch_items(s)]
        mf = []
        idx = [(p, seg, rt) for p in range(npt) for seg in range(2) for rt in range(4)]
        if cfg.LORD == 1 and s: idx = [(p, seg, rt) for rt in range(4) for p in range(npt) for seg in range(2)]
        if cfg.LORD == 2 and s: idx = [(p, seg, (rt if (p*2+seg) % 2 == 0 else 3-rt)) for p in range(npt) for seg in range(2) for rt in range(4)]
        for p, seg, rt in idx:
            a = acc(p, seg, rt)
            mf.append("v_mfma_f32_16x16x32_bf16 %s, %s, %s, %s" % (R(a,4), R(WF0 + (b*12+p*2+seg)*4, 4), R(XF0 + (b*4+rt)*4, 4), R(a,4) if s else "0"))
        nm = len(mf); nd = len(dm)
        at = [int(i * (nm - 3) / max(nd, 1)) for i in range(nd)]
        for i in range(1, nd): at[i] = max(at[i], at[i-1] + 2)
        pend = None
        m1 = nm - 4 - (len(rd) + 1)//2 if s == 0 else 0
        for m, t in enumerate(mf):
            if s == 0 and m % 4 == 0 and not cfg.AST: k.wait(lg=("r0", m//4))
            if s == 0 and m == 0 and cfg.AST: k.wait(lg="all")
            if s == 0 and m == m1:
                k.wait(vm=("W", 1), lg="all"); k("s_barrier")
            k(t)
            used = 0
            if m >= m1 and not (cfg.RSP and s and len(rd) <= (nm - 6 - m) * 2 // 3 + 0 and m % 3 == 2):
                for _ in range(2 if s == 0 else 1):
                    if rd: k.lg(rd.pop(0)); used += 1
            if (s+1) in polls and m == nm - 1: poll_issue(k, P_DBG, polls[s+1], ("poll", s+1))
            if pend is not None:
                k.vm(pend[1][1], pend[1][2]); used += 1
                if pend[2]: wadv(k)
                pend = None
            elif dm and m >= at[nd - len(dm)]:
                pend = dm.pop(0)
                if pend[1][0]: k(pend[1][0]); used += 1
            while side and used < 2 and s >= 1:
                k(side.pop(0)); used += 1
        assert not rd and not dm and pend is None, (s, rd, dm, pend)
        if s == cfg.BLK and blocks:
            assert not side
            k.items += blocks
        if s < 19:
            k.wait(vm=[("W", s+2), ("X", (s+2) >> 1)] + (xwait.get(s, []) if xwait else []), lg="all")
        if s in polls: poll_check(k, P_DBG, N_S1 if polls[s] == D_S1 else N_S3, ("poll", s), sleep=8, barrier=(s == 19))
        if s < 19:
            k("s_barrier")
            if s == 0: aflush(k)
            if s < 4: astamp(k, 11 + s)
            if s == 4: aflush(k)
            if cfg.STG and s % 2 == 1: stamp(k, 17 + s//2)
    assert not Q and not side
    stamp(k, 4)

def ffn_setup(k):
    k("s_lshl_b32 s75, s%d, 1" % S_MT)
    k("s_add_u32 s75, s75, s%d" % S_RH)
    k("s_mul_i32 s75, s75, 74")
    k("s_mul_i32 s76, s%d, 6" % S_TY)
    k("s_add_u32 s75, s75, s76")
    k("s_mul_i32 s76, s%d, 3" % S_C)
    k("s_add_u32 s75, s75, s76")
    k("s_add_u32 s75, s75, 20")
    k("s_lshl_b32 s75, s75, 12")
    k("s_mul_i32 s%d, s%d, %d" % (S_SIG, S_MT, cfg.CS))
    srd(k, SRD_O, P_WS, A2_OFF, A2_SZ)
    if cfg.PREW:
        k("s_mul_i32 s77, s%d, %d" % (S_MT, 128*1280))
        srd(k, SRD_P, P_OUT, 0, 128*1280, 77)
        k("s_lshl_b32 s76, s%d, 2" % S_TY); k("s_add_u32 s76, s76, s%d" % S_W); k("s_mul_i32 s76, s76, 5120")
        for i in range(4): k("v_mov_b32 v%d, 0" % (26+i))

def ffn_role(k, Q):
    extra = spread(b_items(list(range(32)) + list(range(62, 70))), cfg.PS1, cfg.PE1)
    bo = bo_items()
    for g in range(cfg.BOL):
        st = max(16 + g, 20 - cfg.BOL + g, cfg.BOS)
        extra[st] = extra.get(st, []) + bo[5*g:5*g+5]
    polls = {cfg.PS1-1: D_S1}
    for st, ks in cfg.BTL: extra[st] = extra.get(st, []) + btouch(ks, 1)
    if cfg.BTL: polls = {min(cfg.PS1, cfg.BTL[0][0]) - 1: D_S1}
    if cfg.BT2:
        polls = {cfg.PS1-1: D_S1, cfg.BT2-1: D_S3}
        extra[cfg.BT2] = btouch(0, 1) + extra.get(cfg.BT2, [])
    if cfg.PREW:
        pw = [(None, "buffer_store_dwordx4 v[26:29], v%d, s[%d:%d], s76 offen offset:%d%s" % (V_L16 if j < 4 else V_L16B, SRD_P, SRD_P+3, (j % 4)*1024, SC), "st") for j in range(5)]
        for j, e in enumerate(pw): extra[cfg.PREW + j//cfg.PREN] = extra.get(cfg.PREW + j//cfg.PREN, []) + [e]
    gemm_main(k, False, Q, extra, polls, xsetup=ffn_setup)
    fd = Feed(k, b_items(range(32, 62)) + bo[5*cfg.BOL:])
    per, last = cfg.FFE
    n = 0
    for ks in range(3):
        for rt in range(4):
            T = 6 + (n & 1)*8; O = 22 + (n & 1)*4; n += 1
            if O & 3: O = (24, 28)[(n-1) & 1] - 0
            fe = lambda i: fd.emit(1) if (n <= last and i < per) else None
            G = [acc(2*ks+j, 0, rt) for j in range(2)]; U = [acc(2*ks+j, 1, rt) for j in range(2)]
            O = U[0]
            prs = [(j, h) for j in range(2) for h in range(2)]
            for i, (j, h) in enumerate(prs):
                k("v_pk_mul_f32 %s, %s, s[%d:%d] neg_lo:[0,1] neg_hi:[0,1]" % (vr(T+2*i,2), vr(G[j]+2*h,2), S_C2, S_C2+1))
            fe(0)
            for i in range(8): k("v_exp_f32 v%d, v%d" % (T+i, T+i))
            fe(2)
            for i, (j, h) in enumerate(prs):
                k("v_pk_mul_f32 %s, %s, %s" % (vr(G[j]+2*h,2), vr(G[j]+2*h,2), vr(U[j]+2*h,2)))
            for i in range(4): k("v_pk_add_f32 %s, %s, 1.0 op_sel_hi:[1,0]" % (vr(T+2*i,2), vr(T+2*i,2)))
            fe(1)
            for i in range(8): k("v_rcp_f32 v%d, v%d" % (T+i, T+i))
            fe(3)
            for i, (j, h) in enumerate(prs):
                k("v_pk_mul_f32 %s, %s, %s" % (vr(T+2*i,2), vr(G[j]+2*h,2), vr(T+2*i,2)))
            for i in range(4): k("v_cvt_pk_bf16_f32 v%d, v%d, v%d" % (O+i, T+2*i, T+2*i+1))
            k.vm("buffer_store_dwordx4 %s, v%d, s[%d:%d], s75 offen offset:%d%s" % (vr(O,4), V_L16, SRD_O, SRD_O+3, rt*1024, SC), "st")
        if ks < 2: k("s_add_u32 s75, s75, 4096")
    stamp(k, 26)
    def presig():
        k.wait(vm="st")
        stamp(k, 5)
        signal(k, S_CNT, "s%d" % S_SIG, 14, 15)
    return presig, fd.q

def phi_dma(seg):
    pre = "s_add_u32 s%d, s%d, s81\ns_addc_u32 s%d, s%d, 0\n" % (SRD_P, SRD_P, SRD_P+1, SRD_P+1) if seg else ""
    return [((pre if i == 0 else "") + "s_add_u32 m0, s%d, %d" % (S_XL, XSLOT if seg else SPARE - XBASE),
             "buffer_load_dwordx4 v%d, s[%d:%d], 0 offen offset:%d lds" % (V_L16, SRD_P, SRD_P+3, i*1024), ("P", seg)) for i in range(4)]
def phireg(seg, to, s):
    i = s*5 + to
    if seg == 1: return 256 + 48 + 4*i if i < 10 else 256 + 108 + 4*(i-10)
    return 256 + 4*i if i < 12 else 256 + 96 + 4*(i-12)
V_PHA = 23
def phi_reads(seg):
    out = []
    for s in range(3):
        for to in range(5):
            for h in range(2):
                d = phireg(seg, to, s) + 2*h
                b = 0 if seg else SPARE - XBASE - XSLOT
                if s == 2 and h == 1: out.append("ds_read_b64_tr_b16 %s, v26 offset:%d" % (R(d,2), b))
                else: out.append("ds_read_b64_tr_b16 %s, v%d offset:%d" % (R(d,2), V_PHA, b + (8*s+4*h)*40 + 8*to))
    return out
def cvt_in(seg, rt, B):
    out = []
    for t in range(5):
        a = acc(t, seg, rt)
        out.append("v_cvt_pk_bf16_f32 v%d, v%d, v%d" % (B+2*t, a, a+1))
        out.append("v_cvt_pk_bf16_f32 v%d, v%d, v%d" % (B+2*t+1, a+2, a+3))
    return out
def phi_mf(seg, rt, B):
    return ["v_mfma_f32_16x16x32_bf16 %s, %s, %s, %s" % (vr(acc(to,seg,rt),4), R(phireg(seg, to, s),4), vr(B+4*s,4), vr(acc(to,seg,rt),4) if s else "0")
            for s in range(3) for to in range(5)]

PKRS = 352; VRS = 224; PKSZ = 128*PKRS; VB = 2*PKSZ; VSZ = 128*VRS
V_E0, V_E1, V_E2, V_E3, V_E4, V_E5, V_E6 = 27, 28, 29, 30, 60, 61, 62
def att_common_setup(k):
    k("v_lshrrev_b32 v50, 4, v0")
    k("v_and_b32 v51, 15, v0")
    k("v_bfe_u32 v52, v0, 2, 2")
    k("v_and_b32 v53, 3, v0")
    k("v_mul_u32_u24 v48, 800, v50")
    k("v_mad_u32_u24 v48, v52, 40, v48")
    k("v_cmp_eq_u32 vcc, v50, v53")
    k("v_mov_b32 v49, 3200")
    k("v_cndmask_b32 v48, v49, v48, vcc")
    k("s_add_u32 s%d, s%d, %d" % (S_T2, S_XL, XSLOT))
    k("v_add_u32 v%d, s%d, v48" % (V_PHA, S_T2))
    k("v_add_u32 v26, s%d, v49" % S_T2)
def kv_setup(k):
    k("s_lshl_b32 s%d, s%d, 6" % (S_T0, S_RH))
    k("v_add_u32 v48, s%d, v51" % S_T0)
    k("s_mul_i32 s%d, s%d, %d" % (S_T0, S_C, PKSZ))
    k("v_mul_u32_u24 v%d, %d, v48" % (V_E0, PKRS))
    k("v_mul_u32_u24 v49, 80, v50")
    k("v_add3_u32 v%d, v%d, v49, s%d" % (V_E0, V_E0, S_T0))
    k("s_mul_i32 s%d, s%d, %d" % (S_T1, S_C, VSZ))
    k("s_add_u32 s%d, s%d, %d" % (S_T1, S_T1, VB))
    k("v_mul_u32_u24 v%d, %d, v48" % (V_E1, VRS))
    k("v_mul_u32_u24 v49, 48, v50")
    k("v_add3_u32 v%d, v%d, v49, s%d" % (V_E1, V_E1, S_T1))
    k("v_lshrrev_b32 v48, 2, v0")
    k("v_lshlrev_b32 v49, 3, v53")
    k("s_mul_i32 s%d, s%d, 160" % (S_T2, S_RH))
    k("s_add_u32 s%d, s%d, s%d" % (S_T0, S_T0, S_T2))
    k("v_mul_u32_u24 v%d, %d, v48" % (V_E2, PKRS))
    k("v_add3_u32 v%d, v%d, v49, s%d" % (V_E2, V_E2, S_T0))
    k("s_mul_i32 s%d, s%d, 96" % (S_T2, S_RH))
    k("s_add_u32 s%d, s%d, s%d" % (S_T1, S_T1, S_T2))
    k("v_mul_u32_u24 v%d, %d, v48" % (V_E3, VRS))
    k("v_add3_u32 v%d, v%d, v49, s%d" % (V_E3, V_E3, S_T1))
    k("s_add_u32 s%d, s%d, %d" % (S_T2, S_XL, SPARE - XBASE))
    k("v_mul_u32_u24 v48, 80, v51")
    k("v_lshl_add_u32 v48, v50, 3, v48")
    k("v_add_u32 v%d, s%d, v48" % (V_E5, S_T2))
    k("v_add_u32 v%d, s%d, v%d" % (V_E6, S_T2, V_L16))
    k("v_mov_b32 v48, 0x7fffffff")
    k("v_cmp_gt_u32 vcc, 32, v0")
    k("v_cndmask_b32 v%d, v48, v%d, vcc" % (V_E4, V_L16))
    k("s_lshl_b32 s78, s79, 1")
    k("s_add_u32 s78, s78, s%d" % S_RH)
    k("s_lshl_b32 s78, s78, 4")
    k("s_add_u32 s78, s78, s%d" % S_MT)
    k("s_mul_i32 s78, s78, %d" % KVPS)
    k("v_cmp_gt_u32 s[72:73], 2, v50")
    k("v_cmp_gt_u32 s[74:75], 5, v51")
    k("s_and_b64 s[76:77], s[72:73], s[74:75]")
    srd(k, SRD_O, P_WS, KVP_OFF, KVP_SZ)
    for r in (42, 43, 54, 55): k("v_mov_b32 v%d, 0" % r)
def q_setup(k):
    k("s_mov_b32 s%d, 81920" % S_T0)
    k("v_mul_lo_u32 v48, v50, s%d" % S_T0)
    k("v_lshl_add_u32 v%d, v51, 4, v48" % V_E0)
    k("v_lshl_add_u32 v%d, v51, 3, v48" % V_E1)
    k("v_lshlrev_b32 v%d, 2, v0" % V_E2)
    k("s_mul_i32 s%d, s79, %d" % (S_T1, 4*81920))
    k("s_lshl_b32 s%d, s%d, 1" % (S_T0, S_MT))
    k("s_add_u32 s%d, s%d, s%d" % (S_T0, S_T0, S_RH))
    k("s_lshl_b32 s75, s%d, 10" % S_T0)
    k("s_add_u32 s75, s75, s%d" % S_T1)
    k("s_add_u32 s76, s75, 32768")
    k("s_lshl_b32 s77, s%d, 9" % S_T0)
    k("s_add_u32 s77, s77, s%d" % S_T1)
    k("s_add_u32 s77, s77, 65536")
    k("s_lshl_b32 s78, s%d, 8" % S_T0)
    k("s_add_u32 s78, s78, %d" % (G_OFF - PQ_OFF))
    k("s_add_u32 s%d, s%d, %d" % (S_SIG, S_MT, C_Q))
    k("s_mul_i32 s%d, s%d, %d" % (S_SIG, S_SIG, cfg.CS))
    srd(k, SRD_O, P_WS, PQ_OFF, G_OFF + G_SZ - PQ_OFF)
    for r in (42, 43, 54, 55): k("v_mov_b32 v%d, 0" % r)

def softmax_pm(k, P, E, T, O, fd=None, mf=None, side=None, inplace=None):
    def fe(n=1):
        if fd: fd.emit(n)
    mf = list(mf or []); side = list(side or [])
    v = [p + i for p in P for i in range(2)]
    k("v_max3_f32 v%d, v%d, v%d, v%d" % (T, v[0], v[1], v[2]))
    k("v_min3_f32 v%d, v%d, v%d, v%d" % (T+2, v[0], v[1], v[2]))
    k("v_max3_f32 v%d, v%d, v%d, v%d" % (T+1, v[3], v[4], v[5]))
    k("v_min3_f32 v%d, v%d, v%d, v%d" % (T+3, v[3], v[4], v[5]))
    for n, i in enumerate(range(6, 20, 2)):
        c = n & 1
        k("v_max3_f32 v%d, v%d, v%d, v%d" % (T+c, T+c, v[i], v[i+1]))
        k("v_min3_f32 v%d, v%d, v%d, v%d" % (T+2+c, T+2+c, v[i], v[i+1]))
    fe()
    k("v_max_f32 v%d, v%d, v%d" % (T, T, T+1))
    k("v_min_f32 v%d, v%d, v%d" % (T+2, T+2, T+3))
    k("v_mul_f32 v%d, %s, v%d" % (T, f32(-LOG2E), T))
    k("v_mul_f32 v%d, %s, v%d" % (T+2, f32(LOG2E), T+2))
    for i, p in enumerate(P):
        k("v_pk_fma_f32 %s, %s, s[%d:%d], %s op_sel_hi:[1,1,0]" % (vr(E+2*i,2), vr(p,2), S_C2, S_C2+1, vr(T,2)))
    fe()
    for i, p in enumerate(P):
        k("v_pk_fma_f32 %s, %s, s[%d:%d], %s op_sel_hi:[1,1,0] neg_lo:[0,1,0] neg_hi:[0,1,0]" % (vr(p,2), vr(p,2), S_C2, S_C2+1, vr(T+2,2)))
    ex = [E+i for i in range(20)] + v
    for i, x in enumerate(ex):
        if i % 2 == 0:
            if mf: k(mf.pop(0))
            if side:
                y = side.pop(0)
                if isinstance(y, str) or len(y) == 3: emit1(k, y)
                else: k.lg(*y)
        if i % 12 == 5: fe()
        k("v_exp_f32 v%d, v%d" % (x, x))
    assert not mf and not side
    Ep = [E+2*i for i in range(10)]
    k("v_pk_add_f32 %s, %s, %s" % (vr(T+4,2), vr(Ep[0],2), vr(Ep[1],2)))
    k("v_pk_add_f32 %s, %s, %s" % (vr(T,2), vr(Ep[2],2), vr(Ep[3],2)))
    k("v_pk_add_f32 %s, %s, %s" % (vr(T+6,2), vr(P[0],2), vr(P[1],2)))
    k("v_pk_add_f32 %s, %s, %s" % (vr(T+2,2), vr(P[2],2), vr(P[3],2)))
    for i in range(4, 10, 2):
        k("v_pk_add_f32 %s, %s, %s" % (vr(T+4,2), vr(T+4,2), vr(Ep[i],2)))
        k("v_pk_add_f32 %s, %s, %s" % (vr(T,2), vr(T,2), vr(Ep[i+1],2)))
        k("v_pk_add_f32 %s, %s, %s" % (vr(T+6,2), vr(T+6,2), vr(P[i],2)))
        k("v_pk_add_f32 %s, %s, %s" % (vr(T+2,2), vr(T+2,2), vr(P[i+1],2)))
    k("v_pk_add_f32 %s, %s, %s" % (vr(T+4,2), vr(T+4,2), vr(T,2)))
    k("v_pk_add_f32 %s, %s, %s" % (vr(T+6,2), vr(T+6,2), vr(T+2,2)))
    fe()
    k("v_add_f32 v%d, v%d, v%d" % (T+4, T+4, T+5))
    k("v_add_f32 v%d, v%d, v%d" % (T+6, T+6, T+7))
    k("v_rcp_f32 v%d, v%d" % (T+4, T+4))
    k("v_rcp_f32 v%d, v%d" % (T+6, T+6))
    for i in range(10): k("v_pk_mul_f32 %s, %s, %s op_sel_hi:[1,0]" % (vr(Ep[i],2), vr(Ep[i],2), vr(T+4,2)))
    fe()
    for i in range(10): k("v_pk_mul_f32 %s, %s, %s op_sel_hi:[1,0]" % (vr(P[i],2), vr(P[i],2), vr(T+6,2)))
    if inplace:
        fe()
        for t in pack_inplace(inplace, E): k(t)
        return
    for i in range(10): k("v_cvt_pk_bf16_f32 v%d, v%d, v%d" % (O+i, Ep[i], Ep[i]+1))
    fe()
    for i in range(10): k("v_cvt_pk_bf16_f32 v%d, v%d, v%d" % (O+10+i, P[i], P[i]+1))

def att_extra(two):
    extra = spread(b_items(range(cfg.NBA)), cfg.PSA, 20)
    for st, ks in cfg.BTL: extra[st] = extra.get(st, []) + btouch(ks, 1)
    extra[cfg.PHS] = phi_dma(0)
    return extra

def att_loop(k, Q):
    def setup(q): att_common_setup(q); kv_setup(q)
    gemm_main(k, True, Q, att_extra(True), {(min(cfg.PSA, cfg.BTL[0][0]) if cfg.BTL else cfg.PSA)-1: D_S1}, xrd={19: phi_reads(0)}, xwait={18: [("P", 0)]}, xsetup=setup)

def kv_role(k):
    EREG = 6; TREG = 244; O = 224
    for t in cvt_in(0, 0, 32): k(t)
    k.wait(lg="all")
    weave(k, phi_mf(0, 0, 32), cvt_in(0, 1, 44))
    if not cfg.STG: stamp(k, 17)
    def vout(rt):
        q = [acc(t, 1, rt) + i for t in range(5) for i in range(4)]
        f = ["v_cvt_pk_bf16_f32 v%d, v%d, v%d" % (q[i], q[2*i], q[2*i+1]) for i in range(10)]
        f += ["v_mov_b32 v%d, 0x3f80" % q[10], "v_mov_b32 v%d, 0" % q[11]]
        w = [("ds_write_b128 v%d, %s offset:%d" % (V_E1, vr(q[4*i],4), rt*16*VRS + 16*i), "vw") for i in range(3)]
        return f, w
    def vfr(n, bt): return acc((n*2+bt) >> 2, 1, (n*2+bt) & 3)
    vreads = []
    for n in range(8):
        j, ks = n >> 2, n & 3
        for bt in range(2):
            for h in range(2):
                vreads.append(("ds_read_b64_tr_b16 %s, v%d offset:%d" % (vr(vfr(n,bt)+2*h,2), V_E3, (32*ks+16*h)*VRS + j*48 + bt*32), "vf"))
    fd = Feed(k, [])
    for rt in range(4):
        P = [acc(t, 0, rt) + 2*h for t in range(5) for h in range(2)]
        mf = phi_mf(0, rt+1, 32 + ((rt+1) & 1)*12) if rt < 3 else []
        if rt == cfg.KVB0 and cfg.KVN >= 47: fd.q += b_items(range(32, 47))
        if rt == 3 and cfg.KVN >= 62: fd.q += b_items(range(47, 62))
        side = []
        if rt < 2:
            for r in (2*rt, 2*rt+1):
                f, w = vout(r)
                for t in f: k(t)
                side += w
        else:
            if rt == 2: k.wait(lg="vw"); k("s_barrier")
            side = vreads[(rt-2)*16:(rt-1)*16]
        softmax_pm(k, P, EREG, TREG, O, fd, mf, side)
        for i in range(5):
            k.lg("ds_write_b128 v%d, %s offset:%d" % (V_E0, vr(O+4*i,4), rt*16*PKRS + 16*i), ("pw", rt))
        if rt < 2:
            for t in cvt_in(0, rt+2, 32 + (rt & 1)*12): k(t)
        if not cfg.STG: stamp(k, 18+rt)
    k.wait(lg="all")
    k("s_barrier")
    if not cfg.STG: stamp(k, 22)
    KAQ = [32, 36, 40, 44, 48, 52, 224, 228, 232, 236, 240, 244]
    def pfr(n, ft): return acc(((n % 6)*3+ft) >> 2, 0, ((n % 6)*3+ft) & 3)
    def rd(n):
        j, ks = n >> 2, n & 3
        return [("lg", "ds_read_b64_tr_b16 %s, v%d offset:%d" % (vr(pfr(n,ft)+2*h,2), V_E2, (32*ks+16*h)*PKRS + j*80 + ft*32), ("f", n)) for ft in range(3) for h in range(2)]
    def pack(jj):
        f = []
        for ft in range(3):
            for bt in range(2):
                a = KAQ[(jj*3+ft)*2+bt]
                f += ["v_cvt_pk_bf16_f32 v%d, v%d, v%d" % (a, a, a+1), "v_cvt_pk_bf16_f32 v%d, v%d, v%d" % (a+1, a+2, a+3)]
                mask = [[None, "s[74:75]"], [None, "s[74:75]"], ["s[72:73]", "s[76:77]"]][ft][bt]
                w = "ds_write_b64 v%d, %s offset:%d" % (V_E5, vr(a,2), jj*1680 + bt*1280 + ft*32)
                if mask: w = "s_mov_b64 exec, %s\n%s\ns_mov_b64 exec, -1" % (mask, w)
                f.append(("lg", w, "cw"))
        return f
    weave(k, [], rd(0) + rd(1))
    pk0 = pack(0)
    for n in range(8):
        j, ks = n >> 2, n & 3
        k.wait(lg=("f", n))
        mf = []
        for ft in range(3):
            for bt in range(2):
                a = KAQ[(j*3+ft)*2+bt]
                mf.append("v_mfma_f32_16x16x32_bf16 %s, %s, %s, %s" % (vr(a,4), vr(pfr(n,ft),4), vr(vfr(n,bt),4), vr(a,4) if ks else "0"))
        fill = rd(n+2) if n < 6 else []
        if n < 4: fill.append(lambda: fd.emit(1))
        if n >= 5: fill += pk0[(n-5)*6:(n-4)*6]
        weave(k, mf, fill)
    weave(k, [], pack(1))
    k.wait(lg="all")
    for i in range(4): k.lg("ds_read_b128 %s, v%d offset:%d" % (vr(64+4*i,4), V_E6, i*1024), ("cr", i))
    for i in range(4):
        k.wait(lg=("cr", i))
        k.vm("buffer_store_dwordx4 %s, v%d, s[%d:%d], s78 offen offset:%d%s" % (vr(64+4*i,4), V_L16 if i < 3 else V_E4, SRD_O, SRD_O+3, i*1024, SC), "st")
    stamp(k, 26)
    stamp(k, 5)
    fd.drain()

QXB = 3*WSLOT; QST = 98304
def qacc(t, rt): return 64 + (t*6+rt)*4
QW0 = 256; QX0 = 256 + 80; QPH = 256 + 176
def qa_role(k):
    k("s_mov_b32 s%d, 13" % S_TY)
    k("s_mul_i32 s75, s%d, 6" % S_T0); k("s_add_u32 s75, s75, s%d" % S_T1); k("s_sub_u32 s75, s75, 26")
    k("s_lshr_b32 s79, s%d, 1" % S_T0)
    k("s_mul_i32 s%d, s79, 12" % S_MT); k("s_sub_u32 s%d, s75, s%d" % (S_MT, S_MT))
    k("s_add_u32 s%d, s75, %d" % (S_SIG, C_P)); k("s_mul_i32 s%d, s%d, %d" % (S_SIG, S_SIG, cfg.CS))
    k("s_lshl_b32 s75, s75, 2"); k("s_add_u32 s75, s75, s%d" % S_W)
    k("s_mul_i32 s76, s75, 205"); k("s_lshr_b32 s76, s76, 11")
    k("s_mul_i32 s77, s76, 10"); k("s_sub_u32 s77, s75, s77")
    k("s_cmp_ge_u32 s76, 19")
    k("s_cselect_b32 s78, 0x4000000, 0")
    k("s_mul_i32 s80, s76, %d" % (32*1280)); k("s_lshl_b32 s81, s77, 7"); k("s_add_u32 s80, s80, s81"); k("s_add_u32 s80, s80, s78")
    k("v_lshrrev_b32 v24, 3, v0"); k("v_and_b32 v25, 7, v0")
    k("v_and_b32 v26, 6, v24"); k("v_xor_b32 v26, v26, v25"); k("v_lshlrev_b32 v26, 4, v26")
    k("v_mul_u32_u24 v32, 1280, v24"); k("v_add_u32 v32, v32, v26")
    k("v_lshrrev_b32 v27, 2, v24"); k("v_and_b32 v28, 3, v24"); k("v_lshl_add_u32 v27, v27, 3, v28")
    k("v_mul_u32_u24 v36, 1280, v27"); k("v_add_u32 v36, v36, v26")
    for i in range(1, 4):
        k("v_add_u32 v%d, %d, v32" % (32+i, i*8*1280))
        k("v_add_u32 v%d, %d, v36" % (36+i, (16*(i&1) + 4*(i>>1))*1280))
    k("s_lshl_b32 s82, s%d, 14" % S_W); k("s_add_u32 s82, s82, %d" % QST)
    k("s_waitcnt lgkmcnt(0)")
    srd(k, SRD_W1, P_WD, 0, 1728*1280)
    srd(k, SRD_W0, P_WO, 0, 640*1280)
    def load(n, sg, vb, off):
        k("s_add_u32 s81, s80, %s" % off)
        for j in range(4):
            k("s_add_u32 m0, s82, %d" % (n*4096 + j*1024))
            k.vm("buffer_load_dwordx4 v%d, s[%d:%d], s81 offen nt lds" % (vb+j, sg, sg+3), ("u", n))
    load(0, SRD_W1, 32, "%d" % (18*32*1280))
    load(1, SRD_W1, 32, "%d" % (37*32*1280))
    load(2, SRD_W0, 36, "0")
    k("s_cmp_eq_u32 s76, 0")
    for i in range(3): k("s_cselect_b32 s%d, s%d, s%d" % (96+i, SRD_W0+i, SRD_W1+i))
    k("s_mov_b32 s99, 0x20000")
    k("s_cselect_b64 vcc, -1, 0")
    k("s_mov_b32 s72, %d" % (19*32*1280))
    k("s_cselect_b32 s72, s72, %d" % (-32*1280 & 0xffffffff))
    for j in range(4): k("v_cndmask_b32 v%d, v%d, v%d, vcc" % (40+j, 32+j, 36+j))
    load(3, 96, 40, "s72")
    k("s_mul_i32 s3, s75, 5120")
    srd(k, SRD_O, P_WS, B2_OFF, B2_SZ)
    for t in late_setup_items(): k(t)
    k("v_lshrrev_b32 v44, 2, v0"); k("v_bfe_u32 v45, v44, 1, 2"); k("v_and_b32 v46, 3, v0")
    k("v_lshlrev_b32 v44, 7, v44"); k("v_lshl_add_u32 v44, v46, 3, v44"); k("v_add_u32 v44, s82, v44")
    for b in range(4):
        k("v_xor_b32 v46, %d, v45" % b); k("v_lshl_add_u32 v%d, v46, 5, v44" % (48+b))
    D0 = 4
    for b in range(4):
        k("s_lshl_b32 s72, s77, 2"); k("s_add_u32 s72, s72, %d" % b)
        k("s_mul_i32 s73, s72, 205"); k("s_lshr_b32 s73, s73, 10")
        k("s_mul_i32 s74, s73, 5"); k("s_sub_u32 s72, s72, s74")
        k("s_mul_i32 s73, s73, 74"); k("s_add_u32 s73, s73, s76")
        k("s_mul_i32 s73, s73, 5"); k("s_add_u32 s73, s73, s72")
        k("s_lshl_b32 s73, s73, 10")
        k("s_add_u32 s%d, s73, s78" % (D0+b))
    k("s_cmp_lt_u32 s76, 17"); k("s_cselect_b32 s100, 0, 0x4000000")
    k("s_mov_b32 s%d, 3840" % S_STRIDE)
    k("s_mul_i32 s%d, s79, 320" % S_T1)
    k("s_and_b32 s%d, s%d, 127" % (S_DELTA, S_T1)); k("s_sub_u32 s75, s%d, s%d" % (S_T1, S_DELTA))
    k("s_add_u32 s76, s75, %d" % (32*3840))
    k("s_sub_u32 s77, %d, s75" % (640*3840)); k("s_sub_u32 s78, %d, s76" % (640*3840))
    srd(k, SRD_W0, P_WQKV, 0, "s77", 75)
    srd(k, SRD_W1, P_WQKV, 0, "s78", 76)
    gemm_setup(k)
    k("s_mov_b32 s%d, %d" % (S_T3, 64*3840))
    k("s_mul_i32 s%d, s%d, %d" % (S_T0, S_W, 16*1280))
    for i in range(4): k("v_add_u32 v%d, s%d, v%d" % (V_XD+i, S_T0, V_XD+i))
    k("s_add_u32 s%d, s%d, %d" % (S_XL, S_WL, QXB))
    k("s_mov_b32 s101, %d" % (32*1280))
    k("s_mul_i32 s%d, s%d, %d" % (S_T0, S_MT, 192*1280))
    k("s_min_u32 s%d, s%d, %d" % (S_T0, S_T0, 2048*1280))
    k("s_sub_u32 s%d, %d, s%d" % (S_T1, 2048*1280, S_T0))
    srd(k, SRD_X, P_X, 0, "s%d" % S_T1, S_T0)
    k("s_lshl_b32 s%d, s%d, 2" % (S_T0, S_MT)); k("s_add_u32 s%d, s%d, s%d" % (S_T0, S_T0, S_W)); k("s_mul_i32 s%d, s%d, %d" % (S_T0, S_T0, 16*3840))
    k("v_lshrrev_b32 v44, 2, v0"); k("v_mul_u32_u24 v44, 3840, v44"); k("v_and_b32 v45, 3, v0"); k("v_min_u32 v45, 2, v45"); k("v_lshl_add_u32 v44, v45, 7, v44")
    k.vm("buffer_load_dword v%d, v44, s[%d:%d], s%d offen" % (V_JUNK, SRD_W0, SRD_W0+3, S_T0), "pf")
    gemm_setup2(k, True)
    k("s_mul_i32 s%d, s%d, %d" % (S_T0, S_RH, 12288 - 8192)); k("s_sub_u32 s%d, s%d, %d" % (S_T0, S_T0, XBASE - QXB))
    for i in range(2): k("v_add_u32 v%d, s%d, v%d" % (V_XR+i, S_T0, V_XR+i))
    stamp(k, 1)
    for n, ks0 in enumerate((38, 57, 0, 19)):
        k.wait(vm=("u", n))
        F = 64 + n*16
        for b in range(4):
            for h in range(2): k.lg("ds_read_b64_tr_b16 %s, v%d offset:%d" % (vr(F+4*b+2*h,2), 48+b, n*4096 + h*2048))
        for b in range(4):
            k("s_add_u32 s%d, s%d, %d" % (72+b, D0+b, ks0*5120))
            if ks0 == 57: k("s_add_u32 s%d, s%d, s100" % (72+b, 72+b))
        k.wait(lg="all")
        for b in range(4):
            k.vm("buffer_store_dwordx4 %s, v%d, s[%d:%d], s%d offen%s" % (vr(F+4*b,4), V_L16, SRD_O, SRD_O+3, 72+b, SC), "rs")
    srd(k, 96, P_WS, KVP_OFF, KVP_SZ + 16*4096)
    for i in range(4): k("v_mov_b32 v%d, -1" % (56+i))
    for j in range(4): k.vm("buffer_store_dwordx4 v[56:59], v%d, s[96:99], s3 offen offset:%d%s" % (V_L16, j*1024, SC), "rs")
    k.vm("buffer_store_dwordx4 v[56:59], v%d, s[96:99], s3 offen%s" % (V_L16B, SC), "rs")
    sv = list(k.vmq)
    k("s_cmp_eq_u32 s%d, 11" % S_MT); k("s_cbranch_scc1 L_spare")
    def wd(s): return [("s_add_u32 m0, s%d, %d" % (S_WL, (s % 3)*WSLOT + i*1024 - (i % 3)*128), b, c) for i, (a, b, c) in enumerate(w_dma(s))]
    def xd(s): return [("s_add_u32 m0, s%d, %d" % (S_XL, (s % 3)*WSLOT + i*1024 - s*128),
                        "buffer_load_dwordx4 v%d, s[%d:%d], %s offen offset:%d lds" % (V_XD + (i if i < 4 else i-4), SRD_X, SRD_X+3, "0" if i < 4 else "s101", s*128), ("X", s)) for i in range(6)]
    def now(items, adv):
        for it in items: k(it[0]); k.vm(it[1], it[2])
        if adv: wadv(k)
    now(xd(0), 0); now(wd(0), 1); now(wd(1), 1)
    k("s_lshl_b32 s79, s79, 1"); k("s_add_u32 s79, s79, s%d" % S_C); k("s_mul_i32 s80, s79, 3200")
    srd(k, SRD_P, P_WPHI, 0, 3200, 80)
    k.wait(vm="rs")
    signal(k, P_DBG, D_S1)
    stamp(k, 2)
    now(xd(1), 0)
    k("s_lshl_b32 s82, s%d, 12" % S_W); k("s_add_u32 s82, s82, %d" % SPARE)
    now([("s_mov_b32 m0, s82", "buffer_load_dwordx4 v%d, s[%d:%d], 0 offen offset:%d lds" % (V_L16, SRD_P, SRD_P+3, i*1024), "P") for i in range(4)], 0)
    k("v_lshrrev_b32 v50, 4, v0"); k("v_and_b32 v51, 15, v0"); k("v_bfe_u32 v52, v0, 2, 2"); k("v_and_b32 v53, 3, v0")
    k("v_mul_u32_u24 v48, 800, v50"); k("v_mad_u32_u24 v48, v52, 40, v48")
    k("v_cmp_eq_u32 vcc, v50, v53"); k("v_mov_b32 v49, 3200"); k("v_cndmask_b32 v48, v49, v48, vcc")
    k("v_add_u32 v%d, s82, v48" % V_PHA); k("v_add_u32 v26, s82, v49")
    k("s_mov_b32 s%d, %d" % (S_T0, 128*1280)); k("v_mul_lo_u32 v48, v50, s%d" % S_T0); k("v_lshl_add_u32 v%d, v51, 4, v48" % V_E0)
    k("s_mul_i32 s76, s%d, 12" % S_MT); k("s_mul_i32 s77, s%d, 6" % S_RH); k("s_add_u32 s76, s76, s77")
    k("s_mul_i32 s75, s79, %d" % (4*128*1280)); k("s_mul_i32 s77, s76, 1280"); k("s_add_u32 s75, s75, s77")
    srd(k, SRD_O, P_WS, PQ_OFF, PQ_SZ)
    for r in (42, 43, 54, 55): k("v_mov_b32 v%d, 0" % r)
    def rds(s):
        out = []; b = s & 1; sl = (s % 3)*WSLOT
        for rt in range(6):
            for hh in range(2): out.append("ds_read_b128 %s, v%d offset:%d" % (R(QX0 + (b*12+rt*2+hh)*4, 4), V_XR + hh, sl + rt*2048))
        for p in range(5):
            for hh in range(2):
                for h in range(2): out.append("ds_read_b64_tr_b16 %s, v%d offset:%d" % (R(QW0 + (b*10+p*2+hh)*4 + 2*h, 2), V_TA + p, sl + hh*3072 + h*512))
        return out
    def ph(to, s): return QPH + 4*(s*5 + to)
    prd = []
    for s in range(3):
        for to in range(5):
            for h in range(2):
                if s == 2 and h == 1: prd.append("ds_read_b64_tr_b16 %s, v26" % R(ph(to,s)+2*h,2))
                else: prd.append("ds_read_b64_tr_b16 %s, v%d offset:%d" % (R(ph(to,s)+2*h,2), V_PHA, (8*s+4*h)*40 + 8*to))
    k.wait(vm=[("X", 0), ("W", 0)])
    k("s_barrier")
    stamp(k, 3)
    for r in rds(0): k.lg(r)
    now(wd(2), 1); now(xd(2), 0)
    k.wait(vm=[("X", 1), ("W", 1)], lg="all")
    k("s_barrier")
    for s in range(10):
        b = s & 1
        rd = rds(s+1) if s < 9 else list(prd)
        dm = [(e, i == 5) for i, e in enumerate(wd(s+3))] + [(e, False) for e in xd(s+3)] if s + 3 < 10 else []
        if s == 9: dm = [(e, False) for e in b_items(range(27, 32))]
        mf = ["v_mfma_f32_16x16x32_bf16 %s, %s, %s, %s" % (vr(qacc(p,rt),4), R(QW0 + (b*10+p*2+hh)*4, 4), R(QX0 + (b*12+rt*2+hh)*4, 4), vr(qacc(p,rt),4) if (s or hh) else "0")
              for p in range(5) for rt in range(6) for hh in range(2)]
        nm = len(mf); nd = len(dm)
        at = [int(i * (nm - 3) / max(nd, 1)) for i in range(nd)]
        pend = None
        for m, t in enumerate(mf):
            k(t)
            if rd: k.lg(rd.pop(0))
            if s == 7 and m == nm - 1: poll_issue(k, P_DBG, D_S1, "s1")
            if pend is not None:
                k.vm(pend[0][1], pend[0][2])
                if pend[1]: wadv(k)
                pend = None
            elif dm and m >= at[nd - len(dm)]:
                pend = dm.pop(0)
                if pend[0][0]: k(pend[0][0])
        assert not rd and not dm and pend is None
        if s < 9:
            k.wait(vm=[("W", s+2), ("X", s+2)], lg="all")
            if s == 8: poll_check(k, P_DBG, N_S1, "s1", sleep=8, barrier=False)
            k("s_barrier")
    stamp(k, 4)
    def cin(rt):
        o = []
        for t in range(5):
            a = qacc(t, rt); B = 32 + (rt & 1)*12
            o += ["v_cvt_pk_bf16_f32 v%d, v%d, v%d" % (B+2*t, a, a+1), "v_cvt_pk_bf16_f32 v%d, v%d, v%d" % (B+2*t+1, a+2, a+3)]
        return o
    def pmf(rt): return ["v_mfma_f32_16x16x32_bf16 %s, %s, %s, %s" % (vr(qacc(to,rt),4), R(ph(to, s),4), vr(32+(rt & 1)*12+4*s,4), vr(qacc(to,rt),4) if s else "0") for s in range(3) for to in range(5)]
    def stores(rt):
        o = ["s_add_u32 s77, s75, %d\ns_cmp_lt_u32 s76, %d\ns_cselect_b32 s77, s77, 0x4000000" % (rt*1280, 128 - rt)]
        return o + [("vm", "buffer_store_dwordx4 %s, v%d, s[%d:%d], s77 offen offset:%d%s" % (vr(qacc(t,rt),4), V_E0, SRD_O, SRD_O+3, t*256, SC), "st") for t in range(5)]
    for t in cin(0): k(t)
    k.wait(lg="all")
    weave(k, pmf(0), cin(1))
    fd = Feed(k, b_items(list(range(0, 12)) + list(range(32, 62))) + bo_items()[:cfg.BOQ])
    prev = []
    for rt in range(6):
        v = [qacc(t, rt) + i for t in range(5) for i in range(4)]
        fd.emit(cfg.QX)
        softmax_pm(k, v[::2], 184, 204, None, fd, pmf(rt+1) if rt < 5 else None, prev, inplace=v)
        fd.emit(cfg.QX)
        if rt < 4:
            for t in cin(rt+2): k(t)
        prev = stores(rt)
    weave(k, [], prev)
    stamp(k, 26)
    rest = b_items(list(range(12, 27)) + list(range(62, 70)))
    Feed(k, rest[:6]).drain()
    k.wait(vm="st")
    stamp(k, 5)
    signal(k, S_CNT, "s%d" % S_SIG)
    left = [x for x in fd.q]
    nb = [x[2][1] for x in left if isinstance(x[2], tuple)]
    nbo = sum(1 for x in left if x[2] == "BO")
    assert nbo % 5 == 0 or True
    assert not nb
    Feed(k, left).drain()
    k("s_branch L_qtail")
    k.label("L_spare")
    k.vmq = sv; k.lgq = []
    k("s_cmp_eq_u32 s79, 0")
    k("s_cselect_b32 s%d, %d, 0" % (S_T0, 96*cfg.CS))
    srd(k, 96, P_WS, CNT_OFF, "s%d" % S_T0)
    for i in range(4): k("v_mov_b32 v%d, 0" % (56+i))
    k("s_mul_i32 s%d, s%d, %d" % (S_T0, S_W, 24*cfg.CS))
    k("v_mul_u32_u24 v60, %d, v24" % cfg.CS); k("v_lshl_add_u32 v60, v25, 4, v60")
    for i in range(3):
        k.vm("buffer_store_dwordx4 v[56:59], v60, s[96:99], s%d offen%s" % (S_T0, SC), "rs")
        k("s_add_u32 s%d, s%d, %d" % (S_T0, S_T0, 8*cfg.CS))
    k("s_lshl_b32 s72, s79, 2"); k("s_add_u32 s72, s72, s%d" % S_W)
    srd(k, SRD_X, P_X, 0, 2048*1280)
    srd(k, SRD_P, P_GW, 0, 1280)
    srd(k, SRD_W0, P_WS, G_OFF, G_SZ)
    k("v_and_b32 v24, 15, v0"); k("v_lshrrev_b32 v25, 4, v0")
    k("v_lshlrev_b32 v26, 4, v24")
    for j in range(5): k.vm("buffer_load_dwordx4 %s, v26, s[%d:%d], 0 offen offset:%d" % (vr(32+4*j,4), SRD_P, SRD_P+3, 256*j), "gw")
    k.wait(vm="rs")
    signal(k, P_DBG, D_S1)
    stamp(k, 2)
    k("v_lshlrev_b32 v27, 3, v25"); k("v_mul_u32_u24 v27, 1280, v27"); k("v_add_u32 v27, v27, v26")
    k("v_lshl_add_u32 v28, v25, 3, v24"); k("v_lshlrev_b32 v28, 2, v28")
    k("v_mov_b32 v30, 0x7fffffff"); k("v_cmp_gt_u32 vcc, 8, v24"); k("v_cndmask_b32 v28, v30, v28, vcc")
    k("s_mul_i32 s74, s72, %d" % (128*1280)); k("s_lshl_b32 s75, s72, 9")
    def gl(n):
        for j in range(5): k.vm("buffer_load_dwordx4 %s, v27, s[%d:%d], s74 offen offset:%d" % (vr(64+(n % 8)*20+4*j,4), SRD_X, SRD_X+3, 256*j), ("gx", n))
        k("s_add_u32 s74, s74, %d" % (1280 if n % 8 != 7 else 25*1280))
    for n in range(3): gl(n)
    k("s_mov_b32 s76, 0")
    k.label("L_gate")
    for it in range(8):
        k.wait(vm=("gx", it))
        gl(it + 3)
        k("v_mov_b32 v30, 0")
        for j in range(20): k("v_dot2c_f32_bf16 v30, v%d, v%d" % (64+it*20+j, 32+j))
        k("s_nop 3")
        for sh in (8, 4, 2, 1): k("v_add_f32_dpp v30, v30, v30 row_ror:%d row_mask:0xf bank_mask:0xf" % sh)
        k("v_cmp_eq_u32 vcc, %d, v24" % it)
        k("v_cndmask_b32 v29, v29, v30, vcc")
    k("v_mul_f32 v31, %s, v29" % f32(-LOG2E)); k("v_exp_f32 v31, v31"); k("v_add_f32 v31, 1.0, v31"); k("v_rcp_f32 v31, v31")
    k("s_nop 0")
    k("buffer_store_dword v31, v28, s[%d:%d], s75 offen%s" % (SRD_W0, SRD_W0+3, SC))
    k("s_add_u32 s75, s75, 128"); k("s_add_u32 s76, s76, 1"); k("s_cmp_lt_u32 s76, 4"); k("s_cbranch_scc1 L_gate")
    k("s_waitcnt vmcnt(0)"); k.vmq = []
    signal(k, P_DBG, D_S3)
    stamp(k, 4)
    poll_issue(k, P_DBG, D_S1, "s1"); poll_check(k, P_DBG, N_S1, "s1", sleep=16)
    Feed(k, b_items(list(range(18)) + list(range(27, 62))) + bo_items()[:cfg.BOQ]).drain()
    stamp(k, 5)
    k.label("L_qtail")

def pack_inplace(v, E):
    out = ["v_cvt_pk_bf16_f32 v%d, v%d, v%d" % (v[10+i], v[2*i], v[2*i+1]) for i in range(9, -1, -1)]
    out += ["v_cvt_pk_bf16_f32 v%d, v%d, v%d" % (v[i], E+2*i, E+2*i+1) for i in range(10)]
    return out
def minmax(v, T):
    out = ["v_max3_f32 v%d, v%d, v%d, v%d" % (T, v[0], v[1], v[2]), "v_min3_f32 v%d, v%d, v%d, v%d" % (T+2, v[0], v[1], v[2]),
           "v_max3_f32 v%d, v%d, v%d, v%d" % (T+1, v[3], v[4], v[5]), "v_min3_f32 v%d, v%d, v%d, v%d" % (T+3, v[3], v[4], v[5])]
    for n, i in enumerate(range(6, 20, 2)):
        c = n & 1
        out += ["v_max3_f32 v%d, v%d, v%d, v%d" % (T+c, T+c, v[i], v[i+1]), "v_min3_f32 v%d, v%d, v%d, v%d" % (T+2+c, T+2+c, v[i], v[i+1])]
    out += ["v_max_f32 v%d, v%d, v%d" % (T, T, T+1), "v_min_f32 v%d, v%d, v%d" % (T+2, T+2, T+3),
            "v_mul_f32 v%d, %s, v%d" % (T, f32(-LOG2E), T), "v_mul_f32 v%d, %s, v%d" % (T+2, f32(LOG2E), T+2)]
    return out
def softmax_scalar(v, E, T):
    o = [(1, t) for t in minmax(v, T)]
    for i in range(20): o.append((1, "v_fma_f32 v%d, v%d, s%d, v%d" % (E+i, v[i], S_C2, T)))
    for i in range(20): o.append((1, "v_fma_f32 v%d, -v%d, s%d, v%d" % (v[i], v[i], S_C2, T+2)))
    for x in [E+i for i in range(20)] + v: o.append((2, "v_exp_f32 v%d, v%d" % (x, x)))
    e = [E+i for i in range(20)]
    for c, (src, d) in enumerate(((e, T), (v, T+2))):
        o += [(1, "v_add_f32 v%d, v%d, v%d" % (d, src[0], src[1])), (1, "v_add_f32 v%d, v%d, v%d" % (d+1, src[2], src[3]))]
    for i in range(4, 20, 2):
        for src, d in ((e, T), (v, T+2)):
            o += [(1, "v_add_f32 v%d, v%d, v%d" % (d, d, src[i])), (1, "v_add_f32 v%d, v%d, v%d" % (d+1, d+1, src[i+1]))]
    o += [(1, "v_add_f32 v%d, v%d, v%d" % (T, T, T+1)), (1, "v_add_f32 v%d, v%d, v%d" % (T+2, T+2, T+3)),
          (2, "v_rcp_f32 v%d, v%d" % (T, T)), (2, "v_rcp_f32 v%d, v%d" % (T+2, T+2))]
    for x in e: o.append((1, "v_mul_f32 v%d, v%d, v%d" % (x, x, T)))
    for x in v: o.append((1, "v_mul_f32 v%d, v%d, v%d" % (x, x, T+2)))
    o += [(1, t) for t in pack_inplace(v, E)]
    return o

PHB = 102400; KVB = PHB + 20480; RED = PHB
def tail(k, nu, pre, late, bolate, MF, presig=None, reducer=False):
    nsig = nu
    if cfg.X_END:
        if presig: presig()
        k("s_endpgm"); return
    if not presig: k.flush_counters()
    stamp(k, 6)
    def ch():
        k("s_lshr_b32 s82, s%d, 1" % S_M64); k("s_mul_i32 s82, s82, %d" % cfg.CS)
        poll_issue(k, S_CNT, "s82", "h_ok")
    if not presig: ch()
    k("v_and_b32 v24, 15, v0"); k("v_lshrrev_b32 v25, 4, v0")
    k("s_mul_i32 s%d, s%d, %d" % (S_T0, S_M64, 74*4096))
    srd(k, SRD_X, P_WS, A2_OFF, 74*4096, S_T0)
    k("s_add_u32 s80, s%d, 20" % S_W); k("s_lshl_b32 s80, s80, 12")
    VA = 26
    for j in range(4):
        k("s_add_u32 s75, s%d, %d" % (S_W, j)); k("s_and_b32 s75, s75, 3"); k("s_lshl_b32 s75, s75, 10")
        k("v_add_u32 v%d, s75, v%d" % (VA+j, V_L16))
    A0 = 64
    XD = 0 if reducer else (cfg.XD if nu else 4)
    def af(i): return 192 + 16*i if i < XD else 144 + ((i - XD) % 3)*16
    TO = (1, 2, 3, 0)
    def a_load(i, j):
        k.vm("buffer_load_dwordx4 %s, v%d, s[%d:%d], s80 offen%s" % (vr(af(i)+4*j,4), VA+j, SRD_X, SRD_X+3, LSC), ("A", i, j))
        if j == TO[3]: k("s_add_u32 s80, s80, %d" % (4*4096))
    def setup(q):
        T0, T1, T2 = 5, 8, 9
        srd(q, SRD_W1, P_WS, G_OFF, G_SZ)
        srd(q, SRD_P, P_WS, PQ_OFF, PQ_SZ)
        srd(q, SRD_W0, P_WS, KVF_OFF, 16*4096)
        srd(q, SRD_O, P_WS, A2_OFF, A2_SZ)
        q("v_lshlrev_b32 v6, 2, v24"); q("v_lshlrev_b32 v7, 4, v24")
        q("s_mul_i32 s72, s%d, %d" % (S_OH, 2*128*1280))
        q("s_lshl_b32 s75, s%d, 2" % S_OMT); q("s_add_u32 s75, s75, s%d" % S_W); q("s_mul_i32 s81, s75, 2560")
        q("s_add_u32 s81, s81, s72"); q("s_add_u32 s101, s81, %d" % (128*1280))
        q("s_lshl_b32 s%d, s75, 7" % S_T2)
        q("s_lshl_b32 s75, s%d, 1" % S_OMT)
        q("v_min_u32 v17, 1, v0"); q("v_mul_u32_u24 v17, %d, v17" % (2*nu-1)); q("v_add_u32 v17, s75, v17"); q("v_mul_u32_u24 v17, 171, v17"); q("v_lshrrev_b32 v17, 9, v17")
        q("s_lshr_b32 s75, s%d, 2" % S_OH); q("s_mul_i32 s75, s75, 12"); q("s_add_u32 s75, s75, %d" % C_P)
        q("v_add_u32 v17, s75, v17"); q("v_mul_u32_u24 v17, %d, v17" % cfg.CS)
        q("v_mov_b32 v30, 0x7fffffff")
        q("s_mul_i32 s72, s%d, 5" % S_OH)
        for dst, add, nvalid in ((12, 0, 3), (13, 3, 2)):
            q("v_add_u32 v%d, s72, v25" % T2)
            if add: q("v_add_u32 v%d, %d, v%d" % (T2, add, T2))
            q("v_lshrrev_b32 v%d, 2, v%d" % (T0, T2))
            q("v_lshlrev_b32 v%d, 12, v%d" % (T0, T0))
            q("v_and_b32 v%d, 3, v%d" % (T1, T2))
            q("v_lshl_add_u32 v%d, v%d, 8, v%d" % (T0, T1, T0))
            q("v_lshl_add_u32 v%d, v24, 4, v%d" % (T0, T0))
            q("v_cmp_gt_u32 vcc, %d, v25" % nvalid)
            q("v_cndmask_b32 v%d, v30, v%d, vcc" % (dst, T0))
        q("s_lshl_b32 s73, s%d, 1" % S_OMT); q("s_add_u32 s73, s73, s%d" % S_C)
        q("s_mul_i32 s73, s73, %d" % (74*4096))
        q("s_lshl_b32 s75, s%d, 11" % S_RH); q("s_add_u32 s73, s73, s75")
        q("s_lshl_b32 s74, s%d, 2" % S_OH); q("s_add_u32 s74, s74, s%d" % S_W); q("s_lshl_b32 s74, s74, 10")
        q("v_bfe_u32 v%d, v0, 2, 2" % T0); q("v_and_b32 v%d, 3, v0" % T1)
        q("v_lshl_add_u32 v%d, v%d, 3, v%d" % (T2, T0, T1))
        for hd in range(2):
            for i in range(3):
                d = 18 + hd*3 + i
                if i == 2: q("v_mov_b32 v%d, %d" % (d, KVB + 1600 + hd*1680))
                else:
                    q("v_add_u32 v16, %d, v%d" % (4*i + 4*hd, T2)); q("v_min_u32 v16, 20, v16")
                    if hd == 1 and i == 0:
                        q("v_cmp_eq_u32 vcc, 2, v%d" % T0); q("v_cndmask_b32 v16, v16, v%d, vcc" % T1)
                    q("v_mul_u32_u24 v16, 80, v16")
                    q("v_add_u32 v%d, %d, v16" % (d, KVB + hd*1680))
        q("v_cmp_eq_u32 s[78:79], 0, v25")
        q("v_cmp_eq_u32 s[76:77], 2, v25")
        q("v_mov_b32 v30, %d" % (KVB + 3584 - 64))
        q("s_lshl_b32 s75, s%d, 10" % S_W); q("s_add_u32 s75, s75, %d" % KVB); q("v_add_u32 v10, s75, v%d" % V_L16)
    def setup0(q):
        srd(q, SRD_W1, P_WS, G_OFF, G_SZ)
        q("v_lshlrev_b32 v6, 2, v24")
    su = [t for _, t in capture(setup if nu else setup0)]
    fd = Feed(k, [])
    if presig:
        for t in su: k(t)
        su = []
        presig()
        fd.q += pre[:cfg.FPRE]; pre = pre[cfg.FPRE:]
        fd.emit(max(0, len(fd.q) - 4)); ch(); fd.drain()
    stamp(k, 8)
    poll_check(k, S_CNT, 9, "h_ok")
    stamp(k, 9)
    for i in range(3 + XD):
        for j in TO: a_load(i, j)
    for t in su: k(t)
    def sent(regs, t):
        k("v_max3_u32 v%d, v%d, v%d, v%d" % (t, regs[0], regs[1], regs[2]))
        rest = regs[3:]
        while len(rest) >= 2:
            k("v_max3_u32 v%d, v%d, v%d, v%d" % (t, t, rest[0], rest[1])); rest = rest[2:]
        if rest: k("v_max_u32 v%d, v%d, v%d" % (t, t, rest[0]))
    def do_reduce():
        e = k.newlabel("Lnr")
        sv = list(k.vmq)
        srd(k, SRD_W0, P_WS, KVF_OFF, 16*4096)
        k("s_lshl_b32 s74, s%d, 2" % S_OH); k("s_add_u32 s74, s74, s%d" % S_W); k("s_lshl_b32 s74, s74, 10")
        stamp(k, 17)
        srd(k, SRD_T, P_WS, KVP_OFF, KVP_SZ)
        k("s_lshl_b32 s75, s%d, 10" % S_W)
        k("v_add_u32 v11, s75, v%d" % V_L16)
        k("v_mov_b32 v14, 0x7fffffff")
        k("v_cmp_gt_u32 vcc, 3360, v11")
        k("v_cndmask_b32 v11, v14, v11, vcc")
        k("s_mul_i32 s72, s%d, %d" % (S_OH, 16*KVPS))
        SEL = 240
        k("v_bfe_u32 v5, v0, 2, 2"); k("v_and_b32 v8, 3, v0")
        k("v_and_b32 v14, 1, v0"); k("v_lshlrev_b32 v14, 4, v14")
        k("v_mov_b32 v15, 0x3f80"); k("v_lshlrev_b32 v14, v14, v15")
        k("v_cmp_eq_u32 vcc, v5, v25"); k("v_cndmask_b32 v14, 0, v14, vcc")
        k("v_cmp_gt_u32 vcc, 2, v8"); k("v_cndmask_b32 v15, 0, v14, vcc"); k("v_cndmask_b32 v14, v14, 0, vcc")
        for r, src in ((120, "v15"), (121, "v14"), (122, "0"), (123, "0"), (124, "0"), (125, "0"), (126, "v15"), (127, "v14")):
            k("v_accvgpr_write_b32 a%d, %s" % (r, src))
        l = k.newlabel("Lkp"); d = k.newlabel("Lkd")
        k("s_mov_b32 s95, 0x4000")
        k.label(l)
        k.vmq = []
        RA = 248
        def kr(p): return 192 + 4*(p % 14)
        def kl(p):
            k("s_add_u32 s75, s72, %d" % (p*KVPS))
            k.vm("buffer_load_dwordx4 %s, v11, s[%d:%d], s75 offen%s" % (vr(kr(p),4), SRD_T, SRD_T+3, SC), ("kp", p))
        for p in range(14): kl(p)
        for p in range(16):
            k.wait(vm=("kp", p))
            for h in range(2): k("v_mfma_f32_16x16x32_bf16 %s, %s, %s, %s" % (vr(RA+4*h,4), ar(120+4*h,4), vr(kr(p),4), vr(RA+4*h,4) if p else "0"))
            r = [kr(p)+i for i in range(4)]
            sent(r if p == 0 else [9] + r, 9)
            if p < 2: kl(14+p)
        k("v_cmp_eq_u32 vcc, -1, v9")
        k("s_sub_u32 s95, s95, 1")
        k("s_cmp_eq_u64 vcc, 0")
        k("s_cbranch_scc1 %s" % d)
        k("s_cmp_lg_u32 s95, 0")
        k("s_cbranch_scc1 %s" % l)
        k.label(d)
        k("s_nop 3")
        for i in range(4): k("v_cvt_pk_bf16_f32 v%d, v%d, v%d" % (192+i, RA+2*i, RA+1+2*i))
        k("buffer_store_dwordx4 v[192:195], v%d, s[%d:%d], s74 offen%s" % (V_L16, SRD_W0, SRD_W0+3, SC))
        stamp(k, 18)
        k.label(e)
        k.vmq = sv
    fl = Feed(k, list(pre) + b_items(late) + bolate)
    bolate = []
    lds = []
    cnt = [0]
    order = [(i, j) for i in range(11) for j in TO] + [(i, j) for j in TO for i in range(11, 14)]
    def main():
        for (i, j) in order:
            pend = set(t[2][1] for t in fl.q if isinstance(t[2], tuple) and t[2][0] == "B")
            assert not (pend & set(range(i*5, i*5+5))), (i, pend)
            k.wait(vm=[("A", i, j)] + [("B", i*5+ct) for ct in range(5)])
            for ct in range(5):
                a = A0 + (j*5+ct)*4
                k("v_mfma_f32_16x16x32_bf16 %s, %s, %s, %s" % (vr(a,4), R(bloc(i*5+ct),4), vr(af(i)+4*j,4), vr(a,4) if i else "0"))
                cnt[0] += 1
                if lds: emit1(k, lds.pop(0))
                if ct == 4 and i >= XD and i + 3 < 14: a_load(i + 3, j)
                if ct in cfg.FLAT: fl.emit(1)
                yield 1
    g = main()
    def run(n):
        for _ in range(n): next(g, None)
    def upto(m): run(max(0, m - cnt[0]))
    def mix(items, per):
        for i, it in enumerate(items):
            emit1(k, it)
            if i % per == per-1: run(1)
    if reducer:
        upto(cfg.MK); do_reduce()
    if nu:
        run(5); poll_issue(k, P_DBG, D_S3, "s3"); run(25)
        poll_check(k, P_DBG, N_S3, "s3", sleep=8, barrier=False)
    if nu:
        def oa(i): return bloc(i)
        MF = max(MF, 100)
        upto(max(MF - 60, 20*XD))
        k("v_mov_b32 v%d, v17" % V_PT); _pload(k, S_CNT, "p_ok")
        upto(max(MF - 35, 80))
        poll_check(k, S_CNT, 1, "p_ok"); stamp(k, 7)
        UO = 8 if cfg.U2 else 0
        def pql(u):
            it = ["s_add_u32 s81, s81, 10240", "s_add_u32 s101, s101, 10240"] if u else []
            for hd in range(2):
                so = ("s81", "s101")[hd]
                for r2 in range(2):
                    it.append(("vm", "buffer_load_dwordx4 %s, v%d, s[%d:%d], %s offen offset:%d%s" % (R(oa(12+UO*u+hd*4+2*r2),4), V_L16, SRD_P, SRD_P+3, so, r2*1280, SC), ("pq", u)))
                    it.append(("vm", "buffer_load_dwordx4 %s, v7, s[%d:%d], %s offen offset:%d%s" % (R(oa(13+UO*u+hd*4+2*r2),4), SRD_P, SRD_P+3, so, r2*1280+1024, SC), ("pq", u)))
            return it
        gl = [("vm", "buffer_load_dword v%d, v6, s[%d:%d], s%d offen offset:%d%s" % (250+2*u+r2, SRD_W1, SRD_W1+3, S_T2, u*512 + r2*64, SC), ("pq", 0)) for u in range(nu) for r2 in range(2)]
        mix(pql(0) + gl, 1)
        ld = "buffer_load_dwordx4 v[192:195], v%d, s[%d:%d], s74 offen%s" % (V_L16, SRD_W0, SRD_W0+3, SC)
        k.vm(ld, "kf"); run(cfg.KLAT); upto(MF)
        stamp(k, 10)
        l = k.newlabel("Lkf"); d = k.newlabel("Lkg")
        k.wait(vm="kf")
        k("s_mov_b32 s95, 0x8000")
        k.label(l)
        sent([192, 193, 194, 195], 196)
        k("v_cmp_eq_u32 vcc, -1, v196")
        k("s_sub_u32 s95, s95, 1")
        k("s_cmp_eq_u64 vcc, 0")
        k("s_cbranch_scc1 %s" % d)
        k("s_sleep %d" % cfg.SLP)
        k(ld)
        k("s_waitcnt vmcnt(0)")
        k("s_cmp_lg_u32 s95, 0")
        k("s_cbranch_scc1 %s" % l)
        k.label(d)
        stamp(k, 11)
        k.lg("ds_write_b128 v10, v[192:195]", "kw")
        run(4)
        k.wait(lg="all"); k("s_barrier"); stamp(k, 28)
        it = []
        for hd in range(2):
            for i in range(3):
                it += ["v_lshl_add_u32 v15, v25, 4, v%d" % (18+hd*3+i), "v_cndmask_b32 v14, v30, v%d, s[78:79]" % (18+hd*3+i),
                       ("lg", "ds_read_b128 %s, v15" % R(oa(hd*6+2*i),4), ("o", 0, hd)), ("lg", "ds_read_b128 %s, v14 offset:64" % R(oa(hd*6+2*i+1),4), ("o", 0, hd))]
        mix(it, cfg.MIX)
        run(4)
        if cfg.U2 and nu > 1:
            upto(120); mix(pql(1), 2)
        def brd(u): return [] if cfg.U2 else pql(u)
        KO = 192
        for u in range(nu):
            for hd in range(2):
                k.wait(lg=("o", u, hd), vm=("pq", u))
                for s in range(2):
                    for r2 in range(2):
                        for i in (2, 0, 1):
                            a = KO + (hd*2+r2)*12 + i*4
                            k("v_mfma_f32_16x16x32_bf16 %s, %s, %s, %s" % (vr(a,4), R(oa(hd*6+2*i+s),4), R(oa(12+UO*u+hd*4+2*r2+s),4), vr(a,4) if s else "0"))
            it = brd(u+1) if u + 1 < nu else []
            for q in range(4): it.append("v_add_f32 v%d, %s, v%d" % (KO+q*12+8, f32(1e-6), KO+q*12+8))
            for q in range(4): it.append("v_rcp_f32 v%d, v%d" % (KO+q*12+8, KO+q*12+8))
            for q in range(4): it.append("v_mul_f32 v%d, v%d, v%d" % (KO+q*12+8, KO+q*12+8, 250+2*u+(q & 1)))
            for r2 in range(2):
                a0 = KO + r2*12; a1 = KO + (2+r2)*12
                for a in (a1, a0):
                    for i in range(8): it.append("v_mul_f32 v%d, v%d, v%d" % (a+i, a+i, a+8))
                    for i in range(4): it.append("v_cvt_pk_bf16_f32 v%d, v%d, v%d" % (a+8+i, a+2*i, a+2*i+1))
                    if a == a1: it.append(("vm", "buffer_store_dwordx4 %s, v13, s[%d:%d], s73 offen offset:%d%s" % (vr(a1+8,4), SRD_O, SRD_O+3, r2*1024, SC), "st"))
                it.append("v_cndmask_b32 v%d, v%d, v%d, s[76:77]" % (a0+10, a0+10, a1+8))
                it.append("v_cndmask_b32 v%d, v%d, v%d, s[76:77]" % (a0+11, a0+11, a1+9))
                it.append(("vm", "buffer_store_dwordx4 %s, v12, s[%d:%d], s73 offen offset:%d%s" % (vr(a0+8,4), SRD_O, SRD_O+3, r2*1024, SC), "st"))
            if u + 1 < nu: it.append("s_add_u32 s73, s73, %d" % (2*74*4096))
            mix(it, cfg.MIX * nu)
        stamp(k, 29)
        run(cfg.OSD)
        if cfg.BPR: fl.drain()
        k.wait(vm=["st", "BO"])
        d = k.newlabel("Lsg")
        k("s_add_u32 s82, s%d, %d" % (S_OMT, C_O)); k("s_mul_i32 s82, s82, %d" % cfg.CS)
        k("s_barrier")
        k("s_cmp_lg_u32 s%d, 0" % S_W)
        k("s_cbranch_scc1 %s" % d)
        k("v_mul_u32_u24 v%d, %d, v0" % (V_PT, cfg.CS)); k("v_add_u32 v%d, s82, v%d" % (V_PT, V_PT))
        k("v_mov_b32 v31, 1")
        k("s_mov_b64 exec, %d" % ((1 << nsig) - 1))
        k("global_atomic_add v%d, v31, s[%d:%d] sc1" % (V_PT, S_CNT, S_CNT+1))
        k("s_mov_b64 exec, -1")
        k.label(d)
        stamp(k, 12)
        fl.q += bolate
    q = K()
    for j in range(1, 4):
        q("s_add_u32 s75, s%d, %d" % (S_W, j)); q("s_and_b32 s75, s75, 3"); q("s_mul_i32 s75, s75, 15360")
        q("s_add_u32 s75, s75, %d" % (RED + (j-1)*5120))
        q("v_add_u32 v%d, s75, v%d" % (10+j, V_L16))
    q("s_mul_i32 s75, s%d, 15360" % S_W); q("s_add_u32 s75, s75, %d" % RED)
    q("v_add_u32 v8, s75, v%d" % V_L16)
    q("v_add_u32 v9, 51200, v%d" % V_L16)
    srd(q, SRD_O, P_OUT, 0, 2048*1280)
    q("s_lshl_b32 s81, s%d, 6" % S_M64); q("s_lshl_b32 s75, s%d, 4" % S_W); q("s_add_u32 s81, s81, s75")
    q("s_lshl_b32 s74, s81, 2")
    q("s_mul_i32 s81, s81, 1280"); q("s_mul_i32 s75, s%d, 160" % S_NT); q("s_add_u32 s81, s81, s75")
    q("v_mul_u32_u24 v16, 1280, v24"); q("v_lshl_add_u32 v16, v25, 3, v16")
    q("s_lshr_b32 s82, s%d, 1" % S_M64); q("s_add_u32 s82, s82, %d" % C_O); q("s_mul_i32 s82, s82, %d" % cfg.CS)
    q("s_mov_b32 s73, 0")
    if cfg.WIDE:
        q("s_mul_i32 s75, s%d, 15360" % S_W); q("s_add_u32 s75, s75, %d" % RED)
        q("v_mul_u32_u24 v17, 176, v24"); q("v_lshl_add_u32 v17, v25, 3, v17"); q("v_add_u32 v17, s75, v17")
        q("v_mov_b32 v30, 0x7fffffff")
        for i in range(3):
            q("v_add_u32 v14, %d, v0" % (64*i)); q("v_mul_u32_u24 v15, 205, v14"); q("v_lshrrev_b32 v15, 11, v15")
            q("v_mul_u32_u24 v7, 10, v15"); q("v_sub_u32 v14, v14, v7"); q("v_lshlrev_b32 v14, 4, v14")
            q("v_mul_u32_u24 v7, 176, v15"); q("v_add3_u32 v%d, v7, v14, s75" % (18+i))
            q("v_mul_u32_u24 v7, 1280, v15"); q("v_add_u32 v%d, v7, v14" % (21+i))
        q("v_cmp_gt_u32 vcc, 32, v0\nv_cndmask_b32 v23, v30, v23, vcc")
    mix([t for _, t in q.items], 2)
    def bol(n): return bloc(n % 70)
    def bo_read(n):
        off = n*1024
        return ("lg", "ds_read_b128 %s, v%d offset:%d" % (R(bol(n), 4), V_L16 if off < 51200 else 9, off % 51200), ("bo", n // 5))
    nr = 0
    if cfg.BPR:
        if not nu:
            while fl.q: run(1)
            run(cfg.BPW)
            k.wait(vm="BO"); k("s_barrier")
        while cnt[0] < min(cfg.MO, 238) - 20:
            if nr < min(cnt[0] // 20, 11) * 5 and not lds: lds.append(bo_read(nr)); nr += 1
            run(1)
    upto(min(cfg.MO, 238) - 20)
    fl.drain()
    if cfg.MO < 280 and cnt[0] <= 238:
        poll_issue(k, S_CNT, "s82", "o_ok")
        while cfg.BPR and cnt[0] < cfg.MO:
            if nr < min(cnt[0] // 20, 11) * 5 and not lds: lds.append(bo_read(nr)); nr += 1
            run(1)
        upto(cfg.MO)
    def of(ks): return 192 + 4*ks if ks < 16 else 148 + 16*(ks-16) if ks < 19 else 152
    def ao(ks): return ("s_add_u32 s73, s73, 4096" if ks else None, "buffer_load_dwordx4 %s, v%d, s[%d:%d], s73 offen%s" % (vr(of(ks),4), VA, SRD_X, SRD_X+3, LSC), ("Ao", ks))
    def red_w(j): return [("lg", "ds_write_b128 v%d, %s offset:%d" % (10+j, vr(A0+(j*5+ct)*4,4), ct*1024), "rw") for ct in range(5)]
    def oready():
        stamp(k, 13)
        poll_check(k, S_CNT, 16, "o_ok")
        stamp(k, 14)
        k.vm("buffer_load_dword v5, v6, s[%d:%d], s74 offen%s" % (SRD_W1, SRD_W1+3, SC), "g2")
        fa = Feed(k, [ao(ks) for ks in range(20)])
        fa.emit(6)
        return fa
    rr = [("lg", "ds_read_b128 %s, v8 offset:%d" % (vr(A0+20+4*j,4), j*1024), ("r", j // 5)) for j in range(15)]
    late_o = cfg.MO >= 280 or cnt[0] > 238
    if not late_o:
        fa = oready()
        fl.q = fa.q[:10]; fa.q = fa.q[10:]
        free = min(cnt[0] // 20, 11) * 5
        for c in (238, 253, 268, 280):
            n = min(free - nr, c - cnt[0] - len(lds))
            lds += [bo_read(x) for x in range(nr, nr + max(n, 0))]; nr += max(n, 0)
            upto(c)
            if c < 280: lds[:0] = red_w((238, 253, 268).index(c) + 1)
        weave(k, [], lds); del lds[:]
        fl.drain()
        fa.drain()
        k.wait(vm="g2")
        k("v_sub_f32 v10, 1.0, v5")
        for j in range(10): k("v_pk_mul_f32 %s, %s, v[10:11] op_sel_hi:[1,0]" % (vr(A0+2*j,2), vr(A0+2*j,2)))
        k.wait(lg="rw")
        k("s_barrier")
        while nr < 15:
            emit1(k, bo_read(nr)); nr += 1
    else:
        for j, c in enumerate((238, 253, 268)):
            upto(c); lds += red_w(j+1)
        upto(280)
        weave(k, [], lds); del lds[:]
        k.wait(lg="rw", vm="BO")
        k("s_barrier")
        weave(k, [], rr); del rr[:]
        poll_issue(k, S_CNT, "s82", "o_ok")
        for sl in range(3):
            k.wait(lg=("r", sl))
            weave(k, [], [bo_read(x) for x in range(nr, min(70, nr+10))]); nr = min(70, nr+10)
            for j in range(10): k("v_pk_add_f32 %s, %s, %s" % (vr(A0+2*j,2), vr(A0+2*j,2), vr(A0+20+20*sl+2*j,2)))
        weave(k, [], [bo_read(x) for x in range(nr, cfg.BPRE)]); nr = max(nr, cfg.BPRE)
        fa = oready()
        fa.emit(6)
        weave(k, [], [bo_read(x) for x in range(nr, 70)]); nr = 70
        fa.drain()
        k.wait(vm="g2")
        k("v_sub_f32 v10, 1.0, v5")
        for j in range(10): k("v_pk_mul_f32 %s, %s, v[10:11] op_sel_hi:[1,0]" % (vr(A0+2*j,2), vr(A0+2*j,2)))
    for ks in range(20):
        k.wait(vm=("Ao", ks), lg=("bo", ks))
        mf = ["v_mfma_f32_16x16x32_bf16 %s, %s, %s, %s" % (vr(A0+ct*4,4), R(bol(ks*5+ct), 4), vr(of(ks),4), vr(A0+ct*4,4)) for ct in range(5)]
        fill = [bo_read(n) for n in range(nr, min(100, nr+5, ks*5+70))]; nr += len(fill)
        while len(fill) < 5 and rr: fill.append(rr.pop(0))
        weave(k, mf, fill, per=1)
    if not late_o:
        weave(k, [], rr)
        k.wait(lg="all")
        for j in range(10): k("v_pk_add_f32 %s, %s, %s" % (vr(A0+20+2*j,2), vr(A0+20+2*j,2), vr(A0+40+2*j,2)))
        for j in range(10): k("v_pk_add_f32 %s, %s, %s" % (vr(A0+20+2*j,2), vr(A0+20+2*j,2), vr(A0+60+2*j,2)))
    for ct in range(5):
        a = A0 + ct*4
        for h in range(2 if not late_o else 0): k("v_pk_fma_f32 %s, %s, v[10:11], %s op_sel_hi:[1,0,1]" % (vr(a+2*h,2), vr(a+20+2*h,2), vr(a+2*h,2)))
        k("v_cvt_pk_bf16_f32 v%d, v%d, v%d" % (A0+40+2*ct, a, a+1)); k("v_cvt_pk_bf16_f32 v%d, v%d, v%d" % (A0+41+2*ct, a+2, a+3))
        if cfg.WIDE: k.lg("ds_write_b64 v17, %s offset:%d" % (vr(A0+40+2*ct,2), ct*32))
        else: k.vm("buffer_store_dwordx2 %s, v16, s[%d:%d], s81 offen offset:%d%s" % (vr(A0+40+2*ct,2), SRD_O, SRD_O+3, ct*32, cfg.OUTF), "st")
    if cfg.WIDE:
        for i in range(3): k.lg("ds_read_b128 %s, v%d" % (vr(A0+4*i,4), 18+i), ("w", i))
        for i in range(3):
            k.wait(lg=("w", i))
            k.vm("buffer_store_dwordx4 %s, v%d, s[%d:%d], s81 offen%s" % (vr(A0+4*i,4), 21+i, SRD_O, SRD_O+3, cfg.OUTF), "st")
    stamp(k, 30)
    stamp_out(k)
    k("s_endpgm")

def kernel(k):
    kernel_header(k, NAME)
    astamp(k, 0)
    k("s_load_dwordx16 s[8:23], s[0:1], 0")
    k("s_load_dwordx8 s[24:31], s[0:1], 64")
    k("s_cmp_ge_u32 s2, 256")
    k("s_cbranch_scc1 L_end")
    if cfg.CPF: code_prefetch(k, V_JUNK)
    k("v_lshrrev_b32 v2, 6, v0")
    k("v_and_b32 v0, 63, v0")
    k("v_readfirstlane_b32 s%d, v2" % S_W)
    if cfg.STAMP: k("v_mov_b32 v1, 0")
    stamp(k, 0)
    if cfg.EARLY0: k("v_writelane_b32 v1, s98, 0")
    if cfg.MAP == 2:
        k("s_bfe_u32 s%d, s2, 0x40003" % S_MT)
        k("s_and_b32 s%d, s2, 7" % S_T0)
        k("s_lshl_b32 s%d, s%d, 3" % (S_T0, S_T0))
        k("s_bfe_u32 s%d, s2, 0x10007" % S_T1)
        k("s_lshl_b32 s%d, s%d, 2" % (S_T1, S_T1))
        k("s_add_u32 s%d, s%d, s%d" % (S_T0, S_T0, S_T1))
        tab = cfg.ORDER
        k("s_mov_b32 s74, 0x%x" % sum(tab[i] << (4*i) for i in range(8))); k("s_mov_b32 s75, 0x%x" % sum(tab[8+i] << (4*i) for i in range(8)))
        k("s_lshr_b64 s[74:75], s[74:75], s%d" % S_T0)
        k("s_and_b32 s%d, s74, 15" % S_TY)
    else:
        k("s_and_b32 s%d, s2, 7" % S_T0)
        k("s_lshr_b32 s%d, s2, 3" % S_T1)
        k("s_lshl_b32 s74, s%d, 3" % S_T0); k("s_add_u32 s74, s74, s%d" % S_T1); k("s_add_u32 s74, s74, %d" % (9*16 - 18))
        k("s_lshl_b32 s75, s%d, 1" % S_T0); k("s_add_u32 s75, s75, s%d" % S_T1)
        k("s_add_u32 s76, s75, %d" % (8*16 - 16))
        k("s_cmp_lt_u32 s%d, 18" % S_T1); k("s_cselect_b32 s74, s76, s74")
        k("s_lshl_b32 s76, s%d, 4" % S_T0); k("s_add_u32 s76, s76, s%d" % S_T1)
        k("s_cmp_lt_u32 s%d, 16" % S_T1); k("s_cselect_b32 s74, s76, s74")
        k("s_and_b32 s%d, s74, 15" % S_MT)
        k("s_lshr_b32 s%d, s74, 4" % S_TY)
    k("s_and_b32 s%d, s%d, 1" % (S_RH, S_W))
    k("s_lshr_b32 s%d, s%d, 1" % (S_C, S_W))
    k("v_lshlrev_b32 v%d, 4, v0" % V_L16)
    k("s_cmp_ge_u32 s%d, 26" % S_T1); k("s_cbranch_scc1 L_qa")
    k("s_mov_b32 s75, 1280")
    k("s_mov_b32 s76, 1280")
    k("s_sub_u32 s79, s%d, 9" % S_TY)
    k("s_mul_i32 s%d, s79, 320" % S_T1)
    k("s_and_b32 s%d, s%d, 127" % (S_DELTA, S_T1))
    k("s_sub_u32 s%d, s%d, s%d" % (S_T1, S_T1, S_DELTA))
    k("s_add_u32 s75, s75, s%d" % S_T1)
    k("s_add_u32 s76, s76, s75")
    k("s_mul_i32 s%d, s%d, 384" % (S_T1, S_TY))
    k("s_mov_b32 s%d, 3840" % S_STRIDE)
    k("s_cmp_lt_u32 s%d, 9" % S_TY)
    k("s_cselect_b32 s75, s%d, s75" % S_T1)
    k("s_cselect_b32 s76, s%d, s76" % S_T1)
    k("s_cselect_b32 s%d, 3456, s%d" % (S_STRIDE, S_STRIDE))
    k("s_mul_i32 s%d, s%d, 640" % (S_T1, S_STRIDE))
    k("s_sub_u32 s77, s%d, s75" % S_T1)
    k("s_sub_u32 s78, s%d, s76" % S_T1)
    gemm_setup(k)
    k("s_mul_i32 s%d, s%d, %d" % (S_T0, S_MT, 128*1280))
    astamp(k, 1)
    k("s_waitcnt lgkmcnt(0)")
    astamp(k, 2)
    k("s_cmp_lt_u32 s%d, 9" % S_TY)
    k("s_cselect_b64 s[16:17], s[%d:%d], s[%d:%d]" % (P_WG, P_WG+1, P_WQKV, P_WQKV+1))
    k("s_cselect_b64 s[%d:%d], s[%d:%d], s[%d:%d]" % (P_WU, P_WU+1, P_WU, P_WU+1, P_WQKV, P_WQKV+1))
    srd(k, SRD_X, P_X, 0, 128*1280, S_T0)
    stamp(k, 1)
    Q = dma_queue()
    issue_now(k, Q, 4)
    srd(k, SRD_W0, 16, 0, "s77", 75)
    srd(k, SRD_W1, P_WU, 0, "s78", 76)
    issue_now(k, Q, 6)
    astamp(k, 3)
    touch_setup(k)
    for it in touch_items(-1):
        if it[0]: k(it[0])
        k.vm(it[1], it[2])
    sv0 = list(k.vmq)
    aflush(k)
    k("s_cmp_ge_u32 s%d, 9" % S_TY); k("s_cbranch_scc1 L_att")
    ps, rest = ffn_role(k, Q)
    sv = (list(k.vmq), list(k.lgq))
    k("s_cmp_ge_u32 s%d, 8" % S_TY); k("s_cbranch_scc1 L_f1")
    tail(k, 1 if cfg.UNI else 2, list(rest), [], [], cfg.MF, presig=ps)
    k.label("L_f1")
    k.vmq, k.lgq = sv
    tail(k, cfg.UNI, list(rest), [], [], 100, presig=ps, reducer=True)
    k.label("L_att")
    k("s_lshl_b32 s79, s79, 1")
    k("s_add_u32 s79, s79, s%d" % S_C)
    k("s_mul_i32 s80, s79, 3200")
    srd(k, SRD_P, P_WPHI, 0, 3200, 80)
    k.flush_counters(); k.vmq = list(sv0)
    att_loop(k, Q)
    kv_role(k)
    tail(k, cfg.UNI, [], list(range(cfg.KVN, 70)), bo_items(), cfg.MFK)
    k.flush_counters()
    k.label("L_qa")
    k.vmq = ["pf"]
    qa_role(k)
    tail(k, cfg.UNI, [], list(range(18, 27)) + list(range(62, 70)), bo_items()[cfg.BOQ:], cfg.MFK)
    k.label("L_end")
    k("s_endpgm")

DOC = """; One fused launch, 256 workgroups (one per CU, 4 waves, 512 registers), generated by a script of my own.
;   the same launch); sc1 loads on the reading side; every spin is bounded."""
def build(fn, listform=True):
    k = K()
    k.raw(open("header.txt").read().rstrip())
    if listform: k.raw("; @launch kernel=%s grid=(256,1,1) block=(256,1,1) lds=163840" % NAME)
    else: k.raw("; @launch grid=(256,1,1) block=(256,1,1) lds=163840")
    k.raw(DOC)
    k.raw('.amdgcn_target "amdgcn-amd-amdhsa--gfx950"')
    k.raw(".text")
    kernel(k)
    k.raw('.section .rodata,"a"')
    k.raw(kernel_desc(NAME, 512, 256))
    open(fn, "w").write(k.text())

if __name__ == "__main__":
    for a in sys.argv[2:]:
        if "=" in a:
            n, v = a.split("="); setattr(cfg, n, eval(v))
    if cfg.NOSC: LSC = ""
    if cfg.OUTF == 1: cfg.OUTF = " sc1"
    build(sys.argv[1], listform="single" not in sys.argv)
```

```python
import sys
from fw import *

A2_OFF = 0;          A2_SZ = 32*74*4096
B2_OFF = 0xA00000;   B2_SZ = 8*74*5120
PQ_OFF = 0x1800000;  PQ_SZ = 32*128*1280
KVP_OFF = 0x1000000; KVPS = 3584; KVP_SZ = 16*16*KVPS
G_OFF = 0x1200000;   G_SZ = 8192
CNT_OFF = 0x1300000
ST_OFF = 0x1400000
LOG2E = 1.4426950408889634
NAME = "gated_mix__linear_kernel_hedgehog__swiglu_ffn__prompt_kernel"

class Cfg:
    STAMP = 0; STG = 0
    MAXD = 11; N2 = 6; N3 = 10
    P2M = 4
    TW = [(-1,1,7),(1,8,6),(4,14,6)]
    TX = [(-1,1,3),(1,4,3),(4,7,3)]
    ORDER = [0, 9, 1, 10, 2, 11, 3, 12, 4, 13, 5, 14, 6, 7, 8, 15]
    PS1 = 10
    NBF = 40
    NBA = 32
    AUXT = 10
    AUXD = 3
    FFE = (2, 7)
    MK = 0
    KLAT = 15
    PER = 2
    BOF = 10
    KVB0 = 1
    TPER = 2
    BLP = 5
    ALIGN = 10
    AO0 = 6
    PKC = 0
    WIDE = 1
    PREW = 6
    PREN = 1
    QX = 0
    UNI = 0
    U2 = 1
    BTL = []
    MF1 = 120
    FPRE = 20
    MFK = 100
    X_LIGHT = 0
    AUXB = 70
    RBH = 0
    MF2 = 80
    MFQ = 120
    BPR = 1
    BPW = 40
    LORD = 0
    RSP = 0
    HP = (1, 5)
    QEARLY = 1
    AUXU = 0
    BT = 0
    BT2 = 0
    AUXNT = 1
    L2PF = 0
    PE1 = 20
    BOL = 3
    BOS = 0
    PSA = 16
    KVN = 62
    BPRE = 50
    RFIRST = 0
    MF = 120
    MAXD0 = 16
    BLK = 2
    PHS = 3
    AST = 0
    X_NOWAIT = 0
    X_NOO = 0
    X_NOB = 0
    X_END = 0
    X_NOA = 0
    MO = 238
    NOSC = 0
    NOMF = 0
    CS = 4096+256
    ONE = 1
    SLP = 2
    KI = 1
    MIX = 6
    FLAT = (1, 3)
    XD = 0
    BOQ = 5
    QPRE = 6
    FQ = (7, 10)
    OFIRST = 1
    OUTF = 1
    BOEARLY = 0
    QLAT = 40
    MAP = 3
    AORD = [9, 13, 10, 11, 14, 12]
    DBGWG = -1
    PADST = None
    PADMIN = 0
    CPF = 1
    TNT = 0
    NODMA = 0
    CYC = 0
    PADTY = None
    EARLY0 = 0
    KL2 = 40
    OSD = 20
cfg = Cfg()
SC = " sc1"
LSC = " sc1"

P_X, P_WQKV, P_WPHI, P_WO, P_WG, P_WU, P_WD, P_GW, P_OUT, P_DBG, P_WS = 8, 10, 12, 14, 18, 20, 22, 24, 26, 28, 30
S_W, S_RH, S_C, S_MT, S_TY, S_M64, S_NT, S_OH = 32, 33, 34, 35, 36, 37, 38, 39
SRD_X, SRD_W0, SRD_W1, SRD_O, SRD_P = 40, 44, 48, 52, 56
S_STRIDE, S_WOFF, S_WL, S_XL, S_T0, S_T1, S_T2, S_T3, S_DELTA, S_SIG = 60, 61, 62, 63, 64, 65, 66, 67, 68, 69
S_C2 = 70
S_OMT = 83; SRD_B = 84; S_BOFF = 88; S_BB = 89; S_CNT = 90; SRD_T = 96
V_L16, V_L16B, V_PT = 2, 3, 4
V_WD = 5; V_XD = 6; V_XR = 10; V_TA = 12; V_TW = 24; V_TX = 25; V_JUNK = 63; V_Z = 0
ACC0 = 64
WF0 = 256; XF0 = 256 + 96; GF0 = 256 + 88; GACC = 224
C_H, C_O, C_P = 0, 16, 32
N_S1 = 48; N_S3 = 4
KVF_OFF = KVP_OFF + KVP_SZ
SPARE = 147456
D_S1, D_S2, D_S3 = 0, 64, 128

def srd(k, d, b, off, nbytes, soff=None):
    if off or soff is not None:
        if soff is not None:
            k("s_add_u32 s%d, s%d, s%d" % (d, b, soff)); k("s_addc_u32 s%d, s%d, 0" % (d+1, b+1))
            if off:
                k("s_add_u32 s%d, s%d, 0x%x" % (d, d, off)); k("s_addc_u32 s%d, s%d, 0" % (d+1, d+1))
        else:
            k("s_add_u32 s%d, s%d, 0x%x" % (d, b, off)); k("s_addc_u32 s%d, s%d, 0" % (d+1, b+1))
        k("s_and_b32 s%d, s%d, 0xffff" % (d+1, d+1))
    else:
        k("s_mov_b32 s%d, s%d" % (d, b)); k("s_and_b32 s%d, s%d, 0xffff" % (d+1, b+1))
    if isinstance(nbytes, int): k("s_mov_b32 s%d, 0x%x" % (d+2, nbytes))
    else: k("s_mov_b32 s%d, %s" % (d+2, nbytes))
    k("s_mov_b32 s%d, 0x20000" % (d+3))

def stamp(k, i):
    if not cfg.STAMP or (cfg.AST and i != 15): return
    k("s_memtime s[92:93]" if cfg.STAMP == 2 else "s_memrealtime s[92:93]")
    k("s_waitcnt lgkmcnt(0)")
    k.lgq = []
    k("v_writelane_b32 v1, s92, %d" % i)
_ap = []
def astamp(k, idx):
    if not cfg.AST: return
    pair = (4, 6, 92, 94, 52, 54, 56, 58)[len(_ap)]
    k("s_memrealtime s[%d:%d]" % (pair, pair+1)); _ap.append((pair, idx))
def aflush(k):
    if not cfg.AST: return
    k("s_waitcnt lgkmcnt(0)"); k.lgq = []
    for p, i in _ap: k("v_writelane_b32 v1, s%d, %d" % (p, i))
    del _ap[:]
def stamp_out(k):
    if not cfg.STAMP: return
    k("s_waitcnt vmcnt(0)")
    stamp(k, 15)
    k("v_writelane_b32 v1, s%d, 16" % S_TY)
    srd(k, 40, P_WS, ST_OFF, 1024*128)
    k("s_lshl_b32 s92, s2, 2"); k("s_add_u32 s92, s92, s%d" % S_W); k("s_lshl_b32 s92, s92, 7")
    k("v_lshlrev_b32 v5, 2, v0")
    k("v_cmp_gt_u32 vcc, 32, v0")
    k("v_mov_b32 v6, 0x7fffffff")
    k("v_cndmask_b32 v5, v6, v5, vcc")
    k("buffer_store_dword v1, v5, s[40:43], s92 offen")
    if cfg.PADST is not None:
        k("v_readlane_b32 s94, v1, %d" % abs(cfg.PADST))
        k("v_readlane_b32 s95, v1, 0")
        k("s_max_u32 s94, s94, s95")
        if cfg.CYC:
            a, b = ((31, 25) if cfg.CYC == 1 else (24, 23))
            k("v_readlane_b32 s96, v1, %d" % a); k("v_readlane_b32 s97, v1, %d" % b)
            k("s_sub_u32 s96, s96, s97")
            if cfg.CYC == 1: k("s_lshr_b32 s96, s96, 2")
            else: k("s_lshl_b32 s96, s96, 2")
            k("s_add_u32 s94, s95, s96")
        if cfg.PADTY:
            k("s_cmp_lt_u32 s%d, %d" % (S_TY, cfg.PADTY[0])); k("s_cselect_b32 s94, s95, s94")
            k("s_cmp_gt_u32 s%d, %d" % (S_TY, cfg.PADTY[1])); k("s_cselect_b32 s94, s95, s94")
        if cfg.PADMIN:
            k("s_not_b32 s95, s94")
            k("v_mov_b32 v7, s95"); k("v_mov_b32 v8, 192")
            k("s_cmp_eq_u32 s%d, 0" % S_W)
            k("s_cselect_b64 exec, 1, 0")
            k("s_cbranch_execz Lnoat")
            k("global_atomic_umax v8, v7, s[%d:%d] sc1" % (P_DBG, P_DBG+1))
            k.label("Lnoat")
            k("s_mov_b64 exec, -1")
            k("s_add_u32 s94, s94, 4500")
            k.label("Lpad0")
            k("s_sleep 4")
            k("s_memrealtime s[96:97]")
            k("s_waitcnt lgkmcnt(0)")
            k("s_sub_u32 s98, s96, s94")
            k("s_cmp_lt_i32 s98, 0")
            k("s_cbranch_scc1 Lpad0")
            k("global_load_dword v7, v8, s[%d:%d] sc1" % (P_DBG, P_DBG+1))
            k("s_waitcnt vmcnt(0)")
            k("v_readfirstlane_b32 s94, v7")
            k("s_not_b32 s94, s94")
        k("s_add_u32 s94, s94, 6000")
        lp = k.newlabel("Lpad"); k.label(lp)
        k("s_sleep 4")
        k("s_memrealtime s[96:97]")
        k("s_waitcnt lgkmcnt(0)")
        k("s_sub_u32 s98, s96, s94")
        k("s_cmp_lt_i32 s98, 0")
        k("s_cbranch_scc1 %s" % lp)
    if cfg.DBGWG >= 0:
        k("s_cmp_eq_u32 s92, %d" % (cfg.DBGWG*512))
        k("s_cselect_b32 s93, 64, 0")
        srd(k, 44, P_DBG, 0, "s93")
        k("v_readlane_b32 s93, v1, 0")
        k("v_subrev_u32 v7, s93, v1")
        k("v_cmp_lt_u32 vcc, 0, v0")
        k("v_cndmask_b32 v5, v6, v5, vcc")
        k("buffer_store_dword v7, v5, s[44:47], 0 offen")

def code_prefetch(k, vt):
    k("s_getpc_b64 s[72:73]")
    l = k.newlabel("Lpc"); k.label(l)
    k("s_lshr_b32 s74, s2, 3")
    k("s_lshl_b32 s74, s74, 7")
    k("v_and_b32 v%d, 31, v0" % vt)
    k("v_lshlrev_b32 v%d, 12, v%d" % (vt, vt))
    k("v_add_u32 v%d, s74, v%d" % (vt, vt))
    k("v_min_u32 v%d, L_end-%s-4, v%d" % (vt, l, vt))
    k.vm("global_load_dword v%d, v%d, s[72:73]" % (vt, vt), "pf")

def _pload(k, base, tag):
    if cfg.ONE:
        a = k.newlabel("Lp0"); b = k.newlabel("Lp1")
        k("s_cmp_lg_u32 s%d, 0" % S_W); k("s_cbranch_scc1 %s" % a)
        k("global_load_dword v31, v%d, s[%d:%d] sc1" % (V_PT, base, base+1))
        k("s_branch %s" % b)
        k.label(a)
        k("v_mov_b32 v%d, 0" % V_PT)
        k("global_load_dword v31, v%d, s[%d:%d]" % (V_PT, P_X, P_X+1))
        k.label(b)
        k.vmq.append(tag)
    else: k.vm("global_load_dword v31, v%d, s[%d:%d] sc1" % (V_PT, base, base+1), tag)
def poll_issue(k, base, off, tag):
    k("v_mov_b32 v%d, %s" % (V_PT, off))
    _pload(k, base, tag)
def vpoll_issue(k, off, n, tag):
    k("v_min_u32 v%d, %d, v0" % (V_PT, n-1)); k("v_mul_u32_u24 v%d, %d, v%d" % (V_PT, cfg.CS, V_PT)); k("v_add_u32 v%d, %s, v%d" % (V_PT, off, V_PT))
    _pload(k, S_CNT, tag)
def poll_check(k, base, target, tag, sleep=None, barrier=True):
    l = k.newlabel("Lpoll"); d = k.newlabel("Lpd")
    if base == S_CNT and (cfg.X_NOWAIT == 1 or (cfg.X_NOWAIT and tag in cfg.X_NOWAIT)): target = 0
    k.wait(vm=tag)
    if cfg.ONE:
        k("s_cmp_lg_u32 s%d, 0" % S_W); k("s_cbranch_scc1 %s" % d)
    k("v_cmp_gt_u32 vcc, %d, v31" % target)
    k("s_mov_b32 s95, 0x8000")
    k("s_cmp_eq_u64 vcc, 0")
    k("s_cbranch_scc1 %s" % d)
    k.label(l)
    k("s_sleep %d" % (sleep or cfg.SLP))
    k("global_load_dword v31, v%d, s[%d:%d] sc1" % (V_PT, base, base+1))
    k("s_waitcnt vmcnt(0)")
    k("v_cmp_gt_u32 vcc, %d, v31" % target)
    k("s_sub_u32 s95, s95, 1")
    k("s_cmp_eq_u64 vcc, 0")
    k("s_cbranch_scc1 %s" % d)
    k("s_cmp_lg_u32 s95, 0")
    k("s_cbranch_scc1 %s" % l)
    k.label(d)
    if cfg.ONE and barrier: k("s_barrier")
def vpoll_check(k, target, tag): poll_check(k, S_CNT, target, tag)
def signal(k, base, off, ra=V_PT, rd=31):
    d = k.newlabel("Lsg")
    k("s_barrier")
    k("s_cmp_lg_u32 s%d, 0" % S_W)
    k("s_cbranch_scc1 %s" % d)
    k("v_mov_b32 v%d, %s" % (ra, off))
    k("v_mov_b32 v%d, 1" % rd)
    k("s_mov_b64 exec, 1")
    k("global_atomic_add v%d, v%d, s[%d:%d] sc1" % (ra, rd, base, base+1))
    k("s_mov_b64 exec, -1")
    k.label(d)

BL = [256+128+4*i for i in range(32)] + [256+48+4*i for i in range(12)] + [256+108+4*i for i in range(3)] \
   + [256+4*i for i in range(12)] + [256+96+4*i for i in range(3)] + [32+4*i for i in range(8)]
def bloc(n): return BL[n]
def b_items(frs):
    out = []; cur = None
    for n in frs:
        st, ct = divmod(n, 5)
        pre = None
        if st != cur: pre = "s_add_u32 s%d, s%d, %d" % (S_BOFF, S_BB, (20 + 4*st)*5120); cur = st
        if ct < 4: t = "buffer_load_dwordx4 %s, v%d, s[%d:%d], s%d offen offset:%d%s" % (R(bloc(n),4), V_L16, SRD_B, SRD_B+3, S_BOFF, ct*1024, LSC)
        else: t = "buffer_load_dwordx4 %s, v%d, s[%d:%d], s%d offen%s" % (R(bloc(n),4), V_L16B, SRD_B, SRD_B+3, S_BOFF, LSC)
        out.append((pre, t, ("B", n)))
    return out
def bo_items():
    out = []
    for i in range(5):
        for ct in range(5):
            pre = "s_add_u32 m0, s%d, %d" % (S_BB, i*20480 + (4096 if ct == 4 else 0))
            if ct == 0: pre = "s_add_u32 s100, s%d, %d\n" % (S_BB, i*20480) + pre
            if ct < 4: t = "buffer_load_dwordx4 v%d, s[%d:%d], s100 offen offset:%d%s lds" % (V_L16, SRD_B, SRD_B+3, ct*1024, LSC)
            else: t = "buffer_load_dwordx4 v%d, s[%d:%d], s100 offen%s lds" % (V_L16B, SRD_B, SRD_B+3, LSC)
            out.append((pre, t, "BO"))
    return out
class Feed:
    def __init__(self, k, items): self.k = k; self.q = list(items)
    def emit(self, n=1):
        while self.q and n > 0:
            pre, t, tag = self.q.pop(0)
            if pre: self.k(pre)
            self.k.vm(t, tag); n -= 1
    def drain(self): self.emit(10**6)
def emit1(k, f):
    if callable(f): f()
    elif isinstance(f, tuple): (k.lg if f[0] == "lg" else k.vm)(f[1], f[2])
    else: k(f)
def weave(k, mf, fill, per=2):
    fill = list(fill)
    for m in mf:
        k(m)
        for _ in range(per):
            if fill: emit1(k, fill.pop(0))
    for f in fill: emit1(k, f)

WSLOT = 24576; RW = 4; XBASE = RW*WSLOT; XSLOT = 16384; RX = 3

def gemm_setup(k):
    k("v_lshrrev_b32 v28, 3, v0")
    k("v_and_b32 v29, 7, v0")
    k("v_bfe_u32 v26, v28, 1, 1")
    k("s_lshl_b32 s%d, s%d, 1" % (S_T0, S_RH))
    k("v_or_b32 v26, s%d, v26" % S_T0)
    k("v_lshlrev_b32 v26, 1, v26")
    k("v_xor_b32 v26, v26, v29")
    k("s_lshl_b32 s%d, s%d, 3" % (S_T0, S_W))
    k("v_add_u32 v27, s%d, v28" % S_T0)
    k("v_mul_lo_u32 v27, v27, s%d" % S_STRIDE)
    k("v_lshl_add_u32 v%d, v26, 4, v27" % V_WD)
    k("s_lshl_b32 s%d, s%d, 5" % (S_T0, S_W))
    k("v_lshrrev_b32 v26, 1, v28")
    k("v_xor_b32 v27, v26, v29")
    k("v_add_u32 v26, s%d, v28" % S_T0)
    k("v_mul_u32_u24 v26, 1280, v26")
    k("v_lshl_add_u32 v%d, v27, 4, v26" % V_XD)
    k("v_xor_b32 v%d, 64, v%d" % (V_XD+1, V_XD))
    k("v_add_u32 v%d, %d, v%d" % (V_XD+1, 8*1280, V_XD+1))
    k("v_add_u32 v%d, %d, v%d" % (V_XD+2, 16*1280, V_XD))
    k("v_add_u32 v%d, %d, v%d" % (V_XD+3, 16*1280, V_XD+1))
    k("s_mul_i32 s%d, s%d, 6144" % (S_WL, S_W))
    k("s_lshl_b32 s%d, s%d, 12" % (S_XL, S_W))
    k("s_add_u32 s%d, s%d, %d" % (S_XL, S_XL, XBASE))
    k("s_mov_b32 s%d, 0" % S_WOFF)
    k("s_lshl_b32 s%d, s%d, 5" % (S_T3, S_STRIDE))

def touch_setup(k):
    k("v_lshrrev_b32 v26, 2, v0")
    k("v_and_b32 v27, 3, v0")
    k("s_lshl_b32 s%d, s%d, 1" % (S_T0, S_MT))
    k("s_add_u32 s%d, s%d, s%d" % (S_T0, S_T0, S_C))
    k("v_lshlrev_b32 v28, 5, v26")
    k("v_add_u32 v28, s%d, v28" % S_T0)
    k("v_mul_lo_u32 v28, v28, s%d" % S_STRIDE)
    k("v_min_u32 v29, 2, v27")
    k("v_lshl_add_u32 v%d, v29, 7, v28" % V_TW)
    k("s_lshl_b32 s%d, s%d, 4" % (S_T0, S_TY))
    k("s_lshl_b32 s%d, s%d, 2" % (S_T1, S_W))
    k("s_add_u32 s%d, s%d, s%d" % (S_T0, S_T0, S_T1))
    k("v_add_u32 v27, s%d, v27" % S_T0)
    k("v_mul_u32_u24 v27, 1280, v27")
    k("v_lshl_add_u32 v%d, v26, 7, v27" % V_TX)
    k("s_cmp_eq_u32 s%d, 0" % S_RH)
    for i in range(3): k("s_cselect_b32 s%d, s%d, s%d" % (SRD_T+i, SRD_W0+i, SRD_W1+i))
    k("s_mov_b32 s%d, 0x20000" % (SRD_T+3))
def masked(n, t):
    if n >= 16: return t
    return "s_bfm_b64 exec, %d, 0\n%s\ns_mov_b64 exec, -1" % (4*n, t)
def touch_items(stage):
    out = []
    for (st, first, n) in cfg.TW:
        if st == stage:
            out.append(("s_mul_i32 s101, s%d, %d" % (S_STRIDE, 32*first), masked(n, "buffer_load_dword v%d, v%d, s[%d:%d], s101 offen%s" % (V_JUNK, V_TW, SRD_T, SRD_T+3, " nt" if cfg.TNT else "")), "pf"))
    for (st, first, n) in cfg.TX:
        if st == stage:
            out.append((None, masked(n, "buffer_load_dword v%d, v%d, s[%d:%d], 0 offen offset:%d" % (V_JUNK, V_TX, SRD_X, SRD_X+3, first*128)), "pf"))
    return out

def gemm_setup2(k, att):
    npt = 5 if att else 6
    k("v_and_b32 v54, 15, v0")
    k("v_lshrrev_b32 v55, 4, v0")
    k("v_bfe_u32 v26, v54, 1, 3")
    k("v_xor_b32 v26, v26, v55")
    k("s_lshl_b32 s%d, s%d, 13" % (S_T0, S_RH))
    k("s_add_u32 s%d, s%d, %d" % (S_T0, S_T0, XBASE))
    k("v_lshlrev_b32 v27, 7, v54")
    k("v_add_u32 v27, s%d, v27" % S_T0)
    k("v_lshl_add_u32 v%d, v26, 4, v27" % V_XR)
    k("v_xor_b32 v%d, 64, v%d" % (V_XR+1, V_XR))
    k("v_bfe_u32 v26, v0, 2, 2")
    k("v_and_b32 v27, 3, v0")
    k("v_lshrrev_b32 v28, 1, v26")
    k("v_and_b32 v29, 1, v55")
    k("v_lshl_or_b32 v28, v29, 1, v28")
    k("v_lshlrev_b32 v28, 5, v28")
    k("v_mul_u32_u24 v29, 6144, v55")
    k("v_lshl_add_u32 v29, v26, 7, v29")
    if att:
        k("s_mul_i32 s%d, s%d, 160" % (S_T0, S_C))
        k("s_add_u32 s%d, s%d, s%d" % (S_T0, S_T0, S_DELTA))
        k("v_mul_u32_u24 v27, 40, v27")
    else:
        k("s_mul_i32 s%d, s%d, 192" % (S_T0, S_C))
        k("v_lshlrev_b32 v27, 3, v27")
    k("v_add_u32 v27, s%d, v27" % S_T0)
    for p in range(npt):
        k("v_add_u32 v30, %d, v27" % (p * (8 if att else 32)))
        k("v_lshrrev_b32 v31, 7, v30")
        k("v_and_b32 v30, 127, v30")
        k("v_xor_b32 v30, v30, v28")
        k("v_lshl_add_u32 v31, v31, 10, v29")
        k("v_add_u32 v%d, v30, v31" % (V_TA+p))
        k("v_add_u32 v%d, %d, v%d" % (V_TA+6+p, 2*WSLOT, V_TA+p))

def w_dma(s):
    return [("s_add_u32 m0, s%d, %d" % (S_WL, (s % RW)*WSLOT + (seg*3+lc)*1024 - lc*128),
             "buffer_load_dwordx4 v%d, s[%d:%d], s%d offen offset:%d lds" % (V_WD, SRD_W0+4*seg, SRD_W0+4*seg+3, S_WOFF, lc*128), ("W", s))
            for seg in range(2) for lc in range(3)]
def x_dma(u, i):
    return ("s_add_u32 m0, s%d, %d" % (S_XL, (u % RX)*XSLOT + i*1024 - u*128),
            "buffer_load_dwordx4 v%d, s[%d:%d], 0 offen offset:%d lds" % (V_XD+i, SRD_X, SRD_X+3, u*128), ("X", u))
def reads_for(s, npt):
    out = []; b = s & 1
    for rt in range(4):
        out.append("ds_read_b128 %s, v%d offset:%d" % (R(XF0 + (b*4+rt)*4, 4), V_XR + (s & 1), ((s >> 1) % RX)*XSLOT + rt*2048))
    slot = s % RW
    for p in range(npt):
        for seg in range(2):
            for h in range(2):
                out.append("ds_read_b64_tr_b16 %s, v%d offset:%d" % (R(WF0 + (b*12+p*2+seg)*4 + 2*h, 2), V_TA + p + (6 if slot >= 2 else 0), (slot & 1)*WSLOT + seg*3072 + h*512))
    return out
def acc(p, seg, rt): return ACC0 + ((p*2+seg)*4 + rt)*4

def late_setup_items():
    k = K()
    k("s_and_b32 s%d, s2, 7" % S_T1)
    k("s_lshr_b32 s%d, s2, 3" % S_OH)
    if cfg.P2M == 4:
        k("s_lshl_b32 s%d, s%d, 2" % (S_M64, S_T1)); k("s_and_b32 s%d, s%d, 3" % (S_T0, S_OH)); k("s_add_u32 s%d, s%d, s%d" % (S_M64, S_M64, S_T0))
        k("s_lshr_b32 s%d, s%d, 2" % (S_NT, S_OH))
    else:
        k("s_lshr_b32 s%d, s%d, 1" % (S_M64, S_T1)); k("s_lshl_b32 s%d, s%d, 3" % (S_M64, S_M64)); k("s_and_b32 s%d, s%d, 7" % (S_T0, S_OH)); k("s_add_u32 s%d, s%d, s%d" % (S_M64, S_M64, S_T0))
        k("s_and_b32 s%d, s%d, 1" % (S_NT, S_T1)); k("s_lshl_b32 s%d, s%d, 2" % (S_NT, S_NT)); k("s_lshr_b32 s%d, s%d, 3" % (S_T0, S_OH)); k("s_add_u32 s%d, s%d, s%d" % (S_NT, S_NT, S_T0))
    k("s_lshr_b32 s%d, s%d, 1" % (S_OMT, S_OH))
    if not cfg.UNI: k("s_lshl_b32 s%d, s%d, 1" % (S_OMT, S_OMT))
    k("s_and_b32 s%d, s%d, 1" % (S_OH, S_OH)); k("s_lshl_b32 s%d, s%d, 1" % (S_T0, S_T1)); k("s_add_u32 s%d, s%d, s%d" % (S_OH, S_OH, S_T0))
    k("s_mul_i32 s%d, s%d, %d" % (S_T0, S_NT, 74*5120))
    srd(k, SRD_B, P_WS, B2_OFF, 74*5120, S_T0)
    k("s_mul_i32 s%d, s%d, 5120" % (S_BB, S_W))
    k("s_add_u32 s%d, s%d, 0x%x" % (S_CNT, P_WS, CNT_OFF))
    k("s_addc_u32 s%d, s%d, 0" % (S_CNT+1, P_WS+1))
    k("v_add_u32 v%d, 4096, v%d" % (V_L16B, V_L16))
    k("s_mov_b32 s%d, %s" % (S_C2, f32(LOG2E))); k("s_mov_b32 s%d, %s" % (S_C2+1, f32(LOG2E)))
    return [t for _, t in k.items]

def dma_queue():
    Q = []
    for st in range(20):
        if st % 2 == 0:
            u = st // 2
            for i in range(4): Q.append((-1 if u < RX else 2*(u-RX)+1, x_dma(u, i), False))
        it = w_dma(st)
        for i, d in enumerate(it): Q.append((-1 if st < RW else max(1, st-RW), d, i == len(it)-1))
    return Q
def wadv(k): k("s_add_u32 s%d, s%d, s%d" % (S_WOFF, S_WOFF, S_T3))
def issue_now(k, Q, n):
    for _ in range(n):
        av, it, last = Q.pop(0)
        k(it[0]); k.vm(it[1], it[2])
        if last: wadv(k)

def btouch(first_ks, n):
    out = []
    for i in range(n):
        pre = "s_and_b32 s101, s%d, 3\ns_lshl_b32 s101, s101, 2\ns_add_u32 s101, s101, s%d\ns_lshl_b32 s101, s101, 13\ns_add_u32 s101, s101, %d\nv_lshlrev_b32 v24, 7, v0" % (S_M64, S_W, first_ks*5120 + i*131072)
        out.append((pre, "buffer_load_dword v25, v24, s[%d:%d], s101 offen%s" % (SRD_B, SRD_B+3, SC), "pf"))
    return out
def spread(items, s0, s1):
    out = {}; n = len(items); i = 0
    for s in range(s0, s1):
        c = -(-(n - i) // (s1 - s)); out[s] = items[i:i+c]; i += c
    return out

def capture(fn):
    q = K(); q.nl = 100000 + capture.n; capture.n += 100
    fn(q)
    assert not q.vmq and not q.lgq
    return q.items
capture.n = 0

def gemm_main(k, att, Q, extra, polls, xrd=None, xwait=None, xsetup=None):
    npt = 5 if att else 6
    Q = list(Q)
    astamp(k, 4)
    gemm_setup2(k, att)
    astamp(k, 5)
    issue_now(k, Q, cfg.N2)
    side = []
    for t in late_setup_items():
        if side and (t.startswith(("s_addc", "s_cselect", "v_cndmask")) ): side[-1] += "\n" + t
        else: side.append(t)
    blocks = []
    if xsetup:
        its = capture(xsetup)
        if any(kd == "l" for kd, _ in its): blocks = its
        else:
            for _, t in its:
                if side and t.startswith(("s_addc", "s_cselect", "v_cndmask", "s_and_b64")): side[-1] += "\n" + t
                else: side.append(t)
    rds = lambda s: reads_for(s, npt)
    stamp(k, 2)
    astamp(k, 6)
    k.wait(vm=[("X", 0), ("W", 0)])
    k("s_barrier")
    astamp(k, 7)
    aflush(k)
    stamp(k, 3)
    r0 = rds(0)
    for i, r in enumerate(r0): k.lg(r, ("r0", max(0, i-4)//2))
    astamp(k, 8)
    for s in range(20):
        b = s & 1
        rd = rds(s+1) if s < 19 else []
        if xrd and s in xrd: rd += xrd[s]
        dm = []
        while Q and Q[0][0] <= s and len(dm) < (cfg.MAXD0 if s == 0 else cfg.MAXD): dm.append(Q.pop(0))
        ex = [(0, e, False) for e in extra.get(s, [])]
        mix = []
        while dm or ex:
            if dm: mix.append(dm.pop(0))
            if ex and len(ex) >= len(dm): mix.append(ex.pop(0))
        dm = mix + [(0, e, False) for e in touch_items(s)]
        mf = []
        idx = [(p, seg, rt) for p in range(npt) for seg in range(2) for rt in range(4)]
        if cfg.LORD == 1 and s: idx = [(p, seg, rt) for rt in range(4) for p in range(npt) for seg in range(2)]
        if cfg.LORD == 2 and s: idx = [(p, seg, (rt if (p*2+seg) % 2 == 0 else 3-rt)) for p in range(npt) for seg in range(2) for rt in range(4)]
        for p, seg, rt in idx:
            a = acc(p, seg, rt)
            mf.append("v_mfma_f32_16x16x32_bf16 %s, %s, %s, %s" % (R(a,4), R(WF0 + (b*12+p*2+seg)*4, 4), R(XF0 + (b*4+rt)*4, 4), R(a,4) if s else "0"))
        nm = len(mf); nd = len(dm)
        at = [int(i * (nm - 3) / max(nd, 1)) for i in range(nd)]
        for i in range(1, nd): at[i] = max(at[i], at[i-1] + 2)
        pend = None
        m1 = nm - 4 - (len(rd) + 1)//2 if s == 0 else 0
        for m, t in enumerate(mf):
            if s == 0 and m % 4 == 0 and not cfg.AST: k.wait(lg=("r0", m//4))
            if s == 0 and m == 0 and cfg.AST: k.wait(lg="all")
            if s == 0 and m == m1:
                k.wait(vm=("W", 1), lg="all"); k("s_barrier")
            k(t)
            used = 0
            if m >= m1 and not (cfg.RSP and s and len(rd) <= (nm - 6 - m) * 2 // 3 + 0 and m % 3 == 2):
                for _ in range(2 if s == 0 else 1):
                    if rd: k.lg(rd.pop(0)); used += 1
            if (s+1) in polls and m == nm - 1: poll_issue(k, P_DBG, polls[s+1], ("poll", s+1))
            if pend is not None:
                k.vm(pend[1][1], pend[1][2]); used += 1
                if pend[2]: wadv(k)
                pend = None
            elif dm and m >= at[nd - len(dm)]:
                pend = dm.pop(0)
                if pend[1][0]: k(pend[1][0]); used += 1
            while side and used < 2 and s >= 1:
                k(side.pop(0)); used += 1
        assert not rd and not dm and pend is None, (s, rd, dm, pend)
        if s == cfg.BLK and blocks:
            assert not side
            k.items += blocks
        if s < 19:
            k.wait(vm=[("W", s+2), ("X", (s+2) >> 1)] + (xwait.get(s, []) if xwait else []), lg="all")
        if s in polls: poll_check(k, P_DBG, N_S1 if polls[s] == D_S1 else N_S3, ("poll", s), sleep=8, barrier=(s == 19))
        if s < 19:
            k("s_barrier")
            if s == 0: aflush(k)
            if s < 4: astamp(k, 11 + s)
            if s == 4: aflush(k)
            if cfg.STG and s % 2 == 1: stamp(k, 17 + s//2)
    assert not Q and not side
    stamp(k, 4)

def ffn_setup(k):
    k("s_lshl_b32 s75, s%d, 1" % S_MT)
    k("s_add_u32 s75, s75, s%d" % S_RH)
    k("s_mul_i32 s75, s75, 74")
    k("s_mul_i32 s76, s%d, 6" % S_TY)
    k("s_add_u32 s75, s75, s76")
    k("s_mul_i32 s76, s%d, 3" % S_C)
    k("s_add_u32 s75, s75, s76")
    k("s_add_u32 s75, s75, 20")
    k("s_lshl_b32 s75, s75, 12")
    k("s_mul_i32 s%d, s%d, %d" % (S_SIG, S_MT, cfg.CS))
    srd(k, SRD_O, P_WS, A2_OFF, A2_SZ)
    if cfg.PREW:
        k("s_mul_i32 s77, s%d, %d" % (S_MT, 128*1280))
        srd(k, SRD_P, P_OUT, 0, 128*1280, 77)
        k("s_lshl_b32 s76, s%d, 2" % S_TY); k("s_add_u32 s76, s76, s%d" % S_W); k("s_mul_i32 s76, s76, 5120")
        for i in range(4): k("v_mov_b32 v%d, 0" % (26+i))

def ffn_role(k, Q):
    extra = spread(b_items(list(range(32)) + list(range(62, 70))), cfg.PS1, cfg.PE1)
    bo = bo_items()
    for g in range(cfg.BOL):
        st = max(16 + g, 20 - cfg.BOL + g, cfg.BOS)
        extra[st] = extra.get(st, []) + bo[5*g:5*g+5]
    polls = {cfg.PS1-1: D_S1}
    for st, ks in cfg.BTL: extra[st] = extra.get(st, []) + btouch(ks, 1)
    if cfg.BTL: polls = {min(cfg.PS1, cfg.BTL[0][0]) - 1: D_S1}
    if cfg.BT2:
        polls = {cfg.PS1-1: D_S1, cfg.BT2-1: D_S3}
        extra[cfg.BT2] = btouch(0, 1) + extra.get(cfg.BT2, [])
    if cfg.PREW:
        pw = [(None, "buffer_store_dwordx4 v[26:29], v%d, s[%d:%d], s76 offen offset:%d%s" % (V_L16 if j < 4 else V_L16B, SRD_P, SRD_P+3, (j % 4)*1024, SC), "st") for j in range(5)]
        for j, e in enumerate(pw): extra[cfg.PREW + j//cfg.PREN] = extra.get(cfg.PREW + j//cfg.PREN, []) + [e]
    gemm_main(k, False, Q, extra, polls, xsetup=ffn_setup)
    fd = Feed(k, b_items(range(32, 62)) + bo[5*cfg.BOL:])
    per, last = cfg.FFE
    n = 0
    for ks in range(3):
        for rt in range(4):
            T = 6 + (n & 1)*8; O = 22 + (n & 1)*4; n += 1
            if O & 3: O = (24, 28)[(n-1) & 1] - 0
            fe = lambda i: fd.emit(1) if (n <= last and i < per) else None
            G = [acc(2*ks+j, 0, rt) for j in range(2)]; U = [acc(2*ks+j, 1, rt) for j in range(2)]
            O = U[0]
            prs = [(j, h) for j in range(2) for h in range(2)]
            for i, (j, h) in enumerate(prs):
                k("v_pk_mul_f32 %s, %s, s[%d:%d] neg_lo:[0,1] neg_hi:[0,1]" % (vr(T+2*i,2), vr(G[j]+2*h,2), S_C2, S_C2+1))
            fe(0)
            for i in range(8): k("v_exp_f32 v%d, v%d" % (T+i, T+i))
            fe(2)
            for i, (j, h) in enumerate(prs):
                k("v_pk_mul_f32 %s, %s, %s" % (vr(G[j]+2*h,2), vr(G[j]+2*h,2), vr(U[j]+2*h,2)))
            for i in range(4): k("v_pk_add_f32 %s, %s, 1.0 op_sel_hi:[1,0]" % (vr(T+2*i,2), vr(T+2*i,2)))
            fe(1)
            for i in range(8): k("v_rcp_f32 v%d, v%d" % (T+i, T+i))
            fe(3)
            for i, (j, h) in enumerate(prs):
                k("v_pk_mul_f32 %s, %s, %s" % (vr(T+2*i,2), vr(G[j]+2*h,2), vr(T+2*i,2)))
            for i in range(4): k("v_cvt_pk_bf16_f32 v%d, v%d, v%d" % (O+i, T+2*i, T+2*i+1))
            k.vm("buffer_store_dwordx4 %s, v%d, s[%d:%d], s75 offen offset:%d%s" % (vr(O,4), V_L16, SRD_O, SRD_O+3, rt*1024, SC), "st")
        if ks < 2: k("s_add_u32 s75, s75, 4096")
    stamp(k, 26)
    def presig():
        k.wait(vm="st")
        stamp(k, 5)
        signal(k, S_CNT, "s%d" % S_SIG, 14, 15)
    return presig, fd.q

def phi_dma(seg):
    pre = "s_add_u32 s%d, s%d, s81\ns_addc_u32 s%d, s%d, 0\n" % (SRD_P, SRD_P, SRD_P+1, SRD_P+1) if seg else ""
    return [((pre if i == 0 else "") + "s_add_u32 m0, s%d, %d" % (S_XL, XSLOT if seg else SPARE - XBASE),
             "buffer_load_dwordx4 v%d, s[%d:%d], 0 offen offset:%d lds" % (V_L16, SRD_P, SRD_P+3, i*1024), ("P", seg)) for i in range(4)]
def phireg(seg, to, s):
    i = s*5 + to
    if seg == 1: return 256 + 48 + 4*i if i < 10 else 256 + 108 + 4*(i-10)
    return 256 + 4*i if i < 12 else 256 + 96 + 4*(i-12)
V_PHA = 23
def phi_reads(seg):
    out = []
    for s in range(3):
        for to in range(5):
            for h in range(2):
                d = phireg(seg, to, s) + 2*h
                b = 0 if seg else SPARE - XBASE - XSLOT
                if s == 2 and h == 1: out.append("ds_read_b64_tr_b16 %s, v26 offset:%d" % (R(d,2), b))
                else: out.append("ds_read_b64_tr_b16 %s, v%d offset:%d" % (R(d,2), V_PHA, b + (8*s+4*h)*40 + 8*to))
    return out
def cvt_in(seg, rt, B):
    out = []
    for t in range(5):
        a = acc(t, seg, rt)
        out.append("v_cvt_pk_bf16_f32 v%d, v%d, v%d" % (B+2*t, a, a+1))
        out.append("v_cvt_pk_bf16_f32 v%d, v%d, v%d" % (B+2*t+1, a+2, a+3))
    return out
def phi_mf(seg, rt, B):
    return ["v_mfma_f32_16x16x32_bf16 %s, %s, %s, %s" % (vr(acc(to,seg,rt),4), R(phireg(seg, to, s),4), vr(B+4*s,4), vr(acc(to,seg,rt),4) if s else "0")
            for s in range(3) for to in range(5)]

PKRS = 352; VRS = 224; PKSZ = 128*PKRS; VB = 2*PKSZ; VSZ = 128*VRS
V_E0, V_E1, V_E2, V_E3, V_E4, V_E5, V_E6 = 27, 28, 29, 30, 60, 61, 62
def att_common_setup(k):
    k("v_lshrrev_b32 v50, 4, v0")
    k("v_and_b32 v51, 15, v0")
    k("v_bfe_u32 v52, v0, 2, 2")
    k("v_and_b32 v53, 3, v0")
    k("v_mul_u32_u24 v48, 800, v50")
    k("v_mad_u32_u24 v48, v52, 40, v48")
    k("v_cmp_eq_u32 vcc, v50, v53")
    k("v_mov_b32 v49, 3200")
    k("v_cndmask_b32 v48, v49, v48, vcc")
    k("s_add_u32 s%d, s%d, %d" % (S_T2, S_XL, XSLOT))
    k("v_add_u32 v%d, s%d, v48" % (V_PHA, S_T2))
    k("v_add_u32 v26, s%d, v49" % S_T2)
def kv_setup(k):
    k("s_lshl_b32 s%d, s%d, 6" % (S_T0, S_RH))
    k("v_add_u32 v48, s%d, v51" % S_T0)
    k("s_mul_i32 s%d, s%d, %d" % (S_T0, S_C, PKSZ))
    k("v_mul_u32_u24 v%d, %d, v48" % (V_E0, PKRS))
    k("v_mul_u32_u24 v49, 80, v50")
    k("v_add3_u32 v%d, v%d, v49, s%d" % (V_E0, V_E0, S_T0))
    k("s_mul_i32 s%d, s%d, %d" % (S_T1, S_C, VSZ))
    k("s_add_u32 s%d, s%d, %d" % (S_T1, S_T1, VB))
    k("v_mul_u32_u24 v%d, %d, v48" % (V_E1, VRS))
    k("v_mul_u32_u24 v49, 48, v50")
    k("v_add3_u32 v%d, v%d, v49, s%d" % (V_E1, V_E1, S_T1))
    k("v_lshrrev_b32 v48, 2, v0")
    k("v_lshlrev_b32 v49, 3, v53")
    k("s_mul_i32 s%d, s%d, 160" % (S_T2, S_RH))
    k("s_add_u32 s%d, s%d, s%d" % (S_T0, S_T0, S_T2))
    k("v_mul_u32_u24 v%d, %d, v48" % (V_E2, PKRS))
    k("v_add3_u32 v%d, v%d, v49, s%d" % (V_E2, V_E2, S_T0))
    k("s_mul_i32 s%d, s%d, 96" % (S_T2, S_RH))
    k("s_add_u32 s%d, s%d, s%d" % (S_T1, S_T1, S_T2))
    k("v_mul_u32_u24 v%d, %d, v48" % (V_E3, VRS))
    k("v_add3_u32 v%d, v%d, v49, s%d" % (V_E3, V_E3, S_T1))
    k("s_add_u32 s%d, s%d, %d" % (S_T2, S_XL, SPARE - XBASE))
    k("v_mul_u32_u24 v48, 80, v51")
    k("v_lshl_add_u32 v48, v50, 3, v48")
    k("v_add_u32 v%d, s%d, v48" % (V_E5, S_T2))
    k("v_add_u32 v%d, s%d, v%d" % (V_E6, S_T2, V_L16))
    k("v_mov_b32 v48, 0x7fffffff")
    k("v_cmp_gt_u32 vcc, 32, v0")
    k("v_cndmask_b32 v%d, v48, v%d, vcc" % (V_E4, V_L16))
    k("s_lshl_b32 s78, s79, 1")
    k("s_add_u32 s78, s78, s%d" % S_RH)
    k("s_lshl_b32 s78, s78, 4")
    k("s_add_u32 s78, s78, s%d" % S_MT)
    k("s_mul_i32 s78, s78, %d" % KVPS)
    k("v_cmp_gt_u32 s[72:73], 2, v50")
    k("v_cmp_gt_u32 s[74:75], 5, v51")
    k("s_and_b64 s[76:77], s[72:73], s[74:75]")
    srd(k, SRD_O, P_WS, KVP_OFF, KVP_SZ)
    for r in (42, 43, 54, 55): k("v_mov_b32 v%d, 0" % r)
def q_setup(k):
    k("s_mov_b32 s%d, 81920" % S_T0)
    k("v_mul_lo_u32 v48, v50, s%d" % S_T0)
    k("v_lshl_add_u32 v%d, v51, 4, v48" % V_E0)
    k("v_lshl_add_u32 v%d, v51, 3, v48" % V_E1)
    k("v_lshlrev_b32 v%d, 2, v0" % V_E2)
    k("s_mul_i32 s%d, s79, %d" % (S_T1, 4*81920))
    k("s_lshl_b32 s%d, s%d, 1" % (S_T0, S_MT))
    k("s_add_u32 s%d, s%d, s%d" % (S_T0, S_T0, S_RH))
    k("s_lshl_b32 s75, s%d, 10" % S_T0)
    k("s_add_u32 s75, s75, s%d" % S_T1)
    k("s_add_u32 s76, s75, 32768")
    k("s_lshl_b32 s77, s%d, 9" % S_T0)
    k("s_add_u32 s77, s77, s%d" % S_T1)
    k("s_add_u32 s77, s77, 65536")
    k("s_lshl_b32 s78, s%d, 8" % S_T0)
    k("s_add_u32 s78, s78, %d" % (G_OFF - PQ_OFF))
    k("s_add_u32 s%d, s%d, %d" % (S_SIG, S_MT, C_Q))
    k("s_mul_i32 s%d, s%d, %d" % (S_SIG, S_SIG, cfg.CS))
    srd(k, SRD_O, P_WS, PQ_OFF, G_OFF + G_SZ - PQ_OFF)
    for r in (42, 43, 54, 55): k("v_mov_b32 v%d, 0" % r)

def softmax_pm(k, P, E, T, O, fd=None, mf=None, side=None, inplace=None):
    def fe(n=1):
        if fd: fd.emit(n)
    mf = list(mf or []); side = list(side or [])
    v = [p + i for p in P for i in range(2)]
    k("v_max3_f32 v%d, v%d, v%d, v%d" % (T, v[0], v[1], v[2]))
    k("v_min3_f32 v%d, v%d, v%d, v%d" % (T+2, v[0], v[1], v[2]))
    k("v_max3_f32 v%d, v%d, v%d, v%d" % (T+1, v[3], v[4], v[5]))
    k("v_min3_f32 v%d, v%d, v%d, v%d" % (T+3, v[3], v[4], v[5]))
    for n, i in enumerate(range(6, 20, 2)):
        c = n & 1
        k("v_max3_f32 v%d, v%d, v%d, v%d" % (T+c, T+c, v[i], v[i+1]))
        k("v_min3_f32 v%d, v%d, v%d, v%d" % (T+2+c, T+2+c, v[i], v[i+1]))
    fe()
    k("v_max_f32 v%d, v%d, v%d" % (T, T, T+1))
    k("v_min_f32 v%d, v%d, v%d" % (T+2, T+2, T+3))
    k("v_mul_f32 v%d, %s, v%d" % (T, f32(-LOG2E), T))
    k("v_mul_f32 v%d, %s, v%d" % (T+2, f32(LOG2E), T+2))
    for i, p in enumerate(P):
        k("v_pk_fma_f32 %s, %s, s[%d:%d], %s op_sel_hi:[1,1,0]" % (vr(E+2*i,2), vr(p,2), S_C2, S_C2+1, vr(T,2)))
    fe()
    for i, p in enumerate(P):
        k("v_pk_fma_f32 %s, %s, s[%d:%d], %s op_sel_hi:[1,1,0] neg_lo:[0,1,0] neg_hi:[0,1,0]" % (vr(p,2), vr(p,2), S_C2, S_C2+1, vr(T+2,2)))
    ex = [E+i for i in range(20)] + v
    for i, x in enumerate(ex):
        if i % 2 == 0:
            if mf: k(mf.pop(0))
            if side:
                y = side.pop(0)
                if isinstance(y, str) or len(y) == 3: emit1(k, y)
                else: k.lg(*y)
        if i % 12 == 5: fe()
        k("v_exp_f32 v%d, v%d" % (x, x))
    assert not mf and not side
    Ep = [E+2*i for i in range(10)]
    k("v_pk_add_f32 %s, %s, %s" % (vr(T+4,2), vr(Ep[0],2), vr(Ep[1],2)))
    k("v_pk_add_f32 %s, %s, %s" % (vr(T,2), vr(Ep[2],2), vr(Ep[3],2)))
    k("v_pk_add_f32 %s, %s, %s" % (vr(T+6,2), vr(P[0],2), vr(P[1],2)))
    k("v_pk_add_f32 %s, %s, %s" % (vr(T+2,2), vr(P[2],2), vr(P[3],2)))
    for i in range(4, 10, 2):
        k("v_pk_add_f32 %s, %s, %s" % (vr(T+4,2), vr(T+4,2), vr(Ep[i],2)))
        k("v_pk_add_f32 %s, %s, %s" % (vr(T,2), vr(T,2), vr(Ep[i+1],2)))
        k("v_pk_add_f32 %s, %s, %s" % (vr(T+6,2), vr(T+6,2), vr(P[i],2)))
        k("v_pk_add_f32 %s, %s, %s" % (vr(T+2,2), vr(T+2,2), vr(P[i+1],2)))
    k("v_pk_add_f32 %s, %s, %s" % (vr(T+4,2), vr(T+4,2), vr(T,2)))
    k("v_pk_add_f32 %s, %s, %s" % (vr(T+6,2), vr(T+6,2), vr(T+2,2)))
    fe()
    k("v_add_f32 v%d, v%d, v%d" % (T+4, T+4, T+5))
    k("v_add_f32 v%d, v%d, v%d" % (T+6, T+6, T+7))
    k("v_rcp_f32 v%d, v%d" % (T+4, T+4))
    k("v_rcp_f32 v%d, v%d" % (T+6, T+6))
    for i in range(10): k("v_pk_mul_f32 %s, %s, %s op_sel_hi:[1,0]" % (vr(Ep[i],2), vr(Ep[i],2), vr(T+4,2)))
    fe()
    for i in range(10): k("v_pk_mul_f32 %s, %s, %s op_sel_hi:[1,0]" % (vr(P[i],2), vr(P[i],2), vr(T+6,2)))
    if inplace:
        fe()
        for t in pack_inplace(inplace, E): k(t)
        return
    for i in range(10): k("v_cvt_pk_bf16_f32 v%d, v%d, v%d" % (O+i, Ep[i], Ep[i]+1))
    fe()
    for i in range(10): k("v_cvt_pk_bf16_f32 v%d, v%d, v%d" % (O+10+i, P[i], P[i]+1))

def att_extra(two):
    extra = spread(b_items(range(cfg.NBA)), cfg.PSA, 20)
    for st, ks in cfg.BTL: extra[st] = extra.get(st, []) + btouch(ks, 1)
    extra[cfg.PHS] = phi_dma(0)
    return extra

def att_loop(k, Q):
    def setup(q): att_common_setup(q); kv_setup(q)
    gemm_main(k, True, Q, att_extra(True), {(min(cfg.PSA, cfg.BTL[0][0]) if cfg.BTL else cfg.PSA)-1: D_S1}, xrd={19: phi_reads(0)}, xwait={18: [("P", 0)]}, xsetup=setup)

def kv_role(k):
    EREG = 6; TREG = 244; O = 224
    for t in cvt_in(0, 0, 32): k(t)
    k.wait(lg="all")
    weave(k, phi_mf(0, 0, 32), cvt_in(0, 1, 44))
    if not cfg.STG: stamp(k, 17)
    def vout(rt):
        q = [acc(t, 1, rt) + i for t in range(5) for i in range(4)]
        f = ["v_cvt_pk_bf16_f32 v%d, v%d, v%d" % (q[i], q[2*i], q[2*i+1]) for i in range(10)]
        f += ["v_mov_b32 v%d, 0x3f80" % q[10], "v_mov_b32 v%d, 0" % q[11]]
        w = [("ds_write_b128 v%d, %s offset:%d" % (V_E1, vr(q[4*i],4), rt*16*VRS + 16*i), "vw") for i in range(3)]
        return f, w
    def vfr(n, bt): return acc((n*2+bt) >> 2, 1, (n*2+bt) & 3)
    vreads = []
    for n in range(8):
        j, ks = n >> 2, n & 3
        for bt in range(2):
            for h in range(2):
                vreads.append(("ds_read_b64_tr_b16 %s, v%d offset:%d" % (vr(vfr(n,bt)+2*h,2), V_E3, (32*ks+16*h)*VRS + j*48 + bt*32), "vf"))
    fd = Feed(k, [])
    for rt in range(4):
        P = [acc(t, 0, rt) + 2*h for t in range(5) for h in range(2)]
        mf = phi_mf(0, rt+1, 32 + ((rt+1) & 1)*12) if rt < 3 else []
        if rt == cfg.KVB0 and cfg.KVN >= 47: fd.q += b_items(range(32, 47))
        if rt == 3 and cfg.KVN >= 62: fd.q += b_items(range(47, 62))
        side = []
        if rt < 2:
            for r in (2*rt, 2*rt+1):
                f, w = vout(r)
                for t in f: k(t)
                side += w
        else:
            if rt == 2: k.wait(lg="vw"); k("s_barrier")
            side = vreads[(rt-2)*16:(rt-1)*16]
        softmax_pm(k, P, EREG, TREG, O, fd, mf, side)
        for i in range(5):
            k.lg("ds_write_b128 v%d, %s offset:%d" % (V_E0, vr(O+4*i,4), rt*16*PKRS + 16*i), ("pw", rt))
        if rt < 2:
            for t in cvt_in(0, rt+2, 32 + (rt & 1)*12): k(t)
        if not cfg.STG: stamp(k, 18+rt)
    k.wait(lg="all")
    k("s_barrier")
    if not cfg.STG: stamp(k, 22)
    KAQ = [32, 36, 40, 44, 48, 52, 224, 228, 232, 236, 240, 244]
    def pfr(n, ft): return acc(((n % 6)*3+ft) >> 2, 0, ((n % 6)*3+ft) & 3)
    def rd(n):
        j, ks = n >> 2, n & 3
        return [("lg", "ds_read_b64_tr_b16 %s, v%d offset:%d" % (vr(pfr(n,ft)+2*h,2), V_E2, (32*ks+16*h)*PKRS + j*80 + ft*32), ("f", n)) for ft in range(3) for h in range(2)]
    def pack(jj):
        f = []
        for ft in range(3):
            for bt in range(2):
                a = KAQ[(jj*3+ft)*2+bt]
                f += ["v_cvt_pk_bf16_f32 v%d, v%d, v%d" % (a, a, a+1), "v_cvt_pk_bf16_f32 v%d, v%d, v%d" % (a+1, a+2, a+3)]
                mask = [[None, "s[74:75]"], [None, "s[74:75]"], ["s[72:73]", "s[76:77]"]][ft][bt]
                w = "ds_write_b64 v%d, %s offset:%d" % (V_E5, vr(a,2), jj*1680 + bt*1280 + ft*32)
                if mask: w = "s_mov_b64 exec, %s\n%s\ns_mov_b64 exec, -1" % (mask, w)
                f.append(("lg", w, "cw"))
        return f
    weave(k, [], rd(0) + rd(1))
    pk0 = pack(0)
    for n in range(8):
        j, ks = n >> 2, n & 3
        k.wait(lg=("f", n))
        mf = []
        for ft in range(3):
            for bt in range(2):
                a = KAQ[(j*3+ft)*2+bt]
                mf.append("v_mfma_f32_16x16x32_bf16 %s, %s, %s, %s" % (vr(a,4), vr(pfr(n,ft),4), vr(vfr(n,bt),4), vr(a,4) if ks else "0"))
        fill = rd(n+2) if n < 6 else []
        if n < 4: fill.append(lambda: fd.emit(1))
        if n >= 5: fill += pk0[(n-5)*6:(n-4)*6]
        weave(k, mf, fill)
    weave(k, [], pack(1))
    k.wait(lg="all")
    for i in range(4): k.lg("ds_read_b128 %s, v%d offset:%d" % (vr(64+4*i,4), V_E6, i*1024), ("cr", i))
    for i in range(4):
        k.wait(lg=("cr", i))
        k.vm("buffer_store_dwordx4 %s, v%d, s[%d:%d], s78 offen offset:%d%s" % (vr(64+4*i,4), V_L16 if i < 3 else V_E4, SRD_O, SRD_O+3, i*1024, SC), "st")
    stamp(k, 26)
    stamp(k, 5)
    fd.drain()

QXB = 3*WSLOT; QST = 98304
def qacc(t, rt): return 64 + (t*6+rt)*4
QW0 = 256; QX0 = 256 + 80; QPH = 256 + 176
def qa_role(k):
    k("s_mov_b32 s%d, 13" % S_TY)
    k("s_mul_i32 s75, s%d, 6" % S_T0); k("s_add_u32 s75, s75, s%d" % S_T1); k("s_sub_u32 s75, s75, 26")
    k("s_lshr_b32 s79, s%d, 1" % S_T0)
    k("s_mul_i32 s%d, s79, 12" % S_MT); k("s_sub_u32 s%d, s75, s%d" % (S_MT, S_MT))
    k("s_add_u32 s%d, s75, %d" % (S_SIG, C_P)); k("s_mul_i32 s%d, s%d, %d" % (S_SIG, S_SIG, cfg.CS))
    k("s_lshl_b32 s75, s75, 2"); k("s_add_u32 s75, s75, s%d" % S_W)
    k("s_mul_i32 s76, s75, 205"); k("s_lshr_b32 s76, s76, 11")
    k("s_mul_i32 s77, s76, 10"); k("s_sub_u32 s77, s75, s77")
    k("s_cmp_ge_u32 s76, 19")
    k("s_cselect_b32 s78, 0x4000000, 0")
    k("s_mul_i32 s80, s76, %d" % (32*1280)); k("s_lshl_b32 s81, s77, 7"); k("s_add_u32 s80, s80, s81"); k("s_add_u32 s80, s80, s78")
    k("v_lshrrev_b32 v24, 3, v0"); k("v_and_b32 v25, 7, v0")
    k("v_and_b32 v26, 6, v24"); k("v_xor_b32 v26, v26, v25"); k("v_lshlrev_b32 v26, 4, v26")
    k("v_mul_u32_u24 v32, 1280, v24"); k("v_add_u32 v32, v32, v26")
    k("v_lshrrev_b32 v27, 2, v24"); k("v_and_b32 v28, 3, v24"); k("v_lshl_add_u32 v27, v27, 3, v28")
    k("v_mul_u32_u24 v36, 1280, v27"); k("v_add_u32 v36, v36, v26")
    for i in range(1, 4):
        k("v_add_u32 v%d, %d, v32" % (32+i, i*8*1280))
        k("v_add_u32 v%d, %d, v36" % (36+i, (16*(i&1) + 4*(i>>1))*1280))
    k("s_lshl_b32 s82, s%d, 14" % S_W); k("s_add_u32 s82, s82, %d" % QST)
    k("s_waitcnt lgkmcnt(0)")
    srd(k, SRD_W1, P_WD, 0, 1728*1280)
    srd(k, SRD_W0, P_WO, 0, 640*1280)
    def load(n, sg, vb, off):
        k("s_add_u32 s81, s80, %s" % off)
        for j in range(4):
            k("s_add_u32 m0, s82, %d" % (n*4096 + j*1024))
            k.vm("buffer_load_dwordx4 v%d, s[%d:%d], s81 offen nt lds" % (vb+j, sg, sg+3), ("u", n))
    load(0, SRD_W1, 32, "%d" % (18*32*1280))
    load(1, SRD_W1, 32, "%d" % (37*32*1280))
    load(2, SRD_W0, 36, "0")
    k("s_cmp_eq_u32 s76, 0")
    for i in range(3): k("s_cselect_b32 s%d, s%d, s%d" % (96+i, SRD_W0+i, SRD_W1+i))
    k("s_mov_b32 s99, 0x20000")
    k("s_cselect_b64 vcc, -1, 0")
    k("s_mov_b32 s72, %d" % (19*32*1280))
    k("s_cselect_b32 s72, s72, %d" % (-32*1280 & 0xffffffff))
    for j in range(4): k("v_cndmask_b32 v%d, v%d, v%d, vcc" % (40+j, 32+j, 36+j))
    load(3, 96, 40, "s72")
    k("s_mul_i32 s3, s75, 5120")
    srd(k, SRD_O, P_WS, B2_OFF, B2_SZ)
    for t in late_setup_items(): k(t)
    k("v_lshrrev_b32 v44, 2, v0"); k("v_bfe_u32 v45, v44, 1, 2"); k("v_and_b32 v46, 3, v0")
    k("v_lshlrev_b32 v44, 7, v44"); k("v_lshl_add_u32 v44, v46, 3, v44"); k("v_add_u32 v44, s82, v44")
    for b in range(4):
        k("v_xor_b32 v46, %d, v45" % b); k("v_lshl_add_u32 v%d, v46, 5, v44" % (48+b))
    D0 = 4
    for b in range(4):
        k("s_lshl_b32 s72, s77, 2"); k("s_add_u32 s72, s72, %d" % b)
        k("s_mul_i32 s73, s72, 205"); k("s_lshr_b32 s73, s73, 10")
        k("s_mul_i32 s74, s73, 5"); k("s_sub_u32 s72, s72, s74")
        k("s_mul_i32 s73, s73, 74"); k("s_add_u32 s73, s73, s76")
        k("s_mul_i32 s73, s73, 5"); k("s_add_u32 s73, s73, s72")
        k("s_lshl_b32 s73, s73, 10")
        k("s_add_u32 s%d, s73, s78" % (D0+b))
    k("s_cmp_lt_u32 s76, 17"); k("s_cselect_b32 s100, 0, 0x4000000")
    k("s_mov_b32 s%d, 3840" % S_STRIDE)
    k("s_mul_i32 s%d, s79, 320" % S_T1)
    k("s_and_b32 s%d, s%d, 127" % (S_DELTA, S_T1)); k("s_sub_u32 s75, s%d, s%d" % (S_T1, S_DELTA))
    k("s_add_u32 s76, s75, %d" % (32*3840))
    k("s_sub_u32 s77, %d, s75" % (640*3840)); k("s_sub_u32 s78, %d, s76" % (640*3840))
    srd(k, SRD_W0, P_WQKV, 0, "s77", 75)
    srd(k, SRD_W1, P_WQKV, 0, "s78", 76)
    gemm_setup(k)
    k("s_mov_b32 s%d, %d" % (S_T3, 64*3840))
    k("s_mul_i32 s%d, s%d, %d" % (S_T0, S_W, 16*1280))
    for i in range(4): k("v_add_u32 v%d, s%d, v%d" % (V_XD+i, S_T0, V_XD+i))
    k("s_add_u32 s%d, s%d, %d" % (S_XL, S_WL, QXB))
    k("s_mov_b32 s101, %d" % (32*1280))
    k("s_mul_i32 s%d, s%d, %d" % (S_T0, S_MT, 192*1280))
    k("s_min_u32 s%d, s%d, %d" % (S_T0, S_T0, 2048*1280))
    k("s_sub_u32 s%d, %d, s%d" % (S_T1, 2048*1280, S_T0))
    srd(k, SRD_X, P_X, 0, "s%d" % S_T1, S_T0)
    k("s_lshl_b32 s%d, s%d, 2" % (S_T0, S_MT)); k("s_add_u32 s%d, s%d, s%d" % (S_T0, S_T0, S_W)); k("s_mul_i32 s%d, s%d, %d" % (S_T0, S_T0, 16*3840))
    k("v_lshrrev_b32 v44, 2, v0"); k("v_mul_u32_u24 v44, 3840, v44"); k("v_and_b32 v45, 3, v0"); k("v_min_u32 v45, 2, v45"); k("v_lshl_add_u32 v44, v45, 7, v44")
    k.vm("buffer_load_dword v%d, v44, s[%d:%d], s%d offen" % (V_JUNK, SRD_W0, SRD_W0+3, S_T0), "pf")
    gemm_setup2(k, True)
    k("s_mul_i32 s%d, s%d, %d" % (S_T0, S_RH, 12288 - 8192)); k("s_sub_u32 s%d, s%d, %d" % (S_T0, S_T0, XBASE - QXB))
    for i in range(2): k("v_add_u32 v%d, s%d, v%d" % (V_XR+i, S_T0, V_XR+i))
    stamp(k, 1)
    for n, ks0 in enumerate((38, 57, 0, 19)):
        k.wait(vm=("u", n))
        F = 64 + n*16
        for b in range(4):
            for h in range(2): k.lg("ds_read_b64_tr_b16 %s, v%d offset:%d" % (vr(F+4*b+2*h,2), 48+b, n*4096 + h*2048))
        for b in range(4):
            k("s_add_u32 s%d, s%d, %d" % (72+b, D0+b, ks0*5120))
            if ks0 == 57: k("s_add_u32 s%d, s%d, s100" % (72+b, 72+b))
        k.wait(lg="all")
        for b in range(4):
            k.vm("buffer_store_dwordx4 %s, v%d, s[%d:%d], s%d offen%s" % (vr(F+4*b,4), V_L16, SRD_O, SRD_O+3, 72+b, SC), "rs")
    srd(k, 96, P_WS, KVP_OFF, KVP_SZ + 16*4096)
    for i in range(4): k("v_mov_b32 v%d, -1" % (56+i))
    for j in range(4): k.vm("buffer_store_dwordx4 v[56:59], v%d, s[96:99], s3 offen offset:%d%s" % (V_L16, j*1024, SC), "rs")
    k.vm("buffer_store_dwordx4 v[56:59], v%d, s[96:99], s3 offen%s" % (V_L16B, SC), "rs")
    sv = list(k.vmq)
    k("s_cmp_eq_u32 s%d, 11" % S_MT); k("s_cbranch_scc1 L_spare")
    def wd(s): return [("s_add_u32 m0, s%d, %d" % (S_WL, (s % 3)*WSLOT + i*1024 - (i % 3)*128), b, c) for i, (a, b, c) in enumerate(w_dma(s))]
    def xd(s): return [("s_add_u32 m0, s%d, %d" % (S_XL, (s % 3)*WSLOT + i*1024 - s*128),
                        "buffer_load_dwordx4 v%d, s[%d:%d], %s offen offset:%d lds" % (V_XD + (i if i < 4 else i-4), SRD_X, SRD_X+3, "0" if i < 4 else "s101", s*128), ("X", s)) for i in range(6)]
    def now(items, adv):
        for it in items: k(it[0]); k.vm(it[1], it[2])
        if adv: wadv(k)
    now(xd(0), 0); now(wd(0), 1); now(wd(1), 1)
    k("s_lshl_b32 s79, s79, 1"); k("s_add_u32 s79, s79, s%d" % S_C); k("s_mul_i32 s80, s79, 3200")
    srd(k, SRD_P, P_WPHI, 0, 3200, 80)
    k.wait(vm="rs")
    signal(k, P_DBG, D_S1)
    stamp(k, 2)
    now(xd(1), 0)
    k("s_lshl_b32 s82, s%d, 12" % S_W); k("s_add_u32 s82, s82, %d" % SPARE)
    now([("s_mov_b32 m0, s82", "buffer_load_dwordx4 v%d, s[%d:%d], 0 offen offset:%d lds" % (V_L16, SRD_P, SRD_P+3, i*1024), "P") for i in range(4)], 0)
    k("v_lshrrev_b32 v50, 4, v0"); k("v_and_b32 v51, 15, v0"); k("v_bfe_u32 v52, v0, 2, 2"); k("v_and_b32 v53, 3, v0")
    k("v_mul_u32_u24 v48, 800, v50"); k("v_mad_u32_u24 v48, v52, 40, v48")
    k("v_cmp_eq_u32 vcc, v50, v53"); k("v_mov_b32 v49, 3200"); k("v_cndmask_b32 v48, v49, v48, vcc")
    k("v_add_u32 v%d, s82, v48" % V_PHA); k("v_add_u32 v26, s82, v49")
    k("s_mov_b32 s%d, %d" % (S_T0, 128*1280)); k("v_mul_lo_u32 v48, v50, s%d" % S_T0); k("v_lshl_add_u32 v%d, v51, 4, v48" % V_E0)
    k("s_mul_i32 s76, s%d, 12" % S_MT); k("s_mul_i32 s77, s%d, 6" % S_RH); k("s_add_u32 s76, s76, s77")
    k("s_mul_i32 s75, s79, %d" % (4*128*1280)); k("s_mul_i32 s77, s76, 1280"); k("s_add_u32 s75, s75, s77")
    srd(k, SRD_O, P_WS, PQ_OFF, PQ_SZ)
    for r in (42, 43, 54, 55): k("v_mov_b32 v%d, 0" % r)
    def rds(s):
        out = []; b = s & 1; sl = (s % 3)*WSLOT
        for rt in range(6):
            for hh in range(2): out.append("ds_read_b128 %s, v%d offset:%d" % (R(QX0 + (b*12+rt*2+hh)*4, 4), V_XR + hh, sl + rt*2048))
        for p in range(5):
            for hh in range(2):
                for h in range(2): out.append("ds_read_b64_tr_b16 %s, v%d offset:%d" % (R(QW0 + (b*10+p*2+hh)*4 + 2*h, 2), V_TA + p, sl + hh*3072 + h*512))
        return out
    def ph(to, s): return QPH + 4*(s*5 + to)
    prd = []
    for s in range(3):
        for to in range(5):
            for h in range(2):
                if s == 2 and h == 1: prd.append("ds_read_b64_tr_b16 %s, v26" % R(ph(to,s)+2*h,2))
                else: prd.append("ds_read_b64_tr_b16 %s, v%d offset:%d" % (R(ph(to,s)+2*h,2), V_PHA, (8*s+4*h)*40 + 8*to))
    k.wait(vm=[("X", 0), ("W", 0)])
    k("s_barrier")
    stamp(k, 3)
    for r in rds(0): k.lg(r)
    now(wd(2), 1); now(xd(2), 0)
    k.wait(vm=[("X", 1), ("W", 1)], lg="all")
    k("s_barrier")
    for s in range(10):
        b = s & 1
        rd = rds(s+1) if s < 9 else list(prd)
        dm = [(e, i == 5) for i, e in enumerate(wd(s+3))] + [(e, False) for e in xd(s+3)] if s + 3 < 10 else []
        if s == 9: dm = [(e, False) for e in b_items(range(27, 32))]
        mf = ["v_mfma_f32_16x16x32_bf16 %s, %s, %s, %s" % (vr(qacc(p,rt),4), R(QW0 + (b*10+p*2+hh)*4, 4), R(QX0 + (b*12+rt*2+hh)*4, 4), vr(qacc(p,rt),4) if (s or hh) else "0")
              for p in range(5) for rt in range(6) for hh in range(2)]
        nm = len(mf); nd = len(dm)
        at = [int(i * (nm - 3) / max(nd, 1)) for i in range(nd)]
        pend = None
        for m, t in enumerate(mf):
            k(t)
            if rd: k.lg(rd.pop(0))
            if s == 7 and m == nm - 1: poll_issue(k, P_DBG, D_S1, "s1")
            if pend is not None:
                k.vm(pend[0][1], pend[0][2])
                if pend[1]: wadv(k)
                pend = None
            elif dm and m >= at[nd - len(dm)]:
                pend = dm.pop(0)
                if pend[0][0]: k(pend[0][0])
        assert not rd and not dm and pend is None
        if s < 9:
            k.wait(vm=[("W", s+2), ("X", s+2)], lg="all")
            if s == 8: poll_check(k, P_DBG, N_S1, "s1", sleep=8, barrier=False)
            k("s_barrier")
    stamp(k, 4)
    def cin(rt):
        o = []
        for t in range(5):
            a = qacc(t, rt); B = 32 + (rt & 1)*12
            o += ["v_cvt_pk_bf16_f32 v%d, v%d, v%d" % (B+2*t, a, a+1), "v_cvt_pk_bf16_f32 v%d, v%d, v%d" % (B+2*t+1, a+2, a+3)]
        return o
    def pmf(rt): return ["v_mfma_f32_16x16x32_bf16 %s, %s, %s, %s" % (vr(qacc(to,rt),4), R(ph(to, s),4), vr(32+(rt & 1)*12+4*s,4), vr(qacc(to,rt),4) if s else "0") for s in range(3) for to in range(5)]
    def stores(rt):
        o = ["s_add_u32 s77, s75, %d\ns_cmp_lt_u32 s76, %d\ns_cselect_b32 s77, s77, 0x4000000" % (rt*1280, 128 - rt)]
        return o + [("vm", "buffer_store_dwordx4 %s, v%d, s[%d:%d], s77 offen offset:%d%s" % (vr(qacc(t,rt),4), V_E0, SRD_O, SRD_O+3, t*256, SC), "st") for t in range(5)]
    for t in cin(0): k(t)
    k.wait(lg="all")
    weave(k, pmf(0), cin(1))
    fd = Feed(k, b_items(list(range(0, 12)) + list(range(32, 62))) + bo_items()[:cfg.BOQ])
    prev = []
    for rt in range(6):
        v = [qacc(t, rt) + i for t in range(5) for i in range(4)]
        fd.emit(cfg.QX)
        softmax_pm(k, v[::2], 184, 204, None, fd, pmf(rt+1) if rt < 5 else None, prev, inplace=v)
        fd.emit(cfg.QX)
        if rt < 4:
            for t in cin(rt+2): k(t)
        prev = stores(rt)
    weave(k, [], prev)
    stamp(k, 26)
    rest = b_items(list(range(12, 27)) + list(range(62, 70)))
    Feed(k, rest[:6]).drain()
    k.wait(vm="st")
    stamp(k, 5)
    signal(k, S_CNT, "s%d" % S_SIG)
    left = [x for x in fd.q]
    nb = [x[2][1] for x in left if isinstance(x[2], tuple)]
    nbo = sum(1 for x in left if x[2] == "BO")
    assert nbo % 5 == 0 or True
    assert not nb
    Feed(k, left).drain()
    k("s_branch L_qtail")
    k.label("L_spare")
    k.vmq = sv; k.lgq = []
    k("s_cmp_eq_u32 s79, 0")
    k("s_cselect_b32 s%d, %d, 0" % (S_T0, 96*cfg.CS))
    srd(k, 96, P_WS, CNT_OFF, "s%d" % S_T0)
    for i in range(4): k("v_mov_b32 v%d, 0" % (56+i))
    k("s_mul_i32 s%d, s%d, %d" % (S_T0, S_W, 24*cfg.CS))
    k("v_mul_u32_u24 v60, %d, v24" % cfg.CS); k("v_lshl_add_u32 v60, v25, 4, v60")
    for i in range(3):
        k.vm("buffer_store_dwordx4 v[56:59], v60, s[96:99], s%d offen%s" % (S_T0, SC), "rs")
        k("s_add_u32 s%d, s%d, %d" % (S_T0, S_T0, 8*cfg.CS))
    k("s_lshl_b32 s72, s79, 2"); k("s_add_u32 s72, s72, s%d" % S_W)
    srd(k, SRD_X, P_X, 0, 2048*1280)
    srd(k, SRD_P, P_GW, 0, 1280)
    srd(k, SRD_W0, P_WS, G_OFF, G_SZ)
    k("v_and_b32 v24, 15, v0"); k("v_lshrrev_b32 v25, 4, v0")
    k("v_lshlrev_b32 v26, 4, v24")
    for j in range(5): k.vm("buffer_load_dwordx4 %s, v26, s[%d:%d], 0 offen offset:%d" % (vr(32+4*j,4), SRD_P, SRD_P+3, 256*j), "gw")
    k.wait(vm="rs")
    signal(k, P_DBG, D_S1)
    stamp(k, 2)
    k("v_lshlrev_b32 v27, 3, v25"); k("v_mul_u32_u24 v27, 1280, v27"); k("v_add_u32 v27, v27, v26")
    k("v_lshl_add_u32 v28, v25, 3, v24"); k("v_lshlrev_b32 v28, 2, v28")
    k("v_mov_b32 v30, 0x7fffffff"); k("v_cmp_gt_u32 vcc, 8, v24"); k("v_cndmask_b32 v28, v30, v28, vcc")
    k("s_mul_i32 s74, s72, %d" % (128*1280)); k("s_lshl_b32 s75, s72, 9")
    def gl(n):
        for j in range(5): k.vm("buffer_load_dwordx4 %s, v27, s[%d:%d], s74 offen offset:%d" % (vr(64+(n % 8)*20+4*j,4), SRD_X, SRD_X+3, 256*j), ("gx", n))
        k("s_add_u32 s74, s74, %d" % (1280 if n % 8 != 7 else 25*1280))
    for n in range(3): gl(n)
    k("s_mov_b32 s76, 0")
    k.label("L_gate")
    for it in range(8):
        k.wait(vm=("gx", it))
        gl(it + 3)
        k("v_mov_b32 v30, 0")
        for j in range(20): k("v_dot2c_f32_bf16 v30, v%d, v%d" % (64+it*20+j, 32+j))
        k("s_nop 3")
        for sh in (8, 4, 2, 1): k("v_add_f32_dpp v30, v30, v30 row_ror:%d row_mask:0xf bank_mask:0xf" % sh)
        k("v_cmp_eq_u32 vcc, %d, v24" % it)
        k("v_cndmask_b32 v29, v29, v30, vcc")
    k("v_mul_f32 v31, %s, v29" % f32(-LOG2E)); k("v_exp_f32 v31, v31"); k("v_add_f32 v31, 1.0, v31"); k("v_rcp_f32 v31, v31")
    k("s_nop 0")
    k("buffer_store_dword v31, v28, s[%d:%d], s75 offen%s" % (SRD_W0, SRD_W0+3, SC))
    k("s_add_u32 s75, s75, 128"); k("s_add_u32 s76, s76, 1"); k("s_cmp_lt_u32 s76, 4"); k("s_cbranch_scc1 L_gate")
    k("s_waitcnt vmcnt(0)"); k.vmq = []
    signal(k, P_DBG, D_S3)
    stamp(k, 4)
    poll_issue(k, P_DBG, D_S1, "s1"); poll_check(k, P_DBG, N_S1, "s1", sleep=16)
    Feed(k, b_items(list(range(18)) + list(range(27, 62))) + bo_items()[:cfg.BOQ]).drain()
    stamp(k, 5)
    k.label("L_qtail")

def pack_inplace(v, E):
    out = ["v_cvt_pk_bf16_f32 v%d, v%d, v%d" % (v[10+i], v[2*i], v[2*i+1]) for i in range(9, -1, -1)]
    out += ["v_cvt_pk_bf16_f32 v%d, v%d, v%d" % (v[i], E+2*i, E+2*i+1) for i in range(10)]
    return out
def minmax(v, T):
    out = ["v_max3_f32 v%d, v%d, v%d, v%d" % (T, v[0], v[1], v[2]), "v_min3_f32 v%d, v%d, v%d, v%d" % (T+2, v[0], v[1], v[2]),
           "v_max3_f32 v%d, v%d, v%d, v%d" % (T+1, v[3], v[4], v[5]), "v_min3_f32 v%d, v%d, v%d, v%d" % (T+3, v[3], v[4], v[5])]
    for n, i in enumerate(range(6, 20, 2)):
        c = n & 1
        out += ["v_max3_f32 v%d, v%d, v%d, v%d" % (T+c, T+c, v[i], v[i+1]), "v_min3_f32 v%d, v%d, v%d, v%d" % (T+2+c, T+2+c, v[i], v[i+1])]
    out += ["v_max_f32 v%d, v%d, v%d" % (T, T, T+1), "v_min_f32 v%d, v%d, v%d" % (T+2, T+2, T+3),
            "v_mul_f32 v%d, %s, v%d" % (T, f32(-LOG2E), T), "v_mul_f32 v%d, %s, v%d" % (T+2, f32(LOG2E), T+2)]
    return out
def softmax_scalar(v, E, T):
    o = [(1, t) for t in minmax(v, T)]
    for i in range(20): o.append((1, "v_fma_f32 v%d, v%d, s%d, v%d" % (E+i, v[i], S_C2, T)))
    for i in range(20): o.append((1, "v_fma_f32 v%d, -v%d, s%d, v%d" % (v[i], v[i], S_C2, T+2)))
    for x in [E+i for i in range(20)] + v: o.append((2, "v_exp_f32 v%d, v%d" % (x, x)))
    e = [E+i for i in range(20)]
    for c, (src, d) in enumerate(((e, T), (v, T+2))):
        o += [(1, "v_add_f32 v%d, v%d, v%d" % (d, src[0], src[1])), (1, "v_add_f32 v%d, v%d, v%d" % (d+1, src[2], src[3]))]
    for i in range(4, 20, 2):
        for src, d in ((e, T), (v, T+2)):
            o += [(1, "v_add_f32 v%d, v%d, v%d" % (d, d, src[i])), (1, "v_add_f32 v%d, v%d, v%d" % (d+1, d+1, src[i+1]))]
    o += [(1, "v_add_f32 v%d, v%d, v%d" % (T, T, T+1)), (1, "v_add_f32 v%d, v%d, v%d" % (T+2, T+2, T+3)),
          (2, "v_rcp_f32 v%d, v%d" % (T, T)), (2, "v_rcp_f32 v%d, v%d" % (T+2, T+2))]
    for x in e: o.append((1, "v_mul_f32 v%d, v%d, v%d" % (x, x, T)))
    for x in v: o.append((1, "v_mul_f32 v%d, v%d, v%d" % (x, x, T+2)))
    o += [(1, t) for t in pack_inplace(v, E)]
    return o

PHB = 102400; KVB = PHB + 20480; RED = PHB
def tail(k, nu, pre, late, bolate, MF, presig=None, reducer=False):
    nsig = nu
    if cfg.X_END:
        if presig: presig()
        k("s_endpgm"); return
    if not presig: k.flush_counters()
    stamp(k, 6)
    def ch():
        k("s_lshr_b32 s82, s%d, 1" % S_M64); k("s_mul_i32 s82, s82, %d" % cfg.CS)
        poll_issue(k, S_CNT, "s82", "h_ok")
    if not presig: ch()
    k("v_and_b32 v24, 15, v0"); k("v_lshrrev_b32 v25, 4, v0")
    k("s_mul_i32 s%d, s%d, %d" % (S_T0, S_M64, 74*4096))
    srd(k, SRD_X, P_WS, A2_OFF, 74*4096, S_T0)
    k("s_add_u32 s80, s%d, 20" % S_W); k("s_lshl_b32 s80, s80, 12")
    VA = 26
    for j in range(4):
        k("s_add_u32 s75, s%d, %d" % (S_W, j)); k("s_and_b32 s75, s75, 3"); k("s_lshl_b32 s75, s75, 10")
        k("v_add_u32 v%d, s75, v%d" % (VA+j, V_L16))
    A0 = 64
    XD = 0 if reducer else (cfg.XD if nu else 4)
    def af(i): return 192 + 16*i if i < XD else 144 + ((i - XD) % 3)*16
    TO = (1, 2, 3, 0)
    def a_load(i, j):
        k.vm("buffer_load_dwordx4 %s, v%d, s[%d:%d], s80 offen%s" % (vr(af(i)+4*j,4), VA+j, SRD_X, SRD_X+3, LSC), ("A", i, j))
        if j == TO[3]: k("s_add_u32 s80, s80, %d" % (4*4096))
    def setup(q):
        T0, T1, T2 = 5, 8, 9
        srd(q, SRD_W1, P_WS, G_OFF, G_SZ)
        srd(q, SRD_P, P_WS, PQ_OFF, PQ_SZ)
        srd(q, SRD_W0, P_WS, KVF_OFF, 16*4096)
        srd(q, SRD_O, P_WS, A2_OFF, A2_SZ)
        q("v_lshlrev_b32 v6, 2, v24"); q("v_lshlrev_b32 v7, 4, v24")
        q("s_mul_i32 s72, s%d, %d" % (S_OH, 2*128*1280))
        q("s_lshl_b32 s75, s%d, 2" % S_OMT); q("s_add_u32 s75, s75, s%d" % S_W); q("s_mul_i32 s81, s75, 2560")
        q("s_add_u32 s81, s81, s72"); q("s_add_u32 s101, s81, %d" % (128*1280))
        q("s_lshl_b32 s%d, s75, 7" % S_T2)
        q("s_lshl_b32 s75, s%d, 1" % S_OMT)
        q("v_min_u32 v17, 1, v0"); q("v_mul_u32_u24 v17, %d, v17" % (2*nu-1)); q("v_add_u32 v17, s75, v17"); q("v_mul_u32_u24 v17, 171, v17"); q("v_lshrrev_b32 v17, 9, v17")
        q("s_lshr_b32 s75, s%d, 2" % S_OH); q("s_mul_i32 s75, s75, 12"); q("s_add_u32 s75, s75, %d" % C_P)
        q("v_add_u32 v17, s75, v17"); q("v_mul_u32_u24 v17, %d, v17" % cfg.CS)
        q("v_mov_b32 v30, 0x7fffffff")
        q("s_mul_i32 s72, s%d, 5" % S_OH)
        for dst, add, nvalid in ((12, 0, 3), (13, 3, 2)):
            q("v_add_u32 v%d, s72, v25" % T2)
            if add: q("v_add_u32 v%d, %d, v%d" % (T2, add, T2))
            q("v_lshrrev_b32 v%d, 2, v%d" % (T0, T2))
            q("v_lshlrev_b32 v%d, 12, v%d" % (T0, T0))
            q("v_and_b32 v%d, 3, v%d" % (T1, T2))
            q("v_lshl_add_u32 v%d, v%d, 8, v%d" % (T0, T1, T0))
            q("v_lshl_add_u32 v%d, v24, 4, v%d" % (T0, T0))
            q("v_cmp_gt_u32 vcc, %d, v25" % nvalid)
            q("v_cndmask_b32 v%d, v30, v%d, vcc" % (dst, T0))
        q("s_lshl_b32 s73, s%d, 1" % S_OMT); q("s_add_u32 s73, s73, s%d" % S_C)
        q("s_mul_i32 s73, s73, %d" % (74*4096))
        q("s_lshl_b32 s75, s%d, 11" % S_RH); q("s_add_u32 s73, s73, s75")
        q("s_lshl_b32 s74, s%d, 2" % S_OH); q("s_add_u32 s74, s74, s%d" % S_W); q("s_lshl_b32 s74, s74, 10")
        q("v_bfe_u32 v%d, v0, 2, 2" % T0); q("v_and_b32 v%d, 3, v0" % T1)
        q("v_lshl_add_u32 v%d, v%d, 3, v%d" % (T2, T0, T1))
        for hd in range(2):
            for i in range(3):
                d = 18 + hd*3 + i
                if i == 2: q("v_mov_b32 v%d, %d" % (d, KVB + 1600 + hd*1680))
                else:
                    q("v_add_u32 v16, %d, v%d" % (4*i + 4*hd, T2)); q("v_min_u32 v16, 20, v16")
                    if hd == 1 and i == 0:
                        q("v_cmp_eq_u32 vcc, 2, v%d" % T0); q("v_cndmask_b32 v16, v16, v%d, vcc" % T1)
                    q("v_mul_u32_u24 v16, 80, v16")
                    q("v_add_u32 v%d, %d, v16" % (d, KVB + hd*1680))
        q("v_cmp_eq_u32 s[78:79], 0, v25")
        q("v_cmp_eq_u32 s[76:77], 2, v25")
        q("v_mov_b32 v30, %d" % (KVB + 3584 - 64))
        q("s_lshl_b32 s75, s%d, 10" % S_W); q("s_add_u32 s75, s75, %d" % KVB); q("v_add_u32 v10, s75, v%d" % V_L16)
    def setup0(q):
        srd(q, SRD_W1, P_WS, G_OFF, G_SZ)
        q("v_lshlrev_b32 v6, 2, v24")
    su = [t for _, t in capture(setup if nu else setup0)]
    fd = Feed(k, [])
    if presig:
        for t in su: k(t)
        su = []
        presig()
        fd.q += pre[:cfg.FPRE]; pre = pre[cfg.FPRE:]
        fd.emit(max(0, len(fd.q) - 4)); ch(); fd.drain()
    stamp(k, 8)
    poll_check(k, S_CNT, 9, "h_ok")
    stamp(k, 9)
    for i in range(3 + XD):
        for j in TO: a_load(i, j)
    for t in su: k(t)
    def sent(regs, t):
        k("v_max3_u32 v%d, v%d, v%d, v%d" % (t, regs[0], regs[1], regs[2]))
        rest = regs[3:]
        while len(rest) >= 2:
            k("v_max3_u32 v%d, v%d, v%d, v%d" % (t, t, rest[0], rest[1])); rest = rest[2:]
        if rest: k("v_max_u32 v%d, v%d, v%d" % (t, t, rest[0]))
    def do_reduce():
        e = k.newlabel("Lnr")
        sv = list(k.vmq)
        srd(k, SRD_W0, P_WS, KVF_OFF, 16*4096)
        k("s_lshl_b32 s74, s%d, 2" % S_OH); k("s_add_u32 s74, s74, s%d" % S_W); k("s_lshl_b32 s74, s74, 10")
        stamp(k, 17)
        srd(k, SRD_T, P_WS, KVP_OFF, KVP_SZ)
        k("s_lshl_b32 s75, s%d, 10" % S_W)
        k("v_add_u32 v11, s75, v%d" % V_L16)
        k("v_mov_b32 v14, 0x7fffffff")
        k("v_cmp_gt_u32 vcc, 3360, v11")
        k("v_cndmask_b32 v11, v14, v11, vcc")
        k("s_mul_i32 s72, s%d, %d" % (S_OH, 16*KVPS))
        SEL = 240
        k("v_bfe_u32 v5, v0, 2, 2"); k("v_and_b32 v8, 3, v0")
        k("v_and_b32 v14, 1, v0"); k("v_lshlrev_b32 v14, 4, v14")
        k("v_mov_b32 v15, 0x3f80"); k("v_lshlrev_b32 v14, v14, v15")
        k("v_cmp_eq_u32 vcc, v5, v25"); k("v_cndmask_b32 v14, 0, v14, vcc")
        k("v_cmp_gt_u32 vcc, 2, v8"); k("v_cndmask_b32 v15, 0, v14, vcc"); k("v_cndmask_b32 v14, v14, 0, vcc")
        for r, src in ((120, "v15"), (121, "v14"), (122, "0"), (123, "0"), (124, "0"), (125, "0"), (126, "v15"), (127, "v14")):
            k("v_accvgpr_write_b32 a%d, %s" % (r, src))
        l = k.newlabel("Lkp"); d = k.newlabel("Lkd")
        k("s_mov_b32 s95, 0x4000")
        k.label(l)
        k.vmq = []
        RA = 248
        def kr(p): return 192 + 4*(p % 14)
        def kl(p):
            k("s_add_u32 s75, s72, %d" % (p*KVPS))
            k.vm("buffer_load_dwordx4 %s, v11, s[%d:%d], s75 offen%s" % (vr(kr(p),4), SRD_T, SRD_T+3, SC), ("kp", p))
        for p in range(14): kl(p)
        for p in range(16):
            k.wait(vm=("kp", p))
            for h in range(2): k("v_mfma_f32_16x16x32_bf16 %s, %s, %s, %s" % (vr(RA+4*h,4), ar(120+4*h,4), vr(kr(p),4), vr(RA+4*h,4) if p else "0"))
            r = [kr(p)+i for i in range(4)]
            sent(r if p == 0 else [9] + r, 9)
            if p < 2: kl(14+p)
        k("v_cmp_eq_u32 vcc, -1, v9")
        k("s_sub_u32 s95, s95, 1")
        k("s_cmp_eq_u64 vcc, 0")
        k("s_cbranch_scc1 %s" % d)
        k("s_cmp_lg_u32 s95, 0")
        k("s_cbranch_scc1 %s" % l)
        k.label(d)
        k("s_nop 3")
        for i in range(4): k("v_cvt_pk_bf16_f32 v%d, v%d, v%d" % (192+i, RA+2*i, RA+1+2*i))
        k("buffer_store_dwordx4 v[192:195], v%d, s[%d:%d], s74 offen%s" % (V_L16, SRD_W0, SRD_W0+3, SC))
        stamp(k, 18)
        k.label(e)
        k.vmq = sv
    fl = Feed(k, list(pre) + b_items(late) + bolate)
    bolate = []
    lds = []
    cnt = [0]
    order = [(i, j) for i in range(11) for j in TO] + [(i, j) for j in TO for i in range(11, 14)]
    def main():
        for (i, j) in order:
            pend = set(t[2][1] for t in fl.q if isinstance(t[2], tuple) and t[2][0] == "B")
            assert not (pend & set(range(i*5, i*5+5))), (i, pend)
            k.wait(vm=[("A", i, j)] + [("B", i*5+ct) for ct in range(5)])
            for ct in range(5):
                a = A0 + (j*5+ct)*4
                k("v_mfma_f32_16x16x32_bf16 %s, %s, %s, %s" % (vr(a,4), R(bloc(i*5+ct),4), vr(af(i)+4*j,4), vr(a,4) if i else "0"))
                cnt[0] += 1
                if lds: emit1(k, lds.pop(0))
                if ct == 4 and i >= XD and i + 3 < 14: a_load(i + 3, j)
                if ct in cfg.FLAT: fl.emit(1)
                yield 1
    g = main()
    def run(n):
        for _ in range(n): next(g, None)
    def upto(m): run(max(0, m - cnt[0]))
    def mix(items, per):
        for i, it in enumerate(items):
            emit1(k, it)
            if i % per == per-1: run(1)
    if reducer:
        upto(cfg.MK); do_reduce()
    if nu:
        run(5); poll_issue(k, P_DBG, D_S3, "s3"); run(25)
        poll_check(k, P_DBG, N_S3, "s3", sleep=8, barrier=False)
    if nu:
        def oa(i): return bloc(i)
        MF = max(MF, 100)
        upto(max(MF - 60, 20*XD))
        k("v_mov_b32 v%d, v17" % V_PT); _pload(k, S_CNT, "p_ok")
        upto(max(MF - 35, 80))
        poll_check(k, S_CNT, 1, "p_ok"); stamp(k, 7)
        UO = 8 if cfg.U2 else 0
        def pql(u):
            it = ["s_add_u32 s81, s81, 10240", "s_add_u32 s101, s101, 10240"] if u else []
            for hd in range(2):
                so = ("s81", "s101")[hd]
                for r2 in range(2):
                    it.append(("vm", "buffer_load_dwordx4 %s, v%d, s[%d:%d], %s offen offset:%d%s" % (R(oa(12+UO*u+hd*4+2*r2),4), V_L16, SRD_P, SRD_P+3, so, r2*1280, SC), ("pq", u)))
                    it.append(("vm", "buffer_load_dwordx4 %s, v7, s[%d:%d], %s offen offset:%d%s" % (R(oa(13+UO*u+hd*4+2*r2),4), SRD_P, SRD_P+3, so, r2*1280+1024, SC), ("pq", u)))
            return it
        gl = [("vm", "buffer_load_dword v%d, v6, s[%d:%d], s%d offen offset:%d%s" % (250+2*u+r2, SRD_W1, SRD_W1+3, S_T2, u*512 + r2*64, SC), ("pq", 0)) for u in range(nu) for r2 in range(2)]
        mix(pql(0) + gl, 1)
        ld = "buffer_load_dwordx4 v[192:195], v%d, s[%d:%d], s74 offen%s" % (V_L16, SRD_W0, SRD_W0+3, SC)
        k.vm(ld, "kf"); run(cfg.KLAT); upto(MF)
        stamp(k, 10)
        l = k.newlabel("Lkf"); d = k.newlabel("Lkg")
        k.wait(vm="kf")
        k("s_mov_b32 s95, 0x8000")
        k.label(l)
        sent([192, 193, 194, 195], 196)
        k("v_cmp_eq_u32 vcc, -1, v196")
        k("s_sub_u32 s95, s95, 1")
        k("s_cmp_eq_u64 vcc, 0")
        k("s_cbranch_scc1 %s" % d)
        k("s_sleep %d" % cfg.SLP)
        k(ld)
        k("s_waitcnt vmcnt(0)")
        k("s_cmp_lg_u32 s95, 0")
        k("s_cbranch_scc1 %s" % l)
        k.label(d)
        stamp(k, 11)
        k.lg("ds_write_b128 v10, v[192:195]", "kw")
        run(4)
        k.wait(lg="all"); k("s_barrier"); stamp(k, 28)
        it = []
        for hd in range(2):
            for i in range(3):
                it += ["v_lshl_add_u32 v15, v25, 4, v%d" % (18+hd*3+i), "v_cndmask_b32 v14, v30, v%d, s[78:79]" % (18+hd*3+i),
                       ("lg", "ds_read_b128 %s, v15" % R(oa(hd*6+2*i),4), ("o", 0, hd)), ("lg", "ds_read_b128 %s, v14 offset:64" % R(oa(hd*6+2*i+1),4), ("o", 0, hd))]
        mix(it, cfg.MIX)
        run(4)
        if cfg.U2 and nu > 1:
            upto(120); mix(pql(1), 2)
        def brd(u): return [] if cfg.U2 else pql(u)
        KO = 192
        for u in range(nu):
            for hd in range(2):
                k.wait(lg=("o", u, hd), vm=("pq", u))
                for s in range(2):
                    for r2 in range(2):
                        for i in (2, 0, 1):
                            a = KO + (hd*2+r2)*12 + i*4
                            k("v_mfma_f32_16x16x32_bf16 %s, %s, %s, %s" % (vr(a,4), R(oa(hd*6+2*i+s),4), R(oa(12+UO*u+hd*4+2*r2+s),4), vr(a,4) if s else "0"))
            it = brd(u+1) if u + 1 < nu else []
            for q in range(4): it.append("v_add_f32 v%d, %s, v%d" % (KO+q*12+8, f32(1e-6), KO+q*12+8))
            for q in range(4): it.append("v_rcp_f32 v%d, v%d" % (KO+q*12+8, KO+q*12+8))
            for q in range(4): it.append("v_mul_f32 v%d, v%d, v%d" % (KO+q*12+8, KO+q*12+8, 250+2*u+(q & 1)))
            for r2 in range(2):
                a0 = KO + r2*12; a1 = KO + (2+r2)*12
                for a in (a1, a0):
                    if cfg.PKC:
                        for i in range(4): it.append("v_pk_mul_f32 %s, %s, %s op_sel_hi:[1,0]" % (vr(a+2*i,2), vr(a+2*i,2), vr(a+8,2)))
                    else:
                        for i in range(8): it.append("v_mul_f32 v%d, v%d, v%d" % (a+i, a+i, a+8))
                    for i in range(4): it.append("v_cvt_pk_bf16_f32 v%d, v%d, v%d" % (a+8+i, a+2*i, a+2*i+1))
                    if a == a1: it.append(("vm", "buffer_store_dwordx4 %s, v13, s[%d:%d], s73 offen offset:%d%s" % (vr(a1+8,4), SRD_O, SRD_O+3, r2*1024, SC), "st"))
                it.append("v_cndmask_b32 v%d, v%d, v%d, s[76:77]" % (a0+10, a0+10, a1+8))
                it.append("v_cndmask_b32 v%d, v%d, v%d, s[76:77]" % (a0+11, a0+11, a1+9))
                it.append(("vm", "buffer_store_dwordx4 %s, v12, s[%d:%d], s73 offen offset:%d%s" % (vr(a0+8,4), SRD_O, SRD_O+3, r2*1024, SC), "st"))
            if u + 1 < nu: it.append("s_add_u32 s73, s73, %d" % (2*74*4096))
            mix(it, cfg.MIX * nu)
        stamp(k, 29)
        run(cfg.OSD)
        if cfg.BPR: fl.drain()
        k.wait(vm=["st", "BO"])
        d = k.newlabel("Lsg")
        k("s_add_u32 s82, s%d, %d" % (S_OMT, C_O)); k("s_mul_i32 s82, s82, %d" % cfg.CS)
        k("s_barrier")
        k("s_cmp_lg_u32 s%d, 0" % S_W)
        k("s_cbranch_scc1 %s" % d)
        k("v_mul_u32_u24 v%d, %d, v0" % (V_PT, cfg.CS)); k("v_add_u32 v%d, s82, v%d" % (V_PT, V_PT))
        k("v_mov_b32 v31, 1")
        k("s_mov_b64 exec, %d" % ((1 << nsig) - 1))
        k("global_atomic_add v%d, v31, s[%d:%d] sc1" % (V_PT, S_CNT, S_CNT+1))
        k("s_mov_b64 exec, -1")
        k.label(d)
        stamp(k, 12)
        fl.q += bolate
    q = K()
    for j in range(1, 4):
        q("s_add_u32 s75, s%d, %d" % (S_W, j)); q("s_and_b32 s75, s75, 3"); q("s_mul_i32 s75, s75, 15360")
        q("s_add_u32 s75, s75, %d" % (RED + (j-1)*5120))
        q("v_add_u32 v%d, s75, v%d" % (10+j, V_L16))
    q("s_mul_i32 s75, s%d, 15360" % S_W); q("s_add_u32 s75, s75, %d" % RED)
    q("v_add_u32 v8, s75, v%d" % V_L16)
    q("v_add_u32 v9, 51200, v%d" % V_L16)
    srd(q, SRD_O, P_OUT, 0, 2048*1280)
    q("s_lshl_b32 s81, s%d, 6" % S_M64); q("s_lshl_b32 s75, s%d, 4" % S_W); q("s_add_u32 s81, s81, s75")
    q("s_lshl_b32 s74, s81, 2")
    q("s_mul_i32 s81, s81, 1280"); q("s_mul_i32 s75, s%d, 160" % S_NT); q("s_add_u32 s81, s81, s75")
    q("v_mul_u32_u24 v16, 1280, v24"); q("v_lshl_add_u32 v16, v25, 3, v16")
    q("s_lshr_b32 s82, s%d, 1" % S_M64); q("s_add_u32 s82, s82, %d" % C_O); q("s_mul_i32 s82, s82, %d" % cfg.CS)
    q("s_mov_b32 s73, 0")
    if cfg.WIDE:
        q("s_mul_i32 s75, s%d, 15360" % S_W); q("s_add_u32 s75, s75, %d" % RED)
        q("v_mul_u32_u24 v17, 176, v24"); q("v_lshl_add_u32 v17, v25, 3, v17"); q("v_add_u32 v17, s75, v17")
        q("v_mov_b32 v30, 0x7fffffff")
        for i in range(3):
            q("v_add_u32 v14, %d, v0" % (64*i)); q("v_mul_u32_u24 v15, 205, v14"); q("v_lshrrev_b32 v15, 11, v15")
            q("v_mul_u32_u24 v7, 10, v15"); q("v_sub_u32 v14, v14, v7"); q("v_lshlrev_b32 v14, 4, v14")
            q("v_mul_u32_u24 v7, 176, v15"); q("v_add3_u32 v%d, v7, v14, s75" % (18+i))
            q("v_mul_u32_u24 v7, 1280, v15"); q("v_add_u32 v%d, v7, v14" % (21+i))
        q("v_cmp_gt_u32 vcc, 32, v0\nv_cndmask_b32 v23, v30, v23, vcc")
    mix([t for _, t in q.items], 2)
    def bol(n): return bloc(n % 70)
    def bo_read(n):
        off = n*1024
        return ("lg", "ds_read_b128 %s, v%d offset:%d" % (R(bol(n), 4), V_L16 if off < 51200 else 9, off % 51200), ("bo", n // 5))
    nr = 0
    if cfg.BPR:
        if not nu:
            while fl.q: run(1)
            run(cfg.BPW)
            k.wait(vm="BO"); k("s_barrier")
        while cnt[0] < min(cfg.MO, 238) - 20:
            if nr < min(cnt[0] // 20, 11) * 5 and not lds: lds.append(bo_read(nr)); nr += 1
            run(1)
    upto(min(cfg.MO, 238) - 20)
    fl.drain()
    if cfg.MO < 280 and cnt[0] <= 238:
        poll_issue(k, S_CNT, "s82", "o_ok")
        while cfg.BPR and cnt[0] < cfg.MO:
            if nr < min(cnt[0] // 20, 11) * 5 and not lds: lds.append(bo_read(nr)); nr += 1
            run(1)
        upto(cfg.MO)
    def of(ks): return 192 + 4*ks if ks < 16 else 148 + 16*(ks-16) if ks < 19 else 152
    def ao(ks): return ("s_add_u32 s73, s73, 4096" if ks else None, "buffer_load_dwordx4 %s, v%d, s[%d:%d], s73 offen%s" % (vr(of(ks),4), VA, SRD_X, SRD_X+3, LSC), ("Ao", ks))
    def red_w(j): return [("lg", "ds_write_b128 v%d, %s offset:%d" % (10+j, vr(A0+(j*5+ct)*4,4), ct*1024), "rw") for ct in range(5)]
    def oready():
        stamp(k, 13)
        poll_check(k, S_CNT, 16, "o_ok")
        stamp(k, 14)
        k.vm("buffer_load_dword v5, v6, s[%d:%d], s74 offen%s" % (SRD_W1, SRD_W1+3, SC), "g2")
        fa = Feed(k, [ao(ks) for ks in range(20)])
        fa.emit(cfg.AO0)
        return fa
    rr = [("lg", "ds_read_b128 %s, v8 offset:%d" % (vr(A0+20+4*j,4), j*1024), ("r", j // 5)) for j in range(15)]
    late_o = cfg.MO >= 280 or cnt[0] > 238
    if not late_o:
        fa = oready()
        fl.q = fa.q[:16-cfg.AO0]; fa.q = fa.q[16-cfg.AO0:]
        free = min(cnt[0] // 20, 11) * 5
        for c in (238, 253, 268, 280):
            n = min(free - nr, c - cnt[0] - len(lds))
            lds += [bo_read(x) for x in range(nr, nr + max(n, 0))]; nr += max(n, 0)
            upto(c)
            if c < 280: lds[:0] = red_w((238, 253, 268).index(c) + 1)
        weave(k, [], lds); del lds[:]
        fl.drain()
        fa.drain()
        k.wait(vm="g2")
        k("v_sub_f32 v10, 1.0, v5")
        for j in range(10): k("v_pk_mul_f32 %s, %s, v[10:11] op_sel_hi:[1,0]" % (vr(A0+2*j,2), vr(A0+2*j,2)))
        k.wait(lg="rw")
        k("s_barrier")
        while nr < 15:
            emit1(k, bo_read(nr)); nr += 1
    else:
        for j, c in enumerate((238, 253, 268)):
            upto(c); lds += red_w(j+1)
        upto(280)
        weave(k, [], lds); del lds[:]
        k.wait(lg="rw", vm="BO")
        k("s_barrier")
        weave(k, [], rr); del rr[:]
        poll_issue(k, S_CNT, "s82", "o_ok")
        for sl in range(3):
            k.wait(lg=("r", sl))
            weave(k, [], [bo_read(x) for x in range(nr, min(70, nr+10))]); nr = min(70, nr+10)
            for j in range(10): k("v_pk_add_f32 %s, %s, %s" % (vr(A0+2*j,2), vr(A0+2*j,2), vr(A0+20+20*sl+2*j,2)))
        weave(k, [], [bo_read(x) for x in range(nr, cfg.BPRE)]); nr = max(nr, cfg.BPRE)
        fa = oready()
        fa.emit(6)
        weave(k, [], [bo_read(x) for x in range(nr, 70)]); nr = 70
        fa.drain()
        k.wait(vm="g2")
        k("v_sub_f32 v10, 1.0, v5")
        for j in range(10): k("v_pk_mul_f32 %s, %s, v[10:11] op_sel_hi:[1,0]" % (vr(A0+2*j,2), vr(A0+2*j,2)))
    for ks in range(20):
        k.wait(vm=("Ao", ks), lg=("bo", ks))
        mf = ["v_mfma_f32_16x16x32_bf16 %s, %s, %s, %s" % (vr(A0+ct*4,4), R(bol(ks*5+ct), 4), vr(of(ks),4), vr(A0+ct*4,4)) for ct in range(5)]
        fill = [bo_read(n) for n in range(nr, min(100, nr+5, ks*5+70))]; nr += len(fill)
        while len(fill) < 5 and rr: fill.append(rr.pop(0))
        weave(k, mf, fill, per=1)
    if not late_o:
        weave(k, [], rr)
        k.wait(lg="all")
        for j in range(10): k("v_pk_add_f32 %s, %s, %s" % (vr(A0+20+2*j,2), vr(A0+20+2*j,2), vr(A0+40+2*j,2)))
        for j in range(10): k("v_pk_add_f32 %s, %s, %s" % (vr(A0+20+2*j,2), vr(A0+20+2*j,2), vr(A0+60+2*j,2)))
    for ct in range(5):
        a = A0 + ct*4
        for h in range(2 if not late_o else 0): k("v_pk_fma_f32 %s, %s, v[10:11], %s op_sel_hi:[1,0,1]" % (vr(a+2*h,2), vr(a+20+2*h,2), vr(a+2*h,2)))
        k("v_cvt_pk_bf16_f32 v%d, v%d, v%d" % (A0+40+2*ct, a, a+1)); k("v_cvt_pk_bf16_f32 v%d, v%d, v%d" % (A0+41+2*ct, a+2, a+3))
        if cfg.WIDE: k.lg("ds_write_b64 v17, %s offset:%d" % (vr(A0+40+2*ct,2), ct*32))
        else: k.vm("buffer_store_dwordx2 %s, v16, s[%d:%d], s81 offen offset:%d%s" % (vr(A0+40+2*ct,2), SRD_O, SRD_O+3, ct*32, cfg.OUTF), "st")
    if cfg.WIDE:
        for i in range(3): k.lg("ds_read_b128 %s, v%d" % (vr(A0+4*i,4), 18+i), ("w", i))
        for i in range(3):
            k.wait(lg=("w", i))
            k.vm("buffer_store_dwordx4 %s, v%d, s[%d:%d], s81 offen%s" % (vr(A0+4*i,4), 21+i, SRD_O, SRD_O+3, cfg.OUTF), "st")
    stamp(k, 30)
    stamp_out(k)
    k("s_endpgm")

def kernel(k):
    kernel_header(k, NAME)
    astamp(k, 0)
    k("s_load_dwordx16 s[8:23], s[0:1], 0")
    k("s_load_dwordx8 s[24:31], s[0:1], 64")
    k("s_cmp_ge_u32 s2, 256")
    k("s_cbranch_scc1 L_end")
    if cfg.CPF: code_prefetch(k, V_JUNK)
    k("v_lshrrev_b32 v2, 6, v0")
    k("v_and_b32 v0, 63, v0")
    k("v_readfirstlane_b32 s%d, v2" % S_W)
    if cfg.STAMP: k("v_mov_b32 v1, 0")
    stamp(k, 0)
    if cfg.EARLY0: k("v_writelane_b32 v1, s98, 0")
    if cfg.MAP == 2:
        k("s_bfe_u32 s%d, s2, 0x40003" % S_MT)
        k("s_and_b32 s%d, s2, 7" % S_T0)
        k("s_lshl_b32 s%d, s%d, 3" % (S_T0, S_T0))
        k("s_bfe_u32 s%d, s2, 0x10007" % S_T1)
        k("s_lshl_b32 s%d, s%d, 2" % (S_T1, S_T1))
        k("s_add_u32 s%d, s%d, s%d" % (S_T0, S_T0, S_T1))
        tab = cfg.ORDER
        k("s_mov_b32 s74, 0x%x" % sum(tab[i] << (4*i) for i in range(8))); k("s_mov_b32 s75, 0x%x" % sum(tab[8+i] << (4*i) for i in range(8)))
        k("s_lshr_b64 s[74:75], s[74:75], s%d" % S_T0)
        k("s_and_b32 s%d, s74, 15" % S_TY)
    else:
        k("s_and_b32 s%d, s2, 7" % S_T0)
        k("s_lshr_b32 s%d, s2, 3" % S_T1)
        k("s_lshl_b32 s74, s%d, 3" % S_T0); k("s_add_u32 s74, s74, s%d" % S_T1); k("s_add_u32 s74, s74, %d" % (9*16 - 18))
        k("s_lshl_b32 s75, s%d, 1" % S_T0); k("s_add_u32 s75, s75, s%d" % S_T1)
        k("s_add_u32 s76, s75, %d" % (8*16 - 16))
        k("s_cmp_lt_u32 s%d, 18" % S_T1); k("s_cselect_b32 s74, s76, s74")
        k("s_lshl_b32 s76, s%d, 4" % S_T0); k("s_add_u32 s76, s76, s%d" % S_T1)
        k("s_cmp_lt_u32 s%d, 16" % S_T1); k("s_cselect_b32 s74, s76, s74")
        k("s_and_b32 s%d, s74, 15" % S_MT)
        k("s_lshr_b32 s%d, s74, 4" % S_TY)
    k("s_and_b32 s%d, s%d, 1" % (S_RH, S_W))
    k("s_lshr_b32 s%d, s%d, 1" % (S_C, S_W))
    k("v_lshlrev_b32 v%d, 4, v0" % V_L16)
    k("s_cmp_ge_u32 s%d, 26" % S_T1); k("s_cbranch_scc1 L_qa")
    k("s_mov_b32 s75, 1280")
    k("s_mov_b32 s76, 1280")
    k("s_sub_u32 s79, s%d, 9" % S_TY)
    k("s_mul_i32 s%d, s79, 320" % S_T1)
    k("s_and_b32 s%d, s%d, 127" % (S_DELTA, S_T1))
    k("s_sub_u32 s%d, s%d, s%d" % (S_T1, S_T1, S_DELTA))
    k("s_add_u32 s75, s75, s%d" % S_T1)
    k("s_add_u32 s76, s76, s75")
    k("s_mul_i32 s%d, s%d, 384" % (S_T1, S_TY))
    k("s_mov_b32 s%d, 3840" % S_STRIDE)
    k("s_cmp_lt_u32 s%d, 9" % S_TY)
    k("s_cselect_b32 s75, s%d, s75" % S_T1)
    k("s_cselect_b32 s76, s%d, s76" % S_T1)
    k("s_cselect_b32 s%d, 3456, s%d" % (S_STRIDE, S_STRIDE))
    k("s_mul_i32 s%d, s%d, 640" % (S_T1, S_STRIDE))
    k("s_sub_u32 s77, s%d, s75" % S_T1)
    k("s_sub_u32 s78, s%d, s76" % S_T1)
    gemm_setup(k)
    k("s_mul_i32 s%d, s%d, %d" % (S_T0, S_MT, 128*1280))
    astamp(k, 1)
    k("s_waitcnt lgkmcnt(0)")
    astamp(k, 2)
    k("s_cmp_lt_u32 s%d, 9" % S_TY)
    k("s_cselect_b64 s[16:17], s[%d:%d], s[%d:%d]" % (P_WG, P_WG+1, P_WQKV, P_WQKV+1))
    k("s_cselect_b64 s[%d:%d], s[%d:%d], s[%d:%d]" % (P_WU, P_WU+1, P_WU, P_WU+1, P_WQKV, P_WQKV+1))
    srd(k, SRD_X, P_X, 0, 128*1280, S_T0)
    stamp(k, 1)
    Q = dma_queue()
    issue_now(k, Q, 4)
    srd(k, SRD_W0, 16, 0, "s77", 75)
    srd(k, SRD_W1, P_WU, 0, "s78", 76)
    issue_now(k, Q, 6)
    astamp(k, 3)
    touch_setup(k)
    for it in touch_items(-1):
        if it[0]: k(it[0])
        k.vm(it[1], it[2])
    sv0 = list(k.vmq)
    aflush(k)
    k("s_cmp_ge_u32 s%d, 9" % S_TY); k("s_cbranch_scc1 L_att")
    ps, rest = ffn_role(k, Q)
    sv = (list(k.vmq), list(k.lgq))
    k("s_cmp_ge_u32 s%d, 8" % S_TY); k("s_cbranch_scc1 L_f1")
    tail(k, 1 if cfg.UNI else 2, list(rest), [], [], cfg.MF, presig=ps)
    k.label("L_f1")
    k.vmq, k.lgq = sv
    tail(k, cfg.UNI, list(rest), [], [], 100, presig=ps, reducer=True)
    k.label("L_att")
    k("s_lshl_b32 s79, s79, 1")
    k("s_add_u32 s79, s79, s%d" % S_C)
    k("s_mul_i32 s80, s79, 3200")
    srd(k, SRD_P, P_WPHI, 0, 3200, 80)
    k.flush_counters(); k.vmq = list(sv0)
    att_loop(k, Q)
    kv_role(k)
    tail(k, cfg.UNI, [], list(range(cfg.KVN, 70)), bo_items(), cfg.MFK)
    k.flush_counters()
    k.label("L_qa")
    k.vmq = ["pf"]
    qa_role(k)
    tail(k, cfg.UNI, [], list(range(18, 27)) + list(range(62, 70)), bo_items()[cfg.BOQ:], cfg.MFK)
    k.label("L_end")
    k("s_endpgm")

DOC = """; One fused launch, 256 workgroups (one per CU, 4 waves, 512 registers), generated by a script of my own.
;   the same launch); sc1 loads on the reading side; every spin is bounded."""
def build(fn, listform=True):
    k = K()
    k.raw(open("header.txt").read().rstrip())
    if listform: k.raw("; @launch kernel=%s grid=(256,1,1) block=(256,1,1) lds=163840" % NAME)
    else: k.raw("; @launch grid=(256,1,1) block=(256,1,1) lds=163840")
    k.raw(DOC)
    k.raw('.amdgcn_target "amdgcn-amd-amdhsa--gfx950"')
    k.raw(".text")
    kernel(k)
    k.raw('.section .rodata,"a"')
    k.raw(kernel_desc(NAME, 512, 256))
    open(fn, "w").write(k.text())
    if cfg.ALIGN:
        import align
        align.align(fn, cfg.ALIGN)

if __name__ == "__main__":
    for a in sys.argv[2:]:
        if "=" in a:
            n, v = a.split("="); setattr(cfg, n, eval(v))
    if cfg.NOSC: LSC = ""
    if cfg.OUTF == 1: cfg.OUTF = " sc1"
    build(sys.argv[1], listform="single" not in sys.argv)
```

```python
import sys
from fw import *

A2_OFF = 0;          A2_SZ = 32*74*4096
B2_OFF = 0xA00000;   B2_SZ = 8*74*5120
PQ_OFF = 0x1800000;  PQ_SZ = 32*128*1280
KVP_OFF = 0x1000000; KVPS = 3584; KVP_SZ = 16*16*KVPS
G_OFF = 0x1200000;   G_SZ = 8192
CNT_OFF = 0x1300000
ST_OFF = 0x1400000
LOG2E = 1.4426950408889634
NAME = "gated_mix__linear_kernel_hedgehog__swiglu_ffn__prompt_kernel"

class Cfg:
    STAMP = 0; STG = 0
    MAXD = 11; N2 = 6; N3 = 10
    P2M = 4
    TW = [(-1,1,7),(1,8,6),(4,14,6)]
    TX = [(-1,1,3),(1,4,3),(4,7,3)]
    ORDER = [0, 9, 1, 10, 2, 11, 3, 12, 4, 13, 5, 14, 6, 7, 8, 15]
    PS1 = 10
    NBF = 40
    NBA = 32
    AUXT = 10
    AUXD = 3
    FFE = (2, 7)
    MK = 0
    KLAT = 15
    PER = 2
    BOF = 10
    KVB0 = 1
    TPER = 2
    BLP = 5
    RMP = 0
    ALIGN = 10
    AO0 = 6
    PKC = 0
    WIDE = 1
    PREW = 6
    PREN = 1
    QX = 0
    UNI = 0
    U2 = 1
    BTL = []
    MF1 = 120
    FPRE = 20
    MFK = 100
    X_LIGHT = 0
    AUXB = 70
    RBH = 0
    MF2 = 80
    MFQ = 120
    BPR = 1
    BPW = 40
    LORD = 0
    RSP = 0
    HP = (1, 5)
    QEARLY = 1
    AUXU = 0
    BT = 0
    BT2 = 0
    AUXNT = 1
    L2PF = 0
    PE1 = 20
    BOL = 3
    BOS = 0
    PSA = 16
    KVN = 62
    BPRE = 50
    RFIRST = 0
    MF = 120
    MAXD0 = 16
    BLK = 2
    PHS = 3
    AST = 0
    X_NOWAIT = 0
    X_NOO = 0
    X_NOB = 0
    X_END = 0
    X_NOA = 0
    MO = 238
    NOSC = 0
    NOMF = 0
    CS = 4096+256
    ONE = 1
    SLP = 2
    KI = 1
    MIX = 6
    FLAT = (1, 3)
    XD = 0
    BOQ = 5
    QPRE = 6
    FQ = (7, 10)
    OFIRST = 1
    OUTF = 1
    BOEARLY = 0
    QLAT = 40
    MAP = 3
    AORD = [9, 13, 10, 11, 14, 12]
    DBGWG = -1
    PADST = None
    PADMIN = 0
    CPF = 1
    TNT = 0
    NODMA = 0
    CYC = 0
    PADTY = None
    EARLY0 = 0
    KL2 = 40
    OSD = 20
cfg = Cfg()
SC = " sc1"
LSC = " sc1"

P_X, P_WQKV, P_WPHI, P_WO, P_WG, P_WU, P_WD, P_GW, P_OUT, P_DBG, P_WS = 8, 10, 12, 14, 18, 20, 22, 24, 26, 28, 30
S_W, S_RH, S_C, S_MT, S_TY, S_M64, S_NT, S_OH = 32, 33, 34, 35, 36, 37, 38, 39
SRD_X, SRD_W0, SRD_W1, SRD_O, SRD_P = 40, 44, 48, 52, 56
S_STRIDE, S_WOFF, S_WL, S_XL, S_T0, S_T1, S_T2, S_T3, S_DELTA, S_SIG = 60, 61, 62, 63, 64, 65, 66, 67, 68, 69
S_C2 = 70
S_OMT = 83; SRD_B = 84; S_BOFF = 88; S_BB = 89; S_CNT = 90; SRD_T = 96
V_L16, V_L16B, V_PT = 2, 3, 4
V_WD = 5; V_XD = 6; V_XR = 10; V_TA = 12; V_TW = 24; V_TX = 25; V_JUNK = 63; V_Z = 0
ACC0 = 64
WF0 = 256; XF0 = 256 + 96; GF0 = 256 + 88; GACC = 224
C_H, C_O, C_P = 0, 16, 32
N_S1 = 48; N_S3 = 4
KVF_OFF = KVP_OFF + KVP_SZ
SPARE = 147456
D_S1, D_S2, D_S3 = 0, 64, 128

def srd(k, d, b, off, nbytes, soff=None):
    if off or soff is not None:
        if soff is not None:
            k("s_add_u32 s%d, s%d, s%d" % (d, b, soff)); k("s_addc_u32 s%d, s%d, 0" % (d+1, b+1))
            if off:
                k("s_add_u32 s%d, s%d, 0x%x" % (d, d, off)); k("s_addc_u32 s%d, s%d, 0" % (d+1, d+1))
        else:
            k("s_add_u32 s%d, s%d, 0x%x" % (d, b, off)); k("s_addc_u32 s%d, s%d, 0" % (d+1, b+1))
        k("s_and_b32 s%d, s%d, 0xffff" % (d+1, d+1))
    else:
        k("s_mov_b32 s%d, s%d" % (d, b)); k("s_and_b32 s%d, s%d, 0xffff" % (d+1, b+1))
    if isinstance(nbytes, int): k("s_mov_b32 s%d, 0x%x" % (d+2, nbytes))
    else: k("s_mov_b32 s%d, %s" % (d+2, nbytes))
    k("s_mov_b32 s%d, 0x20000" % (d+3))

def stamp(k, i):
    if not cfg.STAMP or (cfg.AST and i != 15): return
    k("s_memtime s[92:93]" if cfg.STAMP == 2 else "s_memrealtime s[92:93]")
    k("s_waitcnt lgkmcnt(0)")
    k.lgq = []
    k("v_writelane_b32 v1, s92, %d" % i)
_ap = []
def astamp(k, idx):
    if not cfg.AST: return
    pair = (4, 6, 92, 94, 52, 54, 56, 58)[len(_ap)]
    k("s_memrealtime s[%d:%d]" % (pair, pair+1)); _ap.append((pair, idx))
def aflush(k):
    if not cfg.AST: return
    k("s_waitcnt lgkmcnt(0)"); k.lgq = []
    for p, i in _ap: k("v_writelane_b32 v1, s%d, %d" % (p, i))
    del _ap[:]
def stamp_out(k):
    if not cfg.STAMP: return
    k("s_waitcnt vmcnt(0)")
    stamp(k, 15)
    k("v_writelane_b32 v1, s%d, 16" % S_TY)
    srd(k, 40, P_WS, ST_OFF, 1024*128)
    k("s_lshl_b32 s92, s2, 2"); k("s_add_u32 s92, s92, s%d" % S_W); k("s_lshl_b32 s92, s92, 7")
    k("v_lshlrev_b32 v5, 2, v0")
    k("v_cmp_gt_u32 vcc, 32, v0")
    k("v_mov_b32 v6, 0x7fffffff")
    k("v_cndmask_b32 v5, v6, v5, vcc")
    k("buffer_store_dword v1, v5, s[40:43], s92 offen")
    if cfg.PADST is not None:
        k("v_readlane_b32 s94, v1, %d" % abs(cfg.PADST))
        k("v_readlane_b32 s95, v1, 0")
        k("s_max_u32 s94, s94, s95")
        if cfg.CYC:
            a, b = ((31, 25) if cfg.CYC == 1 else (24, 23))
            k("v_readlane_b32 s96, v1, %d" % a); k("v_readlane_b32 s97, v1, %d" % b)
            k("s_sub_u32 s96, s96, s97")
            if cfg.CYC == 1: k("s_lshr_b32 s96, s96, 2")
            else: k("s_lshl_b32 s96, s96, 2")
            k("s_add_u32 s94, s95, s96")
        if cfg.PADTY:
            k("s_cmp_lt_u32 s%d, %d" % (S_TY, cfg.PADTY[0])); k("s_cselect_b32 s94, s95, s94")
            k("s_cmp_gt_u32 s%d, %d" % (S_TY, cfg.PADTY[1])); k("s_cselect_b32 s94, s95, s94")
        if cfg.PADMIN:
            k("s_not_b32 s95, s94")
            k("v_mov_b32 v7, s95"); k("v_mov_b32 v8, 192")
            k("s_cmp_eq_u32 s%d, 0" % S_W)
            k("s_cselect_b64 exec, 1, 0")
            k("s_cbranch_execz Lnoat")
            k("global_atomic_umax v8, v7, s[%d:%d] sc1" % (P_DBG, P_DBG+1))
            k.label("Lnoat")
            k("s_mov_b64 exec, -1")
            k("s_add_u32 s94, s94, 4500")
            k.label("Lpad0")
            k("s_sleep 4")
            k("s_memrealtime s[96:97]")
            k("s_waitcnt lgkmcnt(0)")
            k("s_sub_u32 s98, s96, s94")
            k("s_cmp_lt_i32 s98, 0")
            k("s_cbranch_scc1 Lpad0")
            k("global_load_dword v7, v8, s[%d:%d] sc1" % (P_DBG, P_DBG+1))
            k("s_waitcnt vmcnt(0)")
            k("v_readfirstlane_b32 s94, v7")
            k("s_not_b32 s94, s94")
        k("s_add_u32 s94, s94, 6000")
        lp = k.newlabel("Lpad"); k.label(lp)
        k("s_sleep 4")
        k("s_memrealtime s[96:97]")
        k("s_waitcnt lgkmcnt(0)")
        k("s_sub_u32 s98, s96, s94")
        k("s_cmp_lt_i32 s98, 0")
        k("s_cbranch_scc1 %s" % lp)
    if cfg.DBGWG >= 0:
        k("s_cmp_eq_u32 s92, %d" % (cfg.DBGWG*512))
        k("s_cselect_b32 s93, 64, 0")
        srd(k, 44, P_DBG, 0, "s93")
        k("v_readlane_b32 s93, v1, 0")
        k("v_subrev_u32 v7, s93, v1")
        k("v_cmp_lt_u32 vcc, 0, v0")
        k("v_cndmask_b32 v5, v6, v5, vcc")
        k("buffer_store_dword v7, v5, s[44:47], 0 offen")

def code_prefetch(k, vt):
    k("s_getpc_b64 s[72:73]")
    l = k.newlabel("Lpc"); k.label(l)
    k("s_lshr_b32 s74, s2, 3")
    k("s_lshl_b32 s74, s74, 7")
    k("v_and_b32 v%d, 31, v0" % vt)
    k("v_lshlrev_b32 v%d, 12, v%d" % (vt, vt))
    k("v_add_u32 v%d, s74, v%d" % (vt, vt))
    k("v_min_u32 v%d, L_end-%s-4, v%d" % (vt, l, vt))
    k.vm("global_load_dword v%d, v%d, s[72:73]" % (vt, vt), "pf")

def _pload(k, base, tag):
    if cfg.ONE:
        a = k.newlabel("Lp0"); b = k.newlabel("Lp1")
        k("s_cmp_lg_u32 s%d, 0" % S_W); k("s_cbranch_scc1 %s" % a)
        k("global_load_dword v31, v%d, s[%d:%d] sc1" % (V_PT, base, base+1))
        k("s_branch %s" % b)
        k.label(a)
        k("v_mov_b32 v%d, 0" % V_PT)
        k("global_load_dword v31, v%d, s[%d:%d]" % (V_PT, P_X, P_X+1))
        k.label(b)
        k.vmq.append(tag)
    else: k.vm("global_load_dword v31, v%d, s[%d:%d] sc1" % (V_PT, base, base+1), tag)
def poll_issue(k, base, off, tag):
    k("v_mov_b32 v%d, %s" % (V_PT, off))
    _pload(k, base, tag)
def vpoll_issue(k, off, n, tag):
    k("v_min_u32 v%d, %d, v0" % (V_PT, n-1)); k("v_mul_u32_u24 v%d, %d, v%d" % (V_PT, cfg.CS, V_PT)); k("v_add_u32 v%d, %s, v%d" % (V_PT, off, V_PT))
    _pload(k, S_CNT, tag)
def poll_check(k, base, target, tag, sleep=None, barrier=True):
    l = k.newlabel("Lpoll"); d = k.newlabel("Lpd")
    if base == S_CNT and (cfg.X_NOWAIT == 1 or (cfg.X_NOWAIT and tag in cfg.X_NOWAIT)): target = 0
    k.wait(vm=tag)
    if cfg.ONE:
        k("s_cmp_lg_u32 s%d, 0" % S_W); k("s_cbranch_scc1 %s" % d)
    k("v_cmp_gt_u32 vcc, %d, v31" % target)
    k("s_mov_b32 s95, 0x8000")
    k("s_cmp_eq_u64 vcc, 0")
    k("s_cbranch_scc1 %s" % d)
    k.label(l)
    k("s_sleep %d" % (sleep or cfg.SLP))
    k("global_load_dword v31, v%d, s[%d:%d] sc1" % (V_PT, base, base+1))
    k("s_waitcnt vmcnt(0)")
    k("v_cmp_gt_u32 vcc, %d, v31" % target)
    k("s_sub_u32 s95, s95, 1")
    k("s_cmp_eq_u64 vcc, 0")
    k("s_cbranch_scc1 %s" % d)
    k("s_cmp_lg_u32 s95, 0")
    k("s_cbranch_scc1 %s" % l)
    k.label(d)
    if cfg.ONE and barrier: k("s_barrier")
def vpoll_check(k, target, tag): poll_check(k, S_CNT, target, tag)
def signal(k, base, off, ra=V_PT, rd=31):
    d = k.newlabel("Lsg")
    k("s_barrier")
    k("s_cmp_lg_u32 s%d, 0" % S_W)
    k("s_cbranch_scc1 %s" % d)
    k("v_mov_b32 v%d, %s" % (ra, off))
    k("v_mov_b32 v%d, 1" % rd)
    k("s_mov_b64 exec, 1")
    k("global_atomic_add v%d, v%d, s[%d:%d] sc1" % (ra, rd, base, base+1))
    k("s_mov_b64 exec, -1")
    k.label(d)

BL = [256+128+4*i for i in range(32)] + [256+48+4*i for i in range(12)] + [256+108+4*i for i in range(3)] \
   + [256+4*i for i in range(12)] + [256+96+4*i for i in range(3)] + [32+4*i for i in range(8)]
def bloc(n): return BL[n]
def b_items(frs):
    out = []; cur = None
    for n in frs:
        st, ct = divmod(n, 5)
        pre = None
        if st != cur: pre = "s_add_u32 s%d, s%d, %d" % (S_BOFF, S_BB, (20 + 4*st)*5120); cur = st
        if ct < 4: t = "buffer_load_dwordx4 %s, v%d, s[%d:%d], s%d offen offset:%d%s" % (R(bloc(n),4), V_L16, SRD_B, SRD_B+3, S_BOFF, ct*1024, LSC)
        else: t = "buffer_load_dwordx4 %s, v%d, s[%d:%d], s%d offen%s" % (R(bloc(n),4), V_L16B, SRD_B, SRD_B+3, S_BOFF, LSC)
        out.append((pre, t, ("B", n)))
    return out
def bo_items():
    out = []
    for i in range(5):
        for ct in range(5):
            pre = "s_add_u32 m0, s%d, %d" % (S_BB, i*20480 + (4096 if ct == 4 else 0))
            if ct == 0: pre = "s_add_u32 s100, s%d, %d\n" % (S_BB, i*20480) + pre
            if ct < 4: t = "buffer_load_dwordx4 v%d, s[%d:%d], s100 offen offset:%d%s lds" % (V_L16, SRD_B, SRD_B+3, ct*1024, LSC)
            else: t = "buffer_load_dwordx4 v%d, s[%d:%d], s100 offen%s lds" % (V_L16B, SRD_B, SRD_B+3, LSC)
            out.append((pre, t, "BO"))
    return out
class Feed:
    def __init__(self, k, items): self.k = k; self.q = list(items)
    def emit(self, n=1):
        while self.q and n > 0:
            pre, t, tag = self.q.pop(0)
            if pre: self.k(pre)
            self.k.vm(t, tag); n -= 1
    def drain(self): self.emit(10**6)
def emit1(k, f):
    if callable(f): f()
    elif isinstance(f, tuple): (k.lg if f[0] == "lg" else k.vm)(f[1], f[2])
    else: k(f)
def weave(k, mf, fill, per=2):
    fill = list(fill)
    for m in mf:
        k(m)
        for _ in range(per):
            if fill: emit1(k, fill.pop(0))
    for f in fill: emit1(k, f)

WSLOT = 24576; RW = 4; XBASE = RW*WSLOT; XSLOT = 16384; RX = 3

def gemm_setup(k):
    k("v_lshrrev_b32 v28, 3, v0")
    k("v_and_b32 v29, 7, v0")
    k("v_bfe_u32 v26, v28, 1, 1")
    k("s_lshl_b32 s%d, s%d, 1" % (S_T0, S_RH))
    k("v_or_b32 v26, s%d, v26" % S_T0)
    k("v_lshlrev_b32 v26, 1, v26")
    k("v_xor_b32 v26, v26, v29")
    k("s_lshl_b32 s%d, s%d, 3" % (S_T0, S_W))
    k("v_add_u32 v27, s%d, v28" % S_T0)
    k("v_mul_lo_u32 v27, v27, s%d" % S_STRIDE)
    k("v_lshl_add_u32 v%d, v26, 4, v27" % V_WD)
    k("s_lshl_b32 s%d, s%d, 5" % (S_T0, S_W))
    k("v_lshrrev_b32 v26, 1, v28")
    k("v_xor_b32 v27, v26, v29")
    k("v_add_u32 v26, s%d, v28" % S_T0)
    k("v_mul_u32_u24 v26, 1280, v26")
    k("v_lshl_add_u32 v%d, v27, 4, v26" % V_XD)
    k("v_xor_b32 v%d, 64, v%d" % (V_XD+1, V_XD))
    k("v_add_u32 v%d, %d, v%d" % (V_XD+1, 8*1280, V_XD+1))
    k("v_add_u32 v%d, %d, v%d" % (V_XD+2, 16*1280, V_XD))
    k("v_add_u32 v%d, %d, v%d" % (V_XD+3, 16*1280, V_XD+1))
    k("s_mul_i32 s%d, s%d, 6144" % (S_WL, S_W))
    k("s_lshl_b32 s%d, s%d, 12" % (S_XL, S_W))
    k("s_add_u32 s%d, s%d, %d" % (S_XL, S_XL, XBASE))
    k("s_mov_b32 s%d, 0" % S_WOFF)
    k("s_lshl_b32 s%d, s%d, 5" % (S_T3, S_STRIDE))

def touch_setup(k):
    k("v_lshrrev_b32 v26, 2, v0")
    k("v_and_b32 v27, 3, v0")
    k("s_lshl_b32 s%d, s%d, 1" % (S_T0, S_MT))
    k("s_add_u32 s%d, s%d, s%d" % (S_T0, S_T0, S_C))
    k("v_lshlrev_b32 v28, 5, v26")
    k("v_add_u32 v28, s%d, v28" % S_T0)
    k("v_mul_lo_u32 v28, v28, s%d" % S_STRIDE)
    k("v_min_u32 v29, 2, v27")
    k("v_lshl_add_u32 v%d, v29, 7, v28" % V_TW)
    k("s_lshl_b32 s%d, s%d, 4" % (S_T0, S_TY))
    k("s_lshl_b32 s%d, s%d, 2" % (S_T1, S_W))
    k("s_add_u32 s%d, s%d, s%d" % (S_T0, S_T0, S_T1))
    k("v_add_u32 v27, s%d, v27" % S_T0)
    k("v_mul_u32_u24 v27, 1280, v27")
    k("v_lshl_add_u32 v%d, v26, 7, v27" % V_TX)
    k("s_cmp_eq_u32 s%d, 0" % S_RH)
    for i in range(3): k("s_cselect_b32 s%d, s%d, s%d" % (SRD_T+i, SRD_W0+i, SRD_W1+i))
    k("s_mov_b32 s%d, 0x20000" % (SRD_T+3))
def masked(n, t):
    if n >= 16: return t
    return "s_bfm_b64 exec, %d, 0\n%s\ns_mov_b64 exec, -1" % (4*n, t)
def touch_items(stage):
    out = []
    for (st, first, n) in cfg.TW:
        if st == stage:
            out.append(("s_mul_i32 s101, s%d, %d" % (S_STRIDE, 32*first), masked(n, "buffer_load_dword v%d, v%d, s[%d:%d], s101 offen%s" % (V_JUNK, V_TW, SRD_T, SRD_T+3, " nt" if cfg.TNT else "")), "pf"))
    for (st, first, n) in cfg.TX:
        if st == stage:
            out.append((None, masked(n, "buffer_load_dword v%d, v%d, s[%d:%d], 0 offen offset:%d" % (V_JUNK, V_TX, SRD_X, SRD_X+3, first*128)), "pf"))
    return out

def gemm_setup2(k, att):
    npt = 5 if att else 6
    k("v_and_b32 v54, 15, v0")
    k("v_lshrrev_b32 v55, 4, v0")
    k("v_bfe_u32 v26, v54, 1, 3")
    k("v_xor_b32 v26, v26, v55")
    k("s_lshl_b32 s%d, s%d, 13" % (S_T0, S_RH))
    k("s_add_u32 s%d, s%d, %d" % (S_T0, S_T0, XBASE))
    k("v_lshlrev_b32 v27, 7, v54")
    k("v_add_u32 v27, s%d, v27" % S_T0)
    k("v_lshl_add_u32 v%d, v26, 4, v27" % V_XR)
    k("v_xor_b32 v%d, 64, v%d" % (V_XR+1, V_XR))
    k("v_bfe_u32 v26, v0, 2, 2")
    k("v_and_b32 v27, 3, v0")
    k("v_lshrrev_b32 v28, 1, v26")
    k("v_and_b32 v29, 1, v55")
    k("v_lshl_or_b32 v28, v29, 1, v28")
    k("v_lshlrev_b32 v28, 5, v28")
    k("v_mul_u32_u24 v29, 6144, v55")
    k("v_lshl_add_u32 v29, v26, 7, v29")
    if att:
        k("s_mul_i32 s%d, s%d, 160" % (S_T0, S_C))
        k("s_add_u32 s%d, s%d, s%d" % (S_T0, S_T0, S_DELTA))
        k("v_mul_u32_u24 v27, 40, v27")
    else:
        k("s_mul_i32 s%d, s%d, 192" % (S_T0, S_C))
        k("v_lshlrev_b32 v27, 3, v27")
    k("v_add_u32 v27, s%d, v27" % S_T0)
    for p in range(npt):
        k("v_add_u32 v30, %d, v27" % (p * (8 if att else 32)))
        k("v_lshrrev_b32 v31, 7, v30")
        k("v_and_b32 v30, 127, v30")
        k("v_xor_b32 v30, v30, v28")
        k("v_lshl_add_u32 v31, v31, 10, v29")
        k("v_add_u32 v%d, v30, v31" % (V_TA+p))
        k("v_add_u32 v%d, %d, v%d" % (V_TA+6+p, 2*WSLOT, V_TA+p))

def w_dma(s):
    return [("s_add_u32 m0, s%d, %d" % (S_WL, (s % RW)*WSLOT + (seg*3+lc)*1024 - lc*128),
             "buffer_load_dwordx4 v%d, s[%d:%d], s%d offen offset:%d lds" % (V_WD, SRD_W0+4*seg, SRD_W0+4*seg+3, S_WOFF, lc*128), ("W", s))
            for seg in range(2) for lc in range(3)]
def x_dma(u, i):
    return ("s_add_u32 m0, s%d, %d" % (S_XL, (u % RX)*XSLOT + i*1024 - u*128),
            "buffer_load_dwordx4 v%d, s[%d:%d], 0 offen offset:%d lds" % (V_XD+i, SRD_X, SRD_X+3, u*128), ("X", u))
def reads_for(s, npt):
    out = []; b = s & 1
    for rt in range(4):
        out.append("ds_read_b128 %s, v%d offset:%d" % (R(XF0 + (b*4+rt)*4, 4), V_XR + (s & 1), ((s >> 1) % RX)*XSLOT + rt*2048))
    slot = s % RW
    for p in range(npt):
        for seg in range(2):
            for h in range(2):
                out.append("ds_read_b64_tr_b16 %s, v%d offset:%d" % (R(WF0 + (b*12+p*2+seg)*4 + 2*h, 2), V_TA + p + (6 if slot >= 2 else 0), (slot & 1)*WSLOT + seg*3072 + h*512))
    return out
def acc(p, seg, rt): return ACC0 + ((p*2+seg)*4 + rt)*4

def late_setup_items():
    k = K()
    k("s_and_b32 s%d, s2, 7" % S_T1)
    k("s_lshr_b32 s%d, s2, 3" % S_OH)
    if cfg.P2M == 4:
        k("s_lshl_b32 s%d, s%d, 2" % (S_M64, S_T1)); k("s_and_b32 s%d, s%d, 3" % (S_T0, S_OH)); k("s_add_u32 s%d, s%d, s%d" % (S_M64, S_M64, S_T0))
        k("s_lshr_b32 s%d, s%d, 2" % (S_NT, S_OH))
    else:
        k("s_lshr_b32 s%d, s%d, 1" % (S_M64, S_T1)); k("s_lshl_b32 s%d, s%d, 3" % (S_M64, S_M64)); k("s_and_b32 s%d, s%d, 7" % (S_T0, S_OH)); k("s_add_u32 s%d, s%d, s%d" % (S_M64, S_M64, S_T0))
        k("s_and_b32 s%d, s%d, 1" % (S_NT, S_T1)); k("s_lshl_b32 s%d, s%d, 2" % (S_NT, S_NT)); k("s_lshr_b32 s%d, s%d, 3" % (S_T0, S_OH)); k("s_add_u32 s%d, s%d, s%d" % (S_NT, S_NT, S_T0))
    k("s_lshr_b32 s%d, s%d, 1" % (S_OMT, S_OH))
    if not cfg.UNI: k("s_lshl_b32 s%d, s%d, 1" % (S_OMT, S_OMT))
    k("s_and_b32 s%d, s%d, 1" % (S_OH, S_OH)); k("s_lshl_b32 s%d, s%d, 1" % (S_T0, S_T1)); k("s_add_u32 s%d, s%d, s%d" % (S_OH, S_OH, S_T0))
    k("s_mul_i32 s%d, s%d, %d" % (S_T0, S_NT, 74*5120))
    srd(k, SRD_B, P_WS, B2_OFF, 74*5120, S_T0)
    k("s_mul_i32 s%d, s%d, 5120" % (S_BB, S_W))
    k("s_add_u32 s%d, s%d, 0x%x" % (S_CNT, P_WS, CNT_OFF))
    k("s_addc_u32 s%d, s%d, 0" % (S_CNT+1, P_WS+1))
    k("v_add_u32 v%d, 4096, v%d" % (V_L16B, V_L16))
    k("s_mov_b32 s%d, %s" % (S_C2, f32(LOG2E))); k("s_mov_b32 s%d, %s" % (S_C2+1, f32(LOG2E)))
    return [t for _, t in k.items]

def dma_queue():
    Q = []
    for st in range(20):
        if st % 2 == 0:
            u = st // 2
            for i in range(4): Q.append((-1 if u < RX else 2*(u-RX)+1, x_dma(u, i), False))
        it = w_dma(st)
        for i, d in enumerate(it): Q.append((-1 if st < RW else max(1, st-RW), d, i == len(it)-1))
    return Q
def wadv(k): k("s_add_u32 s%d, s%d, s%d" % (S_WOFF, S_WOFF, S_T3))
def issue_now(k, Q, n):
    for _ in range(n):
        av, it, last = Q.pop(0)
        k(it[0]); k.vm(it[1], it[2])
        if last: wadv(k)

def btouch(first_ks, n):
    out = []
    for i in range(n):
        pre = "s_and_b32 s101, s%d, 3\ns_lshl_b32 s101, s101, 2\ns_add_u32 s101, s101, s%d\ns_lshl_b32 s101, s101, 13\ns_add_u32 s101, s101, %d\nv_lshlrev_b32 v24, 7, v0" % (S_M64, S_W, first_ks*5120 + i*131072)
        out.append((pre, "buffer_load_dword v25, v24, s[%d:%d], s101 offen%s" % (SRD_B, SRD_B+3, SC), "pf"))
    return out
def spread(items, s0, s1):
    out = {}; n = len(items); i = 0
    for s in range(s0, s1):
        c = -(-(n - i) // (s1 - s)); out[s] = items[i:i+c]; i += c
    return out

def capture(fn):
    q = K(); q.nl = 100000 + capture.n; capture.n += 100
    fn(q)
    assert not q.vmq and not q.lgq
    return q.items
capture.n = 0

def gemm_main(k, att, Q, extra, polls, xrd=None, xwait=None, xsetup=None):
    npt = 5 if att else 6
    Q = list(Q)
    astamp(k, 4)
    gemm_setup2(k, att)
    astamp(k, 5)
    issue_now(k, Q, cfg.N2)
    side = []
    for t in late_setup_items():
        if side and (t.startswith(("s_addc", "s_cselect", "v_cndmask")) ): side[-1] += "\n" + t
        else: side.append(t)
    blocks = []
    if xsetup:
        its = capture(xsetup)
        if any(kd == "l" for kd, _ in its): blocks = its
        else:
            for _, t in its:
                if side and t.startswith(("s_addc", "s_cselect", "v_cndmask", "s_and_b64")): side[-1] += "\n" + t
                else: side.append(t)
    rds = lambda s: reads_for(s, npt)
    stamp(k, 2)
    astamp(k, 6)
    k.wait(vm=[("X", 0), ("W", 0)])
    k("s_barrier")
    astamp(k, 7)
    aflush(k)
    stamp(k, 3)
    r0 = rds(0)
    for i, r in enumerate(r0): k.lg(r, ("r0", max(0, i-4)//2))
    astamp(k, 8)
    for s in range(20):
        b = s & 1
        rd = rds(s+1) if s < 19 else []
        if xrd and s in xrd: rd += xrd[s]
        dm = []
        while Q and Q[0][0] <= s and len(dm) < (cfg.MAXD0 if s == 0 else cfg.MAXD): dm.append(Q.pop(0))
        ex = [(0, e, False) for e in extra.get(s, [])]
        mix = []
        while dm or ex:
            if dm: mix.append(dm.pop(0))
            if ex and len(ex) >= len(dm): mix.append(ex.pop(0))
        dm = mix + [(0, e, False) for e in touch_items(s)]
        mf = []
        idx = [(p, seg, rt) for p in range(npt) for seg in range(2) for rt in range(4)]
        if cfg.LORD == 1 and s: idx = [(p, seg, rt) for rt in range(4) for p in range(npt) for seg in range(2)]
        if cfg.LORD == 2 and s: idx = [(p, seg, (rt if (p*2+seg) % 2 == 0 else 3-rt)) for p in range(npt) for seg in range(2) for rt in range(4)]
        for p, seg, rt in idx:
            a = acc(p, seg, rt)
            mf.append("v_mfma_f32_16x16x32_bf16 %s, %s, %s, %s" % (R(a,4), R(WF0 + (b*12+p*2+seg)*4, 4), R(XF0 + (b*4+rt)*4, 4), R(a,4) if s else "0"))
        nm = len(mf); nd = len(dm)
        at = [int(i * (nm - 3) / max(nd, 1)) for i in range(nd)]
        for i in range(1, nd): at[i] = max(at[i], at[i-1] + 2)
        pend = None
        m1 = nm - 4 - (len(rd) + 1)//2 if s == 0 else 0
        for m, t in enumerate(mf):
            if s == 0 and m % 4 == 0 and not cfg.AST: k.wait(lg=("r0", m//4))
            if s == 0 and m == 0 and cfg.AST: k.wait(lg="all")
            if s == 0 and m == m1:
                k.wait(vm=("W", 1), lg="all"); k("s_barrier")
            k(t)
            used = 0
            if m >= m1 and not (cfg.RSP and s and len(rd) <= (nm - 6 - m) * 2 // 3 + 0 and m % 3 == 2):
                for _ in range(2 if s == 0 else 1):
                    if rd: k.lg(rd.pop(0)); used += 1
            if (s+1) in polls and m == nm - 1: poll_issue(k, P_DBG, polls[s+1], ("poll", s+1))
            if pend is not None:
                k.vm(pend[1][1], pend[1][2]); used += 1
                if pend[2]: wadv(k)
                pend = None
            elif dm and m >= at[nd - len(dm)]:
                pend = dm.pop(0)
                if pend[1][0]: k(pend[1][0]); used += 1
            while side and used < 2 and s >= 1:
                k(side.pop(0)); used += 1
        assert not rd and not dm and pend is None, (s, rd, dm, pend)
        if s == cfg.BLK and blocks:
            assert not side
            k.items += blocks
        if s < 19:
            k.wait(vm=[("W", s+2), ("X", (s+2) >> 1)] + (xwait.get(s, []) if xwait else []), lg="all")
        if s in polls: poll_check(k, P_DBG, N_S1 if polls[s] == D_S1 else N_S3, ("poll", s), sleep=8, barrier=(s == 19))
        if s < 19:
            k("s_barrier")
            if s == 0: aflush(k)
            if s < 4: astamp(k, 11 + s)
            if s == 4: aflush(k)
            if cfg.STG and s % 2 == 1: stamp(k, 17 + s//2)
    assert not Q and not side
    stamp(k, 4)

def ffn_setup(k):
    k("s_lshl_b32 s75, s%d, 1" % S_MT)
    k("s_add_u32 s75, s75, s%d" % S_RH)
    k("s_mul_i32 s75, s75, 74")
    k("s_mul_i32 s76, s%d, 6" % S_TY)
    k("s_add_u32 s75, s75, s76")
    k("s_mul_i32 s76, s%d, 3" % S_C)
    k("s_add_u32 s75, s75, s76")
    k("s_add_u32 s75, s75, 20")
    k("s_lshl_b32 s75, s75, 12")
    k("s_mul_i32 s%d, s%d, %d" % (S_SIG, S_MT, cfg.CS))
    srd(k, SRD_O, P_WS, A2_OFF, A2_SZ)
    if cfg.PREW:
        k("s_mul_i32 s77, s%d, %d" % (S_MT, 128*1280))
        srd(k, SRD_P, P_OUT, 0, 128*1280, 77)
        k("s_lshl_b32 s76, s%d, 2" % S_TY); k("s_add_u32 s76, s76, s%d" % S_W); k("s_mul_i32 s76, s76, 5120")
        for i in range(4): k("v_mov_b32 v%d, 0" % (26+i))

def ffn_role(k, Q):
    extra = spread(b_items(list(range(32)) + list(range(62, 70))), cfg.PS1, cfg.PE1)
    bo = bo_items()
    for g in range(cfg.BOL):
        st = max(16 + g, 20 - cfg.BOL + g, cfg.BOS)
        extra[st] = extra.get(st, []) + bo[5*g:5*g+5]
    polls = {cfg.PS1-1: D_S1}
    for st, ks in cfg.BTL: extra[st] = extra.get(st, []) + btouch(ks, 1)
    if cfg.BTL: polls = {min(cfg.PS1, cfg.BTL[0][0]) - 1: D_S1}
    if cfg.BT2:
        polls = {cfg.PS1-1: D_S1, cfg.BT2-1: D_S3}
        extra[cfg.BT2] = btouch(0, 1) + extra.get(cfg.BT2, [])
    if cfg.PREW:
        pw = [(None, "buffer_store_dwordx4 v[26:29], v%d, s[%d:%d], s76 offen offset:%d%s" % (V_L16 if j < 4 else V_L16B, SRD_P, SRD_P+3, (j % 4)*1024, SC), "st") for j in range(5)]
        for j, e in enumerate(pw): extra[cfg.PREW + j//cfg.PREN] = extra.get(cfg.PREW + j//cfg.PREN, []) + [e]
    gemm_main(k, False, Q, extra, polls, xsetup=ffn_setup)
    fd = Feed(k, b_items(range(32, 62)) + bo[5*cfg.BOL:])
    per, last = cfg.FFE
    n = 0
    for ks in range(3):
        for rt in range(4):
            T = 6 + (n & 1)*8; O = 22 + (n & 1)*4; n += 1
            if O & 3: O = (24, 28)[(n-1) & 1] - 0
            fe = lambda i: fd.emit(1) if (n <= last and i < per) else None
            G = [acc(2*ks+j, 0, rt) for j in range(2)]; U = [acc(2*ks+j, 1, rt) for j in range(2)]
            O = U[0]
            prs = [(j, h) for j in range(2) for h in range(2)]
            for i, (j, h) in enumerate(prs):
                k("v_pk_mul_f32 %s, %s, s[%d:%d] neg_lo:[0,1] neg_hi:[0,1]" % (vr(T+2*i,2), vr(G[j]+2*h,2), S_C2, S_C2+1))
            fe(0)
            for i in range(8): k("v_exp_f32 v%d, v%d" % (T+i, T+i))
            fe(2)
            for i, (j, h) in enumerate(prs):
                k("v_pk_mul_f32 %s, %s, %s" % (vr(G[j]+2*h,2), vr(G[j]+2*h,2), vr(U[j]+2*h,2)))
            for i in range(4): k("v_pk_add_f32 %s, %s, 1.0 op_sel_hi:[1,0]" % (vr(T+2*i,2), vr(T+2*i,2)))
            fe(1)
            for i in range(8): k("v_rcp_f32 v%d, v%d" % (T+i, T+i))
            fe(3)
            for i, (j, h) in enumerate(prs):
                k("v_pk_mul_f32 %s, %s, %s" % (vr(T+2*i,2), vr(G[j]+2*h,2), vr(T+2*i,2)))
            for i in range(4): k("v_cvt_pk_bf16_f32 v%d, v%d, v%d" % (O+i, T+2*i, T+2*i+1))
            k.vm("buffer_store_dwordx4 %s, v%d, s[%d:%d], s75 offen offset:%d%s" % (vr(O,4), V_L16, SRD_O, SRD_O+3, rt*1024, SC), "st")
        if ks < 2: k("s_add_u32 s75, s75, 4096")
    stamp(k, 26)
    def presig():
        k.wait(vm="st")
        stamp(k, 5)
        signal(k, S_CNT, "s%d" % S_SIG, 14, 15)
    return presig, fd.q

def phi_dma(seg):
    pre = "s_add_u32 s%d, s%d, s81\ns_addc_u32 s%d, s%d, 0\n" % (SRD_P, SRD_P, SRD_P+1, SRD_P+1) if seg else ""
    return [((pre if i == 0 else "") + "s_add_u32 m0, s%d, %d" % (S_XL, XSLOT if seg else SPARE - XBASE),
             "buffer_load_dwordx4 v%d, s[%d:%d], 0 offen offset:%d lds" % (V_L16, SRD_P, SRD_P+3, i*1024), ("P", seg)) for i in range(4)]
def phireg(seg, to, s):
    i = s*5 + to
    if seg == 1: return 256 + 48 + 4*i if i < 10 else 256 + 108 + 4*(i-10)
    return 256 + 4*i if i < 12 else 256 + 96 + 4*(i-12)
V_PHA = 23
def phi_reads(seg):
    out = []
    for s in range(3):
        for to in range(5):
            for h in range(2):
                d = phireg(seg, to, s) + 2*h
                b = 0 if seg else SPARE - XBASE - XSLOT
                if s == 2 and h == 1: out.append("ds_read_b64_tr_b16 %s, v26 offset:%d" % (R(d,2), b))
                else: out.append("ds_read_b64_tr_b16 %s, v%d offset:%d" % (R(d,2), V_PHA, b + (8*s+4*h)*40 + 8*to))
    return out
def cvt_in(seg, rt, B):
    out = []
    for t in range(5):
        a = acc(t, seg, rt)
        out.append("v_cvt_pk_bf16_f32 v%d, v%d, v%d" % (B+2*t, a, a+1))
        out.append("v_cvt_pk_bf16_f32 v%d, v%d, v%d" % (B+2*t+1, a+2, a+3))
    return out
def phi_mf(seg, rt, B):
    return ["v_mfma_f32_16x16x32_bf16 %s, %s, %s, %s" % (vr(acc(to,seg,rt),4), R(phireg(seg, to, s),4), vr(B+4*s,4), vr(acc(to,seg,rt),4) if s else "0")
            for s in range(3) for to in range(5)]

PKRS = 352; VRS = 224; PKSZ = 128*PKRS; VB = 2*PKSZ; VSZ = 128*VRS
V_E0, V_E1, V_E2, V_E3, V_E4, V_E5, V_E6 = 27, 28, 29, 30, 60, 61, 62
def att_common_setup(k):
    k("v_lshrrev_b32 v50, 4, v0")
    k("v_and_b32 v51, 15, v0")
    k("v_bfe_u32 v52, v0, 2, 2")
    k("v_and_b32 v53, 3, v0")
    k("v_mul_u32_u24 v48, 800, v50")
    k("v_mad_u32_u24 v48, v52, 40, v48")
    k("v_cmp_eq_u32 vcc, v50, v53")
    k("v_mov_b32 v49, 3200")
    k("v_cndmask_b32 v48, v49, v48, vcc")
    k("s_add_u32 s%d, s%d, %d" % (S_T2, S_XL, XSLOT))
    k("v_add_u32 v%d, s%d, v48" % (V_PHA, S_T2))
    k("v_add_u32 v26, s%d, v49" % S_T2)
def kv_setup(k):
    k("s_lshl_b32 s%d, s%d, 6" % (S_T0, S_RH))
    k("v_add_u32 v48, s%d, v51" % S_T0)
    k("s_mul_i32 s%d, s%d, %d" % (S_T0, S_C, PKSZ))
    k("v_mul_u32_u24 v%d, %d, v48" % (V_E0, PKRS))
    k("v_mul_u32_u24 v49, 80, v50")
    k("v_add3_u32 v%d, v%d, v49, s%d" % (V_E0, V_E0, S_T0))
    k("s_mul_i32 s%d, s%d, %d" % (S_T1, S_C, VSZ))
    k("s_add_u32 s%d, s%d, %d" % (S_T1, S_T1, VB))
    k("v_mul_u32_u24 v%d, %d, v48" % (V_E1, VRS))
    k("v_mul_u32_u24 v49, 48, v50")
    k("v_add3_u32 v%d, v%d, v49, s%d" % (V_E1, V_E1, S_T1))
    k("v_lshrrev_b32 v48, 2, v0")
    k("v_lshlrev_b32 v49, 3, v53")
    k("s_mul_i32 s%d, s%d, 160" % (S_T2, S_RH))
    k("s_add_u32 s%d, s%d, s%d" % (S_T0, S_T0, S_T2))
    k("v_mul_u32_u24 v%d, %d, v48" % (V_E2, PKRS))
    k("v_add3_u32 v%d, v%d, v49, s%d" % (V_E2, V_E2, S_T0))
    k("s_mul_i32 s%d, s%d, 96" % (S_T2, S_RH))
    k("s_add_u32 s%d, s%d, s%d" % (S_T1, S_T1, S_T2))
    k("v_mul_u32_u24 v%d, %d, v48" % (V_E3, VRS))
    k("v_add3_u32 v%d, v%d, v49, s%d" % (V_E3, V_E3, S_T1))
    k("s_add_u32 s%d, s%d, %d" % (S_T2, S_XL, SPARE - XBASE))
    k("v_mul_u32_u24 v48, 80, v51")
    k("v_lshl_add_u32 v48, v50, 3, v48")
    k("v_add_u32 v%d, s%d, v48" % (V_E5, S_T2))
    k("v_add_u32 v%d, s%d, v%d" % (V_E6, S_T2, V_L16))
    k("v_mov_b32 v48, 0x7fffffff")
    k("v_cmp_gt_u32 vcc, 32, v0")
    k("v_cndmask_b32 v%d, v48, v%d, vcc" % (V_E4, V_L16))
    k("s_lshl_b32 s78, s79, 1")
    k("s_add_u32 s78, s78, s%d" % S_RH)
    k("s_lshl_b32 s78, s78, 4")
    k("s_add_u32 s78, s78, s%d" % S_MT)
    k("s_mul_i32 s78, s78, %d" % KVPS)
    k("v_cmp_gt_u32 s[72:73], 2, v50")
    k("v_cmp_gt_u32 s[74:75], 5, v51")
    k("s_and_b64 s[76:77], s[72:73], s[74:75]")
    srd(k, SRD_O, P_WS, KVP_OFF, KVP_SZ)
    for r in (42, 43, 54, 55): k("v_mov_b32 v%d, 0" % r)
def q_setup(k):
    k("s_mov_b32 s%d, 81920" % S_T0)
    k("v_mul_lo_u32 v48, v50, s%d" % S_T0)
    k("v_lshl_add_u32 v%d, v51, 4, v48" % V_E0)
    k("v_lshl_add_u32 v%d, v51, 3, v48" % V_E1)
    k("v_lshlrev_b32 v%d, 2, v0" % V_E2)
    k("s_mul_i32 s%d, s79, %d" % (S_T1, 4*81920))
    k("s_lshl_b32 s%d, s%d, 1" % (S_T0, S_MT))
    k("s_add_u32 s%d, s%d, s%d" % (S_T0, S_T0, S_RH))
    k("s_lshl_b32 s75, s%d, 10" % S_T0)
    k("s_add_u32 s75, s75, s%d" % S_T1)
    k("s_add_u32 s76, s75, 32768")
    k("s_lshl_b32 s77, s%d, 9" % S_T0)
    k("s_add_u32 s77, s77, s%d" % S_T1)
    k("s_add_u32 s77, s77, 65536")
    k("s_lshl_b32 s78, s%d, 8" % S_T0)
    k("s_add_u32 s78, s78, %d" % (G_OFF - PQ_OFF))
    k("s_add_u32 s%d, s%d, %d" % (S_SIG, S_MT, C_Q))
    k("s_mul_i32 s%d, s%d, %d" % (S_SIG, S_SIG, cfg.CS))
    srd(k, SRD_O, P_WS, PQ_OFF, G_OFF + G_SZ - PQ_OFF)
    for r in (42, 43, 54, 55): k("v_mov_b32 v%d, 0" % r)

def softmax_pm(k, P, E, T, O, fd=None, mf=None, side=None, inplace=None):
    def fe(n=1):
        if fd: fd.emit(n)
    mf = list(mf or []); side = list(side or [])
    v = [p + i for p in P for i in range(2)]
    k("v_max3_f32 v%d, v%d, v%d, v%d" % (T, v[0], v[1], v[2]))
    k("v_min3_f32 v%d, v%d, v%d, v%d" % (T+2, v[0], v[1], v[2]))
    k("v_max3_f32 v%d, v%d, v%d, v%d" % (T+1, v[3], v[4], v[5]))
    k("v_min3_f32 v%d, v%d, v%d, v%d" % (T+3, v[3], v[4], v[5]))
    for n, i in enumerate(range(6, 20, 2)):
        c = n & 1
        k("v_max3_f32 v%d, v%d, v%d, v%d" % (T+c, T+c, v[i], v[i+1]))
        k("v_min3_f32 v%d, v%d, v%d, v%d" % (T+2+c, T+2+c, v[i], v[i+1]))
    fe()
    k("v_max_f32 v%d, v%d, v%d" % (T, T, T+1))
    k("v_min_f32 v%d, v%d, v%d" % (T+2, T+2, T+3))
    k("v_mul_f32 v%d, %s, v%d" % (T, f32(-LOG2E), T))
    k("v_mul_f32 v%d, %s, v%d" % (T+2, f32(LOG2E), T+2))
    for i, p in enumerate(P):
        k("v_pk_fma_f32 %s, %s, s[%d:%d], %s op_sel_hi:[1,1,0]" % (vr(E+2*i,2), vr(p,2), S_C2, S_C2+1, vr(T,2)))
    fe()
    for i, p in enumerate(P):
        k("v_pk_fma_f32 %s, %s, s[%d:%d], %s op_sel_hi:[1,1,0] neg_lo:[0,1,0] neg_hi:[0,1,0]" % (vr(p,2), vr(p,2), S_C2, S_C2+1, vr(T+2,2)))
    ex = [E+i for i in range(20)] + v
    for i, x in enumerate(ex):
        if i % 2 == 0:
            if mf: k(mf.pop(0))
            if side:
                y = side.pop(0)
                if isinstance(y, str) or len(y) == 3: emit1(k, y)
                else: k.lg(*y)
        if i % 12 == 5: fe()
        k("v_exp_f32 v%d, v%d" % (x, x))
    assert not mf and not side
    Ep = [E+2*i for i in range(10)]
    k("v_pk_add_f32 %s, %s, %s" % (vr(T+4,2), vr(Ep[0],2), vr(Ep[1],2)))
    k("v_pk_add_f32 %s, %s, %s" % (vr(T,2), vr(Ep[2],2), vr(Ep[3],2)))
    k("v_pk_add_f32 %s, %s, %s" % (vr(T+6,2), vr(P[0],2), vr(P[1],2)))
    k("v_pk_add_f32 %s, %s, %s" % (vr(T+2,2), vr(P[2],2), vr(P[3],2)))
    for i in range(4, 10, 2):
        k("v_pk_add_f32 %s, %s, %s" % (vr(T+4,2), vr(T+4,2), vr(Ep[i],2)))
        k("v_pk_add_f32 %s, %s, %s" % (vr(T,2), vr(T,2), vr(Ep[i+1],2)))
        k("v_pk_add_f32 %s, %s, %s" % (vr(T+6,2), vr(T+6,2), vr(P[i],2)))
        k("v_pk_add_f32 %s, %s, %s" % (vr(T+2,2), vr(T+2,2), vr(P[i+1],2)))
    k("v_pk_add_f32 %s, %s, %s" % (vr(T+4,2), vr(T+4,2), vr(T,2)))
    k("v_pk_add_f32 %s, %s, %s" % (vr(T+6,2), vr(T+6,2), vr(T+2,2)))
    fe()
    k("v_add_f32 v%d, v%d, v%d" % (T+4, T+4, T+5))
    k("v_add_f32 v%d, v%d, v%d" % (T+6, T+6, T+7))
    k("v_rcp_f32 v%d, v%d" % (T+4, T+4))
    k("v_rcp_f32 v%d, v%d" % (T+6, T+6))
    for i in range(10): k("v_pk_mul_f32 %s, %s, %s op_sel_hi:[1,0]" % (vr(Ep[i],2), vr(Ep[i],2), vr(T+4,2)))
    fe()
    for i in range(10): k("v_pk_mul_f32 %s, %s, %s op_sel_hi:[1,0]" % (vr(P[i],2), vr(P[i],2), vr(T+6,2)))
    if inplace:
        fe()
        for t in pack_inplace(inplace, E): k(t)
        return
    for i in range(10): k("v_cvt_pk_bf16_f32 v%d, v%d, v%d" % (O+i, Ep[i], Ep[i]+1))
    fe()
    for i in range(10): k("v_cvt_pk_bf16_f32 v%d, v%d, v%d" % (O+10+i, P[i], P[i]+1))

def att_extra(two):
    extra = spread(b_items(range(cfg.NBA)), cfg.PSA, 20)
    for st, ks in cfg.BTL: extra[st] = extra.get(st, []) + btouch(ks, 1)
    extra[cfg.PHS] = phi_dma(0)
    return extra

def att_loop(k, Q):
    def setup(q): att_common_setup(q); kv_setup(q)
    gemm_main(k, True, Q, att_extra(True), {(min(cfg.PSA, cfg.BTL[0][0]) if cfg.BTL else cfg.PSA)-1: D_S1}, xrd={19: phi_reads(0)}, xwait={18: [("P", 0)]}, xsetup=setup)

def kv_role(k):
    EREG = 6; TREG = 244; O = 224
    for t in cvt_in(0, 0, 32): k(t)
    k.wait(lg="all")
    weave(k, phi_mf(0, 0, 32), cvt_in(0, 1, 44))
    if not cfg.STG: stamp(k, 17)
    def vout(rt):
        q = [acc(t, 1, rt) + i for t in range(5) for i in range(4)]
        f = ["v_cvt_pk_bf16_f32 v%d, v%d, v%d" % (q[i], q[2*i], q[2*i+1]) for i in range(10)]
        f += ["v_mov_b32 v%d, 0x3f80" % q[10], "v_mov_b32 v%d, 0" % q[11]]
        w = [("ds_write_b128 v%d, %s offset:%d" % (V_E1, vr(q[4*i],4), rt*16*VRS + 16*i), "vw") for i in range(3)]
        return f, w
    def vfr(n, bt): return acc((n*2+bt) >> 2, 1, (n*2+bt) & 3)
    vreads = []
    for n in range(8):
        j, ks = n >> 2, n & 3
        for bt in range(2):
            for h in range(2):
                vreads.append(("ds_read_b64_tr_b16 %s, v%d offset:%d" % (vr(vfr(n,bt)+2*h,2), V_E3, (32*ks+16*h)*VRS + j*48 + bt*32), "vf"))
    fd = Feed(k, [])
    for rt in range(4):
        P = [acc(t, 0, rt) + 2*h for t in range(5) for h in range(2)]
        mf = phi_mf(0, rt+1, 32 + ((rt+1) & 1)*12) if rt < 3 else []
        if rt == cfg.KVB0 and cfg.KVN >= 47: fd.q += b_items(range(32, 47))
        if rt == 3 and cfg.KVN >= 62: fd.q += b_items(range(47, 62))
        side = []
        if rt < 2:
            for r in (2*rt, 2*rt+1):
                f, w = vout(r)
                for t in f: k(t)
                side += w
        else:
            if rt == 2: k.wait(lg="vw"); k("s_barrier")
            side = vreads[(rt-2)*16:(rt-1)*16]
        softmax_pm(k, P, EREG, TREG, O, fd, mf, side)
        for i in range(5):
            k.lg("ds_write_b128 v%d, %s offset:%d" % (V_E0, vr(O+4*i,4), rt*16*PKRS + 16*i), ("pw", rt))
        if rt < 2:
            for t in cvt_in(0, rt+2, 32 + (rt & 1)*12): k(t)
        if not cfg.STG: stamp(k, 18+rt)
    k.wait(lg="all")
    k("s_barrier")
    if not cfg.STG: stamp(k, 22)
    KAQ = [32, 36, 40, 44, 48, 52, 224, 228, 232, 236, 240, 244]
    def pfr(n, ft): return acc(((n % 6)*3+ft) >> 2, 0, ((n % 6)*3+ft) & 3)
    def rd(n):
        j, ks = n >> 2, n & 3
        return [("lg", "ds_read_b64_tr_b16 %s, v%d offset:%d" % (vr(pfr(n,ft)+2*h,2), V_E2, (32*ks+16*h)*PKRS + j*80 + ft*32), ("f", n)) for ft in range(3) for h in range(2)]
    def pack(jj):
        f = []
        for ft in range(3):
            for bt in range(2):
                a = KAQ[(jj*3+ft)*2+bt]
                f += ["v_cvt_pk_bf16_f32 v%d, v%d, v%d" % (a, a, a+1), "v_cvt_pk_bf16_f32 v%d, v%d, v%d" % (a+1, a+2, a+3)]
                mask = [[None, "s[74:75]"], [None, "s[74:75]"], ["s[72:73]", "s[76:77]"]][ft][bt]
                w = "ds_write_b64 v%d, %s offset:%d" % (V_E5, vr(a,2), jj*1680 + bt*1280 + ft*32)
                if mask: w = "s_mov_b64 exec, %s\n%s\ns_mov_b64 exec, -1" % (mask, w)
                f.append(("lg", w, "cw"))
        return f
    weave(k, [], rd(0) + rd(1))
    pk0 = pack(0)
    for n in range(8):
        j, ks = n >> 2, n & 3
        k.wait(lg=("f", n))
        mf = []
        for ft in range(3):
            for bt in range(2):
                a = KAQ[(j*3+ft)*2+bt]
                mf.append("v_mfma_f32_16x16x32_bf16 %s, %s, %s, %s" % (vr(a,4), vr(pfr(n,ft),4), vr(vfr(n,bt),4), vr(a,4) if ks else "0"))
        fill = rd(n+2) if n < 6 else []
        if n < 4: fill.append(lambda: fd.emit(1))
        if n >= 5: fill += pk0[(n-5)*6:(n-4)*6]
        weave(k, mf, fill)
    weave(k, [], pack(1))
    k.wait(lg="all")
    for i in range(4): k.lg("ds_read_b128 %s, v%d offset:%d" % (vr(64+4*i,4), V_E6, i*1024), ("cr", i))
    for i in range(4):
        k.wait(lg=("cr", i))
        k.vm("buffer_store_dwordx4 %s, v%d, s[%d:%d], s78 offen offset:%d%s" % (vr(64+4*i,4), V_L16 if i < 3 else V_E4, SRD_O, SRD_O+3, i*1024, SC), "st")
    stamp(k, 26)
    stamp(k, 5)
    fd.drain()

QXB = 3*WSLOT; QST = 98304
def qacc(t, rt): return 64 + (t*6+rt)*4
QW0 = 256; QX0 = 256 + 80; QPH = 256 + 176
def qa_role(k):
    k("s_mov_b32 s%d, 13" % S_TY)
    k("s_mul_i32 s75, s%d, 6" % S_T0); k("s_add_u32 s75, s75, s%d" % S_T1); k("s_sub_u32 s75, s75, 26")
    k("s_lshr_b32 s79, s%d, 1" % S_T0)
    k("s_mul_i32 s%d, s79, 12" % S_MT); k("s_sub_u32 s%d, s75, s%d" % (S_MT, S_MT))
    k("s_add_u32 s%d, s75, %d" % (S_SIG, C_P)); k("s_mul_i32 s%d, s%d, %d" % (S_SIG, S_SIG, cfg.CS))
    k("s_lshl_b32 s75, s75, 2"); k("s_add_u32 s75, s75, s%d" % S_W)
    k("s_mul_i32 s76, s75, 205"); k("s_lshr_b32 s76, s76, 11")
    k("s_mul_i32 s77, s76, 10"); k("s_sub_u32 s77, s75, s77")
    k("s_cmp_ge_u32 s76, 19")
    k("s_cselect_b32 s78, 0x4000000, 0")
    k("s_mul_i32 s80, s76, %d" % (32*1280)); k("s_lshl_b32 s81, s77, 7"); k("s_add_u32 s80, s80, s81"); k("s_add_u32 s80, s80, s78")
    k("v_lshrrev_b32 v24, 3, v0"); k("v_and_b32 v25, 7, v0")
    k("v_and_b32 v26, 6, v24"); k("v_xor_b32 v26, v26, v25"); k("v_lshlrev_b32 v26, 4, v26")
    k("v_mul_u32_u24 v32, 1280, v24"); k("v_add_u32 v32, v32, v26")
    k("v_lshrrev_b32 v27, 2, v24"); k("v_and_b32 v28, 3, v24"); k("v_lshl_add_u32 v27, v27, 3, v28")
    k("v_mul_u32_u24 v36, 1280, v27"); k("v_add_u32 v36, v36, v26")
    for i in range(1, 4):
        k("v_add_u32 v%d, %d, v32" % (32+i, i*8*1280))
        k("v_add_u32 v%d, %d, v36" % (36+i, (16*(i&1) + 4*(i>>1))*1280))
    k("s_lshl_b32 s82, s%d, 14" % S_W); k("s_add_u32 s82, s82, %d" % QST)
    k("s_waitcnt lgkmcnt(0)")
    srd(k, SRD_W1, P_WD, 0, 1728*1280)
    srd(k, SRD_W0, P_WO, 0, 640*1280)
    def load(n, sg, vb, off):
        k("s_add_u32 s81, s80, %s" % off)
        for j in range(4):
            k("s_add_u32 m0, s82, %d" % (n*4096 + j*1024))
            k.vm("buffer_load_dwordx4 v%d, s[%d:%d], s81 offen nt lds" % (vb+j, sg, sg+3), ("u", n))
    load(0, SRD_W1, 32, "%d" % (18*32*1280))
    load(1, SRD_W1, 32, "%d" % (37*32*1280))
    load(2, SRD_W0, 36, "0")
    k("s_cmp_eq_u32 s76, 0")
    for i in range(3): k("s_cselect_b32 s%d, s%d, s%d" % (96+i, SRD_W0+i, SRD_W1+i))
    k("s_mov_b32 s99, 0x20000")
    k("s_cselect_b64 vcc, -1, 0")
    k("s_mov_b32 s72, %d" % (19*32*1280))
    k("s_cselect_b32 s72, s72, %d" % (-32*1280 & 0xffffffff))
    for j in range(4): k("v_cndmask_b32 v%d, v%d, v%d, vcc" % (40+j, 32+j, 36+j))
    load(3, 96, 40, "s72")
    k("s_mul_i32 s3, s75, 5120")
    srd(k, SRD_O, P_WS, B2_OFF, B2_SZ)
    for t in late_setup_items(): k(t)
    k("v_lshrrev_b32 v44, 2, v0"); k("v_bfe_u32 v45, v44, 1, 2"); k("v_and_b32 v46, 3, v0")
    k("v_lshlrev_b32 v44, 7, v44"); k("v_lshl_add_u32 v44, v46, 3, v44"); k("v_add_u32 v44, s82, v44")
    for b in range(4):
        k("v_xor_b32 v46, %d, v45" % b); k("v_lshl_add_u32 v%d, v46, 5, v44" % (48+b))
    D0 = 4
    for b in range(4):
        k("s_lshl_b32 s72, s77, 2"); k("s_add_u32 s72, s72, %d" % b)
        k("s_mul_i32 s73, s72, 205"); k("s_lshr_b32 s73, s73, 10")
        k("s_mul_i32 s74, s73, 5"); k("s_sub_u32 s72, s72, s74")
        k("s_mul_i32 s73, s73, 74"); k("s_add_u32 s73, s73, s76")
        k("s_mul_i32 s73, s73, 5"); k("s_add_u32 s73, s73, s72")
        k("s_lshl_b32 s73, s73, 10")
        k("s_add_u32 s%d, s73, s78" % (D0+b))
    k("s_cmp_lt_u32 s76, 17"); k("s_cselect_b32 s100, 0, 0x4000000")
    k("s_mov_b32 s%d, 3840" % S_STRIDE)
    k("s_mul_i32 s%d, s79, 320" % S_T1)
    k("s_and_b32 s%d, s%d, 127" % (S_DELTA, S_T1)); k("s_sub_u32 s75, s%d, s%d" % (S_T1, S_DELTA))
    k("s_add_u32 s76, s75, %d" % (32*3840))
    k("s_sub_u32 s77, %d, s75" % (640*3840)); k("s_sub_u32 s78, %d, s76" % (640*3840))
    srd(k, SRD_W0, P_WQKV, 0, "s77", 75)
    srd(k, SRD_W1, P_WQKV, 0, "s78", 76)
    gemm_setup(k)
    k("s_mov_b32 s%d, %d" % (S_T3, 64*3840))
    k("s_mul_i32 s%d, s%d, %d" % (S_T0, S_W, 16*1280))
    for i in range(4): k("v_add_u32 v%d, s%d, v%d" % (V_XD+i, S_T0, V_XD+i))
    k("s_add_u32 s%d, s%d, %d" % (S_XL, S_WL, QXB))
    k("s_mov_b32 s101, %d" % (32*1280))
    k("s_mul_i32 s%d, s%d, %d" % (S_T0, S_MT, 192*1280))
    k("s_min_u32 s%d, s%d, %d" % (S_T0, S_T0, 2048*1280))
    k("s_sub_u32 s%d, %d, s%d" % (S_T1, 2048*1280, S_T0))
    srd(k, SRD_X, P_X, 0, "s%d" % S_T1, S_T0)
    k("s_lshl_b32 s%d, s%d, 2" % (S_T0, S_MT)); k("s_add_u32 s%d, s%d, s%d" % (S_T0, S_T0, S_W)); k("s_mul_i32 s%d, s%d, %d" % (S_T0, S_T0, 16*3840))
    k("v_lshrrev_b32 v44, 2, v0"); k("v_mul_u32_u24 v44, 3840, v44"); k("v_and_b32 v45, 3, v0"); k("v_min_u32 v45, 2, v45"); k("v_lshl_add_u32 v44, v45, 7, v44")
    k.vm("buffer_load_dword v%d, v44, s[%d:%d], s%d offen" % (V_JUNK, SRD_W0, SRD_W0+3, S_T0), "pf")
    gemm_setup2(k, True)
    k("s_mul_i32 s%d, s%d, %d" % (S_T0, S_RH, 12288 - 8192)); k("s_sub_u32 s%d, s%d, %d" % (S_T0, S_T0, XBASE - QXB))
    for i in range(2): k("v_add_u32 v%d, s%d, v%d" % (V_XR+i, S_T0, V_XR+i))
    stamp(k, 1)
    for n, ks0 in enumerate((38, 57, 0, 19)):
        k.wait(vm=("u", n))
        F = 64 + n*16
        for b in range(4):
            for h in range(2): k.lg("ds_read_b64_tr_b16 %s, v%d offset:%d" % (vr(F+4*b+2*h,2), 48+b, n*4096 + h*2048))
        for b in range(4):
            k("s_add_u32 s%d, s%d, %d" % (72+b, D0+b, ks0*5120))
            if ks0 == 57: k("s_add_u32 s%d, s%d, s100" % (72+b, 72+b))
        k.wait(lg="all")
        for b in range(4):
            k.vm("buffer_store_dwordx4 %s, v%d, s[%d:%d], s%d offen%s" % (vr(F+4*b,4), V_L16, SRD_O, SRD_O+3, 72+b, SC), "rs")
    srd(k, 96, P_WS, KVP_OFF, KVP_SZ + 16*4096)
    for i in range(4): k("v_mov_b32 v%d, -1" % (56+i))
    for j in range(4): k.vm("buffer_store_dwordx4 v[56:59], v%d, s[96:99], s3 offen offset:%d%s" % (V_L16, j*1024, SC), "rs")
    k.vm("buffer_store_dwordx4 v[56:59], v%d, s[96:99], s3 offen%s" % (V_L16B, SC), "rs")
    sv = list(k.vmq)
    k("s_cmp_eq_u32 s%d, 11" % S_MT); k("s_cbranch_scc1 L_spare")
    def wd(s): return [("s_add_u32 m0, s%d, %d" % (S_WL, (s % 3)*WSLOT + i*1024 - (i % 3)*128), b, c) for i, (a, b, c) in enumerate(w_dma(s))]
    def xd(s): return [("s_add_u32 m0, s%d, %d" % (S_XL, (s % 3)*WSLOT + i*1024 - s*128),
                        "buffer_load_dwordx4 v%d, s[%d:%d], %s offen offset:%d lds" % (V_XD + (i if i < 4 else i-4), SRD_X, SRD_X+3, "0" if i < 4 else "s101", s*128), ("X", s)) for i in range(6)]
    def now(items, adv):
        for it in items: k(it[0]); k.vm(it[1], it[2])
        if adv: wadv(k)
    now(xd(0), 0); now(wd(0), 1); now(wd(1), 1)
    k("s_lshl_b32 s79, s79, 1"); k("s_add_u32 s79, s79, s%d" % S_C); k("s_mul_i32 s80, s79, 3200")
    srd(k, SRD_P, P_WPHI, 0, 3200, 80)
    k.wait(vm="rs")
    signal(k, P_DBG, D_S1)
    stamp(k, 2)
    now(xd(1), 0)
    k("s_lshl_b32 s82, s%d, 12" % S_W); k("s_add_u32 s82, s82, %d" % SPARE)
    now([("s_mov_b32 m0, s82", "buffer_load_dwordx4 v%d, s[%d:%d], 0 offen offset:%d lds" % (V_L16, SRD_P, SRD_P+3, i*1024), "P") for i in range(4)], 0)
    k("v_lshrrev_b32 v50, 4, v0"); k("v_and_b32 v51, 15, v0"); k("v_bfe_u32 v52, v0, 2, 2"); k("v_and_b32 v53, 3, v0")
    k("v_mul_u32_u24 v48, 800, v50"); k("v_mad_u32_u24 v48, v52, 40, v48")
    k("v_cmp_eq_u32 vcc, v50, v53"); k("v_mov_b32 v49, 3200"); k("v_cndmask_b32 v48, v49, v48, vcc")
    k("v_add_u32 v%d, s82, v48" % V_PHA); k("v_add_u32 v26, s82, v49")
    k("s_mov_b32 s%d, %d" % (S_T0, 128*1280)); k("v_mul_lo_u32 v48, v50, s%d" % S_T0); k("v_lshl_add_u32 v%d, v51, 4, v48" % V_E0)
    k("s_mul_i32 s76, s%d, 12" % S_MT); k("s_mul_i32 s77, s%d, 6" % S_RH); k("s_add_u32 s76, s76, s77")
    k("s_mul_i32 s75, s79, %d" % (4*128*1280)); k("s_mul_i32 s77, s76, 1280"); k("s_add_u32 s75, s75, s77")
    srd(k, SRD_O, P_WS, PQ_OFF, PQ_SZ)
    for r in (42, 43, 54, 55): k("v_mov_b32 v%d, 0" % r)
    def rds(s):
        out = []; b = s & 1; sl = (s % 3)*WSLOT
        for rt in range(6):
            for hh in range(2): out.append("ds_read_b128 %s, v%d offset:%d" % (R(QX0 + (b*12+rt*2+hh)*4, 4), V_XR + hh, sl + rt*2048))
        for p in range(5):
            for hh in range(2):
                for h in range(2): out.append("ds_read_b64_tr_b16 %s, v%d offset:%d" % (R(QW0 + (b*10+p*2+hh)*4 + 2*h, 2), V_TA + p, sl + hh*3072 + h*512))
        return out
    def ph(to, s): return QPH + 4*(s*5 + to)
    prd = []
    for s in range(3):
        for to in range(5):
            for h in range(2):
                if s == 2 and h == 1: prd.append("ds_read_b64_tr_b16 %s, v26" % R(ph(to,s)+2*h,2))
                else: prd.append("ds_read_b64_tr_b16 %s, v%d offset:%d" % (R(ph(to,s)+2*h,2), V_PHA, (8*s+4*h)*40 + 8*to))
    k.wait(vm=[("X", 0), ("W", 0)])
    k("s_barrier")
    stamp(k, 3)
    for r in rds(0): k.lg(r)
    now(wd(2), 1); now(xd(2), 0)
    k.wait(vm=[("X", 1), ("W", 1)], lg="all")
    k("s_barrier")
    for s in range(10):
        b = s & 1
        rd = rds(s+1) if s < 9 else list(prd)
        dm = [(e, i == 5) for i, e in enumerate(wd(s+3))] + [(e, False) for e in xd(s+3)] if s + 3 < 10 else []
        if s == 9: dm = [(e, False) for e in b_items(range(27, 32))]
        mf = ["v_mfma_f32_16x16x32_bf16 %s, %s, %s, %s" % (vr(qacc(p,rt),4), R(QW0 + (b*10+p*2+hh)*4, 4), R(QX0 + (b*12+rt*2+hh)*4, 4), vr(qacc(p,rt),4) if (s or hh) else "0")
              for p in range(5) for rt in range(6) for hh in range(2)]
        nm = len(mf); nd = len(dm)
        at = [int(i * (nm - 3) / max(nd, 1)) for i in range(nd)]
        pend = None
        for m, t in enumerate(mf):
            k(t)
            if rd: k.lg(rd.pop(0))
            if s == 7 and m == nm - 1: poll_issue(k, P_DBG, D_S1, "s1")
            if pend is not None:
                k.vm(pend[0][1], pend[0][2])
                if pend[1]: wadv(k)
                pend = None
            elif dm and m >= at[nd - len(dm)]:
                pend = dm.pop(0)
                if pend[0][0]: k(pend[0][0])
        assert not rd and not dm and pend is None
        if s < 9:
            k.wait(vm=[("W", s+2), ("X", s+2)], lg="all")
            if s == 8: poll_check(k, P_DBG, N_S1, "s1", sleep=8, barrier=False)
            k("s_barrier")
    stamp(k, 4)
    def cin(rt):
        o = []
        for t in range(5):
            a = qacc(t, rt); B = 32 + (rt & 1)*12
            o += ["v_cvt_pk_bf16_f32 v%d, v%d, v%d" % (B+2*t, a, a+1), "v_cvt_pk_bf16_f32 v%d, v%d, v%d" % (B+2*t+1, a+2, a+3)]
        return o
    def pmf(rt): return ["v_mfma_f32_16x16x32_bf16 %s, %s, %s, %s" % (vr(qacc(to,rt),4), R(ph(to, s),4), vr(32+(rt & 1)*12+4*s,4), vr(qacc(to,rt),4) if s else "0") for s in range(3) for to in range(5)]
    def stores(rt):
        o = ["s_add_u32 s77, s75, %d\ns_cmp_lt_u32 s76, %d\ns_cselect_b32 s77, s77, 0x4000000" % (rt*1280, 128 - rt)]
        return o + [("vm", "buffer_store_dwordx4 %s, v%d, s[%d:%d], s77 offen offset:%d%s" % (vr(qacc(t,rt),4), V_E0, SRD_O, SRD_O+3, t*256, SC), "st") for t in range(5)]
    for t in cin(0): k(t)
    k.wait(lg="all")
    weave(k, pmf(0), cin(1))
    fd = Feed(k, b_items(list(range(0, 12)) + list(range(32, 62))) + bo_items()[:cfg.BOQ])
    prev = []
    for rt in range(6):
        v = [qacc(t, rt) + i for t in range(5) for i in range(4)]
        fd.emit(cfg.QX)
        softmax_pm(k, v[::2], 184, 204, None, fd, pmf(rt+1) if rt < 5 else None, prev, inplace=v)
        fd.emit(cfg.QX)
        if rt < 4:
            for t in cin(rt+2): k(t)
        prev = stores(rt)
    weave(k, [], prev)
    stamp(k, 26)
    rest = b_items(list(range(12, 27)) + list(range(62, 70)))
    Feed(k, rest[:6]).drain()
    k.wait(vm="st")
    stamp(k, 5)
    signal(k, S_CNT, "s%d" % S_SIG)
    left = [x for x in fd.q]
    nb = [x[2][1] for x in left if isinstance(x[2], tuple)]
    nbo = sum(1 for x in left if x[2] == "BO")
    assert nbo % 5 == 0 or True
    assert not nb
    Feed(k, left).drain()
    k("s_branch L_qtail")
    k.label("L_spare")
    k.vmq = sv; k.lgq = []
    k("s_cmp_eq_u32 s79, 0")
    k("s_cselect_b32 s%d, %d, 0" % (S_T0, 96*cfg.CS))
    srd(k, 96, P_WS, CNT_OFF, "s%d" % S_T0)
    for i in range(4): k("v_mov_b32 v%d, 0" % (56+i))
    k("s_mul_i32 s%d, s%d, %d" % (S_T0, S_W, 24*cfg.CS))
    k("v_mul_u32_u24 v60, %d, v24" % cfg.CS); k("v_lshl_add_u32 v60, v25, 4, v60")
    for i in range(3):
        k.vm("buffer_store_dwordx4 v[56:59], v60, s[96:99], s%d offen%s" % (S_T0, SC), "rs")
        k("s_add_u32 s%d, s%d, %d" % (S_T0, S_T0, 8*cfg.CS))
    k("s_lshl_b32 s72, s79, 2"); k("s_add_u32 s72, s72, s%d" % S_W)
    srd(k, SRD_X, P_X, 0, 2048*1280)
    srd(k, SRD_P, P_GW, 0, 1280)
    srd(k, SRD_W0, P_WS, G_OFF, G_SZ)
    k("v_and_b32 v24, 15, v0"); k("v_lshrrev_b32 v25, 4, v0")
    k("v_lshlrev_b32 v26, 4, v24")
    for j in range(5): k.vm("buffer_load_dwordx4 %s, v26, s[%d:%d], 0 offen offset:%d" % (vr(32+4*j,4), SRD_P, SRD_P+3, 256*j), "gw")
    k.wait(vm="rs")
    signal(k, P_DBG, D_S1)
    stamp(k, 2)
    k("v_lshlrev_b32 v27, 3, v25"); k("v_mul_u32_u24 v27, 1280, v27"); k("v_add_u32 v27, v27, v26")
    k("v_lshl_add_u32 v28, v25, 3, v24"); k("v_lshlrev_b32 v28, 2, v28")
    k("v_mov_b32 v30, 0x7fffffff"); k("v_cmp_gt_u32 vcc, 8, v24"); k("v_cndmask_b32 v28, v30, v28, vcc")
    k("s_mul_i32 s74, s72, %d" % (128*1280)); k("s_lshl_b32 s75, s72, 9")
    def gl(n):
        for j in range(5): k.vm("buffer_load_dwordx4 %s, v27, s[%d:%d], s74 offen offset:%d" % (vr(64+(n % 8)*20+4*j,4), SRD_X, SRD_X+3, 256*j), ("gx", n))
        k("s_add_u32 s74, s74, %d" % (1280 if n % 8 != 7 else 25*1280))
    for n in range(3): gl(n)
    k("s_mov_b32 s76, 0")
    k.label("L_gate")
    for it in range(8):
        k.wait(vm=("gx", it))
        gl(it + 3)
        k("v_mov_b32 v30, 0")
        for j in range(20): k("v_dot2c_f32_bf16 v30, v%d, v%d" % (64+it*20+j, 32+j))
        k("s_nop 3")
        for sh in (8, 4, 2, 1): k("v_add_f32_dpp v30, v30, v30 row_ror:%d row_mask:0xf bank_mask:0xf" % sh)
        k("v_cmp_eq_u32 vcc, %d, v24" % it)
        k("v_cndmask_b32 v29, v29, v30, vcc")
    k("v_mul_f32 v31, %s, v29" % f32(-LOG2E)); k("v_exp_f32 v31, v31"); k("v_add_f32 v31, 1.0, v31"); k("v_rcp_f32 v31, v31")
    k("s_nop 0")
    k("buffer_store_dword v31, v28, s[%d:%d], s75 offen%s" % (SRD_W0, SRD_W0+3, SC))
    k("s_add_u32 s75, s75, 128"); k("s_add_u32 s76, s76, 1"); k("s_cmp_lt_u32 s76, 4"); k("s_cbranch_scc1 L_gate")
    k("s_waitcnt vmcnt(0)"); k.vmq = []
    signal(k, P_DBG, D_S3)
    stamp(k, 4)
    poll_issue(k, P_DBG, D_S1, "s1"); poll_check(k, P_DBG, N_S1, "s1", sleep=16)
    Feed(k, b_items(list(range(18)) + list(range(27, 62))) + bo_items()[:cfg.BOQ]).drain()
    stamp(k, 5)
    k.label("L_qtail")

def pack_inplace(v, E):
    out = ["v_cvt_pk_bf16_f32 v%d, v%d, v%d" % (v[10+i], v[2*i], v[2*i+1]) for i in range(9, -1, -1)]
    out += ["v_cvt_pk_bf16_f32 v%d, v%d, v%d" % (v[i], E+2*i, E+2*i+1) for i in range(10)]
    return out
def minmax(v, T):
    out = ["v_max3_f32 v%d, v%d, v%d, v%d" % (T, v[0], v[1], v[2]), "v_min3_f32 v%d, v%d, v%d, v%d" % (T+2, v[0], v[1], v[2]),
           "v_max3_f32 v%d, v%d, v%d, v%d" % (T+1, v[3], v[4], v[5]), "v_min3_f32 v%d, v%d, v%d, v%d" % (T+3, v[3], v[4], v[5])]
    for n, i in enumerate(range(6, 20, 2)):
        c = n & 1
        out += ["v_max3_f32 v%d, v%d, v%d, v%d" % (T+c, T+c, v[i], v[i+1]), "v_min3_f32 v%d, v%d, v%d, v%d" % (T+2+c, T+2+c, v[i], v[i+1])]
    out += ["v_max_f32 v%d, v%d, v%d" % (T, T, T+1), "v_min_f32 v%d, v%d, v%d" % (T+2, T+2, T+3),
            "v_mul_f32 v%d, %s, v%d" % (T, f32(-LOG2E), T), "v_mul_f32 v%d, %s, v%d" % (T+2, f32(LOG2E), T+2)]
    return out
def softmax_scalar(v, E, T):
    o = [(1, t) for t in minmax(v, T)]
    for i in range(20): o.append((1, "v_fma_f32 v%d, v%d, s%d, v%d" % (E+i, v[i], S_C2, T)))
    for i in range(20): o.append((1, "v_fma_f32 v%d, -v%d, s%d, v%d" % (v[i], v[i], S_C2, T+2)))
    for x in [E+i for i in range(20)] + v: o.append((2, "v_exp_f32 v%d, v%d" % (x, x)))
    e = [E+i for i in range(20)]
    for c, (src, d) in enumerate(((e, T), (v, T+2))):
        o += [(1, "v_add_f32 v%d, v%d, v%d" % (d, src[0], src[1])), (1, "v_add_f32 v%d, v%d, v%d" % (d+1, src[2], src[3]))]
    for i in range(4, 20, 2):
        for src, d in ((e, T), (v, T+2)):
            o += [(1, "v_add_f32 v%d, v%d, v%d" % (d, d, src[i])), (1, "v_add_f32 v%d, v%d, v%d" % (d+1, d+1, src[i+1]))]
    o += [(1, "v_add_f32 v%d, v%d, v%d" % (T, T, T+1)), (1, "v_add_f32 v%d, v%d, v%d" % (T+2, T+2, T+3)),
          (2, "v_rcp_f32 v%d, v%d" % (T, T)), (2, "v_rcp_f32 v%d, v%d" % (T+2, T+2))]
    for x in e: o.append((1, "v_mul_f32 v%d, v%d, v%d" % (x, x, T)))
    for x in v: o.append((1, "v_mul_f32 v%d, v%d, v%d" % (x, x, T+2)))
    o += [(1, t) for t in pack_inplace(v, E)]
    return o

PHB = 102400; KVB = PHB + 20480; RED = PHB
def tail(k, nu, pre, late, bolate, MF, presig=None, reducer=False):
    nsig = nu
    if cfg.X_END:
        if presig: presig()
        k("s_endpgm"); return
    if not presig: k.flush_counters()
    stamp(k, 6)
    def ch():
        k("s_lshr_b32 s82, s%d, 1" % S_M64); k("s_mul_i32 s82, s82, %d" % cfg.CS)
        poll_issue(k, S_CNT, "s82", "h_ok")
    if not presig: ch()
    k("v_and_b32 v24, 15, v0"); k("v_lshrrev_b32 v25, 4, v0")
    k("s_mul_i32 s%d, s%d, %d" % (S_T0, S_M64, 74*4096))
    srd(k, SRD_X, P_WS, A2_OFF, 74*4096, S_T0)
    k("s_add_u32 s80, s%d, 20" % S_W); k("s_lshl_b32 s80, s80, 12")
    VA = 26
    for j in range(4):
        k("s_add_u32 s75, s%d, %d" % (S_W, j)); k("s_and_b32 s75, s75, 3"); k("s_lshl_b32 s75, s75, 10")
        k("v_add_u32 v%d, s75, v%d" % (VA+j, V_L16))
    A0 = 64
    XD = 0 if reducer else (cfg.XD if nu else 4)
    def af(i): return 192 + 16*i if i < XD else 144 + ((i - XD) % 3)*16
    TO = (1, 2, 3, 0)
    def a_load(i, j):
        k.vm("buffer_load_dwordx4 %s, v%d, s[%d:%d], s80 offen%s" % (vr(af(i)+4*j,4), VA+j, SRD_X, SRD_X+3, LSC), ("A", i, j))
        if j == TO[3]: k("s_add_u32 s80, s80, %d" % (4*4096))
    def setup(q):
        T0, T1, T2 = 5, 8, 9
        srd(q, SRD_W1, P_WS, G_OFF, G_SZ)
        srd(q, SRD_P, P_WS, PQ_OFF, PQ_SZ)
        srd(q, SRD_W0, P_WS, KVF_OFF, 16*4096)
        srd(q, SRD_O, P_WS, A2_OFF, A2_SZ)
        q("v_lshlrev_b32 v6, 2, v24"); q("v_lshlrev_b32 v7, 4, v24")
        q("s_mul_i32 s72, s%d, %d" % (S_OH, 2*128*1280))
        q("s_lshl_b32 s75, s%d, 2" % S_OMT); q("s_add_u32 s75, s75, s%d" % S_W); q("s_mul_i32 s81, s75, 2560")
        q("s_add_u32 s81, s81, s72"); q("s_add_u32 s101, s81, %d" % (128*1280))
        q("s_lshl_b32 s%d, s75, 7" % S_T2)
        q("s_lshl_b32 s75, s%d, 1" % S_OMT)
        q("v_min_u32 v17, 1, v0"); q("v_mul_u32_u24 v17, %d, v17" % (2*nu-1)); q("v_add_u32 v17, s75, v17"); q("v_mul_u32_u24 v17, 171, v17"); q("v_lshrrev_b32 v17, 9, v17")
        q("s_lshr_b32 s75, s%d, 2" % S_OH); q("s_mul_i32 s75, s75, 12"); q("s_add_u32 s75, s75, %d" % C_P)
        q("v_add_u32 v17, s75, v17"); q("v_mul_u32_u24 v17, %d, v17" % cfg.CS)
        q("v_mov_b32 v30, 0x7fffffff")
        q("s_mul_i32 s72, s%d, 5" % S_OH)
        for dst, add, nvalid in ((12, 0, 3), (13, 3, 2)):
            q("v_add_u32 v%d, s72, v25" % T2)
            if add: q("v_add_u32 v%d, %d, v%d" % (T2, add, T2))
            q("v_lshrrev_b32 v%d, 2, v%d" % (T0, T2))
            q("v_lshlrev_b32 v%d, 12, v%d" % (T0, T0))
            q("v_and_b32 v%d, 3, v%d" % (T1, T2))
            q("v_lshl_add_u32 v%d, v%d, 8, v%d" % (T0, T1, T0))
            q("v_lshl_add_u32 v%d, v24, 4, v%d" % (T0, T0))
            q("v_cmp_gt_u32 vcc, %d, v25" % nvalid)
            q("v_cndmask_b32 v%d, v30, v%d, vcc" % (dst, T0))
        q("s_lshl_b32 s73, s%d, 1" % S_OMT); q("s_add_u32 s73, s73, s%d" % S_C)
        q("s_mul_i32 s73, s73, %d" % (74*4096))
        q("s_lshl_b32 s75, s%d, 11" % S_RH); q("s_add_u32 s73, s73, s75")
        q("s_lshl_b32 s74, s%d, 2" % S_OH); q("s_add_u32 s74, s74, s%d" % S_W); q("s_lshl_b32 s74, s74, 10")
        q("v_bfe_u32 v%d, v0, 2, 2" % T0); q("v_and_b32 v%d, 3, v0" % T1)
        q("v_lshl_add_u32 v%d, v%d, 3, v%d" % (T2, T0, T1))
        for hd in range(2):
            for i in range(3):
                d = 18 + hd*3 + i
                if i == 2: q("v_mov_b32 v%d, %d" % (d, KVB + 1600 + hd*1680))
                else:
                    q("v_add_u32 v16, %d, v%d" % (4*i + 4*hd, T2)); q("v_min_u32 v16, 20, v16")
                    if hd == 1 and i == 0:
                        q("v_cmp_eq_u32 vcc, 2, v%d" % T0); q("v_cndmask_b32 v16, v16, v%d, vcc" % T1)
                    q("v_mul_u32_u24 v16, 80, v16")
                    q("v_add_u32 v%d, %d, v16" % (d, KVB + hd*1680))
        q("v_cmp_eq_u32 s[78:79], 0, v25")
        q("v_cmp_eq_u32 s[76:77], 2, v25")
        q("v_mov_b32 v30, %d" % (KVB + 3584 - 64))
        q("s_lshl_b32 s75, s%d, 10" % S_W); q("s_add_u32 s75, s75, %d" % KVB); q("v_add_u32 v10, s75, v%d" % V_L16)
    def setup0(q):
        srd(q, SRD_W1, P_WS, G_OFF, G_SZ)
        q("v_lshlrev_b32 v6, 2, v24")
    su = [t for _, t in capture(setup if nu else setup0)]
    fd = Feed(k, [])
    if presig:
        for t in su: k(t)
        su = []
        presig()
        fd.q += pre[:cfg.FPRE]; pre = pre[cfg.FPRE:]
        fd.emit(max(0, len(fd.q) - 4)); ch(); fd.drain()
    stamp(k, 8)
    poll_check(k, S_CNT, 9, "h_ok")
    stamp(k, 9)
    for i in range(3 + XD):
        for j in TO: a_load(i, j)
    for t in su: k(t)
    def sent(regs, t):
        k("v_max3_u32 v%d, v%d, v%d, v%d" % (t, regs[0], regs[1], regs[2]))
        rest = regs[3:]
        while len(rest) >= 2:
            k("v_max3_u32 v%d, v%d, v%d, v%d" % (t, t, rest[0], rest[1])); rest = rest[2:]
        if rest: k("v_max_u32 v%d, v%d, v%d" % (t, t, rest[0]))
    def do_reduce():
        e = k.newlabel("Lnr")
        sv = list(k.vmq)
        srd(k, SRD_W0, P_WS, KVF_OFF, 16*4096)
        k("s_lshl_b32 s74, s%d, 2" % S_OH); k("s_add_u32 s74, s74, s%d" % S_W); k("s_lshl_b32 s74, s74, 10")
        stamp(k, 17)
        srd(k, SRD_T, P_WS, KVP_OFF, KVP_SZ)
        k("s_lshl_b32 s75, s%d, 10" % S_W)
        k("v_add_u32 v11, s75, v%d" % V_L16)
        k("v_mov_b32 v14, 0x7fffffff")
        k("v_cmp_gt_u32 vcc, 3360, v11")
        k("v_cndmask_b32 v11, v14, v11, vcc")
        k("s_mul_i32 s72, s%d, %d" % (S_OH, 16*KVPS))
        SEL = 240
        k("v_bfe_u32 v5, v0, 2, 2"); k("v_and_b32 v8, 3, v0")
        k("v_and_b32 v14, 1, v0"); k("v_lshlrev_b32 v14, 4, v14")
        k("v_mov_b32 v15, 0x3f80"); k("v_lshlrev_b32 v14, v14, v15")
        k("v_cmp_eq_u32 vcc, v5, v25"); k("v_cndmask_b32 v14, 0, v14, vcc")
        k("v_cmp_gt_u32 vcc, 2, v8"); k("v_cndmask_b32 v15, 0, v14, vcc"); k("v_cndmask_b32 v14, v14, 0, vcc")
        for r, src in ((120, "v15"), (121, "v14"), (122, "0"), (123, "0"), (124, "0"), (125, "0"), (126, "v15"), (127, "v14")):
            k("v_accvgpr_write_b32 a%d, %s" % (r, src))
        l = k.newlabel("Lkp"); d = k.newlabel("Lkd")
        k("s_mov_b32 s95, 0x4000")
        k.label(l)
        k.vmq = []
        RA = 248
        def kr(p): return 192 + 4*(p % 14)
        def kl(p):
            k("s_add_u32 s75, s72, %d" % (p*KVPS))
            k.vm("buffer_load_dwordx4 %s, v11, s[%d:%d], s75 offen%s" % (vr(kr(p),4), SRD_T, SRD_T+3, SC), ("kp", p))
        for p in range(14): kl(p)
        for p in range(16):
            k.wait(vm=("kp", p))
            for h in range(2): k("v_mfma_f32_16x16x32_bf16 %s, %s, %s, %s" % (vr(RA+4*h,4), ar(120+4*h,4), vr(kr(p),4), vr(RA+4*h,4) if p else "0"))
            r = [kr(p)+i for i in range(4)]
            sent(r if p == 0 else [9] + r, 9)
            if p < 2: kl(14+p)
        k("v_cmp_eq_u32 vcc, -1, v9")
        k("s_sub_u32 s95, s95, 1")
        k("s_cmp_eq_u64 vcc, 0")
        k("s_cbranch_scc1 %s" % d)
        k("s_cmp_lg_u32 s95, 0")
        k("s_cbranch_scc1 %s" % l)
        k.label(d)
        k("s_nop 3")
        for i in range(4): k("v_cvt_pk_bf16_f32 v%d, v%d, v%d" % (192+i, RA+2*i, RA+1+2*i))
        k("buffer_store_dwordx4 v[192:195], v%d, s[%d:%d], s74 offen%s" % (V_L16, SRD_W0, SRD_W0+3, SC))
        stamp(k, 18)
        k.label(e)
        k.vmq = sv
    fl = Feed(k, list(pre) + b_items(late) + bolate)
    bolate = []
    lds = []
    cnt = [0]
    order = [(i, j) for i in range(11) for j in TO] + [(i, j) for j in TO for i in range(11, 14)]
    def main():
        for (i, j) in order:
            pend = set(t[2][1] for t in fl.q if isinstance(t[2], tuple) and t[2][0] == "B")
            assert not (pend & set(range(i*5, i*5+5))), (i, pend)
            k.wait(vm=[("A", i, j)] + [("B", i*5+ct) for ct in range(5)])
            for ct in range(5):
                a = A0 + (j*5+ct)*4
                k("v_mfma_f32_16x16x32_bf16 %s, %s, %s, %s" % (vr(a,4), R(bloc(i*5+ct),4), vr(af(i)+4*j,4), vr(a,4) if i else "0"))
                cnt[0] += 1
                if lds: emit1(k, lds.pop(0))
                if ct == 4 and i >= XD and i + 3 < 14: a_load(i + 3, j)
                if ct in cfg.FLAT: fl.emit(1)
                yield 1
    g = main()
    def run(n):
        for _ in range(n): next(g, None)
    def upto(m): run(max(0, m - cnt[0]))
    def mix(items, per):
        for i, it in enumerate(items):
            emit1(k, it)
            if i % per == per-1: run(1)
    if reducer:
        upto(cfg.MK); do_reduce()
    if nu:
        run(5); poll_issue(k, P_DBG, D_S3, "s3"); run(25)
        poll_check(k, P_DBG, N_S3, "s3", sleep=8, barrier=False)
    if nu:
        def oa(i): return bloc(((i + 16) if i < 12 else (i - 12)) if cfg.RMP else i)
        MF = max(MF, 116 if cfg.RMP else 100)
        upto(max(MF - 60, 20*XD))
        k("v_mov_b32 v%d, v17" % V_PT); _pload(k, S_CNT, "p_ok")
        upto(max(MF - (45 if cfg.RMP else 35), 80))
        poll_check(k, S_CNT, 1, "p_ok"); stamp(k, 7)
        UO = 8 if cfg.U2 else 0
        def pql(u):
            it = ["s_add_u32 s81, s81, 10240", "s_add_u32 s101, s101, 10240"] if u else []
            for hd in range(2):
                so = ("s81", "s101")[hd]
                for r2 in range(2):
                    it.append(("vm", "buffer_load_dwordx4 %s, v%d, s[%d:%d], %s offen offset:%d%s" % (R(oa(12+UO*u+hd*4+2*r2),4), V_L16, SRD_P, SRD_P+3, so, r2*1280, SC), ("pq", u)))
                    it.append(("vm", "buffer_load_dwordx4 %s, v7, s[%d:%d], %s offen offset:%d%s" % (R(oa(13+UO*u+hd*4+2*r2),4), SRD_P, SRD_P+3, so, r2*1280+1024, SC), ("pq", u)))
            return it
        gl = [("vm", "buffer_load_dword v%d, v6, s[%d:%d], s%d offen offset:%d%s" % (250+2*u+r2, SRD_W1, SRD_W1+3, S_T2, u*512 + r2*64, SC), ("pq", 0)) for u in range(nu) for r2 in range(2)]
        mix(pql(0) + gl + (pql(1) if cfg.RMP else []), 1)
        ld = "buffer_load_dwordx4 v[192:195], v%d, s[%d:%d], s74 offen%s" % (V_L16, SRD_W0, SRD_W0+3, SC)
        k.vm(ld, "kf"); run(cfg.KLAT); upto(MF)
        stamp(k, 10)
        l = k.newlabel("Lkf"); d = k.newlabel("Lkg")
        k.wait(vm="kf")
        k("s_mov_b32 s95, 0x8000")
        k.label(l)
        sent([192, 193, 194, 195], 196)
        k("v_cmp_eq_u32 vcc, -1, v196")
        k("s_sub_u32 s95, s95, 1")
        k("s_cmp_eq_u64 vcc, 0")
        k("s_cbranch_scc1 %s" % d)
        k("s_sleep %d" % cfg.SLP)
        k(ld)
        k("s_waitcnt vmcnt(0)")
        k("s_cmp_lg_u32 s95, 0")
        k("s_cbranch_scc1 %s" % l)
        k.label(d)
        stamp(k, 11)
        k.lg("ds_write_b128 v10, v[192:195]", "kw")
        run(4)
        if cfg.RMP: upto(120)
        k.wait(lg="all"); k("s_barrier"); stamp(k, 28)
        it = []
        for hd in range(2):
            for i in range(3):
                it += ["v_lshl_add_u32 v15, v25, 4, v%d" % (18+hd*3+i), "v_cndmask_b32 v14, v30, v%d, s[78:79]" % (18+hd*3+i),
                       ("lg", "ds_read_b128 %s, v15" % R(oa(hd*6+2*i),4), ("o", 0, hd)), ("lg", "ds_read_b128 %s, v14 offset:64" % R(oa(hd*6+2*i+1),4), ("o", 0, hd))]
        mix(it, cfg.MIX)
        run(4)
        if cfg.U2 and nu > 1 and not cfg.RMP:
            upto(120); mix(pql(1), 2)
        def brd(u): return [] if cfg.U2 else pql(u)
        KO = 192
        for u in range(nu):
            for hd in range(2):
                k.wait(lg=("o", u, hd), vm=("pq", u))
                for s in range(2):
                    for r2 in range(2):
                        for i in (2, 0, 1):
                            a = KO + (hd*2+r2)*12 + i*4
                            k("v_mfma_f32_16x16x32_bf16 %s, %s, %s, %s" % (vr(a,4), R(oa(hd*6+2*i+s),4), R(oa(12+UO*u+hd*4+2*r2+s),4), vr(a,4) if s else "0"))
            it = brd(u+1) if u + 1 < nu else []
            for q in range(4): it.append("v_add_f32 v%d, %s, v%d" % (KO+q*12+8, f32(1e-6), KO+q*12+8))
            for q in range(4): it.append("v_rcp_f32 v%d, v%d" % (KO+q*12+8, KO+q*12+8))
            for q in range(4): it.append("v_mul_f32 v%d, v%d, v%d" % (KO+q*12+8, KO+q*12+8, 250+2*u+(q & 1)))
            for r2 in range(2):
                a0 = KO + r2*12; a1 = KO + (2+r2)*12
                for a in (a1, a0):
                    if cfg.PKC:
                        for i in range(4): it.append("v_pk_mul_f32 %s, %s, %s op_sel_hi:[1,0]" % (vr(a+2*i,2), vr(a+2*i,2), vr(a+8,2)))
                    else:
                        for i in range(8): it.append("v_mul_f32 v%d, v%d, v%d" % (a+i, a+i, a+8))
                    for i in range(4): it.append("v_cvt_pk_bf16_f32 v%d, v%d, v%d" % (a+8+i, a+2*i, a+2*i+1))
                    if a == a1: it.append(("vm", "buffer_store_dwordx4 %s, v13, s[%d:%d], s73 offen offset:%d%s" % (vr(a1+8,4), SRD_O, SRD_O+3, r2*1024, SC), "st"))
                it.append("v_cndmask_b32 v%d, v%d, v%d, s[76:77]" % (a0+10, a0+10, a1+8))
                it.append("v_cndmask_b32 v%d, v%d, v%d, s[76:77]" % (a0+11, a0+11, a1+9))
                it.append(("vm", "buffer_store_dwordx4 %s, v12, s[%d:%d], s73 offen offset:%d%s" % (vr(a0+8,4), SRD_O, SRD_O+3, r2*1024, SC), "st"))
            if u + 1 < nu: it.append("s_add_u32 s73, s73, %d" % (2*74*4096))
            mix(it, cfg.MIX * nu)
        stamp(k, 29)
        run(cfg.OSD)
        if cfg.BPR: fl.drain()
        k.wait(vm=["st", "BO"])
        d = k.newlabel("Lsg")
        k("s_add_u32 s82, s%d, %d" % (S_OMT, C_O)); k("s_mul_i32 s82, s82, %d" % cfg.CS)
        k("s_barrier")
        k("s_cmp_lg_u32 s%d, 0" % S_W)
        k("s_cbranch_scc1 %s" % d)
        k("v_mul_u32_u24 v%d, %d, v0" % (V_PT, cfg.CS)); k("v_add_u32 v%d, s82, v%d" % (V_PT, V_PT))
        k("v_mov_b32 v31, 1")
        k("s_mov_b64 exec, %d" % ((1 << nsig) - 1))
        k("global_atomic_add v%d, v31, s[%d:%d] sc1" % (V_PT, S_CNT, S_CNT+1))
        k("s_mov_b64 exec, -1")
        k.label(d)
        stamp(k, 12)
        fl.q += bolate
    q = K()
    for j in range(1, 4):
        q("s_add_u32 s75, s%d, %d" % (S_W, j)); q("s_and_b32 s75, s75, 3"); q("s_mul_i32 s75, s75, 15360")
        q("s_add_u32 s75, s75, %d" % (RED + (j-1)*5120))
        q("v_add_u32 v%d, s75, v%d" % (10+j, V_L16))
    q("s_mul_i32 s75, s%d, 15360" % S_W); q("s_add_u32 s75, s75, %d" % RED)
    q("v_add_u32 v8, s75, v%d" % V_L16)
    q("v_add_u32 v9, 51200, v%d" % V_L16)
    srd(q, SRD_O, P_OUT, 0, 2048*1280)
    q("s_lshl_b32 s81, s%d, 6" % S_M64); q("s_lshl_b32 s75, s%d, 4" % S_W); q("s_add_u32 s81, s81, s75")
    q("s_lshl_b32 s74, s81, 2")
    q("s_mul_i32 s81, s81, 1280"); q("s_mul_i32 s75, s%d, 160" % S_NT); q("s_add_u32 s81, s81, s75")
    q("v_mul_u32_u24 v16, 1280, v24"); q("v_lshl_add_u32 v16, v25, 3, v16")
    q("s_lshr_b32 s82, s%d, 1" % S_M64); q("s_add_u32 s82, s82, %d" % C_O); q("s_mul_i32 s82, s82, %d" % cfg.CS)
    q("s_mov_b32 s73, 0")
    if cfg.WIDE:
        q("s_mul_i32 s75, s%d, 15360" % S_W); q("s_add_u32 s75, s75, %d" % RED)
        q("v_mul_u32_u24 v17, 176, v24"); q("v_lshl_add_u32 v17, v25, 3, v17"); q("v_add_u32 v17, s75, v17")
        q("v_mov_b32 v30, 0x7fffffff")
        for i in range(3):
            q("v_add_u32 v14, %d, v0" % (64*i)); q("v_mul_u32_u24 v15, 205, v14"); q("v_lshrrev_b32 v15, 11, v15")
            q("v_mul_u32_u24 v7, 10, v15"); q("v_sub_u32 v14, v14, v7"); q("v_lshlrev_b32 v14, 4, v14")
            q("v_mul_u32_u24 v7, 176, v15"); q("v_add3_u32 v%d, v7, v14, s75" % (18+i))
            q("v_mul_u32_u24 v7, 1280, v15"); q("v_add_u32 v%d, v7, v14" % (21+i))
        q("v_cmp_gt_u32 vcc, 32, v0\nv_cndmask_b32 v23, v30, v23, vcc")
    mix([t for _, t in q.items], 2)
    def bol(n): return bloc(n % 70)
    def bo_read(n):
        off = n*1024
        return ("lg", "ds_read_b128 %s, v%d offset:%d" % (R(bol(n), 4), V_L16 if off < 51200 else 9, off % 51200), ("bo", n // 5))
    nr = 0
    if cfg.BPR:
        if not nu:
            while fl.q: run(1)
            run(cfg.BPW)
            k.wait(vm="BO"); k("s_barrier")
        while cnt[0] < min(cfg.MO, 238) - 20:
            if nr < min(cnt[0] // 20, 11) * 5 and not lds: lds.append(bo_read(nr)); nr += 1
            run(1)
    upto(min(cfg.MO, 238) - 20)
    fl.drain()
    if cfg.MO < 280 and cnt[0] <= 238:
        poll_issue(k, S_CNT, "s82", "o_ok")
        while cfg.BPR and cnt[0] < cfg.MO:
            if nr < min(cnt[0] // 20, 11) * 5 and not lds: lds.append(bo_read(nr)); nr += 1
            run(1)
        upto(cfg.MO)
    def of(ks): return 192 + 4*ks if ks < 16 else 148 + 16*(ks-16) if ks < 19 else 152
    def ao(ks): return ("s_add_u32 s73, s73, 4096" if ks else None, "buffer_load_dwordx4 %s, v%d, s[%d:%d], s73 offen%s" % (vr(of(ks),4), VA, SRD_X, SRD_X+3, LSC), ("Ao", ks))
    def red_w(j): return [("lg", "ds_write_b128 v%d, %s offset:%d" % (10+j, vr(A0+(j*5+ct)*4,4), ct*1024), "rw") for ct in range(5)]
    def oready():
        stamp(k, 13)
        poll_check(k, S_CNT, 16, "o_ok")
        stamp(k, 14)
        k.vm("buffer_load_dword v5, v6, s[%d:%d], s74 offen%s" % (SRD_W1, SRD_W1+3, SC), "g2")
        fa = Feed(k, [ao(ks) for ks in range(20)])
        fa.emit(cfg.AO0)
        return fa
    rr = [("lg", "ds_read_b128 %s, v8 offset:%d" % (vr(A0+20+4*j,4), j*1024), ("r", j // 5)) for j in range(15)]
    late_o = cfg.MO >= 280 or cnt[0] > 238
    if not late_o:
        fa = oready()
        fl.q = fa.q[:16-cfg.AO0]; fa.q = fa.q[16-cfg.AO0:]
        free = min(cnt[0] // 20, 11) * 5
        for c in (238, 253, 268, 280):
            n = min(free - nr, c - cnt[0] - len(lds))
            lds += [bo_read(x) for x in range(nr, nr + max(n, 0))]; nr += max(n, 0)
            upto(c)
            if c < 280: lds[:0] = red_w((238, 253, 268).index(c) + 1)
        weave(k, [], lds); del lds[:]
        fl.drain()
        fa.drain()
        k.wait(vm="g2")
        k("v_sub_f32 v10, 1.0, v5")
        for j in range(10): k("v_pk_mul_f32 %s, %s, v[10:11] op_sel_hi:[1,0]" % (vr(A0+2*j,2), vr(A0+2*j,2)))
        k.wait(lg="rw")
        k("s_barrier")
        while nr < 15:
            emit1(k, bo_read(nr)); nr += 1
    else:
        for j, c in enumerate((238, 253, 268)):
            upto(c); lds += red_w(j+1)
        upto(280)
        weave(k, [], lds); del lds[:]
        k.wait(lg="rw", vm="BO")
        k("s_barrier")
        weave(k, [], rr); del rr[:]
        poll_issue(k, S_CNT, "s82", "o_ok")
        for sl in range(3):
            k.wait(lg=("r", sl))
            weave(k, [], [bo_read(x) for x in range(nr, min(70, nr+10))]); nr = min(70, nr+10)
            for j in range(10): k("v_pk_add_f32 %s, %s, %s" % (vr(A0+2*j,2), vr(A0+2*j,2), vr(A0+20+20*sl+2*j,2)))
        weave(k, [], [bo_read(x) for x in range(nr, cfg.BPRE)]); nr = max(nr, cfg.BPRE)
        fa = oready()
        fa.emit(6)
        weave(k, [], [bo_read(x) for x in range(nr, 70)]); nr = 70
        fa.drain()
        k.wait(vm="g2")
        k("v_sub_f32 v10, 1.0, v5")
        for j in range(10): k("v_pk_mul_f32 %s, %s, v[10:11] op_sel_hi:[1,0]" % (vr(A0+2*j,2), vr(A0+2*j,2)))
    for ks in range(20):
        k.wait(vm=("Ao", ks), lg=("bo", ks))
        mf = ["v_mfma_f32_16x16x32_bf16 %s, %s, %s, %s" % (vr(A0+ct*4,4), R(bol(ks*5+ct), 4), vr(of(ks),4), vr(A0+ct*4,4)) for ct in range(5)]
        fill = [bo_read(n) for n in range(nr, min(100, nr+5, ks*5+70))]; nr += len(fill)
        while len(fill) < 5 and rr: fill.append(rr.pop(0))
        weave(k, mf, fill, per=1)
    if not late_o:
        weave(k, [], rr)
        k.wait(lg="all")
        for j in range(10): k("v_pk_add_f32 %s, %s, %s" % (vr(A0+20+2*j,2), vr(A0+20+2*j,2), vr(A0+40+2*j,2)))
        for j in range(10): k("v_pk_add_f32 %s, %s, %s" % (vr(A0+20+2*j,2), vr(A0+20+2*j,2), vr(A0+60+2*j,2)))
    for ct in range(5):
        a = A0 + ct*4
        for h in range(2 if not late_o else 0): k("v_pk_fma_f32 %s, %s, v[10:11], %s op_sel_hi:[1,0,1]" % (vr(a+2*h,2), vr(a+20+2*h,2), vr(a+2*h,2)))
        k("v_cvt_pk_bf16_f32 v%d, v%d, v%d" % (A0+40+2*ct, a, a+1)); k("v_cvt_pk_bf16_f32 v%d, v%d, v%d" % (A0+41+2*ct, a+2, a+3))
        if cfg.WIDE: k.lg("ds_write_b64 v17, %s offset:%d" % (vr(A0+40+2*ct,2), ct*32))
        else: k.vm("buffer_store_dwordx2 %s, v16, s[%d:%d], s81 offen offset:%d%s" % (vr(A0+40+2*ct,2), SRD_O, SRD_O+3, ct*32, cfg.OUTF), "st")
    if cfg.WIDE:
        for i in range(3): k.lg("ds_read_b128 %s, v%d" % (vr(A0+4*i,4), 18+i), ("w", i))
        for i in range(3):
            k.wait(lg=("w", i))
            k.vm("buffer_store_dwordx4 %s, v%d, s[%d:%d], s81 offen%s" % (vr(A0+4*i,4), 21+i, SRD_O, SRD_O+3, cfg.OUTF), "st")
    stamp(k, 30)
    stamp_out(k)
    k("s_endpgm")

def kernel(k):
    kernel_header(k, NAME)
    astamp(k, 0)
    k("s_load_dwordx16 s[8:23], s[0:1], 0")
    k("s_load_dwordx8 s[24:31], s[0:1], 64")
    k("s_cmp_ge_u32 s2, 256")
    k("s_cbranch_scc1 L_end")
    if cfg.CPF: code_prefetch(k, V_JUNK)
    k("v_lshrrev_b32 v2, 6, v0")
    k("v_and_b32 v0, 63, v0")
    k("v_readfirstlane_b32 s%d, v2" % S_W)
    if cfg.STAMP: k("v_mov_b32 v1, 0")
    stamp(k, 0)
    if cfg.EARLY0: k("v_writelane_b32 v1, s98, 0")
    if cfg.MAP == 2:
        k("s_bfe_u32 s%d, s2, 0x40003" % S_MT)
        k("s_and_b32 s%d, s2, 7" % S_T0)
        k("s_lshl_b32 s%d, s%d, 3" % (S_T0, S_T0))
        k("s_bfe_u32 s%d, s2, 0x10007" % S_T1)
        k("s_lshl_b32 s%d, s%d, 2" % (S_T1, S_T1))
        k("s_add_u32 s%d, s%d, s%d" % (S_T0, S_T0, S_T1))
        tab = cfg.ORDER
        k("s_mov_b32 s74, 0x%x" % sum(tab[i] << (4*i) for i in range(8))); k("s_mov_b32 s75, 0x%x" % sum(tab[8+i] << (4*i) for i in range(8)))
        k("s_lshr_b64 s[74:75], s[74:75], s%d" % S_T0)
        k("s_and_b32 s%d, s74, 15" % S_TY)
    else:
        k("s_and_b32 s%d, s2, 7" % S_T0)
        k("s_lshr_b32 s%d, s2, 3" % S_T1)
        k("s_lshl_b32 s74, s%d, 3" % S_T0); k("s_add_u32 s74, s74, s%d" % S_T1); k("s_add_u32 s74, s74, %d" % (9*16 - 18))
        k("s_lshl_b32 s75, s%d, 1" % S_T0); k("s_add_u32 s75, s75, s%d" % S_T1)
        k("s_add_u32 s76, s75, %d" % (8*16 - 16))
        k("s_cmp_lt_u32 s%d, 18" % S_T1); k("s_cselect_b32 s74, s76, s74")
        k("s_lshl_b32 s76, s%d, 4" % S_T0); k("s_add_u32 s76, s76, s%d" % S_T1)
        k("s_cmp_lt_u32 s%d, 16" % S_T1); k("s_cselect_b32 s74, s76, s74")
        k("s_and_b32 s%d, s74, 15" % S_MT)
        k("s_lshr_b32 s%d, s74, 4" % S_TY)
    k("s_and_b32 s%d, s%d, 1" % (S_RH, S_W))
    k("s_lshr_b32 s%d, s%d, 1" % (S_C, S_W))
    k("v_lshlrev_b32 v%d, 4, v0" % V_L16)
    k("s_cmp_ge_u32 s%d, 26" % S_T1); k("s_cbranch_scc1 L_qa")
    k("s_mov_b32 s75, 1280")
    k("s_mov_b32 s76, 1280")
    k("s_sub_u32 s79, s%d, 9" % S_TY)
    k("s_mul_i32 s%d, s79, 320" % S_T1)
    k("s_and_b32 s%d, s%d, 127" % (S_DELTA, S_T1))
    k("s_sub_u32 s%d, s%d, s%d" % (S_T1, S_T1, S_DELTA))
    k("s_add_u32 s75, s75, s%d" % S_T1)
    k("s_add_u32 s76, s76, s75")
    k("s_mul_i32 s%d, s%d, 384" % (S_T1, S_TY))
    k("s_mov_b32 s%d, 3840" % S_STRIDE)
    k("s_cmp_lt_u32 s%d, 9" % S_TY)
    k("s_cselect_b32 s75, s%d, s75" % S_T1)
    k("s_cselect_b32 s76, s%d, s76" % S_T1)
    k("s_cselect_b32 s%d, 3456, s%d" % (S_STRIDE, S_STRIDE))
    k("s_mul_i32 s%d, s%d, 640" % (S_T1, S_STRIDE))
    k("s_sub_u32 s77, s%d, s75" % S_T1)
    k("s_sub_u32 s78, s%d, s76" % S_T1)
    gemm_setup(k)
    k("s_mul_i32 s%d, s%d, %d" % (S_T0, S_MT, 128*1280))
    astamp(k, 1)
    k("s_waitcnt lgkmcnt(0)")
    astamp(k, 2)
    k("s_cmp_lt_u32 s%d, 9" % S_TY)
    k("s_cselect_b64 s[16:17], s[%d:%d], s[%d:%d]" % (P_WG, P_WG+1, P_WQKV, P_WQKV+1))
    k("s_cselect_b64 s[%d:%d], s[%d:%d], s[%d:%d]" % (P_WU, P_WU+1, P_WU, P_WU+1, P_WQKV, P_WQKV+1))
    srd(k, SRD_X, P_X, 0, 128*1280, S_T0)
    stamp(k, 1)
    Q = dma_queue()
    issue_now(k, Q, 4)
    srd(k, SRD_W0, 16, 0, "s77", 75)
    srd(k, SRD_W1, P_WU, 0, "s78", 76)
    issue_now(k, Q, 6)
    astamp(k, 3)
    touch_setup(k)
    for it in touch_items(-1):
        if it[0]: k(it[0])
        k.vm(it[1], it[2])
    sv0 = list(k.vmq)
    aflush(k)
    k("s_cmp_ge_u32 s%d, 9" % S_TY); k("s_cbranch_scc1 L_att")
    ps, rest = ffn_role(k, Q)
    sv = (list(k.vmq), list(k.lgq))
    k("s_cmp_ge_u32 s%d, 8" % S_TY); k("s_cbranch_scc1 L_f1")
    tail(k, 1 if cfg.UNI else 2, list(rest), [], [], cfg.MF, presig=ps)
    k.label("L_f1")
    k.vmq, k.lgq = sv
    tail(k, cfg.UNI, list(rest), [], [], 100, presig=ps, reducer=True)
    k.label("L_att")
    k("s_lshl_b32 s79, s79, 1")
    k("s_add_u32 s79, s79, s%d" % S_C)
    k("s_mul_i32 s80, s79, 3200")
    srd(k, SRD_P, P_WPHI, 0, 3200, 80)
    k.flush_counters(); k.vmq = list(sv0)
    att_loop(k, Q)
    kv_role(k)
    tail(k, cfg.UNI, [], list(range(cfg.KVN, 70)), bo_items(), cfg.MFK)
    k.flush_counters()
    k.label("L_qa")
    k.vmq = ["pf"]
    qa_role(k)
    tail(k, cfg.UNI, [], list(range(18, 27)) + list(range(62, 70)), bo_items()[cfg.BOQ:], cfg.MFK)
    k.label("L_end")
    k("s_endpgm")

DOC = """; One fused launch, 256 workgroups (one per CU, 4 waves, 512 registers), generated by a script of my own.
;   the same launch); sc1 loads on the reading side; every spin is bounded."""
def build(fn, listform=True):
    k = K()
    k.raw(open("header.txt").read().rstrip())
    if listform: k.raw("; @launch kernel=%s grid=(256,1,1) block=(256,1,1) lds=163840" % NAME)
    else: k.raw("; @launch grid=(256,1,1) block=(256,1,1) lds=163840")
    k.raw(DOC)
    k.raw('.amdgcn_target "amdgcn-amd-amdhsa--gfx950"')
    k.raw(".text")
    kernel(k)
    k.raw('.section .rodata,"a"')
    k.raw(kernel_desc(NAME, 512, 256))
    open(fn, "w").write(k.text())
    if cfg.ALIGN:
        import align
        align.align(fn, cfg.ALIGN)

if __name__ == "__main__":
    for a in sys.argv[2:]:
        if "=" in a:
            n, v = a.split("="); setattr(cfg, n, eval(v))
    if cfg.NOSC: LSC = ""
    if cfg.OUTF == 1: cfg.OUTF = " sc1"
    build(sys.argv[1], listform="single" not in sys.argv)
```
